```python
import torch

def _softmax(x, axis=-1):
    return torch.softmax(x, dim=axis)
def _gelu(x):
    return torch.nn.functional.gelu(x, approximate="tanh")
def _silu(x):
    return torch.nn.functional.silu(x)
def _sigmoid(x):
    return torch.sigmoid(x)
def _layernorm(x, axis=-1, eps=1e-5):
    m = x.mean(dim=axis, keepdim=True)
    v = x.var(dim=axis, keepdim=True, unbiased=False)
    return (x - m) / torch.sqrt(v + eps)
def _scatter_add(tgt, idx, src, axis=0):
    return tgt.clone().index_add_(axis, idx, src)
def _segment_sum(src, seg, n):
    out = torch.zeros((n,) + src.shape[1:], dtype=src.dtype)
    return out.index_add_(0, seg, src)
def _pad(x, pw):
    flat = tuple(v for pair in reversed(pw) for v in pair)
    return torch.nn.functional.pad(x, flat)

kernel_name = 'parallel_sum__grouped_kv_mqa__geglu_ffn__prompt'

def setup_inputs():

    _w = (lambda a: (lambda t: t.to(torch.bfloat16) if t.is_floating_point() else t)(torch.as_tensor(a)))
    def _A_setup():
        B, S, D, H = 1, 2048, 640, 32
        Dh = D // H
        return {
            "x": _w((lambda *s: torch.randn(*s, dtype=torch.bfloat16) * 0.05)(B, S, D)),
            "wq": _w((lambda *s: torch.randn(*s, dtype=torch.bfloat16) * 0.2)(D, H * Dh)),
            "wk": _w((lambda *s: torch.randn(*s, dtype=torch.bfloat16) * 0.2)(D, Dh)),
            "wv": _w((lambda *s: torch.randn(*s, dtype=torch.bfloat16) * 0.1)(D, Dh)),
            "wo": _w((lambda *s: torch.randn(*s, dtype=torch.bfloat16) * 0.1)(H * Dh, D)),
        }
    _A_in = _A_setup()

    def _B_setup():
        B, S, D, F = 1, 2048, 640, 1728
        return {
            "x": _w((lambda *s: torch.randn(*s, dtype=torch.bfloat16) * 0.05)(B, S, D)),
            "w_gate": _w((lambda *s: torch.randn(*s, dtype=torch.bfloat16) * 0.1)(D, F)),
            "w_up": _w((lambda *s: torch.randn(*s, dtype=torch.bfloat16) * 0.1)(D, F)),
            "w_down": _w((lambda *s: torch.randn(*s, dtype=torch.bfloat16) * 0.1)(F, D)),
        }
    _B_in = _B_setup()

    return {
        "A_x": _A_in["x"],
        "A_wq": _A_in["wq"],
        "A_wk": _A_in["wk"],
        "A_wv": _A_in["wv"],
        "A_wo": _A_in["wo"],
        "B_x": _B_in["x"],
        "B_w_gate": _B_in["w_gate"],
        "B_w_up": _B_in["w_up"],
        "B_w_down": _B_in["w_down"],
    }

def reference(A_x, A_wq, A_wk, A_wv, A_wo, B_x, B_w_gate, B_w_up, B_w_down):
    def _A_ref(x, wq, wk, wv, wo):
        B, S, D = x.shape
        H = 32
        Dh = D // H
        q = (lambda x, *d: x.permute(*d))((x @ wq).reshape(B, S, H, Dh), 0, 2, 1, 3)
        k = x @ wk
        v = x @ wv
        scores = torch.einsum("bhqd,bkd->bhqk", q, k) * (Dh ** -0.5)
        p = _softmax(scores, axis=-1)
        o = torch.einsum("bhqk,bkd->bhqd", p, v)
        return (lambda x, *d: x.permute(*d))(o, 0, 2, 1, 3).reshape(B, S, H * Dh) @ wo

    def _B_ref(x, w_gate, w_up, w_down):
        return (_gelu(x @ w_gate) * (x @ w_up)) @ w_down

    x = A_x
    xn = _layernorm(x, axis=-1)
    return x + _A_ref(xn, A_wq, A_wk, A_wv, A_wo) + _B_ref(xn, B_w_gate, B_w_up, B_w_down)
```

```python
import struct


def f2u(x):
    return struct.unpack('<I', struct.pack('<f', x))[0]


class Asm:
    def __init__(self):
        self.lines = []
        self.uid = 0

    def __call__(self, s):
        for ln in s.split('\n'):
            ln = ln.strip()
            if not ln:
                continue
            if ln.endswith(':') or ln.startswith('.'):
                self.lines.append(ln)
            else:
                self.lines.append('    ' + ln)

    def c(self, s):
        self.lines.append('    ; ' + s)

    def label(self, base):
        self.uid += 1
        return f'{base}_{self.uid}'

    def text(self):
        return '\n'.join(self.lines) + '\n'


def v(a, n=1):
    return f'v{a}' if n == 1 else f'v[{a}:{a + n - 1}]'


def s(a, n=1):
    return f's{a}' if n == 1 else f's[{a}:{a + n - 1}]'


class Alloc:
    def __init__(self, start=0, limit=256):
        self.p = start
        self.limit = limit
        self.names = {}

    def __call__(self, name, n=1, align=1):
        if n >= 2:
            align = max(align, 2)
        self.p = (self.p + align - 1) // align * align
        r = self.p
        self.p += n
        assert self.p <= self.limit, (name, self.p)
        self.names[name] = (r, n)
        return r


def mfma16(d, a, b, c=None):
    cs = '0' if c is None else v(c, 16)
    return f'v_mfma_f32_32x32x16_bf16 {v(d, 16)}, {v(a, 4)}, {v(b, 4)}, {cs}'


def mfma8(d, a, b, c=None):
    cs = '0' if c is None else v(c, 16)
    return f'v_mfma_f32_32x32x8_bf16 {v(d, 16)}, {v(a, 2)}, {v(b, 2)}, {cs}'


def kernel_head(name):
    return f'''.text
.globl {name}
.p2align 8
.type {name},@function
{name}:
'''


def kernel_desc(name, nv, ns=102):
    acc = (nv + 3) // 4 * 4
    return f'''.section .rodata,"a"
.p2align 6
.amdhsa_kernel {name}
  .amdhsa_next_free_vgpr {nv}
  .amdhsa_next_free_sgpr {ns}
  .amdhsa_accum_offset {acc}
  .amdhsa_group_segment_fixed_size 0
  .amdhsa_kernarg_size 96
  .amdhsa_user_sgpr_count 2
  .amdhsa_user_sgpr_kernarg_segment_ptr 1
  .amdhsa_system_sgpr_workgroup_id_x 1
.end_amdhsa_kernel
'''
```

```python
from asmlib import *
import math

H_OFF = 0
QF_OFF = 0x700000
KV_OFF = 0xA00000
OF_OFF = 0xB00000
WS_USED = 0xE00000

LDS_X = 0
LDS_W = 49152
LDS_KV = 147456
K1_LDS = 156672
ST_A = 16384
CS_A = 24576
CSKV_A = 28672
VT_A = 32768

C0 = -2.0 * math.sqrt(2.0 / math.pi) * math.log2(math.e)
C1 = C0 * 0.044715
QSC = math.log2(math.e) / math.sqrt(20.0)


def gen_k1(name, rot_mode=0):
    a = Asm()
    a(kernel_head(name))
    al = Alloc(1)
    vL = al('lane')
    vH = al('h')
    vR = al('r')
    T = al('tmp', 24, 4)
    vXD = al('xdma', 2)
    vWD = al('wdma')
    vKD = al('kvdma')
    vXA = al('xa', 8)
    vWA = al('wa', 8)
    vKA = al('ka', 4)
    vSX = al('sx', 4)
    vCS = al('cs', 4)
    XF = al('xf', 16, 4)
    WF = al('wf', 16, 4)
    KF = al('kf', 8, 4)
    ACC = al('acc', 64, 4)
    AKV = al('akv', 16, 4)
    NEGM = al('negm', 8, 4)
    RHO = al('rho', 2)
    KK0 = al('k0', 2)
    KK1 = al('k1', 2)
    WW = al('w', 2)
    CSF = al('csf', 8, 4)
    E1 = al('e1', 16, 4)
    E2 = al('e2', 16, 4)
    nv = al.p

    L_end = a.label('k1_end')
    a(f'''
    s_cmp_ge_u32 s2, 256
    s_cbranch_scc1 {L_end}
    s_load_dwordx4 s[64:67], s[0:1], 0
    s_load_dwordx4 s[68:71], s[0:1], 16
    s_load_dwordx4 s[72:75], s[0:1], 48
    s_load_dwordx2 s[76:77], s[0:1], 88
    v_lshrrev_b32 {v(T)}, 6, v0
    v_and_b32 {v(vL)}, 63, v0
    v_readfirstlane_b32 s24, {v(T)}
    v_lshrrev_b32 {v(vH)}, 5, {v(vL)}
    v_and_b32 {v(vR)}, 31, {v(vL)}
    s_and_b32 s25, s24, 1
    s_lshr_b32 s26, s24, 1
    s_and_b32 s44, s2, 7
    s_lshr_b32 s45, s2, 3
    s_and_b32 s46, s44, 1
    s_lshl_b32 s46, s46, 3
    s_and_b32 s47, s45, 7
    s_add_u32 s27, s46, s47
    s_lshr_b32 s46, s44, 1
    s_lshl_b32 s46, s46, 2
    s_lshr_b32 s47, s45, 3
    s_add_u32 s28, s46, s47
    s_mov_b32 s39, 0x3f803f80
    ''')
    a.c('s27=i row tile, s28=j col group; s48 = qtype flag, s49 = f0, s50 = q0')
    a(f'''
    s_cmp_ge_u32 s28, 11
    s_cselect_b32 s48, 1, 0
    s_sub_u32 s44, s28, 11
    s_lshl_b32 s45, s44, 6
    s_add_u32 s45, s45, 1408
    s_lshl_b32 s46, s28, 7
    s_lshl_b32 s50, s44, 7
    s_cmp_eq_u32 s48, 1
    s_cselect_b32 s49, s45, s46
    ''')
    a.c('wave W source: l = s26 (w>>1); isq = qtype & (l&1); up = l>>1')
    a(f'''
    s_and_b32 s44, s26, 1
    s_and_b32 s51, s44, s48
    s_lshr_b32 s45, s26, 1
    s_lshl_b32 s46, s44, 6
    s_add_u32 s46, s46, s49
    s_cmp_eq_u32 s48, 1
    s_cselect_b32 s46, s49, s46
    s_lshl_b32 s47, s45, 6
    s_add_u32 s47, s47, s50
    s_cmp_eq_u32 s51, 1
    s_cselect_b32 s52, s47, s46
    s_lshl_b32 s52, s52, 1
    s_waitcnt lgkmcnt(0)
    s_mov_b32 s8, s64
    s_mov_b32 s9, s65
    s_mov_b32 s10, 2621440
    s_mov_b32 s11, 0x20000
    s_cmp_eq_u32 s45, 1
    s_cselect_b32 s12, s74, s72
    s_cselect_b32 s13, s75, s73
    s_mov_b32 s14, 2211840
    s_cmp_eq_u32 s51, 1
    s_cselect_b32 s12, s66, s12
    s_cselect_b32 s13, s67, s13
    s_cselect_b32 s14, 819200, s14
    s_mov_b32 s15, 0x20000
    s_cmp_eq_u32 s28, 12
    s_cselect_b32 s16, s70, s68
    s_cselect_b32 s17, s71, s69
    s_mov_b32 s18, 25600
    s_mov_b32 s19, 0x20000
    s_mov_b32 s20, s76
    s_mov_b32 s21, s77
    s_mov_b32 s22, {WS_USED}
    s_mov_b32 s23, 0x20000
    s_mov_b32 s53, 3456
    s_cmp_eq_u32 s51, 1
    s_cselect_b32 s53, 1280, s53
    s_lshl_b32 s30, s53, 3
    s_lshl_b32 s31, s53, 6
    ''')
    a.c('kv flags: s54 = WG has kv (j==11 or 12); s40 = loader (w>=5); s41 = compute (w<4)')
    a(f'''
    s_sub_u32 s44, s28, 11
    s_cmp_lt_u32 s44, 2
    s_cselect_b32 s54, 1, 0
    s_cmp_ge_u32 s24, 5
    s_cselect_b32 s40, s54, 0
    s_cmp_lt_u32 s24, 4
    s_cselect_b32 s41, s54, 0
    s_lshl_b32 s36, s24, 11
    s_mul_i32 s37, s26, 24576
    s_lshl_b32 s44, s25, 12
    s_add_u32 s37, s37, s44
    s_add_u32 s37, s37, {LDS_W}
    s_sub_u32 s44, s24, 5
    s_lshl_b32 s38, s44, 10
    s_add_u32 s38, s38, {LDS_KV}
    ''')
    if rot_mode == 0:
        a('s_mov_b32 s35, 0')
    else:
        a(f'''
        s_lshr_b32 s44, s2, 3
        s_and_b32 s45, s44, 7
        s_lshr_b32 s46, s44, 3
        s_mul_i32 s46, s46, {rot_mode}
        s_add_u32 s35, s45, s46
        s_cmp_ge_u32 s35, 10
        s_cselect_b32 s44, 10, 0
        s_sub_u32 s35, s35, s44
        s_cmp_ge_u32 s35, 10
        s_cselect_b32 s44, 10, 0
        s_sub_u32 s35, s35, s44
        ''')
    a.c('DMA voffsets')
    t0, t1, t2, t3, t4 = T, T + 1, T + 2, T + 3, T + 4
    a(f'''
    v_lshrrev_b32 {v(t0)}, 3, {v(vL)}
    v_and_b32 {v(t1)}, 7, {v(vL)}
    s_lshl_b32 s44, s27, 7
    s_lshl_b32 s45, s24, 4
    s_add_u32 s44, s44, s45
    v_add_u32 {v(t2)}, s44, {v(t0)}
    v_mul_u32_u24 {v(t2)}, 1280, {v(t2)}
    v_lshrrev_b32 {v(t3)}, 1, {v(t0)}
    v_xor_b32 {v(t3)}, {v(t3)}, {v(t1)}
    v_lshl_add_u32 {v(vXD)}, {v(t3)}, 4, {v(t2)}
    v_xor_b32 {v(t3)}, 4, {v(t3)}
    v_lshl_add_u32 {v(vXD + 1)}, {v(t3)}, 4, {v(t2)}
    v_add_u32 {v(vXD + 1)}, {8 * 1280}, {v(vXD + 1)}
    ''')
    a(f'''
    s_lshl_b32 s44, s25, 5
    v_add_u32 {v(t2)}, s44, {v(t0)}
    v_mul_lo_u32 {v(t2)}, {v(t2)}, s53
    v_lshrrev_b32 {v(t3)}, 1, {v(t1)}
    v_lshrrev_b32 {v(t4)}, 3, {v(vL)}
    v_and_b32 {v(t4)}, 2, {v(t4)}
    v_xor_b32 {v(t3)}, {v(t3)}, {v(t4)}
    s_lshr_b32 s44, s26, 1
    v_xor_b32 {v(t3)}, s44, {v(t3)}
    v_lshl_add_u32 {v(t2)}, {v(t3)}, 5, {v(t2)}
    v_and_b32 {v(t3)}, 1, {v(t1)}
    v_lshl_add_u32 {v(t2)}, {v(t3)}, 4, {v(t2)}
    v_add_u32 {v(vWD)}, s52, {v(t2)}
    s_sub_u32 s44, s24, 5
    s_lshl_b32 s44, s44, 10
    v_lshlrev_b32 {v(t2)}, 4, {v(vL)}
    v_add_u32 {v(vKD)}, s44, {v(t2)}
    ''')

    def dma_group(stage):
        out = []
        pre = [f's_lshl_b32 s32, s35, 7', f's_mul_i32 s33, s35, s31', f's_mul_i32 s34, s35, 2560',
               f's_add_u32 s35, s35, 1', f's_cmp_eq_u32 s35, 10', f's_cselect_b32 s35, 0, s35']
        lab = a.label('nokv')
        out.append(pre + [f's_cmp_eq_u32 s40, 0', f's_cbranch_scc1 {lab}',
                          f's_add_u32 m0, s38, {stage * 3072}', 's_nop 0',
                          f'buffer_load_dwordx4 {v(vKD)}, s[16:19], s34 offen lds', f'{lab}:'])
        for e in range(2):
            out.append([f's_add_u32 m0, s36, {LDS_X + stage * 16384 + e * 1024}', 's_nop 0',
                        f'buffer_load_dwordx4 {v(vXD + e)}, s[8:11], s32 offen lds'])
        for e in range(4):
            out.append([f's_add_u32 m0, s37, {stage * 8192 + e * 1024}', 's_nop 0',
                        f'buffer_load_dwordx4 {v(vWD)}, s[12:15], s33 offen lds'] +
                       ([f's_add_u32 s33, s33, s30'] if e < 3 else []))
        return out

    for st in range(2):
        for b in dma_group(st):
            a('\n'.join(b))

    a.c('LDS read addresses. s55 = cp ^ 2rp')
    a(f'''
    s_lshl_b32 s44, s25, 1
    s_xor_b32 s55, s26, s44
    s_and_b32 s56, s26, 1
    v_lshrrev_b32 {v(t0)}, 1, {v(vR)}
    v_and_b32 {v(t0)}, 7, {v(t0)}
    v_xor_b32 {v(t0)}, {v(t0)}, {v(vH)}
    v_lshlrev_b32 {v(t1)}, 7, {v(vR)}
    s_lshl_b32 s44, s25, 13
    v_add_u32 {v(t1)}, s44, {v(t1)}
    s_lshl_b32 s45, s56, 12
    s_xor_b32 s46, s45, 4096
    ''')
    for sI in range(4):
        a(f'''
        s_xor_b32 s44, s55, {sI}
        s_lshl_b32 s44, s44, 1
        v_xor_b32 {v(t2)}, s44, {v(t0)}
        v_lshl_add_u32 {v(t2)}, {v(t2)}, 4, {v(t1)}
        v_add_u32 {v(vXA + sI)}, s45, {v(t2)}
        v_add_u32 {v(vXA + 4 + sI)}, s46, {v(t2)}
        ''')
    g1, kap, fq, cq = T + 5, T + 6, T + 7, T + 8
    a(f'''
    v_bfe_u32 {v(g1)}, {v(vL)}, 4, 1
    v_bfe_u32 {v(kap)}, {v(vL)}, 2, 2
    v_and_b32 {v(cq)}, 3, {v(vL)}
    v_and_b32 {v(t0)}, 1, {v(cq)}
    v_lshlrev_b32 {v(t0)}, 1, {v(t0)}
    v_lshrrev_b32 {v(t1)}, 1, {v(cq)}
    v_or_b32 {v(fq)}, {v(t0)}, {v(t1)}
    s_lshr_b32 s44, s26, 1
    s_and_b32 s57, s44, s48
    ''')
    a(f'''
    v_lshl_add_u32 {v(t0)}, {v(vH)}, 3, {v(kap)}
    v_lshlrev_b32 {v(t0)}, 7, {v(t0)}
    v_lshl_add_u32 {v(t0)}, {v(fq)}, 3, {v(t0)}
    v_and_b32 {v(t4)}, 2, {v(kap)}
    s_cmp_eq_u32 s57, 1
    s_cselect_b64 vcc, -1, 0
    ''')
    for bb in range(2):
        a(f'''
        s_lshl_b32 s44, s26, 1
        s_add_u32 s44, s44, {bb}
        s_lshr_b32 s45, s44, 2
        s_and_b32 s46, s44, 3
        v_lshlrev_b32 {v(t1)}, 1, {v(g1)}
        v_add_u32 {v(t1)}, s45, {v(t1)}
        v_mov_b32 {v(t2)}, s46
        s_lshl_b32 s44, s26, 1
        s_sub_u32 s44, s44, 3
        v_mov_b32 {v(t3)}, s44
        v_cndmask_b32 {v(t1)}, {v(t1)}, {v(t3)}, vcc
        v_add_u32 {v(t3)}, {2 * bb}, {v(g1)}
        v_cndmask_b32 {v(t2)}, {v(t2)}, {v(t3)}, vcc
        v_xor_b32 {v(t2)}, {v(t2)}, {v(t4)}
        v_lshrrev_b32 {v(t3)}, 1, {v(t1)}
        v_xor_b32 {v(t2)}, {v(t2)}, {v(t3)}
        v_mul_u32_u24 {v(t1)}, 24576, {v(t1)}
        v_lshl_add_u32 {v(t1)}, {v(t2)}, 5, {v(t1)}
        v_add_u32 {v(t1)}, {v(t1)}, {v(t0)}
        v_add_u32 {v(t1)}, {LDS_W}, {v(t1)}
        ''')
        for sI in range(4):
            a(f'''
            s_xor_b32 s44, s55, {sI}
            s_lshl_b32 s44, s44, 11
            v_add_u32 {v(vWA + 4 * bb + sI)}, s44, {v(t1)}
            ''')
    a(f'''
    v_lshl_add_u32 {v(t0)}, {v(vH)}, 3, {v(kap)}
    v_mul_u32_u24 {v(t0)}, 40, {v(t0)}
    v_lshl_add_u32 {v(t1)}, {v(g1)}, 2, {v(cq)}
    v_min_u32 {v(t1)}, 4, {v(t1)}
    v_lshl_add_u32 {v(t0)}, {v(t1)}, 3, {v(t0)}
    v_add_u32 {v(t0)}, {LDS_KV}, {v(t0)}
    ''')
    for sI in range(4):
        a(f'''
        s_xor_b32 s44, s55, {sI}
        s_mul_i32 s44, s44, 640
        v_add_u32 {v(vKA + sI)}, s44, {v(t0)}
        ''')
    for r in range(4):
        a(f'v_mov_b32 {v(vSX + r)}, 0')
        a(f'v_mov_b32 {v(vCS + r)}, 0')

    def reads(c, sI, kv):
        st = c % 3
        buf = sI & 1
        out = []
        out.append(f'ds_read_b128 {v(XF + 8 * buf, 4)}, {v(vXA + sI)} offset:{LDS_X + st * 16384}')
        for t in range(2):
            out.append(f'ds_read_b64_tr_b16 {v(WF + 8 * buf + 2 * t, 2)}, {v(vWA + sI)} offset:{st * 8192 + 512 * t}')
        for t in range(2):
            out.append(f'ds_read_b64_tr_b16 {v(WF + 8 * buf + 4 + 2 * t, 2)}, {v(vWA + 4 + sI)} offset:{st * 8192 + 512 * t}')
        out.append(f'ds_read_b128 {v(XF + 8 * buf + 4, 4)}, {v(vXA + 4 + sI)} offset:{LDS_X + st * 16384}')
        if kv:
            for t in range(2):
                out.append(f'ds_read_b64_tr_b16 {v(KF + 4 * buf + 2 * t, 2)}, {v(vKA + sI)} offset:{st * 3072 + 160 * t}')
        return out

    def mfmas(c, sI, kv):
        buf = sI & 1
        first = (c == 0 and sI == 0)
        out = []
        for e, bb in ((0, 0), (0, 1), (1, 0), (1, 1)):
            d = ACC + 32 * e + 16 * bb
            out.append(mfma16(d, WF + 8 * buf + 4 * bb, XF + 8 * buf + 4 * e, None if first else d))
        if kv:
            out.append(mfma16(AKV, KF + 4 * buf, XF + 8 * buf, None if first else AKV))
        return out

    def dots(sI, kv):
        buf = sI & 1
        out = []
        if sI == 0:
            for r in range(4):
                for e in range(2):
                    x = XF + 8 * buf + 4 * e + r
                    out.append(f'v_dot2c_f32_bf16 {v(vSX + 2 * e)}, s39, {v(x)}')
                    out.append(f'v_dot2c_f32_bf16 {v(vSX + 2 * e + 1)}, {v(x)}, {v(x)}')
        if sI in (0, 1):
            for r in range(4):
                for bb in range(2):
                    out.append(f'v_dot2c_f32_bf16 {v(vCS + bb)}, s39, {v(WF + 8 * buf + 4 * bb + r)}')
                if kv and sI == 0:
                    out.append(f'v_dot2c_f32_bf16 {v(vCS + 2)}, s39, {v(KF + 4 * buf + r)}')
        return out

    def interleave(ms, fill):
        n = len(ms)
        per = [fill[(i * len(fill)) // n:((i + 1) * len(fill)) // n] for i in range(n)]
        for m, p in zip(ms, per):
            a(m)
            for b in p:
                a(b if isinstance(b, str) else '\n'.join(b))

    def mainloop(kv):
        nr = 8 if kv else 6
        for c in range(10):
            a.c(f'chunk {c}')
            a(f's_waitcnt vmcnt({6 if c + 1 < 10 else 0}) lgkmcnt(0)')
            a('s_barrier')
            for r in reads(c, 0, kv):
                a(r)
            dm = dma_group((c + 2) % 3) if c + 2 < 10 else []
            if c > 0:
                interleave(mfmas(c - 1, 3, kv), dm)
            else:
                for b in dm:
                    a('\n'.join(b))
            for sI in range(3):
                for r in reads(c, sI + 1, kv):
                    a(r)
                a(f's_waitcnt lgkmcnt({nr})')
                interleave(mfmas(c, sI, kv), dots(sI, kv))
        a('s_waitcnt lgkmcnt(0)')
        for m in mfmas(9, 3, kv):
            a(m)

    L_kv = a.label('k1_kvloop')
    L_epi = a.label('k1_epi')
    a(f'''
    s_cmp_eq_u32 s41, 1
    s_cbranch_scc1 {L_kv}
    ''')
    mainloop(False)
    a(f's_branch {L_epi}')
    a(f'{L_kv}:')
    mainloop(True)
    a(f'{L_epi}:')

    a.c('---- epilogue: stats exchange ----')
    a(f'''
    s_lshl_b32 s44, s25, 1
    s_add_u32 s58, s44, s56
    s_xor_b32 s59, s58, 1
    v_lshlrev_b32 {v(t0)}, 6, {v(vR)}
    v_lshl_add_u32 {v(t1)}, {v(vH)}, 3, {v(t0)}
    s_lshl_b32 s44, s26, 4
    v_add_u32 {v(t1)}, s44, {v(t1)}
    s_lshl_b32 s44, s58, 11
    s_lshl_b32 s45, s59, 11
    v_add_u32 {v(t2)}, s44, {v(t1)}
    v_add_u32 {v(t3)}, s45, {v(t1)}
    ds_write_b64 {v(t2)}, {v(vSX, 2)} offset:{ST_A}
    ds_write_b64 {v(t3)}, {v(vSX + 2, 2)} offset:{ST_A}
    v_add_u32 {v(T + 10)}, s44, {v(t0)}
    v_add_u32 {v(T + 11)}, s45, {v(t0)}
    ''')
    for q in range(3):
        a(f'''
        v_cvt_pk_bf16_f32 {v(t0)}, {v(vCS + q)}, {v(vCS + q)}
        v_and_b32 {v(t1)}, 0xffff0000, {v(t0)}
        v_sub_f32 {v(t1)}, {v(vCS + q)}, {v(t1)}
        v_cvt_pk_bf16_f32 {v(T + 12 + q)}, {v(vCS + q)}, {v(t1)}
        ''')
    a(f'''
    v_lshlrev_b32 {v(t0)}, 3, {v(vR)}
    v_lshl_add_u32 {v(t0)}, {v(vH)}, 2, {v(t0)}
    s_lshl_b32 s44, s26, 10
    s_lshl_b32 s45, s25, 8
    s_add_u32 s45, s45, s44
    v_add_u32 {v(t0)}, s45, {v(t0)}
    ds_write_b32 {v(t0)}, {v(T + 12)} offset:{CS_A}
    ds_write_b32 {v(t0)}, {v(T + 13)} offset:{CS_A + 512}
    v_lshlrev_b32 {v(t1)}, 3, {v(vL)}
    v_add_u32 {v(T + 15)}, s44, {v(t1)}
    ''')
    lab = a.label('k1_nokvcs')
    a(f'''
    s_cmp_eq_u32 s41, 0
    s_cbranch_scc1 {lab}
    v_lshlrev_b32 {v(t0)}, 4, {v(vR)}
    v_lshl_add_u32 {v(t0)}, {v(vH)}, 2, {v(t0)}
    s_lshl_b32 s44, s26, 9
    s_lshl_b32 s45, s25, 3
    s_add_u32 s44, s44, s45
    v_add_u32 {v(t0)}, s44, {v(t0)}
    ds_write_b32 {v(t0)}, {v(T + 14)} offset:{CSKV_A}
    {lab}:
    s_waitcnt lgkmcnt(0)
    s_barrier
    ''')
    for e in range(2):
        EE = (E1, E2)[e]
        for q in range(4):
            a(f'ds_read_b128 {v(EE + 4 * q, 4)}, {v(T + 10 + e)} offset:{ST_A + 16 * q}')
    a(f'''
    ds_read_b64 {v(CSF, 2)}, {v(T + 15)} offset:{CS_A}
    ds_read_b64 {v(CSF + 2, 2)}, {v(T + 15)} offset:{CS_A + 512}
    v_lshlrev_b32 {v(t1)}, 4, {v(vL)}
    ds_read_b128 {v(CSF + 4, 4)}, {v(t1)} offset:{CSKV_A}
    s_mov_b32 s44, {f2u(1.0 / 640.0)}
    s_mov_b32 s45, {f2u(1e-5)}
    s_mov_b32 s46, {f2u(C0)}
    s_mov_b32 s47, {f2u(C1)}
    s_waitcnt lgkmcnt(0)
    ''')
    for e in range(2):
        EE = (E1, E2)[e]
        for step in (8, 4, 2):
            for q in range(0, step):
                a(f'v_add_f32 {v(EE + q)}, {v(EE + q)}, {v(EE + q + step)}')
        a(f'''
        v_mul_f32 {v(t0)}, s44, {v(EE)}
        v_mul_f32 {v(t1)}, s44, {v(EE + 1)}
        v_fma_f32 {v(t1)}, -{v(t0)}, {v(t0)}, {v(t1)}
        v_max_f32 {v(t1)}, 0, {v(t1)}
        v_cvt_pk_bf16_f32 {v(NEGM + 4 * e)}, -{v(t0)}, -{v(t0)}
        v_cvt_pk_bf16_f32 {v(t1)}, {v(t1)}, {v(t1)}
        v_and_b32 {v(t1)}, 0xffff0000, {v(t1)}
        v_add_f32 {v(t1)}, s45, {v(t1)}
        v_cvt_pk_bf16_f32 {v(t1)}, {v(t1)}, {v(t1)}
        v_and_b32 {v(t1)}, 0xffff0000, {v(t1)}
        v_sqrt_f32 {v(t1)}, {v(t1)}
        v_mov_b32 {v(NEGM + 4 * e + 1)}, {v(NEGM + 4 * e)}
        v_cvt_pk_bf16_f32 {v(t1)}, {v(t1)}, {v(t1)}
        v_and_b32 {v(t1)}, 0xffff0000, {v(t1)}
        v_rcp_f32 {v(RHO + e)}, {v(t1)}
        v_mul_f32 {v(WW + e)}, {v(t1)}, {v(t1)}
        v_mov_b32 {v(NEGM + 4 * e + 2)}, {v(NEGM + 4 * e)}
        v_mov_b32 {v(NEGM + 4 * e + 3)}, {v(NEGM + 4 * e)}
        v_mul_f32 {v(KK0 + e)}, s46, {v(RHO + e)}
        v_mul_f32 {v(t0)}, {v(RHO + e)}, {v(RHO + e)}
        v_mul_f32 {v(t0)}, {v(t0)}, {v(RHO + e)}
        v_mul_f32 {v(KK1 + e)}, s47, {v(t0)}
        ''')
    a('s_nop 1')
    for e in range(2):
        for bb in range(2):
            d = ACC + 32 * e + 16 * bb
            a(mfma8(d, CSF + 2 * bb, NEGM + 4 * e, d))
    lab = a.label('k1_nokvfix')
    a(f'''
    s_cmp_eq_u32 s41, 0
    s_cbranch_scc1 {lab}
    {mfma16(AKV, CSF + 4, NEGM, AKV)}
    {lab}:
    ''')
    L_q = a.label('k1_qepi')
    L_kvepi = a.label('k1_kvepi')
    a(f'''
    s_lshl_b32 s44, s27, 2
    s_add_u32 s60, s44, s58
    s_add_u32 s61, s44, s59
    v_lshlrev_b32 {v(T + 16)}, 4, {v(vL)}
    s_nop 7
    s_cmp_eq_u32 s57, 1
    s_cbranch_scc1 {L_q}
    ''')
    a.c('FFN epilogue')
    a(f'''
    s_lshr_b32 s44, s49, 4
    s_lshl_b32 s45, s26, 1
    s_add_u32 s44, s44, s45
    ''')
    for e in range(2):
        a(f'''
        s_mul_i32 s{46 + e}, s{60 + e}, 108
        s_add_u32 s{46 + e}, s{46 + e}, s44
        s_lshl_b32 s{46 + e}, s{46 + e}, 10
        ''')
    k = 0
    for e in range(2):
        for bb in range(2):
            A = ACC + 32 * e + 16 * bb
            TT = E1 if k % 2 == 0 else E1 + 8
            PP = E2 if k % 2 == 0 else E2 + 8
            OO = T + (0 if k % 2 == 0 else 4)
            for i in range(8):
                a(f'v_mul_f32 {v(TT + i)}, {v(A + i)}, {v(A + i)}')
            for i in range(8):
                a(f'v_fma_f32 {v(TT + i)}, {v(TT + i)}, {v(KK1 + e)}, {v(KK0 + e)}')
            for i in range(8):
                a(f'v_mul_f32 {v(TT + i)}, {v(TT + i)}, {v(A + i)}')
            for i in range(8):
                a(f'v_exp_f32 {v(TT + i)}, {v(TT + i)}')
            for i in range(8):
                a(f'v_mul_f32 {v(PP + i)}, {v(A + i)}, {v(A + 8 + i)}')
            for i in range(8):
                a(f'v_fma_f32 {v(TT + i)}, {v(TT + i)}, {v(WW + e)}, {v(WW + e)}')
            for i in range(8):
                a(f'v_rcp_f32 {v(TT + i)}, {v(TT + i)}')
            a('s_nop 0')
            for i in range(8):
                a(f'v_mul_f32 {v(PP + i)}, {v(PP + i)}, {v(TT + i)}')
            for i in range(4):
                a(f'v_cvt_pk_bf16_f32 {v(OO + i)}, {v(PP + 2 * i)}, {v(PP + 2 * i + 1)}')
            a(f'buffer_store_dwordx4 {v(OO, 4)}, {v(T + 16)}, s[20:23], s{46 + e} offen offset:{1024 * bb}')
            k += 1
    a(f's_branch {L_kvepi}')
    a(f'{L_q}:')
    a.c('Q epilogue')
    a(f'''
    s_sub_u32 s44, s26, 2
    s_lshl_b32 s44, s44, 6
    s_add_u32 s44, s44, s50
    s_lshl_b32 s44, s44, 6
    s_add_u32 s44, s44, {QF_OFF}
    s_mov_b32 s45, {f2u(QSC)}
    v_lshlrev_b32 {v(T + 17)}, 3, {v(vR)}
    v_lshl_add_u32 {v(T + 17)}, {v(vH)}, 9, {v(T + 17)}
    ''')
    for e in range(2):
        a(f'''
        s_mul_i32 s{46 + e}, s{60 + e}, 40960
        s_add_u32 s{46 + e}, s{46 + e}, s44
        v_mul_f32 {v(KK0 + e)}, s45, {v(RHO + e)}
        ''')
    k = 0
    for e in range(2):
        for bb in range(2):
            A = ACC + 32 * e + 16 * bb
            OO = (E1, E1 + 8, E2, E2 + 8)[k]
            for i in range(16):
                a(f'v_mul_f32 {v(A + i)}, {v(A + i)}, {v(KK0 + e)}')
            for i in range(8):
                a(f'v_cvt_pk_bf16_f32 {v(OO + i)}, {v(A + 2 * i)}, {v(A + 2 * i + 1)}')
            for jp in range(4):
                off = (4 * (jp >> 1) + (jp & 1)) * 256 + bb * 2048
                a(f'buffer_store_dwordx2 {v(OO + 2 * jp, 2)}, {v(T + 17)}, s[20:23], s{46 + e} offen offset:{off}')
            k += 1
    a(f'{L_kvepi}:')
    L_v = a.label('k1_vepi')
    a(f'''
    s_cmp_eq_u32 s41, 0
    s_cbranch_scc1 {L_end}
    s_lshr_b32 s44, s60, 1
    s_mul_i32 s44, s44, 7168
    s_add_u32 s44, s44, {KV_OFF}
    s_and_b32 s45, s60, 1
    s_mov_b32 s62, 0
    s_mov_b32 s63, -1
    ''')
    for i in range(12):
        a(f'v_mul_f32 {v(AKV + i)}, {v(AKV + i)}, {v(RHO)}')
    for i in range(6):
        a(f'v_cvt_pk_bf16_f32 {v(T + 8 + i)}, {v(AKV + 2 * i)}, {v(AKV + 2 * i + 1)}')
    a(f'''
    s_cmp_eq_u32 s28, 12
    s_cbranch_scc1 {L_v}
    v_mov_b32 {v(t0)}, 0x3f803f80
    v_mov_b32 {v(t1)}, 0x00003f80
    v_cndmask_b32 {v(T + 12)}, {v(T + 12)}, {v(t0)}, s[62:63]
    v_cndmask_b32 {v(T + 13)}, {v(T + 13)}, {v(t1)}, s[62:63]
    s_lshl_b32 s46, s45, 10
    s_add_u32 s46, s46, s44
    s_lshl_b32 s47, s45, 3
    s_add_u32 s47, s47, s44
    buffer_store_dwordx4 {v(T + 8, 4)}, {v(T + 16)}, s[20:23], s46 offen
    buffer_store_dwordx2 {v(T + 12, 2)}, {v(T + 16)}, s[20:23], s47 offen offset:2048
    s_branch {L_end}
    {L_v}:
    v_mov_b32 {v(t0)}, 0
    v_cndmask_b32 {v(T + 12)}, {v(T + 12)}, {v(t0)}, s[62:63]
    v_cndmask_b32 {v(T + 13)}, {v(T + 13)}, {v(t0)}, s[62:63]
    v_mov_b32 {v(T + 14)}, 0x00003f80
    v_mov_b32 {v(T + 15)}, 0
    v_lshlrev_b32 {v(t0)}, 6, {v(vR)}
    v_lshl_add_u32 {v(t0)}, {v(vH)}, 3, {v(t0)}
    s_lshl_b32 s46, s24, 11
    v_add_u32 {v(t0)}, s46, {v(t0)}
    ds_write_b64 {v(t0)}, {v(T + 8, 2)} offset:{VT_A}
    ds_write_b64 {v(t0)}, {v(T + 10, 2)} offset:{VT_A + 16}
    ds_write_b64 {v(t0)}, {v(T + 12, 2)} offset:{VT_A + 32}
    ds_write_b64 {v(t0)}, {v(T + 14, 2)} offset:{VT_A + 48}
    v_bfe_u32 {v(t1)}, {v(vL)}, 2, 2
    v_lshl_add_u32 {v(t1)}, {v(vH)}, 2, {v(t1)}
    v_lshlrev_b32 {v(t1)}, 6, {v(t1)}
    v_bfe_u32 {v(t2)}, {v(vL)}, 4, 1
    v_lshl_add_u32 {v(t1)}, {v(t2)}, 5, {v(t1)}
    v_and_b32 {v(t2)}, 3, {v(vL)}
    v_lshl_add_u32 {v(t1)}, {v(t2)}, 3, {v(t1)}
    v_add_u32 {v(t1)}, s46, {v(t1)}
    s_waitcnt lgkmcnt(0)
    ds_read_b64_tr_b16 {v(E1, 2)}, {v(t1)} offset:{VT_A}
    ds_read_b64_tr_b16 {v(E1 + 2, 2)}, {v(t1)} offset:{VT_A + 512}
    ds_read_b64_tr_b16 {v(E1 + 4, 2)}, {v(t1)} offset:{VT_A + 1024}
    ds_read_b64_tr_b16 {v(E1 + 6, 2)}, {v(t1)} offset:{VT_A + 1536}
    s_lshl_b32 s46, s45, 11
    s_add_u32 s46, s46, s44
    s_add_u32 s46, s46, 3072
    s_waitcnt lgkmcnt(0)
    buffer_store_dwordx4 {v(E1, 4)}, {v(T + 16)}, s[20:23], s46 offen
    buffer_store_dwordx4 {v(E1 + 4, 4)}, {v(T + 16)}, s[20:23], s46 offen offset:1024
    {L_end}:
    s_endpgm
    ''')
    return a.text(), kernel_desc(name, nv), K1_LDS
```

```python
from asmlib import *
from k1 import H_OFF, QF_OFF, KV_OFF, OF_OFF, WS_USED

CH_BYTES = 14336
NST = 3
KVR = 0
M_OFFSET = 90.0


def decode_wg(a):
    a('''
    s_and_b32 s44, s2, 7
    s_lshr_b32 s45, s2, 3
    s_lshl_b32 s44, s44, 2
    s_and_b32 s46, s45, 3
    s_add_u32 s27, s44, s46
    s_lshr_b32 s28, s45, 2
    ''')


class AttnRegs:
    def __init__(self, al):
        self.T = al('tmp', 16, 4)
        self.vK = al('vk')
        self.vV = al('vv')
        self.Q1 = al('q1', 8, 4)
        self.Q2 = al('q2', 4, 2)
        self.K1 = al('k1', 8, 4)
        self.K2 = al('k2', 8, 4)
        self.V1 = al('v1', 4, 4)
        self.V2 = al('v2', 4, 4)
        self.S = al('s', 32, 4)
        self.P = al('p', 16, 4)
        self.O = al('o', 32, 4)


def tile_offs(t):
    p, o = t >> 1, t & 1
    b = p * 7168
    return b + o * 1024, b + 2048, b + 3072 + o * 2048, b + 4096 + o * 2048


def set_m(a, R, X, mreg, offset, vmask):
    t0, t1, t2, t3 = R.T + 8, R.T + 9, R.T + 10, R.T + 11
    if offset != 0.0:
        a(f'v_sub_f32 {v(t0)}, {f2u(-offset)}, {v(mreg)}')
    else:
        a(f'v_sub_f32 {v(t0)}, 0, {v(mreg)}')
    a(f'''
    v_cvt_pk_bf16_f32 {v(t1)}, {v(t0)}, {v(t0)}
    v_and_b32 {v(t2)}, 0xffff0000, {v(t1)}
    v_sub_f32 {v(t2)}, {v(t0)}, {v(t2)}
    v_cvt_pk_bf16_f32 {v(t1)}, {v(t0)}, {v(t2)}
    v_and_b32 {v(t3)}, 0xffff0000, {v(t1)}
    v_sub_f32 {v(t2)}, {v(t2)}, {v(t3)}
    v_mov_b32 {v(t3)}, 0
    v_cvt_pk_bf16_f32 {v(t2)}, {v(t2)}, {v(t3)}
    v_cndmask_b32 {v(R.Q2 + 2 * X)}, {v(R.Q2 + 2 * X)}, {v(t1)}, {vmask}
    v_cndmask_b32 {v(R.Q2 + 2 * X + 1)}, {v(R.Q2 + 2 * X + 1)}, {v(t2)}, {vmask}
    ''')


def cross_half_max(a, R, reg):
    t = R.T + 12
    a(f'''
    v_mov_b32 {v(t)}, {v(reg)}
    s_nop 1
    v_permlane32_swap_b32 {v(reg)}, {v(t)}
    s_nop 1
    v_max_f32 {v(reg)}, {v(reg)}, {v(t)}
    ''')


def attn_wave(a, R, vL, vH, vR, L_done):
    T = R.T
    HM = 's[62:63]'
    a(f'''
    s_lshr_b32 s44, s28, 2
    s_lshl_b32 s29, s27, 1
    s_add_u32 s29, s29, s44
    s_and_b32 s44, s28, 3
    s_lshl_b32 s44, s44, 3
    s_lshl_b32 s45, s24, 1
    s_add_u32 s30, s44, s45
    s_mul_i32 s44, s29, 40960
    s_mul_i32 s45, s30, 1280
    s_add_u32 s44, s44, s45
    s_add_u32 s31, s44, {QF_OFF}
    v_lshlrev_b32 {v(T)}, 3, {v(vR)}
    v_lshl_add_u32 {v(T + 1)}, {v(vH)}, 8, {v(T)}
    ''')
    for X in range(2):
        a(f'''
        buffer_load_dwordx2 {v(R.Q1 + 4 * X, 2)}, {v(T + 1)}, s[20:23], s31 offen offset:{1280 * X}
        buffer_load_dwordx2 {v(R.Q1 + 4 * X + 2, 2)}, {v(T + 1)}, s[20:23], s31 offen offset:{1280 * X + 512}
        buffer_load_dwordx2 {v(R.Q2 + 2 * X, 2)}, {v(T)}, s[20:23], s31 offen offset:{1280 * X + 1024}
        ''')
    a(f'''
    v_lshlrev_b32 {v(R.vK)}, 4, {v(vL)}
    v_mov_b32 {v(R.vV)}, {v(R.vK)}
    v_mov_b32 {v(T + 2)}, 0
    ''')
    for i in range(32):
        a(f'v_mov_b32 {v(R.O + i)}, 0')
    for i in range(8):
        a(f'v_mov_b32 {v(R.P + 8 + i)}, 0')
    for i in range(4):
        a(f'v_mov_b32 {v(R.V1 + i)}, 0')
        a(f'v_mov_b32 {v(R.V2 + i)}, 0')
    a('s_waitcnt vmcnt(0)')
    for i in range(4):
        a(f'v_cndmask_b32 {v(R.Q2 + i)}, {v(R.Q2 + i)}, {v(T + 2)}, {HM}')
    a.c('barrier -1: chunk 0 landed')
    a('s_barrier')
    o0, o1 = tile_offs(0), tile_offs(1)
    a(f'''
    ds_read_b128 {v(R.K1, 4)}, {v(R.vK)} offset:{KVR + o0[0]}
    ds_read_b128 {v(R.K1 + 4, 4)}, {v(R.vK)} offset:{KVR + o1[0]}
    ds_read_b128 {v(R.K2, 4)}, {v(R.vK)} offset:{KVR + o0[1]}
    s_waitcnt lgkmcnt(0)
    ''')
    for X in range(2):
        for t in range(2):
            a(mfma16(R.S + 16 * t, R.K1 + 4 * t, R.Q1 + 4 * X))
        a('s_nop 7')
        for t in range(2):
            a(mfma8(R.S + 16 * t, R.K2 + 2 * t, R.Q2 + 2 * X, R.S + 16 * t))
        a('s_nop 15')
        m = T + 4
        a(f'v_max3_f32 {v(m)}, {v(R.S)}, {v(R.S + 1)}, {v(R.S + 2)}')
        for i in range(3, 31, 2):
            a(f'v_max3_f32 {v(m)}, {v(m)}, {v(R.S + i)}, {v(R.S + i + 1)}')
        a(f'v_max_f32 {v(m)}, {v(m)}, {v(R.S + 31)}')
        cross_half_max(a, R, m)
        set_m(a, R, X, m, M_OFFSET, HM)
    a('s_nop 1')
    a(mfma16(R.S, R.K1, R.Q1))
    a('s_nop 9')
    a(mfma8(R.S, R.K2, R.Q2, R.S))
    a('s_nop 7')
    a(f'''
    s_mov_b32 s32, 0
    s_mov_b32 s33, 0
    s_mov_b32 s34, 16
    v_lshlrev_b32 {v(T + 3)}, 4, {v(vL)}
    ''')

    def slot(X, t):
        Sx = R.S + 16 * X
        Sn = R.S + 16 * (1 - X)
        Px = R.P + 8 * X
        Pp = R.P + 8 * (1 - X)
        Xn = 1 - X
        kt = t if X == 0 else t + 1
        kb = kt & 1
        k2 = R.K2 + 4 * ((kt >> 1) & 1) + 2 * (kt & 1)
        m = [mfma16(Sn, R.K1 + 4 * kb, R.Q1 + 4 * Xn),
             mfma16(R.O + 16 * Xn, R.V1, Pp, R.O + 16 * Xn),
             mfma8(Sn, k2, R.Q2 + 2 * Xn, Sn),
             mfma16(R.O + 16 * Xn, R.V2, Pp + 4, R.O + 16 * Xn)]
        after = [[], [], [], []]
        pre = []
        if X == 0:
            t2 = t + 2
            if t2 == 4:
                pre = ['s_barrier',
                       f's_add_u32 s32, s32, {CH_BYTES}',
                       f's_cmp_eq_u32 s32, {CH_BYTES * NST}',
                       's_cselect_b32 s32, 0, s32',
                       f'v_add_u32 {v(R.vK)}, s32, {v(T + 3)}']
            after[0] = [f'ds_read_b128 {v(R.K1 + 4 * kb, 4)}, {v(R.vK)} offset:{KVR + tile_offs(t2 & 3)[0]}']
            after[1] = [f'ds_read_b128 {v(R.V1, 4)}, {v(R.vV)} offset:{KVR + tile_offs(t)[2]}']
            after[3] = [f'ds_read_b128 {v(R.V2, 4)}, {v(R.vV)} offset:{KVR + tile_offs(t)[3]}']
        else:
            after[0] = ['s_waitcnt lgkmcnt(1)']
            if t & 1 == 0:
                t2 = t + 2
                after[1] = ['s_waitcnt lgkmcnt(0)']
                after[3] = [f'ds_read_b128 {v(R.K2 + 4 * ((t2 >> 1) & 1), 4)}, {v(R.vK)} offset:{KVR + tile_offs(t2 & 3)[1]}']
            else:
                after[1] = ['s_waitcnt lgkmcnt(0)']
            if t == 3:
                after[3] = after[3] + [f's_add_u32 s33, s33, {CH_BYTES}',
                                       f's_cmp_eq_u32 s33, {CH_BYTES * NST}',
                                       's_cselect_b32 s33, 0, s33',
                                       f'v_add_u32 {v(R.vV)}, s33, {v(T + 3)}']
        for p in pre:
            a(p)
        val = []
        for i in range(8):
            val.append(f'v_exp_f32 {v(Sx + 2 * i)}, {v(Sx + 2 * i)}')
            val.append(f'v_exp_f32 {v(Sx + 2 * i + 1)}, {v(Sx + 2 * i + 1)}')
            if i > 0:
                val.append(f'v_cvt_pk_bf16_f32 {v(Px + i - 1)}, {v(Sx + 2 * i - 2)}, {v(Sx + 2 * i - 1)}')
        val.append(f'v_cvt_pk_bf16_f32 {v(Px + 7)}, {v(Sx + 14)}, {v(Sx + 15)}')
        return m, after, val

    L_loop = a.label('att_loop')
    a('.p2align 6')
    a(f'{L_loop}:')
    seq = [(X, t) for t in range(4) for X in range(2)]
    for idx, (X, t) in enumerate(seq):
        m, after, val = slot(X, t)
        groups = [val[0:5], val[5:11], val[11:17], val[17:24]]
        for g in range(4):
            a(m[g])
            for x in after[g]:
                a(x)
            if idx == len(seq) - 1 and g == 1:
                a('s_sub_u32 s34, s34, 1')
            for x in groups[g]:
                a(x)
    a(f'''
    s_cmp_lg_u32 s34, 0
    s_cbranch_scc1 {L_loop}
    ''')
    a('s_nop 1')
    a(mfma16(R.O + 16, R.V1, R.P + 8, R.O + 16))
    a(mfma16(R.O + 16, R.V2, R.P + 12, R.O + 16))
    a('s_waitcnt lgkmcnt(0)')
    a('s_nop 15')
    L_fb = a.label('att_fb')
    L_out = a.label('att_out')
    a(f'''
    s_mov_b32 s44, {f2u(2.0 ** 120)}
    s_mov_b32 s45, {f2u(2.0 ** -103)}
    ''')
    for X in range(2):
        O = R.O + 16 * X
        t = T + X
        a(f'v_add_f32 {v(t)}, |{v(O)}|, |{v(O + 1)}|')
        for i in range(2, 12):
            a(f'v_add_f32 {v(t)}, {v(t)}, |{v(O + i)}|')
        a(f'''
        v_add_f32 {v(t + 2)}, {v(t)}, {v(O + 12)}
        v_cmp_le_f32 s[{46 + 4 * X}:{47 + 4 * X}], s45, {v(t)}
        v_cmp_gt_f32 s[{48 + 4 * X}:{49 + 4 * X}], s44, {v(t + 2)}
        ''')
    a(f'''
    s_nop 3
    s_and_b64 s[46:47], s[46:47], s[48:49]
    s_and_b64 s[50:51], s[50:51], s[52:53]
    s_and_b64 s[46:47], s[46:47], s[50:51]
    s_cmp_eq_u64 s[46:47], -1
    s_cbranch_scc0 {L_fb}
    {L_out}:
    ''')
    a(f'''
    s_mul_i32 s44, s29, 40960
    s_add_u32 s44, s44, {OF_OFF}
    s_mul_i32 s45, s30, 5
    v_lshlrev_b32 {v(T + 8)}, 4, {v(vR)}
    v_mov_b32 {v(T + 9)}, 0x7f000000
    ''')
    for X in range(2):
        O = R.O + 16 * X
        PP = R.P + 8 * X
        a(f'v_rcp_f32 {v(T)}, {v(O + 12)}')
        a('s_nop 0')
        for i in range(12):
            a(f'v_mul_f32 {v(O + i)}, {v(O + i)}, {v(T)}')
        for i in range(6):
            a(f'v_cvt_pk_bf16_f32 {v(PP + i)}, {v(O + 2 * i)}, {v(O + 2 * i + 1)}')
        for jp in range(3):
            ad = T + 2 + jp
            a(f'''
            s_add_u32 s46, s45, {5 * X + 2 * jp}
            v_add_u32 {v(T + 5)}, s46, {v(vH)}
            v_lshrrev_b32 {v(T + 6)}, 1, {v(T + 5)}
            v_lshl_add_u32 {v(T + 6)}, {v(T + 6)}, 9, {v(T + 8)}
            v_and_b32 {v(T + 5)}, 1, {v(T + 5)}
            v_lshl_add_u32 {v(ad)}, {v(T + 5)}, 3, {v(T + 6)}
            ''')
            if jp == 2:
                a(f'v_cndmask_b32 {v(ad)}, {v(ad)}, {v(T + 9)}, {HM}')
            a(f'buffer_store_dwordx2 {v(PP + 2 * jp, 2)}, {v(ad)}, s[20:23], s44 offen')
    a(f's_branch {L_done}')

    a(f'{L_fb}:')
    a(f'''
    v_lshlrev_b32 {v(T + 3)}, 4, {v(vL)}
    v_mov_b32 {v(T + 2)}, 0
    v_mov_b32 {v(T + 4)}, 0xff800000
    v_mov_b32 {v(T + 5)}, 0xff800000
    ''')
    for i in range(4):
        a(f'v_cndmask_b32 {v(R.Q2 + i)}, {v(R.Q2 + i)}, {v(T + 2)}, {HM}')
    L1 = a.label('fb_p1')
    a(f'''
    s_mov_b32 s35, {KV_OFF}
    s_mov_b32 s34, 32
    {L1}:
    buffer_load_dwordx4 {v(R.K1, 4)}, {v(T + 3)}, s[20:23], s35 offen
    buffer_load_dwordx4 {v(R.K1 + 4, 4)}, {v(T + 3)}, s[20:23], s35 offen offset:1024
    buffer_load_dwordx4 {v(R.K2, 4)}, {v(T + 3)}, s[20:23], s35 offen offset:2048
    s_waitcnt vmcnt(0)
    ''')
    for X in range(2):
        for t in range(2):
            a(mfma16(R.S + 16 * t, R.K1 + 4 * t, R.Q1 + 4 * X))
        a('s_nop 9')
        for t in range(2):
            a(mfma8(R.S + 16 * t, R.K2 + 2 * t, R.Q2 + 2 * X, R.S + 16 * t))
        a('s_nop 15')
        for i in range(0, 32, 2):
            a(f'v_max3_f32 {v(T + 4 + X)}, {v(T + 4 + X)}, {v(R.S + i)}, {v(R.S + i + 1)}')
    a(f'''
    s_add_u32 s35, s35, 7168
    s_sub_u32 s34, s34, 1
    s_cmp_lg_u32 s34, 0
    s_cbranch_scc1 {L1}
    ''')
    for X in range(2):
        cross_half_max(a, R, T + 4 + X)
        set_m(a, R, X, T + 4 + X, 0.0, HM)
    for i in range(32):
        a(f'v_mov_b32 {v(R.O + i)}, 0')
    L2 = a.label('fb_p2')
    a(f'''
    s_mov_b32 s35, {KV_OFF}
    s_mov_b32 s34, 64
    {L2}:
    s_and_b32 s36, s34, 1
    s_lshl_b32 s37, s36, 10
    s_add_u32 s37, s37, s35
    s_lshl_b32 s38, s36, 3
    s_add_u32 s38, s38, s35
    s_lshl_b32 s39, s36, 11
    s_add_u32 s39, s39, s35
    s_add_u32 s39, s39, 3072
    buffer_load_dwordx4 {v(R.K1, 4)}, {v(T + 3)}, s[20:23], s37 offen
    buffer_load_dwordx2 {v(R.K2, 2)}, {v(T + 3)}, s[20:23], s38 offen offset:2048
    buffer_load_dwordx4 {v(R.V1, 4)}, {v(T + 3)}, s[20:23], s39 offen
    buffer_load_dwordx4 {v(R.V2, 4)}, {v(T + 3)}, s[20:23], s39 offen offset:1024
    s_waitcnt vmcnt(0)
    ''')
    for X in range(2):
        a(mfma16(R.S + 16 * X, R.K1, R.Q1 + 4 * X))
    a('s_nop 9')
    for X in range(2):
        a(mfma8(R.S + 16 * X, R.K2, R.Q2 + 2 * X, R.S + 16 * X))
    a('s_nop 15')
    for i in range(32):
        a(f'v_exp_f32 {v(R.S + i)}, {v(R.S + i)}')
    a('s_nop 0')
    for i in range(16):
        a(f'v_cvt_pk_bf16_f32 {v(R.P + i)}, {v(R.S + 2 * i)}, {v(R.S + 2 * i + 1)}')
    a('s_nop 1')
    for X in range(2):
        a(mfma16(R.O + 16 * X, R.V1, R.P + 8 * X, R.O + 16 * X))
        a(mfma16(R.O + 16 * X, R.V2, R.P + 8 * X + 4, R.O + 16 * X))
    a(f'''
    s_mul_i32 s36, s36, 7168
    s_add_u32 s35, s35, s36
    s_sub_u32 s34, s34, 1
    s_cmp_lg_u32 s34, 0
    s_cbranch_scc1 {L2}
    s_nop 15
    s_branch {L_out}
    ''')


def kv_dma(c, vOff):
    st = c % NST
    out = []
    for e in range(4):
        out.append([f's_add_u32 m0, s36, {KVR + st * CH_BYTES + e * 1024}',
                    f's_mov_b32 s38, {KV_OFF + c * CH_BYTES + e * 1024}',
                    f'buffer_load_dwordx4 {v(vOff)}, s[20:23], s38 offen lds'])
    return out


def gen_k2(name):
    a = Asm()
    a(kernel_head(name))
    al = Alloc(1)
    vL = al('lane')
    vH = al('h')
    vR = al('r')
    R = AttnRegs(al)
    nv = al.p
    L_end = a.label('k2_end')
    L_ld = a.label('k2_loader')
    a(f'''
    s_cmp_ge_u32 s2, 256
    s_cbranch_scc1 {L_end}
    s_load_dwordx2 s[76:77], s[0:1], 88
    v_lshrrev_b32 {v(R.T)}, 6, v0
    v_and_b32 {v(vL)}, 63, v0
    v_readfirstlane_b32 s24, {v(R.T)}
    v_lshrrev_b32 {v(vH)}, 5, {v(vL)}
    v_and_b32 {v(vR)}, 31, {v(vL)}
    s_mov_b32 s62, 0
    s_mov_b32 s63, -1
    ''')
    decode_wg(a)
    a(f'''
    s_waitcnt lgkmcnt(0)
    s_mov_b32 s20, s76
    s_mov_b32 s21, s77
    s_mov_b32 s22, {WS_USED}
    s_mov_b32 s23, 0x20000
    s_cmp_ge_u32 s24, 4
    s_cbranch_scc1 {L_ld}
    ''')
    attn_wave(a, R, vL, vH, vR, L_end)
    a(f'{L_ld}:')
    vOff = R.T
    a(f'''
    s_sub_u32 s44, s24, 4
    s_lshl_b32 s36, s44, 12
    s_min_u32 s36, s36, 10240
    v_lshlrev_b32 {v(vOff)}, 4, {v(vL)}
    v_add_u32 {v(vOff)}, s36, {v(vOff)}
    ''')
    for c in range(2):
        for b in kv_dma(c, vOff):
            a('\n'.join(b))
    a('s_waitcnt vmcnt(4)')
    a('s_barrier')
    for c in range(16):
        a('s_waitcnt vmcnt(0)')
        a('s_barrier')
        if c + 2 < 16:
            for b in kv_dma(c + 2, vOff):
                a('\n'.join(b))
    a(f'''
    {L_end}:
    s_endpgm
    ''')
    return a.text(), kernel_desc(name, nv), CH_BYTES * NST
```

```python
from asmlib import *
from k1 import H_OFF, QF_OFF, KV_OFF, OF_OFF, WS_USED
from k2 import decode_wg

D = 6
WRING = 3072 * D


class G2Regs:
    def __init__(self, al, D=D):
        self.T = al('g2tmp', 16, 4)
        self.vWD = al('g2wd', 3)
        self.vWA = al('g2wa', 3)
        self.vHL = al('g2hl')
        self.HF = al('g2hf', 8 * D, 4)
        self.WF = al('g2wf', 24, 4)
        self.ACC = al('g2acc', 80, 4)


def g2_setup(a, G, vL, vH, vR, wv, ring_base):
    T = G.T
    a(f'''
    s_lshr_b32 s57, s28, 1
    s_and_b32 s58, s28, 1
    s_mul_i32 s40, {wv}, {WRING}
    s_add_u32 s40, s40, {ring_base}
    s_lshl_b32 s44, s27, 1
    s_add_u32 s59, s44, s58
    s_xor_b32 s60, s59, 1
    s_mul_i32 s44, {wv}, 27
    s_mul_i32 s41, s59, 108
    s_add_u32 s41, s41, s44
    s_lshl_b32 s41, s41, 10
    s_mul_i32 s42, s60, 108
    s_add_u32 s42, s42, s44
    s_lshl_b32 s42, s42, 10
    s_mul_i32 s43, s44, {16 * 1280}
    s_mul_i32 s44, {wv}, 10
    s_mul_i32 s54, s59, 40
    s_add_u32 s54, s54, s44
    s_lshl_b32 s54, s54, 10
    s_add_u32 s54, s54, {OF_OFF}
    s_mul_i32 s55, s60, 40
    s_add_u32 s55, s55, s44
    s_lshl_b32 s55, s55, 10
    s_add_u32 s55, s55, {OF_OFF}
    s_mul_i32 s56, s44, {16 * 1280}
    s_mul_i32 s44, s57, 320
    s_lshl_b32 s45, s58, 7
    s_add_u32 s61, s44, s45
    s_mov_b32 s45, 0x15556
    v_lshlrev_b32 {v(G.vHL)}, 4, {v(vL)}
    ''')
    for p in range(3):
        a(f'''
        v_add_u32 {v(T)}, {64 * p}, {v(vL)}
        v_mul_lo_u32 {v(T + 1)}, {v(T)}, s45
        v_lshrrev_b32 {v(T + 1)}, 20, {v(T + 1)}
        v_mul_u32_u24 {v(T + 2)}, 12, {v(T + 1)}
        v_sub_u32 {v(T + 2)}, {v(T)}, {v(T + 2)}
        v_mul_u32_u24 {v(T + 1)}, 1280, {v(T + 1)}
        v_lshl_add_u32 {v(T + 1)}, {v(T + 2)}, 4, {v(T + 1)}
        v_add_u32 {v(G.vWD + p)}, s61, {v(T + 1)}
        ''')
    a(f'''
    v_bfe_u32 {v(T)}, {v(vL)}, 2, 2
    v_lshl_add_u32 {v(T)}, {v(vH)}, 3, {v(T)}
    v_mul_u32_u24 {v(T)}, 192, {v(T)}
    v_bfe_u32 {v(T + 1)}, {v(vL)}, 4, 1
    v_lshl_add_u32 {v(T)}, {v(T + 1)}, 5, {v(T)}
    v_and_b32 {v(T + 1)}, 3, {v(vL)}
    v_lshl_add_u32 {v(T)}, {v(T + 1)}, 3, {v(T)}
    v_add_u32 {v(T)}, s40, {v(T)}
    s_lshl_b32 s44, s58, 6
    s_add_u32 s45, s44, 64
    s_lshl_b32 s46, s58, 7
    s_sub_u32 s46, 128, s46
    v_add_u32 {v(G.vWA)}, s44, {v(T)}
    v_add_u32 {v(G.vWA + 1)}, s45, {v(T)}
    v_add_u32 {v(G.vWA + 2)}, s46, {v(T)}
    ''')


def g2_loads(G, k, D=D):
    sl = k % D
    if k < 27:
        srd, so, h0, h1 = 's[8:11]', 's43', 's41', 's42'
    else:
        srd, so, h0, h1 = 's[12:15]', 's56', 's54', 's55'
    out = []
    for p in range(3):
        out.append([f's_add_u32 m0, s40, {sl * 3072 + p * 1024}', 's_nop 0',
                    f'buffer_load_dwordx4 {v(G.vWD + p)}, {srd}, {so} offen lds'])
    out[2].append(f's_add_u32 {so}, {so}, {16 * 1280}')
    for e, hs in enumerate((h0, h1)):
        out.append([f'buffer_load_dwordx4 {v(G.HF + 8 * sl + 4 * e, 4)}, {v(G.vHL)}, s[20:23], {hs} offen',
                    f's_add_u32 {hs}, {hs}, 1024'])
    return out


def g2_reads(G, k, D=D):
    sl = k % D
    buf = k & 1
    out = []
    for b in range(3):
        for t in range(2):
            out.append(f'ds_read_b64_tr_b16 {v(G.WF + 12 * buf + 4 * b + 2 * t, 2)}, {v(G.vWA + b)} offset:{sl * 3072 + 768 * t}')
    return out


def g2_mfmas(G, k, D=D):
    sl = k % D
    buf = k & 1
    out = []
    for n, (b, e) in enumerate(((0, 0), (0, 1), (1, 0), (1, 1), (2, 0))):
        d = G.ACC + 16 * n
        out.append(mfma16(d, G.WF + 12 * buf + 4 * b, G.HF + 8 * sl + 4 * e, None if k == 0 else d))
    return out


def g2_final(a, G, vL, vH, vR, wv, nwaves, red_base, writer=True):
    T = G.T
    if writer:
        a(f'''
        v_and_b32 {v(T)}, 7, {v(vR)}
        v_xor_b32 {v(T)}, {v(T)}, {v(vH)}
        v_lshlrev_b32 {v(T + 1)}, 7, {v(vR)}
        s_mul_i32 s44, {wv}, 20480
        s_add_u32 s44, s44, {red_base}
        v_add_u32 {v(T + 1)}, s44, {v(T + 1)}
        ''')
        for jp in range(4):
            a(f'''
            v_xor_b32 {v(T + 2)}, {2 * jp}, {v(T)}
            v_lshl_add_u32 {v(T + 4 + jp)}, {v(T + 2)}, 4, {v(T + 1)}
            ''')
        for n in range(5):
            for jp in range(4):
                a(f'ds_write_b128 {v(T + 4 + jp)}, {v(G.ACC + 16 * n + 4 * jp, 4)} offset:{4096 * n}')
        a('s_waitcnt lgkmcnt(0)')


def g2_out(a, RT, vL, wsg, nwaves, red_base):
    rounds = (10 + nwaves - 1) // nwaves
    L_skip = a.label('g2o_skip')
    T = RT
    for rd in range(rounds):
        lab = a.label('g2o_n')
        a(f'''
        s_add_u32 s44, {wsg}, {rd * nwaves}
        s_cmp_ge_u32 s44, 10
        s_cbranch_scc1 {L_skip}
        s_lshr_b32 s45, s44, 1
        s_and_b32 s46, s44, 1
        s_lshl_b32 s46, s46, 4
        v_lshrrev_b32 {v(T)}, 2, {v(vL)}
        v_add_u32 {v(T)}, s46, {v(T)}
        v_and_b32 {v(T + 1)}, 3, {v(vL)}
        v_lshlrev_b32 {v(T + 2)}, 1, {v(T + 1)}
        v_and_b32 {v(T + 3)}, 7, {v(T)}
        v_xor_b32 {v(T + 2)}, {v(T + 2)}, {v(T + 3)}
        v_lshlrev_b32 {v(T + 3)}, 7, {v(T)}
        v_lshl_add_u32 {v(T + 4)}, {v(T + 2)}, 4, {v(T + 3)}
        s_lshl_b32 s47, s45, 12
        s_add_u32 s47, s47, {red_base}
        v_add_u32 {v(T + 4)}, s47, {v(T + 4)}
        v_xor_b32 {v(T + 5)}, 16, {v(T + 4)}
        ''')
        for w in range(4):
            a(f'ds_read_b128 {v(T + 8 + 8 * w, 4)}, {v(T + 4)} offset:{20480 * w}')
            a(f'ds_read_b128 {v(T + 12 + 8 * w, 4)}, {v(T + 5)} offset:{20480 * w}')
        a(f'''
        s_and_b32 s47, s45, 1
        s_cmp_eq_u32 s47, 1
        s_cselect_b32 s47, s60, s59
        s_mul_i32 s47, s47, {32 * 1280}
        s_lshr_b32 s48, s45, 1
        s_add_u32 s49, s48, s58
        s_lshl_b32 s49, s49, 6
        s_lshl_b32 s50, s58, 7
        s_sub_u32 s50, 128, s50
        s_cmp_eq_u32 s48, 2
        s_cselect_b32 s49, s50, s49
        s_add_u32 s47, s47, s49
        s_add_u32 s47, s47, s61
        v_mul_u32_u24 {v(T + 6)}, 1280, {v(T)}
        v_lshl_add_u32 {v(T + 6)}, {v(T + 1)}, 4, {v(T + 6)}
        buffer_load_dwordx4 {v(T + 40, 4)}, {v(T + 6)}, s[16:19], s47 offen
        s_waitcnt lgkmcnt(0)
        ''')
        for i in range(8):
            a(f'v_add_f32 {v(T + 8 + i)}, {v(T + 8 + i)}, {v(T + 16 + i)}')
            a(f'v_add_f32 {v(T + 24 + i)}, {v(T + 24 + i)}, {v(T + 32 + i)}')
        for i in range(8):
            a(f'v_add_f32 {v(T + 8 + i)}, {v(T + 8 + i)}, {v(T + 24 + i)}')
        a('s_waitcnt vmcnt(0)')
        for i in range(4):
            a(f'''
            v_lshlrev_b32 {v(T + 16 + 2 * i)}, 16, {v(T + 40 + i)}
            v_and_b32 {v(T + 17 + 2 * i)}, 0xffff0000, {v(T + 40 + i)}
            ''')
        for i in range(8):
            a(f'v_add_f32 {v(T + 8 + i)}, {v(T + 8 + i)}, {v(T + 16 + i)}')
        for i in range(4):
            a(f'v_cvt_pk_bf16_f32 {v(T + 44 + i)}, {v(T + 8 + 2 * i)}, {v(T + 9 + 2 * i)}')
        a(f'buffer_store_dwordx4 {v(T + 44, 4)}, {v(T + 6)}, s[64:67], s47 offen')
    a(f'{L_skip}:')


def gen_k3(name):
    a = Asm()
    a(kernel_head(name))
    al = Alloc(1)
    vL = al('lane')
    vH = al('h')
    vR = al('r')
    G = G2Regs(al)
    nv = al.p
    L_end = a.label('k3_end')
    a(f'''
    s_cmp_ge_u32 s2, 256
    s_cbranch_scc1 {L_end}
    s_load_dwordx2 s[68:69], s[0:1], 0
    s_load_dwordx2 s[70:71], s[0:1], 32
    s_load_dwordx4 s[72:75], s[0:1], 64
    s_load_dwordx2 s[76:77], s[0:1], 88
    v_lshrrev_b32 {v(G.T)}, 6, v0
    v_and_b32 {v(vL)}, 63, v0
    v_readfirstlane_b32 s24, {v(G.T)}
    v_lshrrev_b32 {v(vH)}, 5, {v(vL)}
    v_and_b32 {v(vR)}, 31, {v(vL)}
    ''')
    decode_wg(a)
    g2_setup(a, G, vL, vH, vR, 's24', 0)
    a(f'''
    s_waitcnt lgkmcnt(0)
    s_mov_b32 s8, s72
    s_mov_b32 s9, s73
    s_mov_b32 s10, 2211840
    s_mov_b32 s11, 0x20000
    s_mov_b32 s12, s70
    s_mov_b32 s13, s71
    s_mov_b32 s14, 819200
    s_mov_b32 s15, 0x20000
    s_mov_b32 s16, s68
    s_mov_b32 s17, s69
    s_mov_b32 s18, 2621440
    s_mov_b32 s19, 0x20000
    s_mov_b32 s20, s76
    s_mov_b32 s21, s77
    s_mov_b32 s22, {WS_USED}
    s_mov_b32 s23, 0x20000
    s_mov_b32 s64, s74
    s_mov_b32 s65, s75
    s_mov_b32 s66, 2621440
    s_mov_b32 s67, 0x20000
    ''')
    NK = 37
    for k in range(D):
        for b in g2_loads(G, k):
            a('\n'.join(b))
    a(f's_waitcnt vmcnt({5 * (D - 1)})')
    for r in g2_reads(G, 0):
        a(r)
    for k in range(NK):
        issued = min(NK, k + D)
        if k + 1 < NK:
            a(f's_waitcnt vmcnt({5 * (issued - (k + 2))})')
            for r in g2_reads(G, k + 1):
                a(r)
            a('s_waitcnt lgkmcnt(6)')
        else:
            a('s_waitcnt lgkmcnt(0)')
        ms = g2_mfmas(G, k)
        ld = g2_loads(G, k + D) if k + D < NK else [[]] * 5
        a(ms[0]); a('\n'.join(ld[0]))
        a(ms[1]); a('\n'.join(ld[1]))
        a(ms[2]); a('\n'.join(ld[2]))
        a(ms[3])
        a(ms[4])
        a('\n'.join(ld[3])); a('\n'.join(ld[4]))
    a('s_nop 15')
    a('s_barrier')
    g2_final(a, G, vL, vH, vR, 's24', 4, 0)
    a('s_barrier')
    g2_out(a, G.HF, vL, 's24', 4, 0)
    a(f'''
    {L_end}:
    s_endpgm
    ''')
    return a.text(), kernel_desc(name, nv), max(4 * WRING, 81920)
```

```python
import sys
from k1 import gen_k1
from k2 import gen_k2
from k3 import gen_k3
HDR = open('parallel_sum__grouped_kv_mqa__geglu_ffn__prompt.s.ref').read().split('; Override launch')[0]
def build(path, rot=0):
    ks = [('g1_kernel', 512) + gen_k1('g1_kernel', rot), ('at_kernel', 512) + gen_k2('at_kernel'), ('g2_kernel', 256) + gen_k3('g2_kernel')]
    out = HDR
    for n, blk, t, d, lds in ks:
        out += f'; @launch kernel={n} grid=(256,1,1) block=({blk},1,1) lds={lds}\n'
    out += '.amdgcn_target "amdgcn-amd-amdhsa--gfx950"\n'
    for n, blk, t, d, lds in ks:
        out += t
    for n, blk, t, d, lds in ks:
        out += d
    open(path, 'w').write(out)
if __name__ == '__main__':
    build(sys.argv[1] if len(sys.argv) > 1 else 'v1.s')
```

```python
import struct


def f2u(x):
    return struct.unpack('<I', struct.pack('<f', x))[0]


class Asm:
    def __init__(self):
        self.lines = []
        self.uid = 0

    def __call__(self, s):
        for ln in s.split('\n'):
            ln = ln.strip()
            if not ln:
                continue
            if ln.endswith(':') or ln.startswith('.'):
                self.lines.append(ln)
            else:
                self.lines.append('    ' + ln)

    def c(self, s):
        self.lines.append('    ; ' + s)

    def label(self, base):
        self.uid += 1
        return f'{base}_{self.uid}'

    def text(self):
        return '\n'.join(self.lines) + '\n'


def v(a, n=1):
    return f'v{a}' if n == 1 else f'v[{a}:{a + n - 1}]'


def s(a, n=1):
    return f's{a}' if n == 1 else f's[{a}:{a + n - 1}]'


class Alloc:
    def __init__(self, start=0, limit=256):
        self.p = start
        self.limit = limit
        self.names = {}

    def __call__(self, name, n=1, align=1):
        if n >= 2:
            align = max(align, 2)
        self.p = (self.p + align - 1) // align * align
        r = self.p
        self.p += n
        assert self.p <= self.limit, (name, self.p)
        self.names[name] = (r, n)
        return r


def mfma16(d, a, b, c=None):
    cs = '0' if c is None else v(c, 16)
    return f'v_mfma_f32_32x32x16_bf16 {v(d, 16)}, {v(a, 4)}, {v(b, 4)}, {cs}'


def mfma8(d, a, b, c=None):
    cs = '0' if c is None else v(c, 16)
    return f'v_mfma_f32_32x32x8_bf16 {v(d, 16)}, {v(a, 2)}, {v(b, 2)}, {cs}'


def kernel_head(name):
    return f'''.text
.globl {name}
.p2align 8
.type {name},@function
{name}:
'''


def kernel_desc(name, nv, ns=102):
    if STAMPS:
        nv = max(nv, 168)
    acc = (nv + 3) // 4 * 4
    return f'''.section .rodata,"a"
.p2align 6
.amdhsa_kernel {name}
  .amdhsa_next_free_vgpr {nv}
  .amdhsa_next_free_sgpr {ns}
  .amdhsa_accum_offset {acc}
  .amdhsa_group_segment_fixed_size 0
  .amdhsa_kernarg_size 96
  .amdhsa_user_sgpr_count 2
  .amdhsa_user_sgpr_kernarg_segment_ptr 1
  .amdhsa_system_sgpr_workgroup_id_x 1
.end_amdhsa_kernel
'''


STAMPS = False
STAMP_OFF = 0x1800000


def stamp_init(a, kidx):
    if not STAMPS:
        return
    a(f'''
    s_mov_b32 s88, s76
    s_mov_b32 s89, s77
    s_mov_b32 s90, 0x2000000
    s_mov_b32 s91, 0x20000
    s_lshl_b32 s92, s2, 3
    s_add_u32 s92, s92, s24
    s_lshl_b32 s92, s92, 7
    s_add_u32 s92, s92, {STAMP_OFF + kidx * 0x40000}
    ''')


def stamp(a, slot, early=False):
    if not STAMPS:
        return
    import os
    if os.environ.get('MINST') and slot not in (0, 20):
        return
    if not early:
        a('''
        s_memrealtime s[94:95]
        s_memtime s[96:97]
        ''')
    a(f'''
    s_waitcnt lgkmcnt(0)
    v_mov_b32 v166, s94
    v_mov_b32 v167, s96
    buffer_store_dwordx2 v[166:167], off, s[88:91], s92 offset:{slot * 8}
    ''')


def stamp_early(a):
    if not STAMPS:
        return
    a('''
    s_memrealtime s[94:95]
    s_memtime s[96:97]
    ''')
```

```python
from asmlib import *
import asmlib
import math
import os

KNAME = 'parallel_sum__grouped_kv_mqa__geglu_ffn__prompt_kernel'

H_OFF = 0
QF_OFF = 0x700000
KV_OFF = 0xA00000
OF_OFF = 0xB00000
FL_OFF = 0xE00000
F_ST = FL_OFF
F_CS = FL_OFF + 8192
F_KV = FL_OFF + 16384
F_QH = 0xE80000
F_O = 0xEC0000
ROWW = 0xE10000
CSW = 0xE20000
CSKVW = 0xE60000
WS_USED = 0xF00000

LDS_X = 0
LDS_W = 49152
LDS_KV = 147456
CS_A = 16384
PART_A = 32768
VT_A = 0
ROWC_A = 156672
CSKV_A = 158720
NONCE_A = 160768
RDY_A = 160800
LDS_TOTAL = 163840
CH_BYTES = 14336
NST = 4
KVR = 49152
Q_A = 4096
G2R = KVR + CH_BYTES * NST
G2D = 4
WOA = 0
RED_A = 0

C0 = -2.0 * math.sqrt(2.0 / math.pi) * math.log2(math.e)
C1 = C0 * 0.044715
QSC = math.log2(math.e) / math.sqrt(20.0)
M_OFFSET = 90.0
POLL_MAX = 400000
NONCE_X = 0x5a5a5a5a

HM = 's[62:63]'
PFWAIT = False
ENV = os.environ
NODOWN = ENV.get('NODOWN')
PRIO2 = int(ENV.get('PRIO2', '3'))
PRIO1 = int(ENV.get('PRIO1', '3'))
SPACE = ENV.get('SPACE', '')
NOPF = not ENV.get('PF')
INV = int(ENV.get('INV', '0'))
NOG2 = ENV.get('NOG2')
HEARLY = ENV.get('HEARLY')
PSLEEP = int(ENV.get('PSLEEP', '2'))
NOPF2 = ENV.get('NOPF2')
CV = int(ENV.get('CV', '0'))
NODMA = ENV.get('NODMA')
IST = ENV.get('IST')
LD = ' sc1' if ENV.get('SC1LD') else ''
FEWST = ENV.get('FEWST')
IST_LIST = tuple(int(x) for x in os.environ.get('ISTL', '1,2,6,7').split(','))
HFLAG_T = int(os.environ.get('HFT', '11'))
G2_START = int(os.environ.get('G2S', '5'))


class VM:
    def __init__(self):
        self.ops = []

    def add(self, tag, n=1, optional=False):
        for _ in range(n):
            self.ops.append((tag, optional))

    def wait(self, tag):
        idx = max(i for i, (t, o) in enumerate(self.ops) if t == tag)
        n = sum(1 for t, o in self.ops[idx + 1:] if not o)
        assert n <= 63, n
        return n

    def drain(self):
        self.ops = []


def emit(a, bundles):
    for b in bundles:
        a(b if isinstance(b, str) else '\n'.join(b))


def flag_store(a, soff_reg, vt):
    a(f'''
    v_mov_b32 {v(vt)}, s98
    v_mov_b32 {v(vt + 1)}, s99
    s_mov_b64 exec, 1
    buffer_store_dwordx2 {v(vt, 2)}, off, s[20:23], {soff_reg} sc1
    s_mov_b64 exec, -1
    ''')


def poll(a, vt, voff, soff_reg, wide=False, ignore=None, inv=True, sleep=None):
    L = a.label('poll')
    Ld = a.label('polld')
    a(f's_mov_b32 s93, {POLL_MAX}')
    a(f'{L}:')
    if wide:
        a(f'''
        buffer_load_dwordx4 {v(vt, 4)}, {v(voff)}, s[20:23], {soff_reg} offen sc1
        s_waitcnt vmcnt(0)
        v_cmp_eq_u64 vcc, s[98:99], {v(vt, 2)}
        v_cmp_eq_u64 s[46:47], s[98:99], {v(vt + 2, 2)}
        s_nop 1
        s_and_b64 vcc, vcc, s[46:47]
        ''')
    else:
        a(f'''
        buffer_load_dwordx2 {v(vt, 2)}, {v(voff)}, s[20:23], {soff_reg} offen sc1
        s_waitcnt vmcnt(0)
        v_cmp_eq_u64 vcc, s[98:99], {v(vt, 2)}
        s_nop 1
        ''')
    if ignore:
        a(f's_or_b64 vcc, vcc, {ignore}')
    a(f'''
    s_cmp_eq_u64 vcc, -1
    s_cbranch_scc1 {Ld}
    s_sub_u32 s93, s93, 1
    s_cbranch_scc1 {Ld}
    s_sleep {sleep or PSLEEP}
    s_branch {L}
    {Ld}:
    ''')
    if inv and INV:
        a('buffer_inv sc1\ns_waitcnt vmcnt(0)')


def one_poller(a, vt, word, body):
    Lw, Ld, Ls = a.label('opw'), a.label('opd'), a.label('ops')
    a(f'''
    v_mov_b32 {v(vt + 3)}, {RDY_A + 4 * word}
    s_cmp_lg_u32 s26, 3
    s_cbranch_scc1 {Lw}
    ''')
    body()
    a(f'''
    v_mov_b32 {v(vt + 2)}, s98
    ds_write_b32 {v(vt + 3)}, {v(vt + 2)}
    s_branch {Ld}
    {Lw}:
    s_mov_b32 s93, {POLL_MAX * 8}
    {Ls}:
    ds_read_b32 {v(vt + 2)}, {v(vt + 3)}
    s_waitcnt lgkmcnt(0)
    v_readfirstlane_b32 s46, {v(vt + 2)}
    s_cmp_eq_u32 s46, s98
    s_cbranch_scc1 {Ld}
    s_sub_u32 s93, s93, 1
    s_cbranch_scc1 {Ld}
    s_sleep 1
    s_branch {Ls}
    {Ld}:
    ''')


def srd(a, base, ptr, size):
    a(f'''
    s_mov_b32 s{base}, s{ptr}
    s_mov_b32 s{base + 1}, s{ptr + 1}
    s_mov_b32 s{base + 2}, {size}
    s_mov_b32 s{base + 3}, 0x20000
    ''')


def w_source(a):
    a('''
    s_and_b32 s44, s26, 1
    s_and_b32 s51, s44, s48
    s_lshr_b32 s45, s26, 1
    s_lshl_b32 s46, s44, 6
    s_add_u32 s46, s46, s49
    s_cmp_eq_u32 s48, 1
    s_cselect_b32 s46, s49, s46
    s_lshl_b32 s47, s45, 6
    s_add_u32 s47, s47, s50
    s_cmp_eq_u32 s51, 1
    s_cselect_b32 s52, s47, s46
    s_lshl_b32 s52, s52, 1
    s_cmp_eq_u32 s45, 1
    s_cselect_b32 s12, s82, s80
    s_cselect_b32 s13, s83, s81
    s_mov_b32 s14, 2211840
    s_mov_b32 s53, 3456
    s_cmp_eq_u32 s51, 1
    s_cselect_b32 s12, s70, s12
    s_cselect_b32 s13, s71, s13
    s_cselect_b32 s14, 819200, s14
    s_cselect_b32 s53, 1280, s53
    s_mov_b32 s15, 0x20000
    ''')


def tile_offs(t):
    p, o = t >> 1, t & 1
    b = p * 7168
    return b + o * 1024, b + 2048, b + 3072 + o * 2048, b + 4096 + o * 2048


def gen():
    a = Asm()
    a(kernel_head(KNAME))
    stamp_early(a)
    vL, vH, vR = 1, 2, 3
    L_end = a.label('end')
    L_aux = a.label('aux')
    a(f'''
    s_cmp_ge_u32 s2, 256
    s_cbranch_scc1 {L_end}
    s_load_dwordx8 s[68:75], s[0:1], 0
    s_load_dwordx4 s[80:83], s[0:1], 48
    s_load_dwordx4 s[76:79], s[0:1], 80
    s_load_dwordx2 s[84:85], s[0:1], 32
    s_load_dwordx4 s[88:91], s[0:1], 64
    v_lshrrev_b32 v4, 6, v0
    v_and_b32 {v(vL)}, 63, v0
    v_readfirstlane_b32 s24, v4
    v_lshrrev_b32 {v(vH)}, 5, {v(vL)}
    v_and_b32 {v(vR)}, 31, {v(vL)}
    s_and_b32 s44, s2, 7
    s_lshr_b32 s45, s2, 3
    s_and_b32 s46, s44, 1
    s_lshl_b32 s46, s46, 3
    s_and_b32 s47, s45, 7
    s_add_u32 s27, s46, s47
    s_lshr_b32 s46, s44, 1
    s_lshl_b32 s46, s46, 2
    s_lshr_b32 s47, s45, 3
    s_add_u32 s28, s46, s47
    s_mov_b32 s62, 0
    s_mov_b32 s63, -1
    s_cmp_ge_u32 s28, 11
    s_cselect_b32 s48, 1, 0
    s_sub_u32 s44, s28, 11
    s_lshl_b32 s45, s44, 6
    s_add_u32 s45, s45, 1408
    s_lshl_b32 s46, s28, 7
    s_lshl_b32 s50, s44, 7
    s_cmp_eq_u32 s48, 1
    s_cselect_b32 s49, s45, s46
    ''')
    a(f'''
    s_and_b32 s44, s2, 7
    s_lshr_b32 s45, s2, 3
    s_lshl_b32 s44, s44, 2
    s_and_b32 s46, s45, 3
    s_add_u32 s29, s44, s46
    s_lshr_b32 s30, s45, 2
    s_waitcnt lgkmcnt(0)
    ''')
    srd(a, 8, 68, 2621440)
    srd(a, 20, 78, WS_USED)
    srd(a, 64, 90, 2621440)
    if asmlib.STAMPS:
        a('s_mov_b32 s86, s88\ns_mov_b32 s87, s89')
    WDP = 86 if asmlib.STAMPS else 88
    if asmlib.STAMPS:
        a(f'''
        s_mov_b32 s88, s78
        s_mov_b32 s89, s79
        s_mov_b32 s90, 0x2000000
        s_mov_b32 s91, 0x20000
        s_mul_i32 s92, s2, 12
        s_add_u32 s92, s92, s24
        s_lshl_b32 s92, s92, 8
        s_add_u32 s92, s92, {asmlib.STAMP_OFF}
        ''')
    stamp(a, 0, early=True)
    a(f'''
    s_cmp_ge_u32 s24, 8
    s_cbranch_scc1 {L_aux}
    ''')
    compute_wave(a, vL, vH, vR, L_end)
    a(f'{L_aux}:')
    aux_wave(a, vL, vH, vR, L_end, WDP)
    a(f'''
    {L_end}:
    s_endpgm
    ''')
    return a.text()


def compute_wave(a, vL, vH, vR, L_end):
    al = Alloc(4, 168)
    T = al('T', 8, 4)
    ACC = al('acc', 64, 4)
    XF = al('xf', 16, 4)
    WF = al('wf', 16, 4)
    vXA = al('xa', 4)
    vWA = al('wa', 2)
    p1_end = al.p
    t0, t1, t2, t3, t4 = T, T + 1, T + 2, T + 3, T + 4
    g1, kap, fq = T + 5, T + 6, T + 7
    a.c('=========== compute wave: phase 1 ===========')
    a('''
    s_and_b32 s25, s24, 1
    s_lshr_b32 s26, s24, 1
    ''')
    w_source(a)
    a(f'''
    v_lshrrev_b32 {v(t0)}, 3, {v(vL)}
    v_and_b32 {v(t1)}, 7, {v(vL)}
    s_lshl_b32 s44, s27, 7
    s_lshl_b32 s45, s24, 4
    s_add_u32 s44, s44, s45
    v_add_u32 {v(t2)}, s44, {v(t0)}
    v_mul_u32_u24 {v(t2)}, 1280, {v(t2)}
    v_lshrrev_b32 {v(t3)}, 1, {v(t0)}
    v_xor_b32 {v(t3)}, {v(t3)}, {v(t1)}
    v_lshl_add_u32 {v(XF)}, {v(t3)}, 4, {v(t2)}
    s_lshl_b32 m0, s24, 11
    v_xor_b32 {v(t3)}, 4, {v(t3)}
    buffer_load_dwordx4 {v(XF)}, s[8:11], 0 offen lds
    v_lshl_add_u32 {v(XF + 1)}, {v(t3)}, 4, {v(t2)}
    s_add_u32 m0, m0, 1024
    s_mov_b32 s34, {8 * 1280}
    buffer_load_dwordx4 {v(XF + 1)}, s[8:11], s34 offen lds
    v_mul_lo_u32 {v(t2)}, {v(t0)}, s53
    v_lshrrev_b32 {v(t3)}, 1, {v(t1)}
    v_and_b32 {v(t4)}, 2, {v(t0)}
    v_xor_b32 {v(t3)}, {v(t3)}, {v(t4)}
    s_lshr_b32 s44, s26, 1
    v_xor_b32 {v(t3)}, s44, {v(t3)}
    v_lshl_add_u32 {v(t2)}, {v(t3)}, 5, {v(t2)}
    v_and_b32 {v(t3)}, 1, {v(t1)}
    v_lshl_add_u32 {v(XF + 2)}, {v(t3)}, 4, {v(t2)}
    s_mul_i32 s37, s26, 24576
    s_lshl_b32 s44, s25, 12
    s_add_u32 s37, s37, s44
    s_lshl_b32 s31, s53, 3
    s_lshl_b32 s33, s53, 5
    s_mul_i32 s33, s33, s25
    s_add_u32 s33, s33, s52
    ''')
    for e in range(4):
        a(f'''
        s_add_u32 m0, s37, {LDS_W + 1024 * e}
        s_nop 0
        buffer_load_dwordx4 {v(XF + 2)}, s[12:15], s33 offen lds
        s_add_u32 s33, s33, s31
        ''')
    lab0 = a.label('c0kv')
    a(f'''
    s_cmp_ge_u32 s28, 8
    s_cbranch_scc1 {lab0}
    s_cmp_ge_u32 s24, 3
    s_cbranch_scc1 {lab0}
    s_bitcmp1_b32 s28, 2
    s_cselect_b32 s16, s74, s72
    s_cselect_b32 s17, s75, s73
    s_mov_b32 s18, 25600
    s_mov_b32 s19, 0x20000
    s_lshl_b32 s44, s24, 10
    s_add_u32 m0, s44, {LDS_KV}
    v_lshlrev_b32 {v(XF + 3)}, 4, {v(vL)}
    buffer_load_dwordx4 {v(XF + 3)}, s[16:19], s44 offen lds
    {lab0}:
    ''')
    lab1, lab2 = a.label('pfx'), a.label('pfd')
    a(f'''
    s_lshr_b32 s44, s2, 3
    s_and_b32 s45, s44, 7
    s_lshr_b32 s46, s44, 3
    s_cmp_eq_u32 s25, 1
    s_cbranch_scc1 {lab1}
    v_mul_lo_u32 {v(t4)}, {v(vL)}, s53
    s_add_u32 s45, s45, 2
    s_lshl_b32 s44, s53, 6
    s_mul_i32 s45, s45, s44
    s_add_u32 s45, s45, s52
    {'s_nop 0' if NOPF else ''}
    {';' if NOPF else ''}buffer_load_dword v165, {v(t4)}, s[12:15], s45 offen
    s_branch {lab2}
    {lab1}:
    s_lshl_b32 s47, s27, 7
    s_lshl_b32 s34, s26, 5
    s_add_u32 s47, s47, s34
    v_add_u32 {v(t3)}, s47, {v(vR)}
    v_mul_u32_u24 {v(t3)}, 1280, {v(t3)}
    v_lshl_add_u32 {v(t3)}, {v(vH)}, 7, {v(t3)}
    s_lshl_b32 s46, s46, 8
    s_add_u32 s46, s46, 256
    {';' if NOPF else ''}buffer_load_dword v165, {v(t3)}, s[8:11], s46 offen
    {lab2}:
    ''')
    stamp(a, 22)
    a(f'''
    v_lshrrev_b32 {v(t0)}, 1, {v(vR)}
    v_and_b32 {v(t0)}, 7, {v(t0)}
    v_xor_b32 {v(t0)}, {v(t0)}, {v(vH)}
    v_lshlrev_b32 {v(t1)}, 7, {v(vR)}
    s_lshl_b32 s44, s25, 13
    v_add_u32 {v(t1)}, s44, {v(t1)}
    ''')
    for sI in range(4):
        a(f'''
        v_xor_b32 {v(t2)}, {2 * sI}, {v(t0)}
        v_lshl_add_u32 {v(vXA + sI)}, {v(t2)}, 4, {v(t1)}
        ''')
    a(f'''
    v_bfe_u32 {v(g1)}, {v(vL)}, 4, 1
    v_bfe_u32 {v(kap)}, {v(vL)}, 2, 2
    v_and_b32 {v(t0)}, 1, {v(vL)}
    v_lshlrev_b32 {v(t0)}, 1, {v(t0)}
    v_bfe_u32 {v(t1)}, {v(vL)}, 1, 1
    v_or_b32 {v(fq)}, {v(t0)}, {v(t1)}
    s_lshr_b32 s44, s26, 1
    s_and_b32 s57, s44, s48
    v_lshl_add_u32 {v(t0)}, {v(vH)}, 3, {v(kap)}
    v_lshlrev_b32 {v(t0)}, 7, {v(t0)}
    v_lshl_add_u32 {v(t0)}, {v(fq)}, 3, {v(t0)}
    v_and_b32 {v(t4)}, 2, {v(kap)}
    s_cmp_eq_u32 s57, 1
    s_cselect_b64 vcc, -1, 0
    ''')
    for bb in range(2):
        a(f'''
        s_lshl_b32 s44, s26, 1
        s_add_u32 s44, s44, {bb}
        s_lshr_b32 s45, s44, 2
        s_and_b32 s46, s44, 3
        v_lshlrev_b32 {v(t1)}, 1, {v(g1)}
        v_add_u32 {v(t1)}, s45, {v(t1)}
        v_mov_b32 {v(t2)}, s46
        s_lshl_b32 s44, s26, 1
        s_sub_u32 s44, s44, 3
        v_mov_b32 {v(t3)}, s44
        v_cndmask_b32 {v(t1)}, {v(t1)}, {v(t3)}, vcc
        v_add_u32 {v(t3)}, {2 * bb}, {v(g1)}
        v_cndmask_b32 {v(t2)}, {v(t2)}, {v(t3)}, vcc
        v_xor_b32 {v(t2)}, {v(t2)}, {v(t4)}
        v_lshrrev_b32 {v(t3)}, 1, {v(t1)}
        v_xor_b32 {v(t2)}, {v(t2)}, {v(t3)}
        v_mul_u32_u24 {v(t1)}, 24576, {v(t1)}
        v_lshl_add_u32 {v(t1)}, {v(t2)}, 5, {v(t1)}
        v_add_u32 {v(t1)}, {v(t1)}, {v(t0)}
        v_add_u32 {v(vWA + bb)}, {LDS_W}, {v(t1)}
        ''')

    def reads(c, sI):
        st, buf = c % 3, sI & 1
        out = [f'ds_read_b128 {v(XF + 8 * buf, 4)}, {v(vXA + sI)} offset:{LDS_X + st * 16384}']
        for bb in range(2):
            for t in range(2):
                out.append(f'ds_read_b64_tr_b16 {v(WF + 8 * buf + 4 * bb + 2 * t, 2)}, {v(vWA + bb)} offset:{st * 8192 + 2048 * sI + 512 * t}')
        out.append(f'ds_read_b128 {v(XF + 8 * buf + 4, 4)}, {v(vXA + sI)} offset:{LDS_X + st * 16384 + 4096}')
        return out

    def mfmas(c, sI):
        buf = sI & 1
        first = (c == 0 and sI == 0)
        return [mfma16(ACC + 32 * e + 16 * bb, WF + 8 * buf + 4 * bb, XF + 8 * buf + 4 * e,
                       None if first else ACC + 32 * e + 16 * bb) for e, bb in ((0, 0), (0, 1), (1, 0), (1, 1))]

    def mix(ms, rd, wait=True):
        if CV == 0:
            cut = [rd[0:2], rd[2:4], rd[4:6], []]
            if wait:
                a('s_waitcnt lgkmcnt(0)')
            for m, r in zip(ms, cut):
                a(m)
                emit(a, r)
        elif CV == 1:
            emit(a, rd)
            if wait:
                a('s_waitcnt lgkmcnt(6)')
            emit(a, ms)
        elif CV == 2:
            cut = [rd[0:3], rd[3:6], [], []]
            if wait:
                a('s_waitcnt lgkmcnt(0)')
            for m, r in zip(ms, cut):
                a(m)
                emit(a, r)
        elif CV == 3:
            if wait:
                a('s_waitcnt lgkmcnt(3)')
            a(ms[0]); emit(a, rd[0:2])
            if wait:
                a('s_waitcnt lgkmcnt(3)')
            a(ms[1]); emit(a, rd[2:4])
            if wait:
                a('s_waitcnt lgkmcnt(4)')
            a(ms[2]); emit(a, rd[4:6])
            a(ms[3])

    for c in range(10):
        a.c(f'chunk {c}')
        a('s_waitcnt lgkmcnt(0)' if c else f's_waitcnt vmcnt({0 if NOPF else 1})')
        a('s_barrier')
        if c == 0:
            a('s_waitcnt vmcnt(0)' if PFWAIT else 's_nop 0')
        if not FEWST or c in (0, 1, 2, 9):
            stamp(a, 1 + c)
        if c > 0:
            mix(mfmas(c - 1, 3), reads(c, 0), wait=False)
        else:
            emit(a, reads(c, 0))
        for sI in range(3):
            mix(mfmas(c, sI), reads(c, sI + 1))
    a('s_waitcnt lgkmcnt(0)')
    emit(a, mfmas(9, 3))
    stamp(a, 11)
    a('s_barrier')
    stamp(a, 12)

    al2 = Alloc(XF, 168)
    RC = al2('rc', 8, 4)
    NEG = al2('neg', 8, 4)
    CSF = al2('csf', 16, 4)
    KK = al2('kk', 4, 2)
    E1 = al2('e1', 16, 4)
    E2 = al2('e2', 16, 4)
    HH = 148
    vS16 = al2('s16')
    vQA = al2('qa')
    a(f'''
    s_lshl_b32 s44, s25, 10
    s_add_u32 s44, s44, {ROWC_A}
    v_lshl_add_u32 {v(t0)}, {v(vR)}, 4, s44
    v_lshlrev_b32 {v(vS16)}, 4, {v(vL)}
    s_lshl_b32 s44, s26, 8
    s_add_u32 s44, s44, {CS_A}
    v_lshl_add_u32 {v(t1)}, {v(vR)}, 2, s44
    v_lshl_add_u32 {v(t1)}, {v(vH)}, 12, {v(t1)}
    v_add_u32 {v(t3)}, 128, {v(t1)}
    v_mov_b32 {v(t2)}, {NONCE_A}
    ds_read_b128 {v(RC, 4)}, {v(t0)}
    ds_read_b128 {v(RC + 4, 4)}, {v(t0)} offset:512
    ''')
    for bb in range(2):
        for m in range(2):
            for z in range(2):
                a(f'ds_read2st64_b32 {v(CSF + 8 * bb + 4 * m + 2 * z, 2)}, {v((t1, t3)[bb])} offset0:{32 * m + 8 * z} offset1:{32 * m + 8 * z + 4}')
    a(f'''
    ds_read_b64 {v(T + 6, 2)}, {v(t2)}
    s_mov_b32 s46, {f2u(C0)}
    s_mov_b32 s47, {f2u(C1)}
    s_lshl_b32 s44, s27, 2
    s_lshl_b32 s45, s25, 1
    s_add_u32 s60, s44, s45
    s_waitcnt lgkmcnt(9)
    ''')
    for e in range(2):
        for r in range(4):
            a(f'v_mov_b32 {v(NEG + 4 * e + r)}, {v(RC + 4 * e)}')
    for e in range(2):
        a(f'''
        v_mul_f32 {v(KK + 2 * e)}, s46, {v(RC + 4 * e + 1)}
        v_mul_f32 {v(t0)}, {v(RC + 4 * e + 1)}, {v(RC + 4 * e + 1)}
        v_mul_f32 {v(t0)}, {v(t0)}, {v(RC + 4 * e + 1)}
        v_mul_f32 {v(KK + 2 * e + 1)}, s47, {v(t0)}
        ''')
    a('s_waitcnt lgkmcnt(0)')
    for e in range(2):
        for bb in range(2):
            d = ACC + 32 * e + 16 * bb
            for m in range(2):
                a(mfma16(d, CSF + 8 * bb + 4 * m, NEG + 4 * e, d))
    L_q = a.label('qepi')
    L_ed = a.label('epidone')
    a(f'''
    v_readfirstlane_b32 s98, {v(T + 6)}
    v_readfirstlane_b32 s99, {v(T + 7)}
    s_cmp_eq_u32 s57, 1
    s_cbranch_scc1 {L_q}
    s_lshr_b32 s44, s49, 4
    s_lshl_b32 s45, s26, 1
    s_add_u32 s44, s44, s45
    s_mul_i32 s42, s60, 108
    s_add_u32 s42, s42, s44
    s_lshl_b32 s42, s42, 10
    s_add_u32 s43, s42, {108 * 1024}
    ''')
    k = 0
    for e in range(2):
        for bb in range(2):
            A = ACC + 32 * e + 16 * bb
            TT = E1 + 8 * (k % 2)
            PP = E2 + 8 * (k % 2)
            O_ = HH + 4 * k
            kk = v(KK + 2 * e, 2)
            rc = v(RC + 4 * e + 2, 2)
            for i in range(0, 8, 2):
                a(f'v_pk_mul_f32 {v(TT + i, 2)}, {v(A + i, 2)}, {v(A + i, 2)}')
            for i in range(0, 8, 2):
                a(f'v_pk_fma_f32 {v(TT + i, 2)}, {v(TT + i, 2)}, {kk}, {kk} op_sel:[0,1,0] op_sel_hi:[1,1,0]')
            for i in range(0, 8, 2):
                a(f'v_pk_mul_f32 {v(TT + i, 2)}, {v(TT + i, 2)}, {v(A + i, 2)}')
            for i in range(8):
                a(f'v_exp_f32 {v(TT + i)}, {v(TT + i)}')
            for i in range(0, 8, 2):
                a(f'v_pk_mul_f32 {v(PP + i, 2)}, {v(A + i, 2)}, {v(A + 8 + i, 2)}')
            for i in range(0, 8, 2):
                a(f'v_pk_fma_f32 {v(TT + i, 2)}, {v(TT + i, 2)}, {rc}, {rc} op_sel_hi:[1,0,0]')
            for i in range(8):
                a(f'v_rcp_f32 {v(TT + i)}, {v(TT + i)}')
            a('s_nop 0')
            for i in range(0, 8, 2):
                a(f'v_pk_mul_f32 {v(PP + i, 2)}, {v(PP + i, 2)}, {v(TT + i, 2)}')
            for i in range(4):
                a(f'v_cvt_pk_bf16_f32 {v(O_ + i)}, {v(PP + 2 * i)}, {v(PP + 2 * i + 1)}')
            k += 1
    if HEARLY:
        for k in range(4):
            a(f'buffer_store_dwordx4 {v(HH + 4 * k, 4)}, {v(vS16)}, s[20:23], s{42 + (k >> 1)} offen offset:{1024 * (k & 1)} sc1')
    a(f's_branch {L_ed}')
    a(f'{L_q}:')
    a(f'''
    s_setprio 2
    s_sub_u32 s44, s26, 2
    s_lshl_b32 s44, s44, 6
    s_add_u32 s44, s44, s50
    s_lshl_b32 s44, s44, 6
    s_add_u32 s44, s44, {QF_OFF}
    s_mov_b32 s45, {f2u(QSC)}
    s_mul_i32 s46, s60, 40960
    s_add_u32 s46, s46, s44
    s_add_u32 s47, s46, 40960
    v_mul_f32 {v(KK)}, s45, {v(RC + 1)}
    v_mul_f32 {v(KK + 2)}, s45, {v(RC + 5)}
    ''')
    k = 0
    for e in range(2):
        for bb in range(2):
            A = ACC + 32 * e + 16 * bb
            O_ = (E1, E1 + 8, E2, E2 + 8)[k]
            for i in range(0, 16, 2):
                a(f'v_pk_mul_f32 {v(A + i, 2)}, {v(A + i, 2)}, {v(KK + 2 * e, 2)} op_sel_hi:[1,0]')
            for i in range(8):
                a(f'v_cvt_pk_bf16_f32 {v(O_ + i)}, {v(A + 2 * i)}, {v(A + 2 * i + 1)}')
            for z in range(2):
                a(f'buffer_store_dwordx4 {v(O_ + 4 * z, 4)}, {v(vS16)}, s[20:23], s{46 + e} offen offset:{1024 * z + 2048 * bb} sc1')
            k += 1
    a(f'{L_ed}:')
    stamp(a, 13)

    a.c('=========== compute wave: attention ===========')
    al3 = Alloc(4, 168)
    T = al3('T', 16, 4)
    S = al3('S', 32, 4)
    O = al3('O', 16, 4)
    V1 = al3('V1', 4, 4)
    V2 = al3('V2', 4, 4)
    Q1 = al3('Q1', 4, 4)
    K1 = al3('K1', 8, 4)
    K2 = al3('K2', 8, 4)
    P = al3('P', 16, 4)
    Q2 = al3('Q2', 2, 2)
    vK = al3('vK')
    vK2 = al3('vK2')
    a(f'''
    s_lshl_b32 s44, s27, 1
    s_add_u32 s44, s44, s25
    s_lshl_b32 s44, s44, 13
    s_lshl_b32 s45, s28, 2
    s_add_u32 s45, s45, s26
    s_lshl_b32 s45, s45, 7
    s_add_u32 s44, s44, s45
    s_add_u32 s41, s44, {F_QH}
    s_nop 1
    ''')
    for i in range(16):
        a(f'v_mov_b32 {v(O + i)}, 0')
    for i in range(4):
        a(f'v_mov_b32 {v(V1 + i)}, 0')
        a(f'v_mov_b32 {v(V2 + i)}, 0')
    a(f'''
    s_mov_b32 s45, {KVR}
    v_lshl_add_u32 {v(vK)}, {v(vL)}, 4, s45
    v_lshl_add_u32 {v(vK2)}, {v(vL)}, 3, s45
    s_mul_i32 s45, s24, 5
    v_lshlrev_b32 {v(T + 4)}, 4, {v(vR)}
    v_add_u32 {v(T + 4)}, {Q_A}, {v(T + 4)}
    ''')
    for z, (dq, useh) in enumerate(((0, 1), (2, 1), (4, 0))):
        a(f's_add_u32 s46, s45, {dq}')
        a(f'v_add_u32 {v(T + 5)}, s46, {v(vH)}' if useh else f'v_mov_b32 {v(T + 5)}, s46')
        a(f'''
        v_lshrrev_b32 {v(T + 6)}, 1, {v(T + 5)}
        v_lshl_add_u32 {v(T + 6)}, {v(T + 6)}, 9, {v(T + 4)}
        v_and_b32 {v(T + 5)}, 1, {v(T + 5)}
        v_lshl_add_u32 {v(T + 13 + z)}, {v(T + 5)}, 3, {v(T + 6)}
        ''')
    lab = a.label('noqf')
    a(f'''
    s_cmp_eq_u32 s57, 0
    s_cbranch_scc1 {lab}
    s_waitcnt vmcnt(0)
    ''')
    flag_store(a, 's41', T + 2)
    a('s_setprio 0')
    a(f'{lab}:')
    for i in range(8):
        a(f'v_mov_b32 {v(P + 8 + i)}, 0')
    stamp(a, 14)
    a('s_barrier')
    stamp(a, 15)
    o0, o1, o2 = tile_offs(0), tile_offs(1), tile_offs(2)
    a(f'''
    ds_read_b64 {v(Q1, 2)}, {v(T + 13)}
    ds_read_b64 {v(Q1 + 2, 2)}, {v(T + 14)}
    ds_read_b64 {v(Q2, 2)}, {v(T + 15)}
    ds_read_b128 {v(K1, 4)}, {v(vK)} offset:{o0[0]}
    ds_read_b128 {v(K1 + 4, 4)}, {v(vK)} offset:{o1[0]}
    ds_read2st64_b64 {v(K2, 4)}, {v(vK2)} offset0:{o0[1] // 512} offset1:{o0[1] // 512 + 1}
    v_mov_b32 {v(T + 2)}, 0
    s_waitcnt lgkmcnt(3)
    v_cndmask_b32 {v(Q2)}, {v(Q2)}, {v(T + 2)}, {HM}
    v_cndmask_b32 {v(Q2 + 1)}, {v(Q2 + 1)}, {v(T + 2)}, {HM}
    s_waitcnt lgkmcnt(0)
    ''')

    def set_m(mreg, offset):
        t0, t1, t2, t3 = T + 8, T + 9, T + 10, T + 11
        a(f'v_sub_f32 {v(t0)}, {f2u(-offset) if offset else 0}, {v(mreg)}')
        a(f'''
        v_cvt_pk_bf16_f32 {v(t1)}, {v(t0)}, {v(t0)}
        v_and_b32 {v(t2)}, 0xffff0000, {v(t1)}
        v_sub_f32 {v(t2)}, {v(t0)}, {v(t2)}
        v_cvt_pk_bf16_f32 {v(t1)}, {v(t0)}, {v(t2)}
        v_and_b32 {v(t3)}, 0xffff0000, {v(t1)}
        v_sub_f32 {v(t2)}, {v(t2)}, {v(t3)}
        v_mov_b32 {v(t3)}, 0
        v_cvt_pk_bf16_f32 {v(t2)}, {v(t2)}, {v(t3)}
        v_cndmask_b32 {v(Q2)}, {v(Q2)}, {v(t1)}, {HM}
        v_cndmask_b32 {v(Q2 + 1)}, {v(Q2 + 1)}, {v(t2)}, {HM}
        ''')

    def cross_half_max(reg):
        t = T + 12
        a(f'''
        v_mov_b32 {v(t)}, {v(reg)}
        s_nop 1
        v_permlane32_swap_b32 {v(reg)}, {v(t)}
        s_nop 1
        v_max_f32 {v(reg)}, {v(reg)}, {v(t)}
        ''')

    for t in range(2):
        a(mfma16(S + 16 * t, K1 + 4 * t, Q1))
    if not HEARLY:
        lab = a.label('nohst')
        a(f'''
        v_lshlrev_b32 {v(T)}, 4, {v(vL)}
        s_cmp_eq_u32 s57, 1
        s_cbranch_scc1 {lab}
        ''')
        for k in range(4):
            a(f'buffer_store_dwordx4 {v(HH + 4 * k, 4)}, {v(T)}, s[20:23], s{42 + (k >> 1)} offen offset:{1024 * (k & 1)} sc1')
        a(f'{lab}:')
    a('s_nop 8')
    for t in range(2):
        a(mfma8(S + 16 * t, K2 + 2 * t, Q2, S + 16 * t))
    a('s_nop 11')
    m = T + 4
    a(f'v_max3_f32 {v(m)}, {v(S)}, {v(S + 1)}, {v(S + 2)}')
    for i in range(3, 31, 2):
        a(f'v_max3_f32 {v(m)}, {v(m)}, {v(S + i)}, {v(S + i + 1)}')
    a(f'v_max_f32 {v(m)}, {v(m)}, {v(S + 31)}')
    cross_half_max(m)
    set_m(m, M_OFFSET)
    a('s_nop 1')
    a(mfma16(S, K1, Q1))
    a(f'''
    ds_read_b128 {v(K1, 4)}, {v(vK)} offset:{o2[0]}
    s_mov_b32 s34, 4
    s_nop 7
    ''')
    a(mfma8(S, K2, Q2, S))
    a('s_nop 9')
    stamp(a, 16)

    def toff(tt):
        tt &= 15
        o = tile_offs(tt & 3)
        return [x + (tt >> 2) * CH_BYTES for x in o]

    def k2read(reg, tt):
        o = toff(tt)[1]
        assert o % 512 == 0
        return f'ds_read2st64_b64 {v(reg, 4)}, {v(vK2)} offset0:{o // 512} offset1:{o // 512 + 1}'

    L_hf, L_hb = a.label('hflag'), a.label('hback')

    def slot(t):
        Sx, Sn = S + 16 * (t & 1), S + 16 * ((t + 1) & 1)
        Px, Pp = P + 8 * (t & 1), P + 8 * ((t + 1) & 1)
        kt = t + 1
        kb = kt & 1
        k2 = K2 + 4 * ((kt >> 1) & 1) + 2 * (kt & 1)
        m_ = [mfma16(Sn, K1 + 4 * kb, Q1), mfma16(O, V1, Pp, O), mfma8(Sn, k2, Q2, Sn), mfma16(O, V2, Pp + 4, O)]
        after = [[], [], [], []]
        if t & 3 == 1:
            after[0] = ['s_barrier']
        after[0] += [f'ds_read_b128 {v(K1 + 4 * kb, 4)}, {v(vK)} offset:{toff(t + 3)[0]}', 's_waitcnt lgkmcnt(2)']
        after[1] = [f'ds_read_b128 {v(V1, 4)}, {v(vK)} offset:{toff(t)[2]}']
        if t & 1:
            after[1] += [k2read(K2 + 4 * (((t + 3) >> 1) & 1), t + 3)]
        after[2] += [f's_waitcnt lgkmcnt({3 if t & 1 else 2})']
        after[3] = [f'ds_read_b128 {v(V2, 4)}, {v(vK)} offset:{toff(t)[3]}']
        if t == 15:
            after[3] += ['s_sub_u32 s34, s34, 1']
        if t == HFLAG_T:
            after[3] += ['s_cmp_eq_u32 s34, 4', f's_cbranch_scc1 {L_hf}', f'{L_hb}:']
        val = []
        for i in range(8):
            val.append(f'v_exp_f32 {v(Sx + 2 * i)}, {v(Sx + 2 * i)}')
            val.append(f'v_exp_f32 {v(Sx + 2 * i + 1)}, {v(Sx + 2 * i + 1)}')
            if i > 0:
                val.append(f'v_cvt_pk_bf16_f32 {v(Px + i - 1)}, {v(Sx + 2 * i - 2)}, {v(Sx + 2 * i - 1)}')
        val.append(f'v_cvt_pk_bf16_f32 {v(Px + 7)}, {v(Sx + 14)}, {v(Sx + 15)}')
        groups = [val[0:5], val[5:11], val[11:17], val[17:24]]
        for g in range(4):
            a(m_[g])
            emit(a, after[g])
            emit(a, groups[g])

    a(k2read(K2 + 4, 2))
    L_loop = a.label('att')
    a('.p2align 6')
    a(f'{L_loop}:')
    for t in range(16):
        slot(t)
    a(f'''
    s_cmp_lg_u32 s34, 0
    s_cbranch_scc1 {L_loop}
    s_waitcnt lgkmcnt(0)
    ''')
    a(mfma16(O, V1, P + 8, O))
    a(mfma16(O, V2, P + 12, O))
    a(f'''
    s_lshr_b32 s44, s30, 2
    s_lshl_b32 s31, s29, 1
    s_add_u32 s31, s31, s44
    s_and_b32 s44, s30, 3
    s_lshl_b32 s44, s44, 3
    s_add_u32 s33, s44, s24
    s_mul_i32 s35, s31, 40960
    s_add_u32 s35, s35, {OF_OFF}
    s_lshl_b32 s36, s33, 10
    s_add_u32 s36, s36, s35
    s_lshl_b32 s44, s33, 8
    s_add_u32 s35, s35, s44
    s_add_u32 s35, s35, 32768
    v_lshlrev_b32 {v(T + 2)}, 4, {v(vL)}
    v_lshlrev_b32 {v(T + 3)}, 3, {v(vL)}
    v_mov_b32 {v(T + 9)}, 0x7f000000
    v_cndmask_b32 {v(T + 3)}, {v(T + 3)}, {v(T + 9)}, {HM}
    s_nop 3
    ''')
    stamp(a, 17)
    L_fb = a.label('fb')
    L_out = a.label('aout')
    a(f'''
    s_mov_b32 s44, {f2u(2.0 ** 120)}
    s_mov_b32 s45, {f2u(2.0 ** -103)}
    v_add_f32 {v(T)}, |{v(O)}|, |{v(O + 1)}|
    ''')
    for i in range(2, 12):
        a(f'v_add_f32 {v(T)}, {v(T)}, |{v(O + i)}|')
    a(f'''
    v_add_f32 {v(T + 1)}, {v(T)}, {v(O + 12)}
    v_cmp_le_f32 s[46:47], s45, {v(T)}
    v_cmp_gt_f32 s[48:49], s44, {v(T + 1)}
    s_nop 1
    s_and_b64 s[46:47], s[46:47], s[48:49]
    s_cmp_eq_u64 s[46:47], -1
    s_cbranch_scc0 {L_fb}
    {L_out}:
    v_rcp_f32 {v(T)}, {v(O + 12)}
    s_lshl_b32 s44, s29, 13
    s_lshl_b32 s45, s30, 3
    s_add_u32 s45, s45, s24
    s_lshl_b32 s45, s45, 7
    s_add_u32 s44, s44, s45
    s_add_u32 s44, s44, {F_O}
    ''')
    for i in range(0, 12, 2):
        a(f'v_pk_mul_f32 {v(O + i, 2)}, {v(O + i, 2)}, {v(T, 2)} op_sel_hi:[1,0]')
    for i in range(6):
        a(f'v_cvt_pk_bf16_f32 {v(P + i)}, {v(O + 2 * i)}, {v(O + 2 * i + 1)}')
    a(f'buffer_store_dwordx4 {v(P, 4)}, {v(T + 2)}, s[20:23], s36 offen sc1')
    a(f'buffer_store_dwordx2 {v(P + 4, 2)}, {v(T + 3)}, s[20:23], s35 offen sc1')
    a('s_waitcnt vmcnt(0)')
    flag_store(a, 's44', T + 6)
    stamp(a, 18)
    g2_ids(a)
    g2_out(a, S, vL, 's24', 0)
    a('s_barrier')
    stamp(a, 19)
    g2_out(a, S, vL, 's24', 1)
    if asmlib.STAMPS:
        a('s_waitcnt vmcnt(0)')
    stamp(a, 20)
    a(f's_branch {L_end}')

    a(f'{L_hf}:')
    a('s_waitcnt vmcnt(0)')
    flag_store(a, 's41', T + 2)
    a(f's_branch {L_hb}')
    a(f'{L_fb}:')
    L1 = a.label('fb1')
    L2 = a.label('fb2')
    a(f'''
    v_lshlrev_b32 {v(T + 13)}, 4, {v(vL)}
    v_lshlrev_b32 {v(T + 7)}, 3, {v(vL)}
    v_mov_b32 {v(T + 14)}, 0
    v_mov_b32 {v(T + 15)}, 0xff800000
    v_cndmask_b32 {v(Q2)}, {v(Q2)}, {v(T + 14)}, {HM}
    v_cndmask_b32 {v(Q2 + 1)}, {v(Q2 + 1)}, {v(T + 14)}, {HM}
    s_mov_b32 s37, {KV_OFF}
    s_mov_b32 s34, 32
    {L1}:
    buffer_load_dwordx4 {v(K1, 4)}, {v(T + 13)}, s[20:23], s37 offen sc1
    buffer_load_dwordx4 {v(K1 + 4, 4)}, {v(T + 13)}, s[20:23], s37 offen offset:1024 sc1
    buffer_load_dwordx2 {v(K2, 2)}, {v(T + 7)}, s[20:23], s37 offen offset:2048 sc1
    buffer_load_dwordx2 {v(K2 + 2, 2)}, {v(T + 7)}, s[20:23], s37 offen offset:2560 sc1
    s_waitcnt vmcnt(0)
    ''')
    for t in range(2):
        a(mfma16(S + 16 * t, K1 + 4 * t, Q1))
    a('s_nop 9')
    for t in range(2):
        a(mfma8(S + 16 * t, K2 + 2 * t, Q2, S + 16 * t))
    a('s_nop 15')
    for i in range(0, 32, 2):
        a(f'v_max3_f32 {v(T + 15)}, {v(T + 15)}, {v(S + i)}, {v(S + i + 1)}')
    a(f'''
    s_add_u32 s37, s37, 7168
    s_sub_u32 s34, s34, 1
    s_cmp_lg_u32 s34, 0
    s_cbranch_scc1 {L1}
    ''')
    cross_half_max(T + 15)
    set_m(T + 15, 0.0)
    for i in range(16):
        a(f'v_mov_b32 {v(O + i)}, 0')
    a(f'''
    s_mov_b32 s37, {KV_OFF}
    s_mov_b32 s34, 64
    {L2}:
    s_and_b32 s38, s34, 1
    s_lshl_b32 s39, s38, 10
    s_add_u32 s39, s39, s37
    s_lshl_b32 s40, s38, 9
    s_add_u32 s40, s40, s37
    s_lshl_b32 s41, s38, 11
    s_add_u32 s41, s41, s37
    s_add_u32 s41, s41, 3072
    buffer_load_dwordx4 {v(K1, 4)}, {v(T + 13)}, s[20:23], s39 offen sc1
    buffer_load_dwordx2 {v(K2, 2)}, {v(T + 7)}, s[20:23], s40 offen offset:2048 sc1
    buffer_load_dwordx4 {v(V1, 4)}, {v(T + 13)}, s[20:23], s41 offen sc1
    buffer_load_dwordx4 {v(V2, 4)}, {v(T + 13)}, s[20:23], s41 offen offset:1024 sc1
    s_waitcnt vmcnt(0)
    {mfma16(S, K1, Q1)}
    s_nop 10
    {mfma8(S, K2, Q2, S)}
    s_nop 15
    ''')
    for i in range(16):
        a(f'v_exp_f32 {v(S + i)}, {v(S + i)}')
    a('s_nop 0')
    for i in range(8):
        a(f'v_cvt_pk_bf16_f32 {v(P + i)}, {v(S + 2 * i)}, {v(S + 2 * i + 1)}')
    a(f'''
    s_nop 1
    {mfma16(O, V1, P, O)}
    {mfma16(O, V2, P + 4, O)}
    s_mul_i32 s38, s38, 7168
    s_add_u32 s37, s37, s38
    s_sub_u32 s34, s34, 1
    s_cmp_lg_u32 s34, 0
    s_cbranch_scc1 {L2}
    s_nop 15
    s_branch {L_out}
    ''')


def g2_ids(a):
    a('''
    s_lshr_b32 s57, s30, 1
    s_and_b32 s58, s30, 1
    s_lshl_b32 s44, s29, 1
    s_add_u32 s59, s44, s58
    s_xor_b32 s60, s59, 1
    s_mul_i32 s44, s57, 320
    s_lshl_b32 s45, s58, 7
    s_add_u32 s61, s44, s45
    ''')


def g2_out(a, T, vL, wsg, part):
    L_skip = a.label('g2o')
    a(f'''
    s_cmp_ge_u32 {wsg}, 10
    s_cbranch_scc1 {L_skip}
    ''')
    if part == 0:
        a(f'''
        s_lshr_b32 s45, {wsg}, 1
        s_and_b32 s46, {wsg}, 1
        s_lshl_b32 s46, s46, 4
        v_lshrrev_b32 {v(T)}, 2, {v(vL)}
        v_add_u32 {v(T)}, s46, {v(T)}
        v_and_b32 {v(T + 1)}, 3, {v(vL)}
        s_and_b32 s47, s45, 1
        s_cmp_eq_u32 s47, 1
        s_cselect_b32 s47, s60, s59
        s_mul_i32 s47, s47, {32 * 1280}
        s_lshr_b32 s48, s45, 1
        s_add_u32 s49, s48, s58
        s_lshl_b32 s49, s49, 6
        s_lshl_b32 s50, s58, 7
        s_sub_u32 s50, 128, s50
        s_cmp_eq_u32 s48, 2
        s_cselect_b32 s49, s50, s49
        s_add_u32 s47, s47, s49
        s_add_u32 s31, s47, s61
        v_mul_u32_u24 {v(T + 6)}, 1280, {v(T)}
        v_lshl_add_u32 {v(T + 6)}, {v(T + 1)}, 4, {v(T + 6)}
        buffer_load_dwordx4 {v(T + 2, 4)}, {v(T + 6)}, s[8:11], s31 offen
        v_lshlrev_b32 {v(T + 1)}, 1, {v(T + 1)}
        v_and_b32 {v(T + 7)}, 7, {v(T)}
        v_xor_b32 {v(T + 1)}, {v(T + 1)}, {v(T + 7)}
        v_lshlrev_b32 {v(T)}, 7, {v(T)}
        v_lshl_add_u32 {v(T)}, {v(T + 1)}, 4, {v(T)}
        s_lshl_b32 s47, s45, 12
        s_add_u32 s48, s47, {G2R - 3 * 4096}
        s_add_u32 s47, s47, {WOA}
        s_cmp_ge_u32 s45, 3
        s_cselect_b32 s47, s48, s47
        v_add_u32 {v(T)}, s47, {v(T)}
        v_xor_b32 {v(T + 1)}, 16, {v(T)}
        ''')
    else:
        for w in range(4):
            a(f'ds_read_b128 {v(T + 8 + 8 * w, 4)}, {v(T)} offset:{12288 * w}')
            a(f'ds_read_b128 {v(T + 12 + 8 * w, 4)}, {v(T + 1)} offset:{12288 * w}')
        a('s_waitcnt vmcnt(0)')
        for i in range(4):
            a(f'''
            v_lshlrev_b32 {v(T + 40 + 2 * i)}, 16, {v(T + 2 + i)}
            v_and_b32 {v(T + 41 + 2 * i)}, 0xffff0000, {v(T + 2 + i)}
            ''')
        a('s_waitcnt lgkmcnt(4)')
        for i in range(0, 8, 2):
            a(f'v_pk_add_f32 {v(T + 8 + i, 2)}, {v(T + 8 + i, 2)}, {v(T + 16 + i, 2)}')
        for i in range(0, 8, 2):
            a(f'v_pk_add_f32 {v(T + 8 + i, 2)}, {v(T + 8 + i, 2)}, {v(T + 40 + i, 2)}')
        a('s_waitcnt lgkmcnt(0)')
        for i in range(0, 8, 2):
            a(f'v_pk_add_f32 {v(T + 24 + i, 2)}, {v(T + 24 + i, 2)}, {v(T + 32 + i, 2)}')
        for i in range(0, 8, 2):
            a(f'v_pk_add_f32 {v(T + 8 + i, 2)}, {v(T + 8 + i, 2)}, {v(T + 24 + i, 2)}')
        for i in range(4):
            a(f'v_cvt_pk_bf16_f32 {v(T + 16 + i)}, {v(T + 8 + 2 * i)}, {v(T + 9 + 2 * i)}')
        a(f'buffer_store_dwordx4 {v(T + 16, 4)}, {v(T + 6)}, s[64:67], s31 offen')
    a(f'{L_skip}:')


def aux_wave(a, vL, vH, vR, L_end, WDP):
    al = Alloc(4, 168)
    T = al('T', 16, 4)
    vXD = al('xd', 2)
    vWD = al('wd')
    vKD = al('kd')
    vKX = al('kx')
    vKW = al('kw')
    XR = al('xr', 10, 2)
    CR = al('cr', 20, 2)
    PF = al('pf', 2)
    AKV = al('akv', 16, 4)
    KXF = al('kxf', 4, 4)
    KWF = al('kwf', 4, 4)
    FX = al('fx', 16, 4)
    RD = al('rd', 48, 4)
    t0, t1, t2, t3, t4, t5 = T, T + 1, T + 2, T + 3, T + 4, T + 5
    vm = VM()
    a.c('=========== aux wave: phase 1 ===========')
    a(f's_sub_u32 s26, s24, 8\ns_setprio {PRIO1}')
    w_source(a)
    a(f'''
    s_bitcmp1_b32 s28, 2
    s_cselect_b32 s16, s74, s72
    s_cselect_b32 s17, s75, s73
    s_mov_b32 s18, 25600
    s_mov_b32 s19, 0x20000
    s_lshl_b32 s31, s53, 3
    s_lshl_b32 s32, s53, 6
    s_cmp_lt_u32 s28, 8
    s_cselect_b32 s54, 1, 0
    s_cmp_lt_u32 s26, 3
    s_cselect_b32 s40, s54, 0
    s_lshl_b32 s36, s26, 12
    s_mul_i32 s37, s26, 24576
    s_add_u32 s37, s37, {LDS_W}
    s_lshl_b32 s38, s26, 10
    s_add_u32 s38, s38, {LDS_KV}
    ''')
    a(f'''
    v_lshrrev_b32 {v(t0)}, 3, {v(vL)}
    v_and_b32 {v(t1)}, 7, {v(vL)}
    s_lshl_b32 s44, s27, 7
    s_lshl_b32 s45, s26, 5
    s_add_u32 s44, s44, s45
    v_add_u32 {v(t2)}, s44, {v(t0)}
    v_mul_u32_u24 {v(t2)}, 1280, {v(t2)}
    v_lshrrev_b32 {v(t3)}, 1, {v(t0)}
    v_xor_b32 {v(t3)}, {v(t3)}, {v(t1)}
    v_lshl_add_u32 {v(vXD)}, {v(t3)}, 4, {v(t2)}
    v_xor_b32 {v(t3)}, 4, {v(t3)}
    v_lshl_add_u32 {v(vXD + 1)}, {v(t3)}, 4, {v(t2)}
    v_add_u32 {v(vXD + 1)}, {8 * 1280}, {v(vXD + 1)}
    v_mul_lo_u32 {v(t2)}, {v(t0)}, s53
    v_lshrrev_b32 {v(t3)}, 1, {v(t1)}
    v_and_b32 {v(t4)}, 2, {v(t0)}
    v_xor_b32 {v(t3)}, {v(t3)}, {v(t4)}
    s_lshr_b32 s44, s26, 1
    v_xor_b32 {v(t3)}, s44, {v(t3)}
    v_lshl_add_u32 {v(t2)}, {v(t3)}, 5, {v(t2)}
    v_and_b32 {v(t3)}, 1, {v(t1)}
    v_lshl_add_u32 {v(t2)}, {v(t3)}, 4, {v(t2)}
    v_add_u32 {v(vWD)}, s52, {v(t2)}
    s_lshl_b32 s44, s26, 10
    v_lshl_add_u32 {v(vKD)}, {v(vL)}, 4, s44
    ''')

    def dma_group(c, kvonly=False):
        st = c % 3
        lab = a.label('nokv')
        a(f'''
        s_mul_i32 s33, s32, {c}
        s_cmp_eq_u32 s40, 0
        s_cbranch_scc1 {lab}
        s_add_u32 m0, s38, {st * 3072}
        s_mov_b32 s34, {c * 2560}
        buffer_load_dwordx4 {v(vKD)}, s[16:19], s34 offen lds
        {lab}:
        ''')
        vm.add(f'c{c}', 1, optional=True)
        if kvonly or (NODMA and c > 2):
            vm.add(f'c{c}', 1, optional=True)
            return
        for e in range(4):
            a(f'''
            s_add_u32 m0, s36, {LDS_X + st * 16384 + e * 1024}
            s_mov_b32 s34, {c * 128 + (e >> 1) * 16 * 1280}
            buffer_load_dwordx4 {v(vXD + (e & 1))}, s[8:11], s34 offen lds
            ''')
        for e in range(8):
            a(f'''
            s_add_u32 m0, s37, {st * 8192 + e * 1024}
            s_nop 0
            buffer_load_dwordx4 {v(vWD)}, s[12:15], s33 offen lds
            ''')
            if e < 7:
                a('s_add_u32 s33, s33, s31')
        vm.add(f'c{c}', 12)

    srd(a, 4, 76, 256)
    lab = a.label('nononce')
    a(f'''
    s_or_b32 s44, s2, s26
    s_cmp_lg_u32 s44, 0
    s_cbranch_scc1 {lab}
    s_memrealtime s[44:45]
    s_waitcnt lgkmcnt(0)
    s_or_b32 s44, s44, 1
    v_mov_b32 {v(t0)}, s44
    s_mov_b64 exec, 1
    buffer_store_dword {v(t0)}, off, s[4:7], 0 sc1
    s_mov_b64 exec, -1
    {lab}:
    ''')
    vm.add('nonce', 1, optional=True)
    a(f'''
    s_and_b32 s56, s28, 3
    v_lshrrev_b32 {v(t0)}, 1, {v(vR)}
    v_and_b32 {v(t0)}, 7, {v(t0)}
    v_xor_b32 {v(t0)}, {v(t0)}, {v(vH)}
    s_lshl_b32 s44, s26, 1
    v_xor_b32 {v(t0)}, s44, {v(t0)}
    v_lshlrev_b32 {v(t3)}, 7, {v(vR)}
    v_lshl_add_u32 {v(t0)}, {v(t0)}, 4, {v(t3)}
    s_lshl_b32 s44, s56, 12
    v_add_u32 {v(vKX)}, s44, {v(t0)}
    v_bfe_u32 {v(t0)}, {v(vL)}, 2, 2
    v_lshl_add_u32 {v(t0)}, {v(vH)}, 3, {v(t0)}
    v_mul_u32_u24 {v(t0)}, 40, {v(t0)}
    v_bfe_u32 {v(t3)}, {v(vL)}, 4, 1
    v_and_b32 {v(t4)}, 3, {v(vL)}
    v_lshl_add_u32 {v(t3)}, {v(t3)}, 2, {v(t4)}
    v_min_u32 {v(t3)}, 4, {v(t3)}
    v_lshl_add_u32 {v(t0)}, {v(t3)}, 3, {v(t0)}
    s_mul_i32 s44, s26, 640
    s_add_u32 s44, s44, {LDS_KV}
    v_add_u32 {v(vKW)}, s44, {v(t0)}
    ''')
    for i in range(16):
        a(f'v_mov_b32 {v(AKV + i)}, 0')

    dma_group(1)

    def colsum(src_tag_wait, store_code):
        a(f's_waitcnt vmcnt({src_tag_wait})')
        a(f'''
        v_lshlrev_b32 {v(t0)}, 16, {v(CR)}
        v_and_b32 {v(t1)}, 0xffff0000, {v(CR)}
        ''')
        for t in range(1, 20):
            a(f'''
            v_lshlrev_b32 {v(t2)}, 16, {v(CR + t)}
            v_and_b32 {v(t3)}, 0xffff0000, {v(CR + t)}
            v_add_f32 {v(t0)}, {v(t0)}, {v(t2)}
            v_add_f32 {v(t1)}, {v(t1)}, {v(t3)}
            ''')
        a(f'''
        s_nop 1
        v_permlane32_swap_b32 {v(t0)}, {v(t1)}
        s_nop 1
        v_add_f32 {v(t0)}, {v(t0)}, {v(t1)}
        v_cvt_pk_bf16_f32 {v(t1)}, {v(t0)}, {v(t0)}
        v_and_b32 {v(t1)}, 0xffff0000, {v(t1)}
        v_sub_f32 {v(t1)}, {v(t0)}, {v(t1)}
        v_cvt_pk_bf16_f32 {v(t0)}, {v(t0)}, {v(t1)}
        ''')
        store_code()

    def rowstats():
        a(f's_waitcnt vmcnt({vm.wait("xr")})')
        a(f'''
        v_mov_b32 {v(t0)}, 0
        v_mov_b32 {v(t1)}, 0
        ''')
        for t in range(10):
            a(f'''
            v_lshlrev_b32 {v(t2)}, 16, {v(XR + t)}
            v_and_b32 {v(t3)}, 0xffff0000, {v(XR + t)}
            v_add_f32 {v(t0)}, {v(t0)}, {v(t2)}
            v_fmac_f32 {v(t1)}, {v(t2)}, {v(t2)}
            v_add_f32 {v(t0)}, {v(t0)}, {v(t3)}
            v_fmac_f32 {v(t1)}, {v(t3)}, {v(t3)}
            ''')
        for ror in (8, 4, 2, 1):
            a(f'''
            s_nop 1
            v_add_f32_dpp {v(t0)}, {v(t0)}, {v(t0)} row_ror:{ror} row_mask:0xf bank_mask:0xf
            v_add_f32_dpp {v(t1)}, {v(t1)}, {v(t1)} row_ror:{ror} row_mask:0xf bank_mask:0xf
            ''')
        W4 = T + 8
        a(f'''
        v_mov_b32 {v(t2)}, {v(t0)}
        v_mov_b32 {v(t3)}, {v(t1)}
        s_nop 1
        v_permlane16_swap_b32 {v(t0)}, {v(t2)}
        v_permlane16_swap_b32 {v(t1)}, {v(t3)}
        s_mov_b32 s44, {f2u(1.0 / 640.0)}
        s_mov_b32 s45, {f2u(1e-5)}
        v_add_f32 {v(t0)}, {v(t0)}, {v(t2)}
        v_add_f32 {v(t1)}, {v(t1)}, {v(t3)}
        v_mul_f32 {v(t0)}, s44, {v(t0)}
        v_mul_f32 {v(t1)}, s44, {v(t1)}
        v_fma_f32 {v(t1)}, -{v(t0)}, {v(t0)}, {v(t1)}
        v_max_f32 {v(t1)}, 0, {v(t1)}
        v_cvt_pk_bf16_f32 {v(W4)}, -{v(t0)}, -{v(t0)}
        v_cvt_pk_bf16_f32 {v(t1)}, {v(t1)}, {v(t1)}
        v_and_b32 {v(t1)}, 0xffff0000, {v(t1)}
        v_add_f32 {v(t1)}, s45, {v(t1)}
        v_cvt_pk_bf16_f32 {v(t1)}, {v(t1)}, {v(t1)}
        v_and_b32 {v(t1)}, 0xffff0000, {v(t1)}
        v_sqrt_f32 {v(t1)}, {v(t1)}
        v_mov_b32 {v(W4 + 3)}, 0
        v_cvt_pk_bf16_f32 {v(t1)}, {v(t1)}, {v(t1)}
        v_and_b32 {v(t1)}, 0xffff0000, {v(t1)}
        v_rcp_f32 {v(W4 + 1)}, {v(t1)}
        v_mul_f32 {v(W4 + 2)}, {v(t1)}, {v(t1)}
        v_lshlrev_b32 {v(t2)}, 4, {v(vH)}
        s_lshl_b32 s44, s55, 4
        s_add_u32 s44, s44, {ROWW}
        s_mov_b32 exec_lo, 1
        s_mov_b32 exec_hi, 1
        buffer_store_dwordx4 {v(W4, 4)}, {v(t2)}, s[20:23], s44 offen sc1
        s_mov_b64 exec, -1
        ''')
        vm.add('st', 1)

    def cs_store():
        a(f'''
        v_lshl_add_u32 {v(t1)}, {v(vR)}, 1, {v(vH)}
        v_bfe_u32 {v(t2)}, {v(t1)}, 2, 1
        v_bfe_u32 {v(t3)}, {v(t1)}, 3, 1
        v_lshl_add_u32 {v(t2)}, {v(t2)}, 1, {v(t3)}
        v_and_b32 {v(t3)}, 3, {v(t1)}
        v_lshl_add_u32 {v(t2)}, {v(t2)}, 2, {v(t3)}
        v_lshrrev_b32 {v(t3)}, 4, {v(t1)}
        s_and_b32 s44, s26, 1
        s_lshl_b32 s44, s44, 2
        s_cmp_eq_u32 s48, 1
        s_cselect_b32 s44, 0, s44
        v_add_u32 {v(t4)}, s44, {v(t3)}
        s_lshr_b32 s45, s26, 1
        v_mov_b32 {v(t5)}, s45
        s_cmp_eq_u32 s51, 1
        s_cselect_b64 vcc, -1, 0
        s_add_u32 s44, s26, 3
        v_lshrrev_b32 {v(t1)}, 1, {v(t3)}
        v_add_u32 {v(t1)}, s44, {v(t1)}
        v_and_b32 {v(t3)}, 1, {v(t3)}
        v_cndmask_b32 {v(t4)}, {v(t4)}, {v(t1)}, vcc
        v_cndmask_b32 {v(t5)}, {v(t5)}, {v(t3)}, vcc
        v_lshl_add_u32 {v(t2)}, {v(t5)}, 4, {v(t2)}
        v_lshl_add_u32 {v(t2)}, {v(t4)}, 5, {v(t2)}
        v_lshlrev_b32 {v(t2)}, 2, {v(t2)}
        s_lshl_b32 s44, s28, 14
        s_add_u32 s44, s44, s41
        s_add_u32 s44, s44, {CSW}
        buffer_store_dword {v(t0)}, {v(t2)}, s[20:23], s44 offen sc1
        ''')
        vm.add('st', 1)

    a('''
    s_lshl_b32 s41, s27, 10
    s_and_b32 s44, s28, 11
    s_cmp_eq_u32 s44, 0
    s_cselect_b32 s42, 1, 0
    s_cmp_eq_u32 s26, 3
    s_cselect_b32 s42, s42, 0
    ''')

    def stat_loads():
        a(f'''
        s_lshl_b32 s44, s27, 7
        s_lshl_b32 s45, s28, 3
        s_add_u32 s44, s44, s45
        s_lshl_b32 s45, s26, 1
        s_add_u32 s55, s44, s45
        v_add_u32 {v(t0)}, s55, {v(vH)}
        v_mul_u32_u24 {v(t0)}, 1280, {v(t0)}
        v_lshl_add_u32 {v(t0)}, {v(vR)}, 3, {v(t0)}
        ''')
        for t in range(5):
            a(f'buffer_load_dwordx2 {v(XR + 2 * t, 2)}, {v(t0)}, s[8:11], 0 offen offset:{256 * t}')
        vm.add('xr', 5)
        a(f'''
        s_mul_i32 s44, s27, 40
        v_add_u32 {v(t1)}, s44, {v(vH)}
        v_mul_lo_u32 {v(t2)}, {v(t1)}, s53
        v_lshl_add_u32 {v(t2)}, {v(vR)}, 2, {v(t2)}
        s_mov_b32 s34, s52
        s_lshl_b32 s35, s53, 1
        ''')
        for t in range(20):
            a(f'buffer_load_dword {v(CR + t)}, {v(t2)}, s[12:15], s34 offen')
            if t < 19:
                a('s_add_u32 s34, s34, s35')
        vm.add('cr', 20)

    def kv_step(c, part):
        st = c % 3
        lab = a.label('kvs')
        a(f's_cmp_eq_u32 s54, 0\ns_cbranch_scc1 {lab}')
        if part == 0:
            a(f'''
            ds_read_b128 {v(KXF, 4)}, {v(vKX)} offset:{LDS_X + st * 16384}
            ds_read_b64_tr_b16 {v(KWF, 2)}, {v(vKW)} offset:{st * 3072}
            ds_read_b64_tr_b16 {v(KWF + 2, 2)}, {v(vKW)} offset:{st * 3072 + 160}
            ''')
        else:
            a('s_waitcnt lgkmcnt(0)')
            a(mfma16(AKV, KWF, KXF, AKV))
        a(f'{lab}:')

    for c in range(10):
        a.c(f'aux chunk {c}')
        if c == 0:
            stamp(a, 22)
        elif c <= 8:
            a(f's_waitcnt vmcnt({vm.wait(f"c{c}") if c != 5 else min(vm.wait("c5"), vm.wait("st"), vm.wait("nl"))})')
        else:
            a('s_waitcnt vmcnt(0)')
        a('s_barrier')
        if not FEWST or c in (0, 1, 2, 9):
            stamp(a, 1 + c)
        if asmlib.STAMPS:
            vm.add('stamp', 1, optional=True)
        if c == 3:
            a(f'buffer_load_dword {v(PF)}, off, s[4:7], 0 sc1')
            vm.add('nl', 1)
        kv_step(c, 0)
        if c + 2 < 10:
            dma_group(c + 2)
        kv_step(c, 1)
        if c == 0:
            stat_loads()
        if c == 1:
            rowstats()
        if c == 2:
            colsum(vm.wait('cr'), cs_store)
            lab = a.label('nokvcs')
            a(f'''
            s_cmp_eq_u32 s42, 0
            s_cbranch_scc1 {lab}
            s_mul_i32 s44, s27, 40
            v_add_u32 {v(t1)}, s44, {v(vH)}
            v_mul_u32_u24 {v(t2)}, 40, {v(t1)}
            v_lshl_add_u32 {v(t2)}, {v(vR)}, 2, {v(t2)}
            ''')
            for t in range(20):
                a(f'buffer_load_dword {v(CR + t)}, {v(t2)}, s[16:19], 0 offen offset:{80 * t}')
            a(f'{lab}:')
            vm.add('kcr', 20, optional=True)
        if c == 3:
            lab = a.label('nokvcs2')
            a(f's_cmp_eq_u32 s42, 0\ns_cbranch_scc1 {lab}')

            def kcs_store():
                a(f'''
                v_lshl_add_u32 {v(t1)}, {v(vR)}, 1, {v(vH)}
                v_lshlrev_b32 {v(t2)}, 2, {v(t1)}
                v_mov_b32 {v(t3)}, 0x7f000000
                v_cmp_gt_u32 vcc, 32, {v(t1)}
                s_lshl_b32 s44, s28, 9
                s_lshl_b32 s45, s27, 7
                s_add_u32 s44, s44, s45
                s_add_u32 s44, s44, {CSKVW}
                v_cndmask_b32 {v(t2)}, {v(t3)}, {v(t2)}, vcc
                buffer_store_dword {v(t0)}, {v(t2)}, s[20:23], s44 offen sc1
                ''')
            colsum(vm.wait('kcr'), kcs_store)
            a(f'{lab}:')
            vm.add('st', 1, optional=True)
        if c == 5:
            Lp = a.label('np')
            Lq = a.label('npd')
            a(f'''
            s_mov_b32 s93, {POLL_MAX}
            {Lp}:
            v_readfirstlane_b32 s98, {v(PF)}
            s_cmp_lg_u32 s98, 0
            s_cbranch_scc1 {Lq}
            s_sub_u32 s93, s93, 1
            s_cbranch_scc1 {Lq}
            buffer_load_dword {v(PF)}, off, s[4:7], 0 sc1
            s_waitcnt vmcnt(0)
            s_branch {Lp}
            {Lq}:
            s_xor_b32 s99, s98, {NONCE_X}
            s_lshl_b32 s44, s28, 2
            s_add_u32 s44, s44, s26
            s_lshl_b32 s44, s44, 3
            s_lshl_b32 s45, s27, 9
            s_add_u32 s44, s44, s45
            s_add_u32 s44, s44, {F_ST}
            s_lshl_b32 s46, s27, 2
            s_add_u32 s46, s46, s26
            s_lshl_b32 s46, s46, 3
            s_lshl_b32 s45, s28, 9
            s_add_u32 s46, s46, s45
            s_add_u32 s46, s46, {F_CS}
            ''')
            flag_store(a, 's44', T + 2)
            flag_store(a, 's46', T + 2)
            a(f'''
            v_mov_b32 {v(t0)}, {NONCE_A}
            ds_write_b64 {v(t0)}, {v(T + 2, 2)}
            ''')
            vm.add('fl', 2)
        if c == 8:
            Lp = a.label('p3')
            Lq = a.label('p3d')
            a(f'''
            v_lshlrev_b32 {v(T + 8)}, 3, {v(vL)}
            s_lshl_b32 s44, s27, 9
            s_add_u32 s44, s44, {F_ST}
            s_lshl_b32 s45, s28, 9
            s_add_u32 s45, s45, {F_CS}
            s_and_b32 s46, s28, 4
            s_lshl_b32 s46, s46, 9
            s_add_u32 s46, s46, {F_CS}
            s_mov_b32 s93, {POLL_MAX}
            {Lp}:
            buffer_load_dwordx2 {v(T, 2)}, {v(T + 8)}, s[20:23], s44 offen sc1
            buffer_load_dwordx2 {v(T + 2, 2)}, {v(T + 8)}, s[20:23], s45 offen sc1
            buffer_load_dwordx2 {v(T + 4, 2)}, {v(T + 8)}, s[20:23], s46 offen sc1
            s_waitcnt vmcnt(0)
            v_cmp_eq_u64 vcc, s[98:99], {v(T, 2)}
            v_cmp_eq_u64 s[58:59], s[98:99], {v(T + 2, 2)}
            v_cmp_eq_u64 s[60:61], s[98:99], {v(T + 4, 2)}
            s_nop 1
            s_and_b64 vcc, vcc, s[58:59]
            s_and_b64 vcc, vcc, s[60:61]
            s_cmp_eq_u64 vcc, -1
            s_cbranch_scc1 {Lq}
            s_sub_u32 s93, s93, 1
            s_cbranch_scc1 {Lq}
            s_sleep 1
            s_branch {Lp}
            {Lq}:
            {'buffer_inv sc1' if INV else ''}
            {'s_waitcnt vmcnt(0)' if INV else ''}
            v_lshlrev_b32 {v(T + 9)}, 4, {v(vL)}
            s_lshl_b32 s44, s28, 14
            s_lshl_b32 s45, s26, 12
            s_add_u32 s44, s44, s45
            s_add_u32 s44, s44, {CSW}
            ''')
            for e in range(4):
                a(f'''
                s_add_u32 m0, s45, {CS_A + 1024 * e}
                s_nop 0
                buffer_load_dwordx4 {v(T + 9)}, s[20:23], s44 offen{LD} lds
                s_add_u32 s44, s44, 1024
                ''')
            lab = a.label('norc')
            a(f'''
            s_cmp_lg_u32 s26, 0
            s_cbranch_scc1 {lab}
            s_lshl_b32 s44, s27, 11
            s_add_u32 s44, s44, {ROWW}
            s_mov_b32 m0, {ROWC_A}
            s_and_b32 s45, s28, 4
            buffer_load_dwordx4 {v(T + 9)}, s[20:23], s44 offen{LD} lds
            buffer_load_dwordx4 {v(T + 9)}, s[20:23], s44 offen offset:1024{LD} lds
            s_lshl_b32 s45, s45, 9
            s_add_u32 s45, s45, {CSKVW}
            s_mov_b32 m0, {CSKV_A}
            s_nop 0
            buffer_load_dwordx4 {v(T + 9)}, s[20:23], s45 offen{LD} lds
            buffer_load_dwordx4 {v(T + 9)}, s[20:23], s45 offen offset:1024{LD} lds
            {lab}:
            ''')
    lab = a.label('nokvfin')
    lab2 = a.label('nofix')
    a(f'''
    s_cmp_eq_u32 s54, 0
    s_cbranch_scc1 {lab}
    s_cmp_lg_u32 s26, 0
    s_cbranch_scc1 {lab2}
    s_lshl_b32 s44, s56, 9
    s_add_u32 s44, s44, {ROWC_A}
    v_lshl_add_u32 {v(t0)}, {v(vR)}, 4, s44
    v_lshlrev_b32 {v(t1)}, 2, {v(vR)}
    v_lshl_add_u32 {v(t1)}, {v(vH)}, 9, {v(t1)}
    v_add_u32 {v(t1)}, {CSKV_A}, {v(t1)}
    v_add_u32 {v(t2)}, 1024, {v(t1)}
    ds_read_b128 {v(FX, 4)}, {v(t0)}
    ds_read2_b32 {v(FX + 8, 2)}, {v(t1)} offset0:0 offset1:32
    ds_read2_b32 {v(FX + 10, 2)}, {v(t1)} offset0:64 offset1:96
    ds_read2_b32 {v(FX + 12, 2)}, {v(t2)} offset0:0 offset1:32
    ds_read2_b32 {v(FX + 14, 2)}, {v(t2)} offset0:64 offset1:96
    s_waitcnt lgkmcnt(4)
    v_mov_b32 {v(FX + 4)}, {v(FX)}
    v_mov_b32 {v(FX + 5)}, {v(FX)}
    v_mov_b32 {v(FX + 6)}, {v(FX)}
    v_mov_b32 {v(FX + 7)}, {v(FX)}
    s_waitcnt lgkmcnt(0)
    s_nop 1
    {mfma16(AKV, FX + 8, FX + 4, AKV)}
    {mfma16(AKV, FX + 12, FX + 4, AKV)}
    {lab2}:
    s_lshl_b32 s44, s26, 12
    v_add_u32 {v(t0)}, s44, {v(T + 9)}
    s_nop 15
    ''')
    for q in range(3):
        a(f'ds_write_b128 {v(t0)}, {v(AKV + 4 * q, 4)} offset:{PART_A + 1024 * q}')
    a(f'''
    {lab}:
    s_waitcnt lgkmcnt(0)
    ''')
    stamp(a, 11)
    a('s_barrier')
    stamp(a, 12)
    L_p2 = a.label('auxp2')
    L_v = a.label('vepi')
    a(f'''
    s_cmp_eq_u32 s54, 0
    s_cbranch_scc1 {L_p2}
    s_cmp_lg_u32 s26, 0
    s_cbranch_scc1 {L_p2}
    ''')
    for w in range(1, 4):
        for q in range(3):
            a(f'ds_read_b128 {v(RD + 12 * (w - 1) + 4 * q, 4)}, {v(T + 9)} offset:{PART_A + 4096 * w + 1024 * q}')
    a(f'''
    s_lshl_b32 s57, s27, 2
    s_add_u32 s57, s57, s56
    s_lshr_b32 s44, s57, 1
    s_mul_i32 s44, s44, 7168
    s_add_u32 s44, s44, {KV_OFF}
    s_and_b32 s45, s57, 1
    s_and_b32 s58, s28, 4
    s_lshl_b32 s58, s58, 4
    s_add_u32 s58, s58, s57
    s_lshl_b32 s58, s58, 3
    s_add_u32 s58, s58, {F_KV}
    s_waitcnt lgkmcnt(0)
    ''')
    for i in range(0, 12, 2):
        a(f'v_pk_add_f32 {v(AKV + i, 2)}, {v(AKV + i, 2)}, {v(RD + i, 2)}')
        a(f'v_pk_add_f32 {v(RD + 12 + i, 2)}, {v(RD + 12 + i, 2)}, {v(RD + 24 + i, 2)}')
    for i in range(0, 12, 2):
        a(f'v_pk_add_f32 {v(AKV + i, 2)}, {v(AKV + i, 2)}, {v(RD + 12 + i, 2)}')
    for i in range(0, 12, 2):
        a(f'v_pk_mul_f32 {v(AKV + i, 2)}, {v(AKV + i, 2)}, {v(FX, 2)} op_sel:[0,1] op_sel_hi:[1,1]')
    PK = RD
    for i in range(6):
        a(f'v_cvt_pk_bf16_f32 {v(PK + i)}, {v(AKV + 2 * i)}, {v(AKV + 2 * i + 1)}')
    L_kvf = a.label('kvflag')
    a(f'''
    s_bitcmp1_b32 s28, 2
    s_cbranch_scc1 {L_v}
    v_mov_b32 {v(t0)}, 0x3f803f80
    v_mov_b32 {v(t1)}, 0x00003f80
    v_cndmask_b32 {v(PK + 4)}, {v(PK + 4)}, {v(t0)}, {HM}
    v_cndmask_b32 {v(PK + 5)}, {v(PK + 5)}, {v(t1)}, {HM}
    s_lshl_b32 s46, s45, 10
    s_add_u32 s46, s46, s44
    s_lshl_b32 s47, s45, 9
    s_add_u32 s47, s47, s44
    buffer_store_dwordx4 {v(PK, 4)}, {v(T + 9)}, s[20:23], s46 offen sc1
    buffer_store_dwordx2 {v(PK + 4, 2)}, {v(T + 8)}, s[20:23], s47 offen offset:2048 sc1
    s_branch {L_kvf}
    {L_v}:
    v_mov_b32 {v(t0)}, 0
    v_cndmask_b32 {v(PK + 4)}, {v(PK + 4)}, {v(t0)}, {HM}
    v_cndmask_b32 {v(PK + 5)}, {v(PK + 5)}, {v(t0)}, {HM}
    v_mov_b32 {v(PK + 6)}, 0x00003f80
    v_mov_b32 {v(PK + 7)}, 0
    v_lshlrev_b32 {v(t0)}, 6, {v(vR)}
    v_lshl_add_u32 {v(t3)}, {v(vH)}, 4, {v(t0)}
    v_lshl_add_u32 {v(t0)}, {v(vH)}, 3, {v(t0)}
    ds_write_b128 {v(t3)}, {v(PK, 4)} offset:{VT_A}
    ds_write_b64 {v(t0)}, {v(PK + 4, 2)} offset:{VT_A + 32}
    ds_write_b64 {v(t0)}, {v(PK + 6, 2)} offset:{VT_A + 48}
    v_bfe_u32 {v(t1)}, {v(vL)}, 2, 2
    v_lshl_add_u32 {v(t1)}, {v(vH)}, 2, {v(t1)}
    v_lshlrev_b32 {v(t1)}, 6, {v(t1)}
    v_bfe_u32 {v(t2)}, {v(vL)}, 4, 1
    v_lshl_add_u32 {v(t1)}, {v(t2)}, 5, {v(t1)}
    v_and_b32 {v(t2)}, 3, {v(vL)}
    v_lshl_add_u32 {v(t1)}, {v(t2)}, 3, {v(t1)}
    s_waitcnt lgkmcnt(0)
    ds_read_b64_tr_b16 {v(PK + 8, 2)}, {v(t1)} offset:{VT_A}
    ds_read_b64_tr_b16 {v(PK + 10, 2)}, {v(t1)} offset:{VT_A + 512}
    ds_read_b64_tr_b16 {v(PK + 12, 2)}, {v(t1)} offset:{VT_A + 1024}
    ds_read_b64_tr_b16 {v(PK + 14, 2)}, {v(t1)} offset:{VT_A + 1536}
    s_lshl_b32 s46, s45, 11
    s_add_u32 s46, s46, s44
    s_add_u32 s46, s46, 3072
    s_waitcnt lgkmcnt(0)
    buffer_store_dwordx4 {v(PK + 8, 4)}, {v(T + 9)}, s[20:23], s46 offen sc1
    buffer_store_dwordx4 {v(PK + 12, 4)}, {v(T + 9)}, s[20:23], s46 offen offset:1024 sc1
    {L_kvf}:
    s_waitcnt vmcnt(0)
    ''')
    flag_store(a, 's58', T + 2)
    a(f'{L_p2}:')
    stamp(a, 13)

    a.c('=========== aux wave: phase 2 ===========')
    al = Alloc(4, 168)
    T = al('T', 12, 4)
    vWD = al('wd', 3)
    vWA = al('wa', 3)
    vHL = al('hl')
    vKO = al('ko')
    vF8 = al('f8')
    vLO = al('lo')
    vPF = al('pf')
    WF = al('wf', 24, 4)
    ACC = al('acc', 80, 4)
    HF = al('hf', 8 * G2D, 4)
    a(f's_setprio {PRIO2}')
    g2_ids(a)
    srd(a, 12, WDP, 2211840)
    srd(a, 16, 84, 819200)
    a(f'''
    s_mul_i32 s40, s26, {3072 * G2D}
    s_add_u32 s39, s40, {WOA}
    s_add_u32 s40, s40, {G2R}
    s_mul_i32 s44, s26, 27
    s_mul_i32 s41, s59, 108
    s_add_u32 s41, s41, s44
    s_lshl_b32 s41, s41, 10
    s_mul_i32 s42, s60, 108
    s_add_u32 s42, s42, s44
    s_lshl_b32 s42, s42, 10
    s_mul_i32 s43, s44, {16 * 1280}
    s_lshl_b32 s44, s26, 3
    s_mul_i32 s54, s59, 40
    s_add_u32 s54, s54, s44
    s_lshl_b32 s54, s54, 10
    s_add_u32 s54, s54, {OF_OFF}
    s_mul_i32 s55, s60, 40
    s_add_u32 s55, s55, s44
    s_lshl_b32 s55, s55, 10
    s_add_u32 s55, s55, {OF_OFF}
    s_mul_i32 s56, s44, {20 * 1280}
    s_mul_i32 s52, s26, 6144
    s_sub_u32 s52, {24 * 1024}, s52
    s_mov_b32 s45, 0x15556
    v_lshlrev_b32 {v(vHL)}, 4, {v(vL)}
    v_lshlrev_b32 {v(vF8)}, 3, {v(vL)}
    v_lshlrev_b32 {v(vLO)}, 3, {v(vR)}
    v_lshl_add_u32 {v(vLO)}, {v(vH)}, 9, {v(vLO)}
    v_lshlrev_b32 {v(vPF)}, 7, {v(vL)}
    s_lshl_b32 s36, s26, 12
    s_min_u32 s36, s36, 10240
    v_add_u32 {v(vKO)}, s36, {v(vHL)}
    ''')
    for p in range(3):
        a(f'''
        v_add_u32 {v(T)}, {64 * p}, {v(vL)}
        v_mul_lo_u32 {v(T + 1)}, {v(T)}, s45
        v_lshrrev_b32 {v(T + 1)}, 20, {v(T + 1)}
        v_mul_u32_u24 {v(T + 2)}, 12, {v(T + 1)}
        v_sub_u32 {v(T + 2)}, {v(T)}, {v(T + 2)}
        v_mul_u32_u24 {v(T + 1)}, 1280, {v(T + 1)}
        v_lshl_add_u32 {v(T + 1)}, {v(T + 2)}, 4, {v(T + 1)}
        v_add_u32 {v(vWD + p)}, s61, {v(T + 1)}
        ''')
    a(f'''
    v_bfe_u32 {v(T)}, {v(vL)}, 2, 2
    v_lshl_add_u32 {v(T)}, {v(vH)}, 3, {v(T)}
    v_mul_u32_u24 {v(T)}, 192, {v(T)}
    v_bfe_u32 {v(T + 1)}, {v(vL)}, 4, 1
    v_lshl_add_u32 {v(T)}, {v(T + 1)}, 5, {v(T)}
    v_and_b32 {v(T + 1)}, 3, {v(vL)}
    v_lshl_add_u32 {v(T)}, {v(T + 1)}, 3, {v(T)}
    v_add_u32 {v(T)}, s40, {v(T)}
    s_lshl_b32 s44, s58, 6
    s_add_u32 s45, s44, 64
    s_lshl_b32 s46, s58, 7
    s_sub_u32 s46, 128, s46
    v_add_u32 {v(vWA)}, s44, {v(T)}
    v_add_u32 {v(vWA + 1)}, s45, {v(T)}
    v_add_u32 {v(vWA + 2)}, s46, {v(T)}
    ''')
    vm = VM()

    def w_dma(k, base_sgpr, slot):
        srd_, so = ('s[12:15]', 's43') if k < 27 else ('s[16:19]', 's56')
        step = 16 * 1280 if k < 27 else (20 * 1280 if k < 34 else (-(140 - 16) * 1280 if k == 34 else 80 * 1280))
        out = []
        for p in range(3):
            out.append([f's_add_u32 m0, {base_sgpr}, {slot * 3072 + p * 1024}', 's_nop 0',
                        f'buffer_load_dwordx4 {v(vWD + p)}, {srd_}, {so} offen lds'])
        out[2].append(f's_add_u32 {so}, {so}, {step & 0xffffffff}')
        vm.add(f'w{k}', 3)
        return out

    def h_ld(k, reg):
        h0, h1 = ('s41', 's42') if k < 27 else ('s54', 's55')
        out = []
        if k >= 35:
            for e, hs in enumerate((h0, h1)):
                out.append([f'buffer_load_dwordx2 {v(reg + 4 * e, 2)}, {v(vLO)}, s[20:23], {hs} offen{LD}',
                            f'buffer_load_dwordx2 {v(reg + 4 * e + 2, 2)}, {v(vLO)}, s[20:23], {hs} offen offset:256{LD}',
                            f's_add_u32 {hs}, {hs}, 1024'])
            vm.add(f'h{k}', 4)
            return out
        for e, hs in enumerate((h0, h1)):
            out.append([f'buffer_load_dwordx4 {v(reg + 4 * e, 4)}, {v(vHL)}, s[20:23], {hs} offen{LD}',
                        f's_add_u32 {hs}, {hs}, 1024'] + ([f's_add_u32 {hs}, {hs}, s52'] if k == 34 else []))
        vm.add(f'h{k}', 2)
        return out

    def w_reads(k, slot):
        buf = k & 1
        return [f'ds_read_b64_tr_b16 {v(WF + 12 * buf + 4 * b + 2 * t, 2)}, {v(vWA + b)} offset:{slot * 3072 + 768 * t}'
                for b in range(3) for t in range(2)]

    def g_mfmas(k, reg):
        buf = k & 1
        return [mfma16(ACC + 16 * n, WF + 12 * buf + 4 * b, reg + 4 * e, None if k == 0 else ACC + 16 * n)
                for n, (b, e) in enumerate(((0, 0), (0, 1), (1, 0), (1, 1), (2, 0)))]

    def kv_dma(c):
        st = c % NST
        for e in range(4):
            a(f'''
            s_add_u32 m0, s36, {KVR + st * CH_BYTES + e * 1024}
            s_mov_b32 s38, {KV_OFF + c * CH_BYTES + e * 1024}
            buffer_load_dwordx4 {v(vKO)}, s[20:23], s38 offen{LD} lds
            ''')
        vm.add(f'kv{c}', 4)

    for k in range(G2D):
        emit(a, w_dma(k, 's40', k))
    qmask = 0
    for j in range(16):
        for cp in range(4):
            if not (j >= 11 and cp >= 2):
                qmask |= 1 << (j * 4 + cp)
    a(f'''
    s_mov_b32 s50, {qmask & 0xffffffff}
    s_mov_b32 s51, {qmask >> 32}
    s_lshl_b32 s53, s29, 13
    s_add_u32 s53, s53, {F_QH}
    ''')
    Lp, Lq = a.label('pq'), a.label('pqd')
    a(f'''
    s_lshr_b32 s44, s30, 2
    s_lshl_b32 s45, s29, 1
    s_add_u32 s44, s44, s45
    s_mul_i32 s44, s44, 40960
    s_and_b32 s45, s30, 3
    s_mul_i32 s45, s45, 10240
    s_add_u32 s44, s44, s45
    s_add_u32 s44, s44, {QF_OFF}
    s_mul_i32 s45, s26, 3072
    s_min_u32 s45, s45, 7168
    s_add_u32 s44, s44, s45
    s_add_u32 m0, s45, {Q_A}
    ''')

    def qkv_poll():
        a('s_andn2_b64 exec, exec, s[50:51]')
        poll(a, T + 4, vPF, 's53', ignore='s[50:51]')
        a(f's_mov_b64 exec, -1\ns_mov_b32 s45, {F_KV}')
        poll(a, T + 4, vHL, 's45', wide=True, sleep=16)
    one_poller(a, T, 0, qkv_poll)
    a(f'''
    buffer_load_dwordx4 {v(vHL)}, s[20:23], s44 offen{LD} lds
    buffer_load_dwordx4 {v(vHL)}, s[20:23], s44 offen offset:1024{LD} lds
    buffer_load_dwordx4 {v(vHL)}, s[20:23], s44 offen offset:2048{LD} lds
    ''')
    vm.drain()
    vm.add('q', 3)
    stamp(a, 15)
    kv_dma(0)
    kv_dma(1)
    kv_dma(2)

    def prefetch(kind, b=0):
        if NOPF2:
            return
        n = {'wd': 45, 'wo': 50, 'h': 54}[kind]
        if kind == 'wd':
            a(f'''
            s_lshr_b32 s44, s2, 6
            s_mul_i32 s44, s44, {432 * 1280}
            s_bfe_u32 s45, s2, 0x30003
            s_mul_i32 s45, s45, {180 * 128}
            s_add_u32 s44, s44, s45
            s_mul_i32 s45, s26, {45 * 128}
            s_add_u32 s44, s44, s45
            s_add_u32 s44, s44, {144 * 1280 * b}
            ''')
            r = 's[12:15]'
        elif kind == 'wo':
            a(f'''
            s_lshr_b32 s44, s2, 3
            s_mul_i32 s44, s44, {200 * 128}
            s_mul_i32 s45, s26, {50 * 128}
            s_add_u32 s44, s44, s45
            ''')
            r = 's[16:19]'
        else:
            a(f'''
            s_mul_i32 s44, s29, {216 * 1024}
            s_lshl_b32 s45, s30, 2
            s_add_u32 s45, s45, s26
            s_mul_i32 s45, s45, {54 * 128}
            s_add_u32 s44, s44, s45
            ''')
            r = 's[20:23]'
        m = (1 << n) - 1
        a(f'''
        s_mov_b32 exec_hi, {m >> 32}
        buffer_load_dword v165, {v(vPF)}, {r}, s44 offen
        s_mov_b32 exec_hi, -1
        ''')
        vm.add('pf', 1)
    a(f's_waitcnt vmcnt({vm.wait("kv0")})')
    a('s_barrier')
    stamp(a, 16)
    sched = {}
    kk = 0
    nint = 14 - G2_START
    for n in range(G2_START, 14):
        cnt = -(-(27 - kk) // (14 - n))
        sched[n] = list(range(kk, min(27, kk + cnt)))
        kk += cnt
    assert kk >= 27
    wo_slot = lambda k: (('s40', (k - 27)) if k - 27 < 4 else ('s39', (k - 27 - 4))) if k - 27 < 8 else ('s40', k - 27 - 8)

    def down_step(k):
        if k == 0:
            emit(a, w_reads(0, 0))
        if k + 1 < 27:
            a(f's_waitcnt vmcnt({min(vm.wait(f"w{k + 1}"), vm.wait(f"h{k}"))}) lgkmcnt(0)')
            rd = w_reads(k + 1, (k + 1) % G2D)
        else:
            a(f's_waitcnt vmcnt({vm.wait(f"h{k}")}) lgkmcnt(0)')
            rd = []
        ms = g_mfmas(k, HF + 8 * (k % G2D))
        nx = k + G2D
        wd_ = w_dma(nx, 's40', nx % G2D) if nx < 27 else [[], [], []]
        hl_ = h_ld(nx, HF + 8 * (nx % G2D)) if nx < 27 else [[], []]
        if NODOWN:
            ms = ['s_nop 0'] * 5
        a(ms[0]); emit(a, rd[0:2]); emit(a, [wd_[0]]); a(SPACE)
        a(ms[1]); emit(a, rd[2:4]); emit(a, [wd_[1]]); a(SPACE)
        a(ms[3]); emit(a, rd[4:6]); emit(a, [wd_[2]]); a(SPACE)
        a(ms[2]); emit(a, [hl_[1]]); a(SPACE)
        a(ms[4]); emit(a, [hl_[0]]); a(SPACE)

    for c in range(16):
        a.c(f'aux B{c}')
        if c + 1 < 16:
            a(f's_waitcnt vmcnt({vm.wait(f"kv{c + 1}")})')
        if IST and c in IST_LIST:
            stamp(a, 23 + 2 * IST_LIST.index(c))
        a('s_barrier')
        if IST and c in IST_LIST:
            stamp(a, 24 + 2 * IST_LIST.index(c))
        if c + 3 < 16:
            kv_dma(c + 3)
        if c in (0, 1, 3):
            prefetch('wd', (0, 1, 3).index(c))
        if c == 9:
            prefetch('wo')
        if c == G2_START - 1:
            one_poller(a, T, 1, lambda: poll(a, T + 4, vPF, 's53'))
            prefetch('h')
            for k in range(G2D):
                emit(a, h_ld(k, HF + 8 * k))
            vm.ops = [(f'w{k}', False) for k in range(G2D)] + vm.ops
        for k in sched.get(c, []):
            if not NOG2:
                down_step(k)
        if c == 14:
            stamp(a, 17)
            for k in range(27, 35):
                b_, sl = wo_slot(k)
                emit(a, w_dma(k, b_, sl))
    a(f's_waitcnt vmcnt({vm.wait("w28")})')
    emit(a, w_reads(27, 0))
    emit(a, w_reads(28, 1))
    a('s_waitcnt lgkmcnt(0)')
    a('s_mov_b32 s45, 0x15556')
    for p in range(3):
        a(f'''
        v_add_u32 {v(T)}, {64 * p}, {v(vL)}
        v_mul_lo_u32 {v(T + 1)}, {v(T)}, s45
        v_lshrrev_b32 {v(T + 1)}, 22, {v(T + 1)}
        v_mul_u32_u24 {v(T + 1)}, {16 * 1280}, {v(T + 1)}
        v_add_u32 {v(vWD + p)}, {v(vWD + p)}, {v(T + 1)}
        ''')
    for k in (35, 36):
        b_, sl = wo_slot(k)
        emit(a, w_dma(k, b_, sl))
    a(f'''
    s_lshl_b32 s44, s29, 13
    s_add_u32 s44, s44, {F_O}
    ''')
    XO = HF + 24
    stamp(a, 18)
    a('s_waitcnt vmcnt(0)')
    one_poller(a, T, 2, lambda: poll(a, T + 4, vPF, 's44'))
    vm.drain()
    stamp(a, 19)
    OD = G2D
    for k in range(27, 27 + OD):
        emit(a, h_ld(k, HF + 8 * ((k - 27) % OD)))
    a(f'''
    v_and_b32 {v(T)}, 7, {v(vR)}
    v_xor_b32 {v(T)}, {v(T)}, {v(vH)}
    v_lshlrev_b32 {v(T + 1)}, 7, {v(vR)}
    v_add_u32 {v(T + 1)}, s39, {v(T + 1)}
    ''')
    for jp in range(4):
        a(f'''
        v_xor_b32 {v(T + 2)}, {2 * jp}, {v(T)}
        v_lshl_add_u32 {v(T + 4 + jp)}, {v(T + 2)}, 4, {v(T + 1)}
        v_add_u32 {v(T + 8 + jp)}, {G2R - WOA}, {v(T + 4 + jp)}
        ''')
    for k in range(27, 37):
        reg = HF + 8 * ((k - 27) % OD)
        a(f's_waitcnt vmcnt({vm.wait(f"h{k}")}) lgkmcnt({6 if k > 27 and k + 1 < 37 else 0})')
        emit(a, g_mfmas(k, reg))
        if k + 2 < 37:
            kn = k + 2
            if kn - 27 == 4:
                for b in range(3):
                    a(f'v_subrev_u32 {v(vWA + b)}, {G2R - WOA}, {v(vWA + b)}')
            if kn - 27 == 8:
                for b in range(3):
                    a(f'v_add_u32 {v(vWA + b)}, {G2R - WOA}, {v(vWA + b)}')
            emit(a, w_reads(kn, wo_slot(kn)[1]))
        if k + OD < 37:
            emit(a, h_ld(k + OD, reg))
        if k == 34:
            g2_out(a, XO, vL, 's24', 0)
            vm.add('x', 1, optional=True)
    a('s_nop 7')
    stamp(a, 20)
    for n in range(5):
        for jp in range(4):
            a(f'ds_write_b128 {v(T + 4 + jp + (4 if n >= 3 else 0))}, {v(ACC + 16 * n + 4 * jp, 4)} offset:{4096 * (n if n < 3 else n - 3)}')
    a('s_waitcnt vmcnt(0) lgkmcnt(0)')
    a('s_barrier')
    stamp(a, 21)
    for i in range(8):
        a(f'v_mov_b32 {v(ACC + i)}, {v(XO + i)}')
    g2_out(a, ACC, vL, 's24', 1)


def build(path):
    hdr = open('parallel_sum__grouped_kv_mqa__geglu_ffn__prompt.s.ref').read().split('; Override launch')[0]
    out = hdr + f'; @launch grid=(256,1,1) block=(768,1,1) lds={LDS_TOTAL}\n'
    out += '.amdgcn_target "amdgcn-amd-amdhsa--gfx950"\n'
    out += gen()
    out += kernel_desc(KNAME, 168)
    open(path, 'w').write(out)


if __name__ == '__main__':
    import sys
    if len(sys.argv) > 2 and sys.argv[2] == 'stamp':
        asmlib.STAMPS = True
    build(sys.argv[1])
```

```python
from asmlib import *
import asmlib
import math
import os

KNAME = 'parallel_sum__grouped_kv_mqa__geglu_ffn__prompt_kernel'

H_OFF = 0
QF_OFF = 0x700000
KV_OFF = 0xA00000
OF_OFF = 0xB00000
FL_OFF = 0xE00000
F_ST = FL_OFF
F_CS = FL_OFF + 8192
F_KV = FL_OFF + 16384
F_KC = FL_OFF + 20480
F_QH = 0xE80000
F_O = 0xEC0000
ROWW = 0xE10000
CSW = 0xE20000
CSKVW = 0xE60000
WS_USED = 0xF00000

LDS_X = 0
LDS_W = 49152
LDS_KV = 147456
CS_A = 16384
PART_A = 32768
VT_A = 0
ROWC_A = 156672
CSKV_A = 158720
NONCE_A = 160768
RDY_A = 160800
LDS_TOTAL = 163840
CH_BYTES = 14336
NST = 4
KVR = 49152
Q_A = 4096
G2R = KVR + CH_BYTES * NST
G2D = 4
WOA = 0
RED_A = 0

C0 = -2.0 * math.sqrt(2.0 / math.pi) * math.log2(math.e)
C1 = C0 * 0.044715
QSC = math.log2(math.e) / math.sqrt(20.0)
M_OFFSET = 90.0
POLL_MAX = 400000
NONCE_X = 0x5a5a5a5a

HM = 's[62:63]'
PFWAIT = False
ENV = os.environ
NODOWN = ENV.get('NODOWN')
PRIO2 = int(ENV.get('PRIO2', '3'))
PRIO1 = int(ENV.get('PRIO1', '3'))
SPACE = ENV.get('SPACE', '')
NOPF = not ENV.get('PF')
INV = int(ENV.get('INV', '0'))
NOG2 = ENV.get('NOG2')
LINPF = int(ENV.get('LINPF', '0'))
NOSL = ENV.get('NOSL')
PF0 = int(ENV.get('PF0', '0'))
JIT = int(ENV.get('JIT', '0'))
JITD = int(ENV.get('JITD', '4'))
SLC = int(ENV.get('SLC', '1'))
SLG = int(ENV.get('SLG', '2'))
EARLY2 = int(ENV.get('EARLY2', '0'))
CWARM = int(ENV.get('CWARM', '1'))
KVSL = int(ENV.get('KVSL', '24'))
HEARLY = ENV.get('HEARLY')
PSLEEP = int(ENV.get('PSLEEP', '2'))
NOPF2 = ENV.get('NOPF2')
CV = int(ENV.get('CV', '0'))
NODMA = ENV.get('NODMA')
IST = ENV.get('IST')
LD = ' sc1' if ENV.get('SC1LD') else ''
FEWST = ENV.get('FEWST')
IST_LIST = tuple(int(x) for x in os.environ.get('ISTL', '1,2,6,7').split(','))
HFLAG_T = int(os.environ.get('HFT', '11'))
G2_START = int(os.environ.get('G2S', '5'))


class VM:
    def __init__(self):
        self.ops = []

    def add(self, tag, n=1, optional=False):
        for _ in range(n):
            self.ops.append((tag, optional))

    def wait(self, tag):
        idx = max(i for i, (t, o) in enumerate(self.ops) if t == tag)
        n = sum(1 for t, o in self.ops[idx + 1:] if not o)
        assert n <= 63, n
        return n

    def drain(self):
        self.ops = []


def emit(a, bundles):
    for b in bundles:
        a(b if isinstance(b, str) else '\n'.join(b))


def flag_store(a, soff_reg, vt):
    a(f'''
    v_mov_b32 {v(vt)}, s98
    v_mov_b32 {v(vt + 1)}, s99
    s_mov_b64 exec, 1
    buffer_store_dwordx2 {v(vt, 2)}, off, s[20:23], {soff_reg} sc1
    s_mov_b64 exec, -1
    ''')


def poll(a, vt, voff, soff_reg, wide=False, ignore=None, inv=True, sleep=None):
    L = a.label('poll')
    Ld = a.label('polld')
    a(f's_mov_b32 s93, {POLL_MAX}')
    a(f'{L}:')
    if wide:
        a(f'''
        buffer_load_dwordx4 {v(vt, 4)}, {v(voff)}, s[20:23], {soff_reg} offen sc1
        s_waitcnt vmcnt(0)
        v_cmp_eq_u64 vcc, s[98:99], {v(vt, 2)}
        v_cmp_eq_u64 s[46:47], s[98:99], {v(vt + 2, 2)}
        s_nop 1
        s_and_b64 vcc, vcc, s[46:47]
        ''')
    else:
        a(f'''
        buffer_load_dwordx2 {v(vt, 2)}, {v(voff)}, s[20:23], {soff_reg} offen sc1
        s_waitcnt vmcnt(0)
        v_cmp_eq_u64 vcc, s[98:99], {v(vt, 2)}
        s_nop 1
        ''')
    if ignore:
        a(f's_or_b64 vcc, vcc, {ignore}')
    a(f'''
    s_cmp_eq_u64 vcc, -1
    s_cbranch_scc1 {Ld}
    s_sub_u32 s93, s93, 1
    s_cbranch_scc1 {Ld}
    s_sleep {sleep or PSLEEP}
    s_branch {L}
    {Ld}:
    ''')
    if inv and INV:
        a('buffer_inv sc1\ns_waitcnt vmcnt(0)')


def one_poller(a, vt, word, body, who=3):
    Lw, Ld, Ls = a.label('opw'), a.label('opd'), a.label('ops')
    a(f'''
    v_mov_b32 {v(vt + 3)}, {RDY_A + 4 * word}
    s_cmp_lg_u32 s26, {who}
    s_cbranch_scc1 {Lw}
    ''')
    body()
    a(f'''
    v_mov_b32 {v(vt + 2)}, s98
    ds_write_b32 {v(vt + 3)}, {v(vt + 2)}
    s_branch {Ld}
    {Lw}:
    s_mov_b32 s93, {POLL_MAX * 8}
    {Ls}:
    ds_read_b32 {v(vt + 2)}, {v(vt + 3)}
    s_waitcnt lgkmcnt(0)
    v_readfirstlane_b32 s46, {v(vt + 2)}
    s_cmp_eq_u32 s46, s98
    s_cbranch_scc1 {Ld}
    s_sub_u32 s93, s93, 1
    s_cbranch_scc1 {Ld}
    s_sleep 1
    s_branch {Ls}
    {Ld}:
    ''')


def srd(a, base, ptr, size):
    a(f'''
    s_mov_b32 s{base}, s{ptr}
    s_mov_b32 s{base + 1}, s{ptr + 1}
    s_mov_b32 s{base + 2}, {size}
    s_mov_b32 s{base + 3}, 0x20000
    ''')


def w_source(a):
    a('''
    s_and_b32 s44, s26, 1
    s_and_b32 s51, s44, s48
    s_lshr_b32 s45, s26, 1
    s_lshl_b32 s46, s44, 6
    s_add_u32 s46, s46, s49
    s_cmp_eq_u32 s48, 1
    s_cselect_b32 s46, s49, s46
    s_lshl_b32 s47, s45, 6
    s_add_u32 s47, s47, s50
    s_cmp_eq_u32 s51, 1
    s_cselect_b32 s52, s47, s46
    s_lshl_b32 s52, s52, 1
    s_cmp_eq_u32 s45, 1
    s_cselect_b32 s12, s82, s80
    s_cselect_b32 s13, s83, s81
    s_mov_b32 s14, 2211840
    s_mov_b32 s53, 3456
    s_cmp_eq_u32 s51, 1
    s_cselect_b32 s12, s70, s12
    s_cselect_b32 s13, s71, s13
    s_cselect_b32 s14, 819200, s14
    s_cselect_b32 s53, 1280, s53
    s_mov_b32 s15, 0x20000
    ''')


def tile_offs(t):
    p, o = t >> 1, t & 1
    b = p * 7168
    return b + o * 1024, b + 2048, b + 3072 + o * 2048, b + 4096 + o * 2048


def gen():
    a = Asm()
    a(kernel_head(KNAME))
    stamp_early(a)
    vL, vH, vR = 1, 2, 3
    L_end = a.label('end')
    L_aux = a.label('aux')
    a(f'''
    s_cmp_ge_u32 s2, 256
    s_cbranch_scc1 {L_end}
    s_load_dwordx8 s[68:75], s[0:1], 0
    s_load_dwordx4 s[80:83], s[0:1], 48
    s_load_dwordx4 s[76:79], s[0:1], 80
    s_load_dwordx2 s[84:85], s[0:1], 32
    s_load_dwordx4 s[88:91], s[0:1], 64
    v_lshrrev_b32 v4, 6, v0
    v_and_b32 {v(vL)}, 63, v0
    v_readfirstlane_b32 s24, v4
    v_lshrrev_b32 {v(vH)}, 5, {v(vL)}
    v_and_b32 {v(vR)}, 31, {v(vL)}
    ''')
    if CWARM:
        Lw, Lp = a.label('nowarm'), a.label('pc')
        a(f'''
        s_cmp_lg_u32 s24, 11
        s_cbranch_scc1 {Lw}
        s_getpc_b64 s[4:5]
        {Lp}:
        s_bfe_u32 s44, s2, 0x30003
        s_lshl_b32 s44, s44, 13
        v_lshl_add_u32 v4, {v(vL)}, 7, s44
        v_min_u32 v4, {L_end}-{Lp}, v4
        global_load_dword v165, v4, s[4:5]
        {Lw}:
        ''')
    a(f'''
    s_and_b32 s44, s2, 7
    s_lshr_b32 s45, s2, 3
    s_and_b32 s46, s44, 1
    s_lshl_b32 s46, s46, 3
    s_and_b32 s47, s45, 7
    s_add_u32 s27, s46, s47
    s_lshr_b32 s46, s44, 1
    s_lshl_b32 s46, s46, 2
    s_lshr_b32 s47, s45, 3
    s_add_u32 s28, s46, s47
    s_mov_b32 s62, 0
    s_mov_b32 s63, -1
    s_cmp_ge_u32 s28, 11
    s_cselect_b32 s48, 1, 0
    s_sub_u32 s44, s28, 11
    s_lshl_b32 s45, s44, 6
    s_add_u32 s45, s45, 1408
    s_lshl_b32 s46, s28, 7
    s_lshl_b32 s50, s44, 7
    s_cmp_eq_u32 s48, 1
    s_cselect_b32 s49, s45, s46
    ''')
    a(f'''
    s_and_b32 s44, s2, 7
    s_lshr_b32 s45, s2, 3
    s_lshl_b32 s44, s44, 2
    s_and_b32 s46, s45, 3
    s_add_u32 s29, s44, s46
    s_lshr_b32 s30, s45, 2
    s_waitcnt lgkmcnt(0)
    ''')
    srd(a, 8, 68, 2621440)
    srd(a, 20, 78, WS_USED)
    srd(a, 64, 90, 2621440)
    if asmlib.STAMPS:
        a('s_mov_b32 s86, s88\ns_mov_b32 s87, s89')
    WDP = 86 if asmlib.STAMPS else 88
    if asmlib.STAMPS:
        a(f'''
        s_mov_b32 s88, s78
        s_mov_b32 s89, s79
        s_mov_b32 s90, 0x2000000
        s_mov_b32 s91, 0x20000
        s_mul_i32 s92, s2, 12
        s_add_u32 s92, s92, s24
        s_lshl_b32 s92, s92, 8
        s_add_u32 s92, s92, {asmlib.STAMP_OFF}
        ''')
    stamp(a, 0, early=True)
    a(f'''
    s_cmp_ge_u32 s24, 8
    s_cbranch_scc1 {L_aux}
    ''')
    L_c = a.label('cstart')
    L_aux2 = a.label('aux2')
    a.lines.pop()
    a.lines.pop()
    a(f'''
    s_cmp_lt_u32 s24, 8
    s_cbranch_scc1 {L_c}
    ''')
    b = Asm()
    b.uid = 5000
    aux_wave(b, vL, vH, vR, L_end, WDP)
    cut = b.lines.index('    ; @@AUXSPLIT')
    a.lines += b.lines[:cut]
    a(f's_branch {L_aux2}')
    a(f'{L_c}:')
    compute_wave(a, vL, vH, vR, L_end)
    a(f'{L_aux2}:')
    a.lines += b.lines[cut:]
    a(f'''
    {L_end}:
    s_endpgm
    ''')
    return a.text()


def compute_wave(a, vL, vH, vR, L_end):
    al = Alloc(4, 168)
    T = al('T', 8, 4)
    ACC = al('acc', 64, 4)
    XF = al('xf', 16, 4)
    WF = al('wf', 16, 4)
    vXA = al('xa', 4)
    vWA = al('wa', 2)
    p1_end = al.p
    t0, t1, t2, t3, t4 = T, T + 1, T + 2, T + 3, T + 4
    g1, kap, fq = T + 5, T + 6, T + 7
    a.c('=========== compute wave: phase 1 ===========')
    a('''
    s_and_b32 s25, s24, 1
    s_lshr_b32 s26, s24, 1
    ''')
    w_source(a)
    a(f'''
    v_lshrrev_b32 {v(t0)}, 3, {v(vL)}
    v_and_b32 {v(t1)}, 7, {v(vL)}
    s_lshl_b32 s44, s27, 7
    s_lshl_b32 s45, s24, 4
    s_add_u32 s44, s44, s45
    v_add_u32 {v(t2)}, s44, {v(t0)}
    v_mul_u32_u24 {v(t2)}, 1280, {v(t2)}
    v_lshrrev_b32 {v(t3)}, 1, {v(t0)}
    v_xor_b32 {v(t3)}, {v(t3)}, {v(t1)}
    v_lshl_add_u32 {v(XF)}, {v(t3)}, 4, {v(t2)}
    s_lshl_b32 m0, s24, 11
    v_xor_b32 {v(t3)}, 4, {v(t3)}
    buffer_load_dwordx4 {v(XF)}, s[8:11], 0 offen lds
    v_lshl_add_u32 {v(XF + 1)}, {v(t3)}, 4, {v(t2)}
    s_add_u32 m0, m0, 1024
    s_mov_b32 s34, {8 * 1280}
    buffer_load_dwordx4 {v(XF + 1)}, s[8:11], s34 offen lds
    v_mul_lo_u32 {v(t2)}, {v(t0)}, s53
    v_lshrrev_b32 {v(t3)}, 1, {v(t1)}
    v_and_b32 {v(t4)}, 2, {v(t0)}
    v_xor_b32 {v(t3)}, {v(t3)}, {v(t4)}
    s_lshr_b32 s44, s26, 1
    v_xor_b32 {v(t3)}, s44, {v(t3)}
    v_lshl_add_u32 {v(t2)}, {v(t3)}, 5, {v(t2)}
    v_and_b32 {v(t3)}, 1, {v(t1)}
    v_lshl_add_u32 {v(XF + 2)}, {v(t3)}, 4, {v(t2)}
    s_mul_i32 s37, s26, 24576
    s_lshl_b32 s44, s25, 12
    s_add_u32 s37, s37, s44
    s_lshl_b32 s31, s53, 3
    s_lshl_b32 s33, s53, 5
    s_mul_i32 s33, s33, s25
    s_add_u32 s33, s33, s52
    ''')
    for e in range(4):
        a(f'''
        s_add_u32 m0, s37, {LDS_W + 1024 * e}
        s_nop 0
        buffer_load_dwordx4 {v(XF + 2)}, s[12:15], s33 offen lds
        s_add_u32 s33, s33, s31
        ''')
    lab0 = a.label('c0kv')
    a(f'''
    s_cmp_ge_u32 s28, 8
    s_cbranch_scc1 {lab0}
    s_cmp_ge_u32 s24, 3
    s_cbranch_scc1 {lab0}
    s_bitcmp1_b32 s28, 2
    s_cselect_b32 s16, s74, s72
    s_cselect_b32 s17, s75, s73
    s_mov_b32 s18, 25600
    s_mov_b32 s19, 0x20000
    s_lshl_b32 s44, s24, 10
    s_add_u32 m0, s44, {LDS_KV}
    v_lshlrev_b32 {v(XF + 3)}, 4, {v(vL)}
    buffer_load_dwordx4 {v(XF + 3)}, s[16:19], s44 offen lds
    {lab0}:
    ''')
    if LINPF:
        a(f'''
        s_lshl_b32 s44, s2, 3
        s_add_u32 s44, s44, s24
        s_mov_b32 s40, s68
        s_mov_b32 s41, s69
        s_mov_b32 s42, 2621440
        s_mov_b32 s45, s44
        s_sub_u32 s46, s44, 640
        s_cmp_ge_u32 s44, 640
        s_cselect_b32 s40, s80, s40
        s_cselect_b32 s41, s81, s41
        s_cselect_b32 s42, 2211840, s42
        s_cselect_b32 s45, s46, s45
        s_sub_u32 s46, s44, 1180
        s_cmp_ge_u32 s44, 1180
        s_cselect_b32 s40, s82, s40
        s_cselect_b32 s41, s83, s41
        s_cselect_b32 s45, s46, s45
        s_sub_u32 s46, s44, 1720
        s_cmp_ge_u32 s44, 1720
        s_cselect_b32 s40, s70, s40
        s_cselect_b32 s41, s71, s41
        s_cselect_b32 s42, 819200, s42
        s_cselect_b32 s45, s46, s45
        s_mov_b32 s43, 0x20000
        s_lshl_b32 s45, s45, 12
        s_mov_b32 m0, {ROWC_A}
        v_lshlrev_b32 {v(XF + 4)}, 4, {v(vL)}
        ''')
        a(f'v_mov_b32 v164, {v(XF + 4)}\ns_mov_b32 s39, s45')
        linpf = [f'buffer_load_dwordx4 v164, s[40:43], s39 offen offset:{1024 * e} lds' for e in range(4)]
        if LINPF == 1:
            emit(a, linpf)
    if PF0:
        lab1, lab2 = a.label('pfx'), a.label('pfd')
        a(f'''
        s_lshr_b32 s44, s2, 3
        s_and_b32 s45, s44, 7
        s_lshr_b32 s46, s44, 3
        s_cmp_eq_u32 s25, 1
        s_cbranch_scc1 {lab1}
        v_mul_lo_u32 {v(t4)}, {v(vL)}, s53
        s_add_u32 s45, s45, 2
        s_lshl_b32 s44, s53, 6
        s_mul_i32 s45, s45, s44
        s_add_u32 s45, s45, s52
        buffer_load_dword v165, {v(t4)}, s[12:15], s45 offen
        s_branch {lab2}
        {lab1}:
        s_lshl_b32 s47, s27, 7
        s_lshl_b32 s34, s26, 5
        s_add_u32 s47, s47, s34
        v_add_u32 {v(t3)}, s47, {v(vR)}
        v_mul_u32_u24 {v(t3)}, 1280, {v(t3)}
        v_lshl_add_u32 {v(t3)}, {v(vH)}, 7, {v(t3)}
        s_lshl_b32 s46, s46, 8
        s_add_u32 s46, s46, 256
        buffer_load_dword v165, {v(t3)}, s[8:11], s46 offen
        {lab2}:
        ''')
    CR = 120
    XR = 120
    U = 140
    u0, u1, u2, u3, u4, u5 = range(U, U + 6)
    W4 = U + 8
    vN = U + 12
    srd(a, 4, 76, 256)

    def lines(txt):
        return [x.strip() for x in txt.split(chr(10)) if x.strip()]

    def load_cs():
        f = lines(f'''
        s_mul_i32 s44, s27, 40
        v_add_u32 {v(u1)}, s44, {v(vH)}
        v_mul_lo_u32 {v(u2)}, {v(u1)}, s53
        v_lshl_add_u32 {v(u2)}, {v(vR)}, 2, {v(u2)}
        s_mov_b32 s34, s52
        s_lshl_b32 s35, s53, 1
        ''')
        for t in range(20):
            f.append([f'buffer_load_dword {v(CR + t)}, {v(u2)}, s[12:15], s34 offen', 's_add_u32 s34, s34, s35'])
        return f

    def load_rows():
        f = lines(f'''
        s_lshl_b32 s44, s27, 7
        s_lshl_b32 s45, s28, 3
        s_add_u32 s44, s44, s45
        s_lshl_b32 s45, s26, 1
        s_add_u32 s55, s44, s45
        v_add_u32 {v(u0)}, s55, {v(vH)}
        v_mul_u32_u24 {v(u0)}, 1280, {v(u0)}
        v_lshl_add_u32 {v(u0)}, {v(vR)}, 3, {v(u0)}
        ''')
        for t in range(5):
            f.append(f'buffer_load_dwordx2 {v(XR + 2 * t, 2)}, {v(u0)}, s[8:11], 0 offen offset:{256 * t}')
        return f

    def fill_cs():
        f = lines(f'''
        v_lshlrev_b32 {v(u0)}, 16, {v(CR)}
        v_and_b32 {v(u1)}, 0xffff0000, {v(CR)}
        ''')
        for t in range(1, 20):
            f += lines(f'''
            v_lshlrev_b32 {v(u2)}, 16, {v(CR + t)}
            v_and_b32 {v(u3)}, 0xffff0000, {v(CR + t)}
            v_add_f32 {v(u0)}, {v(u0)}, {v(u2)}
            v_add_f32 {v(u1)}, {v(u1)}, {v(u3)}
            ''')
        f += lines(f'''
        s_nop 1
        v_permlane32_swap_b32 {v(u0)}, {v(u1)}
        s_nop 1
        v_add_f32 {v(u0)}, {v(u0)}, {v(u1)}
        v_cvt_pk_bf16_f32 {v(u1)}, {v(u0)}, {v(u0)}
        v_and_b32 {v(u1)}, 0xffff0000, {v(u1)}
        v_sub_f32 {v(u1)}, {v(u0)}, {v(u1)}
        v_cvt_pk_bf16_f32 {v(u0)}, {v(u0)}, {v(u1)}
        v_lshl_add_u32 {v(u1)}, {v(vR)}, 1, {v(vH)}
        v_bfe_u32 {v(u2)}, {v(u1)}, 2, 1
        v_bfe_u32 {v(u3)}, {v(u1)}, 3, 1
        v_lshl_add_u32 {v(u2)}, {v(u2)}, 1, {v(u3)}
        v_and_b32 {v(u3)}, 3, {v(u1)}
        v_lshl_add_u32 {v(u2)}, {v(u2)}, 2, {v(u3)}
        v_lshrrev_b32 {v(u3)}, 4, {v(u1)}
        s_and_b32 s44, s26, 1
        s_lshl_b32 s44, s44, 2
        s_cmp_eq_u32 s48, 1
        s_cselect_b32 s44, 0, s44
        v_add_u32 {v(u4)}, s44, {v(u3)}
        s_lshr_b32 s45, s26, 1
        v_mov_b32 {v(u5)}, s45
        s_cmp_eq_u32 s51, 1
        s_cselect_b64 vcc, -1, 0
        s_add_u32 s44, s26, 3
        v_lshrrev_b32 {v(u1)}, 1, {v(u3)}
        v_add_u32 {v(u1)}, s44, {v(u1)}
        v_and_b32 {v(u3)}, 1, {v(u3)}
        v_cndmask_b32 {v(u4)}, {v(u4)}, {v(u1)}, vcc
        v_cndmask_b32 {v(u5)}, {v(u5)}, {v(u3)}, vcc
        v_lshl_add_u32 {v(u2)}, {v(u5)}, 4, {v(u2)}
        v_lshl_add_u32 {v(u2)}, {v(u4)}, 5, {v(u2)}
        v_lshlrev_b32 {v(u2)}, 2, {v(u2)}
        s_lshl_b32 s44, s28, 14
        s_lshl_b32 s45, s27, 10
        s_add_u32 s44, s44, s45
        s_add_u32 s44, s44, {CSW}
        buffer_store_dword {v(u0)}, {v(u2)}, s[20:23], s44 offen sc1
        s_lshl_b32 s46, s27, 2
        s_add_u32 s46, s46, s26
        s_lshl_b32 s46, s46, 3
        s_lshl_b32 s45, s28, 9
        s_add_u32 s46, s46, s45
        s_add_u32 s56, s46, {F_CS}
        ''')
        return f

    def fill_rows():
        f = [f'v_mov_b32 {v(u0)}, 0', f'v_mov_b32 {v(u1)}, 0']
        for t in range(10):
            f += lines(f'''
            v_lshlrev_b32 {v(u2)}, 16, {v(XR + t)}
            v_and_b32 {v(u3)}, 0xffff0000, {v(XR + t)}
            v_add_f32 {v(u0)}, {v(u0)}, {v(u2)}
            v_fmac_f32 {v(u1)}, {v(u2)}, {v(u2)}
            v_add_f32 {v(u0)}, {v(u0)}, {v(u3)}
            v_fmac_f32 {v(u1)}, {v(u3)}, {v(u3)}
            ''')
        for ror in (8, 4, 2, 1):
            f += lines(f'''
            s_nop 1
            v_add_f32_dpp {v(u0)}, {v(u0)}, {v(u0)} row_ror:{ror} row_mask:0xf bank_mask:0xf
            v_add_f32_dpp {v(u1)}, {v(u1)}, {v(u1)} row_ror:{ror} row_mask:0xf bank_mask:0xf
            ''')
        f += lines(f'''
        v_mov_b32 {v(u2)}, {v(u0)}
        v_mov_b32 {v(u3)}, {v(u1)}
        s_nop 1
        v_permlane16_swap_b32 {v(u0)}, {v(u2)}
        v_permlane16_swap_b32 {v(u1)}, {v(u3)}
        s_mov_b32 s44, {f2u(1.0 / 640.0)}
        s_mov_b32 s45, {f2u(1e-5)}
        v_add_f32 {v(u0)}, {v(u0)}, {v(u2)}
        v_add_f32 {v(u1)}, {v(u1)}, {v(u3)}
        v_mul_f32 {v(u0)}, s44, {v(u0)}
        v_mul_f32 {v(u1)}, s44, {v(u1)}
        v_fma_f32 {v(u1)}, -{v(u0)}, {v(u0)}, {v(u1)}
        v_max_f32 {v(u1)}, 0, {v(u1)}
        v_cvt_pk_bf16_f32 {v(W4)}, -{v(u0)}, -{v(u0)}
        v_cvt_pk_bf16_f32 {v(u1)}, {v(u1)}, {v(u1)}
        v_and_b32 {v(u1)}, 0xffff0000, {v(u1)}
        v_add_f32 {v(u1)}, s45, {v(u1)}
        v_cvt_pk_bf16_f32 {v(u1)}, {v(u1)}, {v(u1)}
        v_and_b32 {v(u1)}, 0xffff0000, {v(u1)}
        v_sqrt_f32 {v(u1)}, {v(u1)}
        v_mov_b32 {v(W4 + 3)}, 0
        v_cvt_pk_bf16_f32 {v(u1)}, {v(u1)}, {v(u1)}
        v_and_b32 {v(u1)}, 0xffff0000, {v(u1)}
        v_rcp_f32 {v(W4 + 1)}, {v(u1)}
        v_mul_f32 {v(W4 + 2)}, {v(u1)}, {v(u1)}
        v_lshlrev_b32 {v(u2)}, 4, {v(vH)}
        s_lshl_b32 s44, s55, 4
        s_add_u32 s44, s44, {ROWW}
        ''')
        f.append(['s_mov_b32 exec_lo, 1', 's_mov_b32 exec_hi, 1',
                  f'buffer_store_dwordx4 {v(W4, 4)}, {v(u2)}, s[20:23], s44 offen sc1', 's_mov_b64 exec, -1'])
        f += lines(f'''
        s_lshl_b32 s44, s28, 2
        s_add_u32 s44, s44, s26
        s_lshl_b32 s44, s44, 3
        s_lshl_b32 s45, s27, 9
        s_add_u32 s44, s44, s45
        s_add_u32 s56, s44, {F_ST}
        ''')
        return f

    stamp(a, 22)
    a(f'''
    v_lshrrev_b32 {v(t0)}, 1, {v(vR)}
    v_and_b32 {v(t0)}, 7, {v(t0)}
    v_xor_b32 {v(t0)}, {v(t0)}, {v(vH)}
    v_lshlrev_b32 {v(t1)}, 7, {v(vR)}
    s_lshl_b32 s44, s25, 13
    v_add_u32 {v(t1)}, s44, {v(t1)}
    ''')
    for sI in range(4):
        a(f'''
        v_xor_b32 {v(t2)}, {2 * sI}, {v(t0)}
        v_lshl_add_u32 {v(vXA + sI)}, {v(t2)}, 4, {v(t1)}
        ''')
    a(f'''
    v_bfe_u32 {v(g1)}, {v(vL)}, 4, 1
    v_bfe_u32 {v(kap)}, {v(vL)}, 2, 2
    v_and_b32 {v(t0)}, 1, {v(vL)}
    v_lshlrev_b32 {v(t0)}, 1, {v(t0)}
    v_bfe_u32 {v(t1)}, {v(vL)}, 1, 1
    v_or_b32 {v(fq)}, {v(t0)}, {v(t1)}
    s_lshr_b32 s44, s26, 1
    s_and_b32 s57, s44, s48
    v_lshl_add_u32 {v(t0)}, {v(vH)}, 3, {v(kap)}
    v_lshlrev_b32 {v(t0)}, 7, {v(t0)}
    v_lshl_add_u32 {v(t0)}, {v(fq)}, 3, {v(t0)}
    v_and_b32 {v(t4)}, 2, {v(kap)}
    s_cmp_eq_u32 s57, 1
    s_cselect_b64 vcc, -1, 0
    ''')
    for bb in range(2):
        a(f'''
        s_lshl_b32 s44, s26, 1
        s_add_u32 s44, s44, {bb}
        s_lshr_b32 s45, s44, 2
        s_and_b32 s46, s44, 3
        v_lshlrev_b32 {v(t1)}, 1, {v(g1)}
        v_add_u32 {v(t1)}, s45, {v(t1)}
        v_mov_b32 {v(t2)}, s46
        s_lshl_b32 s44, s26, 1
        s_sub_u32 s44, s44, 3
        v_mov_b32 {v(t3)}, s44
        v_cndmask_b32 {v(t1)}, {v(t1)}, {v(t3)}, vcc
        v_add_u32 {v(t3)}, {2 * bb}, {v(g1)}
        v_cndmask_b32 {v(t2)}, {v(t2)}, {v(t3)}, vcc
        v_xor_b32 {v(t2)}, {v(t2)}, {v(t4)}
        v_lshrrev_b32 {v(t3)}, 1, {v(t1)}
        v_xor_b32 {v(t2)}, {v(t2)}, {v(t3)}
        v_mul_u32_u24 {v(t1)}, 24576, {v(t1)}
        v_lshl_add_u32 {v(t1)}, {v(t2)}, 5, {v(t1)}
        v_add_u32 {v(t1)}, {v(t1)}, {v(t0)}
        v_add_u32 {v(vWA + bb)}, {LDS_W}, {v(t1)}
        ''')

    def reads(c, sI):
        st, buf = c % 3, sI & 1
        out = [f'ds_read_b128 {v(XF + 8 * buf, 4)}, {v(vXA + sI)} offset:{LDS_X + st * 16384}']
        for bb in range(2):
            for t in range(2):
                out.append(f'ds_read_b64_tr_b16 {v(WF + 8 * buf + 4 * bb + 2 * t, 2)}, {v(vWA + bb)} offset:{st * 8192 + 2048 * sI + 512 * t}')
        out.append(f'ds_read_b128 {v(XF + 8 * buf + 4, 4)}, {v(vXA + sI)} offset:{LDS_X + st * 16384 + 4096}')
        return out

    def mfmas(c, sI):
        buf = sI & 1
        first = (c == 0 and sI == 0)
        return [mfma16(ACC + 32 * e + 16 * bb, WF + 8 * buf + 4 * bb, XF + 8 * buf + 4 * e,
                       None if first else ACC + 32 * e + 16 * bb) for e, bb in ((0, 0), (0, 1), (1, 0), (1, 1))]

    def mix(ms, rd, wait=True, fill=()):
        cut = [rd[0:3], rd[3:6], [], []]
        n = len(fill)
        if wait:
            a('s_waitcnt lgkmcnt(0)')
        for q, (m, r) in enumerate(zip(ms, cut)):
            a(m)
            emit(a, r)
            emit(a, fill[(q * n) // 4:((q + 1) * n) // 4])

    def chunk(c, fill=()):
        a.c(f'chunk {c}')
        n = len(fill)
        if c:
            a('s_waitcnt lgkmcnt(0)')
        a('s_barrier')
        if not FEWST or c in (0, 1, 2, 9):
            stamp(a, 1 + c)
        if c > 0:
            mix(mfmas(c - 1, 3), reads(c, 0), wait=False, fill=fill[0:n // 4])
        else:
            emit(a, reads(c, 0))
            emit(a, fill[0:n // 4])
        for sI in range(3):
            mix(mfmas(c, sI), reads(c, sI + 1), fill=fill[((sI + 1) * n) // 4:((sI + 2) * n) // 4])

    a(f's_waitcnt vmcnt({4 if LINPF == 1 else (1 if PF0 else 0)})')
    chunk(0, linpf if LINPF == 2 else [])
    lab1, lab2 = a.label('rowv'), a.label('join')
    a(f's_cmp_eq_u32 s25, 1\ns_cbranch_scc1 {lab1}')
    for var, (ld, fl) in enumerate(((load_cs(), fill_cs()), (load_rows(), fill_rows()))):
        fl = ['s_waitcnt vmcnt(0)'] + fl + [f'buffer_load_dword {v(vN)}, off, s[4:7], 0 sc1']
        if NOSL:
            ld = [x for x in ld if 'buffer_load' not in str(x)]
            fl = fl[-8:]
        h = len(fl) // 2
        for c in range(1, SLC + SLG + 2):
            if c == SLC:
                chunk(c, ld)
            elif c == SLC + SLG:
                chunk(c, fl[:h])
            elif c == SLC + SLG + 1:
                chunk(c, fl[h:])
            else:
                chunk(c)
        if var == 0:
            a(f's_branch {lab2}\n{lab1}:')
    a(f'{lab2}:')
    chunk(SLC + SLG + 2)
    Lp, Lq = a.label('cnp'), a.label('cnd')
    a(f'''
    s_mov_b32 s93, {POLL_MAX}
    {Lp}:
    s_waitcnt vmcnt(0)
    v_readfirstlane_b32 s98, {v(vN)}
    s_cmp_lg_u32 s98, 0
    s_cbranch_scc1 {Lq}
    s_sub_u32 s93, s93, 1
    s_cbranch_scc1 {Lq}
    buffer_load_dword {v(vN)}, off, s[4:7], 0 sc1
    s_branch {Lp}
    {Lq}:
    s_xor_b32 s99, s98, {NONCE_X}
    ''')
    flag_store(a, 's56', U)
    for c in range(SLC + SLG + 3, 10):
        chunk(c)
    a('s_waitcnt lgkmcnt(0)')
    emit(a, mfmas(9, 3))
    lab = a.label('nqp')
    a(f's_cmp_eq_u32 s57, 0\ns_cbranch_scc1 {lab}\ns_setprio 2\n{lab}:')
    stamp(a, 11)
    a('s_barrier')
    stamp(a, 12)

    al2 = Alloc(XF, 168)
    RC = al2('rc', 8, 4)
    NEG = al2('neg', 8, 4)
    CSF = al2('csf', 16, 4)
    KK = al2('kk', 4, 2)
    E1 = al2('e1', 16, 4)
    E2 = al2('e2', 16, 4)
    HH = 148
    vS16 = al2('s16')
    vQA = al2('qa')
    a(f'''
    s_lshl_b32 s44, s25, 10
    s_add_u32 s44, s44, {ROWC_A}
    v_lshl_add_u32 {v(t0)}, {v(vR)}, 4, s44
    v_lshlrev_b32 {v(vS16)}, 4, {v(vL)}
    s_lshl_b32 s44, s26, 8
    s_add_u32 s44, s44, {CS_A}
    v_lshl_add_u32 {v(t1)}, {v(vR)}, 2, s44
    v_lshl_add_u32 {v(t1)}, {v(vH)}, 12, {v(t1)}
    v_add_u32 {v(t3)}, 128, {v(t1)}
    ds_read_b128 {v(RC, 4)}, {v(t0)}
    ds_read_b128 {v(RC + 4, 4)}, {v(t0)} offset:512
    ''')
    for bb in range(2):
        for m in range(2):
            for z in range(2):
                a(f'ds_read2st64_b32 {v(CSF + 8 * bb + 4 * m + 2 * z, 2)}, {v((t1, t3)[bb])} offset0:{32 * m + 8 * z} offset1:{32 * m + 8 * z + 4}')
    a(f'''
    s_mov_b32 s46, {f2u(C0)}
    s_mov_b32 s47, {f2u(C1)}
    s_lshl_b32 s44, s27, 2
    s_lshl_b32 s45, s25, 1
    s_add_u32 s60, s44, s45
    s_waitcnt lgkmcnt(8)
    ''')
    for e in range(2):
        for r in range(4):
            a(f'v_mov_b32 {v(NEG + 4 * e + r)}, {v(RC + 4 * e)}')
    for e in range(2):
        a(f'''
        v_mul_f32 {v(KK + 2 * e)}, s46, {v(RC + 4 * e + 1)}
        v_mul_f32 {v(t0)}, {v(RC + 4 * e + 1)}, {v(RC + 4 * e + 1)}
        v_mul_f32 {v(t0)}, {v(t0)}, {v(RC + 4 * e + 1)}
        v_mul_f32 {v(KK + 2 * e + 1)}, s47, {v(t0)}
        ''')
    a('s_waitcnt lgkmcnt(0)')
    for e in range(2):
        for bb in range(2):
            d = ACC + 32 * e + 16 * bb
            for m in range(2):
                a(mfma16(d, CSF + 8 * bb + 4 * m, NEG + 4 * e, d))
    L_q = a.label('qepi')
    L_ed = a.label('epidone')
    a(f'''
    s_nop 1
    s_cmp_eq_u32 s57, 1
    s_cbranch_scc1 {L_q}
    s_lshr_b32 s44, s49, 4
    s_lshl_b32 s45, s26, 1
    s_add_u32 s44, s44, s45
    s_mul_i32 s42, s60, 108
    s_add_u32 s42, s42, s44
    s_lshl_b32 s42, s42, 10
    s_add_u32 s43, s42, {108 * 1024}
    ''')
    k = 0
    for e in range(2):
        for bb in range(2):
            A = ACC + 32 * e + 16 * bb
            TT = E1 + 8 * (k % 2)
            PP = E2 + 8 * (k % 2)
            O_ = HH + 4 * k
            kk = v(KK + 2 * e, 2)
            rc = v(RC + 4 * e + 2, 2)
            for i in range(0, 8, 2):
                a(f'v_pk_mul_f32 {v(TT + i, 2)}, {v(A + i, 2)}, {v(A + i, 2)}')
            for i in range(0, 8, 2):
                a(f'v_pk_fma_f32 {v(TT + i, 2)}, {v(TT + i, 2)}, {kk}, {kk} op_sel:[0,1,0] op_sel_hi:[1,1,0]')
            for i in range(0, 8, 2):
                a(f'v_pk_mul_f32 {v(TT + i, 2)}, {v(TT + i, 2)}, {v(A + i, 2)}')
            for i in range(8):
                a(f'v_exp_f32 {v(TT + i)}, {v(TT + i)}')
            for i in range(0, 8, 2):
                a(f'v_pk_mul_f32 {v(PP + i, 2)}, {v(A + i, 2)}, {v(A + 8 + i, 2)}')
            for i in range(0, 8, 2):
                a(f'v_pk_fma_f32 {v(TT + i, 2)}, {v(TT + i, 2)}, {rc}, {rc} op_sel_hi:[1,0,0]')
            for i in range(8):
                a(f'v_rcp_f32 {v(TT + i)}, {v(TT + i)}')
            a('s_nop 0')
            for i in range(0, 8, 2):
                a(f'v_pk_mul_f32 {v(PP + i, 2)}, {v(PP + i, 2)}, {v(TT + i, 2)}')
            for i in range(4):
                a(f'v_cvt_pk_bf16_f32 {v(O_ + i)}, {v(PP + 2 * i)}, {v(PP + 2 * i + 1)}')
            k += 1
    if HEARLY:
        for k in range(4):
            a(f'buffer_store_dwordx4 {v(HH + 4 * k, 4)}, {v(vS16)}, s[20:23], s{42 + (k >> 1)} offen offset:{1024 * (k & 1)} sc1')
    a(f's_branch {L_ed}')
    a(f'{L_q}:')
    a(f'''
    s_sub_u32 s44, s26, 2
    s_lshl_b32 s44, s44, 6
    s_add_u32 s44, s44, s50
    s_lshl_b32 s44, s44, 6
    s_add_u32 s44, s44, {QF_OFF}
    s_mov_b32 s45, {f2u(QSC)}
    s_mul_i32 s46, s60, 40960
    s_add_u32 s46, s46, s44
    s_add_u32 s47, s46, 40960
    v_mul_f32 {v(KK)}, s45, {v(RC + 1)}
    v_mul_f32 {v(KK + 2)}, s45, {v(RC + 5)}
    ''')
    k = 0
    for e in range(2):
        for bb in range(2):
            A = ACC + 32 * e + 16 * bb
            O_ = (E1, E1 + 8, E2, E2 + 8)[k]
            for i in range(0, 16, 2):
                a(f'v_pk_mul_f32 {v(A + i, 2)}, {v(A + i, 2)}, {v(KK + 2 * e, 2)} op_sel_hi:[1,0]')
            for i in range(8):
                a(f'v_cvt_pk_bf16_f32 {v(O_ + i)}, {v(A + 2 * i)}, {v(A + 2 * i + 1)}')
            for z in range(2):
                a(f'buffer_store_dwordx4 {v(O_ + 4 * z, 4)}, {v(vS16)}, s[20:23], s{46 + e} offen offset:{1024 * z + 2048 * bb} sc1')
            k += 1
    a(f'{L_ed}:')
    stamp(a, 13)

    a.c('=========== compute wave: attention ===========')
    al3 = Alloc(4, 168)
    T = al3('T', 16, 4)
    S = al3('S', 32, 4)
    O = al3('O', 16, 4)
    V1 = al3('V1', 4, 4)
    V2 = al3('V2', 4, 4)
    Q1 = al3('Q1', 4, 4)
    K1 = al3('K1', 8, 4)
    K2 = al3('K2', 8, 4)
    P = al3('P', 16, 4)
    Q2 = al3('Q2', 2, 2)
    vK = al3('vK')
    vK2 = al3('vK2')
    a(f'''
    s_lshl_b32 s44, s27, 1
    s_add_u32 s44, s44, s25
    s_lshl_b32 s44, s44, 13
    s_lshl_b32 s45, s28, 2
    s_add_u32 s45, s45, s26
    s_lshl_b32 s45, s45, 7
    s_add_u32 s44, s44, s45
    s_add_u32 s41, s44, {F_QH}
    s_nop 1
    ''')
    for i in range(16):
        a(f'v_mov_b32 {v(O + i)}, 0')
    for i in range(4):
        a(f'v_mov_b32 {v(V1 + i)}, 0')
        a(f'v_mov_b32 {v(V2 + i)}, 0')
    a(f'''
    s_mov_b32 s45, {KVR}
    v_lshl_add_u32 {v(vK)}, {v(vL)}, 4, s45
    v_lshl_add_u32 {v(vK2)}, {v(vL)}, 3, s45
    s_mul_i32 s45, s24, 5
    v_lshlrev_b32 {v(T + 4)}, 4, {v(vR)}
    v_add_u32 {v(T + 4)}, {Q_A}, {v(T + 4)}
    ''')
    for z, (dq, useh) in enumerate(((0, 1), (2, 1), (4, 0))):
        a(f's_add_u32 s46, s45, {dq}')
        a(f'v_add_u32 {v(T + 5)}, s46, {v(vH)}' if useh else f'v_mov_b32 {v(T + 5)}, s46')
        a(f'''
        v_lshrrev_b32 {v(T + 6)}, 1, {v(T + 5)}
        v_lshl_add_u32 {v(T + 6)}, {v(T + 6)}, 9, {v(T + 4)}
        v_and_b32 {v(T + 5)}, 1, {v(T + 5)}
        v_lshl_add_u32 {v(T + 13 + z)}, {v(T + 5)}, 3, {v(T + 6)}
        ''')
    lab = a.label('noqf')
    a(f'''
    s_cmp_eq_u32 s57, 0
    s_cbranch_scc1 {lab}
    s_waitcnt vmcnt(0)
    ''')
    flag_store(a, 's41', T + 2)
    a('s_setprio 0')
    a(f'{lab}:')
    for i in range(8):
        a(f'v_mov_b32 {v(P + 8 + i)}, 0')
    stamp(a, 14)
    a('s_barrier')
    stamp(a, 15)
    o0, o1, o2 = tile_offs(0), tile_offs(1), tile_offs(2)
    a(f'''
    ds_read_b64 {v(Q1, 2)}, {v(T + 13)}
    ds_read_b64 {v(Q1 + 2, 2)}, {v(T + 14)}
    ds_read_b64 {v(Q2, 2)}, {v(T + 15)}
    ds_read_b128 {v(K1, 4)}, {v(vK)} offset:{o0[0]}
    ds_read_b128 {v(K1 + 4, 4)}, {v(vK)} offset:{o1[0]}
    ds_read2st64_b64 {v(K2, 4)}, {v(vK2)} offset0:{o0[1] // 512} offset1:{o0[1] // 512 + 1}
    v_mov_b32 {v(T + 2)}, 0
    s_waitcnt lgkmcnt(3)
    v_cndmask_b32 {v(Q2)}, {v(Q2)}, {v(T + 2)}, {HM}
    v_cndmask_b32 {v(Q2 + 1)}, {v(Q2 + 1)}, {v(T + 2)}, {HM}
    s_waitcnt lgkmcnt(0)
    ''')

    def set_m(mreg, offset):
        t0, t1, t2, t3 = T + 8, T + 9, T + 10, T + 11
        a(f'v_sub_f32 {v(t0)}, {f2u(-offset) if offset else 0}, {v(mreg)}')
        a(f'''
        v_cvt_pk_bf16_f32 {v(t1)}, {v(t0)}, {v(t0)}
        v_and_b32 {v(t2)}, 0xffff0000, {v(t1)}
        v_sub_f32 {v(t2)}, {v(t0)}, {v(t2)}
        v_cvt_pk_bf16_f32 {v(t1)}, {v(t0)}, {v(t2)}
        v_and_b32 {v(t3)}, 0xffff0000, {v(t1)}
        v_sub_f32 {v(t2)}, {v(t2)}, {v(t3)}
        v_mov_b32 {v(t3)}, 0
        v_cvt_pk_bf16_f32 {v(t2)}, {v(t2)}, {v(t3)}
        v_cndmask_b32 {v(Q2)}, {v(Q2)}, {v(t1)}, {HM}
        v_cndmask_b32 {v(Q2 + 1)}, {v(Q2 + 1)}, {v(t2)}, {HM}
        ''')

    def cross_half_max(reg):
        t = T + 12
        a(f'''
        v_mov_b32 {v(t)}, {v(reg)}
        s_nop 1
        v_permlane32_swap_b32 {v(reg)}, {v(t)}
        s_nop 1
        v_max_f32 {v(reg)}, {v(reg)}, {v(t)}
        ''')

    for t in range(2):
        a(mfma16(S + 16 * t, K1 + 4 * t, Q1))
    if not HEARLY:
        lab = a.label('nohst')
        a(f'''
        v_lshlrev_b32 {v(T)}, 4, {v(vL)}
        s_cmp_eq_u32 s57, 1
        s_cbranch_scc1 {lab}
        ''')
        for k in range(4):
            a(f'buffer_store_dwordx4 {v(HH + 4 * k, 4)}, {v(T)}, s[20:23], s{42 + (k >> 1)} offen offset:{1024 * (k & 1)} sc1')
        a(f'{lab}:')
    a('s_nop 8')
    for t in range(2):
        a(mfma8(S + 16 * t, K2 + 2 * t, Q2, S + 16 * t))
    a('s_nop 11')
    m = T + 4
    a(f'v_max3_f32 {v(m)}, {v(S)}, {v(S + 1)}, {v(S + 2)}')
    for i in range(3, 31, 2):
        a(f'v_max3_f32 {v(m)}, {v(m)}, {v(S + i)}, {v(S + i + 1)}')
    a(f'v_max_f32 {v(m)}, {v(m)}, {v(S + 31)}')
    cross_half_max(m)
    set_m(m, M_OFFSET)
    a('s_nop 1')
    a(mfma16(S, K1, Q1))
    a(f'''
    ds_read_b128 {v(K1, 4)}, {v(vK)} offset:{o2[0]}
    s_mov_b32 s34, 4
    s_nop 7
    ''')
    a(mfma8(S, K2, Q2, S))
    a('s_nop 9')
    stamp(a, 16)

    def toff(tt):
        tt &= 15
        o = tile_offs(tt & 3)
        return [x + (tt >> 2) * CH_BYTES for x in o]

    def k2read(reg, tt):
        o = toff(tt)[1]
        assert o % 512 == 0
        return f'ds_read2st64_b64 {v(reg, 4)}, {v(vK2)} offset0:{o // 512} offset1:{o // 512 + 1}'

    L_hf, L_hb = a.label('hflag'), a.label('hback')

    def slot(t):
        Sx, Sn = S + 16 * (t & 1), S + 16 * ((t + 1) & 1)
        Px, Pp = P + 8 * (t & 1), P + 8 * ((t + 1) & 1)
        kt = t + 1
        kb = kt & 1
        k2 = K2 + 4 * ((kt >> 1) & 1) + 2 * (kt & 1)
        m_ = [mfma16(Sn, K1 + 4 * kb, Q1), mfma16(O, V1, Pp, O), mfma8(Sn, k2, Q2, Sn), mfma16(O, V2, Pp + 4, O)]
        after = [[], [], [], []]
        if t & 3 == 1:
            after[0] = ['s_barrier']
        after[0] += [f'ds_read_b128 {v(K1 + 4 * kb, 4)}, {v(vK)} offset:{toff(t + 3)[0]}', 's_waitcnt lgkmcnt(2)']
        after[1] = [f'ds_read_b128 {v(V1, 4)}, {v(vK)} offset:{toff(t)[2]}']
        if t & 1:
            after[1] += [k2read(K2 + 4 * (((t + 3) >> 1) & 1), t + 3)]
        after[2] += [f's_waitcnt lgkmcnt({3 if t & 1 else 2})']
        after[3] = [f'ds_read_b128 {v(V2, 4)}, {v(vK)} offset:{toff(t)[3]}']
        if t == 15:
            after[3] += ['s_sub_u32 s34, s34, 1']
        if t == HFLAG_T:
            after[3] += ['s_cmp_eq_u32 s34, 4', f's_cbranch_scc1 {L_hf}', f'{L_hb}:']
        val = []
        for i in range(8):
            val.append(f'v_exp_f32 {v(Sx + 2 * i)}, {v(Sx + 2 * i)}')
            val.append(f'v_exp_f32 {v(Sx + 2 * i + 1)}, {v(Sx + 2 * i + 1)}')
            if i > 0:
                val.append(f'v_cvt_pk_bf16_f32 {v(Px + i - 1)}, {v(Sx + 2 * i - 2)}, {v(Sx + 2 * i - 1)}')
        val.append(f'v_cvt_pk_bf16_f32 {v(Px + 7)}, {v(Sx + 14)}, {v(Sx + 15)}')
        groups = [val[0:5], val[5:11], val[11:17], val[17:24]]
        for g in range(4):
            a(m_[g])
            emit(a, after[g])
            emit(a, groups[g])

    a(k2read(K2 + 4, 2))
    L_loop = a.label('att')
    a('.p2align 6')
    a(f'{L_loop}:')
    for t in range(16):
        slot(t)
    a(f'''
    s_cmp_lg_u32 s34, 0
    s_cbranch_scc1 {L_loop}
    s_waitcnt lgkmcnt(0)
    ''')
    a(mfma16(O, V1, P + 8, O))
    a(mfma16(O, V2, P + 12, O))
    a(f'''
    s_lshr_b32 s44, s30, 2
    s_lshl_b32 s31, s29, 1
    s_add_u32 s31, s31, s44
    s_and_b32 s44, s30, 3
    s_lshl_b32 s44, s44, 3
    s_add_u32 s33, s44, s24
    s_mul_i32 s35, s31, 40960
    s_add_u32 s35, s35, {OF_OFF}
    s_lshl_b32 s36, s33, 10
    s_add_u32 s36, s36, s35
    s_lshl_b32 s44, s33, 8
    s_add_u32 s35, s35, s44
    s_add_u32 s35, s35, 32768
    v_lshlrev_b32 {v(T + 2)}, 4, {v(vL)}
    v_lshlrev_b32 {v(T + 3)}, 3, {v(vL)}
    v_mov_b32 {v(T + 9)}, 0x7f000000
    v_cndmask_b32 {v(T + 3)}, {v(T + 3)}, {v(T + 9)}, {HM}
    s_nop 3
    ''')
    stamp(a, 17)
    L_fb = a.label('fb')
    L_out = a.label('aout')
    a(f'''
    s_mov_b32 s44, {f2u(2.0 ** 120)}
    s_mov_b32 s45, {f2u(2.0 ** -103)}
    v_add_f32 {v(T)}, |{v(O)}|, |{v(O + 1)}|
    ''')
    for i in range(2, 12):
        a(f'v_add_f32 {v(T)}, {v(T)}, |{v(O + i)}|')
    a(f'''
    v_add_f32 {v(T + 1)}, {v(T)}, {v(O + 12)}
    v_cmp_le_f32 s[46:47], s45, {v(T)}
    v_cmp_gt_f32 s[48:49], s44, {v(T + 1)}
    s_nop 1
    s_and_b64 s[46:47], s[46:47], s[48:49]
    s_cmp_eq_u64 s[46:47], -1
    s_cbranch_scc0 {L_fb}
    {L_out}:
    v_rcp_f32 {v(T)}, {v(O + 12)}
    s_lshl_b32 s44, s29, 13
    s_lshl_b32 s45, s30, 3
    s_add_u32 s45, s45, s24
    s_lshl_b32 s45, s45, 7
    s_add_u32 s44, s44, s45
    s_add_u32 s44, s44, {F_O}
    ''')
    for i in range(0, 12, 2):
        a(f'v_pk_mul_f32 {v(O + i, 2)}, {v(O + i, 2)}, {v(T, 2)} op_sel_hi:[1,0]')
    for i in range(6):
        a(f'v_cvt_pk_bf16_f32 {v(P + i)}, {v(O + 2 * i)}, {v(O + 2 * i + 1)}')
    a(f'buffer_store_dwordx4 {v(P, 4)}, {v(T + 2)}, s[20:23], s36 offen sc1')
    a(f'buffer_store_dwordx2 {v(P + 4, 2)}, {v(T + 3)}, s[20:23], s35 offen sc1')
    a('s_waitcnt vmcnt(0)')
    flag_store(a, 's44', T + 6)
    stamp(a, 18)
    g2_ids(a)
    g2_out(a, S, vL, 's24', 0)
    a('s_barrier')
    stamp(a, 19)
    g2_out(a, S, vL, 's24', 1)
    if asmlib.STAMPS:
        a('s_waitcnt vmcnt(0)')
    stamp(a, 20)
    a(f's_branch {L_end}')

    a(f'{L_hf}:')
    a('s_waitcnt vmcnt(0)')
    flag_store(a, 's41', T + 2)
    a(f's_branch {L_hb}')
    a(f'{L_fb}:')
    L1 = a.label('fb1')
    L2 = a.label('fb2')
    a(f'''
    v_lshlrev_b32 {v(T + 13)}, 4, {v(vL)}
    v_lshlrev_b32 {v(T + 7)}, 3, {v(vL)}
    v_mov_b32 {v(T + 14)}, 0
    v_mov_b32 {v(T + 15)}, 0xff800000
    v_cndmask_b32 {v(Q2)}, {v(Q2)}, {v(T + 14)}, {HM}
    v_cndmask_b32 {v(Q2 + 1)}, {v(Q2 + 1)}, {v(T + 14)}, {HM}
    s_mov_b32 s37, {KV_OFF}
    s_mov_b32 s34, 32
    {L1}:
    buffer_load_dwordx4 {v(K1, 4)}, {v(T + 13)}, s[20:23], s37 offen sc1
    buffer_load_dwordx4 {v(K1 + 4, 4)}, {v(T + 13)}, s[20:23], s37 offen offset:1024 sc1
    buffer_load_dwordx2 {v(K2, 2)}, {v(T + 7)}, s[20:23], s37 offen offset:2048 sc1
    buffer_load_dwordx2 {v(K2 + 2, 2)}, {v(T + 7)}, s[20:23], s37 offen offset:2560 sc1
    s_waitcnt vmcnt(0)
    ''')
    for t in range(2):
        a(mfma16(S + 16 * t, K1 + 4 * t, Q1))
    a('s_nop 9')
    for t in range(2):
        a(mfma8(S + 16 * t, K2 + 2 * t, Q2, S + 16 * t))
    a('s_nop 15')
    for i in range(0, 32, 2):
        a(f'v_max3_f32 {v(T + 15)}, {v(T + 15)}, {v(S + i)}, {v(S + i + 1)}')
    a(f'''
    s_add_u32 s37, s37, 7168
    s_sub_u32 s34, s34, 1
    s_cmp_lg_u32 s34, 0
    s_cbranch_scc1 {L1}
    ''')
    cross_half_max(T + 15)
    set_m(T + 15, 0.0)
    for i in range(16):
        a(f'v_mov_b32 {v(O + i)}, 0')
    a(f'''
    s_mov_b32 s37, {KV_OFF}
    s_mov_b32 s34, 64
    {L2}:
    s_and_b32 s38, s34, 1
    s_lshl_b32 s39, s38, 10
    s_add_u32 s39, s39, s37
    s_lshl_b32 s40, s38, 9
    s_add_u32 s40, s40, s37
    s_lshl_b32 s41, s38, 11
    s_add_u32 s41, s41, s37
    s_add_u32 s41, s41, 3072
    buffer_load_dwordx4 {v(K1, 4)}, {v(T + 13)}, s[20:23], s39 offen sc1
    buffer_load_dwordx2 {v(K2, 2)}, {v(T + 7)}, s[20:23], s40 offen offset:2048 sc1
    buffer_load_dwordx4 {v(V1, 4)}, {v(T + 13)}, s[20:23], s41 offen sc1
    buffer_load_dwordx4 {v(V2, 4)}, {v(T + 13)}, s[20:23], s41 offen offset:1024 sc1
    s_waitcnt vmcnt(0)
    {mfma16(S, K1, Q1)}
    s_nop 10
    {mfma8(S, K2, Q2, S)}
    s_nop 15
    ''')
    for i in range(16):
        a(f'v_exp_f32 {v(S + i)}, {v(S + i)}')
    a('s_nop 0')
    for i in range(8):
        a(f'v_cvt_pk_bf16_f32 {v(P + i)}, {v(S + 2 * i)}, {v(S + 2 * i + 1)}')
    a(f'''
    s_nop 1
    {mfma16(O, V1, P, O)}
    {mfma16(O, V2, P + 4, O)}
    s_mul_i32 s38, s38, 7168
    s_add_u32 s37, s37, s38
    s_sub_u32 s34, s34, 1
    s_cmp_lg_u32 s34, 0
    s_cbranch_scc1 {L2}
    s_nop 15
    s_branch {L_out}
    ''')


def g2_ids(a):
    a('''
    s_lshr_b32 s57, s30, 1
    s_and_b32 s58, s30, 1
    s_lshl_b32 s44, s29, 1
    s_add_u32 s59, s44, s58
    s_xor_b32 s60, s59, 1
    s_mul_i32 s44, s57, 320
    s_lshl_b32 s45, s58, 7
    s_add_u32 s61, s44, s45
    ''')


def g2_out(a, T, vL, wsg, part):
    L_skip = a.label('g2o')
    a(f'''
    s_cmp_ge_u32 {wsg}, 10
    s_cbranch_scc1 {L_skip}
    ''')
    if part == 0:
        a(f'''
        s_lshr_b32 s45, {wsg}, 1
        s_and_b32 s46, {wsg}, 1
        s_lshl_b32 s46, s46, 4
        v_lshrrev_b32 {v(T)}, 2, {v(vL)}
        v_add_u32 {v(T)}, s46, {v(T)}
        v_and_b32 {v(T + 1)}, 3, {v(vL)}
        s_and_b32 s47, s45, 1
        s_cmp_eq_u32 s47, 1
        s_cselect_b32 s47, s60, s59
        s_mul_i32 s47, s47, {32 * 1280}
        s_lshr_b32 s48, s45, 1
        s_add_u32 s49, s48, s58
        s_lshl_b32 s49, s49, 6
        s_lshl_b32 s50, s58, 7
        s_sub_u32 s50, 128, s50
        s_cmp_eq_u32 s48, 2
        s_cselect_b32 s49, s50, s49
        s_add_u32 s47, s47, s49
        s_add_u32 s31, s47, s61
        v_mul_u32_u24 {v(T + 6)}, 1280, {v(T)}
        v_lshl_add_u32 {v(T + 6)}, {v(T + 1)}, 4, {v(T + 6)}
        buffer_load_dwordx4 {v(T + 2, 4)}, {v(T + 6)}, s[8:11], s31 offen
        v_lshlrev_b32 {v(T + 1)}, 1, {v(T + 1)}
        v_and_b32 {v(T + 7)}, 7, {v(T)}
        v_xor_b32 {v(T + 1)}, {v(T + 1)}, {v(T + 7)}
        v_lshlrev_b32 {v(T)}, 7, {v(T)}
        v_lshl_add_u32 {v(T)}, {v(T + 1)}, 4, {v(T)}
        s_lshl_b32 s47, s45, 12
        s_add_u32 s48, s47, {G2R - 3 * 4096}
        s_add_u32 s47, s47, {WOA}
        s_cmp_ge_u32 s45, 3
        s_cselect_b32 s47, s48, s47
        v_add_u32 {v(T)}, s47, {v(T)}
        v_xor_b32 {v(T + 1)}, 16, {v(T)}
        ''')
    else:
        for w in range(4):
            a(f'ds_read_b128 {v(T + 8 + 8 * w, 4)}, {v(T)} offset:{12288 * w}')
            a(f'ds_read_b128 {v(T + 12 + 8 * w, 4)}, {v(T + 1)} offset:{12288 * w}')
        a('s_waitcnt vmcnt(0)')
        for i in range(4):
            a(f'''
            v_lshlrev_b32 {v(T + 40 + 2 * i)}, 16, {v(T + 2 + i)}
            v_and_b32 {v(T + 41 + 2 * i)}, 0xffff0000, {v(T + 2 + i)}
            ''')
        a('s_waitcnt lgkmcnt(4)')
        for i in range(0, 8, 2):
            a(f'v_pk_add_f32 {v(T + 8 + i, 2)}, {v(T + 8 + i, 2)}, {v(T + 16 + i, 2)}')
        for i in range(0, 8, 2):
            a(f'v_pk_add_f32 {v(T + 8 + i, 2)}, {v(T + 8 + i, 2)}, {v(T + 40 + i, 2)}')
        a('s_waitcnt lgkmcnt(0)')
        for i in range(0, 8, 2):
            a(f'v_pk_add_f32 {v(T + 24 + i, 2)}, {v(T + 24 + i, 2)}, {v(T + 32 + i, 2)}')
        for i in range(0, 8, 2):
            a(f'v_pk_add_f32 {v(T + 8 + i, 2)}, {v(T + 8 + i, 2)}, {v(T + 24 + i, 2)}')
        for i in range(4):
            a(f'v_cvt_pk_bf16_f32 {v(T + 16 + i)}, {v(T + 8 + 2 * i)}, {v(T + 9 + 2 * i)}')
        a(f'buffer_store_dwordx4 {v(T + 16, 4)}, {v(T + 6)}, s[64:67], s31 offen')
    a(f'{L_skip}:')


def aux_wave(a, vL, vH, vR, L_end, WDP):
    al = Alloc(4, 168)
    T = al('T', 16, 4)
    vXD = al('xd', 2)
    vWD = al('wd')
    vKD = al('kd')
    vKX = al('kx')
    vKW = al('kw')
    XR = al('xr', 10, 2)
    CR = al('cr', 20, 2)
    PF = al('pf', 2)
    AKV = al('akv', 16, 4)
    KXF = al('kxf', 4, 4)
    KWF = al('kwf', 4, 4)
    FX = al('fx', 16, 4)
    RD = al('rd', 48, 4)
    JA = al('ja', 2, 2)
    JS = al('js')
    t0, t1, t2, t3, t4, t5 = T, T + 1, T + 2, T + 3, T + 4, T + 5
    vm = VM()
    a.c('=========== aux wave: phase 1 ===========')
    a(f's_sub_u32 s26, s24, 8\ns_setprio {PRIO1}')
    w_source(a)
    a(f'''
    s_bitcmp1_b32 s28, 2
    s_cselect_b32 s16, s74, s72
    s_cselect_b32 s17, s75, s73
    s_mov_b32 s18, 25600
    s_mov_b32 s19, 0x20000
    s_lshl_b32 s31, s53, 3
    s_lshl_b32 s32, s53, 6
    s_cmp_lt_u32 s28, 8
    s_cselect_b32 s54, 1, 0
    s_cmp_lt_u32 s26, 3
    s_cselect_b32 s40, s54, 0
    s_lshl_b32 s36, s26, 12
    s_mul_i32 s37, s26, 24576
    s_add_u32 s37, s37, {LDS_W}
    s_lshl_b32 s38, s26, 10
    s_add_u32 s38, s38, {LDS_KV}
    ''')
    a(f'''
    v_lshrrev_b32 {v(t0)}, 3, {v(vL)}
    v_and_b32 {v(t1)}, 7, {v(vL)}
    s_lshl_b32 s44, s27, 7
    s_lshl_b32 s45, s26, 5
    s_add_u32 s44, s44, s45
    v_add_u32 {v(t2)}, s44, {v(t0)}
    v_mul_u32_u24 {v(t2)}, 1280, {v(t2)}
    v_lshrrev_b32 {v(t3)}, 1, {v(t0)}
    v_xor_b32 {v(t3)}, {v(t3)}, {v(t1)}
    v_lshl_add_u32 {v(vXD)}, {v(t3)}, 4, {v(t2)}
    v_xor_b32 {v(t3)}, 4, {v(t3)}
    v_lshl_add_u32 {v(vXD + 1)}, {v(t3)}, 4, {v(t2)}
    v_add_u32 {v(vXD + 1)}, {8 * 1280}, {v(vXD + 1)}
    v_mul_lo_u32 {v(t2)}, {v(t0)}, s53
    v_lshrrev_b32 {v(t3)}, 1, {v(t1)}
    v_and_b32 {v(t4)}, 2, {v(t0)}
    v_xor_b32 {v(t3)}, {v(t3)}, {v(t4)}
    s_lshr_b32 s44, s26, 1
    v_xor_b32 {v(t3)}, s44, {v(t3)}
    v_lshl_add_u32 {v(t2)}, {v(t3)}, 5, {v(t2)}
    v_and_b32 {v(t3)}, 1, {v(t1)}
    v_lshl_add_u32 {v(t2)}, {v(t3)}, 4, {v(t2)}
    v_add_u32 {v(vWD)}, s52, {v(t2)}
    s_lshl_b32 s44, s26, 10
    v_lshl_add_u32 {v(vKD)}, {v(vL)}, 4, s44
    ''')

    def dma_group(c, kvonly=False):
        st = c % 3
        lab = a.label('nokv')
        a(f'''
        s_mul_i32 s33, s32, {c}
        s_cmp_eq_u32 s40, 0
        s_cbranch_scc1 {lab}
        s_add_u32 m0, s38, {st * 3072}
        s_mov_b32 s34, {c * 2560}
        buffer_load_dwordx4 {v(vKD)}, s[16:19], s34 offen lds
        {lab}:
        ''')
        vm.add(f'c{c}', 1, optional=True)
        if kvonly or (NODMA and c > 2):
            vm.add(f'c{c}', 1, optional=True)
            return
        for e in range(4):
            a(f'''
            s_add_u32 m0, s36, {LDS_X + st * 16384 + e * 1024}
            s_mov_b32 s34, {c * 128 + (e >> 1) * 16 * 1280}
            buffer_load_dwordx4 {v(vXD + (e & 1))}, s[8:11], s34 offen lds
            ''')
        for e in range(8):
            a(f'''
            s_add_u32 m0, s37, {st * 8192 + e * 1024}
            s_nop 0
            buffer_load_dwordx4 {v(vWD)}, s[12:15], s33 offen lds
            ''')
            if e < 7:
                a('s_add_u32 s33, s33, s31')
        vm.add(f'c{c}', 12)

    dma_group(1)
    if EARLY2:
        dma_group(2)
    a.c('@@AUXSPLIT')

    def jit(c):
        if not JIT or c > 9:
            return
        lab = a.label('nojit')
        a(f'''
        s_cmp_lg_u32 s26, 3
        s_cbranch_scc1 {lab}
        global_load_dword v165, {v(JA, 2)}, off
        v_add_co_u32 {v(JA)}, vcc, {v(JA)}, {v(JS)}
        s_nop 1
        v_addc_co_u32 {v(JA + 1)}, vcc, 0, {v(JA + 1)}, vcc
        {lab}:
        ''')
        vm.add('jit', 1, optional=True)

    if JIT:
        a(f'v_mov_b32 {v(JA)}, s68\nv_mov_b32 {v(JA + 1)}, s69')
        lab = a.label('nojs')
        a(f'''
        s_cmp_lg_u32 s26, 3
        s_cbranch_scc1 {lab}
        s_lshr_b32 s44, s2, 3
        s_and_b32 s45, s44, 7
        s_lshr_b32 s46, s44, 3
        s_lshl_b32 s46, s46, 5
        s_lshl_b32 s47, s27, 7
        s_add_u32 s46, s46, s47
        v_add_u32 {v(t0)}, s46, {v(vR)}
        v_mul_u32_u24 {v(t0)}, 1280, {v(t0)}
        v_add_u32 {v(t0)}, {128 * JIT}, {v(t0)}
        v_bfe_u32 {v(t1)}, {v(vL)}, 3, 1
        v_bfe_u32 {v(t2)}, {v(vL)}, 4, 1
        v_and_b32 {v(t3)}, s48, {v(t1)}
        v_cmp_eq_u32 s[58:59], 1, {v(t3)}
        v_cmp_eq_u32 s[60:61], 1, {v(t2)}
        v_mov_b32 {v(t4)}, 3456
        v_mov_b32 {v(t5)}, 1280
        v_cndmask_b32 {v(t4)}, {v(t4)}, {v(t5)}, s[58:59]
        s_xor_b32 s44, s48, 1
        v_and_b32 {v(t5)}, s44, {v(t1)}
        v_lshlrev_b32 {v(t5)}, 6, {v(t5)}
        v_add_u32 {v(t5)}, s49, {v(t5)}
        v_lshlrev_b32 {v(t3)}, 6, {v(t2)}
        v_add_u32 {v(t3)}, s50, {v(t3)}
        v_cndmask_b32 {v(t5)}, {v(t5)}, {v(t3)}, s[58:59]
        s_lshl_b32 s45, s45, 3
        s_add_u32 s45, s45, {64 * JIT}
        v_and_b32 {v(t3)}, 7, {v(vL)}
        v_add_u32 {v(t3)}, s45, {v(t3)}
        v_mul_lo_u32 {v(t3)}, {v(t3)}, {v(t4)}
        v_lshl_add_u32 {v(t3)}, {v(t5)}, 1, {v(t3)}
        v_cndmask_b32 {v(t0)}, {v(t0)}, {v(t3)}, {HM}
        v_lshlrev_b32 {v(t4)}, 6, {v(t4)}
        v_mov_b32 {v(t5)}, 128
        v_cndmask_b32 {v(JS)}, {v(t5)}, {v(t4)}, {HM}
        ''')
        for z in range(2):
            a(f'''
            v_mov_b32 {v(t1)}, s{80 + z}
            v_mov_b32 {v(t2)}, s{82 + z}
            v_cndmask_b32 {v(t1)}, {v(t1)}, {v(t2)}, s[60:61]
            v_mov_b32 {v(t2)}, s{70 + z}
            v_cndmask_b32 {v(t1)}, {v(t1)}, {v(t2)}, s[58:59]
            v_mov_b32 {v(t2)}, s{68 + z}
            v_cndmask_b32 {v(JA + z)}, {v(t2)}, {v(t1)}, {HM}
            ''')
        a(f'''
        v_add_co_u32 {v(JA)}, vcc, {v(JA)}, {v(t0)}
        s_nop 1
        v_addc_co_u32 {v(JA + 1)}, vcc, 0, {v(JA + 1)}, vcc
        {lab}:
        ''')
        for c in range(JIT, JITD):
            jit(c)
    srd(a, 4, 76, 256)
    lab = a.label('nononce')
    a(f'''
    s_or_b32 s44, s2, s26
    s_cmp_lg_u32 s44, 0
    s_cbranch_scc1 {lab}
    s_memrealtime s[44:45]
    s_waitcnt lgkmcnt(0)
    s_or_b32 s44, s44, 1
    v_mov_b32 {v(t0)}, s44
    s_mov_b64 exec, 1
    buffer_store_dword {v(t0)}, off, s[4:7], 0 sc1
    s_mov_b64 exec, -1
    {lab}:
    ''')
    vm.add('nonce', 1, optional=True)
    a(f'''
    s_and_b32 s56, s28, 3
    v_lshrrev_b32 {v(t0)}, 1, {v(vR)}
    v_and_b32 {v(t0)}, 7, {v(t0)}
    v_xor_b32 {v(t0)}, {v(t0)}, {v(vH)}
    s_lshl_b32 s44, s26, 1
    v_xor_b32 {v(t0)}, s44, {v(t0)}
    v_lshlrev_b32 {v(t3)}, 7, {v(vR)}
    v_lshl_add_u32 {v(t0)}, {v(t0)}, 4, {v(t3)}
    s_lshl_b32 s44, s56, 12
    v_add_u32 {v(vKX)}, s44, {v(t0)}
    v_bfe_u32 {v(t0)}, {v(vL)}, 2, 2
    v_lshl_add_u32 {v(t0)}, {v(vH)}, 3, {v(t0)}
    v_mul_u32_u24 {v(t0)}, 40, {v(t0)}
    v_bfe_u32 {v(t3)}, {v(vL)}, 4, 1
    v_and_b32 {v(t4)}, 3, {v(vL)}
    v_lshl_add_u32 {v(t3)}, {v(t3)}, 2, {v(t4)}
    v_min_u32 {v(t3)}, 4, {v(t3)}
    v_lshl_add_u32 {v(t0)}, {v(t3)}, 3, {v(t0)}
    s_mul_i32 s44, s26, 640
    s_add_u32 s44, s44, {LDS_KV}
    v_add_u32 {v(vKW)}, s44, {v(t0)}
    ''')
    for i in range(16):
        a(f'v_mov_b32 {v(AKV + i)}, 0')

    def colsum(src_tag_wait, store_code):
        a(f's_waitcnt vmcnt({src_tag_wait})')
        a(f'''
        v_lshlrev_b32 {v(t0)}, 16, {v(CR)}
        v_and_b32 {v(t1)}, 0xffff0000, {v(CR)}
        ''')
        for t in range(1, 20):
            a(f'''
            v_lshlrev_b32 {v(t2)}, 16, {v(CR + t)}
            v_and_b32 {v(t3)}, 0xffff0000, {v(CR + t)}
            v_add_f32 {v(t0)}, {v(t0)}, {v(t2)}
            v_add_f32 {v(t1)}, {v(t1)}, {v(t3)}
            ''')
        a(f'''
        s_nop 1
        v_permlane32_swap_b32 {v(t0)}, {v(t1)}
        s_nop 1
        v_add_f32 {v(t0)}, {v(t0)}, {v(t1)}
        v_cvt_pk_bf16_f32 {v(t1)}, {v(t0)}, {v(t0)}
        v_and_b32 {v(t1)}, 0xffff0000, {v(t1)}
        v_sub_f32 {v(t1)}, {v(t0)}, {v(t1)}
        v_cvt_pk_bf16_f32 {v(t0)}, {v(t0)}, {v(t1)}
        ''')
        store_code()

    a('''
    s_lshl_b32 s41, s27, 10
    s_and_b32 s44, s28, 11
    s_cmp_eq_u32 s44, 0
    s_cselect_b32 s42, 1, 0
    s_cmp_eq_u32 s26, 3
    s_cselect_b32 s42, s42, 0
    ''')

    def kv_step(c, part):
        st = c % 3
        lab = a.label('kvs')
        a(f's_cmp_eq_u32 s54, 0\ns_cbranch_scc1 {lab}')
        if part == 0:
            a(f'''
            ds_read_b128 {v(KXF, 4)}, {v(vKX)} offset:{LDS_X + st * 16384}
            ds_read_b64_tr_b16 {v(KWF, 2)}, {v(vKW)} offset:{st * 3072}
            ds_read_b64_tr_b16 {v(KWF + 2, 2)}, {v(vKW)} offset:{st * 3072 + 160}
            ''')
        else:
            a('s_waitcnt lgkmcnt(0)')
            a(mfma16(AKV, KWF, KXF, AKV))
        a(f'{lab}:')

    for c in range(10):
        a.c(f'aux chunk {c}')
        if c == 0:
            stamp(a, 22)
        elif c <= 8:
            a(f's_waitcnt vmcnt({vm.wait(f"c{c}") if c != 5 else min(vm.wait("c5"), vm.wait("st"), vm.wait("nl"))})')
        else:
            a('s_waitcnt vmcnt(0)')
        a('s_barrier')
        if not FEWST or c in (0, 1, 2, 9):
            stamp(a, 1 + c)
        if asmlib.STAMPS:
            vm.add('stamp', 1, optional=True)
        if c == 3:
            a(f'buffer_load_dword {v(PF)}, off, s[4:7], 0 sc1')
            vm.add('nl', 1)
        kv_step(c, 0)
        jit(c + JITD)
        if (1 if EARLY2 else 0) <= c and c + 2 < 10:
            dma_group(c + 2)
        kv_step(c, 1)
        if c == 2:
            lab = a.label('nokvcs')
            a(f'''
            s_cmp_eq_u32 s42, 0
            s_cbranch_scc1 {lab}
            s_mul_i32 s44, s27, 40
            v_add_u32 {v(t1)}, s44, {v(vH)}
            v_mul_u32_u24 {v(t2)}, 40, {v(t1)}
            v_lshl_add_u32 {v(t2)}, {v(vR)}, 2, {v(t2)}
            ''')
            for t in range(20):
                a(f'buffer_load_dword {v(CR + t)}, {v(t2)}, s[16:19], 0 offen offset:{80 * t}')
            a(f'{lab}:')
            vm.add('kcr', 20, optional=True)
        if c == 3:
            lab = a.label('nokvcs2')
            a(f's_cmp_eq_u32 s42, 0\ns_cbranch_scc1 {lab}')

            def kcs_store():
                a(f'''
                v_lshl_add_u32 {v(t1)}, {v(vR)}, 1, {v(vH)}
                v_lshlrev_b32 {v(t2)}, 2, {v(t1)}
                v_mov_b32 {v(t3)}, 0x7f000000
                v_cmp_gt_u32 vcc, 32, {v(t1)}
                s_lshl_b32 s44, s28, 9
                s_lshl_b32 s45, s27, 7
                s_add_u32 s44, s44, s45
                s_add_u32 s44, s44, {CSKVW}
                v_cndmask_b32 {v(t2)}, {v(t3)}, {v(t2)}, vcc
                buffer_store_dword {v(t0)}, {v(t2)}, s[20:23], s44 offen sc1
                ''')
            colsum(vm.wait('kcr'), kcs_store)
            a(f'{lab}:')
            vm.add('st', 1, optional=True)
        if c == 5:
            Lp = a.label('np')
            Lq = a.label('npd')
            Lr = a.label('nokcf')
            a(f'''
            s_mov_b32 s93, {POLL_MAX}
            {Lp}:
            v_readfirstlane_b32 s98, {v(PF)}
            s_cmp_lg_u32 s98, 0
            s_cbranch_scc1 {Lq}
            s_sub_u32 s93, s93, 1
            s_cbranch_scc1 {Lq}
            buffer_load_dword {v(PF)}, off, s[4:7], 0 sc1
            s_waitcnt vmcnt(0)
            s_branch {Lp}
            {Lq}:
            s_xor_b32 s99, s98, {NONCE_X}
            s_lshl_b32 s44, s28, 5
            s_lshl_b32 s45, s27, 3
            s_add_u32 s44, s44, s45
            s_add_u32 s44, s44, {F_KC}
            s_cmp_eq_u32 s42, 0
            s_cbranch_scc1 {Lr}
            ''')
            flag_store(a, 's44', T + 2)
            a(f'{Lr}:')
            vm.add('fl', 1, optional=True)
        if c == 8:
            def p3():
                Lp = a.label('p3')
                Lq = a.label('p3d')
                a(f'''
                v_and_b32 {v(T + 10)}, 0x78, {v(T + 8)}
                s_lshl_b32 s44, s27, 9
                s_add_u32 s44, s44, {F_ST}
                s_lshl_b32 s45, s28, 9
                s_add_u32 s45, s45, {F_CS}
                s_and_b32 s46, s28, 4
                s_lshl_b32 s46, s46, 5
                s_add_u32 s46, s46, {F_KC}
                s_mov_b32 s93, {POLL_MAX}
                {Lp}:
                buffer_load_dwordx2 {v(T, 2)}, {v(T + 8)}, s[20:23], s44 offen sc1
                buffer_load_dwordx2 {v(T + 6, 2)}, {v(T + 8)}, s[20:23], s45 offen sc1
                buffer_load_dwordx2 {v(T + 4, 2)}, {v(T + 10)}, s[20:23], s46 offen sc1
                s_waitcnt vmcnt(0)
                v_cmp_eq_u64 vcc, s[98:99], {v(T, 2)}
                v_cmp_eq_u64 s[58:59], s[98:99], {v(T + 6, 2)}
                v_cmp_eq_u64 s[60:61], s[98:99], {v(T + 4, 2)}
                s_nop 1
                s_and_b64 vcc, vcc, s[58:59]
                s_and_b64 vcc, vcc, s[60:61]
                s_cmp_eq_u64 vcc, -1
                s_cbranch_scc1 {Lq}
                s_sub_u32 s93, s93, 1
                s_cbranch_scc1 {Lq}
                s_sleep 8
                s_branch {Lp}
                {Lq}:
                ''')
            a(f'v_lshlrev_b32 {v(T + 8)}, 3, {v(vL)}')
            one_poller(a, T, 3, p3)
            a(f'''
            v_lshlrev_b32 {v(T + 9)}, 4, {v(vL)}
            s_lshl_b32 s44, s28, 14
            s_lshl_b32 s45, s26, 12
            s_add_u32 s44, s44, s45
            s_add_u32 s44, s44, {CSW}
            ''')
            for e in range(4):
                a(f'''
                s_add_u32 m0, s45, {CS_A + 1024 * e}
                s_nop 0
                buffer_load_dwordx4 {v(T + 9)}, s[20:23], s44 offen{LD} lds
                s_add_u32 s44, s44, 1024
                ''')
            lab = a.label('norc')
            a(f'''
            s_cmp_lg_u32 s26, 0
            s_cbranch_scc1 {lab}
            s_lshl_b32 s44, s27, 11
            s_add_u32 s44, s44, {ROWW}
            s_mov_b32 m0, {ROWC_A}
            s_and_b32 s45, s28, 4
            buffer_load_dwordx4 {v(T + 9)}, s[20:23], s44 offen{LD} lds
            buffer_load_dwordx4 {v(T + 9)}, s[20:23], s44 offen offset:1024{LD} lds
            s_lshl_b32 s45, s45, 9
            s_add_u32 s45, s45, {CSKVW}
            s_mov_b32 m0, {CSKV_A}
            s_nop 0
            buffer_load_dwordx4 {v(T + 9)}, s[20:23], s45 offen{LD} lds
            buffer_load_dwordx4 {v(T + 9)}, s[20:23], s45 offen offset:1024{LD} lds
            {lab}:
            ''')
    lab = a.label('nokvfin')
    lab2 = a.label('nofix')
    a(f'''
    s_cmp_eq_u32 s54, 0
    s_cbranch_scc1 {lab}
    s_cmp_lg_u32 s26, 0
    s_cbranch_scc1 {lab2}
    s_lshl_b32 s44, s56, 9
    s_add_u32 s44, s44, {ROWC_A}
    v_lshl_add_u32 {v(t0)}, {v(vR)}, 4, s44
    v_lshlrev_b32 {v(t1)}, 2, {v(vR)}
    v_lshl_add_u32 {v(t1)}, {v(vH)}, 9, {v(t1)}
    v_add_u32 {v(t1)}, {CSKV_A}, {v(t1)}
    v_add_u32 {v(t2)}, 1024, {v(t1)}
    ds_read_b128 {v(FX, 4)}, {v(t0)}
    ds_read2_b32 {v(FX + 8, 2)}, {v(t1)} offset0:0 offset1:32
    ds_read2_b32 {v(FX + 10, 2)}, {v(t1)} offset0:64 offset1:96
    ds_read2_b32 {v(FX + 12, 2)}, {v(t2)} offset0:0 offset1:32
    ds_read2_b32 {v(FX + 14, 2)}, {v(t2)} offset0:64 offset1:96
    s_waitcnt lgkmcnt(4)
    v_mov_b32 {v(FX + 4)}, {v(FX)}
    v_mov_b32 {v(FX + 5)}, {v(FX)}
    v_mov_b32 {v(FX + 6)}, {v(FX)}
    v_mov_b32 {v(FX + 7)}, {v(FX)}
    s_waitcnt lgkmcnt(0)
    s_nop 1
    {mfma16(AKV, FX + 8, FX + 4, AKV)}
    {mfma16(AKV, FX + 12, FX + 4, AKV)}
    {lab2}:
    s_lshl_b32 s44, s26, 12
    v_add_u32 {v(t0)}, s44, {v(T + 9)}
    s_nop 15
    ''')
    for q in range(3):
        a(f'ds_write_b128 {v(t0)}, {v(AKV + 4 * q, 4)} offset:{PART_A + 1024 * q}')
    a(f'''
    {lab}:
    s_waitcnt lgkmcnt(0)
    ''')
    stamp(a, 11)
    a('s_barrier')
    stamp(a, 12)
    L_p2 = a.label('auxp2')
    L_v = a.label('vepi')
    a(f'''
    s_cmp_eq_u32 s54, 0
    s_cbranch_scc1 {L_p2}
    s_cmp_lg_u32 s26, 0
    s_cbranch_scc1 {L_p2}
    ''')
    for w in range(1, 4):
        for q in range(3):
            a(f'ds_read_b128 {v(RD + 12 * (w - 1) + 4 * q, 4)}, {v(T + 9)} offset:{PART_A + 4096 * w + 1024 * q}')
    a(f'''
    s_lshl_b32 s57, s27, 2
    s_add_u32 s57, s57, s56
    s_lshr_b32 s44, s57, 1
    s_mul_i32 s44, s44, 7168
    s_add_u32 s44, s44, {KV_OFF}
    s_and_b32 s45, s57, 1
    s_and_b32 s58, s28, 4
    s_lshl_b32 s58, s58, 4
    s_add_u32 s58, s58, s57
    s_lshl_b32 s58, s58, 3
    s_add_u32 s58, s58, {F_KV}
    s_waitcnt lgkmcnt(0)
    ''')
    for i in range(0, 12, 2):
        a(f'v_pk_add_f32 {v(AKV + i, 2)}, {v(AKV + i, 2)}, {v(RD + i, 2)}')
        a(f'v_pk_add_f32 {v(RD + 12 + i, 2)}, {v(RD + 12 + i, 2)}, {v(RD + 24 + i, 2)}')
    for i in range(0, 12, 2):
        a(f'v_pk_add_f32 {v(AKV + i, 2)}, {v(AKV + i, 2)}, {v(RD + 12 + i, 2)}')
    for i in range(0, 12, 2):
        a(f'v_pk_mul_f32 {v(AKV + i, 2)}, {v(AKV + i, 2)}, {v(FX, 2)} op_sel:[0,1] op_sel_hi:[1,1]')
    PK = RD
    for i in range(6):
        a(f'v_cvt_pk_bf16_f32 {v(PK + i)}, {v(AKV + 2 * i)}, {v(AKV + 2 * i + 1)}')
    L_kvf = a.label('kvflag')
    a(f'''
    s_bitcmp1_b32 s28, 2
    s_cbranch_scc1 {L_v}
    v_mov_b32 {v(t0)}, 0x3f803f80
    v_mov_b32 {v(t1)}, 0x00003f80
    v_cndmask_b32 {v(PK + 4)}, {v(PK + 4)}, {v(t0)}, {HM}
    v_cndmask_b32 {v(PK + 5)}, {v(PK + 5)}, {v(t1)}, {HM}
    s_lshl_b32 s46, s45, 10
    s_add_u32 s46, s46, s44
    s_lshl_b32 s47, s45, 9
    s_add_u32 s47, s47, s44
    buffer_store_dwordx4 {v(PK, 4)}, {v(T + 9)}, s[20:23], s46 offen sc1
    buffer_store_dwordx2 {v(PK + 4, 2)}, {v(T + 8)}, s[20:23], s47 offen offset:2048 sc1
    s_branch {L_kvf}
    {L_v}:
    v_mov_b32 {v(t0)}, 0
    v_cndmask_b32 {v(PK + 4)}, {v(PK + 4)}, {v(t0)}, {HM}
    v_cndmask_b32 {v(PK + 5)}, {v(PK + 5)}, {v(t0)}, {HM}
    v_mov_b32 {v(PK + 6)}, 0x00003f80
    v_mov_b32 {v(PK + 7)}, 0
    v_lshlrev_b32 {v(t0)}, 6, {v(vR)}
    v_lshl_add_u32 {v(t3)}, {v(vH)}, 4, {v(t0)}
    v_lshl_add_u32 {v(t0)}, {v(vH)}, 3, {v(t0)}
    ds_write_b128 {v(t3)}, {v(PK, 4)} offset:{VT_A}
    ds_write_b64 {v(t0)}, {v(PK + 4, 2)} offset:{VT_A + 32}
    ds_write_b64 {v(t0)}, {v(PK + 6, 2)} offset:{VT_A + 48}
    v_bfe_u32 {v(t1)}, {v(vL)}, 2, 2
    v_lshl_add_u32 {v(t1)}, {v(vH)}, 2, {v(t1)}
    v_lshlrev_b32 {v(t1)}, 6, {v(t1)}
    v_bfe_u32 {v(t2)}, {v(vL)}, 4, 1
    v_lshl_add_u32 {v(t1)}, {v(t2)}, 5, {v(t1)}
    v_and_b32 {v(t2)}, 3, {v(vL)}
    v_lshl_add_u32 {v(t1)}, {v(t2)}, 3, {v(t1)}
    s_waitcnt lgkmcnt(0)
    ds_read_b64_tr_b16 {v(PK + 8, 2)}, {v(t1)} offset:{VT_A}
    ds_read_b64_tr_b16 {v(PK + 10, 2)}, {v(t1)} offset:{VT_A + 512}
    ds_read_b64_tr_b16 {v(PK + 12, 2)}, {v(t1)} offset:{VT_A + 1024}
    ds_read_b64_tr_b16 {v(PK + 14, 2)}, {v(t1)} offset:{VT_A + 1536}
    s_lshl_b32 s46, s45, 11
    s_add_u32 s46, s46, s44
    s_add_u32 s46, s46, 3072
    s_waitcnt lgkmcnt(0)
    buffer_store_dwordx4 {v(PK + 8, 4)}, {v(T + 9)}, s[20:23], s46 offen sc1
    buffer_store_dwordx4 {v(PK + 12, 4)}, {v(T + 9)}, s[20:23], s46 offen offset:1024 sc1
    {L_kvf}:
    s_waitcnt vmcnt(0)
    ''')
    flag_store(a, 's58', T + 2)
    a(f'{L_p2}:')
    stamp(a, 13)

    a.c('=========== aux wave: phase 2 ===========')
    al = Alloc(4, 168)
    T = al('T', 12, 4)
    vWD = al('wd', 3)
    vWA = al('wa', 3)
    vHL = al('hl')
    vKO = al('ko')
    vF8 = al('f8')
    vLO = al('lo')
    vPF = al('pf')
    WF = al('wf', 24, 4)
    ACC = al('acc', 80, 4)
    HF = al('hf', 8 * G2D, 4)
    a(f's_setprio {PRIO2}')
    g2_ids(a)
    srd(a, 12, WDP, 2211840)
    srd(a, 16, 84, 819200)
    a(f'''
    s_mul_i32 s40, s26, {3072 * G2D}
    s_add_u32 s39, s40, {WOA}
    s_add_u32 s40, s40, {G2R}
    s_mul_i32 s44, s26, 27
    s_mul_i32 s41, s59, 108
    s_add_u32 s41, s41, s44
    s_lshl_b32 s41, s41, 10
    s_mul_i32 s42, s60, 108
    s_add_u32 s42, s42, s44
    s_lshl_b32 s42, s42, 10
    s_mul_i32 s43, s44, {16 * 1280}
    s_lshl_b32 s44, s26, 3
    s_mul_i32 s54, s59, 40
    s_add_u32 s54, s54, s44
    s_lshl_b32 s54, s54, 10
    s_add_u32 s54, s54, {OF_OFF}
    s_mul_i32 s55, s60, 40
    s_add_u32 s55, s55, s44
    s_lshl_b32 s55, s55, 10
    s_add_u32 s55, s55, {OF_OFF}
    s_mul_i32 s56, s44, {20 * 1280}
    s_mul_i32 s52, s26, 6144
    s_sub_u32 s52, {24 * 1024}, s52
    s_mov_b32 s45, 0x15556
    v_lshlrev_b32 {v(vHL)}, 4, {v(vL)}
    v_lshlrev_b32 {v(vF8)}, 3, {v(vL)}
    v_lshlrev_b32 {v(vLO)}, 3, {v(vR)}
    v_lshl_add_u32 {v(vLO)}, {v(vH)}, 9, {v(vLO)}
    v_lshlrev_b32 {v(vPF)}, 7, {v(vL)}
    s_lshl_b32 s36, s26, 12
    s_min_u32 s36, s36, 10240
    v_add_u32 {v(vKO)}, s36, {v(vHL)}
    ''')
    for p in range(3):
        a(f'''
        v_add_u32 {v(T)}, {64 * p}, {v(vL)}
        v_mul_lo_u32 {v(T + 1)}, {v(T)}, s45
        v_lshrrev_b32 {v(T + 1)}, 20, {v(T + 1)}
        v_mul_u32_u24 {v(T + 2)}, 12, {v(T + 1)}
        v_sub_u32 {v(T + 2)}, {v(T)}, {v(T + 2)}
        v_mul_u32_u24 {v(T + 1)}, 1280, {v(T + 1)}
        v_lshl_add_u32 {v(T + 1)}, {v(T + 2)}, 4, {v(T + 1)}
        v_add_u32 {v(vWD + p)}, s61, {v(T + 1)}
        ''')
    a(f'''
    v_bfe_u32 {v(T)}, {v(vL)}, 2, 2
    v_lshl_add_u32 {v(T)}, {v(vH)}, 3, {v(T)}
    v_mul_u32_u24 {v(T)}, 192, {v(T)}
    v_bfe_u32 {v(T + 1)}, {v(vL)}, 4, 1
    v_lshl_add_u32 {v(T)}, {v(T + 1)}, 5, {v(T)}
    v_and_b32 {v(T + 1)}, 3, {v(vL)}
    v_lshl_add_u32 {v(T)}, {v(T + 1)}, 3, {v(T)}
    v_add_u32 {v(T)}, s40, {v(T)}
    s_lshl_b32 s44, s58, 6
    s_add_u32 s45, s44, 64
    s_lshl_b32 s46, s58, 7
    s_sub_u32 s46, 128, s46
    v_add_u32 {v(vWA)}, s44, {v(T)}
    v_add_u32 {v(vWA + 1)}, s45, {v(T)}
    v_add_u32 {v(vWA + 2)}, s46, {v(T)}
    ''')
    vm = VM()

    def w_dma(k, base_sgpr, slot):
        srd_, so = ('s[12:15]', 's43') if k < 27 else ('s[16:19]', 's56')
        step = 16 * 1280 if k < 27 else (20 * 1280 if k < 34 else (-(140 - 16) * 1280 if k == 34 else 80 * 1280))
        out = []
        for p in range(3):
            out.append([f's_add_u32 m0, {base_sgpr}, {slot * 3072 + p * 1024}', 's_nop 0',
                        f'buffer_load_dwordx4 {v(vWD + p)}, {srd_}, {so} offen lds'])
        out[2].append(f's_add_u32 {so}, {so}, {step & 0xffffffff}')
        vm.add(f'w{k}', 3)
        return out

    def h_ld(k, reg):
        h0, h1 = ('s41', 's42') if k < 27 else ('s54', 's55')
        out = []
        if k >= 35:
            for e, hs in enumerate((h0, h1)):
                out.append([f'buffer_load_dwordx2 {v(reg + 4 * e, 2)}, {v(vLO)}, s[20:23], {hs} offen{LD}',
                            f'buffer_load_dwordx2 {v(reg + 4 * e + 2, 2)}, {v(vLO)}, s[20:23], {hs} offen offset:256{LD}',
                            f's_add_u32 {hs}, {hs}, 1024'])
            vm.add(f'h{k}', 4)
            return out
        for e, hs in enumerate((h0, h1)):
            out.append([f'buffer_load_dwordx4 {v(reg + 4 * e, 4)}, {v(vHL)}, s[20:23], {hs} offen{LD}',
                        f's_add_u32 {hs}, {hs}, 1024'] + ([f's_add_u32 {hs}, {hs}, s52'] if k == 34 else []))
        vm.add(f'h{k}', 2)
        return out

    def w_reads(k, slot):
        buf = k & 1
        return [f'ds_read_b64_tr_b16 {v(WF + 12 * buf + 4 * b + 2 * t, 2)}, {v(vWA + b)} offset:{slot * 3072 + 768 * t}'
                for b in range(3) for t in range(2)]

    def g_mfmas(k, reg):
        buf = k & 1
        return [mfma16(ACC + 16 * n, WF + 12 * buf + 4 * b, reg + 4 * e, None if k == 0 else ACC + 16 * n)
                for n, (b, e) in enumerate(((0, 0), (0, 1), (1, 0), (1, 1), (2, 0)))]

    def kv_dma(c):
        st = c % NST
        for e in range(4):
            a(f'''
            s_add_u32 m0, s36, {KVR + st * CH_BYTES + e * 1024}
            s_mov_b32 s38, {KV_OFF + c * CH_BYTES + e * 1024}
            buffer_load_dwordx4 {v(vKO)}, s[20:23], s38 offen{LD} lds
            ''')
        vm.add(f'kv{c}', 4)

    for k in range(G2D):
        emit(a, w_dma(k, 's40', k))
    qmask = 0
    for j in range(16):
        for cp in range(4):
            if not (j >= 11 and cp >= 2):
                qmask |= 1 << (j * 4 + cp)
    a(f'''
    s_mov_b32 s50, {qmask & 0xffffffff}
    s_mov_b32 s51, {qmask >> 32}
    s_lshl_b32 s53, s29, 13
    s_add_u32 s53, s53, {F_QH}
    ''')
    Lp, Lq = a.label('pq'), a.label('pqd')
    a(f'''
    s_lshr_b32 s44, s30, 2
    s_lshl_b32 s45, s29, 1
    s_add_u32 s44, s44, s45
    s_mul_i32 s44, s44, 40960
    s_and_b32 s45, s30, 3
    s_mul_i32 s45, s45, 10240
    s_add_u32 s44, s44, s45
    s_add_u32 s44, s44, {QF_OFF}
    s_cmp_lg_u32 s26, 3
    s_cbranch_scc1 {Lq}
    s_andn2_b64 exec, exec, s[50:51]
    ''')
    poll(a, T + 4, vPF, 's53', ignore='s[50:51]')
    a(f's_mov_b64 exec, -1')
    for z in range(3):
        a(f's_mov_b32 m0, {Q_A + 4096 * z}')
        a('s_nop 0' if z == 0 else 's_add_u32 s44, s44, 4096')
        for y in range(4 if z < 2 else 2):
            a(f'buffer_load_dwordx4 {v(vHL)}, s[20:23], s44 offen offset:{1024 * y} lds')
    a(f'{Lq}:')
    stamp(a, 14)

    def kv_poll():
        a(f's_mov_b32 s45, {F_KV}\ns_sleep {KVSL}')
        poll(a, T + 4, vHL, 's45', wide=True, sleep=12)
    one_poller(a, T, 0, kv_poll, who=2)
    vm.drain()
    stamp(a, 15)
    kv_dma(0)
    kv_dma(1)
    kv_dma(2)

    def prefetch(kind, b=0):
        if NOPF2:
            return
        n = {'wd': 45, 'wo': 50, 'h': 54}[kind]
        if kind == 'wd':
            a(f'''
            s_lshr_b32 s44, s2, 6
            s_mul_i32 s44, s44, {432 * 1280}
            s_bfe_u32 s45, s2, 0x30003
            s_mul_i32 s45, s45, {180 * 128}
            s_add_u32 s44, s44, s45
            s_mul_i32 s45, s26, {45 * 128}
            s_add_u32 s44, s44, s45
            s_add_u32 s44, s44, {144 * 1280 * b}
            ''')
            r = 's[12:15]'
        elif kind == 'wo':
            a(f'''
            s_lshr_b32 s44, s2, 3
            s_mul_i32 s44, s44, {200 * 128}
            s_mul_i32 s45, s26, {50 * 128}
            s_add_u32 s44, s44, s45
            ''')
            r = 's[16:19]'
        else:
            a(f'''
            s_mul_i32 s44, s29, {216 * 1024}
            s_lshl_b32 s45, s30, 2
            s_add_u32 s45, s45, s26
            s_mul_i32 s45, s45, {54 * 128}
            s_add_u32 s44, s44, s45
            ''')
            r = 's[20:23]'
        m = (1 << n) - 1
        a(f'''
        s_mov_b32 exec_hi, {m >> 32}
        buffer_load_dword v165, {v(vPF)}, {r}, s44 offen
        s_mov_b32 exec_hi, -1
        ''')
        vm.add('pf', 1)
    a(f's_waitcnt vmcnt({vm.wait("kv0")})')
    a('s_barrier')
    stamp(a, 16)
    sched = {}
    kk = 0
    nint = 14 - G2_START
    for n in range(G2_START, 14):
        cnt = -(-(27 - kk) // (14 - n))
        sched[n] = list(range(kk, min(27, kk + cnt)))
        kk += cnt
    assert kk >= 27
    wo_slot = lambda k: (('s40', (k - 27)) if k - 27 < 4 else ('s39', (k - 27 - 4))) if k - 27 < 8 else ('s40', k - 27 - 8)

    def down_step(k):
        if k == 0:
            emit(a, w_reads(0, 0))
        if k + 1 < 27:
            a(f's_waitcnt vmcnt({min(vm.wait(f"w{k + 1}"), vm.wait(f"h{k}"))}) lgkmcnt(0)')
            rd = w_reads(k + 1, (k + 1) % G2D)
        else:
            a(f's_waitcnt vmcnt({vm.wait(f"h{k}")}) lgkmcnt(0)')
            rd = []
        ms = g_mfmas(k, HF + 8 * (k % G2D))
        nx = k + G2D
        wd_ = w_dma(nx, 's40', nx % G2D) if nx < 27 else [[], [], []]
        hl_ = h_ld(nx, HF + 8 * (nx % G2D)) if nx < 27 else [[], []]
        if NODOWN:
            ms = ['s_nop 0'] * 5
        a(ms[0]); emit(a, rd[0:2]); emit(a, [wd_[0]]); a(SPACE)
        a(ms[1]); emit(a, rd[2:4]); emit(a, [wd_[1]]); a(SPACE)
        a(ms[3]); emit(a, rd[4:6]); emit(a, [wd_[2]]); a(SPACE)
        a(ms[2]); emit(a, [hl_[1]]); a(SPACE)
        a(ms[4]); emit(a, [hl_[0]]); a(SPACE)

    for c in range(16):
        a.c(f'aux B{c}')
        if c + 1 < 16:
            a(f's_waitcnt vmcnt({vm.wait(f"kv{c + 1}")})')
        if IST and c in IST_LIST:
            stamp(a, 23 + 2 * IST_LIST.index(c))
        a('s_barrier')
        if IST and c in IST_LIST:
            stamp(a, 24 + 2 * IST_LIST.index(c))
        if c + 3 < 16:
            kv_dma(c + 3)
        if c in (0, 1, 3):
            prefetch('wd', (0, 1, 3).index(c))
        if c == 9:
            prefetch('wo')
        if c == G2_START - 1:
            one_poller(a, T, 1, lambda: poll(a, T + 4, vPF, 's53'))
            prefetch('h')
            for k in range(G2D):
                emit(a, h_ld(k, HF + 8 * k))
            vm.ops = [(f'w{k}', False) for k in range(G2D)] + vm.ops
        for k in sched.get(c, []):
            if not NOG2:
                down_step(k)
        if c == 14:
            stamp(a, 17)
            for k in range(27, 35):
                b_, sl = wo_slot(k)
                emit(a, w_dma(k, b_, sl))
    a(f's_waitcnt vmcnt({vm.wait("w28")})')
    emit(a, w_reads(27, 0))
    emit(a, w_reads(28, 1))
    a('s_waitcnt lgkmcnt(0)')
    a('s_mov_b32 s45, 0x15556')
    for p in range(3):
        a(f'''
        v_add_u32 {v(T)}, {64 * p}, {v(vL)}
        v_mul_lo_u32 {v(T + 1)}, {v(T)}, s45
        v_lshrrev_b32 {v(T + 1)}, 22, {v(T + 1)}
        v_mul_u32_u24 {v(T + 1)}, {16 * 1280}, {v(T + 1)}
        v_add_u32 {v(vWD + p)}, {v(vWD + p)}, {v(T + 1)}
        ''')
    for k in (35, 36):
        b_, sl = wo_slot(k)
        emit(a, w_dma(k, b_, sl))
    a(f'''
    s_lshl_b32 s44, s29, 13
    s_add_u32 s44, s44, {F_O}
    ''')
    XO = HF + 24
    stamp(a, 18)
    a('s_waitcnt vmcnt(0)')
    one_poller(a, T, 2, lambda: poll(a, T + 4, vPF, 's44'))
    vm.drain()
    stamp(a, 19)
    OD = G2D
    for k in range(27, 27 + OD):
        emit(a, h_ld(k, HF + 8 * ((k - 27) % OD)))
    a(f'''
    v_and_b32 {v(T)}, 7, {v(vR)}
    v_xor_b32 {v(T)}, {v(T)}, {v(vH)}
    v_lshlrev_b32 {v(T + 1)}, 7, {v(vR)}
    v_add_u32 {v(T + 1)}, s39, {v(T + 1)}
    ''')
    for jp in range(4):
        a(f'''
        v_xor_b32 {v(T + 2)}, {2 * jp}, {v(T)}
        v_lshl_add_u32 {v(T + 4 + jp)}, {v(T + 2)}, 4, {v(T + 1)}
        v_add_u32 {v(T + 8 + jp)}, {G2R - WOA}, {v(T + 4 + jp)}
        ''')
    for k in range(27, 37):
        reg = HF + 8 * ((k - 27) % OD)
        a(f's_waitcnt vmcnt({vm.wait(f"h{k}")}) lgkmcnt({6 if k > 27 and k + 1 < 37 else 0})')
        emit(a, g_mfmas(k, reg))
        if k + 2 < 37:
            kn = k + 2
            if kn - 27 == 4:
                for b in range(3):
                    a(f'v_subrev_u32 {v(vWA + b)}, {G2R - WOA}, {v(vWA + b)}')
            if kn - 27 == 8:
                for b in range(3):
                    a(f'v_add_u32 {v(vWA + b)}, {G2R - WOA}, {v(vWA + b)}')
            emit(a, w_reads(kn, wo_slot(kn)[1]))
        if k + OD < 37:
            emit(a, h_ld(k + OD, reg))
        if k == 34:
            g2_out(a, XO, vL, 's24', 0)
            vm.add('x', 1, optional=True)
    a('s_nop 7')
    stamp(a, 20)
    for n in range(5):
        for jp in range(4):
            a(f'ds_write_b128 {v(T + 4 + jp + (4 if n >= 3 else 0))}, {v(ACC + 16 * n + 4 * jp, 4)} offset:{4096 * (n if n < 3 else n - 3)}')
    a('s_waitcnt vmcnt(0) lgkmcnt(0)')
    a('s_barrier')
    stamp(a, 21)
    for i in range(8):
        a(f'v_mov_b32 {v(ACC + i)}, {v(XO + i)}')
    g2_out(a, ACC, vL, 's24', 1)


def build(path):
    hdr = open('parallel_sum__grouped_kv_mqa__geglu_ffn__prompt.s.ref').read().split('; Override launch')[0]
    out = hdr + f'; @launch grid=(256,1,1) block=(768,1,1) lds={LDS_TOTAL}\n'
    out += '.amdgcn_target "amdgcn-amd-amdhsa--gfx950"\n'
    out += gen()
    out += kernel_desc(KNAME, 168)
    open(path, 'w').write(out)


if __name__ == '__main__':
    import sys
    if len(sys.argv) > 2 and sys.argv[2] == 'stamp':
        asmlib.STAMPS = True
    build(sys.argv[1])
```

```python
from asmlib import *
import asmlib
import math
import os

KNAME = 'parallel_sum__grouped_kv_mqa__geglu_ffn__prompt_kernel'

H_OFF = 0
QF_OFF = 0x700000
KV_OFF = 0xA00000
OF_OFF = 0xB00000
FL_OFF = 0xE00000
F_ST = 0x1200000
F_CS = 0x1220000
F_KV = 0x1240000
F_KC = 0x1248000
F_W2 = 0x1250000
F_QH = 0xE80000
ROWW = 0xE10000
CSW = 0xE20000
CSKVW = 0xE60000
W2F = 0xF00000
WS_USED = 0x1260000

LDS_X = 0
LDS_W = 49152
LDS_KV = 147456
CS_A = 16384
PART_A = 32768
VT_A = 0
ROWC_A = 156672
CSKV_A = 158720
NONCE_A = 160768
RDY_A = 160800
LDS_TOTAL = 163840
CH_BYTES = 14336
NST = 4
KVR = 49152
Q_A = KVR + 3 * CH_BYTES
G2R = KVR + CH_BYTES * NST
G2D = 3
TW_A = G2R
OL_A = KVR
WO_HI = 106496
WOA = 0
RED_A = 0

C0 = -2.0 * math.sqrt(2.0 / math.pi) * math.log2(math.e)
C1 = C0 * 0.044715
QSC = math.log2(math.e) / math.sqrt(20.0)
M_OFFSET = 90.0
POLL_MAX = 400000
NONCE_X = 0x5a5a5a5a

HM = 's[62:63]'
PFWAIT = False
ENV = os.environ
NODOWN = ENV.get('NODOWN')
PRIO2 = int(ENV.get('PRIO2', '3'))
PRIO1 = int(ENV.get('PRIO1', '3'))
SPACE = ENV.get('SPACE', 's_nop 7')
NOPF = not ENV.get('PF')
INV = int(ENV.get('INV', '0'))
NOG2 = ENV.get('NOG2')
P1PF = int(ENV.get('P1PF', '0'))
PFC = tuple(int(x) for x in ENV.get('PFC', '2,3,4').split(','))
WDC = int(ENV.get('WDC', '3'))
WOC = int(ENV.get('WOC', '4'))
TWC = int(ENV.get('TWC', '1'))
DPOLL2 = 0
OSLEEP = int(ENV.get('OSLEEP', '3'))
OPOLL_MAX = 200000
LINPF = int(ENV.get('LINPF', '0'))
NOSL = ENV.get('NOSL')
PF0 = int(ENV.get('PF0', '0'))
JIT = int(ENV.get('JIT', '0'))
JITD = int(ENV.get('JITD', '4'))
SLC = int(ENV.get('SLC', '1'))
SLG = int(ENV.get('SLG', '2'))
EARLY2 = int(ENV.get('EARLY2', '0'))
CWARM = int(ENV.get('CWARM', '1'))
KVSL = int(ENV.get('KVSL', '8'))
HEARLY = ENV.get('HEARLY')
PSLEEP = int(ENV.get('PSLEEP', '2'))
NOPF2 = not ENV.get('PF2')
CV = int(ENV.get('CV', '0'))
NODMA = ENV.get('NODMA')
IST = ENV.get('IST')
LD = ' sc1' if ENV.get('SC1LD') else ''
FEWST = ENV.get('FEWST')
IST_LIST = tuple(int(x) for x in os.environ.get('ISTL', '1,2,6,7').split(','))
HFLAG_T = int(os.environ.get('HFT', '8'))
G2_START = int(os.environ.get('G2S', '6'))
G2_END = int(os.environ.get('G2E', '15'))


class VM:
    def __init__(self):
        self.ops = []

    def add(self, tag, n=1, optional=False):
        for _ in range(n):
            self.ops.append((tag, optional))

    def wait(self, tag):
        idx = max(i for i, (t, o) in enumerate(self.ops) if t == tag)
        n = sum(1 for t, o in self.ops[idx + 1:] if not o)
        assert n <= 63, n
        return n

    def drain(self):
        self.ops = []


def emit(a, bundles):
    for b in bundles:
        a(b if isinstance(b, str) else '\n'.join(b))


def flag_store(a, soff_reg, vt):
    a(f'''
    v_mov_b32 {v(vt)}, s98
    v_mov_b32 {v(vt + 1)}, s99
    s_mov_b64 exec, 1
    buffer_store_dwordx2 {v(vt, 2)}, off, s[20:23], {soff_reg} sc1
    s_mov_b64 exec, -1
    ''')


def poll(a, vt, voff, soff_reg, wide=False, ignore=None, inv=True, sleep=None):
    L = a.label('poll')
    Ld = a.label('polld')
    a(f's_mov_b32 s93, {POLL_MAX}')
    a(f'{L}:')
    if wide:
        a(f'''
        buffer_load_dwordx4 {v(vt, 4)}, {v(voff)}, s[20:23], {soff_reg} offen sc1
        s_waitcnt vmcnt(0)
        v_cmp_eq_u64 vcc, s[98:99], {v(vt, 2)}
        v_cmp_eq_u64 s[46:47], s[98:99], {v(vt + 2, 2)}
        s_nop 1
        s_and_b64 vcc, vcc, s[46:47]
        ''')
    else:
        a(f'''
        buffer_load_dwordx2 {v(vt, 2)}, {v(voff)}, s[20:23], {soff_reg} offen sc1
        s_waitcnt vmcnt(0)
        v_cmp_eq_u64 vcc, s[98:99], {v(vt, 2)}
        s_nop 1
        ''')
    if ignore:
        a(f's_or_b64 vcc, vcc, {ignore}')
    a(f'''
    s_cmp_eq_u64 vcc, -1
    s_cbranch_scc1 {Ld}
    s_sub_u32 s93, s93, 1
    s_cbranch_scc1 {Ld}
    s_sleep {sleep or PSLEEP}
    s_branch {L}
    {Ld}:
    ''')
    if inv and INV:
        a('buffer_inv sc1\ns_waitcnt vmcnt(0)')


def polln(a, vt, voff, rows, sleep):
    L = a.label('poll')
    Ld = a.label('polld')
    a(f's_mov_b32 s93, {POLL_MAX}\n{L}:')
    for q, (so, ig) in enumerate(rows):
        a(f'buffer_load_dwordx2 {v(vt + 2 * q, 2)}, {v(voff[q] if isinstance(voff, list) else voff)}, s[20:23], {so} offen sc1')
    a('s_waitcnt vmcnt(0)')
    dst = ['vcc', 's[46:47]', 's[48:49]']
    for q in range(len(rows)):
        a(f'v_cmp_eq_u64 {dst[q]}, s[98:99], {v(vt + 2 * q, 2)}')
    a('s_nop 1')
    for q, (so, ig) in enumerate(rows):
        if ig:
            a(f's_or_b64 {dst[q]}, {dst[q]}, {ig}')
        if q:
            a(f's_and_b64 vcc, vcc, {dst[q]}')
    a(f'''
    s_cmp_eq_u64 vcc, -1
    s_cbranch_scc1 {Ld}
    s_sub_u32 s93, s93, 1
    s_cbranch_scc1 {Ld}
    s_sleep {sleep}
    s_branch {L}
    {Ld}:
    ''')


def one_poller(a, vt, word, body, who=3):
    Lw, Ld, Ls = a.label('opw'), a.label('opd'), a.label('ops')
    a(f'''
    v_mov_b32 {v(vt + 3)}, {RDY_A + 4 * word}
    s_cmp_lg_u32 s26, {who}
    s_cbranch_scc1 {Lw}
    ''')
    body()
    a(f'''
    v_mov_b32 {v(vt + 2)}, s98
    ds_write_b32 {v(vt + 3)}, {v(vt + 2)}
    s_branch {Ld}
    {Lw}:
    s_mov_b32 s93, {POLL_MAX * 8}
    {Ls}:
    ds_read_b32 {v(vt + 2)}, {v(vt + 3)}
    s_waitcnt lgkmcnt(0)
    v_readfirstlane_b32 s46, {v(vt + 2)}
    s_cmp_eq_u32 s46, s98
    s_cbranch_scc1 {Ld}
    s_sub_u32 s93, s93, 1
    s_cbranch_scc1 {Ld}
    s_sleep 1
    s_branch {Ls}
    {Ld}:
    ''')


def bstamp(a, first=False):
    if not (asmlib.STAMPS and ENV.get('BST')):
        return
    if first:
        a('s_add_u32 s101, s92, 0xC0000')
    a('''
    s_memrealtime s[94:95]
    s_memtime s[96:97]
    s_waitcnt lgkmcnt(0)
    v_mov_b32 v166, s94
    v_mov_b32 v167, s96
    buffer_store_dwordx2 v[166:167], off, s[88:91], s101
    s_add_u32 s101, s101, 8
    ''')


def srd(a, base, ptr, size):
    a(f'''
    s_mov_b32 s{base}, s{ptr}
    s_mov_b32 s{base + 1}, s{ptr + 1}
    s_mov_b32 s{base + 2}, {size}
    s_mov_b32 s{base + 3}, 0x20000
    ''')


def w_source(a):
    a('''
    s_and_b32 s44, s26, 1
    s_and_b32 s51, s44, s48
    s_lshr_b32 s45, s26, 1
    s_lshl_b32 s46, s44, 6
    s_add_u32 s46, s46, s49
    s_cmp_eq_u32 s48, 1
    s_cselect_b32 s46, s49, s46
    s_lshl_b32 s47, s45, 6
    s_add_u32 s47, s47, s50
    s_cmp_eq_u32 s51, 1
    s_cselect_b32 s52, s47, s46
    s_lshl_b32 s52, s52, 1
    s_cmp_eq_u32 s45, 1
    s_cselect_b32 s12, s82, s80
    s_cselect_b32 s13, s83, s81
    s_mov_b32 s14, 2211840
    s_mov_b32 s53, 3456
    s_cmp_eq_u32 s51, 1
    s_cselect_b32 s12, s70, s12
    s_cselect_b32 s13, s71, s13
    s_cselect_b32 s14, 819200, s14
    s_cselect_b32 s53, 1280, s53
    s_mov_b32 s15, 0x20000
    ''')


def tile_offs(t):
    p, o = t >> 1, t & 1
    b = p * 7168
    return b + o * 1024, b + 2048, b + 3072 + o * 2048, b + 4096 + o * 2048


def gen():
    a = Asm()
    a(kernel_head(KNAME))
    stamp_early(a)
    vL, vH, vR = 1, 2, 3
    L_end = a.label('end')
    L_aux = a.label('aux')
    a(f'''
    s_cmp_ge_u32 s2, 256
    s_cbranch_scc1 {L_end}
    s_load_dwordx8 s[68:75], s[0:1], 0
    s_load_dwordx4 s[80:83], s[0:1], 48
    s_load_dwordx4 s[76:79], s[0:1], 80
    s_load_dwordx2 s[84:85], s[0:1], 32
    s_load_dwordx4 s[88:91], s[0:1], 64
    v_lshrrev_b32 v4, 6, v0
    v_and_b32 {v(vL)}, 63, v0
    v_readfirstlane_b32 s24, v4
    v_lshrrev_b32 {v(vH)}, 5, {v(vL)}
    v_and_b32 {v(vR)}, 31, {v(vL)}
    ''')
    if CWARM:
        Lw, Lp = a.label('nowarm'), a.label('pc')
        a(f'''
        s_cmp_lg_u32 s24, 11
        s_cbranch_scc1 {Lw}
        s_getpc_b64 s[4:5]
        {Lp}:
        s_bfe_u32 s44, s2, 0x30003
        s_lshl_b32 s44, s44, 13
        v_lshl_add_u32 v4, {v(vL)}, 7, s44
        v_min_u32 v4, {L_end}-{Lp}, v4
        global_load_dword v165, v4, s[4:5]
        {Lw}:
        ''')
    a(f'''
    s_and_b32 s44, s2, 7
    s_lshr_b32 s45, s2, 3
    s_and_b32 s46, s44, 1
    s_lshl_b32 s46, s46, 3
    s_and_b32 s47, s45, 7
    s_add_u32 s27, s46, s47
    s_lshr_b32 s46, s44, 1
    s_lshl_b32 s46, s46, 2
    s_lshr_b32 s47, s45, 3
    s_add_u32 s28, s46, s47
    s_mov_b32 s62, 0
    s_mov_b32 s63, -1
    s_cmp_ge_u32 s28, 11
    s_cselect_b32 s48, 1, 0
    s_sub_u32 s44, s28, 11
    s_lshl_b32 s45, s44, 6
    s_add_u32 s45, s45, 1408
    s_lshl_b32 s46, s28, 7
    s_lshl_b32 s50, s44, 7
    s_cmp_eq_u32 s48, 1
    s_cselect_b32 s49, s45, s46
    ''')
    a(f'''
    s_and_b32 s44, s2, 7
    s_lshr_b32 s45, s2, 3
    s_lshl_b32 s44, s44, 2
    s_and_b32 s46, s45, 3
    s_add_u32 s29, s44, s46
    s_lshr_b32 s30, s45, 2
    s_waitcnt lgkmcnt(0)
    ''')
    srd(a, 8, 68, 2621440)
    srd(a, 20, 78, WS_USED)
    srd(a, 64, 90, 2621440)
    if asmlib.STAMPS:
        a('s_mov_b32 s86, s88\ns_mov_b32 s87, s89')
    WDP = 86 if asmlib.STAMPS else 88
    if asmlib.STAMPS:
        a(f'''
        s_mov_b32 s88, s78
        s_mov_b32 s89, s79
        s_mov_b32 s90, 0x2000000
        s_mov_b32 s91, 0x20000
        s_mul_i32 s92, s2, 12
        s_add_u32 s92, s92, s24
        s_lshl_b32 s92, s92, 8
        s_add_u32 s92, s92, {asmlib.STAMP_OFF}
        ''')
    stamp(a, 0, early=True)
    a(f'''
    s_cmp_ge_u32 s24, 8
    s_cbranch_scc1 {L_aux}
    ''')
    L_c = a.label('cstart')
    L_aux2 = a.label('aux2')
    a.lines.pop()
    a.lines.pop()
    a(f'''
    s_cmp_lt_u32 s24, 8
    s_cbranch_scc1 {L_c}
    ''')
    b = Asm()
    b.uid = 5000
    aux_wave(b, vL, vH, vR, L_end, WDP)
    cut = b.lines.index('    ; @@AUXSPLIT')
    a.lines += b.lines[:cut]
    a(f's_branch {L_aux2}')
    a(f'{L_c}:')
    compute_wave(a, vL, vH, vR, L_end)
    a(f'{L_aux2}:')
    a.lines += b.lines[cut:]
    a(f'''
    {L_end}:
    s_endpgm
    ''')
    return a.text()


def compute_wave(a, vL, vH, vR, L_end):
    al = Alloc(4, 168)
    T = al('T', 8, 4)
    ACC = al('acc', 64, 4)
    XF = al('xf', 16, 4)
    WF = al('wf', 16, 4)
    vXA = al('xa', 4)
    vWA = al('wa', 2)
    p1_end = al.p
    t0, t1, t2, t3, t4 = T, T + 1, T + 2, T + 3, T + 4
    g1, kap, fq = T + 5, T + 6, T + 7
    a.c('=========== compute wave: phase 1 ===========')
    a('''
    s_and_b32 s25, s24, 1
    s_lshr_b32 s26, s24, 1
    ''')
    w_source(a)
    a(f'''
    v_lshrrev_b32 {v(t0)}, 3, {v(vL)}
    v_and_b32 {v(t1)}, 7, {v(vL)}
    s_lshl_b32 s44, s27, 7
    s_lshl_b32 s45, s24, 4
    s_add_u32 s44, s44, s45
    v_add_u32 {v(t2)}, s44, {v(t0)}
    v_mul_u32_u24 {v(t2)}, 1280, {v(t2)}
    v_lshrrev_b32 {v(t3)}, 1, {v(t0)}
    v_xor_b32 {v(t3)}, {v(t3)}, {v(t1)}
    v_lshl_add_u32 {v(XF)}, {v(t3)}, 4, {v(t2)}
    s_lshl_b32 m0, s24, 11
    v_xor_b32 {v(t3)}, 4, {v(t3)}
    buffer_load_dwordx4 {v(XF)}, s[8:11], 0 offen lds
    v_lshl_add_u32 {v(XF + 1)}, {v(t3)}, 4, {v(t2)}
    s_add_u32 m0, m0, 1024
    s_mov_b32 s34, {8 * 1280}
    buffer_load_dwordx4 {v(XF + 1)}, s[8:11], s34 offen lds
    v_mul_lo_u32 {v(t2)}, {v(t0)}, s53
    v_lshrrev_b32 {v(t3)}, 1, {v(t1)}
    v_and_b32 {v(t4)}, 2, {v(t0)}
    v_xor_b32 {v(t3)}, {v(t3)}, {v(t4)}
    s_lshr_b32 s44, s26, 1
    v_xor_b32 {v(t3)}, s44, {v(t3)}
    v_lshl_add_u32 {v(t2)}, {v(t3)}, 5, {v(t2)}
    v_and_b32 {v(t3)}, 1, {v(t1)}
    v_lshl_add_u32 {v(XF + 2)}, {v(t3)}, 4, {v(t2)}
    s_mul_i32 s37, s26, 24576
    s_lshl_b32 s44, s25, 12
    s_add_u32 s37, s37, s44
    s_lshl_b32 s31, s53, 3
    s_lshl_b32 s33, s53, 5
    s_mul_i32 s33, s33, s25
    s_add_u32 s33, s33, s52
    ''')
    for e in range(4):
        a(f'''
        s_add_u32 m0, s37, {LDS_W + 1024 * e}
        s_nop 0
        buffer_load_dwordx4 {v(XF + 2)}, s[12:15], s33 offen lds
        s_add_u32 s33, s33, s31
        ''')
    lab0 = a.label('c0kv')
    a(f'''
    s_cmp_ge_u32 s28, 8
    s_cbranch_scc1 {lab0}
    s_cmp_ge_u32 s24, 3
    s_cbranch_scc1 {lab0}
    s_bitcmp1_b32 s28, 2
    s_cselect_b32 s16, s74, s72
    s_cselect_b32 s17, s75, s73
    s_mov_b32 s18, 25600
    s_mov_b32 s19, 0x20000
    s_lshl_b32 s44, s24, 10
    s_add_u32 m0, s44, {LDS_KV}
    v_lshlrev_b32 {v(XF + 3)}, 4, {v(vL)}
    buffer_load_dwordx4 {v(XF + 3)}, s[16:19], s44 offen lds
    {lab0}:
    ''')
    if LINPF:
        a(f'''
        s_lshl_b32 s44, s2, 3
        s_add_u32 s44, s44, s24
        s_mov_b32 s40, s68
        s_mov_b32 s41, s69
        s_mov_b32 s42, 2621440
        s_mov_b32 s45, s44
        s_sub_u32 s46, s44, 640
        s_cmp_ge_u32 s44, 640
        s_cselect_b32 s40, s80, s40
        s_cselect_b32 s41, s81, s41
        s_cselect_b32 s42, 2211840, s42
        s_cselect_b32 s45, s46, s45
        s_sub_u32 s46, s44, 1180
        s_cmp_ge_u32 s44, 1180
        s_cselect_b32 s40, s82, s40
        s_cselect_b32 s41, s83, s41
        s_cselect_b32 s45, s46, s45
        s_sub_u32 s46, s44, 1720
        s_cmp_ge_u32 s44, 1720
        s_cselect_b32 s40, s70, s40
        s_cselect_b32 s41, s71, s41
        s_cselect_b32 s42, 819200, s42
        s_cselect_b32 s45, s46, s45
        s_mov_b32 s43, 0x20000
        s_lshl_b32 s45, s45, 12
        s_mov_b32 m0, {ROWC_A}
        v_lshlrev_b32 {v(XF + 4)}, 4, {v(vL)}
        ''')
        a(f'v_mov_b32 v164, {v(XF + 4)}\ns_mov_b32 s39, s45')
        linpf = [f'buffer_load_dwordx4 v164, s[40:43], s39 offen offset:{1024 * e} lds' for e in range(4)]
        if LINPF == 1:
            emit(a, linpf)
    if PF0:
        lab1, lab2 = a.label('pfx'), a.label('pfd')
        a(f'''
        s_lshr_b32 s44, s2, 3
        s_and_b32 s45, s44, 7
        s_lshr_b32 s46, s44, 3
        s_cmp_eq_u32 s25, 1
        s_cbranch_scc1 {lab1}
        v_mul_lo_u32 {v(t4)}, {v(vL)}, s53
        s_add_u32 s45, s45, 2
        s_lshl_b32 s44, s53, 6
        s_mul_i32 s45, s45, s44
        s_add_u32 s45, s45, s52
        buffer_load_dword v165, {v(t4)}, s[12:15], s45 offen
        s_branch {lab2}
        {lab1}:
        s_lshl_b32 s47, s27, 7
        s_lshl_b32 s34, s26, 5
        s_add_u32 s47, s47, s34
        v_add_u32 {v(t3)}, s47, {v(vR)}
        v_mul_u32_u24 {v(t3)}, 1280, {v(t3)}
        v_lshl_add_u32 {v(t3)}, {v(vH)}, 7, {v(t3)}
        s_lshl_b32 s46, s46, 8
        s_add_u32 s46, s46, 256
        buffer_load_dword v165, {v(t3)}, s[8:11], s46 offen
        {lab2}:
        ''')
    CR = 120
    XR = 120
    U = 140
    u0, u1, u2, u3, u4, u5 = range(U, U + 6)
    W4 = U + 8
    vN = U + 12
    srd(a, 4, 76, 256)

    a(f'''
    s_lshr_b32 s44, s30, 2
    s_lshl_b32 s31, s29, 1
    s_add_u32 s31, s31, s44
    s_and_b32 s44, s30, 3
    s_lshl_b32 s44, s44, 3
    s_add_u32 s33, s44, s24
    s_mul_i32 s37, s31, 40960
    s_add_u32 s37, s37, {OF_OFF}
    s_lshl_b32 s36, s33, 10
    s_add_u32 s36, s36, s37
    s_lshl_b32 s44, s33, 8
    s_add_u32 s37, s37, s44
    s_add_u32 s37, s37, 32768
    ''')
    poison = [f'v_mov_b32 {v(W4 + q)}, -1' for q in range(4)] + [
        f'v_lshlrev_b32 {v(u4)}, 4, {v(vL)}', f'v_lshlrev_b32 {v(u5)}, 2, {v(vL)}',
        f'buffer_store_dwordx4 {v(W4, 4)}, {v(u4)}, s[20:23], s36 offen sc1',
        f'buffer_store_dword {v(W4)}, {v(u5)}, s[20:23], s37 offen sc1']

    def lines(txt):
        return [x.strip() for x in txt.split(chr(10)) if x.strip()]

    def load_cs():
        f = lines(f'''
        s_mul_i32 s44, s27, 40
        v_add_u32 {v(u1)}, s44, {v(vH)}
        v_mul_lo_u32 {v(u2)}, {v(u1)}, s53
        v_lshl_add_u32 {v(u2)}, {v(vR)}, 2, {v(u2)}
        s_mov_b32 s34, s52
        s_lshl_b32 s35, s53, 1
        ''')
        for t in range(20):
            f.append([f'buffer_load_dword {v(CR + t)}, {v(u2)}, s[12:15], s34 offen', 's_add_u32 s34, s34, s35'])
        return f

    def load_rows():
        f = lines(f'''
        s_lshl_b32 s44, s27, 7
        s_lshl_b32 s45, s28, 3
        s_add_u32 s44, s44, s45
        s_lshl_b32 s45, s26, 1
        s_add_u32 s55, s44, s45
        v_add_u32 {v(u0)}, s55, {v(vH)}
        v_mul_u32_u24 {v(u0)}, 1280, {v(u0)}
        v_lshl_add_u32 {v(u0)}, {v(vR)}, 3, {v(u0)}
        ''')
        for t in range(5):
            f.append(f'buffer_load_dwordx2 {v(XR + 2 * t, 2)}, {v(u0)}, s[8:11], 0 offen offset:{256 * t}')
        return f

    def fill_cs():
        f = lines(f'''
        v_lshlrev_b32 {v(u0)}, 16, {v(CR)}
        v_and_b32 {v(u1)}, 0xffff0000, {v(CR)}
        ''')
        for t in range(1, 20):
            f += lines(f'''
            v_lshlrev_b32 {v(u2)}, 16, {v(CR + t)}
            v_and_b32 {v(u3)}, 0xffff0000, {v(CR + t)}
            v_add_f32 {v(u0)}, {v(u0)}, {v(u2)}
            v_add_f32 {v(u1)}, {v(u1)}, {v(u3)}
            ''')
        f += lines(f'''
        s_nop 1
        v_permlane32_swap_b32 {v(u0)}, {v(u1)}
        s_nop 1
        v_add_f32 {v(u0)}, {v(u0)}, {v(u1)}
        v_cvt_pk_bf16_f32 {v(u1)}, {v(u0)}, {v(u0)}
        v_and_b32 {v(u1)}, 0xffff0000, {v(u1)}
        v_sub_f32 {v(u1)}, {v(u0)}, {v(u1)}
        v_cvt_pk_bf16_f32 {v(u0)}, {v(u0)}, {v(u1)}
        v_lshl_add_u32 {v(u1)}, {v(vR)}, 1, {v(vH)}
        v_bfe_u32 {v(u2)}, {v(u1)}, 2, 1
        v_bfe_u32 {v(u3)}, {v(u1)}, 3, 1
        v_lshl_add_u32 {v(u2)}, {v(u2)}, 1, {v(u3)}
        v_and_b32 {v(u3)}, 3, {v(u1)}
        v_lshl_add_u32 {v(u2)}, {v(u2)}, 2, {v(u3)}
        v_lshrrev_b32 {v(u3)}, 4, {v(u1)}
        s_and_b32 s44, s26, 1
        s_lshl_b32 s44, s44, 2
        s_cmp_eq_u32 s48, 1
        s_cselect_b32 s44, 0, s44
        v_add_u32 {v(u4)}, s44, {v(u3)}
        s_lshr_b32 s45, s26, 1
        v_mov_b32 {v(u5)}, s45
        s_cmp_eq_u32 s51, 1
        s_cselect_b64 vcc, -1, 0
        s_add_u32 s44, s26, 3
        v_lshrrev_b32 {v(u1)}, 1, {v(u3)}
        v_add_u32 {v(u1)}, s44, {v(u1)}
        v_and_b32 {v(u3)}, 1, {v(u3)}
        v_cndmask_b32 {v(u4)}, {v(u4)}, {v(u1)}, vcc
        v_cndmask_b32 {v(u5)}, {v(u5)}, {v(u3)}, vcc
        v_lshl_add_u32 {v(u2)}, {v(u5)}, 4, {v(u2)}
        v_lshl_add_u32 {v(u2)}, {v(u4)}, 5, {v(u2)}
        v_lshlrev_b32 {v(u2)}, 2, {v(u2)}
        s_lshl_b32 s44, s28, 14
        s_lshl_b32 s45, s27, 10
        s_add_u32 s44, s44, s45
        s_add_u32 s44, s44, {CSW}
        buffer_store_dword {v(u0)}, {v(u2)}, s[20:23], s44 offen sc1
        s_lshl_b32 s46, s27, 2
        s_add_u32 s46, s46, s26
        s_lshl_b32 s46, s46, 7
        s_lshl_b32 s45, s28, 13
        s_add_u32 s46, s46, s45
        s_add_u32 s56, s46, {F_CS}
        ''')
        return f

    def fill_rows():
        f = [f'v_mov_b32 {v(u0)}, 0', f'v_mov_b32 {v(u1)}, 0']
        for t in range(10):
            f += lines(f'''
            v_lshlrev_b32 {v(u2)}, 16, {v(XR + t)}
            v_and_b32 {v(u3)}, 0xffff0000, {v(XR + t)}
            v_add_f32 {v(u0)}, {v(u0)}, {v(u2)}
            v_fmac_f32 {v(u1)}, {v(u2)}, {v(u2)}
            v_add_f32 {v(u0)}, {v(u0)}, {v(u3)}
            v_fmac_f32 {v(u1)}, {v(u3)}, {v(u3)}
            ''')
        for ror in (8, 4, 2, 1):
            f += lines(f'''
            s_nop 1
            v_add_f32_dpp {v(u0)}, {v(u0)}, {v(u0)} row_ror:{ror} row_mask:0xf bank_mask:0xf
            v_add_f32_dpp {v(u1)}, {v(u1)}, {v(u1)} row_ror:{ror} row_mask:0xf bank_mask:0xf
            ''')
        f += lines(f'''
        v_mov_b32 {v(u2)}, {v(u0)}
        v_mov_b32 {v(u3)}, {v(u1)}
        s_nop 1
        v_permlane16_swap_b32 {v(u0)}, {v(u2)}
        v_permlane16_swap_b32 {v(u1)}, {v(u3)}
        s_mov_b32 s44, {f2u(1.0 / 640.0)}
        s_mov_b32 s45, {f2u(1e-5)}
        v_add_f32 {v(u0)}, {v(u0)}, {v(u2)}
        v_add_f32 {v(u1)}, {v(u1)}, {v(u3)}
        v_mul_f32 {v(u0)}, s44, {v(u0)}
        v_mul_f32 {v(u1)}, s44, {v(u1)}
        v_fma_f32 {v(u1)}, -{v(u0)}, {v(u0)}, {v(u1)}
        v_max_f32 {v(u1)}, 0, {v(u1)}
        v_cvt_pk_bf16_f32 {v(W4)}, -{v(u0)}, -{v(u0)}
        v_cvt_pk_bf16_f32 {v(u1)}, {v(u1)}, {v(u1)}
        v_and_b32 {v(u1)}, 0xffff0000, {v(u1)}
        v_add_f32 {v(u1)}, s45, {v(u1)}
        v_cvt_pk_bf16_f32 {v(u1)}, {v(u1)}, {v(u1)}
        v_and_b32 {v(u1)}, 0xffff0000, {v(u1)}
        v_sqrt_f32 {v(u1)}, {v(u1)}
        v_mov_b32 {v(W4 + 3)}, 0
        v_cvt_pk_bf16_f32 {v(u1)}, {v(u1)}, {v(u1)}
        v_and_b32 {v(u1)}, 0xffff0000, {v(u1)}
        v_rcp_f32 {v(W4 + 1)}, {v(u1)}
        v_mul_f32 {v(W4 + 2)}, {v(u1)}, {v(u1)}
        v_lshlrev_b32 {v(u2)}, 4, {v(vH)}
        s_lshl_b32 s44, s55, 4
        s_add_u32 s44, s44, {ROWW}
        ''')
        f.append(['s_mov_b32 exec_lo, 1', 's_mov_b32 exec_hi, 1',
                  f'buffer_store_dwordx4 {v(W4, 4)}, {v(u2)}, s[20:23], s44 offen sc1', 's_mov_b64 exec, -1'])
        f += lines(f'''
        s_lshl_b32 s44, s28, 2
        s_add_u32 s44, s44, s26
        s_lshl_b32 s44, s44, 7
        s_lshl_b32 s45, s27, 13
        s_add_u32 s44, s44, s45
        s_add_u32 s56, s44, {F_ST}
        ''')
        return f

    stamp(a, 22)
    a(f'''
    v_lshrrev_b32 {v(t0)}, 1, {v(vR)}
    v_and_b32 {v(t0)}, 7, {v(t0)}
    v_xor_b32 {v(t0)}, {v(t0)}, {v(vH)}
    v_lshlrev_b32 {v(t1)}, 7, {v(vR)}
    s_lshl_b32 s44, s25, 13
    v_add_u32 {v(t1)}, s44, {v(t1)}
    ''')
    for sI in range(4):
        a(f'''
        v_xor_b32 {v(t2)}, {2 * sI}, {v(t0)}
        v_lshl_add_u32 {v(vXA + sI)}, {v(t2)}, 4, {v(t1)}
        ''')
    a(f'''
    v_bfe_u32 {v(g1)}, {v(vL)}, 4, 1
    v_bfe_u32 {v(kap)}, {v(vL)}, 2, 2
    v_and_b32 {v(t0)}, 1, {v(vL)}
    v_lshlrev_b32 {v(t0)}, 1, {v(t0)}
    v_bfe_u32 {v(t1)}, {v(vL)}, 1, 1
    v_or_b32 {v(fq)}, {v(t0)}, {v(t1)}
    s_lshr_b32 s44, s26, 1
    s_and_b32 s57, s44, s48
    v_lshl_add_u32 {v(t0)}, {v(vH)}, 3, {v(kap)}
    v_lshlrev_b32 {v(t0)}, 7, {v(t0)}
    v_lshl_add_u32 {v(t0)}, {v(fq)}, 3, {v(t0)}
    v_and_b32 {v(t4)}, 2, {v(kap)}
    s_cmp_eq_u32 s57, 1
    s_cselect_b64 vcc, -1, 0
    ''')
    for bb in range(2):
        a(f'''
        s_lshl_b32 s44, s26, 1
        s_add_u32 s44, s44, {bb}
        s_lshr_b32 s45, s44, 2
        s_and_b32 s46, s44, 3
        v_lshlrev_b32 {v(t1)}, 1, {v(g1)}
        v_add_u32 {v(t1)}, s45, {v(t1)}
        v_mov_b32 {v(t2)}, s46
        s_lshl_b32 s44, s26, 1
        s_sub_u32 s44, s44, 3
        v_mov_b32 {v(t3)}, s44
        v_cndmask_b32 {v(t1)}, {v(t1)}, {v(t3)}, vcc
        v_add_u32 {v(t3)}, {2 * bb}, {v(g1)}
        v_cndmask_b32 {v(t2)}, {v(t2)}, {v(t3)}, vcc
        v_xor_b32 {v(t2)}, {v(t2)}, {v(t4)}
        v_lshrrev_b32 {v(t3)}, 1, {v(t1)}
        v_xor_b32 {v(t2)}, {v(t2)}, {v(t3)}
        v_mul_u32_u24 {v(t1)}, 24576, {v(t1)}
        v_lshl_add_u32 {v(t1)}, {v(t2)}, 5, {v(t1)}
        v_add_u32 {v(t1)}, {v(t1)}, {v(t0)}
        v_add_u32 {v(vWA + bb)}, {LDS_W}, {v(t1)}
        ''')

    def reads(c, sI):
        st, buf = c % 3, sI & 1
        out = [f'ds_read_b128 {v(XF + 8 * buf, 4)}, {v(vXA + sI)} offset:{LDS_X + st * 16384}']
        for bb in range(2):
            for t in range(2):
                out.append(f'ds_read_b64_tr_b16 {v(WF + 8 * buf + 4 * bb + 2 * t, 2)}, {v(vWA + bb)} offset:{st * 8192 + 2048 * sI + 512 * t}')
        out.append(f'ds_read_b128 {v(XF + 8 * buf + 4, 4)}, {v(vXA + sI)} offset:{LDS_X + st * 16384 + 4096}')
        return out

    def mfmas(c, sI):
        buf = sI & 1
        first = (c == 0 and sI == 0)
        return [mfma16(ACC + 32 * e + 16 * bb, WF + 8 * buf + 4 * bb, XF + 8 * buf + 4 * e,
                       None if first else ACC + 32 * e + 16 * bb) for e, bb in ((0, 0), (0, 1), (1, 0), (1, 1))]

    def mix(ms, rd, wait=True, fill=()):
        cut = [rd[0:3], rd[3:6], [], []]
        n = len(fill)
        if wait:
            a('s_waitcnt lgkmcnt(0)')
        for q, (m, r) in enumerate(zip(ms, cut)):
            a(m)
            emit(a, r)
            emit(a, fill[(q * n) // 4:((q + 1) * n) // 4])

    def chunk(c, fill=()):
        a.c(f'chunk {c}')
        n = len(fill)
        if c:
            a('s_waitcnt lgkmcnt(0)')
        a('s_barrier')
        if not FEWST or c in (0, 1, 2, 9):
            stamp(a, 1 + c)
        if c > 0:
            mix(mfmas(c - 1, 3), reads(c, 0), wait=False, fill=fill[0:n // 4])
        else:
            emit(a, reads(c, 0))
            emit(a, fill[0:n // 4])
        for sI in range(3):
            mix(mfmas(c, sI), reads(c, sI + 1), fill=fill[((sI + 1) * n) // 4:((sI + 2) * n) // 4])

    a(f's_waitcnt vmcnt({4 if LINPF == 1 else (1 if PF0 else 0)})')
    chunk(0, linpf if LINPF == 2 else [])
    lab1, lab2 = a.label('rowv'), a.label('join')
    a(f's_cmp_eq_u32 s25, 1\ns_cbranch_scc1 {lab1}')
    for var, (ld, fl) in enumerate(((load_cs(), fill_cs()), (load_rows(), fill_rows()))):
        fl = ['s_waitcnt vmcnt(0)'] + fl + [f'buffer_load_dword {v(vN)}, off, s[4:7], 0 sc1']
        if NOSL:
            ld = [x for x in ld if 'buffer_load' not in str(x)]
            fl = fl[-8:]
        h = len(fl) // 2
        for c in range(1, SLC + SLG + 2):
            if c == SLC:
                chunk(c, ld + poison)
            elif c == SLC + SLG:
                chunk(c, fl[:h])
            elif c == SLC + SLG + 1:
                chunk(c, fl[h:])
            else:
                chunk(c)
        if var == 0:
            a(f's_branch {lab2}\n{lab1}:')
    a(f'{lab2}:')
    chunk(SLC + SLG + 2)
    Lp, Lq = a.label('cnp'), a.label('cnd')
    a(f'''
    s_mov_b32 s93, {POLL_MAX}
    {Lp}:
    s_waitcnt vmcnt(0)
    v_readfirstlane_b32 s98, {v(vN)}
    s_cmp_lg_u32 s98, 0
    s_cbranch_scc1 {Lq}
    s_sub_u32 s93, s93, 1
    s_cbranch_scc1 {Lq}
    buffer_load_dword {v(vN)}, off, s[4:7], 0 sc1
    s_branch {Lp}
    {Lq}:
    s_xor_b32 s99, s98, {NONCE_X}
    ''')
    flag_store(a, 's56', U)
    for c in range(SLC + SLG + 3, 10):
        chunk(c)
    a('s_waitcnt lgkmcnt(0)')
    emit(a, mfmas(9, 3))
    lab = a.label('nqp')
    a(f's_cmp_eq_u32 s57, 0\ns_cbranch_scc1 {lab}\ns_setprio 2\n{lab}:')
    stamp(a, 11)
    a('s_barrier')
    stamp(a, 12)

    al2 = Alloc(XF, 168)
    RC = al2('rc', 8, 4)
    NEG = al2('neg', 8, 4)
    CSF = al2('csf', 16, 4)
    KK = al2('kk', 4, 2)
    E1 = al2('e1', 16, 4)
    E2 = al2('e2', 16, 4)
    HH = 148
    vS16 = al2('s16')
    vQA = al2('qa')
    a(f'''
    s_lshl_b32 s44, s25, 10
    s_add_u32 s44, s44, {ROWC_A}
    v_lshl_add_u32 {v(t0)}, {v(vR)}, 4, s44
    v_lshlrev_b32 {v(vS16)}, 4, {v(vL)}
    s_lshl_b32 s44, s26, 8
    s_add_u32 s44, s44, {CS_A}
    v_lshl_add_u32 {v(t1)}, {v(vR)}, 2, s44
    v_lshl_add_u32 {v(t1)}, {v(vH)}, 12, {v(t1)}
    v_add_u32 {v(t3)}, 128, {v(t1)}
    ds_read_b128 {v(RC, 4)}, {v(t0)}
    ds_read_b128 {v(RC + 4, 4)}, {v(t0)} offset:512
    ''')
    for bb in range(2):
        for m in range(2):
            for z in range(2):
                a(f'ds_read2st64_b32 {v(CSF + 8 * bb + 4 * m + 2 * z, 2)}, {v((t1, t3)[bb])} offset0:{32 * m + 8 * z} offset1:{32 * m + 8 * z + 4}')
    a(f'''
    s_mov_b32 s46, {f2u(C0)}
    s_mov_b32 s47, {f2u(C1)}
    s_lshl_b32 s44, s27, 2
    s_lshl_b32 s45, s25, 1
    s_add_u32 s60, s44, s45
    s_waitcnt lgkmcnt(8)
    ''')
    for e in range(2):
        for r in range(4):
            a(f'v_mov_b32 {v(NEG + 4 * e + r)}, {v(RC + 4 * e)}')
    for e in range(2):
        a(f'''
        v_mul_f32 {v(KK + 2 * e)}, s46, {v(RC + 4 * e + 1)}
        v_mul_f32 {v(t0)}, {v(RC + 4 * e + 1)}, {v(RC + 4 * e + 1)}
        v_mul_f32 {v(t0)}, {v(t0)}, {v(RC + 4 * e + 1)}
        v_mul_f32 {v(KK + 2 * e + 1)}, s47, {v(t0)}
        ''')
    a('s_waitcnt lgkmcnt(0)')
    for e in range(2):
        for bb in range(2):
            d = ACC + 32 * e + 16 * bb
            for m in range(2):
                a(mfma16(d, CSF + 8 * bb + 4 * m, NEG + 4 * e, d))
    L_q = a.label('qepi')
    L_ed = a.label('epidone')
    a(f'''
    s_nop 1
    s_cmp_eq_u32 s57, 1
    s_cbranch_scc1 {L_q}
    s_lshr_b32 s44, s49, 4
    s_lshl_b32 s45, s26, 1
    s_add_u32 s44, s44, s45
    s_mul_i32 s42, s60, 108
    s_add_u32 s42, s42, s44
    s_lshl_b32 s42, s42, 10
    s_add_u32 s43, s42, {108 * 1024}
    ''')
    k = 0
    for e in range(2):
        for bb in range(2):
            A = ACC + 32 * e + 16 * bb
            TT = E1 + 8 * (k % 2)
            PP = E2 + 8 * (k % 2)
            O_ = HH + 4 * k
            kk = v(KK + 2 * e, 2)
            rc = v(RC + 4 * e + 2, 2)
            for i in range(0, 8, 2):
                a(f'v_pk_mul_f32 {v(TT + i, 2)}, {v(A + i, 2)}, {v(A + i, 2)}')
            for i in range(0, 8, 2):
                a(f'v_pk_fma_f32 {v(TT + i, 2)}, {v(TT + i, 2)}, {kk}, {kk} op_sel:[0,1,0] op_sel_hi:[1,1,0]')
            for i in range(0, 8, 2):
                a(f'v_pk_mul_f32 {v(TT + i, 2)}, {v(TT + i, 2)}, {v(A + i, 2)}')
            for i in range(8):
                a(f'v_exp_f32 {v(TT + i)}, {v(TT + i)}')
            for i in range(0, 8, 2):
                a(f'v_pk_mul_f32 {v(PP + i, 2)}, {v(A + i, 2)}, {v(A + 8 + i, 2)}')
            for i in range(0, 8, 2):
                a(f'v_pk_fma_f32 {v(TT + i, 2)}, {v(TT + i, 2)}, {rc}, {rc} op_sel_hi:[1,0,0]')
            for i in range(8):
                a(f'v_rcp_f32 {v(TT + i)}, {v(TT + i)}')
            a('s_nop 0')
            for i in range(0, 8, 2):
                a(f'v_pk_mul_f32 {v(PP + i, 2)}, {v(PP + i, 2)}, {v(TT + i, 2)}')
            for i in range(4):
                a(f'v_cvt_pk_bf16_f32 {v(O_ + i)}, {v(PP + 2 * i)}, {v(PP + 2 * i + 1)}')
            k += 1
    if HEARLY:
        for k in range(4):
            a(f'buffer_store_dwordx4 {v(HH + 4 * k, 4)}, {v(vS16)}, s[20:23], s{42 + (k >> 1)} offen offset:{1024 * (k & 1)} sc1')
    a(f's_branch {L_ed}')
    a(f'{L_q}:')
    a(f'''
    s_sub_u32 s44, s26, 2
    s_lshl_b32 s44, s44, 6
    s_add_u32 s44, s44, s50
    s_lshl_b32 s44, s44, 6
    s_add_u32 s44, s44, {QF_OFF}
    s_mov_b32 s45, {f2u(QSC)}
    s_mul_i32 s46, s60, 40960
    s_add_u32 s46, s46, s44
    s_add_u32 s47, s46, 40960
    v_mul_f32 {v(KK)}, s45, {v(RC + 1)}
    v_mul_f32 {v(KK + 2)}, s45, {v(RC + 5)}
    ''')
    k = 0
    for e in range(2):
        for bb in range(2):
            A = ACC + 32 * e + 16 * bb
            O_ = (E1, E1 + 8, E2, E2 + 8)[k]
            for i in range(0, 16, 2):
                a(f'v_pk_mul_f32 {v(A + i, 2)}, {v(A + i, 2)}, {v(KK + 2 * e, 2)} op_sel_hi:[1,0]')
            for i in range(8):
                a(f'v_cvt_pk_bf16_f32 {v(O_ + i)}, {v(A + 2 * i)}, {v(A + 2 * i + 1)}')
            for z in range(2):
                a(f'buffer_store_dwordx4 {v(O_ + 4 * z, 4)}, {v(vS16)}, s[20:23], s{46 + e} offen offset:{1024 * z + 2048 * bb} sc1')
            k += 1
    a(f'{L_ed}:')
    stamp(a, 13)

    a.c('=========== compute wave: attention ===========')
    al3 = Alloc(4, 168)
    T = al3('T', 16, 4)
    S = al3('S', 32, 4)
    O = al3('O', 16, 4)
    V1 = al3('V1', 4, 4)
    V2 = al3('V2', 4, 4)
    Q1 = al3('Q1', 4, 4)
    K1 = al3('K1', 8, 4)
    K2 = al3('K2', 8, 4)
    P = al3('P', 16, 4)
    Q2 = al3('Q2', 2, 2)
    vK = al3('vK')
    vK2 = al3('vK2')
    a(f'''
    s_lshl_b32 s44, s27, 1
    s_add_u32 s44, s44, s25
    s_lshl_b32 s44, s44, 13
    s_lshl_b32 s45, s28, 2
    s_add_u32 s45, s45, s26
    s_lshl_b32 s45, s45, 7
    s_add_u32 s44, s44, s45
    s_add_u32 s41, s44, {F_QH}
    s_nop 1
    ''')
    for i in range(16):
        a(f'v_mov_b32 {v(O + i)}, 0')
    for i in range(4):
        a(f'v_mov_b32 {v(V1 + i)}, 0')
        a(f'v_mov_b32 {v(V2 + i)}, 0')
    a(f'''
    s_mov_b32 s45, {KVR}
    v_lshl_add_u32 {v(vK)}, {v(vL)}, 4, s45
    v_lshl_add_u32 {v(vK2)}, {v(vL)}, 3, s45
    s_mul_i32 s45, s24, 5
    v_lshlrev_b32 {v(T + 4)}, 4, {v(vR)}
    v_add_u32 {v(T + 4)}, {Q_A}, {v(T + 4)}
    ''')
    for z, (dq, useh) in enumerate(((0, 1), (2, 1), (4, 0))):
        a(f's_add_u32 s46, s45, {dq}')
        a(f'v_add_u32 {v(T + 5)}, s46, {v(vH)}' if useh else f'v_mov_b32 {v(T + 5)}, s46')
        a(f'''
        v_lshrrev_b32 {v(T + 6)}, 1, {v(T + 5)}
        v_lshl_add_u32 {v(T + 6)}, {v(T + 6)}, 9, {v(T + 4)}
        v_and_b32 {v(T + 5)}, 1, {v(T + 5)}
        v_lshl_add_u32 {v(T + 13 + z)}, {v(T + 5)}, 3, {v(T + 6)}
        ''')
    lab = a.label('noqf')
    a(f'''
    s_cmp_eq_u32 s57, 0
    s_cbranch_scc1 {lab}
    s_waitcnt vmcnt(0)
    ''')
    flag_store(a, 's41', T + 2)
    a('s_setprio 0')
    a(f'{lab}:')
    for i in range(8):
        a(f'v_mov_b32 {v(P + 8 + i)}, 0')
    stamp(a, 14)
    a('s_barrier')
    stamp(a, 15)
    o0, o1, o2 = tile_offs(0), tile_offs(1), tile_offs(2)
    a(f'''
    ds_read_b64 {v(Q1, 2)}, {v(T + 13)}
    ds_read_b64 {v(Q1 + 2, 2)}, {v(T + 14)}
    ds_read_b64 {v(Q2, 2)}, {v(T + 15)}
    ds_read_b128 {v(K1, 4)}, {v(vK)} offset:{o0[0]}
    ds_read_b128 {v(K1 + 4, 4)}, {v(vK)} offset:{o1[0]}
    ds_read2st64_b64 {v(K2, 4)}, {v(vK2)} offset0:{o0[1] // 512} offset1:{o0[1] // 512 + 1}
    v_mov_b32 {v(T + 2)}, 0
    s_waitcnt lgkmcnt(3)
    v_cndmask_b32 {v(Q2)}, {v(Q2)}, {v(T + 2)}, {HM}
    v_cndmask_b32 {v(Q2 + 1)}, {v(Q2 + 1)}, {v(T + 2)}, {HM}
    s_waitcnt lgkmcnt(0)
    ''')

    def set_m(mreg, offset):
        t0, t1, t2, t3 = T + 8, T + 9, T + 10, T + 11
        a(f'v_sub_f32 {v(t0)}, {f2u(-offset) if offset else 0}, {v(mreg)}')
        a(f'''
        v_cvt_pk_bf16_f32 {v(t1)}, {v(t0)}, {v(t0)}
        v_and_b32 {v(t2)}, 0xffff0000, {v(t1)}
        v_sub_f32 {v(t2)}, {v(t0)}, {v(t2)}
        v_cvt_pk_bf16_f32 {v(t1)}, {v(t0)}, {v(t2)}
        v_and_b32 {v(t3)}, 0xffff0000, {v(t1)}
        v_sub_f32 {v(t2)}, {v(t2)}, {v(t3)}
        v_mov_b32 {v(t3)}, 0
        v_cvt_pk_bf16_f32 {v(t2)}, {v(t2)}, {v(t3)}
        v_cndmask_b32 {v(Q2)}, {v(Q2)}, {v(t1)}, {HM}
        v_cndmask_b32 {v(Q2 + 1)}, {v(Q2 + 1)}, {v(t2)}, {HM}
        ''')

    def cross_half_max(reg):
        t = T + 12
        a(f'''
        v_mov_b32 {v(t)}, {v(reg)}
        s_nop 1
        v_permlane32_swap_b32 {v(reg)}, {v(t)}
        s_nop 1
        v_max_f32 {v(reg)}, {v(reg)}, {v(t)}
        ''')

    for t in range(2):
        a(mfma16(S + 16 * t, K1 + 4 * t, Q1))
    if not HEARLY:
        lab = a.label('nohst')
        a(f'''
        v_lshlrev_b32 {v(T)}, 4, {v(vL)}
        s_cmp_eq_u32 s57, 1
        s_cbranch_scc1 {lab}
        ''')
        for k in range(4):
            a(f'buffer_store_dwordx4 {v(HH + 4 * k, 4)}, {v(T)}, s[20:23], s{42 + (k >> 1)} offen offset:{1024 * (k & 1)} sc1')
        a(f'{lab}:')
    a('s_nop 8')
    for t in range(2):
        a(mfma8(S + 16 * t, K2 + 2 * t, Q2, S + 16 * t))
    a('s_nop 11')
    m = T + 4
    a(f'v_max3_f32 {v(m)}, {v(S)}, {v(S + 1)}, {v(S + 2)}')
    for i in range(3, 31, 2):
        a(f'v_max3_f32 {v(m)}, {v(m)}, {v(S + i)}, {v(S + i + 1)}')
    a(f'v_max_f32 {v(m)}, {v(m)}, {v(S + 31)}')
    cross_half_max(m)
    set_m(m, M_OFFSET)
    a('s_nop 1')
    a(mfma16(S, K1, Q1))
    a(f'''
    ds_read_b128 {v(K1, 4)}, {v(vK)} offset:{o2[0]}
    s_mov_b32 s34, 4
    s_nop 7
    ''')
    a(mfma8(S, K2, Q2, S))
    a('s_nop 9')
    stamp(a, 16)

    def toff(tt):
        tt &= 15
        o = tile_offs(tt & 3)
        return [x + (tt >> 2) * CH_BYTES for x in o]

    def k2read(reg, tt):
        o = toff(tt)[1]
        assert o % 512 == 0
        return f'ds_read2st64_b64 {v(reg, 4)}, {v(vK2)} offset0:{o // 512} offset1:{o // 512 + 1}'

    L_hf, L_hb = a.label('hflag'), a.label('hback')

    def slot(t):
        Sx, Sn = S + 16 * (t & 1), S + 16 * ((t + 1) & 1)
        Px, Pp = P + 8 * (t & 1), P + 8 * ((t + 1) & 1)
        kt = t + 1
        kb = kt & 1
        k2 = K2 + 4 * ((kt >> 1) & 1) + 2 * (kt & 1)
        m_ = [mfma16(Sn, K1 + 4 * kb, Q1), mfma16(O, V1, Pp, O), mfma8(Sn, k2, Q2, Sn), mfma16(O, V2, Pp + 4, O)]
        after = [[], [], [], []]
        if t & 3 == 1:
            after[0] = ['s_barrier']
        after[0] += [f'ds_read_b128 {v(K1 + 4 * kb, 4)}, {v(vK)} offset:{toff(t + 3)[0]}', 's_waitcnt lgkmcnt(2)']
        after[1] = [f'ds_read_b128 {v(V1, 4)}, {v(vK)} offset:{toff(t)[2]}']
        if t & 1:
            after[1] += [k2read(K2 + 4 * (((t + 3) >> 1) & 1), t + 3)]
        after[2] += [f's_waitcnt lgkmcnt({3 if t & 1 else 2})']
        after[3] = [f'ds_read_b128 {v(V2, 4)}, {v(vK)} offset:{toff(t)[3]}']
        if t == 15:
            after[3] += ['s_sub_u32 s34, s34, 1']
        if t == HFLAG_T:
            after[3] += ['s_cmp_eq_u32 s34, 4', f's_cbranch_scc1 {L_hf}', f'{L_hb}:']
        val = []
        for i in range(8):
            val.append(f'v_exp_f32 {v(Sx + 2 * i)}, {v(Sx + 2 * i)}')
            val.append(f'v_exp_f32 {v(Sx + 2 * i + 1)}, {v(Sx + 2 * i + 1)}')
            if i > 0:
                val.append(f'v_cvt_pk_bf16_f32 {v(Px + i - 1)}, {v(Sx + 2 * i - 2)}, {v(Sx + 2 * i - 1)}')
        val.append(f'v_cvt_pk_bf16_f32 {v(Px + 7)}, {v(Sx + 14)}, {v(Sx + 15)}')
        groups = [val[0:5], val[5:11], val[11:17], val[17:24]]
        for g in range(4):
            a(m_[g])
            emit(a, after[g])
            emit(a, groups[g])

    a(k2read(K2 + 4, 2))
    L_loop = a.label('att')
    a('.p2align 6')
    a(f'{L_loop}:')
    for t in range(16):
        slot(t)
    a(f'''
    s_cmp_lg_u32 s34, 0
    s_cbranch_scc1 {L_loop}
    s_waitcnt lgkmcnt(0)
    ''')
    a(mfma16(O, V1, P + 8, O))
    a(mfma16(O, V2, P + 12, O))
    a(f'''
    v_lshlrev_b32 {v(T + 2)}, 4, {v(vL)}
    v_lshlrev_b32 {v(T + 3)}, 3, {v(vL)}
    v_mov_b32 {v(T + 9)}, 0x7f000000
    v_cndmask_b32 {v(T + 3)}, {v(T + 3)}, {v(T + 9)}, {HM}
    v_lshlrev_b32 {v(T + 4)}, 3, {v(vR)}
    v_lshl_add_u32 {v(T + 4)}, {v(vH)}, 9, {v(T + 4)}
    s_nop 6
    ''')
    stamp(a, 17)
    L_fb = a.label('fb')
    L_out = a.label('aout')
    a(f'''
    s_mov_b32 s44, {f2u(2.0 ** 120)}
    s_mov_b32 s45, {f2u(2.0 ** -103)}
    v_add_f32 {v(T)}, |{v(O)}|, |{v(O + 1)}|
    ''')
    for i in range(2, 12):
        a(f'v_add_f32 {v(T)}, {v(T)}, |{v(O + i)}|')
    a(f'''
    v_add_f32 {v(T + 1)}, {v(T)}, {v(O + 12)}
    v_cmp_le_f32 s[46:47], s45, {v(T)}
    v_cmp_gt_f32 s[48:49], s44, {v(T + 1)}
    s_nop 1
    s_and_b64 s[46:47], s[46:47], s[48:49]
    s_cmp_eq_u64 s[46:47], -1
    s_cbranch_scc0 {L_fb}
    {L_out}:
    v_rcp_f32 {v(T)}, {v(O + 12)}
    s_nop 0
    ''')
    for i in range(0, 12, 2):
        a(f'v_pk_mul_f32 {v(O + i, 2)}, {v(O + i, 2)}, {v(T, 2)} op_sel_hi:[1,0]')
    for i in range(6):
        a(f'v_cvt_pk_bf16_f32 {v(P + i)}, {v(O + 2 * i)}, {v(O + 2 * i + 1)}')
    a(f'buffer_store_dwordx4 {v(P, 4)}, {v(T + 2)}, s[20:23], s36 offen sc1')
    a(f'buffer_store_dwordx2 {v(P + 4, 2)}, {v(T + 3)}, s[20:23], s37 offen sc1')
    stamp(a, 18)
    g2_ids(a)
    OFR = 120
    a(f'''
    s_cmp_eq_u32 s25, 1
    s_cselect_b32 s44, s60, s59
    s_mul_i32 s44, s44, 40960
    s_add_u32 s44, s44, {OF_OFF}
    s_lshl_b32 s45, s26, 13
    s_add_u32 s38, s44, s45
    s_add_u32 s38, s38, 3072
    s_add_u32 s39, s38, 4096
    s_lshl_b32 s45, s26, 11
    s_add_u32 s40, s44, s45
    s_add_u32 s40, s40, 32768
    s_mul_i32 s44, s26, 14336
    s_lshl_b32 s45, s25, 10
    s_add_u32 s44, s44, s45
    s_add_u32 s44, s44, {OL_A}
    v_add_u32 {v(T + 5)}, s44, {v(T + 2)}
    s_barrier
    ''')
    Lp, Lq = a.label('cop'), a.label('copd')
    a(f's_mov_b32 s93, {OPOLL_MAX}\n{Lp}:')
    for q in range(5):
        a(f'buffer_load_dwordx4 {v(OFR + 4 * q, 4)}, {v(T + 2)}, s[20:23], {"s38" if q < 4 else "s39"} offen offset:{1024 * (q & 3)} sc1')
    for q in range(4):
        a(f'buffer_load_dwordx2 {v(OFR + 20 + 2 * q, 2)}, {v(T + 4)}, s[20:23], s40 offen offset:{1024 * (q >> 1) + 256 * (q & 1)} sc1')
    a('s_waitcnt vmcnt(0)')
    a(f'v_max3_u32 {v(T)}, {v(OFR)}, {v(OFR + 1)}, {v(OFR + 2)}')
    for i in range(3, 27, 2):
        a(f'v_max3_u32 {v(T)}, {v(T)}, {v(OFR + i)}, {v(OFR + i + 1)}')
    a(f'''
    v_max_u32 {v(T)}, {v(T)}, {v(OFR + 27)}
    v_cmp_eq_u32 vcc, -1, {v(T)}
    s_nop 1
    s_cmp_eq_u64 vcc, 0
    s_cbranch_scc1 {Lq}
    s_sub_u32 s93, s93, 1
    s_cbranch_scc1 {Lq}
    s_sleep {OSLEEP}
    s_branch {Lp}
    {Lq}:
    ''')
    for q in range(7):
        a(f'ds_write_b128 {v(T + 5)}, {v(OFR + 4 * q, 4)} offset:{2048 * q}')
    stamp(a, 21)
    g2_out(a, S, vL, 's24', 0)
    a('s_waitcnt lgkmcnt(0)')
    a('s_barrier')
    a('s_barrier')
    stamp(a, 19)
    g2_out(a, S, vL, 's24', 1)
    if asmlib.STAMPS:
        a('s_waitcnt vmcnt(0)')
    stamp(a, 20)
    a(f's_branch {L_end}')

    a(f'{L_hf}:')
    a('s_waitcnt vmcnt(0)')
    flag_store(a, 's41', T + 2)
    a(f's_branch {L_hb}')
    a(f'{L_fb}:')
    L1 = a.label('fb1')
    L2 = a.label('fb2')
    a(f'''
    v_lshlrev_b32 {v(T + 13)}, 4, {v(vL)}
    v_lshlrev_b32 {v(T + 7)}, 3, {v(vL)}
    v_mov_b32 {v(T + 14)}, 0
    v_mov_b32 {v(T + 15)}, 0xff800000
    v_cndmask_b32 {v(Q2)}, {v(Q2)}, {v(T + 14)}, {HM}
    v_cndmask_b32 {v(Q2 + 1)}, {v(Q2 + 1)}, {v(T + 14)}, {HM}
    s_mov_b32 s77, {KV_OFF}
    s_mov_b32 s34, 32
    {L1}:
    buffer_load_dwordx4 {v(K1, 4)}, {v(T + 13)}, s[20:23], s77 offen sc1
    buffer_load_dwordx4 {v(K1 + 4, 4)}, {v(T + 13)}, s[20:23], s77 offen offset:1024 sc1
    buffer_load_dwordx2 {v(K2, 2)}, {v(T + 7)}, s[20:23], s77 offen offset:2048 sc1
    buffer_load_dwordx2 {v(K2 + 2, 2)}, {v(T + 7)}, s[20:23], s77 offen offset:2560 sc1
    s_waitcnt vmcnt(0)
    ''')
    for t in range(2):
        a(mfma16(S + 16 * t, K1 + 4 * t, Q1))
    a('s_nop 9')
    for t in range(2):
        a(mfma8(S + 16 * t, K2 + 2 * t, Q2, S + 16 * t))
    a('s_nop 15')
    for i in range(0, 32, 2):
        a(f'v_max3_f32 {v(T + 15)}, {v(T + 15)}, {v(S + i)}, {v(S + i + 1)}')
    a(f'''
    s_add_u32 s77, s77, 7168
    s_sub_u32 s34, s34, 1
    s_cmp_lg_u32 s34, 0
    s_cbranch_scc1 {L1}
    ''')
    cross_half_max(T + 15)
    set_m(T + 15, 0.0)
    for i in range(16):
        a(f'v_mov_b32 {v(O + i)}, 0')
    a(f'''
    s_mov_b32 s77, {KV_OFF}
    s_mov_b32 s34, 64
    {L2}:
    s_and_b32 s78, s34, 1
    s_lshl_b32 s79, s78, 10
    s_add_u32 s79, s79, s77
    s_lshl_b32 s80, s78, 9
    s_add_u32 s80, s80, s77
    s_lshl_b32 s81, s78, 11
    s_add_u32 s81, s81, s77
    s_add_u32 s81, s81, 3072
    buffer_load_dwordx4 {v(K1, 4)}, {v(T + 13)}, s[20:23], s79 offen sc1
    buffer_load_dwordx2 {v(K2, 2)}, {v(T + 7)}, s[20:23], s80 offen offset:2048 sc1
    buffer_load_dwordx4 {v(V1, 4)}, {v(T + 13)}, s[20:23], s81 offen sc1
    buffer_load_dwordx4 {v(V2, 4)}, {v(T + 13)}, s[20:23], s81 offen offset:1024 sc1
    s_waitcnt vmcnt(0)
    {mfma16(S, K1, Q1)}
    s_nop 10
    {mfma8(S, K2, Q2, S)}
    s_nop 15
    ''')
    for i in range(16):
        a(f'v_exp_f32 {v(S + i)}, {v(S + i)}')
    a('s_nop 0')
    for i in range(8):
        a(f'v_cvt_pk_bf16_f32 {v(P + i)}, {v(S + 2 * i)}, {v(S + 2 * i + 1)}')
    a(f'''
    s_nop 1
    {mfma16(O, V1, P, O)}
    {mfma16(O, V2, P + 4, O)}
    s_mul_i32 s78, s78, 7168
    s_add_u32 s77, s77, s78
    s_sub_u32 s34, s34, 1
    s_cmp_lg_u32 s34, 0
    s_cbranch_scc1 {L2}
    s_nop 15
    s_branch {L_out}
    ''')


def g2_ids(a):
    a('''
    s_lshr_b32 s57, s30, 1
    s_and_b32 s58, s30, 1
    s_lshl_b32 s44, s29, 1
    s_add_u32 s59, s44, s58
    s_xor_b32 s60, s59, 1
    s_mul_i32 s44, s57, 320
    s_lshl_b32 s45, s58, 7
    s_add_u32 s61, s44, s45
    ''')


def g2_out(a, T, vL, wsg, part):
    L_skip = a.label('g2o')
    a(f'''
    s_cmp_ge_u32 {wsg}, 10
    s_cbranch_scc1 {L_skip}
    ''')
    if part == 0:
        a(f'''
        s_lshr_b32 s45, {wsg}, 1
        s_and_b32 s46, {wsg}, 1
        s_lshl_b32 s46, s46, 4
        v_lshrrev_b32 {v(T)}, 2, {v(vL)}
        v_add_u32 {v(T)}, s46, {v(T)}
        v_and_b32 {v(T + 1)}, 3, {v(vL)}
        s_and_b32 s47, s45, 1
        s_cmp_eq_u32 s47, 1
        s_cselect_b32 s47, s60, s59
        s_mul_i32 s47, s47, {32 * 1280}
        s_lshr_b32 s48, s45, 1
        s_add_u32 s49, s48, s58
        s_lshl_b32 s49, s49, 6
        s_lshl_b32 s50, s58, 7
        s_sub_u32 s50, 128, s50
        s_cmp_eq_u32 s48, 2
        s_cselect_b32 s49, s50, s49
        s_add_u32 s47, s47, s49
        s_add_u32 s31, s47, s61
        v_mul_u32_u24 {v(T + 6)}, 1280, {v(T)}
        v_lshl_add_u32 {v(T + 6)}, {v(T + 1)}, 4, {v(T + 6)}
        buffer_load_dwordx4 {v(T + 2, 4)}, {v(T + 6)}, s[8:11], s31 offen
        v_lshlrev_b32 {v(T + 1)}, 1, {v(T + 1)}
        v_and_b32 {v(T + 7)}, 7, {v(T)}
        v_xor_b32 {v(T + 1)}, {v(T + 1)}, {v(T + 7)}
        v_lshlrev_b32 {v(T)}, 7, {v(T)}
        v_lshl_add_u32 {v(T)}, {v(T + 1)}, 4, {v(T)}
        s_lshl_b32 s47, s45, 12
        v_add_u32 {v(T)}, s47, {v(T)}
        v_xor_b32 {v(T + 1)}, 16, {v(T)}
        ''')
    else:
        for w in range(4):
            if w == 2:
                a(f'v_add_u32 {v(T)}, {WO_HI}, {v(T)}\nv_add_u32 {v(T + 1)}, {WO_HI}, {v(T + 1)}')
            a(f'ds_read_b128 {v(T + 8 + 8 * w, 4)}, {v(T)} offset:{21504 * (w & 1)}')
            a(f'ds_read_b128 {v(T + 12 + 8 * w, 4)}, {v(T + 1)} offset:{21504 * (w & 1)}')
        a('s_waitcnt vmcnt(0)')
        for i in range(4):
            a(f'''
            v_lshlrev_b32 {v(T + 40 + 2 * i)}, 16, {v(T + 2 + i)}
            v_and_b32 {v(T + 41 + 2 * i)}, 0xffff0000, {v(T + 2 + i)}
            ''')
        a('s_waitcnt lgkmcnt(4)')
        for i in range(0, 8, 2):
            a(f'v_pk_add_f32 {v(T + 8 + i, 2)}, {v(T + 8 + i, 2)}, {v(T + 16 + i, 2)}')
        for i in range(0, 8, 2):
            a(f'v_pk_add_f32 {v(T + 8 + i, 2)}, {v(T + 8 + i, 2)}, {v(T + 40 + i, 2)}')
        a('s_waitcnt lgkmcnt(0)')
        for i in range(0, 8, 2):
            a(f'v_pk_add_f32 {v(T + 24 + i, 2)}, {v(T + 24 + i, 2)}, {v(T + 32 + i, 2)}')
        for i in range(0, 8, 2):
            a(f'v_pk_add_f32 {v(T + 8 + i, 2)}, {v(T + 8 + i, 2)}, {v(T + 24 + i, 2)}')
        for i in range(4):
            a(f'v_cvt_pk_bf16_f32 {v(T + 16 + i)}, {v(T + 8 + 2 * i)}, {v(T + 9 + 2 * i)}')
        a(f'buffer_store_dwordx4 {v(T + 16, 4)}, {v(T + 6)}, s[64:67], s31 offen')
    a(f'{L_skip}:')


def aux_wave(a, vL, vH, vR, L_end, WDP):
    al = Alloc(4, 168)
    T = al('T', 16, 4)
    vXD = al('xd', 2)
    vWD = al('wd')
    vKD = al('kd')
    vKX = al('kx')
    vKW = al('kw')
    XR = al('xr', 10, 2)
    CR = al('cr', 20, 2)
    PF = al('pf', 2)
    AKV = al('akv', 16, 4)
    KXF = al('kxf', 4, 4)
    KWF = al('kwf', 4, 4)
    FX = al('fx', 16, 4)
    RD = al('rd', 48, 4)
    JA = al('ja', 2, 2)
    JS = al('js')
    t0, t1, t2, t3, t4, t5 = T, T + 1, T + 2, T + 3, T + 4, T + 5
    vm = VM()
    a.c('=========== aux wave: phase 1 ===========')
    a(f's_sub_u32 s26, s24, 8\ns_setprio {PRIO1}')
    w_source(a)
    a(f'''
    s_bitcmp1_b32 s28, 2
    s_cselect_b32 s16, s74, s72
    s_cselect_b32 s17, s75, s73
    s_mov_b32 s18, 25600
    s_mov_b32 s19, 0x20000
    s_lshl_b32 s31, s53, 3
    s_lshl_b32 s32, s53, 6
    s_cmp_lt_u32 s28, 8
    s_cselect_b32 s54, 1, 0
    s_cmp_lt_u32 s26, 3
    s_cselect_b32 s40, s54, 0
    s_lshl_b32 s36, s26, 12
    s_mul_i32 s37, s26, 24576
    s_add_u32 s37, s37, {LDS_W}
    s_lshl_b32 s38, s26, 10
    s_add_u32 s38, s38, {LDS_KV}
    ''')
    a(f'''
    v_lshrrev_b32 {v(t0)}, 3, {v(vL)}
    v_and_b32 {v(t1)}, 7, {v(vL)}
    s_lshl_b32 s44, s27, 7
    s_lshl_b32 s45, s26, 5
    s_add_u32 s44, s44, s45
    v_add_u32 {v(t2)}, s44, {v(t0)}
    v_mul_u32_u24 {v(t2)}, 1280, {v(t2)}
    v_lshrrev_b32 {v(t3)}, 1, {v(t0)}
    v_xor_b32 {v(t3)}, {v(t3)}, {v(t1)}
    v_lshl_add_u32 {v(vXD)}, {v(t3)}, 4, {v(t2)}
    v_xor_b32 {v(t3)}, 4, {v(t3)}
    v_lshl_add_u32 {v(vXD + 1)}, {v(t3)}, 4, {v(t2)}
    v_add_u32 {v(vXD + 1)}, {8 * 1280}, {v(vXD + 1)}
    v_mul_lo_u32 {v(t2)}, {v(t0)}, s53
    v_lshrrev_b32 {v(t3)}, 1, {v(t1)}
    v_and_b32 {v(t4)}, 2, {v(t0)}
    v_xor_b32 {v(t3)}, {v(t3)}, {v(t4)}
    s_lshr_b32 s44, s26, 1
    v_xor_b32 {v(t3)}, s44, {v(t3)}
    v_lshl_add_u32 {v(t2)}, {v(t3)}, 5, {v(t2)}
    v_and_b32 {v(t3)}, 1, {v(t1)}
    v_lshl_add_u32 {v(t2)}, {v(t3)}, 4, {v(t2)}
    v_add_u32 {v(vWD)}, s52, {v(t2)}
    s_lshl_b32 s44, s26, 10
    v_lshl_add_u32 {v(vKD)}, {v(vL)}, 4, s44
    ''')

    def dma_group(c, kvonly=False):
        st = c % 3
        lab = a.label('nokv')
        a(f'''
        s_mul_i32 s33, s32, {c}
        s_cmp_eq_u32 s40, 0
        s_cbranch_scc1 {lab}
        s_add_u32 m0, s38, {st * 3072}
        s_mov_b32 s34, {c * 2560}
        buffer_load_dwordx4 {v(vKD)}, s[16:19], s34 offen lds
        {lab}:
        ''')
        vm.add(f'c{c}', 1, optional=True)
        if kvonly or (NODMA and c > 2):
            vm.add(f'c{c}', 1, optional=True)
            return
        for e in range(4):
            a(f'''
            s_add_u32 m0, s36, {LDS_X + st * 16384 + e * 1024}
            s_mov_b32 s34, {c * 128 + (e >> 1) * 16 * 1280}
            buffer_load_dwordx4 {v(vXD + (e & 1))}, s[8:11], s34 offen lds
            ''')
        for e in range(8):
            a(f'''
            s_add_u32 m0, s37, {st * 8192 + e * 1024}
            s_nop 0
            buffer_load_dwordx4 {v(vWD)}, s[12:15], s33 offen lds
            ''')
            if e < 7:
                a('s_add_u32 s33, s33, s31')
        vm.add(f'c{c}', 12)

    dma_group(1)
    if EARLY2:
        dma_group(2)
    a.c('@@AUXSPLIT')

    def jit(c):
        if not JIT or c > 9:
            return
        lab = a.label('nojit')
        a(f'''
        s_cmp_lg_u32 s26, 3
        s_cbranch_scc1 {lab}
        global_load_dword v165, {v(JA, 2)}, off
        v_add_co_u32 {v(JA)}, vcc, {v(JA)}, {v(JS)}
        s_nop 1
        v_addc_co_u32 {v(JA + 1)}, vcc, 0, {v(JA + 1)}, vcc
        {lab}:
        ''')
        vm.add('jit', 1, optional=True)

    if JIT:
        a(f'v_mov_b32 {v(JA)}, s68\nv_mov_b32 {v(JA + 1)}, s69')
        lab = a.label('nojs')
        a(f'''
        s_cmp_lg_u32 s26, 3
        s_cbranch_scc1 {lab}
        s_lshr_b32 s44, s2, 3
        s_and_b32 s45, s44, 7
        s_lshr_b32 s46, s44, 3
        s_lshl_b32 s46, s46, 5
        s_lshl_b32 s47, s27, 7
        s_add_u32 s46, s46, s47
        v_add_u32 {v(t0)}, s46, {v(vR)}
        v_mul_u32_u24 {v(t0)}, 1280, {v(t0)}
        v_add_u32 {v(t0)}, {128 * JIT}, {v(t0)}
        v_bfe_u32 {v(t1)}, {v(vL)}, 3, 1
        v_bfe_u32 {v(t2)}, {v(vL)}, 4, 1
        v_and_b32 {v(t3)}, s48, {v(t1)}
        v_cmp_eq_u32 s[58:59], 1, {v(t3)}
        v_cmp_eq_u32 s[60:61], 1, {v(t2)}
        v_mov_b32 {v(t4)}, 3456
        v_mov_b32 {v(t5)}, 1280
        v_cndmask_b32 {v(t4)}, {v(t4)}, {v(t5)}, s[58:59]
        s_xor_b32 s44, s48, 1
        v_and_b32 {v(t5)}, s44, {v(t1)}
        v_lshlrev_b32 {v(t5)}, 6, {v(t5)}
        v_add_u32 {v(t5)}, s49, {v(t5)}
        v_lshlrev_b32 {v(t3)}, 6, {v(t2)}
        v_add_u32 {v(t3)}, s50, {v(t3)}
        v_cndmask_b32 {v(t5)}, {v(t5)}, {v(t3)}, s[58:59]
        s_lshl_b32 s45, s45, 3
        s_add_u32 s45, s45, {64 * JIT}
        v_and_b32 {v(t3)}, 7, {v(vL)}
        v_add_u32 {v(t3)}, s45, {v(t3)}
        v_mul_lo_u32 {v(t3)}, {v(t3)}, {v(t4)}
        v_lshl_add_u32 {v(t3)}, {v(t5)}, 1, {v(t3)}
        v_cndmask_b32 {v(t0)}, {v(t0)}, {v(t3)}, {HM}
        v_lshlrev_b32 {v(t4)}, 6, {v(t4)}
        v_mov_b32 {v(t5)}, 128
        v_cndmask_b32 {v(JS)}, {v(t5)}, {v(t4)}, {HM}
        ''')
        for z in range(2):
            a(f'''
            v_mov_b32 {v(t1)}, s{80 + z}
            v_mov_b32 {v(t2)}, s{82 + z}
            v_cndmask_b32 {v(t1)}, {v(t1)}, {v(t2)}, s[60:61]
            v_mov_b32 {v(t2)}, s{70 + z}
            v_cndmask_b32 {v(t1)}, {v(t1)}, {v(t2)}, s[58:59]
            v_mov_b32 {v(t2)}, s{68 + z}
            v_cndmask_b32 {v(JA + z)}, {v(t2)}, {v(t1)}, {HM}
            ''')
        a(f'''
        v_add_co_u32 {v(JA)}, vcc, {v(JA)}, {v(t0)}
        s_nop 1
        v_addc_co_u32 {v(JA + 1)}, vcc, 0, {v(JA + 1)}, vcc
        {lab}:
        ''')
        for c in range(JIT, JITD):
            jit(c)
    srd(a, 4, 76, 256)
    lab = a.label('nononce')
    a(f'''
    s_or_b32 s44, s2, s26
    s_cmp_lg_u32 s44, 0
    s_cbranch_scc1 {lab}
    s_memrealtime s[44:45]
    s_waitcnt lgkmcnt(0)
    s_or_b32 s44, s44, 1
    v_mov_b32 {v(t0)}, s44
    s_mov_b64 exec, 1
    buffer_store_dword {v(t0)}, off, s[4:7], 0 sc1
    s_mov_b64 exec, -1
    {lab}:
    ''')
    vm.add('nonce', 1, optional=True)
    a(f'''
    s_and_b32 s56, s28, 3
    v_lshrrev_b32 {v(t0)}, 1, {v(vR)}
    v_and_b32 {v(t0)}, 7, {v(t0)}
    v_xor_b32 {v(t0)}, {v(t0)}, {v(vH)}
    s_lshl_b32 s44, s26, 1
    v_xor_b32 {v(t0)}, s44, {v(t0)}
    v_lshlrev_b32 {v(t3)}, 7, {v(vR)}
    v_lshl_add_u32 {v(t0)}, {v(t0)}, 4, {v(t3)}
    s_lshl_b32 s44, s56, 12
    v_add_u32 {v(vKX)}, s44, {v(t0)}
    v_bfe_u32 {v(t0)}, {v(vL)}, 2, 2
    v_lshl_add_u32 {v(t0)}, {v(vH)}, 3, {v(t0)}
    v_mul_u32_u24 {v(t0)}, 40, {v(t0)}
    v_bfe_u32 {v(t3)}, {v(vL)}, 4, 1
    v_and_b32 {v(t4)}, 3, {v(vL)}
    v_lshl_add_u32 {v(t3)}, {v(t3)}, 2, {v(t4)}
    v_min_u32 {v(t3)}, 4, {v(t3)}
    v_lshl_add_u32 {v(t0)}, {v(t3)}, 3, {v(t0)}
    s_mul_i32 s44, s26, 640
    s_add_u32 s44, s44, {LDS_KV}
    v_add_u32 {v(vKW)}, s44, {v(t0)}
    ''')
    for i in range(16):
        a(f'v_mov_b32 {v(AKV + i)}, 0')

    def colsum(src_tag_wait, store_code):
        a(f's_waitcnt vmcnt({src_tag_wait})')
        a(f'''
        v_lshlrev_b32 {v(t0)}, 16, {v(CR)}
        v_and_b32 {v(t1)}, 0xffff0000, {v(CR)}
        ''')
        for t in range(1, 20):
            a(f'''
            v_lshlrev_b32 {v(t2)}, 16, {v(CR + t)}
            v_and_b32 {v(t3)}, 0xffff0000, {v(CR + t)}
            v_add_f32 {v(t0)}, {v(t0)}, {v(t2)}
            v_add_f32 {v(t1)}, {v(t1)}, {v(t3)}
            ''')
        a(f'''
        s_nop 1
        v_permlane32_swap_b32 {v(t0)}, {v(t1)}
        s_nop 1
        v_add_f32 {v(t0)}, {v(t0)}, {v(t1)}
        v_cvt_pk_bf16_f32 {v(t1)}, {v(t0)}, {v(t0)}
        v_and_b32 {v(t1)}, 0xffff0000, {v(t1)}
        v_sub_f32 {v(t1)}, {v(t0)}, {v(t1)}
        v_cvt_pk_bf16_f32 {v(t0)}, {v(t0)}, {v(t1)}
        ''')
        store_code()

    a('''
    s_lshl_b32 s41, s27, 10
    s_and_b32 s44, s28, 11
    s_cmp_eq_u32 s44, 0
    s_cselect_b32 s42, 1, 0
    s_cmp_eq_u32 s26, 3
    s_cselect_b32 s42, s42, 0
    ''')

    def kv_step(c, part):
        st = c % 3
        lab = a.label('kvs')
        a(f's_cmp_eq_u32 s54, 0\ns_cbranch_scc1 {lab}')
        if part == 0:
            a(f'''
            ds_read_b128 {v(KXF, 4)}, {v(vKX)} offset:{LDS_X + st * 16384}
            ds_read_b64_tr_b16 {v(KWF, 2)}, {v(vKW)} offset:{st * 3072}
            ds_read_b64_tr_b16 {v(KWF + 2, 2)}, {v(vKW)} offset:{st * 3072 + 160}
            ''')
        else:
            a('s_waitcnt lgkmcnt(0)')
            a(mfma16(AKV, KWF, KXF, AKV))
        a(f'{lab}:')

    for c in range(10):
        a.c(f'aux chunk {c}')
        if c == 0:
            stamp(a, 22)
        elif c <= 8:
            a(f's_waitcnt vmcnt({vm.wait(f"c{c}") if c != 5 else min(vm.wait("c5"), vm.wait("st"), vm.wait("nl"))})')
        else:
            a('s_waitcnt vmcnt(0)')
        a('s_barrier')
        if not FEWST or c in (0, 1, 2, 9):
            stamp(a, 1 + c)
        if asmlib.STAMPS:
            vm.add('stamp', 1, optional=True)
        if c == 3:
            a(f'buffer_load_dword {v(PF)}, off, s[4:7], 0 sc1')
            vm.add('nl', 1)
        kv_step(c, 0)
        jit(c + JITD)
        if (1 if EARLY2 else 0) <= c and c + 2 < 10:
            dma_group(c + 2)
        kv_step(c, 1)
        if c == 2:
            lab = a.label('nokvcs')
            a(f'''
            s_cmp_eq_u32 s42, 0
            s_cbranch_scc1 {lab}
            s_mul_i32 s44, s27, 40
            v_add_u32 {v(t1)}, s44, {v(vH)}
            v_mul_u32_u24 {v(t2)}, 40, {v(t1)}
            v_lshl_add_u32 {v(t2)}, {v(vR)}, 2, {v(t2)}
            ''')
            for t in range(20):
                a(f'buffer_load_dword {v(CR + t)}, {v(t2)}, s[16:19], 0 offen offset:{80 * t}')
            a(f'{lab}:')
            vm.add('kcr', 20, optional=True)
        if c == 3:
            lab = a.label('nokvcs2')
            a(f's_cmp_eq_u32 s42, 0\ns_cbranch_scc1 {lab}')

            def kcs_store():
                a(f'''
                v_lshl_add_u32 {v(t1)}, {v(vR)}, 1, {v(vH)}
                v_lshlrev_b32 {v(t2)}, 2, {v(t1)}
                v_mov_b32 {v(t3)}, 0x7f000000
                v_cmp_gt_u32 vcc, 32, {v(t1)}
                s_lshl_b32 s44, s28, 9
                s_lshl_b32 s45, s27, 7
                s_add_u32 s44, s44, s45
                s_add_u32 s44, s44, {CSKVW}
                v_cndmask_b32 {v(t2)}, {v(t3)}, {v(t2)}, vcc
                buffer_store_dword {v(t0)}, {v(t2)}, s[20:23], s44 offen sc1
                ''')
            colsum(vm.wait('kcr'), kcs_store)
            a(f'{lab}:')
            vm.add('st', 1, optional=True)
        if c == 5:
            Lp = a.label('np')
            Lq = a.label('npd')
            Lr = a.label('nokcf')
            a(f'''
            s_mov_b32 s93, {POLL_MAX}
            {Lp}:
            v_readfirstlane_b32 s98, {v(PF)}
            s_cmp_lg_u32 s98, 0
            s_cbranch_scc1 {Lq}
            s_sub_u32 s93, s93, 1
            s_cbranch_scc1 {Lq}
            buffer_load_dword {v(PF)}, off, s[4:7], 0 sc1
            s_waitcnt vmcnt(0)
            s_branch {Lp}
            {Lq}:
            s_xor_b32 s99, s98, {NONCE_X}
            s_lshl_b32 s44, s28, 9
            s_lshl_b32 s45, s27, 7
            s_add_u32 s44, s44, s45
            s_add_u32 s44, s44, {F_KC}
            s_cmp_eq_u32 s42, 0
            s_cbranch_scc1 {Lr}
            ''')
            flag_store(a, 's44', T + 2)
            a(f'{Lr}:')
            vm.add('fl', 1, optional=True)
        if P1PF and c in (6, 7):
            if c == 6:
                srd(a, 4, WDP, 2211840)
                a(f'''
                s_lshr_b32 s44, s2, 6
                s_mul_i32 s44, s44, {432 * 1280}
                s_bfe_u32 s45, s2, 0x30003
                s_mul_i32 s45, s45, {180 * 128}
                s_add_u32 s44, s44, s45
                s_mul_i32 s45, s26, {45 * 128}
                s_add_u32 s57, s44, s45
                v_lshlrev_b32 {v(PF + 1)}, 7, {v(vL)}
                ''')
            for z in range(2 if c == 6 else 1):
                a(f'''
                s_mov_b32 exec_hi, {(1 << 13) - 1}
                buffer_load_dword v165, {v(PF + 1)}, s[4:7], s57 offen
                s_mov_b32 exec_hi, -1
                s_add_u32 s57, s57, {144 * 1280}
                ''')
                vm.add('pf', 1)
        if c == 8:
            def p3():
                a(f'''
                v_lshlrev_b32 {v(T + 10)}, 7, {v(vL)}
                v_and_b32 {v(T + 11)}, 0x780, {v(T + 10)}
                s_lshl_b32 s44, s27, 13
                s_add_u32 s44, s44, {F_ST}
                s_lshl_b32 s45, s28, 13
                s_add_u32 s45, s45, {F_CS}
                s_and_b32 s58, s28, 4
                s_lshl_b32 s58, s58, 9
                s_add_u32 s58, s58, {F_KC}
                ''')
                polln(a, T + 4 - 4 + 12 - 12 + 4 if False else FX, [T + 10, T + 10, T + 11], [('s44', None), ('s45', None), ('s58', None)], 4)
            a(f'v_lshlrev_b32 {v(T + 8)}, 3, {v(vL)}')
            one_poller(a, T, 3, p3)
            a(f'''
            v_lshlrev_b32 {v(T + 9)}, 4, {v(vL)}
            s_lshl_b32 s44, s28, 14
            s_lshl_b32 s45, s26, 12
            s_add_u32 s44, s44, s45
            s_add_u32 s44, s44, {CSW}
            ''')
            for e in range(4):
                a(f'''
                s_add_u32 m0, s45, {CS_A + 1024 * e}
                s_nop 0
                buffer_load_dwordx4 {v(T + 9)}, s[20:23], s44 offen{LD} lds
                s_add_u32 s44, s44, 1024
                ''')
            lab = a.label('norc')
            a(f'''
            s_cmp_lg_u32 s26, 0
            s_cbranch_scc1 {lab}
            s_lshl_b32 s44, s27, 11
            s_add_u32 s44, s44, {ROWW}
            s_mov_b32 m0, {ROWC_A}
            s_and_b32 s45, s28, 4
            buffer_load_dwordx4 {v(T + 9)}, s[20:23], s44 offen{LD} lds
            buffer_load_dwordx4 {v(T + 9)}, s[20:23], s44 offen offset:1024{LD} lds
            s_lshl_b32 s45, s45, 9
            s_add_u32 s45, s45, {CSKVW}
            s_mov_b32 m0, {CSKV_A}
            s_nop 0
            buffer_load_dwordx4 {v(T + 9)}, s[20:23], s45 offen{LD} lds
            buffer_load_dwordx4 {v(T + 9)}, s[20:23], s45 offen offset:1024{LD} lds
            {lab}:
            ''')
    lab = a.label('nokvfin')
    lab2 = a.label('nofix')
    a(f'''
    s_cmp_eq_u32 s54, 0
    s_cbranch_scc1 {lab}
    s_cmp_lg_u32 s26, 0
    s_cbranch_scc1 {lab2}
    s_lshl_b32 s44, s56, 9
    s_add_u32 s44, s44, {ROWC_A}
    v_lshl_add_u32 {v(t0)}, {v(vR)}, 4, s44
    v_lshlrev_b32 {v(t1)}, 2, {v(vR)}
    v_lshl_add_u32 {v(t1)}, {v(vH)}, 9, {v(t1)}
    v_add_u32 {v(t1)}, {CSKV_A}, {v(t1)}
    v_add_u32 {v(t2)}, 1024, {v(t1)}
    ds_read_b128 {v(FX, 4)}, {v(t0)}
    ds_read2_b32 {v(FX + 8, 2)}, {v(t1)} offset0:0 offset1:32
    ds_read2_b32 {v(FX + 10, 2)}, {v(t1)} offset0:64 offset1:96
    ds_read2_b32 {v(FX + 12, 2)}, {v(t2)} offset0:0 offset1:32
    ds_read2_b32 {v(FX + 14, 2)}, {v(t2)} offset0:64 offset1:96
    s_waitcnt lgkmcnt(4)
    v_mov_b32 {v(FX + 4)}, {v(FX)}
    v_mov_b32 {v(FX + 5)}, {v(FX)}
    v_mov_b32 {v(FX + 6)}, {v(FX)}
    v_mov_b32 {v(FX + 7)}, {v(FX)}
    s_waitcnt lgkmcnt(0)
    s_nop 1
    {mfma16(AKV, FX + 8, FX + 4, AKV)}
    {mfma16(AKV, FX + 12, FX + 4, AKV)}
    {lab2}:
    s_lshl_b32 s44, s26, 12
    v_add_u32 {v(t0)}, s44, {v(T + 9)}
    s_nop 15
    ''')
    for q in range(3):
        a(f'ds_write_b128 {v(t0)}, {v(AKV + 4 * q, 4)} offset:{PART_A + 1024 * q}')
    a(f'''
    {lab}:
    s_waitcnt lgkmcnt(0)
    ''')
    stamp(a, 11)
    a('s_barrier')
    stamp(a, 12)
    L_p2 = a.label('auxp2')
    L_v = a.label('vepi')
    a(f'''
    s_cmp_eq_u32 s54, 0
    s_cbranch_scc1 {L_p2}
    s_cmp_lg_u32 s26, 0
    s_cbranch_scc1 {L_p2}
    ''')
    for w in range(1, 4):
        for q in range(3):
            a(f'ds_read_b128 {v(RD + 12 * (w - 1) + 4 * q, 4)}, {v(T + 9)} offset:{PART_A + 4096 * w + 1024 * q}')
    a(f'''
    s_lshl_b32 s57, s27, 2
    s_add_u32 s57, s57, s56
    s_lshr_b32 s44, s57, 1
    s_mul_i32 s44, s44, 7168
    s_add_u32 s44, s44, {KV_OFF}
    s_and_b32 s45, s57, 1
    s_and_b32 s58, s28, 4
    s_lshl_b32 s58, s58, 4
    s_add_u32 s58, s58, s57
    s_lshl_b32 s58, s58, 7
    s_add_u32 s58, s58, {F_KV}
    s_waitcnt lgkmcnt(0)
    ''')
    for i in range(0, 12, 2):
        a(f'v_pk_add_f32 {v(AKV + i, 2)}, {v(AKV + i, 2)}, {v(RD + i, 2)}')
        a(f'v_pk_add_f32 {v(RD + 12 + i, 2)}, {v(RD + 12 + i, 2)}, {v(RD + 24 + i, 2)}')
    for i in range(0, 12, 2):
        a(f'v_pk_add_f32 {v(AKV + i, 2)}, {v(AKV + i, 2)}, {v(RD + 12 + i, 2)}')
    for i in range(0, 12, 2):
        a(f'v_pk_mul_f32 {v(AKV + i, 2)}, {v(AKV + i, 2)}, {v(FX, 2)} op_sel:[0,1] op_sel_hi:[1,1]')
    PK = RD
    for i in range(6):
        a(f'v_cvt_pk_bf16_f32 {v(PK + i)}, {v(AKV + 2 * i)}, {v(AKV + 2 * i + 1)}')
    L_kvf = a.label('kvflag')
    a(f'''
    s_bitcmp1_b32 s28, 2
    s_cbranch_scc1 {L_v}
    v_mov_b32 {v(t0)}, 0x3f803f80
    v_mov_b32 {v(t1)}, 0x00003f80
    v_cndmask_b32 {v(PK + 4)}, {v(PK + 4)}, {v(t0)}, {HM}
    v_cndmask_b32 {v(PK + 5)}, {v(PK + 5)}, {v(t1)}, {HM}
    s_lshl_b32 s46, s45, 10
    s_add_u32 s46, s46, s44
    s_lshl_b32 s47, s45, 9
    s_add_u32 s47, s47, s44
    buffer_store_dwordx4 {v(PK, 4)}, {v(T + 9)}, s[20:23], s46 offen sc1
    buffer_store_dwordx2 {v(PK + 4, 2)}, {v(T + 8)}, s[20:23], s47 offen offset:2048 sc1
    s_branch {L_kvf}
    {L_v}:
    v_mov_b32 {v(t0)}, 0
    v_cndmask_b32 {v(PK + 4)}, {v(PK + 4)}, {v(t0)}, {HM}
    v_cndmask_b32 {v(PK + 5)}, {v(PK + 5)}, {v(t0)}, {HM}
    v_mov_b32 {v(PK + 6)}, 0x00003f80
    v_mov_b32 {v(PK + 7)}, 0
    v_lshlrev_b32 {v(t0)}, 6, {v(vR)}
    v_lshl_add_u32 {v(t3)}, {v(vH)}, 4, {v(t0)}
    v_lshl_add_u32 {v(t0)}, {v(vH)}, 3, {v(t0)}
    ds_write_b128 {v(t3)}, {v(PK, 4)} offset:{VT_A}
    ds_write_b64 {v(t0)}, {v(PK + 4, 2)} offset:{VT_A + 32}
    ds_write_b64 {v(t0)}, {v(PK + 6, 2)} offset:{VT_A + 48}
    v_bfe_u32 {v(t1)}, {v(vL)}, 2, 2
    v_lshl_add_u32 {v(t1)}, {v(vH)}, 2, {v(t1)}
    v_lshlrev_b32 {v(t1)}, 6, {v(t1)}
    v_bfe_u32 {v(t2)}, {v(vL)}, 4, 1
    v_lshl_add_u32 {v(t1)}, {v(t2)}, 5, {v(t1)}
    v_and_b32 {v(t2)}, 3, {v(vL)}
    v_lshl_add_u32 {v(t1)}, {v(t2)}, 3, {v(t1)}
    s_waitcnt lgkmcnt(0)
    ds_read_b64_tr_b16 {v(PK + 8, 2)}, {v(t1)} offset:{VT_A}
    ds_read_b64_tr_b16 {v(PK + 10, 2)}, {v(t1)} offset:{VT_A + 512}
    ds_read_b64_tr_b16 {v(PK + 12, 2)}, {v(t1)} offset:{VT_A + 1024}
    ds_read_b64_tr_b16 {v(PK + 14, 2)}, {v(t1)} offset:{VT_A + 1536}
    s_lshl_b32 s46, s45, 11
    s_add_u32 s46, s46, s44
    s_add_u32 s46, s46, 3072
    s_waitcnt lgkmcnt(0)
    buffer_store_dwordx4 {v(PK + 8, 4)}, {v(T + 9)}, s[20:23], s46 offen sc1
    buffer_store_dwordx4 {v(PK + 12, 4)}, {v(T + 9)}, s[20:23], s46 offen offset:1024 sc1
    {L_kvf}:
    s_waitcnt vmcnt(0)
    ''')
    flag_store(a, 's58', T + 2)
    a(f'{L_p2}:')
    stamp(a, 13)

    a.c('=========== aux wave: phase 2 ===========')
    al = Alloc(4, 164)
    T = al('T', 8, 4)
    vWD = al('wd', 3)
    vWA = al('wa', 3)
    vHL = al('hl')
    vKO = al('ko')
    vPF = al('pf')
    ACC = al('acc', 80, 4)
    SL = al('slots', 60, 4)
    wreg = lambda k: SL + 20 * (k % 3)
    hreg = lambda k: SL + 20 * (k % 3) + 12
    a(f's_setprio {PRIO2}')
    g2_ids(a)
    srd(a, 12, WDP, 2211840)
    srd(a, 16, 84, 819200)
    a(f"""
    s_mul_i32 s44, s26, 27
    s_mul_i32 s41, s59, 108
    s_add_u32 s41, s41, s44
    s_lshl_b32 s41, s41, 10
    s_mul_i32 s42, s60, 108
    s_add_u32 s42, s42, s44
    s_lshl_b32 s42, s42, 10
    s_mul_i32 s43, s44, 20480
    s_mov_b32 s52, 20480
    s_lshl_b32 s44, s26, 3
    s_mul_i32 s56, s44, 25600
    s_mul_i32 s54, s59, 40
    s_add_u32 s54, s54, s44
    s_lshl_b32 s54, s54, 10
    s_add_u32 s54, s54, {OF_OFF}
    s_mul_i32 s55, s60, 40
    s_add_u32 s55, s55, s44
    s_lshl_b32 s55, s55, 10
    s_add_u32 s55, s55, {OF_OFF}
    s_and_b32 s44, s26, 1
    s_mul_i32 s39, s44, 21504
    s_lshr_b32 s44, s26, 1
    s_mul_i32 s44, s44, {WO_HI}
    s_add_u32 s39, s39, s44
    s_mov_b32 s40, s39
    s_mov_b32 s45, 0x15556
    v_lshlrev_b32 {v(vHL)}, 4, {v(vL)}
    v_lshlrev_b32 {v(vPF)}, 7, {v(vL)}
    s_lshl_b32 s36, s26, 12
    s_min_u32 s36, s36, 10240
    v_add_u32 {v(vKO)}, s36, {v(vHL)}
    """)
    for p in range(3):
        a(f"""
        v_add_u32 {v(T)}, {64 * p}, {v(vL)}
        v_mul_lo_u32 {v(T + 1)}, {v(T)}, s45
        v_lshrrev_b32 {v(T + 1)}, 20, {v(T + 1)}
        v_mul_u32_u24 {v(T + 2)}, 12, {v(T + 1)}
        v_sub_u32 {v(T + 2)}, {v(T)}, {v(T + 2)}
        v_mul_u32_u24 {v(T + 1)}, 1280, {v(T + 1)}
        v_lshl_add_u32 {v(T + 1)}, {v(T + 2)}, 4, {v(T + 1)}
        v_add_u32 {v(vWD + p)}, s61, {v(T + 1)}
        """)
    a(f"""
    v_bfe_u32 {v(T)}, {v(vL)}, 2, 2
    v_lshl_add_u32 {v(T)}, {v(vH)}, 3, {v(T)}
    v_mul_u32_u24 {v(T)}, 192, {v(T)}
    v_bfe_u32 {v(T + 1)}, {v(vL)}, 4, 1
    v_lshl_add_u32 {v(T)}, {v(T + 1)}, 5, {v(T)}
    v_and_b32 {v(T + 1)}, 3, {v(vL)}
    v_lshl_add_u32 {v(T)}, {v(T + 1)}, 3, {v(T)}
    v_add_u32 {v(T)}, s39, {v(T)}
    s_lshl_b32 s44, s58, 6
    s_add_u32 s45, s44, 64
    s_lshl_b32 s46, s58, 7
    s_sub_u32 s46, 128, s46
    v_add_u32 {v(vWA)}, s44, {v(T)}
    v_add_u32 {v(vWA + 1)}, s45, {v(T)}
    v_add_u32 {v(vWA + 2)}, s46, {v(T)}
    """)
    vm = VM()

    def w_dma(base, off):
        out = []
        for p in range(3):
            out.append([f's_add_u32 m0, {base}, {off + p * 1024}', 's_nop 0',
                        f'buffer_load_dwordx4 {v(vWD + p)}, s[12:15], s43 offen lds'])
        out[2].append('s_add_u32 s43, s43, s52')
        return out

    def h_ld(k, e):
        hs = ('s41', 's42')[e]
        return [f'buffer_load_dwordx4 {v(hreg(k) + 4 * e, 4)}, {v(vHL)}, s[20:23], {hs} offen', f's_add_u32 {hs}, {hs}, 1024']

    def w_rd(k, off):
        return [f'ds_read_b64_tr_b16 {v(wreg(k) + 4 * b + 2 * t, 2)}, {v(vWA + b)} offset:{off + 768 * t}'
                for b in range(3) for t in range(2)]

    def g_mfmas(k):
        return [mfma16(ACC + 16 * n, wreg(k) + 4 * b, hreg(k) + 4 * e, ACC + 16 * n)
                for n, (b, e) in enumerate(((0, 0), (0, 1), (1, 0), (1, 1), (2, 0)))]

    def kv_dma(c):
        st = c % NST
        for e in range(4):
            a(f"""
            s_add_u32 m0, s36, {KVR + st * CH_BYTES + e * 1024}
            s_mov_b32 s38, {KV_OFF + c * CH_BYTES + e * 1024}
            buffer_load_dwordx4 {v(vKO)}, s[20:23], s38 offen lds
            """)
        vm.add(f'kv{c}', 4)

    for i in range(80):
        a(f'v_mov_b32 {v(ACC + i)}, 0')
    srd(a, 4, WDP, 2211840)
    a(f'''
    s_lshr_b32 s44, s2, 6
    s_mul_i32 s44, s44, {432 * 1280}
    s_bfe_u32 s45, s2, 0x30003
    s_lshl_b32 s45, s45, 2
    s_add_u32 s45, s45, s26
    s_mul_i32 s45, s45, {15 * 128}
    s_add_u32 s32, s44, s45
    s_mov_b32 s31, {48 * 1280}
    ''')

    def paced():
        a(f'''
        s_mov_b64 exec, 0x7fff
        buffer_load_dword v165, {v(vPF)}, s[4:7], s32 offen
        s_mov_b64 exec, -1
        s_add_u32 s32, s32, s31
        ''')
        vm.add('pf', 1)

    qmask = 0
    for j in range(16):
        for cp in range(4):
            if not (j >= 11 and cp >= 2):
                qmask |= 1 << (j * 4 + cp)
    Lq = a.label('pqd')
    a(f"""
    s_mov_b32 s50, {qmask & 0xffffffff}
    s_mov_b32 s51, {qmask >> 32}
    s_lshl_b32 s53, s29, 13
    s_add_u32 s53, s53, {F_QH}
    s_lshr_b32 s44, s30, 2
    s_lshl_b32 s45, s29, 1
    s_add_u32 s44, s44, s45
    s_mul_i32 s44, s44, 40960
    s_and_b32 s45, s30, 3
    s_mul_i32 s45, s45, 10240
    s_add_u32 s44, s44, s45
    s_add_u32 s44, s44, {QF_OFF}
    s_cmp_lg_u32 s26, 3
    s_cbranch_scc1 {Lq}
    s_andn2_b64 exec, exec, s[50:51]
    """)
    poll(a, T + 4, vPF, 's53', ignore='s[50:51]')
    a(f's_mov_b64 exec, -1')
    for z in range(3):
        a(f's_mov_b32 m0, {Q_A + 4096 * z}')
        a('s_nop 0' if z == 0 else 's_add_u32 s44, s44, 4096')
        for y in range(4 if z < 2 else 2):
            a(f'buffer_load_dwordx4 {v(vHL)}, s[20:23], s44 offen offset:{1024 * y} lds')
    a(f'{Lq}:')
    stamp(a, 14)

    def kv_poll():
        a(f's_mov_b32 s45, {F_KV}\ns_mov_b32 s44, {F_KV + 8192}\ns_sleep {KVSL}')
        polln(a, T + 4, vPF, [('s45', None), ('s44', None)], 4)
    one_poller(a, T, 0, kv_poll, who=2)
    stamp(a, 15)
    kv_dma(0)
    kv_dma(1)
    kv_dma(2)

    def prefetch(kind, b=0):
        n = {'wd': 60, 'wo': 64, 'h': 54}[kind]
        lab = a.label('nopf')
        if kind != 'h':
            a(f's_cmp_eq_u32 s26, 3\ns_cbranch_scc1 {lab}')
        if kind == 'wd':
            a(f"""
            s_lshr_b32 s44, s2, 6
            s_mul_i32 s44, s44, {432 * 1280}
            s_bfe_u32 s45, s2, 0x30003
            s_mul_i32 s45, s45, {180 * 128}
            s_add_u32 s44, s44, s45
            s_mul_i32 s45, s26, {60 * 128}
            s_add_u32 s44, s44, s45
            s_add_u32 s44, s44, {144 * 1280 * b}
            """)
            r = 's[12:15]'
        elif kind == 'wo':
            a(f"""
            s_lshr_b32 s44, s2, 3
            s_mul_i32 s44, s44, {200 * 128}
            s_mul_i32 s45, s26, {68 * 128}
            s_add_u32 s44, s44, s45
            """)
            r = 's[16:19]'
        else:
            a(f"""
            s_mul_i32 s44, s29, {216 * 1024}
            s_lshl_b32 s45, s30, 2
            s_add_u32 s45, s45, s26
            s_mul_i32 s45, s45, {54 * 128}
            s_add_u32 s44, s44, s45
            """)
            r = 's[20:23]'
        m = (1 << n) - 1
        a(f"""
        s_mov_b32 exec_hi, {m >> 32}
        buffer_load_dword v165, {v(vPF)}, {r}, s44 offen
        s_mov_b32 exec_hi, -1
        {lab}:
        """)
        vm.add('pf', 1, optional=True)
    a(f's_waitcnt vmcnt({vm.wait("kv0")})')
    a('s_barrier')
    stamp(a, 16)

    def body(last):
        for z in range(3):
            a(f's_waitcnt vmcnt({10 if not last else (10, 8, 6)[z]}) lgkmcnt(0)')
            ms = g_mfmas(z)
            if z == 2:
                for b in range(3):
                    a(f'v_add_u32 {v(vWA + b)}, s33, {v(vWA + b)}')
                rd = w_rd(0, 0)
            else:
                rd = w_rd(z + 1, 3072 * (z + 1))
            wd_ = w_dma('s40', 3072 * z)
            a(ms[0]); emit(a, rd[0:2]); emit(a, [wd_[0]]); a(SPACE)
            a(ms[1]); emit(a, rd[2:4]); emit(a, [wd_[1]]); a(SPACE)
            a(ms[3]); emit(a, rd[4:6]); emit(a, [wd_[2]]); a(SPACE)
            a(ms[2])
            if not last:
                emit(a, h_ld(z, 1))
            a(SPACE)
            a(ms[4])
            if not last:
                emit(a, h_ld(z, 0))
        a('s_add_u32 s40, s40, s33\ns_sub_u32 s33, 0, s33')

    NSTAT = int(ENV.get('NSTAT', '5'))
    for c in range(NSTAT):
        a.c(f'aux B{c}')
        a(f's_waitcnt vmcnt({vm.wait(f"kv{c + 1}")})')
        bstamp(a, c == 0)
        a('s_barrier')
        bstamp(a)
        kv_dma(c + 3)
        if WDC <= c < WDC + 2:
            for k in range(3 * (c - WDC), 3 * (c - WDC) + 3):
                emit(a, w_dma('s39', 3072 * k))
            vm.add('w', 9)
        paced()
    L_top, L_nb, L_sw, L_end2 = a.label('dtop'), a.label('dnb'), a.label('dsw'), a.label('dend')
    L_act, L_bar, L_nokv = a.label('dact'), a.label('dbar'), a.label('dnokv')
    L_s0, L_body, L_last, L_wo, L_next = a.label('ds0'), a.label('dbody'), a.label('dlast'), a.label('dwo'), a.label('dnext')
    L_w0 = a.label('dw0')
    L_w1 = a.label('dw1')
    L_n1 = a.label('dn1')
    L_oth, L_start, L_rei, L_nsw = a.label('doth'), a.label('dstart'), a.label('drei'), a.label('dnsw')
    a(f"""
    s_mov_b32 s34, {16 - NSTAT}
    s_mov_b32 s35, 0
    s_mov_b32 s37, {((NSTAT + 3) % NST) * CH_BYTES}
    s_mov_b32 s38, {KV_OFF + (NSTAT + 3) * CH_BYTES}
    s_mov_b32 s33, 9216
    s_mov_b32 s93, {POLL_MAX}
    v_mov_b32 {v(T + 3)}, {RDY_A + 4}
    {L_top}:
    s_sub_u32 s44, s35, 2
    s_cmp_lt_u32 s44, 8
    s_cbranch_scc1 {L_act}
    s_cmp_gt_u32 s35, 1
    s_cbranch_scc1 {L_w0}
    s_cmp_le_u32 s34, 3
    s_cbranch_scc1 {L_w0}
    s_cmp_eq_u32 s35, 1
    s_cbranch_scc1 {L_w1}
    s_waitcnt vmcnt(4)
    s_branch {L_bar}
    {L_w1}:
    s_waitcnt vmcnt(7)
    s_branch {L_bar}
    {L_w0}:
    s_waitcnt vmcnt(0)
    s_branch {L_bar}
    {L_act}:
    s_waitcnt vmcnt(16)
    {L_bar}:
    s_cmp_eq_u32 s34, 0
    s_cbranch_scc1 {L_nb}
    """)
    bstamp(a)
    a('s_barrier')
    bstamp(a)
    a(f"""
    s_cmp_le_u32 s34, 3
    s_cbranch_scc1 {L_nokv}
    s_add_u32 s44, s36, s37
    """)
    for e in range(4):
        a(f"""
        s_add_u32 m0, s44, {KVR + e * 1024}
        s_add_u32 s45, s38, {e * 1024}
        buffer_load_dwordx4 {v(vKO)}, s[20:23], s45 offen lds
        """)
    a(f"""
    s_add_u32 s38, s38, {CH_BYTES}
    s_add_u32 s37, s37, {CH_BYTES}
    s_cmp_eq_u32 s37, {CH_BYTES * NST}
    s_cselect_b32 s37, 0, s37
    {L_nokv}:
    s_sub_u32 s34, s34, 1
    s_branch {L_sw}
    {L_nb}:
    s_cmp_eq_u32 s35, 11
    s_cbranch_scc1 {L_end2}
    {L_sw}:
    s_cmp_eq_u32 s35, 0
    s_cbranch_scc1 {L_s0}
    s_cmp_lt_u32 s35, 9
    s_cbranch_scc1 {L_body}
    s_cmp_eq_u32 s35, 9
    s_cbranch_scc1 {L_last}
    s_cmp_eq_u32 s35, 10
    s_cbranch_scc1 {L_wo}
    s_branch {L_top}
    {L_s0}:
    s_sub_u32 s93, s93, 1
    s_cbranch_scc1 {L_start}
    s_cmp_lg_u32 s26, 3
    s_cbranch_scc1 {L_oth}
    buffer_load_dwordx2 {v(T + 4, 2)}, {v(vPF)}, s[20:23], s53 offen sc1
    s_waitcnt vmcnt(0)
    v_cmp_eq_u64 vcc, s[98:99], {v(T + 4, 2)}
    s_nop 1
    s_cmp_eq_u64 vcc, -1
    s_cselect_b32 s44, s98, s34
    v_mov_b32 {v(T + 2)}, s44
    ds_write_b32 {v(T + 3)}, {v(T + 2)}
    s_cbranch_scc1 {L_start}
    s_branch {L_top}
    {L_oth}:
    s_mov_b32 s45, 40
    {L_rei}:
    s_sleep 1
    ds_read_b32 {v(T + 2)}, {v(T + 3)}
    s_waitcnt lgkmcnt(0)
    v_readfirstlane_b32 s44, {v(T + 2)}
    s_cmp_eq_u32 s44, s98
    s_cbranch_scc1 {L_start}
    s_cmp_eq_u32 s44, s34
    s_cbranch_scc1 {L_top}
    s_sub_u32 s45, s45, 1
    s_cbranch_scc0 {L_rei}
    s_branch {L_top}
    {L_start}:
    """)
    stamp(a, 23)
    for k in range(3):
        for e in range(2):
            emit(a, h_ld(k, e))
    prefetch('h')
    emit(a, w_rd(0, 0))
    a(f"""
    {L_next}:
    s_add_u32 s35, s35, 1
    s_branch {L_top}
    {L_body}:
    s_cmp_lg_u32 s35, 1
    s_cbranch_scc1 {L_n1}
    s_waitcnt vmcnt(0)
    {L_n1}:
    s_cmp_lg_u32 s35, 8
    s_cbranch_scc1 {L_nsw}
    s_mov_b32 s12, s16
    s_mov_b32 s13, s17
    s_mov_b32 s14, 819200
    s_mov_b32 s43, s56
    s_mov_b32 s52, 25600
    {L_nsw}:
    """)
    body(False)
    lab = a.label('npsw')
    a(f'''
    s_cmp_lg_u32 s35, {10 - NSTAT}
    s_cbranch_scc1 {lab}
    s_mov_b32 s4, s16
    s_mov_b32 s5, s17
    s_mov_b32 s6, 819200
    s_lshr_b32 s44, s2, 3
    s_lshl_b32 s44, s44, 2
    s_add_u32 s44, s44, s26
    s_mul_i32 s32, s44, {50 * 128}
    s_mov_b32 s31, {13 * 128}
    {lab}:
    ''')
    paced()
    a(f's_branch {L_next}\n{L_last}:')
    body(True)
    a(f's_branch {L_next}\n{L_wo}:')
    stamp(a, 17)
    emit(a, w_rd(1, 3072) + w_rd(2, 6144))
    a('s_mov_b32 s45, 0x15556\ns_waitcnt lgkmcnt(0)')
    emit(a, w_dma('s39', 3072 * 3))
    emit(a, w_dma('s39', 3072 * 4))
    for p in range(3):
        a(f"""
        v_add_u32 {v(T)}, {64 * p}, {v(vL)}
        v_mul_lo_u32 {v(T + 1)}, {v(T)}, s45
        v_lshrrev_b32 {v(T + 1)}, 22, {v(T + 1)}
        v_mul_u32_u24 {v(T + 1)}, {16 * 1280}, {v(T + 1)}
        v_add_u32 {v(vWD + p)}, {v(vWD + p)}, {v(T + 1)}
        """)
    a(f's_add_u32 s43, s56, {16 * 1280}\ns_mov_b32 s52, {80 * 1280}')
    emit(a, w_dma('s39', 3072 * 5))
    emit(a, w_dma('s39', 3072 * 6))
    a(f's_branch {L_next}\n{L_end2}:')
    a(f"""
    v_subrev_u32 {v(vWA)}, 9216, {v(vWA)}
    v_subrev_u32 {v(vWA + 1)}, 9216, {v(vWA + 1)}
    v_subrev_u32 {v(vWA + 2)}, 9216, {v(vWA + 2)}
    s_mul_i32 s44, s26, 14336
    s_add_u32 s44, s44, {OL_A}
    v_add_u32 {v(vKO)}, s44, {v(vHL)}
    v_and_b32 {v(T)}, 7, {v(vR)}
    v_xor_b32 {v(T)}, {v(T)}, {v(vH)}
    v_lshlrev_b32 {v(T + 1)}, 7, {v(vR)}
    v_add_u32 {v(T + 1)}, s39, {v(T + 1)}
    """)
    for jp in range(4):
        a(f"""
        v_xor_b32 {v(T + 2)}, {2 * jp}, {v(T)}
        v_lshl_add_u32 {v(T + 4 + jp)}, {v(T + 2)}, 4, {v(T + 1)}
        """)
    stamp(a, 18)
    a('s_barrier')
    Lp, Lq = a.label('op'), a.label('opd')
    a(f's_mov_b32 s93, {OPOLL_MAX}\n{Lp}:')
    for k in range(27, 30):
        for e in range(2):
            a(f'buffer_load_dwordx4 {v(hreg(k) + 4 * e, 4)}, {v(vHL)}, s[20:23], s{54 + e} offen offset:{1024 * (k - 27)} sc1')
    a('s_waitcnt vmcnt(0)')
    regs = [hreg(k) + i for k in range(27, 30) for i in range(8)]
    a(f'v_max3_u32 {v(T)}, {v(regs[0])}, {v(regs[1])}, {v(regs[2])}')
    for i in range(3, 23, 2):
        a(f'v_max3_u32 {v(T)}, {v(T)}, {v(regs[i])}, {v(regs[i + 1])}')
    a(f"""
    v_max_u32 {v(T)}, {v(T)}, {v(regs[23])}
    v_cmp_eq_u32 vcc, -1, {v(T)}
    s_nop 1
    s_cmp_eq_u64 vcc, 0
    s_cbranch_scc1 {Lq}
    s_sub_u32 s93, s93, 1
    s_cbranch_scc1 {Lq}
    s_sleep {OSLEEP}
    s_branch {Lp}
    {Lq}:
    """)
    stamp(a, 19)

    def o_rd(k):
        return [f'ds_read_b128 {v(hreg(k) + 4 * e, 4)}, {v(vKO)} offset:{(k - 30) * 2048 + 1024 * e}' for e in range(2)]

    for k in range(27, 30):
        emit(a, g_mfmas(k))
        emit(a, w_rd(k + 3, 3072 * (k - 27)))
    a('s_waitcnt lgkmcnt(0)')
    a('s_barrier')
    stamp(a, 30)
    for k in range(30, 33):
        emit(a, o_rd(k))
    XO = SL + 40
    for k in range(30, 37):
        n = {30: 4, 31: 10, 32: 15, 33: 15, 34: 15, 35: 8, 36: 0}[k]
        n = min(n, 8) if k >= 32 else n
        a(f's_waitcnt lgkmcnt({n})')
        emit(a, g_mfmas(k))
        if k + 3 < 37:
            emit(a, w_rd(k + 3, 3072 * (k + 3 - 30)) + o_rd(k + 3))
        if k == 35:
            g2_out(a, XO, vL, 's24', 0)
    a('s_nop 7')
    stamp(a, 20)
    for n in range(5):
        for jp in range(4):
            a(f'ds_write_b128 {v(T + 4 + jp)}, {v(ACC + 16 * n + 4 * jp, 4)} offset:{4096 * n}')
    a('s_waitcnt vmcnt(0) lgkmcnt(0)')
    a('s_barrier')
    stamp(a, 21)
    for i in range(8):
        a(f'v_mov_b32 {v(ACC + i)}, {v(XO + i)}')
    g2_out(a, ACC, vL, 's24', 1)


def build(path):
    hdr = open('parallel_sum__grouped_kv_mqa__geglu_ffn__prompt.s.ref').read().split('; Override launch')[0]
    out = hdr + f'; @launch grid=(256,1,1) block=(768,1,1) lds={LDS_TOTAL}\n'
    out += '.amdgcn_target "amdgcn-amd-amdhsa--gfx950"\n'
    out += gen()
    out += kernel_desc(KNAME, 168)
    open(path, 'w').write(out)


if __name__ == '__main__':
    import sys
    if len(sys.argv) > 2 and sys.argv[2] == 'stamp':
        asmlib.STAMPS = True
    build(sys.argv[1])
```

```python
from asmlib import *
import asmlib
import math
import os

KNAME = 'parallel_sum__grouped_kv_mqa__geglu_ffn__prompt_kernel'

H_OFF = 0
QF_OFF = 0x700000
KV_OFF = 0xA00000
OF_OFF = 0xB00000
FL_OFF = 0xE00000
F_ST = 0x1200000
F_CS = 0x1220000
F_KV = 0x1240000
F_KC = 0x1248000
F_W2 = 0x1250000
F_QH = 0xE80000
ROWW = 0xE10000
CSW = 0xE20000
CSKVW = 0xE60000
W2F = 0xF00000
WS_USED = 0x1260000

LDS_X = 0
LDS_W = 49152
LDS_KV = 147456
CS_A = 16384
PART_A = 32768
VT_A = 0
ROWC_A = 156672
CSKV_A = 158720
NONCE_A = 160768
RDY_A = 160800
LDS_TOTAL = 163840
CH_BYTES = 14336
NST = 4
KVR = 49152
Q_A = KVR + 3 * CH_BYTES
G2R = KVR + CH_BYTES * NST
G2D = 3
TW_A = G2R
OL_A = KVR
WO_HI = 106496
WOA = 0
RED_A = 0

C0 = -2.0 * math.sqrt(2.0 / math.pi) * math.log2(math.e)
C1 = C0 * 0.044715
QSC = math.log2(math.e) / math.sqrt(20.0)
M_OFFSET = 90.0
POLL_MAX = 400000
NONCE_X = 0x5a5a5a5a

HM = 's[62:63]'
PFWAIT = False
ENV = os.environ
NODOWN = ENV.get('NODOWN')
PRIO2 = int(ENV.get('PRIO2', '3'))
PRIO1 = int(ENV.get('PRIO1', '3'))
SPACE = ENV.get('SPACE', 's_nop 7')
NOPF = not ENV.get('PF')
INV = int(ENV.get('INV', '0'))
NOG2 = ENV.get('NOG2')
HPF = int(ENV.get('HPF', '2'))
PERM = int(ENV.get('PERM', '3'))
P1PF = int(ENV.get('P1PF', '0'))
PFC = tuple(int(x) for x in ENV.get('PFC', '2,3,4').split(','))
WDC = int(ENV.get('WDC', '2'))
WOC = int(ENV.get('WOC', '4'))
TWC = int(ENV.get('TWC', '1'))
DPOLL2 = 0
OSLEEP = int(ENV.get('OSLEEP', '3'))
OPOLL_MAX = 200000
LINPF = int(ENV.get('LINPF', '0'))
NOSL = ENV.get('NOSL')
PF0 = int(ENV.get('PF0', '0'))
JIT = int(ENV.get('JIT', '0'))
JITD = int(ENV.get('JITD', '4'))
SLC = int(ENV.get('SLC', '0'))
SLG = int(ENV.get('SLG', '1'))
SPN = int(ENV.get('SPN', '3'))
P3C = int(ENV.get('P3C', '7'))
EARLY2 = int(ENV.get('EARLY2', '0'))
CWARM = int(ENV.get('CWARM', '1'))
KVSL = int(ENV.get('KVSL', '16'))
HEARLY = ENV.get('HEARLY')
PSLEEP = int(ENV.get('PSLEEP', '2'))
NOPF2 = not ENV.get('PF2')
CV = int(ENV.get('CV', '0'))
NODMA = ENV.get('NODMA')
IST = ENV.get('IST')
LD = ' sc1' if ENV.get('SC1LD') else ''
FEWST = ENV.get('FEWST')
IST_LIST = tuple(int(x) for x in os.environ.get('ISTL', '1,2,6,7').split(','))
HFLAG_T = int(os.environ.get('HFT', '6'))
G2_START = int(os.environ.get('G2S', '6'))
G2_END = int(os.environ.get('G2E', '15'))


class VM:
    def __init__(self):
        self.ops = []

    def add(self, tag, n=1, optional=False):
        for _ in range(n):
            self.ops.append((tag, optional))

    def wait(self, tag):
        idx = max(i for i, (t, o) in enumerate(self.ops) if t == tag)
        n = sum(1 for t, o in self.ops[idx + 1:] if not o)
        assert n <= 63, n
        return n

    def drain(self):
        self.ops = []


def emit(a, bundles):
    for b in bundles:
        a(b if isinstance(b, str) else '\n'.join(b))


def flag_store(a, soff_reg, vt):
    a(f'''
    v_mov_b32 {v(vt)}, s98
    v_mov_b32 {v(vt + 1)}, s99
    s_mov_b64 exec, 1
    buffer_store_dwordx2 {v(vt, 2)}, off, s[20:23], {soff_reg} sc1
    s_mov_b64 exec, -1
    ''')


def poll(a, vt, voff, soff_reg, wide=False, ignore=None, inv=True, sleep=None):
    L = a.label('poll')
    Ld = a.label('polld')
    a(f's_mov_b32 s93, {POLL_MAX}')
    a(f'{L}:')
    if wide:
        a(f'''
        buffer_load_dwordx4 {v(vt, 4)}, {v(voff)}, s[20:23], {soff_reg} offen sc1
        s_waitcnt vmcnt(0)
        v_cmp_eq_u64 vcc, s[98:99], {v(vt, 2)}
        v_cmp_eq_u64 s[46:47], s[98:99], {v(vt + 2, 2)}
        s_nop 1
        s_and_b64 vcc, vcc, s[46:47]
        ''')
    else:
        a(f'''
        buffer_load_dwordx2 {v(vt, 2)}, {v(voff)}, s[20:23], {soff_reg} offen sc1
        s_waitcnt vmcnt(0)
        v_cmp_eq_u64 vcc, s[98:99], {v(vt, 2)}
        s_nop 1
        ''')
    if ignore:
        a(f's_or_b64 vcc, vcc, {ignore}')
    a(f'''
    s_cmp_eq_u64 vcc, -1
    s_cbranch_scc1 {Ld}
    s_sub_u32 s93, s93, 1
    s_cbranch_scc1 {Ld}
    s_sleep {sleep or PSLEEP}
    s_branch {L}
    {Ld}:
    ''')
    if inv and INV:
        a('buffer_inv sc1\ns_waitcnt vmcnt(0)')


def polln(a, vt, voff, rows, sleep):
    L = a.label('poll')
    Ld = a.label('polld')
    a(f's_mov_b32 s93, {POLL_MAX}\n{L}:')
    for q, (so, ig) in enumerate(rows):
        a(f'buffer_load_dwordx2 {v(vt + 2 * q, 2)}, {v(voff[q] if isinstance(voff, list) else voff)}, s[20:23], {so} offen sc1')
    a('s_waitcnt vmcnt(0)')
    dst = ['vcc', 's[46:47]', 's[48:49]']
    for q in range(len(rows)):
        a(f'v_cmp_eq_u64 {dst[q]}, s[98:99], {v(vt + 2 * q, 2)}')
    a('s_nop 1')
    for q, (so, ig) in enumerate(rows):
        if ig:
            a(f's_or_b64 {dst[q]}, {dst[q]}, {ig}')
        if q:
            a(f's_and_b64 vcc, vcc, {dst[q]}')
    a(f'''
    s_cmp_eq_u64 vcc, -1
    s_cbranch_scc1 {Ld}
    s_sub_u32 s93, s93, 1
    s_cbranch_scc1 {Ld}
    s_sleep {sleep}
    s_branch {L}
    {Ld}:
    ''')


def one_poller(a, vt, word, body, who=3):
    Lw, Ld, Ls = a.label('opw'), a.label('opd'), a.label('ops')
    a(f'''
    v_mov_b32 {v(vt + 3)}, {RDY_A + 4 * word}
    s_cmp_lg_u32 s26, {who}
    s_cbranch_scc1 {Lw}
    ''')
    body()
    a(f'''
    v_mov_b32 {v(vt + 2)}, s98
    ds_write_b32 {v(vt + 3)}, {v(vt + 2)}
    s_branch {Ld}
    {Lw}:
    s_mov_b32 s93, {POLL_MAX * 8}
    {Ls}:
    ds_read_b32 {v(vt + 2)}, {v(vt + 3)}
    s_waitcnt lgkmcnt(0)
    v_readfirstlane_b32 s46, {v(vt + 2)}
    s_cmp_eq_u32 s46, s98
    s_cbranch_scc1 {Ld}
    s_sub_u32 s93, s93, 1
    s_cbranch_scc1 {Ld}
    s_sleep 1
    s_branch {Ls}
    {Ld}:
    ''')


def bstamp(a, first=False):
    if not (asmlib.STAMPS and ENV.get('BST')):
        return
    if first:
        a('s_add_u32 s101, s92, 0xC0000')
    a('''
    s_memrealtime s[94:95]
    s_memtime s[96:97]
    s_waitcnt lgkmcnt(0)
    v_mov_b32 v166, s94
    v_mov_b32 v167, s96
    buffer_store_dwordx2 v[166:167], off, s[88:91], s101
    s_add_u32 s101, s101, 8
    ''')


def srd(a, base, ptr, size):
    a(f'''
    s_mov_b32 s{base}, s{ptr}
    s_mov_b32 s{base + 1}, s{ptr + 1}
    s_mov_b32 s{base + 2}, {size}
    s_mov_b32 s{base + 3}, 0x20000
    ''')


def w_source(a):
    a('''
    s_and_b32 s44, s26, 1
    s_and_b32 s51, s44, s48
    s_lshr_b32 s45, s26, 1
    s_lshl_b32 s46, s44, 6
    s_add_u32 s46, s46, s49
    s_cmp_eq_u32 s48, 1
    s_cselect_b32 s46, s49, s46
    s_lshl_b32 s47, s45, 6
    s_add_u32 s47, s47, s50
    s_cmp_eq_u32 s51, 1
    s_cselect_b32 s52, s47, s46
    s_lshl_b32 s52, s52, 1
    s_cmp_eq_u32 s45, 1
    s_cselect_b32 s12, s82, s80
    s_cselect_b32 s13, s83, s81
    s_mov_b32 s14, 2211840
    s_mov_b32 s53, 3456
    s_cmp_eq_u32 s51, 1
    s_cselect_b32 s12, s70, s12
    s_cselect_b32 s13, s71, s13
    s_cselect_b32 s14, 819200, s14
    s_cselect_b32 s53, 1280, s53
    s_mov_b32 s15, 0x20000
    ''')


def tile_offs(t):
    p, o = t >> 1, t & 1
    b = p * 7168
    return b + o * 1024, b + 2048, b + 3072 + o * 2048, b + 4096 + o * 2048


def gen():
    a = Asm()
    a(kernel_head(KNAME))
    stamp_early(a)
    vL, vH, vR = 1, 2, 3
    L_end = a.label('end')
    L_aux = a.label('aux')
    a(f'''
    s_cmp_ge_u32 s2, 256
    s_cbranch_scc1 {L_end}
    s_load_dwordx8 s[68:75], s[0:1], 0
    s_load_dwordx4 s[80:83], s[0:1], 48
    s_load_dwordx4 s[76:79], s[0:1], 80
    s_load_dwordx2 s[84:85], s[0:1], 32
    s_load_dwordx4 s[88:91], s[0:1], 64
    v_lshrrev_b32 v4, 6, v0
    v_and_b32 {v(vL)}, 63, v0
    v_readfirstlane_b32 s24, v4
    v_lshrrev_b32 {v(vH)}, 5, {v(vL)}
    v_and_b32 {v(vR)}, 31, {v(vL)}
    ''')
    if CWARM:
        Lw, Lp = a.label('nowarm'), a.label('pc')
        a(f'''
        s_cmp_lg_u32 s24, 11
        s_cbranch_scc1 {Lw}
        s_getpc_b64 s[4:5]
        {Lp}:
        s_bfe_u32 s44, s2, 0x30003
        s_lshl_b32 s44, s44, 13
        v_lshl_add_u32 v4, {v(vL)}, 7, s44
        v_min_u32 v4, {L_end}-{Lp}, v4
        global_load_dword v165, v4, s[4:5]
        {Lw}:
        ''')
    vXD, vWD, vKD = 20, 22, 23
    t0, t1, t2, t3, t4 = 4, 5, 6, 7, 8
    a(f'''
    s_bfe_u32 s27, s2, 0x30003
    s_and_b32 s46, s2, 1
    s_lshl_b32 s46, s46, 3
    s_add_u32 s27, s27, s46
    s_bfe_u32 s46, s2, 0x20001
    s_lshl_b32 s46, s46, 2
    s_lshr_b32 s47, s2, 6
    s_add_u32 s28, s46, s47
    s_cmp_ge_u32 s28, 11
    s_cselect_b32 s48, 1, 0
    s_sub_u32 s44, s28, 11
    s_lshl_b32 s45, s44, 6
    s_add_u32 s45, s45, 1408
    s_lshl_b32 s46, s28, 7
    s_lshl_b32 s50, s44, 7
    s_cmp_eq_u32 s48, 1
    s_cselect_b32 s49, s45, s46
    s_and_b32 s25, s24, 1
    s_lshr_b32 s26, s24, 1
    s_sub_u32 s44, s24, 8
    s_cmp_ge_u32 s24, 8
    s_cselect_b32 s26, s44, s26
    s_and_b32 s44, s26, 1
    s_and_b32 s51, s44, s48
    s_lshr_b32 s43, s26, 1
    s_andn2_b32 s46, s44, s48
    s_lshl_b32 s46, s46, 6
    s_add_u32 s46, s46, s49
    s_lshl_b32 s47, s43, 6
    s_add_u32 s47, s47, s50
    s_mov_b32 s53, 3456
    s_cmp_eq_u32 s51, 1
    s_cselect_b32 s52, s47, s46
    s_cselect_b32 s53, 1280, s53
    s_lshl_b32 s52, s52, 1
    s_lshl_b32 s31, s53, 3
    s_lshl_b32 s32, s53, 6
    v_lshrrev_b32 {v(t0)}, 3, {v(vL)}
    v_and_b32 {v(t1)}, 7, {v(vL)}
    s_lshl_b32 s44, s27, 7
    s_lshl_b32 s45, s26, 5
    s_add_u32 s44, s44, s45
    v_add_u32 {v(t2)}, s44, {v(t0)}
    v_mul_u32_u24 {v(t2)}, 1280, {v(t2)}
    v_lshrrev_b32 {v(t3)}, 1, {v(t0)}
    v_xor_b32 {v(t3)}, {v(t3)}, {v(t1)}
    v_lshl_add_u32 {v(vXD)}, {v(t3)}, 4, {v(t2)}
    v_xor_b32 {v(t3)}, 4, {v(t3)}
    v_lshl_add_u32 {v(vXD + 1)}, {v(t3)}, 4, {v(t2)}
    v_add_u32 {v(vXD + 1)}, {8 * 1280}, {v(vXD + 1)}
    v_mul_lo_u32 {v(t2)}, {v(t0)}, s53
    v_lshrrev_b32 {v(t3)}, 1, {v(t1)}
    v_and_b32 {v(t4)}, 2, {v(t0)}
    v_xor_b32 {v(t3)}, {v(t3)}, {v(t4)}
    v_xor_b32 {v(t3)}, s43, {v(t3)}
    v_lshl_add_u32 {v(t2)}, {v(t3)}, 5, {v(t2)}
    v_and_b32 {v(t3)}, 1, {v(t1)}
    v_lshl_add_u32 {v(t2)}, {v(t3)}, 4, {v(t2)}
    v_add_u32 {v(vWD)}, s52, {v(t2)}
    s_lshl_b32 s36, s26, 12
    s_mul_i32 s37, s26, 24576
    s_add_u32 s37, s37, {LDS_W}
    s_lshl_b32 s33, s53, 5
    s_mul_i32 s33, s33, s25
    s_lshl_b32 s44, s25, 12
    s_add_u32 s35, s37, s44
    s_bfe_u32 s44, s2, 0x30003
    s_lshr_b32 s45, s2, 6
    s_add_u32 s44, s44, s45
    s_and_b32 s100, s44, {PERM}
    s_xor_b32 s45, s100, 1
    s_mul_i32 s38, s100, s32
    s_mul_i32 s39, s45, s32
    s_mov_b32 s10, 2621440
    s_mov_b32 s11, 0x20000
    s_mov_b32 s14, 2211840
    s_mov_b32 s15, 0x20000
    s_cmp_ge_u32 s24, 8
    s_cbranch_scc1 {L_aux}
    s_cmp_eq_u32 s43, 1
    s_waitcnt lgkmcnt(0)
    s_cselect_b32 s12, s82, s80
    s_cselect_b32 s13, s83, s81
    s_cmp_eq_u32 s51, 1
    s_cselect_b32 s12, s70, s12
    s_cselect_b32 s13, s71, s13
    s_cselect_b32 s14, 819200, s14
    ''')
    for c in range(2):
        for e in range(4):
            a(f'''
            s_add_u32 m0, s35, {c * 8192 + e * 1024}
            s_add_u32 s34, s33, s{38 + c}
            buffer_load_dwordx4 {v(vWD)}, s[12:15], s34 offen lds
            ''')
            if e < 3:
                a('s_add_u32 s33, s33, s31')
            elif c == 0:
                a('s_mul_i32 s44, s31, 3\ns_sub_u32 s33, s33, s44')
    L_com = a.label('common')
    a(f'''
    s_mov_b32 s8, s68
    s_mov_b32 s9, s69
    s_mov_b32 s16, s72
    s_mov_b32 s17, s73
    s_mov_b32 s18, 25600
    s_mov_b32 s19, 0x20000
    v_mov_b32 {v(vKD)}, 0
    s_branch {L_com}
    {L_aux}:
    s_setprio {PRIO1}
    s_cmp_lt_u32 s28, 8
    s_cselect_b32 s54, 1, 0
    s_cmp_lt_u32 s26, 3
    s_cselect_b32 s40, s54, 0
    s_lshl_b32 s44, s26, 10
    s_add_u32 s38, s44, {LDS_KV}
    v_lshl_add_u32 {v(vKD)}, {v(vL)}, 4, s44
    s_mov_b32 s18, 25600
    s_mov_b32 s19, 0x20000
    s_lshl_b32 s46, s100, 7
    s_lshl_b32 s47, s45, 7
    s_mul_i32 s58, s100, 2560
    s_mul_i32 s59, s45, 2560
    s_bitcmp1_b32 s28, 2
    s_waitcnt lgkmcnt(0)
    s_mov_b32 s8, s68
    s_mov_b32 s9, s69
    s_cselect_b32 s16, s74, s72
    s_cselect_b32 s17, s75, s73
    ''')
    for c in range(2):
        for e in range(4):
            a(f'''
            s_add_u32 m0, s36, {LDS_X + c * 16384 + e * 1024}
            s_add_u32 s34, s{46 + c}, {(e >> 1) * 16 * 1280}
            buffer_load_dwordx4 {v(vXD + (e & 1))}, s[8:11], s34 offen lds
            ''')
        lab = a.label('nokv')
        a(f'''
        s_cmp_eq_u32 s40, 0
        s_cbranch_scc1 {lab}
        s_add_u32 m0, s38, {c * 3072}
        s_nop 0
        buffer_load_dwordx4 {v(vKD)}, s[16:19], s{58 + c} offen lds
        {lab}:
        ''')
    a(f'''
    s_cmp_eq_u32 s43, 1
    s_cselect_b32 s12, s82, s80
    s_cselect_b32 s13, s83, s81
    s_cmp_eq_u32 s51, 1
    s_cselect_b32 s12, s70, s12
    s_cselect_b32 s13, s71, s13
    s_cselect_b32 s14, 819200, s14
    {L_com}:
    s_mov_b32 s62, 0
    s_mov_b32 s63, -1
    s_and_b32 s44, s2, 7
    s_lshl_b32 s44, s44, 2
    s_bfe_u32 s46, s2, 0x20003
    s_add_u32 s29, s44, s46
    s_lshr_b32 s30, s2, 5
    ''')
    srd(a, 20, 78, WS_USED)
    srd(a, 64, 90, 2621440)
    if asmlib.STAMPS:
        a('s_mov_b32 s86, s88\ns_mov_b32 s87, s89')
    WDP = 86 if asmlib.STAMPS else 88
    if asmlib.STAMPS:
        a(f'''
        s_mov_b32 s88, s78
        s_mov_b32 s89, s79
        s_mov_b32 s90, 0x2000000
        s_mov_b32 s91, 0x20000
        s_mul_i32 s92, s2, 12
        s_add_u32 s92, s92, s24
        s_lshl_b32 s92, s92, 8
        s_add_u32 s92, s92, {asmlib.STAMP_OFF}
        ''')
    stamp(a, 0, early=True)
    stamp(a, 24)
    L_aux2 = a.label('aux2')
    a(f'''
    s_cmp_ge_u32 s24, 8
    s_cbranch_scc1 {L_aux2}
    ''')
    compute_wave(a, vL, vH, vR, L_end)
    a(f'{L_aux2}:')
    aux_wave(a, vL, vH, vR, L_end, WDP)
    a(f'''
    {L_end}:
    s_endpgm
    ''')
    return a.text()


def compute_wave(a, vL, vH, vR, L_end):
    al = Alloc(4, 168)
    T = al('T', 8, 4)
    ACC = al('acc', 64, 4)
    XF = al('xf', 16, 4)
    WF = al('wf', 16, 4)
    vXA = al('xa', 4)
    vWA = al('wa', 2)
    p1_end = al.p
    t0, t1, t2, t3, t4 = T, T + 1, T + 2, T + 3, T + 4
    g1, kap, fq = T + 5, T + 6, T + 7
    a.c('=========== compute wave: phase 1 ===========')
    linpf = []
    CR = 120
    XR = 120
    U = 140
    u0, u1, u2, u3, u4, u5 = range(U, U + 6)
    W4 = U + 8
    vN = U + 12
    srd(a, 4, 76, 256)

    a(f'''
    s_lshr_b32 s44, s30, 2
    s_lshl_b32 s38, s29, 1
    s_add_u32 s38, s38, s44
    s_and_b32 s44, s30, 3
    s_lshl_b32 s44, s44, 3
    s_add_u32 s33, s44, s24
    s_mul_i32 s37, s38, 40960
    s_add_u32 s37, s37, {OF_OFF}
    s_lshl_b32 s36, s33, 10
    s_add_u32 s36, s36, s37
    s_lshl_b32 s44, s33, 8
    s_add_u32 s37, s37, s44
    s_add_u32 s37, s37, 32768
    ''')
    PZ = 116
    poison = [f'v_mov_b32 {v(PZ + q)}, -1' for q in range(4)] + [
        f'v_lshlrev_b32 {v(u4)}, 4, {v(vL)}', f'v_lshlrev_b32 {v(u5)}, 2, {v(vL)}',
        f'buffer_store_dwordx4 {v(PZ, 4)}, {v(u4)}, s[20:23], s36 offen sc1',
        f'buffer_store_dword {v(PZ)}, {v(u5)}, s[20:23], s37 offen sc1']

    def lines(txt):
        return [x.strip() for x in txt.split(chr(10)) if x.strip()]

    def load_cs():
        f = lines(f'''
        s_mul_i32 s44, s27, 40
        v_lshrrev_b32 {v(u1)}, 3, {v(vL)}
        v_add_u32 {v(u1)}, s44, {v(u1)}
        v_mul_lo_u32 {v(u2)}, {v(u1)}, s53
        v_and_b32 {v(u1)}, 7, {v(vL)}
        v_lshl_add_u32 {v(u2)}, {v(u1)}, 4, {v(u2)}
        s_mov_b32 s34, s52
        ''')
        for t in range(5):
            f.append([f'buffer_load_dwordx4 {v(CR + 4 * t, 4)}, {v(u2)}, s[12:15], s34 offen', 's_add_u32 s34, s34, s31'])
        return f

    def load_rows():
        f = lines(f'''
        s_lshl_b32 s44, s27, 7
        s_lshl_b32 s45, s28, 3
        s_add_u32 s44, s44, s45
        s_lshl_b32 s45, s26, 1
        s_add_u32 s55, s44, s45
        v_add_u32 {v(u0)}, s55, {v(vH)}
        v_mul_u32_u24 {v(u0)}, 1280, {v(u0)}
        v_lshl_add_u32 {v(u0)}, {v(vR)}, 3, {v(u0)}
        ''')
        for t in range(5):
            f.append(f'buffer_load_dwordx2 {v(XR + 2 * t, 2)}, {v(u0)}, s[8:11], 0 offen offset:{256 * t}')
        return f

    def fill_cs():
        A8 = 156
        f = []
        for q in range(4):
            f += [f'v_lshlrev_b32 {v(A8 + 2 * q)}, 16, {v(CR + q)}', f'v_and_b32 {v(A8 + 2 * q + 1)}, 0xffff0000, {v(CR + q)}']
        for t in range(1, 5):
            for q in range(4):
                ta, tb = (u2, u3) if q & 1 else (u4, u5)
                f += lines(f'''
                v_lshlrev_b32 {v(ta)}, 16, {v(CR + 4 * t + q)}
                v_and_b32 {v(tb)}, 0xffff0000, {v(CR + 4 * t + q)}
                v_add_f32 {v(A8 + 2 * q)}, {v(A8 + 2 * q)}, {v(ta)}
                v_add_f32 {v(A8 + 2 * q + 1)}, {v(A8 + 2 * q + 1)}, {v(tb)}
                ''')
        f.append('s_nop 1')
        f += [f'v_permlane32_swap_b32 {v(A8 + q)}, {v(A8 + 4 + q)}' for q in range(4)]
        f.append('s_nop 1')
        f += [f'v_add_f32 {v(A8 + q)}, {v(A8 + q)}, {v(A8 + 4 + q)}' for q in range(4)]
        f.append('s_nop 1')
        f += [f'v_permlane16_swap_b32 {v(A8 + q)}, {v(A8 + 2 + q)}' for q in range(2)]
        f.append('s_nop 1')
        f += [f'v_add_f32 {v(A8 + q)}, {v(A8 + q)}, {v(A8 + 2 + q)}' for q in range(2)]
        f += lines(f'''
        s_nop 1
        v_add_f32_dpp {v(A8)}, {v(A8)}, {v(A8)} row_ror:8 row_mask:0xf bank_mask:0xf
        v_add_f32_dpp {v(A8 + 1)}, {v(A8 + 1)}, {v(A8 + 1)} row_ror:8 row_mask:0xf bank_mask:0xf
        s_mov_b32 vcc_lo, 0xff00ff00
        s_mov_b32 vcc_hi, 0xff00ff00
        v_cndmask_b32 {v(u0)}, {v(A8)}, {v(A8 + 1)}, vcc
        v_cvt_pk_bf16_f32 {v(u1)}, {v(u0)}, {v(u0)}
        v_and_b32 {v(u1)}, 0xffff0000, {v(u1)}
        v_sub_f32 {v(u1)}, {v(u0)}, {v(u1)}
        v_cvt_pk_bf16_f32 {v(u0)}, {v(u0)}, {v(u1)}
        v_and_b32 {v(u1)}, 7, {v(vL)}
        v_lshl_add_u32 {v(u1)}, {v(u1)}, 1, {v(vH)}
        v_bfe_u32 {v(u2)}, {v(vL)}, 4, 1
        v_lshl_add_u32 {v(u1)}, {v(u1)}, 1, {v(u2)}
        v_bfe_u32 {v(u2)}, {v(vL)}, 3, 1
        v_lshl_add_u32 {v(u1)}, {v(u1)}, 1, {v(u2)}
        v_bfe_u32 {v(u2)}, {v(u1)}, 2, 1
        v_bfe_u32 {v(u3)}, {v(u1)}, 3, 1
        v_lshl_add_u32 {v(u2)}, {v(u2)}, 1, {v(u3)}
        v_and_b32 {v(u3)}, 3, {v(u1)}
        v_lshl_add_u32 {v(u2)}, {v(u2)}, 2, {v(u3)}
        v_lshrrev_b32 {v(u3)}, 4, {v(u1)}
        s_and_b32 s44, s26, 1
        s_lshl_b32 s44, s44, 2
        s_cmp_eq_u32 s48, 1
        s_cselect_b32 s44, 0, s44
        v_add_u32 {v(u4)}, s44, {v(u3)}
        s_lshr_b32 s45, s26, 1
        v_mov_b32 {v(u5)}, s45
        s_cmp_eq_u32 s51, 1
        s_cselect_b64 vcc, -1, 0
        s_add_u32 s44, s26, 3
        v_lshrrev_b32 {v(u1)}, 1, {v(u3)}
        v_add_u32 {v(u1)}, s44, {v(u1)}
        v_and_b32 {v(u3)}, 1, {v(u3)}
        v_cndmask_b32 {v(u4)}, {v(u4)}, {v(u1)}, vcc
        v_cndmask_b32 {v(u5)}, {v(u5)}, {v(u3)}, vcc
        v_lshl_add_u32 {v(u2)}, {v(u5)}, 4, {v(u2)}
        v_lshl_add_u32 {v(u2)}, {v(u4)}, 5, {v(u2)}
        v_lshlrev_b32 {v(u2)}, 2, {v(u2)}
        s_lshl_b32 s44, s28, 14
        s_lshl_b32 s45, s27, 10
        s_add_u32 s44, s44, s45
        s_add_u32 s44, s44, {CSW}
        buffer_store_dword {v(u0)}, {v(u2)}, s[20:23], s44 offen sc1
        s_lshl_b32 s46, s27, 2
        s_add_u32 s46, s46, s26
        s_lshl_b32 s46, s46, 7
        s_lshl_b32 s45, s28, 13
        s_add_u32 s46, s46, s45
        s_add_u32 s56, s46, {F_CS}
        ''')
        return f

    def fill_rows():
        f = [f'v_mov_b32 {v(u0)}, 0', f'v_mov_b32 {v(u1)}, 0']
        for t in range(10):
            f += lines(f'''
            v_lshlrev_b32 {v(u2)}, 16, {v(XR + t)}
            v_and_b32 {v(u3)}, 0xffff0000, {v(XR + t)}
            v_add_f32 {v(u0)}, {v(u0)}, {v(u2)}
            v_fmac_f32 {v(u1)}, {v(u2)}, {v(u2)}
            v_add_f32 {v(u0)}, {v(u0)}, {v(u3)}
            v_fmac_f32 {v(u1)}, {v(u3)}, {v(u3)}
            ''')
        for ror in (8, 4, 2, 1):
            f += lines(f'''
            s_nop 1
            v_add_f32_dpp {v(u0)}, {v(u0)}, {v(u0)} row_ror:{ror} row_mask:0xf bank_mask:0xf
            v_add_f32_dpp {v(u1)}, {v(u1)}, {v(u1)} row_ror:{ror} row_mask:0xf bank_mask:0xf
            ''')
        f += lines(f'''
        v_mov_b32 {v(u2)}, {v(u0)}
        v_mov_b32 {v(u3)}, {v(u1)}
        s_nop 1
        v_permlane16_swap_b32 {v(u0)}, {v(u2)}
        v_permlane16_swap_b32 {v(u1)}, {v(u3)}
        s_mov_b32 s44, {f2u(1.0 / 640.0)}
        s_mov_b32 s45, {f2u(1e-5)}
        v_add_f32 {v(u0)}, {v(u0)}, {v(u2)}
        v_add_f32 {v(u1)}, {v(u1)}, {v(u3)}
        v_mul_f32 {v(u0)}, s44, {v(u0)}
        v_mul_f32 {v(u1)}, s44, {v(u1)}
        v_fma_f32 {v(u1)}, -{v(u0)}, {v(u0)}, {v(u1)}
        v_max_f32 {v(u1)}, 0, {v(u1)}
        v_cvt_pk_bf16_f32 {v(W4)}, -{v(u0)}, -{v(u0)}
        v_cvt_pk_bf16_f32 {v(u1)}, {v(u1)}, {v(u1)}
        v_and_b32 {v(u1)}, 0xffff0000, {v(u1)}
        v_add_f32 {v(u1)}, s45, {v(u1)}
        v_cvt_pk_bf16_f32 {v(u1)}, {v(u1)}, {v(u1)}
        v_and_b32 {v(u1)}, 0xffff0000, {v(u1)}
        v_sqrt_f32 {v(u1)}, {v(u1)}
        v_mov_b32 {v(W4 + 3)}, 0
        v_cvt_pk_bf16_f32 {v(u1)}, {v(u1)}, {v(u1)}
        v_and_b32 {v(u1)}, 0xffff0000, {v(u1)}
        v_rcp_f32 {v(W4 + 1)}, {v(u1)}
        v_mul_f32 {v(W4 + 2)}, {v(u1)}, {v(u1)}
        v_lshlrev_b32 {v(u2)}, 4, {v(vH)}
        s_lshl_b32 s44, s55, 4
        s_add_u32 s44, s44, {ROWW}
        ''')
        f.append(['s_mov_b32 exec_lo, 1', 's_mov_b32 exec_hi, 1',
                  f'buffer_store_dwordx4 {v(W4, 4)}, {v(u2)}, s[20:23], s44 offen sc1', 's_mov_b64 exec, -1'])
        f += lines(f'''
        s_lshl_b32 s44, s28, 2
        s_add_u32 s44, s44, s26
        s_lshl_b32 s44, s44, 7
        s_lshl_b32 s45, s27, 13
        s_add_u32 s44, s44, s45
        s_add_u32 s56, s44, {F_ST}
        ''')
        return f

    stamp(a, 22)
    a(f'''
    v_lshrrev_b32 {v(t0)}, 1, {v(vR)}
    v_and_b32 {v(t0)}, 7, {v(t0)}
    v_xor_b32 {v(t0)}, {v(t0)}, {v(vH)}
    v_lshlrev_b32 {v(t1)}, 7, {v(vR)}
    s_lshl_b32 s44, s25, 13
    v_add_u32 {v(t1)}, s44, {v(t1)}
    ''')
    for sI in range(4):
        a(f'''
        v_xor_b32 {v(t2)}, {2 * sI}, {v(t0)}
        v_lshl_add_u32 {v(vXA + sI)}, {v(t2)}, 4, {v(t1)}
        ''')
    a(f'''
    v_bfe_u32 {v(g1)}, {v(vL)}, 4, 1
    v_bfe_u32 {v(kap)}, {v(vL)}, 2, 2
    v_and_b32 {v(t0)}, 1, {v(vL)}
    v_lshlrev_b32 {v(t0)}, 1, {v(t0)}
    v_bfe_u32 {v(t1)}, {v(vL)}, 1, 1
    v_or_b32 {v(fq)}, {v(t0)}, {v(t1)}
    s_lshr_b32 s44, s26, 1
    s_and_b32 s57, s44, s48
    v_lshl_add_u32 {v(t0)}, {v(vH)}, 3, {v(kap)}
    v_lshlrev_b32 {v(t0)}, 7, {v(t0)}
    v_lshl_add_u32 {v(t0)}, {v(fq)}, 3, {v(t0)}
    v_and_b32 {v(t4)}, 2, {v(kap)}
    s_cmp_eq_u32 s57, 1
    s_cselect_b64 vcc, -1, 0
    ''')
    for bb in range(2):
        a(f'''
        s_lshl_b32 s44, s26, 1
        s_add_u32 s44, s44, {bb}
        s_lshr_b32 s45, s44, 2
        s_and_b32 s46, s44, 3
        v_lshlrev_b32 {v(t1)}, 1, {v(g1)}
        v_add_u32 {v(t1)}, s45, {v(t1)}
        v_mov_b32 {v(t2)}, s46
        s_lshl_b32 s44, s26, 1
        s_sub_u32 s44, s44, 3
        v_mov_b32 {v(t3)}, s44
        v_cndmask_b32 {v(t1)}, {v(t1)}, {v(t3)}, vcc
        v_add_u32 {v(t3)}, {2 * bb}, {v(g1)}
        v_cndmask_b32 {v(t2)}, {v(t2)}, {v(t3)}, vcc
        v_xor_b32 {v(t2)}, {v(t2)}, {v(t4)}
        v_lshrrev_b32 {v(t3)}, 1, {v(t1)}
        v_xor_b32 {v(t2)}, {v(t2)}, {v(t3)}
        v_mul_u32_u24 {v(t1)}, 24576, {v(t1)}
        v_lshl_add_u32 {v(t1)}, {v(t2)}, 5, {v(t1)}
        v_add_u32 {v(t1)}, {v(t1)}, {v(t0)}
        v_add_u32 {v(vWA + bb)}, {LDS_W}, {v(t1)}
        ''')

    def reads(c, sI):
        st, buf = c % 3, sI & 1
        out = [f'ds_read_b128 {v(XF + 8 * buf, 4)}, {v(vXA + sI)} offset:{LDS_X + st * 16384}']
        for bb in range(2):
            for t in range(2):
                out.append(f'ds_read_b64_tr_b16 {v(WF + 8 * buf + 4 * bb + 2 * t, 2)}, {v(vWA + bb)} offset:{st * 8192 + 2048 * sI + 512 * t}')
        out.append(f'ds_read_b128 {v(XF + 8 * buf + 4, 4)}, {v(vXA + sI)} offset:{LDS_X + st * 16384 + 4096}')
        return out

    def mfmas(c, sI):
        buf = sI & 1
        first = (c == 0 and sI == 0)
        return [mfma16(ACC + 32 * e + 16 * bb, WF + 8 * buf + 4 * bb, XF + 8 * buf + 4 * e,
                       None if first else ACC + 32 * e + 16 * bb) for e, bb in ((0, 0), (0, 1), (1, 0), (1, 1))]

    def mix(ms, rd, wait=True, fill=()):
        cut = [rd[0:3], rd[3:6], [], []]
        n = len(fill)
        if wait:
            a('s_waitcnt lgkmcnt(0)')
        for q, (m, r) in enumerate(zip(ms, cut)):
            a(m)
            emit(a, r)
            emit(a, fill[(q * n) // 4:((q + 1) * n) // 4])

    def chunk(c, fill=()):
        a.c(f'chunk {c}')
        n = len(fill)
        if c:
            a('s_waitcnt lgkmcnt(0)')
        a('s_barrier')
        if not FEWST or c in (0, 1, 2, 9):
            stamp(a, 1 + c)
        if c > 0:
            mix(mfmas(c - 1, 3), reads(c, 0), wait=False, fill=fill[0:n // 4])
        else:
            emit(a, reads(c, 0))
            emit(a, fill[0:n // 4])
        for sI in range(3):
            mix(mfmas(c, sI), reads(c, sI + 1), fill=fill[((sI + 1) * n) // 4:((sI + 2) * n) // 4])

    lab1, lab2 = a.label('rowv'), a.label('join')
    a(f's_cmp_eq_u32 s25, 1\ns_cbranch_scc1 {lab1}')
    for var, (ld, fl) in enumerate(((load_cs(), fill_cs()), (load_rows(), fill_rows()))):
        fl = fl + poison + [f'buffer_load_dword {v(vN)}, off, s[4:7], 0 sc1']
        if SLC == 0:
            emit(a, ld)
        a(f's_waitcnt vmcnt({9 if SLC == 0 else 4})')
        chunk(0)
        a(f's_waitcnt vmcnt({5 if SLC == 0 else 0})')
        n = len(fl)
        f0 = SLC + SLG
        for c in range(1, f0 + SPN):
            if c == SLC:
                chunk(c, ld)
            elif c >= f0:
                q = c - f0
                chunk(c, (['s_waitcnt vmcnt(0)'] if q == 0 else []) + fl[(q * n) // SPN:((q + 1) * n) // SPN])
            else:
                chunk(c)
        if var == 0:
            a(f's_branch {lab2}\n{lab1}:')
    a(f'{lab2}:')
    chunk(f0 + SPN)
    Lp, Lq = a.label('cnp'), a.label('cnd')
    a(f'''
    s_mov_b32 s93, {POLL_MAX}
    {Lp}:
    s_waitcnt vmcnt(0)
    v_readfirstlane_b32 s98, {v(vN)}
    s_cmp_lg_u32 s98, 0
    s_cbranch_scc1 {Lq}
    s_sub_u32 s93, s93, 1
    s_cbranch_scc1 {Lq}
    buffer_load_dword {v(vN)}, off, s[4:7], 0 sc1
    s_branch {Lp}
    {Lq}:
    s_xor_b32 s99, s98, {NONCE_X}
    ''')
    flag_store(a, 's56', U)
    for c in range(f0 + SPN + 1, 10):
        chunk(c)
    a('s_waitcnt lgkmcnt(0)')
    emit(a, mfmas(9, 3))
    lab = a.label('nqp')
    a(f's_cmp_eq_u32 s57, 0\ns_cbranch_scc1 {lab}\ns_setprio 2\n{lab}:')
    stamp(a, 11)
    a('s_barrier')
    stamp(a, 12)

    al2 = Alloc(XF, 168)
    RC = al2('rc', 8, 4)
    NEG = al2('neg', 8, 4)
    CSF = al2('csf', 16, 4)
    KK = al2('kk', 4, 2)
    E1 = al2('e1', 16, 4)
    E2 = al2('e2', 16, 4)
    HH = 148
    vS16 = al2('s16')
    vQA = al2('qa')
    a(f'''
    s_lshl_b32 s44, s25, 10
    s_add_u32 s44, s44, {ROWC_A}
    v_lshl_add_u32 {v(t0)}, {v(vR)}, 4, s44
    v_lshlrev_b32 {v(vS16)}, 4, {v(vL)}
    s_lshl_b32 s44, s26, 8
    s_add_u32 s44, s44, {CS_A}
    v_lshl_add_u32 {v(t1)}, {v(vR)}, 2, s44
    v_lshl_add_u32 {v(t1)}, {v(vH)}, 12, {v(t1)}
    v_add_u32 {v(t3)}, 128, {v(t1)}
    ds_read_b128 {v(RC, 4)}, {v(t0)}
    ds_read_b128 {v(RC + 4, 4)}, {v(t0)} offset:512
    ''')
    for bb in range(2):
        for m in range(2):
            for z in range(2):
                a(f'ds_read2st64_b32 {v(CSF + 8 * bb + 4 * m + 2 * z, 2)}, {v((t1, t3)[bb])} offset0:{32 * m + 8 * z} offset1:{32 * m + 8 * z + 4}')
    a(f'''
    s_mov_b32 s46, {f2u(C0)}
    s_mov_b32 s47, {f2u(C1)}
    s_lshl_b32 s44, s27, 2
    s_lshl_b32 s45, s25, 1
    s_add_u32 s60, s44, s45
    s_waitcnt lgkmcnt(8)
    ''')
    for e in range(2):
        for r in range(4):
            a(f'v_mov_b32 {v(NEG + 4 * e + r)}, {v(RC + 4 * e)}')
    for e in range(2):
        a(f'''
        v_mul_f32 {v(KK + 2 * e)}, s46, {v(RC + 4 * e + 1)}
        v_mul_f32 {v(t0)}, {v(RC + 4 * e + 1)}, {v(RC + 4 * e + 1)}
        v_mul_f32 {v(t0)}, {v(t0)}, {v(RC + 4 * e + 1)}
        v_mul_f32 {v(KK + 2 * e + 1)}, s47, {v(t0)}
        ''')
    a('s_waitcnt lgkmcnt(0)')
    for e in range(2):
        for bb in range(2):
            d = ACC + 32 * e + 16 * bb
            for m in range(2):
                a(mfma16(d, CSF + 8 * bb + 4 * m, NEG + 4 * e, d))
    L_q = a.label('qepi')
    L_ed = a.label('epidone')
    a(f'''
    s_nop 1
    s_cmp_eq_u32 s57, 1
    s_cbranch_scc1 {L_q}
    s_lshr_b32 s44, s49, 4
    s_lshl_b32 s45, s26, 1
    s_add_u32 s44, s44, s45
    s_mul_i32 s42, s60, 108
    s_add_u32 s42, s42, s44
    s_lshl_b32 s42, s42, 10
    s_add_u32 s43, s42, {108 * 1024}
    ''')
    k = 0
    for e in range(2):
        for bb in range(2):
            A = ACC + 32 * e + 16 * bb
            TT = E1 + 8 * (k % 2)
            PP = E2 + 8 * (k % 2)
            O_ = HH + 4 * k
            kk = v(KK + 2 * e, 2)
            rc = v(RC + 4 * e + 2, 2)
            for i in range(0, 8, 2):
                a(f'v_pk_mul_f32 {v(TT + i, 2)}, {v(A + i, 2)}, {v(A + i, 2)}')
            for i in range(0, 8, 2):
                a(f'v_pk_fma_f32 {v(TT + i, 2)}, {v(TT + i, 2)}, {kk}, {kk} op_sel:[0,1,0] op_sel_hi:[1,1,0]')
            for i in range(0, 8, 2):
                a(f'v_pk_mul_f32 {v(TT + i, 2)}, {v(TT + i, 2)}, {v(A + i, 2)}')
            for i in range(8):
                a(f'v_exp_f32 {v(TT + i)}, {v(TT + i)}')
            for i in range(0, 8, 2):
                a(f'v_pk_mul_f32 {v(PP + i, 2)}, {v(A + i, 2)}, {v(A + 8 + i, 2)}')
            for i in range(0, 8, 2):
                a(f'v_pk_fma_f32 {v(TT + i, 2)}, {v(TT + i, 2)}, {rc}, {rc} op_sel_hi:[1,0,0]')
            for i in range(8):
                a(f'v_rcp_f32 {v(TT + i)}, {v(TT + i)}')
            a('s_nop 0')
            for i in range(0, 8, 2):
                a(f'v_pk_mul_f32 {v(PP + i, 2)}, {v(PP + i, 2)}, {v(TT + i, 2)}')
            for i in range(4):
                a(f'v_cvt_pk_bf16_f32 {v(O_ + i)}, {v(PP + 2 * i)}, {v(PP + 2 * i + 1)}')
            k += 1
    if HEARLY:
        for k in range(4):
            a(f'buffer_store_dwordx4 {v(HH + 4 * k, 4)}, {v(vS16)}, s[20:23], s{42 + (k >> 1)} offen offset:{1024 * (k & 1)} sc1')
    a(f's_branch {L_ed}')
    a(f'{L_q}:')
    a(f'''
    s_sub_u32 s44, s26, 2
    s_lshl_b32 s44, s44, 6
    s_add_u32 s44, s44, s50
    s_lshl_b32 s44, s44, 6
    s_add_u32 s44, s44, {QF_OFF}
    s_mov_b32 s45, {f2u(QSC)}
    s_mul_i32 s46, s60, 40960
    s_add_u32 s46, s46, s44
    s_add_u32 s47, s46, 40960
    v_mul_f32 {v(KK)}, s45, {v(RC + 1)}
    v_mul_f32 {v(KK + 2)}, s45, {v(RC + 5)}
    ''')
    k = 0
    for e in range(2):
        for bb in range(2):
            A = ACC + 32 * e + 16 * bb
            O_ = (E1, E1 + 8, E2, E2 + 8)[k]
            for i in range(0, 16, 2):
                a(f'v_pk_mul_f32 {v(A + i, 2)}, {v(A + i, 2)}, {v(KK + 2 * e, 2)} op_sel_hi:[1,0]')
            for i in range(8):
                a(f'v_cvt_pk_bf16_f32 {v(O_ + i)}, {v(A + 2 * i)}, {v(A + 2 * i + 1)}')
            for z in range(2):
                a(f'buffer_store_dwordx4 {v(O_ + 4 * z, 4)}, {v(vS16)}, s[20:23], s{46 + e} offen offset:{1024 * z + 2048 * bb} sc1')
            k += 1
    a(f'{L_ed}:')
    stamp(a, 13)

    a.c('=========== compute wave: attention ===========')
    al3 = Alloc(4, 168)
    T = al3('T', 16, 4)
    S = al3('S', 32, 4)
    O = al3('O', 16, 4)
    V1 = al3('V1', 4, 4)
    V2 = al3('V2', 4, 4)
    Q1 = al3('Q1', 4, 4)
    K1 = al3('K1', 8, 4)
    K2 = al3('K2', 8, 4)
    P = al3('P', 16, 4)
    Q2 = al3('Q2', 2, 2)
    vK = al3('vK')
    vK2 = al3('vK2')
    a(f'''
    s_lshl_b32 s44, s27, 1
    s_add_u32 s44, s44, s25
    s_lshl_b32 s44, s44, 13
    s_lshl_b32 s45, s28, 2
    s_add_u32 s45, s45, s26
    s_lshl_b32 s45, s45, 7
    s_add_u32 s44, s44, s45
    s_add_u32 s41, s44, {F_QH}
    s_nop 1
    ''')
    for i in range(16):
        a(f'v_mov_b32 {v(O + i)}, 0')
    for i in range(4):
        a(f'v_mov_b32 {v(V1 + i)}, 0')
        a(f'v_mov_b32 {v(V2 + i)}, 0')
    a(f'''
    s_mov_b32 s45, {KVR}
    v_lshl_add_u32 {v(vK)}, {v(vL)}, 4, s45
    v_lshl_add_u32 {v(vK2)}, {v(vL)}, 3, s45
    s_mul_i32 s45, s24, 5
    v_lshlrev_b32 {v(T + 4)}, 4, {v(vR)}
    v_add_u32 {v(T + 4)}, {Q_A}, {v(T + 4)}
    ''')
    for z, (dq, useh) in enumerate(((0, 1), (2, 1), (4, 0))):
        a(f's_add_u32 s46, s45, {dq}')
        a(f'v_add_u32 {v(T + 5)}, s46, {v(vH)}' if useh else f'v_mov_b32 {v(T + 5)}, s46')
        a(f'''
        v_lshrrev_b32 {v(T + 6)}, 1, {v(T + 5)}
        v_lshl_add_u32 {v(T + 6)}, {v(T + 6)}, 9, {v(T + 4)}
        v_and_b32 {v(T + 5)}, 1, {v(T + 5)}
        v_lshl_add_u32 {v(T + 13 + z)}, {v(T + 5)}, 3, {v(T + 6)}
        ''')
    lab = a.label('noqf')
    a(f'''
    s_cmp_eq_u32 s57, 0
    s_cbranch_scc1 {lab}
    s_waitcnt vmcnt(0)
    ''')
    flag_store(a, 's41', T + 2)
    a('s_setprio 0')
    a(f'{lab}:')
    for i in range(8):
        a(f'v_mov_b32 {v(P + 8 + i)}, 0')
    stamp(a, 14)
    a('s_barrier')
    stamp(a, 15)
    o0, o1, o2 = tile_offs(0), tile_offs(1), tile_offs(2)
    a(f'''
    ds_read_b64 {v(Q1, 2)}, {v(T + 13)}
    ds_read_b64 {v(Q1 + 2, 2)}, {v(T + 14)}
    ds_read_b64 {v(Q2, 2)}, {v(T + 15)}
    ds_read_b128 {v(K1, 4)}, {v(vK)} offset:{o0[0]}
    ds_read_b128 {v(K1 + 4, 4)}, {v(vK)} offset:{o1[0]}
    ds_read2st64_b64 {v(K2, 4)}, {v(vK2)} offset0:{o0[1] // 512} offset1:{o0[1] // 512 + 1}
    v_mov_b32 {v(T + 2)}, 0
    s_waitcnt lgkmcnt(3)
    v_cndmask_b32 {v(Q2)}, {v(Q2)}, {v(T + 2)}, {HM}
    v_cndmask_b32 {v(Q2 + 1)}, {v(Q2 + 1)}, {v(T + 2)}, {HM}
    s_waitcnt lgkmcnt(0)
    ''')

    def set_m(mreg, offset):
        t0, t1, t2, t3 = T + 8, T + 9, T + 10, T + 11
        a(f'v_sub_f32 {v(t0)}, {f2u(-offset) if offset else 0}, {v(mreg)}')
        a(f'''
        v_cvt_pk_bf16_f32 {v(t1)}, {v(t0)}, {v(t0)}
        v_and_b32 {v(t2)}, 0xffff0000, {v(t1)}
        v_sub_f32 {v(t2)}, {v(t0)}, {v(t2)}
        v_cvt_pk_bf16_f32 {v(t1)}, {v(t0)}, {v(t2)}
        v_and_b32 {v(t3)}, 0xffff0000, {v(t1)}
        v_sub_f32 {v(t2)}, {v(t2)}, {v(t3)}
        v_mov_b32 {v(t3)}, 0
        v_cvt_pk_bf16_f32 {v(t2)}, {v(t2)}, {v(t3)}
        v_cndmask_b32 {v(Q2)}, {v(Q2)}, {v(t1)}, {HM}
        v_cndmask_b32 {v(Q2 + 1)}, {v(Q2 + 1)}, {v(t2)}, {HM}
        ''')

    def cross_half_max(reg):
        t = T + 12
        a(f'''
        v_mov_b32 {v(t)}, {v(reg)}
        s_nop 1
        v_permlane32_swap_b32 {v(reg)}, {v(t)}
        s_nop 1
        v_max_f32 {v(reg)}, {v(reg)}, {v(t)}
        ''')

    for t in range(2):
        a(mfma16(S + 16 * t, K1 + 4 * t, Q1))
    if not HEARLY:
        lab = a.label('nohst')
        a(f'''
        v_lshlrev_b32 {v(T)}, 4, {v(vL)}
        s_cmp_eq_u32 s57, 1
        s_cbranch_scc1 {lab}
        ''')
        for k in range(4):
            a(f'buffer_store_dwordx4 {v(HH + 4 * k, 4)}, {v(T)}, s[20:23], s{42 + (k >> 1)} offen offset:{1024 * (k & 1)} sc1')
        a(f'{lab}:')
    a('s_nop 8')
    for t in range(2):
        a(mfma8(S + 16 * t, K2 + 2 * t, Q2, S + 16 * t))
    a('s_nop 11')
    m = T + 4
    for z in range(2):
        a(f'v_max3_f32 {v(m + z)}, {v(S + 16 * z)}, {v(S + 16 * z + 1)}, {v(S + 16 * z + 2)}')
    for i in range(3, 15, 2):
        for z in range(2):
            a(f'v_max3_f32 {v(m + z)}, {v(m + z)}, {v(S + 16 * z + i)}, {v(S + 16 * z + i + 1)}')
    a(f'v_max3_f32 {v(m)}, {v(m)}, {v(S + 15)}, {v(S + 31)}')
    a(f'v_max_f32 {v(m)}, {v(m)}, {v(m + 1)}')
    cross_half_max(m)
    set_m(m, M_OFFSET)
    a('s_nop 1')
    a(mfma16(S, K1, Q1))
    a(f'''
    ds_read_b128 {v(K1, 4)}, {v(vK)} offset:{o2[0]}
    s_mov_b32 s34, 4
    s_nop 7
    ''')
    a(mfma8(S, K2, Q2, S))
    a('s_nop 9')
    stamp(a, 16)

    def toff(tt):
        tt &= 15
        o = tile_offs(tt & 3)
        return [x + (tt >> 2) * CH_BYTES for x in o]

    def k2read(reg, tt):
        o = toff(tt)[1]
        assert o % 512 == 0
        return f'ds_read2st64_b64 {v(reg, 4)}, {v(vK2)} offset0:{o // 512} offset1:{o // 512 + 1}'

    L_hf, L_hb = a.label('hflag'), a.label('hback')

    def slot(t):
        Sx, Sn = S + 16 * (t & 1), S + 16 * ((t + 1) & 1)
        Px, Pp = P + 8 * (t & 1), P + 8 * ((t + 1) & 1)
        kt = t + 1
        kb = kt & 1
        k2 = K2 + 4 * ((kt >> 1) & 1) + 2 * (kt & 1)
        m_ = [mfma16(Sn, K1 + 4 * kb, Q1), mfma16(O, V1, Pp, O), mfma8(Sn, k2, Q2, Sn), mfma16(O, V2, Pp + 4, O)]
        after = [[], [], [], []]
        if t & 3 == 1:
            after[0] = ['s_barrier']
        after[0] += [f'ds_read_b128 {v(K1 + 4 * kb, 4)}, {v(vK)} offset:{toff(t + 3)[0]}', 's_waitcnt lgkmcnt(2)']
        after[1] = [f'ds_read_b128 {v(V1, 4)}, {v(vK)} offset:{toff(t)[2]}']
        if t & 1:
            after[1] += [k2read(K2 + 4 * (((t + 3) >> 1) & 1), t + 3)]
        after[2] += [f's_waitcnt lgkmcnt({3 if t & 1 else 2})']
        after[3] = [f'ds_read_b128 {v(V2, 4)}, {v(vK)} offset:{toff(t)[3]}']
        if t == 15:
            after[3] += ['s_sub_u32 s34, s34, 1']
        if t == HFLAG_T:
            after[3] += ['s_cmp_eq_u32 s34, 4', f's_cbranch_scc1 {L_hf}', f'{L_hb}:']
        val = []
        for i in range(8):
            val.append(f'v_exp_f32 {v(Sx + 2 * i)}, {v(Sx + 2 * i)}')
            val.append(f'v_exp_f32 {v(Sx + 2 * i + 1)}, {v(Sx + 2 * i + 1)}')
            if i > 0:
                val.append(f'v_cvt_pk_bf16_f32 {v(Px + i - 1)}, {v(Sx + 2 * i - 2)}, {v(Sx + 2 * i - 1)}')
        val.append(f'v_cvt_pk_bf16_f32 {v(Px + 7)}, {v(Sx + 14)}, {v(Sx + 15)}')
        groups = [val[0:5], val[5:11], val[11:17], val[17:24]]
        for g in range(4):
            a(m_[g])
            emit(a, after[g])
            emit(a, groups[g])

    a(k2read(K2 + 4, 2))
    L_loop = a.label('att')
    a('.p2align 6')
    a(f'{L_loop}:')
    for t in range(16):
        slot(t)
    a(f'''
    s_cmp_lg_u32 s34, 0
    s_cbranch_scc1 {L_loop}
    s_waitcnt lgkmcnt(0)
    ''')
    a(mfma16(O, V1, P + 8, O))
    a(mfma16(O, V2, P + 12, O))
    a(f'''
    v_lshlrev_b32 {v(T + 2)}, 4, {v(vL)}
    v_lshlrev_b32 {v(T + 3)}, 3, {v(vL)}
    v_mov_b32 {v(T + 9)}, 0x7f000000
    v_cndmask_b32 {v(T + 3)}, {v(T + 3)}, {v(T + 9)}, {HM}
    v_lshlrev_b32 {v(T + 4)}, 3, {v(vR)}
    v_lshl_add_u32 {v(T + 4)}, {v(vH)}, 9, {v(T + 4)}
    s_nop 6
    ''')
    stamp(a, 17)
    L_fb = a.label('fb')
    L_out = a.label('aout')
    a(f'''
    s_mov_b32 s44, {f2u(2.0 ** 120)}
    s_mov_b32 s45, {f2u(2.0 ** -103)}
    v_add_f32 {v(T)}, |{v(O)}|, |{v(O + 1)}|
    ''')
    for i in range(2, 12):
        a(f'v_add_f32 {v(T)}, {v(T)}, |{v(O + i)}|')
    a(f'''
    v_add_f32 {v(T + 1)}, {v(T)}, {v(O + 12)}
    v_cmp_le_f32 s[46:47], s45, {v(T)}
    v_cmp_gt_f32 s[48:49], s44, {v(T + 1)}
    s_nop 1
    s_and_b64 s[46:47], s[46:47], s[48:49]
    s_cmp_eq_u64 s[46:47], -1
    s_cbranch_scc0 {L_fb}
    {L_out}:
    v_rcp_f32 {v(T)}, {v(O + 12)}
    s_nop 0
    ''')
    for i in range(0, 12, 2):
        a(f'v_pk_mul_f32 {v(O + i, 2)}, {v(O + i, 2)}, {v(T, 2)} op_sel_hi:[1,0]')
    for i in range(6):
        a(f'v_cvt_pk_bf16_f32 {v(P + i)}, {v(O + 2 * i)}, {v(O + 2 * i + 1)}')
    a(f'buffer_store_dwordx4 {v(P, 4)}, {v(T + 2)}, s[20:23], s36 offen sc1')
    a(f'buffer_store_dwordx2 {v(P + 4, 2)}, {v(T + 3)}, s[20:23], s37 offen sc1')
    stamp(a, 18)
    g2_ids(a)
    OFR = 120
    a(f'''
    s_cmp_eq_u32 s25, 1
    s_cselect_b32 s44, s60, s59
    s_mul_i32 s44, s44, 40960
    s_add_u32 s44, s44, {OF_OFF}
    s_lshl_b32 s45, s26, 13
    s_add_u32 s38, s44, s45
    s_add_u32 s38, s38, 3072
    s_add_u32 s39, s38, 4096
    s_lshl_b32 s45, s26, 11
    s_add_u32 s40, s44, s45
    s_add_u32 s40, s40, 32768
    s_mul_i32 s44, s26, 14336
    s_lshl_b32 s45, s25, 10
    s_add_u32 s44, s44, s45
    s_add_u32 s44, s44, {OL_A}
    v_add_u32 {v(T + 5)}, s44, {v(T + 2)}
    s_barrier
    ''')
    Lp, Lq = a.label('cop'), a.label('copd')
    a(f's_mov_b32 s93, {OPOLL_MAX}\n{Lp}:')
    for q in range(5):
        a(f'buffer_load_dwordx4 {v(OFR + 4 * q, 4)}, {v(T + 2)}, s[20:23], {"s38" if q < 4 else "s39"} offen offset:{1024 * (q & 3)} sc1')
    for q in range(4):
        a(f'buffer_load_dwordx2 {v(OFR + 20 + 2 * q, 2)}, {v(T + 4)}, s[20:23], s40 offen offset:{1024 * (q >> 1) + 256 * (q & 1)} sc1')
    a('s_waitcnt vmcnt(0)')
    a(f'v_max3_u32 {v(T)}, {v(OFR)}, {v(OFR + 1)}, {v(OFR + 2)}')
    for i in range(3, 27, 2):
        a(f'v_max3_u32 {v(T)}, {v(T)}, {v(OFR + i)}, {v(OFR + i + 1)}')
    a(f'''
    v_max_u32 {v(T)}, {v(T)}, {v(OFR + 27)}
    v_cmp_eq_u32 vcc, -1, {v(T)}
    s_nop 1
    s_cmp_eq_u64 vcc, 0
    s_cbranch_scc1 {Lq}
    s_sub_u32 s93, s93, 1
    s_cbranch_scc1 {Lq}
    s_sleep {OSLEEP}
    s_branch {Lp}
    {Lq}:
    ''')
    for q in range(7):
        a(f'ds_write_b128 {v(T + 5)}, {v(OFR + 4 * q, 4)} offset:{2048 * q}')
    stamp(a, 21)
    g2_out(a, S, vL, 's24', 0)
    a('s_waitcnt lgkmcnt(0)')
    a('s_barrier')
    a('s_barrier')
    stamp(a, 19)
    g2_out(a, S, vL, 's24', 1)
    if asmlib.STAMPS:
        a('s_waitcnt vmcnt(0)')
    stamp(a, 20)
    a(f's_branch {L_end}')

    a(f'{L_hf}:')
    a('s_waitcnt vmcnt(0)')
    flag_store(a, 's41', T + 2)
    a(f's_branch {L_hb}')
    a(f'{L_fb}:')
    L1 = a.label('fb1')
    L2 = a.label('fb2')
    a(f'''
    v_lshlrev_b32 {v(T + 13)}, 4, {v(vL)}
    v_lshlrev_b32 {v(T + 7)}, 3, {v(vL)}
    v_mov_b32 {v(T + 14)}, 0
    v_mov_b32 {v(T + 15)}, 0xff800000
    v_cndmask_b32 {v(Q2)}, {v(Q2)}, {v(T + 14)}, {HM}
    v_cndmask_b32 {v(Q2 + 1)}, {v(Q2 + 1)}, {v(T + 14)}, {HM}
    s_mov_b32 s77, {KV_OFF}
    s_mov_b32 s34, 32
    {L1}:
    buffer_load_dwordx4 {v(K1, 4)}, {v(T + 13)}, s[20:23], s77 offen sc1
    buffer_load_dwordx4 {v(K1 + 4, 4)}, {v(T + 13)}, s[20:23], s77 offen offset:1024 sc1
    buffer_load_dwordx2 {v(K2, 2)}, {v(T + 7)}, s[20:23], s77 offen offset:2048 sc1
    buffer_load_dwordx2 {v(K2 + 2, 2)}, {v(T + 7)}, s[20:23], s77 offen offset:2560 sc1
    s_waitcnt vmcnt(0)
    ''')
    for t in range(2):
        a(mfma16(S + 16 * t, K1 + 4 * t, Q1))
    a('s_nop 9')
    for t in range(2):
        a(mfma8(S + 16 * t, K2 + 2 * t, Q2, S + 16 * t))
    a('s_nop 15')
    for i in range(0, 32, 2):
        a(f'v_max3_f32 {v(T + 15)}, {v(T + 15)}, {v(S + i)}, {v(S + i + 1)}')
    a(f'''
    s_add_u32 s77, s77, 7168
    s_sub_u32 s34, s34, 1
    s_cmp_lg_u32 s34, 0
    s_cbranch_scc1 {L1}
    ''')
    cross_half_max(T + 15)
    set_m(T + 15, 0.0)
    for i in range(16):
        a(f'v_mov_b32 {v(O + i)}, 0')
    a(f'''
    s_mov_b32 s77, {KV_OFF}
    s_mov_b32 s34, 64
    {L2}:
    s_and_b32 s78, s34, 1
    s_lshl_b32 s79, s78, 10
    s_add_u32 s79, s79, s77
    s_lshl_b32 s80, s78, 9
    s_add_u32 s80, s80, s77
    s_lshl_b32 s81, s78, 11
    s_add_u32 s81, s81, s77
    s_add_u32 s81, s81, 3072
    buffer_load_dwordx4 {v(K1, 4)}, {v(T + 13)}, s[20:23], s79 offen sc1
    buffer_load_dwordx2 {v(K2, 2)}, {v(T + 7)}, s[20:23], s80 offen offset:2048 sc1
    buffer_load_dwordx4 {v(V1, 4)}, {v(T + 13)}, s[20:23], s81 offen sc1
    buffer_load_dwordx4 {v(V2, 4)}, {v(T + 13)}, s[20:23], s81 offen offset:1024 sc1
    s_waitcnt vmcnt(0)
    {mfma16(S, K1, Q1)}
    s_nop 10
    {mfma8(S, K2, Q2, S)}
    s_nop 15
    ''')
    for i in range(16):
        a(f'v_exp_f32 {v(S + i)}, {v(S + i)}')
    a('s_nop 0')
    for i in range(8):
        a(f'v_cvt_pk_bf16_f32 {v(P + i)}, {v(S + 2 * i)}, {v(S + 2 * i + 1)}')
    a(f'''
    s_nop 1
    {mfma16(O, V1, P, O)}
    {mfma16(O, V2, P + 4, O)}
    s_mul_i32 s78, s78, 7168
    s_add_u32 s77, s77, s78
    s_sub_u32 s34, s34, 1
    s_cmp_lg_u32 s34, 0
    s_cbranch_scc1 {L2}
    s_nop 15
    s_branch {L_out}
    ''')


def g2_ids(a):
    a('''
    s_lshr_b32 s57, s30, 1
    s_and_b32 s58, s30, 1
    s_lshl_b32 s44, s29, 1
    s_add_u32 s59, s44, s58
    s_xor_b32 s60, s59, 1
    s_mul_i32 s44, s57, 320
    s_lshl_b32 s45, s58, 7
    s_add_u32 s61, s44, s45
    ''')


def g2_out(a, T, vL, wsg, part):
    L_skip = a.label('g2o')
    a(f'''
    s_cmp_ge_u32 {wsg}, 10
    s_cbranch_scc1 {L_skip}
    ''')
    if part == 0:
        a(f'''
        s_lshr_b32 s45, {wsg}, 1
        s_and_b32 s46, {wsg}, 1
        s_lshl_b32 s46, s46, 4
        v_lshrrev_b32 {v(T)}, 2, {v(vL)}
        v_add_u32 {v(T)}, s46, {v(T)}
        v_and_b32 {v(T + 1)}, 3, {v(vL)}
        s_and_b32 s47, s45, 1
        s_cmp_eq_u32 s47, 1
        s_cselect_b32 s47, s60, s59
        s_mul_i32 s47, s47, {32 * 1280}
        s_lshr_b32 s48, s45, 1
        s_add_u32 s49, s48, s58
        s_lshl_b32 s49, s49, 6
        s_lshl_b32 s50, s58, 7
        s_sub_u32 s50, 128, s50
        s_cmp_eq_u32 s48, 2
        s_cselect_b32 s49, s50, s49
        s_add_u32 s47, s47, s49
        s_add_u32 s31, s47, s61
        v_mul_u32_u24 {v(T + 6)}, 1280, {v(T)}
        v_lshl_add_u32 {v(T + 6)}, {v(T + 1)}, 4, {v(T + 6)}
        buffer_load_dwordx4 {v(T + 2, 4)}, {v(T + 6)}, s[8:11], s31 offen
        v_lshlrev_b32 {v(T + 1)}, 1, {v(T + 1)}
        v_and_b32 {v(T + 7)}, 7, {v(T)}
        v_xor_b32 {v(T + 1)}, {v(T + 1)}, {v(T + 7)}
        v_lshlrev_b32 {v(T)}, 7, {v(T)}
        v_lshl_add_u32 {v(T)}, {v(T + 1)}, 4, {v(T)}
        s_lshl_b32 s47, s45, 12
        v_add_u32 {v(T)}, s47, {v(T)}
        v_xor_b32 {v(T + 1)}, 16, {v(T)}
        ''')
    else:
        for w in range(4):
            if w == 2:
                a(f'v_add_u32 {v(T)}, {WO_HI}, {v(T)}\nv_add_u32 {v(T + 1)}, {WO_HI}, {v(T + 1)}')
            a(f'ds_read_b128 {v(T + 8 + 8 * w, 4)}, {v(T)} offset:{21504 * (w & 1)}')
            a(f'ds_read_b128 {v(T + 12 + 8 * w, 4)}, {v(T + 1)} offset:{21504 * (w & 1)}')
        a('s_waitcnt vmcnt(0)')
        for i in range(4):
            a(f'''
            v_lshlrev_b32 {v(T + 40 + 2 * i)}, 16, {v(T + 2 + i)}
            v_and_b32 {v(T + 41 + 2 * i)}, 0xffff0000, {v(T + 2 + i)}
            ''')
        a('s_waitcnt lgkmcnt(4)')
        for i in range(0, 8, 2):
            a(f'v_pk_add_f32 {v(T + 8 + i, 2)}, {v(T + 8 + i, 2)}, {v(T + 16 + i, 2)}')
        for i in range(0, 8, 2):
            a(f'v_pk_add_f32 {v(T + 8 + i, 2)}, {v(T + 8 + i, 2)}, {v(T + 40 + i, 2)}')
        a('s_waitcnt lgkmcnt(0)')
        for i in range(0, 8, 2):
            a(f'v_pk_add_f32 {v(T + 24 + i, 2)}, {v(T + 24 + i, 2)}, {v(T + 32 + i, 2)}')
        for i in range(0, 8, 2):
            a(f'v_pk_add_f32 {v(T + 8 + i, 2)}, {v(T + 8 + i, 2)}, {v(T + 24 + i, 2)}')
        for i in range(4):
            a(f'v_cvt_pk_bf16_f32 {v(T + 16 + i)}, {v(T + 8 + 2 * i)}, {v(T + 9 + 2 * i)}')
        a(f'buffer_store_dwordx4 {v(T + 16, 4)}, {v(T + 6)}, s[64:67], s31 offen')
    a(f'{L_skip}:')


def aux_wave(a, vL, vH, vR, L_end, WDP):
    al = Alloc(4, 168)
    T = al('T', 16, 4)
    vXD = al('xd', 2)
    vWD = al('wd')
    vKD = al('kd')
    vKX = al('kx')
    vKW = al('kw')
    XR = al('xr', 10, 2)
    CR = al('cr', 20, 2)
    PF = al('pf', 2)
    AKV = al('akv', 16, 4)
    KXF = al('kxf', 4, 4)
    KWF = al('kwf', 4, 4)
    FX = al('fx', 16, 4)
    RD = al('rd', 48, 4)
    JA = al('ja', 2, 2)
    JS = al('js')
    t0, t1, t2, t3, t4, t5 = T, T + 1, T + 2, T + 3, T + 4, T + 5
    vm = VM()
    a.c('=========== aux wave: phase 1 ===========')
    assert (vXD, vWD, vKD) == (20, 22, 23)

    def dma_group(c, kvonly=False):
        st = c % 3
        lab = a.label('nokv')
        a(f'''
        s_and_b32 s35, s100, {7 if c < 8 else 1}
        s_xor_b32 s35, s35, {c}
        s_mul_i32 s33, s32, s35
        s_mul_i32 s34, s35, 2560
        s_lshl_b32 s35, s35, 7
        s_cmp_eq_u32 s40, 0
        s_cbranch_scc1 {lab}
        s_add_u32 m0, s38, {st * 3072}
        s_nop 0
        buffer_load_dwordx4 {v(vKD)}, s[16:19], s34 offen lds
        {lab}:
        ''')
        vm.add(f'c{c}', 1, optional=True)
        if kvonly or (NODMA and c > 2):
            vm.add(f'c{c}', 1, optional=True)
            return
        for e in range(4):
            a(f'''
            s_add_u32 m0, s36, {LDS_X + st * 16384 + e * 1024}
            s_add_u32 s34, s35, {(e >> 1) * 16 * 1280}
            buffer_load_dwordx4 {v(vXD + (e & 1))}, s[8:11], s34 offen lds
            ''')
        for e in range(8):
            a(f'''
            s_add_u32 m0, s37, {st * 8192 + e * 1024}
            s_nop 0
            buffer_load_dwordx4 {v(vWD)}, s[12:15], s33 offen lds
            ''')
            if e < 7:
                a('s_add_u32 s33, s33, s31')
        vm.add(f'c{c}', 12)

    vm.add('c0', 4)
    vm.add('c0', 1, optional=True)
    vm.add('c1', 4)
    vm.add('c1', 1, optional=True)

    def jit(c):
        if not JIT or c > 9:
            return
        lab = a.label('nojit')
        a(f'''
        s_cmp_lg_u32 s26, 3
        s_cbranch_scc1 {lab}
        global_load_dword v165, {v(JA, 2)}, off
        v_add_co_u32 {v(JA)}, vcc, {v(JA)}, {v(JS)}
        s_nop 1
        v_addc_co_u32 {v(JA + 1)}, vcc, 0, {v(JA + 1)}, vcc
        {lab}:
        ''')
        vm.add('jit', 1, optional=True)

    if JIT:
        a(f'v_mov_b32 {v(JA)}, s68\nv_mov_b32 {v(JA + 1)}, s69')
        lab = a.label('nojs')
        a(f'''
        s_cmp_lg_u32 s26, 3
        s_cbranch_scc1 {lab}
        s_lshr_b32 s44, s2, 3
        s_and_b32 s45, s44, 7
        s_lshr_b32 s46, s44, 3
        s_lshl_b32 s46, s46, 5
        s_lshl_b32 s47, s27, 7
        s_add_u32 s46, s46, s47
        v_add_u32 {v(t0)}, s46, {v(vR)}
        v_mul_u32_u24 {v(t0)}, 1280, {v(t0)}
        v_add_u32 {v(t0)}, {128 * JIT}, {v(t0)}
        v_bfe_u32 {v(t1)}, {v(vL)}, 3, 1
        v_bfe_u32 {v(t2)}, {v(vL)}, 4, 1
        v_and_b32 {v(t3)}, s48, {v(t1)}
        v_cmp_eq_u32 s[58:59], 1, {v(t3)}
        v_cmp_eq_u32 s[60:61], 1, {v(t2)}
        v_mov_b32 {v(t4)}, 3456
        v_mov_b32 {v(t5)}, 1280
        v_cndmask_b32 {v(t4)}, {v(t4)}, {v(t5)}, s[58:59]
        s_xor_b32 s44, s48, 1
        v_and_b32 {v(t5)}, s44, {v(t1)}
        v_lshlrev_b32 {v(t5)}, 6, {v(t5)}
        v_add_u32 {v(t5)}, s49, {v(t5)}
        v_lshlrev_b32 {v(t3)}, 6, {v(t2)}
        v_add_u32 {v(t3)}, s50, {v(t3)}
        v_cndmask_b32 {v(t5)}, {v(t5)}, {v(t3)}, s[58:59]
        s_lshl_b32 s45, s45, 3
        s_add_u32 s45, s45, {64 * JIT}
        v_and_b32 {v(t3)}, 7, {v(vL)}
        v_add_u32 {v(t3)}, s45, {v(t3)}
        v_mul_lo_u32 {v(t3)}, {v(t3)}, {v(t4)}
        v_lshl_add_u32 {v(t3)}, {v(t5)}, 1, {v(t3)}
        v_cndmask_b32 {v(t0)}, {v(t0)}, {v(t3)}, {HM}
        v_lshlrev_b32 {v(t4)}, 6, {v(t4)}
        v_mov_b32 {v(t5)}, 128
        v_cndmask_b32 {v(JS)}, {v(t5)}, {v(t4)}, {HM}
        ''')
        for z in range(2):
            a(f'''
            v_mov_b32 {v(t1)}, s{80 + z}
            v_mov_b32 {v(t2)}, s{82 + z}
            v_cndmask_b32 {v(t1)}, {v(t1)}, {v(t2)}, s[60:61]
            v_mov_b32 {v(t2)}, s{70 + z}
            v_cndmask_b32 {v(t1)}, {v(t1)}, {v(t2)}, s[58:59]
            v_mov_b32 {v(t2)}, s{68 + z}
            v_cndmask_b32 {v(JA + z)}, {v(t2)}, {v(t1)}, {HM}
            ''')
        a(f'''
        v_add_co_u32 {v(JA)}, vcc, {v(JA)}, {v(t0)}
        s_nop 1
        v_addc_co_u32 {v(JA + 1)}, vcc, 0, {v(JA + 1)}, vcc
        {lab}:
        ''')
        for c in range(JIT, JITD):
            jit(c)
    srd(a, 4, 76, 256)
    lab = a.label('nononce')
    a(f'''
    s_or_b32 s44, s2, s26
    s_cmp_lg_u32 s44, 0
    s_cbranch_scc1 {lab}
    s_memrealtime s[44:45]
    s_waitcnt lgkmcnt(0)
    s_or_b32 s44, s44, 1
    v_mov_b32 {v(t0)}, s44
    s_mov_b64 exec, 1
    buffer_store_dword {v(t0)}, off, s[4:7], 0 sc1
    s_mov_b64 exec, -1
    {lab}:
    ''')
    vm.add('nonce', 1, optional=True)
    a(f'''
    s_and_b32 s56, s28, 3
    v_lshrrev_b32 {v(t0)}, 1, {v(vR)}
    v_and_b32 {v(t0)}, 7, {v(t0)}
    v_xor_b32 {v(t0)}, {v(t0)}, {v(vH)}
    s_lshl_b32 s44, s26, 1
    v_xor_b32 {v(t0)}, s44, {v(t0)}
    v_lshlrev_b32 {v(t3)}, 7, {v(vR)}
    v_lshl_add_u32 {v(t0)}, {v(t0)}, 4, {v(t3)}
    s_lshl_b32 s44, s56, 12
    v_add_u32 {v(vKX)}, s44, {v(t0)}
    v_bfe_u32 {v(t0)}, {v(vL)}, 2, 2
    v_lshl_add_u32 {v(t0)}, {v(vH)}, 3, {v(t0)}
    v_mul_u32_u24 {v(t0)}, 40, {v(t0)}
    v_bfe_u32 {v(t3)}, {v(vL)}, 4, 1
    v_and_b32 {v(t4)}, 3, {v(vL)}
    v_lshl_add_u32 {v(t3)}, {v(t3)}, 2, {v(t4)}
    v_min_u32 {v(t3)}, 4, {v(t3)}
    v_lshl_add_u32 {v(t0)}, {v(t3)}, 3, {v(t0)}
    s_mul_i32 s44, s26, 640
    s_add_u32 s44, s44, {LDS_KV}
    v_add_u32 {v(vKW)}, s44, {v(t0)}
    ''')
    for i in range(16):
        a(f'v_mov_b32 {v(AKV + i)}, 0')

    def colsum(src_tag_wait, store_code):
        a(f's_waitcnt vmcnt({src_tag_wait})')
        a(f'''
        v_lshlrev_b32 {v(t0)}, 16, {v(CR)}
        v_and_b32 {v(t1)}, 0xffff0000, {v(CR)}
        ''')
        for t in range(1, 20):
            a(f'''
            v_lshlrev_b32 {v(t2)}, 16, {v(CR + t)}
            v_and_b32 {v(t3)}, 0xffff0000, {v(CR + t)}
            v_add_f32 {v(t0)}, {v(t0)}, {v(t2)}
            v_add_f32 {v(t1)}, {v(t1)}, {v(t3)}
            ''')
        a(f'''
        s_nop 1
        v_permlane32_swap_b32 {v(t0)}, {v(t1)}
        s_nop 1
        v_add_f32 {v(t0)}, {v(t0)}, {v(t1)}
        v_cvt_pk_bf16_f32 {v(t1)}, {v(t0)}, {v(t0)}
        v_and_b32 {v(t1)}, 0xffff0000, {v(t1)}
        v_sub_f32 {v(t1)}, {v(t0)}, {v(t1)}
        v_cvt_pk_bf16_f32 {v(t0)}, {v(t0)}, {v(t1)}
        ''')
        store_code()

    a('''
    s_lshl_b32 s41, s27, 10
    s_and_b32 s44, s28, 11
    s_cmp_eq_u32 s44, 0
    s_cselect_b32 s42, 1, 0
    s_cmp_eq_u32 s26, 3
    s_cselect_b32 s42, s42, 0
    ''')

    def kv_step(c, part):
        st = c % 3
        lab = a.label('kvs')
        a(f's_cmp_eq_u32 s54, 0\ns_cbranch_scc1 {lab}')
        if part == 0:
            a(f'''
            ds_read_b128 {v(KXF, 4)}, {v(vKX)} offset:{LDS_X + st * 16384}
            ds_read_b64_tr_b16 {v(KWF, 2)}, {v(vKW)} offset:{st * 3072}
            ds_read_b64_tr_b16 {v(KWF + 2, 2)}, {v(vKW)} offset:{st * 3072 + 160}
            ''')
        else:
            a('s_waitcnt lgkmcnt(0)')
            a(mfma16(AKV, KWF, KXF, AKV))
        a(f'{lab}:')

    for c in range(10):
        a.c(f'aux chunk {c}')
        if c == 0:
            stamp(a, 22)
        if c <= 8:
            a(f's_waitcnt vmcnt({vm.wait(f"c{c}") if c != 5 else min(vm.wait("c5"), vm.wait("st"), vm.wait("nl"))})')
        else:
            a('s_waitcnt vmcnt(0)')
        a('s_barrier')
        if not FEWST or c in (0, 1, 2, 9):
            stamp(a, 1 + c)
        if asmlib.STAMPS:
            vm.add('stamp', 1, optional=True)
        if c == 3:
            a(f'buffer_load_dword {v(PF)}, off, s[4:7], 0 sc1')
            vm.add('nl', 1)
        kv_step(c, 0)
        if c == P3C:
            lab = a.label('nop3')
            a(f'''
            v_lshlrev_b32 {v(T + 8)}, 3, {v(vL)}
            v_lshlrev_b32 {v(T + 10)}, 7, {v(vL)}
            v_and_b32 {v(T + 11)}, 0x780, {v(T + 10)}
            s_cmp_lg_u32 s26, 3
            s_cbranch_scc1 {lab}
            s_lshl_b32 s44, s27, 13
            s_add_u32 s44, s44, {F_ST}
            s_lshl_b32 s45, s28, 13
            s_add_u32 s45, s45, {F_CS}
            s_and_b32 s58, s28, 4
            s_lshl_b32 s58, s58, 9
            s_add_u32 s58, s58, {F_KC}
            ''')
            a(f'''
            s_mov_b32 s60, s44
            s_mov_b32 s61, s45
            buffer_load_dwordx2 {v(FX, 2)}, {v(T + 10)}, s[20:23], s60 offen sc1
            buffer_load_dwordx2 {v(FX + 2, 2)}, {v(T + 10)}, s[20:23], s61 offen sc1
            buffer_load_dwordx2 {v(FX + 4, 2)}, {v(T + 11)}, s[20:23], s58 offen sc1
            {lab}:
            ''')
        jit(c + JITD)
        if (1 if EARLY2 else 0) <= c and c + 2 < 10:
            dma_group(c + 2)
        kv_step(c, 1)
        if c == P3C:
            lab = a.label('nop3b')
            a(f'''
            s_cmp_lg_u32 s26, 3
            s_cbranch_scc1 {lab}
            s_waitcnt vmcnt(12)
            v_cmp_eq_u64 vcc, s[98:99], {v(FX, 2)}
            v_cmp_eq_u64 s[46:47], s[98:99], {v(FX + 2, 2)}
            v_cmp_eq_u64 s[44:45], s[98:99], {v(FX + 4, 2)}
            s_nop 1
            s_and_b64 vcc, vcc, s[46:47]
            s_and_b64 vcc, vcc, s[44:45]
            s_cmp_eq_u64 vcc, -1
            s_cbranch_scc1 {lab}
            ''')
            polln(a, FX, [T + 10, T + 10, T + 11], [('s60', None), ('s61', None), ('s58', None)], 4)
            a(f'{lab}:')
        if c == 2:
            lab = a.label('nokvcs')
            a(f'''
            s_cmp_eq_u32 s42, 0
            s_cbranch_scc1 {lab}
            s_mul_i32 s44, s27, 40
            v_add_u32 {v(t1)}, s44, {v(vH)}
            v_mul_u32_u24 {v(t2)}, 40, {v(t1)}
            v_lshl_add_u32 {v(t2)}, {v(vR)}, 2, {v(t2)}
            ''')
            for t in range(20):
                a(f'buffer_load_dword {v(CR + t)}, {v(t2)}, s[16:19], 0 offen offset:{80 * t}')
            a(f'{lab}:')
            vm.add('kcr', 20, optional=True)
        if c == 3:
            lab = a.label('nokvcs2')
            a(f's_cmp_eq_u32 s42, 0\ns_cbranch_scc1 {lab}')

            def kcs_store():
                a(f'''
                v_lshl_add_u32 {v(t1)}, {v(vR)}, 1, {v(vH)}
                v_lshlrev_b32 {v(t2)}, 2, {v(t1)}
                v_mov_b32 {v(t3)}, 0x7f000000
                v_cmp_gt_u32 vcc, 32, {v(t1)}
                s_lshl_b32 s44, s28, 9
                s_lshl_b32 s45, s27, 7
                s_add_u32 s44, s44, s45
                s_add_u32 s44, s44, {CSKVW}
                v_cndmask_b32 {v(t2)}, {v(t3)}, {v(t2)}, vcc
                buffer_store_dword {v(t0)}, {v(t2)}, s[20:23], s44 offen sc1
                ''')
            colsum(vm.wait('kcr'), kcs_store)
            a(f'{lab}:')
            vm.add('st', 1, optional=True)
        if c == 5:
            Lp = a.label('np')
            Lq = a.label('npd')
            Lr = a.label('nokcf')
            a(f'''
            s_mov_b32 s93, {POLL_MAX}
            {Lp}:
            v_readfirstlane_b32 s98, {v(PF)}
            s_cmp_lg_u32 s98, 0
            s_cbranch_scc1 {Lq}
            s_sub_u32 s93, s93, 1
            s_cbranch_scc1 {Lq}
            buffer_load_dword {v(PF)}, off, s[4:7], 0 sc1
            s_waitcnt vmcnt(0)
            s_branch {Lp}
            {Lq}:
            s_xor_b32 s99, s98, {NONCE_X}
            s_lshl_b32 s44, s28, 9
            s_lshl_b32 s45, s27, 7
            s_add_u32 s44, s44, s45
            s_add_u32 s44, s44, {F_KC}
            s_cmp_eq_u32 s42, 0
            s_cbranch_scc1 {Lr}
            ''')
            flag_store(a, 's44', T + 2)
            a(f'{Lr}:')
            vm.add('fl', 1, optional=True)
        if P1PF and c in (6, 7):
            if c == 6:
                srd(a, 4, WDP, 2211840)
                a(f'''
                s_lshr_b32 s44, s2, 6
                s_mul_i32 s44, s44, {432 * 1280}
                s_bfe_u32 s45, s2, 0x30003
                s_mul_i32 s45, s45, {180 * 128}
                s_add_u32 s44, s44, s45
                s_mul_i32 s45, s26, {45 * 128}
                s_add_u32 s57, s44, s45
                v_lshlrev_b32 {v(PF + 1)}, 7, {v(vL)}
                ''')
            for z in range(2 if c == 6 else 1):
                a(f'''
                s_mov_b32 exec_hi, {(1 << 13) - 1}
                buffer_load_dword v165, {v(PF + 1)}, s[4:7], s57 offen
                s_mov_b32 exec_hi, -1
                s_add_u32 s57, s57, {144 * 1280}
                ''')
                vm.add('pf', 1)
        if c == 8:
            a(f'''
            v_lshlrev_b32 {v(T + 9)}, 4, {v(vL)}
            s_lshl_b32 s44, s28, 14
            s_lshl_b32 s45, s26, 12
            s_add_u32 s44, s44, s45
            s_add_u32 s44, s44, {CSW}
            ''')
            for e in range(4):
                a(f'''
                s_add_u32 m0, s45, {CS_A + 1024 * e}
                s_nop 0
                buffer_load_dwordx4 {v(T + 9)}, s[20:23], s44 offen{LD} lds
                s_add_u32 s44, s44, 1024
                ''')
            lab = a.label('norc')
            a(f'''
            s_cmp_lg_u32 s26, 0
            s_cbranch_scc1 {lab}
            s_lshl_b32 s44, s27, 11
            s_add_u32 s44, s44, {ROWW}
            s_mov_b32 m0, {ROWC_A}
            s_and_b32 s45, s28, 4
            buffer_load_dwordx4 {v(T + 9)}, s[20:23], s44 offen{LD} lds
            buffer_load_dwordx4 {v(T + 9)}, s[20:23], s44 offen offset:1024{LD} lds
            s_lshl_b32 s45, s45, 9
            s_add_u32 s45, s45, {CSKVW}
            s_mov_b32 m0, {CSKV_A}
            s_nop 0
            buffer_load_dwordx4 {v(T + 9)}, s[20:23], s45 offen{LD} lds
            buffer_load_dwordx4 {v(T + 9)}, s[20:23], s45 offen offset:1024{LD} lds
            {lab}:
            ''')
    lab = a.label('nokvfin')
    lab2 = a.label('nofix')
    a(f'''
    s_cmp_eq_u32 s54, 0
    s_cbranch_scc1 {lab}
    s_cmp_lg_u32 s26, 0
    s_cbranch_scc1 {lab2}
    s_lshl_b32 s44, s56, 9
    s_add_u32 s44, s44, {ROWC_A}
    v_lshl_add_u32 {v(t0)}, {v(vR)}, 4, s44
    v_lshlrev_b32 {v(t1)}, 2, {v(vR)}
    v_lshl_add_u32 {v(t1)}, {v(vH)}, 9, {v(t1)}
    v_add_u32 {v(t1)}, {CSKV_A}, {v(t1)}
    v_add_u32 {v(t2)}, 1024, {v(t1)}
    ds_read_b128 {v(FX, 4)}, {v(t0)}
    ds_read2_b32 {v(FX + 8, 2)}, {v(t1)} offset0:0 offset1:32
    ds_read2_b32 {v(FX + 10, 2)}, {v(t1)} offset0:64 offset1:96
    ds_read2_b32 {v(FX + 12, 2)}, {v(t2)} offset0:0 offset1:32
    ds_read2_b32 {v(FX + 14, 2)}, {v(t2)} offset0:64 offset1:96
    s_waitcnt lgkmcnt(4)
    v_mov_b32 {v(FX + 4)}, {v(FX)}
    v_mov_b32 {v(FX + 5)}, {v(FX)}
    v_mov_b32 {v(FX + 6)}, {v(FX)}
    v_mov_b32 {v(FX + 7)}, {v(FX)}
    s_waitcnt lgkmcnt(0)
    s_nop 1
    {mfma16(AKV, FX + 8, FX + 4, AKV)}
    {mfma16(AKV, FX + 12, FX + 4, AKV)}
    {lab2}:
    s_lshl_b32 s44, s26, 12
    v_add_u32 {v(t0)}, s44, {v(T + 9)}
    s_nop 15
    ''')
    for q in range(3):
        a(f'ds_write_b128 {v(t0)}, {v(AKV + 4 * q, 4)} offset:{PART_A + 1024 * q}')
    a(f'''
    {lab}:
    s_waitcnt lgkmcnt(0)
    ''')
    stamp(a, 11)
    a('s_barrier')
    stamp(a, 12)
    L_p2 = a.label('auxp2')
    L_v = a.label('vepi')
    a(f'''
    s_cmp_eq_u32 s54, 0
    s_cbranch_scc1 {L_p2}
    s_cmp_lg_u32 s26, 0
    s_cbranch_scc1 {L_p2}
    ''')
    for w in range(1, 4):
        for q in range(3):
            a(f'ds_read_b128 {v(RD + 12 * (w - 1) + 4 * q, 4)}, {v(T + 9)} offset:{PART_A + 4096 * w + 1024 * q}')
    a(f'''
    s_lshl_b32 s57, s27, 2
    s_add_u32 s57, s57, s56
    s_lshr_b32 s44, s57, 1
    s_mul_i32 s44, s44, 7168
    s_add_u32 s44, s44, {KV_OFF}
    s_and_b32 s45, s57, 1
    s_and_b32 s58, s28, 4
    s_lshl_b32 s58, s58, 4
    s_add_u32 s58, s58, s57
    s_lshl_b32 s58, s58, 7
    s_add_u32 s58, s58, {F_KV}
    s_waitcnt lgkmcnt(0)
    ''')
    for i in range(0, 12, 2):
        a(f'v_pk_add_f32 {v(AKV + i, 2)}, {v(AKV + i, 2)}, {v(RD + i, 2)}')
        a(f'v_pk_add_f32 {v(RD + 12 + i, 2)}, {v(RD + 12 + i, 2)}, {v(RD + 24 + i, 2)}')
    for i in range(0, 12, 2):
        a(f'v_pk_add_f32 {v(AKV + i, 2)}, {v(AKV + i, 2)}, {v(RD + 12 + i, 2)}')
    for i in range(0, 12, 2):
        a(f'v_pk_mul_f32 {v(AKV + i, 2)}, {v(AKV + i, 2)}, {v(FX, 2)} op_sel:[0,1] op_sel_hi:[1,1]')
    PK = RD
    for i in range(6):
        a(f'v_cvt_pk_bf16_f32 {v(PK + i)}, {v(AKV + 2 * i)}, {v(AKV + 2 * i + 1)}')
    L_kvf = a.label('kvflag')
    a(f'''
    s_bitcmp1_b32 s28, 2
    s_cbranch_scc1 {L_v}
    v_mov_b32 {v(t0)}, 0x3f803f80
    v_mov_b32 {v(t1)}, 0x00003f80
    v_cndmask_b32 {v(PK + 4)}, {v(PK + 4)}, {v(t0)}, {HM}
    v_cndmask_b32 {v(PK + 5)}, {v(PK + 5)}, {v(t1)}, {HM}
    s_lshl_b32 s46, s45, 10
    s_add_u32 s46, s46, s44
    s_lshl_b32 s47, s45, 9
    s_add_u32 s47, s47, s44
    buffer_store_dwordx4 {v(PK, 4)}, {v(T + 9)}, s[20:23], s46 offen sc1
    buffer_store_dwordx2 {v(PK + 4, 2)}, {v(T + 8)}, s[20:23], s47 offen offset:2048 sc1
    s_branch {L_kvf}
    {L_v}:
    v_mov_b32 {v(t0)}, 0
    v_cndmask_b32 {v(PK + 4)}, {v(PK + 4)}, {v(t0)}, {HM}
    v_cndmask_b32 {v(PK + 5)}, {v(PK + 5)}, {v(t0)}, {HM}
    v_mov_b32 {v(PK + 6)}, 0x00003f80
    v_mov_b32 {v(PK + 7)}, 0
    v_lshlrev_b32 {v(t0)}, 6, {v(vR)}
    v_lshl_add_u32 {v(t3)}, {v(vH)}, 4, {v(t0)}
    v_lshl_add_u32 {v(t0)}, {v(vH)}, 3, {v(t0)}
    ds_write_b128 {v(t3)}, {v(PK, 4)} offset:{VT_A}
    ds_write_b64 {v(t0)}, {v(PK + 4, 2)} offset:{VT_A + 32}
    ds_write_b64 {v(t0)}, {v(PK + 6, 2)} offset:{VT_A + 48}
    v_bfe_u32 {v(t1)}, {v(vL)}, 2, 2
    v_lshl_add_u32 {v(t1)}, {v(vH)}, 2, {v(t1)}
    v_lshlrev_b32 {v(t1)}, 6, {v(t1)}
    v_bfe_u32 {v(t2)}, {v(vL)}, 4, 1
    v_lshl_add_u32 {v(t1)}, {v(t2)}, 5, {v(t1)}
    v_and_b32 {v(t2)}, 3, {v(vL)}
    v_lshl_add_u32 {v(t1)}, {v(t2)}, 3, {v(t1)}
    s_waitcnt lgkmcnt(0)
    ds_read_b64_tr_b16 {v(PK + 8, 2)}, {v(t1)} offset:{VT_A}
    ds_read_b64_tr_b16 {v(PK + 10, 2)}, {v(t1)} offset:{VT_A + 512}
    ds_read_b64_tr_b16 {v(PK + 12, 2)}, {v(t1)} offset:{VT_A + 1024}
    ds_read_b64_tr_b16 {v(PK + 14, 2)}, {v(t1)} offset:{VT_A + 1536}
    s_lshl_b32 s46, s45, 11
    s_add_u32 s46, s46, s44
    s_add_u32 s46, s46, 3072
    s_waitcnt lgkmcnt(0)
    buffer_store_dwordx4 {v(PK + 8, 4)}, {v(T + 9)}, s[20:23], s46 offen sc1
    buffer_store_dwordx4 {v(PK + 12, 4)}, {v(T + 9)}, s[20:23], s46 offen offset:1024 sc1
    {L_kvf}:
    s_waitcnt vmcnt(0)
    ''')
    flag_store(a, 's58', T + 2)
    a(f'{L_p2}:')
    stamp(a, 13)

    a.c('=========== aux wave: phase 2 ===========')
    al = Alloc(4, 164)
    T = al('T', 8, 4)
    vWD = al('wd', 3)
    vWA = al('wa', 3)
    vHL = al('hl')
    vKO = al('ko')
    vPF = al('pf')
    ACC = al('acc', 80, 4)
    SL = al('slots', 60, 4)
    wreg = lambda k: SL + 20 * (k % 3)
    hreg = lambda k: SL + 20 * (k % 3) + 12
    a(f's_setprio {PRIO2}')
    g2_ids(a)
    srd(a, 12, WDP, 2211840)
    srd(a, 16, 84, 819200)
    a(f"""
    s_mul_i32 s44, s26, 27
    s_mul_i32 s41, s59, 108
    s_add_u32 s41, s41, s44
    s_lshl_b32 s41, s41, 10
    s_mul_i32 s42, s60, 108
    s_add_u32 s42, s42, s44
    s_lshl_b32 s42, s42, 10
    s_mul_i32 s43, s44, 20480
    s_mov_b32 s52, 20480
    s_lshl_b32 s44, s26, 3
    s_mul_i32 s56, s44, 25600
    s_mul_i32 s54, s59, 40
    s_add_u32 s54, s54, s44
    s_lshl_b32 s54, s54, 10
    s_add_u32 s54, s54, {OF_OFF}
    s_mul_i32 s55, s60, 40
    s_add_u32 s55, s55, s44
    s_lshl_b32 s55, s55, 10
    s_add_u32 s55, s55, {OF_OFF}
    s_and_b32 s44, s26, 1
    s_mul_i32 s39, s44, 21504
    s_lshr_b32 s44, s26, 1
    s_mul_i32 s44, s44, {WO_HI}
    s_add_u32 s39, s39, s44
    s_mov_b32 s40, s39
    s_mov_b32 s45, 0x15556
    v_lshlrev_b32 {v(vHL)}, 4, {v(vL)}
    v_lshlrev_b32 {v(vPF)}, 7, {v(vL)}
    s_lshl_b32 s36, s26, 12
    s_min_u32 s36, s36, 11264
    v_add_u32 {v(vKO)}, s36, {v(vHL)}
    """)
    for p in range(3):
        a(f"""
        v_add_u32 {v(T)}, {64 * p}, {v(vL)}
        v_mul_lo_u32 {v(T + 1)}, {v(T)}, s45
        v_lshrrev_b32 {v(T + 1)}, 20, {v(T + 1)}
        v_mul_u32_u24 {v(T + 2)}, 12, {v(T + 1)}
        v_sub_u32 {v(T + 2)}, {v(T)}, {v(T + 2)}
        v_mul_u32_u24 {v(T + 1)}, 1280, {v(T + 1)}
        v_lshl_add_u32 {v(T + 1)}, {v(T + 2)}, 4, {v(T + 1)}
        v_add_u32 {v(vWD + p)}, s61, {v(T + 1)}
        """)
    a(f"""
    v_bfe_u32 {v(T)}, {v(vL)}, 2, 2
    v_lshl_add_u32 {v(T)}, {v(vH)}, 3, {v(T)}
    v_mul_u32_u24 {v(T)}, 192, {v(T)}
    v_bfe_u32 {v(T + 1)}, {v(vL)}, 4, 1
    v_lshl_add_u32 {v(T)}, {v(T + 1)}, 5, {v(T)}
    v_and_b32 {v(T + 1)}, 3, {v(vL)}
    v_lshl_add_u32 {v(T)}, {v(T + 1)}, 3, {v(T)}
    v_add_u32 {v(T)}, s39, {v(T)}
    s_lshl_b32 s44, s58, 6
    s_add_u32 s45, s44, 64
    s_lshl_b32 s46, s58, 7
    s_sub_u32 s46, 128, s46
    v_add_u32 {v(vWA)}, s44, {v(T)}
    v_add_u32 {v(vWA + 1)}, s45, {v(T)}
    v_add_u32 {v(vWA + 2)}, s46, {v(T)}
    """)
    vm = VM()

    def w_dma(base, off):
        out = []
        for p in range(3):
            out.append([f's_add_u32 m0, {base}, {off + p * 1024}', 's_nop 0',
                        f'buffer_load_dwordx4 {v(vWD + p)}, s[12:15], s43 offen lds'])
        out[2].append('s_add_u32 s43, s43, s52')
        return out

    def h_ld(k, e):
        hs = ('s41', 's42')[e]
        return [f'buffer_load_dwordx4 {v(hreg(k) + 4 * e, 4)}, {v(vHL)}, s[20:23], {hs} offen', f's_add_u32 {hs}, {hs}, 1024']

    def w_rd(k, off):
        return [f'ds_read_b64_tr_b16 {v(wreg(k) + 4 * b + 2 * t, 2)}, {v(vWA + b)} offset:{off + 768 * t}'
                for b in range(3) for t in range(2)]

    def g_mfmas(k):
        return [mfma16(ACC + 16 * n, wreg(k) + 4 * b, hreg(k) + 4 * e, ACC + 16 * n)
                for n, (b, e) in enumerate(((0, 0), (0, 1), (1, 0), (1, 1), (2, 0)))]

    def kv_dma(c):
        st = c % NST
        lab = a.label('kv3')
        a(f's_cmp_ge_u32 s26, 2\ns_cbranch_scc1 {lab}')
        for e in (3, 0, 1, 2):
            a(f"""
            s_add_u32 m0, s36, {KVR + st * CH_BYTES + e * 1024}
            s_mov_b32 s38, {KV_OFF + c * CH_BYTES + e * 1024}
            buffer_load_dwordx4 {v(vKO)}, s[20:23], s38 offen lds
            """)
            if e == 3:
                a(f'{lab}:')
        vm.add(f'kv{c}', 1, optional=True)
        vm.add(f'kv{c}', 3)

    for i in range(80):
        a(f'v_mov_b32 {v(ACC + i)}, 0')
    srd(a, 4, WDP, 2211840)
    a(f'''
    s_lshr_b32 s44, s2, 6
    s_mul_i32 s44, s44, {432 * 1280}
    s_bfe_u32 s45, s2, 0x30003
    s_lshl_b32 s45, s45, 2
    s_add_u32 s45, s45, s26
    s_mul_i32 s45, s45, {15 * 128}
    s_add_u32 s32, s44, s45
    s_mov_b32 s31, {48 * 1280}
    ''')

    a(f'''
    s_lshr_b32 s45, s30, 2
    s_lshl_b32 s46, s29, 1
    s_add_u32 s45, s45, s46
    s_mul_i32 s45, s45, 108
    s_and_b32 s46, s30, 3
    s_mul_i32 s46, s46, 27
    s_add_u32 s45, s45, s46
    s_lshl_b32 s45, s45, 10
    s_mul_i32 s46, s26, {6 * 128}
    s_add_u32 s45, s45, s46
    s_add_u32 s49, s45, 3072
    ''')

    def paced_h():
        a(f'''
        s_mov_b64 exec, 0x3f
        buffer_load_dword v165, {v(vPF)}, s[20:23], s49 offen
        s_mov_b64 exec, -1
        s_add_u32 s49, s49, 3072
        ''')

    def paced():
        a(f'''
        s_mov_b64 exec, 0x7fff
        buffer_load_dword v165, {v(vPF)}, s[4:7], s32 offen
        s_mov_b64 exec, -1
        s_add_u32 s32, s32, s31
        ''')
        vm.add('pf', 1)

    qmask = 0
    for j in range(16):
        for cp in range(4):
            if not (j >= 11 and cp >= 2):
                qmask |= 1 << (j * 4 + cp)
    Lq = a.label('pqd')
    a(f"""
    s_mov_b32 s50, {qmask & 0xffffffff}
    s_mov_b32 s51, {qmask >> 32}
    s_lshl_b32 s53, s29, 13
    s_add_u32 s53, s53, {F_QH}
    s_lshr_b32 s44, s30, 2
    s_lshl_b32 s45, s29, 1
    s_add_u32 s44, s44, s45
    s_mul_i32 s44, s44, 40960
    s_and_b32 s45, s30, 3
    s_mul_i32 s45, s45, 10240
    s_add_u32 s44, s44, s45
    s_add_u32 s44, s44, {QF_OFF}
    s_cmp_lg_u32 s26, 3
    s_cbranch_scc1 {Lq}
    s_andn2_b64 exec, exec, s[50:51]
    """)
    poll(a, T + 4, vPF, 's53', ignore='s[50:51]')
    a(f's_mov_b64 exec, -1')
    for z in range(3):
        a(f's_mov_b32 m0, {Q_A + 4096 * z}')
        a('s_nop 0' if z == 0 else 's_add_u32 s44, s44, 4096')
        for y in range(4 if z < 2 else 2):
            a(f'buffer_load_dwordx4 {v(vHL)}, s[20:23], s44 offen offset:{1024 * y} lds')
    a(f'{Lq}:')
    stamp(a, 14)

    def kv_poll():
        a(f's_mov_b32 s45, {F_KV}\ns_mov_b32 s44, {F_KV + 8192}\ns_sleep {KVSL}')
        polln(a, T + 4, vPF, [('s45', None), ('s44', None)], 4)
    one_poller(a, T, 0, kv_poll, who=2)
    stamp(a, 15)
    kv_dma(0)
    kv_dma(1)
    kv_dma(2)

    def prefetch(kind, b=0):
        n = {'wd': 60, 'wo': 64, 'h': 54}[kind]
        lab = a.label('nopf')
        if kind != 'h':
            a(f's_cmp_eq_u32 s26, 3\ns_cbranch_scc1 {lab}')
        if kind == 'wd':
            a(f"""
            s_lshr_b32 s44, s2, 6
            s_mul_i32 s44, s44, {432 * 1280}
            s_bfe_u32 s45, s2, 0x30003
            s_mul_i32 s45, s45, {180 * 128}
            s_add_u32 s44, s44, s45
            s_mul_i32 s45, s26, {60 * 128}
            s_add_u32 s44, s44, s45
            s_add_u32 s44, s44, {144 * 1280 * b}
            """)
            r = 's[12:15]'
        elif kind == 'wo':
            a(f"""
            s_lshr_b32 s44, s2, 3
            s_mul_i32 s44, s44, {200 * 128}
            s_mul_i32 s45, s26, {68 * 128}
            s_add_u32 s44, s44, s45
            """)
            r = 's[16:19]'
        else:
            a(f"""
            s_mul_i32 s44, s29, {216 * 1024}
            s_lshl_b32 s45, s30, 2
            s_add_u32 s45, s45, s26
            s_mul_i32 s45, s45, {54 * 128}
            s_add_u32 s44, s44, s45
            """)
            r = 's[20:23]'
        m = (1 << n) - 1
        a(f"""
        s_mov_b32 exec_hi, {m >> 32}
        buffer_load_dword v165, {v(vPF)}, {r}, s44 offen
        s_mov_b32 exec_hi, -1
        {lab}:
        """)
        vm.add('pf', 1, optional=True)
    a(f's_waitcnt vmcnt({vm.wait("kv0")})')
    a('s_barrier')
    stamp(a, 16)

    def body(last, nw=12):
        for z in range(3):
            a(f's_waitcnt vmcnt({nw if not last else (12, 10, 8)[z]}) lgkmcnt(0)')
            ms = g_mfmas(z)
            if z == 2:
                for b in range(3):
                    a(f'v_add_u32 {v(vWA + b)}, s33, {v(vWA + b)}')
                rd = w_rd(0, 0)
            else:
                rd = w_rd(z + 1, 3072 * (z + 1))
            wd_ = w_dma('s40', 3072 * z)
            a(ms[0]); emit(a, rd[0:2]); emit(a, [wd_[0]]); a(SPACE)
            a(ms[1]); emit(a, rd[2:4]); emit(a, [wd_[1]]); a(SPACE)
            a(ms[3]); emit(a, rd[4:6]); emit(a, [wd_[2]]); a(SPACE)
            a(ms[2])
            if not last:
                emit(a, h_ld(z, 1))
            a(SPACE)
            a(ms[4])
            if not last:
                emit(a, h_ld(z, 0))
        a('s_add_u32 s40, s40, s33\ns_sub_u32 s33, 0, s33')

    NSTAT = int(ENV.get('NSTAT', '4'))
    for c in range(NSTAT):
        a.c(f'aux B{c}')
        a(f's_waitcnt vmcnt({vm.wait(f"kv{c + 1}")})')
        bstamp(a, c == 0)
        a('s_barrier')
        bstamp(a)
        kv_dma(c + 3)
        if WDC <= c < WDC + 2:
            for k in range(3 * (c - WDC), 3 * (c - WDC) + 3):
                emit(a, w_dma('s39', 3072 * k))
            vm.add('w', 9)
        paced()
    L_top, L_nb, L_sw, L_end2 = a.label('dtop'), a.label('dnb'), a.label('dsw'), a.label('dend')
    L_act, L_bar, L_nokv = a.label('dact'), a.label('dbar'), a.label('dnokv')
    L_s0, L_body, L_last, L_wo, L_next = a.label('ds0'), a.label('dbody'), a.label('dlast'), a.label('dwo'), a.label('dnext')
    L_w0 = a.label('dw0')
    L_w2 = a.label('dw2')
    L_b12 = a.label('db12')
    L_bd = a.label('dbd')
    L_np = a.label('dnp')
    L_p3 = a.label('dp3')
    L_k3 = a.label('dk3')
    L_w1 = a.label('dw1')
    L_n1 = a.label('dn1')
    L_oth, L_start, L_rei, L_nsw = a.label('doth'), a.label('dstart'), a.label('drei'), a.label('dnsw')
    a(f"""
    s_mov_b32 s34, {16 - NSTAT}
    s_mov_b32 s35, 0
    s_mov_b32 s37, {((NSTAT + 3) % NST) * CH_BYTES}
    s_mov_b32 s38, {KV_OFF + (NSTAT + 3) * CH_BYTES}
    s_mov_b32 s33, 9216
    s_mov_b32 s93, {POLL_MAX}
    v_mov_b32 {v(T + 3)}, {RDY_A + 4}
    {L_top}:
    s_sub_u32 s44, s35, 2
    s_cmp_lt_u32 s44, 8
    s_cbranch_scc1 {L_act}
    s_cmp_eq_u32 s35, 11
    s_cbranch_scc1 {L_w2}
    s_cmp_gt_u32 s35, 1
    s_cbranch_scc1 {L_w0}
    s_cmp_le_u32 s34, 3
    s_cbranch_scc1 {L_w0}
    s_cmp_eq_u32 s35, 1
    s_cbranch_scc1 {L_w1}
    s_waitcnt vmcnt(3)
    s_branch {L_bar}
    {L_w1}:
    s_waitcnt vmcnt({6 + HPF})
    s_branch {L_bar}
    {L_w2}:
    s_waitcnt vmcnt(12)
    s_mov_b32 s35, 12
    s_branch {L_bar}
    {L_w0}:
    s_waitcnt vmcnt(0)
    s_branch {L_bar}
    {L_act}:
    s_waitcnt vmcnt({17 if HPF else 16})
    {L_bar}:
    s_cmp_eq_u32 s34, 0
    s_cbranch_scc1 {L_nb}
    """)
    bstamp(a)
    a('s_barrier')
    bstamp(a)
    a(f"""
    s_cmp_lg_u32 s35, 0
    s_cbranch_scc1 {L_np}
    s_cmp_lg_u32 s26, 3
    s_cbranch_scc1 {L_np}
    buffer_load_dwordx2 {v(T + 4, 2)}, {v(vPF)}, s[20:23], s53 offen sc1
    {L_np}:
    s_cmp_le_u32 s34, 3
    s_cbranch_scc1 {L_nokv}
    s_add_u32 s44, s36, s37
    s_cmp_ge_u32 s26, 2
    s_cbranch_scc1 {L_k3}
    """)
    for e in (3, 0, 1, 2):
        a(f"""
        s_add_u32 m0, s44, {KVR + e * 1024}
        s_add_u32 s45, s38, {e * 1024}
        buffer_load_dwordx4 {v(vKO)}, s[20:23], s45 offen lds
        """)
        if e == 3:
            a(f'{L_k3}:')
    a(f"""
    s_add_u32 s38, s38, {CH_BYTES}
    s_add_u32 s37, s37, {CH_BYTES}
    s_cmp_eq_u32 s37, {CH_BYTES * NST}
    s_cselect_b32 s37, 0, s37
    {L_nokv}:
    s_sub_u32 s34, s34, 1
    s_branch {L_sw}
    {L_nb}:
    s_cmp_ge_u32 s35, 11
    s_cbranch_scc1 {L_end2}
    {L_sw}:
    s_cmp_eq_u32 s35, 0
    s_cbranch_scc1 {L_s0}
    s_cmp_lt_u32 s35, 9
    s_cbranch_scc1 {L_body}
    s_cmp_eq_u32 s35, 9
    s_cbranch_scc1 {L_last}
    s_cmp_eq_u32 s35, 10
    s_cbranch_scc1 {L_wo}
    s_branch {L_top}
    {L_s0}:
    s_sub_u32 s93, s93, 1
    s_cbranch_scc1 {L_start}
    s_cmp_lg_u32 s26, 3
    s_cbranch_scc1 {L_oth}
    s_cmp_ge_u32 s34, 3
    s_cbranch_scc1 {L_p3}
    buffer_load_dwordx2 {v(T + 4, 2)}, {v(vPF)}, s[20:23], s53 offen sc1
    s_waitcnt vmcnt(0)
    {L_p3}:
    s_waitcnt vmcnt(3)
    v_cmp_eq_u64 vcc, s[98:99], {v(T + 4, 2)}
    s_nop 1
    s_cmp_eq_u64 vcc, -1
    s_cselect_b32 s44, s98, s34
    v_mov_b32 {v(T + 2)}, s44
    ds_write_b32 {v(T + 3)}, {v(T + 2)}
    s_cbranch_scc1 {L_start}
    s_branch {L_top}
    {L_oth}:
    s_mov_b32 s45, 40
    {L_rei}:
    s_sleep 1
    ds_read_b32 {v(T + 2)}, {v(T + 3)}
    s_waitcnt lgkmcnt(0)
    v_readfirstlane_b32 s44, {v(T + 2)}
    s_cmp_eq_u32 s44, s98
    s_cbranch_scc1 {L_start}
    s_cmp_eq_u32 s44, s34
    s_cbranch_scc1 {L_top}
    s_sub_u32 s45, s45, 1
    s_cbranch_scc0 {L_rei}
    s_branch {L_top}
    {L_start}:
    """)
    stamp(a, 23)
    for k in range(3):
        for e in range(2):
            emit(a, h_ld(k, e))
    for _ in range(HPF):
        paced_h()
    emit(a, w_rd(0, 0))
    a(f"""
    {L_next}:
    s_add_u32 s35, s35, 1
    s_branch {L_top}
    {L_body}:
    s_cmp_lg_u32 s35, 1
    s_cbranch_scc1 {L_n1}
    s_waitcnt vmcnt(0)
    {L_n1}:
    s_cmp_lg_u32 s35, 8
    s_cbranch_scc1 {L_nsw}
    s_mov_b32 s12, s16
    s_mov_b32 s13, s17
    s_mov_b32 s14, 819200
    s_mov_b32 s43, s56
    s_mov_b32 s52, 25600
    {L_nsw}:
    s_cmp_lt_u32 s34, 3
    s_cbranch_scc1 {L_b12}
    """)
    body(False, 15)
    a(f's_branch {L_bd}\n{L_b12}:')
    body(False, 12)
    a(f'{L_bd}:')
    lab = a.label('npsw')
    a(f'''
    s_cmp_lg_u32 s35, {10 - NSTAT}
    s_cbranch_scc1 {lab}
    s_mov_b32 s4, s16
    s_mov_b32 s5, s17
    s_mov_b32 s6, 819200
    s_lshr_b32 s44, s2, 3
    s_lshl_b32 s44, s44, 2
    s_add_u32 s44, s44, s26
    s_mul_i32 s32, s44, {50 * 128}
    s_mov_b32 s31, {13 * 128}
    {lab}:
    ''')
    paced_h()
    paced()
    a(f's_branch {L_next}\n{L_last}:')
    body(True)
    a(f's_branch {L_next}\n{L_wo}:')
    stamp(a, 17)
    emit(a, w_rd(1, 3072) + w_rd(2, 6144))
    a('s_mov_b32 s45, 0x15556\ns_waitcnt lgkmcnt(0)')
    emit(a, w_dma('s39', 3072 * 3))
    emit(a, w_dma('s39', 3072 * 4))
    for p in range(3):
        a(f"""
        v_add_u32 {v(T)}, {64 * p}, {v(vL)}
        v_mul_lo_u32 {v(T + 1)}, {v(T)}, s45
        v_lshrrev_b32 {v(T + 1)}, 22, {v(T + 1)}
        v_mul_u32_u24 {v(T + 1)}, {16 * 1280}, {v(T + 1)}
        v_add_u32 {v(vWD + p)}, {v(vWD + p)}, {v(T + 1)}
        """)
    a(f's_add_u32 s43, s56, {16 * 1280}\ns_mov_b32 s52, {80 * 1280}')
    emit(a, w_dma('s39', 3072 * 5))
    emit(a, w_dma('s39', 3072 * 6))
    a(f's_cmp_lg_u32 s34, 0\ns_cbranch_scc1 {L_next}\n{L_end2}:')
    a(f"""
    v_subrev_u32 {v(vWA)}, 9216, {v(vWA)}
    v_subrev_u32 {v(vWA + 1)}, 9216, {v(vWA + 1)}
    v_subrev_u32 {v(vWA + 2)}, 9216, {v(vWA + 2)}
    s_mul_i32 s44, s26, 14336
    s_add_u32 s44, s44, {OL_A}
    v_add_u32 {v(vKO)}, s44, {v(vHL)}
    v_and_b32 {v(T)}, 7, {v(vR)}
    v_xor_b32 {v(T)}, {v(T)}, {v(vH)}
    v_lshlrev_b32 {v(T + 1)}, 7, {v(vR)}
    v_add_u32 {v(T + 1)}, s39, {v(T + 1)}
    """)
    for jp in range(4):
        a(f"""
        v_xor_b32 {v(T + 2)}, {2 * jp}, {v(T)}
        v_lshl_add_u32 {v(T + 4 + jp)}, {v(T + 2)}, 4, {v(T + 1)}
        """)
    stamp(a, 18)
    a('s_barrier')
    Lp, Lq = a.label('op'), a.label('opd')
    a(f's_mov_b32 s93, {OPOLL_MAX}\n{Lp}:')
    for k in range(27, 30):
        for e in range(2):
            a(f'buffer_load_dwordx4 {v(hreg(k) + 4 * e, 4)}, {v(vHL)}, s[20:23], s{54 + e} offen offset:{1024 * (k - 27)} sc1')
    a('s_waitcnt vmcnt(0)')
    regs = [hreg(k) + i for k in range(27, 30) for i in range(8)]
    a(f'v_max3_u32 {v(T)}, {v(regs[0])}, {v(regs[1])}, {v(regs[2])}')
    for i in range(3, 23, 2):
        a(f'v_max3_u32 {v(T)}, {v(T)}, {v(regs[i])}, {v(regs[i + 1])}')
    a(f"""
    v_max_u32 {v(T)}, {v(T)}, {v(regs[23])}
    v_cmp_eq_u32 vcc, -1, {v(T)}
    s_nop 1
    s_cmp_eq_u64 vcc, 0
    s_cbranch_scc1 {Lq}
    s_sub_u32 s93, s93, 1
    s_cbranch_scc1 {Lq}
    s_sleep {OSLEEP}
    s_branch {Lp}
    {Lq}:
    """)
    stamp(a, 19)

    def o_rd(k):
        return [f'ds_read_b128 {v(hreg(k) + 4 * e, 4)}, {v(vKO)} offset:{(k - 30) * 2048 + 1024 * e}' for e in range(2)]

    for k in range(27, 30):
        emit(a, g_mfmas(k))
        emit(a, w_rd(k + 3, 3072 * (k - 27)))
    a('s_waitcnt lgkmcnt(0)')
    a('s_barrier')
    stamp(a, 30)
    for k in range(30, 33):
        emit(a, o_rd(k))
    XO = SL + 40
    for k in range(30, 37):
        n = {30: 4, 31: 10, 32: 15, 33: 15, 34: 15, 35: 8, 36: 0}[k]
        n = min(n, 8) if k >= 32 else n
        a(f's_waitcnt lgkmcnt({n})')
        emit(a, g_mfmas(k))
        if k + 3 < 37:
            emit(a, w_rd(k + 3, 3072 * (k + 3 - 30)) + o_rd(k + 3))
        if k == 35:
            g2_out(a, XO, vL, 's24', 0)
    a('s_nop 7')
    stamp(a, 20)
    for n in range(5):
        for jp in range(4):
            a(f'ds_write_b128 {v(T + 4 + jp)}, {v(ACC + 16 * n + 4 * jp, 4)} offset:{4096 * n}')
    a('s_waitcnt vmcnt(0) lgkmcnt(0)')
    a('s_barrier')
    stamp(a, 21)
    for i in range(8):
        a(f'v_mov_b32 {v(ACC + i)}, {v(XO + i)}')
    g2_out(a, ACC, vL, 's24', 1)


def build(path):
    hdr = open('parallel_sum__grouped_kv_mqa__geglu_ffn__prompt.s.ref').read().split('; Override launch')[0]
    out = hdr + f'; @launch grid=(256,1,1) block=(768,1,1) lds={LDS_TOTAL}\n'
    out += '.amdgcn_target "amdgcn-amd-amdhsa--gfx950"\n'
    out += gen()
    out += kernel_desc(KNAME, 168)
    open(path, 'w').write(out)


if __name__ == '__main__':
    import sys
    if len(sys.argv) > 2 and sys.argv[2] == 'stamp':
        asmlib.STAMPS = True
    build(sys.argv[1])
```

```python
from asmlib import *
import asmlib
import math
import os

KNAME = 'parallel_sum__grouped_kv_mqa__geglu_ffn__prompt_kernel'

H_OFF = 0
QF_OFF = 0x700000
KV_OFF = 0xA00000
OF_OFF = 0xB00000
FL_OFF = 0xE00000
F_ST = 0x1200000
F_CS = 0x1220000
F_KV = 0x1240000
F_KC = 0x1248000
F_W2 = 0x1250000
F_QH = 0xE80000
ROWW = 0xE10000
CSW = 0xE20000
CSKVW = 0xE60000
W2F = 0xF00000
WS_USED = 0x1260000

LDS_X = 0
LDS_W = 49152
LDS_KV = 147456
CS_A = 16384
PART_A = 32768
VT_A = 32768
ROWC_A = 156672
CSKV_A = 158720
NONCE_A = 160768
RDY_A = 160800
CD_A = 160832
PD_A = 160864
LDS_TOTAL = 163840
CH_BYTES = 14336
NST = 4
KVR = 49152
Q_A = KVR + 3 * CH_BYTES
G2R = KVR + CH_BYTES * NST
G2D = 3
TW_A = G2R
OL_A = KVR
WO_HI = 106496
WOA = 0
RED_A = 0

C0 = -2.0 * math.sqrt(2.0 / math.pi) * math.log2(math.e)
C1 = C0 * 0.044715
QSC = math.log2(math.e) / math.sqrt(20.0)
M_OFFSET = 90.0
POLL_MAX = 400000
NONCE_X = 0x5a5a5a5a

HM = 's[62:63]'
PFWAIT = False
ENV = os.environ
NODOWN = ENV.get('NODOWN')
PRIO2 = int(ENV.get('PRIO2', '3'))
PRIO1 = int(ENV.get('PRIO1', '3'))
SPACE = ENV.get('SPACE', 's_nop 7')
NOPF = not ENV.get('PF')
INV = int(ENV.get('INV', '0'))
NOG2 = ENV.get('NOG2')
JX = int(ENV.get('JX', '0'))
QSLEEP = int(ENV.get('QSLEEP', '4'))
KVF = int(ENV.get('KVF', '3'))
OUTSC = {'': '', '1': ' sc1', '2': ' nt', '3': ' sc0 sc1', '4': ' sc1 nt'}[ENV.get('OUTSC', '')]
HPF = int(ENV.get('HPF', '2'))
PERM = int(ENV.get('PERM', '3'))
P1PF = int(ENV.get('P1PF', '0'))
PFC = tuple(int(x) for x in ENV.get('PFC', '2,3,4').split(','))
WDC = int(ENV.get('WDC', '2'))
WOC = int(ENV.get('WOC', '4'))
TWC = int(ENV.get('TWC', '1'))
DPOLL2 = 0
OSLEEP = int(ENV.get('OSLEEP', '3'))
OPOLL_MAX = 200000
LINPF = int(ENV.get('LINPF', '0'))
NOSL = ENV.get('NOSL')
PF0 = int(ENV.get('PF0', '0'))
JIT = int(ENV.get('JIT', '0'))
JITD = int(ENV.get('JITD', '4'))
SLC = int(ENV.get('SLC', '0'))
SLG = int(ENV.get('SLG', '1'))
SPN = int(ENV.get('SPN', '2'))
PZ0 = int(ENV.get('PZ0', '0'))
P3C = int(ENV.get('P3C', '7'))
EARLY2 = int(ENV.get('EARLY2', '0'))
CWARM = int(ENV.get('CWARM', '1'))
KVSL = int(ENV.get('KVSL', '16'))
HEARLY = ENV.get('HEARLY')
PSLEEP = int(ENV.get('PSLEEP', '2'))
NOPF2 = not ENV.get('PF2')
CV = int(ENV.get('CV', '0'))
NODMA = ENV.get('NODMA')
IST = ENV.get('IST')
LD = ' sc1' if ENV.get('SC1LD') else ''
FEWST = ENV.get('FEWST')
IST_LIST = tuple(int(x) for x in os.environ.get('ISTL', '1,2,6,7').split(','))
HFLAG_T = int(os.environ.get('HFT', '6'))
G2_START = int(os.environ.get('G2S', '6'))
G2_END = int(os.environ.get('G2E', '15'))


class VM:
    def __init__(self):
        self.ops = []

    def add(self, tag, n=1, optional=False):
        for _ in range(n):
            self.ops.append((tag, optional))

    def wait(self, tag):
        idx = max(i for i, (t, o) in enumerate(self.ops) if t == tag)
        n = sum(1 for t, o in self.ops[idx + 1:] if not o)
        assert n <= 63, n
        return n

    def drain(self):
        self.ops = []


def emit(a, bundles):
    for b in bundles:
        a(b if isinstance(b, str) else '\n'.join(b))


def flag_store(a, soff_reg, vt):
    a(f'''
    v_mov_b32 {v(vt)}, s98
    v_mov_b32 {v(vt + 1)}, s99
    s_mov_b64 exec, 1
    buffer_store_dwordx2 {v(vt, 2)}, off, s[20:23], {soff_reg} sc1
    s_mov_b64 exec, -1
    ''')


def poll(a, vt, voff, soff_reg, wide=False, ignore=None, inv=True, sleep=None):
    L = a.label('poll')
    Ld = a.label('polld')
    a(f's_mov_b32 s93, {POLL_MAX}')
    a(f'{L}:')
    if wide:
        a(f'''
        buffer_load_dwordx4 {v(vt, 4)}, {v(voff)}, s[20:23], {soff_reg} offen sc1
        s_waitcnt vmcnt(0)
        v_cmp_eq_u64 vcc, s[98:99], {v(vt, 2)}
        v_cmp_eq_u64 s[46:47], s[98:99], {v(vt + 2, 2)}
        s_nop 1
        s_and_b64 vcc, vcc, s[46:47]
        ''')
    else:
        a(f'''
        buffer_load_dwordx2 {v(vt, 2)}, {v(voff)}, s[20:23], {soff_reg} offen sc1
        s_waitcnt vmcnt(0)
        v_cmp_eq_u64 vcc, s[98:99], {v(vt, 2)}
        s_nop 1
        ''')
    if ignore:
        a(f's_or_b64 vcc, vcc, {ignore}')
    a(f'''
    s_cmp_eq_u64 vcc, -1
    s_cbranch_scc1 {Ld}
    s_sub_u32 s93, s93, 1
    s_cbranch_scc1 {Ld}
    s_sleep {sleep or PSLEEP}
    s_branch {L}
    {Ld}:
    ''')
    if inv and INV:
        a('buffer_inv sc1\ns_waitcnt vmcnt(0)')


def polln(a, vt, voff, rows, sleep):
    L = a.label('poll')
    Ld = a.label('polld')
    a(f's_mov_b32 s93, {POLL_MAX}\n{L}:')
    for q, (so, ig) in enumerate(rows):
        a(f'buffer_load_dwordx2 {v(vt + 2 * q, 2)}, {v(voff[q] if isinstance(voff, list) else voff)}, s[20:23], {so} offen sc1')
    a('s_waitcnt vmcnt(0)')
    dst = ['vcc', 's[46:47]', 's[48:49]']
    for q in range(len(rows)):
        a(f'v_cmp_eq_u64 {dst[q]}, s[98:99], {v(vt + 2 * q, 2)}')
    a('s_nop 1')
    for q, (so, ig) in enumerate(rows):
        if ig:
            a(f's_or_b64 {dst[q]}, {dst[q]}, {ig}')
        if q:
            a(f's_and_b64 vcc, vcc, {dst[q]}')
    a(f'''
    s_cmp_eq_u64 vcc, -1
    s_cbranch_scc1 {Ld}
    s_sub_u32 s93, s93, 1
    s_cbranch_scc1 {Ld}
    s_sleep {sleep}
    s_branch {L}
    {Ld}:
    ''')


def one_poller(a, vt, word, body, who=3):
    Lw, Ld, Ls = a.label('opw'), a.label('opd'), a.label('ops')
    a(f'''
    v_mov_b32 {v(vt + 3)}, {RDY_A + 4 * word}
    s_cmp_lg_u32 s26, {who}
    s_cbranch_scc1 {Lw}
    ''')
    body()
    a(f'''
    v_mov_b32 {v(vt + 2)}, s98
    ds_write_b32 {v(vt + 3)}, {v(vt + 2)}
    s_branch {Ld}
    {Lw}:
    s_mov_b32 s93, {POLL_MAX * 8}
    {Ls}:
    ds_read_b32 {v(vt + 2)}, {v(vt + 3)}
    s_waitcnt lgkmcnt(0)
    v_readfirstlane_b32 s46, {v(vt + 2)}
    s_cmp_eq_u32 s46, s98
    s_cbranch_scc1 {Ld}
    s_sub_u32 s93, s93, 1
    s_cbranch_scc1 {Ld}
    s_sleep 1
    s_branch {Ls}
    {Ld}:
    ''')


def bstamp(a, first=False):
    if not (asmlib.STAMPS and ENV.get('BST')):
        return
    if first:
        a('s_add_u32 s101, s92, 0xC0000')
    a('''
    s_memrealtime s[94:95]
    s_memtime s[96:97]
    s_waitcnt lgkmcnt(0)
    v_mov_b32 v166, s94
    v_mov_b32 v167, s96
    buffer_store_dwordx2 v[166:167], off, s[88:91], s101
    s_add_u32 s101, s101, 8
    ''')


def srd(a, base, ptr, size):
    a(f'''
    s_mov_b32 s{base}, s{ptr}
    s_mov_b32 s{base + 1}, s{ptr + 1}
    s_mov_b32 s{base + 2}, {size}
    s_mov_b32 s{base + 3}, 0x20000
    ''')


def w_source(a):
    a('''
    s_and_b32 s44, s26, 1
    s_and_b32 s51, s44, s48
    s_lshr_b32 s45, s26, 1
    s_lshl_b32 s46, s44, 6
    s_add_u32 s46, s46, s49
    s_cmp_eq_u32 s48, 1
    s_cselect_b32 s46, s49, s46
    s_lshl_b32 s47, s45, 6
    s_add_u32 s47, s47, s50
    s_cmp_eq_u32 s51, 1
    s_cselect_b32 s52, s47, s46
    s_lshl_b32 s52, s52, 1
    s_cmp_eq_u32 s45, 1
    s_cselect_b32 s12, s82, s80
    s_cselect_b32 s13, s83, s81
    s_mov_b32 s14, 2211840
    s_mov_b32 s53, 3456
    s_cmp_eq_u32 s51, 1
    s_cselect_b32 s12, s70, s12
    s_cselect_b32 s13, s71, s13
    s_cselect_b32 s14, 819200, s14
    s_cselect_b32 s53, 1280, s53
    s_mov_b32 s15, 0x20000
    ''')


def tile_offs(t):
    p, o = t >> 1, t & 1
    b = p * 7168
    return b + o * 1024, b + 2048, b + 3072 + o * 2048, b + 4096 + o * 2048


def gen():
    a = Asm()
    a(kernel_head(KNAME))
    stamp_early(a)
    vL, vH, vR = 1, 2, 3
    L_end = a.label('end')
    L_aux = a.label('aux')
    a(f'''
    s_cmp_ge_u32 s2, 256
    s_cbranch_scc1 {L_end}
    s_load_dwordx8 s[68:75], s[0:1], 0
    s_load_dwordx4 s[80:83], s[0:1], 48
    s_load_dwordx4 s[76:79], s[0:1], 80
    s_load_dwordx2 s[84:85], s[0:1], 32
    s_load_dwordx4 s[88:91], s[0:1], 64
    v_lshrrev_b32 v4, 6, v0
    v_and_b32 {v(vL)}, 63, v0
    v_readfirstlane_b32 s24, v4
    v_lshrrev_b32 {v(vH)}, 5, {v(vL)}
    v_and_b32 {v(vR)}, 31, {v(vL)}
    ''')
    if CWARM:
        Lw, Lp = a.label('nowarm'), a.label('pc')
        a(f'''
        s_cmp_lg_u32 s24, 11
        s_cbranch_scc1 {Lw}
        s_getpc_b64 s[4:5]
        {Lp}:
        s_bfe_u32 s44, s2, 0x30003
        s_lshl_b32 s44, s44, 13
        v_lshl_add_u32 v4, {v(vL)}, 7, s44
        v_min_u32 v4, {L_end}-{Lp}, v4
        global_load_dword v165, v4, s[4:5]
        {Lw}:
        ''')
    vXD, vWD, vKD = 20, 22, 23
    t0, t1, t2, t3, t4 = 4, 5, 6, 7, 8
    a(f'''
    s_bfe_u32 s27, s2, 0x30003
    s_and_b32 s46, s2, 1
    s_lshl_b32 s46, s46, 3
    s_add_u32 s27, s27, s46
    s_bfe_u32 s46, s2, 0x20001
    s_xor_b32 s46, s46, {JX}
    s_lshl_b32 s46, s46, 2
    s_lshr_b32 s47, s2, 6
    s_add_u32 s28, s46, s47
    s_cmp_ge_u32 s28, 11
    s_cselect_b32 s48, 1, 0
    s_sub_u32 s44, s28, 11
    s_lshl_b32 s45, s44, 6
    s_add_u32 s45, s45, 1408
    s_lshl_b32 s46, s28, 7
    s_lshl_b32 s50, s44, 7
    s_cmp_eq_u32 s48, 1
    s_cselect_b32 s49, s45, s46
    s_and_b32 s25, s24, 1
    s_lshr_b32 s26, s24, 1
    s_sub_u32 s44, s24, 8
    s_cmp_ge_u32 s24, 8
    s_cselect_b32 s26, s44, s26
    s_and_b32 s44, s26, 1
    s_and_b32 s51, s44, s48
    s_lshr_b32 s43, s26, 1
    s_andn2_b32 s46, s44, s48
    s_lshl_b32 s46, s46, 6
    s_add_u32 s46, s46, s49
    s_lshl_b32 s47, s43, 6
    s_add_u32 s47, s47, s50
    s_mov_b32 s53, 3456
    s_cmp_eq_u32 s51, 1
    s_cselect_b32 s52, s47, s46
    s_cselect_b32 s53, 1280, s53
    s_lshl_b32 s52, s52, 1
    s_lshl_b32 s31, s53, 3
    s_lshl_b32 s32, s53, 6
    v_lshrrev_b32 {v(t0)}, 3, {v(vL)}
    v_and_b32 {v(t1)}, 7, {v(vL)}
    s_lshl_b32 s44, s27, 7
    s_lshl_b32 s45, s26, 5
    s_add_u32 s44, s44, s45
    v_add_u32 {v(t2)}, s44, {v(t0)}
    v_mul_u32_u24 {v(t2)}, 1280, {v(t2)}
    v_lshrrev_b32 {v(t3)}, 1, {v(t0)}
    v_xor_b32 {v(t3)}, {v(t3)}, {v(t1)}
    v_lshl_add_u32 {v(vXD)}, {v(t3)}, 4, {v(t2)}
    v_xor_b32 {v(t3)}, 4, {v(t3)}
    v_lshl_add_u32 {v(vXD + 1)}, {v(t3)}, 4, {v(t2)}
    v_add_u32 {v(vXD + 1)}, {8 * 1280}, {v(vXD + 1)}
    v_mul_lo_u32 {v(t2)}, {v(t0)}, s53
    v_lshrrev_b32 {v(t3)}, 1, {v(t1)}
    v_and_b32 {v(t4)}, 2, {v(t0)}
    v_xor_b32 {v(t3)}, {v(t3)}, {v(t4)}
    v_xor_b32 {v(t3)}, s43, {v(t3)}
    v_lshl_add_u32 {v(t2)}, {v(t3)}, 5, {v(t2)}
    v_and_b32 {v(t3)}, 1, {v(t1)}
    v_lshl_add_u32 {v(t2)}, {v(t3)}, 4, {v(t2)}
    v_add_u32 {v(vWD)}, s52, {v(t2)}
    s_lshl_b32 s36, s26, 12
    s_mul_i32 s37, s26, 24576
    s_add_u32 s37, s37, {LDS_W}
    s_lshl_b32 s33, s53, 5
    s_mul_i32 s33, s33, s25
    s_lshl_b32 s44, s25, 12
    s_add_u32 s35, s37, s44
    s_bfe_u32 s44, s2, 0x30003
    s_lshr_b32 s45, s2, 6
    s_add_u32 s44, s44, s45
    s_and_b32 s100, s44, {PERM}
    s_xor_b32 s45, s100, 1
    s_mul_i32 s38, s100, s32
    s_mul_i32 s39, s45, s32
    s_mov_b32 s10, 2621440
    s_mov_b32 s11, 0x20000
    s_mov_b32 s14, 2211840
    s_mov_b32 s15, 0x20000
    s_cmp_ge_u32 s24, 8
    s_cbranch_scc1 {L_aux}
    s_cmp_eq_u32 s43, 1
    s_waitcnt lgkmcnt(0)
    s_cselect_b32 s12, s82, s80
    s_cselect_b32 s13, s83, s81
    s_cmp_eq_u32 s51, 1
    s_cselect_b32 s12, s70, s12
    s_cselect_b32 s13, s71, s13
    s_cselect_b32 s14, 819200, s14
    ''')
    for c in range(2):
        for e in range(4):
            a(f'''
            s_add_u32 m0, s35, {c * 8192 + e * 1024}
            s_add_u32 s34, s33, s{38 + c}
            buffer_load_dwordx4 {v(vWD)}, s[12:15], s34 offen lds
            ''')
            if e < 3:
                a('s_add_u32 s33, s33, s31')
            elif c == 0:
                a('s_mul_i32 s44, s31, 3\ns_sub_u32 s33, s33, s44')
    L_com = a.label('common')
    a(f'''
    s_mov_b32 s8, s68
    s_mov_b32 s9, s69
    s_mov_b32 s16, s72
    s_mov_b32 s17, s73
    s_mov_b32 s18, 25600
    s_mov_b32 s19, 0x20000
    v_mov_b32 {v(vKD)}, 0
    s_branch {L_com}
    {L_aux}:
    s_setprio {PRIO1}
    s_cmp_lt_u32 s28, 8
    s_cselect_b32 s54, 1, 0
    s_cmp_lt_u32 s26, 3
    s_cselect_b32 s40, s54, 0
    s_lshl_b32 s44, s26, 10
    s_add_u32 s38, s44, {LDS_KV}
    v_lshl_add_u32 {v(vKD)}, {v(vL)}, 4, s44
    s_mov_b32 s18, 25600
    s_mov_b32 s19, 0x20000
    s_lshl_b32 s46, s100, 7
    s_lshl_b32 s47, s45, 7
    s_mul_i32 s58, s100, 2560
    s_mul_i32 s59, s45, 2560
    s_bitcmp1_b32 s28, 2
    s_waitcnt lgkmcnt(0)
    s_mov_b32 s8, s68
    s_mov_b32 s9, s69
    s_cselect_b32 s16, s74, s72
    s_cselect_b32 s17, s75, s73
    ''')
    for c in range(2):
        for e in range(4):
            a(f'''
            s_add_u32 m0, s36, {LDS_X + c * 16384 + e * 1024}
            s_add_u32 s34, s{46 + c}, {(e >> 1) * 16 * 1280}
            buffer_load_dwordx4 {v(vXD + (e & 1))}, s[8:11], s34 offen lds
            ''')
        lab = a.label('nokv')
        a(f'''
        s_cmp_eq_u32 s40, 0
        s_cbranch_scc1 {lab}
        s_add_u32 m0, s38, {c * 3072}
        s_nop 0
        buffer_load_dwordx4 {v(vKD)}, s[16:19], s{58 + c} offen lds
        {lab}:
        ''')
    a(f'''
    s_cmp_eq_u32 s43, 1
    s_cselect_b32 s12, s82, s80
    s_cselect_b32 s13, s83, s81
    s_cmp_eq_u32 s51, 1
    s_cselect_b32 s12, s70, s12
    s_cselect_b32 s13, s71, s13
    s_cselect_b32 s14, 819200, s14
    {L_com}:
    s_mov_b32 s62, 0
    s_mov_b32 s63, -1
    s_and_b32 s44, s2, 7
    s_lshl_b32 s44, s44, 2
    s_bfe_u32 s46, s2, 0x20003
    s_add_u32 s29, s44, s46
    s_lshr_b32 s30, s2, 5
    ''')
    srd(a, 20, 78, WS_USED)
    srd(a, 64, 90, 2621440)
    if asmlib.STAMPS:
        a('s_mov_b32 s86, s88\ns_mov_b32 s87, s89')
    WDP = 86 if asmlib.STAMPS else 88
    if asmlib.STAMPS:
        a(f'''
        s_mov_b32 s88, s78
        s_mov_b32 s89, s79
        s_mov_b32 s90, 0x2000000
        s_mov_b32 s91, 0x20000
        s_mul_i32 s92, s2, 12
        s_add_u32 s92, s92, s24
        s_lshl_b32 s92, s92, 8
        s_add_u32 s92, s92, {asmlib.STAMP_OFF}
        ''')
    stamp(a, 0, early=True)
    stamp(a, 24)
    L_aux2 = a.label('aux2')
    a(f'''
    s_cmp_ge_u32 s24, 8
    s_cbranch_scc1 {L_aux2}
    ''')
    compute_wave(a, vL, vH, vR, L_end)
    a(f'{L_aux2}:')
    aux_wave(a, vL, vH, vR, L_end, WDP)
    a(f'''
    {L_end}:
    s_endpgm
    ''')
    return a.text()


def compute_wave(a, vL, vH, vR, L_end):
    al = Alloc(4, 168)
    T = al('T', 8, 4)
    ACC = al('acc', 64, 4)
    XF = al('xf', 16, 4)
    WF = al('wf', 16, 4)
    vXA = al('xa', 4)
    vWA = al('wa', 2)
    p1_end = al.p
    t0, t1, t2, t3, t4 = T, T + 1, T + 2, T + 3, T + 4
    g1, kap, fq = T + 5, T + 6, T + 7
    a.c('=========== compute wave: phase 1 ===========')
    linpf = []
    CR = 120
    XR = 120
    U = 140
    u0, u1, u2, u3, u4, u5 = range(U, U + 6)
    W4 = U + 8
    vN = U + 12
    srd(a, 4, 76, 256)

    a(f'''
    s_lshr_b32 s44, s30, 2
    s_lshl_b32 s38, s29, 1
    s_add_u32 s38, s38, s44
    s_and_b32 s44, s30, 3
    s_lshl_b32 s44, s44, 3
    s_add_u32 s33, s44, s24
    s_mul_i32 s37, s38, 40960
    s_add_u32 s37, s37, {OF_OFF}
    s_lshl_b32 s36, s33, 10
    s_add_u32 s36, s36, s37
    s_lshl_b32 s44, s33, 8
    s_add_u32 s37, s37, s44
    s_add_u32 s37, s37, 32768
    ''')
    PZ = 116
    poison = [f'v_mov_b32 {v(PZ + q)}, -1' for q in range(4)] + [
        f'v_lshlrev_b32 {v(u4)}, 4, {v(vL)}', f'v_lshlrev_b32 {v(u5)}, 2, {v(vL)}',
        f'buffer_store_dwordx4 {v(PZ, 4)}, {v(u4)}, s[20:23], s36 offen sc1',
        f'buffer_store_dword {v(PZ)}, {v(u5)}, s[20:23], s37 offen sc1']

    def lines(txt):
        return [x.strip() for x in txt.split(chr(10)) if x.strip()]

    def load_cs():
        f = lines(f'''
        s_mul_i32 s44, s27, 40
        v_lshrrev_b32 {v(u1)}, 3, {v(vL)}
        v_add_u32 {v(u1)}, s44, {v(u1)}
        v_mul_lo_u32 {v(u2)}, {v(u1)}, s53
        v_and_b32 {v(u1)}, 7, {v(vL)}
        v_lshl_add_u32 {v(u2)}, {v(u1)}, 4, {v(u2)}
        s_mov_b32 s34, s52
        ''')
        for t in range(5):
            f.append([f'buffer_load_dwordx4 {v(CR + 4 * t, 4)}, {v(u2)}, s[12:15], s34 offen', 's_add_u32 s34, s34, s31'])
        return f

    def load_rows():
        f = lines(f'''
        s_lshl_b32 s44, s27, 7
        s_lshl_b32 s45, s28, 3
        s_add_u32 s44, s44, s45
        s_lshl_b32 s45, s26, 1
        s_add_u32 s55, s44, s45
        v_add_u32 {v(u0)}, s55, {v(vH)}
        v_mul_u32_u24 {v(u0)}, 1280, {v(u0)}
        v_lshl_add_u32 {v(u0)}, {v(vR)}, 3, {v(u0)}
        ''')
        for t in range(5):
            f.append(f'buffer_load_dwordx2 {v(XR + 2 * t, 2)}, {v(u0)}, s[8:11], 0 offen offset:{256 * t}')
        return f

    def fill_cs():
        A8 = 156
        f = []
        for q in range(4):
            f += [f'v_lshlrev_b32 {v(A8 + 2 * q)}, 16, {v(CR + q)}', f'v_and_b32 {v(A8 + 2 * q + 1)}, 0xffff0000, {v(CR + q)}']
        for t in range(1, 5):
            for q in range(4):
                ta, tb = (u2, u3) if q & 1 else (u4, u5)
                f += lines(f'''
                v_lshlrev_b32 {v(ta)}, 16, {v(CR + 4 * t + q)}
                v_and_b32 {v(tb)}, 0xffff0000, {v(CR + 4 * t + q)}
                v_add_f32 {v(A8 + 2 * q)}, {v(A8 + 2 * q)}, {v(ta)}
                v_add_f32 {v(A8 + 2 * q + 1)}, {v(A8 + 2 * q + 1)}, {v(tb)}
                ''')
        f.append('s_nop 1')
        f += [f'v_permlane32_swap_b32 {v(A8 + q)}, {v(A8 + 4 + q)}' for q in range(4)]
        f.append('s_nop 1')
        f += [f'v_add_f32 {v(A8 + q)}, {v(A8 + q)}, {v(A8 + 4 + q)}' for q in range(4)]
        f.append('s_nop 1')
        f += [f'v_permlane16_swap_b32 {v(A8 + q)}, {v(A8 + 2 + q)}' for q in range(2)]
        f.append('s_nop 1')
        f += [f'v_add_f32 {v(A8 + q)}, {v(A8 + q)}, {v(A8 + 2 + q)}' for q in range(2)]
        f += lines(f'''
        s_nop 1
        v_add_f32_dpp {v(A8)}, {v(A8)}, {v(A8)} row_ror:8 row_mask:0xf bank_mask:0xf
        v_add_f32_dpp {v(A8 + 1)}, {v(A8 + 1)}, {v(A8 + 1)} row_ror:8 row_mask:0xf bank_mask:0xf
        s_mov_b32 vcc_lo, 0xff00ff00
        s_mov_b32 vcc_hi, 0xff00ff00
        v_cndmask_b32 {v(u0)}, {v(A8)}, {v(A8 + 1)}, vcc
        v_cvt_pk_bf16_f32 {v(u1)}, {v(u0)}, {v(u0)}
        v_and_b32 {v(u1)}, 0xffff0000, {v(u1)}
        v_sub_f32 {v(u1)}, {v(u0)}, {v(u1)}
        v_cvt_pk_bf16_f32 {v(u0)}, {v(u0)}, {v(u1)}
        v_and_b32 {v(u1)}, 7, {v(vL)}
        v_lshl_add_u32 {v(u1)}, {v(u1)}, 1, {v(vH)}
        v_bfe_u32 {v(u2)}, {v(vL)}, 4, 1
        v_lshl_add_u32 {v(u1)}, {v(u1)}, 1, {v(u2)}
        v_bfe_u32 {v(u2)}, {v(vL)}, 3, 1
        v_lshl_add_u32 {v(u1)}, {v(u1)}, 1, {v(u2)}
        v_bfe_u32 {v(u2)}, {v(u1)}, 2, 1
        v_bfe_u32 {v(u3)}, {v(u1)}, 3, 1
        v_lshl_add_u32 {v(u2)}, {v(u2)}, 1, {v(u3)}
        v_and_b32 {v(u3)}, 3, {v(u1)}
        v_lshl_add_u32 {v(u2)}, {v(u2)}, 2, {v(u3)}
        v_lshrrev_b32 {v(u3)}, 4, {v(u1)}
        s_and_b32 s44, s26, 1
        s_lshl_b32 s44, s44, 2
        s_cmp_eq_u32 s48, 1
        s_cselect_b32 s44, 0, s44
        v_add_u32 {v(u4)}, s44, {v(u3)}
        s_lshr_b32 s45, s26, 1
        v_mov_b32 {v(u5)}, s45
        s_cmp_eq_u32 s51, 1
        s_cselect_b64 vcc, -1, 0
        s_add_u32 s44, s26, 3
        v_lshrrev_b32 {v(u1)}, 1, {v(u3)}
        v_add_u32 {v(u1)}, s44, {v(u1)}
        v_and_b32 {v(u3)}, 1, {v(u3)}
        v_cndmask_b32 {v(u4)}, {v(u4)}, {v(u1)}, vcc
        v_cndmask_b32 {v(u5)}, {v(u5)}, {v(u3)}, vcc
        v_lshl_add_u32 {v(u2)}, {v(u5)}, 4, {v(u2)}
        v_lshl_add_u32 {v(u2)}, {v(u4)}, 5, {v(u2)}
        v_lshlrev_b32 {v(u2)}, 2, {v(u2)}
        s_lshl_b32 s44, s28, 14
        s_lshl_b32 s45, s27, 10
        s_add_u32 s44, s44, s45
        s_add_u32 s44, s44, {CSW}
        buffer_store_dword {v(u0)}, {v(u2)}, s[20:23], s44 offen sc1
        s_lshl_b32 s46, s27, 2
        s_add_u32 s46, s46, s26
        s_lshl_b32 s46, s46, 7
        s_lshl_b32 s45, s28, 13
        s_add_u32 s46, s46, s45
        s_add_u32 s56, s46, {F_CS}
        ''')
        return f

    def fill_rows():
        f = [f'v_mov_b32 {v(u0)}, 0', f'v_mov_b32 {v(u1)}, 0']
        for t in range(10):
            f += lines(f'''
            v_lshlrev_b32 {v(u2)}, 16, {v(XR + t)}
            v_and_b32 {v(u3)}, 0xffff0000, {v(XR + t)}
            v_add_f32 {v(u0)}, {v(u0)}, {v(u2)}
            v_fmac_f32 {v(u1)}, {v(u2)}, {v(u2)}
            v_add_f32 {v(u0)}, {v(u0)}, {v(u3)}
            v_fmac_f32 {v(u1)}, {v(u3)}, {v(u3)}
            ''')
        for ror in (8, 4, 2, 1):
            f += lines(f'''
            s_nop 1
            v_add_f32_dpp {v(u0)}, {v(u0)}, {v(u0)} row_ror:{ror} row_mask:0xf bank_mask:0xf
            v_add_f32_dpp {v(u1)}, {v(u1)}, {v(u1)} row_ror:{ror} row_mask:0xf bank_mask:0xf
            ''')
        f += lines(f'''
        v_mov_b32 {v(u2)}, {v(u0)}
        v_mov_b32 {v(u3)}, {v(u1)}
        s_nop 1
        v_permlane16_swap_b32 {v(u0)}, {v(u2)}
        v_permlane16_swap_b32 {v(u1)}, {v(u3)}
        s_mov_b32 s44, {f2u(1.0 / 640.0)}
        s_mov_b32 s45, {f2u(1e-5)}
        v_add_f32 {v(u0)}, {v(u0)}, {v(u2)}
        v_add_f32 {v(u1)}, {v(u1)}, {v(u3)}
        v_mul_f32 {v(u0)}, s44, {v(u0)}
        v_mul_f32 {v(u1)}, s44, {v(u1)}
        v_fma_f32 {v(u1)}, -{v(u0)}, {v(u0)}, {v(u1)}
        v_max_f32 {v(u1)}, 0, {v(u1)}
        v_cvt_pk_bf16_f32 {v(W4)}, -{v(u0)}, -{v(u0)}
        v_cvt_pk_bf16_f32 {v(u1)}, {v(u1)}, {v(u1)}
        v_and_b32 {v(u1)}, 0xffff0000, {v(u1)}
        v_add_f32 {v(u1)}, s45, {v(u1)}
        v_cvt_pk_bf16_f32 {v(u1)}, {v(u1)}, {v(u1)}
        v_and_b32 {v(u1)}, 0xffff0000, {v(u1)}
        v_sqrt_f32 {v(u1)}, {v(u1)}
        v_mov_b32 {v(W4 + 3)}, 0
        v_cvt_pk_bf16_f32 {v(u1)}, {v(u1)}, {v(u1)}
        v_and_b32 {v(u1)}, 0xffff0000, {v(u1)}
        v_rcp_f32 {v(W4 + 1)}, {v(u1)}
        v_mul_f32 {v(W4 + 2)}, {v(u1)}, {v(u1)}
        v_lshlrev_b32 {v(u2)}, 4, {v(vH)}
        s_lshl_b32 s44, s55, 4
        s_add_u32 s44, s44, {ROWW}
        ''')
        f.append(['s_mov_b32 exec_lo, 1', 's_mov_b32 exec_hi, 1',
                  f'buffer_store_dwordx4 {v(W4, 4)}, {v(u2)}, s[20:23], s44 offen sc1', 's_mov_b64 exec, -1'])
        f += lines(f'''
        s_lshl_b32 s44, s28, 2
        s_add_u32 s44, s44, s26
        s_lshl_b32 s44, s44, 7
        s_lshl_b32 s45, s27, 13
        s_add_u32 s44, s44, s45
        s_add_u32 s56, s44, {F_ST}
        ''')
        return f

    stamp(a, 22)
    a(f'''
    v_lshrrev_b32 {v(t0)}, 1, {v(vR)}
    v_and_b32 {v(t0)}, 7, {v(t0)}
    v_xor_b32 {v(t0)}, {v(t0)}, {v(vH)}
    v_lshlrev_b32 {v(t1)}, 7, {v(vR)}
    s_lshl_b32 s44, s25, 13
    v_add_u32 {v(t1)}, s44, {v(t1)}
    ''')
    for sI in range(4):
        a(f'''
        v_xor_b32 {v(t2)}, {2 * sI}, {v(t0)}
        v_lshl_add_u32 {v(vXA + sI)}, {v(t2)}, 4, {v(t1)}
        ''')
    a(f'''
    v_bfe_u32 {v(g1)}, {v(vL)}, 4, 1
    v_bfe_u32 {v(kap)}, {v(vL)}, 2, 2
    v_and_b32 {v(t0)}, 1, {v(vL)}
    v_lshlrev_b32 {v(t0)}, 1, {v(t0)}
    v_bfe_u32 {v(t1)}, {v(vL)}, 1, 1
    v_or_b32 {v(fq)}, {v(t0)}, {v(t1)}
    s_lshr_b32 s44, s26, 1
    s_and_b32 s57, s44, s48
    v_lshl_add_u32 {v(t0)}, {v(vH)}, 3, {v(kap)}
    v_lshlrev_b32 {v(t0)}, 7, {v(t0)}
    v_lshl_add_u32 {v(t0)}, {v(fq)}, 3, {v(t0)}
    v_and_b32 {v(t4)}, 2, {v(kap)}
    s_cmp_eq_u32 s57, 1
    s_cselect_b64 vcc, -1, 0
    ''')
    for bb in range(2):
        a(f'''
        s_lshl_b32 s44, s26, 1
        s_add_u32 s44, s44, {bb}
        s_lshr_b32 s45, s44, 2
        s_and_b32 s46, s44, 3
        v_lshlrev_b32 {v(t1)}, 1, {v(g1)}
        v_add_u32 {v(t1)}, s45, {v(t1)}
        v_mov_b32 {v(t2)}, s46
        s_lshl_b32 s44, s26, 1
        s_sub_u32 s44, s44, 3
        v_mov_b32 {v(t3)}, s44
        v_cndmask_b32 {v(t1)}, {v(t1)}, {v(t3)}, vcc
        v_add_u32 {v(t3)}, {2 * bb}, {v(g1)}
        v_cndmask_b32 {v(t2)}, {v(t2)}, {v(t3)}, vcc
        v_xor_b32 {v(t2)}, {v(t2)}, {v(t4)}
        v_lshrrev_b32 {v(t3)}, 1, {v(t1)}
        v_xor_b32 {v(t2)}, {v(t2)}, {v(t3)}
        v_mul_u32_u24 {v(t1)}, 24576, {v(t1)}
        v_lshl_add_u32 {v(t1)}, {v(t2)}, 5, {v(t1)}
        v_add_u32 {v(t1)}, {v(t1)}, {v(t0)}
        v_add_u32 {v(vWA + bb)}, {LDS_W}, {v(t1)}
        ''')

    def reads(c, sI):
        st, buf = c % 3, sI & 1
        out = [f'ds_read_b128 {v(XF + 8 * buf, 4)}, {v(vXA + sI)} offset:{LDS_X + st * 16384}']
        for bb in range(2):
            for t in range(2):
                out.append(f'ds_read_b64_tr_b16 {v(WF + 8 * buf + 4 * bb + 2 * t, 2)}, {v(vWA + bb)} offset:{st * 8192 + 2048 * sI + 512 * t}')
        out.append(f'ds_read_b128 {v(XF + 8 * buf + 4, 4)}, {v(vXA + sI)} offset:{LDS_X + st * 16384 + 4096}')
        return out

    def mfmas(c, sI):
        buf = sI & 1
        first = (c == 0 and sI == 0)
        return [mfma16(ACC + 32 * e + 16 * bb, WF + 8 * buf + 4 * bb, XF + 8 * buf + 4 * e,
                       None if first else ACC + 32 * e + 16 * bb) for e, bb in ((0, 0), (0, 1), (1, 0), (1, 1))]

    def mix(ms, rd, wait=True, fill=()):
        cut = [rd[0:3], rd[3:6], [], []]
        n = len(fill)
        if wait:
            a('s_waitcnt lgkmcnt(0)')
        for q, (m, r) in enumerate(zip(ms, cut)):
            a(m)
            emit(a, r)
            emit(a, fill[(q * n) // 4:((q + 1) * n) // 4])

    def chunk(c, fill=()):
        a.c(f'chunk {c}')
        n = len(fill)
        if c:
            a('s_waitcnt lgkmcnt(0)')
        a('s_barrier')
        if not FEWST or c in (0, 1, 2, 9):
            stamp(a, 1 + c)
        if c == 9:
            lab = a.label('nqp')
            a(f's_cmp_eq_u32 s57, 0\ns_cbranch_scc1 {lab}\ns_setprio 2\n{lab}:')
        if c > 0:
            mix(mfmas(c - 1, 3), reads(c, 0), wait=False, fill=fill[0:n // 4])
        else:
            emit(a, reads(c, 0))
            emit(a, fill[0:n // 4])
        for sI in range(3):
            mix(mfmas(c, sI), reads(c, sI + 1), fill=fill[((sI + 1) * n) // 4:((sI + 2) * n) // 4])

    lab1, lab2 = a.label('rowv'), a.label('join')
    a(f's_cmp_eq_u32 s25, 1\ns_cbranch_scc1 {lab1}')
    for var, (ld, fl) in enumerate(((load_cs(), fill_cs()), (load_rows(), fill_rows()))):
        qp = [] if var == 0 else lines(f'''
        s_mul_i32 s44, s27, 163840
        s_mul_i32 s45, s28, 10240
        s_add_u32 s44, s44, s45
        s_mul_i32 s45, s26, 2560
        s_add_u32 s44, s44, s45
        s_add_u32 s44, s44, {QF_OFF}
        v_lshlrev_b32 {v(u5)}, 3, {v(vL)}
        buffer_store_dwordx4 {v(PZ, 4)}, {v(u4)}, s[20:23], s44 offen sc1
        buffer_store_dwordx4 {v(PZ, 4)}, {v(u4)}, s[20:23], s44 offen offset:1024 sc1
        buffer_store_dwordx2 {v(PZ, 2)}, {v(u5)}, s[20:23], s44 offen offset:2048 sc1
        ''')
        nl = [f'buffer_load_dword {v(vN)}, off, s[4:7], 0 sc1']
        pz0 = poison + qp if PZ0 else []
        fl = (fl + nl) if PZ0 else (poison + qp + fl + nl)
        if SLC == 0:
            emit(a, ld)
        a(f's_waitcnt vmcnt({9 if SLC == 0 else 4})')
        chunk(0, pz0)
        a(f's_waitcnt vmcnt({(5 if SLC == 0 else 0) + ((2, 5)[var] if PZ0 else 0)})')
        n = len(fl)
        f0 = SLC + SLG
        for c in range(1, f0 + SPN):
            if c == SLC:
                chunk(c, ld)
            elif c >= f0:
                q = c - f0
                chunk(c, ([f's_waitcnt vmcnt({(2, 5)[var] if PZ0 else 0})'] if q == 0 else []) + fl[(q * n) // SPN:((q + 1) * n) // SPN])
            else:
                chunk(c)
        if var == 0:
            a(f's_branch {lab2}\n{lab1}:')
    a(f'{lab2}:')
    chunk(f0 + SPN)
    Lp, Lq = a.label('cnp'), a.label('cnd')
    a(f'''
    s_mov_b32 s93, {POLL_MAX}
    {Lp}:
    s_waitcnt vmcnt(0)
    v_readfirstlane_b32 s98, {v(vN)}
    s_cmp_lg_u32 s98, 0
    s_cbranch_scc1 {Lq}
    s_sub_u32 s93, s93, 1
    s_cbranch_scc1 {Lq}
    buffer_load_dword {v(vN)}, off, s[4:7], 0 sc1
    s_branch {Lp}
    {Lq}:
    s_xor_b32 s99, s98, {NONCE_X}
    ''')
    flag_store(a, 's56', U)
    RC, CSF, KK, vS16 = 116, 124, 140, 144
    pre = lines(f'''
    s_lshl_b32 s44, s25, 10
    s_add_u32 s44, s44, {ROWC_A}
    v_lshl_add_u32 {v(t0)}, {v(vR)}, 4, s44
    v_lshlrev_b32 {v(vS16)}, 4, {v(vL)}
    s_lshl_b32 s44, s26, 8
    s_add_u32 s44, s44, {CS_A}
    v_lshl_add_u32 {v(t1)}, {v(vR)}, 2, s44
    v_lshl_add_u32 {v(t1)}, {v(vH)}, 12, {v(t1)}
    v_add_u32 {v(t3)}, 128, {v(t1)}
    ds_read_b128 {v(RC, 4)}, {v(t0)}
    ds_read_b128 {v(RC + 4, 4)}, {v(t0)} offset:512
    ''')
    for bb in range(2):
        for m in range(2):
            for z in range(2):
                pre.append(f'ds_read2st64_b32 {v(CSF + 8 * bb + 4 * m + 2 * z, 2)}, {v((t1, t3)[bb])} offset0:{32 * m + 8 * z} offset1:{32 * m + 8 * z + 4}')
    for c in range(f0 + SPN + 1, 10):
        chunk(c, pre if c == 9 else ())
    a(f'''
    s_lshl_b32 s44, s24, 2
    s_add_u32 s44, s44, {CD_A}
    v_mov_b32 {v(t0)}, s44
    v_mov_b32 {v(t1)}, s98
    s_waitcnt lgkmcnt(0)
    ds_write_b32 {v(t0)}, {v(t1)}
    ''')
    emit(a, mfmas(9, 3))
    stamp(a, 12)

    al2 = Alloc(XF, 116)
    NEG = al2('neg', 8, 4)
    E1 = al2('e1', 16, 4)
    E2 = al2('e2', 16, 4)
    HH = 148
    a(f'''
    s_mov_b32 s46, {f2u(C0)}
    s_mov_b32 s47, {f2u(C1)}
    s_lshl_b32 s44, s27, 2
    s_lshl_b32 s45, s25, 1
    s_add_u32 s60, s44, s45
    ''')
    for e in range(2):
        for r in range(4):
            a(f'v_mov_b32 {v(NEG + 4 * e + r)}, {v(RC + 4 * e)}')
    K1P = T + 2
    for e in range(2):
        a(f'''
        v_mul_f32 {v(KK + 2 * e)}, s46, {v(RC + 4 * e + 1)}
        v_mul_f32 {v(KK + 2 * e + 1)}, s46, {v(RC + 4 * e + 1)}
        v_mul_f32 {v(t0)}, {v(RC + 4 * e + 1)}, {v(RC + 4 * e + 1)}
        v_mul_f32 {v(t0)}, {v(t0)}, {v(RC + 4 * e + 1)}
        v_mul_f32 {v(K1P + 2 * e)}, s47, {v(t0)}
        v_mul_f32 {v(K1P + 2 * e + 1)}, s47, {v(t0)}
        v_mov_b32 {v(RC + 4 * e + 3)}, {v(RC + 4 * e + 2)}
        ''')
    for e in range(2):
        for bb in range(2):
            d = ACC + 32 * e + 16 * bb
            for m in range(2):
                a(mfma16(d, CSF + 8 * bb + 4 * m, NEG + 4 * e, d))
    L_q = a.label('qepi')
    L_ed = a.label('epidone')
    a(f'''
    s_nop 1
    s_cmp_eq_u32 s57, 1
    s_cbranch_scc1 {L_q}
    s_lshr_b32 s44, s49, 4
    s_lshl_b32 s45, s26, 1
    s_add_u32 s44, s44, s45
    s_mul_i32 s42, s60, 108
    s_add_u32 s42, s42, s44
    s_lshl_b32 s42, s42, 10
    s_add_u32 s43, s42, {108 * 1024}
    ''')
    k = 0
    for e in range(2):
        for bb in range(2):
            A = ACC + 32 * e + 16 * bb
            TT = E1 + 8 * (k % 2)
            PP = E2 + 8 * (k % 2)
            O_ = HH + 4 * k
            kk = v(KK + 2 * e, 2)
            rc = v(RC + 4 * e + 2, 2)
            for i in range(0, 8, 2):
                a(f'v_pk_mul_f32 {v(TT + i, 2)}, {v(A + i, 2)}, {v(A + i, 2)}')
            for i in range(0, 8, 2):
                a(f'v_pk_fma_f32 {v(TT + i, 2)}, {v(TT + i, 2)}, {v(K1P + 2 * e, 2)}, {kk}')
            for i in range(0, 8, 2):
                a(f'v_pk_mul_f32 {v(TT + i, 2)}, {v(TT + i, 2)}, {v(A + i, 2)}')
            for i in range(8):
                a(f'v_exp_f32 {v(TT + i)}, {v(TT + i)}')
            for i in range(0, 8, 2):
                a(f'v_pk_mul_f32 {v(PP + i, 2)}, {v(A + i, 2)}, {v(A + 8 + i, 2)}')
            for i in range(0, 8, 2):
                a(f'v_pk_fma_f32 {v(TT + i, 2)}, {v(TT + i, 2)}, {rc}, {rc}')
            for i in range(8):
                a(f'v_rcp_f32 {v(TT + i)}, {v(TT + i)}')
            a('s_nop 0')
            for i in range(0, 8, 2):
                a(f'v_pk_mul_f32 {v(PP + i, 2)}, {v(PP + i, 2)}, {v(TT + i, 2)}')
            for i in range(4):
                a(f'v_cvt_pk_bf16_f32 {v(O_ + i)}, {v(PP + 2 * i)}, {v(PP + 2 * i + 1)}')
            k += 1
    if HEARLY:
        for k in range(4):
            a(f'buffer_store_dwordx4 {v(HH + 4 * k, 4)}, {v(vS16)}, s[20:23], s{42 + (k >> 1)} offen offset:{1024 * (k & 1)} sc1')
    a(f's_branch {L_ed}')
    a(f'{L_q}:')
    a(f'''
    s_sub_u32 s44, s26, 2
    s_lshl_b32 s44, s44, 6
    s_add_u32 s44, s44, s50
    s_lshl_b32 s44, s44, 6
    s_add_u32 s44, s44, {QF_OFF}
    s_mov_b32 s45, {f2u(QSC)}
    s_mul_i32 s46, s60, 40960
    s_add_u32 s46, s46, s44
    s_add_u32 s47, s46, 40960
    v_mul_f32 {v(KK)}, s45, {v(RC + 1)}
    v_mul_f32 {v(KK + 2)}, s45, {v(RC + 5)}
    ''')
    k = 0
    for e in range(2):
        for bb in range(2):
            A = ACC + 32 * e + 16 * bb
            O_ = (E1, E1 + 8, E2, E2 + 8)[k]
            for z in range(2):
                for i in range(8 * z, 8 * z + 8):
                    a(f'v_mul_f32 {v(A + i)}, {v(A + i)}, {v(KK + 2 * e)}')
                for i in range(4 * z, 4 * z + 4):
                    a(f'v_cvt_pk_bf16_f32 {v(O_ + i)}, {v(A + 2 * i)}, {v(A + 2 * i + 1)}')
                a(f'buffer_store_dwordx4 {v(O_ + 4 * z, 4)}, {v(vS16)}, s[20:23], s{46 + e} offen offset:{1024 * z + 2048 * bb} sc1')
            k += 1
    a(f'{L_ed}:')
    stamp(a, 13)

    a.c('=========== compute wave: attention ===========')
    al3 = Alloc(4, 168)
    T = al3('T', 16, 4)
    S = al3('S', 32, 4)
    O = al3('O', 16, 4)
    V1 = al3('V1', 4, 4)
    V2 = al3('V2', 4, 4)
    Q1 = al3('Q1', 4, 4)
    K1 = al3('K1', 8, 4)
    K2 = al3('K2', 8, 4)
    P = al3('P', 16, 4)
    Q2 = al3('Q2', 2, 2)
    vK = al3('vK')
    vK2 = al3('vK2')
    a(f'''
    s_lshl_b32 s44, s27, 1
    s_add_u32 s44, s44, s25
    s_lshl_b32 s44, s44, 13
    s_lshl_b32 s45, s28, 2
    s_add_u32 s45, s45, s26
    s_lshl_b32 s45, s45, 7
    s_add_u32 s44, s44, s45
    s_add_u32 s41, s44, {F_QH}
    s_nop 1
    ''')
    for i in range(16):
        a(f'v_mov_b32 {v(O + i)}, 0')
    for i in range(4):
        a(f'v_mov_b32 {v(V1 + i)}, 0')
        a(f'v_mov_b32 {v(V2 + i)}, 0')
    a(f'''
    s_mov_b32 s45, {KVR}
    v_lshl_add_u32 {v(vK)}, {v(vL)}, 4, s45
    v_lshl_add_u32 {v(vK2)}, {v(vL)}, 3, s45
    s_mul_i32 s45, s24, 5
    v_lshlrev_b32 {v(T + 4)}, 4, {v(vR)}
    s_lshr_b32 s44, s30, 2
    s_lshl_b32 s46, s29, 1
    s_add_u32 s44, s44, s46
    s_mul_i32 s44, s44, 40960
    s_and_b32 s46, s30, 3
    s_mul_i32 s46, s46, 10240
    s_add_u32 s44, s44, s46
    s_add_u32 s40, s44, {QF_OFF}
    ''')
    for z, (dq, useh) in enumerate(((0, 1), (2, 1), (4, 0))):
        a(f's_add_u32 s46, s45, {dq}')
        a(f'v_add_u32 {v(T + 5)}, s46, {v(vH)}' if useh else f'v_mov_b32 {v(T + 5)}, s46')
        a(f'''
        v_lshrrev_b32 {v(T + 6)}, 1, {v(T + 5)}
        v_lshl_add_u32 {v(T + 6)}, {v(T + 6)}, 9, {v(T + 4)}
        v_and_b32 {v(T + 5)}, 1, {v(T + 5)}
        v_lshl_add_u32 {v(T + 13 + z)}, {v(T + 5)}, 3, {v(T + 6)}
        ''')
    a('s_setprio 0')
    for i in range(8):
        a(f'v_mov_b32 {v(P + 8 + i)}, 0')
    Lp, Lq = a.label('qp'), a.label('qpd')
    a(f'''
    s_mov_b32 s93, {OPOLL_MAX}
    {Lp}:
    buffer_load_dwordx2 {v(Q1, 2)}, {v(T + 13)}, s[20:23], s40 offen sc1
    buffer_load_dwordx2 {v(Q1 + 2, 2)}, {v(T + 14)}, s[20:23], s40 offen sc1
    buffer_load_dwordx2 {v(Q2, 2)}, {v(T + 15)}, s[20:23], s40 offen sc1
    s_waitcnt vmcnt(0)
    v_max3_u32 {v(T)}, {v(Q1)}, {v(Q1 + 1)}, {v(Q1 + 2)}
    v_max3_u32 {v(T + 1)}, {v(Q1 + 3)}, {v(Q2)}, {v(Q2 + 1)}
    v_max_u32 {v(T)}, {v(T)}, {v(T + 1)}
    v_cmp_eq_u32 vcc, -1, {v(T)}
    s_nop 1
    s_cmp_eq_u64 vcc, 0
    s_cbranch_scc1 {Lq}
    s_sub_u32 s93, s93, 1
    s_cbranch_scc1 {Lq}
    s_sleep {QSLEEP}
    s_branch {Lp}
    {Lq}:
    v_mov_b32 {v(T + 2)}, 0
    v_cndmask_b32 {v(Q2)}, {v(Q2)}, {v(T + 2)}, {HM}
    v_cndmask_b32 {v(Q2 + 1)}, {v(Q2 + 1)}, {v(T + 2)}, {HM}
    ''')
    stamp(a, 14)
    a('s_barrier')
    stamp(a, 15)
    o0, o1, o2 = tile_offs(0), tile_offs(1), tile_offs(2)
    a(f'''
    ds_read_b128 {v(K1, 4)}, {v(vK)} offset:{o0[0]}
    ds_read_b128 {v(K1 + 4, 4)}, {v(vK)} offset:{o1[0]}
    ds_read2st64_b64 {v(K2, 4)}, {v(vK2)} offset0:{o0[1] // 512} offset1:{o0[1] // 512 + 1}
    s_waitcnt lgkmcnt(0)
    ''')

    def set_m(mreg, offset):
        t0, t1, t2, t3 = T + 8, T + 9, T + 10, T + 11
        a(f'v_sub_f32 {v(t0)}, {f2u(-offset) if offset else 0}, {v(mreg)}')
        a(f'''
        v_cvt_pk_bf16_f32 {v(t1)}, {v(t0)}, {v(t0)}
        v_and_b32 {v(t2)}, 0xffff0000, {v(t1)}
        v_sub_f32 {v(t2)}, {v(t0)}, {v(t2)}
        v_cvt_pk_bf16_f32 {v(t1)}, {v(t0)}, {v(t2)}
        v_and_b32 {v(t3)}, 0xffff0000, {v(t1)}
        v_sub_f32 {v(t2)}, {v(t2)}, {v(t3)}
        v_mov_b32 {v(t3)}, 0
        v_cvt_pk_bf16_f32 {v(t2)}, {v(t2)}, {v(t3)}
        v_cndmask_b32 {v(Q2)}, {v(Q2)}, {v(t1)}, {HM}
        v_cndmask_b32 {v(Q2 + 1)}, {v(Q2 + 1)}, {v(t2)}, {HM}
        ''')

    def cross_half_max(reg):
        t = T + 12
        a(f'''
        v_mov_b32 {v(t)}, {v(reg)}
        s_nop 1
        v_permlane32_swap_b32 {v(reg)}, {v(t)}
        s_nop 1
        v_max_f32 {v(reg)}, {v(reg)}, {v(t)}
        ''')

    for t in range(2):
        a(mfma16(S + 16 * t, K1 + 4 * t, Q1))
    if not HEARLY:
        lab = a.label('nohst')
        a(f'''
        v_lshlrev_b32 {v(T)}, 4, {v(vL)}
        s_cmp_eq_u32 s57, 1
        s_cbranch_scc1 {lab}
        ''')
        for k in range(4):
            a(f'buffer_store_dwordx4 {v(HH + 4 * k, 4)}, {v(T)}, s[20:23], s{42 + (k >> 1)} offen offset:{1024 * (k & 1)} sc1')
        a(f'{lab}:')
    a('s_nop 8')
    for t in range(2):
        a(mfma8(S + 16 * t, K2 + 2 * t, Q2, S + 16 * t))
    a('s_nop 11')
    m = T + 4
    for z in range(2):
        a(f'v_max3_f32 {v(m + z)}, {v(S + 16 * z)}, {v(S + 16 * z + 1)}, {v(S + 16 * z + 2)}')
    for i in range(3, 15, 2):
        for z in range(2):
            a(f'v_max3_f32 {v(m + z)}, {v(m + z)}, {v(S + 16 * z + i)}, {v(S + 16 * z + i + 1)}')
    a(f'v_max3_f32 {v(m)}, {v(m)}, {v(S + 15)}, {v(S + 31)}')
    a(f'v_max_f32 {v(m)}, {v(m)}, {v(m + 1)}')
    cross_half_max(m)
    set_m(m, M_OFFSET)
    a('s_nop 1')
    a(mfma16(S, K1, Q1))
    a(f'''
    ds_read_b128 {v(K1, 4)}, {v(vK)} offset:{o2[0]}
    s_mov_b32 s34, 4
    s_nop 7
    ''')
    a(mfma8(S, K2, Q2, S))
    a('s_nop 9')
    stamp(a, 16)

    def toff(tt):
        tt &= 15
        o = tile_offs(tt & 3)
        return [x + (tt >> 2) * CH_BYTES for x in o]

    def k2read(reg, tt):
        o = toff(tt)[1]
        assert o % 512 == 0
        return f'ds_read2st64_b64 {v(reg, 4)}, {v(vK2)} offset0:{o // 512} offset1:{o // 512 + 1}'

    L_hf, L_hb = a.label('hflag'), a.label('hback')

    def slot(t):
        Sx, Sn = S + 16 * (t & 1), S + 16 * ((t + 1) & 1)
        Px, Pp = P + 8 * (t & 1), P + 8 * ((t + 1) & 1)
        kt = t + 1
        kb = kt & 1
        k2 = K2 + 4 * ((kt >> 1) & 1) + 2 * (kt & 1)
        m_ = [mfma16(Sn, K1 + 4 * kb, Q1), mfma16(O, V1, Pp, O), mfma8(Sn, k2, Q2, Sn), mfma16(O, V2, Pp + 4, O)]
        after = [[], [], [], []]
        if t & 3 == 1:
            after[0] = ['s_barrier']
        after[0] += [f'ds_read_b128 {v(K1 + 4 * kb, 4)}, {v(vK)} offset:{toff(t + 3)[0]}', 's_waitcnt lgkmcnt(2)']
        after[1] = [f'ds_read_b128 {v(V1, 4)}, {v(vK)} offset:{toff(t)[2]}']
        if t & 1:
            after[1] += [k2read(K2 + 4 * (((t + 3) >> 1) & 1), t + 3)]
        after[2] += [f's_waitcnt lgkmcnt({3 if t & 1 else 2})']
        after[3] = [f'ds_read_b128 {v(V2, 4)}, {v(vK)} offset:{toff(t)[3]}']
        if t == 15:
            after[3] += ['s_sub_u32 s34, s34, 1']
        if t == HFLAG_T:
            after[3] += ['s_cmp_eq_u32 s34, 4', f's_cbranch_scc1 {L_hf}', f'{L_hb}:']
        val = []
        for i in range(8):
            val.append(f'v_exp_f32 {v(Sx + 2 * i)}, {v(Sx + 2 * i)}')
            val.append(f'v_exp_f32 {v(Sx + 2 * i + 1)}, {v(Sx + 2 * i + 1)}')
            if i > 0:
                val.append(f'v_cvt_pk_bf16_f32 {v(Px + i - 1)}, {v(Sx + 2 * i - 2)}, {v(Sx + 2 * i - 1)}')
        val.append(f'v_cvt_pk_bf16_f32 {v(Px + 7)}, {v(Sx + 14)}, {v(Sx + 15)}')
        groups = [val[0:5], val[5:11], val[11:17], val[17:24]]
        for g in range(4):
            a(m_[g])
            emit(a, after[g])
            emit(a, groups[g])

    a(k2read(K2 + 4, 2))
    L_loop = a.label('att')
    a('.p2align 6')
    a(f'{L_loop}:')
    for t in range(16):
        slot(t)
    a(f'''
    s_cmp_lg_u32 s34, 0
    s_cbranch_scc1 {L_loop}
    s_waitcnt lgkmcnt(0)
    ''')
    a(mfma16(O, V1, P + 8, O))
    a(mfma16(O, V2, P + 12, O))
    a(f'''
    v_lshlrev_b32 {v(T + 2)}, 4, {v(vL)}
    v_lshlrev_b32 {v(T + 3)}, 3, {v(vL)}
    v_mov_b32 {v(T + 9)}, 0x7f000000
    v_cndmask_b32 {v(T + 3)}, {v(T + 3)}, {v(T + 9)}, {HM}
    v_lshlrev_b32 {v(T + 4)}, 3, {v(vR)}
    v_lshl_add_u32 {v(T + 4)}, {v(vH)}, 9, {v(T + 4)}
    s_nop 6
    ''')
    stamp(a, 17)
    L_fb = a.label('fb')
    L_out = a.label('aout')
    a(f'''
    s_mov_b32 s44, {f2u(2.0 ** 120)}
    s_mov_b32 s45, {f2u(2.0 ** -103)}
    v_add_f32 {v(T)}, |{v(O)}|, |{v(O + 1)}|
    ''')
    for i in range(2, 12):
        a(f'v_add_f32 {v(T)}, {v(T)}, |{v(O + i)}|')
    a(f'''
    v_add_f32 {v(T + 1)}, {v(T)}, {v(O + 12)}
    v_cmp_le_f32 s[46:47], s45, {v(T)}
    v_cmp_gt_f32 s[48:49], s44, {v(T + 1)}
    s_nop 1
    s_and_b64 s[46:47], s[46:47], s[48:49]
    s_cmp_eq_u64 s[46:47], -1
    s_cbranch_scc0 {L_fb}
    {L_out}:
    v_rcp_f32 {v(T)}, {v(O + 12)}
    v_rcp_f32 {v(T + 1)}, {v(O + 12)}
    s_nop 0
    ''')
    for i in range(0, 12, 2):
        a(f'v_pk_mul_f32 {v(O + i, 2)}, {v(O + i, 2)}, {v(T, 2)}')
    for i in range(6):
        a(f'v_cvt_pk_bf16_f32 {v(P + i)}, {v(O + 2 * i)}, {v(O + 2 * i + 1)}')
    a(f'buffer_store_dwordx4 {v(P, 4)}, {v(T + 2)}, s[20:23], s36 offen sc1')
    a(f'buffer_store_dwordx2 {v(P + 4, 2)}, {v(T + 3)}, s[20:23], s37 offen sc1')
    stamp(a, 18)
    g2_ids(a)
    OFR = 120
    a(f'''
    s_cmp_eq_u32 s25, 1
    s_cselect_b32 s44, s60, s59
    s_mul_i32 s44, s44, 40960
    s_add_u32 s44, s44, {OF_OFF}
    s_lshl_b32 s45, s26, 13
    s_add_u32 s38, s44, s45
    s_add_u32 s38, s38, 3072
    s_add_u32 s39, s38, 4096
    s_lshl_b32 s45, s26, 11
    s_add_u32 s40, s44, s45
    s_add_u32 s40, s40, 32768
    s_mul_i32 s44, s26, 14336
    s_lshl_b32 s45, s25, 10
    s_add_u32 s44, s44, s45
    s_add_u32 s44, s44, {OL_A}
    v_add_u32 {v(T + 5)}, s44, {v(T + 2)}
    s_barrier
    ''')
    Lp, Lq = a.label('cop'), a.label('copd')
    a(f's_mov_b32 s93, {OPOLL_MAX}\n{Lp}:')
    for q in range(5):
        a(f'buffer_load_dwordx4 {v(OFR + 4 * q, 4)}, {v(T + 2)}, s[20:23], {"s38" if q < 4 else "s39"} offen offset:{1024 * (q & 3)} sc1')
    for q in range(4):
        a(f'buffer_load_dwordx2 {v(OFR + 20 + 2 * q, 2)}, {v(T + 4)}, s[20:23], s40 offen offset:{1024 * (q >> 1) + 256 * (q & 1)} sc1')
    a('s_waitcnt vmcnt(0)')
    a(f'v_max3_u32 {v(T)}, {v(OFR)}, {v(OFR + 1)}, {v(OFR + 2)}')
    for i in range(3, 27, 2):
        a(f'v_max3_u32 {v(T)}, {v(T)}, {v(OFR + i)}, {v(OFR + i + 1)}')
    a(f'''
    v_max_u32 {v(T)}, {v(T)}, {v(OFR + 27)}
    v_cmp_eq_u32 vcc, -1, {v(T)}
    s_nop 1
    s_cmp_eq_u64 vcc, 0
    s_cbranch_scc1 {Lq}
    s_sub_u32 s93, s93, 1
    s_cbranch_scc1 {Lq}
    s_sleep {OSLEEP}
    s_branch {Lp}
    {Lq}:
    ''')
    for q in range(7):
        a(f'ds_write_b128 {v(T + 5)}, {v(OFR + 4 * q, 4)} offset:{2048 * q}')
    stamp(a, 21)
    g2_out(a, S, vL, 's24', 0)
    a('s_waitcnt lgkmcnt(0)')
    a('s_barrier')
    a('s_barrier')
    stamp(a, 19)
    g2_out(a, S, vL, 's24', 1)
    if asmlib.STAMPS:
        a('s_waitcnt vmcnt(0)')
    stamp(a, 20)
    a(f's_branch {L_end}')

    a(f'{L_hf}:')
    a('s_waitcnt vmcnt(0)')
    flag_store(a, 's41', T + 2)
    a(f's_branch {L_hb}')
    a(f'{L_fb}:')
    L1 = a.label('fb1')
    L2 = a.label('fb2')
    a(f'''
    v_lshlrev_b32 {v(T + 13)}, 4, {v(vL)}
    v_lshlrev_b32 {v(T + 7)}, 3, {v(vL)}
    v_mov_b32 {v(T + 14)}, 0
    v_mov_b32 {v(T + 15)}, 0xff800000
    v_cndmask_b32 {v(Q2)}, {v(Q2)}, {v(T + 14)}, {HM}
    v_cndmask_b32 {v(Q2 + 1)}, {v(Q2 + 1)}, {v(T + 14)}, {HM}
    s_mov_b32 s77, {KV_OFF}
    s_mov_b32 s34, 32
    {L1}:
    buffer_load_dwordx4 {v(K1, 4)}, {v(T + 13)}, s[20:23], s77 offen sc1
    buffer_load_dwordx4 {v(K1 + 4, 4)}, {v(T + 13)}, s[20:23], s77 offen offset:1024 sc1
    buffer_load_dwordx2 {v(K2, 2)}, {v(T + 7)}, s[20:23], s77 offen offset:2048 sc1
    buffer_load_dwordx2 {v(K2 + 2, 2)}, {v(T + 7)}, s[20:23], s77 offen offset:2560 sc1
    s_waitcnt vmcnt(0)
    ''')
    for t in range(2):
        a(mfma16(S + 16 * t, K1 + 4 * t, Q1))
    a('s_nop 9')
    for t in range(2):
        a(mfma8(S + 16 * t, K2 + 2 * t, Q2, S + 16 * t))
    a('s_nop 15')
    for i in range(0, 32, 2):
        a(f'v_max3_f32 {v(T + 15)}, {v(T + 15)}, {v(S + i)}, {v(S + i + 1)}')
    a(f'''
    s_add_u32 s77, s77, 7168
    s_sub_u32 s34, s34, 1
    s_cmp_lg_u32 s34, 0
    s_cbranch_scc1 {L1}
    ''')
    cross_half_max(T + 15)
    set_m(T + 15, 0.0)
    for i in range(16):
        a(f'v_mov_b32 {v(O + i)}, 0')
    a(f'''
    s_mov_b32 s77, {KV_OFF}
    s_mov_b32 s34, 64
    {L2}:
    s_and_b32 s78, s34, 1
    s_lshl_b32 s79, s78, 10
    s_add_u32 s79, s79, s77
    s_lshl_b32 s80, s78, 9
    s_add_u32 s80, s80, s77
    s_lshl_b32 s81, s78, 11
    s_add_u32 s81, s81, s77
    s_add_u32 s81, s81, 3072
    buffer_load_dwordx4 {v(K1, 4)}, {v(T + 13)}, s[20:23], s79 offen sc1
    buffer_load_dwordx2 {v(K2, 2)}, {v(T + 7)}, s[20:23], s80 offen offset:2048 sc1
    buffer_load_dwordx4 {v(V1, 4)}, {v(T + 13)}, s[20:23], s81 offen sc1
    buffer_load_dwordx4 {v(V2, 4)}, {v(T + 13)}, s[20:23], s81 offen offset:1024 sc1
    s_waitcnt vmcnt(0)
    {mfma16(S, K1, Q1)}
    s_nop 10
    {mfma8(S, K2, Q2, S)}
    s_nop 15
    ''')
    for i in range(16):
        a(f'v_exp_f32 {v(S + i)}, {v(S + i)}')
    a('s_nop 0')
    for i in range(8):
        a(f'v_cvt_pk_bf16_f32 {v(P + i)}, {v(S + 2 * i)}, {v(S + 2 * i + 1)}')
    a(f'''
    s_nop 1
    {mfma16(O, V1, P, O)}
    {mfma16(O, V2, P + 4, O)}
    s_mul_i32 s78, s78, 7168
    s_add_u32 s77, s77, s78
    s_sub_u32 s34, s34, 1
    s_cmp_lg_u32 s34, 0
    s_cbranch_scc1 {L2}
    s_nop 15
    s_branch {L_out}
    ''')


def g2_ids(a):
    a('''
    s_lshr_b32 s57, s30, 1
    s_and_b32 s58, s30, 1
    s_lshl_b32 s44, s29, 1
    s_add_u32 s59, s44, s58
    s_xor_b32 s60, s59, 1
    s_mul_i32 s44, s57, 320
    s_lshl_b32 s45, s58, 7
    s_add_u32 s61, s44, s45
    ''')


def g2_out(a, T, vL, wsg, part):
    L_skip = a.label('g2o')
    a(f'''
    s_cmp_ge_u32 {wsg}, 10
    s_cbranch_scc1 {L_skip}
    ''')
    if part == 0:
        a(f'''
        s_lshr_b32 s45, {wsg}, 1
        s_and_b32 s46, {wsg}, 1
        s_lshl_b32 s46, s46, 4
        v_lshrrev_b32 {v(T)}, 2, {v(vL)}
        v_add_u32 {v(T)}, s46, {v(T)}
        v_and_b32 {v(T + 1)}, 3, {v(vL)}
        s_and_b32 s47, s45, 1
        s_cmp_eq_u32 s47, 1
        s_cselect_b32 s47, s60, s59
        s_mul_i32 s47, s47, {32 * 1280}
        s_lshr_b32 s48, s45, 1
        s_add_u32 s49, s48, s58
        s_lshl_b32 s49, s49, 6
        s_lshl_b32 s50, s58, 7
        s_sub_u32 s50, 128, s50
        s_cmp_eq_u32 s48, 2
        s_cselect_b32 s49, s50, s49
        s_add_u32 s47, s47, s49
        s_add_u32 s31, s47, s61
        v_mul_u32_u24 {v(T + 6)}, 1280, {v(T)}
        v_lshl_add_u32 {v(T + 6)}, {v(T + 1)}, 4, {v(T + 6)}
        buffer_load_dwordx4 {v(T + 2, 4)}, {v(T + 6)}, s[8:11], s31 offen
        v_lshlrev_b32 {v(T + 1)}, 1, {v(T + 1)}
        v_and_b32 {v(T + 7)}, 7, {v(T)}
        v_xor_b32 {v(T + 1)}, {v(T + 1)}, {v(T + 7)}
        v_lshlrev_b32 {v(T)}, 7, {v(T)}
        v_lshl_add_u32 {v(T)}, {v(T + 1)}, 4, {v(T)}
        s_lshl_b32 s47, s45, 12
        v_add_u32 {v(T)}, s47, {v(T)}
        v_xor_b32 {v(T + 1)}, 16, {v(T)}
        ''')
    else:
        for w in range(4):
            if w == 2:
                a(f'v_add_u32 {v(T)}, {WO_HI}, {v(T)}\nv_add_u32 {v(T + 1)}, {WO_HI}, {v(T + 1)}')
            a(f'ds_read_b128 {v(T + 8 + 8 * w, 4)}, {v(T)} offset:{21504 * (w & 1)}')
            a(f'ds_read_b128 {v(T + 12 + 8 * w, 4)}, {v(T + 1)} offset:{21504 * (w & 1)}')
        a('s_waitcnt vmcnt(0)')
        for i in range(4):
            a(f'''
            v_lshlrev_b32 {v(T + 40 + 2 * i)}, 16, {v(T + 2 + i)}
            v_and_b32 {v(T + 41 + 2 * i)}, 0xffff0000, {v(T + 2 + i)}
            ''')
        a('s_waitcnt lgkmcnt(4)')
        for i in range(0, 8, 2):
            a(f'v_pk_add_f32 {v(T + 8 + i, 2)}, {v(T + 8 + i, 2)}, {v(T + 16 + i, 2)}')
        for i in range(0, 8, 2):
            a(f'v_pk_add_f32 {v(T + 8 + i, 2)}, {v(T + 8 + i, 2)}, {v(T + 40 + i, 2)}')
        a('s_waitcnt lgkmcnt(0)')
        for i in range(0, 8, 2):
            a(f'v_pk_add_f32 {v(T + 24 + i, 2)}, {v(T + 24 + i, 2)}, {v(T + 32 + i, 2)}')
        for i in range(0, 8, 2):
            a(f'v_pk_add_f32 {v(T + 8 + i, 2)}, {v(T + 8 + i, 2)}, {v(T + 24 + i, 2)}')
        for i in range(4):
            a(f'v_cvt_pk_bf16_f32 {v(T + 16 + i)}, {v(T + 8 + 2 * i)}, {v(T + 9 + 2 * i)}')
        a(f'buffer_store_dwordx4 {v(T + 16, 4)}, {v(T + 6)}, s[64:67], s31 offen{OUTSC}')
    a(f'{L_skip}:')


def aux_wave(a, vL, vH, vR, L_end, WDP):
    al = Alloc(4, 168)
    T = al('T', 16, 4)
    vXD = al('xd', 2)
    vWD = al('wd')
    vKD = al('kd')
    vKX = al('kx')
    vKW = al('kw')
    XR = al('xr', 10, 2)
    CR = al('cr', 20, 2)
    PF = al('pf', 2)
    AKV = al('akv', 16, 4)
    KXF = al('kxf', 4, 4)
    KWF = al('kwf', 4, 4)
    FX = al('fx', 16, 4)
    RD = al('rd', 48, 4)
    JA = al('ja', 2, 2)
    JS = al('js')
    t0, t1, t2, t3, t4, t5 = T, T + 1, T + 2, T + 3, T + 4, T + 5
    vm = VM()
    a.c('=========== aux wave: phase 1 ===========')
    assert (vXD, vWD, vKD) == (20, 22, 23)

    def dma_group(c, kvonly=False):
        st = c % 3
        lab = a.label('nokv')
        a(f'''
        s_and_b32 s35, s100, {7 if c < 8 else 1}
        s_xor_b32 s35, s35, {c}
        s_mul_i32 s33, s32, s35
        s_mul_i32 s34, s35, 2560
        s_lshl_b32 s35, s35, 7
        s_cmp_eq_u32 s40, 0
        s_cbranch_scc1 {lab}
        s_add_u32 m0, s38, {st * 3072}
        s_nop 0
        buffer_load_dwordx4 {v(vKD)}, s[16:19], s34 offen lds
        {lab}:
        ''')
        vm.add(f'c{c}', 1, optional=True)
        if kvonly or (NODMA and c > 2):
            vm.add(f'c{c}', 1, optional=True)
            return
        for e in range(4):
            a(f'''
            s_add_u32 m0, s36, {LDS_X + st * 16384 + e * 1024}
            s_add_u32 s34, s35, {(e >> 1) * 16 * 1280}
            buffer_load_dwordx4 {v(vXD + (e & 1))}, s[8:11], s34 offen lds
            ''')
        for e in range(8):
            a(f'''
            s_add_u32 m0, s37, {st * 8192 + e * 1024}
            s_nop 0
            buffer_load_dwordx4 {v(vWD)}, s[12:15], s33 offen lds
            ''')
            if e < 7:
                a('s_add_u32 s33, s33, s31')
        vm.add(f'c{c}', 12)

    vm.add('c0', 4)
    vm.add('c0', 1, optional=True)
    vm.add('c1', 4)
    vm.add('c1', 1, optional=True)

    def jit(c):
        if not JIT or c > 9:
            return
        lab = a.label('nojit')
        a(f'''
        s_cmp_lg_u32 s26, 3
        s_cbranch_scc1 {lab}
        global_load_dword v165, {v(JA, 2)}, off
        v_add_co_u32 {v(JA)}, vcc, {v(JA)}, {v(JS)}
        s_nop 1
        v_addc_co_u32 {v(JA + 1)}, vcc, 0, {v(JA + 1)}, vcc
        {lab}:
        ''')
        vm.add('jit', 1, optional=True)

    if JIT:
        a(f'v_mov_b32 {v(JA)}, s68\nv_mov_b32 {v(JA + 1)}, s69')
        lab = a.label('nojs')
        a(f'''
        s_cmp_lg_u32 s26, 3
        s_cbranch_scc1 {lab}
        s_lshr_b32 s44, s2, 3
        s_and_b32 s45, s44, 7
        s_lshr_b32 s46, s44, 3
        s_lshl_b32 s46, s46, 5
        s_lshl_b32 s47, s27, 7
        s_add_u32 s46, s46, s47
        v_add_u32 {v(t0)}, s46, {v(vR)}
        v_mul_u32_u24 {v(t0)}, 1280, {v(t0)}
        v_add_u32 {v(t0)}, {128 * JIT}, {v(t0)}
        v_bfe_u32 {v(t1)}, {v(vL)}, 3, 1
        v_bfe_u32 {v(t2)}, {v(vL)}, 4, 1
        v_and_b32 {v(t3)}, s48, {v(t1)}
        v_cmp_eq_u32 s[58:59], 1, {v(t3)}
        v_cmp_eq_u32 s[60:61], 1, {v(t2)}
        v_mov_b32 {v(t4)}, 3456
        v_mov_b32 {v(t5)}, 1280
        v_cndmask_b32 {v(t4)}, {v(t4)}, {v(t5)}, s[58:59]
        s_xor_b32 s44, s48, 1
        v_and_b32 {v(t5)}, s44, {v(t1)}
        v_lshlrev_b32 {v(t5)}, 6, {v(t5)}
        v_add_u32 {v(t5)}, s49, {v(t5)}
        v_lshlrev_b32 {v(t3)}, 6, {v(t2)}
        v_add_u32 {v(t3)}, s50, {v(t3)}
        v_cndmask_b32 {v(t5)}, {v(t5)}, {v(t3)}, s[58:59]
        s_lshl_b32 s45, s45, 3
        s_add_u32 s45, s45, {64 * JIT}
        v_and_b32 {v(t3)}, 7, {v(vL)}
        v_add_u32 {v(t3)}, s45, {v(t3)}
        v_mul_lo_u32 {v(t3)}, {v(t3)}, {v(t4)}
        v_lshl_add_u32 {v(t3)}, {v(t5)}, 1, {v(t3)}
        v_cndmask_b32 {v(t0)}, {v(t0)}, {v(t3)}, {HM}
        v_lshlrev_b32 {v(t4)}, 6, {v(t4)}
        v_mov_b32 {v(t5)}, 128
        v_cndmask_b32 {v(JS)}, {v(t5)}, {v(t4)}, {HM}
        ''')
        for z in range(2):
            a(f'''
            v_mov_b32 {v(t1)}, s{80 + z}
            v_mov_b32 {v(t2)}, s{82 + z}
            v_cndmask_b32 {v(t1)}, {v(t1)}, {v(t2)}, s[60:61]
            v_mov_b32 {v(t2)}, s{70 + z}
            v_cndmask_b32 {v(t1)}, {v(t1)}, {v(t2)}, s[58:59]
            v_mov_b32 {v(t2)}, s{68 + z}
            v_cndmask_b32 {v(JA + z)}, {v(t2)}, {v(t1)}, {HM}
            ''')
        a(f'''
        v_add_co_u32 {v(JA)}, vcc, {v(JA)}, {v(t0)}
        s_nop 1
        v_addc_co_u32 {v(JA + 1)}, vcc, 0, {v(JA + 1)}, vcc
        {lab}:
        ''')
        for c in range(JIT, JITD):
            jit(c)
    srd(a, 4, 76, 256)
    lab = a.label('nononce')
    a(f'''
    s_or_b32 s44, s2, s26
    s_cmp_lg_u32 s44, 0
    s_cbranch_scc1 {lab}
    s_memrealtime s[44:45]
    s_waitcnt lgkmcnt(0)
    s_or_b32 s44, s44, 1
    v_mov_b32 {v(t0)}, s44
    s_mov_b64 exec, 1
    buffer_store_dword {v(t0)}, off, s[4:7], 0 sc1
    s_mov_b64 exec, -1
    {lab}:
    ''')
    vm.add('nonce', 1, optional=True)
    a(f'''
    s_and_b32 s56, s28, 3
    v_lshrrev_b32 {v(t0)}, 1, {v(vR)}
    v_and_b32 {v(t0)}, 7, {v(t0)}
    v_xor_b32 {v(t0)}, {v(t0)}, {v(vH)}
    s_lshl_b32 s44, s26, 1
    v_xor_b32 {v(t0)}, s44, {v(t0)}
    v_lshlrev_b32 {v(t3)}, 7, {v(vR)}
    v_lshl_add_u32 {v(t0)}, {v(t0)}, 4, {v(t3)}
    s_lshl_b32 s44, s56, 12
    v_add_u32 {v(vKX)}, s44, {v(t0)}
    v_bfe_u32 {v(t0)}, {v(vL)}, 2, 2
    v_lshl_add_u32 {v(t0)}, {v(vH)}, 3, {v(t0)}
    v_mul_u32_u24 {v(t0)}, 40, {v(t0)}
    v_bfe_u32 {v(t3)}, {v(vL)}, 4, 1
    v_and_b32 {v(t4)}, 3, {v(vL)}
    v_lshl_add_u32 {v(t3)}, {v(t3)}, 2, {v(t4)}
    v_min_u32 {v(t3)}, 4, {v(t3)}
    v_lshl_add_u32 {v(t0)}, {v(t3)}, 3, {v(t0)}
    s_mul_i32 s44, s26, 640
    s_add_u32 s44, s44, {LDS_KV}
    v_add_u32 {v(vKW)}, s44, {v(t0)}
    ''')
    for i in range(16):
        a(f'v_mov_b32 {v(AKV + i)}, 0')

    def colsum(src_tag_wait, store_code):
        a(f's_waitcnt vmcnt({src_tag_wait})')
        a(f'''
        v_lshlrev_b32 {v(t0)}, 16, {v(CR)}
        v_and_b32 {v(t1)}, 0xffff0000, {v(CR)}
        ''')
        for t in range(1, 20):
            a(f'''
            v_lshlrev_b32 {v(t2)}, 16, {v(CR + t)}
            v_and_b32 {v(t3)}, 0xffff0000, {v(CR + t)}
            v_add_f32 {v(t0)}, {v(t0)}, {v(t2)}
            v_add_f32 {v(t1)}, {v(t1)}, {v(t3)}
            ''')
        a(f'''
        s_nop 1
        v_permlane32_swap_b32 {v(t0)}, {v(t1)}
        s_nop 1
        v_add_f32 {v(t0)}, {v(t0)}, {v(t1)}
        v_cvt_pk_bf16_f32 {v(t1)}, {v(t0)}, {v(t0)}
        v_and_b32 {v(t1)}, 0xffff0000, {v(t1)}
        v_sub_f32 {v(t1)}, {v(t0)}, {v(t1)}
        v_cvt_pk_bf16_f32 {v(t0)}, {v(t0)}, {v(t1)}
        ''')
        store_code()

    a('''
    s_lshl_b32 s41, s27, 10
    s_and_b32 s44, s28, 11
    s_cmp_eq_u32 s44, 0
    s_cselect_b32 s42, 1, 0
    s_cmp_eq_u32 s26, 3
    s_cselect_b32 s42, s42, 0
    ''')

    def kv_step(c, part):
        st = c % 3
        lab = a.label('kvs')
        a(f's_cmp_eq_u32 s54, 0\ns_cbranch_scc1 {lab}')
        if part == 0:
            a(f'''
            ds_read_b128 {v(KXF, 4)}, {v(vKX)} offset:{LDS_X + st * 16384}
            ds_read_b64_tr_b16 {v(KWF, 2)}, {v(vKW)} offset:{st * 3072}
            ds_read_b64_tr_b16 {v(KWF + 2, 2)}, {v(vKW)} offset:{st * 3072 + 160}
            ''')
        else:
            a('s_waitcnt lgkmcnt(0)')
            a(mfma16(AKV, KWF, KXF, AKV))
        a(f'{lab}:')

    for c in range(10):
        a.c(f'aux chunk {c}')
        if c == 0:
            stamp(a, 22)
        if c <= 8:
            a(f's_waitcnt vmcnt({vm.wait(f"c{c}") if c != 5 else min(vm.wait("c5"), vm.wait("st"), vm.wait("nl"))})')
        else:
            a('s_waitcnt vmcnt(0)')
        a('s_barrier')
        if not FEWST or c in (0, 1, 2, 9):
            stamp(a, 1 + c)
        if asmlib.STAMPS:
            vm.add('stamp', 1, optional=True)
        if c == 3:
            a(f'buffer_load_dword {v(PF)}, off, s[4:7], 0 sc1')
            vm.add('nl', 1)
        kv_step(c, 0)
        if c == P3C:
            lab = a.label('nop3')
            a(f'''
            v_lshlrev_b32 {v(T + 8)}, 3, {v(vL)}
            v_lshlrev_b32 {v(T + 10)}, 7, {v(vL)}
            v_and_b32 {v(T + 11)}, 0x780, {v(T + 10)}
            s_cmp_lg_u32 s26, 3
            s_cbranch_scc1 {lab}
            s_lshl_b32 s44, s27, 13
            s_add_u32 s44, s44, {F_ST}
            s_lshl_b32 s45, s28, 13
            s_add_u32 s45, s45, {F_CS}
            s_and_b32 s58, s28, 4
            s_lshl_b32 s58, s58, 9
            s_add_u32 s58, s58, {F_KC}
            ''')
            a(f'''
            s_mov_b32 s60, s44
            s_mov_b32 s61, s45
            s_lshr_b32 s59, s29, 1
            s_lshl_b32 s59, s59, 13
            s_add_u32 s59, s59, {F_ST}
            buffer_load_dwordx2 {v(FX + 6, 2)}, {v(T + 10)}, s[20:23], s59 offen sc1
            buffer_load_dwordx2 {v(FX, 2)}, {v(T + 10)}, s[20:23], s60 offen sc1
            buffer_load_dwordx2 {v(FX + 2, 2)}, {v(T + 10)}, s[20:23], s61 offen sc1
            buffer_load_dwordx2 {v(FX + 4, 2)}, {v(T + 11)}, s[20:23], s58 offen sc1
            {lab}:
            ''')
        jit(c + JITD)
        if (1 if EARLY2 else 0) <= c and c + 2 < 10:
            dma_group(c + 2)
        kv_step(c, 1)
        if c == P3C:
            lab = a.label('nop3b')
            a(f'''
            s_cmp_lg_u32 s26, 3
            s_cbranch_scc1 {lab}
            s_waitcnt vmcnt(12)
            v_cmp_eq_u64 vcc, s[98:99], {v(FX, 2)}
            v_cmp_eq_u64 s[46:47], s[98:99], {v(FX + 2, 2)}
            v_cmp_eq_u64 s[44:45], s[98:99], {v(FX + 4, 2)}
            v_cmp_eq_u64 s[48:49], s[98:99], {v(FX + 6, 2)}
            s_nop 1
            s_and_b64 vcc, vcc, s[46:47]
            s_and_b64 vcc, vcc, s[44:45]
            s_and_b64 vcc, vcc, s[48:49]
            s_cmp_eq_u64 vcc, -1
            s_cbranch_scc1 {lab}
            ''')
            polln(a, FX, [T + 10, T + 10, T + 11], [('s60', None), ('s61', None), ('s58', None)], 4)
            polln(a, FX, [T + 10], [('s59', None)], 4)
            a(f'{lab}:')
        if c == 2:
            lab = a.label('nokvcs')
            a(f'''
            s_cmp_eq_u32 s42, 0
            s_cbranch_scc1 {lab}
            s_mul_i32 s44, s27, 40
            v_add_u32 {v(t1)}, s44, {v(vH)}
            v_mul_u32_u24 {v(t2)}, 40, {v(t1)}
            v_lshl_add_u32 {v(t2)}, {v(vR)}, 2, {v(t2)}
            ''')
            for t in range(20):
                a(f'buffer_load_dword {v(CR + t)}, {v(t2)}, s[16:19], 0 offen offset:{80 * t}')
            a(f'{lab}:')
            vm.add('kcr', 20, optional=True)
        if c == 3:
            lab = a.label('nokvcs2')
            a(f's_cmp_eq_u32 s42, 0\ns_cbranch_scc1 {lab}')

            def kcs_store():
                a(f'''
                v_lshl_add_u32 {v(t1)}, {v(vR)}, 1, {v(vH)}
                v_lshlrev_b32 {v(t2)}, 2, {v(t1)}
                v_mov_b32 {v(t3)}, 0x7f000000
                v_cmp_gt_u32 vcc, 32, {v(t1)}
                s_lshl_b32 s44, s28, 9
                s_lshl_b32 s45, s27, 7
                s_add_u32 s44, s44, s45
                s_add_u32 s44, s44, {CSKVW}
                v_cndmask_b32 {v(t2)}, {v(t3)}, {v(t2)}, vcc
                buffer_store_dword {v(t0)}, {v(t2)}, s[20:23], s44 offen sc1
                ''')
            colsum(vm.wait('kcr'), kcs_store)
            a(f'{lab}:')
            vm.add('st', 1, optional=True)
        if c == 5:
            Lp = a.label('np')
            Lq = a.label('npd')
            Lr = a.label('nokcf')
            a(f'''
            s_mov_b32 s93, {POLL_MAX}
            {Lp}:
            v_readfirstlane_b32 s98, {v(PF)}
            s_cmp_lg_u32 s98, 0
            s_cbranch_scc1 {Lq}
            s_sub_u32 s93, s93, 1
            s_cbranch_scc1 {Lq}
            buffer_load_dword {v(PF)}, off, s[4:7], 0 sc1
            s_waitcnt vmcnt(0)
            s_branch {Lp}
            {Lq}:
            s_xor_b32 s99, s98, {NONCE_X}
            s_lshl_b32 s44, s28, 9
            s_lshl_b32 s45, s27, 7
            s_add_u32 s44, s44, s45
            s_add_u32 s44, s44, {F_KC}
            s_cmp_eq_u32 s42, 0
            s_cbranch_scc1 {Lr}
            ''')
            flag_store(a, 's44', T + 2)
            a(f'{Lr}:')
            vm.add('fl', 1, optional=True)
        if P1PF and c in (6, 7):
            if c == 6:
                srd(a, 4, WDP, 2211840)
                a(f'''
                s_lshr_b32 s44, s2, 6
                s_mul_i32 s44, s44, {432 * 1280}
                s_bfe_u32 s45, s2, 0x30003
                s_mul_i32 s45, s45, {180 * 128}
                s_add_u32 s44, s44, s45
                s_mul_i32 s45, s26, {45 * 128}
                s_add_u32 s57, s44, s45
                v_lshlrev_b32 {v(PF + 1)}, 7, {v(vL)}
                ''')
            for z in range(2 if c == 6 else 1):
                a(f'''
                s_mov_b32 exec_hi, {(1 << 13) - 1}
                buffer_load_dword v165, {v(PF + 1)}, s[4:7], s57 offen
                s_mov_b32 exec_hi, -1
                s_add_u32 s57, s57, {144 * 1280}
                ''')
                vm.add('pf', 1)
        if c == 8:
            a(f'''
            v_lshlrev_b32 {v(T + 9)}, 4, {v(vL)}
            s_lshl_b32 s44, s28, 14
            s_lshl_b32 s45, s26, 12
            s_add_u32 s44, s44, s45
            s_add_u32 s44, s44, {CSW}
            ''')
            for e in range(4):
                a(f'''
                s_add_u32 m0, s45, {CS_A + 1024 * e}
                s_nop 0
                buffer_load_dwordx4 {v(T + 9)}, s[20:23], s44 offen{LD} lds
                s_add_u32 s44, s44, 1024
                ''')
            lab = a.label('norc')
            a(f'''
            s_cmp_lg_u32 s26, 0
            s_cbranch_scc1 {lab}
            s_lshl_b32 s44, s27, 11
            s_add_u32 s44, s44, {ROWW}
            s_mov_b32 m0, {ROWC_A}
            s_and_b32 s45, s28, 4
            buffer_load_dwordx4 {v(T + 9)}, s[20:23], s44 offen{LD} lds
            buffer_load_dwordx4 {v(T + 9)}, s[20:23], s44 offen offset:1024{LD} lds
            s_lshl_b32 s45, s45, 9
            s_add_u32 s45, s45, {CSKVW}
            s_mov_b32 m0, {CSKV_A}
            s_nop 0
            buffer_load_dwordx4 {v(T + 9)}, s[20:23], s45 offen{LD} lds
            buffer_load_dwordx4 {v(T + 9)}, s[20:23], s45 offen offset:1024{LD} lds
            {lab}:
            ''')
    L_p2 = a.label('auxp2')
    L_v = a.label('vepi')
    L_a0 = a.label('aux0f')
    lab = a.label('nokvfin')
    lab2 = a.label('nofix')
    a(f'''
    s_cmp_eq_u32 s54, 0
    s_cbranch_scc1 {lab}
    s_cmp_lg_u32 s26, 0
    s_cbranch_scc1 {lab2}
    s_lshl_b32 s44, s56, 9
    s_add_u32 s44, s44, {ROWC_A}
    v_lshl_add_u32 {v(t0)}, {v(vR)}, 4, s44
    v_lshlrev_b32 {v(t1)}, 2, {v(vR)}
    v_lshl_add_u32 {v(t1)}, {v(vH)}, 9, {v(t1)}
    v_add_u32 {v(t1)}, {CSKV_A}, {v(t1)}
    v_add_u32 {v(t2)}, 1024, {v(t1)}
    ds_read_b128 {v(FX, 4)}, {v(t0)}
    ds_read2_b32 {v(FX + 8, 2)}, {v(t1)} offset0:0 offset1:32
    ds_read2_b32 {v(FX + 10, 2)}, {v(t1)} offset0:64 offset1:96
    ds_read2_b32 {v(FX + 12, 2)}, {v(t2)} offset0:0 offset1:32
    ds_read2_b32 {v(FX + 14, 2)}, {v(t2)} offset0:64 offset1:96
    s_waitcnt lgkmcnt(4)
    v_mov_b32 {v(FX + 4)}, {v(FX)}
    v_mov_b32 {v(FX + 5)}, {v(FX)}
    v_mov_b32 {v(FX + 6)}, {v(FX)}
    v_mov_b32 {v(FX + 7)}, {v(FX)}
    s_waitcnt lgkmcnt(0)
    s_nop 1
    {mfma16(AKV, FX + 8, FX + 4, AKV)}
    {mfma16(AKV, FX + 12, FX + 4, AKV)}
    s_branch {L_a0}
    {lab2}:
    s_lshl_b32 s44, s26, 12
    v_add_u32 {v(t0)}, s44, {v(T + 9)}
    s_lshl_b32 s44, s26, 2
    s_add_u32 s44, s44, {PD_A}
    v_mov_b32 {v(t1)}, s44
    v_mov_b32 {v(t2)}, s98
    s_nop 11
    ''')
    for q in range(3):
        a(f'ds_write_b128 {v(t0)}, {v(AKV + 4 * q, 4)} offset:{PART_A + 1024 * q}')
    L_sp = a.label('pspin')
    L_spd = a.label('pspind')
    a(f'''
    s_waitcnt lgkmcnt(0)
    ds_write_b32 {v(t1)}, {v(t2)}
    {lab}:
    s_branch {L_p2}
    {L_a0}:
    v_mov_b32 {v(t1)}, {PD_A}
    s_mov_b32 s93, {POLL_MAX * 8}
    {L_sp}:
    ds_read_b128 {v(T + 4, 4)}, {v(t1)}
    s_waitcnt lgkmcnt(0)
    v_xor_b32 {v(T + 5)}, s98, {v(T + 5)}
    v_xor_b32 {v(T + 6)}, s98, {v(T + 6)}
    v_xor_b32 {v(T + 7)}, s98, {v(T + 7)}
    v_or3_b32 {v(T + 5)}, {v(T + 5)}, {v(T + 6)}, {v(T + 7)}
    s_nop 0
    v_readfirstlane_b32 s44, {v(T + 5)}
    s_cmp_eq_u32 s44, 0
    s_cbranch_scc1 {L_spd}
    s_sub_u32 s93, s93, 1
    s_cbranch_scc0 {L_sp}
    {L_spd}:
    ''')
    stamp(a, 12)
    for w in range(1, 4):
        for q in range(3):
            a(f'ds_read_b128 {v(RD + 12 * (w - 1) + 4 * q, 4)}, {v(T + 9)} offset:{PART_A + 4096 * w + 1024 * q}')
    a(f'''
    s_lshl_b32 s57, s27, 2
    s_add_u32 s57, s57, s56
    s_lshr_b32 s44, s57, 1
    s_mul_i32 s44, s44, 7168
    s_add_u32 s44, s44, {KV_OFF}
    s_and_b32 s45, s57, 1
    s_and_b32 s58, s28, 4
    s_lshl_b32 s58, s58, 4
    s_add_u32 s58, s58, s57
    s_lshl_b32 s58, s58, 7
    s_add_u32 s58, s58, {F_KV}
    s_waitcnt lgkmcnt(0)
    ''')
    for i in range(0, 12, 2):
        a(f'v_pk_add_f32 {v(AKV + i, 2)}, {v(AKV + i, 2)}, {v(RD + i, 2)}')
        a(f'v_pk_add_f32 {v(RD + 12 + i, 2)}, {v(RD + 12 + i, 2)}, {v(RD + 24 + i, 2)}')
    for i in range(0, 12, 2):
        a(f'v_pk_add_f32 {v(AKV + i, 2)}, {v(AKV + i, 2)}, {v(RD + 12 + i, 2)}')
    a(f'v_mov_b32 {v(FX)}, {v(FX + 1)}')
    for i in range(0, 12, 2):
        a(f'v_pk_mul_f32 {v(AKV + i, 2)}, {v(AKV + i, 2)}, {v(FX, 2)}')
    PK = RD
    for i in range(6):
        a(f'v_cvt_pk_bf16_f32 {v(PK + i)}, {v(AKV + 2 * i)}, {v(AKV + 2 * i + 1)}')
    L_kvf = a.label('kvflag')
    a(f'''
    s_bitcmp1_b32 s28, 2
    s_cbranch_scc1 {L_v}
    v_mov_b32 {v(t0)}, 0x3f803f80
    v_mov_b32 {v(t1)}, 0x00003f80
    v_cndmask_b32 {v(PK + 4)}, {v(PK + 4)}, {v(t0)}, {HM}
    v_cndmask_b32 {v(PK + 5)}, {v(PK + 5)}, {v(t1)}, {HM}
    s_lshl_b32 s46, s45, 10
    s_add_u32 s46, s46, s44
    s_lshl_b32 s47, s45, 9
    s_add_u32 s47, s47, s44
    buffer_store_dwordx4 {v(PK, 4)}, {v(T + 9)}, s[20:23], s46 offen sc1
    buffer_store_dwordx2 {v(PK + 4, 2)}, {v(T + 8)}, s[20:23], s47 offen offset:2048 sc1
    s_branch {L_kvf}
    {L_v}:
    v_mov_b32 {v(t0)}, 0
    v_cndmask_b32 {v(PK + 4)}, {v(PK + 4)}, {v(t0)}, {HM}
    v_cndmask_b32 {v(PK + 5)}, {v(PK + 5)}, {v(t0)}, {HM}
    v_mov_b32 {v(PK + 6)}, 0x00003f80
    v_mov_b32 {v(PK + 7)}, 0
    v_lshlrev_b32 {v(t0)}, 6, {v(vR)}
    v_lshl_add_u32 {v(t3)}, {v(vH)}, 4, {v(t0)}
    v_lshl_add_u32 {v(t0)}, {v(vH)}, 3, {v(t0)}
    ds_write_b128 {v(t3)}, {v(PK, 4)} offset:{VT_A}
    ds_write_b64 {v(t0)}, {v(PK + 4, 2)} offset:{VT_A + 32}
    ds_write_b64 {v(t0)}, {v(PK + 6, 2)} offset:{VT_A + 48}
    v_bfe_u32 {v(t1)}, {v(vL)}, 2, 2
    v_lshl_add_u32 {v(t1)}, {v(vH)}, 2, {v(t1)}
    v_lshlrev_b32 {v(t1)}, 6, {v(t1)}
    v_bfe_u32 {v(t2)}, {v(vL)}, 4, 1
    v_lshl_add_u32 {v(t1)}, {v(t2)}, 5, {v(t1)}
    v_and_b32 {v(t2)}, 3, {v(vL)}
    v_lshl_add_u32 {v(t1)}, {v(t2)}, 3, {v(t1)}
    s_waitcnt lgkmcnt(0)
    ds_read_b64_tr_b16 {v(PK + 8, 2)}, {v(t1)} offset:{VT_A}
    ds_read_b64_tr_b16 {v(PK + 10, 2)}, {v(t1)} offset:{VT_A + 512}
    ds_read_b64_tr_b16 {v(PK + 12, 2)}, {v(t1)} offset:{VT_A + 1024}
    ds_read_b64_tr_b16 {v(PK + 14, 2)}, {v(t1)} offset:{VT_A + 1536}
    s_lshl_b32 s46, s45, 11
    s_add_u32 s46, s46, s44
    s_add_u32 s46, s46, 3072
    s_waitcnt lgkmcnt(0)
    buffer_store_dwordx4 {v(PK + 8, 4)}, {v(T + 9)}, s[20:23], s46 offen sc1
    buffer_store_dwordx4 {v(PK + 12, 4)}, {v(T + 9)}, s[20:23], s46 offen offset:1024 sc1
    {L_kvf}:
    s_waitcnt vmcnt(0)
    ''')
    flag_store(a, 's58', T + 2)
    a(f'{L_p2}:')
    stamp(a, 13)

    a.c('=========== aux wave: phase 2 ===========')
    al = Alloc(4, 164)
    T = al('T', 8, 4)
    vWD = al('wd', 3)
    vWA = al('wa', 3)
    vHL = al('hl')
    vKO = al('ko')
    vPF = al('pf')
    ACC = al('acc', 80, 4)
    SL = al('slots', 60, 4)
    wreg = lambda k: SL + 20 * (k % 3)
    hreg = lambda k: SL + 20 * (k % 3) + 12
    a(f's_setprio {PRIO2}')
    g2_ids(a)
    srd(a, 12, WDP, 2211840)
    srd(a, 16, 84, 819200)
    a(f"""
    s_mul_i32 s44, s26, 27
    s_mul_i32 s41, s59, 108
    s_add_u32 s41, s41, s44
    s_lshl_b32 s41, s41, 10
    s_mul_i32 s42, s60, 108
    s_add_u32 s42, s42, s44
    s_lshl_b32 s42, s42, 10
    s_mul_i32 s43, s44, 20480
    s_mov_b32 s52, 20480
    s_lshl_b32 s44, s26, 3
    s_mul_i32 s56, s44, 25600
    s_mul_i32 s54, s59, 40
    s_add_u32 s54, s54, s44
    s_lshl_b32 s54, s54, 10
    s_add_u32 s54, s54, {OF_OFF}
    s_mul_i32 s55, s60, 40
    s_add_u32 s55, s55, s44
    s_lshl_b32 s55, s55, 10
    s_add_u32 s55, s55, {OF_OFF}
    s_and_b32 s44, s26, 1
    s_mul_i32 s39, s44, 21504
    s_lshr_b32 s44, s26, 1
    s_mul_i32 s44, s44, {WO_HI}
    s_add_u32 s39, s39, s44
    s_mov_b32 s40, s39
    s_mov_b32 s45, 0x15556
    v_lshlrev_b32 {v(vHL)}, 4, {v(vL)}
    v_lshlrev_b32 {v(vPF)}, 7, {v(vL)}
    s_lshl_b32 s36, s26, 12
    s_min_u32 s36, s36, 11264
    v_add_u32 {v(vKO)}, s36, {v(vHL)}
    """)
    for p in range(3):
        a(f"""
        v_add_u32 {v(T)}, {64 * p}, {v(vL)}
        v_mul_lo_u32 {v(T + 1)}, {v(T)}, s45
        v_lshrrev_b32 {v(T + 1)}, 20, {v(T + 1)}
        v_mul_u32_u24 {v(T + 2)}, 12, {v(T + 1)}
        v_sub_u32 {v(T + 2)}, {v(T)}, {v(T + 2)}
        v_mul_u32_u24 {v(T + 1)}, 1280, {v(T + 1)}
        v_lshl_add_u32 {v(T + 1)}, {v(T + 2)}, 4, {v(T + 1)}
        v_add_u32 {v(vWD + p)}, s61, {v(T + 1)}
        """)
    a(f"""
    v_bfe_u32 {v(T)}, {v(vL)}, 2, 2
    v_lshl_add_u32 {v(T)}, {v(vH)}, 3, {v(T)}
    v_mul_u32_u24 {v(T)}, 192, {v(T)}
    v_bfe_u32 {v(T + 1)}, {v(vL)}, 4, 1
    v_lshl_add_u32 {v(T)}, {v(T + 1)}, 5, {v(T)}
    v_and_b32 {v(T + 1)}, 3, {v(vL)}
    v_lshl_add_u32 {v(T)}, {v(T + 1)}, 3, {v(T)}
    v_add_u32 {v(T)}, s39, {v(T)}
    s_lshl_b32 s44, s58, 6
    s_add_u32 s45, s44, 64
    s_lshl_b32 s46, s58, 7
    s_sub_u32 s46, 128, s46
    v_add_u32 {v(vWA)}, s44, {v(T)}
    v_add_u32 {v(vWA + 1)}, s45, {v(T)}
    v_add_u32 {v(vWA + 2)}, s46, {v(T)}
    """)
    vm = VM()

    def w_dma(base, off):
        out = []
        for p in range(3):
            out.append([f's_add_u32 m0, {base}, {off + p * 1024}', 's_nop 0',
                        f'buffer_load_dwordx4 {v(vWD + p)}, s[12:15], s43 offen lds'])
        out[2].append('s_add_u32 s43, s43, s52')
        return out

    def h_ld(k, e):
        hs = ('s41', 's42')[e]
        return [f'buffer_load_dwordx4 {v(hreg(k) + 4 * e, 4)}, {v(vHL)}, s[20:23], {hs} offen', f's_add_u32 {hs}, {hs}, 1024']

    def w_rd(k, off):
        return [f'ds_read_b64_tr_b16 {v(wreg(k) + 4 * b + 2 * t, 2)}, {v(vWA + b)} offset:{off + 768 * t}'
                for b in range(3) for t in range(2)]

    def g_mfmas(k):
        return [mfma16(ACC + 16 * n, wreg(k) + 4 * b, hreg(k) + 4 * e, ACC + 16 * n)
                for n, (b, e) in enumerate(((0, 0), (0, 1), (1, 0), (1, 1), (2, 0)))]

    def kv_dma(c):
        st = c % NST
        lab = a.label('kv3')
        a(f's_cmp_ge_u32 s26, 2\ns_cbranch_scc1 {lab}')
        for e in (3, 0, 1, 2):
            a(f"""
            s_add_u32 m0, s36, {KVR + st * CH_BYTES + e * 1024}
            s_mov_b32 s38, {KV_OFF + c * CH_BYTES + e * 1024}
            buffer_load_dwordx4 {v(vKO)}, s[20:23], s38 offen lds
            """)
            if e == 3:
                a(f'{lab}:')
        vm.add(f'kv{c}', 1, optional=True)
        vm.add(f'kv{c}', 3)

    for i in range(80):
        a(f'v_mov_b32 {v(ACC + i)}, 0')
    srd(a, 4, WDP, 2211840)
    a(f'''
    s_lshr_b32 s44, s2, 6
    s_mul_i32 s44, s44, {432 * 1280}
    s_bfe_u32 s45, s2, 0x30003
    s_lshl_b32 s45, s45, 2
    s_add_u32 s45, s45, s26
    s_mul_i32 s45, s45, {15 * 128}
    s_add_u32 s32, s44, s45
    s_mov_b32 s31, {48 * 1280}
    ''')

    a(f'''
    s_lshr_b32 s45, s30, 2
    s_lshl_b32 s46, s29, 1
    s_add_u32 s45, s45, s46
    s_mul_i32 s45, s45, 108
    s_and_b32 s46, s30, 3
    s_mul_i32 s46, s46, 27
    s_add_u32 s45, s45, s46
    s_lshl_b32 s45, s45, 10
    s_mul_i32 s46, s26, {6 * 128}
    s_add_u32 s45, s45, s46
    s_add_u32 s49, s45, 3072
    ''')

    def paced_h():
        a(f'''
        s_mov_b64 exec, 0x3f
        buffer_load_dword v165, {v(vPF)}, s[20:23], s49 offen
        s_mov_b64 exec, -1
        s_add_u32 s49, s49, 3072
        ''')

    def paced():
        a(f'''
        s_mov_b64 exec, 0x7fff
        buffer_load_dword v165, {v(vPF)}, s[4:7], s32 offen
        s_mov_b64 exec, -1
        s_add_u32 s32, s32, s31
        ''')
        vm.add('pf', 1)

    def cd_wait():
        L1, L2 = a.label('cdw'), a.label('cdd')
        a(f'''
        v_and_b32 {v(T + 4)}, 7, {v(vL)}
        v_lshlrev_b32 {v(T + 4)}, 2, {v(T + 4)}
        v_add_u32 {v(T + 4)}, {CD_A}, {v(T + 4)}
        s_mov_b32 s93, {POLL_MAX * 8}
        {L1}:
        ds_read_b32 {v(T + 5)}, {v(T + 4)}
        s_waitcnt lgkmcnt(0)
        v_cmp_eq_u32 vcc, s98, {v(T + 5)}
        s_nop 1
        s_cmp_eq_u64 vcc, -1
        s_cbranch_scc1 {L2}
        s_sub_u32 s93, s93, 1
        s_cbranch_scc0 {L1}
        {L2}:
        ''')

    a(f's_lshl_b32 s53, s29, 13\ns_add_u32 s53, s53, {F_QH}')

    def kv_poll(first):
        a(f's_mov_b32 s45, {F_KV}\ns_mov_b32 s44, {F_KV + 8192}')
        if first:
            m = ~((1 << (4 * KVF)) - 1) & 0xffffffffffffffff
            a(f's_mov_b32 s50, {m & 0xffffffff}\ns_mov_b32 s51, {m >> 32}\ns_sleep {KVSL}\ns_andn2_b64 exec, exec, s[50:51]')
            polln(a, T + 4, vPF, [('s45', 's[50:51]'), ('s44', 's[50:51]')], 2)
            a('s_mov_b64 exec, -1')
            cd_wait()
        else:
            polln(a, T + 4, vPF, [('s45', None), ('s44', None)], 4)
    one_poller(a, T, 0, lambda: kv_poll(True), who=2)
    stamp(a, 15)
    kv_dma(0)
    kv_dma(1)
    kv_dma(2)

    def prefetch(kind, b=0):
        n = {'wd': 60, 'wo': 64, 'h': 54}[kind]
        lab = a.label('nopf')
        if kind != 'h':
            a(f's_cmp_eq_u32 s26, 3\ns_cbranch_scc1 {lab}')
        if kind == 'wd':
            a(f"""
            s_lshr_b32 s44, s2, 6
            s_mul_i32 s44, s44, {432 * 1280}
            s_bfe_u32 s45, s2, 0x30003
            s_mul_i32 s45, s45, {180 * 128}
            s_add_u32 s44, s44, s45
            s_mul_i32 s45, s26, {60 * 128}
            s_add_u32 s44, s44, s45
            s_add_u32 s44, s44, {144 * 1280 * b}
            """)
            r = 's[12:15]'
        elif kind == 'wo':
            a(f"""
            s_lshr_b32 s44, s2, 3
            s_mul_i32 s44, s44, {200 * 128}
            s_mul_i32 s45, s26, {68 * 128}
            s_add_u32 s44, s44, s45
            """)
            r = 's[16:19]'
        else:
            a(f"""
            s_mul_i32 s44, s29, {216 * 1024}
            s_lshl_b32 s45, s30, 2
            s_add_u32 s45, s45, s26
            s_mul_i32 s45, s45, {54 * 128}
            s_add_u32 s44, s44, s45
            """)
            r = 's[20:23]'
        m = (1 << n) - 1
        a(f"""
        s_mov_b32 exec_hi, {m >> 32}
        buffer_load_dword v165, {v(vPF)}, {r}, s44 offen
        s_mov_b32 exec_hi, -1
        {lab}:
        """)
        vm.add('pf', 1, optional=True)
    a(f's_waitcnt vmcnt({vm.wait("kv0")})')
    a('s_barrier')
    stamp(a, 16)
    lab = a.label('nokv2')
    a(f's_cmp_lg_u32 s26, 2\ns_cbranch_scc1 {lab}')
    kv_poll(False)
    a(f'{lab}:')

    def body(last, nw=12):
        for z in range(3):
            a(f's_waitcnt vmcnt({nw if not last else (12, 10, 8)[z]}) lgkmcnt(0)')
            ms = g_mfmas(z)
            if z == 2:
                for b in range(3):
                    a(f'v_add_u32 {v(vWA + b)}, s33, {v(vWA + b)}')
                rd = w_rd(0, 0)
            else:
                rd = w_rd(z + 1, 3072 * (z + 1))
            wd_ = w_dma('s40', 3072 * z)
            a(ms[0]); emit(a, rd[0:2]); emit(a, [wd_[0]]); a(SPACE)
            a(ms[1]); emit(a, rd[2:4]); emit(a, [wd_[1]]); a(SPACE)
            a(ms[3]); emit(a, rd[4:6]); emit(a, [wd_[2]]); a(SPACE)
            a(ms[2])
            if not last:
                emit(a, h_ld(z, 1))
            a(SPACE)
            a(ms[4])
            if not last:
                emit(a, h_ld(z, 0))
        a('s_add_u32 s40, s40, s33\ns_sub_u32 s33, 0, s33')

    NSTAT = int(ENV.get('NSTAT', '4'))
    for c in range(NSTAT):
        a.c(f'aux B{c}')
        a(f's_waitcnt vmcnt({vm.wait(f"kv{c + 1}")})')
        bstamp(a, c == 0)
        a('s_barrier')
        bstamp(a)
        kv_dma(c + 3)
        if WDC <= c < WDC + 2:
            for k in range(3 * (c - WDC), 3 * (c - WDC) + 3):
                emit(a, w_dma('s39', 3072 * k))
            vm.add('w', 9)
        paced()
    L_top, L_nb, L_sw, L_end2 = a.label('dtop'), a.label('dnb'), a.label('dsw'), a.label('dend')
    L_act, L_bar, L_nokv = a.label('dact'), a.label('dbar'), a.label('dnokv')
    L_s0, L_body, L_last, L_wo, L_next = a.label('ds0'), a.label('dbody'), a.label('dlast'), a.label('dwo'), a.label('dnext')
    L_w0 = a.label('dw0')
    L_w2 = a.label('dw2')
    L_b12 = a.label('db12')
    L_bd = a.label('dbd')
    L_np = a.label('dnp')
    L_p3 = a.label('dp3')
    L_k3 = a.label('dk3')
    L_w1 = a.label('dw1')
    L_n1 = a.label('dn1')
    L_oth, L_start, L_rei, L_nsw = a.label('doth'), a.label('dstart'), a.label('drei'), a.label('dnsw')
    a(f"""
    s_mov_b32 s34, {16 - NSTAT}
    s_mov_b32 s35, 0
    s_mov_b32 s37, {((NSTAT + 3) % NST) * CH_BYTES}
    s_mov_b32 s38, {KV_OFF + (NSTAT + 3) * CH_BYTES}
    s_mov_b32 s33, 9216
    s_mov_b32 s93, {POLL_MAX}
    v_mov_b32 {v(T + 3)}, {RDY_A + 4}
    {L_top}:
    s_sub_u32 s44, s35, 2
    s_cmp_lt_u32 s44, 8
    s_cbranch_scc1 {L_act}
    s_cmp_eq_u32 s35, 11
    s_cbranch_scc1 {L_w2}
    s_cmp_gt_u32 s35, 1
    s_cbranch_scc1 {L_w0}
    s_cmp_le_u32 s34, 3
    s_cbranch_scc1 {L_w0}
    s_cmp_eq_u32 s35, 1
    s_cbranch_scc1 {L_w1}
    s_waitcnt vmcnt(3)
    s_branch {L_bar}
    {L_w1}:
    s_waitcnt vmcnt({6 + HPF})
    s_branch {L_bar}
    {L_w2}:
    s_waitcnt vmcnt(12)
    s_mov_b32 s35, 12
    s_branch {L_bar}
    {L_w0}:
    s_waitcnt vmcnt(0)
    s_branch {L_bar}
    {L_act}:
    s_waitcnt vmcnt({17 if HPF else 16})
    {L_bar}:
    s_cmp_eq_u32 s34, 0
    s_cbranch_scc1 {L_nb}
    """)
    bstamp(a)
    a('s_barrier')
    bstamp(a)
    a(f"""
    s_cmp_lg_u32 s35, 0
    s_cbranch_scc1 {L_np}
    s_cmp_lg_u32 s26, 3
    s_cbranch_scc1 {L_np}
    buffer_load_dwordx2 {v(T + 4, 2)}, {v(vPF)}, s[20:23], s53 offen sc1
    {L_np}:
    s_cmp_le_u32 s34, 3
    s_cbranch_scc1 {L_nokv}
    s_add_u32 s44, s36, s37
    s_cmp_ge_u32 s26, 2
    s_cbranch_scc1 {L_k3}
    """)
    for e in (3, 0, 1, 2):
        a(f"""
        s_add_u32 m0, s44, {KVR + e * 1024}
        s_add_u32 s45, s38, {e * 1024}
        buffer_load_dwordx4 {v(vKO)}, s[20:23], s45 offen lds
        """)
        if e == 3:
            a(f'{L_k3}:')
    a(f"""
    s_add_u32 s38, s38, {CH_BYTES}
    s_add_u32 s37, s37, {CH_BYTES}
    s_cmp_eq_u32 s37, {CH_BYTES * NST}
    s_cselect_b32 s37, 0, s37
    {L_nokv}:
    s_sub_u32 s34, s34, 1
    s_branch {L_sw}
    {L_nb}:
    s_cmp_ge_u32 s35, 11
    s_cbranch_scc1 {L_end2}
    {L_sw}:
    s_cmp_eq_u32 s35, 0
    s_cbranch_scc1 {L_s0}
    s_cmp_lt_u32 s35, 9
    s_cbranch_scc1 {L_body}
    s_cmp_eq_u32 s35, 9
    s_cbranch_scc1 {L_last}
    s_cmp_eq_u32 s35, 10
    s_cbranch_scc1 {L_wo}
    s_branch {L_top}
    {L_s0}:
    s_sub_u32 s93, s93, 1
    s_cbranch_scc1 {L_start}
    s_cmp_lg_u32 s26, 3
    s_cbranch_scc1 {L_oth}
    s_cmp_ge_u32 s34, 3
    s_cbranch_scc1 {L_p3}
    buffer_load_dwordx2 {v(T + 4, 2)}, {v(vPF)}, s[20:23], s53 offen sc1
    s_waitcnt vmcnt(0)
    {L_p3}:
    s_waitcnt vmcnt(3)
    v_cmp_eq_u64 vcc, s[98:99], {v(T + 4, 2)}
    s_nop 1
    s_cmp_eq_u64 vcc, -1
    s_cselect_b32 s44, s98, s34
    v_mov_b32 {v(T + 2)}, s44
    ds_write_b32 {v(T + 3)}, {v(T + 2)}
    s_cbranch_scc1 {L_start}
    s_branch {L_top}
    {L_oth}:
    s_mov_b32 s45, 40
    {L_rei}:
    s_sleep 1
    ds_read_b32 {v(T + 2)}, {v(T + 3)}
    s_waitcnt lgkmcnt(0)
    v_readfirstlane_b32 s44, {v(T + 2)}
    s_cmp_eq_u32 s44, s98
    s_cbranch_scc1 {L_start}
    s_cmp_eq_u32 s44, s34
    s_cbranch_scc1 {L_top}
    s_sub_u32 s45, s45, 1
    s_cbranch_scc0 {L_rei}
    s_branch {L_top}
    {L_start}:
    """)
    stamp(a, 23)
    for k in range(3):
        for e in range(2):
            emit(a, h_ld(k, e))
    for _ in range(HPF):
        paced_h()
    emit(a, w_rd(0, 0))
    a(f"""
    {L_next}:
    s_add_u32 s35, s35, 1
    s_branch {L_top}
    {L_body}:
    s_cmp_lg_u32 s35, 1
    s_cbranch_scc1 {L_n1}
    s_waitcnt vmcnt(0)
    {L_n1}:
    s_cmp_lg_u32 s35, 8
    s_cbranch_scc1 {L_nsw}
    s_mov_b32 s12, s16
    s_mov_b32 s13, s17
    s_mov_b32 s14, 819200
    s_mov_b32 s43, s56
    s_mov_b32 s52, 25600
    {L_nsw}:
    s_cmp_lt_u32 s34, 3
    s_cbranch_scc1 {L_b12}
    """)
    body(False, 15)
    a(f's_branch {L_bd}\n{L_b12}:')
    body(False, 12)
    a(f'{L_bd}:')
    lab = a.label('npsw')
    a(f'''
    s_cmp_lg_u32 s35, {10 - NSTAT}
    s_cbranch_scc1 {lab}
    s_mov_b32 s4, s16
    s_mov_b32 s5, s17
    s_mov_b32 s6, 819200
    s_lshr_b32 s44, s2, 3
    s_lshl_b32 s44, s44, 2
    s_add_u32 s44, s44, s26
    s_mul_i32 s32, s44, {50 * 128}
    s_mov_b32 s31, {13 * 128}
    {lab}:
    ''')
    paced_h()
    paced()
    a(f's_branch {L_next}\n{L_last}:')
    body(True)
    a(f's_branch {L_next}\n{L_wo}:')
    stamp(a, 17)
    emit(a, w_rd(1, 3072) + w_rd(2, 6144))
    a('s_mov_b32 s45, 0x15556\ns_waitcnt lgkmcnt(0)')
    emit(a, w_dma('s39', 3072 * 3))
    emit(a, w_dma('s39', 3072 * 4))
    for p in range(3):
        a(f"""
        v_add_u32 {v(T)}, {64 * p}, {v(vL)}
        v_mul_lo_u32 {v(T + 1)}, {v(T)}, s45
        v_lshrrev_b32 {v(T + 1)}, 22, {v(T + 1)}
        v_mul_u32_u24 {v(T + 1)}, {16 * 1280}, {v(T + 1)}
        v_add_u32 {v(vWD + p)}, {v(vWD + p)}, {v(T + 1)}
        """)
    a(f's_add_u32 s43, s56, {16 * 1280}\ns_mov_b32 s52, {80 * 1280}')
    emit(a, w_dma('s39', 3072 * 5))
    emit(a, w_dma('s39', 3072 * 6))
    a(f's_cmp_lg_u32 s34, 0\ns_cbranch_scc1 {L_next}\n{L_end2}:')
    a(f"""
    v_subrev_u32 {v(vWA)}, 9216, {v(vWA)}
    v_subrev_u32 {v(vWA + 1)}, 9216, {v(vWA + 1)}
    v_subrev_u32 {v(vWA + 2)}, 9216, {v(vWA + 2)}
    s_mul_i32 s44, s26, 14336
    s_add_u32 s44, s44, {OL_A}
    v_add_u32 {v(vKO)}, s44, {v(vHL)}
    v_and_b32 {v(T)}, 7, {v(vR)}
    v_xor_b32 {v(T)}, {v(T)}, {v(vH)}
    v_lshlrev_b32 {v(T + 1)}, 7, {v(vR)}
    v_add_u32 {v(T + 1)}, s39, {v(T + 1)}
    """)
    for jp in range(4):
        a(f"""
        v_xor_b32 {v(T + 2)}, {2 * jp}, {v(T)}
        v_lshl_add_u32 {v(T + 4 + jp)}, {v(T + 2)}, 4, {v(T + 1)}
        """)
    stamp(a, 18)
    a('s_barrier')
    Lp, Lq = a.label('op'), a.label('opd')
    a(f's_mov_b32 s93, {OPOLL_MAX}\n{Lp}:')
    for k in range(27, 30):
        for e in range(2):
            a(f'buffer_load_dwordx4 {v(hreg(k) + 4 * e, 4)}, {v(vHL)}, s[20:23], s{54 + e} offen offset:{1024 * (k - 27)} sc1')
    a('s_waitcnt vmcnt(0)')
    regs = [hreg(k) + i for k in range(27, 30) for i in range(8)]
    a(f'v_max3_u32 {v(T)}, {v(regs[0])}, {v(regs[1])}, {v(regs[2])}')
    for i in range(3, 23, 2):
        a(f'v_max3_u32 {v(T)}, {v(T)}, {v(regs[i])}, {v(regs[i + 1])}')
    a(f"""
    v_max_u32 {v(T)}, {v(T)}, {v(regs[23])}
    v_cmp_eq_u32 vcc, -1, {v(T)}
    s_nop 1
    s_cmp_eq_u64 vcc, 0
    s_cbranch_scc1 {Lq}
    s_sub_u32 s93, s93, 1
    s_cbranch_scc1 {Lq}
    s_sleep {OSLEEP}
    s_branch {Lp}
    {Lq}:
    """)
    stamp(a, 19)

    def o_rd(k):
        return [f'ds_read_b128 {v(hreg(k) + 4 * e, 4)}, {v(vKO)} offset:{(k - 30) * 2048 + 1024 * e}' for e in range(2)]

    for k in range(27, 30):
        emit(a, g_mfmas(k))
        emit(a, w_rd(k + 3, 3072 * (k - 27)))
    a('s_waitcnt lgkmcnt(0)')
    a('s_barrier')
    stamp(a, 30)
    for k in range(30, 33):
        emit(a, o_rd(k))
    XO = SL + 40
    for k in range(30, 37):
        n = {30: 4, 31: 10, 32: 15, 33: 15, 34: 15, 35: 8, 36: 0}[k]
        n = min(n, 8) if k >= 32 else n
        a(f's_waitcnt lgkmcnt({n})')
        emit(a, g_mfmas(k))
        if k + 3 < 37:
            emit(a, w_rd(k + 3, 3072 * (k + 3 - 30)) + o_rd(k + 3))
        if k == 35:
            g2_out(a, XO, vL, 's24', 0)
    a('s_nop 7')
    stamp(a, 20)
    for n in range(5):
        for jp in range(4):
            a(f'ds_write_b128 {v(T + 4 + jp)}, {v(ACC + 16 * n + 4 * jp, 4)} offset:{4096 * n}')
    a('s_waitcnt vmcnt(0) lgkmcnt(0)')
    a('s_barrier')
    stamp(a, 21)
    for i in range(8):
        a(f'v_mov_b32 {v(ACC + i)}, {v(XO + i)}')
    g2_out(a, ACC, vL, 's24', 1)


def build(path):
    hdr = open('parallel_sum__grouped_kv_mqa__geglu_ffn__prompt.s.ref').read().split('; Override launch')[0]
    out = hdr + f'; @launch grid=(256,1,1) block=(768,1,1) lds={LDS_TOTAL}\n'
    out += '.amdgcn_target "amdgcn-amd-amdhsa--gfx950"\n'
    out += gen()
    out += kernel_desc(KNAME, 168)
    open(path, 'w').write(out)


if __name__ == '__main__':
    import sys
    if len(sys.argv) > 2 and sys.argv[2] == 'stamp':
        asmlib.STAMPS = True
    build(sys.argv[1])
```

```python
from asmlib import *
import asmlib
import math
import os

KNAME = 'parallel_sum__grouped_kv_mqa__geglu_ffn__prompt_kernel'

H_OFF = 0
QF_OFF = 0x700000
KV_OFF = 0xA00000
OF_OFF = 0xB00000
FL_OFF = 0xE00000
F_ST = 0x1200000
F_CS = 0x1220000
F_KV = 0x1240000
F_KC = 0x1248000
F_W2 = 0x1250000
F_QH = 0xE80000
ROWW = 0xE10000
CSW = 0xE20000
CSKVW = 0xE60000
W2F = 0xF00000
WS_USED = 0x1260000

LDS_X = 0
LDS_W = 49152
LDS_KV = 147456
CS_A = 16384
PART_A = 32768
VT_A = 32768
ROWC_A = 156672
CSKV_A = 158720
NONCE_A = 160768
RDY_A = 160800
CD_A = 160832
PD_A = 160864
LDS_TOTAL = 163840
CH_BYTES = 14336
NST = 4
KVR = 49152
Q_A = KVR + 3 * CH_BYTES
G2R = KVR + CH_BYTES * NST
G2D = 3
TW_A = G2R
OL_A = KVR
WO_HI = 106496
WOA = 0
RED_A = 0

C0 = -2.0 * math.sqrt(2.0 / math.pi) * math.log2(math.e)
C1 = C0 * 0.044715
QSC = math.log2(math.e) / math.sqrt(20.0)
M_OFFSET = 90.0
POLL_MAX = 400000
NONCE_X = 0x5a5a5a5a

HM = 's[62:63]'
PFWAIT = False
ENV = os.environ
NODOWN = ENV.get('NODOWN')
PRIO2 = int(ENV.get('PRIO2', '3'))
PRIO1 = int(ENV.get('PRIO1', '3'))
SPACE = ENV.get('SPACE', 's_nop 7')
NOPF = not ENV.get('PF')
INV = int(ENV.get('INV', '0'))
NOG2 = ENV.get('NOG2')
JX = int(ENV.get('JX', '0'))
QSLEEP = int(ENV.get('QSLEEP', '4'))
KVF = int(ENV.get('KVF', '3'))
OUTSC = {'': '', '1': ' sc1', '2': ' nt', '3': ' sc0 sc1', '4': ' sc1 nt'}[ENV.get('OUTSC', '')]
HPF = int(ENV.get('HPF', '2'))
PERM = int(ENV.get('PERM', '3'))
P1PF = int(ENV.get('P1PF', '0'))
PFC = tuple(int(x) for x in ENV.get('PFC', '2,3,4').split(','))
WDC = int(ENV.get('WDC', '2'))
WOC = int(ENV.get('WOC', '4'))
TWC = int(ENV.get('TWC', '1'))
DPOLL2 = 0
OSLEEP = int(ENV.get('OSLEEP', '1'))
LATE1 = int(ENV.get('LATE1', '1'))
OPOLL_MAX = 200000
LINPF = int(ENV.get('LINPF', '0'))
NOSL = ENV.get('NOSL')
PF0 = int(ENV.get('PF0', '0'))
JIT = int(ENV.get('JIT', '0'))
JITD = int(ENV.get('JITD', '4'))
SLC = int(ENV.get('SLC', '0'))
SLG = int(ENV.get('SLG', '1'))
SPN = int(ENV.get('SPN', '2'))
PZ0 = int(ENV.get('PZ0', '0'))
P3C = int(ENV.get('P3C', '7'))
EARLY2 = int(ENV.get('EARLY2', '0'))
CWARM = int(ENV.get('CWARM', '1'))
KVSL = int(ENV.get('KVSL', '16'))
HEARLY = ENV.get('HEARLY')
PSLEEP = int(ENV.get('PSLEEP', '2'))
NOPF2 = not ENV.get('PF2')
CV = int(ENV.get('CV', '0'))
NODMA = ENV.get('NODMA')
IST = ENV.get('IST')
LD = ' sc1' if ENV.get('SC1LD') else ''
FEWST = ENV.get('FEWST')
IST_LIST = tuple(int(x) for x in os.environ.get('ISTL', '1,2,6,7').split(','))
HFLAG_T = int(os.environ.get('HFT', '6'))
G2_START = int(os.environ.get('G2S', '6'))
G2_END = int(os.environ.get('G2E', '15'))


class VM:
    def __init__(self):
        self.ops = []

    def add(self, tag, n=1, optional=False):
        for _ in range(n):
            self.ops.append((tag, optional))

    def wait(self, tag):
        idx = max(i for i, (t, o) in enumerate(self.ops) if t == tag)
        n = sum(1 for t, o in self.ops[idx + 1:] if not o)
        assert n <= 63, n
        return n

    def drain(self):
        self.ops = []


def emit(a, bundles):
    for b in bundles:
        a(b if isinstance(b, str) else '\n'.join(b))


def flag_store(a, soff_reg, vt):
    a(f'''
    v_mov_b32 {v(vt)}, s98
    v_mov_b32 {v(vt + 1)}, s99
    s_mov_b64 exec, 1
    buffer_store_dwordx2 {v(vt, 2)}, off, s[20:23], {soff_reg} sc1
    s_mov_b64 exec, -1
    ''')


def poll(a, vt, voff, soff_reg, wide=False, ignore=None, inv=True, sleep=None):
    L = a.label('poll')
    Ld = a.label('polld')
    a(f's_mov_b32 s93, {POLL_MAX}')
    a(f'{L}:')
    if wide:
        a(f'''
        buffer_load_dwordx4 {v(vt, 4)}, {v(voff)}, s[20:23], {soff_reg} offen sc1
        s_waitcnt vmcnt(0)
        v_cmp_eq_u64 vcc, s[98:99], {v(vt, 2)}
        v_cmp_eq_u64 s[46:47], s[98:99], {v(vt + 2, 2)}
        s_nop 1
        s_and_b64 vcc, vcc, s[46:47]
        ''')
    else:
        a(f'''
        buffer_load_dwordx2 {v(vt, 2)}, {v(voff)}, s[20:23], {soff_reg} offen sc1
        s_waitcnt vmcnt(0)
        v_cmp_eq_u64 vcc, s[98:99], {v(vt, 2)}
        s_nop 1
        ''')
    if ignore:
        a(f's_or_b64 vcc, vcc, {ignore}')
    a(f'''
    s_cmp_eq_u64 vcc, -1
    s_cbranch_scc1 {Ld}
    s_sub_u32 s93, s93, 1
    s_cbranch_scc1 {Ld}
    s_sleep {sleep or PSLEEP}
    s_branch {L}
    {Ld}:
    ''')
    if inv and INV:
        a('buffer_inv sc1\ns_waitcnt vmcnt(0)')


def polln(a, vt, voff, rows, sleep):
    L = a.label('poll')
    Ld = a.label('polld')
    a(f's_mov_b32 s93, {POLL_MAX}\n{L}:')
    for q, (so, ig) in enumerate(rows):
        a(f'buffer_load_dwordx2 {v(vt + 2 * q, 2)}, {v(voff[q] if isinstance(voff, list) else voff)}, s[20:23], {so} offen sc1')
    a('s_waitcnt vmcnt(0)')
    dst = ['vcc', 's[46:47]', 's[48:49]']
    for q in range(len(rows)):
        a(f'v_cmp_eq_u64 {dst[q]}, s[98:99], {v(vt + 2 * q, 2)}')
    a('s_nop 1')
    for q, (so, ig) in enumerate(rows):
        if ig:
            a(f's_or_b64 {dst[q]}, {dst[q]}, {ig}')
        if q:
            a(f's_and_b64 vcc, vcc, {dst[q]}')
    a(f'''
    s_cmp_eq_u64 vcc, -1
    s_cbranch_scc1 {Ld}
    s_sub_u32 s93, s93, 1
    s_cbranch_scc1 {Ld}
    s_sleep {sleep}
    s_branch {L}
    {Ld}:
    ''')


def one_poller(a, vt, word, body, who=3):
    Lw, Ld, Ls = a.label('opw'), a.label('opd'), a.label('ops')
    a(f'''
    v_mov_b32 {v(vt + 3)}, {RDY_A + 4 * word}
    s_cmp_lg_u32 s26, {who}
    s_cbranch_scc1 {Lw}
    ''')
    body()
    a(f'''
    v_mov_b32 {v(vt + 2)}, s98
    ds_write_b32 {v(vt + 3)}, {v(vt + 2)}
    s_branch {Ld}
    {Lw}:
    s_mov_b32 s93, {POLL_MAX * 8}
    {Ls}:
    ds_read_b32 {v(vt + 2)}, {v(vt + 3)}
    s_waitcnt lgkmcnt(0)
    v_readfirstlane_b32 s46, {v(vt + 2)}
    s_cmp_eq_u32 s46, s98
    s_cbranch_scc1 {Ld}
    s_sub_u32 s93, s93, 1
    s_cbranch_scc1 {Ld}
    s_sleep 1
    s_branch {Ls}
    {Ld}:
    ''')


def bstamp(a, first=False):
    if not (asmlib.STAMPS and ENV.get('BST')):
        return
    if first:
        a('s_add_u32 s101, s92, 0xC0000')
    a('''
    s_memrealtime s[94:95]
    s_memtime s[96:97]
    s_waitcnt lgkmcnt(0)
    v_mov_b32 v166, s94
    v_mov_b32 v167, s96
    buffer_store_dwordx2 v[166:167], off, s[88:91], s101
    s_add_u32 s101, s101, 8
    ''')


def srd(a, base, ptr, size):
    a(f'''
    s_mov_b32 s{base}, s{ptr}
    s_mov_b32 s{base + 1}, s{ptr + 1}
    s_mov_b32 s{base + 2}, {size}
    s_mov_b32 s{base + 3}, 0x20000
    ''')


def w_source(a):
    a('''
    s_and_b32 s44, s26, 1
    s_and_b32 s51, s44, s48
    s_lshr_b32 s45, s26, 1
    s_lshl_b32 s46, s44, 6
    s_add_u32 s46, s46, s49
    s_cmp_eq_u32 s48, 1
    s_cselect_b32 s46, s49, s46
    s_lshl_b32 s47, s45, 6
    s_add_u32 s47, s47, s50
    s_cmp_eq_u32 s51, 1
    s_cselect_b32 s52, s47, s46
    s_lshl_b32 s52, s52, 1
    s_cmp_eq_u32 s45, 1
    s_cselect_b32 s12, s82, s80
    s_cselect_b32 s13, s83, s81
    s_mov_b32 s14, 2211840
    s_mov_b32 s53, 3456
    s_cmp_eq_u32 s51, 1
    s_cselect_b32 s12, s70, s12
    s_cselect_b32 s13, s71, s13
    s_cselect_b32 s14, 819200, s14
    s_cselect_b32 s53, 1280, s53
    s_mov_b32 s15, 0x20000
    ''')


def tile_offs(t):
    p, o = t >> 1, t & 1
    b = p * 7168
    return b + o * 1024, b + 2048, b + 3072 + o * 2048, b + 4096 + o * 2048


def gen():
    a = Asm()
    a(kernel_head(KNAME))
    stamp_early(a)
    vL, vH, vR = 1, 2, 3
    L_end = a.label('end')
    L_aux = a.label('aux')
    a(f'''
    s_cmp_ge_u32 s2, 256
    s_cbranch_scc1 {L_end}
    s_load_dwordx8 s[68:75], s[0:1], 0
    s_load_dwordx4 s[80:83], s[0:1], 48
    s_load_dwordx4 s[76:79], s[0:1], 80
    s_load_dwordx2 s[84:85], s[0:1], 32
    s_load_dwordx4 s[88:91], s[0:1], 64
    v_lshrrev_b32 v4, 6, v0
    v_and_b32 {v(vL)}, 63, v0
    v_readfirstlane_b32 s24, v4
    v_lshrrev_b32 {v(vH)}, 5, {v(vL)}
    v_and_b32 {v(vR)}, 31, {v(vL)}
    ''')
    if CWARM:
        Lw, Lp = a.label('nowarm'), a.label('pc')
        a(f'''
        s_cmp_lg_u32 s24, 11
        s_cbranch_scc1 {Lw}
        s_getpc_b64 s[4:5]
        {Lp}:
        s_bfe_u32 s44, s2, 0x30003
        s_lshl_b32 s44, s44, 13
        v_lshl_add_u32 v4, {v(vL)}, 7, s44
        v_min_u32 v4, {L_end}-{Lp}, v4
        global_load_dword v165, v4, s[4:5]
        {Lw}:
        ''')
    vXD, vWD, vKD = 20, 22, 24
    t0, t1, t2, t3, t4 = 4, 5, 6, 7, 8
    a(f'''
    s_bfe_u32 s27, s2, 0x30003
    s_and_b32 s46, s2, 1
    s_lshl_b32 s46, s46, 3
    s_add_u32 s27, s27, s46
    s_bfe_u32 s46, s2, 0x20001
    s_xor_b32 s46, s46, {JX}
    s_lshl_b32 s46, s46, 2
    s_lshr_b32 s47, s2, 6
    s_add_u32 s28, s46, s47
    s_cmp_ge_u32 s28, 11
    s_cselect_b32 s48, 1, 0
    s_sub_u32 s44, s28, 11
    s_lshl_b32 s45, s44, 6
    s_add_u32 s45, s45, 1408
    s_lshl_b32 s46, s28, 7
    s_lshl_b32 s50, s44, 7
    s_cmp_eq_u32 s48, 1
    s_cselect_b32 s49, s45, s46
    s_and_b32 s25, s24, 1
    s_lshr_b32 s26, s24, 1
    s_sub_u32 s44, s24, 8
    s_cmp_ge_u32 s24, 8
    s_cselect_b32 s26, s44, s26
    s_and_b32 s44, s26, 1
    s_and_b32 s51, s44, s48
    s_lshr_b32 s43, s26, 1
    s_andn2_b32 s46, s44, s48
    s_lshl_b32 s46, s46, 6
    s_add_u32 s46, s46, s49
    s_lshl_b32 s47, s43, 6
    s_add_u32 s47, s47, s50
    s_mov_b32 s53, 3456
    s_cmp_eq_u32 s51, 1
    s_cselect_b32 s52, s47, s46
    s_cselect_b32 s53, 1280, s53
    s_lshl_b32 s52, s52, 1
    s_lshl_b32 s31, s53, 3
    s_lshl_b32 s32, s53, 6
    v_lshrrev_b32 {v(t0)}, 3, {v(vL)}
    v_and_b32 {v(t1)}, 7, {v(vL)}
    s_lshl_b32 s44, s27, 7
    s_lshl_b32 s45, s26, 5
    s_add_u32 s44, s44, s45
    v_add_u32 {v(t2)}, s44, {v(t0)}
    v_mul_u32_u24 {v(t2)}, 1280, {v(t2)}
    v_lshrrev_b32 {v(t3)}, 1, {v(t0)}
    v_xor_b32 {v(t3)}, {v(t3)}, {v(t1)}
    v_lshl_add_u32 {v(vXD)}, {v(t3)}, 4, {v(t2)}
    v_xor_b32 {v(t3)}, 4, {v(t3)}
    v_lshl_add_u32 {v(vXD + 1)}, {v(t3)}, 4, {v(t2)}
    v_add_u32 {v(vXD + 1)}, {8 * 1280}, {v(vXD + 1)}
    v_mul_lo_u32 {v(t2)}, {v(t0)}, s53
    v_lshrrev_b32 {v(t3)}, 1, {v(t1)}
    v_and_b32 {v(t4)}, 2, {v(t0)}
    v_xor_b32 {v(t3)}, {v(t3)}, {v(t4)}
    v_and_b32 {v(t4)}, 1, {v(t1)}
    v_lshl_add_u32 {v(t2)}, {v(t4)}, 4, {v(t2)}
    v_add_u32 {v(t2)}, s52, {v(t2)}
    v_lshl_add_u32 {v(vWD)}, {v(t3)}, 5, {v(t2)}
    v_xor_b32 {v(t3)}, 1, {v(t3)}
    v_lshl_add_u32 {v(vWD + 1)}, {v(t3)}, 5, {v(t2)}
    s_lshl_b32 s36, s26, 12
    s_mul_i32 s37, s26, 24576
    s_add_u32 s37, s37, {LDS_W}
    s_lshl_b32 s33, s53, 5
    s_mul_i32 s33, s33, s25
    s_lshl_b32 s44, s25, 12
    s_add_u32 s35, s37, s44
    s_bfe_u32 s44, s2, 0x30003
    s_lshr_b32 s45, s2, 6
    s_add_u32 s44, s44, s45
    s_and_b32 s100, s44, {PERM}
    s_xor_b32 s45, s100, 1
    s_mul_i32 s38, s100, s32
    s_mul_i32 s39, s45, s32
    s_mov_b32 s10, 2621440
    s_mov_b32 s11, 0x20000
    s_mov_b32 s14, 2211840
    s_mov_b32 s15, 0x20000
    s_cmp_ge_u32 s24, 8
    s_cbranch_scc1 {L_aux}
    s_cmp_eq_u32 s43, 1
    s_waitcnt lgkmcnt(0)
    s_cselect_b32 s12, s82, s80
    s_cselect_b32 s13, s83, s81
    s_cmp_eq_u32 s51, 1
    s_cselect_b32 s12, s70, s12
    s_cselect_b32 s13, s71, s13
    s_cselect_b32 s14, 819200, s14
    ''')
    def c_start(c):
        for e in range(4):
            a(f'''
            s_add_u32 m0, s35, {c * 8192 + e * 1024}
            s_add_u32 s34, s33, s{38 + c}
            buffer_load_dwordx4 {v(vWD + (e & 1))}, s[12:15], s34 offen lds
            ''')
            if e < 3:
                a('s_add_u32 s33, s33, s31')
            elif c == 0:
                a('s_mul_i32 s44, s31, 3\ns_sub_u32 s33, s33, s44')
    c_start(0)
    if not LATE1:
        c_start(1)
    L_com = a.label('common')
    a(f'''
    s_mov_b32 s8, s68
    s_mov_b32 s9, s69
    s_mov_b32 s16, s72
    s_mov_b32 s17, s73
    s_mov_b32 s18, 25600
    s_mov_b32 s19, 0x20000
    v_mov_b32 {v(vKD)}, 0
    s_branch {L_com}
    {L_aux}:
    s_setprio {PRIO1}
    s_cmp_lt_u32 s28, 8
    s_cselect_b32 s54, 1, 0
    s_cmp_lt_u32 s26, 3
    s_cselect_b32 s40, s54, 0
    s_lshl_b32 s44, s26, 10
    s_add_u32 s38, s44, {LDS_KV}
    v_lshl_add_u32 {v(vKD)}, {v(vL)}, 4, s44
    s_mov_b32 s18, 25600
    s_mov_b32 s19, 0x20000
    s_lshl_b32 s46, s100, 7
    s_lshl_b32 s57, s45, 7
    s_mul_i32 s58, s100, 2560
    s_mul_i32 s59, s45, 2560
    s_bitcmp1_b32 s28, 2
    s_waitcnt lgkmcnt(0)
    s_mov_b32 s8, s68
    s_mov_b32 s9, s69
    s_cselect_b32 s16, s74, s72
    s_cselect_b32 s17, s75, s73
    ''')
    def a_start(c):
        for e in range(4):
            a(f'''
            s_add_u32 m0, s36, {LDS_X + c * 16384 + e * 1024}
            s_add_u32 s34, s{(46, 57)[c]}, {(e >> 1) * 16 * 1280}
            buffer_load_dwordx4 {v(vXD + (e & 1))}, s[8:11], s34 offen lds
            ''')
        lab = a.label('nokv')
        a(f'''
        s_cmp_eq_u32 s40, 0
        s_cbranch_scc1 {lab}
        s_add_u32 m0, s38, {c * 3072}
        s_nop 0
        buffer_load_dwordx4 {v(vKD)}, s[16:19], s{58 + c} offen lds
        {lab}:
        ''')
    a_start(0)
    if not LATE1:
        a_start(1)
    a(f'''
    s_cmp_eq_u32 s43, 1
    s_cselect_b32 s12, s82, s80
    s_cselect_b32 s13, s83, s81
    s_cmp_eq_u32 s51, 1
    s_cselect_b32 s12, s70, s12
    s_cselect_b32 s13, s71, s13
    s_cselect_b32 s14, 819200, s14
    {L_com}:
    s_mov_b32 s62, 0
    s_mov_b32 s63, -1
    s_and_b32 s44, s2, 7
    s_lshl_b32 s44, s44, 2
    s_bfe_u32 s46, s2, 0x20003
    s_add_u32 s29, s44, s46
    s_lshr_b32 s30, s2, 5
    ''')
    srd(a, 20, 78, WS_USED)
    srd(a, 64, 90, 2621440)
    if asmlib.STAMPS:
        a('s_mov_b32 s86, s88\ns_mov_b32 s87, s89')
    WDP = 86 if asmlib.STAMPS else 88
    if asmlib.STAMPS:
        a(f'''
        s_mov_b32 s88, s78
        s_mov_b32 s89, s79
        s_mov_b32 s90, 0x2000000
        s_mov_b32 s91, 0x20000
        s_mul_i32 s92, s2, 12
        s_add_u32 s92, s92, s24
        s_lshl_b32 s92, s92, 8
        s_add_u32 s92, s92, {asmlib.STAMP_OFF}
        ''')
    stamp(a, 0, early=True)
    stamp(a, 24)
    L_aux2 = a.label('aux2')
    a(f'''
    s_cmp_ge_u32 s24, 8
    s_cbranch_scc1 {L_aux2}
    ''')
    compute_wave(a, vL, vH, vR, L_end, c_start)
    a(f'{L_aux2}:')
    aux_wave(a, vL, vH, vR, L_end, WDP, a_start)
    a(f'''
    {L_end}:
    s_endpgm
    ''')
    return a.text()


def compute_wave(a, vL, vH, vR, L_end, c_start):
    al = Alloc(4, 168)
    T = al('T', 8, 4)
    ACC = al('acc', 64, 4)
    XF = al('xf', 32, 4)
    WF = al('wf', 16, 4)
    vXA = al('xa', 2)
    vWA = al('wa', 4)
    assert al.p == 130
    t0, t1, t2, t3, t4 = T, T + 1, T + 2, T + 3, T + 4
    a.c('=========== compute wave: phase 1 ===========')
    CR = 132
    XR = 132
    U = 160
    u0, u1, u2, u3, u4, u5 = range(U, U + 6)
    W4 = 144
    vN = 130
    srd(a, 4, 76, 256)

    a(f'''
    s_lshr_b32 s44, s30, 2
    s_lshl_b32 s46, s29, 1
    s_add_u32 s46, s46, s44
    s_and_b32 s44, s30, 3
    s_lshl_b32 s44, s44, 3
    s_add_u32 s45, s44, s24
    s_mul_i32 s37, s46, 40960
    s_add_u32 s37, s37, {OF_OFF}
    s_lshl_b32 s36, s45, 10
    s_add_u32 s36, s36, s37
    s_lshl_b32 s44, s45, 8
    s_add_u32 s37, s37, s44
    s_add_u32 s37, s37, 32768
    ''')
    PZ = 152
    poison = [f'v_mov_b32 {v(PZ + q)}, -1' for q in range(4)] + [
        f'v_lshlrev_b32 {v(u4)}, 4, {v(vL)}', f'v_lshlrev_b32 {v(u5)}, 2, {v(vL)}',
        f'buffer_store_dwordx4 {v(PZ, 4)}, {v(u4)}, s[20:23], s36 offen sc1',
        f'buffer_store_dword {v(PZ)}, {v(u5)}, s[20:23], s37 offen sc1']

    def lines(txt):
        return [x.strip() for x in txt.split(chr(10)) if x.strip()]

    def load_cs():
        f = lines(f'''
        s_mul_i32 s44, s27, 40
        v_lshrrev_b32 {v(u1)}, 3, {v(vL)}
        v_add_u32 {v(u1)}, s44, {v(u1)}
        v_mul_lo_u32 {v(u2)}, {v(u1)}, s53
        v_and_b32 {v(u1)}, 7, {v(vL)}
        v_lshl_add_u32 {v(u2)}, {v(u1)}, 4, {v(u2)}
        s_mov_b32 s34, s52
        ''')
        for t in range(5):
            f.append([f'buffer_load_dwordx4 {v(CR + 4 * t, 4)}, {v(u2)}, s[12:15], s34 offen', 's_add_u32 s34, s34, s31'])
        return f

    def load_rows():
        f = lines(f'''
        s_lshl_b32 s44, s27, 7
        s_lshl_b32 s45, s28, 3
        s_add_u32 s44, s44, s45
        s_lshl_b32 s45, s26, 1
        s_add_u32 s55, s44, s45
        v_add_u32 {v(u0)}, s55, {v(vH)}
        v_mul_u32_u24 {v(u0)}, 1280, {v(u0)}
        v_lshl_add_u32 {v(u0)}, {v(vR)}, 3, {v(u0)}
        ''')
        for t in range(5):
            f.append(f'buffer_load_dwordx2 {v(XR + 2 * t, 2)}, {v(u0)}, s[8:11], 0 offen offset:{256 * t}')
        return f

    def fill_cs():
        A8 = 152
        f = []
        for q in range(4):
            f += [f'v_lshlrev_b32 {v(A8 + 2 * q)}, 16, {v(CR + q)}', f'v_and_b32 {v(A8 + 2 * q + 1)}, 0xffff0000, {v(CR + q)}']
        for t in range(1, 5):
            for q in range(4):
                ta, tb = (u2, u3) if q & 1 else (u4, u5)
                f += lines(f'''
                v_lshlrev_b32 {v(ta)}, 16, {v(CR + 4 * t + q)}
                v_and_b32 {v(tb)}, 0xffff0000, {v(CR + 4 * t + q)}
                v_add_f32 {v(A8 + 2 * q)}, {v(A8 + 2 * q)}, {v(ta)}
                v_add_f32 {v(A8 + 2 * q + 1)}, {v(A8 + 2 * q + 1)}, {v(tb)}
                ''')
        f.append('s_nop 1')
        f += [f'v_permlane32_swap_b32 {v(A8 + q)}, {v(A8 + 4 + q)}' for q in range(4)]
        f.append('s_nop 1')
        f += [f'v_add_f32 {v(A8 + q)}, {v(A8 + q)}, {v(A8 + 4 + q)}' for q in range(4)]
        f.append('s_nop 1')
        f += [f'v_permlane16_swap_b32 {v(A8 + q)}, {v(A8 + 2 + q)}' for q in range(2)]
        f.append('s_nop 1')
        f += [f'v_add_f32 {v(A8 + q)}, {v(A8 + q)}, {v(A8 + 2 + q)}' for q in range(2)]
        f += lines(f'''
        s_nop 1
        v_add_f32_dpp {v(A8)}, {v(A8)}, {v(A8)} row_ror:8 row_mask:0xf bank_mask:0xf
        v_add_f32_dpp {v(A8 + 1)}, {v(A8 + 1)}, {v(A8 + 1)} row_ror:8 row_mask:0xf bank_mask:0xf
        s_mov_b32 vcc_lo, 0xff00ff00
        s_mov_b32 vcc_hi, 0xff00ff00
        v_cndmask_b32 {v(u0)}, {v(A8)}, {v(A8 + 1)}, vcc
        v_cvt_pk_bf16_f32 {v(u1)}, {v(u0)}, {v(u0)}
        v_and_b32 {v(u1)}, 0xffff0000, {v(u1)}
        v_sub_f32 {v(u1)}, {v(u0)}, {v(u1)}
        v_cvt_pk_bf16_f32 {v(u0)}, {v(u0)}, {v(u1)}
        v_and_b32 {v(u1)}, 7, {v(vL)}
        v_lshl_add_u32 {v(u1)}, {v(u1)}, 1, {v(vH)}
        v_bfe_u32 {v(u2)}, {v(vL)}, 4, 1
        v_lshl_add_u32 {v(u1)}, {v(u1)}, 1, {v(u2)}
        v_bfe_u32 {v(u2)}, {v(vL)}, 3, 1
        v_lshl_add_u32 {v(u1)}, {v(u1)}, 1, {v(u2)}
        v_and_b32 {v(u2)}, 15, {v(u1)}
        v_lshrrev_b32 {v(u3)}, 4, {v(u1)}
        s_and_b32 s44, s26, 1
        s_andn2_b32 s44, s44, s48
        s_lshl_b32 s44, s44, 7
        s_lshr_b32 s45, s26, 1
        s_lshl_b32 s45, s45, 4
        s_add_u32 s44, s44, s45
        v_lshl_add_u32 {v(u4)}, {v(u3)}, 5, s44
        s_add_u32 s44, s26, 3
        s_lshl_b32 s44, s44, 5
        v_lshl_add_u32 {v(u5)}, {v(u3)}, 4, s44
        s_cmp_eq_u32 s51, 1
        s_cselect_b64 vcc, -1, 0
        v_cndmask_b32 {v(u4)}, {v(u4)}, {v(u5)}, vcc
        v_add_lshl_u32 {v(u2)}, {v(u2)}, {v(u4)}, 2
        s_lshl_b32 s44, s28, 14
        s_lshl_b32 s45, s27, 10
        s_add_u32 s44, s44, s45
        s_add_u32 s44, s44, {CSW}
        buffer_store_dword {v(u0)}, {v(u2)}, s[20:23], s44 offen sc1
        s_lshl_b32 s46, s27, 2
        s_add_u32 s46, s46, s26
        s_lshl_b32 s46, s46, 7
        s_lshl_b32 s45, s28, 13
        s_add_u32 s46, s46, s45
        s_add_u32 s56, s46, {F_CS}
        ''')
        return f

    def fill_rows():
        f = [f'v_mov_b32 {v(u0)}, 0', f'v_mov_b32 {v(u1)}, 0']
        for t in range(10):
            f += lines(f'''
            v_lshlrev_b32 {v(u2)}, 16, {v(XR + t)}
            v_and_b32 {v(u3)}, 0xffff0000, {v(XR + t)}
            v_add_f32 {v(u0)}, {v(u0)}, {v(u2)}
            v_fmac_f32 {v(u1)}, {v(u2)}, {v(u2)}
            v_add_f32 {v(u0)}, {v(u0)}, {v(u3)}
            v_fmac_f32 {v(u1)}, {v(u3)}, {v(u3)}
            ''')
        for ror in (8, 4, 2, 1):
            f += lines(f'''
            s_nop 1
            v_add_f32_dpp {v(u0)}, {v(u0)}, {v(u0)} row_ror:{ror} row_mask:0xf bank_mask:0xf
            v_add_f32_dpp {v(u1)}, {v(u1)}, {v(u1)} row_ror:{ror} row_mask:0xf bank_mask:0xf
            ''')
        f += lines(f'''
        v_mov_b32 {v(u2)}, {v(u0)}
        v_mov_b32 {v(u3)}, {v(u1)}
        s_nop 1
        v_permlane16_swap_b32 {v(u0)}, {v(u2)}
        v_permlane16_swap_b32 {v(u1)}, {v(u3)}
        s_mov_b32 s44, {f2u(1.0 / 640.0)}
        s_mov_b32 s45, {f2u(1e-5)}
        v_add_f32 {v(u0)}, {v(u0)}, {v(u2)}
        v_add_f32 {v(u1)}, {v(u1)}, {v(u3)}
        v_mul_f32 {v(u0)}, s44, {v(u0)}
        v_mul_f32 {v(u1)}, s44, {v(u1)}
        v_fma_f32 {v(u1)}, -{v(u0)}, {v(u0)}, {v(u1)}
        v_max_f32 {v(u1)}, 0, {v(u1)}
        v_cvt_pk_bf16_f32 {v(W4)}, -{v(u0)}, -{v(u0)}
        v_cvt_pk_bf16_f32 {v(u1)}, {v(u1)}, {v(u1)}
        v_and_b32 {v(u1)}, 0xffff0000, {v(u1)}
        v_add_f32 {v(u1)}, s45, {v(u1)}
        v_cvt_pk_bf16_f32 {v(u1)}, {v(u1)}, {v(u1)}
        v_and_b32 {v(u1)}, 0xffff0000, {v(u1)}
        v_sqrt_f32 {v(u1)}, {v(u1)}
        v_mov_b32 {v(W4 + 3)}, 0
        v_cvt_pk_bf16_f32 {v(u1)}, {v(u1)}, {v(u1)}
        v_and_b32 {v(u1)}, 0xffff0000, {v(u1)}
        v_rcp_f32 {v(W4 + 1)}, {v(u1)}
        v_mul_f32 {v(W4 + 2)}, {v(u1)}, {v(u1)}
        v_lshlrev_b32 {v(u2)}, 4, {v(vH)}
        s_lshl_b32 s44, s55, 4
        s_add_u32 s44, s44, {ROWW}
        ''')
        f.append(['s_mov_b32 exec_lo, 1', 's_mov_b32 exec_hi, 1',
                  f'buffer_store_dwordx4 {v(W4, 4)}, {v(u2)}, s[20:23], s44 offen sc1', 's_mov_b64 exec, -1'])
        f += lines(f'''
        s_lshl_b32 s44, s28, 2
        s_add_u32 s44, s44, s26
        s_lshl_b32 s44, s44, 7
        s_lshl_b32 s45, s27, 13
        s_add_u32 s44, s44, s45
        s_add_u32 s56, s44, {F_ST}
        ''')
        return f

    stamp(a, 22)
    a(f'''
    v_and_b32 {v(t0)}, 15, {v(vL)}
    v_lshrrev_b32 {v(t1)}, 4, {v(vL)}
    v_lshrrev_b32 {v(t2)}, 1, {v(t0)}
    v_xor_b32 {v(t2)}, {v(t2)}, {v(t1)}
    v_lshlrev_b32 {v(t0)}, 7, {v(t0)}
    s_lshl_b32 s44, s25, 13
    v_add_u32 {v(t0)}, s44, {v(t0)}
    v_lshl_add_u32 {v(vXA)}, {v(t2)}, 4, {v(t0)}
    v_xor_b32 {v(t2)}, 4, {v(t2)}
    v_lshl_add_u32 {v(vXA + 1)}, {v(t2)}, 4, {v(t0)}
    v_bfe_u32 {v(t2)}, {v(vL)}, 2, 2
    v_lshl_add_u32 {v(t0)}, {v(t1)}, 3, {v(t2)}
    v_lshlrev_b32 {v(t0)}, 7, {v(t0)}
    v_and_b32 {v(t3)}, 3, {v(vL)}
    v_lshl_add_u32 {v(t0)}, {v(t3)}, 3, {v(t0)}
    v_and_b32 {v(t2)}, 2, {v(t2)}
    v_and_b32 {v(t1)}, 1, {v(t1)}
    v_xor_b32 {v(t1)}, {v(t1)}, {v(t2)}
    s_lshr_b32 s44, s26, 1
    s_and_b32 s57, s44, s48
    ''')
    for t in range(4):
        a(f'''
        s_lshl_b32 s44, s26, 1
        s_add_u32 s45, s44, {t >> 1}
        s_and_b32 s46, s45, 3
        s_lshr_b32 s45, s45, 2
        s_add_u32 s45, s45, {2 * (t & 1)}
        s_sub_u32 s44, s44, 3
        s_cmp_eq_u32 s57, 1
        s_cselect_b32 s45, s44, s45
        s_cselect_b32 s46, {t}, s46
        s_mul_i32 s45, s45, 24576
        s_add_u32 s45, s45, {LDS_W}
        v_xor_b32 {v(t2)}, s46, {v(t1)}
        v_lshl_add_u32 {v(t2)}, {v(t2)}, 5, {v(t0)}
        v_add_u32 {v(vWA + t)}, s45, {v(t2)}
        ''')

    def m16(d, A, B, first=False):
        return f'v_mfma_f32_16x16x32_bf16 {v(d, 4)}, {v(A, 4)}, {v(B, 4)}, ' + ('0' if first else v(d, 4))

    def xrd(g):
        c, sI = divmod(g, 2)
        return [f'ds_read_b128 {v(XF + 16 * (g & 1) + 4 * rt, 4)}, {v(vXA + sI)} offset:{LDS_X + (c % 3) * 16384 + 2048 * rt}' for rt in range(4)]

    def wrd(g, t):
        c, sI = divmod(g, 2)
        return [f'ds_read_b64_tr_b16 {v(WF + 4 * t + 2 * z, 2)}, {v(vWA + t)} offset:{(c % 3) * 8192 + 4096 * sI + 512 * z}' for z in range(2)]

    def tile(g, t):
        return [m16(ACC + 16 * t + 4 * rt, WF + 4 * t, XF + 16 * (g & 1) + 4 * rt, g == 0) for rt in range(4)]

    def chunk(c, fill=()):
        a.c(f'chunk {c}')
        if c:
            a('s_waitcnt lgkmcnt(0)')
        a('s_barrier')
        if not FEWST or c in (0, 1, 2, 9):
            stamp(a, 1 + c)
        if c == 9:
            lab = a.label('nqp')
            a(f's_cmp_eq_u32 s57, 0\ns_cbranch_scc1 {lab}\ns_setprio 2\n{lab}:')
        seq = []

        def rest(g, waits):
            pend = (wrd(g + 1, 0) + xrd(g + 1)) if g + 1 < 20 else []
            for t in range(1, 4):
                ms = tile(g, t)
                for q, m_ in enumerate(ms):
                    pre_ = [f's_waitcnt lgkmcnt({(0, 4, 10, 10)[t]})'] if (waits and q == 0) else []
                    ex = pend[2 * q:2 * q + 2] if t == 1 else []
                    if q == 3 and g + 1 < 20:
                        ex = ex + wrd(g + 1, t)
                    seq.append((pre_, m_, ex))
        if c > 0:
            rest(2 * c - 1, False)
        else:
            emit(a, wrd(0, 0) + xrd(0) + wrd(0, 1) + wrd(0, 2) + wrd(0, 3))
        g = 2 * c
        for q, m_ in enumerate(tile(g, 0)):
            seq.append((['s_waitcnt lgkmcnt(6)'] if q == 0 else [], m_, []))
        rest(g, True)
        for q, m_ in enumerate(tile(g + 1, 0)):
            seq.append((['s_waitcnt lgkmcnt(6)'] if q == 0 else [], m_, []))
        n, k_ = len(fill), len(seq)
        for q, (pre_, m_, ex) in enumerate(seq):
            emit(a, pre_)
            a(m_)
            emit(a, ex)
            emit(a, fill[(q * n) // k_:((q + 1) * n) // k_])

    if LATE1:
        c_start(1)
    lab1, lab2 = a.label('rowv'), a.label('join')
    a(f's_cmp_eq_u32 s25, 1\ns_cbranch_scc1 {lab1}')
    for var, (ld, fl) in enumerate(((load_cs(), fill_cs()), (load_rows(), fill_rows()))):
        qp = [] if var == 0 else lines(f'''
        s_mul_i32 s44, s27, 163840
        s_mul_i32 s45, s28, 10240
        s_add_u32 s44, s44, s45
        s_mul_i32 s45, s26, 2560
        s_add_u32 s44, s44, s45
        s_add_u32 s44, s44, {QF_OFF}
        v_lshlrev_b32 {v(u5)}, 3, {v(vL)}
        buffer_store_dwordx4 {v(PZ, 4)}, {v(u4)}, s[20:23], s44 offen sc1
        buffer_store_dwordx4 {v(PZ, 4)}, {v(u4)}, s[20:23], s44 offen offset:1024 sc1
        buffer_store_dwordx2 {v(PZ, 2)}, {v(u5)}, s[20:23], s44 offen offset:2048 sc1
        ''')
        nl = [f'buffer_load_dword {v(vN)}, off, s[4:7], 0 sc1']
        pz0 = poison + qp if PZ0 else []
        fl = (fl + nl) if PZ0 else (poison + qp + fl + nl)
        if SLC == 0:
            emit(a, ld)
        a(f's_waitcnt vmcnt({9 if SLC == 0 else 4})')
        chunk(0, pz0)
        a(f's_waitcnt vmcnt({(5 if SLC == 0 else 0) + ((2, 5)[var] if PZ0 else 0)})')
        n = len(fl)
        f0 = SLC + SLG
        for c in range(1, f0 + SPN):
            if c == SLC:
                chunk(c, ld)
            elif c >= f0:
                q = c - f0
                chunk(c, ([f's_waitcnt vmcnt({(2, 5)[var] if PZ0 else 0})'] if q == 0 else []) + fl[(q * n) // SPN:((q + 1) * n) // SPN])
            else:
                chunk(c)
        if var == 0:
            a(f's_branch {lab2}\n{lab1}:')
    a(f'{lab2}:')
    chunk(f0 + SPN)
    Lp, Lq = a.label('cnp'), a.label('cnd')
    a(f'''
    s_mov_b32 s93, {POLL_MAX}
    {Lp}:
    s_waitcnt vmcnt(0)
    v_readfirstlane_b32 s98, {v(vN)}
    s_cmp_lg_u32 s98, 0
    s_cbranch_scc1 {Lq}
    s_sub_u32 s93, s93, 1
    s_cbranch_scc1 {Lq}
    buffer_load_dword {v(vN)}, off, s[4:7], 0 sc1
    s_branch {Lp}
    {Lq}:
    s_xor_b32 s99, s98, {NONCE_X}
    ''')
    flag_store(a, 's56', U)
    RC, CSF, vS16 = 132, 148, 131
    pre = lines(f'''
    v_and_b32 {v(t2)}, 15, {v(vL)}
    v_lshrrev_b32 {v(t3)}, 4, {v(vL)}
    s_lshl_b32 s44, s25, 10
    s_add_u32 s44, s44, {ROWC_A}
    v_lshl_add_u32 {v(t0)}, {v(t2)}, 4, s44
    s_lshl_b32 s44, s26, 8
    s_add_u32 s44, s44, {CS_A}
    v_lshl_add_u32 {v(t1)}, {v(t2)}, 2, s44
    v_lshl_add_u32 {v(t1)}, {v(t3)}, 12, {v(t1)}
    v_lshlrev_b32 {v(vS16)}, 4, {v(t2)}
    v_lshl_add_u32 {v(vS16)}, {v(t3)}, 9, {v(vS16)}
    ''')
    pre += [f'ds_read_b128 {v(RC + 4 * rt, 4)}, {v(t0)} offset:{256 * rt}' for rt in range(4)]
    for t in range(4):
        for z in range(2):
            pre.append(f'ds_read2st64_b32 {v(CSF + 4 * t + 2 * z, 2)}, {v(t1)} offset0:{8 * z} offset1:{8 * z + 4}')
        if t < 3:
            pre.append(f'v_add_u32 {v(t1)}, 64, {v(t1)}')
    for c in range(f0 + SPN + 1, 10):
        chunk(c, pre if c == 9 else ())
    a(f'''
    s_lshl_b32 s44, s24, 2
    s_add_u32 s44, s44, {CD_A}
    v_mov_b32 {v(t0)}, s44
    v_mov_b32 {v(t1)}, s98
    s_waitcnt lgkmcnt(0)
    ds_write_b32 {v(t0)}, {v(t1)}
    ''')
    NEG = XF
    HH = 148
    ms = tile(19, 1) + tile(19, 2) + tile(19, 3)
    mv = [f'v_mov_b32 {v(NEG + 4 * rt + r)}, {v(RC + 4 * rt)}' for rt in range(4) for r in range(4)]
    for q, m_ in enumerate(ms):
        a(m_)
        emit(a, mv[(q * 16) // 12:((q + 1) * 16) // 12])
    stamp(a, 12)
    a(f'''
    s_mov_b32 s46, {f2u(C0)}
    s_mov_b32 s47, {f2u(C1)}
    ''')
    for rt in range(4):
        for t in range(4):
            a(m16(ACC + 16 * t + 4 * rt, CSF + 4 * t, NEG + 4 * rt))
    L_q = a.label('qepi')
    L_ed = a.label('epidone')
    a(f'''
    s_lshl_b32 s44, s27, 2
    s_lshl_b32 s45, s25, 1
    s_add_u32 s60, s44, s45
    s_cmp_eq_u32 s57, 1
    s_cbranch_scc1 {L_q}
    s_lshr_b32 s44, s49, 4
    s_lshl_b32 s45, s26, 1
    s_add_u32 s44, s44, s45
    s_mul_i32 s42, s60, 108
    s_add_u32 s42, s42, s44
    s_lshl_b32 s42, s42, 10
    s_add_u32 s43, s42, {108 * 1024}
    ''')
    E1, E2, KC = XF + 16, WF, T
    for rt in range(4):
        TT = E1 + 8 * (rt % 2)
        PP = E2 + 8 * (rt % 2)
        G_ = lambda i: ACC + 32 * (i >> 2) + 4 * rt + (i & 3)
        rho = RC + 4 * rt + 1
        a(f'''
        v_mul_f32 {v(KC)}, s46, {v(rho)}
        v_mul_f32 {v(KC + 1)}, s46, {v(rho)}
        v_mul_f32 {v(KC + 4)}, {v(rho)}, {v(rho)}
        v_mov_b32 {v(RC + 4 * rt + 3)}, {v(RC + 4 * rt + 2)}
        v_mul_f32 {v(KC + 4)}, {v(KC + 4)}, {v(rho)}
        v_mul_f32 {v(KC + 2)}, s47, {v(KC + 4)}
        v_mul_f32 {v(KC + 3)}, s47, {v(KC + 4)}
        ''')
        rc = v(RC + 4 * rt + 2, 2)
        for i in range(0, 8, 2):
            a(f'v_pk_mul_f32 {v(TT + i, 2)}, {v(G_(i), 2)}, {v(G_(i), 2)}')
        for i in range(0, 8, 2):
            a(f'v_pk_fma_f32 {v(TT + i, 2)}, {v(TT + i, 2)}, {v(KC + 2, 2)}, {v(KC, 2)}')
        for i in range(0, 8, 2):
            a(f'v_pk_mul_f32 {v(TT + i, 2)}, {v(TT + i, 2)}, {v(G_(i), 2)}')
        for i in range(8):
            a(f'v_exp_f32 {v(TT + i)}, {v(TT + i)}')
        for i in range(0, 8, 2):
            a(f'v_pk_mul_f32 {v(PP + i, 2)}, {v(G_(i), 2)}, {v(G_(i) + 16, 2)}')
        for i in range(0, 8, 2):
            a(f'v_pk_fma_f32 {v(TT + i, 2)}, {v(TT + i, 2)}, {rc}, {rc}')
        for i in range(8):
            a(f'v_rcp_f32 {v(TT + i)}, {v(TT + i)}')
        a('s_nop 0')
        for i in range(0, 8, 2):
            a(f'v_pk_mul_f32 {v(PP + i, 2)}, {v(PP + i, 2)}, {v(TT + i, 2)}')
        for i in range(4):
            a(f'v_cvt_pk_bf16_f32 {v(HH + 4 * rt + i)}, {v(PP + 2 * i)}, {v(PP + 2 * i + 1)}')
    a(f's_branch {L_ed}')
    a(f'{L_q}:')
    a(f'''
    s_sub_u32 s44, s26, 2
    s_lshl_b32 s44, s44, 6
    s_add_u32 s44, s44, s50
    s_lshl_b32 s44, s44, 6
    s_add_u32 s44, s44, {QF_OFF}
    s_mov_b32 s45, {f2u(QSC)}
    s_mul_i32 s46, s60, 40960
    s_add_u32 s46, s46, s44
    s_add_u32 s47, s46, 40960
    ''')
    for rt in range(4):
        a(f'v_mul_f32 {v(T + rt)}, s45, {v(RC + 4 * rt + 1)}')
    for rt in range(4):
        for pz in range(2):
            O_ = E1 + 4 * ((2 * rt + pz) % 8)
            regs = [ACC + 16 * (2 * pz + (i >> 2)) + 4 * rt + (i & 3) for i in range(8)]
            for r_ in regs:
                a(f'v_mul_f32 {v(r_)}, {v(r_)}, {v(T + rt)}')
            for i in range(4):
                a(f'v_cvt_pk_bf16_f32 {v(O_ + i)}, {v(regs[2 * i])}, {v(regs[2 * i + 1])}')
            a(f'buffer_store_dwordx4 {v(O_, 4)}, {v(vS16)}, s[20:23], s{46 + (rt >> 1)} offen offset:{2048 * pz + 256 * (rt & 1)} sc1')
    a(f'{L_ed}:')
    stamp(a, 13)

    a.c('=========== compute wave: attention ===========')
    al3 = Alloc(4, 168)
    T = al3('T', 16, 4)
    S = al3('S', 32, 4)
    O = al3('O', 16, 4)
    V1 = al3('V1', 4, 4)
    V2 = al3('V2', 4, 4)
    Q1 = al3('Q1', 4, 4)
    K1 = al3('K1', 8, 4)
    K2 = al3('K2', 8, 4)
    P = al3('P', 16, 4)
    Q2 = al3('Q2', 2, 2)
    vK = al3('vK')
    vK2 = al3('vK2')
    a(f'''
    s_lshl_b32 s44, s27, 1
    s_add_u32 s44, s44, s25
    s_lshl_b32 s44, s44, 13
    s_lshl_b32 s45, s28, 2
    s_add_u32 s45, s45, s26
    s_lshl_b32 s45, s45, 7
    s_add_u32 s44, s44, s45
    s_add_u32 s41, s44, {F_QH}
    s_nop 1
    ''')
    for i in range(16):
        a(f'v_mov_b32 {v(O + i)}, 0')
    for i in range(4):
        a(f'v_mov_b32 {v(V1 + i)}, 0')
        a(f'v_mov_b32 {v(V2 + i)}, 0')
    a(f'''
    s_mov_b32 s45, {KVR}
    v_lshl_add_u32 {v(vK)}, {v(vL)}, 4, s45
    v_lshl_add_u32 {v(vK2)}, {v(vL)}, 3, s45
    s_mul_i32 s45, s24, 5
    v_lshlrev_b32 {v(T + 4)}, 4, {v(vR)}
    s_lshr_b32 s44, s30, 2
    s_lshl_b32 s46, s29, 1
    s_add_u32 s44, s44, s46
    s_mul_i32 s44, s44, 40960
    s_and_b32 s46, s30, 3
    s_mul_i32 s46, s46, 10240
    s_add_u32 s44, s44, s46
    s_add_u32 s40, s44, {QF_OFF}
    ''')
    for z, (dq, useh) in enumerate(((0, 1), (2, 1), (4, 0))):
        a(f's_add_u32 s46, s45, {dq}')
        a(f'v_add_u32 {v(T + 5)}, s46, {v(vH)}' if useh else f'v_mov_b32 {v(T + 5)}, s46')
        a(f'''
        v_lshrrev_b32 {v(T + 6)}, 3, {v(T + 5)}
        v_lshl_add_u32 {v(T + 6)}, {v(T + 6)}, 11, {v(T + 4)}
        v_and_b32 {v(T + 7)}, 3, {v(T + 5)}
        v_lshl_add_u32 {v(T + 6)}, {v(T + 7)}, 9, {v(T + 6)}
        v_bfe_u32 {v(T + 5)}, {v(T + 5)}, 2, 1
        v_lshl_add_u32 {v(T + 13 + z)}, {v(T + 5)}, 3, {v(T + 6)}
        ''')
    a('s_setprio 0')
    for i in range(8):
        a(f'v_mov_b32 {v(P + 8 + i)}, 0')
    Lp, Lq = a.label('qp'), a.label('qpd')
    a(f'''
    s_mov_b32 s93, {OPOLL_MAX}
    {Lp}:
    buffer_load_dwordx2 {v(Q1, 2)}, {v(T + 13)}, s[20:23], s40 offen sc1
    buffer_load_dwordx2 {v(Q1 + 2, 2)}, {v(T + 14)}, s[20:23], s40 offen sc1
    buffer_load_dwordx2 {v(Q2, 2)}, {v(T + 15)}, s[20:23], s40 offen sc1
    s_waitcnt vmcnt(0)
    v_max3_u32 {v(T)}, {v(Q1)}, {v(Q1 + 1)}, {v(Q1 + 2)}
    v_max3_u32 {v(T + 1)}, {v(Q1 + 3)}, {v(Q2)}, {v(Q2 + 1)}
    v_max_u32 {v(T)}, {v(T)}, {v(T + 1)}
    v_cmp_eq_u32 vcc, -1, {v(T)}
    s_nop 1
    s_cmp_eq_u64 vcc, 0
    s_cbranch_scc1 {Lq}
    s_sub_u32 s93, s93, 1
    s_cbranch_scc1 {Lq}
    s_sleep {QSLEEP}
    s_branch {Lp}
    {Lq}:
    v_mov_b32 {v(T + 2)}, 0
    v_cndmask_b32 {v(Q2)}, {v(Q2)}, {v(T + 2)}, {HM}
    v_cndmask_b32 {v(Q2 + 1)}, {v(Q2 + 1)}, {v(T + 2)}, {HM}
    ''')
    stamp(a, 14)
    a('s_barrier')
    stamp(a, 15)
    o0, o1, o2 = tile_offs(0), tile_offs(1), tile_offs(2)
    a(f'''
    ds_read_b128 {v(K1, 4)}, {v(vK)} offset:{o0[0]}
    ds_read_b128 {v(K1 + 4, 4)}, {v(vK)} offset:{o1[0]}
    ds_read2st64_b64 {v(K2, 4)}, {v(vK2)} offset0:{o0[1] // 512} offset1:{o0[1] // 512 + 1}
    s_waitcnt lgkmcnt(0)
    ''')

    def set_m(mreg, offset):
        t0, t1, t2, t3 = T + 8, T + 9, T + 10, T + 11
        a(f'v_sub_f32 {v(t0)}, {f2u(-offset) if offset else 0}, {v(mreg)}')
        a(f'''
        v_cvt_pk_bf16_f32 {v(t1)}, {v(t0)}, {v(t0)}
        v_and_b32 {v(t2)}, 0xffff0000, {v(t1)}
        v_sub_f32 {v(t2)}, {v(t0)}, {v(t2)}
        v_cvt_pk_bf16_f32 {v(t1)}, {v(t0)}, {v(t2)}
        v_and_b32 {v(t3)}, 0xffff0000, {v(t1)}
        v_sub_f32 {v(t2)}, {v(t2)}, {v(t3)}
        v_mov_b32 {v(t3)}, 0
        v_cvt_pk_bf16_f32 {v(t2)}, {v(t2)}, {v(t3)}
        v_cndmask_b32 {v(Q2)}, {v(Q2)}, {v(t1)}, {HM}
        v_cndmask_b32 {v(Q2 + 1)}, {v(Q2 + 1)}, {v(t2)}, {HM}
        ''')

    def cross_half_max(reg):
        t = T + 12
        a(f'''
        v_mov_b32 {v(t)}, {v(reg)}
        s_nop 1
        v_permlane32_swap_b32 {v(reg)}, {v(t)}
        s_nop 1
        v_max_f32 {v(reg)}, {v(reg)}, {v(t)}
        ''')

    for t in range(2):
        a(mfma16(S + 16 * t, K1 + 4 * t, Q1))
    if not HEARLY:
        lab = a.label('nohst')
        a(f'''
        s_cmp_eq_u32 s57, 1
        s_cbranch_scc1 {lab}
        ''')
        for k in range(4):
            a(f'buffer_store_dwordx4 {v(HH + 4 * k, 4)}, {v(vS16)}, s[20:23], s{42 + (k >> 1)} offen offset:{256 * (k & 1)} sc1')
        a(f'{lab}:')
    a('s_nop 9')
    for t in range(2):
        a(mfma8(S + 16 * t, K2 + 2 * t, Q2, S + 16 * t))
    a('s_nop 11')
    m = T + 4
    for z in range(2):
        a(f'v_max3_f32 {v(m + z)}, {v(S + 16 * z)}, {v(S + 16 * z + 1)}, {v(S + 16 * z + 2)}')
    for i in range(3, 15, 2):
        for z in range(2):
            a(f'v_max3_f32 {v(m + z)}, {v(m + z)}, {v(S + 16 * z + i)}, {v(S + 16 * z + i + 1)}')
    a(f'v_max3_f32 {v(m)}, {v(m)}, {v(S + 15)}, {v(S + 31)}')
    a(f'v_max_f32 {v(m)}, {v(m)}, {v(m + 1)}')
    cross_half_max(m)
    set_m(m, M_OFFSET)
    a('s_nop 1')
    a(mfma16(S, K1, Q1))
    a(f'''
    ds_read_b128 {v(K1, 4)}, {v(vK)} offset:{o2[0]}
    s_mov_b32 s34, 4
    s_nop 7
    ''')
    a(mfma8(S, K2, Q2, S))
    a('s_nop 9')
    stamp(a, 16)

    def toff(tt):
        tt &= 15
        o = tile_offs(tt & 3)
        return [x + (tt >> 2) * CH_BYTES for x in o]

    def k2read(reg, tt):
        o = toff(tt)[1]
        assert o % 512 == 0
        return f'ds_read2st64_b64 {v(reg, 4)}, {v(vK2)} offset0:{o // 512} offset1:{o // 512 + 1}'

    L_hf, L_hb = a.label('hflag'), a.label('hback')

    def slot(t):
        Sx, Sn = S + 16 * (t & 1), S + 16 * ((t + 1) & 1)
        Px, Pp = P + 8 * (t & 1), P + 8 * ((t + 1) & 1)
        kt = t + 1
        kb = kt & 1
        k2 = K2 + 4 * ((kt >> 1) & 1) + 2 * (kt & 1)
        m_ = [mfma16(Sn, K1 + 4 * kb, Q1), mfma16(O, V1, Pp, O), mfma8(Sn, k2, Q2, Sn), mfma16(O, V2, Pp + 4, O)]
        after = [[], [], [], []]
        if t & 3 == 1:
            after[0] = ['s_barrier']
        after[0] += [f'ds_read_b128 {v(K1 + 4 * kb, 4)}, {v(vK)} offset:{toff(t + 3)[0]}', 's_waitcnt lgkmcnt(2)']
        after[1] = [f'ds_read_b128 {v(V1, 4)}, {v(vK)} offset:{toff(t)[2]}']
        if t & 1:
            after[1] += [k2read(K2 + 4 * (((t + 3) >> 1) & 1), t + 3)]
        after[2] += [f's_waitcnt lgkmcnt({3 if t & 1 else 2})']
        after[3] = [f'ds_read_b128 {v(V2, 4)}, {v(vK)} offset:{toff(t)[3]}']
        if t == 15:
            after[3] += ['s_sub_u32 s34, s34, 1']
        if t == HFLAG_T:
            after[3] += ['s_cmp_eq_u32 s34, 4', f's_cbranch_scc1 {L_hf}', f'{L_hb}:']
        val = []
        for i in range(8):
            val.append(f'v_exp_f32 {v(Sx + 2 * i)}, {v(Sx + 2 * i)}')
            val.append(f'v_exp_f32 {v(Sx + 2 * i + 1)}, {v(Sx + 2 * i + 1)}')
            if i > 0:
                val.append(f'v_cvt_pk_bf16_f32 {v(Px + i - 1)}, {v(Sx + 2 * i - 2)}, {v(Sx + 2 * i - 1)}')
        val.append(f'v_cvt_pk_bf16_f32 {v(Px + 7)}, {v(Sx + 14)}, {v(Sx + 15)}')
        groups = [val[0:5], val[5:11], val[11:17], val[17:24]]
        for g in range(4):
            a(m_[g])
            emit(a, after[g])
            emit(a, groups[g])

    a(k2read(K2 + 4, 2))
    L_loop = a.label('att')
    a('.p2align 6')
    a(f'{L_loop}:')
    for t in range(16):
        slot(t)
    a(f'''
    s_cmp_lg_u32 s34, 0
    s_cbranch_scc1 {L_loop}
    s_waitcnt lgkmcnt(0)
    ''')
    a(mfma16(O, V1, P + 8, O))
    a(mfma16(O, V2, P + 12, O))
    a(f'''
    v_lshlrev_b32 {v(T + 2)}, 4, {v(vL)}
    v_lshlrev_b32 {v(T + 3)}, 3, {v(vL)}
    v_mov_b32 {v(T + 9)}, 0x7f000000
    v_cndmask_b32 {v(T + 3)}, {v(T + 3)}, {v(T + 9)}, {HM}
    v_lshlrev_b32 {v(T + 4)}, 3, {v(vR)}
    v_lshl_add_u32 {v(T + 4)}, {v(vH)}, 9, {v(T + 4)}
    s_nop 6
    ''')
    stamp(a, 17)
    L_fb = a.label('fb')
    L_out = a.label('aout')
    a(f'''
    s_mov_b32 s44, {f2u(2.0 ** 120)}
    s_mov_b32 s45, {f2u(2.0 ** -103)}
    v_add_f32 {v(T)}, |{v(O)}|, |{v(O + 1)}|
    ''')
    for i in range(2, 12):
        a(f'v_add_f32 {v(T)}, {v(T)}, |{v(O + i)}|')
    a(f'''
    v_add_f32 {v(T + 1)}, {v(T)}, {v(O + 12)}
    v_cmp_le_f32 s[46:47], s45, {v(T)}
    v_cmp_gt_f32 s[48:49], s44, {v(T + 1)}
    s_nop 1
    s_and_b64 s[46:47], s[46:47], s[48:49]
    s_cmp_eq_u64 s[46:47], -1
    s_cbranch_scc0 {L_fb}
    {L_out}:
    v_rcp_f32 {v(T)}, {v(O + 12)}
    v_rcp_f32 {v(T + 1)}, {v(O + 12)}
    s_nop 0
    ''')
    for i in range(0, 12, 2):
        a(f'v_pk_mul_f32 {v(O + i, 2)}, {v(O + i, 2)}, {v(T, 2)}')
    for i in range(6):
        a(f'v_cvt_pk_bf16_f32 {v(P + i)}, {v(O + 2 * i)}, {v(O + 2 * i + 1)}')
    a(f'buffer_store_dwordx4 {v(P, 4)}, {v(T + 2)}, s[20:23], s36 offen sc1')
    a(f'buffer_store_dwordx2 {v(P + 4, 2)}, {v(T + 3)}, s[20:23], s37 offen sc1')
    stamp(a, 18)
    g2_ids(a)
    OFR = 120
    a(f'''
    s_cmp_eq_u32 s25, 1
    s_cselect_b32 s44, s60, s59
    s_mul_i32 s44, s44, 40960
    s_add_u32 s44, s44, {OF_OFF}
    s_lshl_b32 s45, s26, 13
    s_add_u32 s38, s44, s45
    s_add_u32 s38, s38, 3072
    s_add_u32 s39, s38, 4096
    s_lshl_b32 s45, s26, 11
    s_add_u32 s40, s44, s45
    s_add_u32 s40, s40, 32768
    s_mul_i32 s44, s26, 14336
    s_lshl_b32 s45, s25, 10
    s_add_u32 s44, s44, s45
    s_add_u32 s44, s44, {OL_A}
    v_add_u32 {v(T + 5)}, s44, {v(T + 2)}
    s_barrier
    ''')
    Lp, Lq = a.label('cop'), a.label('copd')
    a(f's_mov_b32 s93, {OPOLL_MAX}\n{Lp}:')
    for q in range(5):
        a(f'buffer_load_dwordx4 {v(OFR + 4 * q, 4)}, {v(T + 2)}, s[20:23], {"s38" if q < 4 else "s39"} offen offset:{1024 * (q & 3)} sc1')
    for q in range(4):
        a(f'buffer_load_dwordx2 {v(OFR + 20 + 2 * q, 2)}, {v(T + 4)}, s[20:23], s40 offen offset:{1024 * (q >> 1) + 256 * (q & 1)} sc1')
    a('s_waitcnt vmcnt(0)')
    a(f'v_max3_u32 {v(T)}, {v(OFR)}, {v(OFR + 1)}, {v(OFR + 2)}')
    for i in range(3, 27, 2):
        a(f'v_max3_u32 {v(T)}, {v(T)}, {v(OFR + i)}, {v(OFR + i + 1)}')
    a(f'''
    v_max_u32 {v(T)}, {v(T)}, {v(OFR + 27)}
    v_cmp_eq_u32 vcc, -1, {v(T)}
    s_nop 1
    s_cmp_eq_u64 vcc, 0
    s_cbranch_scc1 {Lq}
    s_sub_u32 s93, s93, 1
    s_cbranch_scc1 {Lq}
    s_sleep {OSLEEP}
    s_branch {Lp}
    {Lq}:
    ''')
    for q in range(7):
        a(f'ds_write_b128 {v(T + 5)}, {v(OFR + 4 * q, 4)} offset:{2048 * q}')
    stamp(a, 21)
    g2_out(a, S, vL, 's24', 0)
    a('s_waitcnt lgkmcnt(0)')
    a('s_barrier')
    a('s_barrier')
    stamp(a, 19)
    g2_out(a, S, vL, 's24', 1)
    if asmlib.STAMPS:
        a('s_waitcnt vmcnt(0)')
    stamp(a, 20)
    a(f's_branch {L_end}')

    a(f'{L_hf}:')
    a('s_waitcnt vmcnt(0)')
    flag_store(a, 's41', T + 2)
    a(f's_branch {L_hb}')
    a(f'{L_fb}:')
    L1 = a.label('fb1')
    L2 = a.label('fb2')
    a(f'''
    v_lshlrev_b32 {v(T + 13)}, 4, {v(vL)}
    v_lshlrev_b32 {v(T + 7)}, 3, {v(vL)}
    v_mov_b32 {v(T + 14)}, 0
    v_mov_b32 {v(T + 15)}, 0xff800000
    v_cndmask_b32 {v(Q2)}, {v(Q2)}, {v(T + 14)}, {HM}
    v_cndmask_b32 {v(Q2 + 1)}, {v(Q2 + 1)}, {v(T + 14)}, {HM}
    s_mov_b32 s77, {KV_OFF}
    s_mov_b32 s34, 32
    {L1}:
    buffer_load_dwordx4 {v(K1, 4)}, {v(T + 13)}, s[20:23], s77 offen sc1
    buffer_load_dwordx4 {v(K1 + 4, 4)}, {v(T + 13)}, s[20:23], s77 offen offset:1024 sc1
    buffer_load_dwordx2 {v(K2, 2)}, {v(T + 7)}, s[20:23], s77 offen offset:2048 sc1
    buffer_load_dwordx2 {v(K2 + 2, 2)}, {v(T + 7)}, s[20:23], s77 offen offset:2560 sc1
    s_waitcnt vmcnt(0)
    ''')
    for t in range(2):
        a(mfma16(S + 16 * t, K1 + 4 * t, Q1))
    a('s_nop 9')
    for t in range(2):
        a(mfma8(S + 16 * t, K2 + 2 * t, Q2, S + 16 * t))
    a('s_nop 15')
    for i in range(0, 32, 2):
        a(f'v_max3_f32 {v(T + 15)}, {v(T + 15)}, {v(S + i)}, {v(S + i + 1)}')
    a(f'''
    s_add_u32 s77, s77, 7168
    s_sub_u32 s34, s34, 1
    s_cmp_lg_u32 s34, 0
    s_cbranch_scc1 {L1}
    ''')
    cross_half_max(T + 15)
    set_m(T + 15, 0.0)
    for i in range(16):
        a(f'v_mov_b32 {v(O + i)}, 0')
    a(f'''
    s_mov_b32 s77, {KV_OFF}
    s_mov_b32 s34, 64
    {L2}:
    s_and_b32 s78, s34, 1
    s_lshl_b32 s79, s78, 10
    s_add_u32 s79, s79, s77
    s_lshl_b32 s80, s78, 9
    s_add_u32 s80, s80, s77
    s_lshl_b32 s81, s78, 11
    s_add_u32 s81, s81, s77
    s_add_u32 s81, s81, 3072
    buffer_load_dwordx4 {v(K1, 4)}, {v(T + 13)}, s[20:23], s79 offen sc1
    buffer_load_dwordx2 {v(K2, 2)}, {v(T + 7)}, s[20:23], s80 offen offset:2048 sc1
    buffer_load_dwordx4 {v(V1, 4)}, {v(T + 13)}, s[20:23], s81 offen sc1
    buffer_load_dwordx4 {v(V2, 4)}, {v(T + 13)}, s[20:23], s81 offen offset:1024 sc1
    s_waitcnt vmcnt(0)
    {mfma16(S, K1, Q1)}
    s_nop 10
    {mfma8(S, K2, Q2, S)}
    s_nop 15
    ''')
    for i in range(16):
        a(f'v_exp_f32 {v(S + i)}, {v(S + i)}')
    a('s_nop 0')
    for i in range(8):
        a(f'v_cvt_pk_bf16_f32 {v(P + i)}, {v(S + 2 * i)}, {v(S + 2 * i + 1)}')
    a(f'''
    s_nop 1
    {mfma16(O, V1, P, O)}
    {mfma16(O, V2, P + 4, O)}
    s_mul_i32 s78, s78, 7168
    s_add_u32 s77, s77, s78
    s_sub_u32 s34, s34, 1
    s_cmp_lg_u32 s34, 0
    s_cbranch_scc1 {L2}
    s_nop 15
    s_branch {L_out}
    ''')


def g2_ids(a):
    a('''
    s_lshr_b32 s57, s30, 1
    s_and_b32 s58, s30, 1
    s_lshl_b32 s44, s29, 1
    s_add_u32 s59, s44, s58
    s_xor_b32 s60, s59, 1
    s_mul_i32 s44, s57, 320
    s_lshl_b32 s45, s58, 7
    s_add_u32 s61, s44, s45
    ''')


def g2_out(a, T, vL, wsg, part):
    L_skip = a.label('g2o')
    a(f'''
    s_cmp_ge_u32 {wsg}, 10
    s_cbranch_scc1 {L_skip}
    ''')
    if part == 0:
        a(f'''
        s_lshr_b32 s45, {wsg}, 1
        s_and_b32 s46, {wsg}, 1
        s_lshl_b32 s46, s46, 4
        v_lshrrev_b32 {v(T)}, 2, {v(vL)}
        v_add_u32 {v(T)}, s46, {v(T)}
        v_and_b32 {v(T + 1)}, 3, {v(vL)}
        s_and_b32 s47, s45, 1
        s_cmp_eq_u32 s47, 1
        s_cselect_b32 s47, s60, s59
        s_mul_i32 s47, s47, {32 * 1280}
        s_lshr_b32 s48, s45, 1
        s_add_u32 s49, s48, s58
        s_lshl_b32 s49, s49, 6
        s_lshl_b32 s50, s58, 7
        s_sub_u32 s50, 128, s50
        s_cmp_eq_u32 s48, 2
        s_cselect_b32 s49, s50, s49
        s_add_u32 s47, s47, s49
        s_add_u32 s31, s47, s61
        v_mul_u32_u24 {v(T + 6)}, 1280, {v(T)}
        v_lshl_add_u32 {v(T + 6)}, {v(T + 1)}, 4, {v(T + 6)}
        buffer_load_dwordx4 {v(T + 2, 4)}, {v(T + 6)}, s[8:11], s31 offen
        v_lshlrev_b32 {v(T + 1)}, 1, {v(T + 1)}
        v_and_b32 {v(T + 7)}, 7, {v(T)}
        v_xor_b32 {v(T + 1)}, {v(T + 1)}, {v(T + 7)}
        v_lshlrev_b32 {v(T)}, 7, {v(T)}
        v_lshl_add_u32 {v(T)}, {v(T + 1)}, 4, {v(T)}
        s_lshl_b32 s47, s45, 12
        v_add_u32 {v(T)}, s47, {v(T)}
        v_xor_b32 {v(T + 1)}, 16, {v(T)}
        ''')
    else:
        for w in range(4):
            if w == 2:
                a(f'v_add_u32 {v(T)}, {WO_HI}, {v(T)}\nv_add_u32 {v(T + 1)}, {WO_HI}, {v(T + 1)}')
            a(f'ds_read_b128 {v(T + 8 + 8 * w, 4)}, {v(T)} offset:{21504 * (w & 1)}')
            a(f'ds_read_b128 {v(T + 12 + 8 * w, 4)}, {v(T + 1)} offset:{21504 * (w & 1)}')
        a('s_waitcnt vmcnt(0)')
        for i in range(4):
            a(f'''
            v_lshlrev_b32 {v(T + 40 + 2 * i)}, 16, {v(T + 2 + i)}
            v_and_b32 {v(T + 41 + 2 * i)}, 0xffff0000, {v(T + 2 + i)}
            ''')
        a('s_waitcnt lgkmcnt(4)')
        for i in range(0, 8, 2):
            a(f'v_pk_add_f32 {v(T + 8 + i, 2)}, {v(T + 8 + i, 2)}, {v(T + 16 + i, 2)}')
        for i in range(0, 8, 2):
            a(f'v_pk_add_f32 {v(T + 8 + i, 2)}, {v(T + 8 + i, 2)}, {v(T + 40 + i, 2)}')
        a('s_waitcnt lgkmcnt(0)')
        for i in range(0, 8, 2):
            a(f'v_pk_add_f32 {v(T + 24 + i, 2)}, {v(T + 24 + i, 2)}, {v(T + 32 + i, 2)}')
        for i in range(0, 8, 2):
            a(f'v_pk_add_f32 {v(T + 8 + i, 2)}, {v(T + 8 + i, 2)}, {v(T + 24 + i, 2)}')
        for i in range(4):
            a(f'v_cvt_pk_bf16_f32 {v(T + 16 + i)}, {v(T + 8 + 2 * i)}, {v(T + 9 + 2 * i)}')
        a(f'buffer_store_dwordx4 {v(T + 16, 4)}, {v(T + 6)}, s[64:67], s31 offen{OUTSC}')
    a(f'{L_skip}:')


def aux_wave(a, vL, vH, vR, L_end, WDP, a_start):
    al = Alloc(4, 168)
    T = al('T', 16, 4)
    vXD = al('xd', 2)
    vWD = al('wd', 2)
    vKD = al('kd')
    vKX = al('kx')
    vKW = al('kw')
    XR = al('xr', 10, 2)
    CR = al('cr', 20, 2)
    PF = al('pf', 2)
    AKV = al('akv', 16, 4)
    KXF = al('kxf', 4, 4)
    KWF = al('kwf', 4, 4)
    FX = al('fx', 16, 4)
    RD = al('rd', 48, 4)
    JA = al('ja', 2, 2)
    JS = al('js')
    t0, t1, t2, t3, t4, t5 = T, T + 1, T + 2, T + 3, T + 4, T + 5
    vm = VM()
    a.c('=========== aux wave: phase 1 ===========')
    assert (vXD, vWD, vKD) == (20, 22, 24)

    def dma_group(c, kvonly=False):
        st = c % 3
        lab = a.label('nokv')
        a(f'''
        s_and_b32 s35, s100, {7 if c < 8 else 1}
        s_xor_b32 s35, s35, {c}
        s_mul_i32 s33, s32, s35
        s_mul_i32 s34, s35, 2560
        s_lshl_b32 s35, s35, 7
        s_cmp_eq_u32 s40, 0
        s_cbranch_scc1 {lab}
        s_add_u32 m0, s38, {st * 3072}
        s_nop 0
        buffer_load_dwordx4 {v(vKD)}, s[16:19], s34 offen lds
        {lab}:
        ''')
        vm.add(f'c{c}', 1, optional=True)
        if kvonly or (NODMA and c > 2):
            vm.add(f'c{c}', 1, optional=True)
            return
        for e in range(4):
            a(f'''
            s_add_u32 m0, s36, {LDS_X + st * 16384 + e * 1024}
            s_add_u32 s34, s35, {(e >> 1) * 16 * 1280}
            buffer_load_dwordx4 {v(vXD + (e & 1))}, s[8:11], s34 offen lds
            ''')
        for e in range(8):
            a(f'''
            s_add_u32 m0, s37, {st * 8192 + e * 1024}
            s_nop 0
            buffer_load_dwordx4 {v(vWD + (e & 1))}, s[12:15], s33 offen lds
            ''')
            if e < 7:
                a('s_add_u32 s33, s33, s31')
        vm.add(f'c{c}', 12)

    vm.add('c0', 4)
    vm.add('c0', 1, optional=True)
    if not LATE1:
        vm.add('c1', 4)
        vm.add('c1', 1, optional=True)

    def jit(c):
        if not JIT or c > 9:
            return
        lab = a.label('nojit')
        a(f'''
        s_cmp_lg_u32 s26, 3
        s_cbranch_scc1 {lab}
        global_load_dword v165, {v(JA, 2)}, off
        v_add_co_u32 {v(JA)}, vcc, {v(JA)}, {v(JS)}
        s_nop 1
        v_addc_co_u32 {v(JA + 1)}, vcc, 0, {v(JA + 1)}, vcc
        {lab}:
        ''')
        vm.add('jit', 1, optional=True)

    if JIT:
        a(f'v_mov_b32 {v(JA)}, s68\nv_mov_b32 {v(JA + 1)}, s69')
        lab = a.label('nojs')
        a(f'''
        s_cmp_lg_u32 s26, 3
        s_cbranch_scc1 {lab}
        s_lshr_b32 s44, s2, 3
        s_and_b32 s45, s44, 7
        s_lshr_b32 s46, s44, 3
        s_lshl_b32 s46, s46, 5
        s_lshl_b32 s47, s27, 7
        s_add_u32 s46, s46, s47
        v_add_u32 {v(t0)}, s46, {v(vR)}
        v_mul_u32_u24 {v(t0)}, 1280, {v(t0)}
        v_add_u32 {v(t0)}, {128 * JIT}, {v(t0)}
        v_bfe_u32 {v(t1)}, {v(vL)}, 3, 1
        v_bfe_u32 {v(t2)}, {v(vL)}, 4, 1
        v_and_b32 {v(t3)}, s48, {v(t1)}
        v_cmp_eq_u32 s[58:59], 1, {v(t3)}
        v_cmp_eq_u32 s[60:61], 1, {v(t2)}
        v_mov_b32 {v(t4)}, 3456
        v_mov_b32 {v(t5)}, 1280
        v_cndmask_b32 {v(t4)}, {v(t4)}, {v(t5)}, s[58:59]
        s_xor_b32 s44, s48, 1
        v_and_b32 {v(t5)}, s44, {v(t1)}
        v_lshlrev_b32 {v(t5)}, 6, {v(t5)}
        v_add_u32 {v(t5)}, s49, {v(t5)}
        v_lshlrev_b32 {v(t3)}, 6, {v(t2)}
        v_add_u32 {v(t3)}, s50, {v(t3)}
        v_cndmask_b32 {v(t5)}, {v(t5)}, {v(t3)}, s[58:59]
        s_lshl_b32 s45, s45, 3
        s_add_u32 s45, s45, {64 * JIT}
        v_and_b32 {v(t3)}, 7, {v(vL)}
        v_add_u32 {v(t3)}, s45, {v(t3)}
        v_mul_lo_u32 {v(t3)}, {v(t3)}, {v(t4)}
        v_lshl_add_u32 {v(t3)}, {v(t5)}, 1, {v(t3)}
        v_cndmask_b32 {v(t0)}, {v(t0)}, {v(t3)}, {HM}
        v_lshlrev_b32 {v(t4)}, 6, {v(t4)}
        v_mov_b32 {v(t5)}, 128
        v_cndmask_b32 {v(JS)}, {v(t5)}, {v(t4)}, {HM}
        ''')
        for z in range(2):
            a(f'''
            v_mov_b32 {v(t1)}, s{80 + z}
            v_mov_b32 {v(t2)}, s{82 + z}
            v_cndmask_b32 {v(t1)}, {v(t1)}, {v(t2)}, s[60:61]
            v_mov_b32 {v(t2)}, s{70 + z}
            v_cndmask_b32 {v(t1)}, {v(t1)}, {v(t2)}, s[58:59]
            v_mov_b32 {v(t2)}, s{68 + z}
            v_cndmask_b32 {v(JA + z)}, {v(t2)}, {v(t1)}, {HM}
            ''')
        a(f'''
        v_add_co_u32 {v(JA)}, vcc, {v(JA)}, {v(t0)}
        s_nop 1
        v_addc_co_u32 {v(JA + 1)}, vcc, 0, {v(JA + 1)}, vcc
        {lab}:
        ''')
        for c in range(JIT, JITD):
            jit(c)
    srd(a, 4, 76, 256)
    lab = a.label('nononce')
    a(f'''
    s_or_b32 s44, s2, s26
    s_cmp_lg_u32 s44, 0
    s_cbranch_scc1 {lab}
    s_memrealtime s[44:45]
    s_waitcnt lgkmcnt(0)
    s_or_b32 s44, s44, 1
    v_mov_b32 {v(t0)}, s44
    s_mov_b64 exec, 1
    buffer_store_dword {v(t0)}, off, s[4:7], 0 sc1
    s_mov_b64 exec, -1
    {lab}:
    ''')
    vm.add('nonce', 1, optional=True)
    a(f'''
    s_and_b32 s56, s28, 3
    v_lshrrev_b32 {v(t0)}, 1, {v(vR)}
    v_and_b32 {v(t0)}, 7, {v(t0)}
    v_xor_b32 {v(t0)}, {v(t0)}, {v(vH)}
    s_lshl_b32 s44, s26, 1
    v_xor_b32 {v(t0)}, s44, {v(t0)}
    v_lshlrev_b32 {v(t3)}, 7, {v(vR)}
    v_lshl_add_u32 {v(t0)}, {v(t0)}, 4, {v(t3)}
    s_lshl_b32 s44, s56, 12
    v_add_u32 {v(vKX)}, s44, {v(t0)}
    v_bfe_u32 {v(t0)}, {v(vL)}, 2, 2
    v_lshl_add_u32 {v(t0)}, {v(vH)}, 3, {v(t0)}
    v_mul_u32_u24 {v(t0)}, 40, {v(t0)}
    v_bfe_u32 {v(t3)}, {v(vL)}, 4, 1
    v_and_b32 {v(t4)}, 3, {v(vL)}
    v_lshl_add_u32 {v(t3)}, {v(t3)}, 2, {v(t4)}
    v_min_u32 {v(t3)}, 4, {v(t3)}
    v_lshl_add_u32 {v(t0)}, {v(t3)}, 3, {v(t0)}
    s_mul_i32 s44, s26, 640
    s_add_u32 s44, s44, {LDS_KV}
    v_add_u32 {v(vKW)}, s44, {v(t0)}
    ''')
    for i in range(16):
        a(f'v_mov_b32 {v(AKV + i)}, 0')

    if LATE1:
        a_start(1)
        vm.add('c1', 4)
        vm.add('c1', 1, optional=True)

    def colsum(src_tag_wait, store_code):
        a(f's_waitcnt vmcnt({src_tag_wait})')
        a(f'''
        v_lshlrev_b32 {v(t0)}, 16, {v(CR)}
        v_and_b32 {v(t1)}, 0xffff0000, {v(CR)}
        ''')
        for t in range(1, 20):
            a(f'''
            v_lshlrev_b32 {v(t2)}, 16, {v(CR + t)}
            v_and_b32 {v(t3)}, 0xffff0000, {v(CR + t)}
            v_add_f32 {v(t0)}, {v(t0)}, {v(t2)}
            v_add_f32 {v(t1)}, {v(t1)}, {v(t3)}
            ''')
        a(f'''
        s_nop 1
        v_permlane32_swap_b32 {v(t0)}, {v(t1)}
        s_nop 1
        v_add_f32 {v(t0)}, {v(t0)}, {v(t1)}
        v_cvt_pk_bf16_f32 {v(t1)}, {v(t0)}, {v(t0)}
        v_and_b32 {v(t1)}, 0xffff0000, {v(t1)}
        v_sub_f32 {v(t1)}, {v(t0)}, {v(t1)}
        v_cvt_pk_bf16_f32 {v(t0)}, {v(t0)}, {v(t1)}
        ''')
        store_code()

    a('''
    s_lshl_b32 s41, s27, 10
    s_and_b32 s44, s28, 11
    s_cmp_eq_u32 s44, 0
    s_cselect_b32 s42, 1, 0
    s_cmp_eq_u32 s26, 3
    s_cselect_b32 s42, s42, 0
    ''')

    def kv_step(c, part):
        st = c % 3
        lab = a.label('kvs')
        a(f's_cmp_eq_u32 s54, 0\ns_cbranch_scc1 {lab}')
        if part == 0:
            a(f'''
            ds_read_b128 {v(KXF, 4)}, {v(vKX)} offset:{LDS_X + st * 16384}
            ds_read_b64_tr_b16 {v(KWF, 2)}, {v(vKW)} offset:{st * 3072}
            ds_read_b64_tr_b16 {v(KWF + 2, 2)}, {v(vKW)} offset:{st * 3072 + 160}
            ''')
        else:
            a('s_waitcnt lgkmcnt(0)')
            a(mfma16(AKV, KWF, KXF, AKV))
        a(f'{lab}:')

    for c in range(10):
        a.c(f'aux chunk {c}')
        if c == 0:
            stamp(a, 22)
        if c <= 8:
            a(f's_waitcnt vmcnt({vm.wait(f"c{c}") if c != 5 else min(vm.wait("c5"), vm.wait("st"), vm.wait("nl"))})')
        else:
            a('s_waitcnt vmcnt(0)')
        a('s_barrier')
        if not FEWST or c in (0, 1, 2, 9):
            stamp(a, 1 + c)
        if asmlib.STAMPS:
            vm.add('stamp', 1, optional=True)
        if c == 3:
            a(f'buffer_load_dword {v(PF)}, off, s[4:7], 0 sc1')
            vm.add('nl', 1)
        kv_step(c, 0)
        if c == P3C:
            lab = a.label('nop3')
            a(f'''
            v_lshlrev_b32 {v(T + 8)}, 3, {v(vL)}
            v_lshlrev_b32 {v(T + 10)}, 7, {v(vL)}
            v_and_b32 {v(T + 11)}, 0x780, {v(T + 10)}
            s_cmp_lg_u32 s26, 3
            s_cbranch_scc1 {lab}
            s_lshl_b32 s44, s27, 13
            s_add_u32 s44, s44, {F_ST}
            s_lshl_b32 s45, s28, 13
            s_add_u32 s45, s45, {F_CS}
            s_and_b32 s58, s28, 4
            s_lshl_b32 s58, s58, 9
            s_add_u32 s58, s58, {F_KC}
            ''')
            a(f'''
            s_mov_b32 s60, s44
            s_mov_b32 s61, s45
            s_lshr_b32 s59, s29, 1
            s_lshl_b32 s59, s59, 13
            s_add_u32 s59, s59, {F_ST}
            buffer_load_dwordx2 {v(FX + 6, 2)}, {v(T + 10)}, s[20:23], s59 offen sc1
            buffer_load_dwordx2 {v(FX, 2)}, {v(T + 10)}, s[20:23], s60 offen sc1
            buffer_load_dwordx2 {v(FX + 2, 2)}, {v(T + 10)}, s[20:23], s61 offen sc1
            buffer_load_dwordx2 {v(FX + 4, 2)}, {v(T + 11)}, s[20:23], s58 offen sc1
            {lab}:
            ''')
        jit(c + JITD)
        if (1 if EARLY2 else 0) <= c and c + 2 < 10:
            dma_group(c + 2)
        kv_step(c, 1)
        if c == P3C:
            lab = a.label('nop3b')
            a(f'''
            s_cmp_lg_u32 s26, 3
            s_cbranch_scc1 {lab}
            s_waitcnt vmcnt(12)
            v_cmp_eq_u64 vcc, s[98:99], {v(FX, 2)}
            v_cmp_eq_u64 s[46:47], s[98:99], {v(FX + 2, 2)}
            v_cmp_eq_u64 s[44:45], s[98:99], {v(FX + 4, 2)}
            v_cmp_eq_u64 s[48:49], s[98:99], {v(FX + 6, 2)}
            s_nop 1
            s_and_b64 vcc, vcc, s[46:47]
            s_and_b64 vcc, vcc, s[44:45]
            s_and_b64 vcc, vcc, s[48:49]
            s_cmp_eq_u64 vcc, -1
            s_cbranch_scc1 {lab}
            ''')
            polln(a, FX, [T + 10, T + 10, T + 11], [('s60', None), ('s61', None), ('s58', None)], 4)
            polln(a, FX, [T + 10], [('s59', None)], 4)
            a(f'{lab}:')
        if c == 2:
            lab = a.label('nokvcs')
            a(f'''
            s_cmp_eq_u32 s42, 0
            s_cbranch_scc1 {lab}
            s_mul_i32 s44, s27, 40
            v_add_u32 {v(t1)}, s44, {v(vH)}
            v_mul_u32_u24 {v(t2)}, 40, {v(t1)}
            v_lshl_add_u32 {v(t2)}, {v(vR)}, 2, {v(t2)}
            ''')
            for t in range(20):
                a(f'buffer_load_dword {v(CR + t)}, {v(t2)}, s[16:19], 0 offen offset:{80 * t}')
            a(f'{lab}:')
            vm.add('kcr', 20, optional=True)
        if c == 3:
            lab = a.label('nokvcs2')
            a(f's_cmp_eq_u32 s42, 0\ns_cbranch_scc1 {lab}')

            def kcs_store():
                a(f'''
                v_lshl_add_u32 {v(t1)}, {v(vR)}, 1, {v(vH)}
                v_lshlrev_b32 {v(t2)}, 2, {v(t1)}
                v_mov_b32 {v(t3)}, 0x7f000000
                v_cmp_gt_u32 vcc, 32, {v(t1)}
                s_lshl_b32 s44, s28, 9
                s_lshl_b32 s45, s27, 7
                s_add_u32 s44, s44, s45
                s_add_u32 s44, s44, {CSKVW}
                v_cndmask_b32 {v(t2)}, {v(t3)}, {v(t2)}, vcc
                buffer_store_dword {v(t0)}, {v(t2)}, s[20:23], s44 offen sc1
                ''')
            colsum(vm.wait('kcr'), kcs_store)
            a(f'{lab}:')
            vm.add('st', 1, optional=True)
        if c == 5:
            Lp = a.label('np')
            Lq = a.label('npd')
            Lr = a.label('nokcf')
            a(f'''
            s_mov_b32 s93, {POLL_MAX}
            {Lp}:
            v_readfirstlane_b32 s98, {v(PF)}
            s_cmp_lg_u32 s98, 0
            s_cbranch_scc1 {Lq}
            s_sub_u32 s93, s93, 1
            s_cbranch_scc1 {Lq}
            buffer_load_dword {v(PF)}, off, s[4:7], 0 sc1
            s_waitcnt vmcnt(0)
            s_branch {Lp}
            {Lq}:
            s_xor_b32 s99, s98, {NONCE_X}
            s_lshl_b32 s44, s28, 9
            s_lshl_b32 s45, s27, 7
            s_add_u32 s44, s44, s45
            s_add_u32 s44, s44, {F_KC}
            s_cmp_eq_u32 s42, 0
            s_cbranch_scc1 {Lr}
            ''')
            flag_store(a, 's44', T + 2)
            a(f'{Lr}:')
            vm.add('fl', 1, optional=True)
        if P1PF and c in (6, 7):
            if c == 6:
                srd(a, 4, WDP, 2211840)
                a(f'''
                s_lshr_b32 s44, s2, 6
                s_mul_i32 s44, s44, {432 * 1280}
                s_bfe_u32 s45, s2, 0x30003
                s_mul_i32 s45, s45, {180 * 128}
                s_add_u32 s44, s44, s45
                s_mul_i32 s45, s26, {45 * 128}
                s_add_u32 s57, s44, s45
                v_lshlrev_b32 {v(PF + 1)}, 7, {v(vL)}
                ''')
            for z in range(2 if c == 6 else 1):
                a(f'''
                s_mov_b32 exec_hi, {(1 << 13) - 1}
                buffer_load_dword v165, {v(PF + 1)}, s[4:7], s57 offen
                s_mov_b32 exec_hi, -1
                s_add_u32 s57, s57, {144 * 1280}
                ''')
                vm.add('pf', 1)
        if c == 8:
            a(f'''
            v_lshlrev_b32 {v(T + 9)}, 4, {v(vL)}
            s_lshl_b32 s44, s28, 14
            s_lshl_b32 s45, s26, 12
            s_add_u32 s44, s44, s45
            s_add_u32 s44, s44, {CSW}
            ''')
            for e in range(4):
                a(f'''
                s_add_u32 m0, s45, {CS_A + 1024 * e}
                s_nop 0
                buffer_load_dwordx4 {v(T + 9)}, s[20:23], s44 offen{LD} lds
                s_add_u32 s44, s44, 1024
                ''')
            lab = a.label('norc')
            a(f'''
            s_cmp_lg_u32 s26, 0
            s_cbranch_scc1 {lab}
            s_lshl_b32 s44, s27, 11
            s_add_u32 s44, s44, {ROWW}
            s_mov_b32 m0, {ROWC_A}
            s_and_b32 s45, s28, 4
            buffer_load_dwordx4 {v(T + 9)}, s[20:23], s44 offen{LD} lds
            buffer_load_dwordx4 {v(T + 9)}, s[20:23], s44 offen offset:1024{LD} lds
            s_lshl_b32 s45, s45, 9
            s_add_u32 s45, s45, {CSKVW}
            s_mov_b32 m0, {CSKV_A}
            s_nop 0
            buffer_load_dwordx4 {v(T + 9)}, s[20:23], s45 offen{LD} lds
            buffer_load_dwordx4 {v(T + 9)}, s[20:23], s45 offen offset:1024{LD} lds
            {lab}:
            ''')
    L_p2 = a.label('auxp2')
    L_v = a.label('vepi')
    L_a0 = a.label('aux0f')
    lab = a.label('nokvfin')
    lab2 = a.label('nofix')
    a(f'''
    s_cmp_eq_u32 s54, 0
    s_cbranch_scc1 {lab}
    s_cmp_lg_u32 s26, 0
    s_cbranch_scc1 {lab2}
    s_lshl_b32 s44, s56, 9
    s_add_u32 s44, s44, {ROWC_A}
    v_lshl_add_u32 {v(t0)}, {v(vR)}, 4, s44
    v_lshlrev_b32 {v(t1)}, 2, {v(vR)}
    v_lshl_add_u32 {v(t1)}, {v(vH)}, 9, {v(t1)}
    v_add_u32 {v(t1)}, {CSKV_A}, {v(t1)}
    v_add_u32 {v(t2)}, 1024, {v(t1)}
    ds_read_b128 {v(FX, 4)}, {v(t0)}
    ds_read2_b32 {v(FX + 8, 2)}, {v(t1)} offset0:0 offset1:32
    ds_read2_b32 {v(FX + 10, 2)}, {v(t1)} offset0:64 offset1:96
    ds_read2_b32 {v(FX + 12, 2)}, {v(t2)} offset0:0 offset1:32
    ds_read2_b32 {v(FX + 14, 2)}, {v(t2)} offset0:64 offset1:96
    s_waitcnt lgkmcnt(4)
    v_mov_b32 {v(FX + 4)}, {v(FX)}
    v_mov_b32 {v(FX + 5)}, {v(FX)}
    v_mov_b32 {v(FX + 6)}, {v(FX)}
    v_mov_b32 {v(FX + 7)}, {v(FX)}
    s_waitcnt lgkmcnt(0)
    s_nop 1
    {mfma16(AKV, FX + 8, FX + 4, AKV)}
    {mfma16(AKV, FX + 12, FX + 4, AKV)}
    s_branch {L_a0}
    {lab2}:
    s_lshl_b32 s44, s26, 12
    v_add_u32 {v(t0)}, s44, {v(T + 9)}
    s_lshl_b32 s44, s26, 2
    s_add_u32 s44, s44, {PD_A}
    v_mov_b32 {v(t1)}, s44
    v_mov_b32 {v(t2)}, s98
    s_nop 11
    ''')
    for q in range(3):
        a(f'ds_write_b128 {v(t0)}, {v(AKV + 4 * q, 4)} offset:{PART_A + 1024 * q}')
    L_sp = a.label('pspin')
    L_spd = a.label('pspind')
    a(f'''
    s_waitcnt lgkmcnt(0)
    ds_write_b32 {v(t1)}, {v(t2)}
    {lab}:
    s_branch {L_p2}
    {L_a0}:
    v_mov_b32 {v(t1)}, {PD_A}
    s_mov_b32 s93, {POLL_MAX * 8}
    {L_sp}:
    ds_read_b128 {v(T + 4, 4)}, {v(t1)}
    s_waitcnt lgkmcnt(0)
    v_xor_b32 {v(T + 5)}, s98, {v(T + 5)}
    v_xor_b32 {v(T + 6)}, s98, {v(T + 6)}
    v_xor_b32 {v(T + 7)}, s98, {v(T + 7)}
    v_or3_b32 {v(T + 5)}, {v(T + 5)}, {v(T + 6)}, {v(T + 7)}
    s_nop 0
    v_readfirstlane_b32 s44, {v(T + 5)}
    s_cmp_eq_u32 s44, 0
    s_cbranch_scc1 {L_spd}
    s_sub_u32 s93, s93, 1
    s_cbranch_scc0 {L_sp}
    {L_spd}:
    ''')
    stamp(a, 12)
    for w in range(1, 4):
        for q in range(3):
            a(f'ds_read_b128 {v(RD + 12 * (w - 1) + 4 * q, 4)}, {v(T + 9)} offset:{PART_A + 4096 * w + 1024 * q}')
    a(f'''
    s_lshl_b32 s57, s27, 2
    s_add_u32 s57, s57, s56
    s_lshr_b32 s44, s57, 1
    s_mul_i32 s44, s44, 7168
    s_add_u32 s44, s44, {KV_OFF}
    s_and_b32 s45, s57, 1
    s_and_b32 s58, s28, 4
    s_lshl_b32 s58, s58, 4
    s_add_u32 s58, s58, s57
    s_lshl_b32 s58, s58, 7
    s_add_u32 s58, s58, {F_KV}
    s_waitcnt lgkmcnt(0)
    ''')
    for i in range(0, 12, 2):
        a(f'v_pk_add_f32 {v(AKV + i, 2)}, {v(AKV + i, 2)}, {v(RD + i, 2)}')
        a(f'v_pk_add_f32 {v(RD + 12 + i, 2)}, {v(RD + 12 + i, 2)}, {v(RD + 24 + i, 2)}')
    for i in range(0, 12, 2):
        a(f'v_pk_add_f32 {v(AKV + i, 2)}, {v(AKV + i, 2)}, {v(RD + 12 + i, 2)}')
    a(f'v_mov_b32 {v(FX)}, {v(FX + 1)}')
    for i in range(0, 12, 2):
        a(f'v_pk_mul_f32 {v(AKV + i, 2)}, {v(AKV + i, 2)}, {v(FX, 2)}')
    PK = RD
    for i in range(6):
        a(f'v_cvt_pk_bf16_f32 {v(PK + i)}, {v(AKV + 2 * i)}, {v(AKV + 2 * i + 1)}')
    L_kvf = a.label('kvflag')
    a(f'''
    s_bitcmp1_b32 s28, 2
    s_cbranch_scc1 {L_v}
    v_mov_b32 {v(t0)}, 0x3f803f80
    v_mov_b32 {v(t1)}, 0x00003f80
    v_cndmask_b32 {v(PK + 4)}, {v(PK + 4)}, {v(t0)}, {HM}
    v_cndmask_b32 {v(PK + 5)}, {v(PK + 5)}, {v(t1)}, {HM}
    s_lshl_b32 s46, s45, 10
    s_add_u32 s46, s46, s44
    s_lshl_b32 s47, s45, 9
    s_add_u32 s47, s47, s44
    buffer_store_dwordx4 {v(PK, 4)}, {v(T + 9)}, s[20:23], s46 offen sc1
    buffer_store_dwordx2 {v(PK + 4, 2)}, {v(T + 8)}, s[20:23], s47 offen offset:2048 sc1
    s_branch {L_kvf}
    {L_v}:
    v_mov_b32 {v(t0)}, 0
    v_cndmask_b32 {v(PK + 4)}, {v(PK + 4)}, {v(t0)}, {HM}
    v_cndmask_b32 {v(PK + 5)}, {v(PK + 5)}, {v(t0)}, {HM}
    v_mov_b32 {v(PK + 6)}, 0x00003f80
    v_mov_b32 {v(PK + 7)}, 0
    v_lshlrev_b32 {v(t0)}, 6, {v(vR)}
    v_lshl_add_u32 {v(t0)}, {v(vH)}, 3, {v(t0)}
    ds_write_b64 {v(t0)}, {v(PK, 2)} offset:{VT_A}
    ds_write_b64 {v(t0)}, {v(PK + 2, 2)} offset:{VT_A + 16}
    ds_write_b64 {v(t0)}, {v(PK + 4, 2)} offset:{VT_A + 32}
    ds_write_b64 {v(t0)}, {v(PK + 6, 2)} offset:{VT_A + 48}
    v_bfe_u32 {v(t1)}, {v(vL)}, 2, 2
    v_lshl_add_u32 {v(t1)}, {v(vH)}, 2, {v(t1)}
    v_lshlrev_b32 {v(t1)}, 6, {v(t1)}
    v_bfe_u32 {v(t2)}, {v(vL)}, 4, 1
    v_lshl_add_u32 {v(t1)}, {v(t2)}, 5, {v(t1)}
    v_and_b32 {v(t2)}, 3, {v(vL)}
    v_lshl_add_u32 {v(t1)}, {v(t2)}, 3, {v(t1)}
    s_waitcnt lgkmcnt(0)
    ds_read_b64_tr_b16 {v(PK + 8, 2)}, {v(t1)} offset:{VT_A}
    ds_read_b64_tr_b16 {v(PK + 10, 2)}, {v(t1)} offset:{VT_A + 512}
    ds_read_b64_tr_b16 {v(PK + 12, 2)}, {v(t1)} offset:{VT_A + 1024}
    ds_read_b64_tr_b16 {v(PK + 14, 2)}, {v(t1)} offset:{VT_A + 1536}
    s_lshl_b32 s46, s45, 11
    s_add_u32 s46, s46, s44
    s_add_u32 s46, s46, 3072
    s_waitcnt lgkmcnt(0)
    buffer_store_dwordx4 {v(PK + 8, 4)}, {v(T + 9)}, s[20:23], s46 offen sc1
    buffer_store_dwordx4 {v(PK + 12, 4)}, {v(T + 9)}, s[20:23], s46 offen offset:1024 sc1
    {L_kvf}:
    s_waitcnt vmcnt(0)
    ''')
    flag_store(a, 's58', T + 2)
    a(f'{L_p2}:')
    stamp(a, 13)

    a.c('=========== aux wave: phase 2 ===========')
    al = Alloc(4, 164)
    T = al('T', 8, 4)
    vWD = al('wd', 3)
    vWA = al('wa', 3)
    vHL = al('hl')
    vKO = al('ko')
    vPF = al('pf')
    ACC = al('acc', 80, 4)
    SL = al('slots', 60, 4)
    wreg = lambda k: SL + 20 * (k % 3)
    hreg = lambda k: SL + 20 * (k % 3) + 12
    a(f's_setprio {PRIO2}')
    g2_ids(a)
    srd(a, 12, WDP, 2211840)
    srd(a, 16, 84, 819200)
    a(f"""
    s_mul_i32 s44, s26, 27
    s_mul_i32 s41, s59, 108
    s_add_u32 s41, s41, s44
    s_lshl_b32 s41, s41, 10
    s_mul_i32 s42, s60, 108
    s_add_u32 s42, s42, s44
    s_lshl_b32 s42, s42, 10
    s_lshr_b32 s43, s44, 1
    s_mul_i32 s43, s43, 40960
    s_and_b32 s45, s44, 1
    s_mul_i32 s52, s45, 10240
    s_add_u32 s43, s43, s52
    s_mul_i32 s52, s45, 20480
    s_add_u32 s52, s52, 10240
    s_mov_b32 s48, 40960
    s_lshl_b32 s44, s26, 3
    s_mul_i32 s56, s44, 25600
    s_mul_i32 s54, s59, 40
    s_add_u32 s54, s54, s44
    s_lshl_b32 s54, s54, 10
    s_add_u32 s54, s54, {OF_OFF}
    s_mul_i32 s55, s60, 40
    s_add_u32 s55, s55, s44
    s_lshl_b32 s55, s55, 10
    s_add_u32 s55, s55, {OF_OFF}
    s_and_b32 s44, s26, 1
    s_mul_i32 s39, s44, 21504
    s_lshr_b32 s44, s26, 1
    s_mul_i32 s44, s44, {WO_HI}
    s_add_u32 s39, s39, s44
    s_mov_b32 s40, s39
    s_mov_b32 s45, 0x15556
    v_lshlrev_b32 {v(vHL)}, 4, {v(vL)}
    v_lshlrev_b32 {v(vPF)}, 7, {v(vL)}
    s_lshl_b32 s36, s26, 12
    s_min_u32 s36, s36, 11264
    v_add_u32 {v(vKO)}, s36, {v(vHL)}
    """)
    for p in range(3):
        a(f"""
        v_add_u32 {v(T)}, {64 * p}, {v(vL)}
        v_mul_lo_u32 {v(T + 1)}, {v(T)}, s45
        v_lshrrev_b32 {v(T + 1)}, 20, {v(T + 1)}
        v_mul_u32_u24 {v(T + 2)}, 12, {v(T + 1)}
        v_sub_u32 {v(T + 2)}, {v(T)}, {v(T + 2)}
        v_and_b32 {v(T)}, 8, {v(T + 1)}
        v_add_u32 {v(T + 1)}, {v(T + 1)}, {v(T)}
        v_mul_u32_u24 {v(T + 1)}, 1280, {v(T + 1)}
        v_lshl_add_u32 {v(T + 1)}, {v(T + 2)}, 4, {v(T + 1)}
        v_add_u32 {v(vWD + p)}, s61, {v(T + 1)}
        """)
    a(f"""
    v_bfe_u32 {v(T)}, {v(vL)}, 2, 2
    v_lshl_add_u32 {v(T)}, {v(vH)}, 2, {v(T)}
    v_mul_u32_u24 {v(T)}, 192, {v(T)}
    v_bfe_u32 {v(T + 1)}, {v(vL)}, 4, 1
    v_lshl_add_u32 {v(T)}, {v(T + 1)}, 5, {v(T)}
    v_and_b32 {v(T + 1)}, 3, {v(vL)}
    v_lshl_add_u32 {v(T)}, {v(T + 1)}, 3, {v(T)}
    v_add_u32 {v(T)}, s39, {v(T)}
    s_lshl_b32 s44, s58, 6
    s_add_u32 s45, s44, 64
    s_lshl_b32 s46, s58, 7
    s_sub_u32 s46, 128, s46
    v_add_u32 {v(vWA)}, s44, {v(T)}
    v_add_u32 {v(vWA + 1)}, s45, {v(T)}
    v_add_u32 {v(vWA + 2)}, s46, {v(T)}
    """)
    vm = VM()

    def w_dma(base, off):
        out = []
        for p in range(3):
            out.append([f's_add_u32 m0, {base}, {off + p * 1024}', 's_nop 0',
                        f'buffer_load_dwordx4 {v(vWD + p)}, s[12:15], s43 offen lds'])
        out[2] += ['s_add_u32 s43, s43, s52', 's_sub_u32 s52, s48, s52']
        return out

    def h_ld(k, e):
        hs = ('s41', 's42')[e]
        return [f'buffer_load_dwordx4 {v(hreg(k) + 4 * e, 4)}, {v(vHL)}, s[20:23], {hs} offen', f's_add_u32 {hs}, {hs}, 1024']

    def w_rd(k, off):
        return [f'ds_read_b64_tr_b16 {v(wreg(k) + 4 * b + 2 * t, 2)}, {v(vWA + b)} offset:{off + 1536 * t}'
                for b in range(3) for t in range(2)]

    def g_mfmas(k):
        return [mfma16(ACC + 16 * n, wreg(k) + 4 * b, hreg(k) + 4 * e, ACC + 16 * n)
                for n, (b, e) in enumerate(((0, 0), (0, 1), (1, 0), (1, 1), (2, 0)))]

    def kv_dma(c):
        st = c % NST
        lab = a.label('kv3')
        a(f's_cmp_ge_u32 s26, 2\ns_cbranch_scc1 {lab}')
        for e in (3, 0, 1, 2):
            a(f"""
            s_add_u32 m0, s36, {KVR + st * CH_BYTES + e * 1024}
            s_mov_b32 s38, {KV_OFF + c * CH_BYTES + e * 1024}
            buffer_load_dwordx4 {v(vKO)}, s[20:23], s38 offen lds
            """)
            if e == 3:
                a(f'{lab}:')
        vm.add(f'kv{c}', 1, optional=True)
        vm.add(f'kv{c}', 3)

    for i in range(80):
        a(f'v_mov_b32 {v(ACC + i)}, 0')
    srd(a, 4, WDP, 2211840)
    a(f'''
    s_lshr_b32 s44, s2, 6
    s_mul_i32 s44, s44, {432 * 1280}
    s_bfe_u32 s45, s2, 0x30003
    s_lshl_b32 s45, s45, 2
    s_add_u32 s45, s45, s26
    s_mul_i32 s45, s45, {15 * 128}
    s_add_u32 s32, s44, s45
    s_mov_b32 s31, {48 * 1280}
    ''')

    a(f'''
    s_lshr_b32 s45, s30, 2
    s_lshl_b32 s46, s29, 1
    s_add_u32 s45, s45, s46
    s_mul_i32 s45, s45, 108
    s_and_b32 s46, s30, 3
    s_mul_i32 s46, s46, 27
    s_add_u32 s45, s45, s46
    s_lshl_b32 s45, s45, 10
    s_mul_i32 s46, s26, {6 * 128}
    s_add_u32 s45, s45, s46
    s_add_u32 s49, s45, 3072
    ''')

    def paced_h():
        a(f'''
        s_mov_b64 exec, 0x3f
        buffer_load_dword v165, {v(vPF)}, s[20:23], s49 offen
        s_mov_b64 exec, -1
        s_add_u32 s49, s49, 3072
        ''')

    def paced():
        a(f'''
        s_mov_b64 exec, 0x7fff
        buffer_load_dword v165, {v(vPF)}, s[4:7], s32 offen
        s_mov_b64 exec, -1
        s_add_u32 s32, s32, s31
        ''')
        vm.add('pf', 1)

    def cd_wait():
        L1, L2 = a.label('cdw'), a.label('cdd')
        a(f'''
        v_and_b32 {v(T + 4)}, 7, {v(vL)}
        v_lshlrev_b32 {v(T + 4)}, 2, {v(T + 4)}
        v_add_u32 {v(T + 4)}, {CD_A}, {v(T + 4)}
        s_mov_b32 s93, {POLL_MAX * 8}
        {L1}:
        ds_read_b32 {v(T + 5)}, {v(T + 4)}
        s_waitcnt lgkmcnt(0)
        v_cmp_eq_u32 vcc, s98, {v(T + 5)}
        s_nop 1
        s_cmp_eq_u64 vcc, -1
        s_cbranch_scc1 {L2}
        s_sub_u32 s93, s93, 1
        s_cbranch_scc0 {L1}
        {L2}:
        ''')

    a(f's_lshl_b32 s53, s29, 13\ns_add_u32 s53, s53, {F_QH}')

    def kv_poll(first):
        a(f's_mov_b32 s45, {F_KV}\ns_mov_b32 s44, {F_KV + 8192}')
        if first:
            m = ~((1 << (4 * KVF)) - 1) & 0xffffffffffffffff
            a(f's_mov_b32 s50, {m & 0xffffffff}\ns_mov_b32 s51, {m >> 32}\ns_sleep {KVSL}\ns_andn2_b64 exec, exec, s[50:51]')
            polln(a, T + 4, vPF, [('s45', 's[50:51]'), ('s44', 's[50:51]')], 2)
            a('s_mov_b64 exec, -1')
            cd_wait()
        else:
            polln(a, T + 4, vPF, [('s45', None), ('s44', None)], 4)
    one_poller(a, T, 0, lambda: kv_poll(True), who=2)
    stamp(a, 15)
    kv_dma(0)
    kv_dma(1)
    kv_dma(2)

    def prefetch(kind, b=0):
        n = {'wd': 60, 'wo': 64, 'h': 54}[kind]
        lab = a.label('nopf')
        if kind != 'h':
            a(f's_cmp_eq_u32 s26, 3\ns_cbranch_scc1 {lab}')
        if kind == 'wd':
            a(f"""
            s_lshr_b32 s44, s2, 6
            s_mul_i32 s44, s44, {432 * 1280}
            s_bfe_u32 s45, s2, 0x30003
            s_mul_i32 s45, s45, {180 * 128}
            s_add_u32 s44, s44, s45
            s_mul_i32 s45, s26, {60 * 128}
            s_add_u32 s44, s44, s45
            s_add_u32 s44, s44, {144 * 1280 * b}
            """)
            r = 's[12:15]'
        elif kind == 'wo':
            a(f"""
            s_lshr_b32 s44, s2, 3
            s_mul_i32 s44, s44, {200 * 128}
            s_mul_i32 s45, s26, {68 * 128}
            s_add_u32 s44, s44, s45
            """)
            r = 's[16:19]'
        else:
            a(f"""
            s_mul_i32 s44, s29, {216 * 1024}
            s_lshl_b32 s45, s30, 2
            s_add_u32 s45, s45, s26
            s_mul_i32 s45, s45, {54 * 128}
            s_add_u32 s44, s44, s45
            """)
            r = 's[20:23]'
        m = (1 << n) - 1
        a(f"""
        s_mov_b32 exec_hi, {m >> 32}
        buffer_load_dword v165, {v(vPF)}, {r}, s44 offen
        s_mov_b32 exec_hi, -1
        {lab}:
        """)
        vm.add('pf', 1, optional=True)
    a(f's_waitcnt vmcnt({vm.wait("kv0")})')
    a('s_barrier')
    stamp(a, 16)
    lab = a.label('nokv2')
    a(f's_cmp_lg_u32 s26, 2\ns_cbranch_scc1 {lab}')
    kv_poll(False)
    a(f'{lab}:')

    def body(last, nw=12):
        for z in range(3):
            a(f's_waitcnt vmcnt({nw if not last else (12, 10, 8)[z]}) lgkmcnt(0)')
            ms = g_mfmas(z)
            if z == 2:
                for b in range(3):
                    a(f'v_add_u32 {v(vWA + b)}, s33, {v(vWA + b)}')
                rd = w_rd(0, 0)
            else:
                rd = w_rd(z + 1, 3072 * (z + 1))
            wd_ = w_dma('s40', 3072 * z)
            a(ms[0]); emit(a, rd[0:2]); emit(a, [wd_[0]]); a(SPACE)
            a(ms[1]); emit(a, rd[2:4]); emit(a, [wd_[1]]); a(SPACE)
            a(ms[3]); emit(a, rd[4:6]); emit(a, [wd_[2]]); a(SPACE)
            a(ms[2])
            if not last:
                emit(a, h_ld(z, 1))
            a(SPACE)
            a(ms[4])
            if not last:
                emit(a, h_ld(z, 0))
        a('s_add_u32 s40, s40, s33\ns_sub_u32 s33, 0, s33')

    NSTAT = int(ENV.get('NSTAT', '4'))
    for c in range(NSTAT):
        a.c(f'aux B{c}')
        a(f's_waitcnt vmcnt({vm.wait(f"kv{c + 1}")})')
        bstamp(a, c == 0)
        a('s_barrier')
        bstamp(a)
        kv_dma(c + 3)
        if WDC <= c < WDC + 2:
            for k in range(3 * (c - WDC), 3 * (c - WDC) + 3):
                emit(a, w_dma('s39', 3072 * k))
            vm.add('w', 9)
        paced()
    L_top, L_nb, L_sw, L_end2 = a.label('dtop'), a.label('dnb'), a.label('dsw'), a.label('dend')
    L_act, L_bar, L_nokv = a.label('dact'), a.label('dbar'), a.label('dnokv')
    L_s0, L_body, L_last, L_wo, L_next = a.label('ds0'), a.label('dbody'), a.label('dlast'), a.label('dwo'), a.label('dnext')
    L_w0 = a.label('dw0')
    L_w2 = a.label('dw2')
    L_b12 = a.label('db12')
    L_bd = a.label('dbd')
    L_np = a.label('dnp')
    L_p3 = a.label('dp3')
    L_k3 = a.label('dk3')
    L_w1 = a.label('dw1')
    L_n1 = a.label('dn1')
    L_oth, L_start, L_rei, L_nsw = a.label('doth'), a.label('dstart'), a.label('drei'), a.label('dnsw')
    a(f"""
    s_mov_b32 s34, {16 - NSTAT}
    s_mov_b32 s35, 0
    s_mov_b32 s37, {((NSTAT + 3) % NST) * CH_BYTES}
    s_mov_b32 s38, {KV_OFF + (NSTAT + 3) * CH_BYTES}
    s_mov_b32 s33, 9216
    s_mov_b32 s93, {POLL_MAX}
    v_mov_b32 {v(T + 3)}, {RDY_A + 4}
    {L_top}:
    s_sub_u32 s44, s35, 2
    s_cmp_lt_u32 s44, 8
    s_cbranch_scc1 {L_act}
    s_cmp_eq_u32 s35, 11
    s_cbranch_scc1 {L_w2}
    s_cmp_gt_u32 s35, 1
    s_cbranch_scc1 {L_w0}
    s_cmp_le_u32 s34, 3
    s_cbranch_scc1 {L_w0}
    s_cmp_eq_u32 s35, 1
    s_cbranch_scc1 {L_w1}
    s_waitcnt vmcnt(3)
    s_branch {L_bar}
    {L_w1}:
    s_waitcnt vmcnt({6 + HPF})
    s_branch {L_bar}
    {L_w2}:
    s_waitcnt vmcnt(12)
    s_mov_b32 s35, 12
    s_branch {L_bar}
    {L_w0}:
    s_waitcnt vmcnt(0)
    s_branch {L_bar}
    {L_act}:
    s_waitcnt vmcnt({17 if HPF else 16})
    {L_bar}:
    s_cmp_eq_u32 s34, 0
    s_cbranch_scc1 {L_nb}
    """)
    bstamp(a)
    a('s_barrier')
    bstamp(a)
    a(f"""
    s_cmp_lg_u32 s35, 0
    s_cbranch_scc1 {L_np}
    s_cmp_lg_u32 s26, 3
    s_cbranch_scc1 {L_np}
    buffer_load_dwordx2 {v(T + 4, 2)}, {v(vPF)}, s[20:23], s53 offen sc1
    {L_np}:
    s_cmp_le_u32 s34, 3
    s_cbranch_scc1 {L_nokv}
    s_add_u32 s44, s36, s37
    s_cmp_ge_u32 s26, 2
    s_cbranch_scc1 {L_k3}
    """)
    for e in (3, 0, 1, 2):
        a(f"""
        s_add_u32 m0, s44, {KVR + e * 1024}
        s_add_u32 s45, s38, {e * 1024}
        buffer_load_dwordx4 {v(vKO)}, s[20:23], s45 offen lds
        """)
        if e == 3:
            a(f'{L_k3}:')
    a(f"""
    s_add_u32 s38, s38, {CH_BYTES}
    s_add_u32 s37, s37, {CH_BYTES}
    s_cmp_eq_u32 s37, {CH_BYTES * NST}
    s_cselect_b32 s37, 0, s37
    {L_nokv}:
    s_sub_u32 s34, s34, 1
    s_branch {L_sw}
    {L_nb}:
    s_cmp_ge_u32 s35, 11
    s_cbranch_scc1 {L_end2}
    {L_sw}:
    s_cmp_eq_u32 s35, 0
    s_cbranch_scc1 {L_s0}
    s_cmp_lt_u32 s35, 9
    s_cbranch_scc1 {L_body}
    s_cmp_eq_u32 s35, 9
    s_cbranch_scc1 {L_last}
    s_cmp_eq_u32 s35, 10
    s_cbranch_scc1 {L_wo}
    s_branch {L_top}
    {L_s0}:
    s_sub_u32 s93, s93, 1
    s_cbranch_scc1 {L_start}
    s_cmp_lg_u32 s26, 3
    s_cbranch_scc1 {L_oth}
    s_cmp_ge_u32 s34, 3
    s_cbranch_scc1 {L_p3}
    buffer_load_dwordx2 {v(T + 4, 2)}, {v(vPF)}, s[20:23], s53 offen sc1
    s_waitcnt vmcnt(0)
    {L_p3}:
    s_waitcnt vmcnt(3)
    v_cmp_eq_u64 vcc, s[98:99], {v(T + 4, 2)}
    s_nop 1
    s_cmp_eq_u64 vcc, -1
    s_cselect_b32 s44, s98, s34
    v_mov_b32 {v(T + 2)}, s44
    ds_write_b32 {v(T + 3)}, {v(T + 2)}
    s_cbranch_scc1 {L_start}
    s_branch {L_top}
    {L_oth}:
    s_mov_b32 s45, 40
    {L_rei}:
    s_sleep 1
    ds_read_b32 {v(T + 2)}, {v(T + 3)}
    s_waitcnt lgkmcnt(0)
    v_readfirstlane_b32 s44, {v(T + 2)}
    s_cmp_eq_u32 s44, s98
    s_cbranch_scc1 {L_start}
    s_cmp_eq_u32 s44, s34
    s_cbranch_scc1 {L_top}
    s_sub_u32 s45, s45, 1
    s_cbranch_scc0 {L_rei}
    s_branch {L_top}
    {L_start}:
    """)
    stamp(a, 23)
    for k in range(3):
        for e in range(2):
            emit(a, h_ld(k, e))
    for _ in range(HPF):
        paced_h()
    emit(a, w_rd(0, 0))
    a(f"""
    {L_next}:
    s_add_u32 s35, s35, 1
    s_branch {L_top}
    {L_body}:
    s_cmp_lg_u32 s35, 1
    s_cbranch_scc1 {L_n1}
    s_waitcnt vmcnt(0)
    {L_n1}:
    s_cmp_lg_u32 s35, 8
    s_cbranch_scc1 {L_nsw}
    s_mov_b32 s12, s16
    s_mov_b32 s13, s17
    s_mov_b32 s14, 819200
    s_mov_b32 s43, s56
    s_mov_b32 s52, 25600
    s_mov_b32 s48, 51200
    s_mov_b32 s45, 0x15556
    """)
    for p in range(3):
        a(f"""
        v_add_u32 {v(T)}, {64 * p}, {v(vL)}
        v_mul_lo_u32 {v(T + 1)}, {v(T)}, s45
        v_lshrrev_b32 {v(T + 1)}, 23, {v(T + 1)}
        v_mul_u32_u24 {v(T + 1)}, {8 * 1280}, {v(T + 1)}
        v_sub_u32 {v(vWD + p)}, {v(vWD + p)}, {v(T + 1)}
        """)
    a(f"""
    {L_nsw}:
    s_cmp_lt_u32 s34, 3
    s_cbranch_scc1 {L_b12}
    """)
    body(False, 15)
    a(f's_branch {L_bd}\n{L_b12}:')
    body(False, 12)
    a(f'{L_bd}:')
    lab = a.label('npsw')
    a(f'''
    s_cmp_lg_u32 s35, {10 - NSTAT}
    s_cbranch_scc1 {lab}
    s_mov_b32 s4, s16
    s_mov_b32 s5, s17
    s_mov_b32 s6, 819200
    s_lshr_b32 s44, s2, 3
    s_lshl_b32 s44, s44, 2
    s_add_u32 s44, s44, s26
    s_mul_i32 s32, s44, {50 * 128}
    s_mov_b32 s31, {13 * 128}
    {lab}:
    ''')
    paced_h()
    paced()
    a(f's_branch {L_next}\n{L_last}:')
    body(True)
    a(f's_branch {L_next}\n{L_wo}:')
    stamp(a, 17)
    emit(a, w_rd(1, 3072) + w_rd(2, 6144))
    a('s_mov_b32 s45, 0x15556\ns_waitcnt lgkmcnt(0)')
    emit(a, w_dma('s39', 3072 * 3))
    emit(a, w_dma('s39', 3072 * 4))
    for p in range(3):
        a(f"""
        v_add_u32 {v(T)}, {64 * p}, {v(vL)}
        v_mul_lo_u32 {v(T + 1)}, {v(T)}, s45
        v_bfe_u32 {v(T)}, {v(T + 1)}, 22, 1
        v_lshrrev_b32 {v(T + 1)}, 23, {v(T + 1)}
        v_mul_u32_u24 {v(T)}, {36 * 1280}, {v(T)}
        v_mul_u32_u24 {v(T + 1)}, {12 * 1280}, {v(T + 1)}
        v_add3_u32 {v(vWD + p)}, {v(vWD + p)}, {v(T + 1)}, {v(T)}
        """)
    a(f's_add_u32 s43, s56, {16 * 1280}\ns_mov_b32 s52, {80 * 1280}\ns_mov_b32 s48, {160 * 1280}')
    emit(a, w_dma('s39', 3072 * 5))
    emit(a, w_dma('s39', 3072 * 6))
    a(f's_cmp_lg_u32 s34, 0\ns_cbranch_scc1 {L_next}\n{L_end2}:')
    a(f"""
    v_subrev_u32 {v(vWA)}, 9216, {v(vWA)}
    v_subrev_u32 {v(vWA + 1)}, 9216, {v(vWA + 1)}
    v_subrev_u32 {v(vWA + 2)}, 9216, {v(vWA + 2)}
    s_mul_i32 s44, s26, 14336
    s_add_u32 s44, s44, {OL_A}
    v_add_u32 {v(vKO)}, s44, {v(vHL)}
    v_and_b32 {v(T)}, 7, {v(vR)}
    v_xor_b32 {v(T)}, {v(T)}, {v(vH)}
    v_lshlrev_b32 {v(T + 1)}, 7, {v(vR)}
    v_add_u32 {v(T + 1)}, s39, {v(T + 1)}
    """)
    for jp in range(4):
        a(f"""
        v_xor_b32 {v(T + 2)}, {2 * jp}, {v(T)}
        v_lshl_add_u32 {v(T + 4 + jp)}, {v(T + 2)}, 4, {v(T + 1)}
        """)
    stamp(a, 18)
    a('s_barrier')
    Lp, Lq = a.label('op'), a.label('opd')
    a(f's_mov_b32 s93, {OPOLL_MAX}\n{Lp}:')
    for k in range(27, 30):
        for e in range(2):
            a(f'buffer_load_dwordx4 {v(hreg(k) + 4 * e, 4)}, {v(vHL)}, s[20:23], s{54 + e} offen offset:{1024 * (k - 27)} sc1')
    a('s_waitcnt vmcnt(0)')
    regs = [hreg(k) + i for k in range(27, 30) for i in range(8)]
    a(f'v_max3_u32 {v(T)}, {v(regs[0])}, {v(regs[1])}, {v(regs[2])}')
    for i in range(3, 23, 2):
        a(f'v_max3_u32 {v(T)}, {v(T)}, {v(regs[i])}, {v(regs[i + 1])}')
    a(f"""
    v_max_u32 {v(T)}, {v(T)}, {v(regs[23])}
    v_cmp_eq_u32 vcc, -1, {v(T)}
    s_nop 1
    s_cmp_eq_u64 vcc, 0
    s_cbranch_scc1 {Lq}
    s_sub_u32 s93, s93, 1
    s_cbranch_scc1 {Lq}
    s_sleep {OSLEEP}
    s_branch {Lp}
    {Lq}:
    """)
    stamp(a, 19)

    def o_rd(k):
        return [f'ds_read_b128 {v(hreg(k) + 4 * e, 4)}, {v(vKO)} offset:{(k - 30) * 2048 + 1024 * e}' for e in range(2)]

    for k in range(27, 30):
        emit(a, g_mfmas(k))
        emit(a, w_rd(k + 3, 3072 * (k - 27)))
    a('s_waitcnt lgkmcnt(0)')
    a('s_barrier')
    stamp(a, 30)
    for k in range(30, 33):
        emit(a, o_rd(k))
    XO = vWD
    assert XO % 2 == 0 and XO + 8 <= ACC
    for k in range(30, 34):
        a(f's_waitcnt lgkmcnt({ {30: 4, 31: 10, 32: 8, 33: 8}[k] })')
        emit(a, g_mfmas(k))
        emit(a, w_rd(k + 3, 3072 * (k + 3 - 30)) + o_rd(k + 3))
    g2_out(a, XO, vL, 's24', 0)
    a('s_waitcnt lgkmcnt(0)')
    wr = lambda n: [f'ds_write_b128 {v(T + 4 + jp)}, {v(ACC + 16 * n + 4 * jp, 4)} offset:{4096 * n}' for jp in range(4)]
    ms = [g_mfmas(k) for k in range(34, 37)]
    for n in range(5):
        for z in range(3):
            a(ms[z][n])
        if n >= 2:
            a('s_nop 5')
            emit(a, wr(n - 2))
    stamp(a, 20)
    a('s_nop 3')
    emit(a, wr(3))
    a('s_nop 3')
    emit(a, wr(4))
    a('s_waitcnt vmcnt(0) lgkmcnt(0)')
    a('s_barrier')
    stamp(a, 21)
    for i in range(8):
        a(f'v_mov_b32 {v(ACC + i)}, {v(XO + i)}')
    g2_out(a, ACC, vL, 's24', 1)


def build(path):
    hdr = open('parallel_sum__grouped_kv_mqa__geglu_ffn__prompt.s.ref').read().split('; Override launch')[0]
    out = hdr + f'; @launch grid=(256,1,1) block=(768,1,1) lds={LDS_TOTAL}\n'
    out += '.amdgcn_target "amdgcn-amd-amdhsa--gfx950"\n'
    out += gen()
    out += kernel_desc(KNAME, 168)
    open(path, 'w').write(out)


if __name__ == '__main__':
    import sys
    if len(sys.argv) > 2 and sys.argv[2] == 'stamp':
        asmlib.STAMPS = True
    build(sys.argv[1])
```

```python
from asmlib import *
import asmlib
import math
import os

KNAME = 'parallel_sum__grouped_kv_mqa__geglu_ffn__prompt_kernel'

H_OFF = 0
QF_OFF = 0x700000
KV_OFF = 0xA00000
OF_OFF = 0xB00000
FL_OFF = 0xE00000
F_ST = 0x1200000
F_CS = 0x1220000
F_KV = 0x1240000
F_KC = 0x1248000
F_W2 = 0x1250000
F_QH = 0xE80000
ROWW = 0xE10000
CSW = 0xE20000
CSKVW = 0xE60000
W2F = 0xF00000
WS_USED = 0x1260000

LDS_X = 0
LDS_W = 49152
LDS_KV = 147456
CS_A = 16384
PART_A = 32768
VT_A = 32768
ROWC_A = 156672
CSKV_A = 158720
NONCE_A = 160768
RDY_A = 160800
CD_A = 160832
PD_A = 160864
LDS_TOTAL = 163840
CH_BYTES = 14336
NST = 4
KVR = 49152
Q_A = KVR + 3 * CH_BYTES
G2R = KVR + CH_BYTES * NST
G2D = 3
TW_A = G2R
OL_A = KVR
WO_HI = 106496
WOA = 0
RED_A = 0

C0 = -2.0 * math.sqrt(2.0 / math.pi) * math.log2(math.e)
C1 = C0 * 0.044715
QSC = math.log2(math.e) / math.sqrt(20.0)
M_OFFSET = 90.0
POLL_MAX = 400000
NONCE_X = 0x5a5a5a5a

HM = 's[62:63]'
PFWAIT = False
ENV = os.environ
NODOWN = ENV.get('NODOWN')
PRIO2 = int(ENV.get('PRIO2', '3'))
PRIO1 = int(ENV.get('PRIO1', '3'))
SPACE = ENV.get('SPACE', 's_nop 7')
NOPF = not ENV.get('PF')
INV = int(ENV.get('INV', '0'))
NOG2 = ENV.get('NOG2')
TLBW = int(ENV.get('TLBW', '0'))
JX = int(ENV.get('JX', '0'))
QSLEEP = int(ENV.get('QSLEEP', '4'))
KVF = int(ENV.get('KVF', '3'))
OUTSC = {'': '', '1': ' sc1', '2': ' nt', '3': ' sc0 sc1', '4': ' sc1 nt'}[ENV.get('OUTSC', '')]
HPF = int(ENV.get('HPF', '2'))
PERM = int(ENV.get('PERM', '3'))
P1PF = int(ENV.get('P1PF', '0'))
PFC = tuple(int(x) for x in ENV.get('PFC', '2,3,4').split(','))
WDC = int(ENV.get('WDC', '2'))
WOC = int(ENV.get('WOC', '4'))
TWC = int(ENV.get('TWC', '1'))
DPOLL2 = 0
OSLEEP = int(ENV.get('OSLEEP', '1'))
LATE1 = int(ENV.get('LATE1', '1'))
OPOLL_MAX = 200000
LINPF = int(ENV.get('LINPF', '0'))
NOSL = ENV.get('NOSL')
PF0 = int(ENV.get('PF0', '0'))
JIT = int(ENV.get('JIT', '0'))
JITD = int(ENV.get('JITD', '4'))
SLC = int(ENV.get('SLC', '0'))
SLG = int(ENV.get('SLG', '1'))
SPN = int(ENV.get('SPN', '2'))
PZ0 = int(ENV.get('PZ0', '0'))
P3C = int(ENV.get('P3C', '7'))
EARLY2 = int(ENV.get('EARLY2', '0'))
CWARM = int(ENV.get('CWARM', '1'))
KVSL = int(ENV.get('KVSL', '16'))
HEARLY = ENV.get('HEARLY')
PSLEEP = int(ENV.get('PSLEEP', '2'))
NOPF2 = not ENV.get('PF2')
CV = int(ENV.get('CV', '0'))
NODMA = ENV.get('NODMA')
IST = ENV.get('IST')
LD = ' sc1' if ENV.get('SC1LD') else ''
FEWST = ENV.get('FEWST')
IST_LIST = tuple(int(x) for x in os.environ.get('ISTL', '1,2,6,7').split(','))
HFLAG_T = int(os.environ.get('HFT', '6'))
G2_START = int(os.environ.get('G2S', '6'))
G2_END = int(os.environ.get('G2E', '15'))


class VM:
    def __init__(self):
        self.ops = []

    def add(self, tag, n=1, optional=False):
        for _ in range(n):
            self.ops.append((tag, optional))

    def wait(self, tag):
        idx = max(i for i, (t, o) in enumerate(self.ops) if t == tag)
        n = sum(1 for t, o in self.ops[idx + 1:] if not o)
        assert n <= 63, n
        return n

    def drain(self):
        self.ops = []


def emit(a, bundles):
    for b in bundles:
        a(b if isinstance(b, str) else '\n'.join(b))


def flag_store(a, soff_reg, vt):
    a(f'''
    v_mov_b32 {v(vt)}, s98
    v_mov_b32 {v(vt + 1)}, s99
    s_mov_b64 exec, 1
    buffer_store_dwordx2 {v(vt, 2)}, off, s[20:23], {soff_reg} sc1
    s_mov_b64 exec, -1
    ''')


def poll(a, vt, voff, soff_reg, wide=False, ignore=None, inv=True, sleep=None):
    L = a.label('poll')
    Ld = a.label('polld')
    a(f's_mov_b32 s93, {POLL_MAX}')
    a(f'{L}:')
    if wide:
        a(f'''
        buffer_load_dwordx4 {v(vt, 4)}, {v(voff)}, s[20:23], {soff_reg} offen sc1
        s_waitcnt vmcnt(0)
        v_cmp_eq_u64 vcc, s[98:99], {v(vt, 2)}
        v_cmp_eq_u64 s[46:47], s[98:99], {v(vt + 2, 2)}
        s_nop 1
        s_and_b64 vcc, vcc, s[46:47]
        ''')
    else:
        a(f'''
        buffer_load_dwordx2 {v(vt, 2)}, {v(voff)}, s[20:23], {soff_reg} offen sc1
        s_waitcnt vmcnt(0)
        v_cmp_eq_u64 vcc, s[98:99], {v(vt, 2)}
        s_nop 1
        ''')
    if ignore:
        a(f's_or_b64 vcc, vcc, {ignore}')
    a(f'''
    s_cmp_eq_u64 vcc, -1
    s_cbranch_scc1 {Ld}
    s_sub_u32 s93, s93, 1
    s_cbranch_scc1 {Ld}
    s_sleep {sleep or PSLEEP}
    s_branch {L}
    {Ld}:
    ''')
    if inv and INV:
        a('buffer_inv sc1\ns_waitcnt vmcnt(0)')


def polln(a, vt, voff, rows, sleep):
    L = a.label('poll')
    Ld = a.label('polld')
    a(f's_mov_b32 s93, {POLL_MAX}\n{L}:')
    for q, (so, ig) in enumerate(rows):
        a(f'buffer_load_dwordx2 {v(vt + 2 * q, 2)}, {v(voff[q] if isinstance(voff, list) else voff)}, s[20:23], {so} offen sc1')
    a('s_waitcnt vmcnt(0)')
    dst = ['vcc', 's[46:47]', 's[48:49]']
    for q in range(len(rows)):
        a(f'v_cmp_eq_u64 {dst[q]}, s[98:99], {v(vt + 2 * q, 2)}')
    a('s_nop 1')
    for q, (so, ig) in enumerate(rows):
        if ig:
            a(f's_or_b64 {dst[q]}, {dst[q]}, {ig}')
        if q:
            a(f's_and_b64 vcc, vcc, {dst[q]}')
    a(f'''
    s_cmp_eq_u64 vcc, -1
    s_cbranch_scc1 {Ld}
    s_sub_u32 s93, s93, 1
    s_cbranch_scc1 {Ld}
    s_sleep {sleep}
    s_branch {L}
    {Ld}:
    ''')


def one_poller(a, vt, word, body, who=3):
    Lw, Ld, Ls = a.label('opw'), a.label('opd'), a.label('ops')
    a(f'''
    v_mov_b32 {v(vt + 3)}, {RDY_A + 4 * word}
    s_cmp_lg_u32 s26, {who}
    s_cbranch_scc1 {Lw}
    ''')
    body()
    a(f'''
    v_mov_b32 {v(vt + 2)}, s98
    ds_write_b32 {v(vt + 3)}, {v(vt + 2)}
    s_branch {Ld}
    {Lw}:
    s_mov_b32 s93, {POLL_MAX * 8}
    {Ls}:
    ds_read_b32 {v(vt + 2)}, {v(vt + 3)}
    s_waitcnt lgkmcnt(0)
    v_readfirstlane_b32 s46, {v(vt + 2)}
    s_cmp_eq_u32 s46, s98
    s_cbranch_scc1 {Ld}
    s_sub_u32 s93, s93, 1
    s_cbranch_scc1 {Ld}
    s_sleep 1
    s_branch {Ls}
    {Ld}:
    ''')


def bstamp(a, first=False):
    if not (asmlib.STAMPS and ENV.get('BST')):
        return
    if first:
        a('s_add_u32 s101, s92, 0xC0000')
    a('''
    s_memrealtime s[94:95]
    s_memtime s[96:97]
    s_waitcnt lgkmcnt(0)
    v_mov_b32 v166, s94
    v_mov_b32 v167, s96
    buffer_store_dwordx2 v[166:167], off, s[88:91], s101
    s_add_u32 s101, s101, 8
    ''')


def srd(a, base, ptr, size):
    a(f'''
    s_mov_b32 s{base}, s{ptr}
    s_mov_b32 s{base + 1}, s{ptr + 1}
    s_mov_b32 s{base + 2}, {size}
    s_mov_b32 s{base + 3}, 0x20000
    ''')


def w_source(a):
    a('''
    s_and_b32 s44, s26, 1
    s_and_b32 s51, s44, s48
    s_lshr_b32 s45, s26, 1
    s_lshl_b32 s46, s44, 6
    s_add_u32 s46, s46, s49
    s_cmp_eq_u32 s48, 1
    s_cselect_b32 s46, s49, s46
    s_lshl_b32 s47, s45, 6
    s_add_u32 s47, s47, s50
    s_cmp_eq_u32 s51, 1
    s_cselect_b32 s52, s47, s46
    s_lshl_b32 s52, s52, 1
    s_cmp_eq_u32 s45, 1
    s_cselect_b32 s12, s82, s80
    s_cselect_b32 s13, s83, s81
    s_mov_b32 s14, 2211840
    s_mov_b32 s53, 3456
    s_cmp_eq_u32 s51, 1
    s_cselect_b32 s12, s70, s12
    s_cselect_b32 s13, s71, s13
    s_cselect_b32 s14, 819200, s14
    s_cselect_b32 s53, 1280, s53
    s_mov_b32 s15, 0x20000
    ''')


def tile_offs(t):
    p, o = t >> 1, t & 1
    b = p * 7168
    return b + o * 1024, b + 2048, b + 3072 + o * 2048, b + 4096 + o * 2048


def gen():
    a = Asm()
    a(kernel_head(KNAME))
    stamp_early(a)
    vL, vH, vR = 1, 2, 3
    L_end = a.label('end')
    L_aux = a.label('aux')
    a(f'''
    s_cmp_ge_u32 s2, 256
    s_cbranch_scc1 {L_end}
    s_load_dwordx8 s[68:75], s[0:1], 0
    s_load_dwordx4 s[80:83], s[0:1], 48
    s_load_dwordx4 s[76:79], s[0:1], 80
    s_load_dwordx2 s[84:85], s[0:1], 32
    s_load_dwordx4 s[88:91], s[0:1], 64
    v_lshrrev_b32 v4, 6, v0
    v_and_b32 {v(vL)}, 63, v0
    v_readfirstlane_b32 s24, v4
    v_lshrrev_b32 {v(vH)}, 5, {v(vL)}
    v_and_b32 {v(vR)}, 31, {v(vL)}
    ''')
    if CWARM:
        Lw, Lp = a.label('nowarm'), a.label('pc')
        a(f'''
        s_cmp_lg_u32 s24, 11
        s_cbranch_scc1 {Lw}
        s_getpc_b64 s[4:5]
        {Lp}:
        s_bfe_u32 s44, s2, 0x30003
        s_lshl_b32 s44, s44, 13
        v_lshl_add_u32 v4, {v(vL)}, 7, s44
        v_min_u32 v4, {L_end}-{Lp}, v4
        global_load_dword v165, v4, s[4:5]
        {Lw}:
        ''')
    vXD, vWD, vKD = 20, 22, 24
    t0, t1, t2, t3, t4 = 4, 5, 6, 7, 8
    a(f'''
    s_bfe_u32 s27, s2, 0x30003
    s_and_b32 s46, s2, 1
    s_lshl_b32 s46, s46, 3
    s_add_u32 s27, s27, s46
    s_bfe_u32 s46, s2, 0x20001
    s_xor_b32 s46, s46, {JX}
    s_lshl_b32 s46, s46, 2
    s_lshr_b32 s47, s2, 6
    s_add_u32 s28, s46, s47
    s_cmp_ge_u32 s28, 11
    s_cselect_b32 s48, 1, 0
    s_sub_u32 s44, s28, 11
    s_lshl_b32 s45, s44, 6
    s_add_u32 s45, s45, 1408
    s_lshl_b32 s46, s28, 7
    s_lshl_b32 s50, s44, 7
    s_cmp_eq_u32 s48, 1
    s_cselect_b32 s49, s45, s46
    s_and_b32 s25, s24, 1
    s_lshr_b32 s26, s24, 1
    s_sub_u32 s44, s24, 8
    s_cmp_ge_u32 s24, 8
    s_cselect_b32 s26, s44, s26
    s_and_b32 s44, s26, 1
    s_and_b32 s51, s44, s48
    s_lshr_b32 s43, s26, 1
    s_andn2_b32 s46, s44, s48
    s_lshl_b32 s46, s46, 6
    s_add_u32 s46, s46, s49
    s_lshl_b32 s47, s43, 6
    s_add_u32 s47, s47, s50
    s_mov_b32 s53, 3456
    s_cmp_eq_u32 s51, 1
    s_cselect_b32 s52, s47, s46
    s_cselect_b32 s53, 1280, s53
    s_lshl_b32 s52, s52, 1
    s_lshl_b32 s31, s53, 3
    s_lshl_b32 s32, s53, 6
    v_lshrrev_b32 {v(t0)}, 3, {v(vL)}
    v_and_b32 {v(t1)}, 7, {v(vL)}
    s_lshl_b32 s44, s27, 7
    s_lshl_b32 s45, s26, 5
    s_add_u32 s44, s44, s45
    v_add_u32 {v(t2)}, s44, {v(t0)}
    v_mul_u32_u24 {v(t2)}, 1280, {v(t2)}
    v_lshrrev_b32 {v(t3)}, 1, {v(t0)}
    v_xor_b32 {v(t3)}, {v(t3)}, {v(t1)}
    v_lshl_add_u32 {v(vXD)}, {v(t3)}, 4, {v(t2)}
    v_xor_b32 {v(t3)}, 4, {v(t3)}
    v_lshl_add_u32 {v(vXD + 1)}, {v(t3)}, 4, {v(t2)}
    v_add_u32 {v(vXD + 1)}, {8 * 1280}, {v(vXD + 1)}
    v_mul_lo_u32 {v(t2)}, {v(t0)}, s53
    v_lshrrev_b32 {v(t3)}, 1, {v(t1)}
    v_and_b32 {v(t4)}, 2, {v(t0)}
    v_xor_b32 {v(t3)}, {v(t3)}, {v(t4)}
    v_and_b32 {v(t4)}, 1, {v(t1)}
    v_lshl_add_u32 {v(t2)}, {v(t4)}, 4, {v(t2)}
    v_add_u32 {v(t2)}, s52, {v(t2)}
    v_lshl_add_u32 {v(vWD)}, {v(t3)}, 5, {v(t2)}
    v_xor_b32 {v(t3)}, 1, {v(t3)}
    v_lshl_add_u32 {v(vWD + 1)}, {v(t3)}, 5, {v(t2)}
    s_lshl_b32 s36, s26, 12
    s_mul_i32 s37, s26, 24576
    s_add_u32 s37, s37, {LDS_W}
    s_lshl_b32 s33, s53, 5
    s_mul_i32 s33, s33, s25
    s_lshl_b32 s44, s25, 12
    s_add_u32 s35, s37, s44
    s_bfe_u32 s44, s2, 0x30003
    s_lshr_b32 s45, s2, 6
    s_add_u32 s44, s44, s45
    s_and_b32 s100, s44, {PERM}
    s_xor_b32 s45, s100, 1
    s_mul_i32 s38, s100, s32
    s_mul_i32 s39, s45, s32
    s_mov_b32 s10, 2621440
    s_mov_b32 s11, 0x20000
    s_mov_b32 s14, 2211840
    s_mov_b32 s15, 0x20000
    s_cmp_ge_u32 s24, 8
    s_cbranch_scc1 {L_aux}
    s_cmp_eq_u32 s43, 1
    s_waitcnt lgkmcnt(0)
    s_cselect_b32 s12, s82, s80
    s_cselect_b32 s13, s83, s81
    s_cmp_eq_u32 s51, 1
    s_cselect_b32 s12, s70, s12
    s_cselect_b32 s13, s71, s13
    s_cselect_b32 s14, 819200, s14
    ''')
    def c_start(c):
        for e in range(4):
            a(f'''
            s_add_u32 m0, s35, {c * 8192 + e * 1024}
            s_add_u32 s34, s33, s{38 + c}
            buffer_load_dwordx4 {v(vWD + (e & 1))}, s[12:15], s34 offen lds
            ''')
            if e < 3:
                a('s_add_u32 s33, s33, s31')
            elif c == 0:
                a('s_mul_i32 s44, s31, 3\ns_sub_u32 s33, s33, s44')
    c_start(0)
    if not LATE1:
        c_start(1)
    L_com = a.label('common')
    a(f'''
    s_mov_b32 s8, s68
    s_mov_b32 s9, s69
    s_mov_b32 s16, s72
    s_mov_b32 s17, s73
    s_mov_b32 s18, 25600
    s_mov_b32 s19, 0x20000
    v_mov_b32 {v(vKD)}, 0
    s_branch {L_com}
    {L_aux}:
    s_setprio {PRIO1}
    s_cmp_lt_u32 s28, 8
    s_cselect_b32 s54, 1, 0
    s_cmp_lt_u32 s26, 3
    s_cselect_b32 s40, s54, 0
    s_lshl_b32 s44, s26, 10
    s_add_u32 s38, s44, {LDS_KV}
    v_lshl_add_u32 {v(vKD)}, {v(vL)}, 4, s44
    s_mov_b32 s18, 25600
    s_mov_b32 s19, 0x20000
    s_lshl_b32 s46, s100, 7
    s_lshl_b32 s57, s45, 7
    s_mul_i32 s58, s100, 2560
    s_mul_i32 s59, s45, 2560
    s_bitcmp1_b32 s28, 2
    s_waitcnt lgkmcnt(0)
    s_mov_b32 s8, s68
    s_mov_b32 s9, s69
    s_cselect_b32 s16, s74, s72
    s_cselect_b32 s17, s75, s73
    ''')
    def a_start(c):
        for e in range(4):
            a(f'''
            s_add_u32 m0, s36, {LDS_X + c * 16384 + e * 1024}
            s_add_u32 s34, s{(46, 57)[c]}, {(e >> 1) * 16 * 1280}
            buffer_load_dwordx4 {v(vXD + (e & 1))}, s[8:11], s34 offen lds
            ''')
        lab = a.label('nokv')
        a(f'''
        s_cmp_eq_u32 s40, 0
        s_cbranch_scc1 {lab}
        s_add_u32 m0, s38, {c * 3072}
        s_nop 0
        buffer_load_dwordx4 {v(vKD)}, s[16:19], s{58 + c} offen lds
        {lab}:
        ''')
    a_start(0)
    if not LATE1:
        a_start(1)
    a(f'''
    s_cmp_eq_u32 s43, 1
    s_cselect_b32 s12, s82, s80
    s_cselect_b32 s13, s83, s81
    s_cmp_eq_u32 s51, 1
    s_cselect_b32 s12, s70, s12
    s_cselect_b32 s13, s71, s13
    s_cselect_b32 s14, 819200, s14
    {L_com}:
    s_mov_b32 s62, 0
    s_mov_b32 s63, -1
    s_and_b32 s44, s2, 7
    s_lshl_b32 s44, s44, 2
    s_bfe_u32 s46, s2, 0x20003
    s_add_u32 s29, s44, s46
    s_lshr_b32 s30, s2, 5
    ''')
    srd(a, 20, 78, WS_USED)
    srd(a, 64, 90, 2621440)
    if asmlib.STAMPS:
        a('s_mov_b32 s86, s88\ns_mov_b32 s87, s89')
    WDP = 86 if asmlib.STAMPS else 88
    if asmlib.STAMPS:
        a(f'''
        s_mov_b32 s88, s78
        s_mov_b32 s89, s79
        s_mov_b32 s90, 0x2000000
        s_mov_b32 s91, 0x20000
        s_mul_i32 s92, s2, 12
        s_add_u32 s92, s92, s24
        s_lshl_b32 s92, s92, 8
        s_add_u32 s92, s92, {asmlib.STAMP_OFF}
        ''')
    stamp(a, 0, early=True)
    stamp(a, 24)
    L_aux2 = a.label('aux2')
    a(f'''
    s_cmp_ge_u32 s24, 8
    s_cbranch_scc1 {L_aux2}
    ''')
    compute_wave(a, vL, vH, vR, L_end, c_start)
    a(f'{L_aux2}:')
    aux_wave(a, vL, vH, vR, L_end, WDP, a_start)
    a(f'''
    {L_end}:
    s_endpgm
    ''')
    return a.text()


def compute_wave(a, vL, vH, vR, L_end, c_start):
    al = Alloc(4, 168)
    T = al('T', 8, 4)
    ACC = al('acc', 64, 4)
    XF = al('xf', 32, 4)
    WF = al('wf', 16, 4)
    vXA = al('xa', 2)
    vWA = al('wa', 4)
    assert al.p == 130
    t0, t1, t2, t3, t4 = T, T + 1, T + 2, T + 3, T + 4
    a.c('=========== compute wave: phase 1 ===========')
    CR = 132
    XR = 132
    U = 160
    u0, u1, u2, u3, u4, u5 = range(U, U + 6)
    W4 = 144
    vN = 130
    srd(a, 4, 76, 256)

    a(f'''
    s_lshr_b32 s44, s30, 2
    s_lshl_b32 s46, s29, 1
    s_add_u32 s46, s46, s44
    s_and_b32 s44, s30, 3
    s_lshl_b32 s44, s44, 3
    s_add_u32 s45, s44, s24
    s_mul_i32 s37, s46, 40960
    s_add_u32 s37, s37, {OF_OFF}
    s_lshl_b32 s36, s45, 10
    s_add_u32 s36, s36, s37
    s_lshl_b32 s44, s45, 8
    s_add_u32 s37, s37, s44
    s_add_u32 s37, s37, 32768
    ''')
    PZ = 152
    poison = [f'v_mov_b32 {v(PZ + q)}, -1' for q in range(4)] + [
        f'v_lshlrev_b32 {v(u4)}, 4, {v(vL)}', f'v_lshlrev_b32 {v(u5)}, 2, {v(vL)}',
        f'buffer_store_dwordx4 {v(PZ, 4)}, {v(u4)}, s[20:23], s36 offen sc1',
        f'buffer_store_dword {v(PZ)}, {v(u5)}, s[20:23], s37 offen sc1']

    def lines(txt):
        return [x.strip() for x in txt.split(chr(10)) if x.strip()]

    def load_cs():
        f = lines(f'''
        s_mul_i32 s44, s27, 40
        v_lshrrev_b32 {v(u1)}, 3, {v(vL)}
        v_add_u32 {v(u1)}, s44, {v(u1)}
        v_mul_lo_u32 {v(u2)}, {v(u1)}, s53
        v_and_b32 {v(u1)}, 7, {v(vL)}
        v_lshl_add_u32 {v(u2)}, {v(u1)}, 4, {v(u2)}
        s_mov_b32 s34, s52
        ''')
        for t in range(5):
            f.append([f'buffer_load_dwordx4 {v(CR + 4 * t, 4)}, {v(u2)}, s[12:15], s34 offen', 's_add_u32 s34, s34, s31'])
        return f

    def load_rows():
        f = lines(f'''
        s_lshl_b32 s44, s27, 7
        s_lshl_b32 s45, s28, 3
        s_add_u32 s44, s44, s45
        s_lshl_b32 s45, s26, 1
        s_add_u32 s55, s44, s45
        v_add_u32 {v(u0)}, s55, {v(vH)}
        v_mul_u32_u24 {v(u0)}, 1280, {v(u0)}
        v_lshl_add_u32 {v(u0)}, {v(vR)}, 3, {v(u0)}
        ''')
        for t in range(5):
            f.append(f'buffer_load_dwordx2 {v(XR + 2 * t, 2)}, {v(u0)}, s[8:11], 0 offen offset:{256 * t}')
        return f

    def fill_cs():
        A8 = 152
        f = []
        for q in range(4):
            f += [f'v_lshlrev_b32 {v(A8 + 2 * q)}, 16, {v(CR + q)}', f'v_and_b32 {v(A8 + 2 * q + 1)}, 0xffff0000, {v(CR + q)}']
        for t in range(1, 5):
            for q in range(4):
                ta, tb = (u2, u3) if q & 1 else (u4, u5)
                f += lines(f'''
                v_lshlrev_b32 {v(ta)}, 16, {v(CR + 4 * t + q)}
                v_and_b32 {v(tb)}, 0xffff0000, {v(CR + 4 * t + q)}
                v_add_f32 {v(A8 + 2 * q)}, {v(A8 + 2 * q)}, {v(ta)}
                v_add_f32 {v(A8 + 2 * q + 1)}, {v(A8 + 2 * q + 1)}, {v(tb)}
                ''')
        f.append('s_nop 1')
        f += [f'v_permlane32_swap_b32 {v(A8 + q)}, {v(A8 + 4 + q)}' for q in range(4)]
        f.append('s_nop 1')
        f += [f'v_add_f32 {v(A8 + q)}, {v(A8 + q)}, {v(A8 + 4 + q)}' for q in range(4)]
        f.append('s_nop 1')
        f += [f'v_permlane16_swap_b32 {v(A8 + q)}, {v(A8 + 2 + q)}' for q in range(2)]
        f.append('s_nop 1')
        f += [f'v_add_f32 {v(A8 + q)}, {v(A8 + q)}, {v(A8 + 2 + q)}' for q in range(2)]
        f += lines(f'''
        s_nop 1
        v_add_f32_dpp {v(A8)}, {v(A8)}, {v(A8)} row_ror:8 row_mask:0xf bank_mask:0xf
        v_add_f32_dpp {v(A8 + 1)}, {v(A8 + 1)}, {v(A8 + 1)} row_ror:8 row_mask:0xf bank_mask:0xf
        s_mov_b32 vcc_lo, 0xff00ff00
        s_mov_b32 vcc_hi, 0xff00ff00
        v_cndmask_b32 {v(u0)}, {v(A8)}, {v(A8 + 1)}, vcc
        v_cvt_pk_bf16_f32 {v(u1)}, {v(u0)}, {v(u0)}
        v_and_b32 {v(u1)}, 0xffff0000, {v(u1)}
        v_sub_f32 {v(u1)}, {v(u0)}, {v(u1)}
        v_cvt_pk_bf16_f32 {v(u0)}, {v(u0)}, {v(u1)}
        v_and_b32 {v(u1)}, 7, {v(vL)}
        v_lshl_add_u32 {v(u1)}, {v(u1)}, 1, {v(vH)}
        v_bfe_u32 {v(u2)}, {v(vL)}, 4, 1
        v_lshl_add_u32 {v(u1)}, {v(u1)}, 1, {v(u2)}
        v_bfe_u32 {v(u2)}, {v(vL)}, 3, 1
        v_lshl_add_u32 {v(u1)}, {v(u1)}, 1, {v(u2)}
        v_and_b32 {v(u2)}, 15, {v(u1)}
        v_lshrrev_b32 {v(u3)}, 4, {v(u1)}
        s_and_b32 s44, s26, 1
        s_andn2_b32 s44, s44, s48
        s_lshl_b32 s44, s44, 7
        s_lshr_b32 s45, s26, 1
        s_lshl_b32 s45, s45, 4
        s_add_u32 s44, s44, s45
        v_lshl_add_u32 {v(u4)}, {v(u3)}, 5, s44
        s_add_u32 s44, s26, 3
        s_lshl_b32 s44, s44, 5
        v_lshl_add_u32 {v(u5)}, {v(u3)}, 4, s44
        s_cmp_eq_u32 s51, 1
        s_cselect_b64 vcc, -1, 0
        v_cndmask_b32 {v(u4)}, {v(u4)}, {v(u5)}, vcc
        v_add_lshl_u32 {v(u2)}, {v(u2)}, {v(u4)}, 2
        s_lshl_b32 s44, s28, 14
        s_lshl_b32 s45, s27, 10
        s_add_u32 s44, s44, s45
        s_add_u32 s44, s44, {CSW}
        buffer_store_dword {v(u0)}, {v(u2)}, s[20:23], s44 offen sc1
        s_lshl_b32 s46, s27, 2
        s_add_u32 s46, s46, s26
        s_lshl_b32 s46, s46, 7
        s_lshl_b32 s45, s28, 13
        s_add_u32 s46, s46, s45
        s_add_u32 s56, s46, {F_CS}
        ''')
        return f

    def fill_rows():
        f = [f'v_mov_b32 {v(u0)}, 0', f'v_mov_b32 {v(u1)}, 0']
        for t in range(10):
            f += lines(f'''
            v_lshlrev_b32 {v(u2)}, 16, {v(XR + t)}
            v_and_b32 {v(u3)}, 0xffff0000, {v(XR + t)}
            v_add_f32 {v(u0)}, {v(u0)}, {v(u2)}
            v_fmac_f32 {v(u1)}, {v(u2)}, {v(u2)}
            v_add_f32 {v(u0)}, {v(u0)}, {v(u3)}
            v_fmac_f32 {v(u1)}, {v(u3)}, {v(u3)}
            ''')
        for ror in (8, 4, 2, 1):
            f += lines(f'''
            s_nop 1
            v_add_f32_dpp {v(u0)}, {v(u0)}, {v(u0)} row_ror:{ror} row_mask:0xf bank_mask:0xf
            v_add_f32_dpp {v(u1)}, {v(u1)}, {v(u1)} row_ror:{ror} row_mask:0xf bank_mask:0xf
            ''')
        f += lines(f'''
        v_mov_b32 {v(u2)}, {v(u0)}
        v_mov_b32 {v(u3)}, {v(u1)}
        s_nop 1
        v_permlane16_swap_b32 {v(u0)}, {v(u2)}
        v_permlane16_swap_b32 {v(u1)}, {v(u3)}
        s_mov_b32 s44, {f2u(1.0 / 640.0)}
        s_mov_b32 s45, {f2u(1e-5)}
        v_add_f32 {v(u0)}, {v(u0)}, {v(u2)}
        v_add_f32 {v(u1)}, {v(u1)}, {v(u3)}
        v_mul_f32 {v(u0)}, s44, {v(u0)}
        v_mul_f32 {v(u1)}, s44, {v(u1)}
        v_fma_f32 {v(u1)}, -{v(u0)}, {v(u0)}, {v(u1)}
        v_max_f32 {v(u1)}, 0, {v(u1)}
        v_cvt_pk_bf16_f32 {v(W4)}, -{v(u0)}, -{v(u0)}
        v_cvt_pk_bf16_f32 {v(u1)}, {v(u1)}, {v(u1)}
        v_and_b32 {v(u1)}, 0xffff0000, {v(u1)}
        v_add_f32 {v(u1)}, s45, {v(u1)}
        v_cvt_pk_bf16_f32 {v(u1)}, {v(u1)}, {v(u1)}
        v_and_b32 {v(u1)}, 0xffff0000, {v(u1)}
        v_sqrt_f32 {v(u1)}, {v(u1)}
        v_mov_b32 {v(W4 + 3)}, 0
        v_cvt_pk_bf16_f32 {v(u1)}, {v(u1)}, {v(u1)}
        v_and_b32 {v(u1)}, 0xffff0000, {v(u1)}
        v_rcp_f32 {v(W4 + 1)}, {v(u1)}
        v_mul_f32 {v(W4 + 2)}, {v(u1)}, {v(u1)}
        v_lshlrev_b32 {v(u2)}, 4, {v(vH)}
        s_lshl_b32 s44, s55, 4
        s_add_u32 s44, s44, {ROWW}
        ''')
        f.append(['s_mov_b32 exec_lo, 1', 's_mov_b32 exec_hi, 1',
                  f'buffer_store_dwordx4 {v(W4, 4)}, {v(u2)}, s[20:23], s44 offen sc1', 's_mov_b64 exec, -1'])
        f += lines(f'''
        s_lshl_b32 s44, s28, 2
        s_add_u32 s44, s44, s26
        s_lshl_b32 s44, s44, 7
        s_lshl_b32 s45, s27, 13
        s_add_u32 s44, s44, s45
        s_add_u32 s56, s44, {F_ST}
        ''')
        return f

    stamp(a, 22)
    a(f'''
    v_and_b32 {v(t0)}, 15, {v(vL)}
    v_lshrrev_b32 {v(t1)}, 4, {v(vL)}
    v_lshrrev_b32 {v(t2)}, 1, {v(t0)}
    v_xor_b32 {v(t2)}, {v(t2)}, {v(t1)}
    v_lshlrev_b32 {v(t0)}, 7, {v(t0)}
    s_lshl_b32 s44, s25, 13
    v_add_u32 {v(t0)}, s44, {v(t0)}
    v_lshl_add_u32 {v(vXA)}, {v(t2)}, 4, {v(t0)}
    v_xor_b32 {v(t2)}, 4, {v(t2)}
    v_lshl_add_u32 {v(vXA + 1)}, {v(t2)}, 4, {v(t0)}
    v_bfe_u32 {v(t2)}, {v(vL)}, 2, 2
    v_lshl_add_u32 {v(t0)}, {v(t1)}, 3, {v(t2)}
    v_lshlrev_b32 {v(t0)}, 7, {v(t0)}
    v_and_b32 {v(t3)}, 3, {v(vL)}
    v_lshl_add_u32 {v(t0)}, {v(t3)}, 3, {v(t0)}
    v_and_b32 {v(t2)}, 2, {v(t2)}
    v_and_b32 {v(t1)}, 1, {v(t1)}
    v_xor_b32 {v(t1)}, {v(t1)}, {v(t2)}
    s_lshr_b32 s44, s26, 1
    s_and_b32 s57, s44, s48
    ''')
    for t in range(4):
        a(f'''
        s_lshl_b32 s44, s26, 1
        s_add_u32 s45, s44, {t >> 1}
        s_and_b32 s46, s45, 3
        s_lshr_b32 s45, s45, 2
        s_add_u32 s45, s45, {2 * (t & 1)}
        s_sub_u32 s44, s44, 3
        s_cmp_eq_u32 s57, 1
        s_cselect_b32 s45, s44, s45
        s_cselect_b32 s46, {t}, s46
        s_mul_i32 s45, s45, 24576
        s_add_u32 s45, s45, {LDS_W}
        v_xor_b32 {v(t2)}, s46, {v(t1)}
        v_lshl_add_u32 {v(t2)}, {v(t2)}, 5, {v(t0)}
        v_add_u32 {v(vWA + t)}, s45, {v(t2)}
        ''')

    def m16(d, A, B, first=False):
        return f'v_mfma_f32_16x16x32_bf16 {v(d, 4)}, {v(A, 4)}, {v(B, 4)}, ' + ('0' if first else v(d, 4))

    def xrd(g):
        c, sI = divmod(g, 2)
        return [f'ds_read_b128 {v(XF + 16 * (g & 1) + 4 * rt, 4)}, {v(vXA + sI)} offset:{LDS_X + (c % 3) * 16384 + 2048 * rt}' for rt in range(4)]

    def wrd(g, t):
        c, sI = divmod(g, 2)
        return [f'ds_read_b64_tr_b16 {v(WF + 4 * t + 2 * z, 2)}, {v(vWA + t)} offset:{(c % 3) * 8192 + 4096 * sI + 512 * z}' for z in range(2)]

    def tile(g, t):
        return [m16(ACC + 16 * t + 4 * rt, WF + 4 * t, XF + 16 * (g & 1) + 4 * rt, g == 0) for rt in range(4)]

    def chunk(c, fill=()):
        a.c(f'chunk {c}')
        if c:
            a('s_waitcnt lgkmcnt(0)')
        a('s_barrier')
        if not FEWST or c in (0, 1, 2, 9):
            stamp(a, 1 + c)
        if c == 9:
            lab = a.label('nqp')
            a(f's_cmp_eq_u32 s57, 0\ns_cbranch_scc1 {lab}\ns_setprio 2\n{lab}:')
        seq = []

        def rest(g, waits):
            pend = (wrd(g + 1, 0) + xrd(g + 1)) if g + 1 < 20 else []
            for t in range(1, 4):
                ms = tile(g, t)
                for q, m_ in enumerate(ms):
                    pre_ = [f's_waitcnt lgkmcnt({(0, 4, 10, 10)[t]})'] if (waits and q == 0) else []
                    ex = pend[2 * q:2 * q + 2] if t == 1 else []
                    if q == 3 and g + 1 < 20:
                        ex = ex + wrd(g + 1, t)
                    seq.append((pre_, m_, ex))
        if c > 0:
            rest(2 * c - 1, False)
        else:
            emit(a, wrd(0, 0) + xrd(0) + wrd(0, 1) + wrd(0, 2) + wrd(0, 3))
        g = 2 * c
        for q, m_ in enumerate(tile(g, 0)):
            seq.append((['s_waitcnt lgkmcnt(6)'] if q == 0 else [], m_, []))
        rest(g, True)
        for q, m_ in enumerate(tile(g + 1, 0)):
            seq.append((['s_waitcnt lgkmcnt(6)'] if q == 0 else [], m_, []))
        n, k_ = len(fill), len(seq)
        for q, (pre_, m_, ex) in enumerate(seq):
            emit(a, pre_)
            a(m_)
            emit(a, ex)
            emit(a, fill[(q * n) // k_:((q + 1) * n) // k_])

    if LATE1:
        c_start(1)
    lab1, lab2 = a.label('rowv'), a.label('join')
    a(f's_cmp_eq_u32 s25, 1\ns_cbranch_scc1 {lab1}')
    for var, (ld, fl) in enumerate(((load_cs(), fill_cs()), (load_rows(), fill_rows()))):
        qp = [] if var == 0 else lines(f'''
        s_mul_i32 s44, s27, 163840
        s_mul_i32 s45, s28, 10240
        s_add_u32 s44, s44, s45
        s_mul_i32 s45, s26, 2560
        s_add_u32 s44, s44, s45
        s_add_u32 s44, s44, {QF_OFF}
        v_lshlrev_b32 {v(u5)}, 3, {v(vL)}
        buffer_store_dwordx4 {v(PZ, 4)}, {v(u4)}, s[20:23], s44 offen sc1
        buffer_store_dwordx4 {v(PZ, 4)}, {v(u4)}, s[20:23], s44 offen offset:1024 sc1
        buffer_store_dwordx2 {v(PZ, 2)}, {v(u5)}, s[20:23], s44 offen offset:2048 sc1
        ''')
        nl = [f'buffer_load_dword {v(vN)}, off, s[4:7], 0 sc1']
        pz0 = poison + qp if PZ0 else []
        fl = (fl + nl) if PZ0 else (poison + qp + fl + nl)
        if SLC == 0:
            emit(a, ld)
        a(f's_waitcnt vmcnt({9 if SLC == 0 else 4})')
        chunk(0, pz0)
        a(f's_waitcnt vmcnt({(5 if SLC == 0 else 0) + ((2, 5)[var] if PZ0 else 0)})')
        n = len(fl)
        f0 = SLC + SLG
        for c in range(1, f0 + SPN):
            if c == SLC:
                chunk(c, ld)
            elif c >= f0:
                q = c - f0
                chunk(c, ([f's_waitcnt vmcnt({(2, 5)[var] if PZ0 else 0})'] if q == 0 else []) + fl[(q * n) // SPN:((q + 1) * n) // SPN])
            else:
                chunk(c)
        if var == 0:
            a(f's_branch {lab2}\n{lab1}:')
    a(f'{lab2}:')
    chunk(f0 + SPN)
    Lp, Lq = a.label('cnp'), a.label('cnd')
    a(f'''
    s_mov_b32 s93, {POLL_MAX}
    {Lp}:
    s_waitcnt vmcnt(0)
    v_readfirstlane_b32 s98, {v(vN)}
    s_cmp_lg_u32 s98, 0
    s_cbranch_scc1 {Lq}
    s_sub_u32 s93, s93, 1
    s_cbranch_scc1 {Lq}
    buffer_load_dword {v(vN)}, off, s[4:7], 0 sc1
    s_branch {Lp}
    {Lq}:
    s_xor_b32 s99, s98, {NONCE_X}
    ''')
    flag_store(a, 's56', U)
    RC, CSF, vS16 = 132, 148, 131
    pre = lines(f'''
    v_and_b32 {v(t2)}, 15, {v(vL)}
    v_lshrrev_b32 {v(t3)}, 4, {v(vL)}
    s_lshl_b32 s44, s25, 10
    s_add_u32 s44, s44, {ROWC_A}
    v_lshl_add_u32 {v(t0)}, {v(t2)}, 4, s44
    s_lshl_b32 s44, s26, 8
    s_add_u32 s44, s44, {CS_A}
    v_lshl_add_u32 {v(t1)}, {v(t2)}, 2, s44
    v_lshl_add_u32 {v(t1)}, {v(t3)}, 12, {v(t1)}
    v_lshlrev_b32 {v(vS16)}, 4, {v(t2)}
    v_lshl_add_u32 {v(vS16)}, {v(t3)}, 9, {v(vS16)}
    ''')
    pre += [f'ds_read_b128 {v(RC + 4 * rt, 4)}, {v(t0)} offset:{256 * rt}' for rt in range(4)]
    for t in range(4):
        for z in range(2):
            pre.append(f'ds_read2st64_b32 {v(CSF + 4 * t + 2 * z, 2)}, {v(t1)} offset0:{8 * z} offset1:{8 * z + 4}')
        if t < 3:
            pre.append(f'v_add_u32 {v(t1)}, 64, {v(t1)}')
    for c in range(f0 + SPN + 1, 10):
        chunk(c, pre if c == 9 else ())
    a(f'''
    s_lshl_b32 s44, s24, 2
    s_add_u32 s44, s44, {CD_A}
    v_mov_b32 {v(t0)}, s44
    v_mov_b32 {v(t1)}, s98
    s_waitcnt lgkmcnt(0)
    ds_write_b32 {v(t0)}, {v(t1)}
    ''')
    NEG = XF
    HH = 148
    ms = tile(19, 1) + tile(19, 2) + tile(19, 3)
    mv = [f'v_mov_b32 {v(NEG + 4 * rt + r)}, {v(RC + 4 * rt)}' for rt in range(4) for r in range(4)]
    for q, m_ in enumerate(ms):
        a(m_)
        emit(a, mv[(q * 16) // 12:((q + 1) * 16) // 12])
    stamp(a, 12)
    a(f'''
    s_mov_b32 s46, {f2u(C0)}
    s_mov_b32 s47, {f2u(C1)}
    ''')
    for rt in range(4):
        for t in range(4):
            a(m16(ACC + 16 * t + 4 * rt, CSF + 4 * t, NEG + 4 * rt))
    L_q = a.label('qepi')
    L_ed = a.label('epidone')
    a(f'''
    s_lshl_b32 s44, s27, 2
    s_lshl_b32 s45, s25, 1
    s_add_u32 s60, s44, s45
    s_cmp_eq_u32 s57, 1
    s_cbranch_scc1 {L_q}
    s_lshr_b32 s44, s49, 4
    s_lshl_b32 s45, s26, 1
    s_add_u32 s44, s44, s45
    s_mul_i32 s42, s60, 108
    s_add_u32 s42, s42, s44
    s_lshl_b32 s42, s42, 10
    s_add_u32 s43, s42, {108 * 1024}
    ''')
    E1, E2, KC = XF + 16, WF, T
    for rt in range(4):
        TT = E1 + 8 * (rt % 2)
        PP = E2 + 8 * (rt % 2)
        G_ = lambda i: ACC + 32 * (i >> 2) + 4 * rt + (i & 3)
        rho = RC + 4 * rt + 1
        a(f'''
        v_mul_f32 {v(KC)}, s46, {v(rho)}
        v_mul_f32 {v(KC + 1)}, s46, {v(rho)}
        v_mul_f32 {v(KC + 4)}, {v(rho)}, {v(rho)}
        v_mov_b32 {v(RC + 4 * rt + 3)}, {v(RC + 4 * rt + 2)}
        v_mul_f32 {v(KC + 4)}, {v(KC + 4)}, {v(rho)}
        v_mul_f32 {v(KC + 2)}, s47, {v(KC + 4)}
        v_mul_f32 {v(KC + 3)}, s47, {v(KC + 4)}
        ''')
        rc = v(RC + 4 * rt + 2, 2)
        for i in range(0, 8, 2):
            a(f'v_pk_mul_f32 {v(TT + i, 2)}, {v(G_(i), 2)}, {v(G_(i), 2)}')
        for i in range(0, 8, 2):
            a(f'v_pk_fma_f32 {v(TT + i, 2)}, {v(TT + i, 2)}, {v(KC + 2, 2)}, {v(KC, 2)}')
        for i in range(0, 8, 2):
            a(f'v_pk_mul_f32 {v(TT + i, 2)}, {v(TT + i, 2)}, {v(G_(i), 2)}')
        for i in range(8):
            a(f'v_exp_f32 {v(TT + i)}, {v(TT + i)}')
        for i in range(0, 8, 2):
            a(f'v_pk_mul_f32 {v(PP + i, 2)}, {v(G_(i), 2)}, {v(G_(i) + 16, 2)}')
        for i in range(0, 8, 2):
            a(f'v_pk_fma_f32 {v(TT + i, 2)}, {v(TT + i, 2)}, {rc}, {rc}')
        for i in range(8):
            a(f'v_rcp_f32 {v(TT + i)}, {v(TT + i)}')
        a('s_nop 0')
        for i in range(0, 8, 2):
            a(f'v_pk_mul_f32 {v(PP + i, 2)}, {v(PP + i, 2)}, {v(TT + i, 2)}')
        for i in range(4):
            a(f'v_cvt_pk_bf16_f32 {v(HH + 4 * rt + i)}, {v(PP + 2 * i)}, {v(PP + 2 * i + 1)}')
    a(f's_branch {L_ed}')
    a(f'{L_q}:')
    a(f'''
    s_sub_u32 s44, s26, 2
    s_lshl_b32 s44, s44, 6
    s_add_u32 s44, s44, s50
    s_lshl_b32 s44, s44, 6
    s_add_u32 s44, s44, {QF_OFF}
    s_mov_b32 s45, {f2u(QSC)}
    s_mul_i32 s46, s60, 40960
    s_add_u32 s46, s46, s44
    s_add_u32 s47, s46, 40960
    ''')
    for rt in range(4):
        a(f'v_mul_f32 {v(T + rt)}, s45, {v(RC + 4 * rt + 1)}')
    for rt in range(4):
        for pz in range(2):
            O_ = E1 + 4 * ((2 * rt + pz) % 8)
            regs = [ACC + 16 * (2 * pz + (i >> 2)) + 4 * rt + (i & 3) for i in range(8)]
            for r_ in regs:
                a(f'v_mul_f32 {v(r_)}, {v(r_)}, {v(T + rt)}')
            for i in range(4):
                a(f'v_cvt_pk_bf16_f32 {v(O_ + i)}, {v(regs[2 * i])}, {v(regs[2 * i + 1])}')
            a(f'buffer_store_dwordx4 {v(O_, 4)}, {v(vS16)}, s[20:23], s{46 + (rt >> 1)} offen offset:{2048 * pz + 256 * (rt & 1)} sc1')
    a(f'{L_ed}:')
    stamp(a, 13)

    a.c('=========== compute wave: attention ===========')
    al3 = Alloc(4, 168)
    T = al3('T', 16, 4)
    S = al3('S', 32, 4)
    O = al3('O', 16, 4)
    V1 = al3('V1', 4, 4)
    V2 = al3('V2', 4, 4)
    Q1 = al3('Q1', 4, 4)
    K1 = al3('K1', 8, 4)
    K2 = al3('K2', 8, 4)
    P = al3('P', 16, 4)
    Q2 = al3('Q2', 2, 2)
    vK = al3('vK')
    vK2 = al3('vK2')
    a(f'''
    s_lshl_b32 s44, s27, 1
    s_add_u32 s44, s44, s25
    s_lshl_b32 s44, s44, 13
    s_lshl_b32 s45, s28, 2
    s_add_u32 s45, s45, s26
    s_lshl_b32 s45, s45, 7
    s_add_u32 s44, s44, s45
    s_add_u32 s41, s44, {F_QH}
    s_nop 1
    ''')
    for i in range(16):
        a(f'v_mov_b32 {v(O + i)}, 0')
    for i in range(4):
        a(f'v_mov_b32 {v(V1 + i)}, 0')
        a(f'v_mov_b32 {v(V2 + i)}, 0')
    a(f'''
    s_mov_b32 s45, {KVR}
    v_lshl_add_u32 {v(vK)}, {v(vL)}, 4, s45
    v_lshl_add_u32 {v(vK2)}, {v(vL)}, 3, s45
    s_mul_i32 s45, s24, 5
    v_lshlrev_b32 {v(T + 4)}, 4, {v(vR)}
    s_lshr_b32 s44, s30, 2
    s_lshl_b32 s46, s29, 1
    s_add_u32 s44, s44, s46
    s_mul_i32 s44, s44, 40960
    s_and_b32 s46, s30, 3
    s_mul_i32 s46, s46, 10240
    s_add_u32 s44, s44, s46
    s_add_u32 s40, s44, {QF_OFF}
    ''')
    for z, (dq, useh) in enumerate(((0, 1), (2, 1), (4, 0))):
        a(f's_add_u32 s46, s45, {dq}')
        a(f'v_add_u32 {v(T + 5)}, s46, {v(vH)}' if useh else f'v_mov_b32 {v(T + 5)}, s46')
        a(f'''
        v_lshrrev_b32 {v(T + 6)}, 3, {v(T + 5)}
        v_lshl_add_u32 {v(T + 6)}, {v(T + 6)}, 11, {v(T + 4)}
        v_and_b32 {v(T + 7)}, 3, {v(T + 5)}
        v_lshl_add_u32 {v(T + 6)}, {v(T + 7)}, 9, {v(T + 6)}
        v_bfe_u32 {v(T + 5)}, {v(T + 5)}, 2, 1
        v_lshl_add_u32 {v(T + 13 + z)}, {v(T + 5)}, 3, {v(T + 6)}
        ''')
    a('s_setprio 0')
    for i in range(8):
        a(f'v_mov_b32 {v(P + 8 + i)}, 0')
    Lp, Lq = a.label('qp'), a.label('qpd')
    a(f'''
    s_mov_b32 s93, {OPOLL_MAX}
    {Lp}:
    buffer_load_dwordx2 {v(Q1, 2)}, {v(T + 13)}, s[20:23], s40 offen sc1
    buffer_load_dwordx2 {v(Q1 + 2, 2)}, {v(T + 14)}, s[20:23], s40 offen sc1
    buffer_load_dwordx2 {v(Q2, 2)}, {v(T + 15)}, s[20:23], s40 offen sc1
    s_waitcnt vmcnt(0)
    v_max3_u32 {v(T)}, {v(Q1)}, {v(Q1 + 1)}, {v(Q1 + 2)}
    v_max3_u32 {v(T + 1)}, {v(Q1 + 3)}, {v(Q2)}, {v(Q2 + 1)}
    v_max_u32 {v(T)}, {v(T)}, {v(T + 1)}
    v_cmp_eq_u32 vcc, -1, {v(T)}
    s_nop 1
    s_cmp_eq_u64 vcc, 0
    s_cbranch_scc1 {Lq}
    s_sub_u32 s93, s93, 1
    s_cbranch_scc1 {Lq}
    s_sleep {QSLEEP}
    s_branch {Lp}
    {Lq}:
    v_mov_b32 {v(T + 2)}, 0
    v_cndmask_b32 {v(Q2)}, {v(Q2)}, {v(T + 2)}, {HM}
    v_cndmask_b32 {v(Q2 + 1)}, {v(Q2 + 1)}, {v(T + 2)}, {HM}
    ''')
    stamp(a, 14)
    a('s_barrier')
    stamp(a, 15)
    o0, o1, o2 = tile_offs(0), tile_offs(1), tile_offs(2)
    a(f'''
    ds_read_b128 {v(K1, 4)}, {v(vK)} offset:{o0[0]}
    ds_read_b128 {v(K1 + 4, 4)}, {v(vK)} offset:{o1[0]}
    ds_read2st64_b64 {v(K2, 4)}, {v(vK2)} offset0:{o0[1] // 512} offset1:{o0[1] // 512 + 1}
    s_waitcnt lgkmcnt(0)
    ''')

    def set_m(mreg, offset):
        t0, t1, t2, t3 = T + 8, T + 9, T + 10, T + 11
        a(f'v_sub_f32 {v(t0)}, {f2u(-offset) if offset else 0}, {v(mreg)}')
        a(f'''
        v_cvt_pk_bf16_f32 {v(t1)}, {v(t0)}, {v(t0)}
        v_and_b32 {v(t2)}, 0xffff0000, {v(t1)}
        v_sub_f32 {v(t2)}, {v(t0)}, {v(t2)}
        v_cvt_pk_bf16_f32 {v(t1)}, {v(t0)}, {v(t2)}
        v_and_b32 {v(t3)}, 0xffff0000, {v(t1)}
        v_sub_f32 {v(t2)}, {v(t2)}, {v(t3)}
        v_mov_b32 {v(t3)}, 0
        v_cvt_pk_bf16_f32 {v(t2)}, {v(t2)}, {v(t3)}
        v_cndmask_b32 {v(Q2)}, {v(Q2)}, {v(t1)}, {HM}
        v_cndmask_b32 {v(Q2 + 1)}, {v(Q2 + 1)}, {v(t2)}, {HM}
        ''')

    def cross_half_max(reg):
        t = T + 12
        a(f'''
        v_mov_b32 {v(t)}, {v(reg)}
        s_nop 1
        v_permlane32_swap_b32 {v(reg)}, {v(t)}
        s_nop 1
        v_max_f32 {v(reg)}, {v(reg)}, {v(t)}
        ''')

    for t in range(2):
        a(mfma16(S + 16 * t, K1 + 4 * t, Q1))
    if not HEARLY:
        lab = a.label('nohst')
        a(f'''
        s_cmp_eq_u32 s57, 1
        s_cbranch_scc1 {lab}
        ''')
        for k in range(4):
            a(f'buffer_store_dwordx4 {v(HH + 4 * k, 4)}, {v(vS16)}, s[20:23], s{42 + (k >> 1)} offen offset:{256 * (k & 1)} sc1')
        a(f'{lab}:')
    a('s_nop 9')
    for t in range(2):
        a(mfma8(S + 16 * t, K2 + 2 * t, Q2, S + 16 * t))
    a('s_nop 11')
    m = T + 4
    for z in range(2):
        a(f'v_max3_f32 {v(m + z)}, {v(S + 16 * z)}, {v(S + 16 * z + 1)}, {v(S + 16 * z + 2)}')
    for i in range(3, 15, 2):
        for z in range(2):
            a(f'v_max3_f32 {v(m + z)}, {v(m + z)}, {v(S + 16 * z + i)}, {v(S + 16 * z + i + 1)}')
    a(f'v_max3_f32 {v(m)}, {v(m)}, {v(S + 15)}, {v(S + 31)}')
    a(f'v_max_f32 {v(m)}, {v(m)}, {v(m + 1)}')
    cross_half_max(m)
    set_m(m, M_OFFSET)
    a('s_nop 1')
    a(mfma16(S, K1, Q1))
    a(f'''
    ds_read_b128 {v(K1, 4)}, {v(vK)} offset:{o2[0]}
    s_mov_b32 s34, 4
    s_nop 7
    ''')
    a(mfma8(S, K2, Q2, S))
    a('s_nop 9')
    stamp(a, 16)

    def toff(tt):
        tt &= 15
        o = tile_offs(tt & 3)
        return [x + (tt >> 2) * CH_BYTES for x in o]

    def k2read(reg, tt):
        o = toff(tt)[1]
        assert o % 512 == 0
        return f'ds_read2st64_b64 {v(reg, 4)}, {v(vK2)} offset0:{o // 512} offset1:{o // 512 + 1}'

    L_hf, L_hb = a.label('hflag'), a.label('hback')

    def slot(t):
        Sx, Sn = S + 16 * (t & 1), S + 16 * ((t + 1) & 1)
        Px, Pp = P + 8 * (t & 1), P + 8 * ((t + 1) & 1)
        kt = t + 1
        kb = kt & 1
        k2 = K2 + 4 * ((kt >> 1) & 1) + 2 * (kt & 1)
        m_ = [mfma16(Sn, K1 + 4 * kb, Q1), mfma16(O, V1, Pp, O), mfma8(Sn, k2, Q2, Sn), mfma16(O, V2, Pp + 4, O)]
        after = [[], [], [], []]
        if t & 3 == 1:
            after[0] = ['s_barrier']
        after[0] += [f'ds_read_b128 {v(K1 + 4 * kb, 4)}, {v(vK)} offset:{toff(t + 3)[0]}', 's_waitcnt lgkmcnt(2)']
        after[1] = [f'ds_read_b128 {v(V1, 4)}, {v(vK)} offset:{toff(t)[2]}']
        if t & 1:
            after[1] += [k2read(K2 + 4 * (((t + 3) >> 1) & 1), t + 3)]
        after[2] += [f's_waitcnt lgkmcnt({3 if t & 1 else 2})']
        after[3] = [f'ds_read_b128 {v(V2, 4)}, {v(vK)} offset:{toff(t)[3]}']
        if t == 15:
            after[3] += ['s_sub_u32 s34, s34, 1']
        if t == HFLAG_T:
            after[3] += ['s_cmp_eq_u32 s34, 4', f's_cbranch_scc1 {L_hf}', f'{L_hb}:']
        val = []
        for i in range(8):
            val.append(f'v_exp_f32 {v(Sx + 2 * i)}, {v(Sx + 2 * i)}')
            val.append(f'v_exp_f32 {v(Sx + 2 * i + 1)}, {v(Sx + 2 * i + 1)}')
            if i > 0:
                val.append(f'v_cvt_pk_bf16_f32 {v(Px + i - 1)}, {v(Sx + 2 * i - 2)}, {v(Sx + 2 * i - 1)}')
        val.append(f'v_cvt_pk_bf16_f32 {v(Px + 7)}, {v(Sx + 14)}, {v(Sx + 15)}')
        groups = [val[0:5], val[5:11], val[11:17], val[17:24]]
        for g in range(4):
            a(m_[g])
            emit(a, after[g])
            emit(a, groups[g])

    a(k2read(K2 + 4, 2))
    L_loop = a.label('att')
    a('.p2align 6')
    a(f'{L_loop}:')
    for t in range(16):
        slot(t)
    a(f'''
    s_cmp_lg_u32 s34, 0
    s_cbranch_scc1 {L_loop}
    s_waitcnt lgkmcnt(0)
    ''')
    a(mfma16(O, V1, P + 8, O))
    a(mfma16(O, V2, P + 12, O))
    a(f'''
    v_lshlrev_b32 {v(T + 2)}, 4, {v(vL)}
    v_lshlrev_b32 {v(T + 3)}, 3, {v(vL)}
    v_mov_b32 {v(T + 9)}, 0x7f000000
    v_cndmask_b32 {v(T + 3)}, {v(T + 3)}, {v(T + 9)}, {HM}
    v_lshlrev_b32 {v(T + 4)}, 3, {v(vR)}
    v_lshl_add_u32 {v(T + 4)}, {v(vH)}, 9, {v(T + 4)}
    s_nop 6
    ''')
    stamp(a, 17)
    L_fb = a.label('fb')
    L_out = a.label('aout')
    a(f'''
    s_mov_b32 s44, {f2u(2.0 ** 120)}
    s_mov_b32 s45, {f2u(2.0 ** -103)}
    v_add_f32 {v(T)}, |{v(O)}|, |{v(O + 1)}|
    ''')
    for i in range(2, 12):
        a(f'v_add_f32 {v(T)}, {v(T)}, |{v(O + i)}|')
    a(f'''
    v_add_f32 {v(T + 1)}, {v(T)}, {v(O + 12)}
    v_cmp_le_f32 s[46:47], s45, {v(T)}
    v_cmp_gt_f32 s[48:49], s44, {v(T + 1)}
    s_nop 1
    s_and_b64 s[46:47], s[46:47], s[48:49]
    s_cmp_eq_u64 s[46:47], -1
    s_cbranch_scc0 {L_fb}
    {L_out}:
    v_rcp_f32 {v(T)}, {v(O + 12)}
    v_rcp_f32 {v(T + 1)}, {v(O + 12)}
    s_nop 0
    ''')
    for i in range(0, 12, 2):
        a(f'v_pk_mul_f32 {v(O + i, 2)}, {v(O + i, 2)}, {v(T, 2)}')
    for i in range(6):
        a(f'v_cvt_pk_bf16_f32 {v(P + i)}, {v(O + 2 * i)}, {v(O + 2 * i + 1)}')
    a(f'buffer_store_dwordx4 {v(P, 4)}, {v(T + 2)}, s[20:23], s36 offen sc1')
    a(f'buffer_store_dwordx2 {v(P + 4, 2)}, {v(T + 3)}, s[20:23], s37 offen sc1')
    stamp(a, 18)
    g2_ids(a)
    OFR = 120
    a(f'''
    s_cmp_eq_u32 s25, 1
    s_cselect_b32 s44, s60, s59
    s_mul_i32 s44, s44, 40960
    s_add_u32 s44, s44, {OF_OFF}
    s_lshl_b32 s45, s26, 13
    s_add_u32 s38, s44, s45
    s_add_u32 s38, s38, 3072
    s_add_u32 s39, s38, 4096
    s_lshl_b32 s45, s26, 11
    s_add_u32 s40, s44, s45
    s_add_u32 s40, s40, 32768
    s_mul_i32 s44, s26, 14336
    s_lshl_b32 s45, s25, 10
    s_add_u32 s44, s44, s45
    s_add_u32 s44, s44, {OL_A}
    v_add_u32 {v(T + 5)}, s44, {v(T + 2)}
    s_barrier
    ''')
    Lp, Lq = a.label('cop'), a.label('copd')
    a(f's_mov_b32 s93, {OPOLL_MAX}\n{Lp}:')
    for q in range(5):
        a(f'buffer_load_dwordx4 {v(OFR + 4 * q, 4)}, {v(T + 2)}, s[20:23], {"s38" if q < 4 else "s39"} offen offset:{1024 * (q & 3)} sc1')
    for q in range(4):
        a(f'buffer_load_dwordx2 {v(OFR + 20 + 2 * q, 2)}, {v(T + 4)}, s[20:23], s40 offen offset:{1024 * (q >> 1) + 256 * (q & 1)} sc1')
    a('s_waitcnt vmcnt(0)')
    a(f'v_max3_u32 {v(T)}, {v(OFR)}, {v(OFR + 1)}, {v(OFR + 2)}')
    for i in range(3, 27, 2):
        a(f'v_max3_u32 {v(T)}, {v(T)}, {v(OFR + i)}, {v(OFR + i + 1)}')
    a(f'''
    v_max_u32 {v(T)}, {v(T)}, {v(OFR + 27)}
    v_cmp_eq_u32 vcc, -1, {v(T)}
    s_nop 1
    s_cmp_eq_u64 vcc, 0
    s_cbranch_scc1 {Lq}
    s_sub_u32 s93, s93, 1
    s_cbranch_scc1 {Lq}
    s_sleep {OSLEEP}
    s_branch {Lp}
    {Lq}:
    ''')
    for q in range(7):
        a(f'ds_write_b128 {v(T + 5)}, {v(OFR + 4 * q, 4)} offset:{2048 * q}')
    stamp(a, 21)
    g2_out(a, S, vL, 's24', 0)
    a('s_waitcnt lgkmcnt(0)')
    a('s_barrier')
    a('s_barrier')
    stamp(a, 19)
    g2_out(a, S, vL, 's24', 1)
    if asmlib.STAMPS:
        a('s_waitcnt vmcnt(0)')
    stamp(a, 20)
    diag_end(a)
    a(f's_branch {L_end}')

    a(f'{L_hf}:')
    a('s_waitcnt vmcnt(0)')
    flag_store(a, 's41', T + 2)
    a(f's_branch {L_hb}')
    a(f'{L_fb}:')
    L1 = a.label('fb1')
    L2 = a.label('fb2')
    a(f'''
    v_lshlrev_b32 {v(T + 13)}, 4, {v(vL)}
    v_lshlrev_b32 {v(T + 7)}, 3, {v(vL)}
    v_mov_b32 {v(T + 14)}, 0
    v_mov_b32 {v(T + 15)}, 0xff800000
    v_cndmask_b32 {v(Q2)}, {v(Q2)}, {v(T + 14)}, {HM}
    v_cndmask_b32 {v(Q2 + 1)}, {v(Q2 + 1)}, {v(T + 14)}, {HM}
    s_mov_b32 s77, {KV_OFF}
    s_mov_b32 s34, 32
    {L1}:
    buffer_load_dwordx4 {v(K1, 4)}, {v(T + 13)}, s[20:23], s77 offen sc1
    buffer_load_dwordx4 {v(K1 + 4, 4)}, {v(T + 13)}, s[20:23], s77 offen offset:1024 sc1
    buffer_load_dwordx2 {v(K2, 2)}, {v(T + 7)}, s[20:23], s77 offen offset:2048 sc1
    buffer_load_dwordx2 {v(K2 + 2, 2)}, {v(T + 7)}, s[20:23], s77 offen offset:2560 sc1
    s_waitcnt vmcnt(0)
    ''')
    for t in range(2):
        a(mfma16(S + 16 * t, K1 + 4 * t, Q1))
    a('s_nop 9')
    for t in range(2):
        a(mfma8(S + 16 * t, K2 + 2 * t, Q2, S + 16 * t))
    a('s_nop 15')
    for i in range(0, 32, 2):
        a(f'v_max3_f32 {v(T + 15)}, {v(T + 15)}, {v(S + i)}, {v(S + i + 1)}')
    a(f'''
    s_add_u32 s77, s77, 7168
    s_sub_u32 s34, s34, 1
    s_cmp_lg_u32 s34, 0
    s_cbranch_scc1 {L1}
    ''')
    cross_half_max(T + 15)
    set_m(T + 15, 0.0)
    for i in range(16):
        a(f'v_mov_b32 {v(O + i)}, 0')
    a(f'''
    s_mov_b32 s77, {KV_OFF}
    s_mov_b32 s34, 64
    {L2}:
    s_and_b32 s78, s34, 1
    s_lshl_b32 s79, s78, 10
    s_add_u32 s79, s79, s77
    s_lshl_b32 s80, s78, 9
    s_add_u32 s80, s80, s77
    s_lshl_b32 s81, s78, 11
    s_add_u32 s81, s81, s77
    s_add_u32 s81, s81, 3072
    buffer_load_dwordx4 {v(K1, 4)}, {v(T + 13)}, s[20:23], s79 offen sc1
    buffer_load_dwordx2 {v(K2, 2)}, {v(T + 7)}, s[20:23], s80 offen offset:2048 sc1
    buffer_load_dwordx4 {v(V1, 4)}, {v(T + 13)}, s[20:23], s81 offen sc1
    buffer_load_dwordx4 {v(V2, 4)}, {v(T + 13)}, s[20:23], s81 offen offset:1024 sc1
    s_waitcnt vmcnt(0)
    {mfma16(S, K1, Q1)}
    s_nop 10
    {mfma8(S, K2, Q2, S)}
    s_nop 15
    ''')
    for i in range(16):
        a(f'v_exp_f32 {v(S + i)}, {v(S + i)}')
    a('s_nop 0')
    for i in range(8):
        a(f'v_cvt_pk_bf16_f32 {v(P + i)}, {v(S + 2 * i)}, {v(S + 2 * i + 1)}')
    a(f'''
    s_nop 1
    {mfma16(O, V1, P, O)}
    {mfma16(O, V2, P + 4, O)}
    s_mul_i32 s78, s78, 7168
    s_add_u32 s77, s77, s78
    s_sub_u32 s34, s34, 1
    s_cmp_lg_u32 s34, 0
    s_cbranch_scc1 {L2}
    s_nop 15
    s_branch {L_out}
    ''')


def g2_ids(a):
    a('''
    s_lshr_b32 s57, s30, 1
    s_and_b32 s58, s30, 1
    s_lshl_b32 s44, s29, 1
    s_add_u32 s59, s44, s58
    s_xor_b32 s60, s59, 1
    s_mul_i32 s44, s57, 320
    s_lshl_b32 s45, s58, 7
    s_add_u32 s61, s44, s45
    ''')


def g2_out(a, T, vL, wsg, part):
    L_skip = a.label('g2o')
    a(f'''
    s_cmp_ge_u32 {wsg}, 10
    s_cbranch_scc1 {L_skip}
    ''')
    if part == 0:
        a(f'''
        s_lshr_b32 s45, {wsg}, 1
        s_and_b32 s46, {wsg}, 1
        s_lshl_b32 s46, s46, 4
        v_lshrrev_b32 {v(T)}, 2, {v(vL)}
        v_add_u32 {v(T)}, s46, {v(T)}
        v_and_b32 {v(T + 1)}, 3, {v(vL)}
        s_and_b32 s47, s45, 1
        s_cmp_eq_u32 s47, 1
        s_cselect_b32 s47, s60, s59
        s_mul_i32 s47, s47, {32 * 1280}
        s_lshr_b32 s48, s45, 1
        s_add_u32 s49, s48, s58
        s_lshl_b32 s49, s49, 6
        s_lshl_b32 s50, s58, 7
        s_sub_u32 s50, 128, s50
        s_cmp_eq_u32 s48, 2
        s_cselect_b32 s49, s50, s49
        s_add_u32 s47, s47, s49
        s_add_u32 s31, s47, s61
        v_mul_u32_u24 {v(T + 6)}, 1280, {v(T)}
        v_lshl_add_u32 {v(T + 6)}, {v(T + 1)}, 4, {v(T + 6)}
        buffer_load_dwordx4 {v(T + 2, 4)}, {v(T + 6)}, s[8:11], s31 offen
        v_lshlrev_b32 {v(T + 1)}, 1, {v(T + 1)}
        v_and_b32 {v(T + 7)}, 7, {v(T)}
        v_xor_b32 {v(T + 1)}, {v(T + 1)}, {v(T + 7)}
        v_lshlrev_b32 {v(T)}, 7, {v(T)}
        v_lshl_add_u32 {v(T)}, {v(T + 1)}, 4, {v(T)}
        s_lshl_b32 s47, s45, 12
        v_add_u32 {v(T)}, s47, {v(T)}
        v_xor_b32 {v(T + 1)}, 16, {v(T)}
        ''')
    else:
        for w in range(4):
            if w == 2:
                a(f'v_add_u32 {v(T)}, {WO_HI}, {v(T)}\nv_add_u32 {v(T + 1)}, {WO_HI}, {v(T + 1)}')
            a(f'ds_read_b128 {v(T + 8 + 8 * w, 4)}, {v(T)} offset:{21504 * (w & 1)}')
            a(f'ds_read_b128 {v(T + 12 + 8 * w, 4)}, {v(T + 1)} offset:{21504 * (w & 1)}')
        a('s_waitcnt vmcnt(0)')
        for i in range(4):
            a(f'''
            v_lshlrev_b32 {v(T + 40 + 2 * i)}, 16, {v(T + 2 + i)}
            v_and_b32 {v(T + 41 + 2 * i)}, 0xffff0000, {v(T + 2 + i)}
            ''')
        a('s_waitcnt lgkmcnt(4)')
        for i in range(0, 8, 2):
            a(f'v_pk_add_f32 {v(T + 8 + i, 2)}, {v(T + 8 + i, 2)}, {v(T + 16 + i, 2)}')
        for i in range(0, 8, 2):
            a(f'v_pk_add_f32 {v(T + 8 + i, 2)}, {v(T + 8 + i, 2)}, {v(T + 40 + i, 2)}')
        a('s_waitcnt lgkmcnt(0)')
        for i in range(0, 8, 2):
            a(f'v_pk_add_f32 {v(T + 24 + i, 2)}, {v(T + 24 + i, 2)}, {v(T + 32 + i, 2)}')
        for i in range(0, 8, 2):
            a(f'v_pk_add_f32 {v(T + 8 + i, 2)}, {v(T + 8 + i, 2)}, {v(T + 24 + i, 2)}')
        for i in range(4):
            a(f'v_cvt_pk_bf16_f32 {v(T + 16 + i)}, {v(T + 8 + 2 * i)}, {v(T + 9 + 2 * i)}')
        a(f'buffer_store_dwordx4 {v(T + 16, 4)}, {v(T + 6)}, s[64:67], s31 offen{OUTSC}')
    a(f'{L_skip}:')


def aux_wave(a, vL, vH, vR, L_end, WDP, a_start):
    al = Alloc(4, 168)
    T = al('T', 16, 4)
    vXD = al('xd', 2)
    vWD = al('wd', 2)
    vKD = al('kd')
    vKX = al('kx')
    vKW = al('kw')
    XR = al('xr', 10, 2)
    CR = al('cr', 20, 2)
    PF = al('pf', 2)
    AKV = al('akv', 16, 4)
    KXF = al('kxf', 4, 4)
    KWF = al('kwf', 4, 4)
    FX = al('fx', 16, 4)
    RD = al('rd', 48, 4)
    JA = al('ja', 2, 2)
    JS = al('js')
    t0, t1, t2, t3, t4, t5 = T, T + 1, T + 2, T + 3, T + 4, T + 5
    vm = VM()
    a.c('=========== aux wave: phase 1 ===========')
    assert (vXD, vWD, vKD) == (20, 22, 24)

    def dma_group(c, kvonly=False):
        st = c % 3
        lab = a.label('nokv')
        a(f'''
        s_and_b32 s35, s100, {7 if c < 8 else 1}
        s_xor_b32 s35, s35, {c}
        s_mul_i32 s33, s32, s35
        s_mul_i32 s34, s35, 2560
        s_lshl_b32 s35, s35, 7
        s_cmp_eq_u32 s40, 0
        s_cbranch_scc1 {lab}
        s_add_u32 m0, s38, {st * 3072}
        s_nop 0
        buffer_load_dwordx4 {v(vKD)}, s[16:19], s34 offen lds
        {lab}:
        ''')
        vm.add(f'c{c}', 1, optional=True)
        if kvonly or (NODMA and c > 2):
            vm.add(f'c{c}', 1, optional=True)
            return
        for e in range(4):
            a(f'''
            s_add_u32 m0, s36, {LDS_X + st * 16384 + e * 1024}
            s_add_u32 s34, s35, {(e >> 1) * 16 * 1280}
            buffer_load_dwordx4 {v(vXD + (e & 1))}, s[8:11], s34 offen lds
            ''')
        for e in range(8):
            a(f'''
            s_add_u32 m0, s37, {st * 8192 + e * 1024}
            s_nop 0
            buffer_load_dwordx4 {v(vWD + (e & 1))}, s[12:15], s33 offen lds
            ''')
            if e < 7:
                a('s_add_u32 s33, s33, s31')
        vm.add(f'c{c}', 12)

    vm.add('c0', 4)
    vm.add('c0', 1, optional=True)
    if not LATE1:
        vm.add('c1', 4)
        vm.add('c1', 1, optional=True)

    def jit(c):
        if not JIT or c > 9:
            return
        lab = a.label('nojit')
        a(f'''
        s_cmp_lg_u32 s26, 3
        s_cbranch_scc1 {lab}
        global_load_dword v165, {v(JA, 2)}, off
        v_add_co_u32 {v(JA)}, vcc, {v(JA)}, {v(JS)}
        s_nop 1
        v_addc_co_u32 {v(JA + 1)}, vcc, 0, {v(JA + 1)}, vcc
        {lab}:
        ''')
        vm.add('jit', 1, optional=True)

    if JIT:
        a(f'v_mov_b32 {v(JA)}, s68\nv_mov_b32 {v(JA + 1)}, s69')
        lab = a.label('nojs')
        a(f'''
        s_cmp_lg_u32 s26, 3
        s_cbranch_scc1 {lab}
        s_lshr_b32 s44, s2, 3
        s_and_b32 s45, s44, 7
        s_lshr_b32 s46, s44, 3
        s_lshl_b32 s46, s46, 5
        s_lshl_b32 s47, s27, 7
        s_add_u32 s46, s46, s47
        v_add_u32 {v(t0)}, s46, {v(vR)}
        v_mul_u32_u24 {v(t0)}, 1280, {v(t0)}
        v_add_u32 {v(t0)}, {128 * JIT}, {v(t0)}
        v_bfe_u32 {v(t1)}, {v(vL)}, 3, 1
        v_bfe_u32 {v(t2)}, {v(vL)}, 4, 1
        v_and_b32 {v(t3)}, s48, {v(t1)}
        v_cmp_eq_u32 s[58:59], 1, {v(t3)}
        v_cmp_eq_u32 s[60:61], 1, {v(t2)}
        v_mov_b32 {v(t4)}, 3456
        v_mov_b32 {v(t5)}, 1280
        v_cndmask_b32 {v(t4)}, {v(t4)}, {v(t5)}, s[58:59]
        s_xor_b32 s44, s48, 1
        v_and_b32 {v(t5)}, s44, {v(t1)}
        v_lshlrev_b32 {v(t5)}, 6, {v(t5)}
        v_add_u32 {v(t5)}, s49, {v(t5)}
        v_lshlrev_b32 {v(t3)}, 6, {v(t2)}
        v_add_u32 {v(t3)}, s50, {v(t3)}
        v_cndmask_b32 {v(t5)}, {v(t5)}, {v(t3)}, s[58:59]
        s_lshl_b32 s45, s45, 3
        s_add_u32 s45, s45, {64 * JIT}
        v_and_b32 {v(t3)}, 7, {v(vL)}
        v_add_u32 {v(t3)}, s45, {v(t3)}
        v_mul_lo_u32 {v(t3)}, {v(t3)}, {v(t4)}
        v_lshl_add_u32 {v(t3)}, {v(t5)}, 1, {v(t3)}
        v_cndmask_b32 {v(t0)}, {v(t0)}, {v(t3)}, {HM}
        v_lshlrev_b32 {v(t4)}, 6, {v(t4)}
        v_mov_b32 {v(t5)}, 128
        v_cndmask_b32 {v(JS)}, {v(t5)}, {v(t4)}, {HM}
        ''')
        for z in range(2):
            a(f'''
            v_mov_b32 {v(t1)}, s{80 + z}
            v_mov_b32 {v(t2)}, s{82 + z}
            v_cndmask_b32 {v(t1)}, {v(t1)}, {v(t2)}, s[60:61]
            v_mov_b32 {v(t2)}, s{70 + z}
            v_cndmask_b32 {v(t1)}, {v(t1)}, {v(t2)}, s[58:59]
            v_mov_b32 {v(t2)}, s{68 + z}
            v_cndmask_b32 {v(JA + z)}, {v(t2)}, {v(t1)}, {HM}
            ''')
        a(f'''
        v_add_co_u32 {v(JA)}, vcc, {v(JA)}, {v(t0)}
        s_nop 1
        v_addc_co_u32 {v(JA + 1)}, vcc, 0, {v(JA + 1)}, vcc
        {lab}:
        ''')
        for c in range(JIT, JITD):
            jit(c)
    srd(a, 4, 76, 256)
    lab = a.label('nononce')
    a(f'''
    s_or_b32 s44, s2, s26
    s_cmp_lg_u32 s44, 0
    s_cbranch_scc1 {lab}
    s_memrealtime s[44:45]
    s_waitcnt lgkmcnt(0)
    s_or_b32 s44, s44, 1
    v_mov_b32 {v(t0)}, s44
    s_mov_b64 exec, 1
    buffer_store_dword {v(t0)}, off, s[4:7], 0 sc1
    s_mov_b64 exec, -1
    {lab}:
    ''')
    vm.add('nonce', 1, optional=True)
    a(f'''
    s_and_b32 s56, s28, 3
    v_lshrrev_b32 {v(t0)}, 1, {v(vR)}
    v_and_b32 {v(t0)}, 7, {v(t0)}
    v_xor_b32 {v(t0)}, {v(t0)}, {v(vH)}
    s_lshl_b32 s44, s26, 1
    v_xor_b32 {v(t0)}, s44, {v(t0)}
    v_lshlrev_b32 {v(t3)}, 7, {v(vR)}
    v_lshl_add_u32 {v(t0)}, {v(t0)}, 4, {v(t3)}
    s_lshl_b32 s44, s56, 12
    v_add_u32 {v(vKX)}, s44, {v(t0)}
    v_bfe_u32 {v(t0)}, {v(vL)}, 2, 2
    v_lshl_add_u32 {v(t0)}, {v(vH)}, 3, {v(t0)}
    v_mul_u32_u24 {v(t0)}, 40, {v(t0)}
    v_bfe_u32 {v(t3)}, {v(vL)}, 4, 1
    v_and_b32 {v(t4)}, 3, {v(vL)}
    v_lshl_add_u32 {v(t3)}, {v(t3)}, 2, {v(t4)}
    v_min_u32 {v(t3)}, 4, {v(t3)}
    v_lshl_add_u32 {v(t0)}, {v(t3)}, 3, {v(t0)}
    s_mul_i32 s44, s26, 640
    s_add_u32 s44, s44, {LDS_KV}
    v_add_u32 {v(vKW)}, s44, {v(t0)}
    ''')
    for i in range(16):
        a(f'v_mov_b32 {v(AKV + i)}, 0')

    if LATE1:
        a_start(1)
        vm.add('c1', 4)
        vm.add('c1', 1, optional=True)
    if TLBW:
        lab = a.label('notlb')
        srd(a, 44, WDP, 2211840)
        a(f'''
        v_lshlrev_b32 {v(t0)}, {TLBW}, {v(vL)}
        s_cmp_lg_u32 s26, 3
        s_cbranch_scc1 {lab}
        buffer_load_dword v165, {v(t0)}, s[20:23], 0 offen
        buffer_load_dword v165, {v(t0)}, s[64:67], 0 offen
        buffer_load_dword v165, {v(t0)}, s[44:47], 0 offen
        s_mov_b32 s44, s84
        s_mov_b32 s45, s85
        s_mov_b32 s46, 819200
        buffer_load_dword v165, {v(t0)}, s[44:47], 0 offen
        {lab}:
        ''')
        vm.add('tlb', 4, optional=True)

    def colsum(src_tag_wait, store_code):
        a(f's_waitcnt vmcnt({src_tag_wait})')
        a(f'''
        v_lshlrev_b32 {v(t0)}, 16, {v(CR)}
        v_and_b32 {v(t1)}, 0xffff0000, {v(CR)}
        ''')
        for t in range(1, 20):
            a(f'''
            v_lshlrev_b32 {v(t2)}, 16, {v(CR + t)}
            v_and_b32 {v(t3)}, 0xffff0000, {v(CR + t)}
            v_add_f32 {v(t0)}, {v(t0)}, {v(t2)}
            v_add_f32 {v(t1)}, {v(t1)}, {v(t3)}
            ''')
        a(f'''
        s_nop 1
        v_permlane32_swap_b32 {v(t0)}, {v(t1)}
        s_nop 1
        v_add_f32 {v(t0)}, {v(t0)}, {v(t1)}
        v_cvt_pk_bf16_f32 {v(t1)}, {v(t0)}, {v(t0)}
        v_and_b32 {v(t1)}, 0xffff0000, {v(t1)}
        v_sub_f32 {v(t1)}, {v(t0)}, {v(t1)}
        v_cvt_pk_bf16_f32 {v(t0)}, {v(t0)}, {v(t1)}
        ''')
        store_code()

    a('''
    s_lshl_b32 s41, s27, 10
    s_and_b32 s44, s28, 11
    s_cmp_eq_u32 s44, 0
    s_cselect_b32 s42, 1, 0
    s_cmp_eq_u32 s26, 3
    s_cselect_b32 s42, s42, 0
    ''')

    def kv_step(c, part):
        st = c % 3
        lab = a.label('kvs')
        a(f's_cmp_eq_u32 s54, 0\ns_cbranch_scc1 {lab}')
        if part == 0:
            a(f'''
            ds_read_b128 {v(KXF, 4)}, {v(vKX)} offset:{LDS_X + st * 16384}
            ds_read_b64_tr_b16 {v(KWF, 2)}, {v(vKW)} offset:{st * 3072}
            ds_read_b64_tr_b16 {v(KWF + 2, 2)}, {v(vKW)} offset:{st * 3072 + 160}
            ''')
        else:
            a('s_waitcnt lgkmcnt(0)')
            a(mfma16(AKV, KWF, KXF, AKV))
        a(f'{lab}:')

    for c in range(10):
        a.c(f'aux chunk {c}')
        if c == 0:
            stamp(a, 22)
        if c <= 8:
            a(f's_waitcnt vmcnt({vm.wait(f"c{c}") if c != 5 else min(vm.wait("c5"), vm.wait("st"), vm.wait("nl"))})')
        else:
            a('s_waitcnt vmcnt(0)')
        a('s_barrier')
        if not FEWST or c in (0, 1, 2, 9):
            stamp(a, 1 + c)
        if asmlib.STAMPS:
            vm.add('stamp', 1, optional=True)
        if c == 3:
            a(f'buffer_load_dword {v(PF)}, off, s[4:7], 0 sc1')
            vm.add('nl', 1)
        kv_step(c, 0)
        if c == P3C:
            lab = a.label('nop3')
            a(f'''
            v_lshlrev_b32 {v(T + 8)}, 3, {v(vL)}
            v_lshlrev_b32 {v(T + 10)}, 7, {v(vL)}
            v_and_b32 {v(T + 11)}, 0x780, {v(T + 10)}
            s_cmp_lg_u32 s26, 3
            s_cbranch_scc1 {lab}
            s_lshl_b32 s44, s27, 13
            s_add_u32 s44, s44, {F_ST}
            s_lshl_b32 s45, s28, 13
            s_add_u32 s45, s45, {F_CS}
            s_and_b32 s58, s28, 4
            s_lshl_b32 s58, s58, 9
            s_add_u32 s58, s58, {F_KC}
            ''')
            a(f'''
            s_mov_b32 s60, s44
            s_mov_b32 s61, s45
            s_lshr_b32 s59, s29, 1
            s_lshl_b32 s59, s59, 13
            s_add_u32 s59, s59, {F_ST}
            buffer_load_dwordx2 {v(FX + 6, 2)}, {v(T + 10)}, s[20:23], s59 offen sc1
            buffer_load_dwordx2 {v(FX, 2)}, {v(T + 10)}, s[20:23], s60 offen sc1
            buffer_load_dwordx2 {v(FX + 2, 2)}, {v(T + 10)}, s[20:23], s61 offen sc1
            buffer_load_dwordx2 {v(FX + 4, 2)}, {v(T + 11)}, s[20:23], s58 offen sc1
            {lab}:
            ''')
        jit(c + JITD)
        if (1 if EARLY2 else 0) <= c and c + 2 < 10:
            dma_group(c + 2)
        kv_step(c, 1)
        if c == P3C:
            lab = a.label('nop3b')
            a(f'''
            s_cmp_lg_u32 s26, 3
            s_cbranch_scc1 {lab}
            s_waitcnt vmcnt(12)
            v_cmp_eq_u64 vcc, s[98:99], {v(FX, 2)}
            v_cmp_eq_u64 s[46:47], s[98:99], {v(FX + 2, 2)}
            v_cmp_eq_u64 s[44:45], s[98:99], {v(FX + 4, 2)}
            v_cmp_eq_u64 s[48:49], s[98:99], {v(FX + 6, 2)}
            s_nop 1
            s_and_b64 vcc, vcc, s[46:47]
            s_and_b64 vcc, vcc, s[44:45]
            s_and_b64 vcc, vcc, s[48:49]
            s_cmp_eq_u64 vcc, -1
            s_cbranch_scc1 {lab}
            ''')
            polln(a, FX, [T + 10, T + 10, T + 11], [('s60', None), ('s61', None), ('s58', None)], 4)
            polln(a, FX, [T + 10], [('s59', None)], 4)
            a(f'{lab}:')
        if c == 2:
            lab = a.label('nokvcs')
            a(f'''
            s_cmp_eq_u32 s42, 0
            s_cbranch_scc1 {lab}
            s_mul_i32 s44, s27, 40
            v_add_u32 {v(t1)}, s44, {v(vH)}
            v_mul_u32_u24 {v(t2)}, 40, {v(t1)}
            v_lshl_add_u32 {v(t2)}, {v(vR)}, 2, {v(t2)}
            ''')
            for t in range(20):
                a(f'buffer_load_dword {v(CR + t)}, {v(t2)}, s[16:19], 0 offen offset:{80 * t}')
            a(f'{lab}:')
            vm.add('kcr', 20, optional=True)
        if c == 3:
            lab = a.label('nokvcs2')
            a(f's_cmp_eq_u32 s42, 0\ns_cbranch_scc1 {lab}')

            def kcs_store():
                a(f'''
                v_lshl_add_u32 {v(t1)}, {v(vR)}, 1, {v(vH)}
                v_lshlrev_b32 {v(t2)}, 2, {v(t1)}
                v_mov_b32 {v(t3)}, 0x7f000000
                v_cmp_gt_u32 vcc, 32, {v(t1)}
                s_lshl_b32 s44, s28, 9
                s_lshl_b32 s45, s27, 7
                s_add_u32 s44, s44, s45
                s_add_u32 s44, s44, {CSKVW}
                v_cndmask_b32 {v(t2)}, {v(t3)}, {v(t2)}, vcc
                buffer_store_dword {v(t0)}, {v(t2)}, s[20:23], s44 offen sc1
                ''')
            colsum(vm.wait('kcr'), kcs_store)
            a(f'{lab}:')
            vm.add('st', 1, optional=True)
        if c == 5:
            Lp = a.label('np')
            Lq = a.label('npd')
            Lr = a.label('nokcf')
            a(f'''
            s_mov_b32 s93, {POLL_MAX}
            {Lp}:
            v_readfirstlane_b32 s98, {v(PF)}
            s_cmp_lg_u32 s98, 0
            s_cbranch_scc1 {Lq}
            s_sub_u32 s93, s93, 1
            s_cbranch_scc1 {Lq}
            buffer_load_dword {v(PF)}, off, s[4:7], 0 sc1
            s_waitcnt vmcnt(0)
            s_branch {Lp}
            {Lq}:
            s_xor_b32 s99, s98, {NONCE_X}
            s_lshl_b32 s44, s28, 9
            s_lshl_b32 s45, s27, 7
            s_add_u32 s44, s44, s45
            s_add_u32 s44, s44, {F_KC}
            s_cmp_eq_u32 s42, 0
            s_cbranch_scc1 {Lr}
            ''')
            flag_store(a, 's44', T + 2)
            a(f'{Lr}:')
            vm.add('fl', 1, optional=True)
        if P1PF and c in (6, 7):
            if c == 6:
                srd(a, 4, WDP, 2211840)
                a(f'''
                s_lshr_b32 s44, s2, 6
                s_mul_i32 s44, s44, {432 * 1280}
                s_bfe_u32 s45, s2, 0x30003
                s_mul_i32 s45, s45, {180 * 128}
                s_add_u32 s44, s44, s45
                s_mul_i32 s45, s26, {45 * 128}
                s_add_u32 s57, s44, s45
                v_lshlrev_b32 {v(PF + 1)}, 7, {v(vL)}
                ''')
            for z in range(2 if c == 6 else 1):
                a(f'''
                s_mov_b32 exec_hi, {(1 << 13) - 1}
                buffer_load_dword v165, {v(PF + 1)}, s[4:7], s57 offen
                s_mov_b32 exec_hi, -1
                s_add_u32 s57, s57, {144 * 1280}
                ''')
                vm.add('pf', 1)
        if c == 8:
            a(f'''
            v_lshlrev_b32 {v(T + 9)}, 4, {v(vL)}
            s_lshl_b32 s44, s28, 14
            s_lshl_b32 s45, s26, 12
            s_add_u32 s44, s44, s45
            s_add_u32 s44, s44, {CSW}
            ''')
            for e in range(4):
                a(f'''
                s_add_u32 m0, s45, {CS_A + 1024 * e}
                s_nop 0
                buffer_load_dwordx4 {v(T + 9)}, s[20:23], s44 offen{LD} lds
                s_add_u32 s44, s44, 1024
                ''')
            lab = a.label('norc')
            a(f'''
            s_cmp_lg_u32 s26, 0
            s_cbranch_scc1 {lab}
            s_lshl_b32 s44, s27, 11
            s_add_u32 s44, s44, {ROWW}
            s_mov_b32 m0, {ROWC_A}
            s_and_b32 s45, s28, 4
            buffer_load_dwordx4 {v(T + 9)}, s[20:23], s44 offen{LD} lds
            buffer_load_dwordx4 {v(T + 9)}, s[20:23], s44 offen offset:1024{LD} lds
            s_lshl_b32 s45, s45, 9
            s_add_u32 s45, s45, {CSKVW}
            s_mov_b32 m0, {CSKV_A}
            s_nop 0
            buffer_load_dwordx4 {v(T + 9)}, s[20:23], s45 offen{LD} lds
            buffer_load_dwordx4 {v(T + 9)}, s[20:23], s45 offen offset:1024{LD} lds
            {lab}:
            ''')
    L_p2 = a.label('auxp2')
    L_v = a.label('vepi')
    L_a0 = a.label('aux0f')
    lab = a.label('nokvfin')
    lab2 = a.label('nofix')
    a(f'''
    s_cmp_eq_u32 s54, 0
    s_cbranch_scc1 {lab}
    s_cmp_lg_u32 s26, 0
    s_cbranch_scc1 {lab2}
    s_lshl_b32 s44, s56, 9
    s_add_u32 s44, s44, {ROWC_A}
    v_lshl_add_u32 {v(t0)}, {v(vR)}, 4, s44
    v_lshlrev_b32 {v(t1)}, 2, {v(vR)}
    v_lshl_add_u32 {v(t1)}, {v(vH)}, 9, {v(t1)}
    v_add_u32 {v(t1)}, {CSKV_A}, {v(t1)}
    v_add_u32 {v(t2)}, 1024, {v(t1)}
    ds_read_b128 {v(FX, 4)}, {v(t0)}
    ds_read2_b32 {v(FX + 8, 2)}, {v(t1)} offset0:0 offset1:32
    ds_read2_b32 {v(FX + 10, 2)}, {v(t1)} offset0:64 offset1:96
    ds_read2_b32 {v(FX + 12, 2)}, {v(t2)} offset0:0 offset1:32
    ds_read2_b32 {v(FX + 14, 2)}, {v(t2)} offset0:64 offset1:96
    s_waitcnt lgkmcnt(4)
    v_mov_b32 {v(FX + 4)}, {v(FX)}
    v_mov_b32 {v(FX + 5)}, {v(FX)}
    v_mov_b32 {v(FX + 6)}, {v(FX)}
    v_mov_b32 {v(FX + 7)}, {v(FX)}
    s_waitcnt lgkmcnt(0)
    s_nop 1
    {mfma16(AKV, FX + 8, FX + 4, AKV)}
    {mfma16(AKV, FX + 12, FX + 4, AKV)}
    s_branch {L_a0}
    {lab2}:
    s_lshl_b32 s44, s26, 12
    v_add_u32 {v(t0)}, s44, {v(T + 9)}
    s_lshl_b32 s44, s26, 2
    s_add_u32 s44, s44, {PD_A}
    v_mov_b32 {v(t1)}, s44
    v_mov_b32 {v(t2)}, s98
    s_nop 11
    ''')
    for q in range(3):
        a(f'ds_write_b128 {v(t0)}, {v(AKV + 4 * q, 4)} offset:{PART_A + 1024 * q}')
    L_sp = a.label('pspin')
    L_spd = a.label('pspind')
    a(f'''
    s_waitcnt lgkmcnt(0)
    ds_write_b32 {v(t1)}, {v(t2)}
    {lab}:
    s_branch {L_p2}
    {L_a0}:
    v_mov_b32 {v(t1)}, {PD_A}
    s_mov_b32 s93, {POLL_MAX * 8}
    {L_sp}:
    ds_read_b128 {v(T + 4, 4)}, {v(t1)}
    s_waitcnt lgkmcnt(0)
    v_xor_b32 {v(T + 5)}, s98, {v(T + 5)}
    v_xor_b32 {v(T + 6)}, s98, {v(T + 6)}
    v_xor_b32 {v(T + 7)}, s98, {v(T + 7)}
    v_or3_b32 {v(T + 5)}, {v(T + 5)}, {v(T + 6)}, {v(T + 7)}
    s_nop 0
    v_readfirstlane_b32 s44, {v(T + 5)}
    s_cmp_eq_u32 s44, 0
    s_cbranch_scc1 {L_spd}
    s_sub_u32 s93, s93, 1
    s_cbranch_scc0 {L_sp}
    {L_spd}:
    ''')
    stamp(a, 12)
    for w in range(1, 4):
        for q in range(3):
            a(f'ds_read_b128 {v(RD + 12 * (w - 1) + 4 * q, 4)}, {v(T + 9)} offset:{PART_A + 4096 * w + 1024 * q}')
    a(f'''
    s_lshl_b32 s57, s27, 2
    s_add_u32 s57, s57, s56
    s_lshr_b32 s44, s57, 1
    s_mul_i32 s44, s44, 7168
    s_add_u32 s44, s44, {KV_OFF}
    s_and_b32 s45, s57, 1
    s_and_b32 s58, s28, 4
    s_lshl_b32 s58, s58, 4
    s_add_u32 s58, s58, s57
    s_lshl_b32 s58, s58, 7
    s_add_u32 s58, s58, {F_KV}
    s_waitcnt lgkmcnt(0)
    ''')
    for i in range(0, 12, 2):
        a(f'v_pk_add_f32 {v(AKV + i, 2)}, {v(AKV + i, 2)}, {v(RD + i, 2)}')
        a(f'v_pk_add_f32 {v(RD + 12 + i, 2)}, {v(RD + 12 + i, 2)}, {v(RD + 24 + i, 2)}')
    for i in range(0, 12, 2):
        a(f'v_pk_add_f32 {v(AKV + i, 2)}, {v(AKV + i, 2)}, {v(RD + 12 + i, 2)}')
    a(f'v_mov_b32 {v(FX)}, {v(FX + 1)}')
    for i in range(0, 12, 2):
        a(f'v_pk_mul_f32 {v(AKV + i, 2)}, {v(AKV + i, 2)}, {v(FX, 2)}')
    PK = RD
    for i in range(6):
        a(f'v_cvt_pk_bf16_f32 {v(PK + i)}, {v(AKV + 2 * i)}, {v(AKV + 2 * i + 1)}')
    L_kvf = a.label('kvflag')
    a(f'''
    s_bitcmp1_b32 s28, 2
    s_cbranch_scc1 {L_v}
    v_mov_b32 {v(t0)}, 0x3f803f80
    v_mov_b32 {v(t1)}, 0x00003f80
    v_cndmask_b32 {v(PK + 4)}, {v(PK + 4)}, {v(t0)}, {HM}
    v_cndmask_b32 {v(PK + 5)}, {v(PK + 5)}, {v(t1)}, {HM}
    s_lshl_b32 s46, s45, 10
    s_add_u32 s46, s46, s44
    s_lshl_b32 s47, s45, 9
    s_add_u32 s47, s47, s44
    buffer_store_dwordx4 {v(PK, 4)}, {v(T + 9)}, s[20:23], s46 offen sc1
    buffer_store_dwordx2 {v(PK + 4, 2)}, {v(T + 8)}, s[20:23], s47 offen offset:2048 sc1
    s_branch {L_kvf}
    {L_v}:
    v_mov_b32 {v(t0)}, 0
    v_cndmask_b32 {v(PK + 4)}, {v(PK + 4)}, {v(t0)}, {HM}
    v_cndmask_b32 {v(PK + 5)}, {v(PK + 5)}, {v(t0)}, {HM}
    v_mov_b32 {v(PK + 6)}, 0x00003f80
    v_mov_b32 {v(PK + 7)}, 0
    v_lshlrev_b32 {v(t0)}, 6, {v(vR)}
    v_lshl_add_u32 {v(t0)}, {v(vH)}, 3, {v(t0)}
    ds_write_b64 {v(t0)}, {v(PK, 2)} offset:{VT_A}
    ds_write_b64 {v(t0)}, {v(PK + 2, 2)} offset:{VT_A + 16}
    ds_write_b64 {v(t0)}, {v(PK + 4, 2)} offset:{VT_A + 32}
    ds_write_b64 {v(t0)}, {v(PK + 6, 2)} offset:{VT_A + 48}
    v_bfe_u32 {v(t1)}, {v(vL)}, 2, 2
    v_lshl_add_u32 {v(t1)}, {v(vH)}, 2, {v(t1)}
    v_lshlrev_b32 {v(t1)}, 6, {v(t1)}
    v_bfe_u32 {v(t2)}, {v(vL)}, 4, 1
    v_lshl_add_u32 {v(t1)}, {v(t2)}, 5, {v(t1)}
    v_and_b32 {v(t2)}, 3, {v(vL)}
    v_lshl_add_u32 {v(t1)}, {v(t2)}, 3, {v(t1)}
    s_waitcnt lgkmcnt(0)
    ds_read_b64_tr_b16 {v(PK + 8, 2)}, {v(t1)} offset:{VT_A}
    ds_read_b64_tr_b16 {v(PK + 10, 2)}, {v(t1)} offset:{VT_A + 512}
    ds_read_b64_tr_b16 {v(PK + 12, 2)}, {v(t1)} offset:{VT_A + 1024}
    ds_read_b64_tr_b16 {v(PK + 14, 2)}, {v(t1)} offset:{VT_A + 1536}
    s_lshl_b32 s46, s45, 11
    s_add_u32 s46, s46, s44
    s_add_u32 s46, s46, 3072
    s_waitcnt lgkmcnt(0)
    buffer_store_dwordx4 {v(PK + 8, 4)}, {v(T + 9)}, s[20:23], s46 offen sc1
    buffer_store_dwordx4 {v(PK + 12, 4)}, {v(T + 9)}, s[20:23], s46 offen offset:1024 sc1
    {L_kvf}:
    s_waitcnt vmcnt(0)
    ''')
    flag_store(a, 's58', T + 2)
    a(f'{L_p2}:')
    stamp(a, 13)

    a.c('=========== aux wave: phase 2 ===========')
    al = Alloc(4, 164)
    T = al('T', 8, 4)
    vWD = al('wd', 3)
    vWA = al('wa', 3)
    vHL = al('hl')
    vKO = al('ko')
    vPF = al('pf')
    ACC = al('acc', 80, 4)
    SL = al('slots', 60, 4)
    wreg = lambda k: SL + 20 * (k % 3)
    hreg = lambda k: SL + 20 * (k % 3) + 12
    a(f's_setprio {PRIO2}')
    g2_ids(a)
    srd(a, 12, WDP, 2211840)
    srd(a, 16, 84, 819200)
    a(f"""
    s_mul_i32 s44, s26, 27
    s_mul_i32 s41, s59, 108
    s_add_u32 s41, s41, s44
    s_lshl_b32 s41, s41, 10
    s_mul_i32 s42, s60, 108
    s_add_u32 s42, s42, s44
    s_lshl_b32 s42, s42, 10
    s_lshr_b32 s43, s44, 1
    s_mul_i32 s43, s43, 40960
    s_and_b32 s45, s44, 1
    s_mul_i32 s52, s45, 10240
    s_add_u32 s43, s43, s52
    s_mul_i32 s52, s45, 20480
    s_add_u32 s52, s52, 10240
    s_mov_b32 s48, 40960
    s_lshl_b32 s44, s26, 3
    s_mul_i32 s56, s44, 25600
    s_mul_i32 s54, s59, 40
    s_add_u32 s54, s54, s44
    s_lshl_b32 s54, s54, 10
    s_add_u32 s54, s54, {OF_OFF}
    s_mul_i32 s55, s60, 40
    s_add_u32 s55, s55, s44
    s_lshl_b32 s55, s55, 10
    s_add_u32 s55, s55, {OF_OFF}
    s_and_b32 s44, s26, 1
    s_mul_i32 s39, s44, 21504
    s_lshr_b32 s44, s26, 1
    s_mul_i32 s44, s44, {WO_HI}
    s_add_u32 s39, s39, s44
    s_mov_b32 s40, s39
    s_mov_b32 s45, 0x15556
    v_lshlrev_b32 {v(vHL)}, 4, {v(vL)}
    v_lshlrev_b32 {v(vPF)}, 7, {v(vL)}
    s_lshl_b32 s36, s26, 12
    s_min_u32 s36, s36, 11264
    v_add_u32 {v(vKO)}, s36, {v(vHL)}
    """)
    for p in range(3):
        a(f"""
        v_add_u32 {v(T)}, {64 * p}, {v(vL)}
        v_mul_lo_u32 {v(T + 1)}, {v(T)}, s45
        v_lshrrev_b32 {v(T + 1)}, 20, {v(T + 1)}
        v_mul_u32_u24 {v(T + 2)}, 12, {v(T + 1)}
        v_sub_u32 {v(T + 2)}, {v(T)}, {v(T + 2)}
        v_and_b32 {v(T)}, 8, {v(T + 1)}
        v_add_u32 {v(T + 1)}, {v(T + 1)}, {v(T)}
        v_mul_u32_u24 {v(T + 1)}, 1280, {v(T + 1)}
        v_lshl_add_u32 {v(T + 1)}, {v(T + 2)}, 4, {v(T + 1)}
        v_add_u32 {v(vWD + p)}, s61, {v(T + 1)}
        """)
    a(f"""
    v_bfe_u32 {v(T)}, {v(vL)}, 2, 2
    v_lshl_add_u32 {v(T)}, {v(vH)}, 2, {v(T)}
    v_mul_u32_u24 {v(T)}, 192, {v(T)}
    v_bfe_u32 {v(T + 1)}, {v(vL)}, 4, 1
    v_lshl_add_u32 {v(T)}, {v(T + 1)}, 5, {v(T)}
    v_and_b32 {v(T + 1)}, 3, {v(vL)}
    v_lshl_add_u32 {v(T)}, {v(T + 1)}, 3, {v(T)}
    v_add_u32 {v(T)}, s39, {v(T)}
    s_lshl_b32 s44, s58, 6
    s_add_u32 s45, s44, 64
    s_lshl_b32 s46, s58, 7
    s_sub_u32 s46, 128, s46
    v_add_u32 {v(vWA)}, s44, {v(T)}
    v_add_u32 {v(vWA + 1)}, s45, {v(T)}
    v_add_u32 {v(vWA + 2)}, s46, {v(T)}
    """)
    vm = VM()

    def w_dma(base, off):
        out = []
        for p in range(3):
            out.append([f's_add_u32 m0, {base}, {off + p * 1024}', 's_nop 0',
                        f'buffer_load_dwordx4 {v(vWD + p)}, s[12:15], s43 offen lds'])
        out[2] += ['s_add_u32 s43, s43, s52', 's_sub_u32 s52, s48, s52']
        return out

    def h_ld(k, e):
        hs = ('s41', 's42')[e]
        return [f'buffer_load_dwordx4 {v(hreg(k) + 4 * e, 4)}, {v(vHL)}, s[20:23], {hs} offen', f's_add_u32 {hs}, {hs}, 1024']

    def w_rd(k, off):
        return [f'ds_read_b64_tr_b16 {v(wreg(k) + 4 * b + 2 * t, 2)}, {v(vWA + b)} offset:{off + 1536 * t}'
                for b in range(3) for t in range(2)]

    def g_mfmas(k):
        return [mfma16(ACC + 16 * n, wreg(k) + 4 * b, hreg(k) + 4 * e, ACC + 16 * n)
                for n, (b, e) in enumerate(((0, 0), (0, 1), (1, 0), (1, 1), (2, 0)))]

    def kv_dma(c):
        st = c % NST
        lab = a.label('kv3')
        a(f's_cmp_ge_u32 s26, 2\ns_cbranch_scc1 {lab}')
        for e in (3, 0, 1, 2):
            a(f"""
            s_add_u32 m0, s36, {KVR + st * CH_BYTES + e * 1024}
            s_mov_b32 s38, {KV_OFF + c * CH_BYTES + e * 1024}
            buffer_load_dwordx4 {v(vKO)}, s[20:23], s38 offen lds
            """)
            if e == 3:
                a(f'{lab}:')
        vm.add(f'kv{c}', 1, optional=True)
        vm.add(f'kv{c}', 3)

    for i in range(80):
        a(f'v_mov_b32 {v(ACC + i)}, 0')
    srd(a, 4, WDP, 2211840)
    a(f'''
    s_lshr_b32 s44, s2, 6
    s_mul_i32 s44, s44, {432 * 1280}
    s_bfe_u32 s45, s2, 0x30003
    s_lshl_b32 s45, s45, 2
    s_add_u32 s45, s45, s26
    s_mul_i32 s45, s45, {15 * 128}
    s_add_u32 s32, s44, s45
    s_mov_b32 s31, {48 * 1280}
    ''')

    a(f'''
    s_lshr_b32 s45, s30, 2
    s_lshl_b32 s46, s29, 1
    s_add_u32 s45, s45, s46
    s_mul_i32 s45, s45, 108
    s_and_b32 s46, s30, 3
    s_mul_i32 s46, s46, 27
    s_add_u32 s45, s45, s46
    s_lshl_b32 s45, s45, 10
    s_mul_i32 s46, s26, {6 * 128}
    s_add_u32 s45, s45, s46
    s_add_u32 s49, s45, 3072
    ''')

    def paced_h():
        a(f'''
        s_mov_b64 exec, 0x3f
        buffer_load_dword v165, {v(vPF)}, s[20:23], s49 offen
        s_mov_b64 exec, -1
        s_add_u32 s49, s49, 3072
        ''')

    def paced():
        a(f'''
        s_mov_b64 exec, 0x7fff
        buffer_load_dword v165, {v(vPF)}, s[4:7], s32 offen
        s_mov_b64 exec, -1
        s_add_u32 s32, s32, s31
        ''')
        vm.add('pf', 1)

    def cd_wait():
        L1, L2 = a.label('cdw'), a.label('cdd')
        a(f'''
        v_and_b32 {v(T + 4)}, 7, {v(vL)}
        v_lshlrev_b32 {v(T + 4)}, 2, {v(T + 4)}
        v_add_u32 {v(T + 4)}, {CD_A}, {v(T + 4)}
        s_mov_b32 s93, {POLL_MAX * 8}
        {L1}:
        ds_read_b32 {v(T + 5)}, {v(T + 4)}
        s_waitcnt lgkmcnt(0)
        v_cmp_eq_u32 vcc, s98, {v(T + 5)}
        s_nop 1
        s_cmp_eq_u64 vcc, -1
        s_cbranch_scc1 {L2}
        s_sub_u32 s93, s93, 1
        s_cbranch_scc0 {L1}
        {L2}:
        ''')

    a(f's_lshl_b32 s53, s29, 13\ns_add_u32 s53, s53, {F_QH}')

    def kv_poll(first):
        a(f's_mov_b32 s45, {F_KV}\ns_mov_b32 s44, {F_KV + 8192}')
        if first:
            m = ~((1 << (4 * KVF)) - 1) & 0xffffffffffffffff
            a(f's_mov_b32 s50, {m & 0xffffffff}\ns_mov_b32 s51, {m >> 32}\ns_sleep {KVSL}\ns_andn2_b64 exec, exec, s[50:51]')
            polln(a, T + 4, vPF, [('s45', 's[50:51]'), ('s44', 's[50:51]')], 2)
            a('s_mov_b64 exec, -1')
            cd_wait()
        else:
            polln(a, T + 4, vPF, [('s45', None), ('s44', None)], 4)
    one_poller(a, T, 0, lambda: kv_poll(True), who=2)
    stamp(a, 15)
    kv_dma(0)
    kv_dma(1)
    kv_dma(2)

    def prefetch(kind, b=0):
        n = {'wd': 60, 'wo': 64, 'h': 54}[kind]
        lab = a.label('nopf')
        if kind != 'h':
            a(f's_cmp_eq_u32 s26, 3\ns_cbranch_scc1 {lab}')
        if kind == 'wd':
            a(f"""
            s_lshr_b32 s44, s2, 6
            s_mul_i32 s44, s44, {432 * 1280}
            s_bfe_u32 s45, s2, 0x30003
            s_mul_i32 s45, s45, {180 * 128}
            s_add_u32 s44, s44, s45
            s_mul_i32 s45, s26, {60 * 128}
            s_add_u32 s44, s44, s45
            s_add_u32 s44, s44, {144 * 1280 * b}
            """)
            r = 's[12:15]'
        elif kind == 'wo':
            a(f"""
            s_lshr_b32 s44, s2, 3
            s_mul_i32 s44, s44, {200 * 128}
            s_mul_i32 s45, s26, {68 * 128}
            s_add_u32 s44, s44, s45
            """)
            r = 's[16:19]'
        else:
            a(f"""
            s_mul_i32 s44, s29, {216 * 1024}
            s_lshl_b32 s45, s30, 2
            s_add_u32 s45, s45, s26
            s_mul_i32 s45, s45, {54 * 128}
            s_add_u32 s44, s44, s45
            """)
            r = 's[20:23]'
        m = (1 << n) - 1
        a(f"""
        s_mov_b32 exec_hi, {m >> 32}
        buffer_load_dword v165, {v(vPF)}, {r}, s44 offen
        s_mov_b32 exec_hi, -1
        {lab}:
        """)
        vm.add('pf', 1, optional=True)
    a(f's_waitcnt vmcnt({vm.wait("kv0")})')
    a('s_barrier')
    stamp(a, 16)
    lab = a.label('nokv2')
    a(f's_cmp_lg_u32 s26, 2\ns_cbranch_scc1 {lab}')
    kv_poll(False)
    a(f'{lab}:')

    def body(last, nw=12):
        for z in range(3):
            a(f's_waitcnt vmcnt({nw if not last else (12, 10, 8)[z]}) lgkmcnt(0)')
            ms = g_mfmas(z)
            if z == 2:
                for b in range(3):
                    a(f'v_add_u32 {v(vWA + b)}, s33, {v(vWA + b)}')
                rd = w_rd(0, 0)
            else:
                rd = w_rd(z + 1, 3072 * (z + 1))
            wd_ = w_dma('s40', 3072 * z)
            a(ms[0]); emit(a, rd[0:2]); emit(a, [wd_[0]]); a(SPACE)
            a(ms[1]); emit(a, rd[2:4]); emit(a, [wd_[1]]); a(SPACE)
            a(ms[3]); emit(a, rd[4:6]); emit(a, [wd_[2]]); a(SPACE)
            a(ms[2])
            if not last:
                emit(a, h_ld(z, 1))
            a(SPACE)
            a(ms[4])
            if not last:
                emit(a, h_ld(z, 0))
        a('s_add_u32 s40, s40, s33\ns_sub_u32 s33, 0, s33')

    NSTAT = int(ENV.get('NSTAT', '4'))
    for c in range(NSTAT):
        a.c(f'aux B{c}')
        a(f's_waitcnt vmcnt({vm.wait(f"kv{c + 1}")})')
        bstamp(a, c == 0)
        a('s_barrier')
        bstamp(a)
        kv_dma(c + 3)
        if WDC <= c < WDC + 2:
            for k in range(3 * (c - WDC), 3 * (c - WDC) + 3):
                emit(a, w_dma('s39', 3072 * k))
            vm.add('w', 9)
        paced()
    L_top, L_nb, L_sw, L_end2 = a.label('dtop'), a.label('dnb'), a.label('dsw'), a.label('dend')
    L_act, L_bar, L_nokv = a.label('dact'), a.label('dbar'), a.label('dnokv')
    L_s0, L_body, L_last, L_wo, L_next = a.label('ds0'), a.label('dbody'), a.label('dlast'), a.label('dwo'), a.label('dnext')
    L_w0 = a.label('dw0')
    L_w2 = a.label('dw2')
    L_b12 = a.label('db12')
    L_bd = a.label('dbd')
    L_np = a.label('dnp')
    L_p3 = a.label('dp3')
    L_k3 = a.label('dk3')
    L_w1 = a.label('dw1')
    L_n1 = a.label('dn1')
    L_oth, L_start, L_rei, L_nsw = a.label('doth'), a.label('dstart'), a.label('drei'), a.label('dnsw')
    a(f"""
    s_mov_b32 s34, {16 - NSTAT}
    s_mov_b32 s35, 0
    s_mov_b32 s37, {((NSTAT + 3) % NST) * CH_BYTES}
    s_mov_b32 s38, {KV_OFF + (NSTAT + 3) * CH_BYTES}
    s_mov_b32 s33, 9216
    s_mov_b32 s93, {POLL_MAX}
    v_mov_b32 {v(T + 3)}, {RDY_A + 4}
    {L_top}:
    s_sub_u32 s44, s35, 2
    s_cmp_lt_u32 s44, 8
    s_cbranch_scc1 {L_act}
    s_cmp_eq_u32 s35, 11
    s_cbranch_scc1 {L_w2}
    s_cmp_gt_u32 s35, 1
    s_cbranch_scc1 {L_w0}
    s_cmp_le_u32 s34, 3
    s_cbranch_scc1 {L_w0}
    s_cmp_eq_u32 s35, 1
    s_cbranch_scc1 {L_w1}
    s_waitcnt vmcnt(3)
    s_branch {L_bar}
    {L_w1}:
    s_waitcnt vmcnt({6 + HPF})
    s_branch {L_bar}
    {L_w2}:
    s_waitcnt vmcnt(12)
    s_mov_b32 s35, 12
    s_branch {L_bar}
    {L_w0}:
    s_waitcnt vmcnt(0)
    s_branch {L_bar}
    {L_act}:
    s_waitcnt vmcnt({17 if HPF else 16})
    {L_bar}:
    s_cmp_eq_u32 s34, 0
    s_cbranch_scc1 {L_nb}
    """)
    bstamp(a)
    a('s_barrier')
    bstamp(a)
    a(f"""
    s_cmp_lg_u32 s35, 0
    s_cbranch_scc1 {L_np}
    s_cmp_lg_u32 s26, 3
    s_cbranch_scc1 {L_np}
    buffer_load_dwordx2 {v(T + 4, 2)}, {v(vPF)}, s[20:23], s53 offen sc1
    {L_np}:
    s_cmp_le_u32 s34, 3
    s_cbranch_scc1 {L_nokv}
    s_add_u32 s44, s36, s37
    s_cmp_ge_u32 s26, 2
    s_cbranch_scc1 {L_k3}
    """)
    for e in (3, 0, 1, 2):
        a(f"""
        s_add_u32 m0, s44, {KVR + e * 1024}
        s_add_u32 s45, s38, {e * 1024}
        buffer_load_dwordx4 {v(vKO)}, s[20:23], s45 offen lds
        """)
        if e == 3:
            a(f'{L_k3}:')
    a(f"""
    s_add_u32 s38, s38, {CH_BYTES}
    s_add_u32 s37, s37, {CH_BYTES}
    s_cmp_eq_u32 s37, {CH_BYTES * NST}
    s_cselect_b32 s37, 0, s37
    {L_nokv}:
    s_sub_u32 s34, s34, 1
    s_branch {L_sw}
    {L_nb}:
    s_cmp_ge_u32 s35, 11
    s_cbranch_scc1 {L_end2}
    {L_sw}:
    s_cmp_eq_u32 s35, 0
    s_cbranch_scc1 {L_s0}
    s_cmp_lt_u32 s35, 9
    s_cbranch_scc1 {L_body}
    s_cmp_eq_u32 s35, 9
    s_cbranch_scc1 {L_last}
    s_cmp_eq_u32 s35, 10
    s_cbranch_scc1 {L_wo}
    s_branch {L_top}
    {L_s0}:
    s_sub_u32 s93, s93, 1
    s_cbranch_scc1 {L_start}
    s_cmp_lg_u32 s26, 3
    s_cbranch_scc1 {L_oth}
    s_cmp_ge_u32 s34, 3
    s_cbranch_scc1 {L_p3}
    buffer_load_dwordx2 {v(T + 4, 2)}, {v(vPF)}, s[20:23], s53 offen sc1
    s_waitcnt vmcnt(0)
    {L_p3}:
    s_waitcnt vmcnt(3)
    v_cmp_eq_u64 vcc, s[98:99], {v(T + 4, 2)}
    s_nop 1
    s_cmp_eq_u64 vcc, -1
    s_cselect_b32 s44, s98, s34
    v_mov_b32 {v(T + 2)}, s44
    ds_write_b32 {v(T + 3)}, {v(T + 2)}
    s_cbranch_scc1 {L_start}
    s_branch {L_top}
    {L_oth}:
    s_mov_b32 s45, 40
    {L_rei}:
    s_sleep 1
    ds_read_b32 {v(T + 2)}, {v(T + 3)}
    s_waitcnt lgkmcnt(0)
    v_readfirstlane_b32 s44, {v(T + 2)}
    s_cmp_eq_u32 s44, s98
    s_cbranch_scc1 {L_start}
    s_cmp_eq_u32 s44, s34
    s_cbranch_scc1 {L_top}
    s_sub_u32 s45, s45, 1
    s_cbranch_scc0 {L_rei}
    s_branch {L_top}
    {L_start}:
    """)
    stamp(a, 23)
    for k in range(3):
        for e in range(2):
            emit(a, h_ld(k, e))
    for _ in range(HPF):
        paced_h()
    emit(a, w_rd(0, 0))
    a(f"""
    {L_next}:
    s_add_u32 s35, s35, 1
    s_branch {L_top}
    {L_body}:
    s_cmp_lg_u32 s35, 1
    s_cbranch_scc1 {L_n1}
    s_waitcnt vmcnt(0)
    {L_n1}:
    s_cmp_lg_u32 s35, 8
    s_cbranch_scc1 {L_nsw}
    s_mov_b32 s12, s16
    s_mov_b32 s13, s17
    s_mov_b32 s14, 819200
    s_mov_b32 s43, s56
    s_mov_b32 s52, 25600
    s_mov_b32 s48, 51200
    s_mov_b32 s45, 0x15556
    """)
    for p in range(3):
        a(f"""
        v_add_u32 {v(T)}, {64 * p}, {v(vL)}
        v_mul_lo_u32 {v(T + 1)}, {v(T)}, s45
        v_lshrrev_b32 {v(T + 1)}, 23, {v(T + 1)}
        v_mul_u32_u24 {v(T + 1)}, {8 * 1280}, {v(T + 1)}
        v_sub_u32 {v(vWD + p)}, {v(vWD + p)}, {v(T + 1)}
        """)
    a(f"""
    {L_nsw}:
    s_cmp_lt_u32 s34, 3
    s_cbranch_scc1 {L_b12}
    """)
    body(False, 15)
    a(f's_branch {L_bd}\n{L_b12}:')
    body(False, 12)
    a(f'{L_bd}:')
    lab = a.label('npsw')
    a(f'''
    s_cmp_lg_u32 s35, {10 - NSTAT}
    s_cbranch_scc1 {lab}
    s_mov_b32 s4, s16
    s_mov_b32 s5, s17
    s_mov_b32 s6, 819200
    s_lshr_b32 s44, s2, 3
    s_lshl_b32 s44, s44, 2
    s_add_u32 s44, s44, s26
    s_mul_i32 s32, s44, {50 * 128}
    s_mov_b32 s31, {13 * 128}
    {lab}:
    ''')
    paced_h()
    paced()
    a(f's_branch {L_next}\n{L_last}:')
    body(True)
    a(f's_branch {L_next}\n{L_wo}:')
    stamp(a, 17)
    emit(a, w_rd(1, 3072) + w_rd(2, 6144))
    a('s_mov_b32 s45, 0x15556\ns_waitcnt lgkmcnt(0)')
    emit(a, w_dma('s39', 3072 * 3))
    emit(a, w_dma('s39', 3072 * 4))
    for p in range(3):
        a(f"""
        v_add_u32 {v(T)}, {64 * p}, {v(vL)}
        v_mul_lo_u32 {v(T + 1)}, {v(T)}, s45
        v_bfe_u32 {v(T)}, {v(T + 1)}, 22, 1
        v_lshrrev_b32 {v(T + 1)}, 23, {v(T + 1)}
        v_mul_u32_u24 {v(T)}, {36 * 1280}, {v(T)}
        v_mul_u32_u24 {v(T + 1)}, {12 * 1280}, {v(T + 1)}
        v_add3_u32 {v(vWD + p)}, {v(vWD + p)}, {v(T + 1)}, {v(T)}
        """)
    a(f's_add_u32 s43, s56, {16 * 1280}\ns_mov_b32 s52, {80 * 1280}\ns_mov_b32 s48, {160 * 1280}')
    emit(a, w_dma('s39', 3072 * 5))
    emit(a, w_dma('s39', 3072 * 6))
    a(f's_cmp_lg_u32 s34, 0\ns_cbranch_scc1 {L_next}\n{L_end2}:')
    a(f"""
    v_subrev_u32 {v(vWA)}, 9216, {v(vWA)}
    v_subrev_u32 {v(vWA + 1)}, 9216, {v(vWA + 1)}
    v_subrev_u32 {v(vWA + 2)}, 9216, {v(vWA + 2)}
    s_mul_i32 s44, s26, 14336
    s_add_u32 s44, s44, {OL_A}
    v_add_u32 {v(vKO)}, s44, {v(vHL)}
    v_and_b32 {v(T)}, 7, {v(vR)}
    v_xor_b32 {v(T)}, {v(T)}, {v(vH)}
    v_lshlrev_b32 {v(T + 1)}, 7, {v(vR)}
    v_add_u32 {v(T + 1)}, s39, {v(T + 1)}
    """)
    for jp in range(4):
        a(f"""
        v_xor_b32 {v(T + 2)}, {2 * jp}, {v(T)}
        v_lshl_add_u32 {v(T + 4 + jp)}, {v(T + 2)}, 4, {v(T + 1)}
        """)
    stamp(a, 18)
    a('s_barrier')
    Lp, Lq = a.label('op'), a.label('opd')
    a(f's_mov_b32 s93, {OPOLL_MAX}\n{Lp}:')
    for k in range(27, 30):
        for e in range(2):
            a(f'buffer_load_dwordx4 {v(hreg(k) + 4 * e, 4)}, {v(vHL)}, s[20:23], s{54 + e} offen offset:{1024 * (k - 27)} sc1')
    a('s_waitcnt vmcnt(0)')
    regs = [hreg(k) + i for k in range(27, 30) for i in range(8)]
    a(f'v_max3_u32 {v(T)}, {v(regs[0])}, {v(regs[1])}, {v(regs[2])}')
    for i in range(3, 23, 2):
        a(f'v_max3_u32 {v(T)}, {v(T)}, {v(regs[i])}, {v(regs[i + 1])}')
    a(f"""
    v_max_u32 {v(T)}, {v(T)}, {v(regs[23])}
    v_cmp_eq_u32 vcc, -1, {v(T)}
    s_nop 1
    s_cmp_eq_u64 vcc, 0
    s_cbranch_scc1 {Lq}
    s_sub_u32 s93, s93, 1
    s_cbranch_scc1 {Lq}
    s_sleep {OSLEEP}
    s_branch {Lp}
    {Lq}:
    """)
    stamp(a, 19)

    def o_rd(k):
        return [f'ds_read_b128 {v(hreg(k) + 4 * e, 4)}, {v(vKO)} offset:{(k - 30) * 2048 + 1024 * e}' for e in range(2)]

    for k in range(27, 30):
        emit(a, g_mfmas(k))
        emit(a, w_rd(k + 3, 3072 * (k - 27)))
    a('s_waitcnt lgkmcnt(0)')
    a('s_barrier')
    stamp(a, 30)
    for k in range(30, 33):
        emit(a, o_rd(k))
    XO = vWD
    assert XO % 2 == 0 and XO + 8 <= ACC
    for k in range(30, 34):
        a(f's_waitcnt lgkmcnt({ {30: 4, 31: 10, 32: 8, 33: 8}[k] })')
        emit(a, g_mfmas(k))
        emit(a, w_rd(k + 3, 3072 * (k + 3 - 30)) + o_rd(k + 3))
    g2_out(a, XO, vL, 's24', 0)
    a('s_waitcnt lgkmcnt(0)')
    wr = lambda n: [f'ds_write_b128 {v(T + 4 + jp)}, {v(ACC + 16 * n + 4 * jp, 4)} offset:{4096 * n}' for jp in range(4)]
    ms = [g_mfmas(k) for k in range(34, 37)]
    for n in range(5):
        for z in range(3):
            a(ms[z][n])
        if n >= 2:
            a('s_nop 5')
            emit(a, wr(n - 2))
    stamp(a, 20)
    a('s_nop 3')
    emit(a, wr(3))
    a('s_nop 3')
    emit(a, wr(4))
    a('s_waitcnt vmcnt(0) lgkmcnt(0)')
    a('s_barrier')
    stamp(a, 21)
    for i in range(8):
        a(f'v_mov_b32 {v(ACC + i)}, {v(XO + i)}')
    g2_out(a, ACC, vL, 's24', 1)


def build(path):
    hdr = open('parallel_sum__grouped_kv_mqa__geglu_ffn__prompt.s.ref').read().split('; Override launch')[0]
    out = hdr + f'; @launch grid=(256,1,1) block=(768,1,1) lds={LDS_TOTAL}\n'
    out += '.amdgcn_target "amdgcn-amd-amdhsa--gfx950"\n'
    out += gen()
    out += kernel_desc(KNAME, 168)
    open(path, 'w').write(out)


if __name__ == '__main__':
    import sys
    if len(sys.argv) > 2 and sys.argv[2] == 'stamp':
        asmlib.STAMPS = True
    build(sys.argv[1])
```

```python
import struct


def f2u(x):
    return struct.unpack('<I', struct.pack('<f', x))[0]


class Asm:
    def __init__(self):
        self.lines = []
        self.uid = 0

    def __call__(self, s):
        for ln in s.split('\n'):
            ln = ln.strip()
            if not ln:
                continue
            if ln.endswith(':') or ln.startswith('.'):
                self.lines.append(ln)
            else:
                self.lines.append('    ' + ln)

    def c(self, s):
        self.lines.append('    ; ' + s)

    def label(self, base):
        self.uid += 1
        return f'{base}_{self.uid}'

    def text(self):
        return '\n'.join(self.lines) + '\n'


def v(a, n=1):
    return f'v{a}' if n == 1 else f'v[{a}:{a + n - 1}]'


def s(a, n=1):
    return f's{a}' if n == 1 else f's[{a}:{a + n - 1}]'


class Alloc:
    def __init__(self, start=0, limit=256):
        self.p = start
        self.limit = limit
        self.names = {}

    def __call__(self, name, n=1, align=1):
        if n >= 2:
            align = max(align, 2)
        self.p = (self.p + align - 1) // align * align
        r = self.p
        self.p += n
        assert self.p <= self.limit, (name, self.p)
        self.names[name] = (r, n)
        return r


def mfma16(d, a, b, c=None):
    cs = '0' if c is None else v(c, 16)
    return f'v_mfma_f32_32x32x16_bf16 {v(d, 16)}, {v(a, 4)}, {v(b, 4)}, {cs}'


def mfma8(d, a, b, c=None):
    cs = '0' if c is None else v(c, 16)
    return f'v_mfma_f32_32x32x8_bf16 {v(d, 16)}, {v(a, 2)}, {v(b, 2)}, {cs}'


def kernel_head(name):
    return f'''.text
.globl {name}
.p2align 8
.type {name},@function
{name}:
'''


def kernel_desc(name, nv, ns=102):
    if STAMPS:
        nv = max(nv, 168)
    acc = (nv + 3) // 4 * 4
    return f'''.section .rodata,"a"
.p2align 6
.amdhsa_kernel {name}
  .amdhsa_next_free_vgpr {nv}
  .amdhsa_next_free_sgpr {ns}
  .amdhsa_accum_offset {acc}
  .amdhsa_group_segment_fixed_size 0
  .amdhsa_kernarg_size 96
  .amdhsa_user_sgpr_count 2
  .amdhsa_user_sgpr_kernarg_segment_ptr 1
  .amdhsa_system_sgpr_workgroup_id_x 1
.end_amdhsa_kernel
'''


STAMPS = False
STAMP_OFF = 0x1800000


def stamp_init(a, kidx):
    if not STAMPS:
        return
    a(f'''
    s_mov_b32 s88, s76
    s_mov_b32 s89, s77
    s_mov_b32 s90, 0x2000000
    s_mov_b32 s91, 0x20000
    s_lshl_b32 s92, s2, 3
    s_add_u32 s92, s92, s24
    s_lshl_b32 s92, s92, 7
    s_add_u32 s92, s92, {STAMP_OFF + kidx * 0x40000}
    ''')


def stamp(a, slot, early=False):
    import os
    if os.environ.get('DIAG') and int(os.environ['DIAG']) == slot and not early:
        a('s_memrealtime s[86:87]\ns_waitcnt lgkmcnt(0)')
    if not STAMPS:
        return
    if os.environ.get('MINST') and slot not in (0, 20):
        return
    if not early:
        a('''
        s_memrealtime s[94:95]
        s_memtime s[96:97]
        ''')
    a(f'''
    s_waitcnt lgkmcnt(0)
    v_mov_b32 v166, s94
    v_mov_b32 v167, s96
    buffer_store_dwordx2 v[166:167], off, s[88:91], s92 offset:{slot * 8}
    ''')


def diag_end(a):
    import os
    if not os.environ.get('DIAG'):
        return
    if os.environ.get('DWG'):
        m, val = os.environ['DWG'].split(',')
        a(f's_and_b32 s94, s2, {m}\ns_cmp_lg_u32 s94, {val}\ns_cbranch_scc1 L_diag_done')
    a('''
    s_cmp_lg_u32 s24, 0
    s_cbranch_scc1 L_diag_done
    s_add_u32 s86, s86, 6000
    L_diag_spin:
    s_memrealtime s[94:95]
    s_waitcnt lgkmcnt(0)
    s_sub_u32 s94, s94, s86
    s_cmp_lt_i32 s94, 0
    s_cbranch_scc1 L_diag_spin
    L_diag_done:
    ''')


def stamp_early(a):
    import os
    if os.environ.get('DIAG') == '0':
        a('s_memrealtime s[86:87]')
    if not STAMPS:
        return
    a('''
    s_memrealtime s[94:95]
    s_memtime s[96:97]
    ''')
```

```python
from asmlib import *
import asmlib
import math
import os

KNAME = 'parallel_sum__grouped_kv_mqa__geglu_ffn__prompt_kernel'

H_OFF = 0
QF_OFF = 0x700000
KV_OFF = 0xA00000
OF_OFF = 0xB00000
FL_OFF = 0xE00000
F_ST = 0x1200000
F_CS = 0x1220000
F_KV = 0x1240000
F_KC = 0x1248000
F_W2 = 0x1250000
F_QH = 0xE80000
ROWW = 0xE10000
CSW = 0xE20000
CSKVW = 0xE60000
W2F = 0xF00000
WS_USED = 0x1260000

LDS_X = 0
LDS_W = 49152
LDS_KV = 147456
CS_A = 16384
PART_A = 32768
VT_A = 32768
ROWC_A = 156672
CSKV_A = 158720
NONCE_A = 160768
RDY_A = 160800
CD_A = 160832
PD_A = 160864
LDS_TOTAL = 163840
CH_BYTES = 14336
NST = 4
KVR = 49152
Q_A = KVR + 3 * CH_BYTES
G2R = KVR + CH_BYTES * NST
G2D = 3
TW_A = G2R
OL_A = KVR
WO_HI = 106496
WOA = 0
RED_A = 0

C0 = -2.0 * math.sqrt(2.0 / math.pi) * math.log2(math.e)
C1 = C0 * 0.044715
QSC = math.log2(math.e) / math.sqrt(20.0)
M_OFFSET = 90.0
POLL_MAX = 400000
NONCE_X = 0x5a5a5a5a

HM = 's[62:63]'
PFWAIT = False
ENV = os.environ
NODOWN = ENV.get('NODOWN')
PRIO2 = int(ENV.get('PRIO2', '3'))
PRIO1 = int(ENV.get('PRIO1', '3'))
SPACE = ENV.get('SPACE', 's_nop 7')
NOPF = not ENV.get('PF')
INV = int(ENV.get('INV', '0'))
NOG2 = ENV.get('NOG2')
TLBW = int(ENV.get('TLBW', '0'))
JX = int(ENV.get('JX', '0'))
QSLEEP = int(ENV.get('QSLEEP', '4'))
KVF = int(ENV.get('KVF', '3'))
OUTSC = {'': '', '1': ' sc1', '2': ' nt', '3': ' sc0 sc1', '4': ' sc1 nt'}[ENV.get('OUTSC', '')]
HPF = int(ENV.get('HPF', '2'))
PERM = int(ENV.get('PERM', '3'))
P1PF = int(ENV.get('P1PF', '0'))
PFC = tuple(int(x) for x in ENV.get('PFC', '2,3,4').split(','))
WDC = int(ENV.get('WDC', '2'))
WOC = int(ENV.get('WOC', '4'))
TWC = int(ENV.get('TWC', '1'))
DPOLL2 = 0
OSLEEP = int(ENV.get('OSLEEP', '1'))
LATE1 = int(ENV.get('LATE1', '1'))
OPOLL_MAX = 200000
LINPF = int(ENV.get('LINPF', '0'))
NOSL = ENV.get('NOSL')
PF0 = int(ENV.get('PF0', '0'))
JIT = int(ENV.get('JIT', '0'))
JITD = int(ENV.get('JITD', '4'))
SLC = int(ENV.get('SLC', '0'))
SLG = int(ENV.get('SLG', '1'))
SPN = int(ENV.get('SPN', '2'))
PZ0 = int(ENV.get('PZ0', '0'))
P3C = int(ENV.get('P3C', '7'))
EARLY2 = int(ENV.get('EARLY2', '0'))
CWARM = int(ENV.get('CWARM', '1'))
KVSL = int(ENV.get('KVSL', '16'))
HEARLY = ENV.get('HEARLY')
PSLEEP = int(ENV.get('PSLEEP', '2'))
NOPF2 = not ENV.get('PF2')
CV = int(ENV.get('CV', '0'))
NODMA = ENV.get('NODMA')
IST = ENV.get('IST')
LD = ' sc1' if ENV.get('SC1LD') else ''
FEWST = ENV.get('FEWST')
IST_LIST = tuple(int(x) for x in os.environ.get('ISTL', '1,2,6,7').split(','))
HFLAG_T = int(os.environ.get('HFT', '6'))
G2_START = int(os.environ.get('G2S', '6'))
G2_END = int(os.environ.get('G2E', '15'))


class VM:
    def __init__(self):
        self.ops = []

    def add(self, tag, n=1, optional=False):
        for _ in range(n):
            self.ops.append((tag, optional))

    def wait(self, tag):
        idx = max(i for i, (t, o) in enumerate(self.ops) if t == tag)
        n = sum(1 for t, o in self.ops[idx + 1:] if not o)
        assert n <= 63, n
        return n

    def drain(self):
        self.ops = []


def emit(a, bundles):
    for b in bundles:
        a(b if isinstance(b, str) else '\n'.join(b))


def flag_store(a, soff_reg, vt):
    a(f'''
    v_mov_b32 {v(vt)}, s98
    v_mov_b32 {v(vt + 1)}, s99
    s_mov_b64 exec, 1
    buffer_store_dwordx2 {v(vt, 2)}, off, s[20:23], {soff_reg} sc1
    s_mov_b64 exec, -1
    ''')


def poll(a, vt, voff, soff_reg, wide=False, ignore=None, inv=True, sleep=None):
    L = a.label('poll')
    Ld = a.label('polld')
    a(f's_mov_b32 s93, {POLL_MAX}')
    a(f'{L}:')
    if wide:
        a(f'''
        buffer_load_dwordx4 {v(vt, 4)}, {v(voff)}, s[20:23], {soff_reg} offen sc1
        s_waitcnt vmcnt(0)
        v_cmp_eq_u64 vcc, s[98:99], {v(vt, 2)}
        v_cmp_eq_u64 s[46:47], s[98:99], {v(vt + 2, 2)}
        s_nop 1
        s_and_b64 vcc, vcc, s[46:47]
        ''')
    else:
        a(f'''
        buffer_load_dwordx2 {v(vt, 2)}, {v(voff)}, s[20:23], {soff_reg} offen sc1
        s_waitcnt vmcnt(0)
        v_cmp_eq_u64 vcc, s[98:99], {v(vt, 2)}
        s_nop 1
        ''')
    if ignore:
        a(f's_or_b64 vcc, vcc, {ignore}')
    a(f'''
    s_cmp_eq_u64 vcc, -1
    s_cbranch_scc1 {Ld}
    s_sub_u32 s93, s93, 1
    s_cbranch_scc1 {Ld}
    s_sleep {sleep or PSLEEP}
    s_branch {L}
    {Ld}:
    ''')
    if inv and INV:
        a('buffer_inv sc1\ns_waitcnt vmcnt(0)')


def polln(a, vt, voff, rows, sleep):
    L = a.label('poll')
    Ld = a.label('polld')
    a(f's_mov_b32 s93, {POLL_MAX}\n{L}:')
    for q, (so, ig) in enumerate(rows):
        a(f'buffer_load_dwordx2 {v(vt + 2 * q, 2)}, {v(voff[q] if isinstance(voff, list) else voff)}, s[20:23], {so} offen sc1')
    a('s_waitcnt vmcnt(0)')
    dst = ['vcc', 's[46:47]', 's[48:49]']
    for q in range(len(rows)):
        a(f'v_cmp_eq_u64 {dst[q]}, s[98:99], {v(vt + 2 * q, 2)}')
    a('s_nop 1')
    for q, (so, ig) in enumerate(rows):
        if ig:
            a(f's_or_b64 {dst[q]}, {dst[q]}, {ig}')
        if q:
            a(f's_and_b64 vcc, vcc, {dst[q]}')
    a(f'''
    s_cmp_eq_u64 vcc, -1
    s_cbranch_scc1 {Ld}
    s_sub_u32 s93, s93, 1
    s_cbranch_scc1 {Ld}
    s_sleep {sleep}
    s_branch {L}
    {Ld}:
    ''')


def one_poller(a, vt, word, body, who=3):
    Lw, Ld, Ls = a.label('opw'), a.label('opd'), a.label('ops')
    a(f'''
    v_mov_b32 {v(vt + 3)}, {RDY_A + 4 * word}
    s_cmp_lg_u32 s26, {who}
    s_cbranch_scc1 {Lw}
    ''')
    body()
    a(f'''
    v_mov_b32 {v(vt + 2)}, s98
    ds_write_b32 {v(vt + 3)}, {v(vt + 2)}
    s_branch {Ld}
    {Lw}:
    s_mov_b32 s93, {POLL_MAX * 8}
    {Ls}:
    ds_read_b32 {v(vt + 2)}, {v(vt + 3)}
    s_waitcnt lgkmcnt(0)
    v_readfirstlane_b32 s46, {v(vt + 2)}
    s_cmp_eq_u32 s46, s98
    s_cbranch_scc1 {Ld}
    s_sub_u32 s93, s93, 1
    s_cbranch_scc1 {Ld}
    s_sleep 1
    s_branch {Ls}
    {Ld}:
    ''')


def bstamp(a, first=False):
    if not (asmlib.STAMPS and ENV.get('BST')):
        return
    if first:
        a('s_add_u32 s101, s92, 0xC0000')
    a('''
    s_memrealtime s[94:95]
    s_memtime s[96:97]
    s_waitcnt lgkmcnt(0)
    v_mov_b32 v166, s94
    v_mov_b32 v167, s96
    buffer_store_dwordx2 v[166:167], off, s[88:91], s101
    s_add_u32 s101, s101, 8
    ''')


def srd(a, base, ptr, size):
    a(f'''
    s_mov_b32 s{base}, s{ptr}
    s_mov_b32 s{base + 1}, s{ptr + 1}
    s_mov_b32 s{base + 2}, {size}
    s_mov_b32 s{base + 3}, 0x20000
    ''')


def w_source(a):
    a('''
    s_and_b32 s44, s26, 1
    s_and_b32 s51, s44, s48
    s_lshr_b32 s45, s26, 1
    s_lshl_b32 s46, s44, 6
    s_add_u32 s46, s46, s49
    s_cmp_eq_u32 s48, 1
    s_cselect_b32 s46, s49, s46
    s_lshl_b32 s47, s45, 6
    s_add_u32 s47, s47, s50
    s_cmp_eq_u32 s51, 1
    s_cselect_b32 s52, s47, s46
    s_lshl_b32 s52, s52, 1
    s_cmp_eq_u32 s45, 1
    s_cselect_b32 s12, s82, s80
    s_cselect_b32 s13, s83, s81
    s_mov_b32 s14, 2211840
    s_mov_b32 s53, 3456
    s_cmp_eq_u32 s51, 1
    s_cselect_b32 s12, s70, s12
    s_cselect_b32 s13, s71, s13
    s_cselect_b32 s14, 819200, s14
    s_cselect_b32 s53, 1280, s53
    s_mov_b32 s15, 0x20000
    ''')


def tile_offs(t):
    p, o = t >> 1, t & 1
    b = p * 7168
    return b + o * 1024, b + 2048, b + 3072 + o * 2048, b + 4096 + o * 2048


def gen():
    a = Asm()
    a(kernel_head(KNAME))
    stamp_early(a)
    vL, vH, vR = 1, 2, 3
    L_end = a.label('end')
    L_aux = a.label('aux')
    a(f'''
    s_cmp_ge_u32 s2, 256
    s_cbranch_scc1 {L_end}
    s_load_dwordx8 s[68:75], s[0:1], 0
    s_load_dwordx4 s[80:83], s[0:1], 48
    s_load_dwordx4 s[76:79], s[0:1], 80
    s_load_dwordx2 s[84:85], s[0:1], 32
    s_load_dwordx4 s[88:91], s[0:1], 64
    v_lshrrev_b32 v4, 6, v0
    v_and_b32 {v(vL)}, 63, v0
    v_readfirstlane_b32 s24, v4
    v_lshrrev_b32 {v(vH)}, 5, {v(vL)}
    v_and_b32 {v(vR)}, 31, {v(vL)}
    ''')
    if CWARM:
        Lw, Lp = a.label('nowarm'), a.label('pc')
        a(f'''
        s_cmp_lg_u32 s24, 11
        s_cbranch_scc1 {Lw}
        s_getpc_b64 s[4:5]
        {Lp}:
        s_bfe_u32 s44, s2, 0x30003
        s_lshl_b32 s44, s44, 13
        v_lshl_add_u32 v4, {v(vL)}, 7, s44
        v_min_u32 v4, {L_end}-{Lp}, v4
        global_load_dword v165, v4, s[4:5]
        {Lw}:
        ''')
    vXD, vWD, vKD = 20, 22, 24
    t0, t1, t2, t3, t4 = 4, 5, 6, 7, 8
    a(f'''
    s_bfe_u32 s27, s2, 0x30003
    s_and_b32 s46, s2, 1
    s_lshl_b32 s46, s46, 3
    s_add_u32 s27, s27, s46
    s_bfe_u32 s46, s2, 0x20001
    s_xor_b32 s46, s46, {JX}
    s_lshl_b32 s46, s46, 2
    s_lshr_b32 s47, s2, 6
    s_add_u32 s28, s46, s47
    s_cmp_ge_u32 s28, 11
    s_cselect_b32 s48, 1, 0
    s_sub_u32 s44, s28, 11
    s_lshl_b32 s45, s44, 6
    s_add_u32 s45, s45, 1408
    s_lshl_b32 s46, s28, 7
    s_lshl_b32 s50, s44, 7
    s_cmp_eq_u32 s48, 1
    s_cselect_b32 s49, s45, s46
    s_and_b32 s25, s24, 1
    s_lshr_b32 s26, s24, 1
    s_sub_u32 s44, s24, 8
    s_cmp_ge_u32 s24, 8
    s_cselect_b32 s26, s44, s26
    s_and_b32 s44, s26, 1
    s_and_b32 s51, s44, s48
    s_lshr_b32 s43, s26, 1
    s_andn2_b32 s46, s44, s48
    s_lshl_b32 s46, s46, 6
    s_add_u32 s46, s46, s49
    s_lshl_b32 s47, s43, 6
    s_add_u32 s47, s47, s50
    s_mov_b32 s53, 3456
    s_cmp_eq_u32 s51, 1
    s_cselect_b32 s52, s47, s46
    s_cselect_b32 s53, 1280, s53
    s_lshl_b32 s52, s52, 1
    s_lshl_b32 s31, s53, 3
    s_lshl_b32 s32, s53, 6
    v_lshrrev_b32 {v(t0)}, 3, {v(vL)}
    v_and_b32 {v(t1)}, 7, {v(vL)}
    s_lshl_b32 s44, s27, 7
    s_lshl_b32 s45, s26, 5
    s_add_u32 s44, s44, s45
    v_add_u32 {v(t2)}, s44, {v(t0)}
    v_mul_u32_u24 {v(t2)}, 1280, {v(t2)}
    v_lshrrev_b32 {v(t3)}, 1, {v(t0)}
    v_xor_b32 {v(t3)}, {v(t3)}, {v(t1)}
    v_lshl_add_u32 {v(vXD)}, {v(t3)}, 4, {v(t2)}
    v_xor_b32 {v(t3)}, 4, {v(t3)}
    v_lshl_add_u32 {v(vXD + 1)}, {v(t3)}, 4, {v(t2)}
    v_add_u32 {v(vXD + 1)}, {8 * 1280}, {v(vXD + 1)}
    v_mul_lo_u32 {v(t2)}, {v(t0)}, s53
    v_lshrrev_b32 {v(t3)}, 1, {v(t1)}
    v_and_b32 {v(t4)}, 2, {v(t0)}
    v_xor_b32 {v(t3)}, {v(t3)}, {v(t4)}
    v_and_b32 {v(t4)}, 1, {v(t1)}
    v_lshl_add_u32 {v(t2)}, {v(t4)}, 4, {v(t2)}
    v_add_u32 {v(t2)}, s52, {v(t2)}
    v_lshl_add_u32 {v(vWD)}, {v(t3)}, 5, {v(t2)}
    v_xor_b32 {v(t3)}, 1, {v(t3)}
    v_lshl_add_u32 {v(vWD + 1)}, {v(t3)}, 5, {v(t2)}
    s_lshl_b32 s36, s26, 12
    s_mul_i32 s37, s26, 24576
    s_add_u32 s37, s37, {LDS_W}
    s_lshl_b32 s33, s53, 5
    s_mul_i32 s33, s33, s25
    s_lshl_b32 s44, s25, 12
    s_add_u32 s35, s37, s44
    s_bfe_u32 s44, s2, 0x30003
    s_lshr_b32 s45, s2, 6
    s_add_u32 s44, s44, s45
    s_and_b32 s100, s44, {PERM}
    s_xor_b32 s45, s100, 1
    s_mul_i32 s38, s100, s32
    s_mul_i32 s39, s45, s32
    s_mov_b32 s10, 2621440
    s_mov_b32 s11, 0x20000
    s_mov_b32 s14, 2211840
    s_mov_b32 s15, 0x20000
    s_cmp_ge_u32 s24, 8
    s_cbranch_scc1 {L_aux}
    s_cmp_eq_u32 s43, 1
    s_waitcnt lgkmcnt(0)
    s_cselect_b32 s12, s82, s80
    s_cselect_b32 s13, s83, s81
    s_cmp_eq_u32 s51, 1
    s_cselect_b32 s12, s70, s12
    s_cselect_b32 s13, s71, s13
    s_cselect_b32 s14, 819200, s14
    ''')
    def c_start(c):
        for e in range(4):
            a(f'''
            s_add_u32 m0, s35, {c * 8192 + e * 1024}
            s_add_u32 s34, s33, s{38 + c}
            buffer_load_dwordx4 {v(vWD + (e & 1))}, s[12:15], s34 offen lds
            ''')
            if e < 3:
                a('s_add_u32 s33, s33, s31')
            elif c == 0:
                a('s_mul_i32 s44, s31, 3\ns_sub_u32 s33, s33, s44')
    c_start(0)
    if not LATE1:
        c_start(1)
    L_com = a.label('common')
    a(f'''
    s_mov_b32 s8, s68
    s_mov_b32 s9, s69
    s_mov_b32 s16, s72
    s_mov_b32 s17, s73
    s_mov_b32 s18, 25600
    s_mov_b32 s19, 0x20000
    v_mov_b32 {v(vKD)}, 0
    s_branch {L_com}
    {L_aux}:
    s_setprio {PRIO1}
    s_cmp_lt_u32 s28, 8
    s_cselect_b32 s54, 1, 0
    s_cmp_lt_u32 s26, 3
    s_cselect_b32 s40, s54, 0
    s_lshl_b32 s44, s26, 10
    s_add_u32 s38, s44, {LDS_KV}
    v_lshl_add_u32 {v(vKD)}, {v(vL)}, 4, s44
    s_mov_b32 s18, 25600
    s_mov_b32 s19, 0x20000
    s_lshl_b32 s46, s100, 7
    s_lshl_b32 s57, s45, 7
    s_mul_i32 s58, s100, 2560
    s_mul_i32 s59, s45, 2560
    s_bitcmp1_b32 s28, 2
    s_waitcnt lgkmcnt(0)
    s_mov_b32 s8, s68
    s_mov_b32 s9, s69
    s_cselect_b32 s16, s74, s72
    s_cselect_b32 s17, s75, s73
    ''')
    def a_start(c):
        for e in range(4):
            a(f'''
            s_add_u32 m0, s36, {LDS_X + c * 16384 + e * 1024}
            s_add_u32 s34, s{(46, 57)[c]}, {(e >> 1) * 16 * 1280}
            buffer_load_dwordx4 {v(vXD + (e & 1))}, s[8:11], s34 offen lds
            ''')
        lab = a.label('nokv')
        a(f'''
        s_cmp_eq_u32 s40, 0
        s_cbranch_scc1 {lab}
        s_add_u32 m0, s38, {c * 3072}
        s_nop 0
        buffer_load_dwordx4 {v(vKD)}, s[16:19], s{58 + c} offen lds
        {lab}:
        ''')
    a_start(0)
    if not LATE1:
        a_start(1)
    a(f'''
    s_cmp_eq_u32 s43, 1
    s_cselect_b32 s12, s82, s80
    s_cselect_b32 s13, s83, s81
    s_cmp_eq_u32 s51, 1
    s_cselect_b32 s12, s70, s12
    s_cselect_b32 s13, s71, s13
    s_cselect_b32 s14, 819200, s14
    {L_com}:
    s_mov_b32 s62, 0
    s_mov_b32 s63, -1
    s_and_b32 s44, s2, 7
    s_lshl_b32 s44, s44, 2
    s_bfe_u32 s46, s2, 0x20003
    s_add_u32 s29, s44, s46
    s_lshr_b32 s30, s2, 5
    ''')
    srd(a, 20, 78, WS_USED)
    srd(a, 64, 90, 2621440)
    if asmlib.STAMPS:
        a('s_mov_b32 s86, s88\ns_mov_b32 s87, s89')
    WDP = 86 if asmlib.STAMPS else 88
    if asmlib.STAMPS:
        a(f'''
        s_mov_b32 s88, s78
        s_mov_b32 s89, s79
        s_mov_b32 s90, 0x2000000
        s_mov_b32 s91, 0x20000
        s_mul_i32 s92, s2, 12
        s_add_u32 s92, s92, s24
        s_lshl_b32 s92, s92, 8
        s_add_u32 s92, s92, {asmlib.STAMP_OFF}
        ''')
    stamp(a, 0, early=True)
    stamp(a, 24)
    L_aux2 = a.label('aux2')
    a(f'''
    s_cmp_ge_u32 s24, 8
    s_cbranch_scc1 {L_aux2}
    ''')
    compute_wave(a, vL, vH, vR, L_end, c_start)
    a(f'{L_aux2}:')
    aux_wave(a, vL, vH, vR, L_end, WDP, a_start)
    a(f'''
    {L_end}:
    s_endpgm
    ''')
    return a.text()


def compute_wave(a, vL, vH, vR, L_end, c_start):
    al = Alloc(4, 168)
    T = al('T', 8, 4)
    ACC = al('acc', 64, 4)
    XF = al('xf', 32, 4)
    WF = al('wf', 16, 4)
    vXA = al('xa', 2)
    vWA = al('wa', 4)
    assert al.p == 130
    t0, t1, t2, t3, t4 = T, T + 1, T + 2, T + 3, T + 4
    a.c('=========== compute wave: phase 1 ===========')
    CR = 132
    XR = 132
    U = 160
    u0, u1, u2, u3, u4, u5 = range(U, U + 6)
    W4 = 144
    vN = 130
    srd(a, 4, 76, 256)

    a(f'''
    s_lshr_b32 s44, s30, 2
    s_lshl_b32 s46, s29, 1
    s_add_u32 s46, s46, s44
    s_and_b32 s44, s30, 3
    s_lshl_b32 s44, s44, 3
    s_add_u32 s45, s44, s24
    s_mul_i32 s37, s46, 40960
    s_add_u32 s37, s37, {OF_OFF}
    s_lshl_b32 s36, s45, 10
    s_add_u32 s36, s36, s37
    s_lshl_b32 s44, s45, 8
    s_add_u32 s37, s37, s44
    s_add_u32 s37, s37, 32768
    ''')
    PZ = 152
    poison = [f'v_mov_b32 {v(PZ + q)}, -1' for q in range(4)] + [
        f'v_lshlrev_b32 {v(u4)}, 4, {v(vL)}', f'v_lshlrev_b32 {v(u5)}, 2, {v(vL)}',
        f'buffer_store_dwordx4 {v(PZ, 4)}, {v(u4)}, s[20:23], s36 offen sc1',
        f'buffer_store_dword {v(PZ)}, {v(u5)}, s[20:23], s37 offen sc1']

    def lines(txt):
        return [x.strip() for x in txt.split(chr(10)) if x.strip()]

    def load_cs():
        f = lines(f'''
        s_mul_i32 s44, s27, 40
        v_lshrrev_b32 {v(u1)}, 3, {v(vL)}
        v_add_u32 {v(u1)}, s44, {v(u1)}
        v_mul_lo_u32 {v(u2)}, {v(u1)}, s53
        v_and_b32 {v(u1)}, 7, {v(vL)}
        v_lshl_add_u32 {v(u2)}, {v(u1)}, 4, {v(u2)}
        s_mov_b32 s34, s52
        ''')
        for t in range(5):
            f.append([f'buffer_load_dwordx4 {v(CR + 4 * t, 4)}, {v(u2)}, s[12:15], s34 offen', 's_add_u32 s34, s34, s31'])
        return f

    def load_rows():
        f = lines(f'''
        s_lshl_b32 s44, s27, 7
        s_lshl_b32 s45, s28, 3
        s_add_u32 s44, s44, s45
        s_lshl_b32 s45, s26, 1
        s_add_u32 s55, s44, s45
        v_add_u32 {v(u0)}, s55, {v(vH)}
        v_mul_u32_u24 {v(u0)}, 1280, {v(u0)}
        v_lshl_add_u32 {v(u0)}, {v(vR)}, 3, {v(u0)}
        ''')
        for t in range(5):
            f.append(f'buffer_load_dwordx2 {v(XR + 2 * t, 2)}, {v(u0)}, s[8:11], 0 offen offset:{256 * t}')
        return f

    def fill_cs():
        A8 = 152
        f = []
        for q in range(4):
            f += [f'v_lshlrev_b32 {v(A8 + 2 * q)}, 16, {v(CR + q)}', f'v_and_b32 {v(A8 + 2 * q + 1)}, 0xffff0000, {v(CR + q)}']
        for t in range(1, 5):
            for q in range(4):
                ta, tb = (u2, u3) if q & 1 else (u4, u5)
                f += lines(f'''
                v_lshlrev_b32 {v(ta)}, 16, {v(CR + 4 * t + q)}
                v_and_b32 {v(tb)}, 0xffff0000, {v(CR + 4 * t + q)}
                v_add_f32 {v(A8 + 2 * q)}, {v(A8 + 2 * q)}, {v(ta)}
                v_add_f32 {v(A8 + 2 * q + 1)}, {v(A8 + 2 * q + 1)}, {v(tb)}
                ''')
        f.append('s_nop 1')
        f += [f'v_permlane32_swap_b32 {v(A8 + q)}, {v(A8 + 4 + q)}' for q in range(4)]
        f.append('s_nop 1')
        f += [f'v_add_f32 {v(A8 + q)}, {v(A8 + q)}, {v(A8 + 4 + q)}' for q in range(4)]
        f.append('s_nop 1')
        f += [f'v_permlane16_swap_b32 {v(A8 + q)}, {v(A8 + 2 + q)}' for q in range(2)]
        f.append('s_nop 1')
        f += [f'v_add_f32 {v(A8 + q)}, {v(A8 + q)}, {v(A8 + 2 + q)}' for q in range(2)]
        f += lines(f'''
        s_nop 1
        v_add_f32_dpp {v(A8)}, {v(A8)}, {v(A8)} row_ror:8 row_mask:0xf bank_mask:0xf
        v_add_f32_dpp {v(A8 + 1)}, {v(A8 + 1)}, {v(A8 + 1)} row_ror:8 row_mask:0xf bank_mask:0xf
        s_mov_b32 vcc_lo, 0xff00ff00
        s_mov_b32 vcc_hi, 0xff00ff00
        v_cndmask_b32 {v(u0)}, {v(A8)}, {v(A8 + 1)}, vcc
        v_cvt_pk_bf16_f32 {v(u1)}, {v(u0)}, {v(u0)}
        v_and_b32 {v(u1)}, 0xffff0000, {v(u1)}
        v_sub_f32 {v(u1)}, {v(u0)}, {v(u1)}
        v_cvt_pk_bf16_f32 {v(u0)}, {v(u0)}, {v(u1)}
        v_and_b32 {v(u1)}, 7, {v(vL)}
        v_lshl_add_u32 {v(u1)}, {v(u1)}, 1, {v(vH)}
        v_bfe_u32 {v(u2)}, {v(vL)}, 4, 1
        v_lshl_add_u32 {v(u1)}, {v(u1)}, 1, {v(u2)}
        v_bfe_u32 {v(u2)}, {v(vL)}, 3, 1
        v_lshl_add_u32 {v(u1)}, {v(u1)}, 1, {v(u2)}
        v_and_b32 {v(u2)}, 15, {v(u1)}
        v_lshrrev_b32 {v(u3)}, 4, {v(u1)}
        s_and_b32 s44, s26, 1
        s_andn2_b32 s44, s44, s48
        s_lshl_b32 s44, s44, 7
        s_lshr_b32 s45, s26, 1
        s_lshl_b32 s45, s45, 4
        s_add_u32 s44, s44, s45
        v_lshl_add_u32 {v(u4)}, {v(u3)}, 5, s44
        s_add_u32 s44, s26, 3
        s_lshl_b32 s44, s44, 5
        v_lshl_add_u32 {v(u5)}, {v(u3)}, 4, s44
        s_cmp_eq_u32 s51, 1
        s_cselect_b64 vcc, -1, 0
        v_cndmask_b32 {v(u4)}, {v(u4)}, {v(u5)}, vcc
        v_add_lshl_u32 {v(u2)}, {v(u2)}, {v(u4)}, 2
        s_lshl_b32 s44, s28, 14
        s_lshl_b32 s45, s27, 10
        s_add_u32 s44, s44, s45
        s_add_u32 s44, s44, {CSW}
        buffer_store_dword {v(u0)}, {v(u2)}, s[20:23], s44 offen sc1
        s_lshl_b32 s46, s27, 2
        s_add_u32 s46, s46, s26
        s_lshl_b32 s46, s46, 7
        s_lshl_b32 s45, s28, 13
        s_add_u32 s46, s46, s45
        s_add_u32 s56, s46, {F_CS}
        ''')
        return f

    def fill_rows():
        f = [f'v_mov_b32 {v(u0)}, 0', f'v_mov_b32 {v(u1)}, 0']
        for t in range(10):
            f += lines(f'''
            v_lshlrev_b32 {v(u2)}, 16, {v(XR + t)}
            v_and_b32 {v(u3)}, 0xffff0000, {v(XR + t)}
            v_add_f32 {v(u0)}, {v(u0)}, {v(u2)}
            v_fmac_f32 {v(u1)}, {v(u2)}, {v(u2)}
            v_add_f32 {v(u0)}, {v(u0)}, {v(u3)}
            v_fmac_f32 {v(u1)}, {v(u3)}, {v(u3)}
            ''')
        for ror in (8, 4, 2, 1):
            f += lines(f'''
            s_nop 1
            v_add_f32_dpp {v(u0)}, {v(u0)}, {v(u0)} row_ror:{ror} row_mask:0xf bank_mask:0xf
            v_add_f32_dpp {v(u1)}, {v(u1)}, {v(u1)} row_ror:{ror} row_mask:0xf bank_mask:0xf
            ''')
        f += lines(f'''
        v_mov_b32 {v(u2)}, {v(u0)}
        v_mov_b32 {v(u3)}, {v(u1)}
        s_nop 1
        v_permlane16_swap_b32 {v(u0)}, {v(u2)}
        v_permlane16_swap_b32 {v(u1)}, {v(u3)}
        s_mov_b32 s44, {f2u(1.0 / 640.0)}
        s_mov_b32 s45, {f2u(1e-5)}
        v_add_f32 {v(u0)}, {v(u0)}, {v(u2)}
        v_add_f32 {v(u1)}, {v(u1)}, {v(u3)}
        v_mul_f32 {v(u0)}, s44, {v(u0)}
        v_mul_f32 {v(u1)}, s44, {v(u1)}
        v_fma_f32 {v(u1)}, -{v(u0)}, {v(u0)}, {v(u1)}
        v_max_f32 {v(u1)}, 0, {v(u1)}
        v_cvt_pk_bf16_f32 {v(W4)}, -{v(u0)}, -{v(u0)}
        v_cvt_pk_bf16_f32 {v(u1)}, {v(u1)}, {v(u1)}
        v_and_b32 {v(u1)}, 0xffff0000, {v(u1)}
        v_add_f32 {v(u1)}, s45, {v(u1)}
        v_cvt_pk_bf16_f32 {v(u1)}, {v(u1)}, {v(u1)}
        v_and_b32 {v(u1)}, 0xffff0000, {v(u1)}
        v_sqrt_f32 {v(u1)}, {v(u1)}
        v_mov_b32 {v(W4 + 3)}, 0
        v_cvt_pk_bf16_f32 {v(u1)}, {v(u1)}, {v(u1)}
        v_and_b32 {v(u1)}, 0xffff0000, {v(u1)}
        v_rcp_f32 {v(W4 + 1)}, {v(u1)}
        v_mul_f32 {v(W4 + 2)}, {v(u1)}, {v(u1)}
        v_lshlrev_b32 {v(u2)}, 4, {v(vH)}
        s_lshl_b32 s44, s55, 4
        s_add_u32 s44, s44, {ROWW}
        ''')
        f.append(['s_mov_b32 exec_lo, 1', 's_mov_b32 exec_hi, 1',
                  f'buffer_store_dwordx4 {v(W4, 4)}, {v(u2)}, s[20:23], s44 offen sc1', 's_mov_b64 exec, -1'])
        f += lines(f'''
        s_lshl_b32 s44, s28, 2
        s_add_u32 s44, s44, s26
        s_lshl_b32 s44, s44, 7
        s_lshl_b32 s45, s27, 13
        s_add_u32 s44, s44, s45
        s_add_u32 s56, s44, {F_ST}
        ''')
        return f

    stamp(a, 22)
    a(f'''
    v_and_b32 {v(t0)}, 15, {v(vL)}
    v_lshrrev_b32 {v(t1)}, 4, {v(vL)}
    v_lshrrev_b32 {v(t2)}, 1, {v(t0)}
    v_xor_b32 {v(t2)}, {v(t2)}, {v(t1)}
    v_lshlrev_b32 {v(t0)}, 7, {v(t0)}
    s_lshl_b32 s44, s25, 13
    v_add_u32 {v(t0)}, s44, {v(t0)}
    v_lshl_add_u32 {v(vXA)}, {v(t2)}, 4, {v(t0)}
    v_xor_b32 {v(t2)}, 4, {v(t2)}
    v_lshl_add_u32 {v(vXA + 1)}, {v(t2)}, 4, {v(t0)}
    v_bfe_u32 {v(t2)}, {v(vL)}, 2, 2
    v_lshl_add_u32 {v(t0)}, {v(t1)}, 3, {v(t2)}
    v_lshlrev_b32 {v(t0)}, 7, {v(t0)}
    v_and_b32 {v(t3)}, 3, {v(vL)}
    v_lshl_add_u32 {v(t0)}, {v(t3)}, 3, {v(t0)}
    v_and_b32 {v(t2)}, 2, {v(t2)}
    v_and_b32 {v(t1)}, 1, {v(t1)}
    v_xor_b32 {v(t1)}, {v(t1)}, {v(t2)}
    s_lshr_b32 s44, s26, 1
    s_and_b32 s57, s44, s48
    ''')
    for t in range(4):
        a(f'''
        s_lshl_b32 s44, s26, 1
        s_add_u32 s45, s44, {t >> 1}
        s_and_b32 s46, s45, 3
        s_lshr_b32 s45, s45, 2
        s_add_u32 s45, s45, {2 * (t & 1)}
        s_sub_u32 s44, s44, 3
        s_cmp_eq_u32 s57, 1
        s_cselect_b32 s45, s44, s45
        s_cselect_b32 s46, {t}, s46
        s_mul_i32 s45, s45, 24576
        s_add_u32 s45, s45, {LDS_W}
        v_xor_b32 {v(t2)}, s46, {v(t1)}
        v_lshl_add_u32 {v(t2)}, {v(t2)}, 5, {v(t0)}
        v_add_u32 {v(vWA + t)}, s45, {v(t2)}
        ''')

    def m16(d, A, B, first=False):
        return f'v_mfma_f32_16x16x32_bf16 {v(d, 4)}, {v(A, 4)}, {v(B, 4)}, ' + ('0' if first else v(d, 4))

    def xrd(g):
        c, sI = divmod(g, 2)
        return [f'ds_read_b128 {v(XF + 16 * (g & 1) + 4 * rt, 4)}, {v(vXA + sI)} offset:{LDS_X + (c % 3) * 16384 + 2048 * rt}' for rt in range(4)]

    def wrd(g, t):
        c, sI = divmod(g, 2)
        return [f'ds_read_b64_tr_b16 {v(WF + 4 * t + 2 * z, 2)}, {v(vWA + t)} offset:{(c % 3) * 8192 + 4096 * sI + 512 * z}' for z in range(2)]

    def tile(g, t):
        return [m16(ACC + 16 * t + 4 * rt, WF + 4 * t, XF + 16 * (g & 1) + 4 * rt, g == 0) for rt in range(4)]

    def chunk(c, fill=()):
        a.c(f'chunk {c}')
        if c:
            a('s_waitcnt lgkmcnt(0)')
        a('s_barrier')
        if not FEWST or c in (0, 1, 2, 9):
            stamp(a, 1 + c)
        if c == 9:
            lab = a.label('nqp')
            a(f's_cmp_eq_u32 s57, 0\ns_cbranch_scc1 {lab}\ns_setprio 2\n{lab}:')
        seq = []

        def rest(g, waits):
            pend = (wrd(g + 1, 0) + xrd(g + 1)) if g + 1 < 20 else []
            for t in range(1, 4):
                ms = tile(g, t)
                for q, m_ in enumerate(ms):
                    pre_ = [f's_waitcnt lgkmcnt({(0, 4, 10, 10)[t]})'] if (waits and q == 0) else []
                    ex = pend[2 * q:2 * q + 2] if t == 1 else []
                    if q == 3 and g + 1 < 20:
                        ex = ex + wrd(g + 1, t)
                    seq.append((pre_, m_, ex))
        if c > 0:
            rest(2 * c - 1, False)
        else:
            emit(a, wrd(0, 0) + xrd(0) + wrd(0, 1) + wrd(0, 2) + wrd(0, 3))
        g = 2 * c
        for q, m_ in enumerate(tile(g, 0)):
            seq.append((['s_waitcnt lgkmcnt(6)'] if q == 0 else [], m_, []))
        rest(g, True)
        for q, m_ in enumerate(tile(g + 1, 0)):
            seq.append((['s_waitcnt lgkmcnt(6)'] if q == 0 else [], m_, []))
        n, k_ = len(fill), len(seq)
        for q, (pre_, m_, ex) in enumerate(seq):
            emit(a, pre_)
            a(m_)
            emit(a, ex)
            emit(a, fill[(q * n) // k_:((q + 1) * n) // k_])

    if LATE1:
        c_start(1)
    lab1, lab2 = a.label('rowv'), a.label('join')
    a(f's_cmp_eq_u32 s25, 1\ns_cbranch_scc1 {lab1}')
    for var, (ld, fl) in enumerate(((load_cs(), fill_cs()), (load_rows(), fill_rows()))):
        qp = [] if var == 0 else lines(f'''
        s_mul_i32 s44, s27, 163840
        s_mul_i32 s45, s28, 10240
        s_add_u32 s44, s44, s45
        s_mul_i32 s45, s26, 2560
        s_add_u32 s44, s44, s45
        s_add_u32 s44, s44, {QF_OFF}
        v_lshlrev_b32 {v(u5)}, 3, {v(vL)}
        buffer_store_dwordx4 {v(PZ, 4)}, {v(u4)}, s[20:23], s44 offen sc1
        buffer_store_dwordx4 {v(PZ, 4)}, {v(u4)}, s[20:23], s44 offen offset:1024 sc1
        buffer_store_dwordx2 {v(PZ, 2)}, {v(u5)}, s[20:23], s44 offen offset:2048 sc1
        ''')
        nl = [f'buffer_load_dword {v(vN)}, off, s[4:7], 0 sc1']
        pz0 = poison + qp if PZ0 else []
        fl = (fl + nl) if PZ0 else (poison + qp + fl + nl)
        if SLC == 0:
            emit(a, ld)
        a(f's_waitcnt vmcnt({9 if SLC == 0 else 4})')
        chunk(0, pz0)
        a(f's_waitcnt vmcnt({(5 if SLC == 0 else 0) + ((2, 5)[var] if PZ0 else 0)})')
        n = len(fl)
        f0 = SLC + SLG
        for c in range(1, f0 + SPN):
            if c == SLC:
                chunk(c, ld)
            elif c >= f0:
                q = c - f0
                chunk(c, ([f's_waitcnt vmcnt({(2, 5)[var] if PZ0 else 0})'] if q == 0 else []) + fl[(q * n) // SPN:((q + 1) * n) // SPN])
            else:
                chunk(c)
        if var == 0:
            a(f's_branch {lab2}\n{lab1}:')
    a(f'{lab2}:')
    chunk(f0 + SPN)
    Lp, Lq = a.label('cnp'), a.label('cnd')
    a(f'''
    s_mov_b32 s93, {POLL_MAX}
    {Lp}:
    s_waitcnt vmcnt(0)
    v_readfirstlane_b32 s98, {v(vN)}
    s_cmp_lg_u32 s98, 0
    s_cbranch_scc1 {Lq}
    s_sub_u32 s93, s93, 1
    s_cbranch_scc1 {Lq}
    buffer_load_dword {v(vN)}, off, s[4:7], 0 sc1
    s_branch {Lp}
    {Lq}:
    s_xor_b32 s99, s98, {NONCE_X}
    ''')
    flag_store(a, 's56', U)
    RC, CSF, vS16 = 132, 148, 131
    pre = lines(f'''
    v_and_b32 {v(t2)}, 15, {v(vL)}
    v_lshrrev_b32 {v(t3)}, 4, {v(vL)}
    s_lshl_b32 s44, s25, 10
    s_add_u32 s44, s44, {ROWC_A}
    v_lshl_add_u32 {v(t0)}, {v(t2)}, 4, s44
    s_lshl_b32 s44, s26, 8
    s_add_u32 s44, s44, {CS_A}
    v_lshl_add_u32 {v(t1)}, {v(t2)}, 2, s44
    v_lshl_add_u32 {v(t1)}, {v(t3)}, 12, {v(t1)}
    v_lshlrev_b32 {v(vS16)}, 4, {v(t2)}
    v_lshl_add_u32 {v(vS16)}, {v(t3)}, 9, {v(vS16)}
    ''')
    pre += [f'ds_read_b128 {v(RC + 4 * rt, 4)}, {v(t0)} offset:{256 * rt}' for rt in range(4)]
    for t in range(4):
        for z in range(2):
            pre.append(f'ds_read2st64_b32 {v(CSF + 4 * t + 2 * z, 2)}, {v(t1)} offset0:{8 * z} offset1:{8 * z + 4}')
        if t < 3:
            pre.append(f'v_add_u32 {v(t1)}, 64, {v(t1)}')
    for c in range(f0 + SPN + 1, 10):
        chunk(c, pre if c == 9 else ())
    a(f'''
    s_lshl_b32 s44, s24, 2
    s_add_u32 s44, s44, {CD_A}
    v_mov_b32 {v(t0)}, s44
    v_mov_b32 {v(t1)}, s98
    s_waitcnt lgkmcnt(0)
    ds_write_b32 {v(t0)}, {v(t1)}
    ''')
    NEG = XF
    HH = 148
    ms = tile(19, 1) + tile(19, 2) + tile(19, 3)
    mv = [f'v_mov_b32 {v(NEG + 4 * rt + r)}, {v(RC + 4 * rt)}' for rt in range(4) for r in range(4)]
    for q, m_ in enumerate(ms):
        a(m_)
        emit(a, mv[(q * 16) // 12:((q + 1) * 16) // 12])
    stamp(a, 12)
    a(f'''
    s_mov_b32 s46, {f2u(C0)}
    s_mov_b32 s47, {f2u(C1)}
    ''')
    for rt in range(4):
        for t in range(4):
            a(m16(ACC + 16 * t + 4 * rt, CSF + 4 * t, NEG + 4 * rt))
    L_q = a.label('qepi')
    L_ed = a.label('epidone')
    a(f'''
    s_lshl_b32 s44, s27, 2
    s_lshl_b32 s45, s25, 1
    s_add_u32 s60, s44, s45
    s_cmp_eq_u32 s57, 1
    s_cbranch_scc1 {L_q}
    s_lshr_b32 s44, s49, 4
    s_lshl_b32 s45, s26, 1
    s_add_u32 s44, s44, s45
    s_mul_i32 s42, s60, 108
    s_add_u32 s42, s42, s44
    s_lshl_b32 s42, s42, 10
    s_add_u32 s43, s42, {108 * 1024}
    ''')
    E1, E2, KC = XF + 16, WF, T
    for rt in range(4):
        TT = E1 + 8 * (rt % 2)
        PP = E2 + 8 * (rt % 2)
        G_ = lambda i: ACC + 32 * (i >> 2) + 4 * rt + (i & 3)
        rho = RC + 4 * rt + 1
        a(f'''
        v_mul_f32 {v(KC)}, s46, {v(rho)}
        v_mul_f32 {v(KC + 1)}, s46, {v(rho)}
        v_mul_f32 {v(KC + 4)}, {v(rho)}, {v(rho)}
        v_mov_b32 {v(RC + 4 * rt + 3)}, {v(RC + 4 * rt + 2)}
        v_mul_f32 {v(KC + 4)}, {v(KC + 4)}, {v(rho)}
        v_mul_f32 {v(KC + 2)}, s47, {v(KC + 4)}
        v_mul_f32 {v(KC + 3)}, s47, {v(KC + 4)}
        ''')
        rc = v(RC + 4 * rt + 2, 2)
        for i in range(0, 8, 2):
            a(f'v_pk_mul_f32 {v(TT + i, 2)}, {v(G_(i), 2)}, {v(G_(i), 2)}')
        for i in range(0, 8, 2):
            a(f'v_pk_fma_f32 {v(TT + i, 2)}, {v(TT + i, 2)}, {v(KC + 2, 2)}, {v(KC, 2)}')
        for i in range(0, 8, 2):
            a(f'v_pk_mul_f32 {v(TT + i, 2)}, {v(TT + i, 2)}, {v(G_(i), 2)}')
        for i in range(8):
            a(f'v_exp_f32 {v(TT + i)}, {v(TT + i)}')
        for i in range(0, 8, 2):
            a(f'v_pk_mul_f32 {v(PP + i, 2)}, {v(G_(i), 2)}, {v(G_(i) + 16, 2)}')
        for i in range(0, 8, 2):
            a(f'v_pk_fma_f32 {v(TT + i, 2)}, {v(TT + i, 2)}, {rc}, {rc}')
        for i in range(8):
            a(f'v_rcp_f32 {v(TT + i)}, {v(TT + i)}')
        a('s_nop 0')
        for i in range(0, 8, 2):
            a(f'v_pk_mul_f32 {v(PP + i, 2)}, {v(PP + i, 2)}, {v(TT + i, 2)}')
        for i in range(4):
            a(f'v_cvt_pk_bf16_f32 {v(HH + 4 * rt + i)}, {v(PP + 2 * i)}, {v(PP + 2 * i + 1)}')
    a(f's_branch {L_ed}')
    a(f'{L_q}:')
    a(f'''
    s_sub_u32 s44, s26, 2
    s_lshl_b32 s44, s44, 6
    s_add_u32 s44, s44, s50
    s_lshl_b32 s44, s44, 6
    s_add_u32 s44, s44, {QF_OFF}
    s_mov_b32 s45, {f2u(QSC)}
    s_mul_i32 s46, s60, 40960
    s_add_u32 s46, s46, s44
    s_add_u32 s47, s46, 40960
    ''')
    for rt in range(4):
        a(f'v_mul_f32 {v(T + rt)}, s45, {v(RC + 4 * rt + 1)}')
    for rt in range(4):
        for pz in range(2):
            O_ = E1 + 4 * ((2 * rt + pz) % 8)
            regs = [ACC + 16 * (2 * pz + (i >> 2)) + 4 * rt + (i & 3) for i in range(8)]
            for r_ in regs:
                a(f'v_mul_f32 {v(r_)}, {v(r_)}, {v(T + rt)}')
            for i in range(4):
                a(f'v_cvt_pk_bf16_f32 {v(O_ + i)}, {v(regs[2 * i])}, {v(regs[2 * i + 1])}')
            a(f'buffer_store_dwordx4 {v(O_, 4)}, {v(vS16)}, s[20:23], s{46 + (rt >> 1)} offen offset:{2048 * pz + 256 * (rt & 1)} sc1')
    a(f'{L_ed}:')
    stamp(a, 13)

    a.c('=========== compute wave: attention ===========')
    al3 = Alloc(4, 168)
    T = al3('T', 16, 4)
    S = al3('S', 32, 4)
    O = al3('O', 16, 4)
    V1 = al3('V1', 4, 4)
    V2 = al3('V2', 4, 4)
    Q1 = al3('Q1', 4, 4)
    K1 = al3('K1', 8, 4)
    K2 = al3('K2', 8, 4)
    P = al3('P', 16, 4)
    Q2 = al3('Q2', 2, 2)
    vK = al3('vK')
    vK2 = al3('vK2')
    a(f'''
    s_lshl_b32 s44, s27, 1
    s_add_u32 s44, s44, s25
    s_lshl_b32 s44, s44, 13
    s_lshl_b32 s45, s28, 2
    s_add_u32 s45, s45, s26
    s_lshl_b32 s45, s45, 7
    s_add_u32 s44, s44, s45
    s_add_u32 s41, s44, {F_QH}
    s_nop 1
    ''')
    for i in range(16):
        a(f'v_mov_b32 {v(O + i)}, 0')
    for i in range(4):
        a(f'v_mov_b32 {v(V1 + i)}, 0')
        a(f'v_mov_b32 {v(V2 + i)}, 0')
    a(f'''
    s_mov_b32 s45, {KVR}
    v_lshl_add_u32 {v(vK)}, {v(vL)}, 4, s45
    v_lshl_add_u32 {v(vK2)}, {v(vL)}, 3, s45
    s_mul_i32 s45, s24, 5
    v_lshlrev_b32 {v(T + 4)}, 4, {v(vR)}
    s_lshr_b32 s44, s30, 2
    s_lshl_b32 s46, s29, 1
    s_add_u32 s44, s44, s46
    s_mul_i32 s44, s44, 40960
    s_and_b32 s46, s30, 3
    s_mul_i32 s46, s46, 10240
    s_add_u32 s44, s44, s46
    s_add_u32 s40, s44, {QF_OFF}
    ''')
    for z, (dq, useh) in enumerate(((0, 1), (2, 1), (4, 0))):
        a(f's_add_u32 s46, s45, {dq}')
        a(f'v_add_u32 {v(T + 5)}, s46, {v(vH)}' if useh else f'v_mov_b32 {v(T + 5)}, s46')
        a(f'''
        v_lshrrev_b32 {v(T + 6)}, 3, {v(T + 5)}
        v_lshl_add_u32 {v(T + 6)}, {v(T + 6)}, 11, {v(T + 4)}
        v_and_b32 {v(T + 7)}, 3, {v(T + 5)}
        v_lshl_add_u32 {v(T + 6)}, {v(T + 7)}, 9, {v(T + 6)}
        v_bfe_u32 {v(T + 5)}, {v(T + 5)}, 2, 1
        v_lshl_add_u32 {v(T + 13 + z)}, {v(T + 5)}, 3, {v(T + 6)}
        ''')
    a('s_setprio 0')
    for i in range(8):
        a(f'v_mov_b32 {v(P + 8 + i)}, 0')
    Lp, Lq = a.label('qp'), a.label('qpd')
    a(f'''
    s_mov_b32 s93, {OPOLL_MAX}
    {Lp}:
    buffer_load_dwordx2 {v(Q1, 2)}, {v(T + 13)}, s[20:23], s40 offen sc1
    buffer_load_dwordx2 {v(Q1 + 2, 2)}, {v(T + 14)}, s[20:23], s40 offen sc1
    buffer_load_dwordx2 {v(Q2, 2)}, {v(T + 15)}, s[20:23], s40 offen sc1
    s_waitcnt vmcnt(0)
    v_max3_u32 {v(T)}, {v(Q1)}, {v(Q1 + 1)}, {v(Q1 + 2)}
    v_max3_u32 {v(T + 1)}, {v(Q1 + 3)}, {v(Q2)}, {v(Q2 + 1)}
    v_max_u32 {v(T)}, {v(T)}, {v(T + 1)}
    v_cmp_eq_u32 vcc, -1, {v(T)}
    s_nop 1
    s_cmp_eq_u64 vcc, 0
    s_cbranch_scc1 {Lq}
    s_sub_u32 s93, s93, 1
    s_cbranch_scc1 {Lq}
    s_sleep {QSLEEP}
    s_branch {Lp}
    {Lq}:
    v_mov_b32 {v(T + 2)}, 0
    v_cndmask_b32 {v(Q2)}, {v(Q2)}, {v(T + 2)}, {HM}
    v_cndmask_b32 {v(Q2 + 1)}, {v(Q2 + 1)}, {v(T + 2)}, {HM}
    ''')
    stamp(a, 14)
    a('s_barrier')
    stamp(a, 15)
    o0, o1, o2 = tile_offs(0), tile_offs(1), tile_offs(2)
    a(f'''
    ds_read_b128 {v(K1, 4)}, {v(vK)} offset:{o0[0]}
    ds_read_b128 {v(K1 + 4, 4)}, {v(vK)} offset:{o1[0]}
    ds_read2st64_b64 {v(K2, 4)}, {v(vK2)} offset0:{o0[1] // 512} offset1:{o0[1] // 512 + 1}
    s_waitcnt lgkmcnt(0)
    ''')

    def set_m(mreg, offset):
        t0, t1, t2, t3 = T + 8, T + 9, T + 10, T + 11
        a(f'v_sub_f32 {v(t0)}, {f2u(-offset) if offset else 0}, {v(mreg)}')
        a(f'''
        v_cvt_pk_bf16_f32 {v(t1)}, {v(t0)}, {v(t0)}
        v_and_b32 {v(t2)}, 0xffff0000, {v(t1)}
        v_sub_f32 {v(t2)}, {v(t0)}, {v(t2)}
        v_cvt_pk_bf16_f32 {v(t1)}, {v(t0)}, {v(t2)}
        v_and_b32 {v(t3)}, 0xffff0000, {v(t1)}
        v_sub_f32 {v(t2)}, {v(t2)}, {v(t3)}
        v_mov_b32 {v(t3)}, 0
        v_cvt_pk_bf16_f32 {v(t2)}, {v(t2)}, {v(t3)}
        v_cndmask_b32 {v(Q2)}, {v(Q2)}, {v(t1)}, {HM}
        v_cndmask_b32 {v(Q2 + 1)}, {v(Q2 + 1)}, {v(t2)}, {HM}
        ''')

    def cross_half_max(reg):
        t = T + 12
        a(f'''
        v_mov_b32 {v(t)}, {v(reg)}
        s_nop 1
        v_permlane32_swap_b32 {v(reg)}, {v(t)}
        s_nop 1
        v_max_f32 {v(reg)}, {v(reg)}, {v(t)}
        ''')

    for t in range(2):
        a(mfma16(S + 16 * t, K1 + 4 * t, Q1))
    if not HEARLY:
        lab = a.label('nohst')
        a(f'''
        s_cmp_eq_u32 s57, 1
        s_cbranch_scc1 {lab}
        ''')
        for k in range(4):
            a(f'buffer_store_dwordx4 {v(HH + 4 * k, 4)}, {v(vS16)}, s[20:23], s{42 + (k >> 1)} offen offset:{256 * (k & 1)} sc1')
        a(f'{lab}:')
    a('s_nop 9')
    for t in range(2):
        a(mfma8(S + 16 * t, K2 + 2 * t, Q2, S + 16 * t))
    a('s_nop 11')
    m = T + 4
    for z in range(2):
        a(f'v_max3_f32 {v(m + z)}, {v(S + 16 * z)}, {v(S + 16 * z + 1)}, {v(S + 16 * z + 2)}')
    for i in range(3, 15, 2):
        for z in range(2):
            a(f'v_max3_f32 {v(m + z)}, {v(m + z)}, {v(S + 16 * z + i)}, {v(S + 16 * z + i + 1)}')
    a(f'v_max3_f32 {v(m)}, {v(m)}, {v(S + 15)}, {v(S + 31)}')
    a(f'v_max_f32 {v(m)}, {v(m)}, {v(m + 1)}')
    cross_half_max(m)
    set_m(m, M_OFFSET)
    a('s_nop 1')
    a(mfma16(S, K1, Q1))
    a(f'''
    ds_read_b128 {v(K1, 4)}, {v(vK)} offset:{o2[0]}
    s_mov_b32 s34, 4
    s_nop 7
    ''')
    a(mfma8(S, K2, Q2, S))
    a('s_nop 9')
    stamp(a, 16)

    def toff(tt):
        tt &= 15
        o = tile_offs(tt & 3)
        return [x + (tt >> 2) * CH_BYTES for x in o]

    def k2read(reg, tt):
        o = toff(tt)[1]
        assert o % 512 == 0
        return f'ds_read2st64_b64 {v(reg, 4)}, {v(vK2)} offset0:{o // 512} offset1:{o // 512 + 1}'

    L_hf, L_hb = a.label('hflag'), a.label('hback')

    def slot(t):
        Sx, Sn = S + 16 * (t & 1), S + 16 * ((t + 1) & 1)
        Px, Pp = P + 8 * (t & 1), P + 8 * ((t + 1) & 1)
        kt = t + 1
        kb = kt & 1
        k2 = K2 + 4 * ((kt >> 1) & 1) + 2 * (kt & 1)
        m_ = [mfma16(Sn, K1 + 4 * kb, Q1), mfma16(O, V1, Pp, O), mfma8(Sn, k2, Q2, Sn), mfma16(O, V2, Pp + 4, O)]
        after = [[], [], [], []]
        if t & 3 == 1:
            after[0] = ['s_barrier']
        after[0] += [f'ds_read_b128 {v(K1 + 4 * kb, 4)}, {v(vK)} offset:{toff(t + 3)[0]}', 's_waitcnt lgkmcnt(2)']
        after[1] = [f'ds_read_b128 {v(V1, 4)}, {v(vK)} offset:{toff(t)[2]}']
        if t & 1:
            after[1] += [k2read(K2 + 4 * (((t + 3) >> 1) & 1), t + 3)]
        after[2] += [f's_waitcnt lgkmcnt({3 if t & 1 else 2})']
        after[3] = [f'ds_read_b128 {v(V2, 4)}, {v(vK)} offset:{toff(t)[3]}']
        if t == 15:
            after[3] += ['s_sub_u32 s34, s34, 1']
        if t == HFLAG_T:
            after[3] += ['s_cmp_eq_u32 s34, 4', f's_cbranch_scc1 {L_hf}', f'{L_hb}:']
        val = []
        for i in range(8):
            val.append(f'v_exp_f32 {v(Sx + 2 * i)}, {v(Sx + 2 * i)}')
            val.append(f'v_exp_f32 {v(Sx + 2 * i + 1)}, {v(Sx + 2 * i + 1)}')
            if i > 0:
                val.append(f'v_cvt_pk_bf16_f32 {v(Px + i - 1)}, {v(Sx + 2 * i - 2)}, {v(Sx + 2 * i - 1)}')
        val.append(f'v_cvt_pk_bf16_f32 {v(Px + 7)}, {v(Sx + 14)}, {v(Sx + 15)}')
        groups = [val[0:5], val[5:11], val[11:17], val[17:24]]
        for g in range(4):
            a(m_[g])
            emit(a, after[g])
            emit(a, groups[g])

    a(k2read(K2 + 4, 2))
    L_loop = a.label('att')
    a('.p2align 6')
    a(f'{L_loop}:')
    for t in range(16):
        slot(t)
    a(f'''
    s_cmp_lg_u32 s34, 0
    s_cbranch_scc1 {L_loop}
    s_waitcnt lgkmcnt(0)
    ''')
    a(mfma16(O, V1, P + 8, O))
    a(mfma16(O, V2, P + 12, O))
    a(f'''
    v_lshlrev_b32 {v(T + 2)}, 4, {v(vL)}
    v_lshlrev_b32 {v(T + 3)}, 3, {v(vL)}
    v_mov_b32 {v(T + 9)}, 0x7f000000
    v_cndmask_b32 {v(T + 3)}, {v(T + 3)}, {v(T + 9)}, {HM}
    v_lshlrev_b32 {v(T + 4)}, 3, {v(vR)}
    v_lshl_add_u32 {v(T + 4)}, {v(vH)}, 9, {v(T + 4)}
    s_nop 6
    ''')
    stamp(a, 17)
    L_fb = a.label('fb')
    L_out = a.label('aout')
    a(f'''
    s_mov_b32 s44, {f2u(2.0 ** 120)}
    s_mov_b32 s45, {f2u(2.0 ** -103)}
    v_add_f32 {v(T)}, |{v(O)}|, |{v(O + 1)}|
    ''')
    for i in range(2, 12):
        a(f'v_add_f32 {v(T)}, {v(T)}, |{v(O + i)}|')
    a(f'''
    v_add_f32 {v(T + 1)}, {v(T)}, {v(O + 12)}
    v_cmp_le_f32 s[46:47], s45, {v(T)}
    v_cmp_gt_f32 s[48:49], s44, {v(T + 1)}
    s_nop 1
    s_and_b64 s[46:47], s[46:47], s[48:49]
    s_cmp_eq_u64 s[46:47], -1
    s_cbranch_scc0 {L_fb}
    {L_out}:
    v_rcp_f32 {v(T)}, {v(O + 12)}
    v_rcp_f32 {v(T + 1)}, {v(O + 12)}
    s_nop 0
    ''')
    for i in range(0, 12, 2):
        a(f'v_pk_mul_f32 {v(O + i, 2)}, {v(O + i, 2)}, {v(T, 2)}')
    for i in range(6):
        a(f'v_cvt_pk_bf16_f32 {v(P + i)}, {v(O + 2 * i)}, {v(O + 2 * i + 1)}')
    a(f'buffer_store_dwordx4 {v(P, 4)}, {v(T + 2)}, s[20:23], s36 offen sc1')
    a(f'buffer_store_dwordx2 {v(P + 4, 2)}, {v(T + 3)}, s[20:23], s37 offen sc1')
    stamp(a, 18)
    g2_ids(a)
    OFR = 120
    a(f'''
    s_cmp_eq_u32 s25, 1
    s_cselect_b32 s44, s60, s59
    s_mul_i32 s44, s44, 40960
    s_add_u32 s44, s44, {OF_OFF}
    s_lshl_b32 s45, s26, 13
    s_add_u32 s38, s44, s45
    s_add_u32 s38, s38, 3072
    s_add_u32 s39, s38, 4096
    s_lshl_b32 s45, s26, 11
    s_add_u32 s40, s44, s45
    s_add_u32 s40, s40, 32768
    s_mul_i32 s44, s26, 14336
    s_lshl_b32 s45, s25, 10
    s_add_u32 s44, s44, s45
    s_add_u32 s44, s44, {OL_A}
    v_add_u32 {v(T + 5)}, s44, {v(T + 2)}
    s_barrier
    ''')
    Lp, Lq = a.label('cop'), a.label('copd')
    a(f's_mov_b32 s93, {OPOLL_MAX}\n{Lp}:')
    for q in range(5):
        a(f'buffer_load_dwordx4 {v(OFR + 4 * q, 4)}, {v(T + 2)}, s[20:23], {"s38" if q < 4 else "s39"} offen offset:{1024 * (q & 3)} sc1')
    for q in range(4):
        a(f'buffer_load_dwordx2 {v(OFR + 20 + 2 * q, 2)}, {v(T + 4)}, s[20:23], s40 offen offset:{1024 * (q >> 1) + 256 * (q & 1)} sc1')
    a('s_waitcnt vmcnt(0)')
    a(f'v_max3_u32 {v(T)}, {v(OFR)}, {v(OFR + 1)}, {v(OFR + 2)}')
    for i in range(3, 27, 2):
        a(f'v_max3_u32 {v(T)}, {v(T)}, {v(OFR + i)}, {v(OFR + i + 1)}')
    a(f'''
    v_max_u32 {v(T)}, {v(T)}, {v(OFR + 27)}
    v_cmp_eq_u32 vcc, -1, {v(T)}
    s_nop 1
    s_cmp_eq_u64 vcc, 0
    s_cbranch_scc1 {Lq}
    s_sub_u32 s93, s93, 1
    s_cbranch_scc1 {Lq}
    s_sleep {OSLEEP}
    s_branch {Lp}
    {Lq}:
    ''')
    for q in range(7):
        a(f'ds_write_b128 {v(T + 5)}, {v(OFR + 4 * q, 4)} offset:{2048 * q}')
    stamp(a, 21)
    g2_out(a, S, vL, 's24', 0)
    a('s_waitcnt lgkmcnt(0)')
    a('s_barrier')
    a('s_barrier')
    stamp(a, 19)
    g2_out(a, S, vL, 's24', 1)
    if asmlib.STAMPS:
        a('s_waitcnt vmcnt(0)')
    stamp(a, 20)
    diag_end(a)
    a(f's_branch {L_end}')

    a(f'{L_hf}:')
    a('s_waitcnt vmcnt(0)')
    flag_store(a, 's41', T + 2)
    a(f's_branch {L_hb}')
    a(f'{L_fb}:')
    L1 = a.label('fb1')
    L2 = a.label('fb2')
    a(f'''
    v_lshlrev_b32 {v(T + 13)}, 4, {v(vL)}
    v_lshlrev_b32 {v(T + 7)}, 3, {v(vL)}
    v_mov_b32 {v(T + 14)}, 0
    v_mov_b32 {v(T + 15)}, 0xff800000
    v_cndmask_b32 {v(Q2)}, {v(Q2)}, {v(T + 14)}, {HM}
    v_cndmask_b32 {v(Q2 + 1)}, {v(Q2 + 1)}, {v(T + 14)}, {HM}
    s_mov_b32 s77, {KV_OFF}
    s_mov_b32 s34, 32
    {L1}:
    buffer_load_dwordx4 {v(K1, 4)}, {v(T + 13)}, s[20:23], s77 offen sc1
    buffer_load_dwordx4 {v(K1 + 4, 4)}, {v(T + 13)}, s[20:23], s77 offen offset:1024 sc1
    buffer_load_dwordx2 {v(K2, 2)}, {v(T + 7)}, s[20:23], s77 offen offset:2048 sc1
    buffer_load_dwordx2 {v(K2 + 2, 2)}, {v(T + 7)}, s[20:23], s77 offen offset:2560 sc1
    s_waitcnt vmcnt(0)
    ''')
    for t in range(2):
        a(mfma16(S + 16 * t, K1 + 4 * t, Q1))
    a('s_nop 9')
    for t in range(2):
        a(mfma8(S + 16 * t, K2 + 2 * t, Q2, S + 16 * t))
    a('s_nop 15')
    for i in range(0, 32, 2):
        a(f'v_max3_f32 {v(T + 15)}, {v(T + 15)}, {v(S + i)}, {v(S + i + 1)}')
    a(f'''
    s_add_u32 s77, s77, 7168
    s_sub_u32 s34, s34, 1
    s_cmp_lg_u32 s34, 0
    s_cbranch_scc1 {L1}
    ''')
    cross_half_max(T + 15)
    set_m(T + 15, 0.0)
    for i in range(16):
        a(f'v_mov_b32 {v(O + i)}, 0')
    a(f'''
    s_mov_b32 s77, {KV_OFF}
    s_mov_b32 s34, 64
    {L2}:
    s_and_b32 s78, s34, 1
    s_lshl_b32 s79, s78, 10
    s_add_u32 s79, s79, s77
    s_lshl_b32 s80, s78, 9
    s_add_u32 s80, s80, s77
    s_lshl_b32 s81, s78, 11
    s_add_u32 s81, s81, s77
    s_add_u32 s81, s81, 3072
    buffer_load_dwordx4 {v(K1, 4)}, {v(T + 13)}, s[20:23], s79 offen sc1
    buffer_load_dwordx2 {v(K2, 2)}, {v(T + 7)}, s[20:23], s80 offen offset:2048 sc1
    buffer_load_dwordx4 {v(V1, 4)}, {v(T + 13)}, s[20:23], s81 offen sc1
    buffer_load_dwordx4 {v(V2, 4)}, {v(T + 13)}, s[20:23], s81 offen offset:1024 sc1
    s_waitcnt vmcnt(0)
    {mfma16(S, K1, Q1)}
    s_nop 10
    {mfma8(S, K2, Q2, S)}
    s_nop 15
    ''')
    for i in range(16):
        a(f'v_exp_f32 {v(S + i)}, {v(S + i)}')
    a('s_nop 0')
    for i in range(8):
        a(f'v_cvt_pk_bf16_f32 {v(P + i)}, {v(S + 2 * i)}, {v(S + 2 * i + 1)}')
    a(f'''
    s_nop 1
    {mfma16(O, V1, P, O)}
    {mfma16(O, V2, P + 4, O)}
    s_mul_i32 s78, s78, 7168
    s_add_u32 s77, s77, s78
    s_sub_u32 s34, s34, 1
    s_cmp_lg_u32 s34, 0
    s_cbranch_scc1 {L2}
    s_nop 15
    s_branch {L_out}
    ''')


def g2_ids(a):
    a('''
    s_lshr_b32 s57, s30, 1
    s_and_b32 s58, s30, 1
    s_lshl_b32 s44, s29, 1
    s_add_u32 s59, s44, s58
    s_xor_b32 s60, s59, 1
    s_mul_i32 s44, s57, 320
    s_lshl_b32 s45, s58, 7
    s_add_u32 s61, s44, s45
    ''')


def g2_out(a, T, vL, wsg, part):
    L_skip = a.label('g2o')
    a(f'''
    s_cmp_ge_u32 {wsg}, 10
    s_cbranch_scc1 {L_skip}
    ''')
    if part == 0:
        a(f'''
        s_lshr_b32 s45, {wsg}, 1
        s_and_b32 s46, {wsg}, 1
        s_lshl_b32 s46, s46, 4
        v_lshrrev_b32 {v(T)}, 2, {v(vL)}
        v_add_u32 {v(T)}, s46, {v(T)}
        v_and_b32 {v(T + 1)}, 3, {v(vL)}
        s_and_b32 s47, s45, 1
        s_cmp_eq_u32 s47, 1
        s_cselect_b32 s47, s60, s59
        s_mul_i32 s47, s47, {32 * 1280}
        s_lshr_b32 s48, s45, 1
        s_add_u32 s49, s48, s58
        s_lshl_b32 s49, s49, 6
        s_lshl_b32 s50, s58, 7
        s_sub_u32 s50, 128, s50
        s_cmp_eq_u32 s48, 2
        s_cselect_b32 s49, s50, s49
        s_add_u32 s47, s47, s49
        s_add_u32 s31, s47, s61
        v_mul_u32_u24 {v(T + 6)}, 1280, {v(T)}
        v_lshl_add_u32 {v(T + 6)}, {v(T + 1)}, 4, {v(T + 6)}
        buffer_load_dwordx4 {v(T + 2, 4)}, {v(T + 6)}, s[8:11], s31 offen
        v_lshlrev_b32 {v(T + 1)}, 1, {v(T + 1)}
        v_and_b32 {v(T + 7)}, 7, {v(T)}
        v_xor_b32 {v(T + 1)}, {v(T + 1)}, {v(T + 7)}
        v_lshlrev_b32 {v(T)}, 7, {v(T)}
        v_lshl_add_u32 {v(T)}, {v(T + 1)}, 4, {v(T)}
        s_lshl_b32 s47, s45, 12
        v_add_u32 {v(T)}, s47, {v(T)}
        v_xor_b32 {v(T + 1)}, 16, {v(T)}
        ''')
    else:
        for w in range(4):
            if w == 2:
                a(f'v_add_u32 {v(T)}, {WO_HI}, {v(T)}\nv_add_u32 {v(T + 1)}, {WO_HI}, {v(T + 1)}')
            a(f'ds_read_b128 {v(T + 8 + 8 * w, 4)}, {v(T)} offset:{21504 * (w & 1)}')
            a(f'ds_read_b128 {v(T + 12 + 8 * w, 4)}, {v(T + 1)} offset:{21504 * (w & 1)}')
        a('s_waitcnt vmcnt(0)')
        for i in range(4):
            a(f'''
            v_lshlrev_b32 {v(T + 40 + 2 * i)}, 16, {v(T + 2 + i)}
            v_and_b32 {v(T + 41 + 2 * i)}, 0xffff0000, {v(T + 2 + i)}
            ''')
        a('s_waitcnt lgkmcnt(4)')
        for i in range(0, 8, 2):
            a(f'v_pk_add_f32 {v(T + 8 + i, 2)}, {v(T + 8 + i, 2)}, {v(T + 16 + i, 2)}')
        for i in range(0, 8, 2):
            a(f'v_pk_add_f32 {v(T + 8 + i, 2)}, {v(T + 8 + i, 2)}, {v(T + 40 + i, 2)}')
        a('s_waitcnt lgkmcnt(0)')
        for i in range(0, 8, 2):
            a(f'v_pk_add_f32 {v(T + 24 + i, 2)}, {v(T + 24 + i, 2)}, {v(T + 32 + i, 2)}')
        for i in range(0, 8, 2):
            a(f'v_pk_add_f32 {v(T + 8 + i, 2)}, {v(T + 8 + i, 2)}, {v(T + 24 + i, 2)}')
        for i in range(4):
            a(f'v_cvt_pk_bf16_f32 {v(T + 16 + i)}, {v(T + 8 + 2 * i)}, {v(T + 9 + 2 * i)}')
        a(f'buffer_store_dwordx4 {v(T + 16, 4)}, {v(T + 6)}, s[64:67], s31 offen{OUTSC}')
    a(f'{L_skip}:')


def aux_wave(a, vL, vH, vR, L_end, WDP, a_start):
    al = Alloc(4, 168)
    T = al('T', 16, 4)
    vXD = al('xd', 2)
    vWD = al('wd', 2)
    vKD = al('kd')
    vKX = al('kx')
    vKW = al('kw')
    XR = al('xr', 10, 2)
    CR = al('cr', 20, 2)
    PF = al('pf', 2)
    AKV = al('akv', 16, 4)
    KXF = al('kxf', 4, 4)
    KWF = al('kwf', 4, 4)
    FX = al('fx', 16, 4)
    RD = al('rd', 48, 4)
    JA = al('ja', 2, 2)
    JS = al('js')
    t0, t1, t2, t3, t4, t5 = T, T + 1, T + 2, T + 3, T + 4, T + 5
    vm = VM()
    a.c('=========== aux wave: phase 1 ===========')
    assert (vXD, vWD, vKD) == (20, 22, 24)

    def dma_group(c, kvonly=False):
        st = c % 3
        lab = a.label('nokv')
        a(f'''
        s_and_b32 s35, s100, {7 if c < 8 else 1}
        s_xor_b32 s35, s35, {c}
        s_mul_i32 s33, s32, s35
        s_mul_i32 s34, s35, 2560
        s_lshl_b32 s35, s35, 7
        s_cmp_eq_u32 s40, 0
        s_cbranch_scc1 {lab}
        s_add_u32 m0, s38, {st * 3072}
        s_nop 0
        buffer_load_dwordx4 {v(vKD)}, s[16:19], s34 offen lds
        {lab}:
        ''')
        vm.add(f'c{c}', 1, optional=True)
        if kvonly or (NODMA and c > 2):
            vm.add(f'c{c}', 1, optional=True)
            return
        for e in range(4):
            a(f'''
            s_add_u32 m0, s36, {LDS_X + st * 16384 + e * 1024}
            s_add_u32 s34, s35, {(e >> 1) * 16 * 1280}
            buffer_load_dwordx4 {v(vXD + (e & 1))}, s[8:11], s34 offen lds
            ''')
        for e in range(8):
            a(f'''
            s_add_u32 m0, s37, {st * 8192 + e * 1024}
            s_nop 0
            buffer_load_dwordx4 {v(vWD + (e & 1))}, s[12:15], s33 offen lds
            ''')
            if e < 7:
                a('s_add_u32 s33, s33, s31')
        vm.add(f'c{c}', 12)

    vm.add('c0', 4)
    vm.add('c0', 1, optional=True)
    if not LATE1:
        vm.add('c1', 4)
        vm.add('c1', 1, optional=True)

    def jit(c):
        if not JIT or c > 9:
            return
        lab = a.label('nojit')
        a(f'''
        s_cmp_lg_u32 s26, 3
        s_cbranch_scc1 {lab}
        global_load_dword v165, {v(JA, 2)}, off
        v_add_co_u32 {v(JA)}, vcc, {v(JA)}, {v(JS)}
        s_nop 1
        v_addc_co_u32 {v(JA + 1)}, vcc, 0, {v(JA + 1)}, vcc
        {lab}:
        ''')
        vm.add('jit', 1, optional=True)

    if JIT:
        a(f'v_mov_b32 {v(JA)}, s68\nv_mov_b32 {v(JA + 1)}, s69')
        lab = a.label('nojs')
        a(f'''
        s_cmp_lg_u32 s26, 3
        s_cbranch_scc1 {lab}
        s_lshr_b32 s44, s2, 3
        s_and_b32 s45, s44, 7
        s_lshr_b32 s46, s44, 3
        s_lshl_b32 s46, s46, 5
        s_lshl_b32 s47, s27, 7
        s_add_u32 s46, s46, s47
        v_add_u32 {v(t0)}, s46, {v(vR)}
        v_mul_u32_u24 {v(t0)}, 1280, {v(t0)}
        v_add_u32 {v(t0)}, {128 * JIT}, {v(t0)}
        v_bfe_u32 {v(t1)}, {v(vL)}, 3, 1
        v_bfe_u32 {v(t2)}, {v(vL)}, 4, 1
        v_and_b32 {v(t3)}, s48, {v(t1)}
        v_cmp_eq_u32 s[58:59], 1, {v(t3)}
        v_cmp_eq_u32 s[60:61], 1, {v(t2)}
        v_mov_b32 {v(t4)}, 3456
        v_mov_b32 {v(t5)}, 1280
        v_cndmask_b32 {v(t4)}, {v(t4)}, {v(t5)}, s[58:59]
        s_xor_b32 s44, s48, 1
        v_and_b32 {v(t5)}, s44, {v(t1)}
        v_lshlrev_b32 {v(t5)}, 6, {v(t5)}
        v_add_u32 {v(t5)}, s49, {v(t5)}
        v_lshlrev_b32 {v(t3)}, 6, {v(t2)}
        v_add_u32 {v(t3)}, s50, {v(t3)}
        v_cndmask_b32 {v(t5)}, {v(t5)}, {v(t3)}, s[58:59]
        s_lshl_b32 s45, s45, 3
        s_add_u32 s45, s45, {64 * JIT}
        v_and_b32 {v(t3)}, 7, {v(vL)}
        v_add_u32 {v(t3)}, s45, {v(t3)}
        v_mul_lo_u32 {v(t3)}, {v(t3)}, {v(t4)}
        v_lshl_add_u32 {v(t3)}, {v(t5)}, 1, {v(t3)}
        v_cndmask_b32 {v(t0)}, {v(t0)}, {v(t3)}, {HM}
        v_lshlrev_b32 {v(t4)}, 6, {v(t4)}
        v_mov_b32 {v(t5)}, 128
        v_cndmask_b32 {v(JS)}, {v(t5)}, {v(t4)}, {HM}
        ''')
        for z in range(2):
            a(f'''
            v_mov_b32 {v(t1)}, s{80 + z}
            v_mov_b32 {v(t2)}, s{82 + z}
            v_cndmask_b32 {v(t1)}, {v(t1)}, {v(t2)}, s[60:61]
            v_mov_b32 {v(t2)}, s{70 + z}
            v_cndmask_b32 {v(t1)}, {v(t1)}, {v(t2)}, s[58:59]
            v_mov_b32 {v(t2)}, s{68 + z}
            v_cndmask_b32 {v(JA + z)}, {v(t2)}, {v(t1)}, {HM}
            ''')
        a(f'''
        v_add_co_u32 {v(JA)}, vcc, {v(JA)}, {v(t0)}
        s_nop 1
        v_addc_co_u32 {v(JA + 1)}, vcc, 0, {v(JA + 1)}, vcc
        {lab}:
        ''')
        for c in range(JIT, JITD):
            jit(c)
    srd(a, 4, 76, 256)
    lab = a.label('nononce')
    a(f'''
    s_or_b32 s44, s2, s26
    s_cmp_lg_u32 s44, 0
    s_cbranch_scc1 {lab}
    s_memrealtime s[44:45]
    s_waitcnt lgkmcnt(0)
    s_or_b32 s44, s44, 1
    v_mov_b32 {v(t0)}, s44
    s_mov_b64 exec, 1
    buffer_store_dword {v(t0)}, off, s[4:7], 0 sc1
    s_mov_b64 exec, -1
    {lab}:
    ''')
    vm.add('nonce', 1, optional=True)
    a(f'''
    s_and_b32 s56, s28, 3
    v_lshrrev_b32 {v(t0)}, 1, {v(vR)}
    v_and_b32 {v(t0)}, 7, {v(t0)}
    v_xor_b32 {v(t0)}, {v(t0)}, {v(vH)}
    s_lshl_b32 s44, s26, 1
    v_xor_b32 {v(t0)}, s44, {v(t0)}
    v_lshlrev_b32 {v(t3)}, 7, {v(vR)}
    v_lshl_add_u32 {v(t0)}, {v(t0)}, 4, {v(t3)}
    s_lshl_b32 s44, s56, 12
    v_add_u32 {v(vKX)}, s44, {v(t0)}
    v_bfe_u32 {v(t0)}, {v(vL)}, 2, 2
    v_lshl_add_u32 {v(t0)}, {v(vH)}, 3, {v(t0)}
    v_mul_u32_u24 {v(t0)}, 40, {v(t0)}
    v_bfe_u32 {v(t3)}, {v(vL)}, 4, 1
    v_and_b32 {v(t4)}, 3, {v(vL)}
    v_lshl_add_u32 {v(t3)}, {v(t3)}, 2, {v(t4)}
    v_min_u32 {v(t3)}, 4, {v(t3)}
    v_lshl_add_u32 {v(t0)}, {v(t3)}, 3, {v(t0)}
    s_mul_i32 s44, s26, 640
    s_add_u32 s44, s44, {LDS_KV}
    v_add_u32 {v(vKW)}, s44, {v(t0)}
    ''')
    for i in range(16):
        a(f'v_mov_b32 {v(AKV + i)}, 0')

    if LATE1:
        a_start(1)
        vm.add('c1', 4)
        vm.add('c1', 1, optional=True)
    if TLBW:
        lab = a.label('notlb')
        srd(a, 44, WDP, 2211840)
        a(f'''
        v_lshlrev_b32 {v(t0)}, {TLBW}, {v(vL)}
        s_cmp_lg_u32 s26, 3
        s_cbranch_scc1 {lab}
        buffer_load_dword v165, {v(t0)}, s[20:23], 0 offen
        buffer_load_dword v165, {v(t0)}, s[64:67], 0 offen
        buffer_load_dword v165, {v(t0)}, s[44:47], 0 offen
        s_mov_b32 s44, s84
        s_mov_b32 s45, s85
        s_mov_b32 s46, 819200
        buffer_load_dword v165, {v(t0)}, s[44:47], 0 offen
        {lab}:
        ''')
        vm.add('tlb', 4, optional=True)

    def colsum(src_tag_wait, store_code):
        a(f's_waitcnt vmcnt({src_tag_wait})')
        a(f'''
        v_lshlrev_b32 {v(t0)}, 16, {v(CR)}
        v_and_b32 {v(t1)}, 0xffff0000, {v(CR)}
        ''')
        for t in range(1, 20):
            a(f'''
            v_lshlrev_b32 {v(t2)}, 16, {v(CR + t)}
            v_and_b32 {v(t3)}, 0xffff0000, {v(CR + t)}
            v_add_f32 {v(t0)}, {v(t0)}, {v(t2)}
            v_add_f32 {v(t1)}, {v(t1)}, {v(t3)}
            ''')
        a(f'''
        s_nop 1
        v_permlane32_swap_b32 {v(t0)}, {v(t1)}
        s_nop 1
        v_add_f32 {v(t0)}, {v(t0)}, {v(t1)}
        v_cvt_pk_bf16_f32 {v(t1)}, {v(t0)}, {v(t0)}
        v_and_b32 {v(t1)}, 0xffff0000, {v(t1)}
        v_sub_f32 {v(t1)}, {v(t0)}, {v(t1)}
        v_cvt_pk_bf16_f32 {v(t0)}, {v(t0)}, {v(t1)}
        ''')
        store_code()

    a('''
    s_lshl_b32 s41, s27, 10
    s_and_b32 s44, s28, 11
    s_cmp_eq_u32 s44, 0
    s_cselect_b32 s42, 1, 0
    s_cmp_eq_u32 s26, 3
    s_cselect_b32 s42, s42, 0
    ''')

    def kv_step(c, part):
        st = c % 3
        lab = a.label('kvs')
        a(f's_cmp_eq_u32 s54, 0\ns_cbranch_scc1 {lab}')
        if part == 0:
            a(f'''
            ds_read_b128 {v(KXF, 4)}, {v(vKX)} offset:{LDS_X + st * 16384}
            ds_read_b64_tr_b16 {v(KWF, 2)}, {v(vKW)} offset:{st * 3072}
            ds_read_b64_tr_b16 {v(KWF + 2, 2)}, {v(vKW)} offset:{st * 3072 + 160}
            ''')
        else:
            a('s_waitcnt lgkmcnt(0)')
            a(mfma16(AKV, KWF, KXF, AKV))
        a(f'{lab}:')

    for c in range(10):
        a.c(f'aux chunk {c}')
        if c == 0:
            stamp(a, 22)
        if c <= 8:
            a(f's_waitcnt vmcnt({vm.wait(f"c{c}") if c != 5 else min(vm.wait("c5"), vm.wait("st"), vm.wait("nl"))})')
        else:
            a('s_waitcnt vmcnt(0)')
        a('s_barrier')
        if not FEWST or c in (0, 1, 2, 9):
            stamp(a, 1 + c)
        if asmlib.STAMPS:
            vm.add('stamp', 1, optional=True)
        if c == 3:
            a(f'buffer_load_dword {v(PF)}, off, s[4:7], 0 sc1')
            vm.add('nl', 1)
        kv_step(c, 0)
        if c == P3C:
            lab = a.label('nop3')
            a(f'''
            v_lshlrev_b32 {v(T + 8)}, 3, {v(vL)}
            v_lshlrev_b32 {v(T + 10)}, 7, {v(vL)}
            v_and_b32 {v(T + 11)}, 0x780, {v(T + 10)}
            s_cmp_lg_u32 s26, 3
            s_cbranch_scc1 {lab}
            s_lshl_b32 s44, s27, 13
            s_add_u32 s44, s44, {F_ST}
            s_lshl_b32 s45, s28, 13
            s_add_u32 s45, s45, {F_CS}
            s_and_b32 s58, s28, 4
            s_lshl_b32 s58, s58, 9
            s_add_u32 s58, s58, {F_KC}
            ''')
            a(f'''
            s_mov_b32 s60, s44
            s_mov_b32 s61, s45
            s_lshr_b32 s59, s29, 1
            s_lshl_b32 s59, s59, 13
            s_add_u32 s59, s59, {F_ST}
            buffer_load_dwordx2 {v(FX + 6, 2)}, {v(T + 10)}, s[20:23], s59 offen sc1
            buffer_load_dwordx2 {v(FX, 2)}, {v(T + 10)}, s[20:23], s60 offen sc1
            buffer_load_dwordx2 {v(FX + 2, 2)}, {v(T + 10)}, s[20:23], s61 offen sc1
            buffer_load_dwordx2 {v(FX + 4, 2)}, {v(T + 11)}, s[20:23], s58 offen sc1
            {lab}:
            ''')
        jit(c + JITD)
        if (1 if EARLY2 else 0) <= c and c + 2 < 10:
            dma_group(c + 2)
        kv_step(c, 1)
        if c == P3C:
            lab = a.label('nop3b')
            a(f'''
            s_cmp_lg_u32 s26, 3
            s_cbranch_scc1 {lab}
            s_waitcnt vmcnt(12)
            v_cmp_eq_u64 vcc, s[98:99], {v(FX, 2)}
            v_cmp_eq_u64 s[46:47], s[98:99], {v(FX + 2, 2)}
            v_cmp_eq_u64 s[44:45], s[98:99], {v(FX + 4, 2)}
            v_cmp_eq_u64 s[48:49], s[98:99], {v(FX + 6, 2)}
            s_nop 1
            s_and_b64 vcc, vcc, s[46:47]
            s_and_b64 vcc, vcc, s[44:45]
            s_and_b64 vcc, vcc, s[48:49]
            s_cmp_eq_u64 vcc, -1
            s_cbranch_scc1 {lab}
            ''')
            polln(a, FX, [T + 10, T + 10, T + 11], [('s60', None), ('s61', None), ('s58', None)], 4)
            polln(a, FX, [T + 10], [('s59', None)], 4)
            a(f'{lab}:')
        if c == 2:
            lab = a.label('nokvcs')
            a(f'''
            s_cmp_eq_u32 s42, 0
            s_cbranch_scc1 {lab}
            s_mul_i32 s44, s27, 40
            v_add_u32 {v(t1)}, s44, {v(vH)}
            v_mul_u32_u24 {v(t2)}, 40, {v(t1)}
            v_lshl_add_u32 {v(t2)}, {v(vR)}, 2, {v(t2)}
            ''')
            for t in range(20):
                a(f'buffer_load_dword {v(CR + t)}, {v(t2)}, s[16:19], 0 offen offset:{80 * t}')
            a(f'{lab}:')
            vm.add('kcr', 20, optional=True)
        if c == 3:
            lab = a.label('nokvcs2')
            a(f's_cmp_eq_u32 s42, 0\ns_cbranch_scc1 {lab}')

            def kcs_store():
                a(f'''
                v_lshl_add_u32 {v(t1)}, {v(vR)}, 1, {v(vH)}
                v_lshlrev_b32 {v(t2)}, 2, {v(t1)}
                v_mov_b32 {v(t3)}, 0x7f000000
                v_cmp_gt_u32 vcc, 32, {v(t1)}
                s_lshl_b32 s44, s28, 9
                s_lshl_b32 s45, s27, 7
                s_add_u32 s44, s44, s45
                s_add_u32 s44, s44, {CSKVW}
                v_cndmask_b32 {v(t2)}, {v(t3)}, {v(t2)}, vcc
                buffer_store_dword {v(t0)}, {v(t2)}, s[20:23], s44 offen sc1
                ''')
            colsum(vm.wait('kcr'), kcs_store)
            a(f'{lab}:')
            vm.add('st', 1, optional=True)
        if c == 5:
            Lp = a.label('np')
            Lq = a.label('npd')
            Lr = a.label('nokcf')
            a(f'''
            s_mov_b32 s93, {POLL_MAX}
            {Lp}:
            v_readfirstlane_b32 s98, {v(PF)}
            s_cmp_lg_u32 s98, 0
            s_cbranch_scc1 {Lq}
            s_sub_u32 s93, s93, 1
            s_cbranch_scc1 {Lq}
            buffer_load_dword {v(PF)}, off, s[4:7], 0 sc1
            s_waitcnt vmcnt(0)
            s_branch {Lp}
            {Lq}:
            s_xor_b32 s99, s98, {NONCE_X}
            s_lshl_b32 s44, s28, 9
            s_lshl_b32 s45, s27, 7
            s_add_u32 s44, s44, s45
            s_add_u32 s44, s44, {F_KC}
            s_cmp_eq_u32 s42, 0
            s_cbranch_scc1 {Lr}
            ''')
            flag_store(a, 's44', T + 2)
            a(f'{Lr}:')
            vm.add('fl', 1, optional=True)
        if P1PF and c in (6, 7):
            if c == 6:
                srd(a, 4, WDP, 2211840)
                a(f'''
                s_lshr_b32 s44, s2, 6
                s_mul_i32 s44, s44, {432 * 1280}
                s_bfe_u32 s45, s2, 0x30003
                s_mul_i32 s45, s45, {180 * 128}
                s_add_u32 s44, s44, s45
                s_mul_i32 s45, s26, {45 * 128}
                s_add_u32 s57, s44, s45
                v_lshlrev_b32 {v(PF + 1)}, 7, {v(vL)}
                ''')
            for z in range(2 if c == 6 else 1):
                a(f'''
                s_mov_b32 exec_hi, {(1 << 13) - 1}
                buffer_load_dword v165, {v(PF + 1)}, s[4:7], s57 offen
                s_mov_b32 exec_hi, -1
                s_add_u32 s57, s57, {144 * 1280}
                ''')
                vm.add('pf', 1)
        if c == 8:
            a(f'''
            v_lshlrev_b32 {v(T + 9)}, 4, {v(vL)}
            s_lshl_b32 s44, s28, 14
            s_lshl_b32 s45, s26, 12
            s_add_u32 s44, s44, s45
            s_add_u32 s44, s44, {CSW}
            ''')
            for e in range(4):
                a(f'''
                s_add_u32 m0, s45, {CS_A + 1024 * e}
                s_nop 0
                buffer_load_dwordx4 {v(T + 9)}, s[20:23], s44 offen{LD} lds
                s_add_u32 s44, s44, 1024
                ''')
            lab = a.label('norc')
            a(f'''
            s_cmp_lg_u32 s26, 0
            s_cbranch_scc1 {lab}
            s_lshl_b32 s44, s27, 11
            s_add_u32 s44, s44, {ROWW}
            s_mov_b32 m0, {ROWC_A}
            s_and_b32 s45, s28, 4
            buffer_load_dwordx4 {v(T + 9)}, s[20:23], s44 offen{LD} lds
            buffer_load_dwordx4 {v(T + 9)}, s[20:23], s44 offen offset:1024{LD} lds
            s_lshl_b32 s45, s45, 9
            s_add_u32 s45, s45, {CSKVW}
            s_mov_b32 m0, {CSKV_A}
            s_nop 0
            buffer_load_dwordx4 {v(T + 9)}, s[20:23], s45 offen{LD} lds
            buffer_load_dwordx4 {v(T + 9)}, s[20:23], s45 offen offset:1024{LD} lds
            {lab}:
            ''')
    L_p2 = a.label('auxp2')
    L_v = a.label('vepi')
    L_a0 = a.label('aux0f')
    lab = a.label('nokvfin')
    lab2 = a.label('nofix')
    a(f'''
    s_cmp_eq_u32 s54, 0
    s_cbranch_scc1 {lab}
    s_cmp_lg_u32 s26, 0
    s_cbranch_scc1 {lab2}
    s_lshl_b32 s44, s56, 9
    s_add_u32 s44, s44, {ROWC_A}
    v_lshl_add_u32 {v(t0)}, {v(vR)}, 4, s44
    v_lshlrev_b32 {v(t1)}, 2, {v(vR)}
    v_lshl_add_u32 {v(t1)}, {v(vH)}, 9, {v(t1)}
    v_add_u32 {v(t1)}, {CSKV_A}, {v(t1)}
    v_add_u32 {v(t2)}, 1024, {v(t1)}
    ds_read_b128 {v(FX, 4)}, {v(t0)}
    ds_read2_b32 {v(FX + 8, 2)}, {v(t1)} offset0:0 offset1:32
    ds_read2_b32 {v(FX + 10, 2)}, {v(t1)} offset0:64 offset1:96
    ds_read2_b32 {v(FX + 12, 2)}, {v(t2)} offset0:0 offset1:32
    ds_read2_b32 {v(FX + 14, 2)}, {v(t2)} offset0:64 offset1:96
    s_waitcnt lgkmcnt(4)
    v_mov_b32 {v(FX + 4)}, {v(FX)}
    v_mov_b32 {v(FX + 5)}, {v(FX)}
    v_mov_b32 {v(FX + 6)}, {v(FX)}
    v_mov_b32 {v(FX + 7)}, {v(FX)}
    s_waitcnt lgkmcnt(0)
    s_nop 1
    {mfma16(AKV, FX + 8, FX + 4, AKV)}
    {mfma16(AKV, FX + 12, FX + 4, AKV)}
    s_branch {L_a0}
    {lab2}:
    s_lshl_b32 s44, s26, 12
    v_add_u32 {v(t0)}, s44, {v(T + 9)}
    s_lshl_b32 s44, s26, 2
    s_add_u32 s44, s44, {PD_A}
    v_mov_b32 {v(t1)}, s44
    v_mov_b32 {v(t2)}, s98
    s_nop 11
    ''')
    for q in range(3):
        a(f'ds_write_b128 {v(t0)}, {v(AKV + 4 * q, 4)} offset:{PART_A + 1024 * q}')
    L_sp = a.label('pspin')
    L_spd = a.label('pspind')
    a(f'''
    s_waitcnt lgkmcnt(0)
    ds_write_b32 {v(t1)}, {v(t2)}
    {lab}:
    s_branch {L_p2}
    {L_a0}:
    v_mov_b32 {v(t1)}, {PD_A}
    s_mov_b32 s93, {POLL_MAX * 8}
    {L_sp}:
    ds_read_b128 {v(T + 4, 4)}, {v(t1)}
    s_waitcnt lgkmcnt(0)
    v_xor_b32 {v(T + 5)}, s98, {v(T + 5)}
    v_xor_b32 {v(T + 6)}, s98, {v(T + 6)}
    v_xor_b32 {v(T + 7)}, s98, {v(T + 7)}
    v_or3_b32 {v(T + 5)}, {v(T + 5)}, {v(T + 6)}, {v(T + 7)}
    s_nop 0
    v_readfirstlane_b32 s44, {v(T + 5)}
    s_cmp_eq_u32 s44, 0
    s_cbranch_scc1 {L_spd}
    s_sub_u32 s93, s93, 1
    s_cbranch_scc0 {L_sp}
    {L_spd}:
    ''')
    stamp(a, 12)
    for w in range(1, 4):
        for q in range(3):
            a(f'ds_read_b128 {v(RD + 12 * (w - 1) + 4 * q, 4)}, {v(T + 9)} offset:{PART_A + 4096 * w + 1024 * q}')
    a(f'''
    s_lshl_b32 s57, s27, 2
    s_add_u32 s57, s57, s56
    s_lshr_b32 s44, s57, 1
    s_mul_i32 s44, s44, 7168
    s_add_u32 s44, s44, {KV_OFF}
    s_and_b32 s45, s57, 1
    s_and_b32 s58, s28, 4
    s_lshl_b32 s58, s58, 4
    s_add_u32 s58, s58, s57
    s_lshl_b32 s58, s58, 7
    s_add_u32 s58, s58, {F_KV}
    s_waitcnt lgkmcnt(0)
    ''')
    for i in range(0, 12, 2):
        a(f'v_pk_add_f32 {v(AKV + i, 2)}, {v(AKV + i, 2)}, {v(RD + i, 2)}')
        a(f'v_pk_add_f32 {v(RD + 12 + i, 2)}, {v(RD + 12 + i, 2)}, {v(RD + 24 + i, 2)}')
    for i in range(0, 12, 2):
        a(f'v_pk_add_f32 {v(AKV + i, 2)}, {v(AKV + i, 2)}, {v(RD + 12 + i, 2)}')
    a(f'v_mov_b32 {v(FX)}, {v(FX + 1)}')
    for i in range(0, 12, 2):
        a(f'v_pk_mul_f32 {v(AKV + i, 2)}, {v(AKV + i, 2)}, {v(FX, 2)}')
    PK = RD
    for i in range(6):
        a(f'v_cvt_pk_bf16_f32 {v(PK + i)}, {v(AKV + 2 * i)}, {v(AKV + 2 * i + 1)}')
    L_kvf = a.label('kvflag')
    a(f'''
    s_bitcmp1_b32 s28, 2
    s_cbranch_scc1 {L_v}
    v_mov_b32 {v(t0)}, 0x3f803f80
    v_mov_b32 {v(t1)}, 0x00003f80
    v_cndmask_b32 {v(PK + 4)}, {v(PK + 4)}, {v(t0)}, {HM}
    v_cndmask_b32 {v(PK + 5)}, {v(PK + 5)}, {v(t1)}, {HM}
    s_lshl_b32 s46, s45, 10
    s_add_u32 s46, s46, s44
    s_lshl_b32 s47, s45, 9
    s_add_u32 s47, s47, s44
    buffer_store_dwordx4 {v(PK, 4)}, {v(T + 9)}, s[20:23], s46 offen sc1
    buffer_store_dwordx2 {v(PK + 4, 2)}, {v(T + 8)}, s[20:23], s47 offen offset:2048 sc1
    s_branch {L_kvf}
    {L_v}:
    v_mov_b32 {v(t0)}, 0
    v_cndmask_b32 {v(PK + 4)}, {v(PK + 4)}, {v(t0)}, {HM}
    v_cndmask_b32 {v(PK + 5)}, {v(PK + 5)}, {v(t0)}, {HM}
    v_mov_b32 {v(PK + 6)}, 0x00003f80
    v_mov_b32 {v(PK + 7)}, 0
    v_lshlrev_b32 {v(t0)}, 6, {v(vR)}
    v_lshl_add_u32 {v(t0)}, {v(vH)}, 3, {v(t0)}
    ds_write_b64 {v(t0)}, {v(PK, 2)} offset:{VT_A}
    ds_write_b64 {v(t0)}, {v(PK + 2, 2)} offset:{VT_A + 16}
    ds_write_b64 {v(t0)}, {v(PK + 4, 2)} offset:{VT_A + 32}
    ds_write_b64 {v(t0)}, {v(PK + 6, 2)} offset:{VT_A + 48}
    v_bfe_u32 {v(t1)}, {v(vL)}, 2, 2
    v_lshl_add_u32 {v(t1)}, {v(vH)}, 2, {v(t1)}
    v_lshlrev_b32 {v(t1)}, 6, {v(t1)}
    v_bfe_u32 {v(t2)}, {v(vL)}, 4, 1
    v_lshl_add_u32 {v(t1)}, {v(t2)}, 5, {v(t1)}
    v_and_b32 {v(t2)}, 3, {v(vL)}
    v_lshl_add_u32 {v(t1)}, {v(t2)}, 3, {v(t1)}
    s_waitcnt lgkmcnt(0)
    ds_read_b64_tr_b16 {v(PK + 8, 2)}, {v(t1)} offset:{VT_A}
    ds_read_b64_tr_b16 {v(PK + 10, 2)}, {v(t1)} offset:{VT_A + 512}
    ds_read_b64_tr_b16 {v(PK + 12, 2)}, {v(t1)} offset:{VT_A + 1024}
    ds_read_b64_tr_b16 {v(PK + 14, 2)}, {v(t1)} offset:{VT_A + 1536}
    s_lshl_b32 s46, s45, 11
    s_add_u32 s46, s46, s44
    s_add_u32 s46, s46, 3072
    s_waitcnt lgkmcnt(0)
    buffer_store_dwordx4 {v(PK + 8, 4)}, {v(T + 9)}, s[20:23], s46 offen sc1
    buffer_store_dwordx4 {v(PK + 12, 4)}, {v(T + 9)}, s[20:23], s46 offen offset:1024 sc1
    {L_kvf}:
    s_waitcnt vmcnt(0)
    ''')
    flag_store(a, 's58', T + 2)
    a(f'{L_p2}:')
    stamp(a, 13)

    a.c('=========== aux wave: phase 2 ===========')
    al = Alloc(4, 164)
    T = al('T', 8, 4)
    vWD = al('wd', 3)
    vWA = al('wa', 3)
    vHL = al('hl')
    vKO = al('ko')
    vPF = al('pf')
    ACC = al('acc', 80, 4)
    SL = al('slots', 60, 4)
    wreg = lambda k: SL + 20 * (k % 3)
    hreg = lambda k: SL + 20 * (k % 3) + 12
    a(f's_setprio {PRIO2}')
    g2_ids(a)
    srd(a, 12, WDP, 2211840)
    srd(a, 16, 84, 819200)
    a(f"""
    s_mul_i32 s44, s26, 27
    s_mul_i32 s41, s59, 108
    s_add_u32 s41, s41, s44
    s_lshl_b32 s41, s41, 10
    s_mul_i32 s42, s60, 108
    s_add_u32 s42, s42, s44
    s_lshl_b32 s42, s42, 10
    s_lshr_b32 s43, s44, 1
    s_mul_i32 s43, s43, 40960
    s_and_b32 s45, s44, 1
    s_mul_i32 s52, s45, 10240
    s_add_u32 s43, s43, s52
    s_mul_i32 s52, s45, 20480
    s_add_u32 s52, s52, 10240
    s_mov_b32 s48, 40960
    s_lshl_b32 s44, s26, 3
    s_mul_i32 s56, s44, 25600
    s_mul_i32 s54, s59, 40
    s_add_u32 s54, s54, s44
    s_lshl_b32 s54, s54, 10
    s_add_u32 s54, s54, {OF_OFF}
    s_mul_i32 s55, s60, 40
    s_add_u32 s55, s55, s44
    s_lshl_b32 s55, s55, 10
    s_add_u32 s55, s55, {OF_OFF}
    s_and_b32 s44, s26, 1
    s_mul_i32 s39, s44, 21504
    s_lshr_b32 s44, s26, 1
    s_mul_i32 s44, s44, {WO_HI}
    s_add_u32 s39, s39, s44
    s_mov_b32 s40, s39
    s_mov_b32 s45, 0x15556
    v_lshlrev_b32 {v(vHL)}, 4, {v(vL)}
    v_lshlrev_b32 {v(vPF)}, 7, {v(vL)}
    s_lshl_b32 s36, s26, 12
    s_min_u32 s36, s36, 11264
    v_add_u32 {v(vKO)}, s36, {v(vHL)}
    """)
    for p in range(3):
        a(f"""
        v_add_u32 {v(T)}, {64 * p}, {v(vL)}
        v_mul_lo_u32 {v(T + 1)}, {v(T)}, s45
        v_lshrrev_b32 {v(T + 1)}, 20, {v(T + 1)}
        v_mul_u32_u24 {v(T + 2)}, 12, {v(T + 1)}
        v_sub_u32 {v(T + 2)}, {v(T)}, {v(T + 2)}
        v_and_b32 {v(T)}, 8, {v(T + 1)}
        v_add_u32 {v(T + 1)}, {v(T + 1)}, {v(T)}
        v_mul_u32_u24 {v(T + 1)}, 1280, {v(T + 1)}
        v_lshl_add_u32 {v(T + 1)}, {v(T + 2)}, 4, {v(T + 1)}
        v_add_u32 {v(vWD + p)}, s61, {v(T + 1)}
        """)
    a(f"""
    v_bfe_u32 {v(T)}, {v(vL)}, 2, 2
    v_lshl_add_u32 {v(T)}, {v(vH)}, 2, {v(T)}
    v_mul_u32_u24 {v(T)}, 192, {v(T)}
    v_bfe_u32 {v(T + 1)}, {v(vL)}, 4, 1
    v_lshl_add_u32 {v(T)}, {v(T + 1)}, 5, {v(T)}
    v_and_b32 {v(T + 1)}, 3, {v(vL)}
    v_lshl_add_u32 {v(T)}, {v(T + 1)}, 3, {v(T)}
    v_add_u32 {v(T)}, s39, {v(T)}
    s_lshl_b32 s44, s58, 6
    s_add_u32 s45, s44, 64
    s_lshl_b32 s46, s58, 7
    s_sub_u32 s46, 128, s46
    v_add_u32 {v(vWA)}, s44, {v(T)}
    v_add_u32 {v(vWA + 1)}, s45, {v(T)}
    v_add_u32 {v(vWA + 2)}, s46, {v(T)}
    """)
    vm = VM()

    def w_dma(base, off):
        out = []
        for p in range(3):
            out.append([f's_add_u32 m0, {base}, {off + p * 1024}', 's_nop 0',
                        f'buffer_load_dwordx4 {v(vWD + p)}, s[12:15], s43 offen lds'])
        out[2] += ['s_add_u32 s43, s43, s52', 's_sub_u32 s52, s48, s52']
        return out

    def h_ld(k, e):
        hs = ('s41', 's42')[e]
        return [f'buffer_load_dwordx4 {v(hreg(k) + 4 * e, 4)}, {v(vHL)}, s[20:23], {hs} offen', f's_add_u32 {hs}, {hs}, 1024']

    def w_rd(k, off):
        return [f'ds_read_b64_tr_b16 {v(wreg(k) + 4 * b + 2 * t, 2)}, {v(vWA + b)} offset:{off + 1536 * t}'
                for b in range(3) for t in range(2)]

    def g_mfmas(k):
        return [mfma16(ACC + 16 * n, wreg(k) + 4 * b, hreg(k) + 4 * e, ACC + 16 * n)
                for n, (b, e) in enumerate(((0, 0), (0, 1), (1, 0), (1, 1), (2, 0)))]

    def kv_dma(c):
        st = c % NST
        lab = a.label('kv3')
        a(f's_cmp_ge_u32 s26, 2\ns_cbranch_scc1 {lab}')
        for e in (3, 0, 1, 2):
            a(f"""
            s_add_u32 m0, s36, {KVR + st * CH_BYTES + e * 1024}
            s_mov_b32 s38, {KV_OFF + c * CH_BYTES + e * 1024}
            buffer_load_dwordx4 {v(vKO)}, s[20:23], s38 offen lds
            """)
            if e == 3:
                a(f'{lab}:')
        vm.add(f'kv{c}', 1, optional=True)
        vm.add(f'kv{c}', 3)

    for i in range(80):
        a(f'v_mov_b32 {v(ACC + i)}, 0')
    srd(a, 4, WDP, 2211840)
    a(f'''
    s_lshr_b32 s44, s2, 6
    s_mul_i32 s44, s44, {432 * 1280}
    s_bfe_u32 s45, s2, 0x30003
    s_lshl_b32 s45, s45, 2
    s_add_u32 s45, s45, s26
    s_mul_i32 s45, s45, {15 * 128}
    s_add_u32 s32, s44, s45
    s_mov_b32 s31, {48 * 1280}
    ''')

    a(f'''
    s_lshr_b32 s45, s30, 2
    s_lshl_b32 s46, s29, 1
    s_add_u32 s45, s45, s46
    s_mul_i32 s45, s45, 108
    s_and_b32 s46, s30, 3
    s_mul_i32 s46, s46, 27
    s_add_u32 s45, s45, s46
    s_lshl_b32 s45, s45, 10
    s_mul_i32 s46, s26, {6 * 128}
    s_add_u32 s45, s45, s46
    s_add_u32 s49, s45, 3072
    ''')

    def paced_h():
        a(f'''
        s_mov_b64 exec, 0x3f
        buffer_load_dword v165, {v(vPF)}, s[20:23], s49 offen
        s_mov_b64 exec, -1
        s_add_u32 s49, s49, 3072
        ''')

    def paced():
        a(f'''
        s_mov_b64 exec, 0x7fff
        buffer_load_dword v165, {v(vPF)}, s[4:7], s32 offen
        s_mov_b64 exec, -1
        s_add_u32 s32, s32, s31
        ''')
        vm.add('pf', 1)

    def cd_wait():
        L1, L2 = a.label('cdw'), a.label('cdd')
        a(f'''
        v_and_b32 {v(T + 4)}, 7, {v(vL)}
        v_lshlrev_b32 {v(T + 4)}, 2, {v(T + 4)}
        v_add_u32 {v(T + 4)}, {CD_A}, {v(T + 4)}
        s_mov_b32 s93, {POLL_MAX * 8}
        {L1}:
        ds_read_b32 {v(T + 5)}, {v(T + 4)}
        s_waitcnt lgkmcnt(0)
        v_cmp_eq_u32 vcc, s98, {v(T + 5)}
        s_nop 1
        s_cmp_eq_u64 vcc, -1
        s_cbranch_scc1 {L2}
        s_sub_u32 s93, s93, 1
        s_cbranch_scc0 {L1}
        {L2}:
        ''')

    a(f's_lshl_b32 s53, s29, 13\ns_add_u32 s53, s53, {F_QH}')

    def kv_poll(first):
        a(f's_mov_b32 s45, {F_KV}\ns_mov_b32 s44, {F_KV + 8192}')
        if first:
            m = ~((1 << (4 * KVF)) - 1) & 0xffffffffffffffff
            a(f's_mov_b32 s50, {m & 0xffffffff}\ns_mov_b32 s51, {m >> 32}\ns_sleep {KVSL}\ns_andn2_b64 exec, exec, s[50:51]')
            polln(a, T + 4, vPF, [('s45', 's[50:51]'), ('s44', 's[50:51]')], 2)
            a('s_mov_b64 exec, -1')
            cd_wait()
        else:
            polln(a, T + 4, vPF, [('s45', None), ('s44', None)], 4)
    one_poller(a, T, 0, lambda: kv_poll(True), who=2)
    stamp(a, 15)
    kv_dma(0)
    kv_dma(1)
    kv_dma(2)

    def prefetch(kind, b=0):
        n = {'wd': 60, 'wo': 64, 'h': 54}[kind]
        lab = a.label('nopf')
        if kind != 'h':
            a(f's_cmp_eq_u32 s26, 3\ns_cbranch_scc1 {lab}')
        if kind == 'wd':
            a(f"""
            s_lshr_b32 s44, s2, 6
            s_mul_i32 s44, s44, {432 * 1280}
            s_bfe_u32 s45, s2, 0x30003
            s_mul_i32 s45, s45, {180 * 128}
            s_add_u32 s44, s44, s45
            s_mul_i32 s45, s26, {60 * 128}
            s_add_u32 s44, s44, s45
            s_add_u32 s44, s44, {144 * 1280 * b}
            """)
            r = 's[12:15]'
        elif kind == 'wo':
            a(f"""
            s_lshr_b32 s44, s2, 3
            s_mul_i32 s44, s44, {200 * 128}
            s_mul_i32 s45, s26, {68 * 128}
            s_add_u32 s44, s44, s45
            """)
            r = 's[16:19]'
        else:
            a(f"""
            s_mul_i32 s44, s29, {216 * 1024}
            s_lshl_b32 s45, s30, 2
            s_add_u32 s45, s45, s26
            s_mul_i32 s45, s45, {54 * 128}
            s_add_u32 s44, s44, s45
            """)
            r = 's[20:23]'
        m = (1 << n) - 1
        a(f"""
        s_mov_b32 exec_hi, {m >> 32}
        buffer_load_dword v165, {v(vPF)}, {r}, s44 offen
        s_mov_b32 exec_hi, -1
        {lab}:
        """)
        vm.add('pf', 1, optional=True)
    a(f's_waitcnt vmcnt({vm.wait("kv0")})')
    a('s_barrier')
    stamp(a, 16)
    lab = a.label('nokv2')
    a(f's_cmp_lg_u32 s26, 2\ns_cbranch_scc1 {lab}')
    kv_poll(False)
    a(f'{lab}:')

    def body(last, nw=12):
        for z in range(3):
            a(f's_waitcnt vmcnt({nw if not last else (12, 10, 8)[z]}) lgkmcnt(0)')
            ms = g_mfmas(z)
            if z == 2:
                for b in range(3):
                    a(f'v_add_u32 {v(vWA + b)}, s33, {v(vWA + b)}')
                rd = w_rd(0, 0)
            else:
                rd = w_rd(z + 1, 3072 * (z + 1))
            wd_ = w_dma('s40', 3072 * z)
            a(ms[0]); emit(a, rd[0:2]); emit(a, [wd_[0]]); a(SPACE)
            a(ms[1]); emit(a, rd[2:4]); emit(a, [wd_[1]]); a(SPACE)
            a(ms[3]); emit(a, rd[4:6]); emit(a, [wd_[2]]); a(SPACE)
            a(ms[2])
            if not last:
                emit(a, h_ld(z, 1))
            a(SPACE)
            a(ms[4])
            if not last:
                emit(a, h_ld(z, 0))
        a('s_add_u32 s40, s40, s33\ns_sub_u32 s33, 0, s33')

    NSTAT = int(ENV.get('NSTAT', '4'))
    for c in range(NSTAT):
        a.c(f'aux B{c}')
        a(f's_waitcnt vmcnt({vm.wait(f"kv{c + 1}")})')
        bstamp(a, c == 0)
        a('s_barrier')
        bstamp(a)
        kv_dma(c + 3)
        if WDC <= c < WDC + 2:
            for k in range(3 * (c - WDC), 3 * (c - WDC) + 3):
                emit(a, w_dma('s39', 3072 * k))
            vm.add('w', 9)
        paced()
    L_top, L_nb, L_sw, L_end2 = a.label('dtop'), a.label('dnb'), a.label('dsw'), a.label('dend')
    L_act, L_bar, L_nokv = a.label('dact'), a.label('dbar'), a.label('dnokv')
    L_s0, L_body, L_last, L_wo, L_next = a.label('ds0'), a.label('dbody'), a.label('dlast'), a.label('dwo'), a.label('dnext')
    L_w0 = a.label('dw0')
    L_w2 = a.label('dw2')
    L_b12 = a.label('db12')
    L_bd = a.label('dbd')
    L_np = a.label('dnp')
    L_p3 = a.label('dp3')
    L_k3 = a.label('dk3')
    L_w1 = a.label('dw1')
    L_n1 = a.label('dn1')
    L_oth, L_start, L_rei, L_nsw = a.label('doth'), a.label('dstart'), a.label('drei'), a.label('dnsw')
    a(f"""
    s_mov_b32 s34, {16 - NSTAT}
    s_mov_b32 s35, 0
    s_mov_b32 s37, {((NSTAT + 3) % NST) * CH_BYTES}
    s_mov_b32 s38, {KV_OFF + (NSTAT + 3) * CH_BYTES}
    s_mov_b32 s33, 9216
    s_mov_b32 s93, {POLL_MAX}
    v_mov_b32 {v(T + 3)}, {RDY_A + 4}
    {L_top}:
    s_sub_u32 s44, s35, 2
    s_cmp_lt_u32 s44, 8
    s_cbranch_scc1 {L_act}
    s_cmp_eq_u32 s35, 11
    s_cbranch_scc1 {L_w2}
    s_cmp_gt_u32 s35, 1
    s_cbranch_scc1 {L_w0}
    s_cmp_le_u32 s34, 3
    s_cbranch_scc1 {L_w0}
    s_cmp_eq_u32 s35, 1
    s_cbranch_scc1 {L_w1}
    s_waitcnt vmcnt(3)
    s_branch {L_bar}
    {L_w1}:
    s_waitcnt vmcnt({6 + HPF})
    s_branch {L_bar}
    {L_w2}:
    s_waitcnt vmcnt(12)
    s_mov_b32 s35, 12
    s_branch {L_bar}
    {L_w0}:
    s_waitcnt vmcnt(0)
    s_branch {L_bar}
    {L_act}:
    s_waitcnt vmcnt({17 if HPF else 16})
    {L_bar}:
    s_cmp_eq_u32 s34, 0
    s_cbranch_scc1 {L_nb}
    """)
    bstamp(a)
    a('s_barrier')
    bstamp(a)
    a(f"""
    s_cmp_lg_u32 s35, 0
    s_cbranch_scc1 {L_np}
    s_cmp_lg_u32 s26, 3
    s_cbranch_scc1 {L_np}
    buffer_load_dwordx2 {v(T + 4, 2)}, {v(vPF)}, s[20:23], s53 offen sc1
    {L_np}:
    s_cmp_le_u32 s34, 3
    s_cbranch_scc1 {L_nokv}
    s_add_u32 s44, s36, s37
    s_cmp_ge_u32 s26, 2
    s_cbranch_scc1 {L_k3}
    """)
    for e in (3, 0, 1, 2):
        a(f"""
        s_add_u32 m0, s44, {KVR + e * 1024}
        s_add_u32 s45, s38, {e * 1024}
        buffer_load_dwordx4 {v(vKO)}, s[20:23], s45 offen lds
        """)
        if e == 3:
            a(f'{L_k3}:')
    a(f"""
    s_add_u32 s38, s38, {CH_BYTES}
    s_add_u32 s37, s37, {CH_BYTES}
    s_cmp_eq_u32 s37, {CH_BYTES * NST}
    s_cselect_b32 s37, 0, s37
    {L_nokv}:
    s_sub_u32 s34, s34, 1
    s_branch {L_sw}
    {L_nb}:
    s_cmp_ge_u32 s35, 11
    s_cbranch_scc1 {L_end2}
    {L_sw}:
    s_cmp_eq_u32 s35, 0
    s_cbranch_scc1 {L_s0}
    s_cmp_lt_u32 s35, 9
    s_cbranch_scc1 {L_body}
    s_cmp_eq_u32 s35, 9
    s_cbranch_scc1 {L_last}
    s_cmp_eq_u32 s35, 10
    s_cbranch_scc1 {L_wo}
    s_branch {L_top}
    {L_s0}:
    s_sub_u32 s93, s93, 1
    s_cbranch_scc1 {L_start}
    s_cmp_lg_u32 s26, 3
    s_cbranch_scc1 {L_oth}
    s_cmp_ge_u32 s34, 3
    s_cbranch_scc1 {L_p3}
    buffer_load_dwordx2 {v(T + 4, 2)}, {v(vPF)}, s[20:23], s53 offen sc1
    s_waitcnt vmcnt(0)
    {L_p3}:
    s_waitcnt vmcnt(3)
    v_cmp_eq_u64 vcc, s[98:99], {v(T + 4, 2)}
    s_lshl_b32 s45, s34, 1
    s_nop 0
    s_cmp_eq_u64 vcc, -1
    s_cselect_b32 s44, s98, s45
    v_mov_b32 {v(T + 2)}, s44
    ds_write_b32 {v(T + 3)}, {v(T + 2)}
    s_cbranch_scc1 {L_start}
    s_branch {L_top}
    {L_oth}:
    s_mov_b32 s45, 40
    {L_rei}:
    s_sleep 1
    ds_read_b32 {v(T + 2)}, {v(T + 3)}
    s_waitcnt lgkmcnt(0)
    v_readfirstlane_b32 s44, {v(T + 2)}
    s_cmp_eq_u32 s44, s98
    s_cbranch_scc1 {L_start}
    s_lshl_b32 s46, s34, 1
    s_cmp_eq_u32 s44, s46
    s_cbranch_scc1 {L_top}
    s_sub_u32 s45, s45, 1
    s_cbranch_scc0 {L_rei}
    s_branch {L_top}
    {L_start}:
    """)
    stamp(a, 23)
    for k in range(3):
        for e in range(2):
            emit(a, h_ld(k, e))
    for _ in range(HPF):
        paced_h()
    emit(a, w_rd(0, 0))
    a(f"""
    {L_next}:
    s_add_u32 s35, s35, 1
    s_branch {L_top}
    {L_body}:
    s_cmp_lg_u32 s35, 1
    s_cbranch_scc1 {L_n1}
    s_waitcnt vmcnt(0)
    {L_n1}:
    s_cmp_lg_u32 s35, 8
    s_cbranch_scc1 {L_nsw}
    s_mov_b32 s12, s16
    s_mov_b32 s13, s17
    s_mov_b32 s14, 819200
    s_mov_b32 s43, s56
    s_mov_b32 s52, 25600
    s_mov_b32 s48, 51200
    s_mov_b32 s45, 0x15556
    """)
    for p in range(3):
        a(f"""
        v_add_u32 {v(T)}, {64 * p}, {v(vL)}
        v_mul_lo_u32 {v(T + 1)}, {v(T)}, s45
        v_lshrrev_b32 {v(T + 1)}, 23, {v(T + 1)}
        v_mul_u32_u24 {v(T + 1)}, {8 * 1280}, {v(T + 1)}
        v_sub_u32 {v(vWD + p)}, {v(vWD + p)}, {v(T + 1)}
        """)
    a(f"""
    {L_nsw}:
    s_cmp_lt_u32 s34, 3
    s_cbranch_scc1 {L_b12}
    """)
    body(False, 15)
    a(f's_branch {L_bd}\n{L_b12}:')
    body(False, 12)
    a(f'{L_bd}:')
    lab = a.label('npsw')
    a(f'''
    s_cmp_lg_u32 s35, {10 - NSTAT}
    s_cbranch_scc1 {lab}
    s_mov_b32 s4, s16
    s_mov_b32 s5, s17
    s_mov_b32 s6, 819200
    s_lshr_b32 s44, s2, 3
    s_lshl_b32 s44, s44, 2
    s_add_u32 s44, s44, s26
    s_mul_i32 s32, s44, {50 * 128}
    s_mov_b32 s31, {13 * 128}
    {lab}:
    ''')
    paced_h()
    paced()
    a(f's_branch {L_next}\n{L_last}:')
    body(True)
    a(f's_branch {L_next}\n{L_wo}:')
    stamp(a, 17)
    emit(a, w_rd(1, 3072) + w_rd(2, 6144))
    a('s_mov_b32 s45, 0x15556\ns_waitcnt lgkmcnt(0)')
    emit(a, w_dma('s39', 3072 * 3))
    emit(a, w_dma('s39', 3072 * 4))
    for p in range(3):
        a(f"""
        v_add_u32 {v(T)}, {64 * p}, {v(vL)}
        v_mul_lo_u32 {v(T + 1)}, {v(T)}, s45
        v_bfe_u32 {v(T)}, {v(T + 1)}, 22, 1
        v_lshrrev_b32 {v(T + 1)}, 23, {v(T + 1)}
        v_mul_u32_u24 {v(T)}, {36 * 1280}, {v(T)}
        v_mul_u32_u24 {v(T + 1)}, {12 * 1280}, {v(T + 1)}
        v_add3_u32 {v(vWD + p)}, {v(vWD + p)}, {v(T + 1)}, {v(T)}
        """)
    a(f's_add_u32 s43, s56, {16 * 1280}\ns_mov_b32 s52, {80 * 1280}\ns_mov_b32 s48, {160 * 1280}')
    emit(a, w_dma('s39', 3072 * 5))
    emit(a, w_dma('s39', 3072 * 6))
    a(f's_cmp_lg_u32 s34, 0\ns_cbranch_scc1 {L_next}\n{L_end2}:')
    a(f"""
    v_subrev_u32 {v(vWA)}, 9216, {v(vWA)}
    v_subrev_u32 {v(vWA + 1)}, 9216, {v(vWA + 1)}
    v_subrev_u32 {v(vWA + 2)}, 9216, {v(vWA + 2)}
    s_mul_i32 s44, s26, 14336
    s_add_u32 s44, s44, {OL_A}
    v_add_u32 {v(vKO)}, s44, {v(vHL)}
    v_and_b32 {v(T)}, 7, {v(vR)}
    v_xor_b32 {v(T)}, {v(T)}, {v(vH)}
    v_lshlrev_b32 {v(T + 1)}, 7, {v(vR)}
    v_add_u32 {v(T + 1)}, s39, {v(T + 1)}
    """)
    for jp in range(4):
        a(f"""
        v_xor_b32 {v(T + 2)}, {2 * jp}, {v(T)}
        v_lshl_add_u32 {v(T + 4 + jp)}, {v(T + 2)}, 4, {v(T + 1)}
        """)
    stamp(a, 18)
    a('s_barrier')
    Lp, Lq = a.label('op'), a.label('opd')
    a(f's_mov_b32 s93, {OPOLL_MAX}\n{Lp}:')
    for k in range(27, 30):
        for e in range(2):
            a(f'buffer_load_dwordx4 {v(hreg(k) + 4 * e, 4)}, {v(vHL)}, s[20:23], s{54 + e} offen offset:{1024 * (k - 27)} sc1')
    a('s_waitcnt vmcnt(0)')
    regs = [hreg(k) + i for k in range(27, 30) for i in range(8)]
    a(f'v_max3_u32 {v(T)}, {v(regs[0])}, {v(regs[1])}, {v(regs[2])}')
    for i in range(3, 23, 2):
        a(f'v_max3_u32 {v(T)}, {v(T)}, {v(regs[i])}, {v(regs[i + 1])}')
    a(f"""
    v_max_u32 {v(T)}, {v(T)}, {v(regs[23])}
    v_cmp_eq_u32 vcc, -1, {v(T)}
    s_nop 1
    s_cmp_eq_u64 vcc, 0
    s_cbranch_scc1 {Lq}
    s_sub_u32 s93, s93, 1
    s_cbranch_scc1 {Lq}
    s_sleep {OSLEEP}
    s_branch {Lp}
    {Lq}:
    """)
    stamp(a, 19)

    def o_rd(k):
        return [f'ds_read_b128 {v(hreg(k) + 4 * e, 4)}, {v(vKO)} offset:{(k - 30) * 2048 + 1024 * e}' for e in range(2)]

    for k in range(27, 30):
        emit(a, g_mfmas(k))
        emit(a, w_rd(k + 3, 3072 * (k - 27)))
    a('s_waitcnt lgkmcnt(0)')
    a('s_barrier')
    stamp(a, 30)
    for k in range(30, 33):
        emit(a, o_rd(k))
    XO = vWD
    assert XO % 2 == 0 and XO + 8 <= ACC
    for k in range(30, 34):
        a(f's_waitcnt lgkmcnt({ {30: 4, 31: 10, 32: 8, 33: 8}[k] })')
        emit(a, g_mfmas(k))
        emit(a, w_rd(k + 3, 3072 * (k + 3 - 30)) + o_rd(k + 3))
    g2_out(a, XO, vL, 's24', 0)
    a('s_waitcnt lgkmcnt(0)')
    wr = lambda n: [f'ds_write_b128 {v(T + 4 + jp)}, {v(ACC + 16 * n + 4 * jp, 4)} offset:{4096 * n}' for jp in range(4)]
    ms = [g_mfmas(k) for k in range(34, 37)]
    for n in range(5):
        for z in range(3):
            a(ms[z][n])
        if n >= 2:
            a('s_nop 5')
            emit(a, wr(n - 2))
    stamp(a, 20)
    a('s_nop 3')
    emit(a, wr(3))
    a('s_nop 3')
    emit(a, wr(4))
    a('s_waitcnt vmcnt(0) lgkmcnt(0)')
    a('s_barrier')
    stamp(a, 21)
    for i in range(8):
        a(f'v_mov_b32 {v(ACC + i)}, {v(XO + i)}')
    g2_out(a, ACC, vL, 's24', 1)


def build(path):
    hdr = open('parallel_sum__grouped_kv_mqa__geglu_ffn__prompt.s.ref').read().split('; Override launch')[0]
    out = hdr + f'; @launch grid=(256,1,1) block=(768,1,1) lds={LDS_TOTAL}\n'
    out += '.amdgcn_target "amdgcn-amd-amdhsa--gfx950"\n'
    out += gen()
    out += kernel_desc(KNAME, 168)
    open(path, 'w').write(out)


if __name__ == '__main__':
    import sys
    if len(sys.argv) > 2 and sys.argv[2] == 'stamp':
        asmlib.STAMPS = True
    build(sys.argv[1])
```

```python
from asmlib import *
import asmlib
import math
import os

KNAME = 'parallel_sum__grouped_kv_mqa__geglu_ffn__prompt_kernel'

H_OFF = 0
QF_OFF = 0x700000
KV_OFF = 0xA00000
OF_OFF = 0xB00000
FL_OFF = 0xE00000
F_ST = 0x1200000
F_CS = 0x1220000
F_KV = 0x1240000
F_KC = 0x1248000
F_W2 = 0x1250000
F_X = 0x1258000
F_QH = 0xE80000
ROWW = 0xE10000
CSW = 0xE20000
CSKVW = 0xE60000
W2F = 0xF00000
WS_USED = 0x1260000

LDS_X = 0
LDS_W = 49152
LDS_KV = 147456
CS_A = 16384
PART_A = 32768
VT_A = 32768
ROWC_A = 156672
CSKV_A = 158720
NONCE_A = 160768
RDY_A = 160800
SX_A = 160928
CD_A = 160832
PD_A = 160864
LDS_TOTAL = 163840
CH_BYTES = 14336
NST = 4
KVR = 49152
Q_A = KVR + 3 * CH_BYTES
G2R = KVR + CH_BYTES * NST
G2D = 3
TW_A = G2R
OL_A = KVR
WO_HI = 106496
WOA = 0
RED_A = 0

C0 = -2.0 * math.sqrt(2.0 / math.pi) * math.log2(math.e)
C1 = C0 * 0.044715
QSC = math.log2(math.e) / math.sqrt(20.0)
M_OFFSET = 90.0
POLL_MAX = 400000
NONCE_X = 0x5a5a5a5a

HM = 's[62:63]'
PFWAIT = False
ENV = os.environ
NODOWN = ENV.get('NODOWN')
PRIO2 = int(ENV.get('PRIO2', '3'))
PRIO1 = int(ENV.get('PRIO1', '3'))
SPACE = ENV.get('SPACE', 's_nop 7')
NOPF = not ENV.get('PF')
INV = int(ENV.get('INV', '0'))
NOG2 = ENV.get('NOG2')
ODBL = int(ENV.get('ODBL', '1'))
JX = int(ENV.get('JX', '0'))
QSLEEP = int(ENV.get('QSLEEP', '4'))
KVF = int(ENV.get('KVF', '3'))
OUTSC = {'': '', '1': ' sc1', '2': ' nt', '3': ' sc0 sc1', '4': ' sc1 nt'}[ENV.get('OUTSC', '')]
HPF = int(ENV.get('HPF', '2'))
PERM = int(ENV.get('PERM', '3'))
P1PF = int(ENV.get('P1PF', '0'))
PFC = tuple(int(x) for x in ENV.get('PFC', '2,3,4').split(','))
WDC = int(ENV.get('WDC', '2'))
WOC = int(ENV.get('WOC', '4'))
TWC = int(ENV.get('TWC', '1'))
DPOLL2 = 0
OSLEEP = int(ENV.get('OSLEEP', '3'))
LATE1 = int(ENV.get('LATE1', '1'))
OPOLL_MAX = 200000
LINPF = int(ENV.get('LINPF', '0'))
NOSL = ENV.get('NOSL')
PF0 = int(ENV.get('PF0', '0'))
JIT = int(ENV.get('JIT', '0'))
JITD = int(ENV.get('JITD', '4'))
SLC = int(ENV.get('SLC', '0'))
SLG = int(ENV.get('SLG', '1'))
SPN = int(ENV.get('SPN', '2'))
PZ0 = int(ENV.get('PZ0', '0'))
P3C = int(ENV.get('P3C', '7'))
EARLY2 = int(ENV.get('EARLY2', '0'))
CWARM = int(ENV.get('CWARM', '1'))
KVSL = int(ENV.get('KVSL', '16'))
HEARLY = ENV.get('HEARLY')
PSLEEP = int(ENV.get('PSLEEP', '2'))
NOPF2 = not ENV.get('PF2')
CV = int(ENV.get('CV', '0'))
NODMA = ENV.get('NODMA')
IST = ENV.get('IST')
LD = ' sc1' if ENV.get('SC1LD') else ''
FEWST = ENV.get('FEWST')
IST_LIST = tuple(int(x) for x in os.environ.get('ISTL', '1,2,6,7').split(','))
HFLAG_T = int(os.environ.get('HFT', '6'))
G2_START = int(os.environ.get('G2S', '6'))
G2_END = int(os.environ.get('G2E', '15'))


class VM:
    def __init__(self):
        self.ops = []

    def add(self, tag, n=1, optional=False):
        for _ in range(n):
            self.ops.append((tag, optional))

    def wait(self, tag):
        idx = max(i for i, (t, o) in enumerate(self.ops) if t == tag)
        n = sum(1 for t, o in self.ops[idx + 1:] if not o)
        assert n <= 63, n
        return n

    def drain(self):
        self.ops = []


def emit(a, bundles):
    for b in bundles:
        a(b if isinstance(b, str) else '\n'.join(b))


def flag_store(a, soff_reg, vt):
    a(f'''
    v_mov_b32 {v(vt)}, s98
    v_mov_b32 {v(vt + 1)}, s99
    s_mov_b64 exec, 1
    buffer_store_dwordx2 {v(vt, 2)}, off, s[20:23], {soff_reg} sc1
    s_mov_b64 exec, -1
    ''')


def poll(a, vt, voff, soff_reg, wide=False, ignore=None, inv=True, sleep=None):
    L = a.label('poll')
    Ld = a.label('polld')
    a(f's_mov_b32 s93, {POLL_MAX}')
    a(f'{L}:')
    if wide:
        a(f'''
        buffer_load_dwordx4 {v(vt, 4)}, {v(voff)}, s[20:23], {soff_reg} offen sc1
        s_waitcnt vmcnt(0)
        v_cmp_eq_u64 vcc, s[98:99], {v(vt, 2)}
        v_cmp_eq_u64 s[46:47], s[98:99], {v(vt + 2, 2)}
        s_nop 1
        s_and_b64 vcc, vcc, s[46:47]
        ''')
    else:
        a(f'''
        buffer_load_dwordx2 {v(vt, 2)}, {v(voff)}, s[20:23], {soff_reg} offen sc1
        s_waitcnt vmcnt(0)
        v_cmp_eq_u64 vcc, s[98:99], {v(vt, 2)}
        s_nop 1
        ''')
    if ignore:
        a(f's_or_b64 vcc, vcc, {ignore}')
    a(f'''
    s_cmp_eq_u64 vcc, -1
    s_cbranch_scc1 {Ld}
    s_sub_u32 s93, s93, 1
    s_cbranch_scc1 {Ld}
    s_sleep {sleep or PSLEEP}
    s_branch {L}
    {Ld}:
    ''')
    if inv and INV:
        a('buffer_inv sc1\ns_waitcnt vmcnt(0)')


def polln(a, vt, voff, rows, sleep):
    L = a.label('poll')
    Ld = a.label('polld')
    a(f's_mov_b32 s93, {POLL_MAX}\n{L}:')
    for q, (so, ig) in enumerate(rows):
        a(f'buffer_load_dwordx2 {v(vt + 2 * q, 2)}, {v(voff[q] if isinstance(voff, list) else voff)}, s[20:23], {so} offen sc1')
    a('s_waitcnt vmcnt(0)')
    dst = ['vcc', 's[46:47]', 's[48:49]']
    for q in range(len(rows)):
        a(f'v_cmp_eq_u64 {dst[q]}, s[98:99], {v(vt + 2 * q, 2)}')
    a('s_nop 1')
    for q, (so, ig) in enumerate(rows):
        if ig:
            a(f's_or_b64 {dst[q]}, {dst[q]}, {ig}')
        if q:
            a(f's_and_b64 vcc, vcc, {dst[q]}')
    a(f'''
    s_cmp_eq_u64 vcc, -1
    s_cbranch_scc1 {Ld}
    s_sub_u32 s93, s93, 1
    s_cbranch_scc1 {Ld}
    s_sleep {sleep}
    s_branch {L}
    {Ld}:
    ''')


def one_poller(a, vt, word, body, who=3):
    Lw, Ld, Ls = a.label('opw'), a.label('opd'), a.label('ops')
    a(f'''
    v_mov_b32 {v(vt + 3)}, {RDY_A + 4 * word}
    s_cmp_lg_u32 s26, {who}
    s_cbranch_scc1 {Lw}
    ''')
    body()
    a(f'''
    v_mov_b32 {v(vt + 2)}, s98
    ds_write_b32 {v(vt + 3)}, {v(vt + 2)}
    s_branch {Ld}
    {Lw}:
    s_mov_b32 s93, {POLL_MAX * 8}
    {Ls}:
    ds_read_b32 {v(vt + 2)}, {v(vt + 3)}
    s_waitcnt lgkmcnt(0)
    v_readfirstlane_b32 s46, {v(vt + 2)}
    s_cmp_eq_u32 s46, s98
    s_cbranch_scc1 {Ld}
    s_sub_u32 s93, s93, 1
    s_cbranch_scc1 {Ld}
    s_sleep 1
    s_branch {Ls}
    {Ld}:
    ''')


def bstamp(a, first=False):
    if not (asmlib.STAMPS and ENV.get('BST')):
        return
    if first:
        a('s_add_u32 s101, s92, 0xC0000')
    a('''
    s_memrealtime s[94:95]
    s_memtime s[96:97]
    s_waitcnt lgkmcnt(0)
    v_mov_b32 v166, s94
    v_mov_b32 v167, s96
    buffer_store_dwordx2 v[166:167], off, s[88:91], s101
    s_add_u32 s101, s101, 8
    ''')


def srd(a, base, ptr, size):
    a(f'''
    s_mov_b32 s{base}, s{ptr}
    s_mov_b32 s{base + 1}, s{ptr + 1}
    s_mov_b32 s{base + 2}, {size}
    s_mov_b32 s{base + 3}, 0x20000
    ''')


def w_source(a):
    a('''
    s_and_b32 s44, s26, 1
    s_and_b32 s51, s44, s48
    s_lshr_b32 s45, s26, 1
    s_lshl_b32 s46, s44, 6
    s_add_u32 s46, s46, s49
    s_cmp_eq_u32 s48, 1
    s_cselect_b32 s46, s49, s46
    s_lshl_b32 s47, s45, 6
    s_add_u32 s47, s47, s50
    s_cmp_eq_u32 s51, 1
    s_cselect_b32 s52, s47, s46
    s_lshl_b32 s52, s52, 1
    s_cmp_eq_u32 s45, 1
    s_cselect_b32 s12, s82, s80
    s_cselect_b32 s13, s83, s81
    s_mov_b32 s14, 2211840
    s_mov_b32 s53, 3456
    s_cmp_eq_u32 s51, 1
    s_cselect_b32 s12, s70, s12
    s_cselect_b32 s13, s71, s13
    s_cselect_b32 s14, 819200, s14
    s_cselect_b32 s53, 1280, s53
    s_mov_b32 s15, 0x20000
    ''')


def tile_offs(t):
    p, o = t >> 1, t & 1
    b = p * 7168
    return b + o * 1024, b + 2048, b + 3072 + o * 2048, b + 4096 + o * 2048


def gen():
    a = Asm()
    a(kernel_head(KNAME))
    stamp_early(a)
    vL, vH, vR = 1, 2, 3
    L_end = a.label('end')
    L_aux = a.label('aux')
    a(f'''
    s_cmp_ge_u32 s2, 256
    s_cbranch_scc1 {L_end}
    s_load_dwordx8 s[68:75], s[0:1], 0
    s_load_dwordx4 s[80:83], s[0:1], 48
    s_load_dwordx4 s[76:79], s[0:1], 80
    s_load_dwordx2 s[84:85], s[0:1], 32
    s_load_dwordx4 s[88:91], s[0:1], 64
    v_lshrrev_b32 v4, 6, v0
    v_and_b32 {v(vL)}, 63, v0
    v_readfirstlane_b32 s24, v4
    v_lshrrev_b32 {v(vH)}, 5, {v(vL)}
    v_and_b32 {v(vR)}, 31, {v(vL)}
    ''')
    if CWARM:
        Lw, Lp = a.label('nowarm'), a.label('pc')
        a(f'''
        s_cmp_lg_u32 s24, 11
        s_cbranch_scc1 {Lw}
        s_getpc_b64 s[4:5]
        {Lp}:
        s_bfe_u32 s44, s2, 0x30003
        s_lshl_b32 s44, s44, 13
        v_lshl_add_u32 v4, {v(vL)}, 7, s44
        v_min_u32 v4, {L_end}-{Lp}, v4
        global_load_dword v165, v4, s[4:5]
        {Lw}:
        ''')
    vXD, vWD, vKD = 20, 22, 24
    t0, t1, t2, t3, t4 = 4, 5, 6, 7, 8
    a(f'''
    s_bfe_u32 s27, s2, 0x30003
    s_and_b32 s46, s2, 1
    s_lshl_b32 s46, s46, 3
    s_add_u32 s27, s27, s46
    s_bfe_u32 s46, s2, 0x20001
    s_xor_b32 s46, s46, {JX}
    s_lshl_b32 s46, s46, 2
    s_lshr_b32 s47, s2, 6
    s_add_u32 s28, s46, s47
    s_cmp_ge_u32 s28, 11
    s_cselect_b32 s48, 1, 0
    s_sub_u32 s44, s28, 11
    s_lshl_b32 s45, s44, 6
    s_add_u32 s45, s45, 1408
    s_lshl_b32 s46, s28, 7
    s_lshl_b32 s50, s44, 7
    s_cmp_eq_u32 s48, 1
    s_cselect_b32 s49, s45, s46
    s_and_b32 s25, s24, 1
    s_lshr_b32 s26, s24, 1
    s_sub_u32 s44, s24, 8
    s_cmp_ge_u32 s24, 8
    s_cselect_b32 s26, s44, s26
    s_and_b32 s44, s26, 1
    s_and_b32 s51, s44, s48
    s_lshr_b32 s43, s26, 1
    s_andn2_b32 s46, s44, s48
    s_lshl_b32 s46, s46, 6
    s_add_u32 s46, s46, s49
    s_lshl_b32 s47, s43, 6
    s_add_u32 s47, s47, s50
    s_mov_b32 s53, 3456
    s_cmp_eq_u32 s51, 1
    s_cselect_b32 s52, s47, s46
    s_cselect_b32 s53, 1280, s53
    s_lshl_b32 s52, s52, 1
    s_lshl_b32 s31, s53, 3
    s_lshl_b32 s32, s53, 6
    v_lshrrev_b32 {v(t0)}, 3, {v(vL)}
    v_and_b32 {v(t1)}, 7, {v(vL)}
    s_lshl_b32 s44, s27, 7
    s_lshl_b32 s45, s26, 5
    s_add_u32 s44, s44, s45
    v_add_u32 {v(t2)}, s44, {v(t0)}
    v_mul_u32_u24 {v(t2)}, 1280, {v(t2)}
    v_lshrrev_b32 {v(t3)}, 1, {v(t0)}
    v_xor_b32 {v(t3)}, {v(t3)}, {v(t1)}
    v_lshl_add_u32 {v(vXD)}, {v(t3)}, 4, {v(t2)}
    v_xor_b32 {v(t3)}, 4, {v(t3)}
    v_lshl_add_u32 {v(vXD + 1)}, {v(t3)}, 4, {v(t2)}
    v_add_u32 {v(vXD + 1)}, {8 * 1280}, {v(vXD + 1)}
    v_mul_lo_u32 {v(t2)}, {v(t0)}, s53
    v_lshrrev_b32 {v(t3)}, 1, {v(t1)}
    v_and_b32 {v(t4)}, 2, {v(t0)}
    v_xor_b32 {v(t3)}, {v(t3)}, {v(t4)}
    v_and_b32 {v(t4)}, 1, {v(t1)}
    v_lshl_add_u32 {v(t2)}, {v(t4)}, 4, {v(t2)}
    v_add_u32 {v(t2)}, s52, {v(t2)}
    v_lshl_add_u32 {v(vWD)}, {v(t3)}, 5, {v(t2)}
    v_xor_b32 {v(t3)}, 1, {v(t3)}
    v_lshl_add_u32 {v(vWD + 1)}, {v(t3)}, 5, {v(t2)}
    s_lshl_b32 s36, s26, 12
    s_mul_i32 s37, s26, 24576
    s_add_u32 s37, s37, {LDS_W}
    s_lshl_b32 s33, s53, 5
    s_mul_i32 s33, s33, s25
    s_lshl_b32 s44, s25, 12
    s_add_u32 s35, s37, s44
    s_bfe_u32 s44, s2, 0x30003
    s_lshr_b32 s45, s2, 6
    s_add_u32 s44, s44, s45
    s_and_b32 s100, s44, {PERM}
    s_xor_b32 s45, s100, 1
    s_mul_i32 s38, s100, s32
    s_mul_i32 s39, s45, s32
    s_mov_b32 s10, 2621440
    s_mov_b32 s11, 0x20000
    s_mov_b32 s14, 2211840
    s_mov_b32 s15, 0x20000
    s_cmp_ge_u32 s24, 8
    s_cbranch_scc1 {L_aux}
    s_cmp_eq_u32 s43, 1
    s_waitcnt lgkmcnt(0)
    s_cselect_b32 s12, s82, s80
    s_cselect_b32 s13, s83, s81
    s_cmp_eq_u32 s51, 1
    s_cselect_b32 s12, s70, s12
    s_cselect_b32 s13, s71, s13
    s_cselect_b32 s14, 819200, s14
    ''')
    def c_start(c):
        for e in range(4):
            a(f'''
            s_add_u32 m0, s35, {c * 8192 + e * 1024}
            s_add_u32 s34, s33, s{38 + c}
            buffer_load_dwordx4 {v(vWD + (e & 1))}, s[12:15], s34 offen lds
            ''')
            if e < 3:
                a('s_add_u32 s33, s33, s31')
            elif c == 0:
                a('s_mul_i32 s44, s31, 3\ns_sub_u32 s33, s33, s44')
    c_start(0)
    if not LATE1:
        c_start(1)
    L_com = a.label('common')
    a(f'''
    s_mov_b32 s8, s68
    s_mov_b32 s9, s69
    s_mov_b32 s16, s72
    s_mov_b32 s17, s73
    s_mov_b32 s18, 25600
    s_mov_b32 s19, 0x20000
    v_mov_b32 {v(vKD)}, 0
    s_branch {L_com}
    {L_aux}:
    s_setprio {PRIO1}
    s_cmp_lt_u32 s28, 8
    s_cselect_b32 s54, 1, 0
    s_cmp_lt_u32 s26, 3
    s_cselect_b32 s40, s54, 0
    s_lshl_b32 s44, s26, 10
    s_add_u32 s38, s44, {LDS_KV}
    v_lshl_add_u32 {v(vKD)}, {v(vL)}, 4, s44
    s_mov_b32 s18, 25600
    s_mov_b32 s19, 0x20000
    s_lshl_b32 s46, s100, 7
    s_lshl_b32 s57, s45, 7
    s_mul_i32 s58, s100, 2560
    s_mul_i32 s59, s45, 2560
    s_bitcmp1_b32 s28, 2
    s_waitcnt lgkmcnt(0)
    s_mov_b32 s8, s68
    s_mov_b32 s9, s69
    s_cselect_b32 s16, s74, s72
    s_cselect_b32 s17, s75, s73
    ''')
    def a_start(c):
        for e in range(4):
            a(f'''
            s_add_u32 m0, s36, {LDS_X + c * 16384 + e * 1024}
            s_add_u32 s34, s{(46, 57)[c]}, {(e >> 1) * 16 * 1280}
            buffer_load_dwordx4 {v(vXD + (e & 1))}, s[8:11], s34 offen lds
            ''')
        lab = a.label('nokv')
        a(f'''
        s_cmp_eq_u32 s40, 0
        s_cbranch_scc1 {lab}
        s_add_u32 m0, s38, {c * 3072}
        s_nop 0
        buffer_load_dwordx4 {v(vKD)}, s[16:19], s{58 + c} offen lds
        {lab}:
        ''')
    a_start(0)
    if not LATE1:
        a_start(1)
    a(f'''
    s_cmp_eq_u32 s43, 1
    s_cselect_b32 s12, s82, s80
    s_cselect_b32 s13, s83, s81
    s_cmp_eq_u32 s51, 1
    s_cselect_b32 s12, s70, s12
    s_cselect_b32 s13, s71, s13
    s_cselect_b32 s14, 819200, s14
    {L_com}:
    s_mov_b32 s62, 0
    s_mov_b32 s63, -1
    s_and_b32 s44, s2, 7
    s_lshl_b32 s44, s44, 2
    s_bfe_u32 s46, s2, 0x20003
    s_add_u32 s29, s44, s46
    s_lshr_b32 s30, s2, 5
    ''')
    srd(a, 20, 78, WS_USED)
    srd(a, 64, 90, 2621440)
    if asmlib.STAMPS:
        a('s_mov_b32 s86, s88\ns_mov_b32 s87, s89')
    WDP = 86 if asmlib.STAMPS else 88
    if asmlib.STAMPS:
        a(f'''
        s_mov_b32 s88, s78
        s_mov_b32 s89, s79
        s_mov_b32 s90, 0x2000000
        s_mov_b32 s91, 0x20000
        s_mul_i32 s92, s2, 12
        s_add_u32 s92, s92, s24
        s_lshl_b32 s92, s92, 8
        s_add_u32 s92, s92, {asmlib.STAMP_OFF}
        ''')
    stamp(a, 0, early=True)
    stamp(a, 24)
    L_aux2 = a.label('aux2')
    a(f'''
    s_cmp_ge_u32 s24, 8
    s_cbranch_scc1 {L_aux2}
    ''')
    compute_wave(a, vL, vH, vR, L_end, c_start)
    a(f'{L_aux2}:')
    aux_wave(a, vL, vH, vR, L_end, WDP, a_start)
    a(f'''
    {L_end}:
    s_endpgm
    ''')
    return a.text()


def compute_wave(a, vL, vH, vR, L_end, c_start):
    al = Alloc(4, 168)
    T = al('T', 8, 4)
    ACC = al('acc', 64, 4)
    XF = al('xf', 32, 4)
    WF = al('wf', 16, 4)
    vXA = al('xa', 2)
    vWA = al('wa', 4)
    assert al.p == 130
    t0, t1, t2, t3, t4 = T, T + 1, T + 2, T + 3, T + 4
    a.c('=========== compute wave: phase 1 ===========')
    CR = 132
    XR = 132
    U = 160
    u0, u1, u2, u3, u4, u5 = range(U, U + 6)
    W4 = 144
    vN = 130
    srd(a, 4, 76, 256)

    a(f'''
    s_lshr_b32 s44, s30, 2
    s_lshl_b32 s46, s29, 1
    s_add_u32 s46, s46, s44
    s_and_b32 s44, s30, 3
    s_lshl_b32 s44, s44, 3
    s_add_u32 s45, s44, s24
    s_mul_i32 s37, s46, 40960
    s_add_u32 s37, s37, {OF_OFF}
    s_lshl_b32 s36, s45, 10
    s_add_u32 s36, s36, s37
    s_lshl_b32 s44, s45, 8
    s_add_u32 s37, s37, s44
    s_add_u32 s37, s37, 32768
    ''')
    PZ = 152
    poison = [f'v_mov_b32 {v(PZ + q)}, -1' for q in range(4)] + [
        f'v_lshlrev_b32 {v(u4)}, 4, {v(vL)}', f'v_lshlrev_b32 {v(u5)}, 2, {v(vL)}',
        f'buffer_store_dwordx4 {v(PZ, 4)}, {v(u4)}, s[20:23], s36 offen sc1',
        f'buffer_store_dword {v(PZ)}, {v(u5)}, s[20:23], s37 offen sc1']

    def lines(txt):
        return [x.strip() for x in txt.split(chr(10)) if x.strip()]

    def load_cs():
        f = lines(f'''
        s_mul_i32 s44, s27, 40
        v_lshrrev_b32 {v(u1)}, 3, {v(vL)}
        v_add_u32 {v(u1)}, s44, {v(u1)}
        v_mul_lo_u32 {v(u2)}, {v(u1)}, s53
        v_and_b32 {v(u1)}, 7, {v(vL)}
        v_lshl_add_u32 {v(u2)}, {v(u1)}, 4, {v(u2)}
        s_mov_b32 s34, s52
        ''')
        for t in range(5):
            f.append([f'buffer_load_dwordx4 {v(CR + 4 * t, 4)}, {v(u2)}, s[12:15], s34 offen', 's_add_u32 s34, s34, s31'])
        return f

    def load_rows():
        f = lines(f'''
        s_lshl_b32 s44, s27, 7
        s_lshl_b32 s45, s28, 3
        s_add_u32 s44, s44, s45
        s_lshl_b32 s45, s26, 1
        s_add_u32 s55, s44, s45
        v_add_u32 {v(u0)}, s55, {v(vH)}
        v_mul_u32_u24 {v(u0)}, 1280, {v(u0)}
        v_lshl_add_u32 {v(u0)}, {v(vR)}, 3, {v(u0)}
        ''')
        for t in range(5):
            f.append(f'buffer_load_dwordx2 {v(XR + 2 * t, 2)}, {v(u0)}, s[8:11], 0 offen offset:{256 * t}')
        return f

    def fill_cs():
        A8 = 152
        f = []
        for q in range(4):
            f += [f'v_lshlrev_b32 {v(A8 + 2 * q)}, 16, {v(CR + q)}', f'v_and_b32 {v(A8 + 2 * q + 1)}, 0xffff0000, {v(CR + q)}']
        for t in range(1, 5):
            for q in range(4):
                ta, tb = (u2, u3) if q & 1 else (u4, u5)
                f += lines(f'''
                v_lshlrev_b32 {v(ta)}, 16, {v(CR + 4 * t + q)}
                v_and_b32 {v(tb)}, 0xffff0000, {v(CR + 4 * t + q)}
                v_add_f32 {v(A8 + 2 * q)}, {v(A8 + 2 * q)}, {v(ta)}
                v_add_f32 {v(A8 + 2 * q + 1)}, {v(A8 + 2 * q + 1)}, {v(tb)}
                ''')
        f.append('s_nop 1')
        f += [f'v_permlane32_swap_b32 {v(A8 + q)}, {v(A8 + 4 + q)}' for q in range(4)]
        f.append('s_nop 1')
        f += [f'v_add_f32 {v(A8 + q)}, {v(A8 + q)}, {v(A8 + 4 + q)}' for q in range(4)]
        f.append('s_nop 1')
        f += [f'v_permlane16_swap_b32 {v(A8 + q)}, {v(A8 + 2 + q)}' for q in range(2)]
        f.append('s_nop 1')
        f += [f'v_add_f32 {v(A8 + q)}, {v(A8 + q)}, {v(A8 + 2 + q)}' for q in range(2)]
        f += lines(f'''
        s_nop 1
        v_add_f32_dpp {v(A8)}, {v(A8)}, {v(A8)} row_ror:8 row_mask:0xf bank_mask:0xf
        v_add_f32_dpp {v(A8 + 1)}, {v(A8 + 1)}, {v(A8 + 1)} row_ror:8 row_mask:0xf bank_mask:0xf
        s_mov_b32 vcc_lo, 0xff00ff00
        s_mov_b32 vcc_hi, 0xff00ff00
        v_cndmask_b32 {v(u0)}, {v(A8)}, {v(A8 + 1)}, vcc
        v_cvt_pk_bf16_f32 {v(u1)}, {v(u0)}, {v(u0)}
        v_and_b32 {v(u1)}, 0xffff0000, {v(u1)}
        v_sub_f32 {v(u1)}, {v(u0)}, {v(u1)}
        v_cvt_pk_bf16_f32 {v(u0)}, {v(u0)}, {v(u1)}
        v_and_b32 {v(u1)}, 7, {v(vL)}
        v_lshl_add_u32 {v(u1)}, {v(u1)}, 1, {v(vH)}
        v_bfe_u32 {v(u2)}, {v(vL)}, 4, 1
        v_lshl_add_u32 {v(u1)}, {v(u1)}, 1, {v(u2)}
        v_bfe_u32 {v(u2)}, {v(vL)}, 3, 1
        v_lshl_add_u32 {v(u1)}, {v(u1)}, 1, {v(u2)}
        v_and_b32 {v(u2)}, 15, {v(u1)}
        v_lshrrev_b32 {v(u3)}, 4, {v(u1)}
        s_and_b32 s44, s26, 1
        s_andn2_b32 s44, s44, s48
        s_lshl_b32 s44, s44, 7
        s_lshr_b32 s45, s26, 1
        s_lshl_b32 s45, s45, 4
        s_add_u32 s44, s44, s45
        v_lshl_add_u32 {v(u4)}, {v(u3)}, 5, s44
        s_add_u32 s44, s26, 3
        s_lshl_b32 s44, s44, 5
        v_lshl_add_u32 {v(u5)}, {v(u3)}, 4, s44
        s_cmp_eq_u32 s51, 1
        s_cselect_b64 vcc, -1, 0
        v_cndmask_b32 {v(u4)}, {v(u4)}, {v(u5)}, vcc
        v_add_lshl_u32 {v(u2)}, {v(u2)}, {v(u4)}, 2
        s_lshl_b32 s44, s28, 14
        s_lshl_b32 s45, s27, 10
        s_add_u32 s44, s44, s45
        s_add_u32 s44, s44, {CSW}
        buffer_store_dword {v(u0)}, {v(u2)}, s[20:23], s44 offen sc1
        s_lshl_b32 s46, s27, 2
        s_add_u32 s46, s46, s26
        s_lshl_b32 s46, s46, 7
        s_lshl_b32 s45, s28, 13
        s_add_u32 s46, s46, s45
        s_add_u32 s56, s46, {F_CS}
        ''')
        return f

    def fill_rows():
        f = [f'v_mov_b32 {v(u0)}, 0', f'v_mov_b32 {v(u1)}, 0']
        for t in range(10):
            f += lines(f'''
            v_lshlrev_b32 {v(u2)}, 16, {v(XR + t)}
            v_and_b32 {v(u3)}, 0xffff0000, {v(XR + t)}
            v_add_f32 {v(u0)}, {v(u0)}, {v(u2)}
            v_fmac_f32 {v(u1)}, {v(u2)}, {v(u2)}
            v_add_f32 {v(u0)}, {v(u0)}, {v(u3)}
            v_fmac_f32 {v(u1)}, {v(u3)}, {v(u3)}
            ''')
        for ror in (8, 4, 2, 1):
            f += lines(f'''
            s_nop 1
            v_add_f32_dpp {v(u0)}, {v(u0)}, {v(u0)} row_ror:{ror} row_mask:0xf bank_mask:0xf
            v_add_f32_dpp {v(u1)}, {v(u1)}, {v(u1)} row_ror:{ror} row_mask:0xf bank_mask:0xf
            ''')
        f += lines(f'''
        v_mov_b32 {v(u2)}, {v(u0)}
        v_mov_b32 {v(u3)}, {v(u1)}
        s_nop 1
        v_permlane16_swap_b32 {v(u0)}, {v(u2)}
        v_permlane16_swap_b32 {v(u1)}, {v(u3)}
        s_mov_b32 s44, {f2u(1.0 / 640.0)}
        s_mov_b32 s45, {f2u(1e-5)}
        v_add_f32 {v(u0)}, {v(u0)}, {v(u2)}
        v_add_f32 {v(u1)}, {v(u1)}, {v(u3)}
        v_mul_f32 {v(u0)}, s44, {v(u0)}
        v_mul_f32 {v(u1)}, s44, {v(u1)}
        v_fma_f32 {v(u1)}, -{v(u0)}, {v(u0)}, {v(u1)}
        v_max_f32 {v(u1)}, 0, {v(u1)}
        v_cvt_pk_bf16_f32 {v(W4)}, -{v(u0)}, -{v(u0)}
        v_cvt_pk_bf16_f32 {v(u1)}, {v(u1)}, {v(u1)}
        v_and_b32 {v(u1)}, 0xffff0000, {v(u1)}
        v_add_f32 {v(u1)}, s45, {v(u1)}
        v_cvt_pk_bf16_f32 {v(u1)}, {v(u1)}, {v(u1)}
        v_and_b32 {v(u1)}, 0xffff0000, {v(u1)}
        v_sqrt_f32 {v(u1)}, {v(u1)}
        v_mov_b32 {v(W4 + 3)}, 0
        v_cvt_pk_bf16_f32 {v(u1)}, {v(u1)}, {v(u1)}
        v_and_b32 {v(u1)}, 0xffff0000, {v(u1)}
        v_rcp_f32 {v(W4 + 1)}, {v(u1)}
        v_mul_f32 {v(W4 + 2)}, {v(u1)}, {v(u1)}
        v_lshlrev_b32 {v(u2)}, 4, {v(vH)}
        s_lshl_b32 s44, s55, 4
        s_add_u32 s44, s44, {ROWW}
        ''')
        f.append(['s_mov_b32 exec_lo, 1', 's_mov_b32 exec_hi, 1',
                  f'buffer_store_dwordx4 {v(W4, 4)}, {v(u2)}, s[20:23], s44 offen sc1', 's_mov_b64 exec, -1'])
        f += lines(f'''
        s_lshl_b32 s44, s28, 2
        s_add_u32 s44, s44, s26
        s_lshl_b32 s44, s44, 7
        s_lshl_b32 s45, s27, 13
        s_add_u32 s44, s44, s45
        s_add_u32 s56, s44, {F_ST}
        ''')
        return f

    stamp(a, 22)
    a(f'''
    v_and_b32 {v(t0)}, 15, {v(vL)}
    v_lshrrev_b32 {v(t1)}, 4, {v(vL)}
    v_lshrrev_b32 {v(t2)}, 1, {v(t0)}
    v_xor_b32 {v(t2)}, {v(t2)}, {v(t1)}
    v_lshlrev_b32 {v(t0)}, 7, {v(t0)}
    s_lshl_b32 s44, s25, 13
    v_add_u32 {v(t0)}, s44, {v(t0)}
    v_lshl_add_u32 {v(vXA)}, {v(t2)}, 4, {v(t0)}
    v_xor_b32 {v(t2)}, 4, {v(t2)}
    v_lshl_add_u32 {v(vXA + 1)}, {v(t2)}, 4, {v(t0)}
    v_bfe_u32 {v(t2)}, {v(vL)}, 2, 2
    v_lshl_add_u32 {v(t0)}, {v(t1)}, 3, {v(t2)}
    v_lshlrev_b32 {v(t0)}, 7, {v(t0)}
    v_and_b32 {v(t3)}, 3, {v(vL)}
    v_lshl_add_u32 {v(t0)}, {v(t3)}, 3, {v(t0)}
    v_and_b32 {v(t2)}, 2, {v(t2)}
    v_and_b32 {v(t1)}, 1, {v(t1)}
    v_xor_b32 {v(t1)}, {v(t1)}, {v(t2)}
    s_lshr_b32 s44, s26, 1
    s_and_b32 s57, s44, s48
    ''')
    for t in range(4):
        a(f'''
        s_lshl_b32 s44, s26, 1
        s_add_u32 s45, s44, {t >> 1}
        s_and_b32 s46, s45, 3
        s_lshr_b32 s45, s45, 2
        s_add_u32 s45, s45, {2 * (t & 1)}
        s_sub_u32 s44, s44, 3
        s_cmp_eq_u32 s57, 1
        s_cselect_b32 s45, s44, s45
        s_cselect_b32 s46, {t}, s46
        s_mul_i32 s45, s45, 24576
        s_add_u32 s45, s45, {LDS_W}
        v_xor_b32 {v(t2)}, s46, {v(t1)}
        v_lshl_add_u32 {v(t2)}, {v(t2)}, 5, {v(t0)}
        v_add_u32 {v(vWA + t)}, s45, {v(t2)}
        ''')

    def m16(d, A, B, first=False):
        return f'v_mfma_f32_16x16x32_bf16 {v(d, 4)}, {v(A, 4)}, {v(B, 4)}, ' + ('0' if first else v(d, 4))

    def xrd(g):
        c, sI = divmod(g, 2)
        return [f'ds_read_b128 {v(XF + 16 * (g & 1) + 4 * rt, 4)}, {v(vXA + sI)} offset:{LDS_X + (c % 3) * 16384 + 2048 * rt}' for rt in range(4)]

    def wrd(g, t):
        c, sI = divmod(g, 2)
        return [f'ds_read_b64_tr_b16 {v(WF + 4 * t + 2 * z, 2)}, {v(vWA + t)} offset:{(c % 3) * 8192 + 4096 * sI + 512 * z}' for z in range(2)]

    def tile(g, t):
        return [m16(ACC + 16 * t + 4 * rt, WF + 4 * t, XF + 16 * (g & 1) + 4 * rt, g == 0) for rt in range(4)]

    def chunk(c, fill=()):
        a.c(f'chunk {c}')
        if c:
            a('s_waitcnt lgkmcnt(0)')
        a('s_barrier')
        if not FEWST or c in (0, 1, 2, 9):
            stamp(a, 1 + c)
        if c == 9:
            lab = a.label('nqp')
            a(f's_cmp_eq_u32 s57, 0\ns_cbranch_scc1 {lab}\ns_setprio 2\n{lab}:')
        seq = []

        def rest(g, waits):
            pend = (wrd(g + 1, 0) + xrd(g + 1)) if g + 1 < 20 else []
            for t in range(1, 4):
                ms = tile(g, t)
                for q, m_ in enumerate(ms):
                    pre_ = [f's_waitcnt lgkmcnt({(0, 4, 10, 10)[t]})'] if (waits and q == 0) else []
                    ex = pend[2 * q:2 * q + 2] if t == 1 else []
                    if q == 3 and g + 1 < 20:
                        ex = ex + wrd(g + 1, t)
                    seq.append((pre_, m_, ex))
        if c > 0:
            rest(2 * c - 1, False)
        else:
            emit(a, wrd(0, 0) + xrd(0) + wrd(0, 1) + wrd(0, 2) + wrd(0, 3))
        g = 2 * c
        for q, m_ in enumerate(tile(g, 0)):
            seq.append((['s_waitcnt lgkmcnt(6)'] if q == 0 else [], m_, []))
        rest(g, True)
        for q, m_ in enumerate(tile(g + 1, 0)):
            seq.append((['s_waitcnt lgkmcnt(6)'] if q == 0 else [], m_, []))
        n, k_ = len(fill), len(seq)
        for q, (pre_, m_, ex) in enumerate(seq):
            emit(a, pre_)
            a(m_)
            emit(a, ex)
            emit(a, fill[(q * n) // k_:((q + 1) * n) // k_])

    if LATE1:
        c_start(1)
    lab1, lab2 = a.label('rowv'), a.label('join')
    a(f's_cmp_eq_u32 s25, 1\ns_cbranch_scc1 {lab1}')
    for var, (ld, fl) in enumerate(((load_cs(), fill_cs()), (load_rows(), fill_rows()))):
        qp = [] if var == 0 else lines(f'''
        s_mul_i32 s44, s27, 163840
        s_mul_i32 s45, s28, 10240
        s_add_u32 s44, s44, s45
        s_mul_i32 s45, s26, 2560
        s_add_u32 s44, s44, s45
        s_add_u32 s44, s44, {QF_OFF}
        v_lshlrev_b32 {v(u5)}, 3, {v(vL)}
        buffer_store_dwordx4 {v(PZ, 4)}, {v(u4)}, s[20:23], s44 offen sc1
        buffer_store_dwordx4 {v(PZ, 4)}, {v(u4)}, s[20:23], s44 offen offset:1024 sc1
        buffer_store_dwordx2 {v(PZ, 2)}, {v(u5)}, s[20:23], s44 offen offset:2048 sc1
        ''')
        nl = [f'buffer_load_dword {v(vN)}, off, s[4:7], 0 sc1']
        pz0 = poison + qp if PZ0 else []
        fl = (fl + nl) if PZ0 else (poison + qp + fl + nl)
        if SLC == 0:
            emit(a, ld)
        a(f's_waitcnt vmcnt({9 if SLC == 0 else 4})')
        chunk(0, pz0)
        a(f's_waitcnt vmcnt({(5 if SLC == 0 else 0) + ((2, 5)[var] if PZ0 else 0)})')
        n = len(fl)
        f0 = SLC + SLG
        for c in range(1, f0 + SPN):
            if c == SLC:
                chunk(c, ld)
            elif c >= f0:
                q = c - f0
                chunk(c, ([f's_waitcnt vmcnt({(2, 5)[var] if PZ0 else 0})'] if q == 0 else []) + fl[(q * n) // SPN:((q + 1) * n) // SPN])
            else:
                chunk(c)
        if var == 0:
            a(f's_branch {lab2}\n{lab1}:')
    a(f'{lab2}:')
    chunk(f0 + SPN)
    Lp, Lq = a.label('cnp'), a.label('cnd')
    a(f'''
    s_mov_b32 s93, {POLL_MAX}
    {Lp}:
    s_waitcnt vmcnt(0)
    v_readfirstlane_b32 s98, {v(vN)}
    s_cmp_lg_u32 s98, 0
    s_cbranch_scc1 {Lq}
    s_sub_u32 s93, s93, 1
    s_cbranch_scc1 {Lq}
    buffer_load_dword {v(vN)}, off, s[4:7], 0 sc1
    s_branch {Lp}
    {Lq}:
    s_xor_b32 s99, s98, {NONCE_X}
    ''')
    lab = a.label('noxid')
    a(f'''
    s_cmp_lg_u32 s24, 0
    s_cbranch_scc1 {lab}
    s_getreg_b32 s44, hwreg(HW_REG_XCC_ID, 0, 4)
    s_lshl_b32 s45, s29, 7
    s_lshl_b32 s46, s30, 3
    s_add_u32 s45, s45, s46
    s_add_u32 s45, s45, {F_X}
    v_mov_b32 {v(U)}, s98
    v_mov_b32 {v(U + 1)}, s44
    s_mov_b64 exec, 1
    buffer_store_dwordx2 {v(U, 2)}, off, s[20:23], s45 sc1
    s_mov_b64 exec, -1
    {lab}:
    ''')
    flag_store(a, 's56', U + 2)
    RC, CSF, vS16 = 132, 148, 131
    pre = lines(f'''
    v_and_b32 {v(t2)}, 15, {v(vL)}
    v_lshrrev_b32 {v(t3)}, 4, {v(vL)}
    s_lshl_b32 s44, s25, 10
    s_add_u32 s44, s44, {ROWC_A}
    v_lshl_add_u32 {v(t0)}, {v(t2)}, 4, s44
    s_lshl_b32 s44, s26, 8
    s_add_u32 s44, s44, {CS_A}
    v_lshl_add_u32 {v(t1)}, {v(t2)}, 2, s44
    v_lshl_add_u32 {v(t1)}, {v(t3)}, 12, {v(t1)}
    v_lshlrev_b32 {v(vS16)}, 4, {v(t2)}
    v_lshl_add_u32 {v(vS16)}, {v(t3)}, 9, {v(vS16)}
    ''')
    pre += [f'ds_read_b128 {v(RC + 4 * rt, 4)}, {v(t0)} offset:{256 * rt}' for rt in range(4)]
    for t in range(4):
        for z in range(2):
            pre.append(f'ds_read2st64_b32 {v(CSF + 4 * t + 2 * z, 2)}, {v(t1)} offset0:{8 * z} offset1:{8 * z + 4}')
        if t < 3:
            pre.append(f'v_add_u32 {v(t1)}, 64, {v(t1)}')
    for c in range(f0 + SPN + 1, 10):
        chunk(c, pre if c == 9 else ())
    a(f'''
    s_lshl_b32 s44, s24, 2
    s_add_u32 s44, s44, {CD_A}
    v_mov_b32 {v(t0)}, s44
    v_mov_b32 {v(t1)}, s98
    s_waitcnt lgkmcnt(0)
    ds_write_b32 {v(t0)}, {v(t1)}
    ''')
    NEG = XF
    HH = 148
    ms = tile(19, 1) + tile(19, 2) + tile(19, 3)
    mv = [f'v_mov_b32 {v(NEG + 4 * rt + r)}, {v(RC + 4 * rt)}' for rt in range(4) for r in range(4)]
    for q, m_ in enumerate(ms):
        a(m_)
        emit(a, mv[(q * 16) // 12:((q + 1) * 16) // 12])
    stamp(a, 12)
    a(f'''
    s_mov_b32 s46, {f2u(C0)}
    s_mov_b32 s47, {f2u(C1)}
    ''')
    for rt in range(4):
        for t in range(4):
            a(m16(ACC + 16 * t + 4 * rt, CSF + 4 * t, NEG + 4 * rt))
    L_q = a.label('qepi')
    L_ed = a.label('epidone')
    a(f'''
    s_lshl_b32 s44, s27, 2
    s_lshl_b32 s45, s25, 1
    s_add_u32 s60, s44, s45
    s_cmp_eq_u32 s57, 1
    s_cbranch_scc1 {L_q}
    s_lshr_b32 s44, s49, 4
    s_lshl_b32 s45, s26, 1
    s_add_u32 s44, s44, s45
    s_mul_i32 s42, s60, 108
    s_add_u32 s42, s42, s44
    s_lshl_b32 s42, s42, 10
    s_add_u32 s43, s42, {108 * 1024}
    ''')
    E1, E2, KC = XF + 16, WF, T
    for rt in range(4):
        TT = E1 + 8 * (rt % 2)
        PP = E2 + 8 * (rt % 2)
        G_ = lambda i: ACC + 32 * (i >> 2) + 4 * rt + (i & 3)
        rho = RC + 4 * rt + 1
        a(f'''
        v_mul_f32 {v(KC)}, s46, {v(rho)}
        v_mul_f32 {v(KC + 1)}, s46, {v(rho)}
        v_mul_f32 {v(KC + 4)}, {v(rho)}, {v(rho)}
        v_mov_b32 {v(RC + 4 * rt + 3)}, {v(RC + 4 * rt + 2)}
        v_mul_f32 {v(KC + 4)}, {v(KC + 4)}, {v(rho)}
        v_mul_f32 {v(KC + 2)}, s47, {v(KC + 4)}
        v_mul_f32 {v(KC + 3)}, s47, {v(KC + 4)}
        ''')
        rc = v(RC + 4 * rt + 2, 2)
        for i in range(0, 8, 2):
            a(f'v_pk_mul_f32 {v(TT + i, 2)}, {v(G_(i), 2)}, {v(G_(i), 2)}')
        for i in range(0, 8, 2):
            a(f'v_pk_fma_f32 {v(TT + i, 2)}, {v(TT + i, 2)}, {v(KC + 2, 2)}, {v(KC, 2)}')
        for i in range(0, 8, 2):
            a(f'v_pk_mul_f32 {v(TT + i, 2)}, {v(TT + i, 2)}, {v(G_(i), 2)}')
        for i in range(8):
            a(f'v_exp_f32 {v(TT + i)}, {v(TT + i)}')
        for i in range(0, 8, 2):
            a(f'v_pk_mul_f32 {v(PP + i, 2)}, {v(G_(i), 2)}, {v(G_(i) + 16, 2)}')
        for i in range(0, 8, 2):
            a(f'v_pk_fma_f32 {v(TT + i, 2)}, {v(TT + i, 2)}, {rc}, {rc}')
        for i in range(8):
            a(f'v_rcp_f32 {v(TT + i)}, {v(TT + i)}')
        a('s_nop 0')
        for i in range(0, 8, 2):
            a(f'v_pk_mul_f32 {v(PP + i, 2)}, {v(PP + i, 2)}, {v(TT + i, 2)}')
        for i in range(4):
            a(f'v_cvt_pk_bf16_f32 {v(HH + 4 * rt + i)}, {v(PP + 2 * i)}, {v(PP + 2 * i + 1)}')
    a(f's_branch {L_ed}')
    a(f'{L_q}:')
    a(f'''
    s_sub_u32 s44, s26, 2
    s_lshl_b32 s44, s44, 6
    s_add_u32 s44, s44, s50
    s_lshl_b32 s44, s44, 6
    s_add_u32 s44, s44, {QF_OFF}
    s_mov_b32 s45, {f2u(QSC)}
    s_mul_i32 s46, s60, 40960
    s_add_u32 s46, s46, s44
    s_add_u32 s47, s46, 40960
    ''')
    for rt in range(4):
        a(f'v_mul_f32 {v(T + rt)}, s45, {v(RC + 4 * rt + 1)}')
    for rt in range(4):
        for pz in range(2):
            O_ = E1 + 4 * ((2 * rt + pz) % 8)
            regs = [ACC + 16 * (2 * pz + (i >> 2)) + 4 * rt + (i & 3) for i in range(8)]
            for r_ in regs:
                a(f'v_mul_f32 {v(r_)}, {v(r_)}, {v(T + rt)}')
            for i in range(4):
                a(f'v_cvt_pk_bf16_f32 {v(O_ + i)}, {v(regs[2 * i])}, {v(regs[2 * i + 1])}')
            a(f'buffer_store_dwordx4 {v(O_, 4)}, {v(vS16)}, s[20:23], s{46 + (rt >> 1)} offen offset:{2048 * pz + 256 * (rt & 1)} sc1')
    a(f'{L_ed}:')
    stamp(a, 13)

    a.c('=========== compute wave: attention ===========')
    al3 = Alloc(4, 168)
    T = al3('T', 16, 4)
    S = al3('S', 32, 4)
    O = al3('O', 16, 4)
    V1 = al3('V1', 4, 4)
    V2 = al3('V2', 4, 4)
    Q1 = al3('Q1', 4, 4)
    K1 = al3('K1', 8, 4)
    K2 = al3('K2', 8, 4)
    P = al3('P', 16, 4)
    Q2 = al3('Q2', 2, 2)
    vK = al3('vK')
    vK2 = al3('vK2')
    a(f'''
    s_lshl_b32 s44, s27, 1
    s_add_u32 s44, s44, s25
    s_lshl_b32 s44, s44, 13
    s_lshl_b32 s45, s28, 2
    s_add_u32 s45, s45, s26
    s_lshl_b32 s45, s45, 7
    s_add_u32 s44, s44, s45
    s_add_u32 s41, s44, {F_QH}
    s_nop 1
    ''')
    for i in range(16):
        a(f'v_mov_b32 {v(O + i)}, 0')
    for i in range(4):
        a(f'v_mov_b32 {v(V1 + i)}, 0')
        a(f'v_mov_b32 {v(V2 + i)}, 0')
    a(f'''
    s_mov_b32 s45, {KVR}
    v_lshl_add_u32 {v(vK)}, {v(vL)}, 4, s45
    v_lshl_add_u32 {v(vK2)}, {v(vL)}, 3, s45
    s_mul_i32 s45, s24, 5
    v_lshlrev_b32 {v(T + 4)}, 4, {v(vR)}
    s_lshr_b32 s44, s30, 2
    s_lshl_b32 s46, s29, 1
    s_add_u32 s44, s44, s46
    s_mul_i32 s44, s44, 40960
    s_and_b32 s46, s30, 3
    s_mul_i32 s46, s46, 10240
    s_add_u32 s44, s44, s46
    s_add_u32 s40, s44, {QF_OFF}
    ''')
    for z, (dq, useh) in enumerate(((0, 1), (2, 1), (4, 0))):
        a(f's_add_u32 s46, s45, {dq}')
        a(f'v_add_u32 {v(T + 5)}, s46, {v(vH)}' if useh else f'v_mov_b32 {v(T + 5)}, s46')
        a(f'''
        v_lshrrev_b32 {v(T + 6)}, 3, {v(T + 5)}
        v_lshl_add_u32 {v(T + 6)}, {v(T + 6)}, 11, {v(T + 4)}
        v_and_b32 {v(T + 7)}, 3, {v(T + 5)}
        v_lshl_add_u32 {v(T + 6)}, {v(T + 7)}, 9, {v(T + 6)}
        v_bfe_u32 {v(T + 5)}, {v(T + 5)}, 2, 1
        v_lshl_add_u32 {v(T + 13 + z)}, {v(T + 5)}, 3, {v(T + 6)}
        ''')
    a('s_setprio 0')
    for i in range(8):
        a(f'v_mov_b32 {v(P + 8 + i)}, 0')
    Lp, Lq = a.label('qp'), a.label('qpd')
    a(f'''
    s_mov_b32 s93, {OPOLL_MAX}
    {Lp}:
    buffer_load_dwordx2 {v(Q1, 2)}, {v(T + 13)}, s[20:23], s40 offen sc1
    buffer_load_dwordx2 {v(Q1 + 2, 2)}, {v(T + 14)}, s[20:23], s40 offen sc1
    buffer_load_dwordx2 {v(Q2, 2)}, {v(T + 15)}, s[20:23], s40 offen sc1
    s_waitcnt vmcnt(0)
    v_max3_u32 {v(T)}, {v(Q1)}, {v(Q1 + 1)}, {v(Q1 + 2)}
    v_max3_u32 {v(T + 1)}, {v(Q1 + 3)}, {v(Q2)}, {v(Q2 + 1)}
    v_max_u32 {v(T)}, {v(T)}, {v(T + 1)}
    v_cmp_eq_u32 vcc, -1, {v(T)}
    s_nop 1
    s_cmp_eq_u64 vcc, 0
    s_cbranch_scc1 {Lq}
    s_sub_u32 s93, s93, 1
    s_cbranch_scc1 {Lq}
    s_sleep {QSLEEP}
    s_branch {Lp}
    {Lq}:
    v_mov_b32 {v(T + 2)}, 0
    v_cndmask_b32 {v(Q2)}, {v(Q2)}, {v(T + 2)}, {HM}
    v_cndmask_b32 {v(Q2 + 1)}, {v(Q2 + 1)}, {v(T + 2)}, {HM}
    ''')
    stamp(a, 14)
    a('s_barrier')
    stamp(a, 15)
    o0, o1, o2 = tile_offs(0), tile_offs(1), tile_offs(2)
    a(f'''
    ds_read_b128 {v(K1, 4)}, {v(vK)} offset:{o0[0]}
    ds_read_b128 {v(K1 + 4, 4)}, {v(vK)} offset:{o1[0]}
    ds_read2st64_b64 {v(K2, 4)}, {v(vK2)} offset0:{o0[1] // 512} offset1:{o0[1] // 512 + 1}
    s_waitcnt lgkmcnt(0)
    ''')

    def set_m(mreg, offset):
        t0, t1, t2, t3 = T + 8, T + 9, T + 10, T + 11
        a(f'v_sub_f32 {v(t0)}, {f2u(-offset) if offset else 0}, {v(mreg)}')
        a(f'''
        v_cvt_pk_bf16_f32 {v(t1)}, {v(t0)}, {v(t0)}
        v_and_b32 {v(t2)}, 0xffff0000, {v(t1)}
        v_sub_f32 {v(t2)}, {v(t0)}, {v(t2)}
        v_cvt_pk_bf16_f32 {v(t1)}, {v(t0)}, {v(t2)}
        v_and_b32 {v(t3)}, 0xffff0000, {v(t1)}
        v_sub_f32 {v(t2)}, {v(t2)}, {v(t3)}
        v_mov_b32 {v(t3)}, 0
        v_cvt_pk_bf16_f32 {v(t2)}, {v(t2)}, {v(t3)}
        v_cndmask_b32 {v(Q2)}, {v(Q2)}, {v(t1)}, {HM}
        v_cndmask_b32 {v(Q2 + 1)}, {v(Q2 + 1)}, {v(t2)}, {HM}
        ''')

    def cross_half_max(reg):
        t = T + 12
        a(f'''
        v_mov_b32 {v(t)}, {v(reg)}
        s_nop 1
        v_permlane32_swap_b32 {v(reg)}, {v(t)}
        s_nop 1
        v_max_f32 {v(reg)}, {v(reg)}, {v(t)}
        ''')

    for t in range(2):
        a(mfma16(S + 16 * t, K1 + 4 * t, Q1))
    if not HEARLY:
        lab = a.label('nohst')
        a(f'''
        s_cmp_eq_u32 s57, 1
        s_cbranch_scc1 {lab}
        ''')
        for k in range(4):
            a(f'buffer_store_dwordx4 {v(HH + 4 * k, 4)}, {v(vS16)}, s[20:23], s{42 + (k >> 1)} offen offset:{256 * (k & 1)} sc1')
        a(f'{lab}:')
    a('s_nop 9')
    for t in range(2):
        a(mfma8(S + 16 * t, K2 + 2 * t, Q2, S + 16 * t))
    a('s_nop 11')
    m = T + 4
    for z in range(2):
        a(f'v_max3_f32 {v(m + z)}, {v(S + 16 * z)}, {v(S + 16 * z + 1)}, {v(S + 16 * z + 2)}')
    for i in range(3, 15, 2):
        for z in range(2):
            a(f'v_max3_f32 {v(m + z)}, {v(m + z)}, {v(S + 16 * z + i)}, {v(S + 16 * z + i + 1)}')
    a(f'v_max3_f32 {v(m)}, {v(m)}, {v(S + 15)}, {v(S + 31)}')
    a(f'v_max_f32 {v(m)}, {v(m)}, {v(m + 1)}')
    cross_half_max(m)
    set_m(m, M_OFFSET)
    a('s_nop 1')
    a(mfma16(S, K1, Q1))
    a(f'''
    ds_read_b128 {v(K1, 4)}, {v(vK)} offset:{o2[0]}
    s_mov_b32 s34, 4
    s_nop 7
    ''')
    a(mfma8(S, K2, Q2, S))
    a('s_nop 9')
    stamp(a, 16)

    def toff(tt):
        tt &= 15
        o = tile_offs(tt & 3)
        return [x + (tt >> 2) * CH_BYTES for x in o]

    def k2read(reg, tt):
        o = toff(tt)[1]
        assert o % 512 == 0
        return f'ds_read2st64_b64 {v(reg, 4)}, {v(vK2)} offset0:{o // 512} offset1:{o // 512 + 1}'

    L_hf, L_hb = a.label('hflag'), a.label('hback')

    def slot(t):
        Sx, Sn = S + 16 * (t & 1), S + 16 * ((t + 1) & 1)
        Px, Pp = P + 8 * (t & 1), P + 8 * ((t + 1) & 1)
        kt = t + 1
        kb = kt & 1
        k2 = K2 + 4 * ((kt >> 1) & 1) + 2 * (kt & 1)
        m_ = [mfma16(Sn, K1 + 4 * kb, Q1), mfma16(O, V1, Pp, O), mfma8(Sn, k2, Q2, Sn), mfma16(O, V2, Pp + 4, O)]
        after = [[], [], [], []]
        if t & 3 == 1:
            after[0] = ['s_barrier']
        after[0] += [f'ds_read_b128 {v(K1 + 4 * kb, 4)}, {v(vK)} offset:{toff(t + 3)[0]}', 's_waitcnt lgkmcnt(2)']
        after[1] = [f'ds_read_b128 {v(V1, 4)}, {v(vK)} offset:{toff(t)[2]}']
        if t & 1:
            after[1] += [k2read(K2 + 4 * (((t + 3) >> 1) & 1), t + 3)]
        after[2] += [f's_waitcnt lgkmcnt({3 if t & 1 else 2})']
        after[3] = [f'ds_read_b128 {v(V2, 4)}, {v(vK)} offset:{toff(t)[3]}']
        if t == 15:
            after[3] += ['s_sub_u32 s34, s34, 1']
        if t == HFLAG_T:
            after[3] += ['s_cmp_eq_u32 s34, 4', f's_cbranch_scc1 {L_hf}', f'{L_hb}:']
        val = []
        for i in range(8):
            val.append(f'v_exp_f32 {v(Sx + 2 * i)}, {v(Sx + 2 * i)}')
            val.append(f'v_exp_f32 {v(Sx + 2 * i + 1)}, {v(Sx + 2 * i + 1)}')
            if i > 0:
                val.append(f'v_cvt_pk_bf16_f32 {v(Px + i - 1)}, {v(Sx + 2 * i - 2)}, {v(Sx + 2 * i - 1)}')
        val.append(f'v_cvt_pk_bf16_f32 {v(Px + 7)}, {v(Sx + 14)}, {v(Sx + 15)}')
        groups = [val[0:5], val[5:11], val[11:17], val[17:24]]
        for g in range(4):
            a(m_[g])
            emit(a, after[g])
            emit(a, groups[g])

    a(k2read(K2 + 4, 2))
    L_loop = a.label('att')
    a('.p2align 6')
    a(f'{L_loop}:')
    for t in range(16):
        slot(t)
    a(f'''
    s_cmp_lg_u32 s34, 0
    s_cbranch_scc1 {L_loop}
    s_waitcnt lgkmcnt(0)
    ''')
    a(mfma16(O, V1, P + 8, O))
    a(mfma16(O, V2, P + 12, O))
    a(f'''
    v_lshlrev_b32 {v(T + 2)}, 4, {v(vL)}
    v_lshlrev_b32 {v(T + 3)}, 3, {v(vL)}
    v_mov_b32 {v(T + 9)}, 0x7f000000
    v_cndmask_b32 {v(T + 3)}, {v(T + 3)}, {v(T + 9)}, {HM}
    v_lshlrev_b32 {v(T + 4)}, 3, {v(vR)}
    v_lshl_add_u32 {v(T + 4)}, {v(vH)}, 9, {v(T + 4)}
    v_mov_b32 {v(T + 5)}, {SX_A}
    ds_read_b32 {v(T + 5)}, {v(T + 5)}
    s_nop 4
    ''')
    stamp(a, 17)
    L_fb = a.label('fb')
    L_out = a.label('aout')
    a(f'''
    s_mov_b32 s44, {f2u(2.0 ** 120)}
    s_mov_b32 s45, {f2u(2.0 ** -103)}
    v_add_f32 {v(T)}, |{v(O)}|, |{v(O + 1)}|
    ''')
    for i in range(2, 12):
        a(f'v_add_f32 {v(T)}, {v(T)}, |{v(O + i)}|')
    a(f'''
    v_add_f32 {v(T + 1)}, {v(T)}, {v(O + 12)}
    s_waitcnt lgkmcnt(0)
    v_readfirstlane_b32 s38, {v(T + 5)}
    v_cmp_le_f32 s[46:47], s45, {v(T)}
    v_cmp_gt_f32 s[48:49], s44, {v(T + 1)}
    s_nop 1
    s_and_b64 s[46:47], s[46:47], s[48:49]
    s_cmp_eq_u64 s[46:47], -1
    s_cbranch_scc0 {L_fb}
    {L_out}:
    v_rcp_f32 {v(T)}, {v(O + 12)}
    v_rcp_f32 {v(T + 1)}, {v(O + 12)}
    s_nop 0
    ''')
    for i in range(0, 12, 2):
        a(f'v_pk_mul_f32 {v(O + i, 2)}, {v(O + i, 2)}, {v(T, 2)}')
    for i in range(6):
        a(f'v_cvt_pk_bf16_f32 {v(P + i)}, {v(O + 2 * i)}, {v(O + 2 * i + 1)}')
    L_pl, L_st = a.label('oplain'), a.label('ostored')
    a(f'''
    s_cmp_eq_u32 s38, s98
    s_cbranch_scc1 {L_pl}
    buffer_store_dwordx4 {v(P, 4)}, {v(T + 2)}, s[20:23], s36 offen sc1
    buffer_store_dwordx2 {v(P + 4, 2)}, {v(T + 3)}, s[20:23], s37 offen sc1
    s_branch {L_st}
    {L_pl}:
    buffer_store_dwordx4 {v(P, 4)}, {v(T + 2)}, s[20:23], s36 offen
    buffer_store_dwordx2 {v(P + 4, 2)}, {v(T + 3)}, s[20:23], s37 offen
    {L_st}:
    ''')
    stamp(a, 18)
    g2_ids(a)
    OFR = 120
    a(f'''
    s_cmp_eq_u32 s25, 1
    s_cselect_b32 s44, s60, s59
    s_mul_i32 s44, s44, 40960
    s_add_u32 s44, s44, {OF_OFF}
    s_lshl_b32 s45, s26, 13
    s_add_u32 s38, s44, s45
    s_add_u32 s38, s38, 3072
    s_add_u32 s39, s38, 4096
    s_lshl_b32 s45, s26, 11
    s_add_u32 s40, s44, s45
    s_add_u32 s40, s40, 32768
    s_mul_i32 s44, s26, 14336
    s_lshl_b32 s45, s25, 10
    s_add_u32 s44, s44, s45
    s_add_u32 s44, s44, {OL_A}
    v_add_u32 {v(T + 5)}, s44, {v(T + 2)}
    s_barrier
    ''')
    Lp, Lq = a.label('cop'), a.label('copd')
    a(f's_mov_b32 s93, {OPOLL_MAX}\n{Lp}:')
    for q in range(5):
        a(f'buffer_load_dwordx4 {v(OFR + 4 * q, 4)}, {v(T + 2)}, s[20:23], {"s38" if q < 4 else "s39"} offen offset:{1024 * (q & 3)} sc1')
    for q in range(4):
        a(f'buffer_load_dwordx2 {v(OFR + 20 + 2 * q, 2)}, {v(T + 4)}, s[20:23], s40 offen offset:{1024 * (q >> 1) + 256 * (q & 1)} sc1')
    a('s_waitcnt vmcnt(0)')
    a(f'v_max3_u32 {v(T)}, {v(OFR)}, {v(OFR + 1)}, {v(OFR + 2)}')
    for i in range(3, 27, 2):
        a(f'v_max3_u32 {v(T)}, {v(T)}, {v(OFR + i)}, {v(OFR + i + 1)}')
    a(f'''
    v_max_u32 {v(T)}, {v(T)}, {v(OFR + 27)}
    v_cmp_eq_u32 vcc, -1, {v(T)}
    s_nop 1
    s_cmp_eq_u64 vcc, 0
    s_cbranch_scc1 {Lq}
    s_sub_u32 s93, s93, 1
    s_cbranch_scc1 {Lq}
    s_sleep {OSLEEP}
    s_branch {Lp}
    {Lq}:
    ''')
    for q in range(7):
        a(f'ds_write_b128 {v(T + 5)}, {v(OFR + 4 * q, 4)} offset:{2048 * q}')
    stamp(a, 21)
    g2_out(a, S, vL, 's24', 0)
    a('s_waitcnt lgkmcnt(0)')
    a('s_barrier')
    a('s_barrier')
    stamp(a, 19)
    g2_out(a, S, vL, 's24', 1)
    if asmlib.STAMPS:
        a('s_waitcnt vmcnt(0)')
    stamp(a, 20)
    diag_end(a)
    a(f's_branch {L_end}')

    a(f'{L_hf}:')
    a('s_waitcnt vmcnt(0)')
    flag_store(a, 's41', T + 2)
    a(f's_branch {L_hb}')
    a(f'{L_fb}:')
    L1 = a.label('fb1')
    L2 = a.label('fb2')
    a(f'''
    v_lshlrev_b32 {v(T + 13)}, 4, {v(vL)}
    v_lshlrev_b32 {v(T + 7)}, 3, {v(vL)}
    v_mov_b32 {v(T + 14)}, 0
    v_mov_b32 {v(T + 15)}, 0xff800000
    v_cndmask_b32 {v(Q2)}, {v(Q2)}, {v(T + 14)}, {HM}
    v_cndmask_b32 {v(Q2 + 1)}, {v(Q2 + 1)}, {v(T + 14)}, {HM}
    s_mov_b32 s77, {KV_OFF}
    s_mov_b32 s34, 32
    {L1}:
    buffer_load_dwordx4 {v(K1, 4)}, {v(T + 13)}, s[20:23], s77 offen sc1
    buffer_load_dwordx4 {v(K1 + 4, 4)}, {v(T + 13)}, s[20:23], s77 offen offset:1024 sc1
    buffer_load_dwordx2 {v(K2, 2)}, {v(T + 7)}, s[20:23], s77 offen offset:2048 sc1
    buffer_load_dwordx2 {v(K2 + 2, 2)}, {v(T + 7)}, s[20:23], s77 offen offset:2560 sc1
    s_waitcnt vmcnt(0)
    ''')
    for t in range(2):
        a(mfma16(S + 16 * t, K1 + 4 * t, Q1))
    a('s_nop 9')
    for t in range(2):
        a(mfma8(S + 16 * t, K2 + 2 * t, Q2, S + 16 * t))
    a('s_nop 15')
    for i in range(0, 32, 2):
        a(f'v_max3_f32 {v(T + 15)}, {v(T + 15)}, {v(S + i)}, {v(S + i + 1)}')
    a(f'''
    s_add_u32 s77, s77, 7168
    s_sub_u32 s34, s34, 1
    s_cmp_lg_u32 s34, 0
    s_cbranch_scc1 {L1}
    ''')
    cross_half_max(T + 15)
    set_m(T + 15, 0.0)
    for i in range(16):
        a(f'v_mov_b32 {v(O + i)}, 0')
    a(f'''
    s_mov_b32 s77, {KV_OFF}
    s_mov_b32 s34, 64
    {L2}:
    s_and_b32 s78, s34, 1
    s_lshl_b32 s79, s78, 10
    s_add_u32 s79, s79, s77
    s_lshl_b32 s80, s78, 9
    s_add_u32 s80, s80, s77
    s_lshl_b32 s81, s78, 11
    s_add_u32 s81, s81, s77
    s_add_u32 s81, s81, 3072
    buffer_load_dwordx4 {v(K1, 4)}, {v(T + 13)}, s[20:23], s79 offen sc1
    buffer_load_dwordx2 {v(K2, 2)}, {v(T + 7)}, s[20:23], s80 offen offset:2048 sc1
    buffer_load_dwordx4 {v(V1, 4)}, {v(T + 13)}, s[20:23], s81 offen sc1
    buffer_load_dwordx4 {v(V2, 4)}, {v(T + 13)}, s[20:23], s81 offen offset:1024 sc1
    s_waitcnt vmcnt(0)
    {mfma16(S, K1, Q1)}
    s_nop 10
    {mfma8(S, K2, Q2, S)}
    s_nop 15
    ''')
    for i in range(16):
        a(f'v_exp_f32 {v(S + i)}, {v(S + i)}')
    a('s_nop 0')
    for i in range(8):
        a(f'v_cvt_pk_bf16_f32 {v(P + i)}, {v(S + 2 * i)}, {v(S + 2 * i + 1)}')
    a(f'''
    s_nop 1
    {mfma16(O, V1, P, O)}
    {mfma16(O, V2, P + 4, O)}
    s_mul_i32 s78, s78, 7168
    s_add_u32 s77, s77, s78
    s_sub_u32 s34, s34, 1
    s_cmp_lg_u32 s34, 0
    s_cbranch_scc1 {L2}
    s_nop 15
    s_branch {L_out}
    ''')


def g2_ids(a):
    a('''
    s_lshr_b32 s57, s30, 1
    s_and_b32 s58, s30, 1
    s_lshl_b32 s44, s29, 1
    s_add_u32 s59, s44, s58
    s_xor_b32 s60, s59, 1
    s_mul_i32 s44, s57, 320
    s_lshl_b32 s45, s58, 7
    s_add_u32 s61, s44, s45
    ''')


def g2_out(a, T, vL, wsg, part):
    L_skip = a.label('g2o')
    a(f'''
    s_cmp_ge_u32 {wsg}, 10
    s_cbranch_scc1 {L_skip}
    ''')
    if part == 0:
        a(f'''
        s_lshr_b32 s45, {wsg}, 1
        s_and_b32 s46, {wsg}, 1
        s_lshl_b32 s46, s46, 4
        v_lshrrev_b32 {v(T)}, 2, {v(vL)}
        v_add_u32 {v(T)}, s46, {v(T)}
        v_and_b32 {v(T + 1)}, 3, {v(vL)}
        s_and_b32 s47, s45, 1
        s_cmp_eq_u32 s47, 1
        s_cselect_b32 s47, s60, s59
        s_mul_i32 s47, s47, {32 * 1280}
        s_lshr_b32 s48, s45, 1
        s_add_u32 s49, s48, s58
        s_lshl_b32 s49, s49, 6
        s_lshl_b32 s50, s58, 7
        s_sub_u32 s50, 128, s50
        s_cmp_eq_u32 s48, 2
        s_cselect_b32 s49, s50, s49
        s_add_u32 s47, s47, s49
        s_add_u32 s31, s47, s61
        v_mul_u32_u24 {v(T + 6)}, 1280, {v(T)}
        v_lshl_add_u32 {v(T + 6)}, {v(T + 1)}, 4, {v(T + 6)}
        buffer_load_dwordx4 {v(T + 2, 4)}, {v(T + 6)}, s[8:11], s31 offen
        v_lshlrev_b32 {v(T + 1)}, 1, {v(T + 1)}
        v_and_b32 {v(T + 7)}, 7, {v(T)}
        v_xor_b32 {v(T + 1)}, {v(T + 1)}, {v(T + 7)}
        v_lshlrev_b32 {v(T)}, 7, {v(T)}
        v_lshl_add_u32 {v(T)}, {v(T + 1)}, 4, {v(T)}
        s_lshl_b32 s47, s45, 12
        v_add_u32 {v(T)}, s47, {v(T)}
        v_xor_b32 {v(T + 1)}, 16, {v(T)}
        ''')
    else:
        for w in range(4):
            if w == 2:
                a(f'v_add_u32 {v(T)}, {WO_HI}, {v(T)}\nv_add_u32 {v(T + 1)}, {WO_HI}, {v(T + 1)}')
            a(f'ds_read_b128 {v(T + 8 + 8 * w, 4)}, {v(T)} offset:{21504 * (w & 1)}')
            a(f'ds_read_b128 {v(T + 12 + 8 * w, 4)}, {v(T + 1)} offset:{21504 * (w & 1)}')
        a('s_waitcnt vmcnt(0)')
        for i in range(4):
            a(f'''
            v_lshlrev_b32 {v(T + 40 + 2 * i)}, 16, {v(T + 2 + i)}
            v_and_b32 {v(T + 41 + 2 * i)}, 0xffff0000, {v(T + 2 + i)}
            ''')
        a('s_waitcnt lgkmcnt(4)')
        for i in range(0, 8, 2):
            a(f'v_pk_add_f32 {v(T + 8 + i, 2)}, {v(T + 8 + i, 2)}, {v(T + 16 + i, 2)}')
        for i in range(0, 8, 2):
            a(f'v_pk_add_f32 {v(T + 8 + i, 2)}, {v(T + 8 + i, 2)}, {v(T + 40 + i, 2)}')
        a('s_waitcnt lgkmcnt(0)')
        for i in range(0, 8, 2):
            a(f'v_pk_add_f32 {v(T + 24 + i, 2)}, {v(T + 24 + i, 2)}, {v(T + 32 + i, 2)}')
        for i in range(0, 8, 2):
            a(f'v_pk_add_f32 {v(T + 8 + i, 2)}, {v(T + 8 + i, 2)}, {v(T + 24 + i, 2)}')
        for i in range(4):
            a(f'v_cvt_pk_bf16_f32 {v(T + 16 + i)}, {v(T + 8 + 2 * i)}, {v(T + 9 + 2 * i)}')
        a(f'buffer_store_dwordx4 {v(T + 16, 4)}, {v(T + 6)}, s[64:67], s31 offen{OUTSC}')
    a(f'{L_skip}:')


def aux_wave(a, vL, vH, vR, L_end, WDP, a_start):
    al = Alloc(4, 168)
    T = al('T', 16, 4)
    vXD = al('xd', 2)
    vWD = al('wd', 2)
    vKD = al('kd')
    vKX = al('kx')
    vKW = al('kw')
    XR = al('xr', 10, 2)
    CR = al('cr', 20, 2)
    PF = al('pf', 2)
    AKV = al('akv', 16, 4)
    KXF = al('kxf', 4, 4)
    KWF = al('kwf', 4, 4)
    FX = al('fx', 16, 4)
    RD = al('rd', 48, 4)
    JA = al('ja', 2, 2)
    JS = al('js')
    t0, t1, t2, t3, t4, t5 = T, T + 1, T + 2, T + 3, T + 4, T + 5
    vm = VM()
    a.c('=========== aux wave: phase 1 ===========')
    assert (vXD, vWD, vKD) == (20, 22, 24)

    def dma_group(c, kvonly=False):
        st = c % 3
        lab = a.label('nokv')
        a(f'''
        s_and_b32 s35, s100, {7 if c < 8 else 1}
        s_xor_b32 s35, s35, {c}
        s_mul_i32 s33, s32, s35
        s_mul_i32 s34, s35, 2560
        s_lshl_b32 s35, s35, 7
        s_cmp_eq_u32 s40, 0
        s_cbranch_scc1 {lab}
        s_add_u32 m0, s38, {st * 3072}
        s_nop 0
        buffer_load_dwordx4 {v(vKD)}, s[16:19], s34 offen lds
        {lab}:
        ''')
        vm.add(f'c{c}', 1, optional=True)
        if kvonly or (NODMA and c > 2):
            vm.add(f'c{c}', 1, optional=True)
            return
        for e in range(4):
            a(f'''
            s_add_u32 m0, s36, {LDS_X + st * 16384 + e * 1024}
            s_add_u32 s34, s35, {(e >> 1) * 16 * 1280}
            buffer_load_dwordx4 {v(vXD + (e & 1))}, s[8:11], s34 offen lds
            ''')
        for e in range(8):
            a(f'''
            s_add_u32 m0, s37, {st * 8192 + e * 1024}
            s_nop 0
            buffer_load_dwordx4 {v(vWD + (e & 1))}, s[12:15], s33 offen lds
            ''')
            if e < 7:
                a('s_add_u32 s33, s33, s31')
        vm.add(f'c{c}', 12)

    vm.add('c0', 4)
    vm.add('c0', 1, optional=True)
    if not LATE1:
        vm.add('c1', 4)
        vm.add('c1', 1, optional=True)

    def jit(c):
        if not JIT or c > 9:
            return
        lab = a.label('nojit')
        a(f'''
        s_cmp_lg_u32 s26, 3
        s_cbranch_scc1 {lab}
        global_load_dword v165, {v(JA, 2)}, off
        v_add_co_u32 {v(JA)}, vcc, {v(JA)}, {v(JS)}
        s_nop 1
        v_addc_co_u32 {v(JA + 1)}, vcc, 0, {v(JA + 1)}, vcc
        {lab}:
        ''')
        vm.add('jit', 1, optional=True)

    if JIT:
        a(f'v_mov_b32 {v(JA)}, s68\nv_mov_b32 {v(JA + 1)}, s69')
        lab = a.label('nojs')
        a(f'''
        s_cmp_lg_u32 s26, 3
        s_cbranch_scc1 {lab}
        s_lshr_b32 s44, s2, 3
        s_and_b32 s45, s44, 7
        s_lshr_b32 s46, s44, 3
        s_lshl_b32 s46, s46, 5
        s_lshl_b32 s47, s27, 7
        s_add_u32 s46, s46, s47
        v_add_u32 {v(t0)}, s46, {v(vR)}
        v_mul_u32_u24 {v(t0)}, 1280, {v(t0)}
        v_add_u32 {v(t0)}, {128 * JIT}, {v(t0)}
        v_bfe_u32 {v(t1)}, {v(vL)}, 3, 1
        v_bfe_u32 {v(t2)}, {v(vL)}, 4, 1
        v_and_b32 {v(t3)}, s48, {v(t1)}
        v_cmp_eq_u32 s[58:59], 1, {v(t3)}
        v_cmp_eq_u32 s[60:61], 1, {v(t2)}
        v_mov_b32 {v(t4)}, 3456
        v_mov_b32 {v(t5)}, 1280
        v_cndmask_b32 {v(t4)}, {v(t4)}, {v(t5)}, s[58:59]
        s_xor_b32 s44, s48, 1
        v_and_b32 {v(t5)}, s44, {v(t1)}
        v_lshlrev_b32 {v(t5)}, 6, {v(t5)}
        v_add_u32 {v(t5)}, s49, {v(t5)}
        v_lshlrev_b32 {v(t3)}, 6, {v(t2)}
        v_add_u32 {v(t3)}, s50, {v(t3)}
        v_cndmask_b32 {v(t5)}, {v(t5)}, {v(t3)}, s[58:59]
        s_lshl_b32 s45, s45, 3
        s_add_u32 s45, s45, {64 * JIT}
        v_and_b32 {v(t3)}, 7, {v(vL)}
        v_add_u32 {v(t3)}, s45, {v(t3)}
        v_mul_lo_u32 {v(t3)}, {v(t3)}, {v(t4)}
        v_lshl_add_u32 {v(t3)}, {v(t5)}, 1, {v(t3)}
        v_cndmask_b32 {v(t0)}, {v(t0)}, {v(t3)}, {HM}
        v_lshlrev_b32 {v(t4)}, 6, {v(t4)}
        v_mov_b32 {v(t5)}, 128
        v_cndmask_b32 {v(JS)}, {v(t5)}, {v(t4)}, {HM}
        ''')
        for z in range(2):
            a(f'''
            v_mov_b32 {v(t1)}, s{80 + z}
            v_mov_b32 {v(t2)}, s{82 + z}
            v_cndmask_b32 {v(t1)}, {v(t1)}, {v(t2)}, s[60:61]
            v_mov_b32 {v(t2)}, s{70 + z}
            v_cndmask_b32 {v(t1)}, {v(t1)}, {v(t2)}, s[58:59]
            v_mov_b32 {v(t2)}, s{68 + z}
            v_cndmask_b32 {v(JA + z)}, {v(t2)}, {v(t1)}, {HM}
            ''')
        a(f'''
        v_add_co_u32 {v(JA)}, vcc, {v(JA)}, {v(t0)}
        s_nop 1
        v_addc_co_u32 {v(JA + 1)}, vcc, 0, {v(JA + 1)}, vcc
        {lab}:
        ''')
        for c in range(JIT, JITD):
            jit(c)
    srd(a, 4, 76, 256)
    lab = a.label('nononce')
    a(f'''
    s_or_b32 s44, s2, s26
    s_cmp_lg_u32 s44, 0
    s_cbranch_scc1 {lab}
    s_memrealtime s[44:45]
    s_waitcnt lgkmcnt(0)
    s_or_b32 s44, s44, 1
    v_mov_b32 {v(t0)}, s44
    s_mov_b64 exec, 1
    buffer_store_dword {v(t0)}, off, s[4:7], 0 sc1
    s_mov_b64 exec, -1
    {lab}:
    ''')
    vm.add('nonce', 1, optional=True)
    a(f'''
    s_and_b32 s56, s28, 3
    v_lshrrev_b32 {v(t0)}, 1, {v(vR)}
    v_and_b32 {v(t0)}, 7, {v(t0)}
    v_xor_b32 {v(t0)}, {v(t0)}, {v(vH)}
    s_lshl_b32 s44, s26, 1
    v_xor_b32 {v(t0)}, s44, {v(t0)}
    v_lshlrev_b32 {v(t3)}, 7, {v(vR)}
    v_lshl_add_u32 {v(t0)}, {v(t0)}, 4, {v(t3)}
    s_lshl_b32 s44, s56, 12
    v_add_u32 {v(vKX)}, s44, {v(t0)}
    v_bfe_u32 {v(t0)}, {v(vL)}, 2, 2
    v_lshl_add_u32 {v(t0)}, {v(vH)}, 3, {v(t0)}
    v_mul_u32_u24 {v(t0)}, 40, {v(t0)}
    v_bfe_u32 {v(t3)}, {v(vL)}, 4, 1
    v_and_b32 {v(t4)}, 3, {v(vL)}
    v_lshl_add_u32 {v(t3)}, {v(t3)}, 2, {v(t4)}
    v_min_u32 {v(t3)}, 4, {v(t3)}
    v_lshl_add_u32 {v(t0)}, {v(t3)}, 3, {v(t0)}
    s_mul_i32 s44, s26, 640
    s_add_u32 s44, s44, {LDS_KV}
    v_add_u32 {v(vKW)}, s44, {v(t0)}
    ''')
    for i in range(16):
        a(f'v_mov_b32 {v(AKV + i)}, 0')

    if LATE1:
        a_start(1)
        vm.add('c1', 4)
        vm.add('c1', 1, optional=True)

    def colsum(src_tag_wait, store_code):
        a(f's_waitcnt vmcnt({src_tag_wait})')
        a(f'''
        v_lshlrev_b32 {v(t0)}, 16, {v(CR)}
        v_and_b32 {v(t1)}, 0xffff0000, {v(CR)}
        ''')
        for t in range(1, 20):
            a(f'''
            v_lshlrev_b32 {v(t2)}, 16, {v(CR + t)}
            v_and_b32 {v(t3)}, 0xffff0000, {v(CR + t)}
            v_add_f32 {v(t0)}, {v(t0)}, {v(t2)}
            v_add_f32 {v(t1)}, {v(t1)}, {v(t3)}
            ''')
        a(f'''
        s_nop 1
        v_permlane32_swap_b32 {v(t0)}, {v(t1)}
        s_nop 1
        v_add_f32 {v(t0)}, {v(t0)}, {v(t1)}
        v_cvt_pk_bf16_f32 {v(t1)}, {v(t0)}, {v(t0)}
        v_and_b32 {v(t1)}, 0xffff0000, {v(t1)}
        v_sub_f32 {v(t1)}, {v(t0)}, {v(t1)}
        v_cvt_pk_bf16_f32 {v(t0)}, {v(t0)}, {v(t1)}
        ''')
        store_code()

    a('''
    s_lshl_b32 s41, s27, 10
    s_and_b32 s44, s28, 11
    s_cmp_eq_u32 s44, 0
    s_cselect_b32 s42, 1, 0
    s_cmp_eq_u32 s26, 3
    s_cselect_b32 s42, s42, 0
    ''')

    def kv_step(c, part):
        st = c % 3
        lab = a.label('kvs')
        a(f's_cmp_eq_u32 s54, 0\ns_cbranch_scc1 {lab}')
        if part == 0:
            a(f'''
            ds_read_b128 {v(KXF, 4)}, {v(vKX)} offset:{LDS_X + st * 16384}
            ds_read_b64_tr_b16 {v(KWF, 2)}, {v(vKW)} offset:{st * 3072}
            ds_read_b64_tr_b16 {v(KWF + 2, 2)}, {v(vKW)} offset:{st * 3072 + 160}
            ''')
        else:
            a('s_waitcnt lgkmcnt(0)')
            a(mfma16(AKV, KWF, KXF, AKV))
        a(f'{lab}:')

    for c in range(10):
        a.c(f'aux chunk {c}')
        if c == 0:
            stamp(a, 22)
        if c <= 8:
            a(f's_waitcnt vmcnt({vm.wait(f"c{c}") if c != 5 else min(vm.wait("c5"), vm.wait("st"), vm.wait("nl"))})')
        else:
            a('s_waitcnt vmcnt(0)')
        a('s_barrier')
        if not FEWST or c in (0, 1, 2, 9):
            stamp(a, 1 + c)
        if asmlib.STAMPS:
            vm.add('stamp', 1, optional=True)
        if c == 3:
            a(f'buffer_load_dword {v(PF)}, off, s[4:7], 0 sc1')
            vm.add('nl', 1)
        kv_step(c, 0)
        if c == P3C:
            lab = a.label('nop3')
            a(f'''
            v_lshlrev_b32 {v(T + 8)}, 3, {v(vL)}
            v_lshlrev_b32 {v(T + 10)}, 7, {v(vL)}
            v_and_b32 {v(T + 11)}, 0x780, {v(T + 10)}
            s_cmp_lg_u32 s26, 3
            s_cbranch_scc1 {lab}
            s_lshl_b32 s44, s27, 13
            s_add_u32 s44, s44, {F_ST}
            s_lshl_b32 s45, s28, 13
            s_add_u32 s45, s45, {F_CS}
            s_and_b32 s58, s28, 4
            s_lshl_b32 s58, s58, 9
            s_add_u32 s58, s58, {F_KC}
            ''')
            a(f'''
            s_mov_b32 s60, s44
            s_mov_b32 s61, s45
            s_lshr_b32 s59, s29, 1
            s_lshl_b32 s59, s59, 13
            s_add_u32 s59, s59, {F_ST}
            buffer_load_dwordx2 {v(FX + 6, 2)}, {v(T + 10)}, s[20:23], s59 offen sc1
            buffer_load_dwordx2 {v(FX, 2)}, {v(T + 10)}, s[20:23], s60 offen sc1
            buffer_load_dwordx2 {v(FX + 2, 2)}, {v(T + 10)}, s[20:23], s61 offen sc1
            buffer_load_dwordx2 {v(FX + 4, 2)}, {v(T + 11)}, s[20:23], s58 offen sc1
            {lab}:
            ''')
        jit(c + JITD)
        if (1 if EARLY2 else 0) <= c and c + 2 < 10:
            dma_group(c + 2)
        kv_step(c, 1)
        if c == P3C:
            lab = a.label('nop3b')
            a(f'''
            s_cmp_lg_u32 s26, 3
            s_cbranch_scc1 {lab}
            s_waitcnt vmcnt(12)
            v_cmp_eq_u64 vcc, s[98:99], {v(FX, 2)}
            v_cmp_eq_u64 s[46:47], s[98:99], {v(FX + 2, 2)}
            v_cmp_eq_u64 s[44:45], s[98:99], {v(FX + 4, 2)}
            v_cmp_eq_u64 s[48:49], s[98:99], {v(FX + 6, 2)}
            s_nop 1
            s_and_b64 vcc, vcc, s[46:47]
            s_and_b64 vcc, vcc, s[44:45]
            s_and_b64 vcc, vcc, s[48:49]
            s_cmp_eq_u64 vcc, -1
            s_cbranch_scc1 {lab}
            ''')
            polln(a, FX, [T + 10, T + 10, T + 11], [('s60', None), ('s61', None), ('s58', None)], 4)
            polln(a, FX, [T + 10], [('s59', None)], 4)
            a(f'{lab}:')
        if c == 2:
            lab = a.label('nokvcs')
            a(f'''
            s_cmp_eq_u32 s42, 0
            s_cbranch_scc1 {lab}
            s_mul_i32 s44, s27, 40
            v_add_u32 {v(t1)}, s44, {v(vH)}
            v_mul_u32_u24 {v(t2)}, 40, {v(t1)}
            v_lshl_add_u32 {v(t2)}, {v(vR)}, 2, {v(t2)}
            ''')
            for t in range(20):
                a(f'buffer_load_dword {v(CR + t)}, {v(t2)}, s[16:19], 0 offen offset:{80 * t}')
            a(f'{lab}:')
            vm.add('kcr', 20, optional=True)
        if c == 3:
            lab = a.label('nokvcs2')
            a(f's_cmp_eq_u32 s42, 0\ns_cbranch_scc1 {lab}')

            def kcs_store():
                a(f'''
                v_lshl_add_u32 {v(t1)}, {v(vR)}, 1, {v(vH)}
                v_lshlrev_b32 {v(t2)}, 2, {v(t1)}
                v_mov_b32 {v(t3)}, 0x7f000000
                v_cmp_gt_u32 vcc, 32, {v(t1)}
                s_lshl_b32 s44, s28, 9
                s_lshl_b32 s45, s27, 7
                s_add_u32 s44, s44, s45
                s_add_u32 s44, s44, {CSKVW}
                v_cndmask_b32 {v(t2)}, {v(t3)}, {v(t2)}, vcc
                buffer_store_dword {v(t0)}, {v(t2)}, s[20:23], s44 offen sc1
                ''')
            colsum(vm.wait('kcr'), kcs_store)
            a(f'{lab}:')
            vm.add('st', 1, optional=True)
        if c == 5:
            Lp = a.label('np')
            Lq = a.label('npd')
            Lr = a.label('nokcf')
            a(f'''
            s_mov_b32 s93, {POLL_MAX}
            {Lp}:
            v_readfirstlane_b32 s98, {v(PF)}
            s_cmp_lg_u32 s98, 0
            s_cbranch_scc1 {Lq}
            s_sub_u32 s93, s93, 1
            s_cbranch_scc1 {Lq}
            buffer_load_dword {v(PF)}, off, s[4:7], 0 sc1
            s_waitcnt vmcnt(0)
            s_branch {Lp}
            {Lq}:
            s_xor_b32 s99, s98, {NONCE_X}
            s_lshl_b32 s44, s28, 9
            s_lshl_b32 s45, s27, 7
            s_add_u32 s44, s44, s45
            s_add_u32 s44, s44, {F_KC}
            s_cmp_eq_u32 s42, 0
            s_cbranch_scc1 {Lr}
            ''')
            flag_store(a, 's44', T + 2)
            a(f'{Lr}:')
            vm.add('fl', 1, optional=True)
        if P1PF and c in (6, 7):
            if c == 6:
                srd(a, 4, WDP, 2211840)
                a(f'''
                s_lshr_b32 s44, s2, 6
                s_mul_i32 s44, s44, {432 * 1280}
                s_bfe_u32 s45, s2, 0x30003
                s_mul_i32 s45, s45, {180 * 128}
                s_add_u32 s44, s44, s45
                s_mul_i32 s45, s26, {45 * 128}
                s_add_u32 s57, s44, s45
                v_lshlrev_b32 {v(PF + 1)}, 7, {v(vL)}
                ''')
            for z in range(2 if c == 6 else 1):
                a(f'''
                s_mov_b32 exec_hi, {(1 << 13) - 1}
                buffer_load_dword v165, {v(PF + 1)}, s[4:7], s57 offen
                s_mov_b32 exec_hi, -1
                s_add_u32 s57, s57, {144 * 1280}
                ''')
                vm.add('pf', 1)
        if c == 8:
            a(f'''
            v_lshlrev_b32 {v(T + 9)}, 4, {v(vL)}
            s_lshl_b32 s44, s28, 14
            s_lshl_b32 s45, s26, 12
            s_add_u32 s44, s44, s45
            s_add_u32 s44, s44, {CSW}
            ''')
            for e in range(4):
                a(f'''
                s_add_u32 m0, s45, {CS_A + 1024 * e}
                s_nop 0
                buffer_load_dwordx4 {v(T + 9)}, s[20:23], s44 offen{LD} lds
                s_add_u32 s44, s44, 1024
                ''')
            lab = a.label('norc')
            a(f'''
            s_cmp_lg_u32 s26, 0
            s_cbranch_scc1 {lab}
            s_lshl_b32 s44, s27, 11
            s_add_u32 s44, s44, {ROWW}
            s_mov_b32 m0, {ROWC_A}
            s_and_b32 s45, s28, 4
            buffer_load_dwordx4 {v(T + 9)}, s[20:23], s44 offen{LD} lds
            buffer_load_dwordx4 {v(T + 9)}, s[20:23], s44 offen offset:1024{LD} lds
            s_lshl_b32 s45, s45, 9
            s_add_u32 s45, s45, {CSKVW}
            s_mov_b32 m0, {CSKV_A}
            s_nop 0
            buffer_load_dwordx4 {v(T + 9)}, s[20:23], s45 offen{LD} lds
            buffer_load_dwordx4 {v(T + 9)}, s[20:23], s45 offen offset:1024{LD} lds
            {lab}:
            ''')
    L_p2 = a.label('auxp2')
    L_v = a.label('vepi')
    L_a0 = a.label('aux0f')
    lab = a.label('nokvfin')
    lab2 = a.label('nofix')
    a(f'''
    s_cmp_eq_u32 s54, 0
    s_cbranch_scc1 {lab}
    s_cmp_lg_u32 s26, 0
    s_cbranch_scc1 {lab2}
    s_lshl_b32 s44, s56, 9
    s_add_u32 s44, s44, {ROWC_A}
    v_lshl_add_u32 {v(t0)}, {v(vR)}, 4, s44
    v_lshlrev_b32 {v(t1)}, 2, {v(vR)}
    v_lshl_add_u32 {v(t1)}, {v(vH)}, 9, {v(t1)}
    v_add_u32 {v(t1)}, {CSKV_A}, {v(t1)}
    v_add_u32 {v(t2)}, 1024, {v(t1)}
    ds_read_b128 {v(FX, 4)}, {v(t0)}
    ds_read2_b32 {v(FX + 8, 2)}, {v(t1)} offset0:0 offset1:32
    ds_read2_b32 {v(FX + 10, 2)}, {v(t1)} offset0:64 offset1:96
    ds_read2_b32 {v(FX + 12, 2)}, {v(t2)} offset0:0 offset1:32
    ds_read2_b32 {v(FX + 14, 2)}, {v(t2)} offset0:64 offset1:96
    s_waitcnt lgkmcnt(4)
    v_mov_b32 {v(FX + 4)}, {v(FX)}
    v_mov_b32 {v(FX + 5)}, {v(FX)}
    v_mov_b32 {v(FX + 6)}, {v(FX)}
    v_mov_b32 {v(FX + 7)}, {v(FX)}
    s_waitcnt lgkmcnt(0)
    s_nop 1
    {mfma16(AKV, FX + 8, FX + 4, AKV)}
    {mfma16(AKV, FX + 12, FX + 4, AKV)}
    s_branch {L_a0}
    {lab2}:
    s_lshl_b32 s44, s26, 12
    v_add_u32 {v(t0)}, s44, {v(T + 9)}
    s_lshl_b32 s44, s26, 2
    s_add_u32 s44, s44, {PD_A}
    v_mov_b32 {v(t1)}, s44
    v_mov_b32 {v(t2)}, s98
    s_nop 11
    ''')
    for q in range(3):
        a(f'ds_write_b128 {v(t0)}, {v(AKV + 4 * q, 4)} offset:{PART_A + 1024 * q}')
    L_sp = a.label('pspin')
    L_spd = a.label('pspind')
    a(f'''
    s_waitcnt lgkmcnt(0)
    ds_write_b32 {v(t1)}, {v(t2)}
    {lab}:
    s_branch {L_p2}
    {L_a0}:
    v_mov_b32 {v(t1)}, {PD_A}
    s_mov_b32 s93, {POLL_MAX * 8}
    {L_sp}:
    ds_read_b128 {v(T + 4, 4)}, {v(t1)}
    s_waitcnt lgkmcnt(0)
    v_xor_b32 {v(T + 5)}, s98, {v(T + 5)}
    v_xor_b32 {v(T + 6)}, s98, {v(T + 6)}
    v_xor_b32 {v(T + 7)}, s98, {v(T + 7)}
    v_or3_b32 {v(T + 5)}, {v(T + 5)}, {v(T + 6)}, {v(T + 7)}
    s_nop 0
    v_readfirstlane_b32 s44, {v(T + 5)}
    s_cmp_eq_u32 s44, 0
    s_cbranch_scc1 {L_spd}
    s_sub_u32 s93, s93, 1
    s_cbranch_scc0 {L_sp}
    {L_spd}:
    ''')
    stamp(a, 12)
    for w in range(1, 4):
        for q in range(3):
            a(f'ds_read_b128 {v(RD + 12 * (w - 1) + 4 * q, 4)}, {v(T + 9)} offset:{PART_A + 4096 * w + 1024 * q}')
    a(f'''
    s_lshl_b32 s57, s27, 2
    s_add_u32 s57, s57, s56
    s_lshr_b32 s44, s57, 1
    s_mul_i32 s44, s44, 7168
    s_add_u32 s44, s44, {KV_OFF}
    s_and_b32 s45, s57, 1
    s_and_b32 s58, s28, 4
    s_lshl_b32 s58, s58, 4
    s_add_u32 s58, s58, s57
    s_lshl_b32 s58, s58, 7
    s_add_u32 s58, s58, {F_KV}
    s_waitcnt lgkmcnt(0)
    ''')
    for i in range(0, 12, 2):
        a(f'v_pk_add_f32 {v(AKV + i, 2)}, {v(AKV + i, 2)}, {v(RD + i, 2)}')
        a(f'v_pk_add_f32 {v(RD + 12 + i, 2)}, {v(RD + 12 + i, 2)}, {v(RD + 24 + i, 2)}')
    for i in range(0, 12, 2):
        a(f'v_pk_add_f32 {v(AKV + i, 2)}, {v(AKV + i, 2)}, {v(RD + 12 + i, 2)}')
    a(f'v_mov_b32 {v(FX)}, {v(FX + 1)}')
    for i in range(0, 12, 2):
        a(f'v_pk_mul_f32 {v(AKV + i, 2)}, {v(AKV + i, 2)}, {v(FX, 2)}')
    PK = RD
    for i in range(6):
        a(f'v_cvt_pk_bf16_f32 {v(PK + i)}, {v(AKV + 2 * i)}, {v(AKV + 2 * i + 1)}')
    L_kvf = a.label('kvflag')
    a(f'''
    s_bitcmp1_b32 s28, 2
    s_cbranch_scc1 {L_v}
    v_mov_b32 {v(t0)}, 0x3f803f80
    v_mov_b32 {v(t1)}, 0x00003f80
    v_cndmask_b32 {v(PK + 4)}, {v(PK + 4)}, {v(t0)}, {HM}
    v_cndmask_b32 {v(PK + 5)}, {v(PK + 5)}, {v(t1)}, {HM}
    s_lshl_b32 s46, s45, 10
    s_add_u32 s46, s46, s44
    s_lshl_b32 s47, s45, 9
    s_add_u32 s47, s47, s44
    buffer_store_dwordx4 {v(PK, 4)}, {v(T + 9)}, s[20:23], s46 offen sc1
    buffer_store_dwordx2 {v(PK + 4, 2)}, {v(T + 8)}, s[20:23], s47 offen offset:2048 sc1
    s_branch {L_kvf}
    {L_v}:
    v_mov_b32 {v(t0)}, 0
    v_cndmask_b32 {v(PK + 4)}, {v(PK + 4)}, {v(t0)}, {HM}
    v_cndmask_b32 {v(PK + 5)}, {v(PK + 5)}, {v(t0)}, {HM}
    v_mov_b32 {v(PK + 6)}, 0x00003f80
    v_mov_b32 {v(PK + 7)}, 0
    v_lshlrev_b32 {v(t0)}, 6, {v(vR)}
    v_lshl_add_u32 {v(t0)}, {v(vH)}, 3, {v(t0)}
    ds_write_b64 {v(t0)}, {v(PK, 2)} offset:{VT_A}
    ds_write_b64 {v(t0)}, {v(PK + 2, 2)} offset:{VT_A + 16}
    ds_write_b64 {v(t0)}, {v(PK + 4, 2)} offset:{VT_A + 32}
    ds_write_b64 {v(t0)}, {v(PK + 6, 2)} offset:{VT_A + 48}
    v_bfe_u32 {v(t1)}, {v(vL)}, 2, 2
    v_lshl_add_u32 {v(t1)}, {v(vH)}, 2, {v(t1)}
    v_lshlrev_b32 {v(t1)}, 6, {v(t1)}
    v_bfe_u32 {v(t2)}, {v(vL)}, 4, 1
    v_lshl_add_u32 {v(t1)}, {v(t2)}, 5, {v(t1)}
    v_and_b32 {v(t2)}, 3, {v(vL)}
    v_lshl_add_u32 {v(t1)}, {v(t2)}, 3, {v(t1)}
    s_waitcnt lgkmcnt(0)
    ds_read_b64_tr_b16 {v(PK + 8, 2)}, {v(t1)} offset:{VT_A}
    ds_read_b64_tr_b16 {v(PK + 10, 2)}, {v(t1)} offset:{VT_A + 512}
    ds_read_b64_tr_b16 {v(PK + 12, 2)}, {v(t1)} offset:{VT_A + 1024}
    ds_read_b64_tr_b16 {v(PK + 14, 2)}, {v(t1)} offset:{VT_A + 1536}
    s_lshl_b32 s46, s45, 11
    s_add_u32 s46, s46, s44
    s_add_u32 s46, s46, 3072
    s_waitcnt lgkmcnt(0)
    buffer_store_dwordx4 {v(PK + 8, 4)}, {v(T + 9)}, s[20:23], s46 offen sc1
    buffer_store_dwordx4 {v(PK + 12, 4)}, {v(T + 9)}, s[20:23], s46 offen offset:1024 sc1
    {L_kvf}:
    s_waitcnt vmcnt(0)
    ''')
    flag_store(a, 's58', T + 2)
    a(f'{L_p2}:')
    stamp(a, 13)

    a.c('=========== aux wave: phase 2 ===========')
    al = Alloc(4, 164)
    T = al('T', 8, 4)
    vWD = al('wd', 3)
    vWA = al('wa', 3)
    vHL = al('hl')
    vKO = al('ko')
    vPF = al('pf')
    ACC = al('acc', 80, 4)
    SL = al('slots', 60, 4)
    wreg = lambda k: SL + 20 * (k % 3)
    hreg = lambda k: SL + 20 * (k % 3) + 12
    a(f's_setprio {PRIO2}')
    g2_ids(a)
    srd(a, 12, WDP, 2211840)
    srd(a, 16, 84, 819200)
    a(f"""
    s_mul_i32 s44, s26, 27
    s_mul_i32 s41, s59, 108
    s_add_u32 s41, s41, s44
    s_lshl_b32 s41, s41, 10
    s_mul_i32 s42, s60, 108
    s_add_u32 s42, s42, s44
    s_lshl_b32 s42, s42, 10
    s_lshr_b32 s43, s44, 1
    s_mul_i32 s43, s43, 40960
    s_and_b32 s45, s44, 1
    s_mul_i32 s52, s45, 10240
    s_add_u32 s43, s43, s52
    s_mul_i32 s52, s45, 20480
    s_add_u32 s52, s52, 10240
    s_mov_b32 s48, 40960
    s_lshl_b32 s44, s26, 3
    s_mul_i32 s56, s44, 25600
    s_mul_i32 s54, s59, 40
    s_add_u32 s54, s54, s44
    s_lshl_b32 s54, s54, 10
    s_add_u32 s54, s54, {OF_OFF}
    s_mul_i32 s55, s60, 40
    s_add_u32 s55, s55, s44
    s_lshl_b32 s55, s55, 10
    s_add_u32 s55, s55, {OF_OFF}
    s_and_b32 s44, s26, 1
    s_mul_i32 s39, s44, 21504
    s_lshr_b32 s44, s26, 1
    s_mul_i32 s44, s44, {WO_HI}
    s_add_u32 s39, s39, s44
    s_mov_b32 s40, s39
    s_mov_b32 s45, 0x15556
    v_lshlrev_b32 {v(vHL)}, 4, {v(vL)}
    v_lshlrev_b32 {v(vPF)}, 7, {v(vL)}
    s_lshl_b32 s36, s26, 12
    s_min_u32 s36, s36, 11264
    v_add_u32 {v(vKO)}, s36, {v(vHL)}
    """)
    for p in range(3):
        a(f"""
        v_add_u32 {v(T)}, {64 * p}, {v(vL)}
        v_mul_lo_u32 {v(T + 1)}, {v(T)}, s45
        v_lshrrev_b32 {v(T + 1)}, 20, {v(T + 1)}
        v_mul_u32_u24 {v(T + 2)}, 12, {v(T + 1)}
        v_sub_u32 {v(T + 2)}, {v(T)}, {v(T + 2)}
        v_and_b32 {v(T)}, 8, {v(T + 1)}
        v_add_u32 {v(T + 1)}, {v(T + 1)}, {v(T)}
        v_mul_u32_u24 {v(T + 1)}, 1280, {v(T + 1)}
        v_lshl_add_u32 {v(T + 1)}, {v(T + 2)}, 4, {v(T + 1)}
        v_add_u32 {v(vWD + p)}, s61, {v(T + 1)}
        """)
    a(f"""
    v_bfe_u32 {v(T)}, {v(vL)}, 2, 2
    v_lshl_add_u32 {v(T)}, {v(vH)}, 2, {v(T)}
    v_mul_u32_u24 {v(T)}, 192, {v(T)}
    v_bfe_u32 {v(T + 1)}, {v(vL)}, 4, 1
    v_lshl_add_u32 {v(T)}, {v(T + 1)}, 5, {v(T)}
    v_and_b32 {v(T + 1)}, 3, {v(vL)}
    v_lshl_add_u32 {v(T)}, {v(T + 1)}, 3, {v(T)}
    v_add_u32 {v(T)}, s39, {v(T)}
    s_lshl_b32 s44, s58, 6
    s_add_u32 s45, s44, 64
    s_lshl_b32 s46, s58, 7
    s_sub_u32 s46, 128, s46
    v_add_u32 {v(vWA)}, s44, {v(T)}
    v_add_u32 {v(vWA + 1)}, s45, {v(T)}
    v_add_u32 {v(vWA + 2)}, s46, {v(T)}
    """)
    vm = VM()

    def w_dma(base, off):
        out = []
        for p in range(3):
            out.append([f's_add_u32 m0, {base}, {off + p * 1024}', 's_nop 0',
                        f'buffer_load_dwordx4 {v(vWD + p)}, s[12:15], s43 offen lds'])
        out[2] += ['s_add_u32 s43, s43, s52', 's_sub_u32 s52, s48, s52']
        return out

    def h_ld(k, e):
        hs = ('s41', 's42')[e]
        return [f'buffer_load_dwordx4 {v(hreg(k) + 4 * e, 4)}, {v(vHL)}, s[20:23], {hs} offen', f's_add_u32 {hs}, {hs}, 1024']

    def w_rd(k, off):
        return [f'ds_read_b64_tr_b16 {v(wreg(k) + 4 * b + 2 * t, 2)}, {v(vWA + b)} offset:{off + 1536 * t}'
                for b in range(3) for t in range(2)]

    def g_mfmas(k):
        return [mfma16(ACC + 16 * n, wreg(k) + 4 * b, hreg(k) + 4 * e, ACC + 16 * n)
                for n, (b, e) in enumerate(((0, 0), (0, 1), (1, 0), (1, 1), (2, 0)))]

    def kv_dma(c):
        st = c % NST
        lab = a.label('kv3')
        a(f's_cmp_ge_u32 s26, 2\ns_cbranch_scc1 {lab}')
        for e in (3, 0, 1, 2):
            a(f"""
            s_add_u32 m0, s36, {KVR + st * CH_BYTES + e * 1024}
            s_mov_b32 s38, {KV_OFF + c * CH_BYTES + e * 1024}
            buffer_load_dwordx4 {v(vKO)}, s[20:23], s38 offen lds
            """)
            if e == 3:
                a(f'{lab}:')
        vm.add(f'kv{c}', 1, optional=True)
        vm.add(f'kv{c}', 3)

    for i in range(80):
        a(f'v_mov_b32 {v(ACC + i)}, 0')
    srd(a, 4, WDP, 2211840)
    a(f'''
    s_lshr_b32 s44, s2, 6
    s_mul_i32 s44, s44, {432 * 1280}
    s_bfe_u32 s45, s2, 0x30003
    s_lshl_b32 s45, s45, 2
    s_add_u32 s45, s45, s26
    s_mul_i32 s45, s45, {15 * 128}
    s_add_u32 s32, s44, s45
    s_mov_b32 s31, {48 * 1280}
    ''')

    a(f'''
    s_lshr_b32 s45, s30, 2
    s_lshl_b32 s46, s29, 1
    s_add_u32 s45, s45, s46
    s_mul_i32 s45, s45, 108
    s_and_b32 s46, s30, 3
    s_mul_i32 s46, s46, 27
    s_add_u32 s45, s45, s46
    s_lshl_b32 s45, s45, 10
    s_mul_i32 s46, s26, {6 * 128}
    s_add_u32 s45, s45, s46
    s_add_u32 s49, s45, 3072
    ''')

    def paced_h():
        a(f'''
        s_mov_b64 exec, 0x3f
        buffer_load_dword v165, {v(vPF)}, s[20:23], s49 offen
        s_mov_b64 exec, -1
        s_add_u32 s49, s49, 3072
        ''')

    def paced():
        a(f'''
        s_mov_b64 exec, 0x7fff
        buffer_load_dword v165, {v(vPF)}, s[4:7], s32 offen
        s_mov_b64 exec, -1
        s_add_u32 s32, s32, s31
        ''')
        vm.add('pf', 1)

    def cd_wait():
        L1, L2 = a.label('cdw'), a.label('cdd')
        a(f'''
        v_and_b32 {v(T + 4)}, 7, {v(vL)}
        v_lshlrev_b32 {v(T + 4)}, 2, {v(T + 4)}
        v_add_u32 {v(T + 4)}, {CD_A}, {v(T + 4)}
        s_mov_b32 s93, {POLL_MAX * 8}
        {L1}:
        ds_read_b32 {v(T + 5)}, {v(T + 4)}
        s_waitcnt lgkmcnt(0)
        v_cmp_eq_u32 vcc, s98, {v(T + 5)}
        s_nop 1
        s_cmp_eq_u64 vcc, -1
        s_cbranch_scc1 {L2}
        s_sub_u32 s93, s93, 1
        s_cbranch_scc0 {L1}
        {L2}:
        ''')

    a(f's_lshl_b32 s53, s29, 13\ns_add_u32 s53, s53, {F_QH}')

    def kv_poll(first):
        a(f's_mov_b32 s45, {F_KV}\ns_mov_b32 s44, {F_KV + 8192}')
        if first:
            m = ~((1 << (4 * KVF)) - 1) & 0xffffffffffffffff
            a(f's_mov_b32 s50, {m & 0xffffffff}\ns_mov_b32 s51, {m >> 32}\ns_sleep {KVSL}\ns_andn2_b64 exec, exec, s[50:51]')
            polln(a, T + 4, vPF, [('s45', 's[50:51]'), ('s44', 's[50:51]')], 2)
            a('s_mov_b64 exec, -1')
            cd_wait()
        else:
            polln(a, T + 4, vPF, [('s45', None), ('s44', None)], 4)
    one_poller(a, T, 0, lambda: kv_poll(True), who=2)
    stamp(a, 15)
    kv_dma(0)
    kv_dma(1)
    kv_dma(2)

    def prefetch(kind, b=0):
        n = {'wd': 60, 'wo': 64, 'h': 54}[kind]
        lab = a.label('nopf')
        if kind != 'h':
            a(f's_cmp_eq_u32 s26, 3\ns_cbranch_scc1 {lab}')
        if kind == 'wd':
            a(f"""
            s_lshr_b32 s44, s2, 6
            s_mul_i32 s44, s44, {432 * 1280}
            s_bfe_u32 s45, s2, 0x30003
            s_mul_i32 s45, s45, {180 * 128}
            s_add_u32 s44, s44, s45
            s_mul_i32 s45, s26, {60 * 128}
            s_add_u32 s44, s44, s45
            s_add_u32 s44, s44, {144 * 1280 * b}
            """)
            r = 's[12:15]'
        elif kind == 'wo':
            a(f"""
            s_lshr_b32 s44, s2, 3
            s_mul_i32 s44, s44, {200 * 128}
            s_mul_i32 s45, s26, {68 * 128}
            s_add_u32 s44, s44, s45
            """)
            r = 's[16:19]'
        else:
            a(f"""
            s_mul_i32 s44, s29, {216 * 1024}
            s_lshl_b32 s45, s30, 2
            s_add_u32 s45, s45, s26
            s_mul_i32 s45, s45, {54 * 128}
            s_add_u32 s44, s44, s45
            """)
            r = 's[20:23]'
        m = (1 << n) - 1
        a(f"""
        s_mov_b32 exec_hi, {m >> 32}
        buffer_load_dword v165, {v(vPF)}, {r}, s44 offen
        s_mov_b32 exec_hi, -1
        {lab}:
        """)
        vm.add('pf', 1, optional=True)
    a(f's_waitcnt vmcnt({vm.wait("kv0")})')
    a('s_barrier')
    stamp(a, 16)
    lab = a.label('nokv2')
    a(f's_cmp_lg_u32 s26, 2\ns_cbranch_scc1 {lab}')
    kv_poll(False)
    a(f'{lab}:')

    def body(last, nw=12):
        for z in range(3):
            a(f's_waitcnt vmcnt({nw if not last else (12, 10, 8)[z]}) lgkmcnt(0)')
            ms = g_mfmas(z)
            if z == 2:
                for b in range(3):
                    a(f'v_add_u32 {v(vWA + b)}, s33, {v(vWA + b)}')
                rd = w_rd(0, 0)
            else:
                rd = w_rd(z + 1, 3072 * (z + 1))
            wd_ = w_dma('s40', 3072 * z)
            a(ms[0]); emit(a, rd[0:2]); emit(a, [wd_[0]]); a(SPACE)
            a(ms[1]); emit(a, rd[2:4]); emit(a, [wd_[1]]); a(SPACE)
            a(ms[3]); emit(a, rd[4:6]); emit(a, [wd_[2]]); a(SPACE)
            a(ms[2])
            if not last:
                emit(a, h_ld(z, 1))
            a(SPACE)
            a(ms[4])
            if not last:
                emit(a, h_ld(z, 0))
        a('s_add_u32 s40, s40, s33\ns_sub_u32 s33, 0, s33')

    NSTAT = int(ENV.get('NSTAT', '4'))
    for c in range(NSTAT):
        a.c(f'aux B{c}')
        a(f's_waitcnt vmcnt({vm.wait(f"kv{c + 1}")})')
        bstamp(a, c == 0)
        a('s_barrier')
        bstamp(a)
        if c == 2:
            lab = a.label('noxc')
            a(f'''
            s_cmp_lg_u32 s26, 3
            s_cbranch_scc1 {lab}
            s_getreg_b32 s45, hwreg(HW_REG_XCC_ID, 0, 4)
            s_lshl_b32 s46, s29, 7
            s_add_u32 s46, s46, {F_X}
            v_and_b32 {v(T)}, 7, {v(vL)}
            v_lshlrev_b32 {v(T)}, 3, {v(T)}
            buffer_load_dwordx2 {v(T + 4, 2)}, {v(T)}, s[20:23], s46 offen sc1
            s_mov_b32 s44, s98
            s_waitcnt vmcnt(0)
            v_cmp_eq_u64 vcc, s[44:45], {v(T + 4, 2)}
            v_mov_b32 {v(T)}, {SX_A}
            s_nop 0
            s_cmp_eq_u64 vcc, -1
            s_cselect_b32 s44, s98, 0
            v_mov_b32 {v(T + 1)}, s44
            ds_write_b32 {v(T)}, {v(T + 1)}
            s_waitcnt lgkmcnt(0)
            {lab}:
            ''')
        kv_dma(c + 3)
        if WDC <= c < WDC + 2:
            for k in range(3 * (c - WDC), 3 * (c - WDC) + 3):
                emit(a, w_dma('s39', 3072 * k))
            vm.add('w', 9)
        paced()
    L_top, L_nb, L_sw, L_end2 = a.label('dtop'), a.label('dnb'), a.label('dsw'), a.label('dend')
    L_act, L_bar, L_nokv = a.label('dact'), a.label('dbar'), a.label('dnokv')
    L_s0, L_body, L_last, L_wo, L_next = a.label('ds0'), a.label('dbody'), a.label('dlast'), a.label('dwo'), a.label('dnext')
    L_w0 = a.label('dw0')
    L_w2 = a.label('dw2')
    L_b12 = a.label('db12')
    L_bd = a.label('dbd')
    L_np = a.label('dnp')
    L_p3 = a.label('dp3')
    L_k3 = a.label('dk3')
    L_w1 = a.label('dw1')
    L_n1 = a.label('dn1')
    L_oth, L_start, L_rei, L_nsw = a.label('doth'), a.label('dstart'), a.label('drei'), a.label('dnsw')
    a(f"""
    s_mov_b32 s34, {16 - NSTAT}
    s_mov_b32 s35, 0
    s_mov_b32 s37, {((NSTAT + 3) % NST) * CH_BYTES}
    s_mov_b32 s38, {KV_OFF + (NSTAT + 3) * CH_BYTES}
    s_mov_b32 s33, 9216
    s_mov_b32 s93, {POLL_MAX}
    v_mov_b32 {v(T + 3)}, {RDY_A + 4}
    {L_top}:
    s_sub_u32 s44, s35, 2
    s_cmp_lt_u32 s44, 8
    s_cbranch_scc1 {L_act}
    s_cmp_eq_u32 s35, 11
    s_cbranch_scc1 {L_w2}
    s_cmp_gt_u32 s35, 1
    s_cbranch_scc1 {L_w0}
    s_cmp_le_u32 s34, 3
    s_cbranch_scc1 {L_w0}
    s_cmp_eq_u32 s35, 1
    s_cbranch_scc1 {L_w1}
    s_waitcnt vmcnt(3)
    s_branch {L_bar}
    {L_w1}:
    s_waitcnt vmcnt({6 + HPF})
    s_branch {L_bar}
    {L_w2}:
    s_waitcnt vmcnt(12)
    s_mov_b32 s35, 12
    s_branch {L_bar}
    {L_w0}:
    s_waitcnt vmcnt(0)
    s_branch {L_bar}
    {L_act}:
    s_waitcnt vmcnt({17 if HPF else 16})
    {L_bar}:
    s_cmp_eq_u32 s34, 0
    s_cbranch_scc1 {L_nb}
    """)
    bstamp(a)
    a('s_barrier')
    bstamp(a)
    a(f"""
    s_cmp_lg_u32 s35, 0
    s_cbranch_scc1 {L_np}
    s_cmp_lg_u32 s26, 3
    s_cbranch_scc1 {L_np}
    buffer_load_dwordx2 {v(T + 4, 2)}, {v(vPF)}, s[20:23], s53 offen sc1
    {L_np}:
    s_cmp_le_u32 s34, 3
    s_cbranch_scc1 {L_nokv}
    s_add_u32 s44, s36, s37
    s_cmp_ge_u32 s26, 2
    s_cbranch_scc1 {L_k3}
    """)
    for e in (3, 0, 1, 2):
        a(f"""
        s_add_u32 m0, s44, {KVR + e * 1024}
        s_add_u32 s45, s38, {e * 1024}
        buffer_load_dwordx4 {v(vKO)}, s[20:23], s45 offen lds
        """)
        if e == 3:
            a(f'{L_k3}:')
    a(f"""
    s_add_u32 s38, s38, {CH_BYTES}
    s_add_u32 s37, s37, {CH_BYTES}
    s_cmp_eq_u32 s37, {CH_BYTES * NST}
    s_cselect_b32 s37, 0, s37
    {L_nokv}:
    s_sub_u32 s34, s34, 1
    s_branch {L_sw}
    {L_nb}:
    s_cmp_ge_u32 s35, 11
    s_cbranch_scc1 {L_end2}
    {L_sw}:
    s_cmp_eq_u32 s35, 0
    s_cbranch_scc1 {L_s0}
    s_cmp_lt_u32 s35, 9
    s_cbranch_scc1 {L_body}
    s_cmp_eq_u32 s35, 9
    s_cbranch_scc1 {L_last}
    s_cmp_eq_u32 s35, 10
    s_cbranch_scc1 {L_wo}
    s_branch {L_top}
    {L_s0}:
    s_sub_u32 s93, s93, 1
    s_cbranch_scc1 {L_start}
    s_cmp_lg_u32 s26, 3
    s_cbranch_scc1 {L_oth}
    s_cmp_ge_u32 s34, 3
    s_cbranch_scc1 {L_p3}
    buffer_load_dwordx2 {v(T + 4, 2)}, {v(vPF)}, s[20:23], s53 offen sc1
    s_waitcnt vmcnt(0)
    {L_p3}:
    s_waitcnt vmcnt(3)
    v_cmp_eq_u64 vcc, s[98:99], {v(T + 4, 2)}
    s_lshl_b32 s45, s34, 1
    s_nop 0
    s_cmp_eq_u64 vcc, -1
    s_cselect_b32 s44, s98, s45
    v_mov_b32 {v(T + 2)}, s44
    ds_write_b32 {v(T + 3)}, {v(T + 2)}
    s_cbranch_scc1 {L_start}
    s_branch {L_top}
    {L_oth}:
    s_mov_b32 s45, 40
    {L_rei}:
    s_sleep 1
    ds_read_b32 {v(T + 2)}, {v(T + 3)}
    s_waitcnt lgkmcnt(0)
    v_readfirstlane_b32 s44, {v(T + 2)}
    s_cmp_eq_u32 s44, s98
    s_cbranch_scc1 {L_start}
    s_lshl_b32 s46, s34, 1
    s_cmp_eq_u32 s44, s46
    s_cbranch_scc1 {L_top}
    s_sub_u32 s45, s45, 1
    s_cbranch_scc0 {L_rei}
    s_branch {L_top}
    {L_start}:
    """)
    stamp(a, 23)
    for k in range(3):
        for e in range(2):
            emit(a, h_ld(k, e))
    for _ in range(HPF):
        paced_h()
    emit(a, w_rd(0, 0))
    a(f"""
    {L_next}:
    s_add_u32 s35, s35, 1
    s_branch {L_top}
    {L_body}:
    s_cmp_lg_u32 s35, 1
    s_cbranch_scc1 {L_n1}
    s_waitcnt vmcnt(0)
    {L_n1}:
    s_cmp_lg_u32 s35, 8
    s_cbranch_scc1 {L_nsw}
    s_mov_b32 s12, s16
    s_mov_b32 s13, s17
    s_mov_b32 s14, 819200
    s_mov_b32 s43, s56
    s_mov_b32 s52, 25600
    s_mov_b32 s48, 51200
    s_mov_b32 s45, 0x15556
    """)
    for p in range(3):
        a(f"""
        v_add_u32 {v(T)}, {64 * p}, {v(vL)}
        v_mul_lo_u32 {v(T + 1)}, {v(T)}, s45
        v_lshrrev_b32 {v(T + 1)}, 23, {v(T + 1)}
        v_mul_u32_u24 {v(T + 1)}, {8 * 1280}, {v(T + 1)}
        v_sub_u32 {v(vWD + p)}, {v(vWD + p)}, {v(T + 1)}
        """)
    a(f"""
    {L_nsw}:
    s_cmp_lt_u32 s34, 3
    s_cbranch_scc1 {L_b12}
    """)
    body(False, 15)
    a(f's_branch {L_bd}\n{L_b12}:')
    body(False, 12)
    a(f'{L_bd}:')
    lab = a.label('npsw')
    a(f'''
    s_cmp_lg_u32 s35, {10 - NSTAT}
    s_cbranch_scc1 {lab}
    s_mov_b32 s4, s16
    s_mov_b32 s5, s17
    s_mov_b32 s6, 819200
    s_lshr_b32 s44, s2, 3
    s_lshl_b32 s44, s44, 2
    s_add_u32 s44, s44, s26
    s_mul_i32 s32, s44, {50 * 128}
    s_mov_b32 s31, {13 * 128}
    {lab}:
    ''')
    paced_h()
    paced()
    a(f's_branch {L_next}\n{L_last}:')
    body(True)
    a(f's_branch {L_next}\n{L_wo}:')
    stamp(a, 17)
    emit(a, w_rd(1, 3072) + w_rd(2, 6144))
    a('s_mov_b32 s45, 0x15556\ns_waitcnt lgkmcnt(0)')
    emit(a, w_dma('s39', 3072 * 3))
    emit(a, w_dma('s39', 3072 * 4))
    for p in range(3):
        a(f"""
        v_add_u32 {v(T)}, {64 * p}, {v(vL)}
        v_mul_lo_u32 {v(T + 1)}, {v(T)}, s45
        v_bfe_u32 {v(T)}, {v(T + 1)}, 22, 1
        v_lshrrev_b32 {v(T + 1)}, 23, {v(T + 1)}
        v_mul_u32_u24 {v(T)}, {36 * 1280}, {v(T)}
        v_mul_u32_u24 {v(T + 1)}, {12 * 1280}, {v(T + 1)}
        v_add3_u32 {v(vWD + p)}, {v(vWD + p)}, {v(T + 1)}, {v(T)}
        """)
    a(f's_add_u32 s43, s56, {16 * 1280}\ns_mov_b32 s52, {80 * 1280}\ns_mov_b32 s48, {160 * 1280}')
    emit(a, w_dma('s39', 3072 * 5))
    emit(a, w_dma('s39', 3072 * 6))
    a(f's_cmp_lg_u32 s34, 0\ns_cbranch_scc1 {L_next}\n{L_end2}:')
    a(f"""
    v_subrev_u32 {v(vWA)}, 9216, {v(vWA)}
    v_subrev_u32 {v(vWA + 1)}, 9216, {v(vWA + 1)}
    v_subrev_u32 {v(vWA + 2)}, 9216, {v(vWA + 2)}
    s_mul_i32 s44, s26, 14336
    s_add_u32 s44, s44, {OL_A}
    v_add_u32 {v(vKO)}, s44, {v(vHL)}
    v_and_b32 {v(T)}, 7, {v(vR)}
    v_xor_b32 {v(T)}, {v(T)}, {v(vH)}
    v_lshlrev_b32 {v(T + 1)}, 7, {v(vR)}
    v_add_u32 {v(T + 1)}, s39, {v(T + 1)}
    """)
    for jp in range(4):
        a(f"""
        v_xor_b32 {v(T + 2)}, {2 * jp}, {v(T)}
        v_lshl_add_u32 {v(T + 4 + jp)}, {v(T + 2)}, 4, {v(T + 1)}
        """)
    stamp(a, 18)
    a('s_barrier')
    Lp, Lq = a.label('op'), a.label('opd')
    a(f's_mov_b32 s93, {OPOLL_MAX}\n{Lp}:')
    for k in range(27, 30):
        for e in range(2):
            a(f'buffer_load_dwordx4 {v(hreg(k) + 4 * e, 4)}, {v(vHL)}, s[20:23], s{54 + e} offen offset:{1024 * (k - 27)} sc1')
    a('s_waitcnt vmcnt(0)')
    regs = [hreg(k) + i for k in range(27, 30) for i in range(8)]
    a(f'v_max3_u32 {v(T)}, {v(regs[0])}, {v(regs[1])}, {v(regs[2])}')
    for i in range(3, 23, 2):
        a(f'v_max3_u32 {v(T)}, {v(T)}, {v(regs[i])}, {v(regs[i + 1])}')
    a(f"""
    v_max_u32 {v(T)}, {v(T)}, {v(regs[23])}
    v_cmp_eq_u32 vcc, -1, {v(T)}
    s_nop 1
    s_cmp_eq_u64 vcc, 0
    s_cbranch_scc1 {Lq}
    s_sub_u32 s93, s93, 1
    s_cbranch_scc1 {Lq}
    s_sleep {OSLEEP}
    s_branch {Lp}
    {Lq}:
    """)
    stamp(a, 19)

    def o_rd(k):
        return [f'ds_read_b128 {v(hreg(k) + 4 * e, 4)}, {v(vKO)} offset:{(k - 30) * 2048 + 1024 * e}' for e in range(2)]

    for k in range(27, 30):
        emit(a, g_mfmas(k))
        emit(a, w_rd(k + 3, 3072 * (k - 27)))
    a('s_waitcnt lgkmcnt(0)')
    a('s_barrier')
    stamp(a, 30)
    for k in range(30, 33):
        emit(a, o_rd(k))
    XO = vWD
    assert XO % 2 == 0 and XO + 8 <= ACC
    for k in range(30, 34):
        a(f's_waitcnt lgkmcnt({ {30: 4, 31: 10, 32: 8, 33: 8}[k] })')
        emit(a, g_mfmas(k))
        emit(a, w_rd(k + 3, 3072 * (k + 3 - 30)) + o_rd(k + 3))
    g2_out(a, XO, vL, 's24', 0)
    a('s_waitcnt lgkmcnt(0)')
    wr = lambda n: [f'ds_write_b128 {v(T + 4 + jp)}, {v(ACC + 16 * n + 4 * jp, 4)} offset:{4096 * n}' for jp in range(4)]
    ms = [g_mfmas(k) for k in range(34, 37)]
    for n in range(5):
        for z in range(3):
            a(ms[z][n])
        if n >= 2:
            a('s_nop 5')
            emit(a, wr(n - 2))
    stamp(a, 20)
    a('s_nop 3')
    emit(a, wr(3))
    a('s_nop 3')
    emit(a, wr(4))
    a('s_waitcnt vmcnt(0) lgkmcnt(0)')
    a('s_barrier')
    stamp(a, 21)
    for i in range(8):
        a(f'v_mov_b32 {v(ACC + i)}, {v(XO + i)}')
    g2_out(a, ACC, vL, 's24', 1)


def build(path):
    hdr = open('parallel_sum__grouped_kv_mqa__geglu_ffn__prompt.s.ref').read().split('; Override launch')[0]
    out = hdr + f'; @launch grid=(256,1,1) block=(768,1,1) lds={LDS_TOTAL}\n'
    out += '.amdgcn_target "amdgcn-amd-amdhsa--gfx950"\n'
    out += gen()
    out += kernel_desc(KNAME, 168)
    open(path, 'w').write(out)


if __name__ == '__main__':
    import sys
    if len(sys.argv) > 2 and sys.argv[2] == 'stamp':
        asmlib.STAMPS = True
    build(sys.argv[1])
```

```python
from asmlib import *
import asmlib
import math
import os

KNAME = 'parallel_sum__grouped_kv_mqa__geglu_ffn__prompt_kernel'

H_OFF = 0
QF_OFF = 0x700000
KV_OFF = 0xA00000
OF_OFF = 0xB00000
FL_OFF = 0xE00000
F_ST = 0x1200000
F_CS = 0x1220000
F_KV = 0x1240000
F_KC = 0x1248000
F_W2 = 0x1250000
F_X = 0x1258000
F_QH = 0xE80000
ROWW = 0xE10000
CSW = 0xE20000
CSKVW = 0xE60000
W2F = 0xF00000
WS_USED = 0x1260000

LDS_X = 0
LDS_W = 49152
LDS_KV = 147456
CS_A = 16384
PART_A = 32768
VT_A = 32768
ROWC_A = 156672
CSKV_A = 158720
NONCE_A = 160768
RDY_A = 160800
SX_A = 160928
OW_A = 160896
CD_A = 160832
PD_A = 160864
LDS_TOTAL = 163840
CH_BYTES = 14336
NST = 4
KVR = 49152
Q_A = KVR + 3 * CH_BYTES
G2R = KVR + CH_BYTES * NST
G2D = 3
TW_A = G2R
OL_A = KVR
WO_HI = 106496
WOA = 0
RED_A = 0

C0 = -2.0 * math.sqrt(2.0 / math.pi) * math.log2(math.e)
C1 = C0 * 0.044715
QSC = math.log2(math.e) / math.sqrt(20.0)
M_OFFSET = 90.0
POLL_MAX = 400000
NONCE_X = 0x5a5a5a5a

HM = 's[62:63]'
PFWAIT = False
ENV = os.environ
NODOWN = ENV.get('NODOWN')
PRIO2 = int(ENV.get('PRIO2', '3'))
PRIO1 = int(ENV.get('PRIO1', '3'))
SPACE = ENV.get('SPACE', '')
NOPF = not ENV.get('PF')
INV = int(ENV.get('INV', '0'))
NOG2 = ENV.get('NOG2')
FFL = int(ENV.get('FFL', '0'))
PCW = int(ENV.get('PCW', '1'))
PCH = int(ENV.get('PCH', '1'))
HST = int(ENV.get('HST', '-1'))
ODBL = int(ENV.get('ODBL', '1'))
JX = int(ENV.get('JX', '0'))
QSLEEP = int(ENV.get('QSLEEP', '4'))
KVF = int(ENV.get('KVF', '3'))
OUTSC = {'': '', '1': ' sc1', '2': ' nt', '3': ' sc0 sc1', '4': ' sc1 nt'}[ENV.get('OUTSC', '')]
HPF = int(ENV.get('HPF', '2'))
PERM = int(ENV.get('PERM', '3'))
P1PF = int(ENV.get('P1PF', '0'))
PFC = tuple(int(x) for x in ENV.get('PFC', '2,3,4').split(','))
WDC = int(ENV.get('WDC', '2'))
WOC = int(ENV.get('WOC', '4'))
TWC = int(ENV.get('TWC', '1'))
DPOLL2 = 0
OSLEEP = int(ENV.get('OSLEEP', '3'))
LATE1 = int(ENV.get('LATE1', '1'))
OPOLL_MAX = 200000
LINPF = int(ENV.get('LINPF', '0'))
NOSL = ENV.get('NOSL')
PF0 = int(ENV.get('PF0', '0'))
JIT = int(ENV.get('JIT', '0'))
JITD = int(ENV.get('JITD', '4'))
SLC = int(ENV.get('SLC', '0'))
SLG = int(ENV.get('SLG', '1'))
SPN = int(ENV.get('SPN', '2'))
PZ0 = int(ENV.get('PZ0', '0'))
P3C = int(ENV.get('P3C', '7'))
EARLY2 = int(ENV.get('EARLY2', '0'))
CWARM = int(ENV.get('CWARM', '1'))
KVSL = int(ENV.get('KVSL', '1'))
HEARLY = ENV.get('HEARLY')
PSLEEP = int(ENV.get('PSLEEP', '2'))
NOPF2 = not ENV.get('PF2')
CV = int(ENV.get('CV', '0'))
NODMA = ENV.get('NODMA')
IST = ENV.get('IST')
LD = ' sc1' if ENV.get('SC1LD') else ''
FEWST = ENV.get('FEWST')
IST_LIST = tuple(int(x) for x in os.environ.get('ISTL', '1,2,6,7').split(','))
HFLAG_T = int(os.environ.get('HFT', '6'))
G2_START = int(os.environ.get('G2S', '6'))
G2_END = int(os.environ.get('G2E', '15'))


class VM:
    def __init__(self):
        self.ops = []

    def add(self, tag, n=1, optional=False):
        for _ in range(n):
            self.ops.append((tag, optional))

    def wait(self, tag):
        idx = max(i for i, (t, o) in enumerate(self.ops) if t == tag)
        n = sum(1 for t, o in self.ops[idx + 1:] if not o)
        assert n <= 63, n
        return n

    def drain(self):
        self.ops = []


def emit(a, bundles):
    for b in bundles:
        a(b if isinstance(b, str) else '\n'.join(b))


def flag_store(a, soff_reg, vt):
    a(f'''
    v_mov_b32 {v(vt)}, s98
    v_mov_b32 {v(vt + 1)}, s99
    s_mov_b64 exec, 1
    buffer_store_dwordx2 {v(vt, 2)}, off, s[20:23], {soff_reg} sc1
    s_mov_b64 exec, -1
    ''')


def poll(a, vt, voff, soff_reg, wide=False, ignore=None, inv=True, sleep=None):
    L = a.label('poll')
    Ld = a.label('polld')
    a(f's_mov_b32 s93, {POLL_MAX}')
    a(f'{L}:')
    if wide:
        a(f'''
        buffer_load_dwordx4 {v(vt, 4)}, {v(voff)}, s[20:23], {soff_reg} offen sc1
        s_waitcnt vmcnt(0)
        v_cmp_eq_u64 vcc, s[98:99], {v(vt, 2)}
        v_cmp_eq_u64 s[46:47], s[98:99], {v(vt + 2, 2)}
        s_nop 1
        s_and_b64 vcc, vcc, s[46:47]
        ''')
    else:
        a(f'''
        buffer_load_dwordx2 {v(vt, 2)}, {v(voff)}, s[20:23], {soff_reg} offen sc1
        s_waitcnt vmcnt(0)
        v_cmp_eq_u64 vcc, s[98:99], {v(vt, 2)}
        s_nop 1
        ''')
    if ignore:
        a(f's_or_b64 vcc, vcc, {ignore}')
    a(f'''
    s_cmp_eq_u64 vcc, -1
    s_cbranch_scc1 {Ld}
    s_sub_u32 s93, s93, 1
    s_cbranch_scc1 {Ld}
    s_sleep {sleep or PSLEEP}
    s_branch {L}
    {Ld}:
    ''')
    if inv and INV:
        a('buffer_inv sc1\ns_waitcnt vmcnt(0)')


def polln(a, vt, voff, rows, sleep):
    L = a.label('poll')
    Ld = a.label('polld')
    a(f's_mov_b32 s93, {POLL_MAX}\n{L}:')
    for q, (so, ig) in enumerate(rows):
        a(f'buffer_load_dwordx2 {v(vt + 2 * q, 2)}, {v(voff[q] if isinstance(voff, list) else voff)}, s[20:23], {so} offen sc1')
    a('s_waitcnt vmcnt(0)')
    dst = ['vcc', 's[46:47]', 's[48:49]']
    for q in range(len(rows)):
        a(f'v_cmp_eq_u64 {dst[q]}, s[98:99], {v(vt + 2 * q, 2)}')
    a('s_nop 1')
    for q, (so, ig) in enumerate(rows):
        if ig:
            a(f's_or_b64 {dst[q]}, {dst[q]}, {ig}')
        if q:
            a(f's_and_b64 vcc, vcc, {dst[q]}')
    a(f'''
    s_cmp_eq_u64 vcc, -1
    s_cbranch_scc1 {Ld}
    s_sub_u32 s93, s93, 1
    s_cbranch_scc1 {Ld}
    s_sleep {sleep}
    s_branch {L}
    {Ld}:
    ''')


def one_poller(a, vt, word, body, who=3):
    Lw, Ld, Ls = a.label('opw'), a.label('opd'), a.label('ops')
    a(f'''
    v_mov_b32 {v(vt + 3)}, {RDY_A + 4 * word}
    s_cmp_lg_u32 s26, {who}
    s_cbranch_scc1 {Lw}
    ''')
    body()
    a(f'''
    v_mov_b32 {v(vt + 2)}, s98
    ds_write_b32 {v(vt + 3)}, {v(vt + 2)}
    s_branch {Ld}
    {Lw}:
    s_mov_b32 s93, {POLL_MAX * 8}
    {Ls}:
    ds_read_b32 {v(vt + 2)}, {v(vt + 3)}
    s_waitcnt lgkmcnt(0)
    v_readfirstlane_b32 s46, {v(vt + 2)}
    s_cmp_eq_u32 s46, s98
    s_cbranch_scc1 {Ld}
    s_sub_u32 s93, s93, 1
    s_cbranch_scc1 {Ld}
    s_sleep 1
    s_branch {Ls}
    {Ld}:
    ''')


def bstamp(a, first=False):
    if not (asmlib.STAMPS and ENV.get('BST')):
        return
    if first:
        a('s_add_u32 s101, s92, 0xC0000')
    a('''
    s_memrealtime s[94:95]
    s_memtime s[96:97]
    s_waitcnt lgkmcnt(0)
    v_mov_b32 v166, s94
    v_mov_b32 v167, s96
    buffer_store_dwordx2 v[166:167], off, s[88:91], s101
    s_add_u32 s101, s101, 8
    ''')


def srd(a, base, ptr, size):
    a(f'''
    s_mov_b32 s{base}, s{ptr}
    s_mov_b32 s{base + 1}, s{ptr + 1}
    s_mov_b32 s{base + 2}, {size}
    s_mov_b32 s{base + 3}, 0x20000
    ''')


def w_source(a):
    a('''
    s_and_b32 s44, s26, 1
    s_and_b32 s51, s44, s48
    s_lshr_b32 s45, s26, 1
    s_lshl_b32 s46, s44, 6
    s_add_u32 s46, s46, s49
    s_cmp_eq_u32 s48, 1
    s_cselect_b32 s46, s49, s46
    s_lshl_b32 s47, s45, 6
    s_add_u32 s47, s47, s50
    s_cmp_eq_u32 s51, 1
    s_cselect_b32 s52, s47, s46
    s_lshl_b32 s52, s52, 1
    s_cmp_eq_u32 s45, 1
    s_cselect_b32 s12, s82, s80
    s_cselect_b32 s13, s83, s81
    s_mov_b32 s14, 2211840
    s_mov_b32 s53, 3456
    s_cmp_eq_u32 s51, 1
    s_cselect_b32 s12, s70, s12
    s_cselect_b32 s13, s71, s13
    s_cselect_b32 s14, 819200, s14
    s_cselect_b32 s53, 1280, s53
    s_mov_b32 s15, 0x20000
    ''')


def tile_offs(t):
    p, o = t >> 1, t & 1
    b = p * 7168
    return b + o * 1024, b + 2048, b + 3072 + o * 2048, b + 4096 + o * 2048


def gen():
    a = Asm()
    a(kernel_head(KNAME))
    stamp_early(a)
    vL, vH, vR = 1, 2, 3
    L_end = a.label('end')
    L_aux = a.label('aux')
    a(f'''
    s_cmp_ge_u32 s2, 256
    s_cbranch_scc1 {L_end}
    s_load_dwordx8 s[68:75], s[0:1], 0
    s_load_dwordx4 s[80:83], s[0:1], 48
    s_load_dwordx4 s[76:79], s[0:1], 80
    s_load_dwordx2 s[84:85], s[0:1], 32
    s_load_dwordx4 s[88:91], s[0:1], 64
    v_lshrrev_b32 v4, 6, v0
    v_and_b32 {v(vL)}, 63, v0
    v_readfirstlane_b32 s24, v4
    v_lshrrev_b32 {v(vH)}, 5, {v(vL)}
    v_and_b32 {v(vR)}, 31, {v(vL)}
    ''')
    if CWARM:
        Lw, Lp = a.label('nowarm'), a.label('pc')
        a(f'''
        s_cmp_lg_u32 s24, 11
        s_cbranch_scc1 {Lw}
        s_getpc_b64 s[4:5]
        {Lp}:
        s_bfe_u32 s44, s2, 0x30003
        s_lshl_b32 s44, s44, 13
        v_lshl_add_u32 v4, {v(vL)}, 7, s44
        v_min_u32 v4, {L_end}-{Lp}, v4
        global_load_dword v165, v4, s[4:5]
        {Lw}:
        ''')
    vXD, vWD, vKD = 20, 22, 24
    t0, t1, t2, t3, t4 = 4, 5, 6, 7, 8
    a(f'''
    s_bfe_u32 s27, s2, 0x30003
    s_and_b32 s46, s2, 1
    s_lshl_b32 s46, s46, 3
    s_add_u32 s27, s27, s46
    s_bfe_u32 s46, s2, 0x20001
    s_xor_b32 s46, s46, {JX}
    s_lshl_b32 s46, s46, 2
    s_lshr_b32 s47, s2, 6
    s_add_u32 s28, s46, s47
    s_cmp_ge_u32 s28, 11
    s_cselect_b32 s48, 1, 0
    s_sub_u32 s44, s28, 11
    s_lshl_b32 s45, s44, 6
    s_add_u32 s45, s45, 1408
    s_lshl_b32 s46, s28, 7
    s_lshl_b32 s50, s44, 7
    s_cmp_eq_u32 s48, 1
    s_cselect_b32 s49, s45, s46
    s_and_b32 s25, s24, 1
    s_lshr_b32 s26, s24, 1
    s_sub_u32 s44, s24, 8
    s_cmp_ge_u32 s24, 8
    s_cselect_b32 s26, s44, s26
    s_and_b32 s44, s26, 1
    s_and_b32 s51, s44, s48
    s_lshr_b32 s43, s26, 1
    s_andn2_b32 s46, s44, s48
    s_lshl_b32 s46, s46, 6
    s_add_u32 s46, s46, s49
    s_lshl_b32 s47, s43, 6
    s_add_u32 s47, s47, s50
    s_mov_b32 s53, 3456
    s_cmp_eq_u32 s51, 1
    s_cselect_b32 s52, s47, s46
    s_cselect_b32 s53, 1280, s53
    s_lshl_b32 s52, s52, 1
    s_lshl_b32 s31, s53, 3
    s_lshl_b32 s32, s53, 6
    v_lshrrev_b32 {v(t0)}, 3, {v(vL)}
    v_and_b32 {v(t1)}, 7, {v(vL)}
    s_lshl_b32 s44, s27, 7
    s_lshl_b32 s45, s26, 5
    s_add_u32 s44, s44, s45
    v_add_u32 {v(t2)}, s44, {v(t0)}
    v_mul_u32_u24 {v(t2)}, 1280, {v(t2)}
    v_lshrrev_b32 {v(t3)}, 1, {v(t0)}
    v_xor_b32 {v(t3)}, {v(t3)}, {v(t1)}
    v_lshl_add_u32 {v(vXD)}, {v(t3)}, 4, {v(t2)}
    v_xor_b32 {v(t3)}, 4, {v(t3)}
    v_lshl_add_u32 {v(vXD + 1)}, {v(t3)}, 4, {v(t2)}
    v_add_u32 {v(vXD + 1)}, {8 * 1280}, {v(vXD + 1)}
    v_mul_lo_u32 {v(t2)}, {v(t0)}, s53
    v_lshrrev_b32 {v(t3)}, 1, {v(t1)}
    v_and_b32 {v(t4)}, 2, {v(t0)}
    v_xor_b32 {v(t3)}, {v(t3)}, {v(t4)}
    v_and_b32 {v(t4)}, 1, {v(t1)}
    v_lshl_add_u32 {v(t2)}, {v(t4)}, 4, {v(t2)}
    v_add_u32 {v(t2)}, s52, {v(t2)}
    v_lshl_add_u32 {v(vWD)}, {v(t3)}, 5, {v(t2)}
    v_xor_b32 {v(t3)}, 1, {v(t3)}
    v_lshl_add_u32 {v(vWD + 1)}, {v(t3)}, 5, {v(t2)}
    s_lshl_b32 s36, s26, 12
    s_mul_i32 s37, s26, 24576
    s_add_u32 s37, s37, {LDS_W}
    s_lshl_b32 s33, s53, 5
    s_mul_i32 s33, s33, s25
    s_lshl_b32 s44, s25, 12
    s_add_u32 s35, s37, s44
    s_bfe_u32 s44, s2, 0x30003
    s_lshr_b32 s45, s2, 6
    s_add_u32 s44, s44, s45
    s_and_b32 s100, s44, {PERM}
    s_xor_b32 s45, s100, 1
    s_mul_i32 s38, s100, s32
    s_mul_i32 s39, s45, s32
    s_mov_b32 s10, 2621440
    s_mov_b32 s11, 0x20000
    s_mov_b32 s14, 2211840
    s_mov_b32 s15, 0x20000
    s_cmp_ge_u32 s24, 8
    s_cbranch_scc1 {L_aux}
    s_cmp_eq_u32 s43, 1
    s_waitcnt lgkmcnt(0)
    s_cselect_b32 s12, s82, s80
    s_cselect_b32 s13, s83, s81
    s_cmp_eq_u32 s51, 1
    s_cselect_b32 s12, s70, s12
    s_cselect_b32 s13, s71, s13
    s_cselect_b32 s14, 819200, s14
    ''')
    def c_start(c):
        for e in range(4):
            a(f'''
            s_add_u32 m0, s35, {c * 8192 + e * 1024}
            s_add_u32 s34, s33, s{38 + c}
            buffer_load_dwordx4 {v(vWD + (e & 1))}, s[12:15], s34 offen lds
            ''')
            if e < 3:
                a('s_add_u32 s33, s33, s31')
            elif c == 0:
                a('s_mul_i32 s44, s31, 3\ns_sub_u32 s33, s33, s44')
    c_start(0)
    if not LATE1:
        c_start(1)
    L_com = a.label('common')
    a(f'''
    s_mov_b32 s8, s68
    s_mov_b32 s9, s69
    s_mov_b32 s16, s72
    s_mov_b32 s17, s73
    s_mov_b32 s18, 25600
    s_mov_b32 s19, 0x20000
    v_mov_b32 {v(vKD)}, 0
    s_branch {L_com}
    {L_aux}:
    s_setprio {PRIO1}
    s_cmp_lt_u32 s28, 8
    s_cselect_b32 s54, 1, 0
    s_cmp_lt_u32 s26, 3
    s_cselect_b32 s40, s54, 0
    s_lshl_b32 s44, s26, 10
    s_add_u32 s38, s44, {LDS_KV}
    v_lshl_add_u32 {v(vKD)}, {v(vL)}, 4, s44
    s_mov_b32 s18, 25600
    s_mov_b32 s19, 0x20000
    s_lshl_b32 s46, s100, 7
    s_lshl_b32 s57, s45, 7
    s_mul_i32 s58, s100, 2560
    s_mul_i32 s59, s45, 2560
    s_bitcmp1_b32 s28, 2
    s_waitcnt lgkmcnt(0)
    s_mov_b32 s8, s68
    s_mov_b32 s9, s69
    s_cselect_b32 s16, s74, s72
    s_cselect_b32 s17, s75, s73
    ''')
    def a_start(c):
        for e in range(4):
            a(f'''
            s_add_u32 m0, s36, {LDS_X + c * 16384 + e * 1024}
            s_add_u32 s34, s{(46, 57)[c]}, {(e >> 1) * 16 * 1280}
            buffer_load_dwordx4 {v(vXD + (e & 1))}, s[8:11], s34 offen lds
            ''')
        lab = a.label('nokv')
        a(f'''
        s_cmp_eq_u32 s40, 0
        s_cbranch_scc1 {lab}
        s_add_u32 m0, s38, {c * 3072}
        s_nop 0
        buffer_load_dwordx4 {v(vKD)}, s[16:19], s{58 + c} offen lds
        {lab}:
        ''')
    a_start(0)
    if not LATE1:
        a_start(1)
    a(f'''
    s_cmp_eq_u32 s43, 1
    s_cselect_b32 s12, s82, s80
    s_cselect_b32 s13, s83, s81
    s_cmp_eq_u32 s51, 1
    s_cselect_b32 s12, s70, s12
    s_cselect_b32 s13, s71, s13
    s_cselect_b32 s14, 819200, s14
    {L_com}:
    s_mov_b32 s62, 0
    s_mov_b32 s63, -1
    s_and_b32 s44, s2, 7
    s_lshl_b32 s44, s44, 2
    s_bfe_u32 s46, s2, 0x20003
    s_add_u32 s29, s44, s46
    s_lshr_b32 s30, s2, 5
    ''')
    srd(a, 20, 78, WS_USED)
    srd(a, 64, 90, 2621440)
    if asmlib.STAMPS:
        a('s_mov_b32 s86, s88\ns_mov_b32 s87, s89')
    WDP = 86 if asmlib.STAMPS else 88
    if asmlib.STAMPS:
        a(f'''
        s_mov_b32 s88, s78
        s_mov_b32 s89, s79
        s_mov_b32 s90, 0x2000000
        s_mov_b32 s91, 0x20000
        s_mul_i32 s92, s2, 12
        s_add_u32 s92, s92, s24
        s_lshl_b32 s92, s92, 8
        s_add_u32 s92, s92, {asmlib.STAMP_OFF}
        ''')
    stamp(a, 0, early=True)
    stamp(a, 24)
    L_aux2 = a.label('aux2')
    a(f'''
    s_cmp_ge_u32 s24, 8
    s_cbranch_scc1 {L_aux2}
    ''')
    compute_wave(a, vL, vH, vR, L_end, c_start)
    a(f'{L_aux2}:')
    aux_wave(a, vL, vH, vR, L_end, WDP, a_start)
    a(f'''
    {L_end}:
    s_endpgm
    ''')
    return a.text()


def compute_wave(a, vL, vH, vR, L_end, c_start):
    al = Alloc(4, 168)
    T = al('T', 8, 4)
    ACC = al('acc', 64, 4)
    XF = al('xf', 32, 4)
    WF = al('wf', 16, 4)
    vXA = al('xa', 2)
    vWA = al('wa', 4)
    assert al.p == 130
    t0, t1, t2, t3, t4 = T, T + 1, T + 2, T + 3, T + 4
    a.c('=========== compute wave: phase 1 ===========')
    CR = 132
    XR = 132
    U = 160
    u0, u1, u2, u3, u4, u5 = range(U, U + 6)
    W4 = 144
    vN = 130
    srd(a, 4, 76, 256)

    a(f'''
    s_lshr_b32 s44, s30, 2
    s_lshl_b32 s46, s29, 1
    s_add_u32 s46, s46, s44
    s_and_b32 s44, s30, 3
    s_lshl_b32 s44, s44, 3
    s_add_u32 s45, s44, s24
    s_mul_i32 s37, s46, 40960
    s_add_u32 s37, s37, {OF_OFF}
    s_lshl_b32 s36, s45, 10
    s_add_u32 s36, s36, s37
    s_lshl_b32 s44, s45, 8
    s_add_u32 s37, s37, s44
    s_add_u32 s37, s37, 32768
    ''')
    PZ = 152
    poison = [f'v_mov_b32 {v(PZ + q)}, -1' for q in range(4)] + [
        f'v_lshlrev_b32 {v(u4)}, 4, {v(vL)}', f'v_lshlrev_b32 {v(u5)}, 2, {v(vL)}',
        f'buffer_store_dwordx4 {v(PZ, 4)}, {v(u4)}, s[20:23], s36 offen sc1',
        f'buffer_store_dword {v(PZ)}, {v(u5)}, s[20:23], s37 offen sc1']

    def lines(txt):
        return [x.strip() for x in txt.split(chr(10)) if x.strip()]

    def load_cs():
        f = lines(f'''
        s_mul_i32 s44, s27, 40
        v_lshrrev_b32 {v(u1)}, 3, {v(vL)}
        v_add_u32 {v(u1)}, s44, {v(u1)}
        v_mul_lo_u32 {v(u2)}, {v(u1)}, s53
        v_and_b32 {v(u1)}, 7, {v(vL)}
        v_lshl_add_u32 {v(u2)}, {v(u1)}, 4, {v(u2)}
        s_mov_b32 s34, s52
        ''')
        for t in range(5):
            f.append([f'buffer_load_dwordx4 {v(CR + 4 * t, 4)}, {v(u2)}, s[12:15], s34 offen', 's_add_u32 s34, s34, s31'])
        return f

    def load_rows():
        f = lines(f'''
        s_lshl_b32 s44, s27, 7
        s_lshl_b32 s45, s28, 3
        s_add_u32 s44, s44, s45
        s_lshl_b32 s45, s26, 1
        s_add_u32 s55, s44, s45
        v_add_u32 {v(u0)}, s55, {v(vH)}
        v_mul_u32_u24 {v(u0)}, 1280, {v(u0)}
        v_lshl_add_u32 {v(u0)}, {v(vR)}, 3, {v(u0)}
        ''')
        for t in range(5):
            f.append(f'buffer_load_dwordx2 {v(XR + 2 * t, 2)}, {v(u0)}, s[8:11], 0 offen offset:{256 * t}')
        return f

    def fill_cs():
        A8 = 152
        f = []
        for q in range(4):
            f += [f'v_lshlrev_b32 {v(A8 + 2 * q)}, 16, {v(CR + q)}', f'v_and_b32 {v(A8 + 2 * q + 1)}, 0xffff0000, {v(CR + q)}']
        for t in range(1, 5):
            for q in range(4):
                ta, tb = (u2, u3) if q & 1 else (u4, u5)
                f += lines(f'''
                v_lshlrev_b32 {v(ta)}, 16, {v(CR + 4 * t + q)}
                v_and_b32 {v(tb)}, 0xffff0000, {v(CR + 4 * t + q)}
                v_add_f32 {v(A8 + 2 * q)}, {v(A8 + 2 * q)}, {v(ta)}
                v_add_f32 {v(A8 + 2 * q + 1)}, {v(A8 + 2 * q + 1)}, {v(tb)}
                ''')
        f.append('s_nop 1')
        f += [f'v_permlane32_swap_b32 {v(A8 + q)}, {v(A8 + 4 + q)}' for q in range(4)]
        f.append('s_nop 1')
        f += [f'v_add_f32 {v(A8 + q)}, {v(A8 + q)}, {v(A8 + 4 + q)}' for q in range(4)]
        f.append('s_nop 1')
        f += [f'v_permlane16_swap_b32 {v(A8 + q)}, {v(A8 + 2 + q)}' for q in range(2)]
        f.append('s_nop 1')
        f += [f'v_add_f32 {v(A8 + q)}, {v(A8 + q)}, {v(A8 + 2 + q)}' for q in range(2)]
        f += lines(f'''
        s_nop 1
        v_add_f32_dpp {v(A8)}, {v(A8)}, {v(A8)} row_ror:8 row_mask:0xf bank_mask:0xf
        v_add_f32_dpp {v(A8 + 1)}, {v(A8 + 1)}, {v(A8 + 1)} row_ror:8 row_mask:0xf bank_mask:0xf
        s_mov_b32 vcc_lo, 0xff00ff00
        s_mov_b32 vcc_hi, 0xff00ff00
        v_cndmask_b32 {v(u0)}, {v(A8)}, {v(A8 + 1)}, vcc
        v_cvt_pk_bf16_f32 {v(u1)}, {v(u0)}, {v(u0)}
        v_and_b32 {v(u1)}, 0xffff0000, {v(u1)}
        v_sub_f32 {v(u1)}, {v(u0)}, {v(u1)}
        v_cvt_pk_bf16_f32 {v(u0)}, {v(u0)}, {v(u1)}
        v_and_b32 {v(u1)}, 7, {v(vL)}
        v_lshl_add_u32 {v(u1)}, {v(u1)}, 1, {v(vH)}
        v_bfe_u32 {v(u2)}, {v(vL)}, 4, 1
        v_lshl_add_u32 {v(u1)}, {v(u1)}, 1, {v(u2)}
        v_bfe_u32 {v(u2)}, {v(vL)}, 3, 1
        v_lshl_add_u32 {v(u1)}, {v(u1)}, 1, {v(u2)}
        v_and_b32 {v(u2)}, 15, {v(u1)}
        v_lshrrev_b32 {v(u3)}, 4, {v(u1)}
        s_and_b32 s44, s26, 1
        s_andn2_b32 s44, s44, s48
        s_lshl_b32 s44, s44, 7
        s_lshr_b32 s45, s26, 1
        s_lshl_b32 s45, s45, 4
        s_add_u32 s44, s44, s45
        v_lshl_add_u32 {v(u4)}, {v(u3)}, 5, s44
        s_add_u32 s44, s26, 3
        s_lshl_b32 s44, s44, 5
        v_lshl_add_u32 {v(u5)}, {v(u3)}, 4, s44
        s_cmp_eq_u32 s51, 1
        s_cselect_b64 vcc, -1, 0
        v_cndmask_b32 {v(u4)}, {v(u4)}, {v(u5)}, vcc
        v_add_lshl_u32 {v(u2)}, {v(u2)}, {v(u4)}, 2
        s_lshl_b32 s44, s28, 14
        s_lshl_b32 s45, s27, 10
        s_add_u32 s44, s44, s45
        s_add_u32 s44, s44, {CSW}
        buffer_store_dword {v(u0)}, {v(u2)}, s[20:23], s44 offen sc1
        s_lshl_b32 s46, s27, 2
        s_add_u32 s46, s46, s26
        s_lshl_b32 s46, s46, 7
        s_lshl_b32 s45, s28, 13
        s_add_u32 s46, s46, s45
        s_add_u32 s56, s46, {F_CS}
        ''')
        return f

    def fill_rows():
        f = [f'v_mov_b32 {v(u0)}, 0', f'v_mov_b32 {v(u1)}, 0']
        for t in range(10):
            f += lines(f'''
            v_lshlrev_b32 {v(u2)}, 16, {v(XR + t)}
            v_and_b32 {v(u3)}, 0xffff0000, {v(XR + t)}
            v_add_f32 {v(u0)}, {v(u0)}, {v(u2)}
            v_fmac_f32 {v(u1)}, {v(u2)}, {v(u2)}
            v_add_f32 {v(u0)}, {v(u0)}, {v(u3)}
            v_fmac_f32 {v(u1)}, {v(u3)}, {v(u3)}
            ''')
        for ror in (8, 4, 2, 1):
            f += lines(f'''
            s_nop 1
            v_add_f32_dpp {v(u0)}, {v(u0)}, {v(u0)} row_ror:{ror} row_mask:0xf bank_mask:0xf
            v_add_f32_dpp {v(u1)}, {v(u1)}, {v(u1)} row_ror:{ror} row_mask:0xf bank_mask:0xf
            ''')
        f += lines(f'''
        v_mov_b32 {v(u2)}, {v(u0)}
        v_mov_b32 {v(u3)}, {v(u1)}
        s_nop 1
        v_permlane16_swap_b32 {v(u0)}, {v(u2)}
        v_permlane16_swap_b32 {v(u1)}, {v(u3)}
        s_mov_b32 s44, {f2u(1.0 / 640.0)}
        s_mov_b32 s45, {f2u(1e-5)}
        v_add_f32 {v(u0)}, {v(u0)}, {v(u2)}
        v_add_f32 {v(u1)}, {v(u1)}, {v(u3)}
        v_mul_f32 {v(u0)}, s44, {v(u0)}
        v_mul_f32 {v(u1)}, s44, {v(u1)}
        v_fma_f32 {v(u1)}, -{v(u0)}, {v(u0)}, {v(u1)}
        v_max_f32 {v(u1)}, 0, {v(u1)}
        v_cvt_pk_bf16_f32 {v(W4)}, -{v(u0)}, -{v(u0)}
        v_cvt_pk_bf16_f32 {v(u1)}, {v(u1)}, {v(u1)}
        v_and_b32 {v(u1)}, 0xffff0000, {v(u1)}
        v_add_f32 {v(u1)}, s45, {v(u1)}
        v_cvt_pk_bf16_f32 {v(u1)}, {v(u1)}, {v(u1)}
        v_and_b32 {v(u1)}, 0xffff0000, {v(u1)}
        v_sqrt_f32 {v(u1)}, {v(u1)}
        v_mov_b32 {v(W4 + 3)}, 0
        v_cvt_pk_bf16_f32 {v(u1)}, {v(u1)}, {v(u1)}
        v_and_b32 {v(u1)}, 0xffff0000, {v(u1)}
        v_rcp_f32 {v(W4 + 1)}, {v(u1)}
        v_mul_f32 {v(W4 + 2)}, {v(u1)}, {v(u1)}
        v_lshlrev_b32 {v(u2)}, 4, {v(vH)}
        s_lshl_b32 s44, s55, 4
        s_add_u32 s44, s44, {ROWW}
        ''')
        f.append(['s_mov_b32 exec_lo, 1', 's_mov_b32 exec_hi, 1',
                  f'buffer_store_dwordx4 {v(W4, 4)}, {v(u2)}, s[20:23], s44 offen sc1', 's_mov_b64 exec, -1'])
        f += lines(f'''
        s_lshl_b32 s44, s28, 2
        s_add_u32 s44, s44, s26
        s_lshl_b32 s44, s44, 7
        s_lshl_b32 s45, s27, 13
        s_add_u32 s44, s44, s45
        s_add_u32 s56, s44, {F_ST}
        ''')
        return f

    stamp(a, 22)
    a(f'''
    v_and_b32 {v(t0)}, 15, {v(vL)}
    v_lshrrev_b32 {v(t1)}, 4, {v(vL)}
    v_lshrrev_b32 {v(t2)}, 1, {v(t0)}
    v_xor_b32 {v(t2)}, {v(t2)}, {v(t1)}
    v_lshlrev_b32 {v(t0)}, 7, {v(t0)}
    s_lshl_b32 s44, s25, 13
    v_add_u32 {v(t0)}, s44, {v(t0)}
    v_lshl_add_u32 {v(vXA)}, {v(t2)}, 4, {v(t0)}
    v_xor_b32 {v(t2)}, 4, {v(t2)}
    v_lshl_add_u32 {v(vXA + 1)}, {v(t2)}, 4, {v(t0)}
    v_bfe_u32 {v(t2)}, {v(vL)}, 2, 2
    v_lshl_add_u32 {v(t0)}, {v(t1)}, 3, {v(t2)}
    v_lshlrev_b32 {v(t0)}, 7, {v(t0)}
    v_and_b32 {v(t3)}, 3, {v(vL)}
    v_lshl_add_u32 {v(t0)}, {v(t3)}, 3, {v(t0)}
    v_and_b32 {v(t2)}, 2, {v(t2)}
    v_and_b32 {v(t1)}, 1, {v(t1)}
    v_xor_b32 {v(t1)}, {v(t1)}, {v(t2)}
    s_lshr_b32 s44, s26, 1
    s_and_b32 s57, s44, s48
    ''')
    for t in range(4):
        a(f'''
        s_lshl_b32 s44, s26, 1
        s_add_u32 s45, s44, {t >> 1}
        s_and_b32 s46, s45, 3
        s_lshr_b32 s45, s45, 2
        s_add_u32 s45, s45, {2 * (t & 1)}
        s_sub_u32 s44, s44, 3
        s_cmp_eq_u32 s57, 1
        s_cselect_b32 s45, s44, s45
        s_cselect_b32 s46, {t}, s46
        s_mul_i32 s45, s45, 24576
        s_add_u32 s45, s45, {LDS_W}
        v_xor_b32 {v(t2)}, s46, {v(t1)}
        v_lshl_add_u32 {v(t2)}, {v(t2)}, 5, {v(t0)}
        v_add_u32 {v(vWA + t)}, s45, {v(t2)}
        ''')

    def m16(d, A, B, first=False):
        return f'v_mfma_f32_16x16x32_bf16 {v(d, 4)}, {v(A, 4)}, {v(B, 4)}, ' + ('0' if first else v(d, 4))

    def xrd(g):
        c, sI = divmod(g, 2)
        return [f'ds_read_b128 {v(XF + 16 * (g & 1) + 4 * rt, 4)}, {v(vXA + sI)} offset:{LDS_X + (c % 3) * 16384 + 2048 * rt}' for rt in range(4)]

    def wrd(g, t):
        c, sI = divmod(g, 2)
        return [f'ds_read_b64_tr_b16 {v(WF + 4 * t + 2 * z, 2)}, {v(vWA + t)} offset:{(c % 3) * 8192 + 4096 * sI + 512 * z}' for z in range(2)]

    def tile(g, t):
        return [m16(ACC + 16 * t + 4 * rt, WF + 4 * t, XF + 16 * (g & 1) + 4 * rt, g == 0) for rt in range(4)]

    def chunk(c, fill=()):
        a.c(f'chunk {c}')
        if c:
            a('s_waitcnt lgkmcnt(0)')
        a('s_barrier')
        if not FEWST or c in (0, 1, 2, 9):
            stamp(a, 1 + c)
        if c == 9:
            lab = a.label('nqp')
            a(f's_cmp_eq_u32 s57, 0\ns_cbranch_scc1 {lab}\ns_setprio 2\n{lab}:')
        seq = []

        def rest(g, waits):
            pend = (wrd(g + 1, 0) + xrd(g + 1)) if g + 1 < 20 else []
            for t in range(1, 4):
                ms = tile(g, t)
                for q, m_ in enumerate(ms):
                    pre_ = [f's_waitcnt lgkmcnt({(0, 4, 10, 10)[t]})'] if (waits and q == 0) else []
                    ex = pend[2 * q:2 * q + 2] if t == 1 else []
                    if q == 3 and g + 1 < 20:
                        ex = ex + wrd(g + 1, t)
                    seq.append((pre_, m_, ex))
        if c > 0:
            rest(2 * c - 1, False)
        else:
            emit(a, wrd(0, 0) + xrd(0) + wrd(0, 1) + wrd(0, 2) + wrd(0, 3))
        g = 2 * c
        for q, m_ in enumerate(tile(g, 0)):
            seq.append((['s_waitcnt lgkmcnt(6)'] if q == 0 else [], m_, []))
        rest(g, True)
        for q, m_ in enumerate(tile(g + 1, 0)):
            seq.append((['s_waitcnt lgkmcnt(6)'] if q == 0 else [], m_, []))
        n, k_ = len(fill), len(seq)
        for q, (pre_, m_, ex) in enumerate(seq):
            emit(a, pre_)
            a(m_)
            emit(a, ex)
            emit(a, fill[(q * n) // k_:((q + 1) * n) // k_])

    if LATE1:
        c_start(1)
    lab1, lab2 = a.label('rowv'), a.label('join')
    a(f's_cmp_eq_u32 s25, 1\ns_cbranch_scc1 {lab1}')
    for var, (ld, fl) in enumerate(((load_cs(), fill_cs()), (load_rows(), fill_rows()))):
        qp = [] if var == 0 else lines(f'''
        s_mul_i32 s44, s27, 163840
        s_mul_i32 s45, s28, 10240
        s_add_u32 s44, s44, s45
        s_mul_i32 s45, s26, 2560
        s_add_u32 s44, s44, s45
        s_add_u32 s44, s44, {QF_OFF}
        v_lshlrev_b32 {v(u5)}, 3, {v(vL)}
        buffer_store_dwordx4 {v(PZ, 4)}, {v(u4)}, s[20:23], s44 offen sc1
        buffer_store_dwordx4 {v(PZ, 4)}, {v(u4)}, s[20:23], s44 offen offset:1024 sc1
        buffer_store_dwordx2 {v(PZ, 2)}, {v(u5)}, s[20:23], s44 offen offset:2048 sc1
        ''')
        nl = [f'buffer_load_dword {v(vN)}, off, s[4:7], 0 sc1']
        pz0 = poison + qp if PZ0 else []
        fl = (fl + nl) if PZ0 else (poison + qp + fl + nl)
        if SLC == 0:
            emit(a, ld)
        a(f's_waitcnt vmcnt({9 if SLC == 0 else 4})')
        chunk(0, pz0)
        a(f's_waitcnt vmcnt({(5 if SLC == 0 else 0) + ((2, 5)[var] if PZ0 else 0)})')
        n = len(fl)
        f0 = SLC + SLG
        for c in range(1, f0 + SPN):
            if c == SLC:
                chunk(c, ld)
            elif c >= f0:
                q = c - f0
                chunk(c, ([f's_waitcnt vmcnt({(2, 5)[var] if PZ0 else 0})'] if q == 0 else []) + fl[(q * n) // SPN:((q + 1) * n) // SPN])
            else:
                chunk(c)
        if var == 0:
            a(f's_branch {lab2}\n{lab1}:')
    a(f'{lab2}:')
    chunk(f0 + SPN)
    Lp, Lq = a.label('cnp'), a.label('cnd')
    a(f'''
    s_mov_b32 s93, {POLL_MAX}
    {Lp}:
    s_waitcnt vmcnt(0)
    v_readfirstlane_b32 s98, {v(vN)}
    s_cmp_lg_u32 s98, 0
    s_cbranch_scc1 {Lq}
    s_sub_u32 s93, s93, 1
    s_cbranch_scc1 {Lq}
    buffer_load_dword {v(vN)}, off, s[4:7], 0 sc1
    s_branch {Lp}
    {Lq}:
    s_xor_b32 s99, s98, {NONCE_X}
    ''')
    lab = a.label('noxid')
    a(f'''
    s_cmp_lg_u32 s24, 0
    s_cbranch_scc1 {lab}
    s_getreg_b32 s44, hwreg(HW_REG_XCC_ID, 0, 4)
    s_lshl_b32 s45, s29, 7
    s_lshl_b32 s46, s30, 3
    s_add_u32 s45, s45, s46
    s_add_u32 s45, s45, {F_X}
    v_mov_b32 {v(U)}, s98
    v_mov_b32 {v(U + 1)}, s44
    s_mov_b64 exec, 1
    buffer_store_dwordx2 {v(U, 2)}, off, s[20:23], s45 sc1
    s_mov_b64 exec, -1
    {lab}:
    ''')
    flag_store(a, 's56', U + 2)
    RC, CSF, vS16 = 132, 148, 131
    pre = lines(f'''
    v_and_b32 {v(t2)}, 15, {v(vL)}
    v_lshrrev_b32 {v(t3)}, 4, {v(vL)}
    s_lshl_b32 s44, s25, 10
    s_add_u32 s44, s44, {ROWC_A}
    v_lshl_add_u32 {v(t0)}, {v(t2)}, 4, s44
    s_lshl_b32 s44, s26, 8
    s_add_u32 s44, s44, {CS_A}
    v_lshl_add_u32 {v(t1)}, {v(t2)}, 2, s44
    v_lshl_add_u32 {v(t1)}, {v(t3)}, 12, {v(t1)}
    v_lshlrev_b32 {v(vS16)}, 4, {v(t2)}
    v_lshl_add_u32 {v(vS16)}, {v(t3)}, 9, {v(vS16)}
    ''')
    pre += [f'ds_read_b128 {v(RC + 4 * rt, 4)}, {v(t0)} offset:{256 * rt}' for rt in range(4)]
    for t in range(4):
        for z in range(2):
            pre.append(f'ds_read2st64_b32 {v(CSF + 4 * t + 2 * z, 2)}, {v(t1)} offset0:{8 * z} offset1:{8 * z + 4}')
        if t < 3:
            pre.append(f'v_add_u32 {v(t1)}, 64, {v(t1)}')
    for c in range(f0 + SPN + 1, 10):
        chunk(c, pre if c == 9 else ())
    a(f'''
    s_lshl_b32 s44, s24, 2
    s_add_u32 s44, s44, {CD_A}
    v_mov_b32 {v(t0)}, s44
    v_mov_b32 {v(t1)}, s98
    s_waitcnt lgkmcnt(0)
    ds_write_b32 {v(t0)}, {v(t1)}
    ''')
    NEG = XF
    HH = 148
    ms = tile(19, 1) + tile(19, 2) + tile(19, 3)
    mv = [f'v_mov_b32 {v(NEG + 4 * rt + r)}, {v(RC + 4 * rt)}' for rt in range(4) for r in range(4)]
    for q, m_ in enumerate(ms):
        a(m_)
        emit(a, mv[(q * 16) // 12:((q + 1) * 16) // 12])
    stamp(a, 12)
    a(f'''
    s_mov_b32 s46, {f2u(C0)}
    s_mov_b32 s47, {f2u(C1)}
    ''')
    for rt in range(4):
        for t in range(4):
            a(m16(ACC + 16 * t + 4 * rt, CSF + 4 * t, NEG + 4 * rt))
    L_q = a.label('qepi')
    L_ed = a.label('epidone')
    a(f'''
    s_lshl_b32 s44, s27, 2
    s_lshl_b32 s45, s25, 1
    s_add_u32 s60, s44, s45
    s_cmp_eq_u32 s57, 1
    s_cbranch_scc1 {L_q}
    s_lshr_b32 s44, s49, 4
    s_lshl_b32 s45, s26, 1
    s_add_u32 s44, s44, s45
    s_mul_i32 s42, s60, 108
    s_add_u32 s42, s42, s44
    s_lshl_b32 s42, s42, 10
    s_add_u32 s43, s42, {108 * 1024}
    ''')
    E1, E2, KC = XF + 16, WF, T
    for rt in range(4):
        TT = E1 + 8 * (rt % 2)
        PP = E2 + 8 * (rt % 2)
        G_ = lambda i: ACC + 32 * (i >> 2) + 4 * rt + (i & 3)
        rho = RC + 4 * rt + 1
        a(f'''
        v_mul_f32 {v(KC)}, s46, {v(rho)}
        v_mul_f32 {v(KC + 1)}, s46, {v(rho)}
        v_mul_f32 {v(KC + 4)}, {v(rho)}, {v(rho)}
        v_mov_b32 {v(RC + 4 * rt + 3)}, {v(RC + 4 * rt + 2)}
        v_mul_f32 {v(KC + 4)}, {v(KC + 4)}, {v(rho)}
        v_mul_f32 {v(KC + 2)}, s47, {v(KC + 4)}
        v_mul_f32 {v(KC + 3)}, s47, {v(KC + 4)}
        ''')
        rc = v(RC + 4 * rt + 2, 2)
        for i in range(0, 8, 2):
            a(f'v_pk_mul_f32 {v(TT + i, 2)}, {v(G_(i), 2)}, {v(G_(i), 2)}')
        for i in range(0, 8, 2):
            a(f'v_pk_fma_f32 {v(TT + i, 2)}, {v(TT + i, 2)}, {v(KC + 2, 2)}, {v(KC, 2)}')
        for i in range(0, 8, 2):
            a(f'v_pk_mul_f32 {v(TT + i, 2)}, {v(TT + i, 2)}, {v(G_(i), 2)}')
        for i in range(8):
            a(f'v_exp_f32 {v(TT + i)}, {v(TT + i)}')
        for i in range(0, 8, 2):
            a(f'v_pk_mul_f32 {v(PP + i, 2)}, {v(G_(i), 2)}, {v(G_(i) + 16, 2)}')
        for i in range(0, 8, 2):
            a(f'v_pk_fma_f32 {v(TT + i, 2)}, {v(TT + i, 2)}, {rc}, {rc}')
        for i in range(8):
            a(f'v_rcp_f32 {v(TT + i)}, {v(TT + i)}')
        a('s_nop 0')
        for i in range(0, 8, 2):
            a(f'v_pk_mul_f32 {v(PP + i, 2)}, {v(PP + i, 2)}, {v(TT + i, 2)}')
        for i in range(4):
            a(f'v_cvt_pk_bf16_f32 {v(HH + 4 * rt + i)}, {v(PP + 2 * i)}, {v(PP + 2 * i + 1)}')
    a(f's_branch {L_ed}')
    a(f'{L_q}:')
    a(f'''
    s_sub_u32 s44, s26, 2
    s_lshl_b32 s44, s44, 6
    s_add_u32 s44, s44, s50
    s_lshl_b32 s44, s44, 6
    s_add_u32 s44, s44, {QF_OFF}
    s_mov_b32 s45, {f2u(QSC)}
    s_mul_i32 s46, s60, 40960
    s_add_u32 s46, s46, s44
    s_add_u32 s47, s46, 40960
    ''')
    for rt in range(4):
        a(f'v_mul_f32 {v(T + rt)}, s45, {v(RC + 4 * rt + 1)}')
    for rt in range(4):
        for pz in range(2):
            O_ = E1 + 4 * ((2 * rt + pz) % 8)
            regs = [ACC + 16 * (2 * pz + (i >> 2)) + 4 * rt + (i & 3) for i in range(8)]
            for r_ in regs:
                a(f'v_mul_f32 {v(r_)}, {v(r_)}, {v(T + rt)}')
            for i in range(4):
                a(f'v_cvt_pk_bf16_f32 {v(O_ + i)}, {v(regs[2 * i])}, {v(regs[2 * i + 1])}')
            a(f'buffer_store_dwordx4 {v(O_, 4)}, {v(vS16)}, s[20:23], s{46 + (rt >> 1)} offen offset:{2048 * pz + 256 * (rt & 1)} sc1')
    a(f'{L_ed}:')
    stamp(a, 13)

    a.c('=========== compute wave: attention ===========')
    al3 = Alloc(4, 168)
    T = al3('T', 16, 4)
    S = al3('S', 32, 4)
    O = al3('O', 16, 4)
    V1 = al3('V1', 4, 4)
    V2 = al3('V2', 4, 4)
    Q1 = al3('Q1', 4, 4)
    K1 = al3('K1', 8, 4)
    K2 = al3('K2', 8, 4)
    P = al3('P', 16, 4)
    Q2 = al3('Q2', 2, 2)
    vK = al3('vK')
    vK2 = al3('vK2')
    a(f'''
    s_lshl_b32 s44, s27, 1
    s_add_u32 s44, s44, s25
    s_lshl_b32 s44, s44, 13
    s_lshl_b32 s45, s28, 2
    s_add_u32 s45, s45, s26
    s_lshl_b32 s45, s45, 7
    s_add_u32 s44, s44, s45
    s_add_u32 s41, s44, {F_QH}
    s_nop 1
    ''')
    for i in range(16):
        a(f'v_mov_b32 {v(O + i)}, 0')
    for i in range(4):
        a(f'v_mov_b32 {v(V1 + i)}, 0')
        a(f'v_mov_b32 {v(V2 + i)}, 0')
    a(f'''
    s_mov_b32 s45, {KVR}
    v_lshl_add_u32 {v(vK)}, {v(vL)}, 4, s45
    v_lshl_add_u32 {v(vK2)}, {v(vL)}, 3, s45
    s_mul_i32 s45, s24, 5
    v_lshlrev_b32 {v(T + 4)}, 4, {v(vR)}
    s_lshr_b32 s44, s30, 2
    s_lshl_b32 s46, s29, 1
    s_add_u32 s44, s44, s46
    s_mul_i32 s44, s44, 40960
    s_and_b32 s46, s30, 3
    s_mul_i32 s46, s46, 10240
    s_add_u32 s44, s44, s46
    s_add_u32 s40, s44, {QF_OFF}
    ''')
    for z, (dq, useh) in enumerate(((0, 1), (2, 1), (4, 0))):
        a(f's_add_u32 s46, s45, {dq}')
        a(f'v_add_u32 {v(T + 5)}, s46, {v(vH)}' if useh else f'v_mov_b32 {v(T + 5)}, s46')
        a(f'''
        v_lshrrev_b32 {v(T + 6)}, 3, {v(T + 5)}
        v_lshl_add_u32 {v(T + 6)}, {v(T + 6)}, 11, {v(T + 4)}
        v_and_b32 {v(T + 7)}, 3, {v(T + 5)}
        v_lshl_add_u32 {v(T + 6)}, {v(T + 7)}, 9, {v(T + 6)}
        v_bfe_u32 {v(T + 5)}, {v(T + 5)}, 2, 1
        v_lshl_add_u32 {v(T + 13 + z)}, {v(T + 5)}, 3, {v(T + 6)}
        ''')
    a('s_setprio 0')
    for i in range(8):
        a(f'v_mov_b32 {v(P + 8 + i)}, 0')
    Lp, Lq = a.label('qp'), a.label('qpd')
    a(f'''
    s_mov_b32 s93, {OPOLL_MAX}
    {Lp}:
    buffer_load_dwordx2 {v(Q1, 2)}, {v(T + 13)}, s[20:23], s40 offen sc1
    buffer_load_dwordx2 {v(Q1 + 2, 2)}, {v(T + 14)}, s[20:23], s40 offen sc1
    buffer_load_dwordx2 {v(Q2, 2)}, {v(T + 15)}, s[20:23], s40 offen sc1
    s_waitcnt vmcnt(0)
    v_max3_u32 {v(T)}, {v(Q1)}, {v(Q1 + 1)}, {v(Q1 + 2)}
    v_max3_u32 {v(T + 1)}, {v(Q1 + 3)}, {v(Q2)}, {v(Q2 + 1)}
    v_max_u32 {v(T)}, {v(T)}, {v(T + 1)}
    v_cmp_eq_u32 vcc, -1, {v(T)}
    s_nop 1
    s_cmp_eq_u64 vcc, 0
    s_cbranch_scc1 {Lq}
    s_sub_u32 s93, s93, 1
    s_cbranch_scc1 {Lq}
    s_sleep {QSLEEP}
    s_branch {Lp}
    {Lq}:
    v_mov_b32 {v(T + 2)}, 0
    v_cndmask_b32 {v(Q2)}, {v(Q2)}, {v(T + 2)}, {HM}
    v_cndmask_b32 {v(Q2 + 1)}, {v(Q2 + 1)}, {v(T + 2)}, {HM}
    ''')
    stamp(a, 14)
    a('s_barrier')
    stamp(a, 15)
    o0, o1, o2 = tile_offs(0), tile_offs(1), tile_offs(2)
    a(f'''
    ds_read_b128 {v(K1, 4)}, {v(vK)} offset:{o0[0]}
    ds_read_b128 {v(K1 + 4, 4)}, {v(vK)} offset:{o1[0]}
    ds_read2st64_b64 {v(K2, 4)}, {v(vK2)} offset0:{o0[1] // 512} offset1:{o0[1] // 512 + 1}
    s_waitcnt lgkmcnt(0)
    ''')

    def set_m(mreg, offset):
        t0, t1, t2, t3 = T + 8, T + 9, T + 10, T + 11
        a(f'v_sub_f32 {v(t0)}, {f2u(-offset) if offset else 0}, {v(mreg)}')
        a(f'''
        v_cvt_pk_bf16_f32 {v(t1)}, {v(t0)}, {v(t0)}
        v_and_b32 {v(t2)}, 0xffff0000, {v(t1)}
        v_sub_f32 {v(t2)}, {v(t0)}, {v(t2)}
        v_cvt_pk_bf16_f32 {v(t1)}, {v(t0)}, {v(t2)}
        v_and_b32 {v(t3)}, 0xffff0000, {v(t1)}
        v_sub_f32 {v(t2)}, {v(t2)}, {v(t3)}
        v_mov_b32 {v(t3)}, 0
        v_cvt_pk_bf16_f32 {v(t2)}, {v(t2)}, {v(t3)}
        v_cndmask_b32 {v(Q2)}, {v(Q2)}, {v(t1)}, {HM}
        v_cndmask_b32 {v(Q2 + 1)}, {v(Q2 + 1)}, {v(t2)}, {HM}
        ''')

    def cross_half_max(reg):
        t = T + 12
        a(f'''
        v_mov_b32 {v(t)}, {v(reg)}
        s_nop 1
        v_permlane32_swap_b32 {v(reg)}, {v(t)}
        s_nop 1
        v_max_f32 {v(reg)}, {v(reg)}, {v(t)}
        ''')

    for t in range(2):
        a(mfma16(S + 16 * t, K1 + 4 * t, Q1))
    if HST < 0:
        lab = a.label('nohst')
        a(f'''
        s_cmp_eq_u32 s57, 1
        s_cbranch_scc1 {lab}
        ''')
        for k in range(4):
            a(f'buffer_store_dwordx4 {v(HH + 4 * k, 4)}, {v(vS16)}, s[20:23], s{42 + (k >> 1)} offen offset:{256 * (k & 1)} sc1')
        a(f'{lab}:')
    a('s_nop 9')
    for t in range(2):
        a(mfma8(S + 16 * t, K2 + 2 * t, Q2, S + 16 * t))
    a('s_nop 11')
    m = T + 4
    for z in range(2):
        a(f'v_max3_f32 {v(m + z)}, {v(S + 16 * z)}, {v(S + 16 * z + 1)}, {v(S + 16 * z + 2)}')
    for i in range(3, 15, 2):
        for z in range(2):
            a(f'v_max3_f32 {v(m + z)}, {v(m + z)}, {v(S + 16 * z + i)}, {v(S + 16 * z + i + 1)}')
    a(f'v_max3_f32 {v(m)}, {v(m)}, {v(S + 15)}, {v(S + 31)}')
    a(f'v_max_f32 {v(m)}, {v(m)}, {v(m + 1)}')
    cross_half_max(m)
    set_m(m, M_OFFSET)
    a('s_nop 1')
    a(mfma16(S, K1, Q1))
    a(f'''
    ds_read_b128 {v(K1, 4)}, {v(vK)} offset:{o2[0]}
    s_mov_b32 s34, 4
    s_nop 7
    ''')
    a(mfma8(S, K2, Q2, S))
    a('s_nop 9')
    stamp(a, 16)

    def toff(tt):
        tt &= 15
        o = tile_offs(tt & 3)
        return [x + (tt >> 2) * CH_BYTES for x in o]

    def k2read(reg, tt):
        o = toff(tt)[1]
        assert o % 512 == 0
        return f'ds_read2st64_b64 {v(reg, 4)}, {v(vK2)} offset0:{o // 512} offset1:{o // 512 + 1}'

    L_hf, L_hb = a.label('hflag'), a.label('hback')
    L_hs, L_hsb = a.label('hst'), a.label('hstb')
    a('s_cmp_eq_u32 s57, 1\ns_cselect_b32 s33, 99, 4')

    def slot(t):
        Sx, Sn = S + 16 * (t & 1), S + 16 * ((t + 1) & 1)
        Px, Pp = P + 8 * (t & 1), P + 8 * ((t + 1) & 1)
        kt = t + 1
        kb = kt & 1
        k2 = K2 + 4 * ((kt >> 1) & 1) + 2 * (kt & 1)
        m_ = [mfma16(Sn, K1 + 4 * kb, Q1), mfma16(O, V1, Pp, O), mfma8(Sn, k2, Q2, Sn), mfma16(O, V2, Pp + 4, O)]
        after = [[], [], [], []]
        if t & 3 == 1:
            after[0] = ['s_barrier']
        after[0] += [f'ds_read_b128 {v(K1 + 4 * kb, 4)}, {v(vK)} offset:{toff(t + 3)[0]}', 's_waitcnt lgkmcnt(2)']
        after[1] = [f'ds_read_b128 {v(V1, 4)}, {v(vK)} offset:{toff(t)[2]}']
        if t & 1:
            after[1] += [k2read(K2 + 4 * (((t + 3) >> 1) & 1), t + 3)]
        after[2] += [f's_waitcnt lgkmcnt({3 if t & 1 else 2})']
        after[3] = [f'ds_read_b128 {v(V2, 4)}, {v(vK)} offset:{toff(t)[3]}']
        if t == 15:
            after[3] += ['s_sub_u32 s34, s34, 1']
        if t == HST:
            after[3] += ['s_cmp_eq_u32 s34, s33', f's_cbranch_scc1 {L_hs}', f'{L_hsb}:']
        if t == HFLAG_T:
            after[3] += ['s_cmp_eq_u32 s34, 4', f's_cbranch_scc1 {L_hf}', f'{L_hb}:']
        val = []
        for i in range(8):
            val.append(f'v_exp_f32 {v(Sx + 2 * i)}, {v(Sx + 2 * i)}')
            val.append(f'v_exp_f32 {v(Sx + 2 * i + 1)}, {v(Sx + 2 * i + 1)}')
            if i > 0:
                val.append(f'v_cvt_pk_bf16_f32 {v(Px + i - 1)}, {v(Sx + 2 * i - 2)}, {v(Sx + 2 * i - 1)}')
        val.append(f'v_cvt_pk_bf16_f32 {v(Px + 7)}, {v(Sx + 14)}, {v(Sx + 15)}')
        groups = [val[0:5], val[5:11], val[11:17], val[17:24]]
        for g in range(4):
            a(m_[g])
            emit(a, after[g])
            emit(a, groups[g])

    a(k2read(K2 + 4, 2))
    L_loop = a.label('att')
    a('.p2align 6')
    a(f'{L_loop}:')
    for t in range(16):
        slot(t)
    a(f'''
    s_cmp_lg_u32 s34, 0
    s_cbranch_scc1 {L_loop}
    s_waitcnt lgkmcnt(0)
    ''')
    a(mfma16(O, V1, P + 8, O))
    a(mfma16(O, V2, P + 12, O))
    a(f'''
    v_lshlrev_b32 {v(T + 2)}, 4, {v(vL)}
    v_lshlrev_b32 {v(T + 3)}, 3, {v(vL)}
    v_mov_b32 {v(T + 9)}, 0x7f000000
    v_cndmask_b32 {v(T + 3)}, {v(T + 3)}, {v(T + 9)}, {HM}
    v_lshlrev_b32 {v(T + 4)}, 3, {v(vR)}
    v_lshl_add_u32 {v(T + 4)}, {v(vH)}, 9, {v(T + 4)}
    v_mov_b32 {v(T + 5)}, {SX_A}
    ds_read_b32 {v(T + 5)}, {v(T + 5)}
    s_nop 4
    ''')
    stamp(a, 17)
    L_fb = a.label('fb')
    L_out = a.label('aout')
    a(f'''
    s_mov_b32 s44, {f2u(2.0 ** 120)}
    s_mov_b32 s45, {f2u(2.0 ** -103)}
    v_add_f32 {v(T)}, |{v(O)}|, |{v(O + 1)}|
    ''')
    for i in range(2, 12):
        a(f'v_add_f32 {v(T)}, {v(T)}, |{v(O + i)}|')
    a(f'''
    v_add_f32 {v(T + 1)}, {v(T)}, {v(O + 12)}
    s_waitcnt lgkmcnt(0)
    v_readfirstlane_b32 s38, {v(T + 5)}
    v_cmp_le_f32 s[46:47], s45, {v(T)}
    v_cmp_gt_f32 s[48:49], s44, {v(T + 1)}
    s_nop 1
    s_and_b64 s[46:47], s[46:47], s[48:49]
    s_cmp_eq_u64 s[46:47], -1
    s_cbranch_scc0 {L_fb}
    {L_out}:
    v_rcp_f32 {v(T)}, {v(O + 12)}
    v_rcp_f32 {v(T + 1)}, {v(O + 12)}
    s_nop 0
    ''')
    for i in range(0, 12, 2):
        a(f'v_pk_mul_f32 {v(O + i, 2)}, {v(O + i, 2)}, {v(T, 2)}')
    for i in range(6):
        a(f'v_cvt_pk_bf16_f32 {v(P + i)}, {v(O + 2 * i)}, {v(O + 2 * i + 1)}')
    L_pl, L_st = a.label('oplain'), a.label('ostored')
    a(f'''
    s_cmp_eq_u32 s38, s98
    s_cbranch_scc1 {L_pl}
    buffer_store_dwordx4 {v(P, 4)}, {v(T + 2)}, s[20:23], s36 offen sc1
    buffer_store_dwordx2 {v(P + 4, 2)}, {v(T + 3)}, s[20:23], s37 offen sc1
    s_branch {L_st}
    {L_pl}:
    buffer_store_dwordx4 {v(P, 4)}, {v(T + 2)}, s[20:23], s36 offen
    buffer_store_dwordx2 {v(P + 4, 2)}, {v(T + 3)}, s[20:23], s37 offen
    {L_st}:
    ''')
    stamp(a, 18)
    g2_ids(a)
    OFR = 120
    a(f'''
    s_cmp_eq_u32 s25, 1
    s_cselect_b32 s44, s60, s59
    s_mul_i32 s44, s44, 40960
    s_add_u32 s44, s44, {OF_OFF}
    s_lshl_b32 s45, s26, 13
    s_add_u32 s38, s44, s45
    s_add_u32 s38, s38, 3072
    s_add_u32 s39, s38, 4096
    s_lshl_b32 s45, s26, 11
    s_add_u32 s40, s44, s45
    s_add_u32 s40, s40, 32768
    s_mul_i32 s44, s26, 14336
    s_lshl_b32 s45, s25, 10
    s_add_u32 s44, s44, s45
    s_add_u32 s44, s44, {OL_A}
    v_add_u32 {v(T + 5)}, s44, {v(T + 2)}
    s_barrier
    ''')
    Lp, Lq = a.label('cop'), a.label('copd')
    a(f's_mov_b32 s93, {OPOLL_MAX}\n{Lp}:')
    for q in range(5):
        a(f'buffer_load_dwordx4 {v(OFR + 4 * q, 4)}, {v(T + 2)}, s[20:23], {"s38" if q < 4 else "s39"} offen offset:{1024 * (q & 3)} sc1')
    for q in range(4):
        a(f'buffer_load_dwordx2 {v(OFR + 20 + 2 * q, 2)}, {v(T + 4)}, s[20:23], s40 offen offset:{1024 * (q >> 1) + 256 * (q & 1)} sc1')
    a('s_waitcnt vmcnt(0)')
    a(f'v_max3_u32 {v(T)}, {v(OFR)}, {v(OFR + 1)}, {v(OFR + 2)}')
    for i in range(3, 27, 2):
        a(f'v_max3_u32 {v(T)}, {v(T)}, {v(OFR + i)}, {v(OFR + i + 1)}')
    a(f'''
    v_max_u32 {v(T)}, {v(T)}, {v(OFR + 27)}
    v_cmp_eq_u32 vcc, -1, {v(T)}
    s_nop 1
    s_cmp_eq_u64 vcc, 0
    s_cbranch_scc1 {Lq}
    s_sub_u32 s93, s93, 1
    s_cbranch_scc1 {Lq}
    s_sleep {OSLEEP}
    s_branch {Lp}
    {Lq}:
    ''')
    for q in range(7):
        a(f'ds_write_b128 {v(T + 5)}, {v(OFR + 4 * q, 4)} offset:{2048 * q}')
    stamp(a, 21)
    if FFL:
        a(f'''
        s_lshl_b32 s44, s24, 2
        s_add_u32 s44, s44, {OW_A}
        v_mov_b32 {v(T)}, s44
        v_mov_b32 {v(T + 1)}, s98
        s_waitcnt lgkmcnt(0)
        ds_write_b32 {v(T)}, {v(T + 1)}
        ''')
    g2_out(a, S, vL, 's24', 0)
    if not FFL:
        a('s_waitcnt lgkmcnt(0)')
        a('s_barrier')
    a('s_barrier')
    stamp(a, 19)
    g2_out(a, S, vL, 's24', 1)
    if asmlib.STAMPS:
        a('s_waitcnt vmcnt(0)')
    stamp(a, 20)
    diag_end(a)
    a(f's_branch {L_end}')

    if HST >= 0:
        a(f'{L_hs}:')
        for k in range(4):
            a(f'buffer_store_dwordx4 {v(HH + 4 * k, 4)}, {v(vS16)}, s[20:23], s{42 + (k >> 1)} offen offset:{256 * (k & 1)} sc1')
        a(f's_branch {L_hsb}')
    a(f'{L_hf}:')
    a('s_waitcnt vmcnt(0)')
    flag_store(a, 's41', T + 2)
    a(f's_branch {L_hb}')
    a(f'{L_fb}:')
    L1 = a.label('fb1')
    L2 = a.label('fb2')
    a(f'''
    v_lshlrev_b32 {v(T + 13)}, 4, {v(vL)}
    v_lshlrev_b32 {v(T + 7)}, 3, {v(vL)}
    v_mov_b32 {v(T + 14)}, 0
    v_mov_b32 {v(T + 15)}, 0xff800000
    v_cndmask_b32 {v(Q2)}, {v(Q2)}, {v(T + 14)}, {HM}
    v_cndmask_b32 {v(Q2 + 1)}, {v(Q2 + 1)}, {v(T + 14)}, {HM}
    s_mov_b32 s77, {KV_OFF}
    s_mov_b32 s34, 32
    {L1}:
    buffer_load_dwordx4 {v(K1, 4)}, {v(T + 13)}, s[20:23], s77 offen sc1
    buffer_load_dwordx4 {v(K1 + 4, 4)}, {v(T + 13)}, s[20:23], s77 offen offset:1024 sc1
    buffer_load_dwordx2 {v(K2, 2)}, {v(T + 7)}, s[20:23], s77 offen offset:2048 sc1
    buffer_load_dwordx2 {v(K2 + 2, 2)}, {v(T + 7)}, s[20:23], s77 offen offset:2560 sc1
    s_waitcnt vmcnt(0)
    ''')
    for t in range(2):
        a(mfma16(S + 16 * t, K1 + 4 * t, Q1))
    a('s_nop 9')
    for t in range(2):
        a(mfma8(S + 16 * t, K2 + 2 * t, Q2, S + 16 * t))
    a('s_nop 15')
    for i in range(0, 32, 2):
        a(f'v_max3_f32 {v(T + 15)}, {v(T + 15)}, {v(S + i)}, {v(S + i + 1)}')
    a(f'''
    s_add_u32 s77, s77, 7168
    s_sub_u32 s34, s34, 1
    s_cmp_lg_u32 s34, 0
    s_cbranch_scc1 {L1}
    ''')
    cross_half_max(T + 15)
    set_m(T + 15, 0.0)
    for i in range(16):
        a(f'v_mov_b32 {v(O + i)}, 0')
    a(f'''
    s_mov_b32 s77, {KV_OFF}
    s_mov_b32 s34, 64
    {L2}:
    s_and_b32 s78, s34, 1
    s_lshl_b32 s79, s78, 10
    s_add_u32 s79, s79, s77
    s_lshl_b32 s80, s78, 9
    s_add_u32 s80, s80, s77
    s_lshl_b32 s81, s78, 11
    s_add_u32 s81, s81, s77
    s_add_u32 s81, s81, 3072
    buffer_load_dwordx4 {v(K1, 4)}, {v(T + 13)}, s[20:23], s79 offen sc1
    buffer_load_dwordx2 {v(K2, 2)}, {v(T + 7)}, s[20:23], s80 offen offset:2048 sc1
    buffer_load_dwordx4 {v(V1, 4)}, {v(T + 13)}, s[20:23], s81 offen sc1
    buffer_load_dwordx4 {v(V2, 4)}, {v(T + 13)}, s[20:23], s81 offen offset:1024 sc1
    s_waitcnt vmcnt(0)
    {mfma16(S, K1, Q1)}
    s_nop 10
    {mfma8(S, K2, Q2, S)}
    s_nop 15
    ''')
    for i in range(16):
        a(f'v_exp_f32 {v(S + i)}, {v(S + i)}')
    a('s_nop 0')
    for i in range(8):
        a(f'v_cvt_pk_bf16_f32 {v(P + i)}, {v(S + 2 * i)}, {v(S + 2 * i + 1)}')
    a(f'''
    s_nop 1
    {mfma16(O, V1, P, O)}
    {mfma16(O, V2, P + 4, O)}
    s_mul_i32 s78, s78, 7168
    s_add_u32 s77, s77, s78
    s_sub_u32 s34, s34, 1
    s_cmp_lg_u32 s34, 0
    s_cbranch_scc1 {L2}
    s_nop 15
    s_branch {L_out}
    ''')


def g2_ids(a):
    a('''
    s_lshr_b32 s57, s30, 1
    s_and_b32 s58, s30, 1
    s_lshl_b32 s44, s29, 1
    s_add_u32 s59, s44, s58
    s_xor_b32 s60, s59, 1
    s_mul_i32 s44, s57, 320
    s_lshl_b32 s45, s58, 7
    s_add_u32 s61, s44, s45
    ''')


def g2_out(a, T, vL, wsg, part):
    L_skip = a.label('g2o')
    a(f'''
    s_cmp_ge_u32 {wsg}, 10
    s_cbranch_scc1 {L_skip}
    ''')
    if part == 0:
        a(f'''
        s_lshr_b32 s45, {wsg}, 1
        s_and_b32 s46, {wsg}, 1
        s_lshl_b32 s46, s46, 4
        v_lshrrev_b32 {v(T)}, 2, {v(vL)}
        v_add_u32 {v(T)}, s46, {v(T)}
        v_and_b32 {v(T + 1)}, 3, {v(vL)}
        s_and_b32 s47, s45, 1
        s_cmp_eq_u32 s47, 1
        s_cselect_b32 s47, s60, s59
        s_mul_i32 s47, s47, {32 * 1280}
        s_lshr_b32 s48, s45, 1
        s_add_u32 s49, s48, s58
        s_lshl_b32 s49, s49, 6
        s_lshl_b32 s50, s58, 7
        s_sub_u32 s50, 128, s50
        s_cmp_eq_u32 s48, 2
        s_cselect_b32 s49, s50, s49
        s_add_u32 s47, s47, s49
        s_add_u32 s31, s47, s61
        v_mul_u32_u24 {v(T + 6)}, 1280, {v(T)}
        v_lshl_add_u32 {v(T + 6)}, {v(T + 1)}, 4, {v(T + 6)}
        buffer_load_dwordx4 {v(T + 2, 4)}, {v(T + 6)}, s[8:11], s31 offen
        v_lshlrev_b32 {v(T + 1)}, 1, {v(T + 1)}
        v_and_b32 {v(T + 7)}, 7, {v(T)}
        v_xor_b32 {v(T + 1)}, {v(T + 1)}, {v(T + 7)}
        v_lshlrev_b32 {v(T)}, 7, {v(T)}
        v_lshl_add_u32 {v(T)}, {v(T + 1)}, 4, {v(T)}
        s_lshl_b32 s47, s45, 12
        v_add_u32 {v(T)}, s47, {v(T)}
        v_xor_b32 {v(T + 1)}, 16, {v(T)}
        ''')
    else:
        for w in range(4):
            if w == 2:
                a(f'v_add_u32 {v(T)}, {WO_HI}, {v(T)}\nv_add_u32 {v(T + 1)}, {WO_HI}, {v(T + 1)}')
            a(f'ds_read_b128 {v(T + 8 + 8 * w, 4)}, {v(T)} offset:{21504 * (w & 1)}')
            a(f'ds_read_b128 {v(T + 12 + 8 * w, 4)}, {v(T + 1)} offset:{21504 * (w & 1)}')
        a('s_waitcnt vmcnt(0)')
        for i in range(4):
            a(f'''
            v_lshlrev_b32 {v(T + 40 + 2 * i)}, 16, {v(T + 2 + i)}
            v_and_b32 {v(T + 41 + 2 * i)}, 0xffff0000, {v(T + 2 + i)}
            ''')
        a('s_waitcnt lgkmcnt(4)')
        for i in range(0, 8, 2):
            a(f'v_pk_add_f32 {v(T + 8 + i, 2)}, {v(T + 8 + i, 2)}, {v(T + 16 + i, 2)}')
        for i in range(0, 8, 2):
            a(f'v_pk_add_f32 {v(T + 8 + i, 2)}, {v(T + 8 + i, 2)}, {v(T + 40 + i, 2)}')
        a('s_waitcnt lgkmcnt(0)')
        for i in range(0, 8, 2):
            a(f'v_pk_add_f32 {v(T + 24 + i, 2)}, {v(T + 24 + i, 2)}, {v(T + 32 + i, 2)}')
        for i in range(0, 8, 2):
            a(f'v_pk_add_f32 {v(T + 8 + i, 2)}, {v(T + 8 + i, 2)}, {v(T + 24 + i, 2)}')
        for i in range(4):
            a(f'v_cvt_pk_bf16_f32 {v(T + 16 + i)}, {v(T + 8 + 2 * i)}, {v(T + 9 + 2 * i)}')
        a(f'buffer_store_dwordx4 {v(T + 16, 4)}, {v(T + 6)}, s[64:67], s31 offen{OUTSC}')
    a(f'{L_skip}:')


def aux_wave(a, vL, vH, vR, L_end, WDP, a_start):
    al = Alloc(4, 168)
    T = al('T', 16, 4)
    vXD = al('xd', 2)
    vWD = al('wd', 2)
    vKD = al('kd')
    vKX = al('kx')
    vKW = al('kw')
    XR = al('xr', 10, 2)
    CR = al('cr', 20, 2)
    PF = al('pf', 2)
    AKV = al('akv', 16, 4)
    KXF = al('kxf', 4, 4)
    KWF = al('kwf', 4, 4)
    FX = al('fx', 16, 4)
    RD = al('rd', 48, 4)
    JA = al('ja', 2, 2)
    JS = al('js')
    t0, t1, t2, t3, t4, t5 = T, T + 1, T + 2, T + 3, T + 4, T + 5
    vm = VM()
    a.c('=========== aux wave: phase 1 ===========')
    assert (vXD, vWD, vKD) == (20, 22, 24)

    def dma_group(c, kvonly=False):
        st = c % 3
        lab = a.label('nokv')
        a(f'''
        s_and_b32 s35, s100, {7 if c < 8 else 1}
        s_xor_b32 s35, s35, {c}
        s_mul_i32 s33, s32, s35
        s_mul_i32 s34, s35, 2560
        s_lshl_b32 s35, s35, 7
        s_cmp_eq_u32 s40, 0
        s_cbranch_scc1 {lab}
        s_add_u32 m0, s38, {st * 3072}
        s_nop 0
        buffer_load_dwordx4 {v(vKD)}, s[16:19], s34 offen lds
        {lab}:
        ''')
        vm.add(f'c{c}', 1, optional=True)
        if kvonly or (NODMA and c > 2):
            vm.add(f'c{c}', 1, optional=True)
            return
        for e in range(4):
            a(f'''
            s_add_u32 m0, s36, {LDS_X + st * 16384 + e * 1024}
            s_add_u32 s34, s35, {(e >> 1) * 16 * 1280}
            buffer_load_dwordx4 {v(vXD + (e & 1))}, s[8:11], s34 offen lds
            ''')
        for e in range(8):
            a(f'''
            s_add_u32 m0, s37, {st * 8192 + e * 1024}
            s_nop 0
            buffer_load_dwordx4 {v(vWD + (e & 1))}, s[12:15], s33 offen lds
            ''')
            if e < 7:
                a('s_add_u32 s33, s33, s31')
        vm.add(f'c{c}', 12)

    vm.add('c0', 4)
    vm.add('c0', 1, optional=True)
    if not LATE1:
        vm.add('c1', 4)
        vm.add('c1', 1, optional=True)

    def jit(c):
        if not JIT or c > 9:
            return
        lab = a.label('nojit')
        a(f'''
        s_cmp_lg_u32 s26, 3
        s_cbranch_scc1 {lab}
        global_load_dword v165, {v(JA, 2)}, off
        v_add_co_u32 {v(JA)}, vcc, {v(JA)}, {v(JS)}
        s_nop 1
        v_addc_co_u32 {v(JA + 1)}, vcc, 0, {v(JA + 1)}, vcc
        {lab}:
        ''')
        vm.add('jit', 1, optional=True)

    if JIT:
        a(f'v_mov_b32 {v(JA)}, s68\nv_mov_b32 {v(JA + 1)}, s69')
        lab = a.label('nojs')
        a(f'''
        s_cmp_lg_u32 s26, 3
        s_cbranch_scc1 {lab}
        s_lshr_b32 s44, s2, 3
        s_and_b32 s45, s44, 7
        s_lshr_b32 s46, s44, 3
        s_lshl_b32 s46, s46, 5
        s_lshl_b32 s47, s27, 7
        s_add_u32 s46, s46, s47
        v_add_u32 {v(t0)}, s46, {v(vR)}
        v_mul_u32_u24 {v(t0)}, 1280, {v(t0)}
        v_add_u32 {v(t0)}, {128 * JIT}, {v(t0)}
        v_bfe_u32 {v(t1)}, {v(vL)}, 3, 1
        v_bfe_u32 {v(t2)}, {v(vL)}, 4, 1
        v_and_b32 {v(t3)}, s48, {v(t1)}
        v_cmp_eq_u32 s[58:59], 1, {v(t3)}
        v_cmp_eq_u32 s[60:61], 1, {v(t2)}
        v_mov_b32 {v(t4)}, 3456
        v_mov_b32 {v(t5)}, 1280
        v_cndmask_b32 {v(t4)}, {v(t4)}, {v(t5)}, s[58:59]
        s_xor_b32 s44, s48, 1
        v_and_b32 {v(t5)}, s44, {v(t1)}
        v_lshlrev_b32 {v(t5)}, 6, {v(t5)}
        v_add_u32 {v(t5)}, s49, {v(t5)}
        v_lshlrev_b32 {v(t3)}, 6, {v(t2)}
        v_add_u32 {v(t3)}, s50, {v(t3)}
        v_cndmask_b32 {v(t5)}, {v(t5)}, {v(t3)}, s[58:59]
        s_lshl_b32 s45, s45, 3
        s_add_u32 s45, s45, {64 * JIT}
        v_and_b32 {v(t3)}, 7, {v(vL)}
        v_add_u32 {v(t3)}, s45, {v(t3)}
        v_mul_lo_u32 {v(t3)}, {v(t3)}, {v(t4)}
        v_lshl_add_u32 {v(t3)}, {v(t5)}, 1, {v(t3)}
        v_cndmask_b32 {v(t0)}, {v(t0)}, {v(t3)}, {HM}
        v_lshlrev_b32 {v(t4)}, 6, {v(t4)}
        v_mov_b32 {v(t5)}, 128
        v_cndmask_b32 {v(JS)}, {v(t5)}, {v(t4)}, {HM}
        ''')
        for z in range(2):
            a(f'''
            v_mov_b32 {v(t1)}, s{80 + z}
            v_mov_b32 {v(t2)}, s{82 + z}
            v_cndmask_b32 {v(t1)}, {v(t1)}, {v(t2)}, s[60:61]
            v_mov_b32 {v(t2)}, s{70 + z}
            v_cndmask_b32 {v(t1)}, {v(t1)}, {v(t2)}, s[58:59]
            v_mov_b32 {v(t2)}, s{68 + z}
            v_cndmask_b32 {v(JA + z)}, {v(t2)}, {v(t1)}, {HM}
            ''')
        a(f'''
        v_add_co_u32 {v(JA)}, vcc, {v(JA)}, {v(t0)}
        s_nop 1
        v_addc_co_u32 {v(JA + 1)}, vcc, 0, {v(JA + 1)}, vcc
        {lab}:
        ''')
        for c in range(JIT, JITD):
            jit(c)
    srd(a, 4, 76, 256)
    lab = a.label('nononce')
    a(f'''
    s_or_b32 s44, s2, s26
    s_cmp_lg_u32 s44, 0
    s_cbranch_scc1 {lab}
    s_memrealtime s[44:45]
    s_waitcnt lgkmcnt(0)
    s_or_b32 s44, s44, 1
    v_mov_b32 {v(t0)}, s44
    s_mov_b64 exec, 1
    buffer_store_dword {v(t0)}, off, s[4:7], 0 sc1
    s_mov_b64 exec, -1
    {lab}:
    ''')
    vm.add('nonce', 1, optional=True)
    a(f'''
    s_and_b32 s56, s28, 3
    v_lshrrev_b32 {v(t0)}, 1, {v(vR)}
    v_and_b32 {v(t0)}, 7, {v(t0)}
    v_xor_b32 {v(t0)}, {v(t0)}, {v(vH)}
    s_lshl_b32 s44, s26, 1
    v_xor_b32 {v(t0)}, s44, {v(t0)}
    v_lshlrev_b32 {v(t3)}, 7, {v(vR)}
    v_lshl_add_u32 {v(t0)}, {v(t0)}, 4, {v(t3)}
    s_lshl_b32 s44, s56, 12
    v_add_u32 {v(vKX)}, s44, {v(t0)}
    v_bfe_u32 {v(t0)}, {v(vL)}, 2, 2
    v_lshl_add_u32 {v(t0)}, {v(vH)}, 3, {v(t0)}
    v_mul_u32_u24 {v(t0)}, 40, {v(t0)}
    v_bfe_u32 {v(t3)}, {v(vL)}, 4, 1
    v_and_b32 {v(t4)}, 3, {v(vL)}
    v_lshl_add_u32 {v(t3)}, {v(t3)}, 2, {v(t4)}
    v_min_u32 {v(t3)}, 4, {v(t3)}
    v_lshl_add_u32 {v(t0)}, {v(t3)}, 3, {v(t0)}
    s_mul_i32 s44, s26, 640
    s_add_u32 s44, s44, {LDS_KV}
    v_add_u32 {v(vKW)}, s44, {v(t0)}
    ''')
    for i in range(16):
        a(f'v_mov_b32 {v(AKV + i)}, 0')

    if LATE1:
        a_start(1)
        vm.add('c1', 4)
        vm.add('c1', 1, optional=True)

    def colsum(src_tag_wait, store_code):
        a(f's_waitcnt vmcnt({src_tag_wait})')
        a(f'''
        v_lshlrev_b32 {v(t0)}, 16, {v(CR)}
        v_and_b32 {v(t1)}, 0xffff0000, {v(CR)}
        ''')
        for t in range(1, 20):
            a(f'''
            v_lshlrev_b32 {v(t2)}, 16, {v(CR + t)}
            v_and_b32 {v(t3)}, 0xffff0000, {v(CR + t)}
            v_add_f32 {v(t0)}, {v(t0)}, {v(t2)}
            v_add_f32 {v(t1)}, {v(t1)}, {v(t3)}
            ''')
        a(f'''
        s_nop 1
        v_permlane32_swap_b32 {v(t0)}, {v(t1)}
        s_nop 1
        v_add_f32 {v(t0)}, {v(t0)}, {v(t1)}
        v_cvt_pk_bf16_f32 {v(t1)}, {v(t0)}, {v(t0)}
        v_and_b32 {v(t1)}, 0xffff0000, {v(t1)}
        v_sub_f32 {v(t1)}, {v(t0)}, {v(t1)}
        v_cvt_pk_bf16_f32 {v(t0)}, {v(t0)}, {v(t1)}
        ''')
        store_code()

    a('''
    s_lshl_b32 s41, s27, 10
    s_and_b32 s44, s28, 11
    s_cmp_eq_u32 s44, 0
    s_cselect_b32 s42, 1, 0
    s_cmp_eq_u32 s26, 3
    s_cselect_b32 s42, s42, 0
    ''')

    def kv_step(c, part):
        st = c % 3
        lab = a.label('kvs')
        a(f's_cmp_eq_u32 s54, 0\ns_cbranch_scc1 {lab}')
        if part == 0:
            a(f'''
            ds_read_b128 {v(KXF, 4)}, {v(vKX)} offset:{LDS_X + st * 16384}
            ds_read_b64_tr_b16 {v(KWF, 2)}, {v(vKW)} offset:{st * 3072}
            ds_read_b64_tr_b16 {v(KWF + 2, 2)}, {v(vKW)} offset:{st * 3072 + 160}
            ''')
        else:
            a('s_waitcnt lgkmcnt(0)')
            a(mfma16(AKV, KWF, KXF, AKV))
        a(f'{lab}:')

    for c in range(10):
        a.c(f'aux chunk {c}')
        if c == 0:
            stamp(a, 22)
        if c <= 8:
            a(f's_waitcnt vmcnt({vm.wait(f"c{c}") if c != 5 else min(vm.wait("c5"), vm.wait("st"), vm.wait("nl"))})')
        else:
            a('s_waitcnt vmcnt(0)')
        a('s_barrier')
        if not FEWST or c in (0, 1, 2, 9):
            stamp(a, 1 + c)
        if asmlib.STAMPS:
            vm.add('stamp', 1, optional=True)
        if c == 3:
            a(f'buffer_load_dword {v(PF)}, off, s[4:7], 0 sc1')
            vm.add('nl', 1)
        kv_step(c, 0)
        if c == P3C:
            lab = a.label('nop3')
            a(f'''
            v_lshlrev_b32 {v(T + 8)}, 3, {v(vL)}
            v_lshlrev_b32 {v(T + 10)}, 7, {v(vL)}
            v_and_b32 {v(T + 11)}, 0x780, {v(T + 10)}
            s_cmp_lg_u32 s26, 3
            s_cbranch_scc1 {lab}
            s_lshl_b32 s44, s27, 13
            s_add_u32 s44, s44, {F_ST}
            s_lshl_b32 s45, s28, 13
            s_add_u32 s45, s45, {F_CS}
            s_and_b32 s58, s28, 4
            s_lshl_b32 s58, s58, 9
            s_add_u32 s58, s58, {F_KC}
            ''')
            a(f'''
            s_mov_b32 s60, s44
            s_mov_b32 s61, s45
            s_lshr_b32 s59, s29, 1
            s_lshl_b32 s59, s59, 13
            s_add_u32 s59, s59, {F_ST}
            buffer_load_dwordx2 {v(FX + 6, 2)}, {v(T + 10)}, s[20:23], s59 offen sc1
            buffer_load_dwordx2 {v(FX, 2)}, {v(T + 10)}, s[20:23], s60 offen sc1
            buffer_load_dwordx2 {v(FX + 2, 2)}, {v(T + 10)}, s[20:23], s61 offen sc1
            buffer_load_dwordx2 {v(FX + 4, 2)}, {v(T + 11)}, s[20:23], s58 offen sc1
            {lab}:
            ''')
        jit(c + JITD)
        if (1 if EARLY2 else 0) <= c and c + 2 < 10:
            dma_group(c + 2)
        kv_step(c, 1)
        if c == P3C:
            lab = a.label('nop3b')
            a(f'''
            s_cmp_lg_u32 s26, 3
            s_cbranch_scc1 {lab}
            s_waitcnt vmcnt(12)
            v_cmp_eq_u64 vcc, s[98:99], {v(FX, 2)}
            v_cmp_eq_u64 s[46:47], s[98:99], {v(FX + 2, 2)}
            v_cmp_eq_u64 s[44:45], s[98:99], {v(FX + 4, 2)}
            v_cmp_eq_u64 s[48:49], s[98:99], {v(FX + 6, 2)}
            s_nop 1
            s_and_b64 vcc, vcc, s[46:47]
            s_and_b64 vcc, vcc, s[44:45]
            s_and_b64 vcc, vcc, s[48:49]
            s_cmp_eq_u64 vcc, -1
            s_cbranch_scc1 {lab}
            ''')
            polln(a, FX, [T + 10, T + 10, T + 11], [('s60', None), ('s61', None), ('s58', None)], 4)
            polln(a, FX, [T + 10], [('s59', None)], 4)
            a(f'{lab}:')
        if c == 2:
            lab = a.label('nokvcs')
            a(f'''
            s_cmp_eq_u32 s42, 0
            s_cbranch_scc1 {lab}
            s_mul_i32 s44, s27, 40
            v_add_u32 {v(t1)}, s44, {v(vH)}
            v_mul_u32_u24 {v(t2)}, 40, {v(t1)}
            v_lshl_add_u32 {v(t2)}, {v(vR)}, 2, {v(t2)}
            ''')
            for t in range(20):
                a(f'buffer_load_dword {v(CR + t)}, {v(t2)}, s[16:19], 0 offen offset:{80 * t}')
            a(f'{lab}:')
            vm.add('kcr', 20, optional=True)
        if c == 3:
            lab = a.label('nokvcs2')
            a(f's_cmp_eq_u32 s42, 0\ns_cbranch_scc1 {lab}')

            def kcs_store():
                a(f'''
                v_lshl_add_u32 {v(t1)}, {v(vR)}, 1, {v(vH)}
                v_lshlrev_b32 {v(t2)}, 2, {v(t1)}
                v_mov_b32 {v(t3)}, 0x7f000000
                v_cmp_gt_u32 vcc, 32, {v(t1)}
                s_lshl_b32 s44, s28, 9
                s_lshl_b32 s45, s27, 7
                s_add_u32 s44, s44, s45
                s_add_u32 s44, s44, {CSKVW}
                v_cndmask_b32 {v(t2)}, {v(t3)}, {v(t2)}, vcc
                buffer_store_dword {v(t0)}, {v(t2)}, s[20:23], s44 offen sc1
                ''')
            colsum(vm.wait('kcr'), kcs_store)
            a(f'{lab}:')
            vm.add('st', 1, optional=True)
        if c == 5:
            Lp = a.label('np')
            Lq = a.label('npd')
            Lr = a.label('nokcf')
            a(f'''
            s_mov_b32 s93, {POLL_MAX}
            {Lp}:
            v_readfirstlane_b32 s98, {v(PF)}
            s_cmp_lg_u32 s98, 0
            s_cbranch_scc1 {Lq}
            s_sub_u32 s93, s93, 1
            s_cbranch_scc1 {Lq}
            buffer_load_dword {v(PF)}, off, s[4:7], 0 sc1
            s_waitcnt vmcnt(0)
            s_branch {Lp}
            {Lq}:
            s_xor_b32 s99, s98, {NONCE_X}
            s_lshl_b32 s44, s28, 9
            s_lshl_b32 s45, s27, 7
            s_add_u32 s44, s44, s45
            s_add_u32 s44, s44, {F_KC}
            s_cmp_eq_u32 s42, 0
            s_cbranch_scc1 {Lr}
            ''')
            flag_store(a, 's44', T + 2)
            a(f'{Lr}:')
            vm.add('fl', 1, optional=True)
        if P1PF and c in (6, 7):
            if c == 6:
                srd(a, 4, WDP, 2211840)
                a(f'''
                s_lshr_b32 s44, s2, 6
                s_mul_i32 s44, s44, {432 * 1280}
                s_bfe_u32 s45, s2, 0x30003
                s_mul_i32 s45, s45, {180 * 128}
                s_add_u32 s44, s44, s45
                s_mul_i32 s45, s26, {45 * 128}
                s_add_u32 s57, s44, s45
                v_lshlrev_b32 {v(PF + 1)}, 7, {v(vL)}
                ''')
            for z in range(2 if c == 6 else 1):
                a(f'''
                s_mov_b32 exec_hi, {(1 << 13) - 1}
                buffer_load_dword v165, {v(PF + 1)}, s[4:7], s57 offen
                s_mov_b32 exec_hi, -1
                s_add_u32 s57, s57, {144 * 1280}
                ''')
                vm.add('pf', 1)
        if c == 8:
            a(f'''
            v_lshlrev_b32 {v(T + 9)}, 4, {v(vL)}
            s_lshl_b32 s44, s28, 14
            s_lshl_b32 s45, s26, 12
            s_add_u32 s44, s44, s45
            s_add_u32 s44, s44, {CSW}
            ''')
            for e in range(4):
                a(f'''
                s_add_u32 m0, s45, {CS_A + 1024 * e}
                s_nop 0
                buffer_load_dwordx4 {v(T + 9)}, s[20:23], s44 offen{LD} lds
                s_add_u32 s44, s44, 1024
                ''')
            lab = a.label('norc')
            a(f'''
            s_cmp_lg_u32 s26, 0
            s_cbranch_scc1 {lab}
            s_lshl_b32 s44, s27, 11
            s_add_u32 s44, s44, {ROWW}
            s_mov_b32 m0, {ROWC_A}
            s_and_b32 s45, s28, 4
            buffer_load_dwordx4 {v(T + 9)}, s[20:23], s44 offen{LD} lds
            buffer_load_dwordx4 {v(T + 9)}, s[20:23], s44 offen offset:1024{LD} lds
            s_lshl_b32 s45, s45, 9
            s_add_u32 s45, s45, {CSKVW}
            s_mov_b32 m0, {CSKV_A}
            s_nop 0
            buffer_load_dwordx4 {v(T + 9)}, s[20:23], s45 offen{LD} lds
            buffer_load_dwordx4 {v(T + 9)}, s[20:23], s45 offen offset:1024{LD} lds
            {lab}:
            ''')
    L_p2 = a.label('auxp2')
    L_v = a.label('vepi')
    L_a0 = a.label('aux0f')
    lab = a.label('nokvfin')
    lab2 = a.label('nofix')
    a(f'''
    s_cmp_eq_u32 s54, 0
    s_cbranch_scc1 {lab}
    s_cmp_lg_u32 s26, 0
    s_cbranch_scc1 {lab2}
    s_lshl_b32 s44, s56, 9
    s_add_u32 s44, s44, {ROWC_A}
    v_lshl_add_u32 {v(t0)}, {v(vR)}, 4, s44
    v_lshlrev_b32 {v(t1)}, 2, {v(vR)}
    v_lshl_add_u32 {v(t1)}, {v(vH)}, 9, {v(t1)}
    v_add_u32 {v(t1)}, {CSKV_A}, {v(t1)}
    v_add_u32 {v(t2)}, 1024, {v(t1)}
    ds_read_b128 {v(FX, 4)}, {v(t0)}
    ds_read2_b32 {v(FX + 8, 2)}, {v(t1)} offset0:0 offset1:32
    ds_read2_b32 {v(FX + 10, 2)}, {v(t1)} offset0:64 offset1:96
    ds_read2_b32 {v(FX + 12, 2)}, {v(t2)} offset0:0 offset1:32
    ds_read2_b32 {v(FX + 14, 2)}, {v(t2)} offset0:64 offset1:96
    s_waitcnt lgkmcnt(4)
    v_mov_b32 {v(FX + 4)}, {v(FX)}
    v_mov_b32 {v(FX + 5)}, {v(FX)}
    v_mov_b32 {v(FX + 6)}, {v(FX)}
    v_mov_b32 {v(FX + 7)}, {v(FX)}
    s_waitcnt lgkmcnt(0)
    s_nop 1
    {mfma16(AKV, FX + 8, FX + 4, AKV)}
    {mfma16(AKV, FX + 12, FX + 4, AKV)}
    s_branch {L_a0}
    {lab2}:
    s_lshl_b32 s44, s26, 12
    v_add_u32 {v(t0)}, s44, {v(T + 9)}
    s_lshl_b32 s44, s26, 2
    s_add_u32 s44, s44, {PD_A}
    v_mov_b32 {v(t1)}, s44
    v_mov_b32 {v(t2)}, s98
    s_nop 11
    ''')
    for q in range(3):
        a(f'ds_write_b128 {v(t0)}, {v(AKV + 4 * q, 4)} offset:{PART_A + 1024 * q}')
    L_sp = a.label('pspin')
    L_spd = a.label('pspind')
    a(f'''
    s_waitcnt lgkmcnt(0)
    ds_write_b32 {v(t1)}, {v(t2)}
    {lab}:
    s_branch {L_p2}
    {L_a0}:
    v_mov_b32 {v(t1)}, {PD_A}
    s_mov_b32 s93, {POLL_MAX * 8}
    {L_sp}:
    ds_read_b128 {v(T + 4, 4)}, {v(t1)}
    s_waitcnt lgkmcnt(0)
    v_xor_b32 {v(T + 5)}, s98, {v(T + 5)}
    v_xor_b32 {v(T + 6)}, s98, {v(T + 6)}
    v_xor_b32 {v(T + 7)}, s98, {v(T + 7)}
    v_or3_b32 {v(T + 5)}, {v(T + 5)}, {v(T + 6)}, {v(T + 7)}
    s_nop 0
    v_readfirstlane_b32 s44, {v(T + 5)}
    s_cmp_eq_u32 s44, 0
    s_cbranch_scc1 {L_spd}
    s_sub_u32 s93, s93, 1
    s_cbranch_scc0 {L_sp}
    {L_spd}:
    ''')
    stamp(a, 12)
    for w in range(1, 4):
        for q in range(3):
            a(f'ds_read_b128 {v(RD + 12 * (w - 1) + 4 * q, 4)}, {v(T + 9)} offset:{PART_A + 4096 * w + 1024 * q}')
    a(f'''
    s_lshl_b32 s57, s27, 2
    s_add_u32 s57, s57, s56
    s_lshr_b32 s44, s57, 1
    s_mul_i32 s44, s44, 7168
    s_add_u32 s44, s44, {KV_OFF}
    s_and_b32 s45, s57, 1
    s_and_b32 s58, s28, 4
    s_lshl_b32 s58, s58, 4
    s_add_u32 s58, s58, s57
    s_lshl_b32 s58, s58, 7
    s_add_u32 s58, s58, {F_KV}
    s_waitcnt lgkmcnt(0)
    ''')
    for i in range(0, 12, 2):
        a(f'v_pk_add_f32 {v(AKV + i, 2)}, {v(AKV + i, 2)}, {v(RD + i, 2)}')
        a(f'v_pk_add_f32 {v(RD + 12 + i, 2)}, {v(RD + 12 + i, 2)}, {v(RD + 24 + i, 2)}')
    for i in range(0, 12, 2):
        a(f'v_pk_add_f32 {v(AKV + i, 2)}, {v(AKV + i, 2)}, {v(RD + 12 + i, 2)}')
    a(f'v_mov_b32 {v(FX)}, {v(FX + 1)}')
    for i in range(0, 12, 2):
        a(f'v_pk_mul_f32 {v(AKV + i, 2)}, {v(AKV + i, 2)}, {v(FX, 2)}')
    PK = RD
    for i in range(6):
        a(f'v_cvt_pk_bf16_f32 {v(PK + i)}, {v(AKV + 2 * i)}, {v(AKV + 2 * i + 1)}')
    L_kvf = a.label('kvflag')
    a(f'''
    s_bitcmp1_b32 s28, 2
    s_cbranch_scc1 {L_v}
    v_mov_b32 {v(t0)}, 0x3f803f80
    v_mov_b32 {v(t1)}, 0x00003f80
    v_cndmask_b32 {v(PK + 4)}, {v(PK + 4)}, {v(t0)}, {HM}
    v_cndmask_b32 {v(PK + 5)}, {v(PK + 5)}, {v(t1)}, {HM}
    s_lshl_b32 s46, s45, 10
    s_add_u32 s46, s46, s44
    s_lshl_b32 s47, s45, 9
    s_add_u32 s47, s47, s44
    buffer_store_dwordx4 {v(PK, 4)}, {v(T + 9)}, s[20:23], s46 offen sc1
    buffer_store_dwordx2 {v(PK + 4, 2)}, {v(T + 8)}, s[20:23], s47 offen offset:2048 sc1
    s_branch {L_kvf}
    {L_v}:
    v_mov_b32 {v(t0)}, 0
    v_cndmask_b32 {v(PK + 4)}, {v(PK + 4)}, {v(t0)}, {HM}
    v_cndmask_b32 {v(PK + 5)}, {v(PK + 5)}, {v(t0)}, {HM}
    v_mov_b32 {v(PK + 6)}, 0x00003f80
    v_mov_b32 {v(PK + 7)}, 0
    v_lshlrev_b32 {v(t0)}, 6, {v(vR)}
    v_lshl_add_u32 {v(t0)}, {v(vH)}, 3, {v(t0)}
    ds_write_b64 {v(t0)}, {v(PK, 2)} offset:{VT_A}
    ds_write_b64 {v(t0)}, {v(PK + 2, 2)} offset:{VT_A + 16}
    ds_write_b64 {v(t0)}, {v(PK + 4, 2)} offset:{VT_A + 32}
    ds_write_b64 {v(t0)}, {v(PK + 6, 2)} offset:{VT_A + 48}
    v_bfe_u32 {v(t1)}, {v(vL)}, 2, 2
    v_lshl_add_u32 {v(t1)}, {v(vH)}, 2, {v(t1)}
    v_lshlrev_b32 {v(t1)}, 6, {v(t1)}
    v_bfe_u32 {v(t2)}, {v(vL)}, 4, 1
    v_lshl_add_u32 {v(t1)}, {v(t2)}, 5, {v(t1)}
    v_and_b32 {v(t2)}, 3, {v(vL)}
    v_lshl_add_u32 {v(t1)}, {v(t2)}, 3, {v(t1)}
    s_waitcnt lgkmcnt(0)
    ds_read_b64_tr_b16 {v(PK + 8, 2)}, {v(t1)} offset:{VT_A}
    ds_read_b64_tr_b16 {v(PK + 10, 2)}, {v(t1)} offset:{VT_A + 512}
    ds_read_b64_tr_b16 {v(PK + 12, 2)}, {v(t1)} offset:{VT_A + 1024}
    ds_read_b64_tr_b16 {v(PK + 14, 2)}, {v(t1)} offset:{VT_A + 1536}
    s_lshl_b32 s46, s45, 11
    s_add_u32 s46, s46, s44
    s_add_u32 s46, s46, 3072
    s_waitcnt lgkmcnt(0)
    buffer_store_dwordx4 {v(PK + 8, 4)}, {v(T + 9)}, s[20:23], s46 offen sc1
    buffer_store_dwordx4 {v(PK + 12, 4)}, {v(T + 9)}, s[20:23], s46 offen offset:1024 sc1
    {L_kvf}:
    s_waitcnt vmcnt(0)
    ''')
    flag_store(a, 's58', T + 2)
    a(f'{L_p2}:')
    stamp(a, 13)

    a.c('=========== aux wave: phase 2 ===========')
    al = Alloc(4, 164)
    T = al('T', 8, 4)
    vWD = al('wd', 3)
    vWA = al('wa', 3)
    vHL = al('hl')
    vKO = al('ko')
    vPF = al('pf')
    ACC = al('acc', 80, 4)
    SL = al('slots', 60, 4)
    wreg = lambda k: SL + 20 * (k % 3)
    hreg = lambda k: SL + 20 * (k % 3) + 12
    a(f's_setprio {PRIO2}')
    g2_ids(a)
    srd(a, 12, WDP, 2211840)
    srd(a, 16, 84, 819200)
    a(f"""
    s_mul_i32 s44, s26, 27
    s_mul_i32 s41, s59, 108
    s_add_u32 s41, s41, s44
    s_lshl_b32 s41, s41, 10
    s_mul_i32 s42, s60, 108
    s_add_u32 s42, s42, s44
    s_lshl_b32 s42, s42, 10
    s_lshr_b32 s43, s44, 1
    s_mul_i32 s43, s43, 40960
    s_and_b32 s45, s44, 1
    s_mul_i32 s52, s45, 10240
    s_add_u32 s43, s43, s52
    s_mul_i32 s52, s45, 20480
    s_add_u32 s52, s52, 10240
    s_mov_b32 s48, 40960
    s_lshl_b32 s44, s26, 3
    s_mul_i32 s56, s44, 25600
    s_mul_i32 s54, s59, 40
    s_add_u32 s54, s54, s44
    s_lshl_b32 s54, s54, 10
    s_add_u32 s54, s54, {OF_OFF}
    s_mul_i32 s55, s60, 40
    s_add_u32 s55, s55, s44
    s_lshl_b32 s55, s55, 10
    s_add_u32 s55, s55, {OF_OFF}
    s_and_b32 s44, s26, 1
    s_mul_i32 s39, s44, 21504
    s_lshr_b32 s44, s26, 1
    s_mul_i32 s44, s44, {WO_HI}
    s_add_u32 s39, s39, s44
    s_mov_b32 s40, s39
    s_mov_b32 s45, 0x15556
    v_lshlrev_b32 {v(vHL)}, 4, {v(vL)}
    v_lshlrev_b32 {v(vPF)}, 7, {v(vL)}
    s_lshl_b32 s36, s26, 12
    s_min_u32 s36, s36, 11264
    v_add_u32 {v(vKO)}, s36, {v(vHL)}
    """)
    for p in range(3):
        a(f"""
        v_add_u32 {v(T)}, {64 * p}, {v(vL)}
        v_mul_lo_u32 {v(T + 1)}, {v(T)}, s45
        v_lshrrev_b32 {v(T + 1)}, 20, {v(T + 1)}
        v_mul_u32_u24 {v(T + 2)}, 12, {v(T + 1)}
        v_sub_u32 {v(T + 2)}, {v(T)}, {v(T + 2)}
        v_and_b32 {v(T)}, 8, {v(T + 1)}
        v_add_u32 {v(T + 1)}, {v(T + 1)}, {v(T)}
        v_mul_u32_u24 {v(T + 1)}, 1280, {v(T + 1)}
        v_lshl_add_u32 {v(T + 1)}, {v(T + 2)}, 4, {v(T + 1)}
        v_add_u32 {v(vWD + p)}, s61, {v(T + 1)}
        """)
    a(f"""
    v_bfe_u32 {v(T)}, {v(vL)}, 2, 2
    v_lshl_add_u32 {v(T)}, {v(vH)}, 2, {v(T)}
    v_mul_u32_u24 {v(T)}, 192, {v(T)}
    v_bfe_u32 {v(T + 1)}, {v(vL)}, 4, 1
    v_lshl_add_u32 {v(T)}, {v(T + 1)}, 5, {v(T)}
    v_and_b32 {v(T + 1)}, 3, {v(vL)}
    v_lshl_add_u32 {v(T)}, {v(T + 1)}, 3, {v(T)}
    v_add_u32 {v(T)}, s39, {v(T)}
    s_lshl_b32 s44, s58, 6
    s_add_u32 s45, s44, 64
    s_lshl_b32 s46, s58, 7
    s_sub_u32 s46, 128, s46
    v_add_u32 {v(vWA)}, s44, {v(T)}
    v_add_u32 {v(vWA + 1)}, s45, {v(T)}
    v_add_u32 {v(vWA + 2)}, s46, {v(T)}
    """)
    vm = VM()

    def w_dma(base, off):
        out = []
        for p in range(3):
            out.append([f's_add_u32 m0, {base}, {off + p * 1024}', 's_nop 0',
                        f'buffer_load_dwordx4 {v(vWD + p)}, s[12:15], s43 offen lds'])
        out[2] += ['s_add_u32 s43, s43, s52', 's_sub_u32 s52, s48, s52']
        return out

    def h_ld(k, e):
        hs = ('s41', 's42')[e]
        return [f'buffer_load_dwordx4 {v(hreg(k) + 4 * e, 4)}, {v(vHL)}, s[20:23], {hs} offen', f's_add_u32 {hs}, {hs}, 1024']

    def w_rd(k, off):
        return [f'ds_read_b64_tr_b16 {v(wreg(k) + 4 * b + 2 * t, 2)}, {v(vWA + b)} offset:{off + 1536 * t}'
                for b in range(3) for t in range(2)]

    def g_mfmas(k):
        return [mfma16(ACC + 16 * n, wreg(k) + 4 * b, hreg(k) + 4 * e, ACC + 16 * n)
                for n, (b, e) in enumerate(((0, 0), (0, 1), (1, 0), (1, 1), (2, 0)))]

    def kv_dma(c):
        st = c % NST
        lab = a.label('kv3')
        a(f's_cmp_ge_u32 s26, 2\ns_cbranch_scc1 {lab}')
        for e in (3, 0, 1, 2):
            a(f"""
            s_add_u32 m0, s36, {KVR + st * CH_BYTES + e * 1024}
            s_mov_b32 s38, {KV_OFF + c * CH_BYTES + e * 1024}
            buffer_load_dwordx4 {v(vKO)}, s[20:23], s38 offen lds
            """)
            if e == 3:
                a(f'{lab}:')
        vm.add(f'kv{c}', 1, optional=True)
        vm.add(f'kv{c}', 3)

    for i in range(80):
        a(f'v_mov_b32 {v(ACC + i)}, 0')
    srd(a, 4, WDP, 2211840)
    a(f'''
    s_lshr_b32 s44, s2, 6
    s_mul_i32 s44, s44, {432 * 1280}
    s_bfe_u32 s45, s2, 0x30003
    s_lshl_b32 s45, s45, 2
    s_add_u32 s45, s45, s26
    s_mul_i32 s45, s45, {15 * 128}
    s_add_u32 s32, s44, s45
    s_mov_b32 s31, {48 * 1280}
    ''')

    a(f'''
    s_lshr_b32 s45, s30, 2
    s_lshl_b32 s46, s29, 1
    s_add_u32 s45, s45, s46
    s_mul_i32 s45, s45, 108
    s_and_b32 s46, s30, 3
    s_mul_i32 s46, s46, 27
    s_add_u32 s45, s45, s46
    s_lshl_b32 s45, s45, 10
    s_mul_i32 s46, s26, {6 * 128}
    s_add_u32 s45, s45, s46
    s_add_u32 s49, s45, 3072
    ''')

    def paced_h():
        if not PCH:
            return
        a(f'''
        s_mov_b64 exec, 0x3f
        buffer_load_dword v165, {v(vPF)}, s[20:23], s49 offen
        s_mov_b64 exec, -1
        s_add_u32 s49, s49, 3072
        ''')

    def paced():
        if not PCW:
            return
        a(f'''
        s_mov_b64 exec, 0x7fff
        buffer_load_dword v165, {v(vPF)}, s[4:7], s32 offen
        s_mov_b64 exec, -1
        s_add_u32 s32, s32, s31
        ''')
        vm.add('pf', 1)

    def cd_wait():
        L1, L2 = a.label('cdw'), a.label('cdd')
        a(f'''
        v_and_b32 {v(T + 4)}, 7, {v(vL)}
        v_lshlrev_b32 {v(T + 4)}, 2, {v(T + 4)}
        v_add_u32 {v(T + 4)}, {CD_A}, {v(T + 4)}
        s_mov_b32 s93, {POLL_MAX * 8}
        {L1}:
        ds_read_b32 {v(T + 5)}, {v(T + 4)}
        s_waitcnt lgkmcnt(0)
        v_cmp_eq_u32 vcc, s98, {v(T + 5)}
        s_nop 1
        s_cmp_eq_u64 vcc, -1
        s_cbranch_scc1 {L2}
        s_sub_u32 s93, s93, 1
        s_cbranch_scc0 {L1}
        {L2}:
        ''')

    a(f's_lshl_b32 s53, s29, 13\ns_add_u32 s53, s53, {F_QH}')

    def kv_poll(first):
        a(f's_mov_b32 s45, {F_KV}\ns_mov_b32 s44, {F_KV + 8192}')
        if first:
            m = ~((1 << (4 * KVF)) - 1) & 0xffffffffffffffff
            a(f's_mov_b32 s50, {m & 0xffffffff}\ns_mov_b32 s51, {m >> 32}\ns_sleep {KVSL}\ns_andn2_b64 exec, exec, s[50:51]')
            polln(a, T + 4, vPF, [('s45', 's[50:51]'), ('s44', 's[50:51]')], 2)
            a('s_mov_b64 exec, -1')
            cd_wait()
        else:
            polln(a, T + 4, vPF, [('s45', None), ('s44', None)], 4)
    one_poller(a, T, 0, lambda: kv_poll(True), who=2)
    stamp(a, 15)
    kv_dma(0)
    kv_dma(1)
    kv_dma(2)

    def prefetch(kind, b=0):
        n = {'wd': 60, 'wo': 64, 'h': 54}[kind]
        lab = a.label('nopf')
        if kind != 'h':
            a(f's_cmp_eq_u32 s26, 3\ns_cbranch_scc1 {lab}')
        if kind == 'wd':
            a(f"""
            s_lshr_b32 s44, s2, 6
            s_mul_i32 s44, s44, {432 * 1280}
            s_bfe_u32 s45, s2, 0x30003
            s_mul_i32 s45, s45, {180 * 128}
            s_add_u32 s44, s44, s45
            s_mul_i32 s45, s26, {60 * 128}
            s_add_u32 s44, s44, s45
            s_add_u32 s44, s44, {144 * 1280 * b}
            """)
            r = 's[12:15]'
        elif kind == 'wo':
            a(f"""
            s_lshr_b32 s44, s2, 3
            s_mul_i32 s44, s44, {200 * 128}
            s_mul_i32 s45, s26, {68 * 128}
            s_add_u32 s44, s44, s45
            """)
            r = 's[16:19]'
        else:
            a(f"""
            s_mul_i32 s44, s29, {216 * 1024}
            s_lshl_b32 s45, s30, 2
            s_add_u32 s45, s45, s26
            s_mul_i32 s45, s45, {54 * 128}
            s_add_u32 s44, s44, s45
            """)
            r = 's[20:23]'
        m = (1 << n) - 1
        a(f"""
        s_mov_b32 exec_hi, {m >> 32}
        buffer_load_dword v165, {v(vPF)}, {r}, s44 offen
        s_mov_b32 exec_hi, -1
        {lab}:
        """)
        vm.add('pf', 1, optional=True)
    a(f's_waitcnt vmcnt({vm.wait("kv0")})')
    a('s_barrier')
    stamp(a, 16)
    lab = a.label('nokv2')
    a(f's_cmp_lg_u32 s26, 2\ns_cbranch_scc1 {lab}')
    kv_poll(False)
    a(f'{lab}:')

    def body(last, nw=12):
        for z in range(3):
            a(f's_waitcnt vmcnt({(nw if not last else (12, 10, 8)[z]) - 2 + PCW + PCH}) lgkmcnt(0)')
            ms = g_mfmas(z)
            if z == 2:
                for b in range(3):
                    a(f'v_add_u32 {v(vWA + b)}, s33, {v(vWA + b)}')
                rd = w_rd(0, 0)
            else:
                rd = w_rd(z + 1, 3072 * (z + 1))
            wd_ = w_dma('s40', 3072 * z)
            a(ms[0]); emit(a, rd[0:2]); emit(a, [wd_[0]]); a(SPACE)
            a(ms[1]); emit(a, rd[2:4]); emit(a, [wd_[1]]); a(SPACE)
            a(ms[3]); emit(a, rd[4:6]); emit(a, [wd_[2]]); a(SPACE)
            a(ms[2])
            if not last:
                emit(a, h_ld(z, 1))
            a(SPACE)
            a(ms[4])
            if not last:
                emit(a, h_ld(z, 0))
        a('s_add_u32 s40, s40, s33\ns_sub_u32 s33, 0, s33')

    NSTAT = int(ENV.get('NSTAT', '4'))
    for c in range(NSTAT):
        a.c(f'aux B{c}')
        a(f's_waitcnt vmcnt({vm.wait(f"kv{c + 1}")})')
        bstamp(a, c == 0)
        a('s_barrier')
        bstamp(a)
        if c == 2:
            lab = a.label('noxc')
            a(f'''
            s_cmp_lg_u32 s26, 3
            s_cbranch_scc1 {lab}
            s_getreg_b32 s45, hwreg(HW_REG_XCC_ID, 0, 4)
            s_lshl_b32 s46, s29, 7
            s_add_u32 s46, s46, {F_X}
            v_and_b32 {v(T)}, 7, {v(vL)}
            v_lshlrev_b32 {v(T)}, 3, {v(T)}
            buffer_load_dwordx2 {v(T + 4, 2)}, {v(T)}, s[20:23], s46 offen sc1
            s_mov_b32 s44, s98
            s_waitcnt vmcnt(0)
            v_cmp_eq_u64 vcc, s[44:45], {v(T + 4, 2)}
            v_mov_b32 {v(T)}, {SX_A}
            s_nop 0
            s_cmp_eq_u64 vcc, -1
            s_cselect_b32 s44, s98, 0
            v_mov_b32 {v(T + 1)}, s44
            ds_write_b32 {v(T)}, {v(T + 1)}
            s_waitcnt lgkmcnt(0)
            {lab}:
            ''')
        kv_dma(c + 3)
        if WDC <= c < WDC + 2:
            for k in range(3 * (c - WDC), 3 * (c - WDC) + 3):
                emit(a, w_dma('s39', 3072 * k))
            vm.add('w', 9)
        paced()
    L_top, L_nb, L_sw, L_end2 = a.label('dtop'), a.label('dnb'), a.label('dsw'), a.label('dend')
    L_act, L_bar, L_nokv = a.label('dact'), a.label('dbar'), a.label('dnokv')
    L_s0, L_body, L_last, L_wo, L_next = a.label('ds0'), a.label('dbody'), a.label('dlast'), a.label('dwo'), a.label('dnext')
    L_w0 = a.label('dw0')
    L_w2 = a.label('dw2')
    L_b12 = a.label('db12')
    L_bd = a.label('dbd')
    L_np = a.label('dnp')
    L_p3 = a.label('dp3')
    L_k3 = a.label('dk3')
    L_w1 = a.label('dw1')
    L_n1 = a.label('dn1')
    L_oth, L_start, L_rei, L_nsw = a.label('doth'), a.label('dstart'), a.label('drei'), a.label('dnsw')
    a(f"""
    s_mov_b32 s34, {16 - NSTAT}
    s_mov_b32 s35, 0
    s_mov_b32 s37, {((NSTAT + 3) % NST) * CH_BYTES}
    s_mov_b32 s38, {KV_OFF + (NSTAT + 3) * CH_BYTES}
    s_mov_b32 s33, 9216
    s_mov_b32 s93, {POLL_MAX}
    v_mov_b32 {v(T + 3)}, {RDY_A + 4}
    {L_top}:
    s_sub_u32 s44, s35, 2
    s_cmp_lt_u32 s44, 8
    s_cbranch_scc1 {L_act}
    s_cmp_eq_u32 s35, 11
    s_cbranch_scc1 {L_w2}
    s_cmp_gt_u32 s35, 1
    s_cbranch_scc1 {L_w0}
    s_cmp_le_u32 s34, 3
    s_cbranch_scc1 {L_w0}
    s_cmp_eq_u32 s35, 1
    s_cbranch_scc1 {L_w1}
    s_waitcnt vmcnt(3)
    s_branch {L_bar}
    {L_w1}:
    s_waitcnt vmcnt({6 + HPF * PCH})
    s_branch {L_bar}
    {L_w2}:
    s_waitcnt vmcnt(12)
    s_mov_b32 s35, 12
    s_branch {L_bar}
    {L_w0}:
    s_waitcnt vmcnt(0)
    s_branch {L_bar}
    {L_act}:
    s_waitcnt vmcnt({15 + PCW + PCH})
    {L_bar}:
    s_cmp_eq_u32 s34, 0
    s_cbranch_scc1 {L_nb}
    """)
    bstamp(a)
    a('s_barrier')
    bstamp(a)
    a(f"""
    s_cmp_lg_u32 s35, 0
    s_cbranch_scc1 {L_np}
    s_cmp_lg_u32 s26, 3
    s_cbranch_scc1 {L_np}
    buffer_load_dwordx2 {v(T + 4, 2)}, {v(vPF)}, s[20:23], s53 offen sc1
    {L_np}:
    s_cmp_le_u32 s34, 3
    s_cbranch_scc1 {L_nokv}
    s_add_u32 s44, s36, s37
    s_cmp_ge_u32 s26, 2
    s_cbranch_scc1 {L_k3}
    """)
    for e in (3, 0, 1, 2):
        a(f"""
        s_add_u32 m0, s44, {KVR + e * 1024}
        s_add_u32 s45, s38, {e * 1024}
        buffer_load_dwordx4 {v(vKO)}, s[20:23], s45 offen lds
        """)
        if e == 3:
            a(f'{L_k3}:')
    a(f"""
    s_add_u32 s38, s38, {CH_BYTES}
    s_add_u32 s37, s37, {CH_BYTES}
    s_cmp_eq_u32 s37, {CH_BYTES * NST}
    s_cselect_b32 s37, 0, s37
    {L_nokv}:
    s_sub_u32 s34, s34, 1
    s_branch {L_sw}
    {L_nb}:
    s_cmp_ge_u32 s35, 11
    s_cbranch_scc1 {L_end2}
    {L_sw}:
    s_cmp_eq_u32 s35, 0
    s_cbranch_scc1 {L_s0}
    s_cmp_lt_u32 s35, 9
    s_cbranch_scc1 {L_body}
    s_cmp_eq_u32 s35, 9
    s_cbranch_scc1 {L_last}
    s_cmp_eq_u32 s35, 10
    s_cbranch_scc1 {L_wo}
    s_branch {L_top}
    {L_s0}:
    s_sub_u32 s93, s93, 1
    s_cbranch_scc1 {L_start}
    s_cmp_lg_u32 s26, 3
    s_cbranch_scc1 {L_oth}
    s_cmp_ge_u32 s34, 3
    s_cbranch_scc1 {L_p3}
    buffer_load_dwordx2 {v(T + 4, 2)}, {v(vPF)}, s[20:23], s53 offen sc1
    s_waitcnt vmcnt(0)
    {L_p3}:
    s_waitcnt vmcnt(3)
    v_cmp_eq_u64 vcc, s[98:99], {v(T + 4, 2)}
    s_lshl_b32 s45, s34, 1
    s_nop 0
    s_cmp_eq_u64 vcc, -1
    s_cselect_b32 s44, s98, s45
    v_mov_b32 {v(T + 2)}, s44
    ds_write_b32 {v(T + 3)}, {v(T + 2)}
    s_cbranch_scc1 {L_start}
    s_branch {L_top}
    {L_oth}:
    s_mov_b32 s45, 40
    {L_rei}:
    s_sleep 1
    ds_read_b32 {v(T + 2)}, {v(T + 3)}
    s_waitcnt lgkmcnt(0)
    v_readfirstlane_b32 s44, {v(T + 2)}
    s_cmp_eq_u32 s44, s98
    s_cbranch_scc1 {L_start}
    s_lshl_b32 s46, s34, 1
    s_cmp_eq_u32 s44, s46
    s_cbranch_scc1 {L_top}
    s_sub_u32 s45, s45, 1
    s_cbranch_scc0 {L_rei}
    s_branch {L_top}
    {L_start}:
    """)
    stamp(a, 23)
    for k in range(3):
        for e in range(2):
            emit(a, h_ld(k, e))
    for _ in range(HPF):
        paced_h()
    emit(a, w_rd(0, 0))
    a(f"""
    {L_next}:
    s_add_u32 s35, s35, 1
    s_branch {L_top}
    {L_body}:
    s_cmp_lg_u32 s35, 1
    s_cbranch_scc1 {L_n1}
    s_waitcnt vmcnt(0)
    {L_n1}:
    s_cmp_lg_u32 s35, 8
    s_cbranch_scc1 {L_nsw}
    s_mov_b32 s12, s16
    s_mov_b32 s13, s17
    s_mov_b32 s14, 819200
    s_mov_b32 s43, s56
    s_mov_b32 s52, 25600
    s_mov_b32 s48, 51200
    s_mov_b32 s45, 0x15556
    """)
    for p in range(3):
        a(f"""
        v_add_u32 {v(T)}, {64 * p}, {v(vL)}
        v_mul_lo_u32 {v(T + 1)}, {v(T)}, s45
        v_lshrrev_b32 {v(T + 1)}, 23, {v(T + 1)}
        v_mul_u32_u24 {v(T + 1)}, {8 * 1280}, {v(T + 1)}
        v_sub_u32 {v(vWD + p)}, {v(vWD + p)}, {v(T + 1)}
        """)
    a(f"""
    {L_nsw}:
    s_cmp_lt_u32 s34, 3
    s_cbranch_scc1 {L_b12}
    """)
    body(False, 15)
    a(f's_branch {L_bd}\n{L_b12}:')
    body(False, 12)
    a(f'{L_bd}:')
    lab = a.label('npsw')
    a(f'''
    s_cmp_lg_u32 s35, {10 - NSTAT}
    s_cbranch_scc1 {lab}
    s_mov_b32 s4, s16
    s_mov_b32 s5, s17
    s_mov_b32 s6, 819200
    s_lshr_b32 s44, s2, 3
    s_lshl_b32 s44, s44, 2
    s_add_u32 s44, s44, s26
    s_mul_i32 s32, s44, {50 * 128}
    s_mov_b32 s31, {13 * 128}
    {lab}:
    ''')
    paced_h()
    paced()
    a(f's_branch {L_next}\n{L_last}:')
    body(True)
    a(f's_branch {L_next}\n{L_wo}:')
    stamp(a, 17)
    emit(a, w_rd(1, 3072) + w_rd(2, 6144))
    a('s_mov_b32 s45, 0x15556\ns_waitcnt lgkmcnt(0)')
    emit(a, w_dma('s39', 3072 * 3))
    emit(a, w_dma('s39', 3072 * 4))
    for p in range(3):
        a(f"""
        v_add_u32 {v(T)}, {64 * p}, {v(vL)}
        v_mul_lo_u32 {v(T + 1)}, {v(T)}, s45
        v_bfe_u32 {v(T)}, {v(T + 1)}, 22, 1
        v_lshrrev_b32 {v(T + 1)}, 23, {v(T + 1)}
        v_mul_u32_u24 {v(T)}, {36 * 1280}, {v(T)}
        v_mul_u32_u24 {v(T + 1)}, {12 * 1280}, {v(T + 1)}
        v_add3_u32 {v(vWD + p)}, {v(vWD + p)}, {v(T + 1)}, {v(T)}
        """)
    a(f's_add_u32 s43, s56, {16 * 1280}\ns_mov_b32 s52, {80 * 1280}\ns_mov_b32 s48, {160 * 1280}')
    emit(a, w_dma('s39', 3072 * 5))
    emit(a, w_dma('s39', 3072 * 6))
    a(f's_cmp_lg_u32 s34, 0\ns_cbranch_scc1 {L_next}\n{L_end2}:')
    a(f"""
    v_subrev_u32 {v(vWA)}, 9216, {v(vWA)}
    v_subrev_u32 {v(vWA + 1)}, 9216, {v(vWA + 1)}
    v_subrev_u32 {v(vWA + 2)}, 9216, {v(vWA + 2)}
    s_mul_i32 s44, s26, 14336
    s_add_u32 s44, s44, {OL_A}
    v_add_u32 {v(vKO)}, s44, {v(vHL)}
    v_and_b32 {v(T)}, 7, {v(vR)}
    v_xor_b32 {v(T)}, {v(T)}, {v(vH)}
    v_lshlrev_b32 {v(T + 1)}, 7, {v(vR)}
    v_add_u32 {v(T + 1)}, s39, {v(T + 1)}
    """)
    for jp in range(4):
        a(f"""
        v_xor_b32 {v(T + 2)}, {2 * jp}, {v(T)}
        v_lshl_add_u32 {v(T + 4 + jp)}, {v(T + 2)}, 4, {v(T + 1)}
        """)
    stamp(a, 18)
    a('s_barrier')
    Lp, Lq = a.label('op'), a.label('opd')
    a(f's_mov_b32 s93, {OPOLL_MAX}\n{Lp}:')
    for k in range(27, 30):
        for e in range(2):
            a(f'buffer_load_dwordx4 {v(hreg(k) + 4 * e, 4)}, {v(vHL)}, s[20:23], s{54 + e} offen offset:{1024 * (k - 27)} sc1')
    a('s_waitcnt vmcnt(0)')
    regs = [hreg(k) + i for k in range(27, 30) for i in range(8)]
    a(f'v_max3_u32 {v(T)}, {v(regs[0])}, {v(regs[1])}, {v(regs[2])}')
    for i in range(3, 23, 2):
        a(f'v_max3_u32 {v(T)}, {v(T)}, {v(regs[i])}, {v(regs[i + 1])}')
    a(f"""
    v_max_u32 {v(T)}, {v(T)}, {v(regs[23])}
    v_cmp_eq_u32 vcc, -1, {v(T)}
    s_nop 1
    s_cmp_eq_u64 vcc, 0
    s_cbranch_scc1 {Lq}
    s_sub_u32 s93, s93, 1
    s_cbranch_scc1 {Lq}
    s_sleep {OSLEEP}
    s_branch {Lp}
    {Lq}:
    """)
    stamp(a, 19)

    def o_rd(k):
        return [f'ds_read_b128 {v(hreg(k) + 4 * e, 4)}, {v(vKO)} offset:{(k - 30) * 2048 + 1024 * e}' for e in range(2)]

    for k in range(27, 30):
        emit(a, g_mfmas(k))
        emit(a, w_rd(k + 3, 3072 * (k - 27)))
    if FFL:
        L1, L2 = a.label('fw'), a.label('fd')
        a(f'''
        s_lshl_b32 s44, s26, 3
        s_add_u32 s44, s44, {OW_A}
        v_mov_b32 {v(T)}, s44
        s_mov_b32 s93, {POLL_MAX * 8}
        {L1}:
        ds_read_b64 {v(T + 2, 2)}, {v(T)}
        s_waitcnt lgkmcnt(0)
        v_readfirstlane_b32 s44, {v(T + 2)}
        v_readfirstlane_b32 s45, {v(T + 3)}
        s_xor_b32 s44, s44, s98
        s_xor_b32 s45, s45, s98
        s_or_b32 s44, s44, s45
        s_cbranch_scc0 {L2}
        s_sub_u32 s93, s93, 1
        s_cbranch_scc0 {L1}
        {L2}:
        ''')
    else:
        a('s_waitcnt lgkmcnt(0)')
        a('s_barrier')
    stamp(a, 30)
    for k in range(30, 33):
        emit(a, o_rd(k))
    XO = vWD
    assert XO % 2 == 0 and XO + 8 <= ACC
    for k in range(30, 34):
        a(f's_waitcnt lgkmcnt({ {30: 4, 31: 10, 32: 8, 33: 8}[k] })')
        emit(a, g_mfmas(k))
        emit(a, w_rd(k + 3, 3072 * (k + 3 - 30)) + o_rd(k + 3))
    g2_out(a, XO, vL, 's24', 0)
    a('s_waitcnt lgkmcnt(0)')
    wr = lambda n: [f'ds_write_b128 {v(T + 4 + jp)}, {v(ACC + 16 * n + 4 * jp, 4)} offset:{4096 * n}' for jp in range(4)]
    ms = [g_mfmas(k) for k in range(34, 37)]
    for n in range(5):
        for z in range(3):
            a(ms[z][n])
        if n >= 2:
            a('s_nop 5')
            emit(a, wr(n - 2))
    stamp(a, 20)
    a('s_nop 3')
    emit(a, wr(3))
    a('s_nop 3')
    emit(a, wr(4))
    a('s_waitcnt vmcnt(0) lgkmcnt(0)')
    a('s_barrier')
    stamp(a, 21)
    for i in range(8):
        a(f'v_mov_b32 {v(ACC + i)}, {v(XO + i)}')
    g2_out(a, ACC, vL, 's24', 1)


def build(path):
    hdr = open('parallel_sum__grouped_kv_mqa__geglu_ffn__prompt.s.ref').read().split('; Override launch')[0]
    out = hdr + f'; @launch grid=(256,1,1) block=(768,1,1) lds={LDS_TOTAL}\n'
    out += '.amdgcn_target "amdgcn-amd-amdhsa--gfx950"\n'
    out += gen()
    out += kernel_desc(KNAME, 168)
    open(path, 'w').write(out)


if __name__ == '__main__':
    import sys
    if len(sys.argv) > 2 and sys.argv[2] == 'stamp':
        asmlib.STAMPS = True
    build(sys.argv[1])
```

```python
from asmlib import *
import asmlib
import math
import os

KNAME = 'parallel_sum__grouped_kv_mqa__geglu_ffn__prompt_kernel'

H_OFF = 0
QF_OFF = 0x700000
KV_OFF = 0xA00000
OF_OFF = 0xB00000
FL_OFF = 0xE00000
F_ST = 0x1200000
F_CS = 0x1220000
F_KV = 0x1240000
F_KC = 0x1248000
F_W2 = 0x1250000
F_X = 0x1258000
F_QH = 0xE80000
ROWW = 0xE10000
CSW = 0xE20000
CSKVW = 0xE60000
W2F = 0xF00000
WS_USED = 0x1260000

LDS_X = 0
LDS_W = 49152
LDS_KV = 147456
CS_A = 16384
PART_A = 32768
VT_A = 32768
ROWC_A = 156672
CSKV_A = 158720
NONCE_A = 160768
RDY_A = 160800
SX_A = 160928
OW_A = 160896
CD_A = 160832
PD_A = 160864
LDS_TOTAL = 163840
CH_BYTES = 14336
NST = 4
KVR = 49152
Q_A = KVR + 3 * CH_BYTES
G2R = KVR + CH_BYTES * NST
G2D = 3
TW_A = G2R
OL_A = KVR
WO_HI = 106496
WOA = 0
RED_A = 0

C0 = -2.0 * math.sqrt(2.0 / math.pi) * math.log2(math.e)
C1 = C0 * 0.044715
QSC = math.log2(math.e) / math.sqrt(20.0)
M_OFFSET = 90.0
POLL_MAX = 400000
NONCE_X = 0x5a5a5a5a

HM = 's[62:63]'
PFWAIT = False
ENV = os.environ
NODOWN = ENV.get('NODOWN')
PRIO2 = int(ENV.get('PRIO2', '3'))
PRIO1 = int(ENV.get('PRIO1', '3'))
SPACE = ENV.get('SPACE', '')
NOPF = not ENV.get('PF')
INV = int(ENV.get('INV', '0'))
NOG2 = ENV.get('NOG2')
FFL = int(ENV.get('FFL', '0'))
PCW = int(ENV.get('PCW', '1'))
PCH = int(ENV.get('PCH', '1'))
HST = int(ENV.get('HST', '-1'))
ODBL = int(ENV.get('ODBL', '1'))
JX = int(ENV.get('JX', '0'))
QSLEEP = int(ENV.get('QSLEEP', '4'))
KVF = int(ENV.get('KVF', '3'))
OUTSC = {'': '', '1': ' sc1', '2': ' nt', '3': ' sc0 sc1', '4': ' sc1 nt'}[ENV.get('OUTSC', '')]
HPF = int(ENV.get('HPF', '2'))
PERM = int(ENV.get('PERM', '1'))
P1PF = int(ENV.get('P1PF', '0'))
PFC = tuple(int(x) for x in ENV.get('PFC', '2,3,4').split(','))
WDC = int(ENV.get('WDC', '2'))
WOC = int(ENV.get('WOC', '4'))
TWC = int(ENV.get('TWC', '1'))
DPOLL2 = 0
OSLEEP = int(ENV.get('OSLEEP', '3'))
LATE1 = int(ENV.get('LATE1', '1'))
OPOLL_MAX = 200000
LINPF = int(ENV.get('LINPF', '0'))
NOSL = ENV.get('NOSL')
PF0 = int(ENV.get('PF0', '0'))
JIT = int(ENV.get('JIT', '0'))
JITD = int(ENV.get('JITD', '4'))
SLC = int(ENV.get('SLC', '-1'))
SLG = int(ENV.get('SLG', '2'))
SPN = int(ENV.get('SPN', '2'))
PZ0 = int(ENV.get('PZ0', '0'))
P3C = int(ENV.get('P3C', '7'))
EARLY2 = int(ENV.get('EARLY2', '0'))
CWARM = int(ENV.get('CWARM', '1'))
KVSL = int(ENV.get('KVSL', '1'))
HEARLY = ENV.get('HEARLY')
PSLEEP = int(ENV.get('PSLEEP', '2'))
NOPF2 = not ENV.get('PF2')
CV = int(ENV.get('CV', '0'))
NODMA = ENV.get('NODMA')
IST = ENV.get('IST')
LD = ' sc1' if ENV.get('SC1LD') else ''
FEWST = ENV.get('FEWST')
IST_LIST = tuple(int(x) for x in os.environ.get('ISTL', '1,2,6,7').split(','))
HFLAG_T = int(os.environ.get('HFT', '6'))
G2_START = int(os.environ.get('G2S', '6'))
G2_END = int(os.environ.get('G2E', '15'))


class VM:
    def __init__(self):
        self.ops = []

    def add(self, tag, n=1, optional=False):
        for _ in range(n):
            self.ops.append((tag, optional))

    def wait(self, tag):
        idx = max(i for i, (t, o) in enumerate(self.ops) if t == tag)
        n = sum(1 for t, o in self.ops[idx + 1:] if not o)
        assert n <= 63, n
        return n

    def drain(self):
        self.ops = []


def emit(a, bundles):
    for b in bundles:
        a(b if isinstance(b, str) else '\n'.join(b))


def flag_store(a, soff_reg, vt):
    a(f'''
    v_mov_b32 {v(vt)}, s98
    v_mov_b32 {v(vt + 1)}, s99
    s_mov_b64 exec, 1
    buffer_store_dwordx2 {v(vt, 2)}, off, s[20:23], {soff_reg} sc1
    s_mov_b64 exec, -1
    ''')


def poll(a, vt, voff, soff_reg, wide=False, ignore=None, inv=True, sleep=None):
    L = a.label('poll')
    Ld = a.label('polld')
    a(f's_mov_b32 s93, {POLL_MAX}')
    a(f'{L}:')
    if wide:
        a(f'''
        buffer_load_dwordx4 {v(vt, 4)}, {v(voff)}, s[20:23], {soff_reg} offen sc1
        s_waitcnt vmcnt(0)
        v_cmp_eq_u64 vcc, s[98:99], {v(vt, 2)}
        v_cmp_eq_u64 s[46:47], s[98:99], {v(vt + 2, 2)}
        s_nop 1
        s_and_b64 vcc, vcc, s[46:47]
        ''')
    else:
        a(f'''
        buffer_load_dwordx2 {v(vt, 2)}, {v(voff)}, s[20:23], {soff_reg} offen sc1
        s_waitcnt vmcnt(0)
        v_cmp_eq_u64 vcc, s[98:99], {v(vt, 2)}
        s_nop 1
        ''')
    if ignore:
        a(f's_or_b64 vcc, vcc, {ignore}')
    a(f'''
    s_cmp_eq_u64 vcc, -1
    s_cbranch_scc1 {Ld}
    s_sub_u32 s93, s93, 1
    s_cbranch_scc1 {Ld}
    s_sleep {sleep or PSLEEP}
    s_branch {L}
    {Ld}:
    ''')
    if inv and INV:
        a('buffer_inv sc1\ns_waitcnt vmcnt(0)')


def polln(a, vt, voff, rows, sleep):
    L = a.label('poll')
    Ld = a.label('polld')
    a(f's_mov_b32 s93, {POLL_MAX}\n{L}:')
    for q, (so, ig) in enumerate(rows):
        a(f'buffer_load_dwordx2 {v(vt + 2 * q, 2)}, {v(voff[q] if isinstance(voff, list) else voff)}, s[20:23], {so} offen sc1')
    a('s_waitcnt vmcnt(0)')
    dst = ['vcc', 's[46:47]', 's[48:49]']
    for q in range(len(rows)):
        a(f'v_cmp_eq_u64 {dst[q]}, s[98:99], {v(vt + 2 * q, 2)}')
    a('s_nop 1')
    for q, (so, ig) in enumerate(rows):
        if ig:
            a(f's_or_b64 {dst[q]}, {dst[q]}, {ig}')
        if q:
            a(f's_and_b64 vcc, vcc, {dst[q]}')
    a(f'''
    s_cmp_eq_u64 vcc, -1
    s_cbranch_scc1 {Ld}
    s_sub_u32 s93, s93, 1
    s_cbranch_scc1 {Ld}
    s_sleep {sleep}
    s_branch {L}
    {Ld}:
    ''')


def one_poller(a, vt, word, body, who=3):
    Lw, Ld, Ls = a.label('opw'), a.label('opd'), a.label('ops')
    a(f'''
    v_mov_b32 {v(vt + 3)}, {RDY_A + 4 * word}
    s_cmp_lg_u32 s26, {who}
    s_cbranch_scc1 {Lw}
    ''')
    body()
    a(f'''
    v_mov_b32 {v(vt + 2)}, s98
    ds_write_b32 {v(vt + 3)}, {v(vt + 2)}
    s_branch {Ld}
    {Lw}:
    s_mov_b32 s93, {POLL_MAX * 8}
    {Ls}:
    ds_read_b32 {v(vt + 2)}, {v(vt + 3)}
    s_waitcnt lgkmcnt(0)
    v_readfirstlane_b32 s46, {v(vt + 2)}
    s_cmp_eq_u32 s46, s98
    s_cbranch_scc1 {Ld}
    s_sub_u32 s93, s93, 1
    s_cbranch_scc1 {Ld}
    s_sleep 1
    s_branch {Ls}
    {Ld}:
    ''')


def bstamp(a, first=False):
    if not (asmlib.STAMPS and ENV.get('BST')):
        return
    if first:
        a('s_add_u32 s101, s92, 0xC0000')
    a('''
    s_memrealtime s[94:95]
    s_memtime s[96:97]
    s_waitcnt lgkmcnt(0)
    v_mov_b32 v166, s94
    v_mov_b32 v167, s96
    buffer_store_dwordx2 v[166:167], off, s[88:91], s101
    s_add_u32 s101, s101, 8
    ''')


def srd(a, base, ptr, size):
    a(f'''
    s_mov_b32 s{base}, s{ptr}
    s_mov_b32 s{base + 1}, s{ptr + 1}
    s_mov_b32 s{base + 2}, {size}
    s_mov_b32 s{base + 3}, 0x20000
    ''')


def w_source(a):
    a('''
    s_and_b32 s44, s26, 1
    s_and_b32 s51, s44, s48
    s_lshr_b32 s45, s26, 1
    s_lshl_b32 s46, s44, 6
    s_add_u32 s46, s46, s49
    s_cmp_eq_u32 s48, 1
    s_cselect_b32 s46, s49, s46
    s_lshl_b32 s47, s45, 6
    s_add_u32 s47, s47, s50
    s_cmp_eq_u32 s51, 1
    s_cselect_b32 s52, s47, s46
    s_lshl_b32 s52, s52, 1
    s_cmp_eq_u32 s45, 1
    s_cselect_b32 s12, s82, s80
    s_cselect_b32 s13, s83, s81
    s_mov_b32 s14, 2211840
    s_mov_b32 s53, 3456
    s_cmp_eq_u32 s51, 1
    s_cselect_b32 s12, s70, s12
    s_cselect_b32 s13, s71, s13
    s_cselect_b32 s14, 819200, s14
    s_cselect_b32 s53, 1280, s53
    s_mov_b32 s15, 0x20000
    ''')


def tile_offs(t):
    p, o = t >> 1, t & 1
    b = p * 7168
    return b + o * 1024, b + 2048, b + 3072 + o * 2048, b + 4096 + o * 2048


def gen():
    a = Asm()
    a(kernel_head(KNAME))
    stamp_early(a)
    vL, vH, vR = 1, 2, 3
    L_end = a.label('end')
    L_aux = a.label('aux')
    a(f'''
    s_cmp_ge_u32 s2, 256
    s_cbranch_scc1 {L_end}
    s_load_dwordx8 s[68:75], s[0:1], 0
    s_load_dwordx4 s[80:83], s[0:1], 48
    s_load_dwordx4 s[76:79], s[0:1], 80
    s_load_dwordx2 s[84:85], s[0:1], 32
    s_load_dwordx4 s[88:91], s[0:1], 64
    v_lshrrev_b32 v4, 6, v0
    v_and_b32 {v(vL)}, 63, v0
    v_readfirstlane_b32 s24, v4
    v_lshrrev_b32 {v(vH)}, 5, {v(vL)}
    v_and_b32 {v(vR)}, 31, {v(vL)}
    ''')
    if CWARM:
        Lw, Lp = a.label('nowarm'), a.label('pc')
        a(f'''
        s_cmp_lg_u32 s24, 11
        s_cbranch_scc1 {Lw}
        s_getpc_b64 s[4:5]
        {Lp}:
        s_bfe_u32 s44, s2, 0x30003
        s_lshl_b32 s44, s44, 13
        v_lshl_add_u32 v4, {v(vL)}, 7, s44
        v_min_u32 v4, {L_end}-{Lp}, v4
        global_load_dword v165, v4, s[4:5]
        {Lw}:
        ''')
    vXD, vWD, vKD = 20, 22, 24
    t0, t1, t2, t3, t4 = 4, 5, 6, 7, 8
    a(f'''
    s_bfe_u32 s27, s2, 0x30003
    s_and_b32 s46, s2, 1
    s_lshl_b32 s46, s46, 3
    s_add_u32 s27, s27, s46
    s_bfe_u32 s46, s2, 0x20001
    s_xor_b32 s46, s46, {JX}
    s_lshl_b32 s46, s46, 2
    s_lshr_b32 s47, s2, 6
    s_add_u32 s28, s46, s47
    s_cmp_ge_u32 s28, 11
    s_cselect_b32 s48, 1, 0
    s_sub_u32 s44, s28, 11
    s_lshl_b32 s45, s44, 6
    s_add_u32 s45, s45, 1408
    s_lshl_b32 s46, s28, 7
    s_lshl_b32 s50, s44, 7
    s_cmp_eq_u32 s48, 1
    s_cselect_b32 s49, s45, s46
    s_and_b32 s25, s24, 1
    s_lshr_b32 s26, s24, 1
    s_sub_u32 s44, s24, 8
    s_cmp_ge_u32 s24, 8
    s_cselect_b32 s26, s44, s26
    s_and_b32 s44, s26, 1
    s_and_b32 s51, s44, s48
    s_lshr_b32 s43, s26, 1
    s_andn2_b32 s46, s44, s48
    s_lshl_b32 s46, s46, 6
    s_add_u32 s46, s46, s49
    s_lshl_b32 s47, s43, 6
    s_add_u32 s47, s47, s50
    s_mov_b32 s53, 3456
    s_cmp_eq_u32 s51, 1
    s_cselect_b32 s52, s47, s46
    s_cselect_b32 s53, 1280, s53
    s_lshl_b32 s52, s52, 1
    s_lshl_b32 s31, s53, 3
    s_lshl_b32 s32, s53, 6
    v_lshrrev_b32 {v(t0)}, 3, {v(vL)}
    v_and_b32 {v(t1)}, 7, {v(vL)}
    s_lshl_b32 s44, s27, 7
    s_lshl_b32 s45, s26, 5
    s_add_u32 s44, s44, s45
    v_add_u32 {v(t2)}, s44, {v(t0)}
    v_mul_u32_u24 {v(t2)}, 1280, {v(t2)}
    v_lshrrev_b32 {v(t3)}, 1, {v(t0)}
    v_xor_b32 {v(t3)}, {v(t3)}, {v(t1)}
    v_lshl_add_u32 {v(vXD)}, {v(t3)}, 4, {v(t2)}
    v_xor_b32 {v(t3)}, 4, {v(t3)}
    v_lshl_add_u32 {v(vXD + 1)}, {v(t3)}, 4, {v(t2)}
    v_add_u32 {v(vXD + 1)}, {8 * 1280}, {v(vXD + 1)}
    v_mul_lo_u32 {v(t2)}, {v(t0)}, s53
    v_lshrrev_b32 {v(t3)}, 1, {v(t1)}
    v_and_b32 {v(t4)}, 2, {v(t0)}
    v_xor_b32 {v(t3)}, {v(t3)}, {v(t4)}
    v_and_b32 {v(t4)}, 1, {v(t1)}
    v_lshl_add_u32 {v(t2)}, {v(t4)}, 4, {v(t2)}
    v_add_u32 {v(t2)}, s52, {v(t2)}
    v_lshl_add_u32 {v(vWD)}, {v(t3)}, 5, {v(t2)}
    v_xor_b32 {v(t3)}, 1, {v(t3)}
    v_lshl_add_u32 {v(vWD + 1)}, {v(t3)}, 5, {v(t2)}
    s_lshl_b32 s36, s26, 12
    s_mul_i32 s37, s26, 24576
    s_add_u32 s37, s37, {LDS_W}
    s_lshl_b32 s33, s53, 5
    s_mul_i32 s33, s33, s25
    s_lshl_b32 s44, s25, 12
    s_add_u32 s35, s37, s44
    s_bfe_u32 s44, s2, 0x30003
    s_lshr_b32 s45, s2, 6
    s_add_u32 s44, s44, s45
    s_and_b32 s100, s44, {PERM}
    s_xor_b32 s45, s100, 1
    s_mul_i32 s38, s100, s32
    s_mul_i32 s39, s45, s32
    s_mov_b32 s10, 2621440
    s_mov_b32 s11, 0x20000
    s_mov_b32 s14, 2211840
    s_mov_b32 s15, 0x20000
    s_cmp_ge_u32 s24, 8
    s_cbranch_scc1 {L_aux}
    s_cmp_eq_u32 s43, 1
    s_waitcnt lgkmcnt(0)
    s_cselect_b32 s12, s82, s80
    s_cselect_b32 s13, s83, s81
    s_cmp_eq_u32 s51, 1
    s_cselect_b32 s12, s70, s12
    s_cselect_b32 s13, s71, s13
    s_cselect_b32 s14, 819200, s14
    ''')
    def c_start(c):
        for e in range(4):
            a(f'''
            s_add_u32 m0, s35, {c * 8192 + e * 1024}
            s_add_u32 s34, s33, s{38 + c}
            buffer_load_dwordx4 {v(vWD + (e & 1))}, s[12:15], s34 offen lds
            ''')
            if e < 3:
                a('s_add_u32 s33, s33, s31')
            elif c == 0:
                a('s_mul_i32 s44, s31, 3\ns_sub_u32 s33, s33, s44')
    c_start(0)
    if not LATE1:
        c_start(1)
    L_com = a.label('common')
    a(f'''
    s_mov_b32 s8, s68
    s_mov_b32 s9, s69
    s_mov_b32 s16, s72
    s_mov_b32 s17, s73
    s_mov_b32 s18, 25600
    s_mov_b32 s19, 0x20000
    v_mov_b32 {v(vKD)}, 0
    s_branch {L_com}
    {L_aux}:
    s_setprio {PRIO1}
    s_cmp_lt_u32 s28, 8
    s_cselect_b32 s54, 1, 0
    s_cmp_lt_u32 s26, 3
    s_cselect_b32 s40, s54, 0
    s_lshl_b32 s44, s26, 10
    s_add_u32 s38, s44, {LDS_KV}
    v_lshl_add_u32 {v(vKD)}, {v(vL)}, 4, s44
    s_mov_b32 s18, 25600
    s_mov_b32 s19, 0x20000
    s_lshl_b32 s46, s100, 7
    s_lshl_b32 s57, s45, 7
    s_mul_i32 s58, s100, 2560
    s_mul_i32 s59, s45, 2560
    s_bitcmp1_b32 s28, 2
    s_waitcnt lgkmcnt(0)
    s_mov_b32 s8, s68
    s_mov_b32 s9, s69
    s_cselect_b32 s16, s74, s72
    s_cselect_b32 s17, s75, s73
    ''')
    def a_start(c):
        for e in range(4):
            a(f'''
            s_add_u32 m0, s36, {LDS_X + c * 16384 + e * 1024}
            s_add_u32 s34, s{(46, 57)[c]}, {(e >> 1) * 16 * 1280}
            buffer_load_dwordx4 {v(vXD + (e & 1))}, s[8:11], s34 offen lds
            ''')
        lab = a.label('nokv')
        a(f'''
        s_cmp_eq_u32 s40, 0
        s_cbranch_scc1 {lab}
        s_add_u32 m0, s38, {c * 3072}
        s_nop 0
        buffer_load_dwordx4 {v(vKD)}, s[16:19], s{58 + c} offen lds
        {lab}:
        ''')
    a_start(0)
    if not LATE1:
        a_start(1)
    a(f'''
    s_cmp_eq_u32 s43, 1
    s_cselect_b32 s12, s82, s80
    s_cselect_b32 s13, s83, s81
    s_cmp_eq_u32 s51, 1
    s_cselect_b32 s12, s70, s12
    s_cselect_b32 s13, s71, s13
    s_cselect_b32 s14, 819200, s14
    {L_com}:
    s_mov_b32 s62, 0
    s_mov_b32 s63, -1
    s_and_b32 s44, s2, 7
    s_lshl_b32 s44, s44, 2
    s_bfe_u32 s46, s2, 0x20003
    s_add_u32 s29, s44, s46
    s_lshr_b32 s30, s2, 5
    ''')
    srd(a, 20, 78, WS_USED)
    srd(a, 64, 90, 2621440)
    if asmlib.STAMPS:
        a('s_mov_b32 s86, s88\ns_mov_b32 s87, s89')
    WDP = 86 if asmlib.STAMPS else 88
    if asmlib.STAMPS:
        a(f'''
        s_mov_b32 s88, s78
        s_mov_b32 s89, s79
        s_mov_b32 s90, 0x2000000
        s_mov_b32 s91, 0x20000
        s_mul_i32 s92, s2, 12
        s_add_u32 s92, s92, s24
        s_lshl_b32 s92, s92, 8
        s_add_u32 s92, s92, {asmlib.STAMP_OFF}
        ''')
    stamp(a, 0, early=True)
    stamp(a, 24)
    L_aux2 = a.label('aux2')
    a(f'''
    s_cmp_ge_u32 s24, 8
    s_cbranch_scc1 {L_aux2}
    ''')
    compute_wave(a, vL, vH, vR, L_end, c_start)
    a(f'{L_aux2}:')
    aux_wave(a, vL, vH, vR, L_end, WDP, a_start)
    a(f'''
    {L_end}:
    s_endpgm
    ''')
    return a.text()


def compute_wave(a, vL, vH, vR, L_end, c_start):
    al = Alloc(4, 168)
    T = al('T', 8, 4)
    ACC = al('acc', 64, 4)
    XF = al('xf', 32, 4)
    WF = al('wf', 16, 4)
    vXA = al('xa', 2)
    vWA = al('wa', 4)
    assert al.p == 130
    t0, t1, t2, t3, t4 = T, T + 1, T + 2, T + 3, T + 4
    a.c('=========== compute wave: phase 1 ===========')
    CR = 132
    XR = 132
    U = 160
    u0, u1, u2, u3, u4, u5 = range(U, U + 6)
    W4 = 144
    vN = 130
    srd(a, 4, 76, 256)

    a(f'''
    s_lshr_b32 s44, s30, 2
    s_lshl_b32 s46, s29, 1
    s_add_u32 s46, s46, s44
    s_and_b32 s44, s30, 3
    s_lshl_b32 s44, s44, 3
    s_add_u32 s45, s44, s24
    s_mul_i32 s37, s46, 40960
    s_add_u32 s37, s37, {OF_OFF}
    s_lshl_b32 s36, s45, 10
    s_add_u32 s36, s36, s37
    s_lshl_b32 s44, s45, 8
    s_add_u32 s37, s37, s44
    s_add_u32 s37, s37, 32768
    ''')
    PZ = 152
    poison = [f'v_mov_b32 {v(PZ + q)}, -1' for q in range(4)] + [
        f'v_lshlrev_b32 {v(u4)}, 4, {v(vL)}', f'v_lshlrev_b32 {v(u5)}, 2, {v(vL)}',
        f'buffer_store_dwordx4 {v(PZ, 4)}, {v(u4)}, s[20:23], s36 offen sc1',
        f'buffer_store_dword {v(PZ)}, {v(u5)}, s[20:23], s37 offen sc1']

    def lines(txt):
        return [x.strip() for x in txt.split(chr(10)) if x.strip()]

    def load_cs():
        f = lines(f'''
        s_mul_i32 s44, s27, 40
        v_lshrrev_b32 {v(u1)}, 3, {v(vL)}
        v_add_u32 {v(u1)}, s44, {v(u1)}
        v_mul_lo_u32 {v(u2)}, {v(u1)}, s53
        v_and_b32 {v(u1)}, 7, {v(vL)}
        v_lshl_add_u32 {v(u2)}, {v(u1)}, 4, {v(u2)}
        s_mov_b32 s34, s52
        ''')
        for t in range(5):
            f.append([f'buffer_load_dwordx4 {v(CR + 4 * t, 4)}, {v(u2)}, s[12:15], s34 offen', 's_add_u32 s34, s34, s31'])
        return f

    def load_rows():
        f = lines(f'''
        s_lshl_b32 s44, s27, 7
        s_lshl_b32 s45, s28, 3
        s_add_u32 s44, s44, s45
        s_lshl_b32 s45, s26, 1
        s_add_u32 s55, s44, s45
        v_add_u32 {v(u0)}, s55, {v(vH)}
        v_mul_u32_u24 {v(u0)}, 1280, {v(u0)}
        v_lshl_add_u32 {v(u0)}, {v(vR)}, 3, {v(u0)}
        ''')
        for t in range(5):
            f.append(f'buffer_load_dwordx2 {v(XR + 2 * t, 2)}, {v(u0)}, s[8:11], 0 offen offset:{256 * t}')
        return f

    def fill_cs():
        A8 = 152
        f = []
        for q in range(4):
            f += [f'v_lshlrev_b32 {v(A8 + 2 * q)}, 16, {v(CR + q)}', f'v_and_b32 {v(A8 + 2 * q + 1)}, 0xffff0000, {v(CR + q)}']
        for t in range(1, 5):
            for q in range(4):
                ta, tb = (u2, u3) if q & 1 else (u4, u5)
                f += lines(f'''
                v_lshlrev_b32 {v(ta)}, 16, {v(CR + 4 * t + q)}
                v_and_b32 {v(tb)}, 0xffff0000, {v(CR + 4 * t + q)}
                v_add_f32 {v(A8 + 2 * q)}, {v(A8 + 2 * q)}, {v(ta)}
                v_add_f32 {v(A8 + 2 * q + 1)}, {v(A8 + 2 * q + 1)}, {v(tb)}
                ''')
        f.append('s_nop 1')
        f += [f'v_permlane32_swap_b32 {v(A8 + q)}, {v(A8 + 4 + q)}' for q in range(4)]
        f.append('s_nop 1')
        f += [f'v_add_f32 {v(A8 + q)}, {v(A8 + q)}, {v(A8 + 4 + q)}' for q in range(4)]
        f.append('s_nop 1')
        f += [f'v_permlane16_swap_b32 {v(A8 + q)}, {v(A8 + 2 + q)}' for q in range(2)]
        f.append('s_nop 1')
        f += [f'v_add_f32 {v(A8 + q)}, {v(A8 + q)}, {v(A8 + 2 + q)}' for q in range(2)]
        f += lines(f'''
        s_nop 1
        v_add_f32_dpp {v(A8)}, {v(A8)}, {v(A8)} row_ror:8 row_mask:0xf bank_mask:0xf
        v_add_f32_dpp {v(A8 + 1)}, {v(A8 + 1)}, {v(A8 + 1)} row_ror:8 row_mask:0xf bank_mask:0xf
        s_mov_b32 vcc_lo, 0xff00ff00
        s_mov_b32 vcc_hi, 0xff00ff00
        v_cndmask_b32 {v(u0)}, {v(A8)}, {v(A8 + 1)}, vcc
        v_cvt_pk_bf16_f32 {v(u1)}, {v(u0)}, {v(u0)}
        v_and_b32 {v(u1)}, 0xffff0000, {v(u1)}
        v_sub_f32 {v(u1)}, {v(u0)}, {v(u1)}
        v_cvt_pk_bf16_f32 {v(u0)}, {v(u0)}, {v(u1)}
        v_and_b32 {v(u1)}, 7, {v(vL)}
        v_lshl_add_u32 {v(u1)}, {v(u1)}, 1, {v(vH)}
        v_bfe_u32 {v(u2)}, {v(vL)}, 4, 1
        v_lshl_add_u32 {v(u1)}, {v(u1)}, 1, {v(u2)}
        v_bfe_u32 {v(u2)}, {v(vL)}, 3, 1
        v_lshl_add_u32 {v(u1)}, {v(u1)}, 1, {v(u2)}
        v_and_b32 {v(u2)}, 15, {v(u1)}
        v_lshrrev_b32 {v(u3)}, 4, {v(u1)}
        s_and_b32 s44, s26, 1
        s_andn2_b32 s44, s44, s48
        s_lshl_b32 s44, s44, 7
        s_lshr_b32 s45, s26, 1
        s_lshl_b32 s45, s45, 4
        s_add_u32 s44, s44, s45
        v_lshl_add_u32 {v(u4)}, {v(u3)}, 5, s44
        s_add_u32 s44, s26, 3
        s_lshl_b32 s44, s44, 5
        v_lshl_add_u32 {v(u5)}, {v(u3)}, 4, s44
        s_cmp_eq_u32 s51, 1
        s_cselect_b64 vcc, -1, 0
        v_cndmask_b32 {v(u4)}, {v(u4)}, {v(u5)}, vcc
        v_add_lshl_u32 {v(u2)}, {v(u2)}, {v(u4)}, 2
        s_lshl_b32 s44, s28, 14
        s_lshl_b32 s45, s27, 10
        s_add_u32 s44, s44, s45
        s_add_u32 s44, s44, {CSW}
        buffer_store_dword {v(u0)}, {v(u2)}, s[20:23], s44 offen sc1
        s_lshl_b32 s46, s27, 2
        s_add_u32 s46, s46, s26
        s_lshl_b32 s46, s46, 7
        s_lshl_b32 s45, s28, 13
        s_add_u32 s46, s46, s45
        s_add_u32 s56, s46, {F_CS}
        ''')
        return f

    def fill_rows():
        f = [f'v_mov_b32 {v(u0)}, 0', f'v_mov_b32 {v(u1)}, 0']
        for t in range(10):
            f += lines(f'''
            v_lshlrev_b32 {v(u2)}, 16, {v(XR + t)}
            v_and_b32 {v(u3)}, 0xffff0000, {v(XR + t)}
            v_add_f32 {v(u0)}, {v(u0)}, {v(u2)}
            v_fmac_f32 {v(u1)}, {v(u2)}, {v(u2)}
            v_add_f32 {v(u0)}, {v(u0)}, {v(u3)}
            v_fmac_f32 {v(u1)}, {v(u3)}, {v(u3)}
            ''')
        for ror in (8, 4, 2, 1):
            f += lines(f'''
            s_nop 1
            v_add_f32_dpp {v(u0)}, {v(u0)}, {v(u0)} row_ror:{ror} row_mask:0xf bank_mask:0xf
            v_add_f32_dpp {v(u1)}, {v(u1)}, {v(u1)} row_ror:{ror} row_mask:0xf bank_mask:0xf
            ''')
        f += lines(f'''
        v_mov_b32 {v(u2)}, {v(u0)}
        v_mov_b32 {v(u3)}, {v(u1)}
        s_nop 1
        v_permlane16_swap_b32 {v(u0)}, {v(u2)}
        v_permlane16_swap_b32 {v(u1)}, {v(u3)}
        s_mov_b32 s44, {f2u(1.0 / 640.0)}
        s_mov_b32 s45, {f2u(1e-5)}
        v_add_f32 {v(u0)}, {v(u0)}, {v(u2)}
        v_add_f32 {v(u1)}, {v(u1)}, {v(u3)}
        v_mul_f32 {v(u0)}, s44, {v(u0)}
        v_mul_f32 {v(u1)}, s44, {v(u1)}
        v_fma_f32 {v(u1)}, -{v(u0)}, {v(u0)}, {v(u1)}
        v_max_f32 {v(u1)}, 0, {v(u1)}
        v_cvt_pk_bf16_f32 {v(W4)}, -{v(u0)}, -{v(u0)}
        v_cvt_pk_bf16_f32 {v(u1)}, {v(u1)}, {v(u1)}
        v_and_b32 {v(u1)}, 0xffff0000, {v(u1)}
        v_add_f32 {v(u1)}, s45, {v(u1)}
        v_cvt_pk_bf16_f32 {v(u1)}, {v(u1)}, {v(u1)}
        v_and_b32 {v(u1)}, 0xffff0000, {v(u1)}
        v_sqrt_f32 {v(u1)}, {v(u1)}
        v_mov_b32 {v(W4 + 3)}, 0
        v_cvt_pk_bf16_f32 {v(u1)}, {v(u1)}, {v(u1)}
        v_and_b32 {v(u1)}, 0xffff0000, {v(u1)}
        v_rcp_f32 {v(W4 + 1)}, {v(u1)}
        v_mul_f32 {v(W4 + 2)}, {v(u1)}, {v(u1)}
        v_lshlrev_b32 {v(u2)}, 4, {v(vH)}
        s_lshl_b32 s44, s55, 4
        s_add_u32 s44, s44, {ROWW}
        ''')
        f.append(['s_mov_b32 exec_lo, 1', 's_mov_b32 exec_hi, 1',
                  f'buffer_store_dwordx4 {v(W4, 4)}, {v(u2)}, s[20:23], s44 offen sc1', 's_mov_b64 exec, -1'])
        f += lines(f'''
        s_lshl_b32 s44, s28, 2
        s_add_u32 s44, s44, s26
        s_lshl_b32 s44, s44, 7
        s_lshl_b32 s45, s27, 13
        s_add_u32 s44, s44, s45
        s_add_u32 s56, s44, {F_ST}
        ''')
        return f

    stamp(a, 22)
    a(f'''
    v_and_b32 {v(t0)}, 15, {v(vL)}
    v_lshrrev_b32 {v(t1)}, 4, {v(vL)}
    v_lshrrev_b32 {v(t2)}, 1, {v(t0)}
    v_xor_b32 {v(t2)}, {v(t2)}, {v(t1)}
    v_lshlrev_b32 {v(t0)}, 7, {v(t0)}
    s_lshl_b32 s44, s25, 13
    v_add_u32 {v(t0)}, s44, {v(t0)}
    v_lshl_add_u32 {v(vXA)}, {v(t2)}, 4, {v(t0)}
    v_xor_b32 {v(t2)}, 4, {v(t2)}
    v_lshl_add_u32 {v(vXA + 1)}, {v(t2)}, 4, {v(t0)}
    v_bfe_u32 {v(t2)}, {v(vL)}, 2, 2
    v_lshl_add_u32 {v(t0)}, {v(t1)}, 3, {v(t2)}
    v_lshlrev_b32 {v(t0)}, 7, {v(t0)}
    v_and_b32 {v(t3)}, 3, {v(vL)}
    v_lshl_add_u32 {v(t0)}, {v(t3)}, 3, {v(t0)}
    v_and_b32 {v(t2)}, 2, {v(t2)}
    v_and_b32 {v(t1)}, 1, {v(t1)}
    v_xor_b32 {v(t1)}, {v(t1)}, {v(t2)}
    s_lshr_b32 s44, s26, 1
    s_and_b32 s57, s44, s48
    ''')
    for t in range(4):
        a(f'''
        s_lshl_b32 s44, s26, 1
        s_add_u32 s45, s44, {t >> 1}
        s_and_b32 s46, s45, 3
        s_lshr_b32 s45, s45, 2
        s_add_u32 s45, s45, {2 * (t & 1)}
        s_sub_u32 s44, s44, 3
        s_cmp_eq_u32 s57, 1
        s_cselect_b32 s45, s44, s45
        s_cselect_b32 s46, {t}, s46
        s_mul_i32 s45, s45, 24576
        s_add_u32 s45, s45, {LDS_W}
        v_xor_b32 {v(t2)}, s46, {v(t1)}
        v_lshl_add_u32 {v(t2)}, {v(t2)}, 5, {v(t0)}
        v_add_u32 {v(vWA + t)}, s45, {v(t2)}
        ''')

    def m16(d, A, B, first=False):
        return f'v_mfma_f32_16x16x32_bf16 {v(d, 4)}, {v(A, 4)}, {v(B, 4)}, ' + ('0' if first else v(d, 4))

    def xrd(g):
        c, sI = divmod(g, 2)
        return [f'ds_read_b128 {v(XF + 16 * (g & 1) + 4 * rt, 4)}, {v(vXA + sI)} offset:{LDS_X + (c % 3) * 16384 + 2048 * rt}' for rt in range(4)]

    def wrd(g, t):
        c, sI = divmod(g, 2)
        return [f'ds_read_b64_tr_b16 {v(WF + 4 * t + 2 * z, 2)}, {v(vWA + t)} offset:{(c % 3) * 8192 + 4096 * sI + 512 * z}' for z in range(2)]

    def tile(g, t):
        return [m16(ACC + 16 * t + 4 * rt, WF + 4 * t, XF + 16 * (g & 1) + 4 * rt, g == 0) for rt in range(4)]

    def chunk(c, fill=()):
        a.c(f'chunk {c}')
        if c:
            a('s_waitcnt lgkmcnt(0)')
        a('s_barrier')
        if not FEWST or c in (0, 1, 2, 9):
            stamp(a, 1 + c)
        if c == 9:
            lab = a.label('nqp')
            a(f's_cmp_eq_u32 s57, 0\ns_cbranch_scc1 {lab}\ns_setprio 2\n{lab}:')
        seq = []

        def rest(g, waits):
            pend = (wrd(g + 1, 0) + xrd(g + 1)) if g + 1 < 20 else []
            for t in range(1, 4):
                ms = tile(g, t)
                for q, m_ in enumerate(ms):
                    pre_ = [f's_waitcnt lgkmcnt({(0, 4, 10, 10)[t]})'] if (waits and q == 0) else []
                    ex = pend[2 * q:2 * q + 2] if t == 1 else []
                    if q == 3 and g + 1 < 20:
                        ex = ex + wrd(g + 1, t)
                    seq.append((pre_, m_, ex))
        if c > 0:
            rest(2 * c - 1, False)
        else:
            emit(a, wrd(0, 0) + xrd(0) + wrd(0, 1) + wrd(0, 2) + wrd(0, 3))
        g = 2 * c
        for q, m_ in enumerate(tile(g, 0)):
            seq.append((['s_waitcnt lgkmcnt(6)'] if q == 0 else [], m_, []))
        rest(g, True)
        for q, m_ in enumerate(tile(g + 1, 0)):
            seq.append((['s_waitcnt lgkmcnt(6)'] if q == 0 else [], m_, []))
        n, k_ = len(fill), len(seq)
        for q, (pre_, m_, ex) in enumerate(seq):
            emit(a, pre_)
            a(m_)
            emit(a, ex)
            emit(a, fill[(q * n) // k_:((q + 1) * n) // k_])

    if LATE1:
        c_start(1)
    lab1, lab2 = a.label('rowv'), a.label('join')
    a(f's_cmp_eq_u32 s25, 1\ns_cbranch_scc1 {lab1}')
    for var, (ld, fl) in enumerate(((load_cs(), fill_cs()), (load_rows(), fill_rows()))):
        qp = [] if var == 0 else lines(f'''
        s_mul_i32 s44, s27, 163840
        s_mul_i32 s45, s28, 10240
        s_add_u32 s44, s44, s45
        s_mul_i32 s45, s26, 2560
        s_add_u32 s44, s44, s45
        s_add_u32 s44, s44, {QF_OFF}
        v_lshlrev_b32 {v(u5)}, 3, {v(vL)}
        buffer_store_dwordx4 {v(PZ, 4)}, {v(u4)}, s[20:23], s44 offen sc1
        buffer_store_dwordx4 {v(PZ, 4)}, {v(u4)}, s[20:23], s44 offen offset:1024 sc1
        buffer_store_dwordx2 {v(PZ, 2)}, {v(u5)}, s[20:23], s44 offen offset:2048 sc1
        ''')
        nl = [f'buffer_load_dword {v(vN)}, off, s[4:7], 0 sc1']
        pz0 = poison + qp if PZ0 else []
        fl = (fl + nl) if PZ0 else (poison + qp + fl + nl)
        if SLC == 0:
            emit(a, ld)
        a(f's_waitcnt vmcnt({9 if SLC == 0 else 4})')
        chunk(0, (ld if SLC == -1 else []) + pz0)
        a(f's_waitcnt vmcnt({(5 if SLC <= 0 else 0) + ((2, 5)[var] if PZ0 else 0)})')
        n = len(fl)
        f0 = max(SLC, 0) + SLG
        for c in range(1, f0 + SPN):
            if c == SLC:
                chunk(c, ld)
            elif c >= f0:
                q = c - f0
                chunk(c, ([f's_waitcnt vmcnt({(2, 5)[var] if PZ0 else 0})'] if q == 0 else []) + fl[(q * n) // SPN:((q + 1) * n) // SPN])
            else:
                chunk(c)
        if var == 0:
            a(f's_branch {lab2}\n{lab1}:')
    a(f'{lab2}:')
    chunk(f0 + SPN)
    Lp, Lq = a.label('cnp'), a.label('cnd')
    a(f'''
    s_mov_b32 s93, {POLL_MAX}
    {Lp}:
    s_waitcnt vmcnt(0)
    v_readfirstlane_b32 s98, {v(vN)}
    s_cmp_lg_u32 s98, 0
    s_cbranch_scc1 {Lq}
    s_sub_u32 s93, s93, 1
    s_cbranch_scc1 {Lq}
    buffer_load_dword {v(vN)}, off, s[4:7], 0 sc1
    s_branch {Lp}
    {Lq}:
    s_xor_b32 s99, s98, {NONCE_X}
    ''')
    lab = a.label('noxid')
    a(f'''
    s_cmp_lg_u32 s24, 0
    s_cbranch_scc1 {lab}
    s_getreg_b32 s44, hwreg(HW_REG_XCC_ID, 0, 4)
    s_lshl_b32 s45, s29, 7
    s_lshl_b32 s46, s30, 3
    s_add_u32 s45, s45, s46
    s_add_u32 s45, s45, {F_X}
    v_mov_b32 {v(U)}, s98
    v_mov_b32 {v(U + 1)}, s44
    s_mov_b64 exec, 1
    buffer_store_dwordx2 {v(U, 2)}, off, s[20:23], s45 sc1
    s_mov_b64 exec, -1
    {lab}:
    ''')
    flag_store(a, 's56', U + 2)
    RC, CSF, vS16 = 132, 148, 131
    pre = lines(f'''
    v_and_b32 {v(t2)}, 15, {v(vL)}
    v_lshrrev_b32 {v(t3)}, 4, {v(vL)}
    s_lshl_b32 s44, s25, 10
    s_add_u32 s44, s44, {ROWC_A}
    v_lshl_add_u32 {v(t0)}, {v(t2)}, 4, s44
    s_lshl_b32 s44, s26, 8
    s_add_u32 s44, s44, {CS_A}
    v_lshl_add_u32 {v(t1)}, {v(t2)}, 2, s44
    v_lshl_add_u32 {v(t1)}, {v(t3)}, 12, {v(t1)}
    v_lshlrev_b32 {v(vS16)}, 4, {v(t2)}
    v_lshl_add_u32 {v(vS16)}, {v(t3)}, 9, {v(vS16)}
    ''')
    pre += [f'ds_read_b128 {v(RC + 4 * rt, 4)}, {v(t0)} offset:{256 * rt}' for rt in range(4)]
    for t in range(4):
        for z in range(2):
            pre.append(f'ds_read2st64_b32 {v(CSF + 4 * t + 2 * z, 2)}, {v(t1)} offset0:{8 * z} offset1:{8 * z + 4}')
        if t < 3:
            pre.append(f'v_add_u32 {v(t1)}, 64, {v(t1)}')
    for c in range(f0 + SPN + 1, 10):
        chunk(c, pre if c == 9 else ())
    a(f'''
    s_lshl_b32 s44, s24, 2
    s_add_u32 s44, s44, {CD_A}
    v_mov_b32 {v(t0)}, s44
    v_mov_b32 {v(t1)}, s98
    s_waitcnt lgkmcnt(0)
    ds_write_b32 {v(t0)}, {v(t1)}
    ''')
    NEG = XF
    HH = 148
    ms = tile(19, 1) + tile(19, 2) + tile(19, 3)
    mv = [f'v_mov_b32 {v(NEG + 4 * rt + r)}, {v(RC + 4 * rt)}' for rt in range(4) for r in range(4)]
    for q, m_ in enumerate(ms):
        a(m_)
        emit(a, mv[(q * 16) // 12:((q + 1) * 16) // 12])
    stamp(a, 12)
    a(f'''
    s_mov_b32 s46, {f2u(C0)}
    s_mov_b32 s47, {f2u(C1)}
    ''')
    for rt in range(4):
        for t in range(4):
            a(m16(ACC + 16 * t + 4 * rt, CSF + 4 * t, NEG + 4 * rt))
    L_q = a.label('qepi')
    L_ed = a.label('epidone')
    a(f'''
    s_lshl_b32 s44, s27, 2
    s_lshl_b32 s45, s25, 1
    s_add_u32 s60, s44, s45
    s_cmp_eq_u32 s57, 1
    s_cbranch_scc1 {L_q}
    s_lshr_b32 s44, s49, 4
    s_lshl_b32 s45, s26, 1
    s_add_u32 s44, s44, s45
    s_mul_i32 s42, s60, 108
    s_add_u32 s42, s42, s44
    s_lshl_b32 s42, s42, 10
    s_add_u32 s43, s42, {108 * 1024}
    ''')
    E1, E2, KC = XF + 16, WF, T
    for rt in range(4):
        TT = E1 + 8 * (rt % 2)
        PP = E2 + 8 * (rt % 2)
        G_ = lambda i: ACC + 32 * (i >> 2) + 4 * rt + (i & 3)
        rho = RC + 4 * rt + 1
        a(f'''
        v_mul_f32 {v(KC)}, s46, {v(rho)}
        v_mul_f32 {v(KC + 1)}, s46, {v(rho)}
        v_mul_f32 {v(KC + 4)}, {v(rho)}, {v(rho)}
        v_mov_b32 {v(RC + 4 * rt + 3)}, {v(RC + 4 * rt + 2)}
        v_mul_f32 {v(KC + 4)}, {v(KC + 4)}, {v(rho)}
        v_mul_f32 {v(KC + 2)}, s47, {v(KC + 4)}
        v_mul_f32 {v(KC + 3)}, s47, {v(KC + 4)}
        ''')
        rc = v(RC + 4 * rt + 2, 2)
        for i in range(0, 8, 2):
            a(f'v_pk_mul_f32 {v(TT + i, 2)}, {v(G_(i), 2)}, {v(G_(i), 2)}')
        for i in range(0, 8, 2):
            a(f'v_pk_fma_f32 {v(TT + i, 2)}, {v(TT + i, 2)}, {v(KC + 2, 2)}, {v(KC, 2)}')
        for i in range(0, 8, 2):
            a(f'v_pk_mul_f32 {v(TT + i, 2)}, {v(TT + i, 2)}, {v(G_(i), 2)}')
        for i in range(8):
            a(f'v_exp_f32 {v(TT + i)}, {v(TT + i)}')
        for i in range(0, 8, 2):
            a(f'v_pk_mul_f32 {v(PP + i, 2)}, {v(G_(i), 2)}, {v(G_(i) + 16, 2)}')
        for i in range(0, 8, 2):
            a(f'v_pk_fma_f32 {v(TT + i, 2)}, {v(TT + i, 2)}, {rc}, {rc}')
        for i in range(8):
            a(f'v_rcp_f32 {v(TT + i)}, {v(TT + i)}')
        a('s_nop 0')
        for i in range(0, 8, 2):
            a(f'v_pk_mul_f32 {v(PP + i, 2)}, {v(PP + i, 2)}, {v(TT + i, 2)}')
        for i in range(4):
            a(f'v_cvt_pk_bf16_f32 {v(HH + 4 * rt + i)}, {v(PP + 2 * i)}, {v(PP + 2 * i + 1)}')
    a(f's_branch {L_ed}')
    a(f'{L_q}:')
    a(f'''
    s_sub_u32 s44, s26, 2
    s_lshl_b32 s44, s44, 6
    s_add_u32 s44, s44, s50
    s_lshl_b32 s44, s44, 6
    s_add_u32 s44, s44, {QF_OFF}
    s_mov_b32 s45, {f2u(QSC)}
    s_mul_i32 s46, s60, 40960
    s_add_u32 s46, s46, s44
    s_add_u32 s47, s46, 40960
    ''')
    for rt in range(4):
        a(f'v_mul_f32 {v(T + rt)}, s45, {v(RC + 4 * rt + 1)}')
    for rt in range(4):
        for pz in range(2):
            O_ = E1 + 4 * ((2 * rt + pz) % 8)
            regs = [ACC + 16 * (2 * pz + (i >> 2)) + 4 * rt + (i & 3) for i in range(8)]
            for r_ in regs:
                a(f'v_mul_f32 {v(r_)}, {v(r_)}, {v(T + rt)}')
            for i in range(4):
                a(f'v_cvt_pk_bf16_f32 {v(O_ + i)}, {v(regs[2 * i])}, {v(regs[2 * i + 1])}')
            a(f'buffer_store_dwordx4 {v(O_, 4)}, {v(vS16)}, s[20:23], s{46 + (rt >> 1)} offen offset:{2048 * pz + 256 * (rt & 1)} sc1')
    a(f'{L_ed}:')
    stamp(a, 13)

    a.c('=========== compute wave: attention ===========')
    al3 = Alloc(4, 168)
    T = al3('T', 16, 4)
    S = al3('S', 32, 4)
    O = al3('O', 16, 4)
    V1 = al3('V1', 4, 4)
    V2 = al3('V2', 4, 4)
    Q1 = al3('Q1', 4, 4)
    K1 = al3('K1', 8, 4)
    K2 = al3('K2', 8, 4)
    P = al3('P', 16, 4)
    Q2 = al3('Q2', 2, 2)
    vK = al3('vK')
    vK2 = al3('vK2')
    a(f'''
    s_lshl_b32 s44, s27, 1
    s_add_u32 s44, s44, s25
    s_lshl_b32 s44, s44, 13
    s_lshl_b32 s45, s28, 2
    s_add_u32 s45, s45, s26
    s_lshl_b32 s45, s45, 7
    s_add_u32 s44, s44, s45
    s_add_u32 s41, s44, {F_QH}
    s_nop 1
    ''')
    for i in range(16):
        a(f'v_mov_b32 {v(O + i)}, 0')
    for i in range(4):
        a(f'v_mov_b32 {v(V1 + i)}, 0')
        a(f'v_mov_b32 {v(V2 + i)}, 0')
    a(f'''
    s_mov_b32 s45, {KVR}
    v_lshl_add_u32 {v(vK)}, {v(vL)}, 4, s45
    v_lshl_add_u32 {v(vK2)}, {v(vL)}, 3, s45
    s_mul_i32 s45, s24, 5
    v_lshlrev_b32 {v(T + 4)}, 4, {v(vR)}
    s_lshr_b32 s44, s30, 2
    s_lshl_b32 s46, s29, 1
    s_add_u32 s44, s44, s46
    s_mul_i32 s44, s44, 40960
    s_and_b32 s46, s30, 3
    s_mul_i32 s46, s46, 10240
    s_add_u32 s44, s44, s46
    s_add_u32 s40, s44, {QF_OFF}
    ''')
    for z, (dq, useh) in enumerate(((0, 1), (2, 1), (4, 0))):
        a(f's_add_u32 s46, s45, {dq}')
        a(f'v_add_u32 {v(T + 5)}, s46, {v(vH)}' if useh else f'v_mov_b32 {v(T + 5)}, s46')
        a(f'''
        v_lshrrev_b32 {v(T + 6)}, 3, {v(T + 5)}
        v_lshl_add_u32 {v(T + 6)}, {v(T + 6)}, 11, {v(T + 4)}
        v_and_b32 {v(T + 7)}, 3, {v(T + 5)}
        v_lshl_add_u32 {v(T + 6)}, {v(T + 7)}, 9, {v(T + 6)}
        v_bfe_u32 {v(T + 5)}, {v(T + 5)}, 2, 1
        v_lshl_add_u32 {v(T + 13 + z)}, {v(T + 5)}, 3, {v(T + 6)}
        ''')
    a('s_setprio 0')
    for i in range(8):
        a(f'v_mov_b32 {v(P + 8 + i)}, 0')
    Lp, Lq = a.label('qp'), a.label('qpd')
    a(f'''
    s_mov_b32 s93, {OPOLL_MAX}
    {Lp}:
    buffer_load_dwordx2 {v(Q1, 2)}, {v(T + 13)}, s[20:23], s40 offen sc1
    buffer_load_dwordx2 {v(Q1 + 2, 2)}, {v(T + 14)}, s[20:23], s40 offen sc1
    buffer_load_dwordx2 {v(Q2, 2)}, {v(T + 15)}, s[20:23], s40 offen sc1
    s_waitcnt vmcnt(0)
    v_max3_u32 {v(T)}, {v(Q1)}, {v(Q1 + 1)}, {v(Q1 + 2)}
    v_max3_u32 {v(T + 1)}, {v(Q1 + 3)}, {v(Q2)}, {v(Q2 + 1)}
    v_max_u32 {v(T)}, {v(T)}, {v(T + 1)}
    v_cmp_eq_u32 vcc, -1, {v(T)}
    s_nop 1
    s_cmp_eq_u64 vcc, 0
    s_cbranch_scc1 {Lq}
    s_sub_u32 s93, s93, 1
    s_cbranch_scc1 {Lq}
    s_sleep {QSLEEP}
    s_branch {Lp}
    {Lq}:
    v_mov_b32 {v(T + 2)}, 0
    v_cndmask_b32 {v(Q2)}, {v(Q2)}, {v(T + 2)}, {HM}
    v_cndmask_b32 {v(Q2 + 1)}, {v(Q2 + 1)}, {v(T + 2)}, {HM}
    ''')
    stamp(a, 14)
    a('s_barrier')
    stamp(a, 15)
    o0, o1, o2 = tile_offs(0), tile_offs(1), tile_offs(2)
    a(f'''
    ds_read_b128 {v(K1, 4)}, {v(vK)} offset:{o0[0]}
    ds_read_b128 {v(K1 + 4, 4)}, {v(vK)} offset:{o1[0]}
    ds_read2st64_b64 {v(K2, 4)}, {v(vK2)} offset0:{o0[1] // 512} offset1:{o0[1] // 512 + 1}
    s_waitcnt lgkmcnt(0)
    ''')

    def set_m(mreg, offset):
        t0, t1, t2, t3 = T + 8, T + 9, T + 10, T + 11
        a(f'v_sub_f32 {v(t0)}, {f2u(-offset) if offset else 0}, {v(mreg)}')
        a(f'''
        v_cvt_pk_bf16_f32 {v(t1)}, {v(t0)}, {v(t0)}
        v_and_b32 {v(t2)}, 0xffff0000, {v(t1)}
        v_sub_f32 {v(t2)}, {v(t0)}, {v(t2)}
        v_cvt_pk_bf16_f32 {v(t1)}, {v(t0)}, {v(t2)}
        v_and_b32 {v(t3)}, 0xffff0000, {v(t1)}
        v_sub_f32 {v(t2)}, {v(t2)}, {v(t3)}
        v_mov_b32 {v(t3)}, 0
        v_cvt_pk_bf16_f32 {v(t2)}, {v(t2)}, {v(t3)}
        v_cndmask_b32 {v(Q2)}, {v(Q2)}, {v(t1)}, {HM}
        v_cndmask_b32 {v(Q2 + 1)}, {v(Q2 + 1)}, {v(t2)}, {HM}
        ''')

    def cross_half_max(reg):
        t = T + 12
        a(f'''
        v_mov_b32 {v(t)}, {v(reg)}
        s_nop 1
        v_permlane32_swap_b32 {v(reg)}, {v(t)}
        s_nop 1
        v_max_f32 {v(reg)}, {v(reg)}, {v(t)}
        ''')

    for t in range(2):
        a(mfma16(S + 16 * t, K1 + 4 * t, Q1))
    if HST < 0:
        lab = a.label('nohst')
        a(f'''
        s_cmp_eq_u32 s57, 1
        s_cbranch_scc1 {lab}
        ''')
        for k in range(4):
            a(f'buffer_store_dwordx4 {v(HH + 4 * k, 4)}, {v(vS16)}, s[20:23], s{42 + (k >> 1)} offen offset:{256 * (k & 1)} sc1')
        a(f'{lab}:')
    a('s_nop 9')
    for t in range(2):
        a(mfma8(S + 16 * t, K2 + 2 * t, Q2, S + 16 * t))
    a('s_nop 11')
    m = T + 4
    for z in range(2):
        a(f'v_max3_f32 {v(m + z)}, {v(S + 16 * z)}, {v(S + 16 * z + 1)}, {v(S + 16 * z + 2)}')
    for i in range(3, 15, 2):
        for z in range(2):
            a(f'v_max3_f32 {v(m + z)}, {v(m + z)}, {v(S + 16 * z + i)}, {v(S + 16 * z + i + 1)}')
    a(f'v_max3_f32 {v(m)}, {v(m)}, {v(S + 15)}, {v(S + 31)}')
    a(f'v_max_f32 {v(m)}, {v(m)}, {v(m + 1)}')
    cross_half_max(m)
    set_m(m, M_OFFSET)
    a('s_nop 1')
    a(mfma16(S, K1, Q1))
    a(f'''
    ds_read_b128 {v(K1, 4)}, {v(vK)} offset:{o2[0]}
    s_mov_b32 s34, 4
    s_nop 7
    ''')
    a(mfma8(S, K2, Q2, S))
    a('s_nop 9')
    stamp(a, 16)

    def toff(tt):
        tt &= 15
        o = tile_offs(tt & 3)
        return [x + (tt >> 2) * CH_BYTES for x in o]

    def k2read(reg, tt):
        o = toff(tt)[1]
        assert o % 512 == 0
        return f'ds_read2st64_b64 {v(reg, 4)}, {v(vK2)} offset0:{o // 512} offset1:{o // 512 + 1}'

    L_hf, L_hb = a.label('hflag'), a.label('hback')
    L_hs, L_hsb = a.label('hst'), a.label('hstb')
    a('s_cmp_eq_u32 s57, 1\ns_cselect_b32 s33, 99, 4')

    def slot(t):
        Sx, Sn = S + 16 * (t & 1), S + 16 * ((t + 1) & 1)
        Px, Pp = P + 8 * (t & 1), P + 8 * ((t + 1) & 1)
        kt = t + 1
        kb = kt & 1
        k2 = K2 + 4 * ((kt >> 1) & 1) + 2 * (kt & 1)
        m_ = [mfma16(Sn, K1 + 4 * kb, Q1), mfma16(O, V1, Pp, O), mfma8(Sn, k2, Q2, Sn), mfma16(O, V2, Pp + 4, O)]
        after = [[], [], [], []]
        if t & 3 == 1:
            after[0] = ['s_barrier']
        after[0] += [f'ds_read_b128 {v(K1 + 4 * kb, 4)}, {v(vK)} offset:{toff(t + 3)[0]}', 's_waitcnt lgkmcnt(2)']
        after[1] = [f'ds_read_b128 {v(V1, 4)}, {v(vK)} offset:{toff(t)[2]}']
        if t & 1:
            after[1] += [k2read(K2 + 4 * (((t + 3) >> 1) & 1), t + 3)]
        after[2] += [f's_waitcnt lgkmcnt({3 if t & 1 else 2})']
        after[3] = [f'ds_read_b128 {v(V2, 4)}, {v(vK)} offset:{toff(t)[3]}']
        if t == 15:
            after[3] += ['s_sub_u32 s34, s34, 1']
        if t == HST:
            after[3] += ['s_cmp_eq_u32 s34, s33', f's_cbranch_scc1 {L_hs}', f'{L_hsb}:']
        if t == HFLAG_T:
            after[3] += ['s_cmp_eq_u32 s34, 4', f's_cbranch_scc1 {L_hf}', f'{L_hb}:']
        val = []
        for i in range(8):
            val.append(f'v_exp_f32 {v(Sx + 2 * i)}, {v(Sx + 2 * i)}')
            val.append(f'v_exp_f32 {v(Sx + 2 * i + 1)}, {v(Sx + 2 * i + 1)}')
            if i > 0:
                val.append(f'v_cvt_pk_bf16_f32 {v(Px + i - 1)}, {v(Sx + 2 * i - 2)}, {v(Sx + 2 * i - 1)}')
        val.append(f'v_cvt_pk_bf16_f32 {v(Px + 7)}, {v(Sx + 14)}, {v(Sx + 15)}')
        groups = [val[0:5], val[5:11], val[11:17], val[17:24]]
        for g in range(4):
            a(m_[g])
            emit(a, after[g])
            emit(a, groups[g])

    a(k2read(K2 + 4, 2))
    L_loop = a.label('att')
    a('.p2align 6')
    a(f'{L_loop}:')
    for t in range(16):
        slot(t)
    a(f'''
    s_cmp_lg_u32 s34, 0
    s_cbranch_scc1 {L_loop}
    s_waitcnt lgkmcnt(0)
    ''')
    a(mfma16(O, V1, P + 8, O))
    a(mfma16(O, V2, P + 12, O))
    a(f'''
    v_lshlrev_b32 {v(T + 2)}, 4, {v(vL)}
    v_lshlrev_b32 {v(T + 3)}, 3, {v(vL)}
    v_mov_b32 {v(T + 9)}, 0x7f000000
    v_cndmask_b32 {v(T + 3)}, {v(T + 3)}, {v(T + 9)}, {HM}
    v_lshlrev_b32 {v(T + 4)}, 3, {v(vR)}
    v_lshl_add_u32 {v(T + 4)}, {v(vH)}, 9, {v(T + 4)}
    v_mov_b32 {v(T + 5)}, {SX_A}
    ds_read_b32 {v(T + 5)}, {v(T + 5)}
    s_nop 4
    ''')
    stamp(a, 17)
    L_fb = a.label('fb')
    L_out = a.label('aout')
    a(f'''
    s_mov_b32 s44, {f2u(2.0 ** 120)}
    s_mov_b32 s45, {f2u(2.0 ** -103)}
    v_add_f32 {v(T)}, |{v(O)}|, |{v(O + 1)}|
    ''')
    for i in range(2, 12):
        a(f'v_add_f32 {v(T)}, {v(T)}, |{v(O + i)}|')
    a(f'''
    v_add_f32 {v(T + 1)}, {v(T)}, {v(O + 12)}
    s_waitcnt lgkmcnt(0)
    v_readfirstlane_b32 s38, {v(T + 5)}
    v_cmp_le_f32 s[46:47], s45, {v(T)}
    v_cmp_gt_f32 s[48:49], s44, {v(T + 1)}
    s_nop 1
    s_and_b64 s[46:47], s[46:47], s[48:49]
    s_cmp_eq_u64 s[46:47], -1
    s_cbranch_scc0 {L_fb}
    {L_out}:
    v_rcp_f32 {v(T)}, {v(O + 12)}
    v_rcp_f32 {v(T + 1)}, {v(O + 12)}
    s_nop 0
    ''')
    for i in range(0, 12, 2):
        a(f'v_pk_mul_f32 {v(O + i, 2)}, {v(O + i, 2)}, {v(T, 2)}')
    for i in range(6):
        a(f'v_cvt_pk_bf16_f32 {v(P + i)}, {v(O + 2 * i)}, {v(O + 2 * i + 1)}')
    L_pl, L_st = a.label('oplain'), a.label('ostored')
    a(f'''
    s_cmp_eq_u32 s38, s98
    s_cbranch_scc1 {L_pl}
    buffer_store_dwordx4 {v(P, 4)}, {v(T + 2)}, s[20:23], s36 offen sc1
    buffer_store_dwordx2 {v(P + 4, 2)}, {v(T + 3)}, s[20:23], s37 offen sc1
    s_branch {L_st}
    {L_pl}:
    buffer_store_dwordx4 {v(P, 4)}, {v(T + 2)}, s[20:23], s36 offen
    buffer_store_dwordx2 {v(P + 4, 2)}, {v(T + 3)}, s[20:23], s37 offen
    {L_st}:
    ''')
    stamp(a, 18)
    g2_ids(a)
    OFR = 120
    a(f'''
    s_cmp_eq_u32 s25, 1
    s_cselect_b32 s44, s60, s59
    s_mul_i32 s44, s44, 40960
    s_add_u32 s44, s44, {OF_OFF}
    s_lshl_b32 s45, s26, 13
    s_add_u32 s38, s44, s45
    s_add_u32 s38, s38, 3072
    s_add_u32 s39, s38, 4096
    s_lshl_b32 s45, s26, 11
    s_add_u32 s40, s44, s45
    s_add_u32 s40, s40, 32768
    s_mul_i32 s44, s26, 14336
    s_lshl_b32 s45, s25, 10
    s_add_u32 s44, s44, s45
    s_add_u32 s44, s44, {OL_A}
    v_add_u32 {v(T + 5)}, s44, {v(T + 2)}
    s_barrier
    ''')
    Lp, Lq = a.label('cop'), a.label('copd')
    a(f's_mov_b32 s93, {OPOLL_MAX}\n{Lp}:')
    for q in range(5):
        a(f'buffer_load_dwordx4 {v(OFR + 4 * q, 4)}, {v(T + 2)}, s[20:23], {"s38" if q < 4 else "s39"} offen offset:{1024 * (q & 3)} sc1')
    for q in range(4):
        a(f'buffer_load_dwordx2 {v(OFR + 20 + 2 * q, 2)}, {v(T + 4)}, s[20:23], s40 offen offset:{1024 * (q >> 1) + 256 * (q & 1)} sc1')
    a('s_waitcnt vmcnt(0)')
    a(f'v_max3_u32 {v(T)}, {v(OFR)}, {v(OFR + 1)}, {v(OFR + 2)}')
    for i in range(3, 27, 2):
        a(f'v_max3_u32 {v(T)}, {v(T)}, {v(OFR + i)}, {v(OFR + i + 1)}')
    a(f'''
    v_max_u32 {v(T)}, {v(T)}, {v(OFR + 27)}
    v_cmp_eq_u32 vcc, -1, {v(T)}
    s_nop 1
    s_cmp_eq_u64 vcc, 0
    s_cbranch_scc1 {Lq}
    s_sub_u32 s93, s93, 1
    s_cbranch_scc1 {Lq}
    s_sleep {OSLEEP}
    s_branch {Lp}
    {Lq}:
    ''')
    for q in range(7):
        a(f'ds_write_b128 {v(T + 5)}, {v(OFR + 4 * q, 4)} offset:{2048 * q}')
    stamp(a, 21)
    if FFL:
        a(f'''
        s_lshl_b32 s44, s24, 2
        s_add_u32 s44, s44, {OW_A}
        v_mov_b32 {v(T)}, s44
        v_mov_b32 {v(T + 1)}, s98
        s_waitcnt lgkmcnt(0)
        ds_write_b32 {v(T)}, {v(T + 1)}
        ''')
    g2_out(a, S, vL, 's24', 0)
    if not FFL:
        a('s_waitcnt lgkmcnt(0)')
        a('s_barrier')
    a('s_barrier')
    stamp(a, 19)
    g2_out(a, S, vL, 's24', 1)
    if asmlib.STAMPS:
        a('s_waitcnt vmcnt(0)')
    stamp(a, 20)
    diag_end(a)
    a(f's_branch {L_end}')

    if HST >= 0:
        a(f'{L_hs}:')
        for k in range(4):
            a(f'buffer_store_dwordx4 {v(HH + 4 * k, 4)}, {v(vS16)}, s[20:23], s{42 + (k >> 1)} offen offset:{256 * (k & 1)} sc1')
        a(f's_branch {L_hsb}')
    a(f'{L_hf}:')
    a('s_waitcnt vmcnt(0)')
    flag_store(a, 's41', T + 2)
    a(f's_branch {L_hb}')
    a(f'{L_fb}:')
    L1 = a.label('fb1')
    L2 = a.label('fb2')
    a(f'''
    v_lshlrev_b32 {v(T + 13)}, 4, {v(vL)}
    v_lshlrev_b32 {v(T + 7)}, 3, {v(vL)}
    v_mov_b32 {v(T + 14)}, 0
    v_mov_b32 {v(T + 15)}, 0xff800000
    v_cndmask_b32 {v(Q2)}, {v(Q2)}, {v(T + 14)}, {HM}
    v_cndmask_b32 {v(Q2 + 1)}, {v(Q2 + 1)}, {v(T + 14)}, {HM}
    s_mov_b32 s77, {KV_OFF}
    s_mov_b32 s34, 32
    {L1}:
    buffer_load_dwordx4 {v(K1, 4)}, {v(T + 13)}, s[20:23], s77 offen sc1
    buffer_load_dwordx4 {v(K1 + 4, 4)}, {v(T + 13)}, s[20:23], s77 offen offset:1024 sc1
    buffer_load_dwordx2 {v(K2, 2)}, {v(T + 7)}, s[20:23], s77 offen offset:2048 sc1
    buffer_load_dwordx2 {v(K2 + 2, 2)}, {v(T + 7)}, s[20:23], s77 offen offset:2560 sc1
    s_waitcnt vmcnt(0)
    ''')
    for t in range(2):
        a(mfma16(S + 16 * t, K1 + 4 * t, Q1))
    a('s_nop 9')
    for t in range(2):
        a(mfma8(S + 16 * t, K2 + 2 * t, Q2, S + 16 * t))
    a('s_nop 15')
    for i in range(0, 32, 2):
        a(f'v_max3_f32 {v(T + 15)}, {v(T + 15)}, {v(S + i)}, {v(S + i + 1)}')
    a(f'''
    s_add_u32 s77, s77, 7168
    s_sub_u32 s34, s34, 1
    s_cmp_lg_u32 s34, 0
    s_cbranch_scc1 {L1}
    ''')
    cross_half_max(T + 15)
    set_m(T + 15, 0.0)
    for i in range(16):
        a(f'v_mov_b32 {v(O + i)}, 0')
    a(f'''
    s_mov_b32 s77, {KV_OFF}
    s_mov_b32 s34, 64
    {L2}:
    s_and_b32 s78, s34, 1
    s_lshl_b32 s79, s78, 10
    s_add_u32 s79, s79, s77
    s_lshl_b32 s80, s78, 9
    s_add_u32 s80, s80, s77
    s_lshl_b32 s81, s78, 11
    s_add_u32 s81, s81, s77
    s_add_u32 s81, s81, 3072
    buffer_load_dwordx4 {v(K1, 4)}, {v(T + 13)}, s[20:23], s79 offen sc1
    buffer_load_dwordx2 {v(K2, 2)}, {v(T + 7)}, s[20:23], s80 offen offset:2048 sc1
    buffer_load_dwordx4 {v(V1, 4)}, {v(T + 13)}, s[20:23], s81 offen sc1
    buffer_load_dwordx4 {v(V2, 4)}, {v(T + 13)}, s[20:23], s81 offen offset:1024 sc1
    s_waitcnt vmcnt(0)
    {mfma16(S, K1, Q1)}
    s_nop 10
    {mfma8(S, K2, Q2, S)}
    s_nop 15
    ''')
    for i in range(16):
        a(f'v_exp_f32 {v(S + i)}, {v(S + i)}')
    a('s_nop 0')
    for i in range(8):
        a(f'v_cvt_pk_bf16_f32 {v(P + i)}, {v(S + 2 * i)}, {v(S + 2 * i + 1)}')
    a(f'''
    s_nop 1
    {mfma16(O, V1, P, O)}
    {mfma16(O, V2, P + 4, O)}
    s_mul_i32 s78, s78, 7168
    s_add_u32 s77, s77, s78
    s_sub_u32 s34, s34, 1
    s_cmp_lg_u32 s34, 0
    s_cbranch_scc1 {L2}
    s_nop 15
    s_branch {L_out}
    ''')


def g2_ids(a):
    a('''
    s_lshr_b32 s57, s30, 1
    s_and_b32 s58, s30, 1
    s_lshl_b32 s44, s29, 1
    s_add_u32 s59, s44, s58
    s_xor_b32 s60, s59, 1
    s_mul_i32 s44, s57, 320
    s_lshl_b32 s45, s58, 7
    s_add_u32 s61, s44, s45
    ''')


def g2_out(a, T, vL, wsg, part):
    L_skip = a.label('g2o')
    a(f'''
    s_cmp_ge_u32 {wsg}, 10
    s_cbranch_scc1 {L_skip}
    ''')
    if part == 0:
        a(f'''
        s_lshr_b32 s45, {wsg}, 1
        s_and_b32 s46, {wsg}, 1
        s_lshl_b32 s46, s46, 4
        v_lshrrev_b32 {v(T)}, 2, {v(vL)}
        v_add_u32 {v(T)}, s46, {v(T)}
        v_and_b32 {v(T + 1)}, 3, {v(vL)}
        s_and_b32 s47, s45, 1
        s_cmp_eq_u32 s47, 1
        s_cselect_b32 s47, s60, s59
        s_mul_i32 s47, s47, {32 * 1280}
        s_lshr_b32 s48, s45, 1
        s_add_u32 s49, s48, s58
        s_lshl_b32 s49, s49, 6
        s_lshl_b32 s50, s58, 7
        s_sub_u32 s50, 128, s50
        s_cmp_eq_u32 s48, 2
        s_cselect_b32 s49, s50, s49
        s_add_u32 s47, s47, s49
        s_add_u32 s31, s47, s61
        v_mul_u32_u24 {v(T + 6)}, 1280, {v(T)}
        v_lshl_add_u32 {v(T + 6)}, {v(T + 1)}, 4, {v(T + 6)}
        buffer_load_dwordx4 {v(T + 2, 4)}, {v(T + 6)}, s[8:11], s31 offen
        v_lshlrev_b32 {v(T + 1)}, 1, {v(T + 1)}
        v_and_b32 {v(T + 7)}, 7, {v(T)}
        v_xor_b32 {v(T + 1)}, {v(T + 1)}, {v(T + 7)}
        v_lshlrev_b32 {v(T)}, 7, {v(T)}
        v_lshl_add_u32 {v(T)}, {v(T + 1)}, 4, {v(T)}
        s_lshl_b32 s47, s45, 12
        v_add_u32 {v(T)}, s47, {v(T)}
        v_xor_b32 {v(T + 1)}, 16, {v(T)}
        ''')
    else:
        for w in range(4):
            if w == 2:
                a(f'v_add_u32 {v(T)}, {WO_HI}, {v(T)}\nv_add_u32 {v(T + 1)}, {WO_HI}, {v(T + 1)}')
            a(f'ds_read_b128 {v(T + 8 + 8 * w, 4)}, {v(T)} offset:{21504 * (w & 1)}')
            a(f'ds_read_b128 {v(T + 12 + 8 * w, 4)}, {v(T + 1)} offset:{21504 * (w & 1)}')
        a('s_waitcnt vmcnt(0)')
        for i in range(4):
            a(f'''
            v_lshlrev_b32 {v(T + 40 + 2 * i)}, 16, {v(T + 2 + i)}
            v_and_b32 {v(T + 41 + 2 * i)}, 0xffff0000, {v(T + 2 + i)}
            ''')
        a('s_waitcnt lgkmcnt(4)')
        for i in range(0, 8, 2):
            a(f'v_pk_add_f32 {v(T + 8 + i, 2)}, {v(T + 8 + i, 2)}, {v(T + 16 + i, 2)}')
        for i in range(0, 8, 2):
            a(f'v_pk_add_f32 {v(T + 8 + i, 2)}, {v(T + 8 + i, 2)}, {v(T + 40 + i, 2)}')
        a('s_waitcnt lgkmcnt(0)')
        for i in range(0, 8, 2):
            a(f'v_pk_add_f32 {v(T + 24 + i, 2)}, {v(T + 24 + i, 2)}, {v(T + 32 + i, 2)}')
        for i in range(0, 8, 2):
            a(f'v_pk_add_f32 {v(T + 8 + i, 2)}, {v(T + 8 + i, 2)}, {v(T + 24 + i, 2)}')
        for i in range(4):
            a(f'v_cvt_pk_bf16_f32 {v(T + 16 + i)}, {v(T + 8 + 2 * i)}, {v(T + 9 + 2 * i)}')
        a(f'buffer_store_dwordx4 {v(T + 16, 4)}, {v(T + 6)}, s[64:67], s31 offen{OUTSC}')
    a(f'{L_skip}:')


def aux_wave(a, vL, vH, vR, L_end, WDP, a_start):
    al = Alloc(4, 168)
    T = al('T', 16, 4)
    vXD = al('xd', 2)
    vWD = al('wd', 2)
    vKD = al('kd')
    vKX = al('kx')
    vKW = al('kw')
    XR = al('xr', 10, 2)
    CR = al('cr', 20, 2)
    PF = al('pf', 2)
    AKV = al('akv', 16, 4)
    KXF = al('kxf', 4, 4)
    KWF = al('kwf', 4, 4)
    FX = al('fx', 16, 4)
    RD = al('rd', 48, 4)
    JA = al('ja', 2, 2)
    JS = al('js')
    t0, t1, t2, t3, t4, t5 = T, T + 1, T + 2, T + 3, T + 4, T + 5
    vm = VM()
    a.c('=========== aux wave: phase 1 ===========')
    assert (vXD, vWD, vKD) == (20, 22, 24)

    def dma_group(c, kvonly=False):
        st = c % 3
        lab = a.label('nokv')
        a(f'''
        s_and_b32 s35, s100, {7 if c < 8 else 1}
        s_xor_b32 s35, s35, {c}
        s_mul_i32 s33, s32, s35
        s_mul_i32 s34, s35, 2560
        s_lshl_b32 s35, s35, 7
        s_cmp_eq_u32 s40, 0
        s_cbranch_scc1 {lab}
        s_add_u32 m0, s38, {st * 3072}
        s_nop 0
        buffer_load_dwordx4 {v(vKD)}, s[16:19], s34 offen lds
        {lab}:
        ''')
        vm.add(f'c{c}', 1, optional=True)
        if kvonly or (NODMA and c > 2):
            vm.add(f'c{c}', 1, optional=True)
            return
        for e in range(4):
            a(f'''
            s_add_u32 m0, s36, {LDS_X + st * 16384 + e * 1024}
            s_add_u32 s34, s35, {(e >> 1) * 16 * 1280}
            buffer_load_dwordx4 {v(vXD + (e & 1))}, s[8:11], s34 offen lds
            ''')
        for e in range(8):
            a(f'''
            s_add_u32 m0, s37, {st * 8192 + e * 1024}
            s_nop 0
            buffer_load_dwordx4 {v(vWD + (e & 1))}, s[12:15], s33 offen lds
            ''')
            if e < 7:
                a('s_add_u32 s33, s33, s31')
        vm.add(f'c{c}', 12)

    vm.add('c0', 4)
    vm.add('c0', 1, optional=True)
    if not LATE1:
        vm.add('c1', 4)
        vm.add('c1', 1, optional=True)

    def jit(c):
        if not JIT or c > 9:
            return
        lab = a.label('nojit')
        a(f'''
        s_cmp_lg_u32 s26, 3
        s_cbranch_scc1 {lab}
        global_load_dword v165, {v(JA, 2)}, off
        v_add_co_u32 {v(JA)}, vcc, {v(JA)}, {v(JS)}
        s_nop 1
        v_addc_co_u32 {v(JA + 1)}, vcc, 0, {v(JA + 1)}, vcc
        {lab}:
        ''')
        vm.add('jit', 1, optional=True)

    if JIT:
        a(f'v_mov_b32 {v(JA)}, s68\nv_mov_b32 {v(JA + 1)}, s69')
        lab = a.label('nojs')
        a(f'''
        s_cmp_lg_u32 s26, 3
        s_cbranch_scc1 {lab}
        s_lshr_b32 s44, s2, 3
        s_and_b32 s45, s44, 7
        s_lshr_b32 s46, s44, 3
        s_lshl_b32 s46, s46, 5
        s_lshl_b32 s47, s27, 7
        s_add_u32 s46, s46, s47
        v_add_u32 {v(t0)}, s46, {v(vR)}
        v_mul_u32_u24 {v(t0)}, 1280, {v(t0)}
        v_add_u32 {v(t0)}, {128 * JIT}, {v(t0)}
        v_bfe_u32 {v(t1)}, {v(vL)}, 3, 1
        v_bfe_u32 {v(t2)}, {v(vL)}, 4, 1
        v_and_b32 {v(t3)}, s48, {v(t1)}
        v_cmp_eq_u32 s[58:59], 1, {v(t3)}
        v_cmp_eq_u32 s[60:61], 1, {v(t2)}
        v_mov_b32 {v(t4)}, 3456
        v_mov_b32 {v(t5)}, 1280
        v_cndmask_b32 {v(t4)}, {v(t4)}, {v(t5)}, s[58:59]
        s_xor_b32 s44, s48, 1
        v_and_b32 {v(t5)}, s44, {v(t1)}
        v_lshlrev_b32 {v(t5)}, 6, {v(t5)}
        v_add_u32 {v(t5)}, s49, {v(t5)}
        v_lshlrev_b32 {v(t3)}, 6, {v(t2)}
        v_add_u32 {v(t3)}, s50, {v(t3)}
        v_cndmask_b32 {v(t5)}, {v(t5)}, {v(t3)}, s[58:59]
        s_lshl_b32 s45, s45, 3
        s_add_u32 s45, s45, {64 * JIT}
        v_and_b32 {v(t3)}, 7, {v(vL)}
        v_add_u32 {v(t3)}, s45, {v(t3)}
        v_mul_lo_u32 {v(t3)}, {v(t3)}, {v(t4)}
        v_lshl_add_u32 {v(t3)}, {v(t5)}, 1, {v(t3)}
        v_cndmask_b32 {v(t0)}, {v(t0)}, {v(t3)}, {HM}
        v_lshlrev_b32 {v(t4)}, 6, {v(t4)}
        v_mov_b32 {v(t5)}, 128
        v_cndmask_b32 {v(JS)}, {v(t5)}, {v(t4)}, {HM}
        ''')
        for z in range(2):
            a(f'''
            v_mov_b32 {v(t1)}, s{80 + z}
            v_mov_b32 {v(t2)}, s{82 + z}
            v_cndmask_b32 {v(t1)}, {v(t1)}, {v(t2)}, s[60:61]
            v_mov_b32 {v(t2)}, s{70 + z}
            v_cndmask_b32 {v(t1)}, {v(t1)}, {v(t2)}, s[58:59]
            v_mov_b32 {v(t2)}, s{68 + z}
            v_cndmask_b32 {v(JA + z)}, {v(t2)}, {v(t1)}, {HM}
            ''')
        a(f'''
        v_add_co_u32 {v(JA)}, vcc, {v(JA)}, {v(t0)}
        s_nop 1
        v_addc_co_u32 {v(JA + 1)}, vcc, 0, {v(JA + 1)}, vcc
        {lab}:
        ''')
        for c in range(JIT, JITD):
            jit(c)
    srd(a, 4, 76, 256)
    lab = a.label('nononce')
    a(f'''
    s_or_b32 s44, s2, s26
    s_cmp_lg_u32 s44, 0
    s_cbranch_scc1 {lab}
    s_memrealtime s[44:45]
    s_waitcnt lgkmcnt(0)
    s_or_b32 s44, s44, 1
    v_mov_b32 {v(t0)}, s44
    s_mov_b64 exec, 1
    buffer_store_dword {v(t0)}, off, s[4:7], 0 sc1
    s_mov_b64 exec, -1
    {lab}:
    ''')
    vm.add('nonce', 1, optional=True)
    a(f'''
    s_and_b32 s56, s28, 3
    v_lshrrev_b32 {v(t0)}, 1, {v(vR)}
    v_and_b32 {v(t0)}, 7, {v(t0)}
    v_xor_b32 {v(t0)}, {v(t0)}, {v(vH)}
    s_lshl_b32 s44, s26, 1
    v_xor_b32 {v(t0)}, s44, {v(t0)}
    v_lshlrev_b32 {v(t3)}, 7, {v(vR)}
    v_lshl_add_u32 {v(t0)}, {v(t0)}, 4, {v(t3)}
    s_lshl_b32 s44, s56, 12
    v_add_u32 {v(vKX)}, s44, {v(t0)}
    v_bfe_u32 {v(t0)}, {v(vL)}, 2, 2
    v_lshl_add_u32 {v(t0)}, {v(vH)}, 3, {v(t0)}
    v_mul_u32_u24 {v(t0)}, 40, {v(t0)}
    v_bfe_u32 {v(t3)}, {v(vL)}, 4, 1
    v_and_b32 {v(t4)}, 3, {v(vL)}
    v_lshl_add_u32 {v(t3)}, {v(t3)}, 2, {v(t4)}
    v_min_u32 {v(t3)}, 4, {v(t3)}
    v_lshl_add_u32 {v(t0)}, {v(t3)}, 3, {v(t0)}
    s_mul_i32 s44, s26, 640
    s_add_u32 s44, s44, {LDS_KV}
    v_add_u32 {v(vKW)}, s44, {v(t0)}
    ''')
    for i in range(16):
        a(f'v_mov_b32 {v(AKV + i)}, 0')

    if LATE1:
        a_start(1)
        vm.add('c1', 4)
        vm.add('c1', 1, optional=True)

    def colsum(src_tag_wait, store_code):
        a(f's_waitcnt vmcnt({src_tag_wait})')
        a(f'''
        v_lshlrev_b32 {v(t0)}, 16, {v(CR)}
        v_and_b32 {v(t1)}, 0xffff0000, {v(CR)}
        ''')
        for t in range(1, 20):
            a(f'''
            v_lshlrev_b32 {v(t2)}, 16, {v(CR + t)}
            v_and_b32 {v(t3)}, 0xffff0000, {v(CR + t)}
            v_add_f32 {v(t0)}, {v(t0)}, {v(t2)}
            v_add_f32 {v(t1)}, {v(t1)}, {v(t3)}
            ''')
        a(f'''
        s_nop 1
        v_permlane32_swap_b32 {v(t0)}, {v(t1)}
        s_nop 1
        v_add_f32 {v(t0)}, {v(t0)}, {v(t1)}
        v_cvt_pk_bf16_f32 {v(t1)}, {v(t0)}, {v(t0)}
        v_and_b32 {v(t1)}, 0xffff0000, {v(t1)}
        v_sub_f32 {v(t1)}, {v(t0)}, {v(t1)}
        v_cvt_pk_bf16_f32 {v(t0)}, {v(t0)}, {v(t1)}
        ''')
        store_code()

    a('''
    s_lshl_b32 s41, s27, 10
    s_and_b32 s44, s28, 11
    s_cmp_eq_u32 s44, 0
    s_cselect_b32 s42, 1, 0
    s_cmp_eq_u32 s26, 3
    s_cselect_b32 s42, s42, 0
    ''')

    def kv_step(c, part):
        st = c % 3
        lab = a.label('kvs')
        a(f's_cmp_eq_u32 s54, 0\ns_cbranch_scc1 {lab}')
        if part == 0:
            a(f'''
            ds_read_b128 {v(KXF, 4)}, {v(vKX)} offset:{LDS_X + st * 16384}
            ds_read_b64_tr_b16 {v(KWF, 2)}, {v(vKW)} offset:{st * 3072}
            ds_read_b64_tr_b16 {v(KWF + 2, 2)}, {v(vKW)} offset:{st * 3072 + 160}
            ''')
        else:
            a('s_waitcnt lgkmcnt(0)')
            a(mfma16(AKV, KWF, KXF, AKV))
        a(f'{lab}:')

    for c in range(10):
        a.c(f'aux chunk {c}')
        if c == 0:
            stamp(a, 22)
        if c <= 8:
            a(f's_waitcnt vmcnt({vm.wait(f"c{c}") if c != 5 else min(vm.wait("c5"), vm.wait("st"), vm.wait("nl"))})')
        else:
            a('s_waitcnt vmcnt(0)')
        a('s_barrier')
        if not FEWST or c in (0, 1, 2, 9):
            stamp(a, 1 + c)
        if asmlib.STAMPS:
            vm.add('stamp', 1, optional=True)
        if c == 3:
            a(f'buffer_load_dword {v(PF)}, off, s[4:7], 0 sc1')
            vm.add('nl', 1)
        kv_step(c, 0)
        if c == P3C:
            lab = a.label('nop3')
            a(f'''
            v_lshlrev_b32 {v(T + 8)}, 3, {v(vL)}
            v_lshlrev_b32 {v(T + 10)}, 7, {v(vL)}
            v_and_b32 {v(T + 11)}, 0x780, {v(T + 10)}
            s_cmp_lg_u32 s26, 3
            s_cbranch_scc1 {lab}
            s_lshl_b32 s44, s27, 13
            s_add_u32 s44, s44, {F_ST}
            s_lshl_b32 s45, s28, 13
            s_add_u32 s45, s45, {F_CS}
            s_and_b32 s58, s28, 4
            s_lshl_b32 s58, s58, 9
            s_add_u32 s58, s58, {F_KC}
            ''')
            a(f'''
            s_mov_b32 s60, s44
            s_mov_b32 s61, s45
            s_lshr_b32 s59, s29, 1
            s_lshl_b32 s59, s59, 13
            s_add_u32 s59, s59, {F_ST}
            buffer_load_dwordx2 {v(FX + 6, 2)}, {v(T + 10)}, s[20:23], s59 offen sc1
            buffer_load_dwordx2 {v(FX, 2)}, {v(T + 10)}, s[20:23], s60 offen sc1
            buffer_load_dwordx2 {v(FX + 2, 2)}, {v(T + 10)}, s[20:23], s61 offen sc1
            buffer_load_dwordx2 {v(FX + 4, 2)}, {v(T + 11)}, s[20:23], s58 offen sc1
            {lab}:
            ''')
        jit(c + JITD)
        if (1 if EARLY2 else 0) <= c and c + 2 < 10:
            dma_group(c + 2)
        kv_step(c, 1)
        if c == P3C:
            lab = a.label('nop3b')
            a(f'''
            s_cmp_lg_u32 s26, 3
            s_cbranch_scc1 {lab}
            s_waitcnt vmcnt(12)
            v_cmp_eq_u64 vcc, s[98:99], {v(FX, 2)}
            v_cmp_eq_u64 s[46:47], s[98:99], {v(FX + 2, 2)}
            v_cmp_eq_u64 s[44:45], s[98:99], {v(FX + 4, 2)}
            v_cmp_eq_u64 s[48:49], s[98:99], {v(FX + 6, 2)}
            s_nop 1
            s_and_b64 vcc, vcc, s[46:47]
            s_and_b64 vcc, vcc, s[44:45]
            s_and_b64 vcc, vcc, s[48:49]
            s_cmp_eq_u64 vcc, -1
            s_cbranch_scc1 {lab}
            ''')
            polln(a, FX, [T + 10, T + 10, T + 11], [('s60', None), ('s61', None), ('s58', None)], 4)
            polln(a, FX, [T + 10], [('s59', None)], 4)
            a(f'{lab}:')
        if c == 2:
            lab = a.label('nokvcs')
            a(f'''
            s_cmp_eq_u32 s42, 0
            s_cbranch_scc1 {lab}
            s_mul_i32 s44, s27, 40
            v_add_u32 {v(t1)}, s44, {v(vH)}
            v_mul_u32_u24 {v(t2)}, 40, {v(t1)}
            v_lshl_add_u32 {v(t2)}, {v(vR)}, 2, {v(t2)}
            ''')
            for t in range(20):
                a(f'buffer_load_dword {v(CR + t)}, {v(t2)}, s[16:19], 0 offen offset:{80 * t}')
            a(f'{lab}:')
            vm.add('kcr', 20, optional=True)
        if c == 3:
            lab = a.label('nokvcs2')
            a(f's_cmp_eq_u32 s42, 0\ns_cbranch_scc1 {lab}')

            def kcs_store():
                a(f'''
                v_lshl_add_u32 {v(t1)}, {v(vR)}, 1, {v(vH)}
                v_lshlrev_b32 {v(t2)}, 2, {v(t1)}
                v_mov_b32 {v(t3)}, 0x7f000000
                v_cmp_gt_u32 vcc, 32, {v(t1)}
                s_lshl_b32 s44, s28, 9
                s_lshl_b32 s45, s27, 7
                s_add_u32 s44, s44, s45
                s_add_u32 s44, s44, {CSKVW}
                v_cndmask_b32 {v(t2)}, {v(t3)}, {v(t2)}, vcc
                buffer_store_dword {v(t0)}, {v(t2)}, s[20:23], s44 offen sc1
                ''')
            colsum(vm.wait('kcr'), kcs_store)
            a(f'{lab}:')
            vm.add('st', 1, optional=True)
        if c == 5:
            Lp = a.label('np')
            Lq = a.label('npd')
            Lr = a.label('nokcf')
            a(f'''
            s_mov_b32 s93, {POLL_MAX}
            {Lp}:
            v_readfirstlane_b32 s98, {v(PF)}
            s_cmp_lg_u32 s98, 0
            s_cbranch_scc1 {Lq}
            s_sub_u32 s93, s93, 1
            s_cbranch_scc1 {Lq}
            buffer_load_dword {v(PF)}, off, s[4:7], 0 sc1
            s_waitcnt vmcnt(0)
            s_branch {Lp}
            {Lq}:
            s_xor_b32 s99, s98, {NONCE_X}
            s_lshl_b32 s44, s28, 9
            s_lshl_b32 s45, s27, 7
            s_add_u32 s44, s44, s45
            s_add_u32 s44, s44, {F_KC}
            s_cmp_eq_u32 s42, 0
            s_cbranch_scc1 {Lr}
            ''')
            flag_store(a, 's44', T + 2)
            a(f'{Lr}:')
            vm.add('fl', 1, optional=True)
        if P1PF and c in (6, 7):
            if c == 6:
                srd(a, 4, WDP, 2211840)
                a(f'''
                s_lshr_b32 s44, s2, 6
                s_mul_i32 s44, s44, {432 * 1280}
                s_bfe_u32 s45, s2, 0x30003
                s_mul_i32 s45, s45, {180 * 128}
                s_add_u32 s44, s44, s45
                s_mul_i32 s45, s26, {45 * 128}
                s_add_u32 s57, s44, s45
                v_lshlrev_b32 {v(PF + 1)}, 7, {v(vL)}
                ''')
            for z in range(2 if c == 6 else 1):
                a(f'''
                s_mov_b32 exec_hi, {(1 << 13) - 1}
                buffer_load_dword v165, {v(PF + 1)}, s[4:7], s57 offen
                s_mov_b32 exec_hi, -1
                s_add_u32 s57, s57, {144 * 1280}
                ''')
                vm.add('pf', 1)
        if c == 8:
            a(f'''
            v_lshlrev_b32 {v(T + 9)}, 4, {v(vL)}
            s_lshl_b32 s44, s28, 14
            s_lshl_b32 s45, s26, 12
            s_add_u32 s44, s44, s45
            s_add_u32 s44, s44, {CSW}
            ''')
            for e in range(4):
                a(f'''
                s_add_u32 m0, s45, {CS_A + 1024 * e}
                s_nop 0
                buffer_load_dwordx4 {v(T + 9)}, s[20:23], s44 offen{LD} lds
                s_add_u32 s44, s44, 1024
                ''')
            lab = a.label('norc')
            a(f'''
            s_cmp_lg_u32 s26, 0
            s_cbranch_scc1 {lab}
            s_lshl_b32 s44, s27, 11
            s_add_u32 s44, s44, {ROWW}
            s_mov_b32 m0, {ROWC_A}
            s_and_b32 s45, s28, 4
            buffer_load_dwordx4 {v(T + 9)}, s[20:23], s44 offen{LD} lds
            buffer_load_dwordx4 {v(T + 9)}, s[20:23], s44 offen offset:1024{LD} lds
            s_lshl_b32 s45, s45, 9
            s_add_u32 s45, s45, {CSKVW}
            s_mov_b32 m0, {CSKV_A}
            s_nop 0
            buffer_load_dwordx4 {v(T + 9)}, s[20:23], s45 offen{LD} lds
            buffer_load_dwordx4 {v(T + 9)}, s[20:23], s45 offen offset:1024{LD} lds
            {lab}:
            ''')
    L_p2 = a.label('auxp2')
    L_v = a.label('vepi')
    L_a0 = a.label('aux0f')
    lab = a.label('nokvfin')
    lab2 = a.label('nofix')
    a(f'''
    s_cmp_eq_u32 s54, 0
    s_cbranch_scc1 {lab}
    s_cmp_lg_u32 s26, 0
    s_cbranch_scc1 {lab2}
    s_lshl_b32 s44, s56, 9
    s_add_u32 s44, s44, {ROWC_A}
    v_lshl_add_u32 {v(t0)}, {v(vR)}, 4, s44
    v_lshlrev_b32 {v(t1)}, 2, {v(vR)}
    v_lshl_add_u32 {v(t1)}, {v(vH)}, 9, {v(t1)}
    v_add_u32 {v(t1)}, {CSKV_A}, {v(t1)}
    v_add_u32 {v(t2)}, 1024, {v(t1)}
    ds_read_b128 {v(FX, 4)}, {v(t0)}
    ds_read2_b32 {v(FX + 8, 2)}, {v(t1)} offset0:0 offset1:32
    ds_read2_b32 {v(FX + 10, 2)}, {v(t1)} offset0:64 offset1:96
    ds_read2_b32 {v(FX + 12, 2)}, {v(t2)} offset0:0 offset1:32
    ds_read2_b32 {v(FX + 14, 2)}, {v(t2)} offset0:64 offset1:96
    s_waitcnt lgkmcnt(4)
    v_mov_b32 {v(FX + 4)}, {v(FX)}
    v_mov_b32 {v(FX + 5)}, {v(FX)}
    v_mov_b32 {v(FX + 6)}, {v(FX)}
    v_mov_b32 {v(FX + 7)}, {v(FX)}
    s_waitcnt lgkmcnt(0)
    s_nop 1
    {mfma16(AKV, FX + 8, FX + 4, AKV)}
    {mfma16(AKV, FX + 12, FX + 4, AKV)}
    s_branch {L_a0}
    {lab2}:
    s_lshl_b32 s44, s26, 12
    v_add_u32 {v(t0)}, s44, {v(T + 9)}
    s_lshl_b32 s44, s26, 2
    s_add_u32 s44, s44, {PD_A}
    v_mov_b32 {v(t1)}, s44
    v_mov_b32 {v(t2)}, s98
    s_nop 11
    ''')
    for q in range(3):
        a(f'ds_write_b128 {v(t0)}, {v(AKV + 4 * q, 4)} offset:{PART_A + 1024 * q}')
    L_sp = a.label('pspin')
    L_spd = a.label('pspind')
    a(f'''
    s_waitcnt lgkmcnt(0)
    ds_write_b32 {v(t1)}, {v(t2)}
    {lab}:
    s_branch {L_p2}
    {L_a0}:
    v_mov_b32 {v(t1)}, {PD_A}
    s_mov_b32 s93, {POLL_MAX * 8}
    {L_sp}:
    ds_read_b128 {v(T + 4, 4)}, {v(t1)}
    s_waitcnt lgkmcnt(0)
    v_xor_b32 {v(T + 5)}, s98, {v(T + 5)}
    v_xor_b32 {v(T + 6)}, s98, {v(T + 6)}
    v_xor_b32 {v(T + 7)}, s98, {v(T + 7)}
    v_or3_b32 {v(T + 5)}, {v(T + 5)}, {v(T + 6)}, {v(T + 7)}
    s_nop 0
    v_readfirstlane_b32 s44, {v(T + 5)}
    s_cmp_eq_u32 s44, 0
    s_cbranch_scc1 {L_spd}
    s_sub_u32 s93, s93, 1
    s_cbranch_scc0 {L_sp}
    {L_spd}:
    ''')
    stamp(a, 12)
    for w in range(1, 4):
        for q in range(3):
            a(f'ds_read_b128 {v(RD + 12 * (w - 1) + 4 * q, 4)}, {v(T + 9)} offset:{PART_A + 4096 * w + 1024 * q}')
    a(f'''
    s_lshl_b32 s57, s27, 2
    s_add_u32 s57, s57, s56
    s_lshr_b32 s44, s57, 1
    s_mul_i32 s44, s44, 7168
    s_add_u32 s44, s44, {KV_OFF}
    s_and_b32 s45, s57, 1
    s_and_b32 s58, s28, 4
    s_lshl_b32 s58, s58, 4
    s_add_u32 s58, s58, s57
    s_lshl_b32 s58, s58, 7
    s_add_u32 s58, s58, {F_KV}
    s_waitcnt lgkmcnt(0)
    ''')
    for i in range(0, 12, 2):
        a(f'v_pk_add_f32 {v(AKV + i, 2)}, {v(AKV + i, 2)}, {v(RD + i, 2)}')
        a(f'v_pk_add_f32 {v(RD + 12 + i, 2)}, {v(RD + 12 + i, 2)}, {v(RD + 24 + i, 2)}')
    for i in range(0, 12, 2):
        a(f'v_pk_add_f32 {v(AKV + i, 2)}, {v(AKV + i, 2)}, {v(RD + 12 + i, 2)}')
    a(f'v_mov_b32 {v(FX)}, {v(FX + 1)}')
    for i in range(0, 12, 2):
        a(f'v_pk_mul_f32 {v(AKV + i, 2)}, {v(AKV + i, 2)}, {v(FX, 2)}')
    PK = RD
    for i in range(6):
        a(f'v_cvt_pk_bf16_f32 {v(PK + i)}, {v(AKV + 2 * i)}, {v(AKV + 2 * i + 1)}')
    L_kvf = a.label('kvflag')
    a(f'''
    s_bitcmp1_b32 s28, 2
    s_cbranch_scc1 {L_v}
    v_mov_b32 {v(t0)}, 0x3f803f80
    v_mov_b32 {v(t1)}, 0x00003f80
    v_cndmask_b32 {v(PK + 4)}, {v(PK + 4)}, {v(t0)}, {HM}
    v_cndmask_b32 {v(PK + 5)}, {v(PK + 5)}, {v(t1)}, {HM}
    s_lshl_b32 s46, s45, 10
    s_add_u32 s46, s46, s44
    s_lshl_b32 s47, s45, 9
    s_add_u32 s47, s47, s44
    buffer_store_dwordx4 {v(PK, 4)}, {v(T + 9)}, s[20:23], s46 offen sc1
    buffer_store_dwordx2 {v(PK + 4, 2)}, {v(T + 8)}, s[20:23], s47 offen offset:2048 sc1
    s_branch {L_kvf}
    {L_v}:
    v_mov_b32 {v(t0)}, 0
    v_cndmask_b32 {v(PK + 4)}, {v(PK + 4)}, {v(t0)}, {HM}
    v_cndmask_b32 {v(PK + 5)}, {v(PK + 5)}, {v(t0)}, {HM}
    v_mov_b32 {v(PK + 6)}, 0x00003f80
    v_mov_b32 {v(PK + 7)}, 0
    v_lshlrev_b32 {v(t0)}, 6, {v(vR)}
    v_lshl_add_u32 {v(t0)}, {v(vH)}, 3, {v(t0)}
    ds_write_b64 {v(t0)}, {v(PK, 2)} offset:{VT_A}
    ds_write_b64 {v(t0)}, {v(PK + 2, 2)} offset:{VT_A + 16}
    ds_write_b64 {v(t0)}, {v(PK + 4, 2)} offset:{VT_A + 32}
    ds_write_b64 {v(t0)}, {v(PK + 6, 2)} offset:{VT_A + 48}
    v_bfe_u32 {v(t1)}, {v(vL)}, 2, 2
    v_lshl_add_u32 {v(t1)}, {v(vH)}, 2, {v(t1)}
    v_lshlrev_b32 {v(t1)}, 6, {v(t1)}
    v_bfe_u32 {v(t2)}, {v(vL)}, 4, 1
    v_lshl_add_u32 {v(t1)}, {v(t2)}, 5, {v(t1)}
    v_and_b32 {v(t2)}, 3, {v(vL)}
    v_lshl_add_u32 {v(t1)}, {v(t2)}, 3, {v(t1)}
    s_waitcnt lgkmcnt(0)
    ds_read_b64_tr_b16 {v(PK + 8, 2)}, {v(t1)} offset:{VT_A}
    ds_read_b64_tr_b16 {v(PK + 10, 2)}, {v(t1)} offset:{VT_A + 512}
    ds_read_b64_tr_b16 {v(PK + 12, 2)}, {v(t1)} offset:{VT_A + 1024}
    ds_read_b64_tr_b16 {v(PK + 14, 2)}, {v(t1)} offset:{VT_A + 1536}
    s_lshl_b32 s46, s45, 11
    s_add_u32 s46, s46, s44
    s_add_u32 s46, s46, 3072
    s_waitcnt lgkmcnt(0)
    buffer_store_dwordx4 {v(PK + 8, 4)}, {v(T + 9)}, s[20:23], s46 offen sc1
    buffer_store_dwordx4 {v(PK + 12, 4)}, {v(T + 9)}, s[20:23], s46 offen offset:1024 sc1
    {L_kvf}:
    s_waitcnt vmcnt(0)
    ''')
    flag_store(a, 's58', T + 2)
    a(f'{L_p2}:')
    stamp(a, 13)

    a.c('=========== aux wave: phase 2 ===========')
    al = Alloc(4, 164)
    T = al('T', 8, 4)
    vWD = al('wd', 3)
    vWA = al('wa', 3)
    vHL = al('hl')
    vKO = al('ko')
    vPF = al('pf')
    ACC = al('acc', 80, 4)
    SL = al('slots', 60, 4)
    wreg = lambda k: SL + 20 * (k % 3)
    hreg = lambda k: SL + 20 * (k % 3) + 12
    a(f's_setprio {PRIO2}')
    g2_ids(a)
    srd(a, 12, WDP, 2211840)
    srd(a, 16, 84, 819200)
    a(f"""
    s_mul_i32 s44, s26, 27
    s_mul_i32 s41, s59, 108
    s_add_u32 s41, s41, s44
    s_lshl_b32 s41, s41, 10
    s_mul_i32 s42, s60, 108
    s_add_u32 s42, s42, s44
    s_lshl_b32 s42, s42, 10
    s_lshr_b32 s43, s44, 1
    s_mul_i32 s43, s43, 40960
    s_and_b32 s45, s44, 1
    s_mul_i32 s52, s45, 10240
    s_add_u32 s43, s43, s52
    s_mul_i32 s52, s45, 20480
    s_add_u32 s52, s52, 10240
    s_mov_b32 s48, 40960
    s_lshl_b32 s44, s26, 3
    s_mul_i32 s56, s44, 25600
    s_mul_i32 s54, s59, 40
    s_add_u32 s54, s54, s44
    s_lshl_b32 s54, s54, 10
    s_add_u32 s54, s54, {OF_OFF}
    s_mul_i32 s55, s60, 40
    s_add_u32 s55, s55, s44
    s_lshl_b32 s55, s55, 10
    s_add_u32 s55, s55, {OF_OFF}
    s_and_b32 s44, s26, 1
    s_mul_i32 s39, s44, 21504
    s_lshr_b32 s44, s26, 1
    s_mul_i32 s44, s44, {WO_HI}
    s_add_u32 s39, s39, s44
    s_mov_b32 s40, s39
    s_mov_b32 s45, 0x15556
    v_lshlrev_b32 {v(vHL)}, 4, {v(vL)}
    v_lshlrev_b32 {v(vPF)}, 7, {v(vL)}
    s_lshl_b32 s36, s26, 12
    s_min_u32 s36, s36, 11264
    v_add_u32 {v(vKO)}, s36, {v(vHL)}
    """)
    for p in range(3):
        a(f"""
        v_add_u32 {v(T)}, {64 * p}, {v(vL)}
        v_mul_lo_u32 {v(T + 1)}, {v(T)}, s45
        v_lshrrev_b32 {v(T + 1)}, 20, {v(T + 1)}
        v_mul_u32_u24 {v(T + 2)}, 12, {v(T + 1)}
        v_sub_u32 {v(T + 2)}, {v(T)}, {v(T + 2)}
        v_and_b32 {v(T)}, 8, {v(T + 1)}
        v_add_u32 {v(T + 1)}, {v(T + 1)}, {v(T)}
        v_mul_u32_u24 {v(T + 1)}, 1280, {v(T + 1)}
        v_lshl_add_u32 {v(T + 1)}, {v(T + 2)}, 4, {v(T + 1)}
        v_add_u32 {v(vWD + p)}, s61, {v(T + 1)}
        """)
    a(f"""
    v_bfe_u32 {v(T)}, {v(vL)}, 2, 2
    v_lshl_add_u32 {v(T)}, {v(vH)}, 2, {v(T)}
    v_mul_u32_u24 {v(T)}, 192, {v(T)}
    v_bfe_u32 {v(T + 1)}, {v(vL)}, 4, 1
    v_lshl_add_u32 {v(T)}, {v(T + 1)}, 5, {v(T)}
    v_and_b32 {v(T + 1)}, 3, {v(vL)}
    v_lshl_add_u32 {v(T)}, {v(T + 1)}, 3, {v(T)}
    v_add_u32 {v(T)}, s39, {v(T)}
    s_lshl_b32 s44, s58, 6
    s_add_u32 s45, s44, 64
    s_lshl_b32 s46, s58, 7
    s_sub_u32 s46, 128, s46
    v_add_u32 {v(vWA)}, s44, {v(T)}
    v_add_u32 {v(vWA + 1)}, s45, {v(T)}
    v_add_u32 {v(vWA + 2)}, s46, {v(T)}
    """)
    vm = VM()

    def w_dma(base, off):
        out = []
        for p in range(3):
            out.append([f's_add_u32 m0, {base}, {off + p * 1024}', 's_nop 0',
                        f'buffer_load_dwordx4 {v(vWD + p)}, s[12:15], s43 offen lds'])
        out[2] += ['s_add_u32 s43, s43, s52', 's_sub_u32 s52, s48, s52']
        return out

    def h_ld(k, e):
        hs = ('s41', 's42')[e]
        return [f'buffer_load_dwordx4 {v(hreg(k) + 4 * e, 4)}, {v(vHL)}, s[20:23], {hs} offen', f's_add_u32 {hs}, {hs}, 1024']

    def w_rd(k, off):
        return [f'ds_read_b64_tr_b16 {v(wreg(k) + 4 * b + 2 * t, 2)}, {v(vWA + b)} offset:{off + 1536 * t}'
                for b in range(3) for t in range(2)]

    def g_mfmas(k):
        return [mfma16(ACC + 16 * n, wreg(k) + 4 * b, hreg(k) + 4 * e, ACC + 16 * n)
                for n, (b, e) in enumerate(((0, 0), (0, 1), (1, 0), (1, 1), (2, 0)))]

    def kv_dma(c):
        st = c % NST
        lab = a.label('kv3')
        a(f's_cmp_ge_u32 s26, 2\ns_cbranch_scc1 {lab}')
        for e in (3, 0, 1, 2):
            a(f"""
            s_add_u32 m0, s36, {KVR + st * CH_BYTES + e * 1024}
            s_mov_b32 s38, {KV_OFF + c * CH_BYTES + e * 1024}
            buffer_load_dwordx4 {v(vKO)}, s[20:23], s38 offen lds
            """)
            if e == 3:
                a(f'{lab}:')
        vm.add(f'kv{c}', 1, optional=True)
        vm.add(f'kv{c}', 3)

    for i in range(80):
        a(f'v_mov_b32 {v(ACC + i)}, 0')
    srd(a, 4, WDP, 2211840)
    a(f'''
    s_lshr_b32 s44, s2, 6
    s_mul_i32 s44, s44, {432 * 1280}
    s_bfe_u32 s45, s2, 0x30003
    s_lshl_b32 s45, s45, 2
    s_add_u32 s45, s45, s26
    s_mul_i32 s45, s45, {15 * 128}
    s_add_u32 s32, s44, s45
    s_mov_b32 s31, {48 * 1280}
    ''')

    a(f'''
    s_lshr_b32 s45, s30, 2
    s_lshl_b32 s46, s29, 1
    s_add_u32 s45, s45, s46
    s_mul_i32 s45, s45, 108
    s_and_b32 s46, s30, 3
    s_mul_i32 s46, s46, 27
    s_add_u32 s45, s45, s46
    s_lshl_b32 s45, s45, 10
    s_mul_i32 s46, s26, {6 * 128}
    s_add_u32 s45, s45, s46
    s_add_u32 s49, s45, 3072
    ''')

    def paced_h():
        if not PCH:
            return
        a(f'''
        s_mov_b64 exec, 0x3f
        buffer_load_dword v165, {v(vPF)}, s[20:23], s49 offen
        s_mov_b64 exec, -1
        s_add_u32 s49, s49, 3072
        ''')

    def paced():
        if not PCW:
            return
        a(f'''
        s_mov_b64 exec, 0x7fff
        buffer_load_dword v165, {v(vPF)}, s[4:7], s32 offen
        s_mov_b64 exec, -1
        s_add_u32 s32, s32, s31
        ''')
        vm.add('pf', 1)

    def cd_wait():
        L1, L2 = a.label('cdw'), a.label('cdd')
        a(f'''
        v_and_b32 {v(T + 4)}, 7, {v(vL)}
        v_lshlrev_b32 {v(T + 4)}, 2, {v(T + 4)}
        v_add_u32 {v(T + 4)}, {CD_A}, {v(T + 4)}
        s_mov_b32 s93, {POLL_MAX * 8}
        {L1}:
        ds_read_b32 {v(T + 5)}, {v(T + 4)}
        s_waitcnt lgkmcnt(0)
        v_cmp_eq_u32 vcc, s98, {v(T + 5)}
        s_nop 1
        s_cmp_eq_u64 vcc, -1
        s_cbranch_scc1 {L2}
        s_sub_u32 s93, s93, 1
        s_cbranch_scc0 {L1}
        {L2}:
        ''')

    a(f's_lshl_b32 s53, s29, 13\ns_add_u32 s53, s53, {F_QH}')

    def kv_poll(first):
        a(f's_mov_b32 s45, {F_KV}\ns_mov_b32 s44, {F_KV + 8192}')
        if first:
            m = ~((1 << (4 * KVF)) - 1) & 0xffffffffffffffff
            a(f's_mov_b32 s50, {m & 0xffffffff}\ns_mov_b32 s51, {m >> 32}\ns_sleep {KVSL}\ns_andn2_b64 exec, exec, s[50:51]')
            polln(a, T + 4, vPF, [('s45', 's[50:51]'), ('s44', 's[50:51]')], 2)
            a('s_mov_b64 exec, -1')
            cd_wait()
        else:
            polln(a, T + 4, vPF, [('s45', None), ('s44', None)], 4)
    one_poller(a, T, 0, lambda: kv_poll(True), who=2)
    stamp(a, 15)
    kv_dma(0)
    kv_dma(1)
    kv_dma(2)

    def prefetch(kind, b=0):
        n = {'wd': 60, 'wo': 64, 'h': 54}[kind]
        lab = a.label('nopf')
        if kind != 'h':
            a(f's_cmp_eq_u32 s26, 3\ns_cbranch_scc1 {lab}')
        if kind == 'wd':
            a(f"""
            s_lshr_b32 s44, s2, 6
            s_mul_i32 s44, s44, {432 * 1280}
            s_bfe_u32 s45, s2, 0x30003
            s_mul_i32 s45, s45, {180 * 128}
            s_add_u32 s44, s44, s45
            s_mul_i32 s45, s26, {60 * 128}
            s_add_u32 s44, s44, s45
            s_add_u32 s44, s44, {144 * 1280 * b}
            """)
            r = 's[12:15]'
        elif kind == 'wo':
            a(f"""
            s_lshr_b32 s44, s2, 3
            s_mul_i32 s44, s44, {200 * 128}
            s_mul_i32 s45, s26, {68 * 128}
            s_add_u32 s44, s44, s45
            """)
            r = 's[16:19]'
        else:
            a(f"""
            s_mul_i32 s44, s29, {216 * 1024}
            s_lshl_b32 s45, s30, 2
            s_add_u32 s45, s45, s26
            s_mul_i32 s45, s45, {54 * 128}
            s_add_u32 s44, s44, s45
            """)
            r = 's[20:23]'
        m = (1 << n) - 1
        a(f"""
        s_mov_b32 exec_hi, {m >> 32}
        buffer_load_dword v165, {v(vPF)}, {r}, s44 offen
        s_mov_b32 exec_hi, -1
        {lab}:
        """)
        vm.add('pf', 1, optional=True)
    a(f's_waitcnt vmcnt({vm.wait("kv0")})')
    a('s_barrier')
    stamp(a, 16)
    lab = a.label('nokv2')
    a(f's_cmp_lg_u32 s26, 2\ns_cbranch_scc1 {lab}')
    kv_poll(False)
    a(f'{lab}:')

    def body(last, nw=12):
        for z in range(3):
            a(f's_waitcnt vmcnt({(nw if not last else (12, 10, 8)[z]) - 2 + PCW + PCH}) lgkmcnt(0)')
            ms = g_mfmas(z)
            if z == 2:
                for b in range(3):
                    a(f'v_add_u32 {v(vWA + b)}, s33, {v(vWA + b)}')
                rd = w_rd(0, 0)
            else:
                rd = w_rd(z + 1, 3072 * (z + 1))
            wd_ = w_dma('s40', 3072 * z)
            a(ms[0]); emit(a, rd[0:2]); emit(a, [wd_[0]]); a(SPACE)
            a(ms[1]); emit(a, rd[2:4]); emit(a, [wd_[1]]); a(SPACE)
            a(ms[3]); emit(a, rd[4:6]); emit(a, [wd_[2]]); a(SPACE)
            a(ms[2])
            if not last:
                emit(a, h_ld(z, 1))
            a(SPACE)
            a(ms[4])
            if not last:
                emit(a, h_ld(z, 0))
        a('s_add_u32 s40, s40, s33\ns_sub_u32 s33, 0, s33')

    NSTAT = int(ENV.get('NSTAT', '4'))
    for c in range(NSTAT):
        a.c(f'aux B{c}')
        a(f's_waitcnt vmcnt({vm.wait(f"kv{c + 1}")})')
        bstamp(a, c == 0)
        a('s_barrier')
        bstamp(a)
        if c == 2:
            lab = a.label('noxc')
            a(f'''
            s_cmp_lg_u32 s26, 3
            s_cbranch_scc1 {lab}
            s_getreg_b32 s45, hwreg(HW_REG_XCC_ID, 0, 4)
            s_lshl_b32 s46, s29, 7
            s_add_u32 s46, s46, {F_X}
            v_and_b32 {v(T)}, 7, {v(vL)}
            v_lshlrev_b32 {v(T)}, 3, {v(T)}
            buffer_load_dwordx2 {v(T + 4, 2)}, {v(T)}, s[20:23], s46 offen sc1
            s_mov_b32 s44, s98
            s_waitcnt vmcnt(0)
            v_cmp_eq_u64 vcc, s[44:45], {v(T + 4, 2)}
            v_mov_b32 {v(T)}, {SX_A}
            s_nop 0
            s_cmp_eq_u64 vcc, -1
            s_cselect_b32 s44, s98, 0
            v_mov_b32 {v(T + 1)}, s44
            ds_write_b32 {v(T)}, {v(T + 1)}
            s_waitcnt lgkmcnt(0)
            {lab}:
            ''')
        kv_dma(c + 3)
        if WDC <= c < WDC + 2:
            for k in range(3 * (c - WDC), 3 * (c - WDC) + 3):
                emit(a, w_dma('s39', 3072 * k))
            vm.add('w', 9)
        paced()
    L_top, L_nb, L_sw, L_end2 = a.label('dtop'), a.label('dnb'), a.label('dsw'), a.label('dend')
    L_act, L_bar, L_nokv = a.label('dact'), a.label('dbar'), a.label('dnokv')
    L_s0, L_body, L_last, L_wo, L_next = a.label('ds0'), a.label('dbody'), a.label('dlast'), a.label('dwo'), a.label('dnext')
    L_w0 = a.label('dw0')
    L_w2 = a.label('dw2')
    L_b12 = a.label('db12')
    L_bd = a.label('dbd')
    L_np = a.label('dnp')
    L_p3 = a.label('dp3')
    L_k3 = a.label('dk3')
    L_w1 = a.label('dw1')
    L_n1 = a.label('dn1')
    L_oth, L_start, L_rei, L_nsw = a.label('doth'), a.label('dstart'), a.label('drei'), a.label('dnsw')
    a(f"""
    s_mov_b32 s34, {16 - NSTAT}
    s_mov_b32 s35, 0
    s_mov_b32 s37, {((NSTAT + 3) % NST) * CH_BYTES}
    s_mov_b32 s38, {KV_OFF + (NSTAT + 3) * CH_BYTES}
    s_mov_b32 s33, 9216
    s_mov_b32 s93, {POLL_MAX}
    v_mov_b32 {v(T + 3)}, {RDY_A + 4}
    {L_top}:
    s_sub_u32 s44, s35, 2
    s_cmp_lt_u32 s44, 8
    s_cbranch_scc1 {L_act}
    s_cmp_eq_u32 s35, 11
    s_cbranch_scc1 {L_w2}
    s_cmp_gt_u32 s35, 1
    s_cbranch_scc1 {L_w0}
    s_cmp_le_u32 s34, 3
    s_cbranch_scc1 {L_w0}
    s_cmp_eq_u32 s35, 1
    s_cbranch_scc1 {L_w1}
    s_waitcnt vmcnt(3)
    s_branch {L_bar}
    {L_w1}:
    s_waitcnt vmcnt({6 + HPF * PCH})
    s_branch {L_bar}
    {L_w2}:
    s_waitcnt vmcnt(12)
    s_mov_b32 s35, 12
    s_branch {L_bar}
    {L_w0}:
    s_waitcnt vmcnt(0)
    s_branch {L_bar}
    {L_act}:
    s_waitcnt vmcnt({15 + PCW + PCH})
    {L_bar}:
    s_cmp_eq_u32 s34, 0
    s_cbranch_scc1 {L_nb}
    """)
    bstamp(a)
    a('s_barrier')
    bstamp(a)
    a(f"""
    s_cmp_lg_u32 s35, 0
    s_cbranch_scc1 {L_np}
    s_cmp_lg_u32 s26, 3
    s_cbranch_scc1 {L_np}
    buffer_load_dwordx2 {v(T + 4, 2)}, {v(vPF)}, s[20:23], s53 offen sc1
    {L_np}:
    s_cmp_le_u32 s34, 3
    s_cbranch_scc1 {L_nokv}
    s_add_u32 s44, s36, s37
    s_cmp_ge_u32 s26, 2
    s_cbranch_scc1 {L_k3}
    """)
    for e in (3, 0, 1, 2):
        a(f"""
        s_add_u32 m0, s44, {KVR + e * 1024}
        s_add_u32 s45, s38, {e * 1024}
        buffer_load_dwordx4 {v(vKO)}, s[20:23], s45 offen lds
        """)
        if e == 3:
            a(f'{L_k3}:')
    a(f"""
    s_add_u32 s38, s38, {CH_BYTES}
    s_add_u32 s37, s37, {CH_BYTES}
    s_cmp_eq_u32 s37, {CH_BYTES * NST}
    s_cselect_b32 s37, 0, s37
    {L_nokv}:
    s_sub_u32 s34, s34, 1
    s_branch {L_sw}
    {L_nb}:
    s_cmp_ge_u32 s35, 11
    s_cbranch_scc1 {L_end2}
    {L_sw}:
    s_cmp_eq_u32 s35, 0
    s_cbranch_scc1 {L_s0}
    s_cmp_lt_u32 s35, 9
    s_cbranch_scc1 {L_body}
    s_cmp_eq_u32 s35, 9
    s_cbranch_scc1 {L_last}
    s_cmp_eq_u32 s35, 10
    s_cbranch_scc1 {L_wo}
    s_branch {L_top}
    {L_s0}:
    s_sub_u32 s93, s93, 1
    s_cbranch_scc1 {L_start}
    s_cmp_lg_u32 s26, 3
    s_cbranch_scc1 {L_oth}
    s_cmp_ge_u32 s34, 3
    s_cbranch_scc1 {L_p3}
    buffer_load_dwordx2 {v(T + 4, 2)}, {v(vPF)}, s[20:23], s53 offen sc1
    s_waitcnt vmcnt(0)
    {L_p3}:
    s_waitcnt vmcnt(3)
    v_cmp_eq_u64 vcc, s[98:99], {v(T + 4, 2)}
    s_lshl_b32 s45, s34, 1
    s_nop 0
    s_cmp_eq_u64 vcc, -1
    s_cselect_b32 s44, s98, s45
    v_mov_b32 {v(T + 2)}, s44
    ds_write_b32 {v(T + 3)}, {v(T + 2)}
    s_cbranch_scc1 {L_start}
    s_branch {L_top}
    {L_oth}:
    s_mov_b32 s45, 40
    {L_rei}:
    s_sleep 1
    ds_read_b32 {v(T + 2)}, {v(T + 3)}
    s_waitcnt lgkmcnt(0)
    v_readfirstlane_b32 s44, {v(T + 2)}
    s_cmp_eq_u32 s44, s98
    s_cbranch_scc1 {L_start}
    s_lshl_b32 s46, s34, 1
    s_cmp_eq_u32 s44, s46
    s_cbranch_scc1 {L_top}
    s_sub_u32 s45, s45, 1
    s_cbranch_scc0 {L_rei}
    s_branch {L_top}
    {L_start}:
    """)
    stamp(a, 23)
    for k in range(3):
        for e in range(2):
            emit(a, h_ld(k, e))
    for _ in range(HPF):
        paced_h()
    emit(a, w_rd(0, 0))
    a(f"""
    {L_next}:
    s_add_u32 s35, s35, 1
    s_branch {L_top}
    {L_body}:
    s_cmp_lg_u32 s35, 1
    s_cbranch_scc1 {L_n1}
    s_waitcnt vmcnt(0)
    {L_n1}:
    s_cmp_lg_u32 s35, 8
    s_cbranch_scc1 {L_nsw}
    s_mov_b32 s12, s16
    s_mov_b32 s13, s17
    s_mov_b32 s14, 819200
    s_mov_b32 s43, s56
    s_mov_b32 s52, 25600
    s_mov_b32 s48, 51200
    s_mov_b32 s45, 0x15556
    """)
    for p in range(3):
        a(f"""
        v_add_u32 {v(T)}, {64 * p}, {v(vL)}
        v_mul_lo_u32 {v(T + 1)}, {v(T)}, s45
        v_lshrrev_b32 {v(T + 1)}, 23, {v(T + 1)}
        v_mul_u32_u24 {v(T + 1)}, {8 * 1280}, {v(T + 1)}
        v_sub_u32 {v(vWD + p)}, {v(vWD + p)}, {v(T + 1)}
        """)
    a(f"""
    {L_nsw}:
    s_cmp_lt_u32 s34, 3
    s_cbranch_scc1 {L_b12}
    """)
    body(False, 15)
    a(f's_branch {L_bd}\n{L_b12}:')
    body(False, 12)
    a(f'{L_bd}:')
    lab = a.label('npsw')
    a(f'''
    s_cmp_lg_u32 s35, {10 - NSTAT}
    s_cbranch_scc1 {lab}
    s_mov_b32 s4, s16
    s_mov_b32 s5, s17
    s_mov_b32 s6, 819200
    s_lshr_b32 s44, s2, 3
    s_lshl_b32 s44, s44, 2
    s_add_u32 s44, s44, s26
    s_mul_i32 s32, s44, {50 * 128}
    s_mov_b32 s31, {13 * 128}
    {lab}:
    ''')
    paced_h()
    paced()
    a(f's_branch {L_next}\n{L_last}:')
    body(True)
    a(f's_branch {L_next}\n{L_wo}:')
    stamp(a, 17)
    emit(a, w_rd(1, 3072) + w_rd(2, 6144))
    a('s_mov_b32 s45, 0x15556\ns_waitcnt lgkmcnt(0)')
    emit(a, w_dma('s39', 3072 * 3))
    emit(a, w_dma('s39', 3072 * 4))
    for p in range(3):
        a(f"""
        v_add_u32 {v(T)}, {64 * p}, {v(vL)}
        v_mul_lo_u32 {v(T + 1)}, {v(T)}, s45
        v_bfe_u32 {v(T)}, {v(T + 1)}, 22, 1
        v_lshrrev_b32 {v(T + 1)}, 23, {v(T + 1)}
        v_mul_u32_u24 {v(T)}, {36 * 1280}, {v(T)}
        v_mul_u32_u24 {v(T + 1)}, {12 * 1280}, {v(T + 1)}
        v_add3_u32 {v(vWD + p)}, {v(vWD + p)}, {v(T + 1)}, {v(T)}
        """)
    a(f's_add_u32 s43, s56, {16 * 1280}\ns_mov_b32 s52, {80 * 1280}\ns_mov_b32 s48, {160 * 1280}')
    emit(a, w_dma('s39', 3072 * 5))
    emit(a, w_dma('s39', 3072 * 6))
    a(f's_cmp_lg_u32 s34, 0\ns_cbranch_scc1 {L_next}\n{L_end2}:')
    a(f"""
    v_subrev_u32 {v(vWA)}, 9216, {v(vWA)}
    v_subrev_u32 {v(vWA + 1)}, 9216, {v(vWA + 1)}
    v_subrev_u32 {v(vWA + 2)}, 9216, {v(vWA + 2)}
    s_mul_i32 s44, s26, 14336
    s_add_u32 s44, s44, {OL_A}
    v_add_u32 {v(vKO)}, s44, {v(vHL)}
    v_and_b32 {v(T)}, 7, {v(vR)}
    v_xor_b32 {v(T)}, {v(T)}, {v(vH)}
    v_lshlrev_b32 {v(T + 1)}, 7, {v(vR)}
    v_add_u32 {v(T + 1)}, s39, {v(T + 1)}
    """)
    for jp in range(4):
        a(f"""
        v_xor_b32 {v(T + 2)}, {2 * jp}, {v(T)}
        v_lshl_add_u32 {v(T + 4 + jp)}, {v(T + 2)}, 4, {v(T + 1)}
        """)
    stamp(a, 18)
    a('s_barrier')
    Lp, Lq = a.label('op'), a.label('opd')
    a(f's_mov_b32 s93, {OPOLL_MAX}\n{Lp}:')
    for k in range(27, 30):
        for e in range(2):
            a(f'buffer_load_dwordx4 {v(hreg(k) + 4 * e, 4)}, {v(vHL)}, s[20:23], s{54 + e} offen offset:{1024 * (k - 27)} sc1')
    a('s_waitcnt vmcnt(0)')
    regs = [hreg(k) + i for k in range(27, 30) for i in range(8)]
    a(f'v_max3_u32 {v(T)}, {v(regs[0])}, {v(regs[1])}, {v(regs[2])}')
    for i in range(3, 23, 2):
        a(f'v_max3_u32 {v(T)}, {v(T)}, {v(regs[i])}, {v(regs[i + 1])}')
    a(f"""
    v_max_u32 {v(T)}, {v(T)}, {v(regs[23])}
    v_cmp_eq_u32 vcc, -1, {v(T)}
    s_nop 1
    s_cmp_eq_u64 vcc, 0
    s_cbranch_scc1 {Lq}
    s_sub_u32 s93, s93, 1
    s_cbranch_scc1 {Lq}
    s_sleep {OSLEEP}
    s_branch {Lp}
    {Lq}:
    """)
    stamp(a, 19)

    def o_rd(k):
        return [f'ds_read_b128 {v(hreg(k) + 4 * e, 4)}, {v(vKO)} offset:{(k - 30) * 2048 + 1024 * e}' for e in range(2)]

    for k in range(27, 30):
        emit(a, g_mfmas(k))
        emit(a, w_rd(k + 3, 3072 * (k - 27)))
    if FFL:
        L1, L2 = a.label('fw'), a.label('fd')
        a(f'''
        s_lshl_b32 s44, s26, 3
        s_add_u32 s44, s44, {OW_A}
        v_mov_b32 {v(T)}, s44
        s_mov_b32 s93, {POLL_MAX * 8}
        {L1}:
        ds_read_b64 {v(T + 2, 2)}, {v(T)}
        s_waitcnt lgkmcnt(0)
        v_readfirstlane_b32 s44, {v(T + 2)}
        v_readfirstlane_b32 s45, {v(T + 3)}
        s_xor_b32 s44, s44, s98
        s_xor_b32 s45, s45, s98
        s_or_b32 s44, s44, s45
        s_cbranch_scc0 {L2}
        s_sub_u32 s93, s93, 1
        s_cbranch_scc0 {L1}
        {L2}:
        ''')
    else:
        a('s_waitcnt lgkmcnt(0)')
        a('s_barrier')
    stamp(a, 30)
    for k in range(30, 33):
        emit(a, o_rd(k))
    XO = vWD
    assert XO % 2 == 0 and XO + 8 <= ACC
    for k in range(30, 34):
        a(f's_waitcnt lgkmcnt({ {30: 4, 31: 10, 32: 8, 33: 8}[k] })')
        emit(a, g_mfmas(k))
        emit(a, w_rd(k + 3, 3072 * (k + 3 - 30)) + o_rd(k + 3))
    g2_out(a, XO, vL, 's24', 0)
    a('s_waitcnt lgkmcnt(0)')
    wr = lambda n: [f'ds_write_b128 {v(T + 4 + jp)}, {v(ACC + 16 * n + 4 * jp, 4)} offset:{4096 * n}' for jp in range(4)]
    ms = [g_mfmas(k) for k in range(34, 37)]
    for n in range(5):
        for z in range(3):
            a(ms[z][n])
        if n >= 2:
            a('s_nop 5')
            emit(a, wr(n - 2))
    stamp(a, 20)
    a('s_nop 3')
    emit(a, wr(3))
    a('s_nop 3')
    emit(a, wr(4))
    a('s_waitcnt vmcnt(0) lgkmcnt(0)')
    a('s_barrier')
    stamp(a, 21)
    for i in range(8):
        a(f'v_mov_b32 {v(ACC + i)}, {v(XO + i)}')
    g2_out(a, ACC, vL, 's24', 1)


def build(path):
    hdr = open('parallel_sum__grouped_kv_mqa__geglu_ffn__prompt.s.ref').read().split('; Override launch')[0]
    out = hdr + f'; @launch grid=(256,1,1) block=(768,1,1) lds={LDS_TOTAL}\n'
    out += '.amdgcn_target "amdgcn-amd-amdhsa--gfx950"\n'
    out += gen()
    out += kernel_desc(KNAME, 168)
    open(path, 'w').write(out)


if __name__ == '__main__':
    import sys
    if len(sys.argv) > 2 and sys.argv[2] == 'stamp':
        asmlib.STAMPS = True
    build(sys.argv[1])
```

```python
from asmlib import *
import asmlib
import math
import os

KNAME = 'parallel_sum__grouped_kv_mqa__geglu_ffn__prompt_kernel'

H_OFF = 0
QF_OFF = 0x700000
KV_OFF = 0xA00000
OF_OFF = 0xB00000
FL_OFF = 0xE00000
F_ST = 0x1200000
F_CS = 0x1220000
F_KV = 0x1240000
F_KC = 0x1248000
F_W2 = 0x1250000
F_X = 0x1258000
F_QH = 0xE80000
ROWW = 0xE10000
CSW = 0xE20000
CSKVW = 0xE60000
W2F = 0xF00000
WS_USED = 0x1260000

LDS_X = 0
LDS_W = 49152
LDS_KV = 147456
CS_A = 16384
PART_A = 32768
VT_A = 32768
ROWC_A = 156672
CSKV_A = 158720
NONCE_A = 160768
RDY_A = 160800
SX_A = 160928
OW_A = 160896
CD_A = 160832
PD_A = 160864
LDS_TOTAL = 163840
CH_BYTES = 14336
NST = 4
KVR = 49152
Q_A = KVR + 3 * CH_BYTES
G2R = KVR + CH_BYTES * NST
G2D = 3
TW_A = G2R
OL_A = KVR
WO_HI = 106496
WOA = 0
RED_A = 0

C0 = -2.0 * math.sqrt(2.0 / math.pi) * math.log2(math.e)
C1 = C0 * 0.044715
QSC = math.log2(math.e) / math.sqrt(20.0)
M_OFFSET = 90.0
POLL_MAX = 400000
NONCE_X = 0x5a5a5a5a

HM = 's[62:63]'
PFWAIT = False
ENV = os.environ
NODOWN = ENV.get('NODOWN')
PRIO2 = int(ENV.get('PRIO2', '3'))
PRIO1 = int(ENV.get('PRIO1', '3'))
SPACE = ENV.get('SPACE', '')
NOPF = not ENV.get('PF')
INV = int(ENV.get('INV', '0'))
NOG2 = ENV.get('NOG2')
ROT = int(ENV.get('ROT', '0'))
FFL = int(ENV.get('FFL', '0'))
PCW = int(ENV.get('PCW', '1'))
PCH = int(ENV.get('PCH', '1'))
HST = int(ENV.get('HST', '-1'))
ODBL = int(ENV.get('ODBL', '1'))
JX = int(ENV.get('JX', '0'))
QSLEEP = int(ENV.get('QSLEEP', '4'))
KVF = int(ENV.get('KVF', '3'))
OUTSC = {'': '', '1': ' sc1', '2': ' nt', '3': ' sc0 sc1', '4': ' sc1 nt'}[ENV.get('OUTSC', '')]
HPF = int(ENV.get('HPF', '2'))
PERM = int(ENV.get('PERM', '1'))
P1PF = int(ENV.get('P1PF', '0'))
PFC = tuple(int(x) for x in ENV.get('PFC', '2,3,4').split(','))
WDC = int(ENV.get('WDC', '2'))
WOC = int(ENV.get('WOC', '4'))
TWC = int(ENV.get('TWC', '1'))
DPOLL2 = 0
OSLEEP = int(ENV.get('OSLEEP', '3'))
LATE1 = int(ENV.get('LATE1', '1'))
OPOLL_MAX = 200000
LINPF = int(ENV.get('LINPF', '0'))
NOSL = ENV.get('NOSL')
PF0 = int(ENV.get('PF0', '0'))
JIT = int(ENV.get('JIT', '0'))
JITD = int(ENV.get('JITD', '4'))
SLC = int(ENV.get('SLC', '-1'))
SLG = int(ENV.get('SLG', '2'))
SPN = int(ENV.get('SPN', '2'))
PZ0 = int(ENV.get('PZ0', '0'))
P3C = int(ENV.get('P3C', '7'))
EARLY2 = int(ENV.get('EARLY2', '0'))
CWARM = int(ENV.get('CWARM', '1'))
KVSL = int(ENV.get('KVSL', '16'))
HEARLY = ENV.get('HEARLY')
PSLEEP = int(ENV.get('PSLEEP', '2'))
NOPF2 = not ENV.get('PF2')
CV = int(ENV.get('CV', '0'))
NODMA = ENV.get('NODMA')
IST = ENV.get('IST')
LD = ' sc1' if ENV.get('SC1LD') else ''
FEWST = ENV.get('FEWST')
IST_LIST = tuple(int(x) for x in os.environ.get('ISTL', '1,2,6,7').split(','))
HFLAG_T = int(os.environ.get('HFT', '6'))
G2_START = int(os.environ.get('G2S', '6'))
G2_END = int(os.environ.get('G2E', '15'))


class VM:
    def __init__(self):
        self.ops = []

    def add(self, tag, n=1, optional=False):
        for _ in range(n):
            self.ops.append((tag, optional))

    def wait(self, tag):
        idx = max(i for i, (t, o) in enumerate(self.ops) if t == tag)
        n = sum(1 for t, o in self.ops[idx + 1:] if not o)
        assert n <= 63, n
        return n

    def drain(self):
        self.ops = []


def emit(a, bundles):
    for b in bundles:
        a(b if isinstance(b, str) else '\n'.join(b))


def flag_store(a, soff_reg, vt):
    a(f'''
    v_mov_b32 {v(vt)}, s98
    v_mov_b32 {v(vt + 1)}, s99
    s_mov_b64 exec, 1
    buffer_store_dwordx2 {v(vt, 2)}, off, s[20:23], {soff_reg} sc1
    s_mov_b64 exec, -1
    ''')


def poll(a, vt, voff, soff_reg, wide=False, ignore=None, inv=True, sleep=None):
    L = a.label('poll')
    Ld = a.label('polld')
    a(f's_mov_b32 s93, {POLL_MAX}')
    a(f'{L}:')
    if wide:
        a(f'''
        buffer_load_dwordx4 {v(vt, 4)}, {v(voff)}, s[20:23], {soff_reg} offen sc1
        s_waitcnt vmcnt(0)
        v_cmp_eq_u64 vcc, s[98:99], {v(vt, 2)}
        v_cmp_eq_u64 s[46:47], s[98:99], {v(vt + 2, 2)}
        s_nop 1
        s_and_b64 vcc, vcc, s[46:47]
        ''')
    else:
        a(f'''
        buffer_load_dwordx2 {v(vt, 2)}, {v(voff)}, s[20:23], {soff_reg} offen sc1
        s_waitcnt vmcnt(0)
        v_cmp_eq_u64 vcc, s[98:99], {v(vt, 2)}
        s_nop 1
        ''')
    if ignore:
        a(f's_or_b64 vcc, vcc, {ignore}')
    a(f'''
    s_cmp_eq_u64 vcc, -1
    s_cbranch_scc1 {Ld}
    s_sub_u32 s93, s93, 1
    s_cbranch_scc1 {Ld}
    s_sleep {sleep or PSLEEP}
    s_branch {L}
    {Ld}:
    ''')
    if inv and INV:
        a('buffer_inv sc1\ns_waitcnt vmcnt(0)')


def polln(a, vt, voff, rows, sleep):
    L = a.label('poll')
    Ld = a.label('polld')
    a(f's_mov_b32 s93, {POLL_MAX}\n{L}:')
    for q, (so, ig) in enumerate(rows):
        a(f'buffer_load_dwordx2 {v(vt + 2 * q, 2)}, {v(voff[q] if isinstance(voff, list) else voff)}, s[20:23], {so} offen sc1')
    a('s_waitcnt vmcnt(0)')
    dst = ['vcc', 's[46:47]', 's[48:49]']
    for q in range(len(rows)):
        a(f'v_cmp_eq_u64 {dst[q]}, s[98:99], {v(vt + 2 * q, 2)}')
    a('s_nop 1')
    for q, (so, ig) in enumerate(rows):
        if ig:
            a(f's_or_b64 {dst[q]}, {dst[q]}, {ig}')
        if q:
            a(f's_and_b64 vcc, vcc, {dst[q]}')
    a(f'''
    s_cmp_eq_u64 vcc, -1
    s_cbranch_scc1 {Ld}
    s_sub_u32 s93, s93, 1
    s_cbranch_scc1 {Ld}
    s_sleep {sleep}
    s_branch {L}
    {Ld}:
    ''')


def one_poller(a, vt, word, body, who=3):
    Lw, Ld, Ls = a.label('opw'), a.label('opd'), a.label('ops')
    a(f'''
    v_mov_b32 {v(vt + 3)}, {RDY_A + 4 * word}
    s_cmp_lg_u32 s26, {who}
    s_cbranch_scc1 {Lw}
    ''')
    body()
    a(f'''
    v_mov_b32 {v(vt + 2)}, s98
    ds_write_b32 {v(vt + 3)}, {v(vt + 2)}
    s_branch {Ld}
    {Lw}:
    s_mov_b32 s93, {POLL_MAX * 8}
    {Ls}:
    ds_read_b32 {v(vt + 2)}, {v(vt + 3)}
    s_waitcnt lgkmcnt(0)
    v_readfirstlane_b32 s46, {v(vt + 2)}
    s_cmp_eq_u32 s46, s98
    s_cbranch_scc1 {Ld}
    s_sub_u32 s93, s93, 1
    s_cbranch_scc1 {Ld}
    s_sleep 1
    s_branch {Ls}
    {Ld}:
    ''')


def bstamp(a, first=False):
    if not (asmlib.STAMPS and ENV.get('BST')):
        return
    if first:
        a('s_add_u32 s101, s92, 0xC0000')
    a('''
    s_memrealtime s[94:95]
    s_memtime s[96:97]
    s_waitcnt lgkmcnt(0)
    v_mov_b32 v166, s94
    v_mov_b32 v167, s96
    buffer_store_dwordx2 v[166:167], off, s[88:91], s101
    s_add_u32 s101, s101, 8
    ''')


def srd(a, base, ptr, size):
    a(f'''
    s_mov_b32 s{base}, s{ptr}
    s_mov_b32 s{base + 1}, s{ptr + 1}
    s_mov_b32 s{base + 2}, {size}
    s_mov_b32 s{base + 3}, 0x20000
    ''')


def w_source(a):
    a('''
    s_and_b32 s44, s26, 1
    s_and_b32 s51, s44, s48
    s_lshr_b32 s45, s26, 1
    s_lshl_b32 s46, s44, 6
    s_add_u32 s46, s46, s49
    s_cmp_eq_u32 s48, 1
    s_cselect_b32 s46, s49, s46
    s_lshl_b32 s47, s45, 6
    s_add_u32 s47, s47, s50
    s_cmp_eq_u32 s51, 1
    s_cselect_b32 s52, s47, s46
    s_lshl_b32 s52, s52, 1
    s_cmp_eq_u32 s45, 1
    s_cselect_b32 s12, s82, s80
    s_cselect_b32 s13, s83, s81
    s_mov_b32 s14, 2211840
    s_mov_b32 s53, 3456
    s_cmp_eq_u32 s51, 1
    s_cselect_b32 s12, s70, s12
    s_cselect_b32 s13, s71, s13
    s_cselect_b32 s14, 819200, s14
    s_cselect_b32 s53, 1280, s53
    s_mov_b32 s15, 0x20000
    ''')


def tile_offs(t):
    p, o = t >> 1, t & 1
    b = p * 7168
    return b + o * 1024, b + 2048, b + 3072 + o * 2048, b + 4096 + o * 2048


PERMC = f'''
    s_bfe_u32 s44, s2, 0x30003
    s_lshr_b32 s45, s2, 6
    s_add_u32 s44, s44, s45
    s_and_b32 s100, s44, {PERM}
    s_xor_b32 s45, s100, 1
'''
ROTC = '''
    s_add_u32 s100, s27, s28
    s_mul_i32 s44, s100, 26
    s_lshr_b32 s44, s44, 8
    s_mul_i32 s44, s44, 10
    s_sub_u32 s100, s100, s44
    s_add_u32 s45, s100, 1
    s_cmp_eq_u32 s45, 10
    s_cselect_b32 s45, 0, s45
'''


def gen():
    a = Asm()
    a(kernel_head(KNAME))
    stamp_early(a)
    vL, vH, vR = 1, 2, 3
    L_end = a.label('end')
    L_aux = a.label('aux')
    a(f'''
    s_cmp_ge_u32 s2, 256
    s_cbranch_scc1 {L_end}
    s_load_dwordx8 s[68:75], s[0:1], 0
    s_load_dwordx4 s[80:83], s[0:1], 48
    s_load_dwordx4 s[76:79], s[0:1], 80
    s_load_dwordx2 s[84:85], s[0:1], 32
    s_load_dwordx4 s[88:91], s[0:1], 64
    v_lshrrev_b32 v4, 6, v0
    v_and_b32 {v(vL)}, 63, v0
    v_readfirstlane_b32 s24, v4
    v_lshrrev_b32 {v(vH)}, 5, {v(vL)}
    v_and_b32 {v(vR)}, 31, {v(vL)}
    ''')
    if CWARM:
        Lw, Lp = a.label('nowarm'), a.label('pc')
        a(f'''
        s_cmp_lg_u32 s24, 11
        s_cbranch_scc1 {Lw}
        s_getpc_b64 s[4:5]
        {Lp}:
        s_bfe_u32 s44, s2, 0x30003
        s_lshl_b32 s44, s44, 13
        v_lshl_add_u32 v4, {v(vL)}, 7, s44
        v_min_u32 v4, {L_end}-{Lp}, v4
        global_load_dword v165, v4, s[4:5]
        {Lw}:
        ''')
    vXD, vWD, vKD = 20, 22, 24
    t0, t1, t2, t3, t4 = 4, 5, 6, 7, 8
    a(f'''
    s_bfe_u32 s27, s2, 0x30003
    s_and_b32 s46, s2, 1
    s_lshl_b32 s46, s46, 3
    s_add_u32 s27, s27, s46
    s_bfe_u32 s46, s2, 0x20001
    s_xor_b32 s46, s46, {JX}
    s_lshl_b32 s46, s46, 2
    s_lshr_b32 s47, s2, 6
    s_add_u32 s28, s46, s47
    s_cmp_ge_u32 s28, 11
    s_cselect_b32 s48, 1, 0
    s_sub_u32 s44, s28, 11
    s_lshl_b32 s45, s44, 6
    s_add_u32 s45, s45, 1408
    s_lshl_b32 s46, s28, 7
    s_lshl_b32 s50, s44, 7
    s_cmp_eq_u32 s48, 1
    s_cselect_b32 s49, s45, s46
    s_and_b32 s25, s24, 1
    s_lshr_b32 s26, s24, 1
    s_sub_u32 s44, s24, 8
    s_cmp_ge_u32 s24, 8
    s_cselect_b32 s26, s44, s26
    s_and_b32 s44, s26, 1
    s_and_b32 s51, s44, s48
    s_lshr_b32 s43, s26, 1
    s_andn2_b32 s46, s44, s48
    s_lshl_b32 s46, s46, 6
    s_add_u32 s46, s46, s49
    s_lshl_b32 s47, s43, 6
    s_add_u32 s47, s47, s50
    s_mov_b32 s53, 3456
    s_cmp_eq_u32 s51, 1
    s_cselect_b32 s52, s47, s46
    s_cselect_b32 s53, 1280, s53
    s_lshl_b32 s52, s52, 1
    s_lshl_b32 s31, s53, 3
    s_lshl_b32 s32, s53, 6
    v_lshrrev_b32 {v(t0)}, 3, {v(vL)}
    v_and_b32 {v(t1)}, 7, {v(vL)}
    s_lshl_b32 s44, s27, 7
    s_lshl_b32 s45, s26, 5
    s_add_u32 s44, s44, s45
    v_add_u32 {v(t2)}, s44, {v(t0)}
    v_mul_u32_u24 {v(t2)}, 1280, {v(t2)}
    v_lshrrev_b32 {v(t3)}, 1, {v(t0)}
    v_xor_b32 {v(t3)}, {v(t3)}, {v(t1)}
    v_lshl_add_u32 {v(vXD)}, {v(t3)}, 4, {v(t2)}
    v_xor_b32 {v(t3)}, 4, {v(t3)}
    v_lshl_add_u32 {v(vXD + 1)}, {v(t3)}, 4, {v(t2)}
    v_add_u32 {v(vXD + 1)}, {8 * 1280}, {v(vXD + 1)}
    v_mul_lo_u32 {v(t2)}, {v(t0)}, s53
    v_lshrrev_b32 {v(t3)}, 1, {v(t1)}
    v_and_b32 {v(t4)}, 2, {v(t0)}
    v_xor_b32 {v(t3)}, {v(t3)}, {v(t4)}
    v_and_b32 {v(t4)}, 1, {v(t1)}
    v_lshl_add_u32 {v(t2)}, {v(t4)}, 4, {v(t2)}
    v_add_u32 {v(t2)}, s52, {v(t2)}
    v_lshl_add_u32 {v(vWD)}, {v(t3)}, 5, {v(t2)}
    v_xor_b32 {v(t3)}, 1, {v(t3)}
    v_lshl_add_u32 {v(vWD + 1)}, {v(t3)}, 5, {v(t2)}
    s_lshl_b32 s36, s26, 12
    s_mul_i32 s37, s26, 24576
    s_add_u32 s37, s37, {LDS_W}
    s_lshl_b32 s33, s53, 5
    s_mul_i32 s33, s33, s25
    s_lshl_b32 s44, s25, 12
    s_add_u32 s35, s37, s44
    {ROTC if ROT else PERMC}
    s_mul_i32 s38, s100, s32
    s_mul_i32 s39, s45, s32
    s_mov_b32 s10, 2621440
    s_mov_b32 s11, 0x20000
    s_mov_b32 s14, 2211840
    s_mov_b32 s15, 0x20000
    s_cmp_ge_u32 s24, 8
    s_cbranch_scc1 {L_aux}
    s_cmp_eq_u32 s43, 1
    s_waitcnt lgkmcnt(0)
    s_cselect_b32 s12, s82, s80
    s_cselect_b32 s13, s83, s81
    s_cmp_eq_u32 s51, 1
    s_cselect_b32 s12, s70, s12
    s_cselect_b32 s13, s71, s13
    s_cselect_b32 s14, 819200, s14
    ''')
    def c_start(c):
        for e in range(4):
            a(f'''
            s_add_u32 m0, s35, {c * 8192 + e * 1024}
            s_add_u32 s34, s33, s{38 + c}
            buffer_load_dwordx4 {v(vWD + (e & 1))}, s[12:15], s34 offen lds
            ''')
            if e < 3:
                a('s_add_u32 s33, s33, s31')
            elif c == 0:
                a('s_mul_i32 s44, s31, 3\ns_sub_u32 s33, s33, s44')
    c_start(0)
    if not LATE1:
        c_start(1)
    L_com = a.label('common')
    a(f'''
    s_mov_b32 s8, s68
    s_mov_b32 s9, s69
    s_mov_b32 s16, s72
    s_mov_b32 s17, s73
    s_mov_b32 s18, 25600
    s_mov_b32 s19, 0x20000
    v_mov_b32 {v(vKD)}, 0
    s_branch {L_com}
    {L_aux}:
    s_setprio {PRIO1}
    s_cmp_lt_u32 s28, 8
    s_cselect_b32 s54, 1, 0
    s_cmp_lt_u32 s26, 3
    s_cselect_b32 s40, s54, 0
    s_lshl_b32 s44, s26, 10
    s_add_u32 s38, s44, {LDS_KV}
    v_lshl_add_u32 {v(vKD)}, {v(vL)}, 4, s44
    s_mov_b32 s18, 25600
    s_mov_b32 s19, 0x20000
    s_lshl_b32 s46, s100, 7
    s_lshl_b32 s57, s45, 7
    s_mul_i32 s58, s100, 2560
    s_mul_i32 s59, s45, 2560
    s_bitcmp1_b32 s28, 2
    s_waitcnt lgkmcnt(0)
    s_mov_b32 s8, s68
    s_mov_b32 s9, s69
    s_cselect_b32 s16, s74, s72
    s_cselect_b32 s17, s75, s73
    ''')
    def a_start(c):
        for e in range(4):
            a(f'''
            s_add_u32 m0, s36, {LDS_X + c * 16384 + e * 1024}
            s_add_u32 s34, s{(46, 57)[c]}, {(e >> 1) * 16 * 1280}
            buffer_load_dwordx4 {v(vXD + (e & 1))}, s[8:11], s34 offen lds
            ''')
        lab = a.label('nokv')
        a(f'''
        s_cmp_eq_u32 s40, 0
        s_cbranch_scc1 {lab}
        s_add_u32 m0, s38, {c * 3072}
        s_nop 0
        buffer_load_dwordx4 {v(vKD)}, s[16:19], s{58 + c} offen lds
        {lab}:
        ''')
    a_start(0)
    if not LATE1:
        a_start(1)
    a(f'''
    s_cmp_eq_u32 s43, 1
    s_cselect_b32 s12, s82, s80
    s_cselect_b32 s13, s83, s81
    s_cmp_eq_u32 s51, 1
    s_cselect_b32 s12, s70, s12
    s_cselect_b32 s13, s71, s13
    s_cselect_b32 s14, 819200, s14
    {L_com}:
    s_mov_b32 s62, 0
    s_mov_b32 s63, -1
    s_and_b32 s44, s2, 7
    s_lshl_b32 s44, s44, 2
    s_bfe_u32 s46, s2, 0x20003
    s_add_u32 s29, s44, s46
    s_lshr_b32 s30, s2, 5
    ''')
    srd(a, 20, 78, WS_USED)
    srd(a, 64, 90, 2621440)
    if asmlib.STAMPS:
        a('s_mov_b32 s86, s88\ns_mov_b32 s87, s89')
    WDP = 86 if asmlib.STAMPS else 88
    if asmlib.STAMPS:
        a(f'''
        s_mov_b32 s88, s78
        s_mov_b32 s89, s79
        s_mov_b32 s90, 0x2000000
        s_mov_b32 s91, 0x20000
        s_mul_i32 s92, s2, 12
        s_add_u32 s92, s92, s24
        s_lshl_b32 s92, s92, 8
        s_add_u32 s92, s92, {asmlib.STAMP_OFF}
        ''')
    stamp(a, 0, early=True)
    stamp(a, 24)
    L_aux2 = a.label('aux2')
    a(f'''
    s_cmp_ge_u32 s24, 8
    s_cbranch_scc1 {L_aux2}
    ''')
    compute_wave(a, vL, vH, vR, L_end, c_start)
    a(f'{L_aux2}:')
    aux_wave(a, vL, vH, vR, L_end, WDP, a_start)
    a(f'''
    {L_end}:
    s_endpgm
    ''')
    return a.text()


def compute_wave(a, vL, vH, vR, L_end, c_start):
    al = Alloc(4, 168)
    T = al('T', 8, 4)
    ACC = al('acc', 64, 4)
    XF = al('xf', 32, 4)
    WF = al('wf', 16, 4)
    vXA = al('xa', 2)
    vWA = al('wa', 4)
    assert al.p == 130
    t0, t1, t2, t3, t4 = T, T + 1, T + 2, T + 3, T + 4
    a.c('=========== compute wave: phase 1 ===========')
    CR = 132
    XR = 132
    U = 160
    u0, u1, u2, u3, u4, u5 = range(U, U + 6)
    W4 = 144
    vN = 130
    srd(a, 4, 76, 256)

    a(f'''
    s_lshr_b32 s44, s30, 2
    s_lshl_b32 s46, s29, 1
    s_add_u32 s46, s46, s44
    s_and_b32 s44, s30, 3
    s_lshl_b32 s44, s44, 3
    s_add_u32 s45, s44, s24
    s_mul_i32 s37, s46, 40960
    s_add_u32 s37, s37, {OF_OFF}
    s_lshl_b32 s36, s45, 10
    s_add_u32 s36, s36, s37
    s_lshl_b32 s44, s45, 8
    s_add_u32 s37, s37, s44
    s_add_u32 s37, s37, 32768
    ''')
    PZ = 152
    poison = [f'v_mov_b32 {v(PZ + q)}, -1' for q in range(4)] + [
        f'v_lshlrev_b32 {v(u4)}, 4, {v(vL)}', f'v_lshlrev_b32 {v(u5)}, 2, {v(vL)}',
        f'buffer_store_dwordx4 {v(PZ, 4)}, {v(u4)}, s[20:23], s36 offen sc1',
        f'buffer_store_dword {v(PZ)}, {v(u5)}, s[20:23], s37 offen sc1']

    def lines(txt):
        return [x.strip() for x in txt.split(chr(10)) if x.strip()]

    def load_cs():
        f = lines(f'''
        s_mul_i32 s44, s27, 40
        v_lshrrev_b32 {v(u1)}, 3, {v(vL)}
        v_add_u32 {v(u1)}, s44, {v(u1)}
        v_mul_lo_u32 {v(u2)}, {v(u1)}, s53
        v_and_b32 {v(u1)}, 7, {v(vL)}
        v_lshl_add_u32 {v(u2)}, {v(u1)}, 4, {v(u2)}
        s_mov_b32 s34, s52
        ''')
        for t in range(5):
            f.append([f'buffer_load_dwordx4 {v(CR + 4 * t, 4)}, {v(u2)}, s[12:15], s34 offen', 's_add_u32 s34, s34, s31'])
        return f

    def load_rows():
        f = lines(f'''
        s_lshl_b32 s44, s27, 7
        s_lshl_b32 s45, s28, 3
        s_add_u32 s44, s44, s45
        s_lshl_b32 s45, s26, 1
        s_add_u32 s55, s44, s45
        v_add_u32 {v(u0)}, s55, {v(vH)}
        v_mul_u32_u24 {v(u0)}, 1280, {v(u0)}
        v_lshl_add_u32 {v(u0)}, {v(vR)}, 3, {v(u0)}
        ''')
        for t in range(5):
            f.append(f'buffer_load_dwordx2 {v(XR + 2 * t, 2)}, {v(u0)}, s[8:11], 0 offen offset:{256 * t}')
        return f

    def fill_cs():
        A8 = 152
        f = []
        for q in range(4):
            f += [f'v_lshlrev_b32 {v(A8 + 2 * q)}, 16, {v(CR + q)}', f'v_and_b32 {v(A8 + 2 * q + 1)}, 0xffff0000, {v(CR + q)}']
        for t in range(1, 5):
            for q in range(4):
                ta, tb = (u2, u3) if q & 1 else (u4, u5)
                f += lines(f'''
                v_lshlrev_b32 {v(ta)}, 16, {v(CR + 4 * t + q)}
                v_and_b32 {v(tb)}, 0xffff0000, {v(CR + 4 * t + q)}
                v_add_f32 {v(A8 + 2 * q)}, {v(A8 + 2 * q)}, {v(ta)}
                v_add_f32 {v(A8 + 2 * q + 1)}, {v(A8 + 2 * q + 1)}, {v(tb)}
                ''')
        f.append('s_nop 1')
        f += [f'v_permlane32_swap_b32 {v(A8 + q)}, {v(A8 + 4 + q)}' for q in range(4)]
        f.append('s_nop 1')
        f += [f'v_add_f32 {v(A8 + q)}, {v(A8 + q)}, {v(A8 + 4 + q)}' for q in range(4)]
        f.append('s_nop 1')
        f += [f'v_permlane16_swap_b32 {v(A8 + q)}, {v(A8 + 2 + q)}' for q in range(2)]
        f.append('s_nop 1')
        f += [f'v_add_f32 {v(A8 + q)}, {v(A8 + q)}, {v(A8 + 2 + q)}' for q in range(2)]
        f += lines(f'''
        s_nop 1
        v_add_f32_dpp {v(A8)}, {v(A8)}, {v(A8)} row_ror:8 row_mask:0xf bank_mask:0xf
        v_add_f32_dpp {v(A8 + 1)}, {v(A8 + 1)}, {v(A8 + 1)} row_ror:8 row_mask:0xf bank_mask:0xf
        s_mov_b32 vcc_lo, 0xff00ff00
        s_mov_b32 vcc_hi, 0xff00ff00
        v_cndmask_b32 {v(u0)}, {v(A8)}, {v(A8 + 1)}, vcc
        v_cvt_pk_bf16_f32 {v(u1)}, {v(u0)}, {v(u0)}
        v_and_b32 {v(u1)}, 0xffff0000, {v(u1)}
        v_sub_f32 {v(u1)}, {v(u0)}, {v(u1)}
        v_cvt_pk_bf16_f32 {v(u0)}, {v(u0)}, {v(u1)}
        v_and_b32 {v(u1)}, 7, {v(vL)}
        v_lshl_add_u32 {v(u1)}, {v(u1)}, 1, {v(vH)}
        v_bfe_u32 {v(u2)}, {v(vL)}, 4, 1
        v_lshl_add_u32 {v(u1)}, {v(u1)}, 1, {v(u2)}
        v_bfe_u32 {v(u2)}, {v(vL)}, 3, 1
        v_lshl_add_u32 {v(u1)}, {v(u1)}, 1, {v(u2)}
        v_and_b32 {v(u2)}, 15, {v(u1)}
        v_lshrrev_b32 {v(u3)}, 4, {v(u1)}
        s_and_b32 s44, s26, 1
        s_andn2_b32 s44, s44, s48
        s_lshl_b32 s44, s44, 7
        s_lshr_b32 s45, s26, 1
        s_lshl_b32 s45, s45, 4
        s_add_u32 s44, s44, s45
        v_lshl_add_u32 {v(u4)}, {v(u3)}, 5, s44
        s_add_u32 s44, s26, 3
        s_lshl_b32 s44, s44, 5
        v_lshl_add_u32 {v(u5)}, {v(u3)}, 4, s44
        s_cmp_eq_u32 s51, 1
        s_cselect_b64 vcc, -1, 0
        v_cndmask_b32 {v(u4)}, {v(u4)}, {v(u5)}, vcc
        v_add_lshl_u32 {v(u2)}, {v(u2)}, {v(u4)}, 2
        s_lshl_b32 s44, s28, 14
        s_lshl_b32 s45, s27, 10
        s_add_u32 s44, s44, s45
        s_add_u32 s44, s44, {CSW}
        buffer_store_dword {v(u0)}, {v(u2)}, s[20:23], s44 offen sc1
        s_lshl_b32 s46, s27, 2
        s_add_u32 s46, s46, s26
        s_lshl_b32 s46, s46, 7
        s_lshl_b32 s45, s28, 13
        s_add_u32 s46, s46, s45
        s_add_u32 s56, s46, {F_CS}
        ''')
        return f

    def fill_rows():
        f = [f'v_mov_b32 {v(u0)}, 0', f'v_mov_b32 {v(u1)}, 0']
        for t in range(10):
            f += lines(f'''
            v_lshlrev_b32 {v(u2)}, 16, {v(XR + t)}
            v_and_b32 {v(u3)}, 0xffff0000, {v(XR + t)}
            v_add_f32 {v(u0)}, {v(u0)}, {v(u2)}
            v_fmac_f32 {v(u1)}, {v(u2)}, {v(u2)}
            v_add_f32 {v(u0)}, {v(u0)}, {v(u3)}
            v_fmac_f32 {v(u1)}, {v(u3)}, {v(u3)}
            ''')
        for ror in (8, 4, 2, 1):
            f += lines(f'''
            s_nop 1
            v_add_f32_dpp {v(u0)}, {v(u0)}, {v(u0)} row_ror:{ror} row_mask:0xf bank_mask:0xf
            v_add_f32_dpp {v(u1)}, {v(u1)}, {v(u1)} row_ror:{ror} row_mask:0xf bank_mask:0xf
            ''')
        f += lines(f'''
        v_mov_b32 {v(u2)}, {v(u0)}
        v_mov_b32 {v(u3)}, {v(u1)}
        s_nop 1
        v_permlane16_swap_b32 {v(u0)}, {v(u2)}
        v_permlane16_swap_b32 {v(u1)}, {v(u3)}
        s_mov_b32 s44, {f2u(1.0 / 640.0)}
        s_mov_b32 s45, {f2u(1e-5)}
        v_add_f32 {v(u0)}, {v(u0)}, {v(u2)}
        v_add_f32 {v(u1)}, {v(u1)}, {v(u3)}
        v_mul_f32 {v(u0)}, s44, {v(u0)}
        v_mul_f32 {v(u1)}, s44, {v(u1)}
        v_fma_f32 {v(u1)}, -{v(u0)}, {v(u0)}, {v(u1)}
        v_max_f32 {v(u1)}, 0, {v(u1)}
        v_cvt_pk_bf16_f32 {v(W4)}, -{v(u0)}, -{v(u0)}
        v_cvt_pk_bf16_f32 {v(u1)}, {v(u1)}, {v(u1)}
        v_and_b32 {v(u1)}, 0xffff0000, {v(u1)}
        v_add_f32 {v(u1)}, s45, {v(u1)}
        v_cvt_pk_bf16_f32 {v(u1)}, {v(u1)}, {v(u1)}
        v_and_b32 {v(u1)}, 0xffff0000, {v(u1)}
        v_sqrt_f32 {v(u1)}, {v(u1)}
        v_mov_b32 {v(W4 + 3)}, 0
        v_cvt_pk_bf16_f32 {v(u1)}, {v(u1)}, {v(u1)}
        v_and_b32 {v(u1)}, 0xffff0000, {v(u1)}
        v_rcp_f32 {v(W4 + 1)}, {v(u1)}
        v_mul_f32 {v(W4 + 2)}, {v(u1)}, {v(u1)}
        v_lshlrev_b32 {v(u2)}, 4, {v(vH)}
        s_lshl_b32 s44, s55, 4
        s_add_u32 s44, s44, {ROWW}
        ''')
        f.append(['s_mov_b32 exec_lo, 1', 's_mov_b32 exec_hi, 1',
                  f'buffer_store_dwordx4 {v(W4, 4)}, {v(u2)}, s[20:23], s44 offen sc1', 's_mov_b64 exec, -1'])
        f += lines(f'''
        s_lshl_b32 s44, s28, 2
        s_add_u32 s44, s44, s26
        s_lshl_b32 s44, s44, 7
        s_lshl_b32 s45, s27, 13
        s_add_u32 s44, s44, s45
        s_add_u32 s56, s44, {F_ST}
        ''')
        return f

    stamp(a, 22)
    a(f'''
    v_and_b32 {v(t0)}, 15, {v(vL)}
    v_lshrrev_b32 {v(t1)}, 4, {v(vL)}
    v_lshrrev_b32 {v(t2)}, 1, {v(t0)}
    v_xor_b32 {v(t2)}, {v(t2)}, {v(t1)}
    v_lshlrev_b32 {v(t0)}, 7, {v(t0)}
    s_lshl_b32 s44, s25, 13
    v_add_u32 {v(t0)}, s44, {v(t0)}
    v_lshl_add_u32 {v(vXA)}, {v(t2)}, 4, {v(t0)}
    v_xor_b32 {v(t2)}, 4, {v(t2)}
    v_lshl_add_u32 {v(vXA + 1)}, {v(t2)}, 4, {v(t0)}
    v_bfe_u32 {v(t2)}, {v(vL)}, 2, 2
    v_lshl_add_u32 {v(t0)}, {v(t1)}, 3, {v(t2)}
    v_lshlrev_b32 {v(t0)}, 7, {v(t0)}
    v_and_b32 {v(t3)}, 3, {v(vL)}
    v_lshl_add_u32 {v(t0)}, {v(t3)}, 3, {v(t0)}
    v_and_b32 {v(t2)}, 2, {v(t2)}
    v_and_b32 {v(t1)}, 1, {v(t1)}
    v_xor_b32 {v(t1)}, {v(t1)}, {v(t2)}
    s_lshr_b32 s44, s26, 1
    s_and_b32 s57, s44, s48
    ''')
    for t in range(4):
        a(f'''
        s_lshl_b32 s44, s26, 1
        s_add_u32 s45, s44, {t >> 1}
        s_and_b32 s46, s45, 3
        s_lshr_b32 s45, s45, 2
        s_add_u32 s45, s45, {2 * (t & 1)}
        s_sub_u32 s44, s44, 3
        s_cmp_eq_u32 s57, 1
        s_cselect_b32 s45, s44, s45
        s_cselect_b32 s46, {t}, s46
        s_mul_i32 s45, s45, 24576
        s_add_u32 s45, s45, {LDS_W}
        v_xor_b32 {v(t2)}, s46, {v(t1)}
        v_lshl_add_u32 {v(t2)}, {v(t2)}, 5, {v(t0)}
        v_add_u32 {v(vWA + t)}, s45, {v(t2)}
        ''')

    def m16(d, A, B, first=False):
        return f'v_mfma_f32_16x16x32_bf16 {v(d, 4)}, {v(A, 4)}, {v(B, 4)}, ' + ('0' if first else v(d, 4))

    def xrd(g):
        c, sI = divmod(g, 2)
        return [f'ds_read_b128 {v(XF + 16 * (g & 1) + 4 * rt, 4)}, {v(vXA + sI)} offset:{LDS_X + (c % 3) * 16384 + 2048 * rt}' for rt in range(4)]

    def wrd(g, t):
        c, sI = divmod(g, 2)
        return [f'ds_read_b64_tr_b16 {v(WF + 4 * t + 2 * z, 2)}, {v(vWA + t)} offset:{(c % 3) * 8192 + 4096 * sI + 512 * z}' for z in range(2)]

    def tile(g, t):
        return [m16(ACC + 16 * t + 4 * rt, WF + 4 * t, XF + 16 * (g & 1) + 4 * rt, g == 0) for rt in range(4)]

    def chunk(c, fill=()):
        a.c(f'chunk {c}')
        if c:
            a('s_waitcnt lgkmcnt(0)')
        a('s_barrier')
        if not FEWST or c in (0, 1, 2, 9):
            stamp(a, 1 + c)
        if c == 9:
            lab = a.label('nqp')
            a(f's_cmp_eq_u32 s57, 0\ns_cbranch_scc1 {lab}\ns_setprio 2\n{lab}:')
        seq = []

        def rest(g, waits):
            pend = (wrd(g + 1, 0) + xrd(g + 1)) if g + 1 < 20 else []
            for t in range(1, 4):
                ms = tile(g, t)
                for q, m_ in enumerate(ms):
                    pre_ = [f's_waitcnt lgkmcnt({(0, 4, 10, 10)[t]})'] if (waits and q == 0) else []
                    ex = pend[2 * q:2 * q + 2] if t == 1 else []
                    if q == 3 and g + 1 < 20:
                        ex = ex + wrd(g + 1, t)
                    seq.append((pre_, m_, ex))
        if c > 0:
            rest(2 * c - 1, False)
        else:
            emit(a, wrd(0, 0) + xrd(0) + wrd(0, 1) + wrd(0, 2) + wrd(0, 3))
        g = 2 * c
        for q, m_ in enumerate(tile(g, 0)):
            seq.append((['s_waitcnt lgkmcnt(6)'] if q == 0 else [], m_, []))
        rest(g, True)
        for q, m_ in enumerate(tile(g + 1, 0)):
            seq.append((['s_waitcnt lgkmcnt(6)'] if q == 0 else [], m_, []))
        n, k_ = len(fill), len(seq)
        for q, (pre_, m_, ex) in enumerate(seq):
            emit(a, pre_)
            a(m_)
            emit(a, ex)
            emit(a, fill[(q * n) // k_:((q + 1) * n) // k_])

    if LATE1:
        c_start(1)
    lab1, lab2 = a.label('rowv'), a.label('join')
    a(f's_cmp_eq_u32 s25, 1\ns_cbranch_scc1 {lab1}')
    for var, (ld, fl) in enumerate(((load_cs(), fill_cs()), (load_rows(), fill_rows()))):
        qp = [] if var == 0 else lines(f'''
        s_mul_i32 s44, s27, 163840
        s_mul_i32 s45, s28, 10240
        s_add_u32 s44, s44, s45
        s_mul_i32 s45, s26, 2560
        s_add_u32 s44, s44, s45
        s_add_u32 s44, s44, {QF_OFF}
        v_lshlrev_b32 {v(u5)}, 3, {v(vL)}
        buffer_store_dwordx4 {v(PZ, 4)}, {v(u4)}, s[20:23], s44 offen sc1
        buffer_store_dwordx4 {v(PZ, 4)}, {v(u4)}, s[20:23], s44 offen offset:1024 sc1
        buffer_store_dwordx2 {v(PZ, 2)}, {v(u5)}, s[20:23], s44 offen offset:2048 sc1
        ''')
        nl = [f'buffer_load_dword {v(vN)}, off, s[4:7], 0 sc1']
        if NOSL:
            ld = [['buffer_load_dword v165, off, s[4:7], 0']] * 5
            fl = fl[-6:]
        pz0 = poison + qp if PZ0 else []
        fl = (fl + nl) if PZ0 else (poison + qp + fl + nl)
        if SLC == 0:
            emit(a, ld)
        a(f's_waitcnt vmcnt({9 if SLC == 0 else 4})')
        chunk(0, (ld if SLC == -1 else []) + pz0)
        a(f's_waitcnt vmcnt({(5 if SLC <= 0 else 0) + ((2, 5)[var] if PZ0 else 0)})')
        n = len(fl)
        f0 = max(SLC, 0) + SLG
        for c in range(1, f0 + SPN):
            if c == SLC:
                chunk(c, ld)
            elif c >= f0:
                q = c - f0
                chunk(c, ([f's_waitcnt vmcnt({(2, 5)[var] if PZ0 else 0})'] if q == 0 else []) + fl[(q * n) // SPN:((q + 1) * n) // SPN])
            else:
                chunk(c)
        if var == 0:
            a(f's_branch {lab2}\n{lab1}:')
    a(f'{lab2}:')
    chunk(f0 + SPN)
    Lp, Lq = a.label('cnp'), a.label('cnd')
    a(f'''
    s_mov_b32 s93, {POLL_MAX}
    {Lp}:
    s_waitcnt vmcnt(0)
    v_readfirstlane_b32 s98, {v(vN)}
    s_cmp_lg_u32 s98, 0
    s_cbranch_scc1 {Lq}
    s_sub_u32 s93, s93, 1
    s_cbranch_scc1 {Lq}
    buffer_load_dword {v(vN)}, off, s[4:7], 0 sc1
    s_branch {Lp}
    {Lq}:
    s_xor_b32 s99, s98, {NONCE_X}
    ''')
    lab = a.label('noxid')
    a(f'''
    s_cmp_lg_u32 s24, 0
    s_cbranch_scc1 {lab}
    s_getreg_b32 s44, hwreg(HW_REG_XCC_ID, 0, 4)
    s_lshl_b32 s45, s29, 7
    s_lshl_b32 s46, s30, 3
    s_add_u32 s45, s45, s46
    s_add_u32 s45, s45, {F_X}
    v_mov_b32 {v(U)}, s98
    v_mov_b32 {v(U + 1)}, s44
    s_mov_b64 exec, 1
    buffer_store_dwordx2 {v(U, 2)}, off, s[20:23], s45 sc1
    s_mov_b64 exec, -1
    {lab}:
    ''')
    flag_store(a, 's56', U + 2)
    RC, CSF, vS16 = 132, 148, 131
    pre = lines(f'''
    v_and_b32 {v(t2)}, 15, {v(vL)}
    v_lshrrev_b32 {v(t3)}, 4, {v(vL)}
    s_lshl_b32 s44, s25, 10
    s_add_u32 s44, s44, {ROWC_A}
    v_lshl_add_u32 {v(t0)}, {v(t2)}, 4, s44
    s_lshl_b32 s44, s26, 8
    s_add_u32 s44, s44, {CS_A}
    v_lshl_add_u32 {v(t1)}, {v(t2)}, 2, s44
    v_lshl_add_u32 {v(t1)}, {v(t3)}, 12, {v(t1)}
    v_lshlrev_b32 {v(vS16)}, 4, {v(t2)}
    v_lshl_add_u32 {v(vS16)}, {v(t3)}, 9, {v(vS16)}
    ''')
    pre += [f'ds_read_b128 {v(RC + 4 * rt, 4)}, {v(t0)} offset:{256 * rt}' for rt in range(4)]
    for t in range(4):
        for z in range(2):
            pre.append(f'ds_read2st64_b32 {v(CSF + 4 * t + 2 * z, 2)}, {v(t1)} offset0:{8 * z} offset1:{8 * z + 4}')
        if t < 3:
            pre.append(f'v_add_u32 {v(t1)}, 64, {v(t1)}')
    for c in range(f0 + SPN + 1, 10):
        chunk(c, pre if c == 9 else ())
    a(f'''
    s_lshl_b32 s44, s24, 2
    s_add_u32 s44, s44, {CD_A}
    v_mov_b32 {v(t0)}, s44
    v_mov_b32 {v(t1)}, s98
    s_waitcnt lgkmcnt(0)
    ds_write_b32 {v(t0)}, {v(t1)}
    ''')
    NEG = XF
    HH = 148
    ms = tile(19, 1) + tile(19, 2) + tile(19, 3)
    mv = [f'v_mov_b32 {v(NEG + 4 * rt + r)}, {v(RC + 4 * rt)}' for rt in range(4) for r in range(4)]
    for q, m_ in enumerate(ms):
        a(m_)
        emit(a, mv[(q * 16) // 12:((q + 1) * 16) // 12])
    stamp(a, 12)
    a(f'''
    s_mov_b32 s46, {f2u(C0)}
    s_mov_b32 s47, {f2u(C1)}
    ''')
    for rt in range(4):
        for t in range(4):
            a(m16(ACC + 16 * t + 4 * rt, CSF + 4 * t, NEG + 4 * rt))
    L_q = a.label('qepi')
    L_ed = a.label('epidone')
    a(f'''
    s_lshl_b32 s44, s27, 2
    s_lshl_b32 s45, s25, 1
    s_add_u32 s60, s44, s45
    s_cmp_eq_u32 s57, 1
    s_cbranch_scc1 {L_q}
    s_lshr_b32 s44, s49, 4
    s_lshl_b32 s45, s26, 1
    s_add_u32 s44, s44, s45
    s_mul_i32 s42, s60, 108
    s_add_u32 s42, s42, s44
    s_lshl_b32 s42, s42, 10
    s_add_u32 s43, s42, {108 * 1024}
    ''')
    E1, E2, KC = XF + 16, WF, T
    for rt in range(4):
        TT = E1 + 8 * (rt % 2)
        PP = E2 + 8 * (rt % 2)
        G_ = lambda i: ACC + 32 * (i >> 2) + 4 * rt + (i & 3)
        rho = RC + 4 * rt + 1
        a(f'''
        v_mul_f32 {v(KC)}, s46, {v(rho)}
        v_mul_f32 {v(KC + 1)}, s46, {v(rho)}
        v_mul_f32 {v(KC + 4)}, {v(rho)}, {v(rho)}
        v_mov_b32 {v(RC + 4 * rt + 3)}, {v(RC + 4 * rt + 2)}
        v_mul_f32 {v(KC + 4)}, {v(KC + 4)}, {v(rho)}
        v_mul_f32 {v(KC + 2)}, s47, {v(KC + 4)}
        v_mul_f32 {v(KC + 3)}, s47, {v(KC + 4)}
        ''')
        rc = v(RC + 4 * rt + 2, 2)
        for i in range(0, 8, 2):
            a(f'v_pk_mul_f32 {v(TT + i, 2)}, {v(G_(i), 2)}, {v(G_(i), 2)}')
        for i in range(0, 8, 2):
            a(f'v_pk_fma_f32 {v(TT + i, 2)}, {v(TT + i, 2)}, {v(KC + 2, 2)}, {v(KC, 2)}')
        for i in range(0, 8, 2):
            a(f'v_pk_mul_f32 {v(TT + i, 2)}, {v(TT + i, 2)}, {v(G_(i), 2)}')
        for i in range(8):
            a(f'v_exp_f32 {v(TT + i)}, {v(TT + i)}')
        for i in range(0, 8, 2):
            a(f'v_pk_mul_f32 {v(PP + i, 2)}, {v(G_(i), 2)}, {v(G_(i) + 16, 2)}')
        for i in range(0, 8, 2):
            a(f'v_pk_fma_f32 {v(TT + i, 2)}, {v(TT + i, 2)}, {rc}, {rc}')
        for i in range(8):
            a(f'v_rcp_f32 {v(TT + i)}, {v(TT + i)}')
        a('s_nop 0')
        for i in range(0, 8, 2):
            a(f'v_pk_mul_f32 {v(PP + i, 2)}, {v(PP + i, 2)}, {v(TT + i, 2)}')
        for i in range(4):
            a(f'v_cvt_pk_bf16_f32 {v(HH + 4 * rt + i)}, {v(PP + 2 * i)}, {v(PP + 2 * i + 1)}')
    a(f's_branch {L_ed}')
    a(f'{L_q}:')
    a(f'''
    s_sub_u32 s44, s26, 2
    s_lshl_b32 s44, s44, 6
    s_add_u32 s44, s44, s50
    s_lshl_b32 s44, s44, 6
    s_add_u32 s44, s44, {QF_OFF}
    s_mov_b32 s45, {f2u(QSC)}
    s_mul_i32 s46, s60, 40960
    s_add_u32 s46, s46, s44
    s_add_u32 s47, s46, 40960
    ''')
    for rt in range(4):
        a(f'v_mul_f32 {v(T + rt)}, s45, {v(RC + 4 * rt + 1)}')
    for rt in range(4):
        for pz in range(2):
            O_ = E1 + 4 * ((2 * rt + pz) % 8)
            regs = [ACC + 16 * (2 * pz + (i >> 2)) + 4 * rt + (i & 3) for i in range(8)]
            for r_ in regs:
                a(f'v_mul_f32 {v(r_)}, {v(r_)}, {v(T + rt)}')
            for i in range(4):
                a(f'v_cvt_pk_bf16_f32 {v(O_ + i)}, {v(regs[2 * i])}, {v(regs[2 * i + 1])}')
            a(f'buffer_store_dwordx4 {v(O_, 4)}, {v(vS16)}, s[20:23], s{46 + (rt >> 1)} offen offset:{2048 * pz + 256 * (rt & 1)} sc1')
    a(f'{L_ed}:')
    stamp(a, 13)

    a.c('=========== compute wave: attention ===========')
    al3 = Alloc(4, 168)
    T = al3('T', 16, 4)
    S = al3('S', 32, 4)
    O = al3('O', 16, 4)
    V1 = al3('V1', 4, 4)
    V2 = al3('V2', 4, 4)
    Q1 = al3('Q1', 4, 4)
    K1 = al3('K1', 8, 4)
    K2 = al3('K2', 8, 4)
    P = al3('P', 16, 4)
    Q2 = al3('Q2', 2, 2)
    vK = al3('vK')
    vK2 = al3('vK2')
    a(f'''
    s_lshl_b32 s44, s27, 1
    s_add_u32 s44, s44, s25
    s_lshl_b32 s44, s44, 13
    s_lshl_b32 s45, s28, 2
    s_add_u32 s45, s45, s26
    s_lshl_b32 s45, s45, 7
    s_add_u32 s44, s44, s45
    s_add_u32 s41, s44, {F_QH}
    s_nop 1
    ''')
    for i in range(16):
        a(f'v_mov_b32 {v(O + i)}, 0')
    for i in range(4):
        a(f'v_mov_b32 {v(V1 + i)}, 0')
        a(f'v_mov_b32 {v(V2 + i)}, 0')
    a(f'''
    s_mov_b32 s45, {KVR}
    v_lshl_add_u32 {v(vK)}, {v(vL)}, 4, s45
    v_lshl_add_u32 {v(vK2)}, {v(vL)}, 3, s45
    s_mul_i32 s45, s24, 5
    v_lshlrev_b32 {v(T + 4)}, 4, {v(vR)}
    s_lshr_b32 s44, s30, 2
    s_lshl_b32 s46, s29, 1
    s_add_u32 s44, s44, s46
    s_mul_i32 s44, s44, 40960
    s_and_b32 s46, s30, 3
    s_mul_i32 s46, s46, 10240
    s_add_u32 s44, s44, s46
    s_add_u32 s40, s44, {QF_OFF}
    ''')
    for z, (dq, useh) in enumerate(((0, 1), (2, 1), (4, 0))):
        a(f's_add_u32 s46, s45, {dq}')
        a(f'v_add_u32 {v(T + 5)}, s46, {v(vH)}' if useh else f'v_mov_b32 {v(T + 5)}, s46')
        a(f'''
        v_lshrrev_b32 {v(T + 6)}, 3, {v(T + 5)}
        v_lshl_add_u32 {v(T + 6)}, {v(T + 6)}, 11, {v(T + 4)}
        v_and_b32 {v(T + 7)}, 3, {v(T + 5)}
        v_lshl_add_u32 {v(T + 6)}, {v(T + 7)}, 9, {v(T + 6)}
        v_bfe_u32 {v(T + 5)}, {v(T + 5)}, 2, 1
        v_lshl_add_u32 {v(T + 13 + z)}, {v(T + 5)}, 3, {v(T + 6)}
        ''')
    a('s_setprio 0')
    for i in range(8):
        a(f'v_mov_b32 {v(P + 8 + i)}, 0')
    Lp, Lq = a.label('qp'), a.label('qpd')
    a(f'''
    s_mov_b32 s93, {OPOLL_MAX}
    {Lp}:
    buffer_load_dwordx2 {v(Q1, 2)}, {v(T + 13)}, s[20:23], s40 offen sc1
    buffer_load_dwordx2 {v(Q1 + 2, 2)}, {v(T + 14)}, s[20:23], s40 offen sc1
    buffer_load_dwordx2 {v(Q2, 2)}, {v(T + 15)}, s[20:23], s40 offen sc1
    s_waitcnt vmcnt(0)
    v_max3_u32 {v(T)}, {v(Q1)}, {v(Q1 + 1)}, {v(Q1 + 2)}
    v_max3_u32 {v(T + 1)}, {v(Q1 + 3)}, {v(Q2)}, {v(Q2 + 1)}
    v_max_u32 {v(T)}, {v(T)}, {v(T + 1)}
    v_cmp_eq_u32 vcc, -1, {v(T)}
    s_nop 1
    s_cmp_eq_u64 vcc, 0
    s_cbranch_scc1 {Lq}
    s_sub_u32 s93, s93, 1
    s_cbranch_scc1 {Lq}
    s_sleep {QSLEEP}
    s_branch {Lp}
    {Lq}:
    v_mov_b32 {v(T + 2)}, 0
    v_cndmask_b32 {v(Q2)}, {v(Q2)}, {v(T + 2)}, {HM}
    v_cndmask_b32 {v(Q2 + 1)}, {v(Q2 + 1)}, {v(T + 2)}, {HM}
    ''')
    stamp(a, 14)
    a('s_barrier')
    stamp(a, 15)
    o0, o1, o2 = tile_offs(0), tile_offs(1), tile_offs(2)
    a(f'''
    ds_read_b128 {v(K1, 4)}, {v(vK)} offset:{o0[0]}
    ds_read_b128 {v(K1 + 4, 4)}, {v(vK)} offset:{o1[0]}
    ds_read2st64_b64 {v(K2, 4)}, {v(vK2)} offset0:{o0[1] // 512} offset1:{o0[1] // 512 + 1}
    s_waitcnt lgkmcnt(0)
    ''')

    def set_m(mreg, offset):
        t0, t1, t2, t3 = T + 8, T + 9, T + 10, T + 11
        a(f'v_sub_f32 {v(t0)}, {f2u(-offset) if offset else 0}, {v(mreg)}')
        a(f'''
        v_cvt_pk_bf16_f32 {v(t1)}, {v(t0)}, {v(t0)}
        v_and_b32 {v(t2)}, 0xffff0000, {v(t1)}
        v_sub_f32 {v(t2)}, {v(t0)}, {v(t2)}
        v_cvt_pk_bf16_f32 {v(t1)}, {v(t0)}, {v(t2)}
        v_and_b32 {v(t3)}, 0xffff0000, {v(t1)}
        v_sub_f32 {v(t2)}, {v(t2)}, {v(t3)}
        v_mov_b32 {v(t3)}, 0
        v_cvt_pk_bf16_f32 {v(t2)}, {v(t2)}, {v(t3)}
        v_cndmask_b32 {v(Q2)}, {v(Q2)}, {v(t1)}, {HM}
        v_cndmask_b32 {v(Q2 + 1)}, {v(Q2 + 1)}, {v(t2)}, {HM}
        ''')

    def cross_half_max(reg):
        t = T + 12
        a(f'''
        v_mov_b32 {v(t)}, {v(reg)}
        s_nop 1
        v_permlane32_swap_b32 {v(reg)}, {v(t)}
        s_nop 1
        v_max_f32 {v(reg)}, {v(reg)}, {v(t)}
        ''')

    for t in range(2):
        a(mfma16(S + 16 * t, K1 + 4 * t, Q1))
    if HST < 0:
        lab = a.label('nohst')
        a(f'''
        s_cmp_eq_u32 s57, 1
        s_cbranch_scc1 {lab}
        ''')
        for k in range(4):
            a(f'buffer_store_dwordx4 {v(HH + 4 * k, 4)}, {v(vS16)}, s[20:23], s{42 + (k >> 1)} offen offset:{256 * (k & 1)} sc1')
        a(f'{lab}:')
    a('s_nop 9')
    for t in range(2):
        a(mfma8(S + 16 * t, K2 + 2 * t, Q2, S + 16 * t))
    a('s_nop 11')
    m = T + 4
    for z in range(2):
        a(f'v_max3_f32 {v(m + z)}, {v(S + 16 * z)}, {v(S + 16 * z + 1)}, {v(S + 16 * z + 2)}')
    for i in range(3, 15, 2):
        for z in range(2):
            a(f'v_max3_f32 {v(m + z)}, {v(m + z)}, {v(S + 16 * z + i)}, {v(S + 16 * z + i + 1)}')
    a(f'v_max3_f32 {v(m)}, {v(m)}, {v(S + 15)}, {v(S + 31)}')
    a(f'v_max_f32 {v(m)}, {v(m)}, {v(m + 1)}')
    cross_half_max(m)
    set_m(m, M_OFFSET)
    a('s_nop 1')
    a(mfma16(S, K1, Q1))
    a(f'''
    ds_read_b128 {v(K1, 4)}, {v(vK)} offset:{o2[0]}
    s_mov_b32 s34, 4
    s_nop 7
    ''')
    a(mfma8(S, K2, Q2, S))
    a('s_nop 9')
    stamp(a, 16)

    def toff(tt):
        tt &= 15
        o = tile_offs(tt & 3)
        return [x + (tt >> 2) * CH_BYTES for x in o]

    def k2read(reg, tt):
        o = toff(tt)[1]
        assert o % 512 == 0
        return f'ds_read2st64_b64 {v(reg, 4)}, {v(vK2)} offset0:{o // 512} offset1:{o // 512 + 1}'

    L_hf, L_hb = a.label('hflag'), a.label('hback')
    L_hs, L_hsb = a.label('hst'), a.label('hstb')
    a('s_cmp_eq_u32 s57, 1\ns_cselect_b32 s33, 99, 4')

    def slot(t):
        Sx, Sn = S + 16 * (t & 1), S + 16 * ((t + 1) & 1)
        Px, Pp = P + 8 * (t & 1), P + 8 * ((t + 1) & 1)
        kt = t + 1
        kb = kt & 1
        k2 = K2 + 4 * ((kt >> 1) & 1) + 2 * (kt & 1)
        m_ = [mfma16(Sn, K1 + 4 * kb, Q1), mfma16(O, V1, Pp, O), mfma8(Sn, k2, Q2, Sn), mfma16(O, V2, Pp + 4, O)]
        after = [[], [], [], []]
        if t & 3 == 1:
            after[0] = ['s_barrier']
        after[0] += [f'ds_read_b128 {v(K1 + 4 * kb, 4)}, {v(vK)} offset:{toff(t + 3)[0]}', 's_waitcnt lgkmcnt(2)']
        after[1] = [f'ds_read_b128 {v(V1, 4)}, {v(vK)} offset:{toff(t)[2]}']
        if t & 1:
            after[1] += [k2read(K2 + 4 * (((t + 3) >> 1) & 1), t + 3)]
        after[2] += [f's_waitcnt lgkmcnt({3 if t & 1 else 2})']
        after[3] = [f'ds_read_b128 {v(V2, 4)}, {v(vK)} offset:{toff(t)[3]}']
        if t == 15:
            after[3] += ['s_sub_u32 s34, s34, 1']
        if t == HST:
            after[3] += ['s_cmp_eq_u32 s34, s33', f's_cbranch_scc1 {L_hs}', f'{L_hsb}:']
        if t == HFLAG_T:
            after[3] += ['s_cmp_eq_u32 s34, 4', f's_cbranch_scc1 {L_hf}', f'{L_hb}:']
        val = []
        for i in range(8):
            val.append(f'v_exp_f32 {v(Sx + 2 * i)}, {v(Sx + 2 * i)}')
            val.append(f'v_exp_f32 {v(Sx + 2 * i + 1)}, {v(Sx + 2 * i + 1)}')
            if i > 0:
                val.append(f'v_cvt_pk_bf16_f32 {v(Px + i - 1)}, {v(Sx + 2 * i - 2)}, {v(Sx + 2 * i - 1)}')
        val.append(f'v_cvt_pk_bf16_f32 {v(Px + 7)}, {v(Sx + 14)}, {v(Sx + 15)}')
        groups = [val[0:5], val[5:11], val[11:17], val[17:24]]
        for g in range(4):
            a(m_[g])
            emit(a, after[g])
            emit(a, groups[g])

    a(k2read(K2 + 4, 2))
    L_loop = a.label('att')
    a('.p2align 6')
    a(f'{L_loop}:')
    for t in range(16):
        slot(t)
    a(f'''
    s_cmp_lg_u32 s34, 0
    s_cbranch_scc1 {L_loop}
    s_waitcnt lgkmcnt(0)
    ''')
    a(mfma16(O, V1, P + 8, O))
    a(mfma16(O, V2, P + 12, O))
    a(f'''
    v_lshlrev_b32 {v(T + 2)}, 4, {v(vL)}
    v_lshlrev_b32 {v(T + 3)}, 3, {v(vL)}
    v_mov_b32 {v(T + 9)}, 0x7f000000
    v_cndmask_b32 {v(T + 3)}, {v(T + 3)}, {v(T + 9)}, {HM}
    v_lshlrev_b32 {v(T + 4)}, 3, {v(vR)}
    v_lshl_add_u32 {v(T + 4)}, {v(vH)}, 9, {v(T + 4)}
    v_mov_b32 {v(T + 5)}, {SX_A}
    ds_read_b32 {v(T + 5)}, {v(T + 5)}
    s_nop 4
    ''')
    stamp(a, 17)
    L_fb = a.label('fb')
    L_out = a.label('aout')
    a(f'''
    s_mov_b32 s44, {f2u(2.0 ** 120)}
    s_mov_b32 s45, {f2u(2.0 ** -103)}
    v_add_f32 {v(T)}, |{v(O)}|, |{v(O + 1)}|
    ''')
    for i in range(2, 12):
        a(f'v_add_f32 {v(T)}, {v(T)}, |{v(O + i)}|')
    a(f'''
    v_add_f32 {v(T + 1)}, {v(T)}, {v(O + 12)}
    s_waitcnt lgkmcnt(0)
    v_readfirstlane_b32 s38, {v(T + 5)}
    v_cmp_le_f32 s[46:47], s45, {v(T)}
    v_cmp_gt_f32 s[48:49], s44, {v(T + 1)}
    s_nop 1
    s_and_b64 s[46:47], s[46:47], s[48:49]
    s_cmp_eq_u64 s[46:47], -1
    s_cbranch_scc0 {L_fb}
    {L_out}:
    v_rcp_f32 {v(T)}, {v(O + 12)}
    v_rcp_f32 {v(T + 1)}, {v(O + 12)}
    s_nop 0
    ''')
    for i in range(0, 12, 2):
        a(f'v_pk_mul_f32 {v(O + i, 2)}, {v(O + i, 2)}, {v(T, 2)}')
    for i in range(6):
        a(f'v_cvt_pk_bf16_f32 {v(P + i)}, {v(O + 2 * i)}, {v(O + 2 * i + 1)}')
    L_pl, L_st = a.label('oplain'), a.label('ostored')
    a(f'''
    s_cmp_eq_u32 s38, s98
    s_cbranch_scc1 {L_pl}
    buffer_store_dwordx4 {v(P, 4)}, {v(T + 2)}, s[20:23], s36 offen sc1
    buffer_store_dwordx2 {v(P + 4, 2)}, {v(T + 3)}, s[20:23], s37 offen sc1
    s_branch {L_st}
    {L_pl}:
    buffer_store_dwordx4 {v(P, 4)}, {v(T + 2)}, s[20:23], s36 offen
    buffer_store_dwordx2 {v(P + 4, 2)}, {v(T + 3)}, s[20:23], s37 offen
    {L_st}:
    ''')
    stamp(a, 18)
    g2_ids(a)
    OFR = 120
    a(f'''
    s_cmp_eq_u32 s25, 1
    s_cselect_b32 s44, s60, s59
    s_mul_i32 s44, s44, 40960
    s_add_u32 s44, s44, {OF_OFF}
    s_lshl_b32 s45, s26, 13
    s_add_u32 s38, s44, s45
    s_add_u32 s38, s38, 3072
    s_add_u32 s39, s38, 4096
    s_lshl_b32 s45, s26, 11
    s_add_u32 s40, s44, s45
    s_add_u32 s40, s40, 32768
    s_mul_i32 s44, s26, 14336
    s_lshl_b32 s45, s25, 10
    s_add_u32 s44, s44, s45
    s_add_u32 s44, s44, {OL_A}
    v_add_u32 {v(T + 5)}, s44, {v(T + 2)}
    s_barrier
    ''')
    Lp, Lq = a.label('cop'), a.label('copd')
    a(f's_mov_b32 s93, {OPOLL_MAX}\n{Lp}:')
    for q in range(5):
        a(f'buffer_load_dwordx4 {v(OFR + 4 * q, 4)}, {v(T + 2)}, s[20:23], {"s38" if q < 4 else "s39"} offen offset:{1024 * (q & 3)} sc1')
    for q in range(4):
        a(f'buffer_load_dwordx2 {v(OFR + 20 + 2 * q, 2)}, {v(T + 4)}, s[20:23], s40 offen offset:{1024 * (q >> 1) + 256 * (q & 1)} sc1')
    a('s_waitcnt vmcnt(0)')
    a(f'v_max3_u32 {v(T)}, {v(OFR)}, {v(OFR + 1)}, {v(OFR + 2)}')
    for i in range(3, 27, 2):
        a(f'v_max3_u32 {v(T)}, {v(T)}, {v(OFR + i)}, {v(OFR + i + 1)}')
    a(f'''
    v_max_u32 {v(T)}, {v(T)}, {v(OFR + 27)}
    v_cmp_eq_u32 vcc, -1, {v(T)}
    s_nop 1
    s_cmp_eq_u64 vcc, 0
    s_cbranch_scc1 {Lq}
    s_sub_u32 s93, s93, 1
    s_cbranch_scc1 {Lq}
    s_sleep {OSLEEP}
    s_branch {Lp}
    {Lq}:
    ''')
    for q in range(7):
        a(f'ds_write_b128 {v(T + 5)}, {v(OFR + 4 * q, 4)} offset:{2048 * q}')
    stamp(a, 21)
    if FFL:
        a(f'''
        s_lshl_b32 s44, s24, 2
        s_add_u32 s44, s44, {OW_A}
        v_mov_b32 {v(T)}, s44
        v_mov_b32 {v(T + 1)}, s98
        s_waitcnt lgkmcnt(0)
        ds_write_b32 {v(T)}, {v(T + 1)}
        ''')
    g2_out(a, S, vL, 's24', 0)
    if not FFL:
        a('s_waitcnt lgkmcnt(0)')
        a('s_barrier')
    a('s_barrier')
    stamp(a, 19)
    g2_out(a, S, vL, 's24', 1)
    if asmlib.STAMPS:
        a('s_waitcnt vmcnt(0)')
    stamp(a, 20)
    diag_end(a)
    a(f's_branch {L_end}')

    if HST >= 0:
        a(f'{L_hs}:')
        for k in range(4):
            a(f'buffer_store_dwordx4 {v(HH + 4 * k, 4)}, {v(vS16)}, s[20:23], s{42 + (k >> 1)} offen offset:{256 * (k & 1)} sc1')
        a(f's_branch {L_hsb}')
    a(f'{L_hf}:')
    a('s_waitcnt vmcnt(0)')
    flag_store(a, 's41', T + 2)
    a(f's_branch {L_hb}')
    a(f'{L_fb}:')
    L1 = a.label('fb1')
    L2 = a.label('fb2')
    a(f'''
    v_lshlrev_b32 {v(T + 13)}, 4, {v(vL)}
    v_lshlrev_b32 {v(T + 7)}, 3, {v(vL)}
    v_mov_b32 {v(T + 14)}, 0
    v_mov_b32 {v(T + 15)}, 0xff800000
    v_cndmask_b32 {v(Q2)}, {v(Q2)}, {v(T + 14)}, {HM}
    v_cndmask_b32 {v(Q2 + 1)}, {v(Q2 + 1)}, {v(T + 14)}, {HM}
    s_mov_b32 s77, {KV_OFF}
    s_mov_b32 s34, 32
    {L1}:
    buffer_load_dwordx4 {v(K1, 4)}, {v(T + 13)}, s[20:23], s77 offen sc1
    buffer_load_dwordx4 {v(K1 + 4, 4)}, {v(T + 13)}, s[20:23], s77 offen offset:1024 sc1
    buffer_load_dwordx2 {v(K2, 2)}, {v(T + 7)}, s[20:23], s77 offen offset:2048 sc1
    buffer_load_dwordx2 {v(K2 + 2, 2)}, {v(T + 7)}, s[20:23], s77 offen offset:2560 sc1
    s_waitcnt vmcnt(0)
    ''')
    for t in range(2):
        a(mfma16(S + 16 * t, K1 + 4 * t, Q1))
    a('s_nop 9')
    for t in range(2):
        a(mfma8(S + 16 * t, K2 + 2 * t, Q2, S + 16 * t))
    a('s_nop 15')
    for i in range(0, 32, 2):
        a(f'v_max3_f32 {v(T + 15)}, {v(T + 15)}, {v(S + i)}, {v(S + i + 1)}')
    a(f'''
    s_add_u32 s77, s77, 7168
    s_sub_u32 s34, s34, 1
    s_cmp_lg_u32 s34, 0
    s_cbranch_scc1 {L1}
    ''')
    cross_half_max(T + 15)
    set_m(T + 15, 0.0)
    for i in range(16):
        a(f'v_mov_b32 {v(O + i)}, 0')
    a(f'''
    s_mov_b32 s77, {KV_OFF}
    s_mov_b32 s34, 64
    {L2}:
    s_and_b32 s78, s34, 1
    s_lshl_b32 s79, s78, 10
    s_add_u32 s79, s79, s77
    s_lshl_b32 s80, s78, 9
    s_add_u32 s80, s80, s77
    s_lshl_b32 s81, s78, 11
    s_add_u32 s81, s81, s77
    s_add_u32 s81, s81, 3072
    buffer_load_dwordx4 {v(K1, 4)}, {v(T + 13)}, s[20:23], s79 offen sc1
    buffer_load_dwordx2 {v(K2, 2)}, {v(T + 7)}, s[20:23], s80 offen offset:2048 sc1
    buffer_load_dwordx4 {v(V1, 4)}, {v(T + 13)}, s[20:23], s81 offen sc1
    buffer_load_dwordx4 {v(V2, 4)}, {v(T + 13)}, s[20:23], s81 offen offset:1024 sc1
    s_waitcnt vmcnt(0)
    {mfma16(S, K1, Q1)}
    s_nop 10
    {mfma8(S, K2, Q2, S)}
    s_nop 15
    ''')
    for i in range(16):
        a(f'v_exp_f32 {v(S + i)}, {v(S + i)}')
    a('s_nop 0')
    for i in range(8):
        a(f'v_cvt_pk_bf16_f32 {v(P + i)}, {v(S + 2 * i)}, {v(S + 2 * i + 1)}')
    a(f'''
    s_nop 1
    {mfma16(O, V1, P, O)}
    {mfma16(O, V2, P + 4, O)}
    s_mul_i32 s78, s78, 7168
    s_add_u32 s77, s77, s78
    s_sub_u32 s34, s34, 1
    s_cmp_lg_u32 s34, 0
    s_cbranch_scc1 {L2}
    s_nop 15
    s_branch {L_out}
    ''')


def g2_ids(a):
    a('''
    s_lshr_b32 s57, s30, 1
    s_and_b32 s58, s30, 1
    s_lshl_b32 s44, s29, 1
    s_add_u32 s59, s44, s58
    s_xor_b32 s60, s59, 1
    s_mul_i32 s44, s57, 320
    s_lshl_b32 s45, s58, 7
    s_add_u32 s61, s44, s45
    ''')


def g2_out(a, T, vL, wsg, part):
    L_skip = a.label('g2o')
    a(f'''
    s_cmp_ge_u32 {wsg}, 10
    s_cbranch_scc1 {L_skip}
    ''')
    if part == 0:
        a(f'''
        s_lshr_b32 s45, {wsg}, 1
        s_and_b32 s46, {wsg}, 1
        s_lshl_b32 s46, s46, 4
        v_lshrrev_b32 {v(T)}, 2, {v(vL)}
        v_add_u32 {v(T)}, s46, {v(T)}
        v_and_b32 {v(T + 1)}, 3, {v(vL)}
        s_and_b32 s47, s45, 1
        s_cmp_eq_u32 s47, 1
        s_cselect_b32 s47, s60, s59
        s_mul_i32 s47, s47, {32 * 1280}
        s_lshr_b32 s48, s45, 1
        s_add_u32 s49, s48, s58
        s_lshl_b32 s49, s49, 6
        s_lshl_b32 s50, s58, 7
        s_sub_u32 s50, 128, s50
        s_cmp_eq_u32 s48, 2
        s_cselect_b32 s49, s50, s49
        s_add_u32 s47, s47, s49
        s_add_u32 s31, s47, s61
        v_mul_u32_u24 {v(T + 6)}, 1280, {v(T)}
        v_lshl_add_u32 {v(T + 6)}, {v(T + 1)}, 4, {v(T + 6)}
        buffer_load_dwordx4 {v(T + 2, 4)}, {v(T + 6)}, s[8:11], s31 offen
        v_lshlrev_b32 {v(T + 1)}, 1, {v(T + 1)}
        v_and_b32 {v(T + 7)}, 7, {v(T)}
        v_xor_b32 {v(T + 1)}, {v(T + 1)}, {v(T + 7)}
        v_lshlrev_b32 {v(T)}, 7, {v(T)}
        v_lshl_add_u32 {v(T)}, {v(T + 1)}, 4, {v(T)}
        s_lshl_b32 s47, s45, 12
        v_add_u32 {v(T)}, s47, {v(T)}
        v_xor_b32 {v(T + 1)}, 16, {v(T)}
        ''')
    else:
        for w in range(4):
            if w == 2:
                a(f'v_add_u32 {v(T)}, {WO_HI}, {v(T)}\nv_add_u32 {v(T + 1)}, {WO_HI}, {v(T + 1)}')
            a(f'ds_read_b128 {v(T + 8 + 8 * w, 4)}, {v(T)} offset:{21504 * (w & 1)}')
            a(f'ds_read_b128 {v(T + 12 + 8 * w, 4)}, {v(T + 1)} offset:{21504 * (w & 1)}')
        a('s_waitcnt vmcnt(0)')
        for i in range(4):
            a(f'''
            v_lshlrev_b32 {v(T + 40 + 2 * i)}, 16, {v(T + 2 + i)}
            v_and_b32 {v(T + 41 + 2 * i)}, 0xffff0000, {v(T + 2 + i)}
            ''')
        a('s_waitcnt lgkmcnt(4)')
        for i in range(0, 8, 2):
            a(f'v_pk_add_f32 {v(T + 8 + i, 2)}, {v(T + 8 + i, 2)}, {v(T + 16 + i, 2)}')
        for i in range(0, 8, 2):
            a(f'v_pk_add_f32 {v(T + 8 + i, 2)}, {v(T + 8 + i, 2)}, {v(T + 40 + i, 2)}')
        a('s_waitcnt lgkmcnt(0)')
        for i in range(0, 8, 2):
            a(f'v_pk_add_f32 {v(T + 24 + i, 2)}, {v(T + 24 + i, 2)}, {v(T + 32 + i, 2)}')
        for i in range(0, 8, 2):
            a(f'v_pk_add_f32 {v(T + 8 + i, 2)}, {v(T + 8 + i, 2)}, {v(T + 24 + i, 2)}')
        for i in range(4):
            a(f'v_cvt_pk_bf16_f32 {v(T + 16 + i)}, {v(T + 8 + 2 * i)}, {v(T + 9 + 2 * i)}')
        a(f'buffer_store_dwordx4 {v(T + 16, 4)}, {v(T + 6)}, s[64:67], s31 offen{OUTSC}')
    a(f'{L_skip}:')


def aux_wave(a, vL, vH, vR, L_end, WDP, a_start):
    al = Alloc(4, 168)
    T = al('T', 16, 4)
    vXD = al('xd', 2)
    vWD = al('wd', 2)
    vKD = al('kd')
    vKX = al('kx')
    vKW = al('kw')
    XR = al('xr', 10, 2)
    CR = al('cr', 20, 2)
    PF = al('pf', 2)
    AKV = al('akv', 16, 4)
    KXF = al('kxf', 4, 4)
    KWF = al('kwf', 4, 4)
    FX = al('fx', 16, 4)
    RD = al('rd', 48, 4)
    JA = al('ja', 2, 2)
    JS = al('js')
    t0, t1, t2, t3, t4, t5 = T, T + 1, T + 2, T + 3, T + 4, T + 5
    vm = VM()
    a.c('=========== aux wave: phase 1 ===========')
    assert (vXD, vWD, vKD) == (20, 22, 24)

    def dma_group(c, kvonly=False):
        st = c % 3
        lab = a.label('nokv')
        a(f'''
        {f's_add_u32 s35, s100, {c}' if ROT else f's_and_b32 s35, s100, {7 if c < 8 else 1}'}
        {'s_sub_u32 s34, s35, 10' if ROT else f's_xor_b32 s35, s35, {c}'}
        {'s_cselect_b32 s35, s35, s34' if ROT else ''}
        s_mul_i32 s33, s32, s35
        s_mul_i32 s34, s35, 2560
        s_lshl_b32 s35, s35, 7
        s_cmp_eq_u32 s40, 0
        s_cbranch_scc1 {lab}
        s_add_u32 m0, s38, {st * 3072}
        s_nop 0
        buffer_load_dwordx4 {v(vKD)}, s[16:19], s34 offen lds
        {lab}:
        ''')
        vm.add(f'c{c}', 1, optional=True)
        if kvonly or (NODMA and c > 2):
            vm.add(f'c{c}', 1, optional=True)
            return
        for e in range(4):
            a(f'''
            s_add_u32 m0, s36, {LDS_X + st * 16384 + e * 1024}
            s_add_u32 s34, s35, {(e >> 1) * 16 * 1280}
            buffer_load_dwordx4 {v(vXD + (e & 1))}, s[8:11], s34 offen lds
            ''')
        for e in range(8):
            a(f'''
            s_add_u32 m0, s37, {st * 8192 + e * 1024}
            s_nop 0
            buffer_load_dwordx4 {v(vWD + (e & 1))}, s[12:15], s33 offen lds
            ''')
            if e < 7:
                a('s_add_u32 s33, s33, s31')
        vm.add(f'c{c}', 12)

    vm.add('c0', 4)
    vm.add('c0', 1, optional=True)
    if not LATE1:
        vm.add('c1', 4)
        vm.add('c1', 1, optional=True)

    def jit(c):
        if not JIT or c > 9:
            return
        lab = a.label('nojit')
        a(f'''
        s_cmp_lg_u32 s26, 3
        s_cbranch_scc1 {lab}
        global_load_dword v165, {v(JA, 2)}, off
        v_add_co_u32 {v(JA)}, vcc, {v(JA)}, {v(JS)}
        s_nop 1
        v_addc_co_u32 {v(JA + 1)}, vcc, 0, {v(JA + 1)}, vcc
        {lab}:
        ''')
        vm.add('jit', 1, optional=True)

    if JIT:
        a(f'v_mov_b32 {v(JA)}, s68\nv_mov_b32 {v(JA + 1)}, s69')
        lab = a.label('nojs')
        a(f'''
        s_cmp_lg_u32 s26, 3
        s_cbranch_scc1 {lab}
        s_lshr_b32 s44, s2, 3
        s_and_b32 s45, s44, 7
        s_lshr_b32 s46, s44, 3
        s_lshl_b32 s46, s46, 5
        s_lshl_b32 s47, s27, 7
        s_add_u32 s46, s46, s47
        v_add_u32 {v(t0)}, s46, {v(vR)}
        v_mul_u32_u24 {v(t0)}, 1280, {v(t0)}
        v_add_u32 {v(t0)}, {128 * JIT}, {v(t0)}
        v_bfe_u32 {v(t1)}, {v(vL)}, 3, 1
        v_bfe_u32 {v(t2)}, {v(vL)}, 4, 1
        v_and_b32 {v(t3)}, s48, {v(t1)}
        v_cmp_eq_u32 s[58:59], 1, {v(t3)}
        v_cmp_eq_u32 s[60:61], 1, {v(t2)}
        v_mov_b32 {v(t4)}, 3456
        v_mov_b32 {v(t5)}, 1280
        v_cndmask_b32 {v(t4)}, {v(t4)}, {v(t5)}, s[58:59]
        s_xor_b32 s44, s48, 1
        v_and_b32 {v(t5)}, s44, {v(t1)}
        v_lshlrev_b32 {v(t5)}, 6, {v(t5)}
        v_add_u32 {v(t5)}, s49, {v(t5)}
        v_lshlrev_b32 {v(t3)}, 6, {v(t2)}
        v_add_u32 {v(t3)}, s50, {v(t3)}
        v_cndmask_b32 {v(t5)}, {v(t5)}, {v(t3)}, s[58:59]
        s_lshl_b32 s45, s45, 3
        s_add_u32 s45, s45, {64 * JIT}
        v_and_b32 {v(t3)}, 7, {v(vL)}
        v_add_u32 {v(t3)}, s45, {v(t3)}
        v_mul_lo_u32 {v(t3)}, {v(t3)}, {v(t4)}
        v_lshl_add_u32 {v(t3)}, {v(t5)}, 1, {v(t3)}
        v_cndmask_b32 {v(t0)}, {v(t0)}, {v(t3)}, {HM}
        v_lshlrev_b32 {v(t4)}, 6, {v(t4)}
        v_mov_b32 {v(t5)}, 128
        v_cndmask_b32 {v(JS)}, {v(t5)}, {v(t4)}, {HM}
        ''')
        for z in range(2):
            a(f'''
            v_mov_b32 {v(t1)}, s{80 + z}
            v_mov_b32 {v(t2)}, s{82 + z}
            v_cndmask_b32 {v(t1)}, {v(t1)}, {v(t2)}, s[60:61]
            v_mov_b32 {v(t2)}, s{70 + z}
            v_cndmask_b32 {v(t1)}, {v(t1)}, {v(t2)}, s[58:59]
            v_mov_b32 {v(t2)}, s{68 + z}
            v_cndmask_b32 {v(JA + z)}, {v(t2)}, {v(t1)}, {HM}
            ''')
        a(f'''
        v_add_co_u32 {v(JA)}, vcc, {v(JA)}, {v(t0)}
        s_nop 1
        v_addc_co_u32 {v(JA + 1)}, vcc, 0, {v(JA + 1)}, vcc
        {lab}:
        ''')
        for c in range(JIT, JITD):
            jit(c)
    srd(a, 4, 76, 256)
    lab = a.label('nononce')
    a(f'''
    s_or_b32 s44, s2, s26
    s_cmp_lg_u32 s44, 0
    s_cbranch_scc1 {lab}
    s_memrealtime s[44:45]
    s_waitcnt lgkmcnt(0)
    s_or_b32 s44, s44, 1
    v_mov_b32 {v(t0)}, s44
    s_mov_b64 exec, 1
    buffer_store_dword {v(t0)}, off, s[4:7], 0 sc1
    s_mov_b64 exec, -1
    {lab}:
    ''')
    vm.add('nonce', 1, optional=True)
    a(f'''
    s_and_b32 s56, s28, 3
    v_lshrrev_b32 {v(t0)}, 1, {v(vR)}
    v_and_b32 {v(t0)}, 7, {v(t0)}
    v_xor_b32 {v(t0)}, {v(t0)}, {v(vH)}
    s_lshl_b32 s44, s26, 1
    v_xor_b32 {v(t0)}, s44, {v(t0)}
    v_lshlrev_b32 {v(t3)}, 7, {v(vR)}
    v_lshl_add_u32 {v(t0)}, {v(t0)}, 4, {v(t3)}
    s_lshl_b32 s44, s56, 12
    v_add_u32 {v(vKX)}, s44, {v(t0)}
    v_bfe_u32 {v(t0)}, {v(vL)}, 2, 2
    v_lshl_add_u32 {v(t0)}, {v(vH)}, 3, {v(t0)}
    v_mul_u32_u24 {v(t0)}, 40, {v(t0)}
    v_bfe_u32 {v(t3)}, {v(vL)}, 4, 1
    v_and_b32 {v(t4)}, 3, {v(vL)}
    v_lshl_add_u32 {v(t3)}, {v(t3)}, 2, {v(t4)}
    v_min_u32 {v(t3)}, 4, {v(t3)}
    v_lshl_add_u32 {v(t0)}, {v(t3)}, 3, {v(t0)}
    s_mul_i32 s44, s26, 640
    s_add_u32 s44, s44, {LDS_KV}
    v_add_u32 {v(vKW)}, s44, {v(t0)}
    ''')
    for i in range(16):
        a(f'v_mov_b32 {v(AKV + i)}, 0')

    if LATE1:
        a_start(1)
        vm.add('c1', 4)
        vm.add('c1', 1, optional=True)

    def colsum(src_tag_wait, store_code):
        a(f's_waitcnt vmcnt({src_tag_wait})')
        a(f'''
        v_lshlrev_b32 {v(t0)}, 16, {v(CR)}
        v_and_b32 {v(t1)}, 0xffff0000, {v(CR)}
        ''')
        for t in range(1, 20):
            a(f'''
            v_lshlrev_b32 {v(t2)}, 16, {v(CR + t)}
            v_and_b32 {v(t3)}, 0xffff0000, {v(CR + t)}
            v_add_f32 {v(t0)}, {v(t0)}, {v(t2)}
            v_add_f32 {v(t1)}, {v(t1)}, {v(t3)}
            ''')
        a(f'''
        s_nop 1
        v_permlane32_swap_b32 {v(t0)}, {v(t1)}
        s_nop 1
        v_add_f32 {v(t0)}, {v(t0)}, {v(t1)}
        v_cvt_pk_bf16_f32 {v(t1)}, {v(t0)}, {v(t0)}
        v_and_b32 {v(t1)}, 0xffff0000, {v(t1)}
        v_sub_f32 {v(t1)}, {v(t0)}, {v(t1)}
        v_cvt_pk_bf16_f32 {v(t0)}, {v(t0)}, {v(t1)}
        ''')
        store_code()

    a('''
    s_lshl_b32 s41, s27, 10
    s_and_b32 s44, s28, 11
    s_cmp_eq_u32 s44, 0
    s_cselect_b32 s42, 1, 0
    s_cmp_eq_u32 s26, 3
    s_cselect_b32 s42, s42, 0
    ''')

    def kv_step(c, part):
        st = c % 3
        lab = a.label('kvs')
        a(f's_cmp_eq_u32 s54, 0\ns_cbranch_scc1 {lab}')
        if part == 0:
            a(f'''
            ds_read_b128 {v(KXF, 4)}, {v(vKX)} offset:{LDS_X + st * 16384}
            ds_read_b64_tr_b16 {v(KWF, 2)}, {v(vKW)} offset:{st * 3072}
            ds_read_b64_tr_b16 {v(KWF + 2, 2)}, {v(vKW)} offset:{st * 3072 + 160}
            ''')
        else:
            a('s_waitcnt lgkmcnt(0)')
            a(mfma16(AKV, KWF, KXF, AKV))
        a(f'{lab}:')

    for c in range(10):
        a.c(f'aux chunk {c}')
        if c == 0:
            stamp(a, 22)
        if c <= 8:
            a(f's_waitcnt vmcnt({vm.wait(f"c{c}") if c != 5 else min(vm.wait("c5"), vm.wait("st"), vm.wait("nl"))})')
        else:
            a('s_waitcnt vmcnt(0)')
        a('s_barrier')
        if not FEWST or c in (0, 1, 2, 9):
            stamp(a, 1 + c)
        if asmlib.STAMPS:
            vm.add('stamp', 1, optional=True)
        if c == 3:
            a(f'buffer_load_dword {v(PF)}, off, s[4:7], 0 sc1')
            vm.add('nl', 1)
        kv_step(c, 0)
        if c == P3C:
            lab = a.label('nop3')
            a(f'''
            v_lshlrev_b32 {v(T + 8)}, 3, {v(vL)}
            v_lshlrev_b32 {v(T + 10)}, 7, {v(vL)}
            v_and_b32 {v(T + 11)}, 0x780, {v(T + 10)}
            s_cmp_lg_u32 s26, 3
            s_cbranch_scc1 {lab}
            s_lshl_b32 s44, s27, 13
            s_add_u32 s44, s44, {F_ST}
            s_lshl_b32 s45, s28, 13
            s_add_u32 s45, s45, {F_CS}
            s_and_b32 s58, s28, 4
            s_lshl_b32 s58, s58, 9
            s_add_u32 s58, s58, {F_KC}
            ''')
            a(f'''
            s_mov_b32 s60, s44
            s_mov_b32 s61, s45
            s_lshr_b32 s59, s29, 1
            s_lshl_b32 s59, s59, 13
            s_add_u32 s59, s59, {F_ST}
            buffer_load_dwordx2 {v(FX + 6, 2)}, {v(T + 10)}, s[20:23], s59 offen sc1
            buffer_load_dwordx2 {v(FX, 2)}, {v(T + 10)}, s[20:23], s60 offen sc1
            buffer_load_dwordx2 {v(FX + 2, 2)}, {v(T + 10)}, s[20:23], s61 offen sc1
            buffer_load_dwordx2 {v(FX + 4, 2)}, {v(T + 11)}, s[20:23], s58 offen sc1
            {lab}:
            ''')
        jit(c + JITD)
        if (1 if EARLY2 else 0) <= c and c + 2 < 10:
            dma_group(c + 2)
        kv_step(c, 1)
        if c == P3C:
            lab = a.label('nop3b')
            a(f'''
            s_cmp_lg_u32 s26, 3
            s_cbranch_scc1 {lab}
            s_waitcnt vmcnt(12)
            v_cmp_eq_u64 vcc, s[98:99], {v(FX, 2)}
            v_cmp_eq_u64 s[46:47], s[98:99], {v(FX + 2, 2)}
            v_cmp_eq_u64 s[44:45], s[98:99], {v(FX + 4, 2)}
            v_cmp_eq_u64 s[48:49], s[98:99], {v(FX + 6, 2)}
            s_nop 1
            s_and_b64 vcc, vcc, s[46:47]
            s_and_b64 vcc, vcc, s[44:45]
            s_and_b64 vcc, vcc, s[48:49]
            s_cmp_eq_u64 vcc, -1
            s_cbranch_scc1 {lab}
            ''')
            polln(a, FX, [T + 10, T + 10, T + 11], [('s60', None), ('s61', None), ('s58', None)], 4)
            polln(a, FX, [T + 10], [('s59', None)], 4)
            a(f'{lab}:')
        if c == 2:
            lab = a.label('nokvcs')
            a(f'''
            s_cmp_eq_u32 s42, 0
            s_cbranch_scc1 {lab}
            s_mul_i32 s44, s27, 40
            v_add_u32 {v(t1)}, s44, {v(vH)}
            v_mul_u32_u24 {v(t2)}, 40, {v(t1)}
            v_lshl_add_u32 {v(t2)}, {v(vR)}, 2, {v(t2)}
            ''')
            for t in range(20):
                a(f'buffer_load_dword {v(CR + t)}, {v(t2)}, s[16:19], 0 offen offset:{80 * t}')
            a(f'{lab}:')
            vm.add('kcr', 20, optional=True)
        if c == 3:
            lab = a.label('nokvcs2')
            a(f's_cmp_eq_u32 s42, 0\ns_cbranch_scc1 {lab}')

            def kcs_store():
                a(f'''
                v_lshl_add_u32 {v(t1)}, {v(vR)}, 1, {v(vH)}
                v_lshlrev_b32 {v(t2)}, 2, {v(t1)}
                v_mov_b32 {v(t3)}, 0x7f000000
                v_cmp_gt_u32 vcc, 32, {v(t1)}
                s_lshl_b32 s44, s28, 9
                s_lshl_b32 s45, s27, 7
                s_add_u32 s44, s44, s45
                s_add_u32 s44, s44, {CSKVW}
                v_cndmask_b32 {v(t2)}, {v(t3)}, {v(t2)}, vcc
                buffer_store_dword {v(t0)}, {v(t2)}, s[20:23], s44 offen sc1
                ''')
            colsum(vm.wait('kcr'), kcs_store)
            a(f'{lab}:')
            vm.add('st', 1, optional=True)
        if c == 5:
            Lp = a.label('np')
            Lq = a.label('npd')
            Lr = a.label('nokcf')
            a(f'''
            s_mov_b32 s93, {POLL_MAX}
            {Lp}:
            v_readfirstlane_b32 s98, {v(PF)}
            s_cmp_lg_u32 s98, 0
            s_cbranch_scc1 {Lq}
            s_sub_u32 s93, s93, 1
            s_cbranch_scc1 {Lq}
            buffer_load_dword {v(PF)}, off, s[4:7], 0 sc1
            s_waitcnt vmcnt(0)
            s_branch {Lp}
            {Lq}:
            s_xor_b32 s99, s98, {NONCE_X}
            s_lshl_b32 s44, s28, 9
            s_lshl_b32 s45, s27, 7
            s_add_u32 s44, s44, s45
            s_add_u32 s44, s44, {F_KC}
            s_cmp_eq_u32 s42, 0
            s_cbranch_scc1 {Lr}
            ''')
            flag_store(a, 's44', T + 2)
            a(f'{Lr}:')
            vm.add('fl', 1, optional=True)
        if P1PF and c in (6, 7):
            if c == 6:
                srd(a, 4, WDP, 2211840)
                a(f'''
                s_lshr_b32 s44, s2, 6
                s_mul_i32 s44, s44, {432 * 1280}
                s_bfe_u32 s45, s2, 0x30003
                s_mul_i32 s45, s45, {180 * 128}
                s_add_u32 s44, s44, s45
                s_mul_i32 s45, s26, {45 * 128}
                s_add_u32 s57, s44, s45
                v_lshlrev_b32 {v(PF + 1)}, 7, {v(vL)}
                ''')
            for z in range(2 if c == 6 else 1):
                a(f'''
                s_mov_b32 exec_hi, {(1 << 13) - 1}
                buffer_load_dword v165, {v(PF + 1)}, s[4:7], s57 offen
                s_mov_b32 exec_hi, -1
                s_add_u32 s57, s57, {144 * 1280}
                ''')
                vm.add('pf', 1)
        if c == 8:
            a(f'''
            v_lshlrev_b32 {v(T + 9)}, 4, {v(vL)}
            s_lshl_b32 s44, s28, 14
            s_lshl_b32 s45, s26, 12
            s_add_u32 s44, s44, s45
            s_add_u32 s44, s44, {CSW}
            ''')
            for e in range(4):
                a(f'''
                s_add_u32 m0, s45, {CS_A + 1024 * e}
                s_nop 0
                buffer_load_dwordx4 {v(T + 9)}, s[20:23], s44 offen{LD} lds
                s_add_u32 s44, s44, 1024
                ''')
            lab = a.label('norc')
            a(f'''
            s_cmp_lg_u32 s26, 0
            s_cbranch_scc1 {lab}
            s_lshl_b32 s44, s27, 11
            s_add_u32 s44, s44, {ROWW}
            s_mov_b32 m0, {ROWC_A}
            s_and_b32 s45, s28, 4
            buffer_load_dwordx4 {v(T + 9)}, s[20:23], s44 offen{LD} lds
            buffer_load_dwordx4 {v(T + 9)}, s[20:23], s44 offen offset:1024{LD} lds
            s_lshl_b32 s45, s45, 9
            s_add_u32 s45, s45, {CSKVW}
            s_mov_b32 m0, {CSKV_A}
            s_nop 0
            buffer_load_dwordx4 {v(T + 9)}, s[20:23], s45 offen{LD} lds
            buffer_load_dwordx4 {v(T + 9)}, s[20:23], s45 offen offset:1024{LD} lds
            {lab}:
            ''')
    L_p2 = a.label('auxp2')
    L_v = a.label('vepi')
    L_a0 = a.label('aux0f')
    lab = a.label('nokvfin')
    lab2 = a.label('nofix')
    a(f'''
    s_cmp_eq_u32 s54, 0
    s_cbranch_scc1 {lab}
    s_cmp_lg_u32 s26, 0
    s_cbranch_scc1 {lab2}
    s_lshl_b32 s44, s56, 9
    s_add_u32 s44, s44, {ROWC_A}
    v_lshl_add_u32 {v(t0)}, {v(vR)}, 4, s44
    v_lshlrev_b32 {v(t1)}, 2, {v(vR)}
    v_lshl_add_u32 {v(t1)}, {v(vH)}, 9, {v(t1)}
    v_add_u32 {v(t1)}, {CSKV_A}, {v(t1)}
    v_add_u32 {v(t2)}, 1024, {v(t1)}
    ds_read_b128 {v(FX, 4)}, {v(t0)}
    ds_read2_b32 {v(FX + 8, 2)}, {v(t1)} offset0:0 offset1:32
    ds_read2_b32 {v(FX + 10, 2)}, {v(t1)} offset0:64 offset1:96
    ds_read2_b32 {v(FX + 12, 2)}, {v(t2)} offset0:0 offset1:32
    ds_read2_b32 {v(FX + 14, 2)}, {v(t2)} offset0:64 offset1:96
    s_waitcnt lgkmcnt(4)
    v_mov_b32 {v(FX + 4)}, {v(FX)}
    v_mov_b32 {v(FX + 5)}, {v(FX)}
    v_mov_b32 {v(FX + 6)}, {v(FX)}
    v_mov_b32 {v(FX + 7)}, {v(FX)}
    s_waitcnt lgkmcnt(0)
    s_nop 1
    {mfma16(AKV, FX + 8, FX + 4, AKV)}
    {mfma16(AKV, FX + 12, FX + 4, AKV)}
    s_branch {L_a0}
    {lab2}:
    s_lshl_b32 s44, s26, 12
    v_add_u32 {v(t0)}, s44, {v(T + 9)}
    s_lshl_b32 s44, s26, 2
    s_add_u32 s44, s44, {PD_A}
    v_mov_b32 {v(t1)}, s44
    v_mov_b32 {v(t2)}, s98
    s_nop 11
    ''')
    for q in range(3):
        a(f'ds_write_b128 {v(t0)}, {v(AKV + 4 * q, 4)} offset:{PART_A + 1024 * q}')
    L_sp = a.label('pspin')
    L_spd = a.label('pspind')
    a(f'''
    s_waitcnt lgkmcnt(0)
    ds_write_b32 {v(t1)}, {v(t2)}
    {lab}:
    s_branch {L_p2}
    {L_a0}:
    v_mov_b32 {v(t1)}, {PD_A}
    s_mov_b32 s93, {POLL_MAX * 8}
    {L_sp}:
    ds_read_b128 {v(T + 4, 4)}, {v(t1)}
    s_waitcnt lgkmcnt(0)
    v_xor_b32 {v(T + 5)}, s98, {v(T + 5)}
    v_xor_b32 {v(T + 6)}, s98, {v(T + 6)}
    v_xor_b32 {v(T + 7)}, s98, {v(T + 7)}
    v_or3_b32 {v(T + 5)}, {v(T + 5)}, {v(T + 6)}, {v(T + 7)}
    s_nop 0
    v_readfirstlane_b32 s44, {v(T + 5)}
    s_cmp_eq_u32 s44, 0
    s_cbranch_scc1 {L_spd}
    s_sub_u32 s93, s93, 1
    s_cbranch_scc0 {L_sp}
    {L_spd}:
    ''')
    stamp(a, 12)
    for w in range(1, 4):
        for q in range(3):
            a(f'ds_read_b128 {v(RD + 12 * (w - 1) + 4 * q, 4)}, {v(T + 9)} offset:{PART_A + 4096 * w + 1024 * q}')
    a(f'''
    s_lshl_b32 s57, s27, 2
    s_add_u32 s57, s57, s56
    s_lshr_b32 s44, s57, 1
    s_mul_i32 s44, s44, 7168
    s_add_u32 s44, s44, {KV_OFF}
    s_and_b32 s45, s57, 1
    s_and_b32 s58, s28, 4
    s_lshl_b32 s58, s58, 4
    s_add_u32 s58, s58, s57
    s_lshl_b32 s58, s58, 7
    s_add_u32 s58, s58, {F_KV}
    s_waitcnt lgkmcnt(0)
    ''')
    for i in range(12):
        a(f'v_add_f32 {v(AKV + i)}, {v(AKV + i)}, {v(RD + i)}')
        a(f'v_add_f32 {v(RD + 12 + i)}, {v(RD + 12 + i)}, {v(RD + 24 + i)}')
    for i in range(12):
        a(f'v_add_f32 {v(AKV + i)}, {v(AKV + i)}, {v(RD + 12 + i)}')
    for i in range(12):
        a(f'v_mul_f32 {v(AKV + i)}, {v(AKV + i)}, {v(FX + 1)}')
    PK = RD
    for i in range(6):
        a(f'v_cvt_pk_bf16_f32 {v(PK + i)}, {v(AKV + 2 * i)}, {v(AKV + 2 * i + 1)}')
    L_kvf = a.label('kvflag')
    a(f'''
    s_bitcmp1_b32 s28, 2
    s_cbranch_scc1 {L_v}
    v_mov_b32 {v(t0)}, 0x3f803f80
    v_mov_b32 {v(t1)}, 0x00003f80
    v_cndmask_b32 {v(PK + 4)}, {v(PK + 4)}, {v(t0)}, {HM}
    v_cndmask_b32 {v(PK + 5)}, {v(PK + 5)}, {v(t1)}, {HM}
    s_lshl_b32 s46, s45, 10
    s_add_u32 s46, s46, s44
    s_lshl_b32 s47, s45, 9
    s_add_u32 s47, s47, s44
    buffer_store_dwordx4 {v(PK, 4)}, {v(T + 9)}, s[20:23], s46 offen sc1
    buffer_store_dwordx2 {v(PK + 4, 2)}, {v(T + 8)}, s[20:23], s47 offen offset:2048 sc1
    s_branch {L_kvf}
    {L_v}:
    v_mov_b32 {v(t0)}, 0
    v_cndmask_b32 {v(PK + 4)}, {v(PK + 4)}, {v(t0)}, {HM}
    v_cndmask_b32 {v(PK + 5)}, {v(PK + 5)}, {v(t0)}, {HM}
    v_mov_b32 {v(PK + 6)}, 0x00003f80
    v_mov_b32 {v(PK + 7)}, 0
    v_lshlrev_b32 {v(t0)}, 6, {v(vR)}
    v_lshl_add_u32 {v(t0)}, {v(vH)}, 3, {v(t0)}
    ds_write_b64 {v(t0)}, {v(PK, 2)} offset:{VT_A}
    ds_write_b64 {v(t0)}, {v(PK + 2, 2)} offset:{VT_A + 16}
    ds_write_b64 {v(t0)}, {v(PK + 4, 2)} offset:{VT_A + 32}
    ds_write_b64 {v(t0)}, {v(PK + 6, 2)} offset:{VT_A + 48}
    v_bfe_u32 {v(t1)}, {v(vL)}, 2, 2
    v_lshl_add_u32 {v(t1)}, {v(vH)}, 2, {v(t1)}
    v_lshlrev_b32 {v(t1)}, 6, {v(t1)}
    v_bfe_u32 {v(t2)}, {v(vL)}, 4, 1
    v_lshl_add_u32 {v(t1)}, {v(t2)}, 5, {v(t1)}
    v_and_b32 {v(t2)}, 3, {v(vL)}
    v_lshl_add_u32 {v(t1)}, {v(t2)}, 3, {v(t1)}
    s_waitcnt lgkmcnt(0)
    ds_read_b64_tr_b16 {v(PK + 8, 2)}, {v(t1)} offset:{VT_A}
    ds_read_b64_tr_b16 {v(PK + 10, 2)}, {v(t1)} offset:{VT_A + 512}
    ds_read_b64_tr_b16 {v(PK + 12, 2)}, {v(t1)} offset:{VT_A + 1024}
    ds_read_b64_tr_b16 {v(PK + 14, 2)}, {v(t1)} offset:{VT_A + 1536}
    s_lshl_b32 s46, s45, 11
    s_add_u32 s46, s46, s44
    s_add_u32 s46, s46, 3072
    s_waitcnt lgkmcnt(0)
    buffer_store_dwordx4 {v(PK + 8, 4)}, {v(T + 9)}, s[20:23], s46 offen sc1
    buffer_store_dwordx4 {v(PK + 12, 4)}, {v(T + 9)}, s[20:23], s46 offen offset:1024 sc1
    {L_kvf}:
    s_waitcnt vmcnt(0)
    ''')
    flag_store(a, 's58', T + 2)
    a(f'{L_p2}:')
    stamp(a, 13)

    a.c('=========== aux wave: phase 2 ===========')
    al = Alloc(4, 164)
    T = al('T', 8, 4)
    vWD = al('wd', 3)
    vWA = al('wa', 3)
    vHL = al('hl')
    vKO = al('ko')
    vPF = al('pf')
    ACC = al('acc', 80, 4)
    SL = al('slots', 60, 4)
    wreg = lambda k: SL + 20 * (k % 3)
    hreg = lambda k: SL + 20 * (k % 3) + 12
    a(f's_setprio {PRIO2}')
    g2_ids(a)
    srd(a, 12, WDP, 2211840)
    srd(a, 16, 84, 819200)
    a(f"""
    s_mul_i32 s44, s26, 27
    s_mul_i32 s41, s59, 108
    s_add_u32 s41, s41, s44
    s_lshl_b32 s41, s41, 10
    s_mul_i32 s42, s60, 108
    s_add_u32 s42, s42, s44
    s_lshl_b32 s42, s42, 10
    s_lshr_b32 s43, s44, 1
    s_mul_i32 s43, s43, 40960
    s_and_b32 s45, s44, 1
    s_mul_i32 s52, s45, 10240
    s_add_u32 s43, s43, s52
    s_mul_i32 s52, s45, 20480
    s_add_u32 s52, s52, 10240
    s_mov_b32 s48, 40960
    s_lshl_b32 s44, s26, 3
    s_mul_i32 s56, s44, 25600
    s_mul_i32 s54, s59, 40
    s_add_u32 s54, s54, s44
    s_lshl_b32 s54, s54, 10
    s_add_u32 s54, s54, {OF_OFF}
    s_mul_i32 s55, s60, 40
    s_add_u32 s55, s55, s44
    s_lshl_b32 s55, s55, 10
    s_add_u32 s55, s55, {OF_OFF}
    s_and_b32 s44, s26, 1
    s_mul_i32 s39, s44, 21504
    s_lshr_b32 s44, s26, 1
    s_mul_i32 s44, s44, {WO_HI}
    s_add_u32 s39, s39, s44
    s_mov_b32 s40, s39
    s_mov_b32 s45, 0x15556
    v_lshlrev_b32 {v(vHL)}, 4, {v(vL)}
    v_lshlrev_b32 {v(vPF)}, 7, {v(vL)}
    s_lshl_b32 s36, s26, 12
    s_min_u32 s36, s36, 11264
    v_add_u32 {v(vKO)}, s36, {v(vHL)}
    """)
    for p in range(3):
        a(f"""
        v_add_u32 {v(T)}, {64 * p}, {v(vL)}
        v_mul_lo_u32 {v(T + 1)}, {v(T)}, s45
        v_lshrrev_b32 {v(T + 1)}, 20, {v(T + 1)}
        v_mul_u32_u24 {v(T + 2)}, 12, {v(T + 1)}
        v_sub_u32 {v(T + 2)}, {v(T)}, {v(T + 2)}
        v_and_b32 {v(T)}, 8, {v(T + 1)}
        v_add_u32 {v(T + 1)}, {v(T + 1)}, {v(T)}
        v_mul_u32_u24 {v(T + 1)}, 1280, {v(T + 1)}
        v_lshl_add_u32 {v(T + 1)}, {v(T + 2)}, 4, {v(T + 1)}
        v_add_u32 {v(vWD + p)}, s61, {v(T + 1)}
        """)
    a(f"""
    v_bfe_u32 {v(T)}, {v(vL)}, 2, 2
    v_lshl_add_u32 {v(T)}, {v(vH)}, 2, {v(T)}
    v_mul_u32_u24 {v(T)}, 192, {v(T)}
    v_bfe_u32 {v(T + 1)}, {v(vL)}, 4, 1
    v_lshl_add_u32 {v(T)}, {v(T + 1)}, 5, {v(T)}
    v_and_b32 {v(T + 1)}, 3, {v(vL)}
    v_lshl_add_u32 {v(T)}, {v(T + 1)}, 3, {v(T)}
    v_add_u32 {v(T)}, s39, {v(T)}
    s_lshl_b32 s44, s58, 6
    s_add_u32 s45, s44, 64
    s_lshl_b32 s46, s58, 7
    s_sub_u32 s46, 128, s46
    v_add_u32 {v(vWA)}, s44, {v(T)}
    v_add_u32 {v(vWA + 1)}, s45, {v(T)}
    v_add_u32 {v(vWA + 2)}, s46, {v(T)}
    """)
    vm = VM()

    def w_dma(base, off):
        out = []
        for p in range(3):
            out.append([f's_add_u32 m0, {base}, {off + p * 1024}', 's_nop 0',
                        f'buffer_load_dwordx4 {v(vWD + p)}, s[12:15], s43 offen lds'])
        out[2] += ['s_add_u32 s43, s43, s52', 's_sub_u32 s52, s48, s52']
        return out

    def h_ld(k, e):
        hs = ('s41', 's42')[e]
        return [f'buffer_load_dwordx4 {v(hreg(k) + 4 * e, 4)}, {v(vHL)}, s[20:23], {hs} offen', f's_add_u32 {hs}, {hs}, 1024']

    def w_rd(k, off):
        return [f'ds_read_b64_tr_b16 {v(wreg(k) + 4 * b + 2 * t, 2)}, {v(vWA + b)} offset:{off + 1536 * t}'
                for b in range(3) for t in range(2)]

    def g_mfmas(k):
        return [mfma16(ACC + 16 * n, wreg(k) + 4 * b, hreg(k) + 4 * e, ACC + 16 * n)
                for n, (b, e) in enumerate(((0, 0), (0, 1), (1, 0), (1, 1), (2, 0)))]

    def kv_dma(c):
        st = c % NST
        lab = a.label('kv3')
        a(f's_cmp_ge_u32 s26, 2\ns_cbranch_scc1 {lab}')
        for e in (3, 0, 1, 2):
            a(f"""
            s_add_u32 m0, s36, {KVR + st * CH_BYTES + e * 1024}
            s_mov_b32 s38, {KV_OFF + c * CH_BYTES + e * 1024}
            buffer_load_dwordx4 {v(vKO)}, s[20:23], s38 offen lds
            """)
            if e == 3:
                a(f'{lab}:')
        vm.add(f'kv{c}', 1, optional=True)
        vm.add(f'kv{c}', 3)

    for i in range(80):
        a(f'v_mov_b32 {v(ACC + i)}, 0')
    srd(a, 4, WDP, 2211840)
    a(f'''
    s_lshr_b32 s44, s2, 6
    s_mul_i32 s44, s44, {432 * 1280}
    s_bfe_u32 s45, s2, 0x30003
    s_lshl_b32 s45, s45, 2
    s_add_u32 s45, s45, s26
    s_mul_i32 s45, s45, {15 * 128}
    s_add_u32 s32, s44, s45
    s_mov_b32 s31, {48 * 1280}
    ''')

    a(f'''
    s_lshr_b32 s45, s30, 2
    s_lshl_b32 s46, s29, 1
    s_add_u32 s45, s45, s46
    s_mul_i32 s45, s45, 108
    s_and_b32 s46, s30, 3
    s_mul_i32 s46, s46, 27
    s_add_u32 s45, s45, s46
    s_lshl_b32 s45, s45, 10
    s_mul_i32 s46, s26, {6 * 128}
    s_add_u32 s45, s45, s46
    s_add_u32 s49, s45, 3072
    ''')

    def paced_h():
        if not PCH:
            return
        a(f'''
        s_mov_b64 exec, 0x3f
        buffer_load_dword v165, {v(vPF)}, s[20:23], s49 offen
        s_mov_b64 exec, -1
        s_add_u32 s49, s49, 3072
        ''')

    def paced():
        if not PCW:
            return
        a(f'''
        s_mov_b64 exec, 0x7fff
        buffer_load_dword v165, {v(vPF)}, s[4:7], s32 offen
        s_mov_b64 exec, -1
        s_add_u32 s32, s32, s31
        ''')
        vm.add('pf', 1)

    def cd_wait():
        L1, L2 = a.label('cdw'), a.label('cdd')
        a(f'''
        v_and_b32 {v(T + 4)}, 7, {v(vL)}
        v_lshlrev_b32 {v(T + 4)}, 2, {v(T + 4)}
        v_add_u32 {v(T + 4)}, {CD_A}, {v(T + 4)}
        s_mov_b32 s93, {POLL_MAX * 8}
        {L1}:
        ds_read_b32 {v(T + 5)}, {v(T + 4)}
        s_waitcnt lgkmcnt(0)
        v_cmp_eq_u32 vcc, s98, {v(T + 5)}
        s_nop 1
        s_cmp_eq_u64 vcc, -1
        s_cbranch_scc1 {L2}
        s_sub_u32 s93, s93, 1
        s_cbranch_scc0 {L1}
        {L2}:
        ''')

    a(f's_lshl_b32 s53, s29, 13\ns_add_u32 s53, s53, {F_QH}')

    def kv_poll(first):
        a(f's_mov_b32 s45, {F_KV}\ns_mov_b32 s44, {F_KV + 8192}')
        if first:
            m = ~((1 << (4 * KVF)) - 1) & 0xffffffffffffffff
            a(f's_mov_b32 s50, {m & 0xffffffff}\ns_mov_b32 s51, {m >> 32}\ns_sleep {KVSL}\ns_andn2_b64 exec, exec, s[50:51]')
            polln(a, T + 4, vPF, [('s45', 's[50:51]'), ('s44', 's[50:51]')], 2)
            a('s_mov_b64 exec, -1')
            cd_wait()
        else:
            polln(a, T + 4, vPF, [('s45', None), ('s44', None)], 4)
    one_poller(a, T, 0, lambda: kv_poll(True), who=2)
    stamp(a, 15)
    kv_dma(0)
    kv_dma(1)
    kv_dma(2)

    def prefetch(kind, b=0):
        n = {'wd': 60, 'wo': 64, 'h': 54}[kind]
        lab = a.label('nopf')
        if kind != 'h':
            a(f's_cmp_eq_u32 s26, 3\ns_cbranch_scc1 {lab}')
        if kind == 'wd':
            a(f"""
            s_lshr_b32 s44, s2, 6
            s_mul_i32 s44, s44, {432 * 1280}
            s_bfe_u32 s45, s2, 0x30003
            s_mul_i32 s45, s45, {180 * 128}
            s_add_u32 s44, s44, s45
            s_mul_i32 s45, s26, {60 * 128}
            s_add_u32 s44, s44, s45
            s_add_u32 s44, s44, {144 * 1280 * b}
            """)
            r = 's[12:15]'
        elif kind == 'wo':
            a(f"""
            s_lshr_b32 s44, s2, 3
            s_mul_i32 s44, s44, {200 * 128}
            s_mul_i32 s45, s26, {68 * 128}
            s_add_u32 s44, s44, s45
            """)
            r = 's[16:19]'
        else:
            a(f"""
            s_mul_i32 s44, s29, {216 * 1024}
            s_lshl_b32 s45, s30, 2
            s_add_u32 s45, s45, s26
            s_mul_i32 s45, s45, {54 * 128}
            s_add_u32 s44, s44, s45
            """)
            r = 's[20:23]'
        m = (1 << n) - 1
        a(f"""
        s_mov_b32 exec_hi, {m >> 32}
        buffer_load_dword v165, {v(vPF)}, {r}, s44 offen
        s_mov_b32 exec_hi, -1
        {lab}:
        """)
        vm.add('pf', 1, optional=True)
    a(f's_waitcnt vmcnt({vm.wait("kv0")})')
    a('s_barrier')
    stamp(a, 16)
    lab = a.label('nokv2')
    a(f's_cmp_lg_u32 s26, 2\ns_cbranch_scc1 {lab}')
    kv_poll(False)
    a(f'{lab}:')

    def body(last, nw=12):
        for z in range(3):
            a(f's_waitcnt vmcnt({(nw if not last else (12, 10, 8)[z]) - 2 + PCW + PCH}) lgkmcnt(0)')
            ms = g_mfmas(z)
            if z == 2:
                for b in range(3):
                    a(f'v_add_u32 {v(vWA + b)}, s33, {v(vWA + b)}')
                rd = w_rd(0, 0)
            else:
                rd = w_rd(z + 1, 3072 * (z + 1))
            wd_ = w_dma('s40', 3072 * z)
            a(ms[0]); emit(a, rd[0:2]); emit(a, [wd_[0]]); a(SPACE)
            a(ms[1]); emit(a, rd[2:4]); emit(a, [wd_[1]]); a(SPACE)
            a(ms[3]); emit(a, rd[4:6]); emit(a, [wd_[2]]); a(SPACE)
            a(ms[2])
            if not last:
                emit(a, h_ld(z, 1))
            a(SPACE)
            a(ms[4])
            if not last:
                emit(a, h_ld(z, 0))
        a('s_add_u32 s40, s40, s33\ns_sub_u32 s33, 0, s33')

    NSTAT = int(ENV.get('NSTAT', '4'))
    for c in range(NSTAT):
        a.c(f'aux B{c}')
        a(f's_waitcnt vmcnt({vm.wait(f"kv{c + 1}")})')
        bstamp(a, c == 0)
        a('s_barrier')
        bstamp(a)
        if c == 2:
            lab = a.label('noxc')
            a(f'''
            s_cmp_lg_u32 s26, 3
            s_cbranch_scc1 {lab}
            s_getreg_b32 s45, hwreg(HW_REG_XCC_ID, 0, 4)
            s_lshl_b32 s46, s29, 7
            s_add_u32 s46, s46, {F_X}
            v_and_b32 {v(T)}, 7, {v(vL)}
            v_lshlrev_b32 {v(T)}, 3, {v(T)}
            buffer_load_dwordx2 {v(T + 4, 2)}, {v(T)}, s[20:23], s46 offen sc1
            s_mov_b32 s44, s98
            s_waitcnt vmcnt(0)
            v_cmp_eq_u64 vcc, s[44:45], {v(T + 4, 2)}
            v_mov_b32 {v(T)}, {SX_A}
            s_nop 0
            s_cmp_eq_u64 vcc, -1
            s_cselect_b32 s44, s98, 0
            v_mov_b32 {v(T + 1)}, s44
            ds_write_b32 {v(T)}, {v(T + 1)}
            s_waitcnt lgkmcnt(0)
            {lab}:
            ''')
        kv_dma(c + 3)
        if WDC <= c < WDC + 2:
            for k in range(3 * (c - WDC), 3 * (c - WDC) + 3):
                emit(a, w_dma('s39', 3072 * k))
            vm.add('w', 9)
        paced()
    L_top, L_nb, L_sw, L_end2 = a.label('dtop'), a.label('dnb'), a.label('dsw'), a.label('dend')
    L_act, L_bar, L_nokv = a.label('dact'), a.label('dbar'), a.label('dnokv')
    L_s0, L_body, L_last, L_wo, L_next = a.label('ds0'), a.label('dbody'), a.label('dlast'), a.label('dwo'), a.label('dnext')
    L_w0 = a.label('dw0')
    L_w2 = a.label('dw2')
    L_b12 = a.label('db12')
    L_bd = a.label('dbd')
    L_np = a.label('dnp')
    L_p3 = a.label('dp3')
    L_k3 = a.label('dk3')
    L_w1 = a.label('dw1')
    L_n1 = a.label('dn1')
    L_oth, L_start, L_rei, L_nsw = a.label('doth'), a.label('dstart'), a.label('drei'), a.label('dnsw')
    a(f"""
    s_mov_b32 s34, {16 - NSTAT}
    s_mov_b32 s35, 0
    s_mov_b32 s37, {((NSTAT + 3) % NST) * CH_BYTES}
    s_mov_b32 s38, {KV_OFF + (NSTAT + 3) * CH_BYTES}
    s_mov_b32 s33, 9216
    s_mov_b32 s93, {POLL_MAX}
    v_mov_b32 {v(T + 3)}, {RDY_A + 4}
    {L_top}:
    s_sub_u32 s44, s35, 2
    s_cmp_lt_u32 s44, 8
    s_cbranch_scc1 {L_act}
    s_cmp_eq_u32 s35, 11
    s_cbranch_scc1 {L_w2}
    s_cmp_gt_u32 s35, 1
    s_cbranch_scc1 {L_w0}
    s_cmp_le_u32 s34, 3
    s_cbranch_scc1 {L_w0}
    s_cmp_eq_u32 s35, 1
    s_cbranch_scc1 {L_w1}
    s_waitcnt vmcnt(3)
    s_branch {L_bar}
    {L_w1}:
    s_waitcnt vmcnt({6 + HPF * PCH})
    s_branch {L_bar}
    {L_w2}:
    s_waitcnt vmcnt(12)
    s_mov_b32 s35, 12
    s_branch {L_bar}
    {L_w0}:
    s_waitcnt vmcnt(0)
    s_branch {L_bar}
    {L_act}:
    s_waitcnt vmcnt({15 + PCW + PCH})
    {L_bar}:
    s_cmp_eq_u32 s34, 0
    s_cbranch_scc1 {L_nb}
    """)
    bstamp(a)
    a('s_barrier')
    bstamp(a)
    a(f"""
    s_cmp_lg_u32 s35, 0
    s_cbranch_scc1 {L_np}
    s_cmp_lg_u32 s26, 3
    s_cbranch_scc1 {L_np}
    buffer_load_dwordx2 {v(T + 4, 2)}, {v(vPF)}, s[20:23], s53 offen sc1
    {L_np}:
    s_cmp_le_u32 s34, 3
    s_cbranch_scc1 {L_nokv}
    s_add_u32 s44, s36, s37
    s_cmp_ge_u32 s26, 2
    s_cbranch_scc1 {L_k3}
    """)
    for e in (3, 0, 1, 2):
        a(f"""
        s_add_u32 m0, s44, {KVR + e * 1024}
        s_add_u32 s45, s38, {e * 1024}
        buffer_load_dwordx4 {v(vKO)}, s[20:23], s45 offen lds
        """)
        if e == 3:
            a(f'{L_k3}:')
    a(f"""
    s_add_u32 s38, s38, {CH_BYTES}
    s_add_u32 s37, s37, {CH_BYTES}
    s_cmp_eq_u32 s37, {CH_BYTES * NST}
    s_cselect_b32 s37, 0, s37
    {L_nokv}:
    s_sub_u32 s34, s34, 1
    s_branch {L_sw}
    {L_nb}:
    s_cmp_ge_u32 s35, 11
    s_cbranch_scc1 {L_end2}
    {L_sw}:
    s_cmp_eq_u32 s35, 0
    s_cbranch_scc1 {L_s0}
    s_cmp_lt_u32 s35, 9
    s_cbranch_scc1 {L_body}
    s_cmp_eq_u32 s35, 9
    s_cbranch_scc1 {L_last}
    s_cmp_eq_u32 s35, 10
    s_cbranch_scc1 {L_wo}
    s_branch {L_top}
    {L_s0}:
    s_sub_u32 s93, s93, 1
    s_cbranch_scc1 {L_start}
    s_cmp_lg_u32 s26, 3
    s_cbranch_scc1 {L_oth}
    s_cmp_ge_u32 s34, 3
    s_cbranch_scc1 {L_p3}
    buffer_load_dwordx2 {v(T + 4, 2)}, {v(vPF)}, s[20:23], s53 offen sc1
    s_waitcnt vmcnt(0)
    {L_p3}:
    s_waitcnt vmcnt(3)
    v_cmp_eq_u64 vcc, s[98:99], {v(T + 4, 2)}
    s_lshl_b32 s45, s34, 1
    s_nop 0
    s_cmp_eq_u64 vcc, -1
    s_cselect_b32 s44, s98, s45
    v_mov_b32 {v(T + 2)}, s44
    ds_write_b32 {v(T + 3)}, {v(T + 2)}
    s_cbranch_scc1 {L_start}
    s_branch {L_top}
    {L_oth}:
    s_mov_b32 s45, 40
    {L_rei}:
    s_sleep 1
    ds_read_b32 {v(T + 2)}, {v(T + 3)}
    s_waitcnt lgkmcnt(0)
    v_readfirstlane_b32 s44, {v(T + 2)}
    s_cmp_eq_u32 s44, s98
    s_cbranch_scc1 {L_start}
    s_lshl_b32 s46, s34, 1
    s_cmp_eq_u32 s44, s46
    s_cbranch_scc1 {L_top}
    s_sub_u32 s45, s45, 1
    s_cbranch_scc0 {L_rei}
    s_branch {L_top}
    {L_start}:
    """)
    stamp(a, 23)
    for k in range(3):
        for e in range(2):
            emit(a, h_ld(k, e))
    for _ in range(HPF):
        paced_h()
    emit(a, w_rd(0, 0))
    a(f"""
    {L_next}:
    s_add_u32 s35, s35, 1
    s_branch {L_top}
    {L_body}:
    s_cmp_lg_u32 s35, 1
    s_cbranch_scc1 {L_n1}
    s_waitcnt vmcnt(0)
    {L_n1}:
    s_cmp_lg_u32 s35, 8
    s_cbranch_scc1 {L_nsw}
    s_mov_b32 s12, s16
    s_mov_b32 s13, s17
    s_mov_b32 s14, 819200
    s_mov_b32 s43, s56
    s_mov_b32 s52, 25600
    s_mov_b32 s48, 51200
    s_mov_b32 s45, 0x15556
    """)
    for p in range(3):
        a(f"""
        v_add_u32 {v(T)}, {64 * p}, {v(vL)}
        v_mul_lo_u32 {v(T + 1)}, {v(T)}, s45
        v_lshrrev_b32 {v(T + 1)}, 23, {v(T + 1)}
        v_mul_u32_u24 {v(T + 1)}, {8 * 1280}, {v(T + 1)}
        v_sub_u32 {v(vWD + p)}, {v(vWD + p)}, {v(T + 1)}
        """)
    a(f"""
    {L_nsw}:
    s_cmp_lt_u32 s34, 3
    s_cbranch_scc1 {L_b12}
    """)
    body(False, 15)
    a(f's_branch {L_bd}\n{L_b12}:')
    body(False, 12)
    a(f'{L_bd}:')
    lab = a.label('npsw')
    a(f'''
    s_cmp_lg_u32 s35, {10 - NSTAT}
    s_cbranch_scc1 {lab}
    s_mov_b32 s4, s16
    s_mov_b32 s5, s17
    s_mov_b32 s6, 819200
    s_lshr_b32 s44, s2, 3
    s_lshl_b32 s44, s44, 2
    s_add_u32 s44, s44, s26
    s_mul_i32 s32, s44, {50 * 128}
    s_mov_b32 s31, {13 * 128}
    {lab}:
    ''')
    paced_h()
    paced()
    a(f's_branch {L_next}\n{L_last}:')
    body(True)
    a(f's_branch {L_next}\n{L_wo}:')
    stamp(a, 17)
    emit(a, w_rd(1, 3072) + w_rd(2, 6144))
    a('s_mov_b32 s45, 0x15556\ns_waitcnt lgkmcnt(0)')
    emit(a, w_dma('s39', 3072 * 3))
    emit(a, w_dma('s39', 3072 * 4))
    for p in range(3):
        a(f"""
        v_add_u32 {v(T)}, {64 * p}, {v(vL)}
        v_mul_lo_u32 {v(T + 1)}, {v(T)}, s45
        v_bfe_u32 {v(T)}, {v(T + 1)}, 22, 1
        v_lshrrev_b32 {v(T + 1)}, 23, {v(T + 1)}
        v_mul_u32_u24 {v(T)}, {36 * 1280}, {v(T)}
        v_mul_u32_u24 {v(T + 1)}, {12 * 1280}, {v(T + 1)}
        v_add3_u32 {v(vWD + p)}, {v(vWD + p)}, {v(T + 1)}, {v(T)}
        """)
    a(f's_add_u32 s43, s56, {16 * 1280}\ns_mov_b32 s52, {80 * 1280}\ns_mov_b32 s48, {160 * 1280}')
    emit(a, w_dma('s39', 3072 * 5))
    emit(a, w_dma('s39', 3072 * 6))
    a(f's_cmp_lg_u32 s34, 0\ns_cbranch_scc1 {L_next}\n{L_end2}:')
    a(f"""
    v_subrev_u32 {v(vWA)}, 9216, {v(vWA)}
    v_subrev_u32 {v(vWA + 1)}, 9216, {v(vWA + 1)}
    v_subrev_u32 {v(vWA + 2)}, 9216, {v(vWA + 2)}
    s_mul_i32 s44, s26, 14336
    s_add_u32 s44, s44, {OL_A}
    v_add_u32 {v(vKO)}, s44, {v(vHL)}
    v_and_b32 {v(T)}, 7, {v(vR)}
    v_xor_b32 {v(T)}, {v(T)}, {v(vH)}
    v_lshlrev_b32 {v(T + 1)}, 7, {v(vR)}
    v_add_u32 {v(T + 1)}, s39, {v(T + 1)}
    """)
    for jp in range(4):
        a(f"""
        v_xor_b32 {v(T + 2)}, {2 * jp}, {v(T)}
        v_lshl_add_u32 {v(T + 4 + jp)}, {v(T + 2)}, 4, {v(T + 1)}
        """)
    stamp(a, 18)
    a('s_barrier')
    Lp, Lq = a.label('op'), a.label('opd')
    a(f's_mov_b32 s93, {OPOLL_MAX}\n{Lp}:')
    for k in range(27, 30):
        for e in range(2):
            a(f'buffer_load_dwordx4 {v(hreg(k) + 4 * e, 4)}, {v(vHL)}, s[20:23], s{54 + e} offen offset:{1024 * (k - 27)} sc1')
    a('s_waitcnt vmcnt(0)')
    regs = [hreg(k) + i for k in range(27, 30) for i in range(8)]
    a(f'v_max3_u32 {v(T)}, {v(regs[0])}, {v(regs[1])}, {v(regs[2])}')
    for i in range(3, 23, 2):
        a(f'v_max3_u32 {v(T)}, {v(T)}, {v(regs[i])}, {v(regs[i + 1])}')
    a(f"""
    v_max_u32 {v(T)}, {v(T)}, {v(regs[23])}
    v_cmp_eq_u32 vcc, -1, {v(T)}
    s_nop 1
    s_cmp_eq_u64 vcc, 0
    s_cbranch_scc1 {Lq}
    s_sub_u32 s93, s93, 1
    s_cbranch_scc1 {Lq}
    s_sleep {OSLEEP}
    s_branch {Lp}
    {Lq}:
    """)
    stamp(a, 19)

    def o_rd(k):
        return [f'ds_read_b128 {v(hreg(k) + 4 * e, 4)}, {v(vKO)} offset:{(k - 30) * 2048 + 1024 * e}' for e in range(2)]

    for k in range(27, 30):
        emit(a, g_mfmas(k))
        emit(a, w_rd(k + 3, 3072 * (k - 27)))
    if FFL:
        L1, L2 = a.label('fw'), a.label('fd')
        a(f'''
        s_lshl_b32 s44, s26, 3
        s_add_u32 s44, s44, {OW_A}
        v_mov_b32 {v(T)}, s44
        s_mov_b32 s93, {POLL_MAX * 8}
        {L1}:
        ds_read_b64 {v(T + 2, 2)}, {v(T)}
        s_waitcnt lgkmcnt(0)
        v_readfirstlane_b32 s44, {v(T + 2)}
        v_readfirstlane_b32 s45, {v(T + 3)}
        s_xor_b32 s44, s44, s98
        s_xor_b32 s45, s45, s98
        s_or_b32 s44, s44, s45
        s_cbranch_scc0 {L2}
        s_sub_u32 s93, s93, 1
        s_cbranch_scc0 {L1}
        {L2}:
        ''')
    else:
        a('s_waitcnt lgkmcnt(0)')
        a('s_barrier')
    stamp(a, 30)
    for k in range(30, 33):
        emit(a, o_rd(k))
    XO = vWD
    assert XO % 2 == 0 and XO + 8 <= ACC
    for k in range(30, 34):
        a(f's_waitcnt lgkmcnt({ {30: 4, 31: 10, 32: 8, 33: 8}[k] })')
        emit(a, g_mfmas(k))
        emit(a, w_rd(k + 3, 3072 * (k + 3 - 30)) + o_rd(k + 3))
    g2_out(a, XO, vL, 's24', 0)
    a('s_waitcnt lgkmcnt(0)')
    wr = lambda n: [f'ds_write_b128 {v(T + 4 + jp)}, {v(ACC + 16 * n + 4 * jp, 4)} offset:{4096 * n}' for jp in range(4)]
    ms = [g_mfmas(k) for k in range(34, 37)]
    for n in range(5):
        for z in range(3):
            a(ms[z][n])
        if n >= 2:
            a('s_nop 5')
            emit(a, wr(n - 2))
    stamp(a, 20)
    a('s_nop 3')
    emit(a, wr(3))
    a('s_nop 3')
    emit(a, wr(4))
    a('s_waitcnt vmcnt(0) lgkmcnt(0)')
    a('s_barrier')
    stamp(a, 21)
    for i in range(8):
        a(f'v_mov_b32 {v(ACC + i)}, {v(XO + i)}')
    g2_out(a, ACC, vL, 's24', 1)


def build(path):
    hdr = open('parallel_sum__grouped_kv_mqa__geglu_ffn__prompt.s.ref').read().split('; Override launch')[0]
    out = hdr + f'; @launch grid=(256,1,1) block=(768,1,1) lds={LDS_TOTAL}\n'
    out += '.amdgcn_target "amdgcn-amd-amdhsa--gfx950"\n'
    out += gen()
    out += kernel_desc(KNAME, 168)
    open(path, 'w').write(out)


if __name__ == '__main__':
    import sys
    if len(sys.argv) > 2 and sys.argv[2] == 'stamp':
        asmlib.STAMPS = True
    build(sys.argv[1])
```

```python
from asmlib import *
import asmlib
import math
import os

KNAME = 'parallel_sum__grouped_kv_mqa__geglu_ffn__prompt_kernel'

H_OFF = 0
QF_OFF = 0x700000
KV_OFF = 0xA00000
OF_OFF = 0xB00000
FL_OFF = 0xE00000
F_ST = 0x1200000
F_CS = 0x1220000
F_KV = 0x1240000
F_KC = 0x1248000
F_W2 = 0x1250000
F_X = 0x1258000
F_QH = 0xE80000
ROWW = 0xE10000
CSW = 0xE20000
CSKVW = 0xE60000
W2F = 0xF00000
WS_USED = 0x1260000

LDS_X = 0
LDS_W = 49152
LDS_KV = 147456
CS_A = 16384
PART_A = 32768
VT_A = 32768
ROWC_A = 156672
CSKV_A = 158720
NONCE_A = 160768
RDY_A = 160800
SX_A = 160928
OW_A = 160896
CD_A = 160832
PD_A = 160864
LDS_TOTAL = 163840
CH_BYTES = 14336
NST = 4
KVR = 49152
Q_A = KVR + 3 * CH_BYTES
G2R = KVR + CH_BYTES * NST
G2D = 3
TW_A = G2R
OL_A = KVR
WO_HI = 106496
WOA = 0
RED_A = 0

C0 = -2.0 * math.sqrt(2.0 / math.pi) * math.log2(math.e)
C1 = C0 * 0.044715
QSC = math.log2(math.e) / math.sqrt(20.0)
M_OFFSET = 90.0
POLL_MAX = 400000
NONCE_X = 0x5a5a5a5a

HM = 's[62:63]'
PFWAIT = False
ENV = os.environ
NODOWN = ENV.get('NODOWN')
PRIO2 = int(ENV.get('PRIO2', '3'))
PRIO1 = int(ENV.get('PRIO1', '3'))
SPACE = ENV.get('SPACE', '')
NOPF = not ENV.get('PF')
INV = int(ENV.get('INV', '0'))
NOG2 = ENV.get('NOG2')
ROT = int(ENV.get('ROT', '0'))
FFL = int(ENV.get('FFL', '0'))
PCW = int(ENV.get('PCW', '1'))
PCH = int(ENV.get('PCH', '1'))
HST = int(ENV.get('HST', '-1'))
ODBL = int(ENV.get('ODBL', '1'))
JX = int(ENV.get('JX', '0'))
QSLEEP = int(ENV.get('QSLEEP', '4'))
KVF = int(ENV.get('KVF', '3'))
OUTSC = {'': '', '1': ' sc1', '2': ' nt', '3': ' sc0 sc1', '4': ' sc1 nt'}[ENV.get('OUTSC', '')]
HPF = int(ENV.get('HPF', '2'))
PERM = int(ENV.get('PERM', '1'))
P1PF = int(ENV.get('P1PF', '0'))
PFC = tuple(int(x) for x in ENV.get('PFC', '2,3,4').split(','))
WDC = int(ENV.get('WDC', '2'))
WOC = int(ENV.get('WOC', '4'))
TWC = int(ENV.get('TWC', '1'))
DPOLL2 = 0
OSLEEP = int(ENV.get('OSLEEP', '3'))
LATE1 = int(ENV.get('LATE1', '1'))
OPOLL_MAX = 200000
LINPF = int(ENV.get('LINPF', '0'))
NOSL = ENV.get('NOSL')
PF0 = int(ENV.get('PF0', '0'))
JIT = int(ENV.get('JIT', '0'))
JITD = int(ENV.get('JITD', '4'))
SLC = int(ENV.get('SLC', '-1'))
SLG = int(ENV.get('SLG', '2'))
SPN = int(ENV.get('SPN', '2'))
PZ0 = int(ENV.get('PZ0', '0'))
P3C = int(ENV.get('P3C', '7'))
EARLY2 = int(ENV.get('EARLY2', '0'))
CWARM = int(ENV.get('CWARM', '1'))
KVSL = int(ENV.get('KVSL', '16'))
HEARLY = ENV.get('HEARLY')
PSLEEP = int(ENV.get('PSLEEP', '2'))
NOPF2 = not ENV.get('PF2')
CV = int(ENV.get('CV', '0'))
NODMA = ENV.get('NODMA')
IST = ENV.get('IST')
LD = ' sc1' if ENV.get('SC1LD') else ''
FEWST = ENV.get('FEWST')
IST_LIST = tuple(int(x) for x in os.environ.get('ISTL', '1,2,6,7').split(','))
HFLAG_T = int(os.environ.get('HFT', '6'))
G2_START = int(os.environ.get('G2S', '6'))
G2_END = int(os.environ.get('G2E', '15'))


class VM:
    def __init__(self):
        self.ops = []

    def add(self, tag, n=1, optional=False):
        for _ in range(n):
            self.ops.append((tag, optional))

    def wait(self, tag):
        idx = max(i for i, (t, o) in enumerate(self.ops) if t == tag)
        n = sum(1 for t, o in self.ops[idx + 1:] if not o)
        assert n <= 63, n
        return n

    def drain(self):
        self.ops = []


def emit(a, bundles):
    for b in bundles:
        a(b if isinstance(b, str) else '\n'.join(b))


def flag_store(a, soff_reg, vt):
    a(f'''
    v_mov_b32 {v(vt)}, s98
    v_mov_b32 {v(vt + 1)}, s99
    s_mov_b64 exec, 1
    buffer_store_dwordx2 {v(vt, 2)}, off, s[20:23], {soff_reg} sc1
    s_mov_b64 exec, -1
    ''')


def poll(a, vt, voff, soff_reg, wide=False, ignore=None, inv=True, sleep=None):
    L = a.label('poll')
    Ld = a.label('polld')
    a(f's_mov_b32 s93, {POLL_MAX}')
    a(f'{L}:')
    if wide:
        a(f'''
        buffer_load_dwordx4 {v(vt, 4)}, {v(voff)}, s[20:23], {soff_reg} offen sc1
        s_waitcnt vmcnt(0)
        v_cmp_eq_u64 vcc, s[98:99], {v(vt, 2)}
        v_cmp_eq_u64 s[46:47], s[98:99], {v(vt + 2, 2)}
        s_nop 1
        s_and_b64 vcc, vcc, s[46:47]
        ''')
    else:
        a(f'''
        buffer_load_dwordx2 {v(vt, 2)}, {v(voff)}, s[20:23], {soff_reg} offen sc1
        s_waitcnt vmcnt(0)
        v_cmp_eq_u64 vcc, s[98:99], {v(vt, 2)}
        s_nop 1
        ''')
    if ignore:
        a(f's_or_b64 vcc, vcc, {ignore}')
    a(f'''
    s_cmp_eq_u64 vcc, -1
    s_cbranch_scc1 {Ld}
    s_sub_u32 s93, s93, 1
    s_cbranch_scc1 {Ld}
    s_sleep {sleep or PSLEEP}
    s_branch {L}
    {Ld}:
    ''')
    if inv and INV:
        a('buffer_inv sc1\ns_waitcnt vmcnt(0)')


def polln(a, vt, voff, rows, sleep):
    L = a.label('poll')
    Ld = a.label('polld')
    a(f's_mov_b32 s93, {POLL_MAX}\n{L}:')
    for q, (so, ig) in enumerate(rows):
        a(f'buffer_load_dwordx2 {v(vt + 2 * q, 2)}, {v(voff[q] if isinstance(voff, list) else voff)}, s[20:23], {so} offen sc1')
    a('s_waitcnt vmcnt(0)')
    dst = ['vcc', 's[46:47]', 's[48:49]']
    for q in range(len(rows)):
        a(f'v_cmp_eq_u64 {dst[q]}, s[98:99], {v(vt + 2 * q, 2)}')
    a('s_nop 1')
    for q, (so, ig) in enumerate(rows):
        if ig:
            a(f's_or_b64 {dst[q]}, {dst[q]}, {ig}')
        if q:
            a(f's_and_b64 vcc, vcc, {dst[q]}')
    a(f'''
    s_cmp_eq_u64 vcc, -1
    s_cbranch_scc1 {Ld}
    s_sub_u32 s93, s93, 1
    s_cbranch_scc1 {Ld}
    s_sleep {sleep}
    s_branch {L}
    {Ld}:
    ''')


def one_poller(a, vt, word, body, who=3):
    Lw, Ld, Ls = a.label('opw'), a.label('opd'), a.label('ops')
    a(f'''
    v_mov_b32 {v(vt + 3)}, {RDY_A + 4 * word}
    s_cmp_lg_u32 s26, {who}
    s_cbranch_scc1 {Lw}
    ''')
    body()
    a(f'''
    v_mov_b32 {v(vt + 2)}, s98
    ds_write_b32 {v(vt + 3)}, {v(vt + 2)}
    s_branch {Ld}
    {Lw}:
    s_mov_b32 s93, {POLL_MAX * 8}
    {Ls}:
    ds_read_b32 {v(vt + 2)}, {v(vt + 3)}
    s_waitcnt lgkmcnt(0)
    v_readfirstlane_b32 s46, {v(vt + 2)}
    s_cmp_eq_u32 s46, s98
    s_cbranch_scc1 {Ld}
    s_sub_u32 s93, s93, 1
    s_cbranch_scc1 {Ld}
    s_sleep 1
    s_branch {Ls}
    {Ld}:
    ''')


def bstamp(a, first=False):
    if not (asmlib.STAMPS and ENV.get('BST')):
        return
    if first:
        a('s_add_u32 s101, s92, 0xC0000')
    a('''
    s_memrealtime s[94:95]
    s_memtime s[96:97]
    s_waitcnt lgkmcnt(0)
    v_mov_b32 v166, s94
    v_mov_b32 v167, s96
    buffer_store_dwordx2 v[166:167], off, s[88:91], s101
    s_add_u32 s101, s101, 8
    ''')


def srd(a, base, ptr, size):
    a(f'''
    s_mov_b32 s{base}, s{ptr}
    s_mov_b32 s{base + 1}, s{ptr + 1}
    s_mov_b32 s{base + 2}, {size}
    s_mov_b32 s{base + 3}, 0x20000
    ''')


def w_source(a):
    a('''
    s_and_b32 s44, s26, 1
    s_and_b32 s51, s44, s48
    s_lshr_b32 s45, s26, 1
    s_lshl_b32 s46, s44, 6
    s_add_u32 s46, s46, s49
    s_cmp_eq_u32 s48, 1
    s_cselect_b32 s46, s49, s46
    s_lshl_b32 s47, s45, 6
    s_add_u32 s47, s47, s50
    s_cmp_eq_u32 s51, 1
    s_cselect_b32 s52, s47, s46
    s_lshl_b32 s52, s52, 1
    s_cmp_eq_u32 s45, 1
    s_cselect_b32 s12, s82, s80
    s_cselect_b32 s13, s83, s81
    s_mov_b32 s14, 2211840
    s_mov_b32 s53, 3456
    s_cmp_eq_u32 s51, 1
    s_cselect_b32 s12, s70, s12
    s_cselect_b32 s13, s71, s13
    s_cselect_b32 s14, 819200, s14
    s_cselect_b32 s53, 1280, s53
    s_mov_b32 s15, 0x20000
    ''')


def tile_offs(t):
    p, o = t >> 1, t & 1
    b = p * 7168
    return b + o * 1024, b + 2048, b + 3072 + o * 2048, b + 4096 + o * 2048


PERMC = f'''
    s_bfe_u32 s44, s2, 0x30003
    s_lshr_b32 s45, s2, 6
    s_add_u32 s44, s44, s45
    s_and_b32 s100, s44, {PERM}
    s_xor_b32 s45, s100, 1
'''
ROTC = '''
    s_add_u32 s100, s27, s28
    s_mul_i32 s44, s100, 26
    s_lshr_b32 s44, s44, 8
    s_mul_i32 s44, s44, 10
    s_sub_u32 s100, s100, s44
    s_add_u32 s45, s100, 1
    s_cmp_eq_u32 s45, 10
    s_cselect_b32 s45, 0, s45
'''


def gen():
    a = Asm()
    a(kernel_head(KNAME))
    stamp_early(a)
    vL, vH, vR = 1, 2, 3
    L_end = a.label('end')
    L_aux = a.label('aux')
    a(f'''
    s_cmp_ge_u32 s2, 256
    s_cbranch_scc1 {L_end}
    s_load_dwordx8 s[68:75], s[0:1], 0
    s_load_dwordx4 s[80:83], s[0:1], 48
    s_load_dwordx4 s[76:79], s[0:1], 80
    s_load_dwordx2 s[84:85], s[0:1], 32
    s_load_dwordx4 s[88:91], s[0:1], 64
    v_lshrrev_b32 v4, 6, v0
    v_and_b32 {v(vL)}, 63, v0
    v_readfirstlane_b32 s24, v4
    v_lshrrev_b32 {v(vH)}, 5, {v(vL)}
    v_and_b32 {v(vR)}, 31, {v(vL)}
    ''')
    if CWARM:
        Lw, Lp = a.label('nowarm'), a.label('pc')
        a(f'''
        s_cmp_lg_u32 s24, 11
        s_cbranch_scc1 {Lw}
        s_getpc_b64 s[4:5]
        {Lp}:
        s_bfe_u32 s44, s2, 0x30003
        s_lshl_b32 s44, s44, 13
        v_lshl_add_u32 v4, {v(vL)}, 7, s44
        v_min_u32 v4, {L_end}-{Lp}, v4
        global_load_dword v165, v4, s[4:5]
        {Lw}:
        ''')
    vXD, vWD, vKD = 20, 22, 24
    t0, t1, t2, t3, t4 = 4, 5, 6, 7, 8
    a(f'''
    s_bfe_u32 s27, s2, 0x30003
    s_and_b32 s46, s2, 1
    s_lshl_b32 s46, s46, 3
    s_add_u32 s27, s27, s46
    s_bfe_u32 s46, s2, 0x20001
    s_xor_b32 s46, s46, {JX}
    s_lshl_b32 s46, s46, 2
    s_lshr_b32 s47, s2, 6
    s_add_u32 s28, s46, s47
    s_cmp_ge_u32 s28, 11
    s_cselect_b32 s48, 1, 0
    s_sub_u32 s44, s28, 11
    s_lshl_b32 s45, s44, 6
    s_add_u32 s45, s45, 1408
    s_lshl_b32 s46, s28, 7
    s_lshl_b32 s50, s44, 7
    s_cmp_eq_u32 s48, 1
    s_cselect_b32 s49, s45, s46
    s_and_b32 s25, s24, 1
    s_lshr_b32 s26, s24, 1
    s_sub_u32 s44, s24, 8
    s_cmp_ge_u32 s24, 8
    s_cselect_b32 s26, s44, s26
    s_and_b32 s44, s26, 1
    s_and_b32 s51, s44, s48
    s_lshr_b32 s43, s26, 1
    s_andn2_b32 s46, s44, s48
    s_lshl_b32 s46, s46, 6
    s_add_u32 s46, s46, s49
    s_lshl_b32 s47, s43, 6
    s_add_u32 s47, s47, s50
    s_mov_b32 s53, 3456
    s_cmp_eq_u32 s51, 1
    s_cselect_b32 s52, s47, s46
    s_cselect_b32 s53, 1280, s53
    s_lshl_b32 s52, s52, 1
    s_lshl_b32 s31, s53, 3
    s_lshl_b32 s32, s53, 6
    v_lshrrev_b32 {v(t0)}, 3, {v(vL)}
    v_and_b32 {v(t1)}, 7, {v(vL)}
    s_lshl_b32 s44, s27, 7
    s_lshl_b32 s45, s26, 5
    s_add_u32 s44, s44, s45
    v_add_u32 {v(t2)}, s44, {v(t0)}
    v_mul_u32_u24 {v(t2)}, 1280, {v(t2)}
    v_lshrrev_b32 {v(t3)}, 1, {v(t0)}
    v_xor_b32 {v(t3)}, {v(t3)}, {v(t1)}
    v_lshl_add_u32 {v(vXD)}, {v(t3)}, 4, {v(t2)}
    v_xor_b32 {v(t3)}, 4, {v(t3)}
    v_lshl_add_u32 {v(vXD + 1)}, {v(t3)}, 4, {v(t2)}
    v_add_u32 {v(vXD + 1)}, {8 * 1280}, {v(vXD + 1)}
    v_mul_lo_u32 {v(t2)}, {v(t0)}, s53
    v_lshrrev_b32 {v(t3)}, 1, {v(t1)}
    v_and_b32 {v(t4)}, 2, {v(t0)}
    v_xor_b32 {v(t3)}, {v(t3)}, {v(t4)}
    v_and_b32 {v(t4)}, 1, {v(t1)}
    v_lshl_add_u32 {v(t2)}, {v(t4)}, 4, {v(t2)}
    v_add_u32 {v(t2)}, s52, {v(t2)}
    v_lshl_add_u32 {v(vWD)}, {v(t3)}, 5, {v(t2)}
    v_xor_b32 {v(t3)}, 1, {v(t3)}
    v_lshl_add_u32 {v(vWD + 1)}, {v(t3)}, 5, {v(t2)}
    s_lshl_b32 s36, s26, 12
    s_mul_i32 s37, s26, 24576
    s_add_u32 s37, s37, {LDS_W}
    s_lshl_b32 s33, s53, 5
    s_mul_i32 s33, s33, s25
    s_lshl_b32 s44, s25, 12
    s_add_u32 s35, s37, s44
    {ROTC if ROT else PERMC}
    s_mul_i32 s38, s100, s32
    s_mul_i32 s39, s45, s32
    s_mov_b32 s10, 2621440
    s_mov_b32 s11, 0x20000
    s_mov_b32 s14, 2211840
    s_mov_b32 s15, 0x20000
    s_cmp_ge_u32 s24, 8
    s_cbranch_scc1 {L_aux}
    s_cmp_eq_u32 s43, 1
    s_waitcnt lgkmcnt(0)
    s_cselect_b32 s12, s82, s80
    s_cselect_b32 s13, s83, s81
    s_cmp_eq_u32 s51, 1
    s_cselect_b32 s12, s70, s12
    s_cselect_b32 s13, s71, s13
    s_cselect_b32 s14, 819200, s14
    ''')
    def c_start(c):
        for e in range(4):
            a(f'''
            s_add_u32 m0, s35, {c * 8192 + e * 1024}
            s_add_u32 s34, s33, s{38 + c}
            buffer_load_dwordx4 {v(vWD + (e & 1))}, s[12:15], s34 offen lds
            ''')
            if e < 3:
                a('s_add_u32 s33, s33, s31')
            elif c == 0:
                a('s_mul_i32 s44, s31, 3\ns_sub_u32 s33, s33, s44')
    c_start(0)
    if not LATE1:
        c_start(1)
    L_com = a.label('common')
    a(f'''
    s_mov_b32 s8, s68
    s_mov_b32 s9, s69
    s_mov_b32 s16, s72
    s_mov_b32 s17, s73
    s_mov_b32 s18, 25600
    s_mov_b32 s19, 0x20000
    v_mov_b32 {v(vKD)}, 0
    s_branch {L_com}
    {L_aux}:
    s_setprio {PRIO1}
    s_cmp_lt_u32 s28, 8
    s_cselect_b32 s54, 1, 0
    s_cmp_lt_u32 s26, 3
    s_cselect_b32 s40, s54, 0
    s_lshl_b32 s44, s26, 10
    s_add_u32 s38, s44, {LDS_KV}
    v_lshl_add_u32 {v(vKD)}, {v(vL)}, 4, s44
    s_mov_b32 s18, 25600
    s_mov_b32 s19, 0x20000
    s_lshl_b32 s46, s100, 7
    s_lshl_b32 s57, s45, 7
    s_mul_i32 s58, s100, 2560
    s_mul_i32 s59, s45, 2560
    s_bitcmp1_b32 s28, 2
    s_waitcnt lgkmcnt(0)
    s_mov_b32 s8, s68
    s_mov_b32 s9, s69
    s_cselect_b32 s16, s74, s72
    s_cselect_b32 s17, s75, s73
    ''')
    def a_start(c):
        for e in range(4):
            a(f'''
            s_add_u32 m0, s36, {LDS_X + c * 16384 + e * 1024}
            s_add_u32 s34, s{(46, 57)[c]}, {(e >> 1) * 16 * 1280}
            buffer_load_dwordx4 {v(vXD + (e & 1))}, s[8:11], s34 offen lds
            ''')
        lab = a.label('nokv')
        a(f'''
        s_cmp_eq_u32 s40, 0
        s_cbranch_scc1 {lab}
        s_add_u32 m0, s38, {c * 3072}
        s_nop 0
        buffer_load_dwordx4 {v(vKD)}, s[16:19], s{58 + c} offen lds
        {lab}:
        ''')
    a_start(0)
    if not LATE1:
        a_start(1)
    a(f'''
    s_cmp_eq_u32 s43, 1
    s_cselect_b32 s12, s82, s80
    s_cselect_b32 s13, s83, s81
    s_cmp_eq_u32 s51, 1
    s_cselect_b32 s12, s70, s12
    s_cselect_b32 s13, s71, s13
    s_cselect_b32 s14, 819200, s14
    {L_com}:
    s_mov_b32 s62, 0
    s_mov_b32 s63, -1
    s_and_b32 s44, s2, 7
    s_lshl_b32 s44, s44, 2
    s_bfe_u32 s46, s2, 0x20003
    s_add_u32 s29, s44, s46
    s_lshr_b32 s30, s2, 5
    ''')
    srd(a, 20, 78, WS_USED)
    srd(a, 64, 90, 2621440)
    if asmlib.STAMPS:
        a('s_mov_b32 s86, s88\ns_mov_b32 s87, s89')
    WDP = 86 if asmlib.STAMPS else 88
    if asmlib.STAMPS:
        a(f'''
        s_mov_b32 s88, s78
        s_mov_b32 s89, s79
        s_mov_b32 s90, 0x2000000
        s_mov_b32 s91, 0x20000
        s_mul_i32 s92, s2, 12
        s_add_u32 s92, s92, s24
        s_lshl_b32 s92, s92, 8
        s_add_u32 s92, s92, {asmlib.STAMP_OFF}
        ''')
    stamp(a, 0, early=True)
    stamp(a, 24)
    L_aux2 = a.label('aux2')
    a(f'''
    s_cmp_ge_u32 s24, 8
    s_cbranch_scc1 {L_aux2}
    ''')
    compute_wave(a, vL, vH, vR, L_end, c_start)
    a(f'{L_aux2}:')
    aux_wave(a, vL, vH, vR, L_end, WDP, a_start)
    a(f'''
    {L_end}:
    s_endpgm
    ''')
    return a.text()


def compute_wave(a, vL, vH, vR, L_end, c_start):
    al = Alloc(4, 168)
    T = al('T', 8, 4)
    ACC = al('acc', 64, 4)
    XF = al('xf', 32, 4)
    WF = al('wf', 16, 4)
    vXA = al('xa', 2)
    vWA = al('wa', 4)
    assert al.p == 130
    t0, t1, t2, t3, t4 = T, T + 1, T + 2, T + 3, T + 4
    a.c('=========== compute wave: phase 1 ===========')
    CR = 132
    XR = 132
    U = 160
    u0, u1, u2, u3, u4, u5 = range(U, U + 6)
    W4 = 144
    vN = 130
    srd(a, 4, 76, 256)

    a(f'''
    s_lshr_b32 s44, s30, 2
    s_lshl_b32 s46, s29, 1
    s_add_u32 s46, s46, s44
    s_and_b32 s44, s30, 3
    s_lshl_b32 s44, s44, 3
    s_add_u32 s45, s44, s24
    s_mul_i32 s37, s46, 40960
    s_add_u32 s37, s37, {OF_OFF}
    s_lshl_b32 s36, s45, 10
    s_add_u32 s36, s36, s37
    s_lshl_b32 s44, s45, 8
    s_add_u32 s37, s37, s44
    s_add_u32 s37, s37, 32768
    ''')
    PZ = 152
    poison = [f'v_mov_b32 {v(PZ + q)}, -1' for q in range(4)] + [
        f'v_lshlrev_b32 {v(u4)}, 4, {v(vL)}', f'v_lshlrev_b32 {v(u5)}, 2, {v(vL)}',
        f'buffer_store_dwordx4 {v(PZ, 4)}, {v(u4)}, s[20:23], s36 offen sc1',
        f'buffer_store_dword {v(PZ)}, {v(u5)}, s[20:23], s37 offen sc1']

    def lines(txt):
        return [x.strip() for x in txt.split(chr(10)) if x.strip()]

    def load_cs():
        f = lines(f'''
        s_mul_i32 s44, s27, 40
        v_lshrrev_b32 {v(u1)}, 3, {v(vL)}
        v_add_u32 {v(u1)}, s44, {v(u1)}
        v_mul_lo_u32 {v(u2)}, {v(u1)}, s53
        v_and_b32 {v(u1)}, 7, {v(vL)}
        v_lshl_add_u32 {v(u2)}, {v(u1)}, 4, {v(u2)}
        s_mov_b32 s34, s52
        ''')
        for t in range(5):
            f.append([f'buffer_load_dwordx4 {v(CR + 4 * t, 4)}, {v(u2)}, s[12:15], s34 offen', 's_add_u32 s34, s34, s31'])
        return f

    def load_rows():
        f = lines(f'''
        s_lshl_b32 s44, s27, 7
        s_lshl_b32 s45, s28, 3
        s_add_u32 s44, s44, s45
        s_lshl_b32 s45, s26, 1
        s_add_u32 s55, s44, s45
        v_add_u32 {v(u0)}, s55, {v(vH)}
        v_mul_u32_u24 {v(u0)}, 1280, {v(u0)}
        v_lshl_add_u32 {v(u0)}, {v(vR)}, 3, {v(u0)}
        ''')
        for t in range(5):
            f.append(f'buffer_load_dwordx2 {v(XR + 2 * t, 2)}, {v(u0)}, s[8:11], 0 offen offset:{256 * t}')
        return f

    def fill_cs():
        A8 = 152
        f = []
        for q in range(4):
            f += [f'v_lshlrev_b32 {v(A8 + 2 * q)}, 16, {v(CR + q)}', f'v_and_b32 {v(A8 + 2 * q + 1)}, 0xffff0000, {v(CR + q)}']
        for t in range(1, 5):
            for q in range(4):
                ta, tb = (u2, u3) if q & 1 else (u4, u5)
                f += lines(f'''
                v_lshlrev_b32 {v(ta)}, 16, {v(CR + 4 * t + q)}
                v_and_b32 {v(tb)}, 0xffff0000, {v(CR + 4 * t + q)}
                v_add_f32 {v(A8 + 2 * q)}, {v(A8 + 2 * q)}, {v(ta)}
                v_add_f32 {v(A8 + 2 * q + 1)}, {v(A8 + 2 * q + 1)}, {v(tb)}
                ''')
        f.append('s_nop 1')
        f += [f'v_permlane32_swap_b32 {v(A8 + q)}, {v(A8 + 4 + q)}' for q in range(4)]
        f.append('s_nop 1')
        f += [f'v_add_f32 {v(A8 + q)}, {v(A8 + q)}, {v(A8 + 4 + q)}' for q in range(4)]
        f.append('s_nop 1')
        f += [f'v_permlane16_swap_b32 {v(A8 + q)}, {v(A8 + 2 + q)}' for q in range(2)]
        f.append('s_nop 1')
        f += [f'v_add_f32 {v(A8 + q)}, {v(A8 + q)}, {v(A8 + 2 + q)}' for q in range(2)]
        f += lines(f'''
        s_nop 1
        v_add_f32_dpp {v(A8)}, {v(A8)}, {v(A8)} row_ror:8 row_mask:0xf bank_mask:0xf
        v_add_f32_dpp {v(A8 + 1)}, {v(A8 + 1)}, {v(A8 + 1)} row_ror:8 row_mask:0xf bank_mask:0xf
        s_mov_b32 vcc_lo, 0xff00ff00
        s_mov_b32 vcc_hi, 0xff00ff00
        v_cndmask_b32 {v(u0)}, {v(A8)}, {v(A8 + 1)}, vcc
        v_cvt_pk_bf16_f32 {v(u1)}, {v(u0)}, {v(u0)}
        v_and_b32 {v(u1)}, 0xffff0000, {v(u1)}
        v_sub_f32 {v(u1)}, {v(u0)}, {v(u1)}
        v_cvt_pk_bf16_f32 {v(u0)}, {v(u0)}, {v(u1)}
        v_and_b32 {v(u1)}, 7, {v(vL)}
        v_lshl_add_u32 {v(u1)}, {v(u1)}, 1, {v(vH)}
        v_bfe_u32 {v(u2)}, {v(vL)}, 4, 1
        v_lshl_add_u32 {v(u1)}, {v(u1)}, 1, {v(u2)}
        v_bfe_u32 {v(u2)}, {v(vL)}, 3, 1
        v_lshl_add_u32 {v(u1)}, {v(u1)}, 1, {v(u2)}
        v_and_b32 {v(u2)}, 15, {v(u1)}
        v_lshrrev_b32 {v(u3)}, 4, {v(u1)}
        s_and_b32 s44, s26, 1
        s_andn2_b32 s44, s44, s48
        s_lshl_b32 s44, s44, 7
        s_lshr_b32 s45, s26, 1
        s_lshl_b32 s45, s45, 4
        s_add_u32 s44, s44, s45
        v_lshl_add_u32 {v(u4)}, {v(u3)}, 5, s44
        s_add_u32 s44, s26, 3
        s_lshl_b32 s44, s44, 5
        v_lshl_add_u32 {v(u5)}, {v(u3)}, 4, s44
        s_cmp_eq_u32 s51, 1
        s_cselect_b64 vcc, -1, 0
        v_cndmask_b32 {v(u4)}, {v(u4)}, {v(u5)}, vcc
        v_add_lshl_u32 {v(u2)}, {v(u2)}, {v(u4)}, 2
        s_lshl_b32 s44, s28, 14
        s_lshl_b32 s45, s27, 10
        s_add_u32 s44, s44, s45
        s_add_u32 s44, s44, {CSW}
        buffer_store_dword {v(u0)}, {v(u2)}, s[20:23], s44 offen sc1
        s_lshl_b32 s46, s27, 2
        s_add_u32 s46, s46, s26
        s_lshl_b32 s46, s46, 7
        s_lshl_b32 s45, s28, 13
        s_add_u32 s46, s46, s45
        s_add_u32 s56, s46, {F_CS}
        ''')
        return f

    def fill_rows():
        f = [f'v_mov_b32 {v(u0)}, 0', f'v_mov_b32 {v(u1)}, 0']
        for t in range(10):
            f += lines(f'''
            v_lshlrev_b32 {v(u2)}, 16, {v(XR + t)}
            v_and_b32 {v(u3)}, 0xffff0000, {v(XR + t)}
            v_add_f32 {v(u0)}, {v(u0)}, {v(u2)}
            v_fmac_f32 {v(u1)}, {v(u2)}, {v(u2)}
            v_add_f32 {v(u0)}, {v(u0)}, {v(u3)}
            v_fmac_f32 {v(u1)}, {v(u3)}, {v(u3)}
            ''')
        for ror in (8, 4, 2, 1):
            f += lines(f'''
            s_nop 1
            v_add_f32_dpp {v(u0)}, {v(u0)}, {v(u0)} row_ror:{ror} row_mask:0xf bank_mask:0xf
            v_add_f32_dpp {v(u1)}, {v(u1)}, {v(u1)} row_ror:{ror} row_mask:0xf bank_mask:0xf
            ''')
        f += lines(f'''
        v_mov_b32 {v(u2)}, {v(u0)}
        v_mov_b32 {v(u3)}, {v(u1)}
        s_nop 1
        v_permlane16_swap_b32 {v(u0)}, {v(u2)}
        v_permlane16_swap_b32 {v(u1)}, {v(u3)}
        s_mov_b32 s44, {f2u(1.0 / 640.0)}
        s_mov_b32 s45, {f2u(1e-5)}
        v_add_f32 {v(u0)}, {v(u0)}, {v(u2)}
        v_add_f32 {v(u1)}, {v(u1)}, {v(u3)}
        v_mul_f32 {v(u0)}, s44, {v(u0)}
        v_mul_f32 {v(u1)}, s44, {v(u1)}
        v_fma_f32 {v(u1)}, -{v(u0)}, {v(u0)}, {v(u1)}
        v_max_f32 {v(u1)}, 0, {v(u1)}
        v_cvt_pk_bf16_f32 {v(W4)}, -{v(u0)}, -{v(u0)}
        v_cvt_pk_bf16_f32 {v(u1)}, {v(u1)}, {v(u1)}
        v_and_b32 {v(u1)}, 0xffff0000, {v(u1)}
        v_add_f32 {v(u1)}, s45, {v(u1)}
        v_cvt_pk_bf16_f32 {v(u1)}, {v(u1)}, {v(u1)}
        v_and_b32 {v(u1)}, 0xffff0000, {v(u1)}
        v_sqrt_f32 {v(u1)}, {v(u1)}
        v_mov_b32 {v(W4 + 3)}, 0
        v_cvt_pk_bf16_f32 {v(u1)}, {v(u1)}, {v(u1)}
        v_and_b32 {v(u1)}, 0xffff0000, {v(u1)}
        v_rcp_f32 {v(W4 + 1)}, {v(u1)}
        v_mul_f32 {v(W4 + 2)}, {v(u1)}, {v(u1)}
        v_lshlrev_b32 {v(u2)}, 4, {v(vH)}
        s_lshl_b32 s44, s55, 4
        s_add_u32 s44, s44, {ROWW}
        ''')
        f.append(['s_mov_b32 exec_lo, 1', 's_mov_b32 exec_hi, 1',
                  f'buffer_store_dwordx4 {v(W4, 4)}, {v(u2)}, s[20:23], s44 offen sc1', 's_mov_b64 exec, -1'])
        f += lines(f'''
        s_lshl_b32 s44, s28, 2
        s_add_u32 s44, s44, s26
        s_lshl_b32 s44, s44, 7
        s_lshl_b32 s45, s27, 13
        s_add_u32 s44, s44, s45
        s_add_u32 s56, s44, {F_ST}
        ''')
        return f

    stamp(a, 22)
    a(f'''
    v_and_b32 {v(t0)}, 15, {v(vL)}
    v_lshrrev_b32 {v(t1)}, 4, {v(vL)}
    v_lshrrev_b32 {v(t2)}, 1, {v(t0)}
    v_xor_b32 {v(t2)}, {v(t2)}, {v(t1)}
    v_lshlrev_b32 {v(t0)}, 7, {v(t0)}
    s_lshl_b32 s44, s25, 13
    v_add_u32 {v(t0)}, s44, {v(t0)}
    v_lshl_add_u32 {v(vXA)}, {v(t2)}, 4, {v(t0)}
    v_xor_b32 {v(t2)}, 4, {v(t2)}
    v_lshl_add_u32 {v(vXA + 1)}, {v(t2)}, 4, {v(t0)}
    v_bfe_u32 {v(t2)}, {v(vL)}, 2, 2
    v_lshl_add_u32 {v(t0)}, {v(t1)}, 3, {v(t2)}
    v_lshlrev_b32 {v(t0)}, 7, {v(t0)}
    v_and_b32 {v(t3)}, 3, {v(vL)}
    v_lshl_add_u32 {v(t0)}, {v(t3)}, 3, {v(t0)}
    v_and_b32 {v(t2)}, 2, {v(t2)}
    v_and_b32 {v(t1)}, 1, {v(t1)}
    v_xor_b32 {v(t1)}, {v(t1)}, {v(t2)}
    s_lshr_b32 s44, s26, 1
    s_and_b32 s57, s44, s48
    ''')
    for t in range(4):
        a(f'''
        s_lshl_b32 s44, s26, 1
        s_add_u32 s45, s44, {t >> 1}
        s_and_b32 s46, s45, 3
        s_lshr_b32 s45, s45, 2
        s_add_u32 s45, s45, {2 * (t & 1)}
        s_sub_u32 s44, s44, 3
        s_cmp_eq_u32 s57, 1
        s_cselect_b32 s45, s44, s45
        s_cselect_b32 s46, {t}, s46
        s_mul_i32 s45, s45, 24576
        s_add_u32 s45, s45, {LDS_W}
        v_xor_b32 {v(t2)}, s46, {v(t1)}
        v_lshl_add_u32 {v(t2)}, {v(t2)}, 5, {v(t0)}
        v_add_u32 {v(vWA + t)}, s45, {v(t2)}
        ''')

    def m16(d, A, B, first=False):
        return f'v_mfma_f32_16x16x32_bf16 {v(d, 4)}, {v(A, 4)}, {v(B, 4)}, ' + ('0' if first else v(d, 4))

    def xrd(g):
        c, sI = divmod(g, 2)
        return [f'ds_read_b128 {v(XF + 16 * (g & 1) + 4 * rt, 4)}, {v(vXA + sI)} offset:{LDS_X + (c % 3) * 16384 + 2048 * rt}' for rt in range(4)]

    def wrd(g, t):
        c, sI = divmod(g, 2)
        return [f'ds_read_b64_tr_b16 {v(WF + 4 * t + 2 * z, 2)}, {v(vWA + t)} offset:{(c % 3) * 8192 + 4096 * sI + 512 * z}' for z in range(2)]

    def tile(g, t):
        return [m16(ACC + 16 * t + 4 * rt, WF + 4 * t, XF + 16 * (g & 1) + 4 * rt, g == 0) for rt in range(4)]

    def chunk(c, fill=()):
        a.c(f'chunk {c}')
        if c:
            a('s_waitcnt lgkmcnt(0)')
        a('s_barrier')
        if not FEWST or c in (0, 1, 2, 9):
            stamp(a, 1 + c)
        if c == 9:
            lab = a.label('nqp')
            a(f's_cmp_eq_u32 s57, 0\ns_cbranch_scc1 {lab}\ns_setprio 2\n{lab}:')
        seq = []

        def rest(g, waits):
            pend = (wrd(g + 1, 0) + xrd(g + 1)) if g + 1 < 20 else []
            for t in range(1, 4):
                ms = tile(g, t)
                for q, m_ in enumerate(ms):
                    pre_ = [f's_waitcnt lgkmcnt({(0, 4, 10, 10)[t]})'] if (waits and q == 0) else []
                    ex = pend[2 * q:2 * q + 2] if t == 1 else []
                    if q == 3 and g + 1 < 20:
                        ex = ex + wrd(g + 1, t)
                    seq.append((pre_, m_, ex))
        if c > 0:
            rest(2 * c - 1, False)
        else:
            emit(a, wrd(0, 0) + xrd(0) + wrd(0, 1) + wrd(0, 2) + wrd(0, 3))
        g = 2 * c
        for q, m_ in enumerate(tile(g, 0)):
            seq.append((['s_waitcnt lgkmcnt(6)'] if q == 0 else [], m_, []))
        rest(g, True)
        for q, m_ in enumerate(tile(g + 1, 0)):
            seq.append((['s_waitcnt lgkmcnt(6)'] if q == 0 else [], m_, []))
        n, k_ = len(fill), len(seq)
        for q, (pre_, m_, ex) in enumerate(seq):
            emit(a, pre_)
            a(m_)
            emit(a, ex)
            emit(a, fill[(q * n) // k_:((q + 1) * n) // k_])

    if LATE1:
        c_start(1)
    lab1, lab2 = a.label('rowv'), a.label('join')
    a(f's_cmp_eq_u32 s25, 1\ns_cbranch_scc1 {lab1}')
    for var, (ld, fl) in enumerate(((load_cs(), fill_cs()), (load_rows(), fill_rows()))):
        qp = [] if var == 0 else lines(f'''
        s_mul_i32 s44, s27, 163840
        s_mul_i32 s45, s28, 10240
        s_add_u32 s44, s44, s45
        s_mul_i32 s45, s26, 2560
        s_add_u32 s44, s44, s45
        s_add_u32 s44, s44, {QF_OFF}
        v_lshlrev_b32 {v(u5)}, 3, {v(vL)}
        buffer_store_dwordx4 {v(PZ, 4)}, {v(u4)}, s[20:23], s44 offen sc1
        buffer_store_dwordx4 {v(PZ, 4)}, {v(u4)}, s[20:23], s44 offen offset:1024 sc1
        buffer_store_dwordx2 {v(PZ, 2)}, {v(u5)}, s[20:23], s44 offen offset:2048 sc1
        ''')
        nl = [f'buffer_load_dword {v(vN)}, off, s[4:7], 0 sc1']
        if NOSL:
            ld = [['buffer_load_dword v165, off, s[4:7], 0']] * 5
            fl = fl[-6:]
        pz0 = poison + qp if PZ0 else []
        fl = (fl + nl) if PZ0 else (poison + qp + fl + nl)
        if SLC == 0:
            emit(a, ld)
        a(f's_waitcnt vmcnt({9 if SLC == 0 else 4})')
        chunk(0, (ld if SLC == -1 else []) + pz0)
        a(f's_waitcnt vmcnt({(5 if SLC <= 0 else 0) + ((2, 5)[var] if PZ0 else 0)})')
        n = len(fl)
        f0 = max(SLC, 0) + SLG
        for c in range(1, f0 + SPN):
            if c == SLC:
                chunk(c, ld)
            elif c >= f0:
                q = c - f0
                chunk(c, ([f's_waitcnt vmcnt({(2, 5)[var] if PZ0 else 0})'] if q == 0 else []) + fl[(q * n) // SPN:((q + 1) * n) // SPN])
            else:
                chunk(c)
        if var == 0:
            a(f's_branch {lab2}\n{lab1}:')
    a(f'{lab2}:')
    chunk(f0 + SPN)
    Lp, Lq = a.label('cnp'), a.label('cnd')
    a(f'''
    s_mov_b32 s93, {POLL_MAX}
    {Lp}:
    s_waitcnt vmcnt(0)
    v_readfirstlane_b32 s98, {v(vN)}
    s_cmp_lg_u32 s98, 0
    s_cbranch_scc1 {Lq}
    s_sub_u32 s93, s93, 1
    s_cbranch_scc1 {Lq}
    buffer_load_dword {v(vN)}, off, s[4:7], 0 sc1
    s_branch {Lp}
    {Lq}:
    s_xor_b32 s99, s98, {NONCE_X}
    ''')
    lab = a.label('noxid')
    a(f'''
    s_cmp_lg_u32 s24, 0
    s_cbranch_scc1 {lab}
    s_getreg_b32 s44, hwreg(HW_REG_XCC_ID, 0, 4)
    s_lshl_b32 s45, s29, 7
    s_lshl_b32 s46, s30, 3
    s_add_u32 s45, s45, s46
    s_add_u32 s45, s45, {F_X}
    v_mov_b32 {v(U)}, s98
    v_mov_b32 {v(U + 1)}, s44
    s_mov_b64 exec, 1
    buffer_store_dwordx2 {v(U, 2)}, off, s[20:23], s45 sc1
    s_mov_b64 exec, -1
    {lab}:
    ''')
    flag_store(a, 's56', U + 2)
    RC, CSF, vS16 = 132, 148, 131
    pre = lines(f'''
    v_and_b32 {v(t2)}, 15, {v(vL)}
    v_lshrrev_b32 {v(t3)}, 4, {v(vL)}
    s_lshl_b32 s44, s25, 10
    s_add_u32 s44, s44, {ROWC_A}
    v_lshl_add_u32 {v(t0)}, {v(t2)}, 4, s44
    s_lshl_b32 s44, s26, 8
    s_add_u32 s44, s44, {CS_A}
    v_lshl_add_u32 {v(t1)}, {v(t2)}, 2, s44
    v_lshl_add_u32 {v(t1)}, {v(t3)}, 12, {v(t1)}
    v_lshlrev_b32 {v(vS16)}, 4, {v(t2)}
    v_lshl_add_u32 {v(vS16)}, {v(t3)}, 9, {v(vS16)}
    ''')
    pre += [f'ds_read_b128 {v(RC + 4 * rt, 4)}, {v(t0)} offset:{256 * rt}' for rt in range(4)]
    for t in range(4):
        for z in range(2):
            pre.append(f'ds_read2st64_b32 {v(CSF + 4 * t + 2 * z, 2)}, {v(t1)} offset0:{8 * z} offset1:{8 * z + 4}')
        if t < 3:
            pre.append(f'v_add_u32 {v(t1)}, 64, {v(t1)}')
    for c in range(f0 + SPN + 1, 10):
        chunk(c, pre if c == 9 else ())
    a(f'''
    s_lshl_b32 s44, s24, 2
    s_add_u32 s44, s44, {CD_A}
    v_mov_b32 {v(t0)}, s44
    v_mov_b32 {v(t1)}, s98
    s_waitcnt lgkmcnt(0)
    ds_write_b32 {v(t0)}, {v(t1)}
    ''')
    NEG = XF
    HH = 148
    ms = tile(19, 1) + tile(19, 2) + tile(19, 3)
    mv = [f'v_mov_b32 {v(NEG + 4 * rt + r)}, {v(RC + 4 * rt)}' for rt in range(4) for r in range(4)]
    for q, m_ in enumerate(ms):
        a(m_)
        emit(a, mv[(q * 16) // 12:((q + 1) * 16) // 12])
    stamp(a, 12)
    a(f'''
    s_mov_b32 s46, {f2u(C0)}
    s_mov_b32 s47, {f2u(C1)}
    ''')
    for rt in range(4):
        for t in range(4):
            a(m16(ACC + 16 * t + 4 * rt, CSF + 4 * t, NEG + 4 * rt))
    L_q = a.label('qepi')
    L_ed = a.label('epidone')
    a(f'''
    s_lshl_b32 s44, s27, 2
    s_lshl_b32 s45, s25, 1
    s_add_u32 s60, s44, s45
    s_cmp_eq_u32 s57, 1
    s_cbranch_scc1 {L_q}
    s_lshr_b32 s44, s49, 4
    s_lshl_b32 s45, s26, 1
    s_add_u32 s44, s44, s45
    s_mul_i32 s42, s60, 108
    s_add_u32 s42, s42, s44
    s_lshl_b32 s42, s42, 10
    s_add_u32 s43, s42, {108 * 1024}
    ''')
    E1, E2, KC = XF + 16, WF, T
    for rt in range(4):
        TT = E1 + 8 * (rt % 2)
        PP = E2 + 8 * (rt % 2)
        G_ = lambda i: ACC + 32 * (i >> 2) + 4 * rt + (i & 3)
        rho = RC + 4 * rt + 1
        a(f'''
        v_mul_f32 {v(KC)}, s46, {v(rho)}
        v_mul_f32 {v(KC + 1)}, s46, {v(rho)}
        v_mul_f32 {v(KC + 4)}, {v(rho)}, {v(rho)}
        v_mov_b32 {v(RC + 4 * rt + 3)}, {v(RC + 4 * rt + 2)}
        v_mul_f32 {v(KC + 4)}, {v(KC + 4)}, {v(rho)}
        v_mul_f32 {v(KC + 2)}, s47, {v(KC + 4)}
        v_mul_f32 {v(KC + 3)}, s47, {v(KC + 4)}
        ''')
        rc = v(RC + 4 * rt + 2, 2)
        for i in range(0, 8, 2):
            a(f'v_pk_mul_f32 {v(TT + i, 2)}, {v(G_(i), 2)}, {v(G_(i), 2)}')
        for i in range(0, 8, 2):
            a(f'v_pk_fma_f32 {v(TT + i, 2)}, {v(TT + i, 2)}, {v(KC + 2, 2)}, {v(KC, 2)}')
        for i in range(0, 8, 2):
            a(f'v_pk_mul_f32 {v(TT + i, 2)}, {v(TT + i, 2)}, {v(G_(i), 2)}')
        for i in range(8):
            a(f'v_exp_f32 {v(TT + i)}, {v(TT + i)}')
        for i in range(0, 8, 2):
            a(f'v_pk_mul_f32 {v(PP + i, 2)}, {v(G_(i), 2)}, {v(G_(i) + 16, 2)}')
        for i in range(0, 8, 2):
            a(f'v_pk_fma_f32 {v(TT + i, 2)}, {v(TT + i, 2)}, {rc}, {rc}')
        for i in range(8):
            a(f'v_rcp_f32 {v(TT + i)}, {v(TT + i)}')
        a('s_nop 0')
        for i in range(0, 8, 2):
            a(f'v_pk_mul_f32 {v(PP + i, 2)}, {v(PP + i, 2)}, {v(TT + i, 2)}')
        for i in range(4):
            a(f'v_cvt_pk_bf16_f32 {v(HH + 4 * rt + i)}, {v(PP + 2 * i)}, {v(PP + 2 * i + 1)}')
    a(f's_branch {L_ed}')
    a(f'{L_q}:')
    a(f'''
    s_sub_u32 s44, s26, 2
    s_lshl_b32 s44, s44, 6
    s_add_u32 s44, s44, s50
    s_lshl_b32 s44, s44, 6
    s_add_u32 s44, s44, {QF_OFF}
    s_mov_b32 s45, {f2u(QSC)}
    s_mul_i32 s46, s60, 40960
    s_add_u32 s46, s46, s44
    s_add_u32 s47, s46, 40960
    ''')
    for rt in range(4):
        a(f'v_mul_f32 {v(T + rt)}, s45, {v(RC + 4 * rt + 1)}')
    for rt in range(4):
        for pz in range(2):
            O_ = E1 + 4 * ((2 * rt + pz) % 8)
            regs = [ACC + 16 * (2 * pz + (i >> 2)) + 4 * rt + (i & 3) for i in range(8)]
            for r_ in regs:
                a(f'v_mul_f32 {v(r_)}, {v(r_)}, {v(T + rt)}')
            for i in range(4):
                a(f'v_cvt_pk_bf16_f32 {v(O_ + i)}, {v(regs[2 * i])}, {v(regs[2 * i + 1])}')
            a(f'buffer_store_dwordx4 {v(O_, 4)}, {v(vS16)}, s[20:23], s{46 + (rt >> 1)} offen offset:{2048 * pz + 256 * (rt & 1)} sc1')
    a(f'{L_ed}:')
    stamp(a, 13)

    a.c('=========== compute wave: attention ===========')
    al3 = Alloc(4, 168)
    T = al3('T', 16, 4)
    S = al3('S', 32, 4)
    O = al3('O', 16, 4)
    V1 = al3('V1', 4, 4)
    V2 = al3('V2', 4, 4)
    Q1 = al3('Q1', 4, 4)
    K1 = al3('K1', 8, 4)
    K2 = al3('K2', 8, 4)
    P = al3('P', 16, 4)
    Q2 = al3('Q2', 2, 2)
    vK = al3('vK')
    vK2 = al3('vK2')
    a(f'''
    s_lshl_b32 s44, s27, 1
    s_add_u32 s44, s44, s25
    s_lshl_b32 s44, s44, 13
    s_lshl_b32 s45, s28, 2
    s_add_u32 s45, s45, s26
    s_lshl_b32 s45, s45, 7
    s_add_u32 s44, s44, s45
    s_add_u32 s41, s44, {F_QH}
    s_nop 1
    ''')
    for i in range(16):
        a(f'v_mov_b32 {v(O + i)}, 0')
    for i in range(4):
        a(f'v_mov_b32 {v(V1 + i)}, 0')
        a(f'v_mov_b32 {v(V2 + i)}, 0')
    a(f'''
    s_mov_b32 s45, {KVR}
    v_lshl_add_u32 {v(vK)}, {v(vL)}, 4, s45
    v_lshl_add_u32 {v(vK2)}, {v(vL)}, 3, s45
    s_mul_i32 s45, s24, 5
    v_lshlrev_b32 {v(T + 4)}, 4, {v(vR)}
    s_lshr_b32 s44, s30, 2
    s_lshl_b32 s46, s29, 1
    s_add_u32 s44, s44, s46
    s_mul_i32 s44, s44, 40960
    s_and_b32 s46, s30, 3
    s_mul_i32 s46, s46, 10240
    s_add_u32 s44, s44, s46
    s_add_u32 s40, s44, {QF_OFF}
    ''')
    for z, (dq, useh) in enumerate(((0, 1), (2, 1), (4, 0))):
        a(f's_add_u32 s46, s45, {dq}')
        a(f'v_add_u32 {v(T + 5)}, s46, {v(vH)}' if useh else f'v_mov_b32 {v(T + 5)}, s46')
        a(f'''
        v_lshrrev_b32 {v(T + 6)}, 3, {v(T + 5)}
        v_lshl_add_u32 {v(T + 6)}, {v(T + 6)}, 11, {v(T + 4)}
        v_and_b32 {v(T + 7)}, 3, {v(T + 5)}
        v_lshl_add_u32 {v(T + 6)}, {v(T + 7)}, 9, {v(T + 6)}
        v_bfe_u32 {v(T + 5)}, {v(T + 5)}, 2, 1
        v_lshl_add_u32 {v(T + 13 + z)}, {v(T + 5)}, 3, {v(T + 6)}
        ''')
    a('s_setprio 0')
    for i in range(8):
        a(f'v_mov_b32 {v(P + 8 + i)}, 0')
    Lp, Lq = a.label('qp'), a.label('qpd')
    a(f'''
    s_mov_b32 s93, {OPOLL_MAX}
    {Lp}:
    buffer_load_dwordx2 {v(Q1, 2)}, {v(T + 13)}, s[20:23], s40 offen sc1
    buffer_load_dwordx2 {v(Q1 + 2, 2)}, {v(T + 14)}, s[20:23], s40 offen sc1
    buffer_load_dwordx2 {v(Q2, 2)}, {v(T + 15)}, s[20:23], s40 offen sc1
    s_waitcnt vmcnt(0)
    v_max3_u32 {v(T)}, {v(Q1)}, {v(Q1 + 1)}, {v(Q1 + 2)}
    v_max3_u32 {v(T + 1)}, {v(Q1 + 3)}, {v(Q2)}, {v(Q2 + 1)}
    v_max_u32 {v(T)}, {v(T)}, {v(T + 1)}
    v_cmp_eq_u32 vcc, -1, {v(T)}
    s_nop 1
    s_cmp_eq_u64 vcc, 0
    s_cbranch_scc1 {Lq}
    s_sub_u32 s93, s93, 1
    s_cbranch_scc1 {Lq}
    s_sleep {QSLEEP}
    s_branch {Lp}
    {Lq}:
    v_mov_b32 {v(T + 2)}, 0
    v_cndmask_b32 {v(Q2)}, {v(Q2)}, {v(T + 2)}, {HM}
    v_cndmask_b32 {v(Q2 + 1)}, {v(Q2 + 1)}, {v(T + 2)}, {HM}
    ''')
    stamp(a, 14)
    a('s_barrier')
    stamp(a, 15)
    o0, o1, o2 = tile_offs(0), tile_offs(1), tile_offs(2)
    a(f'''
    ds_read_b128 {v(K1, 4)}, {v(vK)} offset:{o0[0]}
    ds_read_b128 {v(K1 + 4, 4)}, {v(vK)} offset:{o1[0]}
    ds_read2st64_b64 {v(K2, 4)}, {v(vK2)} offset0:{o0[1] // 512} offset1:{o0[1] // 512 + 1}
    s_waitcnt lgkmcnt(0)
    ''')

    def set_m(mreg, offset):
        t0, t1, t2, t3 = T + 8, T + 9, T + 10, T + 11
        a(f'v_sub_f32 {v(t0)}, {f2u(-offset) if offset else 0}, {v(mreg)}')
        a(f'''
        v_cvt_pk_bf16_f32 {v(t1)}, {v(t0)}, {v(t0)}
        v_and_b32 {v(t2)}, 0xffff0000, {v(t1)}
        v_sub_f32 {v(t2)}, {v(t0)}, {v(t2)}
        v_cvt_pk_bf16_f32 {v(t1)}, {v(t0)}, {v(t2)}
        v_and_b32 {v(t3)}, 0xffff0000, {v(t1)}
        v_sub_f32 {v(t2)}, {v(t2)}, {v(t3)}
        v_mov_b32 {v(t3)}, 0
        v_cvt_pk_bf16_f32 {v(t2)}, {v(t2)}, {v(t3)}
        v_cndmask_b32 {v(Q2)}, {v(Q2)}, {v(t1)}, {HM}
        v_cndmask_b32 {v(Q2 + 1)}, {v(Q2 + 1)}, {v(t2)}, {HM}
        ''')

    def cross_half_max(reg):
        t = T + 12
        a(f'''
        v_mov_b32 {v(t)}, {v(reg)}
        s_nop 1
        v_permlane32_swap_b32 {v(reg)}, {v(t)}
        s_nop 1
        v_max_f32 {v(reg)}, {v(reg)}, {v(t)}
        ''')

    for t in range(2):
        a(mfma16(S + 16 * t, K1 + 4 * t, Q1))
    if HST < 0:
        lab = a.label('nohst')
        a(f'''
        s_cmp_eq_u32 s57, 1
        s_cbranch_scc1 {lab}
        ''')
        for k in range(4):
            a(f'buffer_store_dwordx4 {v(HH + 4 * k, 4)}, {v(vS16)}, s[20:23], s{42 + (k >> 1)} offen offset:{256 * (k & 1)} sc1')
        a(f'{lab}:')
    a('s_nop 9')
    for t in range(2):
        a(mfma8(S + 16 * t, K2 + 2 * t, Q2, S + 16 * t))
    a('s_nop 11')
    m = T + 4
    for z in range(2):
        a(f'v_max3_f32 {v(m + z)}, {v(S + 16 * z)}, {v(S + 16 * z + 1)}, {v(S + 16 * z + 2)}')
    for i in range(3, 15, 2):
        for z in range(2):
            a(f'v_max3_f32 {v(m + z)}, {v(m + z)}, {v(S + 16 * z + i)}, {v(S + 16 * z + i + 1)}')
    a(f'v_max3_f32 {v(m)}, {v(m)}, {v(S + 15)}, {v(S + 31)}')
    a(f'v_max_f32 {v(m)}, {v(m)}, {v(m + 1)}')
    cross_half_max(m)
    set_m(m, M_OFFSET)
    a('s_nop 1')
    a(mfma16(S, K1, Q1))
    a(f'''
    ds_read_b128 {v(K1, 4)}, {v(vK)} offset:{o2[0]}
    s_mov_b32 s34, 4
    s_nop 7
    ''')
    a(mfma8(S, K2, Q2, S))
    a('s_nop 9')
    stamp(a, 16)

    def toff(tt):
        tt &= 15
        o = tile_offs(tt & 3)
        return [x + (tt >> 2) * CH_BYTES for x in o]

    def k2read(reg, tt):
        o = toff(tt)[1]
        assert o % 512 == 0
        return f'ds_read2st64_b64 {v(reg, 4)}, {v(vK2)} offset0:{o // 512} offset1:{o // 512 + 1}'

    L_hf, L_hb = a.label('hflag'), a.label('hback')
    L_hs, L_hsb = a.label('hst'), a.label('hstb')
    a('s_cmp_eq_u32 s57, 1\ns_cselect_b32 s33, 99, 4')

    def slot(t):
        Sx, Sn = S + 16 * (t & 1), S + 16 * ((t + 1) & 1)
        Px, Pp = P + 8 * (t & 1), P + 8 * ((t + 1) & 1)
        kt = t + 1
        kb = kt & 1
        k2 = K2 + 4 * ((kt >> 1) & 1) + 2 * (kt & 1)
        m_ = [mfma16(Sn, K1 + 4 * kb, Q1), mfma16(O, V1, Pp, O), mfma8(Sn, k2, Q2, Sn), mfma16(O, V2, Pp + 4, O)]
        after = [[], [], [], []]
        if t & 3 == 1:
            after[0] = ['s_barrier']
        after[0] += [f'ds_read_b128 {v(K1 + 4 * kb, 4)}, {v(vK)} offset:{toff(t + 3)[0]}', 's_waitcnt lgkmcnt(2)']
        after[1] = [f'ds_read_b128 {v(V1, 4)}, {v(vK)} offset:{toff(t)[2]}']
        if t & 1:
            after[1] += [k2read(K2 + 4 * (((t + 3) >> 1) & 1), t + 3)]
        after[2] += [f's_waitcnt lgkmcnt({3 if t & 1 else 2})']
        after[3] = [f'ds_read_b128 {v(V2, 4)}, {v(vK)} offset:{toff(t)[3]}']
        if t == 15:
            after[3] += ['s_sub_u32 s34, s34, 1']
        if t == HST:
            after[3] += ['s_cmp_eq_u32 s34, s33', f's_cbranch_scc1 {L_hs}', f'{L_hsb}:']
        if t == HFLAG_T:
            after[3] += ['s_cmp_eq_u32 s34, 4', f's_cbranch_scc1 {L_hf}', f'{L_hb}:']
        val = []
        for i in range(8):
            val.append(f'v_exp_f32 {v(Sx + 2 * i)}, {v(Sx + 2 * i)}')
            val.append(f'v_exp_f32 {v(Sx + 2 * i + 1)}, {v(Sx + 2 * i + 1)}')
            if i > 0:
                val.append(f'v_cvt_pk_bf16_f32 {v(Px + i - 1)}, {v(Sx + 2 * i - 2)}, {v(Sx + 2 * i - 1)}')
        val.append(f'v_cvt_pk_bf16_f32 {v(Px + 7)}, {v(Sx + 14)}, {v(Sx + 15)}')
        groups = [val[0:5], val[5:11], val[11:17], val[17:24]]
        for g in range(4):
            a(m_[g])
            emit(a, after[g])
            emit(a, groups[g])

    a(k2read(K2 + 4, 2))
    L_loop = a.label('att')
    a('.p2align 6')
    a(f'{L_loop}:')
    for t in range(16):
        slot(t)
    a(f'''
    s_cmp_lg_u32 s34, 0
    s_cbranch_scc1 {L_loop}
    s_waitcnt lgkmcnt(0)
    ''')
    a(mfma16(O, V1, P + 8, O))
    a(mfma16(O, V2, P + 12, O))
    a(f'''
    v_lshlrev_b32 {v(T + 2)}, 4, {v(vL)}
    v_lshlrev_b32 {v(T + 3)}, 3, {v(vL)}
    v_mov_b32 {v(T + 9)}, 0x7f000000
    v_cndmask_b32 {v(T + 3)}, {v(T + 3)}, {v(T + 9)}, {HM}
    v_lshlrev_b32 {v(T + 4)}, 3, {v(vR)}
    v_lshl_add_u32 {v(T + 4)}, {v(vH)}, 9, {v(T + 4)}
    v_mov_b32 {v(T + 5)}, {SX_A}
    ds_read_b32 {v(T + 5)}, {v(T + 5)}
    s_nop 4
    ''')
    stamp(a, 17)
    L_fb = a.label('fb')
    L_out = a.label('aout')
    a(f'''
    s_mov_b32 s44, {f2u(2.0 ** 120)}
    s_mov_b32 s45, {f2u(2.0 ** -103)}
    v_add_f32 {v(T)}, |{v(O)}|, |{v(O + 1)}|
    v_add_f32 {v(T + 1)}, |{v(O + 2)}|, |{v(O + 3)}|
    ''')
    for i in range(4, 12, 2):
        a(f'v_add_f32 {v(T)}, {v(T)}, |{v(O + i)}|')
        a(f'v_add_f32 {v(T + 1)}, {v(T + 1)}, |{v(O + i + 1)}|')
    a(f'''
    v_add_f32 {v(T)}, {v(T)}, {v(T + 1)}
    v_add_f32 {v(T + 1)}, {v(T)}, {v(O + 12)}
    s_waitcnt lgkmcnt(0)
    v_readfirstlane_b32 s38, {v(T + 5)}
    v_cmp_le_f32 s[46:47], s45, {v(T)}
    v_cmp_gt_f32 s[48:49], s44, {v(T + 1)}
    s_nop 1
    s_and_b64 s[46:47], s[46:47], s[48:49]
    s_cmp_eq_u64 s[46:47], -1
    s_cbranch_scc0 {L_fb}
    {L_out}:
    v_rcp_f32 {v(T)}, {v(O + 12)}
    s_nop 0
    ''')
    for i in range(12):
        a(f'v_mul_f32 {v(O + i)}, {v(O + i)}, {v(T)}')
    for i in range(6):
        a(f'v_cvt_pk_bf16_f32 {v(P + i)}, {v(O + 2 * i)}, {v(O + 2 * i + 1)}')
    L_pl, L_st = a.label('oplain'), a.label('ostored')
    a(f'''
    s_cmp_eq_u32 s38, s98
    s_cbranch_scc1 {L_pl}
    buffer_store_dwordx4 {v(P, 4)}, {v(T + 2)}, s[20:23], s36 offen sc1
    buffer_store_dwordx2 {v(P + 4, 2)}, {v(T + 3)}, s[20:23], s37 offen sc1
    s_branch {L_st}
    {L_pl}:
    buffer_store_dwordx4 {v(P, 4)}, {v(T + 2)}, s[20:23], s36 offen
    buffer_store_dwordx2 {v(P + 4, 2)}, {v(T + 3)}, s[20:23], s37 offen
    {L_st}:
    ''')
    stamp(a, 18)
    g2_ids(a)
    OFR = 120
    a(f'''
    s_cmp_eq_u32 s25, 1
    s_cselect_b32 s44, s60, s59
    s_mul_i32 s44, s44, 40960
    s_add_u32 s44, s44, {OF_OFF}
    s_lshl_b32 s45, s26, 13
    s_add_u32 s38, s44, s45
    s_add_u32 s38, s38, 3072
    s_add_u32 s39, s38, 4096
    s_lshl_b32 s45, s26, 11
    s_add_u32 s40, s44, s45
    s_add_u32 s40, s40, 32768
    s_mul_i32 s44, s26, 14336
    s_lshl_b32 s45, s25, 10
    s_add_u32 s44, s44, s45
    s_add_u32 s44, s44, {OL_A}
    v_add_u32 {v(T + 5)}, s44, {v(T + 2)}
    s_barrier
    ''')
    Lp, Lq = a.label('cop'), a.label('copd')
    a(f's_mov_b32 s93, {OPOLL_MAX}\n{Lp}:')
    for q in range(5):
        a(f'buffer_load_dwordx4 {v(OFR + 4 * q, 4)}, {v(T + 2)}, s[20:23], {"s38" if q < 4 else "s39"} offen offset:{1024 * (q & 3)} sc1')
    for q in range(4):
        a(f'buffer_load_dwordx2 {v(OFR + 20 + 2 * q, 2)}, {v(T + 4)}, s[20:23], s40 offen offset:{1024 * (q >> 1) + 256 * (q & 1)} sc1')
    a('s_waitcnt vmcnt(0)')
    a(f'v_max3_u32 {v(T)}, {v(OFR)}, {v(OFR + 1)}, {v(OFR + 2)}')
    for i in range(3, 27, 2):
        a(f'v_max3_u32 {v(T)}, {v(T)}, {v(OFR + i)}, {v(OFR + i + 1)}')
    a(f'''
    v_max_u32 {v(T)}, {v(T)}, {v(OFR + 27)}
    v_cmp_eq_u32 vcc, -1, {v(T)}
    s_nop 1
    s_cmp_eq_u64 vcc, 0
    s_cbranch_scc1 {Lq}
    s_sub_u32 s93, s93, 1
    s_cbranch_scc1 {Lq}
    s_sleep {OSLEEP}
    s_branch {Lp}
    {Lq}:
    ''')
    for q in range(7):
        a(f'ds_write_b128 {v(T + 5)}, {v(OFR + 4 * q, 4)} offset:{2048 * q}')
    stamp(a, 21)
    if FFL:
        a(f'''
        s_lshl_b32 s44, s24, 2
        s_add_u32 s44, s44, {OW_A}
        v_mov_b32 {v(T)}, s44
        v_mov_b32 {v(T + 1)}, s98
        s_waitcnt lgkmcnt(0)
        ds_write_b32 {v(T)}, {v(T + 1)}
        ''')
    g2_out(a, S, vL, 's24', 0)
    if not FFL:
        a('s_waitcnt lgkmcnt(0)')
        a('s_barrier')
    a('s_barrier')
    stamp(a, 19)
    g2_out(a, S, vL, 's24', 1)
    if asmlib.STAMPS:
        a('s_waitcnt vmcnt(0)')
    stamp(a, 20)
    diag_end(a)
    a(f's_branch {L_end}')

    if HST >= 0:
        a(f'{L_hs}:')
        for k in range(4):
            a(f'buffer_store_dwordx4 {v(HH + 4 * k, 4)}, {v(vS16)}, s[20:23], s{42 + (k >> 1)} offen offset:{256 * (k & 1)} sc1')
        a(f's_branch {L_hsb}')
    a(f'{L_hf}:')
    a('s_waitcnt vmcnt(0)')
    flag_store(a, 's41', T + 2)
    a(f's_branch {L_hb}')
    a(f'{L_fb}:')
    L1 = a.label('fb1')
    L2 = a.label('fb2')
    a(f'''
    v_lshlrev_b32 {v(T + 13)}, 4, {v(vL)}
    v_lshlrev_b32 {v(T + 7)}, 3, {v(vL)}
    v_mov_b32 {v(T + 14)}, 0
    v_mov_b32 {v(T + 15)}, 0xff800000
    v_cndmask_b32 {v(Q2)}, {v(Q2)}, {v(T + 14)}, {HM}
    v_cndmask_b32 {v(Q2 + 1)}, {v(Q2 + 1)}, {v(T + 14)}, {HM}
    s_mov_b32 s77, {KV_OFF}
    s_mov_b32 s34, 32
    {L1}:
    buffer_load_dwordx4 {v(K1, 4)}, {v(T + 13)}, s[20:23], s77 offen sc1
    buffer_load_dwordx4 {v(K1 + 4, 4)}, {v(T + 13)}, s[20:23], s77 offen offset:1024 sc1
    buffer_load_dwordx2 {v(K2, 2)}, {v(T + 7)}, s[20:23], s77 offen offset:2048 sc1
    buffer_load_dwordx2 {v(K2 + 2, 2)}, {v(T + 7)}, s[20:23], s77 offen offset:2560 sc1
    s_waitcnt vmcnt(0)
    ''')
    for t in range(2):
        a(mfma16(S + 16 * t, K1 + 4 * t, Q1))
    a('s_nop 9')
    for t in range(2):
        a(mfma8(S + 16 * t, K2 + 2 * t, Q2, S + 16 * t))
    a('s_nop 15')
    for i in range(0, 32, 2):
        a(f'v_max3_f32 {v(T + 15)}, {v(T + 15)}, {v(S + i)}, {v(S + i + 1)}')
    a(f'''
    s_add_u32 s77, s77, 7168
    s_sub_u32 s34, s34, 1
    s_cmp_lg_u32 s34, 0
    s_cbranch_scc1 {L1}
    ''')
    cross_half_max(T + 15)
    set_m(T + 15, 0.0)
    for i in range(16):
        a(f'v_mov_b32 {v(O + i)}, 0')
    a(f'''
    s_mov_b32 s77, {KV_OFF}
    s_mov_b32 s34, 64
    {L2}:
    s_and_b32 s78, s34, 1
    s_lshl_b32 s79, s78, 10
    s_add_u32 s79, s79, s77
    s_lshl_b32 s80, s78, 9
    s_add_u32 s80, s80, s77
    s_lshl_b32 s81, s78, 11
    s_add_u32 s81, s81, s77
    s_add_u32 s81, s81, 3072
    buffer_load_dwordx4 {v(K1, 4)}, {v(T + 13)}, s[20:23], s79 offen sc1
    buffer_load_dwordx2 {v(K2, 2)}, {v(T + 7)}, s[20:23], s80 offen offset:2048 sc1
    buffer_load_dwordx4 {v(V1, 4)}, {v(T + 13)}, s[20:23], s81 offen sc1
    buffer_load_dwordx4 {v(V2, 4)}, {v(T + 13)}, s[20:23], s81 offen offset:1024 sc1
    s_waitcnt vmcnt(0)
    {mfma16(S, K1, Q1)}
    s_nop 10
    {mfma8(S, K2, Q2, S)}
    s_nop 15
    ''')
    for i in range(16):
        a(f'v_exp_f32 {v(S + i)}, {v(S + i)}')
    a('s_nop 0')
    for i in range(8):
        a(f'v_cvt_pk_bf16_f32 {v(P + i)}, {v(S + 2 * i)}, {v(S + 2 * i + 1)}')
    a(f'''
    s_nop 1
    {mfma16(O, V1, P, O)}
    {mfma16(O, V2, P + 4, O)}
    s_mul_i32 s78, s78, 7168
    s_add_u32 s77, s77, s78
    s_sub_u32 s34, s34, 1
    s_cmp_lg_u32 s34, 0
    s_cbranch_scc1 {L2}
    s_nop 15
    s_branch {L_out}
    ''')


def g2_ids(a):
    a('''
    s_lshr_b32 s57, s30, 1
    s_and_b32 s58, s30, 1
    s_lshl_b32 s44, s29, 1
    s_add_u32 s59, s44, s58
    s_xor_b32 s60, s59, 1
    s_mul_i32 s44, s57, 320
    s_lshl_b32 s45, s58, 7
    s_add_u32 s61, s44, s45
    ''')


def g2_out(a, T, vL, wsg, part):
    L_skip = a.label('g2o')
    a(f'''
    s_cmp_ge_u32 {wsg}, 10
    s_cbranch_scc1 {L_skip}
    ''')
    if part == 0:
        a(f'''
        s_lshr_b32 s45, {wsg}, 1
        s_and_b32 s46, {wsg}, 1
        s_lshl_b32 s46, s46, 4
        v_lshrrev_b32 {v(T)}, 2, {v(vL)}
        v_add_u32 {v(T)}, s46, {v(T)}
        v_and_b32 {v(T + 1)}, 3, {v(vL)}
        s_and_b32 s47, s45, 1
        s_cmp_eq_u32 s47, 1
        s_cselect_b32 s47, s60, s59
        s_mul_i32 s47, s47, {32 * 1280}
        s_lshr_b32 s48, s45, 1
        s_add_u32 s49, s48, s58
        s_lshl_b32 s49, s49, 6
        s_lshl_b32 s50, s58, 7
        s_sub_u32 s50, 128, s50
        s_cmp_eq_u32 s48, 2
        s_cselect_b32 s49, s50, s49
        s_add_u32 s47, s47, s49
        s_add_u32 s31, s47, s61
        v_mul_u32_u24 {v(T + 6)}, 1280, {v(T)}
        v_lshl_add_u32 {v(T + 6)}, {v(T + 1)}, 4, {v(T + 6)}
        buffer_load_dwordx4 {v(T + 2, 4)}, {v(T + 6)}, s[8:11], s31 offen
        v_lshlrev_b32 {v(T + 1)}, 1, {v(T + 1)}
        v_and_b32 {v(T + 7)}, 7, {v(T)}
        v_xor_b32 {v(T + 1)}, {v(T + 1)}, {v(T + 7)}
        v_lshlrev_b32 {v(T)}, 7, {v(T)}
        v_lshl_add_u32 {v(T)}, {v(T + 1)}, 4, {v(T)}
        s_lshl_b32 s47, s45, 12
        v_add_u32 {v(T)}, s47, {v(T)}
        v_xor_b32 {v(T + 1)}, 16, {v(T)}
        ''')
    else:
        for w in range(4):
            if w == 2:
                a(f'v_add_u32 {v(T)}, {WO_HI}, {v(T)}\nv_add_u32 {v(T + 1)}, {WO_HI}, {v(T + 1)}')
            a(f'ds_read_b128 {v(T + 8 + 8 * w, 4)}, {v(T)} offset:{21504 * (w & 1)}')
            a(f'ds_read_b128 {v(T + 12 + 8 * w, 4)}, {v(T + 1)} offset:{21504 * (w & 1)}')
        a('s_waitcnt vmcnt(0)')
        for i in range(4):
            a(f'''
            v_lshlrev_b32 {v(T + 40 + 2 * i)}, 16, {v(T + 2 + i)}
            v_and_b32 {v(T + 41 + 2 * i)}, 0xffff0000, {v(T + 2 + i)}
            ''')
        a('s_waitcnt lgkmcnt(4)')
        for i in range(0, 8, 2):
            a(f'v_pk_add_f32 {v(T + 8 + i, 2)}, {v(T + 8 + i, 2)}, {v(T + 16 + i, 2)}')
        for i in range(0, 8, 2):
            a(f'v_pk_add_f32 {v(T + 8 + i, 2)}, {v(T + 8 + i, 2)}, {v(T + 40 + i, 2)}')
        a('s_waitcnt lgkmcnt(0)')
        for i in range(0, 8, 2):
            a(f'v_pk_add_f32 {v(T + 24 + i, 2)}, {v(T + 24 + i, 2)}, {v(T + 32 + i, 2)}')
        for i in range(0, 8, 2):
            a(f'v_pk_add_f32 {v(T + 8 + i, 2)}, {v(T + 8 + i, 2)}, {v(T + 24 + i, 2)}')
        for i in range(4):
            a(f'v_cvt_pk_bf16_f32 {v(T + 16 + i)}, {v(T + 8 + 2 * i)}, {v(T + 9 + 2 * i)}')
        a(f'buffer_store_dwordx4 {v(T + 16, 4)}, {v(T + 6)}, s[64:67], s31 offen{OUTSC}')
    a(f'{L_skip}:')


def aux_wave(a, vL, vH, vR, L_end, WDP, a_start):
    al = Alloc(4, 168)
    T = al('T', 16, 4)
    vXD = al('xd', 2)
    vWD = al('wd', 2)
    vKD = al('kd')
    vKX = al('kx')
    vKW = al('kw')
    XR = al('xr', 10, 2)
    CR = al('cr', 20, 2)
    PF = al('pf', 2)
    AKV = al('akv', 16, 4)
    KXF = al('kxf', 4, 4)
    KWF = al('kwf', 4, 4)
    FX = al('fx', 16, 4)
    RD = al('rd', 48, 4)
    JA = al('ja', 2, 2)
    JS = al('js')
    t0, t1, t2, t3, t4, t5 = T, T + 1, T + 2, T + 3, T + 4, T + 5
    vm = VM()
    a.c('=========== aux wave: phase 1 ===========')
    assert (vXD, vWD, vKD) == (20, 22, 24)

    def dma_group(c, kvonly=False):
        st = c % 3
        lab = a.label('nokv')
        a(f'''
        {f's_add_u32 s35, s100, {c}' if ROT else f's_and_b32 s35, s100, {7 if c < 8 else 1}'}
        {'s_sub_u32 s34, s35, 10' if ROT else f's_xor_b32 s35, s35, {c}'}
        {'s_cselect_b32 s35, s35, s34' if ROT else ''}
        s_mul_i32 s33, s32, s35
        s_mul_i32 s34, s35, 2560
        s_lshl_b32 s35, s35, 7
        s_cmp_eq_u32 s40, 0
        s_cbranch_scc1 {lab}
        s_add_u32 m0, s38, {st * 3072}
        s_nop 0
        buffer_load_dwordx4 {v(vKD)}, s[16:19], s34 offen lds
        {lab}:
        ''')
        vm.add(f'c{c}', 1, optional=True)
        if kvonly or (NODMA and c > 2):
            vm.add(f'c{c}', 1, optional=True)
            return
        for e in range(4):
            a(f'''
            s_add_u32 m0, s36, {LDS_X + st * 16384 + e * 1024}
            s_add_u32 s34, s35, {(e >> 1) * 16 * 1280}
            buffer_load_dwordx4 {v(vXD + (e & 1))}, s[8:11], s34 offen lds
            ''')
        for e in range(8):
            a(f'''
            s_add_u32 m0, s37, {st * 8192 + e * 1024}
            s_nop 0
            buffer_load_dwordx4 {v(vWD + (e & 1))}, s[12:15], s33 offen lds
            ''')
            if e < 7:
                a('s_add_u32 s33, s33, s31')
        vm.add(f'c{c}', 12)

    vm.add('c0', 4)
    vm.add('c0', 1, optional=True)
    if not LATE1:
        vm.add('c1', 4)
        vm.add('c1', 1, optional=True)

    def jit(c):
        if not JIT or c > 9:
            return
        lab = a.label('nojit')
        a(f'''
        s_cmp_lg_u32 s26, 3
        s_cbranch_scc1 {lab}
        global_load_dword v165, {v(JA, 2)}, off
        v_add_co_u32 {v(JA)}, vcc, {v(JA)}, {v(JS)}
        s_nop 1
        v_addc_co_u32 {v(JA + 1)}, vcc, 0, {v(JA + 1)}, vcc
        {lab}:
        ''')
        vm.add('jit', 1, optional=True)

    if JIT:
        a(f'v_mov_b32 {v(JA)}, s68\nv_mov_b32 {v(JA + 1)}, s69')
        lab = a.label('nojs')
        a(f'''
        s_cmp_lg_u32 s26, 3
        s_cbranch_scc1 {lab}
        s_lshr_b32 s44, s2, 3
        s_and_b32 s45, s44, 7
        s_lshr_b32 s46, s44, 3
        s_lshl_b32 s46, s46, 5
        s_lshl_b32 s47, s27, 7
        s_add_u32 s46, s46, s47
        v_add_u32 {v(t0)}, s46, {v(vR)}
        v_mul_u32_u24 {v(t0)}, 1280, {v(t0)}
        v_add_u32 {v(t0)}, {128 * JIT}, {v(t0)}
        v_bfe_u32 {v(t1)}, {v(vL)}, 3, 1
        v_bfe_u32 {v(t2)}, {v(vL)}, 4, 1
        v_and_b32 {v(t3)}, s48, {v(t1)}
        v_cmp_eq_u32 s[58:59], 1, {v(t3)}
        v_cmp_eq_u32 s[60:61], 1, {v(t2)}
        v_mov_b32 {v(t4)}, 3456
        v_mov_b32 {v(t5)}, 1280
        v_cndmask_b32 {v(t4)}, {v(t4)}, {v(t5)}, s[58:59]
        s_xor_b32 s44, s48, 1
        v_and_b32 {v(t5)}, s44, {v(t1)}
        v_lshlrev_b32 {v(t5)}, 6, {v(t5)}
        v_add_u32 {v(t5)}, s49, {v(t5)}
        v_lshlrev_b32 {v(t3)}, 6, {v(t2)}
        v_add_u32 {v(t3)}, s50, {v(t3)}
        v_cndmask_b32 {v(t5)}, {v(t5)}, {v(t3)}, s[58:59]
        s_lshl_b32 s45, s45, 3
        s_add_u32 s45, s45, {64 * JIT}
        v_and_b32 {v(t3)}, 7, {v(vL)}
        v_add_u32 {v(t3)}, s45, {v(t3)}
        v_mul_lo_u32 {v(t3)}, {v(t3)}, {v(t4)}
        v_lshl_add_u32 {v(t3)}, {v(t5)}, 1, {v(t3)}
        v_cndmask_b32 {v(t0)}, {v(t0)}, {v(t3)}, {HM}
        v_lshlrev_b32 {v(t4)}, 6, {v(t4)}
        v_mov_b32 {v(t5)}, 128
        v_cndmask_b32 {v(JS)}, {v(t5)}, {v(t4)}, {HM}
        ''')
        for z in range(2):
            a(f'''
            v_mov_b32 {v(t1)}, s{80 + z}
            v_mov_b32 {v(t2)}, s{82 + z}
            v_cndmask_b32 {v(t1)}, {v(t1)}, {v(t2)}, s[60:61]
            v_mov_b32 {v(t2)}, s{70 + z}
            v_cndmask_b32 {v(t1)}, {v(t1)}, {v(t2)}, s[58:59]
            v_mov_b32 {v(t2)}, s{68 + z}
            v_cndmask_b32 {v(JA + z)}, {v(t2)}, {v(t1)}, {HM}
            ''')
        a(f'''
        v_add_co_u32 {v(JA)}, vcc, {v(JA)}, {v(t0)}
        s_nop 1
        v_addc_co_u32 {v(JA + 1)}, vcc, 0, {v(JA + 1)}, vcc
        {lab}:
        ''')
        for c in range(JIT, JITD):
            jit(c)
    srd(a, 4, 76, 256)
    lab = a.label('nononce')
    a(f'''
    s_or_b32 s44, s2, s26
    s_cmp_lg_u32 s44, 0
    s_cbranch_scc1 {lab}
    s_memrealtime s[44:45]
    s_waitcnt lgkmcnt(0)
    s_or_b32 s44, s44, 1
    v_mov_b32 {v(t0)}, s44
    s_mov_b64 exec, 1
    buffer_store_dword {v(t0)}, off, s[4:7], 0 sc1
    s_mov_b64 exec, -1
    {lab}:
    ''')
    vm.add('nonce', 1, optional=True)
    a(f'''
    s_and_b32 s56, s28, 3
    v_lshrrev_b32 {v(t0)}, 1, {v(vR)}
    v_and_b32 {v(t0)}, 7, {v(t0)}
    v_xor_b32 {v(t0)}, {v(t0)}, {v(vH)}
    s_lshl_b32 s44, s26, 1
    v_xor_b32 {v(t0)}, s44, {v(t0)}
    v_lshlrev_b32 {v(t3)}, 7, {v(vR)}
    v_lshl_add_u32 {v(t0)}, {v(t0)}, 4, {v(t3)}
    s_lshl_b32 s44, s56, 12
    v_add_u32 {v(vKX)}, s44, {v(t0)}
    v_bfe_u32 {v(t0)}, {v(vL)}, 2, 2
    v_lshl_add_u32 {v(t0)}, {v(vH)}, 3, {v(t0)}
    v_mul_u32_u24 {v(t0)}, 40, {v(t0)}
    v_bfe_u32 {v(t3)}, {v(vL)}, 4, 1
    v_and_b32 {v(t4)}, 3, {v(vL)}
    v_lshl_add_u32 {v(t3)}, {v(t3)}, 2, {v(t4)}
    v_min_u32 {v(t3)}, 4, {v(t3)}
    v_lshl_add_u32 {v(t0)}, {v(t3)}, 3, {v(t0)}
    s_mul_i32 s44, s26, 640
    s_add_u32 s44, s44, {LDS_KV}
    v_add_u32 {v(vKW)}, s44, {v(t0)}
    ''')
    for i in range(16):
        a(f'v_mov_b32 {v(AKV + i)}, 0')

    if LATE1:
        a_start(1)
        vm.add('c1', 4)
        vm.add('c1', 1, optional=True)

    def colsum(src_tag_wait, store_code):
        a(f's_waitcnt vmcnt({src_tag_wait})')
        a(f'''
        v_lshlrev_b32 {v(t0)}, 16, {v(CR)}
        v_and_b32 {v(t1)}, 0xffff0000, {v(CR)}
        ''')
        for t in range(1, 20):
            a(f'''
            v_lshlrev_b32 {v(t2)}, 16, {v(CR + t)}
            v_and_b32 {v(t3)}, 0xffff0000, {v(CR + t)}
            v_add_f32 {v(t0)}, {v(t0)}, {v(t2)}
            v_add_f32 {v(t1)}, {v(t1)}, {v(t3)}
            ''')
        a(f'''
        s_nop 1
        v_permlane32_swap_b32 {v(t0)}, {v(t1)}
        s_nop 1
        v_add_f32 {v(t0)}, {v(t0)}, {v(t1)}
        v_cvt_pk_bf16_f32 {v(t1)}, {v(t0)}, {v(t0)}
        v_and_b32 {v(t1)}, 0xffff0000, {v(t1)}
        v_sub_f32 {v(t1)}, {v(t0)}, {v(t1)}
        v_cvt_pk_bf16_f32 {v(t0)}, {v(t0)}, {v(t1)}
        ''')
        store_code()

    a('''
    s_lshl_b32 s41, s27, 10
    s_and_b32 s44, s28, 11
    s_cmp_eq_u32 s44, 0
    s_cselect_b32 s42, 1, 0
    s_cmp_eq_u32 s26, 3
    s_cselect_b32 s42, s42, 0
    ''')

    def kv_step(c, part):
        st = c % 3
        lab = a.label('kvs')
        a(f's_cmp_eq_u32 s54, 0\ns_cbranch_scc1 {lab}')
        if part == 0:
            a(f'''
            ds_read_b128 {v(KXF, 4)}, {v(vKX)} offset:{LDS_X + st * 16384}
            ds_read_b64_tr_b16 {v(KWF, 2)}, {v(vKW)} offset:{st * 3072}
            ds_read_b64_tr_b16 {v(KWF + 2, 2)}, {v(vKW)} offset:{st * 3072 + 160}
            ''')
        else:
            a('s_waitcnt lgkmcnt(0)')
            a(mfma16(AKV, KWF, KXF, AKV))
        a(f'{lab}:')

    for c in range(10):
        a.c(f'aux chunk {c}')
        if c == 0:
            stamp(a, 22)
        if c <= 8:
            a(f's_waitcnt vmcnt({vm.wait(f"c{c}") if c != 5 else min(vm.wait("c5"), vm.wait("st"), vm.wait("nl"))})')
        else:
            a('s_waitcnt vmcnt(0)')
        a('s_barrier')
        if not FEWST or c in (0, 1, 2, 9):
            stamp(a, 1 + c)
        if asmlib.STAMPS:
            vm.add('stamp', 1, optional=True)
        if c == 3:
            a(f'buffer_load_dword {v(PF)}, off, s[4:7], 0 sc1')
            vm.add('nl', 1)
        kv_step(c, 0)
        if c == P3C:
            lab = a.label('nop3')
            a(f'''
            v_lshlrev_b32 {v(T + 8)}, 3, {v(vL)}
            v_lshlrev_b32 {v(T + 10)}, 7, {v(vL)}
            v_and_b32 {v(T + 11)}, 0x780, {v(T + 10)}
            s_cmp_lg_u32 s26, 3
            s_cbranch_scc1 {lab}
            s_lshl_b32 s44, s27, 13
            s_add_u32 s44, s44, {F_ST}
            s_lshl_b32 s45, s28, 13
            s_add_u32 s45, s45, {F_CS}
            s_and_b32 s58, s28, 4
            s_lshl_b32 s58, s58, 9
            s_add_u32 s58, s58, {F_KC}
            ''')
            a(f'''
            s_mov_b32 s60, s44
            s_mov_b32 s61, s45
            s_lshr_b32 s59, s29, 1
            s_lshl_b32 s59, s59, 13
            s_add_u32 s59, s59, {F_ST}
            buffer_load_dwordx2 {v(FX + 6, 2)}, {v(T + 10)}, s[20:23], s59 offen sc1
            buffer_load_dwordx2 {v(FX, 2)}, {v(T + 10)}, s[20:23], s60 offen sc1
            buffer_load_dwordx2 {v(FX + 2, 2)}, {v(T + 10)}, s[20:23], s61 offen sc1
            buffer_load_dwordx2 {v(FX + 4, 2)}, {v(T + 11)}, s[20:23], s58 offen sc1
            {lab}:
            ''')
        jit(c + JITD)
        if (1 if EARLY2 else 0) <= c and c + 2 < 10:
            dma_group(c + 2)
        kv_step(c, 1)
        if c == P3C:
            lab = a.label('nop3b')
            a(f'''
            s_cmp_lg_u32 s26, 3
            s_cbranch_scc1 {lab}
            s_waitcnt vmcnt(12)
            v_cmp_eq_u64 vcc, s[98:99], {v(FX, 2)}
            v_cmp_eq_u64 s[46:47], s[98:99], {v(FX + 2, 2)}
            v_cmp_eq_u64 s[44:45], s[98:99], {v(FX + 4, 2)}
            v_cmp_eq_u64 s[48:49], s[98:99], {v(FX + 6, 2)}
            s_nop 1
            s_and_b64 vcc, vcc, s[46:47]
            s_and_b64 vcc, vcc, s[44:45]
            s_and_b64 vcc, vcc, s[48:49]
            s_cmp_eq_u64 vcc, -1
            s_cbranch_scc1 {lab}
            ''')
            polln(a, FX, [T + 10, T + 10, T + 11], [('s60', None), ('s61', None), ('s58', None)], 4)
            polln(a, FX, [T + 10], [('s59', None)], 4)
            a(f'{lab}:')
        if c == 2:
            lab = a.label('nokvcs')
            a(f'''
            s_cmp_eq_u32 s42, 0
            s_cbranch_scc1 {lab}
            s_mul_i32 s44, s27, 40
            v_add_u32 {v(t1)}, s44, {v(vH)}
            v_mul_u32_u24 {v(t2)}, 40, {v(t1)}
            v_lshl_add_u32 {v(t2)}, {v(vR)}, 2, {v(t2)}
            ''')
            for t in range(20):
                a(f'buffer_load_dword {v(CR + t)}, {v(t2)}, s[16:19], 0 offen offset:{80 * t}')
            a(f'{lab}:')
            vm.add('kcr', 20, optional=True)
        if c == 3:
            lab = a.label('nokvcs2')
            a(f's_cmp_eq_u32 s42, 0\ns_cbranch_scc1 {lab}')

            def kcs_store():
                a(f'''
                v_lshl_add_u32 {v(t1)}, {v(vR)}, 1, {v(vH)}
                v_lshlrev_b32 {v(t2)}, 2, {v(t1)}
                v_mov_b32 {v(t3)}, 0x7f000000
                v_cmp_gt_u32 vcc, 32, {v(t1)}
                s_lshl_b32 s44, s28, 9
                s_lshl_b32 s45, s27, 7
                s_add_u32 s44, s44, s45
                s_add_u32 s44, s44, {CSKVW}
                v_cndmask_b32 {v(t2)}, {v(t3)}, {v(t2)}, vcc
                buffer_store_dword {v(t0)}, {v(t2)}, s[20:23], s44 offen sc1
                ''')
            colsum(vm.wait('kcr'), kcs_store)
            a(f'{lab}:')
            vm.add('st', 1, optional=True)
        if c == 5:
            Lp = a.label('np')
            Lq = a.label('npd')
            Lr = a.label('nokcf')
            a(f'''
            s_mov_b32 s93, {POLL_MAX}
            {Lp}:
            v_readfirstlane_b32 s98, {v(PF)}
            s_cmp_lg_u32 s98, 0
            s_cbranch_scc1 {Lq}
            s_sub_u32 s93, s93, 1
            s_cbranch_scc1 {Lq}
            buffer_load_dword {v(PF)}, off, s[4:7], 0 sc1
            s_waitcnt vmcnt(0)
            s_branch {Lp}
            {Lq}:
            s_xor_b32 s99, s98, {NONCE_X}
            s_lshl_b32 s44, s28, 9
            s_lshl_b32 s45, s27, 7
            s_add_u32 s44, s44, s45
            s_add_u32 s44, s44, {F_KC}
            s_cmp_eq_u32 s42, 0
            s_cbranch_scc1 {Lr}
            ''')
            flag_store(a, 's44', T + 2)
            a(f'{Lr}:')
            vm.add('fl', 1, optional=True)
        if P1PF and c in (6, 7):
            if c == 6:
                srd(a, 4, WDP, 2211840)
                a(f'''
                s_lshr_b32 s44, s2, 6
                s_mul_i32 s44, s44, {432 * 1280}
                s_bfe_u32 s45, s2, 0x30003
                s_mul_i32 s45, s45, {180 * 128}
                s_add_u32 s44, s44, s45
                s_mul_i32 s45, s26, {45 * 128}
                s_add_u32 s57, s44, s45
                v_lshlrev_b32 {v(PF + 1)}, 7, {v(vL)}
                ''')
            for z in range(2 if c == 6 else 1):
                a(f'''
                s_mov_b32 exec_hi, {(1 << 13) - 1}
                buffer_load_dword v165, {v(PF + 1)}, s[4:7], s57 offen
                s_mov_b32 exec_hi, -1
                s_add_u32 s57, s57, {144 * 1280}
                ''')
                vm.add('pf', 1)
        if c == 8:
            a(f'''
            v_lshlrev_b32 {v(T + 9)}, 4, {v(vL)}
            s_lshl_b32 s44, s28, 14
            s_lshl_b32 s45, s26, 12
            s_add_u32 s44, s44, s45
            s_add_u32 s44, s44, {CSW}
            ''')
            for e in range(4):
                a(f'''
                s_add_u32 m0, s45, {CS_A + 1024 * e}
                s_nop 0
                buffer_load_dwordx4 {v(T + 9)}, s[20:23], s44 offen{LD} lds
                s_add_u32 s44, s44, 1024
                ''')
            lab = a.label('norc')
            a(f'''
            s_cmp_lg_u32 s26, 0
            s_cbranch_scc1 {lab}
            s_lshl_b32 s44, s27, 11
            s_add_u32 s44, s44, {ROWW}
            s_mov_b32 m0, {ROWC_A}
            s_and_b32 s45, s28, 4
            buffer_load_dwordx4 {v(T + 9)}, s[20:23], s44 offen{LD} lds
            buffer_load_dwordx4 {v(T + 9)}, s[20:23], s44 offen offset:1024{LD} lds
            s_lshl_b32 s45, s45, 9
            s_add_u32 s45, s45, {CSKVW}
            s_mov_b32 m0, {CSKV_A}
            s_nop 0
            buffer_load_dwordx4 {v(T + 9)}, s[20:23], s45 offen{LD} lds
            buffer_load_dwordx4 {v(T + 9)}, s[20:23], s45 offen offset:1024{LD} lds
            {lab}:
            ''')
    L_p2 = a.label('auxp2')
    L_v = a.label('vepi')
    L_a0 = a.label('aux0f')
    lab = a.label('nokvfin')
    lab2 = a.label('nofix')
    a(f'''
    s_cmp_eq_u32 s54, 0
    s_cbranch_scc1 {lab}
    s_cmp_lg_u32 s26, 0
    s_cbranch_scc1 {lab2}
    s_lshl_b32 s44, s56, 9
    s_add_u32 s44, s44, {ROWC_A}
    v_lshl_add_u32 {v(t0)}, {v(vR)}, 4, s44
    v_lshlrev_b32 {v(t1)}, 2, {v(vR)}
    v_lshl_add_u32 {v(t1)}, {v(vH)}, 9, {v(t1)}
    v_add_u32 {v(t1)}, {CSKV_A}, {v(t1)}
    v_add_u32 {v(t2)}, 1024, {v(t1)}
    ds_read_b128 {v(FX, 4)}, {v(t0)}
    ds_read2_b32 {v(FX + 8, 2)}, {v(t1)} offset0:0 offset1:32
    ds_read2_b32 {v(FX + 10, 2)}, {v(t1)} offset0:64 offset1:96
    ds_read2_b32 {v(FX + 12, 2)}, {v(t2)} offset0:0 offset1:32
    ds_read2_b32 {v(FX + 14, 2)}, {v(t2)} offset0:64 offset1:96
    s_waitcnt lgkmcnt(4)
    v_mov_b32 {v(FX + 4)}, {v(FX)}
    v_mov_b32 {v(FX + 5)}, {v(FX)}
    v_mov_b32 {v(FX + 6)}, {v(FX)}
    v_mov_b32 {v(FX + 7)}, {v(FX)}
    s_waitcnt lgkmcnt(0)
    s_nop 1
    {mfma16(AKV, FX + 8, FX + 4, AKV)}
    {mfma16(AKV, FX + 12, FX + 4, AKV)}
    s_branch {L_a0}
    {lab2}:
    s_lshl_b32 s44, s26, 12
    v_add_u32 {v(t0)}, s44, {v(T + 9)}
    s_lshl_b32 s44, s26, 2
    s_add_u32 s44, s44, {PD_A}
    v_mov_b32 {v(t1)}, s44
    v_mov_b32 {v(t2)}, s98
    s_nop 11
    ''')
    for q in range(3):
        a(f'ds_write_b128 {v(t0)}, {v(AKV + 4 * q, 4)} offset:{PART_A + 1024 * q}')
    L_sp = a.label('pspin')
    L_spd = a.label('pspind')
    a(f'''
    s_waitcnt lgkmcnt(0)
    ds_write_b32 {v(t1)}, {v(t2)}
    {lab}:
    s_branch {L_p2}
    {L_a0}:
    v_mov_b32 {v(t1)}, {PD_A}
    s_mov_b32 s93, {POLL_MAX * 8}
    {L_sp}:
    ds_read_b128 {v(T + 4, 4)}, {v(t1)}
    s_waitcnt lgkmcnt(0)
    v_xor_b32 {v(T + 5)}, s98, {v(T + 5)}
    v_xor_b32 {v(T + 6)}, s98, {v(T + 6)}
    v_xor_b32 {v(T + 7)}, s98, {v(T + 7)}
    v_or3_b32 {v(T + 5)}, {v(T + 5)}, {v(T + 6)}, {v(T + 7)}
    s_nop 0
    v_readfirstlane_b32 s44, {v(T + 5)}
    s_cmp_eq_u32 s44, 0
    s_cbranch_scc1 {L_spd}
    s_sub_u32 s93, s93, 1
    s_cbranch_scc0 {L_sp}
    {L_spd}:
    ''')
    stamp(a, 12)
    for w in range(1, 4):
        for q in range(3):
            a(f'ds_read_b128 {v(RD + 12 * (w - 1) + 4 * q, 4)}, {v(T + 9)} offset:{PART_A + 4096 * w + 1024 * q}')
    a(f'''
    s_lshl_b32 s57, s27, 2
    s_add_u32 s57, s57, s56
    s_lshr_b32 s44, s57, 1
    s_mul_i32 s44, s44, 7168
    s_add_u32 s44, s44, {KV_OFF}
    s_and_b32 s45, s57, 1
    s_and_b32 s58, s28, 4
    s_lshl_b32 s58, s58, 4
    s_add_u32 s58, s58, s57
    s_lshl_b32 s58, s58, 7
    s_add_u32 s58, s58, {F_KV}
    s_waitcnt lgkmcnt(0)
    ''')
    for i in range(12):
        a(f'v_add_f32 {v(AKV + i)}, {v(AKV + i)}, {v(RD + i)}')
        a(f'v_add_f32 {v(RD + 12 + i)}, {v(RD + 12 + i)}, {v(RD + 24 + i)}')
    for i in range(12):
        a(f'v_add_f32 {v(AKV + i)}, {v(AKV + i)}, {v(RD + 12 + i)}')
    for i in range(12):
        a(f'v_mul_f32 {v(AKV + i)}, {v(AKV + i)}, {v(FX + 1)}')
    PK = RD
    for i in range(6):
        a(f'v_cvt_pk_bf16_f32 {v(PK + i)}, {v(AKV + 2 * i)}, {v(AKV + 2 * i + 1)}')
    L_kvf = a.label('kvflag')
    a(f'''
    s_bitcmp1_b32 s28, 2
    s_cbranch_scc1 {L_v}
    v_mov_b32 {v(t0)}, 0x3f803f80
    v_mov_b32 {v(t1)}, 0x00003f80
    v_cndmask_b32 {v(PK + 4)}, {v(PK + 4)}, {v(t0)}, {HM}
    v_cndmask_b32 {v(PK + 5)}, {v(PK + 5)}, {v(t1)}, {HM}
    s_lshl_b32 s46, s45, 10
    s_add_u32 s46, s46, s44
    s_lshl_b32 s47, s45, 9
    s_add_u32 s47, s47, s44
    buffer_store_dwordx4 {v(PK, 4)}, {v(T + 9)}, s[20:23], s46 offen sc1
    buffer_store_dwordx2 {v(PK + 4, 2)}, {v(T + 8)}, s[20:23], s47 offen offset:2048 sc1
    s_branch {L_kvf}
    {L_v}:
    v_mov_b32 {v(t0)}, 0
    v_cndmask_b32 {v(PK + 4)}, {v(PK + 4)}, {v(t0)}, {HM}
    v_cndmask_b32 {v(PK + 5)}, {v(PK + 5)}, {v(t0)}, {HM}
    v_mov_b32 {v(PK + 6)}, 0x00003f80
    v_mov_b32 {v(PK + 7)}, 0
    v_lshlrev_b32 {v(t0)}, 6, {v(vR)}
    v_lshl_add_u32 {v(t0)}, {v(vH)}, 3, {v(t0)}
    ds_write_b64 {v(t0)}, {v(PK, 2)} offset:{VT_A}
    ds_write_b64 {v(t0)}, {v(PK + 2, 2)} offset:{VT_A + 16}
    ds_write_b64 {v(t0)}, {v(PK + 4, 2)} offset:{VT_A + 32}
    ds_write_b64 {v(t0)}, {v(PK + 6, 2)} offset:{VT_A + 48}
    v_bfe_u32 {v(t1)}, {v(vL)}, 2, 2
    v_lshl_add_u32 {v(t1)}, {v(vH)}, 2, {v(t1)}
    v_lshlrev_b32 {v(t1)}, 6, {v(t1)}
    v_bfe_u32 {v(t2)}, {v(vL)}, 4, 1
    v_lshl_add_u32 {v(t1)}, {v(t2)}, 5, {v(t1)}
    v_and_b32 {v(t2)}, 3, {v(vL)}
    v_lshl_add_u32 {v(t1)}, {v(t2)}, 3, {v(t1)}
    s_waitcnt lgkmcnt(0)
    ds_read_b64_tr_b16 {v(PK + 8, 2)}, {v(t1)} offset:{VT_A}
    ds_read_b64_tr_b16 {v(PK + 10, 2)}, {v(t1)} offset:{VT_A + 512}
    ds_read_b64_tr_b16 {v(PK + 12, 2)}, {v(t1)} offset:{VT_A + 1024}
    ds_read_b64_tr_b16 {v(PK + 14, 2)}, {v(t1)} offset:{VT_A + 1536}
    s_lshl_b32 s46, s45, 11
    s_add_u32 s46, s46, s44
    s_add_u32 s46, s46, 3072
    s_waitcnt lgkmcnt(0)
    buffer_store_dwordx4 {v(PK + 8, 4)}, {v(T + 9)}, s[20:23], s46 offen sc1
    buffer_store_dwordx4 {v(PK + 12, 4)}, {v(T + 9)}, s[20:23], s46 offen offset:1024 sc1
    {L_kvf}:
    s_waitcnt vmcnt(0)
    ''')
    flag_store(a, 's58', T + 2)
    a(f'{L_p2}:')
    stamp(a, 13)

    a.c('=========== aux wave: phase 2 ===========')
    al = Alloc(4, 164)
    T = al('T', 8, 4)
    vWD = al('wd', 3)
    vWA = al('wa', 3)
    vHL = al('hl')
    vKO = al('ko')
    vPF = al('pf')
    ACC = al('acc', 80, 4)
    SL = al('slots', 60, 4)
    wreg = lambda k: SL + 20 * (k % 3)
    hreg = lambda k: SL + 20 * (k % 3) + 12
    a(f's_setprio {PRIO2}')
    g2_ids(a)
    srd(a, 12, WDP, 2211840)
    srd(a, 16, 84, 819200)
    a(f"""
    s_mul_i32 s44, s26, 27
    s_mul_i32 s41, s59, 108
    s_add_u32 s41, s41, s44
    s_lshl_b32 s41, s41, 10
    s_mul_i32 s42, s60, 108
    s_add_u32 s42, s42, s44
    s_lshl_b32 s42, s42, 10
    s_lshr_b32 s43, s44, 1
    s_mul_i32 s43, s43, 40960
    s_and_b32 s45, s44, 1
    s_mul_i32 s52, s45, 10240
    s_add_u32 s43, s43, s52
    s_mul_i32 s52, s45, 20480
    s_add_u32 s52, s52, 10240
    s_mov_b32 s48, 40960
    s_lshl_b32 s44, s26, 3
    s_mul_i32 s56, s44, 25600
    s_mul_i32 s54, s59, 40
    s_add_u32 s54, s54, s44
    s_lshl_b32 s54, s54, 10
    s_add_u32 s54, s54, {OF_OFF}
    s_mul_i32 s55, s60, 40
    s_add_u32 s55, s55, s44
    s_lshl_b32 s55, s55, 10
    s_add_u32 s55, s55, {OF_OFF}
    s_and_b32 s44, s26, 1
    s_mul_i32 s39, s44, 21504
    s_lshr_b32 s44, s26, 1
    s_mul_i32 s44, s44, {WO_HI}
    s_add_u32 s39, s39, s44
    s_mov_b32 s40, s39
    s_mov_b32 s45, 0x15556
    v_lshlrev_b32 {v(vHL)}, 4, {v(vL)}
    v_lshlrev_b32 {v(vPF)}, 7, {v(vL)}
    s_lshl_b32 s36, s26, 12
    s_min_u32 s36, s36, 11264
    v_add_u32 {v(vKO)}, s36, {v(vHL)}
    """)
    for p in range(3):
        a(f"""
        v_add_u32 {v(T)}, {64 * p}, {v(vL)}
        v_mul_lo_u32 {v(T + 1)}, {v(T)}, s45
        v_lshrrev_b32 {v(T + 1)}, 20, {v(T + 1)}
        v_mul_u32_u24 {v(T + 2)}, 12, {v(T + 1)}
        v_sub_u32 {v(T + 2)}, {v(T)}, {v(T + 2)}
        v_and_b32 {v(T)}, 8, {v(T + 1)}
        v_add_u32 {v(T + 1)}, {v(T + 1)}, {v(T)}
        v_mul_u32_u24 {v(T + 1)}, 1280, {v(T + 1)}
        v_lshl_add_u32 {v(T + 1)}, {v(T + 2)}, 4, {v(T + 1)}
        v_add_u32 {v(vWD + p)}, s61, {v(T + 1)}
        """)
    a(f"""
    v_bfe_u32 {v(T)}, {v(vL)}, 2, 2
    v_lshl_add_u32 {v(T)}, {v(vH)}, 2, {v(T)}
    v_mul_u32_u24 {v(T)}, 192, {v(T)}
    v_bfe_u32 {v(T + 1)}, {v(vL)}, 4, 1
    v_lshl_add_u32 {v(T)}, {v(T + 1)}, 5, {v(T)}
    v_and_b32 {v(T + 1)}, 3, {v(vL)}
    v_lshl_add_u32 {v(T)}, {v(T + 1)}, 3, {v(T)}
    v_add_u32 {v(T)}, s39, {v(T)}
    s_lshl_b32 s44, s58, 6
    s_add_u32 s45, s44, 64
    s_lshl_b32 s46, s58, 7
    s_sub_u32 s46, 128, s46
    v_add_u32 {v(vWA)}, s44, {v(T)}
    v_add_u32 {v(vWA + 1)}, s45, {v(T)}
    v_add_u32 {v(vWA + 2)}, s46, {v(T)}
    """)
    vm = VM()

    def w_dma(base, off):
        out = []
        for p in range(3):
            out.append([f's_add_u32 m0, {base}, {off + p * 1024}', 's_nop 0',
                        f'buffer_load_dwordx4 {v(vWD + p)}, s[12:15], s43 offen lds'])
        out[2] += ['s_add_u32 s43, s43, s52', 's_sub_u32 s52, s48, s52']
        return out

    def h_ld(k, e):
        hs = ('s41', 's42')[e]
        return [f'buffer_load_dwordx4 {v(hreg(k) + 4 * e, 4)}, {v(vHL)}, s[20:23], {hs} offen', f's_add_u32 {hs}, {hs}, 1024']

    def w_rd(k, off):
        return [f'ds_read_b64_tr_b16 {v(wreg(k) + 4 * b + 2 * t, 2)}, {v(vWA + b)} offset:{off + 1536 * t}'
                for b in range(3) for t in range(2)]

    def g_mfmas(k):
        return [mfma16(ACC + 16 * n, wreg(k) + 4 * b, hreg(k) + 4 * e, ACC + 16 * n)
                for n, (b, e) in enumerate(((0, 0), (0, 1), (1, 0), (1, 1), (2, 0)))]

    def kv_dma(c):
        st = c % NST
        lab = a.label('kv3')
        a(f's_cmp_ge_u32 s26, 2\ns_cbranch_scc1 {lab}')
        for e in (3, 0, 1, 2):
            a(f"""
            s_add_u32 m0, s36, {KVR + st * CH_BYTES + e * 1024}
            s_mov_b32 s38, {KV_OFF + c * CH_BYTES + e * 1024}
            buffer_load_dwordx4 {v(vKO)}, s[20:23], s38 offen lds
            """)
            if e == 3:
                a(f'{lab}:')
        vm.add(f'kv{c}', 1, optional=True)
        vm.add(f'kv{c}', 3)

    for i in range(80):
        a(f'v_mov_b32 {v(ACC + i)}, 0')
    srd(a, 4, WDP, 2211840)
    a(f'''
    s_lshr_b32 s44, s2, 6
    s_mul_i32 s44, s44, {432 * 1280}
    s_bfe_u32 s45, s2, 0x30003
    s_lshl_b32 s45, s45, 2
    s_add_u32 s45, s45, s26
    s_mul_i32 s45, s45, {15 * 128}
    s_add_u32 s32, s44, s45
    s_mov_b32 s31, {48 * 1280}
    ''')

    a(f'''
    s_lshr_b32 s45, s30, 2
    s_lshl_b32 s46, s29, 1
    s_add_u32 s45, s45, s46
    s_mul_i32 s45, s45, 108
    s_and_b32 s46, s30, 3
    s_mul_i32 s46, s46, 27
    s_add_u32 s45, s45, s46
    s_lshl_b32 s45, s45, 10
    s_mul_i32 s46, s26, {6 * 128}
    s_add_u32 s45, s45, s46
    s_add_u32 s49, s45, 3072
    ''')

    def paced_h():
        if not PCH:
            return
        a(f'''
        s_mov_b64 exec, 0x3f
        buffer_load_dword v165, {v(vPF)}, s[20:23], s49 offen
        s_mov_b64 exec, -1
        s_add_u32 s49, s49, 3072
        ''')

    def paced():
        if not PCW:
            return
        a(f'''
        s_mov_b64 exec, 0x7fff
        buffer_load_dword v165, {v(vPF)}, s[4:7], s32 offen
        s_mov_b64 exec, -1
        s_add_u32 s32, s32, s31
        ''')
        vm.add('pf', 1)

    def cd_wait():
        L1, L2 = a.label('cdw'), a.label('cdd')
        a(f'''
        v_and_b32 {v(T + 4)}, 7, {v(vL)}
        v_lshlrev_b32 {v(T + 4)}, 2, {v(T + 4)}
        v_add_u32 {v(T + 4)}, {CD_A}, {v(T + 4)}
        s_mov_b32 s93, {POLL_MAX * 8}
        {L1}:
        ds_read_b32 {v(T + 5)}, {v(T + 4)}
        s_waitcnt lgkmcnt(0)
        v_cmp_eq_u32 vcc, s98, {v(T + 5)}
        s_nop 1
        s_cmp_eq_u64 vcc, -1
        s_cbranch_scc1 {L2}
        s_sub_u32 s93, s93, 1
        s_cbranch_scc0 {L1}
        {L2}:
        ''')

    a(f's_lshl_b32 s53, s29, 13\ns_add_u32 s53, s53, {F_QH}')

    def kv_poll(first):
        a(f's_mov_b32 s45, {F_KV}\ns_mov_b32 s44, {F_KV + 8192}')
        if first:
            m = ~((1 << (4 * KVF)) - 1) & 0xffffffffffffffff
            a(f's_mov_b32 s50, {m & 0xffffffff}\ns_mov_b32 s51, {m >> 32}\ns_sleep {KVSL}\ns_andn2_b64 exec, exec, s[50:51]')
            polln(a, T + 4, vPF, [('s45', 's[50:51]'), ('s44', 's[50:51]')], 2)
            a('s_mov_b64 exec, -1')
            cd_wait()
        else:
            polln(a, T + 4, vPF, [('s45', None), ('s44', None)], 4)
    one_poller(a, T, 0, lambda: kv_poll(True), who=2)
    stamp(a, 15)
    kv_dma(0)
    kv_dma(1)
    kv_dma(2)

    def prefetch(kind, b=0):
        n = {'wd': 60, 'wo': 64, 'h': 54}[kind]
        lab = a.label('nopf')
        if kind != 'h':
            a(f's_cmp_eq_u32 s26, 3\ns_cbranch_scc1 {lab}')
        if kind == 'wd':
            a(f"""
            s_lshr_b32 s44, s2, 6
            s_mul_i32 s44, s44, {432 * 1280}
            s_bfe_u32 s45, s2, 0x30003
            s_mul_i32 s45, s45, {180 * 128}
            s_add_u32 s44, s44, s45
            s_mul_i32 s45, s26, {60 * 128}
            s_add_u32 s44, s44, s45
            s_add_u32 s44, s44, {144 * 1280 * b}
            """)
            r = 's[12:15]'
        elif kind == 'wo':
            a(f"""
            s_lshr_b32 s44, s2, 3
            s_mul_i32 s44, s44, {200 * 128}
            s_mul_i32 s45, s26, {68 * 128}
            s_add_u32 s44, s44, s45
            """)
            r = 's[16:19]'
        else:
            a(f"""
            s_mul_i32 s44, s29, {216 * 1024}
            s_lshl_b32 s45, s30, 2
            s_add_u32 s45, s45, s26
            s_mul_i32 s45, s45, {54 * 128}
            s_add_u32 s44, s44, s45
            """)
            r = 's[20:23]'
        m = (1 << n) - 1
        a(f"""
        s_mov_b32 exec_hi, {m >> 32}
        buffer_load_dword v165, {v(vPF)}, {r}, s44 offen
        s_mov_b32 exec_hi, -1
        {lab}:
        """)
        vm.add('pf', 1, optional=True)
    a(f's_waitcnt vmcnt({vm.wait("kv0")})')
    a('s_barrier')
    stamp(a, 16)
    lab = a.label('nokv2')
    a(f's_cmp_lg_u32 s26, 2\ns_cbranch_scc1 {lab}')
    kv_poll(False)
    a(f'{lab}:')

    def body(last, nw=12):
        for z in range(3):
            a(f's_waitcnt vmcnt({(nw if not last else (12, 10, 8)[z]) - 2 + PCW + PCH}) lgkmcnt(0)')
            ms = g_mfmas(z)
            if z == 2:
                for b in range(3):
                    a(f'v_add_u32 {v(vWA + b)}, s33, {v(vWA + b)}')
                rd = w_rd(0, 0)
            else:
                rd = w_rd(z + 1, 3072 * (z + 1))
            wd_ = w_dma('s40', 3072 * z)
            a(ms[0]); emit(a, rd[0:2]); emit(a, [wd_[0]]); a(SPACE)
            a(ms[1]); emit(a, rd[2:4]); emit(a, [wd_[1]]); a(SPACE)
            a(ms[3]); emit(a, rd[4:6]); emit(a, [wd_[2]]); a(SPACE)
            a(ms[2])
            if not last:
                emit(a, h_ld(z, 1))
            a(SPACE)
            a(ms[4])
            if not last:
                emit(a, h_ld(z, 0))
        a('s_add_u32 s40, s40, s33\ns_sub_u32 s33, 0, s33')

    NSTAT = int(ENV.get('NSTAT', '4'))
    for c in range(NSTAT):
        a.c(f'aux B{c}')
        a(f's_waitcnt vmcnt({vm.wait(f"kv{c + 1}")})')
        bstamp(a, c == 0)
        a('s_barrier')
        bstamp(a)
        if c == 2:
            lab = a.label('noxc')
            a(f'''
            s_cmp_lg_u32 s26, 3
            s_cbranch_scc1 {lab}
            s_getreg_b32 s45, hwreg(HW_REG_XCC_ID, 0, 4)
            s_lshl_b32 s46, s29, 7
            s_add_u32 s46, s46, {F_X}
            v_and_b32 {v(T)}, 7, {v(vL)}
            v_lshlrev_b32 {v(T)}, 3, {v(T)}
            buffer_load_dwordx2 {v(T + 4, 2)}, {v(T)}, s[20:23], s46 offen sc1
            s_mov_b32 s44, s98
            s_waitcnt vmcnt(0)
            v_cmp_eq_u64 vcc, s[44:45], {v(T + 4, 2)}
            v_mov_b32 {v(T)}, {SX_A}
            s_nop 0
            s_cmp_eq_u64 vcc, -1
            s_cselect_b32 s44, s98, 0
            v_mov_b32 {v(T + 1)}, s44
            ds_write_b32 {v(T)}, {v(T + 1)}
            s_waitcnt lgkmcnt(0)
            {lab}:
            ''')
        kv_dma(c + 3)
        if WDC <= c < WDC + 2:
            for k in range(3 * (c - WDC), 3 * (c - WDC) + 3):
                emit(a, w_dma('s39', 3072 * k))
            vm.add('w', 9)
        paced()
    L_top, L_nb, L_sw, L_end2 = a.label('dtop'), a.label('dnb'), a.label('dsw'), a.label('dend')
    L_act, L_bar, L_nokv = a.label('dact'), a.label('dbar'), a.label('dnokv')
    L_s0, L_body, L_last, L_wo, L_next = a.label('ds0'), a.label('dbody'), a.label('dlast'), a.label('dwo'), a.label('dnext')
    L_w0 = a.label('dw0')
    L_w2 = a.label('dw2')
    L_b12 = a.label('db12')
    L_bd = a.label('dbd')
    L_np = a.label('dnp')
    L_p3 = a.label('dp3')
    L_k3 = a.label('dk3')
    L_w1 = a.label('dw1')
    L_n1 = a.label('dn1')
    L_oth, L_start, L_rei, L_nsw = a.label('doth'), a.label('dstart'), a.label('drei'), a.label('dnsw')
    a(f"""
    s_mov_b32 s34, {16 - NSTAT}
    s_mov_b32 s35, 0
    s_mov_b32 s37, {((NSTAT + 3) % NST) * CH_BYTES}
    s_mov_b32 s38, {KV_OFF + (NSTAT + 3) * CH_BYTES}
    s_mov_b32 s33, 9216
    s_mov_b32 s93, {POLL_MAX}
    v_mov_b32 {v(T + 3)}, {RDY_A + 4}
    {L_top}:
    s_sub_u32 s44, s35, 2
    s_cmp_lt_u32 s44, 8
    s_cbranch_scc1 {L_act}
    s_cmp_eq_u32 s35, 11
    s_cbranch_scc1 {L_w2}
    s_cmp_gt_u32 s35, 1
    s_cbranch_scc1 {L_w0}
    s_cmp_le_u32 s34, 3
    s_cbranch_scc1 {L_w0}
    s_cmp_eq_u32 s35, 1
    s_cbranch_scc1 {L_w1}
    s_waitcnt vmcnt(3)
    s_branch {L_bar}
    {L_w1}:
    s_waitcnt vmcnt({6 + HPF * PCH})
    s_branch {L_bar}
    {L_w2}:
    s_waitcnt vmcnt(12)
    s_mov_b32 s35, 12
    s_branch {L_bar}
    {L_w0}:
    s_waitcnt vmcnt(0)
    s_branch {L_bar}
    {L_act}:
    s_waitcnt vmcnt({15 + PCW + PCH})
    {L_bar}:
    s_cmp_eq_u32 s34, 0
    s_cbranch_scc1 {L_nb}
    """)
    bstamp(a)
    a('s_barrier')
    bstamp(a)
    a(f"""
    s_cmp_lg_u32 s35, 0
    s_cbranch_scc1 {L_np}
    s_cmp_lg_u32 s26, 3
    s_cbranch_scc1 {L_np}
    buffer_load_dwordx2 {v(T + 4, 2)}, {v(vPF)}, s[20:23], s53 offen sc1
    {L_np}:
    s_cmp_le_u32 s34, 3
    s_cbranch_scc1 {L_nokv}
    s_add_u32 s44, s36, s37
    s_cmp_ge_u32 s26, 2
    s_cbranch_scc1 {L_k3}
    """)
    for e in (3, 0, 1, 2):
        a(f"""
        s_add_u32 m0, s44, {KVR + e * 1024}
        s_add_u32 s45, s38, {e * 1024}
        buffer_load_dwordx4 {v(vKO)}, s[20:23], s45 offen lds
        """)
        if e == 3:
            a(f'{L_k3}:')
    a(f"""
    s_add_u32 s38, s38, {CH_BYTES}
    s_add_u32 s37, s37, {CH_BYTES}
    s_cmp_eq_u32 s37, {CH_BYTES * NST}
    s_cselect_b32 s37, 0, s37
    {L_nokv}:
    s_sub_u32 s34, s34, 1
    s_branch {L_sw}
    {L_nb}:
    s_cmp_ge_u32 s35, 11
    s_cbranch_scc1 {L_end2}
    {L_sw}:
    s_cmp_eq_u32 s35, 0
    s_cbranch_scc1 {L_s0}
    s_cmp_lt_u32 s35, 9
    s_cbranch_scc1 {L_body}
    s_cmp_eq_u32 s35, 9
    s_cbranch_scc1 {L_last}
    s_cmp_eq_u32 s35, 10
    s_cbranch_scc1 {L_wo}
    s_branch {L_top}
    {L_s0}:
    s_sub_u32 s93, s93, 1
    s_cbranch_scc1 {L_start}
    s_cmp_lg_u32 s26, 3
    s_cbranch_scc1 {L_oth}
    s_cmp_ge_u32 s34, 3
    s_cbranch_scc1 {L_p3}
    buffer_load_dwordx2 {v(T + 4, 2)}, {v(vPF)}, s[20:23], s53 offen sc1
    s_waitcnt vmcnt(0)
    {L_p3}:
    s_waitcnt vmcnt(3)
    v_cmp_eq_u64 vcc, s[98:99], {v(T + 4, 2)}
    s_lshl_b32 s45, s34, 1
    s_nop 0
    s_cmp_eq_u64 vcc, -1
    s_cselect_b32 s44, s98, s45
    v_mov_b32 {v(T + 2)}, s44
    ds_write_b32 {v(T + 3)}, {v(T + 2)}
    s_cbranch_scc1 {L_start}
    s_branch {L_top}
    {L_oth}:
    s_mov_b32 s45, 40
    {L_rei}:
    s_sleep 1
    ds_read_b32 {v(T + 2)}, {v(T + 3)}
    s_waitcnt lgkmcnt(0)
    v_readfirstlane_b32 s44, {v(T + 2)}
    s_cmp_eq_u32 s44, s98
    s_cbranch_scc1 {L_start}
    s_lshl_b32 s46, s34, 1
    s_cmp_eq_u32 s44, s46
    s_cbranch_scc1 {L_top}
    s_sub_u32 s45, s45, 1
    s_cbranch_scc0 {L_rei}
    s_branch {L_top}
    {L_start}:
    """)
    stamp(a, 23)
    for k in range(3):
        for e in range(2):
            emit(a, h_ld(k, e))
    for _ in range(HPF):
        paced_h()
    emit(a, w_rd(0, 0))
    a(f"""
    {L_next}:
    s_add_u32 s35, s35, 1
    s_branch {L_top}
    {L_body}:
    s_cmp_lg_u32 s35, 1
    s_cbranch_scc1 {L_n1}
    s_waitcnt vmcnt(0)
    {L_n1}:
    s_cmp_lg_u32 s35, 8
    s_cbranch_scc1 {L_nsw}
    s_mov_b32 s12, s16
    s_mov_b32 s13, s17
    s_mov_b32 s14, 819200
    s_mov_b32 s43, s56
    s_mov_b32 s52, 25600
    s_mov_b32 s48, 51200
    s_mov_b32 s45, 0x15556
    """)
    for p in range(3):
        a(f"""
        v_add_u32 {v(T)}, {64 * p}, {v(vL)}
        v_mul_lo_u32 {v(T + 1)}, {v(T)}, s45
        v_lshrrev_b32 {v(T + 1)}, 23, {v(T + 1)}
        v_mul_u32_u24 {v(T + 1)}, {8 * 1280}, {v(T + 1)}
        v_sub_u32 {v(vWD + p)}, {v(vWD + p)}, {v(T + 1)}
        """)
    a(f"""
    {L_nsw}:
    s_cmp_lt_u32 s34, 3
    s_cbranch_scc1 {L_b12}
    """)
    body(False, 15)
    a(f's_branch {L_bd}\n{L_b12}:')
    body(False, 12)
    a(f'{L_bd}:')
    lab = a.label('npsw')
    a(f'''
    s_cmp_lg_u32 s35, {10 - NSTAT}
    s_cbranch_scc1 {lab}
    s_mov_b32 s4, s16
    s_mov_b32 s5, s17
    s_mov_b32 s6, 819200
    s_lshr_b32 s44, s2, 3
    s_lshl_b32 s44, s44, 2
    s_add_u32 s44, s44, s26
    s_mul_i32 s32, s44, {50 * 128}
    s_mov_b32 s31, {13 * 128}
    {lab}:
    ''')
    paced_h()
    paced()
    a(f's_branch {L_next}\n{L_last}:')
    body(True)
    a(f's_branch {L_next}\n{L_wo}:')
    stamp(a, 17)
    emit(a, w_rd(1, 3072) + w_rd(2, 6144))
    a('s_mov_b32 s45, 0x15556\ns_waitcnt lgkmcnt(0)')
    emit(a, w_dma('s39', 3072 * 3))
    emit(a, w_dma('s39', 3072 * 4))
    for p in range(3):
        a(f"""
        v_add_u32 {v(T)}, {64 * p}, {v(vL)}
        v_mul_lo_u32 {v(T + 1)}, {v(T)}, s45
        v_bfe_u32 {v(T)}, {v(T + 1)}, 22, 1
        v_lshrrev_b32 {v(T + 1)}, 23, {v(T + 1)}
        v_mul_u32_u24 {v(T)}, {36 * 1280}, {v(T)}
        v_mul_u32_u24 {v(T + 1)}, {12 * 1280}, {v(T + 1)}
        v_add3_u32 {v(vWD + p)}, {v(vWD + p)}, {v(T + 1)}, {v(T)}
        """)
    a(f's_add_u32 s43, s56, {16 * 1280}\ns_mov_b32 s52, {80 * 1280}\ns_mov_b32 s48, {160 * 1280}')
    emit(a, w_dma('s39', 3072 * 5))
    emit(a, w_dma('s39', 3072 * 6))
    a(f's_cmp_lg_u32 s34, 0\ns_cbranch_scc1 {L_next}\n{L_end2}:')
    a(f"""
    v_subrev_u32 {v(vWA)}, 9216, {v(vWA)}
    v_subrev_u32 {v(vWA + 1)}, 9216, {v(vWA + 1)}
    v_subrev_u32 {v(vWA + 2)}, 9216, {v(vWA + 2)}
    s_mul_i32 s44, s26, 14336
    s_add_u32 s44, s44, {OL_A}
    v_add_u32 {v(vKO)}, s44, {v(vHL)}
    v_and_b32 {v(T)}, 7, {v(vR)}
    v_xor_b32 {v(T)}, {v(T)}, {v(vH)}
    v_lshlrev_b32 {v(T + 1)}, 7, {v(vR)}
    v_add_u32 {v(T + 1)}, s39, {v(T + 1)}
    """)
    for jp in range(4):
        a(f"""
        v_xor_b32 {v(T + 2)}, {2 * jp}, {v(T)}
        v_lshl_add_u32 {v(T + 4 + jp)}, {v(T + 2)}, 4, {v(T + 1)}
        """)
    stamp(a, 18)
    a('s_barrier')
    Lp, Lq = a.label('op'), a.label('opd')
    a(f's_mov_b32 s93, {OPOLL_MAX}\n{Lp}:')
    for k in range(27, 30):
        for e in range(2):
            a(f'buffer_load_dwordx4 {v(hreg(k) + 4 * e, 4)}, {v(vHL)}, s[20:23], s{54 + e} offen offset:{1024 * (k - 27)} sc1')
    a('s_waitcnt vmcnt(0)')
    regs = [hreg(k) + i for k in range(27, 30) for i in range(8)]
    a(f'v_max3_u32 {v(T)}, {v(regs[0])}, {v(regs[1])}, {v(regs[2])}')
    for i in range(3, 23, 2):
        a(f'v_max3_u32 {v(T)}, {v(T)}, {v(regs[i])}, {v(regs[i + 1])}')
    a(f"""
    v_max_u32 {v(T)}, {v(T)}, {v(regs[23])}
    v_cmp_eq_u32 vcc, -1, {v(T)}
    s_nop 1
    s_cmp_eq_u64 vcc, 0
    s_cbranch_scc1 {Lq}
    s_sub_u32 s93, s93, 1
    s_cbranch_scc1 {Lq}
    s_sleep {OSLEEP}
    s_branch {Lp}
    {Lq}:
    """)
    stamp(a, 19)

    def o_rd(k):
        return [f'ds_read_b128 {v(hreg(k) + 4 * e, 4)}, {v(vKO)} offset:{(k - 30) * 2048 + 1024 * e}' for e in range(2)]

    for k in range(27, 30):
        emit(a, g_mfmas(k))
        emit(a, w_rd(k + 3, 3072 * (k - 27)))
    if FFL:
        L1, L2 = a.label('fw'), a.label('fd')
        a(f'''
        s_lshl_b32 s44, s26, 3
        s_add_u32 s44, s44, {OW_A}
        v_mov_b32 {v(T)}, s44
        s_mov_b32 s93, {POLL_MAX * 8}
        {L1}:
        ds_read_b64 {v(T + 2, 2)}, {v(T)}
        s_waitcnt lgkmcnt(0)
        v_readfirstlane_b32 s44, {v(T + 2)}
        v_readfirstlane_b32 s45, {v(T + 3)}
        s_xor_b32 s44, s44, s98
        s_xor_b32 s45, s45, s98
        s_or_b32 s44, s44, s45
        s_cbranch_scc0 {L2}
        s_sub_u32 s93, s93, 1
        s_cbranch_scc0 {L1}
        {L2}:
        ''')
    else:
        a('s_waitcnt lgkmcnt(0)')
        a('s_barrier')
    stamp(a, 30)
    for k in range(30, 33):
        emit(a, o_rd(k))
    XO = vWD
    assert XO % 2 == 0 and XO + 8 <= ACC
    for k in range(30, 34):
        a(f's_waitcnt lgkmcnt({ {30: 4, 31: 10, 32: 8, 33: 8}[k] })')
        emit(a, g_mfmas(k))
        emit(a, w_rd(k + 3, 3072 * (k + 3 - 30)) + o_rd(k + 3))
    g2_out(a, XO, vL, 's24', 0)
    a('s_waitcnt lgkmcnt(0)')
    wr = lambda n: [f'ds_write_b128 {v(T + 4 + jp)}, {v(ACC + 16 * n + 4 * jp, 4)} offset:{4096 * n}' for jp in range(4)]
    ms = [g_mfmas(k) for k in range(34, 37)]
    for n in range(5):
        for z in range(3):
            a(ms[z][n])
        if n >= 2:
            a('s_nop 5')
            emit(a, wr(n - 2))
    stamp(a, 20)
    a('s_nop 3')
    emit(a, wr(3))
    a('s_nop 3')
    emit(a, wr(4))
    a('s_waitcnt vmcnt(0) lgkmcnt(0)')
    a('s_barrier')
    stamp(a, 21)
    for i in range(8):
        a(f'v_mov_b32 {v(ACC + i)}, {v(XO + i)}')
    g2_out(a, ACC, vL, 's24', 1)


DESC = """; One persistent launch, 256 workgroups (one per CU), 12 waves each: waves 0-7 compute, waves 8-11 load / second GEMM.
;           split over the WGs and handed over through the workspace; K and V by the load waves; GEGLU epilogue.
;           to a two-pass true-max path.  The load waves stream K/V and run h @ wd meanwhile.
;  tail:    O @ wo, cross-wave reduction, + x, bf16 store.
"""


def build(path):
    hdr = open('parallel_sum__grouped_kv_mqa__geglu_ffn__prompt.s.ref').read().split('; Override launch')[0]
    out = hdr + f'; @launch grid=(256,1,1) block=(768,1,1) lds={LDS_TOTAL}\n' + DESC
    out += '.amdgcn_target "amdgcn-amd-amdhsa--gfx950"\n'
    out += gen()
    out += kernel_desc(KNAME, 168)
    open(path, 'w').write(out)


if __name__ == '__main__':
    import sys
    if len(sys.argv) > 2 and sys.argv[2] == 'stamp':
        asmlib.STAMPS = True
    build(sys.argv[1])
```

```python
from asmlib import *
import asmlib
import math
import os

KNAME = 'parallel_sum__grouped_kv_mqa__geglu_ffn__prompt_kernel'

H_OFF = 0
QF_OFF = 0x700000
KV_OFF = 0xA00000
OF_OFF = 0xB00000
FL_OFF = 0xE00000
F_ST = 0x1200000
F_CS = 0x1220000
F_KV = 0x1240000
F_KC = 0x1248000
F_W2 = 0x1250000
F_X = 0x1258000
F_QH = 0xE80000
ROWW = 0xE10000
CSW = 0xE20000
CSKVW = 0xE60000
W2F = 0xF00000
WS_USED = 0x1260000

LDS_X = 0
LDS_W = 49152
LDS_KV = 147456
CS_A = 16384
PART_A = 32768
VT_A = 32768
ROWC_A = 156672
CSKV_A = 158720
NONCE_A = 160768
RDY_A = 160800
SX_A = 160928
OW_A = 160896
CD_A = 160832
PD_A = 160864
LDS_TOTAL = 163840
CH_BYTES = 14336
NST = 4
KVR = 49152
Q_A = KVR + 3 * CH_BYTES
G2R = KVR + CH_BYTES * NST
G2D = 3
TW_A = G2R
OL_A = KVR
WO_HI = 106496
WOA = 0
RED_A = 0

C0 = -2.0 * math.sqrt(2.0 / math.pi) * math.log2(math.e)
C1 = C0 * 0.044715
QSC = math.log2(math.e) / math.sqrt(20.0)
M_OFFSET = 90.0
POLL_MAX = 400000
NONCE_X = 0x5a5a5a5a

HM = 's[62:63]'
PFWAIT = False
ENV = os.environ
NODOWN = ENV.get('NODOWN')
PRIO2 = int(ENV.get('PRIO2', '3'))
PRIO1 = int(ENV.get('PRIO1', '3'))
SPACE = ENV.get('SPACE', '')
NOPF = not ENV.get('PF')
INV = int(ENV.get('INV', '0'))
NOG2 = ENV.get('NOG2')
FAST = int(ENV.get('FAST', '1'))
BP = int(ENV.get('BP', '15'))
ROT = int(ENV.get('ROT', '0'))
FFL = int(ENV.get('FFL', '0'))
PCW = int(ENV.get('PCW', '1'))
PCH = int(ENV.get('PCH', '0'))
HST = int(ENV.get('HST', '-1'))
ODBL = int(ENV.get('ODBL', '1'))
JX = int(ENV.get('JX', '0'))
QSLEEP = int(ENV.get('QSLEEP', '4'))
KVF = int(ENV.get('KVF', '3'))
OUTSC = {'': '', '1': ' sc1', '2': ' nt', '3': ' sc0 sc1', '4': ' sc1 nt'}[ENV.get('OUTSC', '')]
HPF = int(ENV.get('HPF', '2'))
PERM = int(ENV.get('PERM', '1'))
P1PF = int(ENV.get('P1PF', '0'))
PFC = tuple(int(x) for x in ENV.get('PFC', '2,3,4').split(','))
WDC = int(ENV.get('WDC', '2'))
WOC = int(ENV.get('WOC', '4'))
TWC = int(ENV.get('TWC', '1'))
DPOLL2 = 0
OSLEEP = int(ENV.get('OSLEEP', '3'))
LATE1 = int(ENV.get('LATE1', '1'))
OPOLL_MAX = 200000
LINPF = int(ENV.get('LINPF', '0'))
NOSL = ENV.get('NOSL')
PF0 = int(ENV.get('PF0', '0'))
JIT = int(ENV.get('JIT', '0'))
JITD = int(ENV.get('JITD', '4'))
SLC = int(ENV.get('SLC', '-1'))
SLG = int(ENV.get('SLG', '2'))
SPN = int(ENV.get('SPN', '2'))
PZ0 = int(ENV.get('PZ0', '0'))
P3C = int(ENV.get('P3C', '7'))
EARLY2 = int(ENV.get('EARLY2', '0'))
CWARM = int(ENV.get('CWARM', '1'))
KVSL = int(ENV.get('KVSL', '16'))
HEARLY = ENV.get('HEARLY')
PSLEEP = int(ENV.get('PSLEEP', '2'))
NOPF2 = not ENV.get('PF2')
CV = int(ENV.get('CV', '0'))
NODMA = ENV.get('NODMA')
IST = ENV.get('IST')
LD = ' sc1' if ENV.get('SC1LD') else ''
FEWST = ENV.get('FEWST')
IST_LIST = tuple(int(x) for x in os.environ.get('ISTL', '1,2,6,7').split(','))
HFLAG_T = int(os.environ.get('HFT', '6'))
G2_START = int(os.environ.get('G2S', '6'))
G2_END = int(os.environ.get('G2E', '15'))


class VM:
    def __init__(self):
        self.ops = []

    def add(self, tag, n=1, optional=False):
        for _ in range(n):
            self.ops.append((tag, optional))

    def wait(self, tag):
        idx = max(i for i, (t, o) in enumerate(self.ops) if t == tag)
        n = sum(1 for t, o in self.ops[idx + 1:] if not o)
        assert n <= 63, n
        return n

    def drain(self):
        self.ops = []


def emit(a, bundles):
    for b in bundles:
        a(b if isinstance(b, str) else '\n'.join(b))


def flag_store(a, soff_reg, vt):
    a(f'''
    v_mov_b32 {v(vt)}, s98
    v_mov_b32 {v(vt + 1)}, s99
    s_mov_b64 exec, 1
    buffer_store_dwordx2 {v(vt, 2)}, off, s[20:23], {soff_reg} sc1
    s_mov_b64 exec, -1
    ''')


def poll(a, vt, voff, soff_reg, wide=False, ignore=None, inv=True, sleep=None):
    L = a.label('poll')
    Ld = a.label('polld')
    a(f's_mov_b32 s93, {POLL_MAX}')
    a(f'{L}:')
    if wide:
        a(f'''
        buffer_load_dwordx4 {v(vt, 4)}, {v(voff)}, s[20:23], {soff_reg} offen sc1
        s_waitcnt vmcnt(0)
        v_cmp_eq_u64 vcc, s[98:99], {v(vt, 2)}
        v_cmp_eq_u64 s[46:47], s[98:99], {v(vt + 2, 2)}
        s_nop 1
        s_and_b64 vcc, vcc, s[46:47]
        ''')
    else:
        a(f'''
        buffer_load_dwordx2 {v(vt, 2)}, {v(voff)}, s[20:23], {soff_reg} offen sc1
        s_waitcnt vmcnt(0)
        v_cmp_eq_u64 vcc, s[98:99], {v(vt, 2)}
        s_nop 1
        ''')
    if ignore:
        a(f's_or_b64 vcc, vcc, {ignore}')
    a(f'''
    s_cmp_eq_u64 vcc, -1
    s_cbranch_scc1 {Ld}
    s_sub_u32 s93, s93, 1
    s_cbranch_scc1 {Ld}
    s_sleep {sleep or PSLEEP}
    s_branch {L}
    {Ld}:
    ''')
    if inv and INV:
        a('buffer_inv sc1\ns_waitcnt vmcnt(0)')


def polln(a, vt, voff, rows, sleep):
    L = a.label('poll')
    Ld = a.label('polld')
    a(f's_mov_b32 s93, {POLL_MAX}\n{L}:')
    for q, (so, ig) in enumerate(rows):
        a(f'buffer_load_dwordx2 {v(vt + 2 * q, 2)}, {v(voff[q] if isinstance(voff, list) else voff)}, s[20:23], {so} offen sc1')
    a('s_waitcnt vmcnt(0)')
    dst = ['vcc', 's[46:47]', 's[48:49]']
    for q in range(len(rows)):
        a(f'v_cmp_eq_u64 {dst[q]}, s[98:99], {v(vt + 2 * q, 2)}')
    a('s_nop 1')
    for q, (so, ig) in enumerate(rows):
        if ig:
            a(f's_or_b64 {dst[q]}, {dst[q]}, {ig}')
        if q:
            a(f's_and_b64 vcc, vcc, {dst[q]}')
    a(f'''
    s_cmp_eq_u64 vcc, -1
    s_cbranch_scc1 {Ld}
    s_sub_u32 s93, s93, 1
    s_cbranch_scc1 {Ld}
    s_sleep {sleep}
    s_branch {L}
    {Ld}:
    ''')


def one_poller(a, vt, word, body, who=3):
    Lw, Ld, Ls = a.label('opw'), a.label('opd'), a.label('ops')
    a(f'''
    v_mov_b32 {v(vt + 3)}, {RDY_A + 4 * word}
    s_cmp_lg_u32 s26, {who}
    s_cbranch_scc1 {Lw}
    ''')
    body()
    a(f'''
    v_mov_b32 {v(vt + 2)}, s98
    ds_write_b32 {v(vt + 3)}, {v(vt + 2)}
    s_branch {Ld}
    {Lw}:
    s_mov_b32 s93, {POLL_MAX * 8}
    {Ls}:
    ds_read_b32 {v(vt + 2)}, {v(vt + 3)}
    s_waitcnt lgkmcnt(0)
    v_readfirstlane_b32 s46, {v(vt + 2)}
    s_cmp_eq_u32 s46, s98
    s_cbranch_scc1 {Ld}
    s_sub_u32 s93, s93, 1
    s_cbranch_scc1 {Ld}
    s_sleep 1
    s_branch {Ls}
    {Ld}:
    ''')


def bstamp(a, first=False):
    if not (asmlib.STAMPS and ENV.get('BST')):
        return
    if first:
        a('s_add_u32 s101, s92, 0xC0000')
    a('''
    s_memrealtime s[94:95]
    s_memtime s[96:97]
    s_waitcnt lgkmcnt(0)
    v_mov_b32 v166, s94
    v_mov_b32 v167, s96
    buffer_store_dwordx2 v[166:167], off, s[88:91], s101
    s_add_u32 s101, s101, 8
    ''')


def srd(a, base, ptr, size):
    a(f'''
    s_mov_b32 s{base}, s{ptr}
    s_mov_b32 s{base + 1}, s{ptr + 1}
    s_mov_b32 s{base + 2}, {size}
    s_mov_b32 s{base + 3}, 0x20000
    ''')


def w_source(a):
    a('''
    s_and_b32 s44, s26, 1
    s_and_b32 s51, s44, s48
    s_lshr_b32 s45, s26, 1
    s_lshl_b32 s46, s44, 6
    s_add_u32 s46, s46, s49
    s_cmp_eq_u32 s48, 1
    s_cselect_b32 s46, s49, s46
    s_lshl_b32 s47, s45, 6
    s_add_u32 s47, s47, s50
    s_cmp_eq_u32 s51, 1
    s_cselect_b32 s52, s47, s46
    s_lshl_b32 s52, s52, 1
    s_cmp_eq_u32 s45, 1
    s_cselect_b32 s12, s82, s80
    s_cselect_b32 s13, s83, s81
    s_mov_b32 s14, 2211840
    s_mov_b32 s53, 3456
    s_cmp_eq_u32 s51, 1
    s_cselect_b32 s12, s70, s12
    s_cselect_b32 s13, s71, s13
    s_cselect_b32 s14, 819200, s14
    s_cselect_b32 s53, 1280, s53
    s_mov_b32 s15, 0x20000
    ''')


def tile_offs(t):
    p, o = t >> 1, t & 1
    b = p * 7168
    return b + o * 1024, b + 2048, b + 3072 + o * 2048, b + 4096 + o * 2048


PERMC = f'''
    s_bfe_u32 s44, s2, 0x30003
    s_lshr_b32 s45, s2, 6
    s_add_u32 s44, s44, s45
    s_and_b32 s100, s44, {PERM}
    s_xor_b32 s45, s100, 1
'''
ROTC = '''
    s_add_u32 s100, s27, s28
    s_mul_i32 s44, s100, 26
    s_lshr_b32 s44, s44, 8
    s_mul_i32 s44, s44, 10
    s_sub_u32 s100, s100, s44
    s_add_u32 s45, s100, 1
    s_cmp_eq_u32 s45, 10
    s_cselect_b32 s45, 0, s45
'''


def gen():
    a = Asm()
    a(kernel_head(KNAME))
    stamp_early(a)
    vL, vH, vR = 1, 2, 3
    L_end = a.label('end')
    L_aux = a.label('aux')
    a(f'''
    s_cmp_ge_u32 s2, 256
    s_cbranch_scc1 {L_end}
    s_load_dwordx8 s[68:75], s[0:1], 0
    s_load_dwordx4 s[80:83], s[0:1], 48
    s_load_dwordx4 s[76:79], s[0:1], 80
    s_load_dwordx2 s[84:85], s[0:1], 32
    s_load_dwordx4 s[88:91], s[0:1], 64
    v_lshrrev_b32 v4, 6, v0
    v_and_b32 {v(vL)}, 63, v0
    v_readfirstlane_b32 s24, v4
    v_lshrrev_b32 {v(vH)}, 5, {v(vL)}
    v_and_b32 {v(vR)}, 31, {v(vL)}
    ''')
    if CWARM:
        Lw, Lp = a.label('nowarm'), a.label('pc')
        a(f'''
        s_cmp_lg_u32 s24, 11
        s_cbranch_scc1 {Lw}
        s_getpc_b64 s[4:5]
        {Lp}:
        s_bfe_u32 s44, s2, 0x30003
        s_lshl_b32 s44, s44, 13
        v_lshl_add_u32 v4, {v(vL)}, 7, s44
        v_min_u32 v4, {L_end}-{Lp}, v4
        global_load_dword v165, v4, s[4:5]
        {Lw}:
        ''')
    vXD, vWD, vKD = 20, 22, 24
    t0, t1, t2, t3, t4 = 4, 5, 6, 7, 8
    a(f'''
    s_bfe_u32 s27, s2, 0x30003
    s_and_b32 s46, s2, 1
    s_lshl_b32 s46, s46, 3
    s_add_u32 s27, s27, s46
    s_bfe_u32 s46, s2, 0x20001
    s_xor_b32 s46, s46, {JX}
    s_lshl_b32 s46, s46, 2
    s_lshr_b32 s47, s2, 6
    s_add_u32 s28, s46, s47
    s_cmp_ge_u32 s28, 11
    s_cselect_b32 s48, 1, 0
    s_sub_u32 s44, s28, 11
    s_lshl_b32 s45, s44, 6
    s_add_u32 s45, s45, 1408
    s_lshl_b32 s46, s28, 7
    s_lshl_b32 s50, s44, 7
    s_cmp_eq_u32 s48, 1
    s_cselect_b32 s49, s45, s46
    s_and_b32 s25, s24, 1
    s_lshr_b32 s26, s24, 1
    s_sub_u32 s44, s24, 8
    s_cmp_ge_u32 s24, 8
    s_cselect_b32 s26, s44, s26
    s_and_b32 s44, s26, 1
    s_and_b32 s51, s44, s48
    s_lshr_b32 s43, s26, 1
    s_andn2_b32 s46, s44, s48
    s_lshl_b32 s46, s46, 6
    s_add_u32 s46, s46, s49
    s_lshl_b32 s47, s43, 6
    s_add_u32 s47, s47, s50
    s_mov_b32 s53, 3456
    s_cmp_eq_u32 s51, 1
    s_cselect_b32 s52, s47, s46
    s_cselect_b32 s53, 1280, s53
    s_lshl_b32 s52, s52, 1
    s_lshl_b32 s31, s53, 3
    s_lshl_b32 s32, s53, 6
    v_lshrrev_b32 {v(t0)}, 3, {v(vL)}
    v_and_b32 {v(t1)}, 7, {v(vL)}
    s_lshl_b32 s44, s27, 7
    s_lshl_b32 s45, s26, 5
    s_add_u32 s44, s44, s45
    v_add_u32 {v(t2)}, s44, {v(t0)}
    v_mul_u32_u24 {v(t2)}, 1280, {v(t2)}
    v_lshrrev_b32 {v(t3)}, 1, {v(t0)}
    v_xor_b32 {v(t3)}, {v(t3)}, {v(t1)}
    v_lshl_add_u32 {v(vXD)}, {v(t3)}, 4, {v(t2)}
    v_xor_b32 {v(t3)}, 4, {v(t3)}
    v_lshl_add_u32 {v(vXD + 1)}, {v(t3)}, 4, {v(t2)}
    v_add_u32 {v(vXD + 1)}, {8 * 1280}, {v(vXD + 1)}
    v_mul_lo_u32 {v(t2)}, {v(t0)}, s53
    v_lshrrev_b32 {v(t3)}, 1, {v(t1)}
    v_and_b32 {v(t4)}, 2, {v(t0)}
    v_xor_b32 {v(t3)}, {v(t3)}, {v(t4)}
    v_and_b32 {v(t4)}, 1, {v(t1)}
    v_lshl_add_u32 {v(t2)}, {v(t4)}, 4, {v(t2)}
    v_add_u32 {v(t2)}, s52, {v(t2)}
    v_lshl_add_u32 {v(vWD)}, {v(t3)}, 5, {v(t2)}
    v_xor_b32 {v(t3)}, 1, {v(t3)}
    v_lshl_add_u32 {v(vWD + 1)}, {v(t3)}, 5, {v(t2)}
    s_lshl_b32 s36, s26, 12
    s_mul_i32 s37, s26, 24576
    s_add_u32 s37, s37, {LDS_W}
    s_lshl_b32 s33, s53, 5
    s_mul_i32 s33, s33, s25
    s_lshl_b32 s44, s25, 12
    s_add_u32 s35, s37, s44
    {ROTC if ROT else PERMC}
    s_mul_i32 s38, s100, s32
    s_mul_i32 s39, s45, s32
    s_mov_b32 s10, 2621440
    s_mov_b32 s11, 0x20000
    s_mov_b32 s14, 2211840
    s_mov_b32 s15, 0x20000
    s_cmp_ge_u32 s24, 8
    s_cbranch_scc1 {L_aux}
    s_cmp_eq_u32 s43, 1
    s_waitcnt lgkmcnt(0)
    s_cselect_b32 s12, s82, s80
    s_cselect_b32 s13, s83, s81
    s_cmp_eq_u32 s51, 1
    s_cselect_b32 s12, s70, s12
    s_cselect_b32 s13, s71, s13
    s_cselect_b32 s14, 819200, s14
    ''')
    def c_start(c):
        for e in range(4):
            a(f'''
            s_add_u32 m0, s35, {c * 8192 + e * 1024}
            s_add_u32 s34, s33, s{38 + c}
            buffer_load_dwordx4 {v(vWD + (e & 1))}, s[12:15], s34 offen lds
            ''')
            if e < 3:
                a('s_add_u32 s33, s33, s31')
            elif c == 0:
                a('s_mul_i32 s44, s31, 3\ns_sub_u32 s33, s33, s44')
    c_start(0)
    if not LATE1:
        c_start(1)
    L_com = a.label('common')
    a(f'''
    s_mov_b32 s8, s68
    s_mov_b32 s9, s69
    s_mov_b32 s16, s72
    s_mov_b32 s17, s73
    s_mov_b32 s18, 25600
    s_mov_b32 s19, 0x20000
    v_mov_b32 {v(vKD)}, 0
    s_branch {L_com}
    {L_aux}:
    s_setprio {PRIO1}
    s_cmp_lt_u32 s28, 8
    s_cselect_b32 s54, 1, 0
    s_cmp_lt_u32 s26, 3
    s_cselect_b32 s40, s54, 0
    s_lshl_b32 s44, s26, 10
    s_add_u32 s38, s44, {LDS_KV}
    v_lshl_add_u32 {v(vKD)}, {v(vL)}, 4, s44
    s_mov_b32 s18, 25600
    s_mov_b32 s19, 0x20000
    s_lshl_b32 s46, s100, 7
    s_lshl_b32 s57, s45, 7
    s_mul_i32 s58, s100, 2560
    s_mul_i32 s59, s45, 2560
    s_bitcmp1_b32 s28, 2
    s_waitcnt lgkmcnt(0)
    s_mov_b32 s8, s68
    s_mov_b32 s9, s69
    s_cselect_b32 s16, s74, s72
    s_cselect_b32 s17, s75, s73
    ''')
    def a_start(c):
        for e in range(4):
            a(f'''
            s_add_u32 m0, s36, {LDS_X + c * 16384 + e * 1024}
            s_add_u32 s34, s{(46, 57)[c]}, {(e >> 1) * 16 * 1280}
            buffer_load_dwordx4 {v(vXD + (e & 1))}, s[8:11], s34 offen lds
            ''')
        lab = a.label('nokv')
        a(f'''
        s_cmp_eq_u32 s40, 0
        s_cbranch_scc1 {lab}
        s_add_u32 m0, s38, {c * 3072}
        s_nop 0
        buffer_load_dwordx4 {v(vKD)}, s[16:19], s{58 + c} offen lds
        {lab}:
        ''')
    a_start(0)
    if not LATE1:
        a_start(1)
    a(f'''
    s_cmp_eq_u32 s43, 1
    s_cselect_b32 s12, s82, s80
    s_cselect_b32 s13, s83, s81
    s_cmp_eq_u32 s51, 1
    s_cselect_b32 s12, s70, s12
    s_cselect_b32 s13, s71, s13
    s_cselect_b32 s14, 819200, s14
    {L_com}:
    s_mov_b32 s62, 0
    s_mov_b32 s63, -1
    s_and_b32 s44, s2, 7
    s_lshl_b32 s44, s44, 2
    s_bfe_u32 s46, s2, 0x20003
    s_add_u32 s29, s44, s46
    s_lshr_b32 s30, s2, 5
    ''')
    srd(a, 20, 78, WS_USED)
    srd(a, 64, 90, 2621440)
    if asmlib.STAMPS:
        a('s_mov_b32 s86, s88\ns_mov_b32 s87, s89')
    WDP = 86 if asmlib.STAMPS else 88
    if asmlib.STAMPS:
        a(f'''
        s_mov_b32 s88, s78
        s_mov_b32 s89, s79
        s_mov_b32 s90, 0x2000000
        s_mov_b32 s91, 0x20000
        s_mul_i32 s92, s2, 12
        s_add_u32 s92, s92, s24
        s_lshl_b32 s92, s92, 8
        s_add_u32 s92, s92, {asmlib.STAMP_OFF}
        ''')
    stamp(a, 0, early=True)
    stamp(a, 24)
    L_aux2 = a.label('aux2')
    a(f'''
    s_cmp_ge_u32 s24, 8
    s_cbranch_scc1 {L_aux2}
    ''')
    compute_wave(a, vL, vH, vR, L_end, c_start)
    a(f'{L_aux2}:')
    aux_wave(a, vL, vH, vR, L_end, WDP, a_start)
    a(f'''
    {L_end}:
    s_endpgm
    ''')
    return a.text()


def compute_wave(a, vL, vH, vR, L_end, c_start):
    al = Alloc(4, 168)
    T = al('T', 8, 4)
    ACC = al('acc', 64, 4)
    XF = al('xf', 32, 4)
    WF = al('wf', 16, 4)
    vXA = al('xa', 2)
    vWA = al('wa', 4)
    assert al.p == 130
    t0, t1, t2, t3, t4 = T, T + 1, T + 2, T + 3, T + 4
    a.c('=========== compute wave: phase 1 ===========')
    CR = 132
    XR = 132
    U = 160
    u0, u1, u2, u3, u4, u5 = range(U, U + 6)
    W4 = 144
    vN = 130
    srd(a, 4, 76, 256)

    a(f'''
    s_lshr_b32 s44, s30, 2
    s_lshl_b32 s46, s29, 1
    s_add_u32 s46, s46, s44
    s_and_b32 s44, s30, 3
    s_lshl_b32 s44, s44, 3
    s_add_u32 s45, s44, s24
    s_mul_i32 s37, s46, 40960
    s_add_u32 s37, s37, {OF_OFF}
    s_lshl_b32 s36, s45, 10
    s_add_u32 s36, s36, s37
    s_lshl_b32 s44, s45, 8
    s_add_u32 s37, s37, s44
    s_add_u32 s37, s37, 32768
    ''')
    PZ = 152
    poison = [f'v_mov_b32 {v(PZ + q)}, -1' for q in range(4)] + [
        f'v_lshlrev_b32 {v(u4)}, 4, {v(vL)}', f'v_lshlrev_b32 {v(u5)}, 2, {v(vL)}',
        f'buffer_store_dwordx4 {v(PZ, 4)}, {v(u4)}, s[20:23], s36 offen sc1',
        f'buffer_store_dword {v(PZ)}, {v(u5)}, s[20:23], s37 offen sc1']

    def lines(txt):
        return [x.strip() for x in txt.split(chr(10)) if x.strip()]

    def load_cs():
        f = lines(f'''
        s_mul_i32 s44, s27, 40
        v_lshrrev_b32 {v(u1)}, 3, {v(vL)}
        v_add_u32 {v(u1)}, s44, {v(u1)}
        v_mul_lo_u32 {v(u2)}, {v(u1)}, s53
        v_and_b32 {v(u1)}, 7, {v(vL)}
        v_lshl_add_u32 {v(u2)}, {v(u1)}, 4, {v(u2)}
        s_mov_b32 s34, s52
        ''')
        for t in range(5):
            f.append([f'buffer_load_dwordx4 {v(CR + 4 * t, 4)}, {v(u2)}, s[12:15], s34 offen', 's_add_u32 s34, s34, s31'])
        return f

    def load_rows():
        f = lines(f'''
        s_lshl_b32 s44, s27, 7
        s_lshl_b32 s45, s28, 3
        s_add_u32 s44, s44, s45
        s_lshl_b32 s45, s26, 1
        s_add_u32 s55, s44, s45
        v_add_u32 {v(u0)}, s55, {v(vH)}
        v_mul_u32_u24 {v(u0)}, 1280, {v(u0)}
        v_lshl_add_u32 {v(u0)}, {v(vR)}, 3, {v(u0)}
        ''')
        for t in range(5):
            f.append(f'buffer_load_dwordx2 {v(XR + 2 * t, 2)}, {v(u0)}, s[8:11], 0 offen offset:{256 * t}')
        return f

    def fill_cs():
        A8 = 152
        f = []
        for q in range(4):
            f += [f'v_lshlrev_b32 {v(A8 + 2 * q)}, 16, {v(CR + q)}', f'v_and_b32 {v(A8 + 2 * q + 1)}, 0xffff0000, {v(CR + q)}']
        for t in range(1, 5):
            for q in range(4):
                ta, tb = (u2, u3) if q & 1 else (u4, u5)
                f += lines(f'''
                v_lshlrev_b32 {v(ta)}, 16, {v(CR + 4 * t + q)}
                v_and_b32 {v(tb)}, 0xffff0000, {v(CR + 4 * t + q)}
                v_add_f32 {v(A8 + 2 * q)}, {v(A8 + 2 * q)}, {v(ta)}
                v_add_f32 {v(A8 + 2 * q + 1)}, {v(A8 + 2 * q + 1)}, {v(tb)}
                ''')
        f.append('s_nop 1')
        f += [f'v_permlane32_swap_b32 {v(A8 + q)}, {v(A8 + 4 + q)}' for q in range(4)]
        f.append('s_nop 1')
        f += [f'v_add_f32 {v(A8 + q)}, {v(A8 + q)}, {v(A8 + 4 + q)}' for q in range(4)]
        f.append('s_nop 1')
        f += [f'v_permlane16_swap_b32 {v(A8 + q)}, {v(A8 + 2 + q)}' for q in range(2)]
        f.append('s_nop 1')
        f += [f'v_add_f32 {v(A8 + q)}, {v(A8 + q)}, {v(A8 + 2 + q)}' for q in range(2)]
        f += lines(f'''
        s_nop 1
        v_add_f32_dpp {v(A8)}, {v(A8)}, {v(A8)} row_ror:8 row_mask:0xf bank_mask:0xf
        v_add_f32_dpp {v(A8 + 1)}, {v(A8 + 1)}, {v(A8 + 1)} row_ror:8 row_mask:0xf bank_mask:0xf
        s_mov_b32 vcc_lo, 0xff00ff00
        s_mov_b32 vcc_hi, 0xff00ff00
        v_cndmask_b32 {v(u0)}, {v(A8)}, {v(A8 + 1)}, vcc
        v_cvt_pk_bf16_f32 {v(u1)}, {v(u0)}, {v(u0)}
        v_and_b32 {v(u1)}, 0xffff0000, {v(u1)}
        v_sub_f32 {v(u1)}, {v(u0)}, {v(u1)}
        v_cvt_pk_bf16_f32 {v(u0)}, {v(u0)}, {v(u1)}
        v_and_b32 {v(u1)}, 7, {v(vL)}
        v_lshl_add_u32 {v(u1)}, {v(u1)}, 1, {v(vH)}
        v_bfe_u32 {v(u2)}, {v(vL)}, 4, 1
        v_lshl_add_u32 {v(u1)}, {v(u1)}, 1, {v(u2)}
        v_bfe_u32 {v(u2)}, {v(vL)}, 3, 1
        v_lshl_add_u32 {v(u1)}, {v(u1)}, 1, {v(u2)}
        v_and_b32 {v(u2)}, 15, {v(u1)}
        v_lshrrev_b32 {v(u3)}, 4, {v(u1)}
        s_and_b32 s44, s26, 1
        s_andn2_b32 s44, s44, s48
        s_lshl_b32 s44, s44, 7
        s_lshr_b32 s45, s26, 1
        s_lshl_b32 s45, s45, 4
        s_add_u32 s44, s44, s45
        v_lshl_add_u32 {v(u4)}, {v(u3)}, 5, s44
        s_add_u32 s44, s26, 3
        s_lshl_b32 s44, s44, 5
        v_lshl_add_u32 {v(u5)}, {v(u3)}, 4, s44
        s_cmp_eq_u32 s51, 1
        s_cselect_b64 vcc, -1, 0
        v_cndmask_b32 {v(u4)}, {v(u4)}, {v(u5)}, vcc
        v_add_lshl_u32 {v(u2)}, {v(u2)}, {v(u4)}, 2
        s_lshl_b32 s44, s28, 14
        s_lshl_b32 s45, s27, 10
        s_add_u32 s44, s44, s45
        s_add_u32 s44, s44, {CSW}
        buffer_store_dword {v(u0)}, {v(u2)}, s[20:23], s44 offen sc1
        s_lshl_b32 s46, s27, 2
        s_add_u32 s46, s46, s26
        s_lshl_b32 s46, s46, 7
        s_lshl_b32 s45, s28, 13
        s_add_u32 s46, s46, s45
        s_add_u32 s56, s46, {F_CS}
        ''')
        return f

    def fill_rows():
        f = [f'v_mov_b32 {v(u0)}, 0', f'v_mov_b32 {v(u1)}, 0']
        for t in range(10):
            f += lines(f'''
            v_lshlrev_b32 {v(u2)}, 16, {v(XR + t)}
            v_and_b32 {v(u3)}, 0xffff0000, {v(XR + t)}
            v_add_f32 {v(u0)}, {v(u0)}, {v(u2)}
            v_fmac_f32 {v(u1)}, {v(u2)}, {v(u2)}
            v_add_f32 {v(u0)}, {v(u0)}, {v(u3)}
            v_fmac_f32 {v(u1)}, {v(u3)}, {v(u3)}
            ''')
        for ror in (8, 4, 2, 1):
            f += lines(f'''
            s_nop 1
            v_add_f32_dpp {v(u0)}, {v(u0)}, {v(u0)} row_ror:{ror} row_mask:0xf bank_mask:0xf
            v_add_f32_dpp {v(u1)}, {v(u1)}, {v(u1)} row_ror:{ror} row_mask:0xf bank_mask:0xf
            ''')
        f += lines(f'''
        v_mov_b32 {v(u2)}, {v(u0)}
        v_mov_b32 {v(u3)}, {v(u1)}
        s_nop 1
        v_permlane16_swap_b32 {v(u0)}, {v(u2)}
        v_permlane16_swap_b32 {v(u1)}, {v(u3)}
        s_mov_b32 s44, {f2u(1.0 / 640.0)}
        s_mov_b32 s45, {f2u(1e-5)}
        v_add_f32 {v(u0)}, {v(u0)}, {v(u2)}
        v_add_f32 {v(u1)}, {v(u1)}, {v(u3)}
        v_mul_f32 {v(u0)}, s44, {v(u0)}
        v_mul_f32 {v(u1)}, s44, {v(u1)}
        v_fma_f32 {v(u1)}, -{v(u0)}, {v(u0)}, {v(u1)}
        v_max_f32 {v(u1)}, 0, {v(u1)}
        v_cvt_pk_bf16_f32 {v(W4)}, -{v(u0)}, -{v(u0)}
        v_cvt_pk_bf16_f32 {v(u1)}, {v(u1)}, {v(u1)}
        v_and_b32 {v(u1)}, 0xffff0000, {v(u1)}
        v_add_f32 {v(u1)}, s45, {v(u1)}
        v_cvt_pk_bf16_f32 {v(u1)}, {v(u1)}, {v(u1)}
        v_and_b32 {v(u1)}, 0xffff0000, {v(u1)}
        v_sqrt_f32 {v(u1)}, {v(u1)}
        v_mov_b32 {v(W4 + 3)}, 0
        v_cvt_pk_bf16_f32 {v(u1)}, {v(u1)}, {v(u1)}
        v_and_b32 {v(u1)}, 0xffff0000, {v(u1)}
        v_rcp_f32 {v(W4 + 1)}, {v(u1)}
        v_mul_f32 {v(W4 + 2)}, {v(u1)}, {v(u1)}
        v_lshlrev_b32 {v(u2)}, 4, {v(vH)}
        s_lshl_b32 s44, s55, 4
        s_add_u32 s44, s44, {ROWW}
        ''')
        f.append(['s_mov_b32 exec_lo, 1', 's_mov_b32 exec_hi, 1',
                  f'buffer_store_dwordx4 {v(W4, 4)}, {v(u2)}, s[20:23], s44 offen sc1', 's_mov_b64 exec, -1'])
        f += lines(f'''
        s_lshl_b32 s44, s28, 2
        s_add_u32 s44, s44, s26
        s_lshl_b32 s44, s44, 7
        s_lshl_b32 s45, s27, 13
        s_add_u32 s44, s44, s45
        s_add_u32 s56, s44, {F_ST}
        ''')
        return f

    stamp(a, 22)
    a(f'''
    v_and_b32 {v(t0)}, 15, {v(vL)}
    v_lshrrev_b32 {v(t1)}, 4, {v(vL)}
    v_lshrrev_b32 {v(t2)}, 1, {v(t0)}
    v_xor_b32 {v(t2)}, {v(t2)}, {v(t1)}
    v_lshlrev_b32 {v(t0)}, 7, {v(t0)}
    s_lshl_b32 s44, s25, 13
    v_add_u32 {v(t0)}, s44, {v(t0)}
    v_lshl_add_u32 {v(vXA)}, {v(t2)}, 4, {v(t0)}
    v_xor_b32 {v(t2)}, 4, {v(t2)}
    v_lshl_add_u32 {v(vXA + 1)}, {v(t2)}, 4, {v(t0)}
    v_bfe_u32 {v(t2)}, {v(vL)}, 2, 2
    v_lshl_add_u32 {v(t0)}, {v(t1)}, 3, {v(t2)}
    v_lshlrev_b32 {v(t0)}, 7, {v(t0)}
    v_and_b32 {v(t3)}, 3, {v(vL)}
    v_lshl_add_u32 {v(t0)}, {v(t3)}, 3, {v(t0)}
    v_and_b32 {v(t2)}, 2, {v(t2)}
    v_and_b32 {v(t1)}, 1, {v(t1)}
    v_xor_b32 {v(t1)}, {v(t1)}, {v(t2)}
    s_lshr_b32 s44, s26, 1
    s_and_b32 s57, s44, s48
    ''')
    for t in range(4):
        a(f'''
        s_lshl_b32 s44, s26, 1
        s_add_u32 s45, s44, {t >> 1}
        s_and_b32 s46, s45, 3
        s_lshr_b32 s45, s45, 2
        s_add_u32 s45, s45, {2 * (t & 1)}
        s_sub_u32 s44, s44, 3
        s_cmp_eq_u32 s57, 1
        s_cselect_b32 s45, s44, s45
        s_cselect_b32 s46, {t}, s46
        s_mul_i32 s45, s45, 24576
        s_add_u32 s45, s45, {LDS_W}
        v_xor_b32 {v(t2)}, s46, {v(t1)}
        v_lshl_add_u32 {v(t2)}, {v(t2)}, 5, {v(t0)}
        v_add_u32 {v(vWA + t)}, s45, {v(t2)}
        ''')

    def m16(d, A, B, first=False):
        return f'v_mfma_f32_16x16x32_bf16 {v(d, 4)}, {v(A, 4)}, {v(B, 4)}, ' + ('0' if first else v(d, 4))

    def xrd(g):
        c, sI = divmod(g, 2)
        return [f'ds_read_b128 {v(XF + 16 * (g & 1) + 4 * rt, 4)}, {v(vXA + sI)} offset:{LDS_X + (c % 3) * 16384 + 2048 * rt}' for rt in range(4)]

    def wrd(g, t):
        c, sI = divmod(g, 2)
        return [f'ds_read_b64_tr_b16 {v(WF + 4 * t + 2 * z, 2)}, {v(vWA + t)} offset:{(c % 3) * 8192 + 4096 * sI + 512 * z}' for z in range(2)]

    def tile(g, t):
        return [m16(ACC + 16 * t + 4 * rt, WF + 4 * t, XF + 16 * (g & 1) + 4 * rt, g == 0) for rt in range(4)]

    def chunk(c, fill=()):
        a.c(f'chunk {c}')
        if c:
            a('s_waitcnt lgkmcnt(0)')
        a('s_barrier')
        if not FEWST or c in (0, 1, 2, 9):
            stamp(a, 1 + c)
        if c == 9:
            lab = a.label('nqp')
            a(f's_cmp_eq_u32 s57, 0\ns_cbranch_scc1 {lab}\ns_setprio 2\n{lab}:')
        seq = []

        def rest(g, waits):
            pend = (wrd(g + 1, 0) + xrd(g + 1)) if g + 1 < 20 else []
            for t in range(1, 4):
                ms = tile(g, t)
                for q, m_ in enumerate(ms):
                    pre_ = [f's_waitcnt lgkmcnt({(0, 4, 10, 10)[t]})'] if (waits and q == 0) else []
                    ex = pend[2 * q:2 * q + 2] if t == 1 else []
                    if q == 3 and g + 1 < 20:
                        ex = ex + wrd(g + 1, t)
                    seq.append((pre_, m_, ex))
        if c > 0:
            rest(2 * c - 1, False)
        else:
            emit(a, wrd(0, 0) + xrd(0) + wrd(0, 1) + wrd(0, 2) + wrd(0, 3))
        g = 2 * c
        for q, m_ in enumerate(tile(g, 0)):
            seq.append((['s_waitcnt lgkmcnt(6)'] if q == 0 else [], m_, []))
        rest(g, True)
        for q, m_ in enumerate(tile(g + 1, 0)):
            seq.append((['s_waitcnt lgkmcnt(6)'] if q == 0 else [], m_, []))
        n, k_ = len(fill), len(seq)
        for q, (pre_, m_, ex) in enumerate(seq):
            emit(a, pre_)
            a(m_)
            emit(a, ex)
            emit(a, fill[(q * n) // k_:((q + 1) * n) // k_])

    if LATE1:
        c_start(1)
    lab1, lab2 = a.label('rowv'), a.label('join')
    a(f's_cmp_eq_u32 s25, 1\ns_cbranch_scc1 {lab1}')
    for var, (ld, fl) in enumerate(((load_cs(), fill_cs()), (load_rows(), fill_rows()))):
        qp = [] if var == 0 else lines(f'''
        s_mul_i32 s44, s27, 163840
        s_mul_i32 s45, s28, 10240
        s_add_u32 s44, s44, s45
        s_mul_i32 s45, s26, 2560
        s_add_u32 s44, s44, s45
        s_add_u32 s44, s44, {QF_OFF}
        v_lshlrev_b32 {v(u5)}, 3, {v(vL)}
        buffer_store_dwordx4 {v(PZ, 4)}, {v(u4)}, s[20:23], s44 offen sc1
        buffer_store_dwordx4 {v(PZ, 4)}, {v(u4)}, s[20:23], s44 offen offset:1024 sc1
        buffer_store_dwordx2 {v(PZ, 2)}, {v(u5)}, s[20:23], s44 offen offset:2048 sc1
        ''')
        nl = [f'buffer_load_dword {v(vN)}, off, s[4:7], 0 sc1']
        if NOSL:
            ld = [['buffer_load_dword v165, off, s[4:7], 0']] * 5
            fl = fl[-6:]
        pz0 = poison + qp if PZ0 else []
        fl = (fl + nl) if PZ0 else (poison + qp + fl + nl)
        if SLC == 0:
            emit(a, ld)
        a(f's_waitcnt vmcnt({9 if SLC == 0 else 4})')
        chunk(0, (ld if SLC == -1 else []) + pz0)
        a(f's_waitcnt vmcnt({(5 if SLC <= 0 else 0) + ((2, 5)[var] if PZ0 else 0)})')
        n = len(fl)
        f0 = max(SLC, 0) + SLG
        for c in range(1, f0 + SPN):
            if c == SLC:
                chunk(c, ld)
            elif c >= f0:
                q = c - f0
                chunk(c, ([f's_waitcnt vmcnt({(2, 5)[var] if PZ0 else 0})'] if q == 0 else []) + fl[(q * n) // SPN:((q + 1) * n) // SPN])
            else:
                chunk(c)
        if var == 0:
            a(f's_branch {lab2}\n{lab1}:')
    a(f'{lab2}:')
    chunk(f0 + SPN)
    Lp, Lq = a.label('cnp'), a.label('cnd')
    a(f'''
    s_mov_b32 s93, {POLL_MAX}
    {Lp}:
    s_waitcnt vmcnt(0)
    v_readfirstlane_b32 s98, {v(vN)}
    s_cmp_lg_u32 s98, 0
    s_cbranch_scc1 {Lq}
    s_sub_u32 s93, s93, 1
    s_cbranch_scc1 {Lq}
    buffer_load_dword {v(vN)}, off, s[4:7], 0 sc1
    s_branch {Lp}
    {Lq}:
    s_xor_b32 s99, s98, {NONCE_X}
    ''')
    lab = a.label('noxid')
    a(f'''
    s_cmp_lg_u32 s24, 0
    s_cbranch_scc1 {lab}
    s_getreg_b32 s44, hwreg(HW_REG_XCC_ID, 0, 4)
    s_lshl_b32 s45, s29, 7
    s_lshl_b32 s46, s30, 3
    s_add_u32 s45, s45, s46
    s_add_u32 s45, s45, {F_X}
    v_mov_b32 {v(U)}, s98
    v_mov_b32 {v(U + 1)}, s44
    s_mov_b64 exec, 1
    buffer_store_dwordx2 {v(U, 2)}, off, s[20:23], s45 sc1
    s_mov_b64 exec, -1
    {lab}:
    ''')
    flag_store(a, 's56', U + 2)
    RC, CSF, vS16 = 132, 148, 131
    pre = lines(f'''
    v_and_b32 {v(t2)}, 15, {v(vL)}
    v_lshrrev_b32 {v(t3)}, 4, {v(vL)}
    s_lshl_b32 s44, s25, 10
    s_add_u32 s44, s44, {ROWC_A}
    v_lshl_add_u32 {v(t0)}, {v(t2)}, 4, s44
    s_lshl_b32 s44, s26, 8
    s_add_u32 s44, s44, {CS_A}
    v_lshl_add_u32 {v(t1)}, {v(t2)}, 2, s44
    v_lshl_add_u32 {v(t1)}, {v(t3)}, 12, {v(t1)}
    v_lshlrev_b32 {v(vS16)}, 4, {v(t2)}
    v_lshl_add_u32 {v(vS16)}, {v(t3)}, 9, {v(vS16)}
    ''')
    pre += [f'ds_read_b128 {v(RC + 4 * rt, 4)}, {v(t0)} offset:{256 * rt}' for rt in range(4)]
    for t in range(4):
        for z in range(2):
            pre.append(f'ds_read2st64_b32 {v(CSF + 4 * t + 2 * z, 2)}, {v(t1)} offset0:{8 * z} offset1:{8 * z + 4}')
        if t < 3:
            pre.append(f'v_add_u32 {v(t1)}, 64, {v(t1)}')
    for c in range(f0 + SPN + 1, 10):
        chunk(c, pre if c == 9 else ())
    a(f'''
    s_lshl_b32 s44, s24, 2
    s_add_u32 s44, s44, {CD_A}
    v_mov_b32 {v(t0)}, s44
    v_mov_b32 {v(t1)}, s98
    s_waitcnt lgkmcnt(0)
    ds_write_b32 {v(t0)}, {v(t1)}
    ''')
    NEG = XF
    HH = 148
    ms = tile(19, 1) + tile(19, 2) + tile(19, 3)
    mv = [f'v_mov_b32 {v(NEG + 4 * rt + r)}, {v(RC + 4 * rt)}' for rt in range(4) for r in range(4)]
    for q, m_ in enumerate(ms):
        a(m_)
        emit(a, mv[(q * 16) // 12:((q + 1) * 16) // 12])
    stamp(a, 12)
    a(f'''
    s_mov_b32 s46, {f2u(C0)}
    s_mov_b32 s47, {f2u(C1)}
    ''')
    for rt in range(4):
        for t in range(4):
            a(m16(ACC + 16 * t + 4 * rt, CSF + 4 * t, NEG + 4 * rt))
    L_q = a.label('qepi')
    L_ed = a.label('epidone')
    a(f'''
    s_lshl_b32 s44, s27, 2
    s_lshl_b32 s45, s25, 1
    s_add_u32 s60, s44, s45
    s_cmp_eq_u32 s57, 1
    s_cbranch_scc1 {L_q}
    s_lshr_b32 s44, s49, 4
    s_lshl_b32 s45, s26, 1
    s_add_u32 s44, s44, s45
    s_mul_i32 s42, s60, 108
    s_add_u32 s42, s42, s44
    s_lshl_b32 s42, s42, 10
    s_add_u32 s43, s42, {108 * 1024}
    ''')
    E1, E2, KC = XF + 16, WF, T
    for rt in range(4):
        TT = E1 + 8 * (rt % 2)
        PP = E2 + 8 * (rt % 2)
        G_ = lambda i: ACC + 32 * (i >> 2) + 4 * rt + (i & 3)
        rho = RC + 4 * rt + 1
        a(f'''
        v_mul_f32 {v(KC)}, s46, {v(rho)}
        v_mul_f32 {v(KC + 1)}, s46, {v(rho)}
        v_mul_f32 {v(KC + 4)}, {v(rho)}, {v(rho)}
        v_mov_b32 {v(RC + 4 * rt + 3)}, {v(RC + 4 * rt + 2)}
        v_mul_f32 {v(KC + 4)}, {v(KC + 4)}, {v(rho)}
        v_mul_f32 {v(KC + 2)}, s47, {v(KC + 4)}
        v_mul_f32 {v(KC + 3)}, s47, {v(KC + 4)}
        ''')
        rc = v(RC + 4 * rt + 2, 2)
        for i in range(0, 8, 2):
            a(f'v_pk_mul_f32 {v(TT + i, 2)}, {v(G_(i), 2)}, {v(G_(i), 2)}')
        for i in range(0, 8, 2):
            a(f'v_pk_fma_f32 {v(TT + i, 2)}, {v(TT + i, 2)}, {v(KC + 2, 2)}, {v(KC, 2)}')
        for i in range(0, 8, 2):
            a(f'v_pk_mul_f32 {v(TT + i, 2)}, {v(TT + i, 2)}, {v(G_(i), 2)}')
        for i in range(8):
            a(f'v_exp_f32 {v(TT + i)}, {v(TT + i)}')
        for i in range(0, 8, 2):
            a(f'v_pk_mul_f32 {v(PP + i, 2)}, {v(G_(i), 2)}, {v(G_(i) + 16, 2)}')
        for i in range(0, 8, 2):
            a(f'v_pk_fma_f32 {v(TT + i, 2)}, {v(TT + i, 2)}, {rc}, {rc}')
        for i in range(8):
            a(f'v_rcp_f32 {v(TT + i)}, {v(TT + i)}')
        a('s_nop 0')
        for i in range(0, 8, 2):
            a(f'v_pk_mul_f32 {v(PP + i, 2)}, {v(PP + i, 2)}, {v(TT + i, 2)}')
        for i in range(4):
            a(f'v_cvt_pk_bf16_f32 {v(HH + 4 * rt + i)}, {v(PP + 2 * i)}, {v(PP + 2 * i + 1)}')
    a(f's_branch {L_ed}')
    a(f'{L_q}:')
    a(f'''
    s_sub_u32 s44, s26, 2
    s_lshl_b32 s44, s44, 6
    s_add_u32 s44, s44, s50
    s_lshl_b32 s44, s44, 6
    s_add_u32 s44, s44, {QF_OFF}
    s_mov_b32 s45, {f2u(QSC)}
    s_mul_i32 s46, s60, 40960
    s_add_u32 s46, s46, s44
    s_add_u32 s47, s46, 40960
    ''')
    for rt in range(4):
        a(f'v_mul_f32 {v(T + rt)}, s45, {v(RC + 4 * rt + 1)}')
    for rt in range(4):
        for pz in range(2):
            O_ = E1 + 4 * ((2 * rt + pz) % 8)
            regs = [ACC + 16 * (2 * pz + (i >> 2)) + 4 * rt + (i & 3) for i in range(8)]
            for r_ in regs:
                a(f'v_mul_f32 {v(r_)}, {v(r_)}, {v(T + rt)}')
            for i in range(4):
                a(f'v_cvt_pk_bf16_f32 {v(O_ + i)}, {v(regs[2 * i])}, {v(regs[2 * i + 1])}')
            a(f'buffer_store_dwordx4 {v(O_, 4)}, {v(vS16)}, s[20:23], s{46 + (rt >> 1)} offen offset:{2048 * pz + 256 * (rt & 1)} sc1')
    a(f'{L_ed}:')
    stamp(a, 13)

    a.c('=========== compute wave: attention ===========')
    al3 = Alloc(4, 168)
    T = al3('T', 16, 4)
    S = al3('S', 32, 4)
    O = al3('O', 16, 4)
    V1 = al3('V1', 4, 4)
    V2 = al3('V2', 4, 4)
    Q1 = al3('Q1', 4, 4)
    K1 = al3('K1', 8, 4)
    K2 = al3('K2', 8, 4)
    P = al3('P', 16, 4)
    Q2 = al3('Q2', 2, 2)
    vK = al3('vK')
    vK2 = al3('vK2')
    a(f'''
    s_lshl_b32 s44, s27, 1
    s_add_u32 s44, s44, s25
    s_lshl_b32 s44, s44, 13
    s_lshl_b32 s45, s28, 2
    s_add_u32 s45, s45, s26
    s_lshl_b32 s45, s45, 7
    s_add_u32 s44, s44, s45
    s_add_u32 s41, s44, {F_QH}
    s_nop 1
    ''')
    for i in range(16):
        a(f'v_mov_b32 {v(O + i)}, 0')
    for i in range(4):
        a(f'v_mov_b32 {v(V1 + i)}, 0')
        a(f'v_mov_b32 {v(V2 + i)}, 0')
    a(f'''
    s_mov_b32 s45, {KVR}
    v_lshl_add_u32 {v(vK)}, {v(vL)}, 4, s45
    v_lshl_add_u32 {v(vK2)}, {v(vL)}, 3, s45
    s_mul_i32 s45, s24, 5
    v_lshlrev_b32 {v(T + 4)}, 4, {v(vR)}
    s_lshr_b32 s44, s30, 2
    s_lshl_b32 s46, s29, 1
    s_add_u32 s44, s44, s46
    s_mul_i32 s44, s44, 40960
    s_and_b32 s46, s30, 3
    s_mul_i32 s46, s46, 10240
    s_add_u32 s44, s44, s46
    s_add_u32 s40, s44, {QF_OFF}
    ''')
    for z, (dq, useh) in enumerate(((0, 1), (2, 1), (4, 0))):
        a(f's_add_u32 s46, s45, {dq}')
        a(f'v_add_u32 {v(T + 5)}, s46, {v(vH)}' if useh else f'v_mov_b32 {v(T + 5)}, s46')
        a(f'''
        v_lshrrev_b32 {v(T + 6)}, 3, {v(T + 5)}
        v_lshl_add_u32 {v(T + 6)}, {v(T + 6)}, 11, {v(T + 4)}
        v_and_b32 {v(T + 7)}, 3, {v(T + 5)}
        v_lshl_add_u32 {v(T + 6)}, {v(T + 7)}, 9, {v(T + 6)}
        v_bfe_u32 {v(T + 5)}, {v(T + 5)}, 2, 1
        v_lshl_add_u32 {v(T + 13 + z)}, {v(T + 5)}, 3, {v(T + 6)}
        ''')
    a('s_setprio 0')
    for i in range(8):
        a(f'v_mov_b32 {v(P + 8 + i)}, 0')
    Lp, Lq = a.label('qp'), a.label('qpd')
    a(f'''
    s_mov_b32 s93, {OPOLL_MAX}
    {Lp}:
    buffer_load_dwordx2 {v(Q1, 2)}, {v(T + 13)}, s[20:23], s40 offen sc1
    buffer_load_dwordx2 {v(Q1 + 2, 2)}, {v(T + 14)}, s[20:23], s40 offen sc1
    buffer_load_dwordx2 {v(Q2, 2)}, {v(T + 15)}, s[20:23], s40 offen sc1
    s_waitcnt vmcnt(0)
    v_max3_u32 {v(T)}, {v(Q1)}, {v(Q1 + 1)}, {v(Q1 + 2)}
    v_max3_u32 {v(T + 1)}, {v(Q1 + 3)}, {v(Q2)}, {v(Q2 + 1)}
    v_max_u32 {v(T)}, {v(T)}, {v(T + 1)}
    v_cmp_eq_u32 vcc, -1, {v(T)}
    s_nop 1
    s_cmp_eq_u64 vcc, 0
    s_cbranch_scc1 {Lq}
    s_sub_u32 s93, s93, 1
    s_cbranch_scc1 {Lq}
    s_sleep {QSLEEP}
    s_branch {Lp}
    {Lq}:
    v_mov_b32 {v(T + 2)}, 0
    v_cndmask_b32 {v(Q2)}, {v(Q2)}, {v(T + 2)}, {HM}
    v_cndmask_b32 {v(Q2 + 1)}, {v(Q2 + 1)}, {v(T + 2)}, {HM}
    ''')
    stamp(a, 14)
    a('s_barrier')
    stamp(a, 15)
    o0, o1, o2 = tile_offs(0), tile_offs(1), tile_offs(2)
    a(f'''
    ds_read_b128 {v(K1, 4)}, {v(vK)} offset:{o0[0]}
    ds_read_b128 {v(K1 + 4, 4)}, {v(vK)} offset:{o1[0]}
    ds_read2st64_b64 {v(K2, 4)}, {v(vK2)} offset0:{o0[1] // 512} offset1:{o0[1] // 512 + 1}
    s_waitcnt lgkmcnt(0)
    ''')

    def set_m(mreg, offset):
        t0, t1, t2, t3 = T + 8, T + 9, T + 10, T + 11
        a(f'v_sub_f32 {v(t0)}, {f2u(-offset) if offset else 0}, {v(mreg)}')
        a(f'''
        v_cvt_pk_bf16_f32 {v(t1)}, {v(t0)}, {v(t0)}
        v_and_b32 {v(t2)}, 0xffff0000, {v(t1)}
        v_sub_f32 {v(t2)}, {v(t0)}, {v(t2)}
        v_cvt_pk_bf16_f32 {v(t1)}, {v(t0)}, {v(t2)}
        v_and_b32 {v(t3)}, 0xffff0000, {v(t1)}
        v_sub_f32 {v(t2)}, {v(t2)}, {v(t3)}
        v_mov_b32 {v(t3)}, 0
        v_cvt_pk_bf16_f32 {v(t2)}, {v(t2)}, {v(t3)}
        v_cndmask_b32 {v(Q2)}, {v(Q2)}, {v(t1)}, {HM}
        v_cndmask_b32 {v(Q2 + 1)}, {v(Q2 + 1)}, {v(t2)}, {HM}
        ''')

    def cross_half_max(reg):
        t = T + 12
        a(f'''
        v_mov_b32 {v(t)}, {v(reg)}
        s_nop 1
        v_permlane32_swap_b32 {v(reg)}, {v(t)}
        s_nop 1
        v_max_f32 {v(reg)}, {v(reg)}, {v(t)}
        ''')

    for t in range(2):
        a(mfma16(S + 16 * t, K1 + 4 * t, Q1))
    if HST < 0:
        lab = a.label('nohst')
        a(f'''
        s_cmp_eq_u32 s57, 1
        s_cbranch_scc1 {lab}
        ''')
        for k in range(4):
            a(f'buffer_store_dwordx4 {v(HH + 4 * k, 4)}, {v(vS16)}, s[20:23], s{42 + (k >> 1)} offen offset:{256 * (k & 1)} sc1')
        a(f'{lab}:')
    a('s_nop 9')
    for t in range(2):
        a(mfma8(S + 16 * t, K2 + 2 * t, Q2, S + 16 * t))
    a('s_nop 11')
    m = T + 4
    for z in range(2):
        a(f'v_max3_f32 {v(m + z)}, {v(S + 16 * z)}, {v(S + 16 * z + 1)}, {v(S + 16 * z + 2)}')
    for i in range(3, 15, 2):
        for z in range(2):
            a(f'v_max3_f32 {v(m + z)}, {v(m + z)}, {v(S + 16 * z + i)}, {v(S + 16 * z + i + 1)}')
    a(f'v_max3_f32 {v(m)}, {v(m)}, {v(S + 15)}, {v(S + 31)}')
    a(f'v_max_f32 {v(m)}, {v(m)}, {v(m + 1)}')
    cross_half_max(m)
    set_m(m, M_OFFSET)
    a('s_nop 1')
    a(mfma16(S, K1, Q1))
    a(f'''
    ds_read_b128 {v(K1, 4)}, {v(vK)} offset:{o2[0]}
    s_mov_b32 s34, 4
    s_nop 7
    ''')
    a(mfma8(S, K2, Q2, S))
    a('s_nop 9')
    stamp(a, 16)

    def toff(tt):
        tt &= 15
        o = tile_offs(tt & 3)
        return [x + (tt >> 2) * CH_BYTES for x in o]

    def k2read(reg, tt):
        o = toff(tt)[1]
        assert o % 512 == 0
        return f'ds_read2st64_b64 {v(reg, 4)}, {v(vK2)} offset0:{o // 512} offset1:{o // 512 + 1}'

    L_hf, L_hb = a.label('hflag'), a.label('hback')
    L_hs, L_hsb = a.label('hst'), a.label('hstb')
    a('s_cmp_eq_u32 s57, 1\ns_cselect_b32 s33, 99, 4')

    def slot(t):
        Sx, Sn = S + 16 * (t & 1), S + 16 * ((t + 1) & 1)
        Px, Pp = P + 8 * (t & 1), P + 8 * ((t + 1) & 1)
        kt = t + 1
        kb = kt & 1
        k2 = K2 + 4 * ((kt >> 1) & 1) + 2 * (kt & 1)
        m_ = [mfma16(Sn, K1 + 4 * kb, Q1), mfma16(O, V1, Pp, O), mfma8(Sn, k2, Q2, Sn), mfma16(O, V2, Pp + 4, O)]
        after = [[], [], [], []]
        if t & 3 == 1:
            after[0] = ['s_barrier']
        after[0] += [f'ds_read_b128 {v(K1 + 4 * kb, 4)}, {v(vK)} offset:{toff(t + 3)[0]}', 's_waitcnt lgkmcnt(2)']
        after[1] = [f'ds_read_b128 {v(V1, 4)}, {v(vK)} offset:{toff(t)[2]}']
        if t & 1:
            after[1] += [k2read(K2 + 4 * (((t + 3) >> 1) & 1), t + 3)]
        after[2] += [f's_waitcnt lgkmcnt({3 if t & 1 else 2})']
        after[3] = [f'ds_read_b128 {v(V2, 4)}, {v(vK)} offset:{toff(t)[3]}']
        if t == 15:
            after[3] += ['s_sub_u32 s34, s34, 1']
        if t == HST:
            after[3] += ['s_cmp_eq_u32 s34, s33', f's_cbranch_scc1 {L_hs}', f'{L_hsb}:']
        if t == HFLAG_T:
            after[3] += ['s_cmp_eq_u32 s34, 4', f's_cbranch_scc1 {L_hf}', f'{L_hb}:']
        val = []
        for i in range(8):
            val.append(f'v_exp_f32 {v(Sx + 2 * i)}, {v(Sx + 2 * i)}')
            val.append(f'v_exp_f32 {v(Sx + 2 * i + 1)}, {v(Sx + 2 * i + 1)}')
            if i > 0:
                val.append(f'v_cvt_pk_bf16_f32 {v(Px + i - 1)}, {v(Sx + 2 * i - 2)}, {v(Sx + 2 * i - 1)}')
        val.append(f'v_cvt_pk_bf16_f32 {v(Px + 7)}, {v(Sx + 14)}, {v(Sx + 15)}')
        groups = [val[0:5], val[5:11], val[11:17], val[17:24]]
        for g in range(4):
            a(m_[g])
            emit(a, after[g])
            emit(a, groups[g])

    a(k2read(K2 + 4, 2))
    L_loop = a.label('att')
    a('.p2align 6')
    a(f'{L_loop}:')
    for t in range(16):
        slot(t)
    a(f'''
    s_cmp_lg_u32 s34, 0
    s_cbranch_scc1 {L_loop}
    s_waitcnt lgkmcnt(0)
    ''')
    a(mfma16(O, V1, P + 8, O))
    a(mfma16(O, V2, P + 12, O))
    a(f'''
    v_lshlrev_b32 {v(T + 2)}, 4, {v(vL)}
    v_lshlrev_b32 {v(T + 3)}, 3, {v(vL)}
    v_mov_b32 {v(T + 9)}, 0x7f000000
    v_cndmask_b32 {v(T + 3)}, {v(T + 3)}, {v(T + 9)}, {HM}
    v_lshlrev_b32 {v(T + 4)}, 3, {v(vR)}
    v_lshl_add_u32 {v(T + 4)}, {v(vH)}, 9, {v(T + 4)}
    v_mov_b32 {v(T + 5)}, {SX_A}
    ds_read_b32 {v(T + 5)}, {v(T + 5)}
    s_nop 4
    ''')
    stamp(a, 17)
    L_fb = a.label('fb')
    L_out = a.label('aout')
    a(f'''
    s_mov_b32 s44, {f2u(2.0 ** 120)}
    s_mov_b32 s45, {f2u(2.0 ** -103)}
    v_add_f32 {v(T)}, |{v(O)}|, |{v(O + 1)}|
    v_add_f32 {v(T + 1)}, |{v(O + 2)}|, |{v(O + 3)}|
    ''')
    for i in range(4, 12, 2):
        a(f'v_add_f32 {v(T)}, {v(T)}, |{v(O + i)}|')
        a(f'v_add_f32 {v(T + 1)}, {v(T + 1)}, |{v(O + i + 1)}|')
    a(f'''
    v_add_f32 {v(T)}, {v(T)}, {v(T + 1)}
    v_add_f32 {v(T + 1)}, {v(T)}, {v(O + 12)}
    s_waitcnt lgkmcnt(0)
    v_readfirstlane_b32 s38, {v(T + 5)}
    v_cmp_le_f32 s[46:47], s45, {v(T)}
    v_cmp_gt_f32 s[48:49], s44, {v(T + 1)}
    s_nop 1
    s_and_b64 s[46:47], s[46:47], s[48:49]
    s_cmp_eq_u64 s[46:47], -1
    s_cbranch_scc0 {L_fb}
    {L_out}:
    v_rcp_f32 {v(T)}, {v(O + 12)}
    s_nop 0
    ''')
    for i in range(12):
        a(f'v_mul_f32 {v(O + i)}, {v(O + i)}, {v(T)}')
    for i in range(6):
        a(f'v_cvt_pk_bf16_f32 {v(P + i)}, {v(O + 2 * i)}, {v(O + 2 * i + 1)}')
    L_pl, L_st = a.label('oplain'), a.label('ostored')
    a(f'''
    s_cmp_eq_u32 s38, s98
    s_cbranch_scc1 {L_pl}
    buffer_store_dwordx4 {v(P, 4)}, {v(T + 2)}, s[20:23], s36 offen sc1
    buffer_store_dwordx2 {v(P + 4, 2)}, {v(T + 3)}, s[20:23], s37 offen sc1
    s_branch {L_st}
    {L_pl}:
    buffer_store_dwordx4 {v(P, 4)}, {v(T + 2)}, s[20:23], s36 offen
    buffer_store_dwordx2 {v(P + 4, 2)}, {v(T + 3)}, s[20:23], s37 offen
    {L_st}:
    ''')
    stamp(a, 18)
    g2_ids(a)
    OFR = 120
    a(f'''
    s_cmp_eq_u32 s25, 1
    s_cselect_b32 s44, s60, s59
    s_mul_i32 s44, s44, 40960
    s_add_u32 s44, s44, {OF_OFF}
    s_lshl_b32 s45, s26, 13
    s_add_u32 s38, s44, s45
    s_add_u32 s38, s38, 3072
    s_add_u32 s39, s38, 4096
    s_lshl_b32 s45, s26, 11
    s_add_u32 s40, s44, s45
    s_add_u32 s40, s40, 32768
    s_mul_i32 s44, s26, 14336
    s_lshl_b32 s45, s25, 10
    s_add_u32 s44, s44, s45
    s_add_u32 s44, s44, {OL_A}
    v_add_u32 {v(T + 5)}, s44, {v(T + 2)}
    s_barrier
    ''')
    Lp, Lq = a.label('cop'), a.label('copd')
    a(f's_mov_b32 s93, {OPOLL_MAX}\n{Lp}:')
    for q in range(5):
        a(f'buffer_load_dwordx4 {v(OFR + 4 * q, 4)}, {v(T + 2)}, s[20:23], {"s38" if q < 4 else "s39"} offen offset:{1024 * (q & 3)} sc1')
    for q in range(4):
        a(f'buffer_load_dwordx2 {v(OFR + 20 + 2 * q, 2)}, {v(T + 4)}, s[20:23], s40 offen offset:{1024 * (q >> 1) + 256 * (q & 1)} sc1')
    a('s_waitcnt vmcnt(0)')
    a(f'v_max3_u32 {v(T)}, {v(OFR)}, {v(OFR + 1)}, {v(OFR + 2)}')
    for i in range(3, 27, 2):
        a(f'v_max3_u32 {v(T)}, {v(T)}, {v(OFR + i)}, {v(OFR + i + 1)}')
    a(f'''
    v_max_u32 {v(T)}, {v(T)}, {v(OFR + 27)}
    v_cmp_eq_u32 vcc, -1, {v(T)}
    s_nop 1
    s_cmp_eq_u64 vcc, 0
    s_cbranch_scc1 {Lq}
    s_sub_u32 s93, s93, 1
    s_cbranch_scc1 {Lq}
    s_sleep {OSLEEP}
    s_branch {Lp}
    {Lq}:
    ''')
    for q in range(7):
        a(f'ds_write_b128 {v(T + 5)}, {v(OFR + 4 * q, 4)} offset:{2048 * q}')
    stamp(a, 21)
    if FFL:
        a(f'''
        s_lshl_b32 s44, s24, 2
        s_add_u32 s44, s44, {OW_A}
        v_mov_b32 {v(T)}, s44
        v_mov_b32 {v(T + 1)}, s98
        s_waitcnt lgkmcnt(0)
        ds_write_b32 {v(T)}, {v(T + 1)}
        ''')
    g2_out(a, S, vL, 's24', 0)
    if not FFL:
        a('s_waitcnt lgkmcnt(0)')
        a('s_barrier')
    a('s_barrier')
    stamp(a, 19)
    g2_out(a, S, vL, 's24', 1)
    if asmlib.STAMPS:
        a('s_waitcnt vmcnt(0)')
    stamp(a, 20)
    diag_end(a)
    a(f's_branch {L_end}')

    if HST >= 0:
        a(f'{L_hs}:')
        for k in range(4):
            a(f'buffer_store_dwordx4 {v(HH + 4 * k, 4)}, {v(vS16)}, s[20:23], s{42 + (k >> 1)} offen offset:{256 * (k & 1)} sc1')
        a(f's_branch {L_hsb}')
    a(f'{L_hf}:')
    a('s_waitcnt vmcnt(0)')
    flag_store(a, 's41', T + 2)
    a(f's_branch {L_hb}')
    a(f'{L_fb}:')
    L1 = a.label('fb1')
    L2 = a.label('fb2')
    a(f'''
    v_lshlrev_b32 {v(T + 13)}, 4, {v(vL)}
    v_lshlrev_b32 {v(T + 7)}, 3, {v(vL)}
    v_mov_b32 {v(T + 14)}, 0
    v_mov_b32 {v(T + 15)}, 0xff800000
    v_cndmask_b32 {v(Q2)}, {v(Q2)}, {v(T + 14)}, {HM}
    v_cndmask_b32 {v(Q2 + 1)}, {v(Q2 + 1)}, {v(T + 14)}, {HM}
    s_mov_b32 s77, {KV_OFF}
    s_mov_b32 s34, 32
    {L1}:
    buffer_load_dwordx4 {v(K1, 4)}, {v(T + 13)}, s[20:23], s77 offen sc1
    buffer_load_dwordx4 {v(K1 + 4, 4)}, {v(T + 13)}, s[20:23], s77 offen offset:1024 sc1
    buffer_load_dwordx2 {v(K2, 2)}, {v(T + 7)}, s[20:23], s77 offen offset:2048 sc1
    buffer_load_dwordx2 {v(K2 + 2, 2)}, {v(T + 7)}, s[20:23], s77 offen offset:2560 sc1
    s_waitcnt vmcnt(0)
    ''')
    for t in range(2):
        a(mfma16(S + 16 * t, K1 + 4 * t, Q1))
    a('s_nop 9')
    for t in range(2):
        a(mfma8(S + 16 * t, K2 + 2 * t, Q2, S + 16 * t))
    a('s_nop 15')
    for i in range(0, 32, 2):
        a(f'v_max3_f32 {v(T + 15)}, {v(T + 15)}, {v(S + i)}, {v(S + i + 1)}')
    a(f'''
    s_add_u32 s77, s77, 7168
    s_sub_u32 s34, s34, 1
    s_cmp_lg_u32 s34, 0
    s_cbranch_scc1 {L1}
    ''')
    cross_half_max(T + 15)
    set_m(T + 15, 0.0)
    for i in range(16):
        a(f'v_mov_b32 {v(O + i)}, 0')
    a(f'''
    s_mov_b32 s77, {KV_OFF}
    s_mov_b32 s34, 64
    {L2}:
    s_and_b32 s78, s34, 1
    s_lshl_b32 s79, s78, 10
    s_add_u32 s79, s79, s77
    s_lshl_b32 s80, s78, 9
    s_add_u32 s80, s80, s77
    s_lshl_b32 s81, s78, 11
    s_add_u32 s81, s81, s77
    s_add_u32 s81, s81, 3072
    buffer_load_dwordx4 {v(K1, 4)}, {v(T + 13)}, s[20:23], s79 offen sc1
    buffer_load_dwordx2 {v(K2, 2)}, {v(T + 7)}, s[20:23], s80 offen offset:2048 sc1
    buffer_load_dwordx4 {v(V1, 4)}, {v(T + 13)}, s[20:23], s81 offen sc1
    buffer_load_dwordx4 {v(V2, 4)}, {v(T + 13)}, s[20:23], s81 offen offset:1024 sc1
    s_waitcnt vmcnt(0)
    {mfma16(S, K1, Q1)}
    s_nop 10
    {mfma8(S, K2, Q2, S)}
    s_nop 15
    ''')
    for i in range(16):
        a(f'v_exp_f32 {v(S + i)}, {v(S + i)}')
    a('s_nop 0')
    for i in range(8):
        a(f'v_cvt_pk_bf16_f32 {v(P + i)}, {v(S + 2 * i)}, {v(S + 2 * i + 1)}')
    a(f'''
    s_nop 1
    {mfma16(O, V1, P, O)}
    {mfma16(O, V2, P + 4, O)}
    s_mul_i32 s78, s78, 7168
    s_add_u32 s77, s77, s78
    s_sub_u32 s34, s34, 1
    s_cmp_lg_u32 s34, 0
    s_cbranch_scc1 {L2}
    s_nop 15
    s_branch {L_out}
    ''')


def g2_ids(a):
    a('''
    s_lshr_b32 s57, s30, 1
    s_and_b32 s58, s30, 1
    s_lshl_b32 s44, s29, 1
    s_add_u32 s59, s44, s58
    s_xor_b32 s60, s59, 1
    s_mul_i32 s44, s57, 320
    s_lshl_b32 s45, s58, 7
    s_add_u32 s61, s44, s45
    ''')


def g2_out(a, T, vL, wsg, part):
    L_skip = a.label('g2o')
    a(f'''
    s_cmp_ge_u32 {wsg}, 10
    s_cbranch_scc1 {L_skip}
    ''')
    if part == 0:
        a(f'''
        s_lshr_b32 s45, {wsg}, 1
        s_and_b32 s46, {wsg}, 1
        s_lshl_b32 s46, s46, 4
        v_lshrrev_b32 {v(T)}, 2, {v(vL)}
        v_add_u32 {v(T)}, s46, {v(T)}
        v_and_b32 {v(T + 1)}, 3, {v(vL)}
        s_and_b32 s47, s45, 1
        s_cmp_eq_u32 s47, 1
        s_cselect_b32 s47, s60, s59
        s_mul_i32 s47, s47, {32 * 1280}
        s_lshr_b32 s48, s45, 1
        s_add_u32 s49, s48, s58
        s_lshl_b32 s49, s49, 6
        s_lshl_b32 s50, s58, 7
        s_sub_u32 s50, 128, s50
        s_cmp_eq_u32 s48, 2
        s_cselect_b32 s49, s50, s49
        s_add_u32 s47, s47, s49
        s_add_u32 s31, s47, s61
        v_mul_u32_u24 {v(T + 6)}, 1280, {v(T)}
        v_lshl_add_u32 {v(T + 6)}, {v(T + 1)}, 4, {v(T + 6)}
        buffer_load_dwordx4 {v(T + 2, 4)}, {v(T + 6)}, s[8:11], s31 offen
        v_lshlrev_b32 {v(T + 1)}, 1, {v(T + 1)}
        v_and_b32 {v(T + 7)}, 7, {v(T)}
        v_xor_b32 {v(T + 1)}, {v(T + 1)}, {v(T + 7)}
        v_lshlrev_b32 {v(T)}, 7, {v(T)}
        v_lshl_add_u32 {v(T)}, {v(T + 1)}, 4, {v(T)}
        s_lshl_b32 s47, s45, 12
        v_add_u32 {v(T)}, s47, {v(T)}
        v_xor_b32 {v(T + 1)}, 16, {v(T)}
        ''')
    else:
        for w in range(4):
            if w == 2:
                a(f'v_add_u32 {v(T)}, {WO_HI}, {v(T)}\nv_add_u32 {v(T + 1)}, {WO_HI}, {v(T + 1)}')
            a(f'ds_read_b128 {v(T + 8 + 8 * w, 4)}, {v(T)} offset:{21504 * (w & 1)}')
            a(f'ds_read_b128 {v(T + 12 + 8 * w, 4)}, {v(T + 1)} offset:{21504 * (w & 1)}')
        a('s_waitcnt vmcnt(0)')
        for i in range(4):
            a(f'''
            v_lshlrev_b32 {v(T + 40 + 2 * i)}, 16, {v(T + 2 + i)}
            v_and_b32 {v(T + 41 + 2 * i)}, 0xffff0000, {v(T + 2 + i)}
            ''')
        a('s_waitcnt lgkmcnt(4)')
        for i in range(0, 8, 2):
            a(f'v_pk_add_f32 {v(T + 8 + i, 2)}, {v(T + 8 + i, 2)}, {v(T + 16 + i, 2)}')
        for i in range(0, 8, 2):
            a(f'v_pk_add_f32 {v(T + 8 + i, 2)}, {v(T + 8 + i, 2)}, {v(T + 40 + i, 2)}')
        a('s_waitcnt lgkmcnt(0)')
        for i in range(0, 8, 2):
            a(f'v_pk_add_f32 {v(T + 24 + i, 2)}, {v(T + 24 + i, 2)}, {v(T + 32 + i, 2)}')
        for i in range(0, 8, 2):
            a(f'v_pk_add_f32 {v(T + 8 + i, 2)}, {v(T + 8 + i, 2)}, {v(T + 24 + i, 2)}')
        for i in range(4):
            a(f'v_cvt_pk_bf16_f32 {v(T + 16 + i)}, {v(T + 8 + 2 * i)}, {v(T + 9 + 2 * i)}')
        a(f'buffer_store_dwordx4 {v(T + 16, 4)}, {v(T + 6)}, s[64:67], s31 offen{OUTSC}')
    a(f'{L_skip}:')


def aux_wave(a, vL, vH, vR, L_end, WDP, a_start):
    al = Alloc(4, 168)
    T = al('T', 16, 4)
    vXD = al('xd', 2)
    vWD = al('wd', 2)
    vKD = al('kd')
    vKX = al('kx')
    vKW = al('kw')
    XR = al('xr', 10, 2)
    CR = al('cr', 20, 2)
    PF = al('pf', 2)
    AKV = al('akv', 16, 4)
    KXF = al('kxf', 4, 4)
    KWF = al('kwf', 4, 4)
    FX = al('fx', 16, 4)
    RD = al('rd', 48, 4)
    JA = al('ja', 2, 2)
    JS = al('js')
    t0, t1, t2, t3, t4, t5 = T, T + 1, T + 2, T + 3, T + 4, T + 5
    vm = VM()
    a.c('=========== aux wave: phase 1 ===========')
    assert (vXD, vWD, vKD) == (20, 22, 24)

    def dma_group(c, kvonly=False):
        st = c % 3
        lab = a.label('nokv')
        a(f'''
        {f's_add_u32 s35, s100, {c}' if ROT else f's_and_b32 s35, s100, {7 if c < 8 else 1}'}
        {'s_sub_u32 s34, s35, 10' if ROT else f's_xor_b32 s35, s35, {c}'}
        {'s_cselect_b32 s35, s35, s34' if ROT else ''}
        s_mul_i32 s33, s32, s35
        s_mul_i32 s34, s35, 2560
        s_lshl_b32 s35, s35, 7
        s_cmp_eq_u32 s40, 0
        s_cbranch_scc1 {lab}
        s_add_u32 m0, s38, {st * 3072}
        s_nop 0
        buffer_load_dwordx4 {v(vKD)}, s[16:19], s34 offen lds
        {lab}:
        ''')
        vm.add(f'c{c}', 1, optional=True)
        if kvonly or (NODMA and c > 2):
            vm.add(f'c{c}', 1, optional=True)
            return
        for e in range(4):
            a(f'''
            s_add_u32 m0, s36, {LDS_X + st * 16384 + e * 1024}
            s_add_u32 s34, s35, {(e >> 1) * 16 * 1280}
            buffer_load_dwordx4 {v(vXD + (e & 1))}, s[8:11], s34 offen lds
            ''')
        for e in range(8):
            a(f'''
            s_add_u32 m0, s37, {st * 8192 + e * 1024}
            s_nop 0
            buffer_load_dwordx4 {v(vWD + (e & 1))}, s[12:15], s33 offen lds
            ''')
            if e < 7:
                a('s_add_u32 s33, s33, s31')
        vm.add(f'c{c}', 12)

    vm.add('c0', 4)
    vm.add('c0', 1, optional=True)
    if not LATE1:
        vm.add('c1', 4)
        vm.add('c1', 1, optional=True)

    def jit(c):
        if not JIT or c > 9:
            return
        lab = a.label('nojit')
        a(f'''
        s_cmp_lg_u32 s26, 3
        s_cbranch_scc1 {lab}
        global_load_dword v165, {v(JA, 2)}, off
        v_add_co_u32 {v(JA)}, vcc, {v(JA)}, {v(JS)}
        s_nop 1
        v_addc_co_u32 {v(JA + 1)}, vcc, 0, {v(JA + 1)}, vcc
        {lab}:
        ''')
        vm.add('jit', 1, optional=True)

    if JIT:
        a(f'v_mov_b32 {v(JA)}, s68\nv_mov_b32 {v(JA + 1)}, s69')
        lab = a.label('nojs')
        a(f'''
        s_cmp_lg_u32 s26, 3
        s_cbranch_scc1 {lab}
        s_lshr_b32 s44, s2, 3
        s_and_b32 s45, s44, 7
        s_lshr_b32 s46, s44, 3
        s_lshl_b32 s46, s46, 5
        s_lshl_b32 s47, s27, 7
        s_add_u32 s46, s46, s47
        v_add_u32 {v(t0)}, s46, {v(vR)}
        v_mul_u32_u24 {v(t0)}, 1280, {v(t0)}
        v_add_u32 {v(t0)}, {128 * JIT}, {v(t0)}
        v_bfe_u32 {v(t1)}, {v(vL)}, 3, 1
        v_bfe_u32 {v(t2)}, {v(vL)}, 4, 1
        v_and_b32 {v(t3)}, s48, {v(t1)}
        v_cmp_eq_u32 s[58:59], 1, {v(t3)}
        v_cmp_eq_u32 s[60:61], 1, {v(t2)}
        v_mov_b32 {v(t4)}, 3456
        v_mov_b32 {v(t5)}, 1280
        v_cndmask_b32 {v(t4)}, {v(t4)}, {v(t5)}, s[58:59]
        s_xor_b32 s44, s48, 1
        v_and_b32 {v(t5)}, s44, {v(t1)}
        v_lshlrev_b32 {v(t5)}, 6, {v(t5)}
        v_add_u32 {v(t5)}, s49, {v(t5)}
        v_lshlrev_b32 {v(t3)}, 6, {v(t2)}
        v_add_u32 {v(t3)}, s50, {v(t3)}
        v_cndmask_b32 {v(t5)}, {v(t5)}, {v(t3)}, s[58:59]
        s_lshl_b32 s45, s45, 3
        s_add_u32 s45, s45, {64 * JIT}
        v_and_b32 {v(t3)}, 7, {v(vL)}
        v_add_u32 {v(t3)}, s45, {v(t3)}
        v_mul_lo_u32 {v(t3)}, {v(t3)}, {v(t4)}
        v_lshl_add_u32 {v(t3)}, {v(t5)}, 1, {v(t3)}
        v_cndmask_b32 {v(t0)}, {v(t0)}, {v(t3)}, {HM}
        v_lshlrev_b32 {v(t4)}, 6, {v(t4)}
        v_mov_b32 {v(t5)}, 128
        v_cndmask_b32 {v(JS)}, {v(t5)}, {v(t4)}, {HM}
        ''')
        for z in range(2):
            a(f'''
            v_mov_b32 {v(t1)}, s{80 + z}
            v_mov_b32 {v(t2)}, s{82 + z}
            v_cndmask_b32 {v(t1)}, {v(t1)}, {v(t2)}, s[60:61]
            v_mov_b32 {v(t2)}, s{70 + z}
            v_cndmask_b32 {v(t1)}, {v(t1)}, {v(t2)}, s[58:59]
            v_mov_b32 {v(t2)}, s{68 + z}
            v_cndmask_b32 {v(JA + z)}, {v(t2)}, {v(t1)}, {HM}
            ''')
        a(f'''
        v_add_co_u32 {v(JA)}, vcc, {v(JA)}, {v(t0)}
        s_nop 1
        v_addc_co_u32 {v(JA + 1)}, vcc, 0, {v(JA + 1)}, vcc
        {lab}:
        ''')
        for c in range(JIT, JITD):
            jit(c)
    srd(a, 4, 76, 256)
    lab = a.label('nononce')
    a(f'''
    s_or_b32 s44, s2, s26
    s_cmp_lg_u32 s44, 0
    s_cbranch_scc1 {lab}
    s_memrealtime s[44:45]
    s_waitcnt lgkmcnt(0)
    s_or_b32 s44, s44, 1
    v_mov_b32 {v(t0)}, s44
    s_mov_b64 exec, 1
    buffer_store_dword {v(t0)}, off, s[4:7], 0 sc1
    s_mov_b64 exec, -1
    {lab}:
    ''')
    vm.add('nonce', 1, optional=True)
    a(f'''
    s_and_b32 s56, s28, 3
    v_lshrrev_b32 {v(t0)}, 1, {v(vR)}
    v_and_b32 {v(t0)}, 7, {v(t0)}
    v_xor_b32 {v(t0)}, {v(t0)}, {v(vH)}
    s_lshl_b32 s44, s26, 1
    v_xor_b32 {v(t0)}, s44, {v(t0)}
    v_lshlrev_b32 {v(t3)}, 7, {v(vR)}
    v_lshl_add_u32 {v(t0)}, {v(t0)}, 4, {v(t3)}
    s_lshl_b32 s44, s56, 12
    v_add_u32 {v(vKX)}, s44, {v(t0)}
    v_bfe_u32 {v(t0)}, {v(vL)}, 2, 2
    v_lshl_add_u32 {v(t0)}, {v(vH)}, 3, {v(t0)}
    v_mul_u32_u24 {v(t0)}, 40, {v(t0)}
    v_bfe_u32 {v(t3)}, {v(vL)}, 4, 1
    v_and_b32 {v(t4)}, 3, {v(vL)}
    v_lshl_add_u32 {v(t3)}, {v(t3)}, 2, {v(t4)}
    v_min_u32 {v(t3)}, 4, {v(t3)}
    v_lshl_add_u32 {v(t0)}, {v(t3)}, 3, {v(t0)}
    s_mul_i32 s44, s26, 640
    s_add_u32 s44, s44, {LDS_KV}
    v_add_u32 {v(vKW)}, s44, {v(t0)}
    ''')
    for i in range(16):
        a(f'v_mov_b32 {v(AKV + i)}, 0')

    if LATE1:
        a_start(1)
        vm.add('c1', 4)
        vm.add('c1', 1, optional=True)

    def colsum(src_tag_wait, store_code):
        a(f's_waitcnt vmcnt({src_tag_wait})')
        a(f'''
        v_lshlrev_b32 {v(t0)}, 16, {v(CR)}
        v_and_b32 {v(t1)}, 0xffff0000, {v(CR)}
        ''')
        for t in range(1, 20):
            a(f'''
            v_lshlrev_b32 {v(t2)}, 16, {v(CR + t)}
            v_and_b32 {v(t3)}, 0xffff0000, {v(CR + t)}
            v_add_f32 {v(t0)}, {v(t0)}, {v(t2)}
            v_add_f32 {v(t1)}, {v(t1)}, {v(t3)}
            ''')
        a(f'''
        s_nop 1
        v_permlane32_swap_b32 {v(t0)}, {v(t1)}
        s_nop 1
        v_add_f32 {v(t0)}, {v(t0)}, {v(t1)}
        v_cvt_pk_bf16_f32 {v(t1)}, {v(t0)}, {v(t0)}
        v_and_b32 {v(t1)}, 0xffff0000, {v(t1)}
        v_sub_f32 {v(t1)}, {v(t0)}, {v(t1)}
        v_cvt_pk_bf16_f32 {v(t0)}, {v(t0)}, {v(t1)}
        ''')
        store_code()

    a('''
    s_lshl_b32 s41, s27, 10
    s_and_b32 s44, s28, 11
    s_cmp_eq_u32 s44, 0
    s_cselect_b32 s42, 1, 0
    s_cmp_eq_u32 s26, 3
    s_cselect_b32 s42, s42, 0
    ''')

    def kv_step(c, part):
        st = c % 3
        lab = a.label('kvs')
        a(f's_cmp_eq_u32 s54, 0\ns_cbranch_scc1 {lab}')
        if part == 0:
            a(f'''
            ds_read_b128 {v(KXF, 4)}, {v(vKX)} offset:{LDS_X + st * 16384}
            ds_read_b64_tr_b16 {v(KWF, 2)}, {v(vKW)} offset:{st * 3072}
            ds_read_b64_tr_b16 {v(KWF + 2, 2)}, {v(vKW)} offset:{st * 3072 + 160}
            ''')
        else:
            a('s_waitcnt lgkmcnt(0)')
            a(mfma16(AKV, KWF, KXF, AKV))
        a(f'{lab}:')

    for c in range(10):
        a.c(f'aux chunk {c}')
        if c == 0:
            stamp(a, 22)
        if c <= 8:
            a(f's_waitcnt vmcnt({vm.wait(f"c{c}") if c != 5 else min(vm.wait("c5"), vm.wait("st"), vm.wait("nl"))})')
        else:
            a('s_waitcnt vmcnt(0)')
        a('s_barrier')
        if not FEWST or c in (0, 1, 2, 9):
            stamp(a, 1 + c)
        if asmlib.STAMPS:
            vm.add('stamp', 1, optional=True)
        if c == 3:
            a(f'buffer_load_dword {v(PF)}, off, s[4:7], 0 sc1')
            vm.add('nl', 1)
        kv_step(c, 0)
        if c == P3C:
            lab = a.label('nop3')
            a(f'''
            v_lshlrev_b32 {v(T + 8)}, 3, {v(vL)}
            v_lshlrev_b32 {v(T + 10)}, 7, {v(vL)}
            v_and_b32 {v(T + 11)}, 0x780, {v(T + 10)}
            s_cmp_lg_u32 s26, 3
            s_cbranch_scc1 {lab}
            s_lshl_b32 s44, s27, 13
            s_add_u32 s44, s44, {F_ST}
            s_lshl_b32 s45, s28, 13
            s_add_u32 s45, s45, {F_CS}
            s_and_b32 s58, s28, 4
            s_lshl_b32 s58, s58, 9
            s_add_u32 s58, s58, {F_KC}
            ''')
            a(f'''
            s_mov_b32 s60, s44
            s_mov_b32 s61, s45
            s_lshr_b32 s59, s29, 1
            s_lshl_b32 s59, s59, 13
            s_add_u32 s59, s59, {F_ST}
            buffer_load_dwordx2 {v(FX + 6, 2)}, {v(T + 10)}, s[20:23], s59 offen sc1
            buffer_load_dwordx2 {v(FX, 2)}, {v(T + 10)}, s[20:23], s60 offen sc1
            buffer_load_dwordx2 {v(FX + 2, 2)}, {v(T + 10)}, s[20:23], s61 offen sc1
            buffer_load_dwordx2 {v(FX + 4, 2)}, {v(T + 11)}, s[20:23], s58 offen sc1
            {lab}:
            ''')
        jit(c + JITD)
        if (1 if EARLY2 else 0) <= c and c + 2 < 10:
            dma_group(c + 2)
        kv_step(c, 1)
        if c == P3C:
            lab = a.label('nop3b')
            a(f'''
            s_cmp_lg_u32 s26, 3
            s_cbranch_scc1 {lab}
            s_waitcnt vmcnt(12)
            v_cmp_eq_u64 vcc, s[98:99], {v(FX, 2)}
            v_cmp_eq_u64 s[46:47], s[98:99], {v(FX + 2, 2)}
            v_cmp_eq_u64 s[44:45], s[98:99], {v(FX + 4, 2)}
            v_cmp_eq_u64 s[48:49], s[98:99], {v(FX + 6, 2)}
            s_nop 1
            s_and_b64 vcc, vcc, s[46:47]
            s_and_b64 vcc, vcc, s[44:45]
            s_and_b64 vcc, vcc, s[48:49]
            s_cmp_eq_u64 vcc, -1
            s_cbranch_scc1 {lab}
            ''')
            polln(a, FX, [T + 10, T + 10, T + 11], [('s60', None), ('s61', None), ('s58', None)], 4)
            polln(a, FX, [T + 10], [('s59', None)], 4)
            a(f'{lab}:')
        if c == 2:
            lab = a.label('nokvcs')
            a(f'''
            s_cmp_eq_u32 s42, 0
            s_cbranch_scc1 {lab}
            s_mul_i32 s44, s27, 40
            v_add_u32 {v(t1)}, s44, {v(vH)}
            v_mul_u32_u24 {v(t2)}, 40, {v(t1)}
            v_lshl_add_u32 {v(t2)}, {v(vR)}, 2, {v(t2)}
            ''')
            for t in range(20):
                a(f'buffer_load_dword {v(CR + t)}, {v(t2)}, s[16:19], 0 offen offset:{80 * t}')
            a(f'{lab}:')
            vm.add('kcr', 20, optional=True)
        if c == 3:
            lab = a.label('nokvcs2')
            a(f's_cmp_eq_u32 s42, 0\ns_cbranch_scc1 {lab}')

            def kcs_store():
                a(f'''
                v_lshl_add_u32 {v(t1)}, {v(vR)}, 1, {v(vH)}
                v_lshlrev_b32 {v(t2)}, 2, {v(t1)}
                v_mov_b32 {v(t3)}, 0x7f000000
                v_cmp_gt_u32 vcc, 32, {v(t1)}
                s_lshl_b32 s44, s28, 9
                s_lshl_b32 s45, s27, 7
                s_add_u32 s44, s44, s45
                s_add_u32 s44, s44, {CSKVW}
                v_cndmask_b32 {v(t2)}, {v(t3)}, {v(t2)}, vcc
                buffer_store_dword {v(t0)}, {v(t2)}, s[20:23], s44 offen sc1
                ''')
            colsum(vm.wait('kcr'), kcs_store)
            a(f'{lab}:')
            vm.add('st', 1, optional=True)
        if c == 5:
            Lp = a.label('np')
            Lq = a.label('npd')
            Lr = a.label('nokcf')
            a(f'''
            s_mov_b32 s93, {POLL_MAX}
            {Lp}:
            v_readfirstlane_b32 s98, {v(PF)}
            s_cmp_lg_u32 s98, 0
            s_cbranch_scc1 {Lq}
            s_sub_u32 s93, s93, 1
            s_cbranch_scc1 {Lq}
            buffer_load_dword {v(PF)}, off, s[4:7], 0 sc1
            s_waitcnt vmcnt(0)
            s_branch {Lp}
            {Lq}:
            s_xor_b32 s99, s98, {NONCE_X}
            s_lshl_b32 s44, s28, 9
            s_lshl_b32 s45, s27, 7
            s_add_u32 s44, s44, s45
            s_add_u32 s44, s44, {F_KC}
            s_cmp_eq_u32 s42, 0
            s_cbranch_scc1 {Lr}
            ''')
            flag_store(a, 's44', T + 2)
            a(f'{Lr}:')
            vm.add('fl', 1, optional=True)
        if P1PF and c in (6, 7):
            if c == 6:
                srd(a, 4, WDP, 2211840)
                a(f'''
                s_lshr_b32 s44, s2, 6
                s_mul_i32 s44, s44, {432 * 1280}
                s_bfe_u32 s45, s2, 0x30003
                s_mul_i32 s45, s45, {180 * 128}
                s_add_u32 s44, s44, s45
                s_mul_i32 s45, s26, {45 * 128}
                s_add_u32 s57, s44, s45
                v_lshlrev_b32 {v(PF + 1)}, 7, {v(vL)}
                ''')
            for z in range(2 if c == 6 else 1):
                a(f'''
                s_mov_b32 exec_hi, {(1 << 13) - 1}
                buffer_load_dword v165, {v(PF + 1)}, s[4:7], s57 offen
                s_mov_b32 exec_hi, -1
                s_add_u32 s57, s57, {144 * 1280}
                ''')
                vm.add('pf', 1)
        if c == 8:
            a(f'''
            v_lshlrev_b32 {v(T + 9)}, 4, {v(vL)}
            s_lshl_b32 s44, s28, 14
            s_lshl_b32 s45, s26, 12
            s_add_u32 s44, s44, s45
            s_add_u32 s44, s44, {CSW}
            ''')
            for e in range(4):
                a(f'''
                s_add_u32 m0, s45, {CS_A + 1024 * e}
                s_nop 0
                buffer_load_dwordx4 {v(T + 9)}, s[20:23], s44 offen{LD} lds
                s_add_u32 s44, s44, 1024
                ''')
            lab = a.label('norc')
            a(f'''
            s_cmp_lg_u32 s26, 0
            s_cbranch_scc1 {lab}
            s_lshl_b32 s44, s27, 11
            s_add_u32 s44, s44, {ROWW}
            s_mov_b32 m0, {ROWC_A}
            s_and_b32 s45, s28, 4
            buffer_load_dwordx4 {v(T + 9)}, s[20:23], s44 offen{LD} lds
            buffer_load_dwordx4 {v(T + 9)}, s[20:23], s44 offen offset:1024{LD} lds
            s_lshl_b32 s45, s45, 9
            s_add_u32 s45, s45, {CSKVW}
            s_mov_b32 m0, {CSKV_A}
            s_nop 0
            buffer_load_dwordx4 {v(T + 9)}, s[20:23], s45 offen{LD} lds
            buffer_load_dwordx4 {v(T + 9)}, s[20:23], s45 offen offset:1024{LD} lds
            {lab}:
            ''')
    L_p2 = a.label('auxp2')
    L_v = a.label('vepi')
    L_a0 = a.label('aux0f')
    lab = a.label('nokvfin')
    lab2 = a.label('nofix')
    a(f'''
    s_cmp_eq_u32 s54, 0
    s_cbranch_scc1 {lab}
    s_cmp_lg_u32 s26, 0
    s_cbranch_scc1 {lab2}
    s_lshl_b32 s44, s56, 9
    s_add_u32 s44, s44, {ROWC_A}
    v_lshl_add_u32 {v(t0)}, {v(vR)}, 4, s44
    v_lshlrev_b32 {v(t1)}, 2, {v(vR)}
    v_lshl_add_u32 {v(t1)}, {v(vH)}, 9, {v(t1)}
    v_add_u32 {v(t1)}, {CSKV_A}, {v(t1)}
    v_add_u32 {v(t2)}, 1024, {v(t1)}
    ds_read_b128 {v(FX, 4)}, {v(t0)}
    ds_read2_b32 {v(FX + 8, 2)}, {v(t1)} offset0:0 offset1:32
    ds_read2_b32 {v(FX + 10, 2)}, {v(t1)} offset0:64 offset1:96
    ds_read2_b32 {v(FX + 12, 2)}, {v(t2)} offset0:0 offset1:32
    ds_read2_b32 {v(FX + 14, 2)}, {v(t2)} offset0:64 offset1:96
    s_waitcnt lgkmcnt(4)
    v_mov_b32 {v(FX + 4)}, {v(FX)}
    v_mov_b32 {v(FX + 5)}, {v(FX)}
    v_mov_b32 {v(FX + 6)}, {v(FX)}
    v_mov_b32 {v(FX + 7)}, {v(FX)}
    s_waitcnt lgkmcnt(0)
    s_nop 1
    {mfma16(AKV, FX + 8, FX + 4, AKV)}
    {mfma16(AKV, FX + 12, FX + 4, AKV)}
    s_branch {L_a0}
    {lab2}:
    s_lshl_b32 s44, s26, 12
    v_add_u32 {v(t0)}, s44, {v(T + 9)}
    s_lshl_b32 s44, s26, 2
    s_add_u32 s44, s44, {PD_A}
    v_mov_b32 {v(t1)}, s44
    v_mov_b32 {v(t2)}, s98
    s_nop 11
    ''')
    for q in range(3):
        a(f'ds_write_b128 {v(t0)}, {v(AKV + 4 * q, 4)} offset:{PART_A + 1024 * q}')
    L_sp = a.label('pspin')
    L_spd = a.label('pspind')
    a(f'''
    s_waitcnt lgkmcnt(0)
    ds_write_b32 {v(t1)}, {v(t2)}
    {lab}:
    s_branch {L_p2}
    {L_a0}:
    v_mov_b32 {v(t1)}, {PD_A}
    s_mov_b32 s93, {POLL_MAX * 8}
    {L_sp}:
    ds_read_b128 {v(T + 4, 4)}, {v(t1)}
    s_waitcnt lgkmcnt(0)
    v_xor_b32 {v(T + 5)}, s98, {v(T + 5)}
    v_xor_b32 {v(T + 6)}, s98, {v(T + 6)}
    v_xor_b32 {v(T + 7)}, s98, {v(T + 7)}
    v_or3_b32 {v(T + 5)}, {v(T + 5)}, {v(T + 6)}, {v(T + 7)}
    s_nop 0
    v_readfirstlane_b32 s44, {v(T + 5)}
    s_cmp_eq_u32 s44, 0
    s_cbranch_scc1 {L_spd}
    s_sub_u32 s93, s93, 1
    s_cbranch_scc0 {L_sp}
    {L_spd}:
    ''')
    stamp(a, 12)
    for w in range(1, 4):
        for q in range(3):
            a(f'ds_read_b128 {v(RD + 12 * (w - 1) + 4 * q, 4)}, {v(T + 9)} offset:{PART_A + 4096 * w + 1024 * q}')
    a(f'''
    s_lshl_b32 s57, s27, 2
    s_add_u32 s57, s57, s56
    s_lshr_b32 s44, s57, 1
    s_mul_i32 s44, s44, 7168
    s_add_u32 s44, s44, {KV_OFF}
    s_and_b32 s45, s57, 1
    s_and_b32 s58, s28, 4
    s_lshl_b32 s58, s58, 4
    s_add_u32 s58, s58, s57
    s_lshl_b32 s58, s58, 7
    s_add_u32 s58, s58, {F_KV}
    s_waitcnt lgkmcnt(0)
    ''')
    for i in range(12):
        a(f'v_add_f32 {v(AKV + i)}, {v(AKV + i)}, {v(RD + i)}')
        a(f'v_add_f32 {v(RD + 12 + i)}, {v(RD + 12 + i)}, {v(RD + 24 + i)}')
    for i in range(12):
        a(f'v_add_f32 {v(AKV + i)}, {v(AKV + i)}, {v(RD + 12 + i)}')
    for i in range(12):
        a(f'v_mul_f32 {v(AKV + i)}, {v(AKV + i)}, {v(FX + 1)}')
    PK = RD
    for i in range(6):
        a(f'v_cvt_pk_bf16_f32 {v(PK + i)}, {v(AKV + 2 * i)}, {v(AKV + 2 * i + 1)}')
    L_kvf = a.label('kvflag')
    a(f'''
    s_bitcmp1_b32 s28, 2
    s_cbranch_scc1 {L_v}
    v_mov_b32 {v(t0)}, 0x3f803f80
    v_mov_b32 {v(t1)}, 0x00003f80
    v_cndmask_b32 {v(PK + 4)}, {v(PK + 4)}, {v(t0)}, {HM}
    v_cndmask_b32 {v(PK + 5)}, {v(PK + 5)}, {v(t1)}, {HM}
    s_lshl_b32 s46, s45, 10
    s_add_u32 s46, s46, s44
    s_lshl_b32 s47, s45, 9
    s_add_u32 s47, s47, s44
    buffer_store_dwordx4 {v(PK, 4)}, {v(T + 9)}, s[20:23], s46 offen sc1
    buffer_store_dwordx2 {v(PK + 4, 2)}, {v(T + 8)}, s[20:23], s47 offen offset:2048 sc1
    s_branch {L_kvf}
    {L_v}:
    v_mov_b32 {v(t0)}, 0
    v_cndmask_b32 {v(PK + 4)}, {v(PK + 4)}, {v(t0)}, {HM}
    v_cndmask_b32 {v(PK + 5)}, {v(PK + 5)}, {v(t0)}, {HM}
    v_mov_b32 {v(PK + 6)}, 0x00003f80
    v_mov_b32 {v(PK + 7)}, 0
    v_lshlrev_b32 {v(t0)}, 6, {v(vR)}
    v_lshl_add_u32 {v(t0)}, {v(vH)}, 3, {v(t0)}
    ds_write_b64 {v(t0)}, {v(PK, 2)} offset:{VT_A}
    ds_write_b64 {v(t0)}, {v(PK + 2, 2)} offset:{VT_A + 16}
    ds_write_b64 {v(t0)}, {v(PK + 4, 2)} offset:{VT_A + 32}
    ds_write_b64 {v(t0)}, {v(PK + 6, 2)} offset:{VT_A + 48}
    v_bfe_u32 {v(t1)}, {v(vL)}, 2, 2
    v_lshl_add_u32 {v(t1)}, {v(vH)}, 2, {v(t1)}
    v_lshlrev_b32 {v(t1)}, 6, {v(t1)}
    v_bfe_u32 {v(t2)}, {v(vL)}, 4, 1
    v_lshl_add_u32 {v(t1)}, {v(t2)}, 5, {v(t1)}
    v_and_b32 {v(t2)}, 3, {v(vL)}
    v_lshl_add_u32 {v(t1)}, {v(t2)}, 3, {v(t1)}
    s_waitcnt lgkmcnt(0)
    ds_read_b64_tr_b16 {v(PK + 8, 2)}, {v(t1)} offset:{VT_A}
    ds_read_b64_tr_b16 {v(PK + 10, 2)}, {v(t1)} offset:{VT_A + 512}
    ds_read_b64_tr_b16 {v(PK + 12, 2)}, {v(t1)} offset:{VT_A + 1024}
    ds_read_b64_tr_b16 {v(PK + 14, 2)}, {v(t1)} offset:{VT_A + 1536}
    s_lshl_b32 s46, s45, 11
    s_add_u32 s46, s46, s44
    s_add_u32 s46, s46, 3072
    s_waitcnt lgkmcnt(0)
    buffer_store_dwordx4 {v(PK + 8, 4)}, {v(T + 9)}, s[20:23], s46 offen sc1
    buffer_store_dwordx4 {v(PK + 12, 4)}, {v(T + 9)}, s[20:23], s46 offen offset:1024 sc1
    {L_kvf}:
    s_waitcnt vmcnt(0)
    ''')
    flag_store(a, 's58', T + 2)
    a(f'{L_p2}:')
    stamp(a, 13)

    a.c('=========== aux wave: phase 2 ===========')
    al = Alloc(4, 164)
    T = al('T', 8, 4)
    vWD = al('wd', 3)
    vWA = al('wa', 3)
    vHL = al('hl')
    vKO = al('ko')
    vPF = al('pf')
    ACC = al('acc', 80, 4)
    SL = al('slots', 60, 4)
    wreg = lambda k: SL + 20 * (k % 3)
    hreg = lambda k: SL + 20 * (k % 3) + 12
    a(f's_setprio {PRIO2}')
    g2_ids(a)
    srd(a, 12, WDP, 2211840)
    srd(a, 16, 84, 819200)
    a(f"""
    s_mul_i32 s44, s26, 27
    s_mul_i32 s41, s59, 108
    s_add_u32 s41, s41, s44
    s_lshl_b32 s41, s41, 10
    s_mul_i32 s42, s60, 108
    s_add_u32 s42, s42, s44
    s_lshl_b32 s42, s42, 10
    s_lshr_b32 s43, s44, 1
    s_mul_i32 s43, s43, 40960
    s_and_b32 s45, s44, 1
    s_mul_i32 s52, s45, 10240
    s_add_u32 s43, s43, s52
    s_mul_i32 s52, s45, 20480
    s_add_u32 s52, s52, 10240
    s_mov_b32 s48, 40960
    s_lshl_b32 s44, s26, 3
    s_mul_i32 s56, s44, 25600
    s_mul_i32 s54, s59, 40
    s_add_u32 s54, s54, s44
    s_lshl_b32 s54, s54, 10
    s_add_u32 s54, s54, {OF_OFF}
    s_mul_i32 s55, s60, 40
    s_add_u32 s55, s55, s44
    s_lshl_b32 s55, s55, 10
    s_add_u32 s55, s55, {OF_OFF}
    s_and_b32 s44, s26, 1
    s_mul_i32 s39, s44, 21504
    s_lshr_b32 s44, s26, 1
    s_mul_i32 s44, s44, {WO_HI}
    s_add_u32 s39, s39, s44
    s_mov_b32 s40, s39
    s_mov_b32 s45, 0x15556
    v_lshlrev_b32 {v(vHL)}, 4, {v(vL)}
    v_lshlrev_b32 {v(vPF)}, 7, {v(vL)}
    s_lshl_b32 s36, s26, 12
    s_min_u32 s36, s36, 11264
    v_add_u32 {v(vKO)}, s36, {v(vHL)}
    """)
    for p in range(3):
        a(f"""
        v_add_u32 {v(T)}, {64 * p}, {v(vL)}
        v_mul_lo_u32 {v(T + 1)}, {v(T)}, s45
        v_lshrrev_b32 {v(T + 1)}, 20, {v(T + 1)}
        v_mul_u32_u24 {v(T + 2)}, 12, {v(T + 1)}
        v_sub_u32 {v(T + 2)}, {v(T)}, {v(T + 2)}
        v_and_b32 {v(T)}, 8, {v(T + 1)}
        v_add_u32 {v(T + 1)}, {v(T + 1)}, {v(T)}
        v_mul_u32_u24 {v(T + 1)}, 1280, {v(T + 1)}
        v_lshl_add_u32 {v(T + 1)}, {v(T + 2)}, 4, {v(T + 1)}
        v_add_u32 {v(vWD + p)}, s61, {v(T + 1)}
        """)
    a(f"""
    v_bfe_u32 {v(T)}, {v(vL)}, 2, 2
    v_lshl_add_u32 {v(T)}, {v(vH)}, 2, {v(T)}
    v_mul_u32_u24 {v(T)}, 192, {v(T)}
    v_bfe_u32 {v(T + 1)}, {v(vL)}, 4, 1
    v_lshl_add_u32 {v(T)}, {v(T + 1)}, 5, {v(T)}
    v_and_b32 {v(T + 1)}, 3, {v(vL)}
    v_lshl_add_u32 {v(T)}, {v(T + 1)}, 3, {v(T)}
    v_add_u32 {v(T)}, s39, {v(T)}
    s_lshl_b32 s44, s58, 6
    s_add_u32 s45, s44, 64
    s_lshl_b32 s46, s58, 7
    s_sub_u32 s46, 128, s46
    v_add_u32 {v(vWA)}, s44, {v(T)}
    v_add_u32 {v(vWA + 1)}, s45, {v(T)}
    v_add_u32 {v(vWA + 2)}, s46, {v(T)}
    """)
    vm = VM()

    def w_dma(base, off):
        out = []
        for p in range(3):
            out.append([f's_add_u32 m0, {base}, {off + p * 1024}', 's_nop 0',
                        f'buffer_load_dwordx4 {v(vWD + p)}, s[12:15], s43 offen lds'])
        out[2] += ['s_add_u32 s43, s43, s52', 's_sub_u32 s52, s48, s52']
        return out

    def h_ld(k, e):
        hs = ('s41', 's42')[e]
        return [f'buffer_load_dwordx4 {v(hreg(k) + 4 * e, 4)}, {v(vHL)}, s[20:23], {hs} offen', f's_add_u32 {hs}, {hs}, 1024']

    def w_rd(k, off):
        return [f'ds_read_b64_tr_b16 {v(wreg(k) + 4 * b + 2 * t, 2)}, {v(vWA + b)} offset:{off + 1536 * t}'
                for b in range(3) for t in range(2)]

    def g_mfmas(k):
        return [mfma16(ACC + 16 * n, wreg(k) + 4 * b, hreg(k) + 4 * e, ACC + 16 * n)
                for n, (b, e) in enumerate(((0, 0), (0, 1), (1, 0), (1, 1), (2, 0)))]

    def kv_dma(c):
        st = c % NST
        lab = a.label('kv3')
        a(f's_cmp_ge_u32 s26, 2\ns_cbranch_scc1 {lab}')
        for e in (3, 0, 1, 2):
            a(f"""
            s_add_u32 m0, s36, {KVR + st * CH_BYTES + e * 1024}
            s_mov_b32 s38, {KV_OFF + c * CH_BYTES + e * 1024}
            buffer_load_dwordx4 {v(vKO)}, s[20:23], s38 offen lds
            """)
            if e == 3:
                a(f'{lab}:')
        vm.add(f'kv{c}', 1, optional=True)
        vm.add(f'kv{c}', 3)

    for i in range(80):
        a(f'v_mov_b32 {v(ACC + i)}, 0')
    srd(a, 4, WDP, 2211840)
    a(f'''
    s_lshr_b32 s44, s2, 6
    s_mul_i32 s44, s44, {432 * 1280}
    s_bfe_u32 s45, s2, 0x30003
    s_lshl_b32 s45, s45, 2
    s_add_u32 s45, s45, s26
    s_mul_i32 s45, s45, {15 * 128}
    s_add_u32 s32, s44, s45
    s_mov_b32 s31, {48 * 1280}
    ''')

    a(f'''
    s_lshr_b32 s45, s30, 2
    s_lshl_b32 s46, s29, 1
    s_add_u32 s45, s45, s46
    s_mul_i32 s45, s45, 108
    s_and_b32 s46, s30, 3
    s_mul_i32 s46, s46, 27
    s_add_u32 s45, s45, s46
    s_lshl_b32 s45, s45, 10
    s_mul_i32 s46, s26, {6 * 128}
    s_add_u32 s45, s45, s46
    s_add_u32 s49, s45, 3072
    ''')

    def paced_h():
        if not PCH:
            return
        a(f'''
        s_mov_b64 exec, 0x3f
        buffer_load_dword v165, {v(vPF)}, s[20:23], s49 offen
        s_mov_b64 exec, -1
        s_add_u32 s49, s49, 3072
        ''')

    def paced():
        if not PCW:
            return
        a(f'''
        s_mov_b64 exec, 0x7fff
        buffer_load_dword v165, {v(vPF)}, s[4:7], s32 offen
        s_mov_b64 exec, -1
        s_add_u32 s32, s32, s31
        ''')
        vm.add('pf', 1)

    def cd_wait():
        L1, L2 = a.label('cdw'), a.label('cdd')
        a(f'''
        v_and_b32 {v(T + 4)}, 7, {v(vL)}
        v_lshlrev_b32 {v(T + 4)}, 2, {v(T + 4)}
        v_add_u32 {v(T + 4)}, {CD_A}, {v(T + 4)}
        s_mov_b32 s93, {POLL_MAX * 8}
        {L1}:
        ds_read_b32 {v(T + 5)}, {v(T + 4)}
        s_waitcnt lgkmcnt(0)
        v_cmp_eq_u32 vcc, s98, {v(T + 5)}
        s_nop 1
        s_cmp_eq_u64 vcc, -1
        s_cbranch_scc1 {L2}
        s_sub_u32 s93, s93, 1
        s_cbranch_scc0 {L1}
        {L2}:
        ''')

    a(f's_lshl_b32 s53, s29, 13\ns_add_u32 s53, s53, {F_QH}')

    def kv_poll(first):
        a(f's_mov_b32 s45, {F_KV}\ns_mov_b32 s44, {F_KV + 8192}')
        if first:
            m = ~((1 << (4 * KVF)) - 1) & 0xffffffffffffffff
            a(f's_mov_b32 s50, {m & 0xffffffff}\ns_mov_b32 s51, {m >> 32}\ns_sleep {KVSL}\ns_andn2_b64 exec, exec, s[50:51]')
            polln(a, T + 4, vPF, [('s45', 's[50:51]'), ('s44', 's[50:51]')], 2)
            a('s_mov_b64 exec, -1')
            cd_wait()
        else:
            polln(a, T + 4, vPF, [('s45', None), ('s44', None)], 4)
    one_poller(a, T, 0, lambda: kv_poll(True), who=2)
    stamp(a, 15)
    kv_dma(0)
    kv_dma(1)
    kv_dma(2)

    def prefetch(kind, b=0):
        n = {'wd': 60, 'wo': 64, 'h': 54}[kind]
        lab = a.label('nopf')
        if kind != 'h':
            a(f's_cmp_eq_u32 s26, 3\ns_cbranch_scc1 {lab}')
        if kind == 'wd':
            a(f"""
            s_lshr_b32 s44, s2, 6
            s_mul_i32 s44, s44, {432 * 1280}
            s_bfe_u32 s45, s2, 0x30003
            s_mul_i32 s45, s45, {180 * 128}
            s_add_u32 s44, s44, s45
            s_mul_i32 s45, s26, {60 * 128}
            s_add_u32 s44, s44, s45
            s_add_u32 s44, s44, {144 * 1280 * b}
            """)
            r = 's[12:15]'
        elif kind == 'wo':
            a(f"""
            s_lshr_b32 s44, s2, 3
            s_mul_i32 s44, s44, {200 * 128}
            s_mul_i32 s45, s26, {68 * 128}
            s_add_u32 s44, s44, s45
            """)
            r = 's[16:19]'
        else:
            a(f"""
            s_mul_i32 s44, s29, {216 * 1024}
            s_lshl_b32 s45, s30, 2
            s_add_u32 s45, s45, s26
            s_mul_i32 s45, s45, {54 * 128}
            s_add_u32 s44, s44, s45
            """)
            r = 's[20:23]'
        m = (1 << n) - 1
        a(f"""
        s_mov_b32 exec_hi, {m >> 32}
        buffer_load_dword v165, {v(vPF)}, {r}, s44 offen
        s_mov_b32 exec_hi, -1
        {lab}:
        """)
        vm.add('pf', 1, optional=True)
    a(f's_waitcnt vmcnt({vm.wait("kv0")})')
    a('s_barrier')
    stamp(a, 16)
    lab = a.label('nokv2')
    a(f's_cmp_lg_u32 s26, 2\ns_cbranch_scc1 {lab}')
    kv_poll(False)
    a(f'{lab}:')

    def kvp(e):
        a(f'''
        s_add_u32 s44, s36, s37
        s_add_u32 m0, s44, {KVR + e * 1024}
        s_add_u32 s45, s38, {e * 1024}
        buffer_load_dwordx4 {v(vKO)}, s[20:23], s45 offen lds
        ''')

    def body(last, nw=12, fast=False):
        for z in range(3):
            a(f's_waitcnt vmcnt({((12, 14, 15)[z] if fast else (nw if not last else (12, 10, 8)[z])) - 2 + PCW + PCH}) lgkmcnt(0)')
            ms = g_mfmas(z)
            if z == 2:
                a('s_setprio 3' if BP else '')
                for b in range(3):
                    a(f'v_add_u32 {v(vWA + b)}, s33, {v(vWA + b)}')
                rd = w_rd(0, 0)
            else:
                rd = w_rd(z + 1, 3072 * (z + 1))
            if BP:
                lo = [n + 5 * z < BP for n in range(5)]
                ms = list(ms)
                order = (0, 1, 3, 2, 4)
                for q, n in enumerate(order):
                    if q == 0 or lo[q] != lo[q - 1]:
                        ms[n] = f's_setprio {0 if lo[q] else 3}\n' + ms[n]
            wd_ = w_dma('s40', 3072 * z)
            a(ms[0]); emit(a, rd[0:2]); emit(a, [wd_[0]]); a(SPACE)
            a(ms[1]); emit(a, rd[2:4]); emit(a, [wd_[1]]); a(SPACE)
            a(ms[3]); emit(a, rd[4:6]); emit(a, [wd_[2]]); a(SPACE)
            a(ms[2])
            if not last:
                emit(a, h_ld(z, 1))
            if fast and z < 2:
                kvp(2 * z)
            a(SPACE)
            a(ms[4])
            if not last:
                emit(a, h_ld(z, 0))
            if fast and z == 0:
                kvp(1)
            if fast and z == 1:
                lab = a.label('fk3')
                a(f's_cmp_ge_u32 s26, 2\ns_cbranch_scc1 {lab}')
                kvp(3)
                a(f'''
                {lab}:
                s_add_u32 s38, s38, {CH_BYTES}
                s_add_u32 s37, s37, {CH_BYTES}
                s_cmp_eq_u32 s37, {CH_BYTES * NST}
                s_cselect_b32 s37, 0, s37
                ''')
        a('s_setprio 3' if BP else '')
        a('s_add_u32 s40, s40, s33\ns_sub_u32 s33, 0, s33')

    NSTAT = int(ENV.get('NSTAT', '4'))
    for c in range(NSTAT):
        a.c(f'aux B{c}')
        a(f's_waitcnt vmcnt({vm.wait(f"kv{c + 1}")})')
        bstamp(a, c == 0)
        a('s_barrier')
        bstamp(a)
        if c == 2:
            lab = a.label('noxc')
            a(f'''
            s_cmp_lg_u32 s26, 3
            s_cbranch_scc1 {lab}
            s_getreg_b32 s45, hwreg(HW_REG_XCC_ID, 0, 4)
            s_lshl_b32 s46, s29, 7
            s_add_u32 s46, s46, {F_X}
            v_and_b32 {v(T)}, 7, {v(vL)}
            v_lshlrev_b32 {v(T)}, 3, {v(T)}
            buffer_load_dwordx2 {v(T + 4, 2)}, {v(T)}, s[20:23], s46 offen sc1
            s_mov_b32 s44, s98
            s_waitcnt vmcnt(0)
            v_cmp_eq_u64 vcc, s[44:45], {v(T + 4, 2)}
            v_mov_b32 {v(T)}, {SX_A}
            s_nop 0
            s_cmp_eq_u64 vcc, -1
            s_cselect_b32 s44, s98, 0
            v_mov_b32 {v(T + 1)}, s44
            ds_write_b32 {v(T)}, {v(T + 1)}
            s_waitcnt lgkmcnt(0)
            {lab}:
            ''')
        kv_dma(c + 3)
        if WDC <= c < WDC + 2:
            for k in range(3 * (c - WDC), 3 * (c - WDC) + 3):
                emit(a, w_dma('s39', 3072 * k))
            vm.add('w', 9)
        paced()
    def wo_switch():
        L_nsw = a.label('dnsw')
        a(f"""
        s_cmp_lg_u32 s35, 8
        s_cbranch_scc1 {L_nsw}
        s_mov_b32 s12, s16
        s_mov_b32 s13, s17
        s_mov_b32 s14, 819200
        s_mov_b32 s43, s56
        s_mov_b32 s52, 25600
        s_mov_b32 s48, 51200
        s_mov_b32 s45, 0x15556
        """)
        for p in range(3):
            a(f"""
            v_add_u32 {v(T)}, {64 * p}, {v(vL)}
            v_mul_lo_u32 {v(T + 1)}, {v(T)}, s45
            v_lshrrev_b32 {v(T + 1)}, 23, {v(T + 1)}
            v_mul_u32_u24 {v(T + 1)}, {8 * 1280}, {v(T + 1)}
            v_sub_u32 {v(vWD + p)}, {v(vWD + p)}, {v(T + 1)}
            """)
        a(f"""
    {L_nsw}:
        """)

    def pace_switch():
        lab = a.label('npsw')
        a(f'''
        s_cmp_lg_u32 s35, {10 - NSTAT}
        s_cbranch_scc1 {lab}
        s_mov_b32 s4, s16
        s_mov_b32 s5, s17
        s_mov_b32 s6, 819200
        s_lshr_b32 s44, s2, 3
        s_lshl_b32 s44, s44, 2
        s_add_u32 s44, s44, s26
        s_mul_i32 s32, s44, {50 * 128}
        s_mov_b32 s31, {13 * 128}
        {lab}:
        ''')

    L_top, L_nb, L_sw, L_end2 = a.label('dtop'), a.label('dnb'), a.label('dsw'), a.label('dend')
    L_act, L_bar, L_nokv = a.label('dact'), a.label('dbar'), a.label('dnokv')
    L_s0, L_body, L_last, L_wo, L_next = a.label('ds0'), a.label('dbody'), a.label('dlast'), a.label('dwo'), a.label('dnext')
    L_w0 = a.label('dw0')
    L_f1 = a.label('df1')
    L_f2 = a.label('df2')
    L_fast = a.label('dfast')
    L_w2 = a.label('dw2')
    L_b12 = a.label('db12')
    L_bd = a.label('dbd')
    L_np = a.label('dnp')
    L_p3 = a.label('dp3')
    L_k3 = a.label('dk3')
    L_w1 = a.label('dw1')
    L_n1 = a.label('dn1')
    L_oth, L_start, L_rei, L_nsw = a.label('doth'), a.label('dstart'), a.label('drei'), a.label('dnsw')
    a(f"""
    s_mov_b32 s34, {16 - NSTAT}
    s_mov_b32 s35, 0
    s_mov_b32 s37, {((NSTAT + 3) % NST) * CH_BYTES}
    s_mov_b32 s38, {KV_OFF + (NSTAT + 3) * CH_BYTES}
    s_mov_b32 s33, 9216
    s_mov_b32 s93, {POLL_MAX}
    v_mov_b32 {v(T + 3)}, {RDY_A + 4}
    {L_top}:
    s_sub_u32 s44, s35, 2
    s_cmp_lt_u32 s44, {7 if FAST else 0}
    s_cselect_b32 s45, s34, 0
    s_cmp_gt_u32 s45, 3
    s_cbranch_scc1 {L_fast}
    s_cmp_lt_u32 s44, 8
    s_cbranch_scc1 {L_act}
    s_cmp_eq_u32 s35, 11
    s_cbranch_scc1 {L_w2}
    s_cmp_gt_u32 s35, 1
    s_cbranch_scc1 {L_w0}
    s_cmp_le_u32 s34, 3
    s_cbranch_scc1 {L_w0}
    s_cmp_eq_u32 s35, 1
    s_cbranch_scc1 {L_w1}
    s_waitcnt vmcnt(3)
    s_branch {L_bar}
    {L_w1}:
    s_waitcnt vmcnt({6 + HPF * PCH})
    s_branch {L_f1 if FAST else L_bar}
    {L_w2}:
    s_waitcnt vmcnt(12)
    s_mov_b32 s35, 12
    s_branch {L_bar}
    {L_w0}:
    s_waitcnt vmcnt(0)
    s_branch {L_bar}
    {L_act}:
    s_waitcnt vmcnt({15 + PCW + PCH})
    {L_bar}:
    s_cmp_eq_u32 s34, 0
    s_cbranch_scc1 {L_nb}
    """)
    bstamp(a)
    a('s_barrier')
    bstamp(a)
    a(f"""
    s_cmp_lg_u32 s35, 0
    s_cbranch_scc1 {L_np}
    s_cmp_lg_u32 s26, 3
    s_cbranch_scc1 {L_np}
    buffer_load_dwordx2 {v(T + 4, 2)}, {v(vPF)}, s[20:23], s53 offen sc1
    {L_np}:
    s_cmp_le_u32 s34, 3
    s_cbranch_scc1 {L_nokv}
    s_add_u32 s44, s36, s37
    s_cmp_ge_u32 s26, 2
    s_cbranch_scc1 {L_k3}
    """)
    for e in (3, 0, 1, 2):
        a(f"""
        s_add_u32 m0, s44, {KVR + e * 1024}
        s_add_u32 s45, s38, {e * 1024}
        buffer_load_dwordx4 {v(vKO)}, s[20:23], s45 offen lds
        """)
        if e == 3:
            a(f'{L_k3}:')
    a(f"""
    s_add_u32 s38, s38, {CH_BYTES}
    s_add_u32 s37, s37, {CH_BYTES}
    s_cmp_eq_u32 s37, {CH_BYTES * NST}
    s_cselect_b32 s37, 0, s37
    {L_nokv}:
    s_sub_u32 s34, s34, 1
    s_branch {L_sw}
    {L_nb}:
    s_cmp_ge_u32 s35, 11
    s_cbranch_scc1 {L_end2}
    {L_sw}:
    s_cmp_eq_u32 s35, 0
    s_cbranch_scc1 {L_s0}
    s_cmp_lt_u32 s35, 9
    s_cbranch_scc1 {L_body}
    s_cmp_eq_u32 s35, 9
    s_cbranch_scc1 {L_last}
    s_cmp_eq_u32 s35, 10
    s_cbranch_scc1 {L_wo}
    s_branch {L_top}
    {L_s0}:
    s_sub_u32 s93, s93, 1
    s_cbranch_scc1 {L_start}
    s_cmp_lg_u32 s26, 3
    s_cbranch_scc1 {L_oth}
    s_cmp_ge_u32 s34, 3
    s_cbranch_scc1 {L_p3}
    buffer_load_dwordx2 {v(T + 4, 2)}, {v(vPF)}, s[20:23], s53 offen sc1
    s_waitcnt vmcnt(0)
    {L_p3}:
    s_waitcnt vmcnt(3)
    v_cmp_eq_u64 vcc, s[98:99], {v(T + 4, 2)}
    s_lshl_b32 s45, s34, 1
    s_nop 0
    s_cmp_eq_u64 vcc, -1
    s_cselect_b32 s44, s98, s45
    v_mov_b32 {v(T + 2)}, s44
    ds_write_b32 {v(T + 3)}, {v(T + 2)}
    s_cbranch_scc1 {L_start}
    s_branch {L_top}
    {L_oth}:
    s_mov_b32 s45, 40
    {L_rei}:
    s_sleep 1
    ds_read_b32 {v(T + 2)}, {v(T + 3)}
    s_waitcnt lgkmcnt(0)
    v_readfirstlane_b32 s44, {v(T + 2)}
    s_cmp_eq_u32 s44, s98
    s_cbranch_scc1 {L_start}
    s_lshl_b32 s46, s34, 1
    s_cmp_eq_u32 s44, s46
    s_cbranch_scc1 {L_top}
    s_sub_u32 s45, s45, 1
    s_cbranch_scc0 {L_rei}
    s_branch {L_top}
    {L_start}:
    """)
    stamp(a, 23)
    for k in range(3):
        for e in range(2):
            emit(a, h_ld(k, e))
    for _ in range(HPF):
        paced_h()
    emit(a, w_rd(0, 0))
    a(f"""
    {L_next}:
    s_add_u32 s35, s35, 1
    s_branch {L_top}
    {L_body}:
    s_cmp_lg_u32 s35, 1
    s_cbranch_scc1 {L_n1}
    s_waitcnt vmcnt(0)
    {L_n1}:
    """)
    wo_switch()
    a(f"""
    s_cmp_lt_u32 s34, 3
    s_cbranch_scc1 {L_b12}
    """)
    body(False, 15)
    a(f's_branch {L_bd}\n{L_b12}:')
    body(False, 12)
    a(f'{L_bd}:')
    pace_switch()
    paced_h()
    paced()
    a(f's_branch {L_next}\n{L_last}:')
    body(True)
    a(f's_branch {L_next}\n{L_f1}:')
    bstamp(a)
    a('s_barrier')
    bstamp(a)
    a(f's_waitcnt vmcnt(0)\ns_branch {L_f2}\n{L_fast}:')
    wo_switch()
    bstamp(a)
    a('s_barrier')
    bstamp(a)
    a(f'{L_f2}:')
    body(False, fast=True)
    pace_switch()
    paced_h()
    paced()
    a(f'''
    s_sub_u32 s34, s34, 1
    s_add_u32 s35, s35, 1
    s_cmp_lt_u32 s35, 9
    s_cselect_b32 s45, s34, 0
    s_cmp_gt_u32 s45, 3
    s_cbranch_scc1 {L_fast}
    s_branch {L_top}
    {L_wo}:
    ''')
    stamp(a, 17)
    emit(a, w_rd(1, 3072) + w_rd(2, 6144))
    a('s_mov_b32 s45, 0x15556\ns_waitcnt lgkmcnt(0)')
    emit(a, w_dma('s39', 3072 * 3))
    emit(a, w_dma('s39', 3072 * 4))
    for p in range(3):
        a(f"""
        v_add_u32 {v(T)}, {64 * p}, {v(vL)}
        v_mul_lo_u32 {v(T + 1)}, {v(T)}, s45
        v_bfe_u32 {v(T)}, {v(T + 1)}, 22, 1
        v_lshrrev_b32 {v(T + 1)}, 23, {v(T + 1)}
        v_mul_u32_u24 {v(T)}, {36 * 1280}, {v(T)}
        v_mul_u32_u24 {v(T + 1)}, {12 * 1280}, {v(T + 1)}
        v_add3_u32 {v(vWD + p)}, {v(vWD + p)}, {v(T + 1)}, {v(T)}
        """)
    a(f's_add_u32 s43, s56, {16 * 1280}\ns_mov_b32 s52, {80 * 1280}\ns_mov_b32 s48, {160 * 1280}')
    emit(a, w_dma('s39', 3072 * 5))
    emit(a, w_dma('s39', 3072 * 6))
    a(f's_cmp_lg_u32 s34, 0\ns_cbranch_scc1 {L_next}\n{L_end2}:')
    a(f"""
    v_subrev_u32 {v(vWA)}, 9216, {v(vWA)}
    v_subrev_u32 {v(vWA + 1)}, 9216, {v(vWA + 1)}
    v_subrev_u32 {v(vWA + 2)}, 9216, {v(vWA + 2)}
    s_mul_i32 s44, s26, 14336
    s_add_u32 s44, s44, {OL_A}
    v_add_u32 {v(vKO)}, s44, {v(vHL)}
    v_and_b32 {v(T)}, 7, {v(vR)}
    v_xor_b32 {v(T)}, {v(T)}, {v(vH)}
    v_lshlrev_b32 {v(T + 1)}, 7, {v(vR)}
    v_add_u32 {v(T + 1)}, s39, {v(T + 1)}
    """)
    for jp in range(4):
        a(f"""
        v_xor_b32 {v(T + 2)}, {2 * jp}, {v(T)}
        v_lshl_add_u32 {v(T + 4 + jp)}, {v(T + 2)}, 4, {v(T + 1)}
        """)
    stamp(a, 18)
    a('s_barrier')
    Lp, Lq = a.label('op'), a.label('opd')
    a(f's_mov_b32 s93, {OPOLL_MAX}\n{Lp}:')
    for k in range(27, 30):
        for e in range(2):
            a(f'buffer_load_dwordx4 {v(hreg(k) + 4 * e, 4)}, {v(vHL)}, s[20:23], s{54 + e} offen offset:{1024 * (k - 27)} sc1')
    a('s_waitcnt vmcnt(0)')
    regs = [hreg(k) + i for k in range(27, 30) for i in range(8)]
    a(f'v_max3_u32 {v(T)}, {v(regs[0])}, {v(regs[1])}, {v(regs[2])}')
    for i in range(3, 23, 2):
        a(f'v_max3_u32 {v(T)}, {v(T)}, {v(regs[i])}, {v(regs[i + 1])}')
    a(f"""
    v_max_u32 {v(T)}, {v(T)}, {v(regs[23])}
    v_cmp_eq_u32 vcc, -1, {v(T)}
    s_nop 1
    s_cmp_eq_u64 vcc, 0
    s_cbranch_scc1 {Lq}
    s_sub_u32 s93, s93, 1
    s_cbranch_scc1 {Lq}
    s_sleep {OSLEEP}
    s_branch {Lp}
    {Lq}:
    """)
    stamp(a, 19)

    def o_rd(k):
        return [f'ds_read_b128 {v(hreg(k) + 4 * e, 4)}, {v(vKO)} offset:{(k - 30) * 2048 + 1024 * e}' for e in range(2)]

    for k in range(27, 30):
        emit(a, g_mfmas(k))
        emit(a, w_rd(k + 3, 3072 * (k - 27)))
    if FFL:
        L1, L2 = a.label('fw'), a.label('fd')
        a(f'''
        s_lshl_b32 s44, s26, 3
        s_add_u32 s44, s44, {OW_A}
        v_mov_b32 {v(T)}, s44
        s_mov_b32 s93, {POLL_MAX * 8}
        {L1}:
        ds_read_b64 {v(T + 2, 2)}, {v(T)}
        s_waitcnt lgkmcnt(0)
        v_readfirstlane_b32 s44, {v(T + 2)}
        v_readfirstlane_b32 s45, {v(T + 3)}
        s_xor_b32 s44, s44, s98
        s_xor_b32 s45, s45, s98
        s_or_b32 s44, s44, s45
        s_cbranch_scc0 {L2}
        s_sub_u32 s93, s93, 1
        s_cbranch_scc0 {L1}
        {L2}:
        ''')
    else:
        a('s_waitcnt lgkmcnt(0)')
        a('s_barrier')
    stamp(a, 30)
    for k in range(30, 33):
        emit(a, o_rd(k))
    XO = vWD
    assert XO % 2 == 0 and XO + 8 <= ACC
    for k in range(30, 34):
        a(f's_waitcnt lgkmcnt({ {30: 4, 31: 10, 32: 8, 33: 8}[k] })')
        emit(a, g_mfmas(k))
        emit(a, w_rd(k + 3, 3072 * (k + 3 - 30)) + o_rd(k + 3))
    g2_out(a, XO, vL, 's24', 0)
    a('s_waitcnt lgkmcnt(0)')
    wr = lambda n: [f'ds_write_b128 {v(T + 4 + jp)}, {v(ACC + 16 * n + 4 * jp, 4)} offset:{4096 * n}' for jp in range(4)]
    ms = [g_mfmas(k) for k in range(34, 37)]
    for n in range(5):
        for z in range(3):
            a(ms[z][n])
        if n >= 2:
            a('s_nop 5')
            emit(a, wr(n - 2))
    stamp(a, 20)
    a('s_nop 3')
    emit(a, wr(3))
    a('s_nop 3')
    emit(a, wr(4))
    a('s_waitcnt vmcnt(0) lgkmcnt(0)')
    a('s_barrier')
    stamp(a, 21)
    for i in range(8):
        a(f'v_mov_b32 {v(ACC + i)}, {v(XO + i)}')
    g2_out(a, ACC, vL, 's24', 1)


DESC = """; One persistent launch, 256 workgroups (one per CU), 12 waves each: waves 0-7 compute, waves 8-11 load / second GEMM.
;           split over the WGs and handed over through the workspace; K and V by the load waves; GEGLU epilogue.
;           to a two-pass true-max path.  The load waves stream K/V and run h @ wd meanwhile.
;  tail:    O @ wo, cross-wave reduction, + x, bf16 store.
"""


def build(path):
    hdr = open('parallel_sum__grouped_kv_mqa__geglu_ffn__prompt.s.ref').read().split('; Override launch')[0]
    out = hdr + f'; @launch grid=(256,1,1) block=(768,1,1) lds={LDS_TOTAL}\n' + DESC
    out += '.amdgcn_target "amdgcn-amd-amdhsa--gfx950"\n'
    out += gen()
    out += kernel_desc(KNAME, 168)
    open(path, 'w').write(out)


if __name__ == '__main__':
    import sys
    if len(sys.argv) > 2 and sys.argv[2] == 'stamp':
        asmlib.STAMPS = True
    build(sys.argv[1])
```

```python
from asmlib import *
import asmlib
import math
import os

KNAME = 'parallel_sum__grouped_kv_mqa__geglu_ffn__prompt_kernel'

H_OFF = 0
QF_OFF = 0x700000
KV_OFF = 0xA00000
OF_OFF = 0xB00000
FL_OFF = 0xE00000
F_ST = 0x1200000
F_CS = 0x1220000
F_KV = 0x1240000
F_KC = 0x1248000
F_W2 = 0x1250000
F_X = 0x1258000
F_QH = 0xE80000
ROWW = 0xE10000
CSW = 0xE20000
CSKVW = 0xE60000
W2F = 0xF00000
WS_USED = 0x1260000

LDS_X = 0
LDS_W = 49152
LDS_KV = 147456
CS_A = 16384
PART_A = 32768
VT_A = 32768
ROWC_A = 156672
CSKV_A = 158720
NONCE_A = 160768
RDY_A = 160800
SX_A = 160928
KL_A = 160944
OW_A = 160896
CD_A = 160832
PD_A = 160864
LDS_TOTAL = 163840
CH_BYTES = 14336
NST = 4
KVR = 49152
Q_A = KVR + 3 * CH_BYTES
G2R = KVR + CH_BYTES * NST
G2D = 3
TW_A = G2R
OL_A = KVR
WO_HI = 106496
WOA = 0
RED_A = 0

C0 = -2.0 * math.sqrt(2.0 / math.pi) * math.log2(math.e)
C1 = C0 * 0.044715
QSC = math.log2(math.e) / math.sqrt(20.0)
M_OFFSET = 90.0
POLL_MAX = 400000
NONCE_X = 0x5a5a5a5a

HM = 's[62:63]'
PFWAIT = False
ENV = os.environ
NODOWN = ENV.get('NODOWN')
PRIO2 = int(ENV.get('PRIO2', '3'))
PRIO1 = int(ENV.get('PRIO1', '3'))
SPACE = ENV.get('SPACE', '')
NOPF = not ENV.get('PF')
INV = int(ENV.get('INV', '0'))
NOG2 = ENV.get('NOG2')
NOA0 = int(ENV.get('NOA0', '1'))
KVP = int(ENV.get('KVP', '1'))
KSL2 = int(ENV.get('KSL2', '8'))
AST = int(ENV.get('AST', '0'))
ASS = int(ENV.get('ASS', '1'))
ASP = int(ENV.get('ASP', '2'))
APZ = int(ENV.get('APZ', '0'))
FAST = int(ENV.get('FAST', '1'))
BP = int(ENV.get('BP', '15'))
ROT = int(ENV.get('ROT', '0'))
FFL = int(ENV.get('FFL', '0'))
PCW = int(ENV.get('PCW', '1'))
PCH = int(ENV.get('PCH', '0'))
HST = int(ENV.get('HST', '-1'))
ODBL = int(ENV.get('ODBL', '1'))
JX = int(ENV.get('JX', '0'))
QSLEEP = int(ENV.get('QSLEEP', '4'))
KVF = int(ENV.get('KVF', '3'))
OUTSC = {'': '', '1': ' sc1', '2': ' nt', '3': ' sc0 sc1', '4': ' sc1 nt'}[ENV.get('OUTSC', '')]
HPF = int(ENV.get('HPF', '2'))
PERM = int(ENV.get('PERM', '1'))
P1PF = int(ENV.get('P1PF', '0'))
PFC = tuple(int(x) for x in ENV.get('PFC', '2,3,4').split(','))
WDC = int(ENV.get('WDC', '2'))
WOC = int(ENV.get('WOC', '4'))
TWC = int(ENV.get('TWC', '1'))
DPOLL2 = 0
OSLEEP = int(ENV.get('OSLEEP', '3'))
LATE1 = int(ENV.get('LATE1', '1'))
OPOLL_MAX = 200000
LINPF = int(ENV.get('LINPF', '0'))
NOSL = ENV.get('NOSL')
PF0 = int(ENV.get('PF0', '0'))
JIT = int(ENV.get('JIT', '0'))
JITD = int(ENV.get('JITD', '4'))
SLC = int(ENV.get('SLC', '-1'))
SLG = int(ENV.get('SLG', '2'))
SPN = int(ENV.get('SPN', '2'))
PZ0 = int(ENV.get('PZ0', '0'))
P3C = int(ENV.get('P3C', '7'))
EARLY2 = int(ENV.get('EARLY2', '0'))
CWARM = int(ENV.get('CWARM', '1'))
KVSL = int(ENV.get('KVSL', '16'))
HEARLY = ENV.get('HEARLY')
PSLEEP = int(ENV.get('PSLEEP', '2'))
NOPF2 = not ENV.get('PF2')
CV = int(ENV.get('CV', '0'))
NODMA = ENV.get('NODMA')
IST = ENV.get('IST')
LD = ' sc1' if ENV.get('SC1LD') else ''
FEWST = ENV.get('FEWST')
IST_LIST = tuple(int(x) for x in os.environ.get('ISTL', '1,2,6,7').split(','))
HFLAG_T = int(os.environ.get('HFT', '6'))
G2_START = int(os.environ.get('G2S', '6'))
G2_END = int(os.environ.get('G2E', '15'))


class VM:
    def __init__(self):
        self.ops = []

    def add(self, tag, n=1, optional=False):
        for _ in range(n):
            self.ops.append((tag, optional))

    def wait(self, tag):
        idx = max(i for i, (t, o) in enumerate(self.ops) if t == tag)
        n = sum(1 for t, o in self.ops[idx + 1:] if not o)
        assert n <= 63, n
        return n

    def drain(self):
        self.ops = []


def emit(a, bundles):
    for b in bundles:
        a(b if isinstance(b, str) else '\n'.join(b))


def flag_store(a, soff_reg, vt):
    a(f'''
    v_mov_b32 {v(vt)}, s98
    v_mov_b32 {v(vt + 1)}, s99
    s_mov_b64 exec, 1
    buffer_store_dwordx2 {v(vt, 2)}, off, s[20:23], {soff_reg} sc1
    s_mov_b64 exec, -1
    ''')


def poll(a, vt, voff, soff_reg, wide=False, ignore=None, inv=True, sleep=None):
    L = a.label('poll')
    Ld = a.label('polld')
    a(f's_mov_b32 s93, {POLL_MAX}')
    a(f'{L}:')
    if wide:
        a(f'''
        buffer_load_dwordx4 {v(vt, 4)}, {v(voff)}, s[20:23], {soff_reg} offen sc1
        s_waitcnt vmcnt(0)
        v_cmp_eq_u64 vcc, s[98:99], {v(vt, 2)}
        v_cmp_eq_u64 s[46:47], s[98:99], {v(vt + 2, 2)}
        s_nop 1
        s_and_b64 vcc, vcc, s[46:47]
        ''')
    else:
        a(f'''
        buffer_load_dwordx2 {v(vt, 2)}, {v(voff)}, s[20:23], {soff_reg} offen sc1
        s_waitcnt vmcnt(0)
        v_cmp_eq_u64 vcc, s[98:99], {v(vt, 2)}
        s_nop 1
        ''')
    if ignore:
        a(f's_or_b64 vcc, vcc, {ignore}')
    a(f'''
    s_cmp_eq_u64 vcc, -1
    s_cbranch_scc1 {Ld}
    s_sub_u32 s93, s93, 1
    s_cbranch_scc1 {Ld}
    s_sleep {sleep or PSLEEP}
    s_branch {L}
    {Ld}:
    ''')
    if inv and INV:
        a('buffer_inv sc1\ns_waitcnt vmcnt(0)')


def polln(a, vt, voff, rows, sleep):
    L = a.label('poll')
    Ld = a.label('polld')
    a(f's_mov_b32 s93, {POLL_MAX}\n{L}:')
    for q, (so, ig) in enumerate(rows):
        a(f'buffer_load_dwordx2 {v(vt + 2 * q, 2)}, {v(voff[q] if isinstance(voff, list) else voff)}, s[20:23], {so} offen sc1')
    a('s_waitcnt vmcnt(0)')
    dst = ['vcc', 's[46:47]', 's[48:49]']
    for q in range(len(rows)):
        a(f'v_cmp_eq_u64 {dst[q]}, s[98:99], {v(vt + 2 * q, 2)}')
    a('s_nop 1')
    for q, (so, ig) in enumerate(rows):
        if ig:
            a(f's_or_b64 {dst[q]}, {dst[q]}, {ig}')
        if q:
            a(f's_and_b64 vcc, vcc, {dst[q]}')
    a(f'''
    s_cmp_eq_u64 vcc, -1
    s_cbranch_scc1 {Ld}
    s_sub_u32 s93, s93, 1
    s_cbranch_scc1 {Ld}
    s_sleep {sleep}
    s_branch {L}
    {Ld}:
    ''')


def one_poller(a, vt, word, body, who=3):
    Lw, Ld, Ls = a.label('opw'), a.label('opd'), a.label('ops')
    a(f'''
    v_mov_b32 {v(vt + 3)}, {RDY_A + 4 * word}
    s_cmp_lg_u32 s26, {who}
    s_cbranch_scc1 {Lw}
    ''')
    body()
    a(f'''
    v_mov_b32 {v(vt + 2)}, s98
    ds_write_b32 {v(vt + 3)}, {v(vt + 2)}
    s_branch {Ld}
    {Lw}:
    s_mov_b32 s93, {POLL_MAX * 8}
    {Ls}:
    ds_read_b32 {v(vt + 2)}, {v(vt + 3)}
    s_waitcnt lgkmcnt(0)
    v_readfirstlane_b32 s46, {v(vt + 2)}
    s_cmp_eq_u32 s46, s98
    s_cbranch_scc1 {Ld}
    s_sub_u32 s93, s93, 1
    s_cbranch_scc1 {Ld}
    s_sleep 1
    s_branch {Ls}
    {Ld}:
    ''')


def bstamp(a, first=False):
    if not (asmlib.STAMPS and ENV.get('BST')):
        return
    if first:
        a('s_add_u32 s101, s92, 0xC0000')
    a('''
    s_memrealtime s[94:95]
    s_memtime s[96:97]
    s_waitcnt lgkmcnt(0)
    v_mov_b32 v166, s94
    v_mov_b32 v167, s96
    buffer_store_dwordx2 v[166:167], off, s[88:91], s101
    s_add_u32 s101, s101, 8
    ''')


def srd(a, base, ptr, size):
    a(f'''
    s_mov_b32 s{base}, s{ptr}
    s_mov_b32 s{base + 1}, s{ptr + 1}
    s_mov_b32 s{base + 2}, {size}
    s_mov_b32 s{base + 3}, 0x20000
    ''')


def w_source(a):
    a('''
    s_and_b32 s44, s26, 1
    s_and_b32 s51, s44, s48
    s_lshr_b32 s45, s26, 1
    s_lshl_b32 s46, s44, 6
    s_add_u32 s46, s46, s49
    s_cmp_eq_u32 s48, 1
    s_cselect_b32 s46, s49, s46
    s_lshl_b32 s47, s45, 6
    s_add_u32 s47, s47, s50
    s_cmp_eq_u32 s51, 1
    s_cselect_b32 s52, s47, s46
    s_lshl_b32 s52, s52, 1
    s_cmp_eq_u32 s45, 1
    s_cselect_b32 s12, s82, s80
    s_cselect_b32 s13, s83, s81
    s_mov_b32 s14, 2211840
    s_mov_b32 s53, 3456
    s_cmp_eq_u32 s51, 1
    s_cselect_b32 s12, s70, s12
    s_cselect_b32 s13, s71, s13
    s_cselect_b32 s14, 819200, s14
    s_cselect_b32 s53, 1280, s53
    s_mov_b32 s15, 0x20000
    ''')


def tile_offs(t):
    p, o = t >> 1, t & 1
    b = p * 7168
    return b + o * 1024, b + 2048, b + 3072 + o * 2048, b + 4096 + o * 2048


PERMC = f'''
    s_bfe_u32 s44, s2, 0x30003
    s_lshr_b32 s45, s2, 6
    s_add_u32 s44, s44, s45
    s_and_b32 s100, s44, {PERM}
    s_xor_b32 s45, s100, 1
'''
ROTC = '''
    s_add_u32 s100, s27, s28
    s_mul_i32 s44, s100, 26
    s_lshr_b32 s44, s44, 8
    s_mul_i32 s44, s44, 10
    s_sub_u32 s100, s100, s44
    s_add_u32 s45, s100, 1
    s_cmp_eq_u32 s45, 10
    s_cselect_b32 s45, 0, s45
'''


def stat_code(vL, vH, vR, CR, XR, A8, U, W4, SCS, SST):
    u0, u1, u2, u3, u4, u5 = range(U, U + 6)

    def lines(txt):
        return [x.strip() for x in txt.split(chr(10)) if x.strip()]

    def load_cs():
        f = lines(f'''
        s_mul_i32 s44, s27, 40
        v_lshrrev_b32 {v(u4)}, 3, {v(vL)}
        v_add_u32 {v(u4)}, s44, {v(u4)}
        v_mul_lo_u32 {v(u5)}, {v(u4)}, s53
        v_and_b32 {v(u4)}, 7, {v(vL)}
        v_lshl_add_u32 {v(u5)}, {v(u4)}, 4, {v(u5)}
        s_mov_b32 s47, s52
        ''')
        for t in range(5):
            f.append([f'buffer_load_dwordx4 {v(CR + 4 * t, 4)}, {v(u5)}, s[12:15], s47 offen', 's_add_u32 s47, s47, s31'])
        return f

    def load_rows():
        f = lines(f'''
        s_lshl_b32 s44, s27, 7
        s_lshl_b32 s45, s28, 3
        s_add_u32 s44, s44, s45
        s_lshl_b32 s45, s26, 1
        s_add_u32 s55, s44, s45
        v_add_u32 {v(u0)}, s55, {v(vH)}
        v_mul_u32_u24 {v(u0)}, 1280, {v(u0)}
        v_lshl_add_u32 {v(u0)}, {v(vR)}, 3, {v(u0)}
        ''')
        for t in range(5):
            f.append(f'buffer_load_dwordx2 {v(XR + 2 * t, 2)}, {v(u0)}, s[8:11], 0 offen offset:{256 * t}')
        return f

    def fill_cs():
        f = []
        for q in range(4):
            f += [f'v_lshlrev_b32 {v(A8 + 2 * q)}, 16, {v(CR + q)}', f'v_and_b32 {v(A8 + 2 * q + 1)}, 0xffff0000, {v(CR + q)}']
        for t in range(1, 5):
            for q in range(4):
                ta, tb = (u2, u3) if q & 1 else (u4, u5)
                f += lines(f'''
                v_lshlrev_b32 {v(ta)}, 16, {v(CR + 4 * t + q)}
                v_and_b32 {v(tb)}, 0xffff0000, {v(CR + 4 * t + q)}
                v_add_f32 {v(A8 + 2 * q)}, {v(A8 + 2 * q)}, {v(ta)}
                v_add_f32 {v(A8 + 2 * q + 1)}, {v(A8 + 2 * q + 1)}, {v(tb)}
                ''')
        f.append('s_nop 1')
        f += [f'v_permlane32_swap_b32 {v(A8 + q)}, {v(A8 + 4 + q)}' for q in range(4)]
        f.append('s_nop 1')
        f += [f'v_add_f32 {v(A8 + q)}, {v(A8 + q)}, {v(A8 + 4 + q)}' for q in range(4)]
        f.append('s_nop 1')
        f += [f'v_permlane16_swap_b32 {v(A8 + q)}, {v(A8 + 2 + q)}' for q in range(2)]
        f.append('s_nop 1')
        f += [f'v_add_f32 {v(A8 + q)}, {v(A8 + q)}, {v(A8 + 2 + q)}' for q in range(2)]
        f += lines(f'''
        s_nop 1
        v_add_f32_dpp {v(A8)}, {v(A8)}, {v(A8)} row_ror:8 row_mask:0xf bank_mask:0xf
        v_add_f32_dpp {v(A8 + 1)}, {v(A8 + 1)}, {v(A8 + 1)} row_ror:8 row_mask:0xf bank_mask:0xf
        s_mov_b32 vcc_lo, 0xff00ff00
        s_mov_b32 vcc_hi, 0xff00ff00
        v_cndmask_b32 {v(u0)}, {v(A8)}, {v(A8 + 1)}, vcc
        v_cvt_pk_bf16_f32 {v(u1)}, {v(u0)}, {v(u0)}
        v_and_b32 {v(u1)}, 0xffff0000, {v(u1)}
        v_sub_f32 {v(u1)}, {v(u0)}, {v(u1)}
        v_cvt_pk_bf16_f32 {v(u0)}, {v(u0)}, {v(u1)}
        v_and_b32 {v(u1)}, 7, {v(vL)}
        v_lshl_add_u32 {v(u1)}, {v(u1)}, 1, {v(vH)}
        v_bfe_u32 {v(u2)}, {v(vL)}, 4, 1
        v_lshl_add_u32 {v(u1)}, {v(u1)}, 1, {v(u2)}
        v_bfe_u32 {v(u2)}, {v(vL)}, 3, 1
        v_lshl_add_u32 {v(u1)}, {v(u1)}, 1, {v(u2)}
        v_and_b32 {v(u2)}, 15, {v(u1)}
        v_lshrrev_b32 {v(u3)}, 4, {v(u1)}
        s_and_b32 s44, s26, 1
        s_andn2_b32 s44, s44, s48
        s_lshl_b32 s44, s44, 7
        s_lshr_b32 s45, s26, 1
        s_lshl_b32 s45, s45, 4
        s_add_u32 s44, s44, s45
        v_lshl_add_u32 {v(u4)}, {v(u3)}, 5, s44
        s_add_u32 s44, s26, 3
        s_lshl_b32 s44, s44, 5
        v_lshl_add_u32 {v(u5)}, {v(u3)}, 4, s44
        s_cmp_eq_u32 s51, 1
        s_cselect_b64 vcc, -1, 0
        v_cndmask_b32 {v(u4)}, {v(u4)}, {v(u5)}, vcc
        v_add_lshl_u32 {v(u2)}, {v(u2)}, {v(u4)}, 2
        s_lshl_b32 s44, s28, 14
        s_lshl_b32 s45, s27, 10
        s_add_u32 s44, s44, s45
        s_add_u32 s44, s44, {CSW}
        buffer_store_dword {v(u0)}, {v(u2)}, s[20:23], s44 offen sc1
        s_lshl_b32 s46, s27, 2
        s_add_u32 s46, s46, s26
        s_lshl_b32 s46, s46, 7
        s_lshl_b32 s45, s28, 13
        s_add_u32 s46, s46, s45
        s_add_u32 {SCS}, s46, {F_CS}
        ''')
        return f

    def fill_rows():
        f = [f'v_mov_b32 {v(u0)}, 0', f'v_mov_b32 {v(u1)}, 0']
        for t in range(10):
            f += lines(f'''
            v_lshlrev_b32 {v(u2)}, 16, {v(XR + t)}
            v_and_b32 {v(u3)}, 0xffff0000, {v(XR + t)}
            v_add_f32 {v(u0)}, {v(u0)}, {v(u2)}
            v_fmac_f32 {v(u1)}, {v(u2)}, {v(u2)}
            v_add_f32 {v(u0)}, {v(u0)}, {v(u3)}
            v_fmac_f32 {v(u1)}, {v(u3)}, {v(u3)}
            ''')
        for ror in (8, 4, 2, 1):
            f += lines(f'''
            s_nop 1
            v_add_f32_dpp {v(u0)}, {v(u0)}, {v(u0)} row_ror:{ror} row_mask:0xf bank_mask:0xf
            v_add_f32_dpp {v(u1)}, {v(u1)}, {v(u1)} row_ror:{ror} row_mask:0xf bank_mask:0xf
            ''')
        f += lines(f'''
        v_mov_b32 {v(u2)}, {v(u0)}
        v_mov_b32 {v(u3)}, {v(u1)}
        s_nop 1
        v_permlane16_swap_b32 {v(u0)}, {v(u2)}
        v_permlane16_swap_b32 {v(u1)}, {v(u3)}
        s_mov_b32 s44, {f2u(1.0 / 640.0)}
        s_mov_b32 s45, {f2u(1e-5)}
        v_add_f32 {v(u0)}, {v(u0)}, {v(u2)}
        v_add_f32 {v(u1)}, {v(u1)}, {v(u3)}
        v_mul_f32 {v(u0)}, s44, {v(u0)}
        v_mul_f32 {v(u1)}, s44, {v(u1)}
        v_fma_f32 {v(u1)}, -{v(u0)}, {v(u0)}, {v(u1)}
        v_max_f32 {v(u1)}, 0, {v(u1)}
        v_cvt_pk_bf16_f32 {v(W4)}, -{v(u0)}, -{v(u0)}
        v_cvt_pk_bf16_f32 {v(u1)}, {v(u1)}, {v(u1)}
        v_and_b32 {v(u1)}, 0xffff0000, {v(u1)}
        v_add_f32 {v(u1)}, s45, {v(u1)}
        v_cvt_pk_bf16_f32 {v(u1)}, {v(u1)}, {v(u1)}
        v_and_b32 {v(u1)}, 0xffff0000, {v(u1)}
        v_sqrt_f32 {v(u1)}, {v(u1)}
        v_mov_b32 {v(W4 + 3)}, 0
        v_cvt_pk_bf16_f32 {v(u1)}, {v(u1)}, {v(u1)}
        v_and_b32 {v(u1)}, 0xffff0000, {v(u1)}
        v_rcp_f32 {v(W4 + 1)}, {v(u1)}
        v_mul_f32 {v(W4 + 2)}, {v(u1)}, {v(u1)}
        v_lshlrev_b32 {v(u2)}, 4, {v(vH)}
        s_lshl_b32 s44, s55, 4
        s_add_u32 s44, s44, {ROWW}
        ''')
        f.append(['s_mov_b32 exec_lo, 1', 's_mov_b32 exec_hi, 1',
                  f'buffer_store_dwordx4 {v(W4, 4)}, {v(u2)}, s[20:23], s44 offen sc1', 's_mov_b64 exec, -1'])
        f += lines(f'''
        s_lshl_b32 s44, s28, 2
        s_add_u32 s44, s44, s26
        s_lshl_b32 s44, s44, 7
        s_lshl_b32 s45, s27, 13
        s_add_u32 s44, s44, s45
        s_add_u32 {SST}, s44, {F_ST}
        ''')
        return f

    return lines, load_cs, load_rows, fill_cs, fill_rows


def gen():
    a = Asm()
    a(kernel_head(KNAME))
    stamp_early(a)
    vL, vH, vR = 1, 2, 3
    L_end = a.label('end')
    L_aux = a.label('aux')
    a(f'''
    s_cmp_ge_u32 s2, 256
    s_cbranch_scc1 {L_end}
    s_load_dwordx8 s[68:75], s[0:1], 0
    s_load_dwordx4 s[80:83], s[0:1], 48
    s_load_dwordx4 s[76:79], s[0:1], 80
    s_load_dwordx2 s[84:85], s[0:1], 32
    s_load_dwordx4 s[88:91], s[0:1], 64
    v_lshrrev_b32 v4, 6, v0
    v_and_b32 {v(vL)}, 63, v0
    v_readfirstlane_b32 s24, v4
    v_lshrrev_b32 {v(vH)}, 5, {v(vL)}
    v_and_b32 {v(vR)}, 31, {v(vL)}
    ''')
    if CWARM:
        Lw, Lp = a.label('nowarm'), a.label('pc')
        a(f'''
        s_cmp_lg_u32 s24, 11
        s_cbranch_scc1 {Lw}
        s_getpc_b64 s[4:5]
        {Lp}:
        s_bfe_u32 s44, s2, 0x30003
        s_lshl_b32 s44, s44, 13
        v_lshl_add_u32 v4, {v(vL)}, 7, s44
        v_min_u32 v4, {L_end}-{Lp}, v4
        global_load_dword v165, v4, s[4:5]
        {Lw}:
        ''')
    vXD, vWD, vKD = 20, 22, 24
    t0, t1, t2, t3, t4 = 4, 5, 6, 7, 8
    a(f'''
    s_bfe_u32 s27, s2, 0x30003
    s_and_b32 s46, s2, 1
    s_lshl_b32 s46, s46, 3
    s_add_u32 s27, s27, s46
    s_bfe_u32 s46, s2, 0x20001
    s_xor_b32 s46, s46, {JX}
    s_lshl_b32 s46, s46, 2
    s_lshr_b32 s47, s2, 6
    s_add_u32 s28, s46, s47
    s_cmp_ge_u32 s28, 11
    s_cselect_b32 s48, 1, 0
    s_sub_u32 s44, s28, 11
    s_lshl_b32 s45, s44, 6
    s_add_u32 s45, s45, 1408
    s_lshl_b32 s46, s28, 7
    s_lshl_b32 s50, s44, 7
    s_cmp_eq_u32 s48, 1
    s_cselect_b32 s49, s45, s46
    s_and_b32 s25, s24, 1
    s_lshr_b32 s26, s24, 1
    s_sub_u32 s44, s24, 8
    s_cmp_ge_u32 s24, 8
    s_cselect_b32 s26, s44, s26
    s_and_b32 s44, s26, 1
    s_and_b32 s51, s44, s48
    s_lshr_b32 s43, s26, 1
    s_andn2_b32 s46, s44, s48
    s_lshl_b32 s46, s46, 6
    s_add_u32 s46, s46, s49
    s_lshl_b32 s47, s43, 6
    s_add_u32 s47, s47, s50
    s_mov_b32 s53, 3456
    s_cmp_eq_u32 s51, 1
    s_cselect_b32 s52, s47, s46
    s_cselect_b32 s53, 1280, s53
    s_lshl_b32 s52, s52, 1
    s_lshl_b32 s31, s53, 3
    s_lshl_b32 s32, s53, 6
    v_lshrrev_b32 {v(t0)}, 3, {v(vL)}
    v_and_b32 {v(t1)}, 7, {v(vL)}
    s_lshl_b32 s44, s27, 7
    s_lshl_b32 s45, s26, 5
    s_add_u32 s44, s44, s45
    v_add_u32 {v(t2)}, s44, {v(t0)}
    v_mul_u32_u24 {v(t2)}, 1280, {v(t2)}
    v_lshrrev_b32 {v(t3)}, 1, {v(t0)}
    v_xor_b32 {v(t3)}, {v(t3)}, {v(t1)}
    v_lshl_add_u32 {v(vXD)}, {v(t3)}, 4, {v(t2)}
    v_xor_b32 {v(t3)}, 4, {v(t3)}
    v_lshl_add_u32 {v(vXD + 1)}, {v(t3)}, 4, {v(t2)}
    v_add_u32 {v(vXD + 1)}, {8 * 1280}, {v(vXD + 1)}
    v_mul_lo_u32 {v(t2)}, {v(t0)}, s53
    v_lshrrev_b32 {v(t3)}, 1, {v(t1)}
    v_and_b32 {v(t4)}, 2, {v(t0)}
    v_xor_b32 {v(t3)}, {v(t3)}, {v(t4)}
    v_and_b32 {v(t4)}, 1, {v(t1)}
    v_lshl_add_u32 {v(t2)}, {v(t4)}, 4, {v(t2)}
    v_add_u32 {v(t2)}, s52, {v(t2)}
    v_lshl_add_u32 {v(vWD)}, {v(t3)}, 5, {v(t2)}
    v_xor_b32 {v(t3)}, 1, {v(t3)}
    v_lshl_add_u32 {v(vWD + 1)}, {v(t3)}, 5, {v(t2)}
    s_lshl_b32 s36, s26, 12
    s_mul_i32 s37, s26, 24576
    s_add_u32 s37, s37, {LDS_W}
    s_lshl_b32 s33, s53, 5
    s_mul_i32 s33, s33, s25
    s_lshl_b32 s44, s25, 12
    s_add_u32 s35, s37, s44
    {ROTC if ROT else PERMC}
    s_mul_i32 s38, s100, s32
    s_mul_i32 s39, s45, s32
    s_mov_b32 s10, 2621440
    s_mov_b32 s11, 0x20000
    s_mov_b32 s14, 2211840
    s_mov_b32 s15, 0x20000
    s_cmp_ge_u32 s24, 8
    s_cbranch_scc1 {L_aux}
    s_cmp_eq_u32 s43, 1
    s_waitcnt lgkmcnt(0)
    s_cselect_b32 s12, s82, s80
    s_cselect_b32 s13, s83, s81
    s_cmp_eq_u32 s51, 1
    s_cselect_b32 s12, s70, s12
    s_cselect_b32 s13, s71, s13
    s_cselect_b32 s14, 819200, s14
    ''')
    def c_start(c):
        for e in range(4):
            a(f'''
            s_add_u32 m0, s35, {c * 8192 + e * 1024}
            s_add_u32 s34, s33, s{38 + c}
            buffer_load_dwordx4 {v(vWD + (e & 1))}, s[12:15], s34 offen lds
            ''')
            if e < 3:
                a('s_add_u32 s33, s33, s31')
            elif c == 0:
                a('s_mul_i32 s44, s31, 3\ns_sub_u32 s33, s33, s44')
    c_start(0)
    if not LATE1:
        c_start(1)
    L_com = a.label('common')
    a(f'''
    s_mov_b32 s8, s68
    s_mov_b32 s9, s69
    s_mov_b32 s16, s72
    s_mov_b32 s17, s73
    s_mov_b32 s18, 25600
    s_mov_b32 s19, 0x20000
    v_mov_b32 {v(vKD)}, 0
    s_branch {L_com}
    {L_aux}:
    s_setprio {PRIO1}
    s_cmp_lt_u32 s28, 8
    s_cselect_b32 s54, 1, 0
    s_cmp_lt_u32 s26, 3
    s_cselect_b32 s40, s54, 0
    s_lshl_b32 s44, s26, 10
    s_add_u32 s38, s44, {LDS_KV}
    v_lshl_add_u32 {v(vKD)}, {v(vL)}, 4, s44
    s_mov_b32 s18, 25600
    s_mov_b32 s19, 0x20000
    s_lshl_b32 s46, s100, 7
    s_lshl_b32 s57, s45, 7
    s_mul_i32 s58, s100, 2560
    s_mul_i32 s59, s45, 2560
    s_bitcmp1_b32 s28, 2
    s_waitcnt lgkmcnt(0)
    s_mov_b32 s8, s68
    s_mov_b32 s9, s69
    s_cselect_b32 s16, s74, s72
    s_cselect_b32 s17, s75, s73
    ''')
    def a_start(c):
        for e in range(4):
            a(f'''
            s_add_u32 m0, s36, {LDS_X + c * 16384 + e * 1024}
            s_add_u32 s34, s{(46, 57)[c]}, {(e >> 1) * 16 * 1280}
            buffer_load_dwordx4 {v(vXD + (e & 1))}, s[8:11], s34 offen lds
            ''')
        lab = a.label('nokv')
        a(f'''
        s_cmp_eq_u32 s40, 0
        s_cbranch_scc1 {lab}
        s_add_u32 m0, s38, {c * 3072}
        s_nop 0
        buffer_load_dwordx4 {v(vKD)}, s[16:19], s{58 + c} offen lds
        {lab}:
        ''')
    a_start(0)
    if not LATE1:
        a_start(1)
    a(f'''
    s_cmp_eq_u32 s43, 1
    s_cselect_b32 s12, s82, s80
    s_cselect_b32 s13, s83, s81
    s_cmp_eq_u32 s51, 1
    s_cselect_b32 s12, s70, s12
    s_cselect_b32 s13, s71, s13
    s_cselect_b32 s14, 819200, s14
    {L_com}:
    s_mov_b32 s62, 0
    s_mov_b32 s63, -1
    s_and_b32 s44, s2, 7
    s_lshl_b32 s44, s44, 2
    s_bfe_u32 s46, s2, 0x20003
    s_add_u32 s29, s44, s46
    s_lshr_b32 s30, s2, 5
    ''')
    srd(a, 20, 78, WS_USED)
    srd(a, 64, 90, 2621440)
    if asmlib.STAMPS:
        a('s_mov_b32 s86, s88\ns_mov_b32 s87, s89')
    WDP = 86 if asmlib.STAMPS else 88
    if asmlib.STAMPS:
        a(f'''
        s_mov_b32 s88, s78
        s_mov_b32 s89, s79
        s_mov_b32 s90, 0x2000000
        s_mov_b32 s91, 0x20000
        s_mul_i32 s92, s2, 12
        s_add_u32 s92, s92, s24
        s_lshl_b32 s92, s92, 8
        s_add_u32 s92, s92, {asmlib.STAMP_OFF}
        ''')
    stamp(a, 0, early=True)
    stamp(a, 24)
    L_aux2 = a.label('aux2')
    a(f'''
    s_cmp_ge_u32 s24, 8
    s_cbranch_scc1 {L_aux2}
    ''')
    compute_wave(a, vL, vH, vR, L_end, c_start)
    a(f'{L_aux2}:')
    aux_wave(a, vL, vH, vR, L_end, WDP, a_start)
    a(f'''
    {L_end}:
    s_endpgm
    ''')
    return a.text()


def compute_wave(a, vL, vH, vR, L_end, c_start):
    al = Alloc(4, 168)
    T = al('T', 8, 4)
    ACC = al('acc', 64, 4)
    XF = al('xf', 32, 4)
    WF = al('wf', 16, 4)
    vXA = al('xa', 2)
    vWA = al('wa', 4)
    assert al.p == 130
    t0, t1, t2, t3, t4 = T, T + 1, T + 2, T + 3, T + 4
    a.c('=========== compute wave: phase 1 ===========')
    CR = 132
    XR = 132
    U = 160
    u0, u1, u2, u3, u4, u5 = range(U, U + 6)
    W4 = 144
    vN = 130
    srd(a, 4, 76, 256)

    a(f'''
    s_lshr_b32 s44, s30, 2
    s_lshl_b32 s46, s29, 1
    s_add_u32 s46, s46, s44
    s_and_b32 s44, s30, 3
    s_lshl_b32 s44, s44, 3
    s_add_u32 s45, s44, s24
    s_mul_i32 s37, s46, 40960
    s_add_u32 s37, s37, {OF_OFF}
    s_lshl_b32 s36, s45, 10
    s_add_u32 s36, s36, s37
    s_lshl_b32 s44, s45, 8
    s_add_u32 s37, s37, s44
    s_add_u32 s37, s37, 32768
    ''')
    PZ = 152
    poison = [f'v_mov_b32 {v(PZ + q)}, -1' for q in range(4)] + [
        f'v_lshlrev_b32 {v(u4)}, 4, {v(vL)}', f'v_lshlrev_b32 {v(u5)}, 2, {v(vL)}',
        f'buffer_store_dwordx4 {v(PZ, 4)}, {v(u4)}, s[20:23], s36 offen sc1',
        f'buffer_store_dword {v(PZ)}, {v(u5)}, s[20:23], s37 offen sc1']

    lines, load_cs, load_rows, fill_cs, fill_rows = stat_code(vL, vH, vR, CR, XR, 152, U, W4, 's56', 's56')
    stamp(a, 22)
    a(f'''
    v_and_b32 {v(t0)}, 15, {v(vL)}
    v_lshrrev_b32 {v(t1)}, 4, {v(vL)}
    v_lshrrev_b32 {v(t2)}, 1, {v(t0)}
    v_xor_b32 {v(t2)}, {v(t2)}, {v(t1)}
    v_lshlrev_b32 {v(t0)}, 7, {v(t0)}
    s_lshl_b32 s44, s25, 13
    v_add_u32 {v(t0)}, s44, {v(t0)}
    v_lshl_add_u32 {v(vXA)}, {v(t2)}, 4, {v(t0)}
    v_xor_b32 {v(t2)}, 4, {v(t2)}
    v_lshl_add_u32 {v(vXA + 1)}, {v(t2)}, 4, {v(t0)}
    v_bfe_u32 {v(t2)}, {v(vL)}, 2, 2
    v_lshl_add_u32 {v(t0)}, {v(t1)}, 3, {v(t2)}
    v_lshlrev_b32 {v(t0)}, 7, {v(t0)}
    v_and_b32 {v(t3)}, 3, {v(vL)}
    v_lshl_add_u32 {v(t0)}, {v(t3)}, 3, {v(t0)}
    v_and_b32 {v(t2)}, 2, {v(t2)}
    v_and_b32 {v(t1)}, 1, {v(t1)}
    v_xor_b32 {v(t1)}, {v(t1)}, {v(t2)}
    s_lshr_b32 s44, s26, 1
    s_and_b32 s57, s44, s48
    ''')
    for t in range(4):
        a(f'''
        s_lshl_b32 s44, s26, 1
        s_add_u32 s45, s44, {t >> 1}
        s_and_b32 s46, s45, 3
        s_lshr_b32 s45, s45, 2
        s_add_u32 s45, s45, {2 * (t & 1)}
        s_sub_u32 s44, s44, 3
        s_cmp_eq_u32 s57, 1
        s_cselect_b32 s45, s44, s45
        s_cselect_b32 s46, {t}, s46
        s_mul_i32 s45, s45, 24576
        s_add_u32 s45, s45, {LDS_W}
        v_xor_b32 {v(t2)}, s46, {v(t1)}
        v_lshl_add_u32 {v(t2)}, {v(t2)}, 5, {v(t0)}
        v_add_u32 {v(vWA + t)}, s45, {v(t2)}
        ''')

    def m16(d, A, B, first=False):
        return f'v_mfma_f32_16x16x32_bf16 {v(d, 4)}, {v(A, 4)}, {v(B, 4)}, ' + ('0' if first else v(d, 4))

    def xrd(g):
        c, sI = divmod(g, 2)
        return [f'ds_read_b128 {v(XF + 16 * (g & 1) + 4 * rt, 4)}, {v(vXA + sI)} offset:{LDS_X + (c % 3) * 16384 + 2048 * rt}' for rt in range(4)]

    def wrd(g, t):
        c, sI = divmod(g, 2)
        return [f'ds_read_b64_tr_b16 {v(WF + 4 * t + 2 * z, 2)}, {v(vWA + t)} offset:{(c % 3) * 8192 + 4096 * sI + 512 * z}' for z in range(2)]

    def tile(g, t):
        return [m16(ACC + 16 * t + 4 * rt, WF + 4 * t, XF + 16 * (g & 1) + 4 * rt, g == 0) for rt in range(4)]

    def chunk(c, fill=()):
        a.c(f'chunk {c}')
        if c:
            a('s_waitcnt lgkmcnt(0)')
        a('s_barrier')
        if not FEWST or c in (0, 1, 2, 9):
            stamp(a, 1 + c)
        if c == 9:
            lab = a.label('nqp')
            a(f's_cmp_eq_u32 s57, 0\ns_cbranch_scc1 {lab}\ns_setprio 2\n{lab}:')
        seq = []

        def rest(g, waits):
            pend = (wrd(g + 1, 0) + xrd(g + 1)) if g + 1 < 20 else []
            for t in range(1, 4):
                ms = tile(g, t)
                for q, m_ in enumerate(ms):
                    pre_ = [f's_waitcnt lgkmcnt({(0, 4, 10, 10)[t]})'] if (waits and q == 0) else []
                    ex = pend[2 * q:2 * q + 2] if t == 1 else []
                    if q == 3 and g + 1 < 20:
                        ex = ex + wrd(g + 1, t)
                    seq.append((pre_, m_, ex))
        if c > 0:
            rest(2 * c - 1, False)
        else:
            emit(a, wrd(0, 0) + xrd(0) + wrd(0, 1) + wrd(0, 2) + wrd(0, 3))
        g = 2 * c
        for q, m_ in enumerate(tile(g, 0)):
            seq.append((['s_waitcnt lgkmcnt(6)'] if q == 0 else [], m_, []))
        rest(g, True)
        for q, m_ in enumerate(tile(g + 1, 0)):
            seq.append((['s_waitcnt lgkmcnt(6)'] if q == 0 else [], m_, []))
        n, k_ = len(fill), len(seq)
        for q, (pre_, m_, ex) in enumerate(seq):
            emit(a, pre_)
            a(m_)
            emit(a, ex)
            emit(a, fill[(q * n) // k_:((q + 1) * n) // k_])

    if LATE1:
        c_start(1)
    if AST:
        a('s_waitcnt vmcnt(4)')
        chunk(0)
        a('s_waitcnt vmcnt(0)')
        for c in range(1, 6):
            chunk(c)
        chunk(6, [f'v_mov_b32 {v(vN)}, {NONCE_A}', f'ds_read_b32 {v(vN)}, {v(vN)}'])
        chunk(7)
        a(f'v_readfirstlane_b32 s98, {v(vN)}\ns_nop 0\ns_xor_b32 s99, s98, {NONCE_X}')
        f0, SPN_ = 7, 0
    else:
        SPN_ = SPN
        lab1, lab2 = a.label('rowv'), a.label('join')
        a(f's_cmp_eq_u32 s25, 1\ns_cbranch_scc1 {lab1}')
        for var, (ld, fl) in enumerate(((load_cs(), fill_cs()), (load_rows(), fill_rows()))):
            qp = [] if var == 0 else (lines(f'''
            s_mul_i32 s44, s27, {CH_BYTES}
            s_lshl_b32 s45, s28, 10
            s_add_u32 s44, s44, s45
            s_lshl_b32 s45, s26, 8
            s_add_u32 s44, s44, s45
            s_add_u32 s44, s44, {KV_OFF}
            s_cmp_lt_u32 s28, 14
            s_cselect_b32 s44, s44, 0x7f000000
            buffer_store_dword {v(PZ)}, {v(u5)}, s[20:23], s44 offen sc1
            ''') if KVP else []) + lines(f'''
            s_mul_i32 s44, s27, 163840
            s_mul_i32 s45, s28, 10240
            s_add_u32 s44, s44, s45
            s_mul_i32 s45, s26, 2560
            s_add_u32 s44, s44, s45
            s_add_u32 s44, s44, {QF_OFF}
            v_lshlrev_b32 {v(u5)}, 3, {v(vL)}
            buffer_store_dwordx4 {v(PZ, 4)}, {v(u4)}, s[20:23], s44 offen sc1
            buffer_store_dwordx4 {v(PZ, 4)}, {v(u4)}, s[20:23], s44 offen offset:1024 sc1
            buffer_store_dwordx2 {v(PZ, 2)}, {v(u5)}, s[20:23], s44 offen offset:2048 sc1
            ''')
            nl = [f'buffer_load_dword {v(vN)}, off, s[4:7], 0 sc1']
            if NOSL:
                ld = [['buffer_load_dword v165, off, s[4:7], 0']] * 5
                fl = fl[-6:]
            pz0 = poison + qp if PZ0 else []
            fl = (fl + nl) if PZ0 else (poison + qp + fl + nl)
            if SLC == 0:
                emit(a, ld)
            a(f's_waitcnt vmcnt({9 if SLC == 0 else 4})')
            chunk(0, (ld if SLC == -1 else []) + pz0)
            a(f's_waitcnt vmcnt({(5 if SLC <= 0 else 0) + ((2, 5)[var] if PZ0 else 0)})')
            n = len(fl)
            f0 = max(SLC, 0) + SLG
            for c in range(1, f0 + SPN):
                if c == SLC:
                    chunk(c, ld)
                elif c >= f0:
                    q = c - f0
                    chunk(c, ([f's_waitcnt vmcnt({(2, 5)[var] if PZ0 else 0})'] if q == 0 else []) + fl[(q * n) // SPN:((q + 1) * n) // SPN])
                else:
                    chunk(c)
            if var == 0:
                a(f's_branch {lab2}\n{lab1}:')
        a(f'{lab2}:')
        chunk(f0 + SPN)
        Lp, Lq = a.label('cnp'), a.label('cnd')
        a(f'''
        s_mov_b32 s93, {POLL_MAX}
        {Lp}:
        s_waitcnt vmcnt(0)
        v_readfirstlane_b32 s98, {v(vN)}
        s_cmp_lg_u32 s98, 0
        s_cbranch_scc1 {Lq}
        s_sub_u32 s93, s93, 1
        s_cbranch_scc1 {Lq}
        buffer_load_dword {v(vN)}, off, s[4:7], 0 sc1
        s_branch {Lp}
        {Lq}:
        s_xor_b32 s99, s98, {NONCE_X}
        ''')
        lab = a.label('noxid')
        a(f'''
        s_cmp_lg_u32 s24, 0
        s_cbranch_scc1 {lab}
        s_getreg_b32 s44, hwreg(HW_REG_XCC_ID, 0, 4)
        s_lshl_b32 s45, s29, 7
        s_lshl_b32 s46, s30, 3
        s_add_u32 s45, s45, s46
        s_add_u32 s45, s45, {F_X}
        v_mov_b32 {v(U)}, s98
        v_mov_b32 {v(U + 1)}, s44
        s_mov_b64 exec, 1
        buffer_store_dwordx2 {v(U, 2)}, off, s[20:23], s45 sc1
        s_mov_b64 exec, -1
        {lab}:
        ''')
        flag_store(a, 's56', U + 2)

    RC, CSF, vS16 = 132, 148, 131
    pre = lines(f'''
    v_and_b32 {v(t2)}, 15, {v(vL)}
    v_lshrrev_b32 {v(t3)}, 4, {v(vL)}
    s_lshl_b32 s44, s25, 10
    s_add_u32 s44, s44, {ROWC_A}
    v_lshl_add_u32 {v(t0)}, {v(t2)}, 4, s44
    s_lshl_b32 s44, s26, 8
    s_add_u32 s44, s44, {CS_A}
    v_lshl_add_u32 {v(t1)}, {v(t2)}, 2, s44
    v_lshl_add_u32 {v(t1)}, {v(t3)}, 12, {v(t1)}
    v_lshlrev_b32 {v(vS16)}, 4, {v(t2)}
    v_lshl_add_u32 {v(vS16)}, {v(t3)}, 9, {v(vS16)}
    ''')
    pre += [f'ds_read_b128 {v(RC + 4 * rt, 4)}, {v(t0)} offset:{256 * rt}' for rt in range(4)]
    for t in range(4):
        for z in range(2):
            pre.append(f'ds_read2st64_b32 {v(CSF + 4 * t + 2 * z, 2)}, {v(t1)} offset0:{8 * z} offset1:{8 * z + 4}')
        if t < 3:
            pre.append(f'v_add_u32 {v(t1)}, 64, {v(t1)}')
    for c in range(f0 + SPN_ + 1, 10):
        chunk(c, pre if c == 9 else ())
    a(f'''
    s_lshl_b32 s44, s24, 2
    s_add_u32 s44, s44, {CD_A}
    v_mov_b32 {v(t0)}, s44
    v_mov_b32 {v(t1)}, s98
    s_waitcnt lgkmcnt(0)
    ds_write_b32 {v(t0)}, {v(t1)}
    ''')
    NEG = XF
    HH = 148
    ms = tile(19, 1) + tile(19, 2) + tile(19, 3)
    mv = [f'v_mov_b32 {v(NEG + 4 * rt + r)}, {v(RC + 4 * rt)}' for rt in range(4) for r in range(4)]
    for q, m_ in enumerate(ms):
        a(m_)
        emit(a, mv[(q * 16) // 12:((q + 1) * 16) // 12])
    stamp(a, 12)
    a(f'''
    s_mov_b32 s46, {f2u(C0)}
    s_mov_b32 s47, {f2u(C1)}
    ''')
    for rt in range(4):
        for t in range(4):
            a(m16(ACC + 16 * t + 4 * rt, CSF + 4 * t, NEG + 4 * rt))
    L_q = a.label('qepi')
    L_ed = a.label('epidone')
    a(f'''
    s_lshl_b32 s44, s27, 2
    s_lshl_b32 s45, s25, 1
    s_add_u32 s60, s44, s45
    s_cmp_eq_u32 s57, 1
    s_cbranch_scc1 {L_q}
    s_lshr_b32 s44, s49, 4
    s_lshl_b32 s45, s26, 1
    s_add_u32 s44, s44, s45
    s_mul_i32 s42, s60, 108
    s_add_u32 s42, s42, s44
    s_lshl_b32 s42, s42, 10
    s_add_u32 s43, s42, {108 * 1024}
    ''')
    E1, E2, KC = XF + 16, WF, T
    for rt in range(4):
        TT = E1 + 8 * (rt % 2)
        PP = E2 + 8 * (rt % 2)
        G_ = lambda i: ACC + 32 * (i >> 2) + 4 * rt + (i & 3)
        rho = RC + 4 * rt + 1
        a(f'''
        v_mul_f32 {v(KC)}, s46, {v(rho)}
        v_mul_f32 {v(KC + 1)}, s46, {v(rho)}
        v_mul_f32 {v(KC + 4)}, {v(rho)}, {v(rho)}
        v_mov_b32 {v(RC + 4 * rt + 3)}, {v(RC + 4 * rt + 2)}
        v_mul_f32 {v(KC + 4)}, {v(KC + 4)}, {v(rho)}
        v_mul_f32 {v(KC + 2)}, s47, {v(KC + 4)}
        v_mul_f32 {v(KC + 3)}, s47, {v(KC + 4)}
        ''')
        rc = v(RC + 4 * rt + 2, 2)
        for i in range(0, 8, 2):
            a(f'v_pk_mul_f32 {v(TT + i, 2)}, {v(G_(i), 2)}, {v(G_(i), 2)}')
        for i in range(0, 8, 2):
            a(f'v_pk_fma_f32 {v(TT + i, 2)}, {v(TT + i, 2)}, {v(KC + 2, 2)}, {v(KC, 2)}')
        for i in range(0, 8, 2):
            a(f'v_pk_mul_f32 {v(TT + i, 2)}, {v(TT + i, 2)}, {v(G_(i), 2)}')
        for i in range(8):
            a(f'v_exp_f32 {v(TT + i)}, {v(TT + i)}')
        for i in range(0, 8, 2):
            a(f'v_pk_mul_f32 {v(PP + i, 2)}, {v(G_(i), 2)}, {v(G_(i) + 16, 2)}')
        for i in range(0, 8, 2):
            a(f'v_pk_fma_f32 {v(TT + i, 2)}, {v(TT + i, 2)}, {rc}, {rc}')
        for i in range(8):
            a(f'v_rcp_f32 {v(TT + i)}, {v(TT + i)}')
        a('s_nop 0')
        for i in range(0, 8, 2):
            a(f'v_pk_mul_f32 {v(PP + i, 2)}, {v(PP + i, 2)}, {v(TT + i, 2)}')
        for i in range(4):
            a(f'v_cvt_pk_bf16_f32 {v(HH + 4 * rt + i)}, {v(PP + 2 * i)}, {v(PP + 2 * i + 1)}')
    a(f's_branch {L_ed}')
    a(f'{L_q}:')
    a(f'''
    s_sub_u32 s44, s26, 2
    s_lshl_b32 s44, s44, 6
    s_add_u32 s44, s44, s50
    s_lshl_b32 s44, s44, 6
    s_add_u32 s44, s44, {QF_OFF}
    s_mov_b32 s45, {f2u(QSC)}
    s_mul_i32 s46, s60, 40960
    s_add_u32 s46, s46, s44
    s_add_u32 s47, s46, 40960
    ''')
    for rt in range(4):
        a(f'v_mul_f32 {v(T + rt)}, s45, {v(RC + 4 * rt + 1)}')
    for rt in range(4):
        for pz in range(2):
            O_ = E1 + 4 * ((2 * rt + pz) % 8)
            regs = [ACC + 16 * (2 * pz + (i >> 2)) + 4 * rt + (i & 3) for i in range(8)]
            for r_ in regs:
                a(f'v_mul_f32 {v(r_)}, {v(r_)}, {v(T + rt)}')
            for i in range(4):
                a(f'v_cvt_pk_bf16_f32 {v(O_ + i)}, {v(regs[2 * i])}, {v(regs[2 * i + 1])}')
            a(f'buffer_store_dwordx4 {v(O_, 4)}, {v(vS16)}, s[20:23], s{46 + (rt >> 1)} offen offset:{2048 * pz + 256 * (rt & 1)} sc1')
    a(f'{L_ed}:')
    stamp(a, 13)

    a.c('=========== compute wave: attention ===========')
    al3 = Alloc(4, 168)
    T = al3('T', 16, 4)
    S = al3('S', 32, 4)
    O = al3('O', 16, 4)
    V1 = al3('V1', 4, 4)
    V2 = al3('V2', 4, 4)
    Q1 = al3('Q1', 4, 4)
    K1 = al3('K1', 8, 4)
    K2 = al3('K2', 8, 4)
    P = al3('P', 16, 4)
    Q2 = al3('Q2', 2, 2)
    vK = al3('vK')
    vK2 = al3('vK2')
    a(f'''
    s_lshl_b32 s44, s27, 1
    s_add_u32 s44, s44, s25
    s_lshl_b32 s44, s44, 13
    s_lshl_b32 s45, s28, 2
    s_add_u32 s45, s45, s26
    s_lshl_b32 s45, s45, 7
    s_add_u32 s44, s44, s45
    s_add_u32 s41, s44, {F_QH}
    s_nop 1
    ''')
    for i in range(16):
        a(f'v_mov_b32 {v(O + i)}, 0')
    for i in range(4):
        a(f'v_mov_b32 {v(V1 + i)}, 0')
        a(f'v_mov_b32 {v(V2 + i)}, 0')
    a(f'''
    s_mov_b32 s45, {KVR}
    v_lshl_add_u32 {v(vK)}, {v(vL)}, 4, s45
    v_lshl_add_u32 {v(vK2)}, {v(vL)}, 3, s45
    s_mul_i32 s45, s24, 5
    v_lshlrev_b32 {v(T + 4)}, 4, {v(vR)}
    s_lshr_b32 s44, s30, 2
    s_lshl_b32 s46, s29, 1
    s_add_u32 s44, s44, s46
    s_mul_i32 s44, s44, 40960
    s_and_b32 s46, s30, 3
    s_mul_i32 s46, s46, 10240
    s_add_u32 s44, s44, s46
    s_add_u32 s40, s44, {QF_OFF}
    ''')
    for z, (dq, useh) in enumerate(((0, 1), (2, 1), (4, 0))):
        a(f's_add_u32 s46, s45, {dq}')
        a(f'v_add_u32 {v(T + 5)}, s46, {v(vH)}' if useh else f'v_mov_b32 {v(T + 5)}, s46')
        a(f'''
        v_lshrrev_b32 {v(T + 6)}, 3, {v(T + 5)}
        v_lshl_add_u32 {v(T + 6)}, {v(T + 6)}, 11, {v(T + 4)}
        v_and_b32 {v(T + 7)}, 3, {v(T + 5)}
        v_lshl_add_u32 {v(T + 6)}, {v(T + 7)}, 9, {v(T + 6)}
        v_bfe_u32 {v(T + 5)}, {v(T + 5)}, 2, 1
        v_lshl_add_u32 {v(T + 13 + z)}, {v(T + 5)}, 3, {v(T + 6)}
        ''')
    a('s_setprio 0')
    for i in range(8):
        a(f'v_mov_b32 {v(P + 8 + i)}, 0')
    Lp, Lq = a.label('qp'), a.label('qpd')
    a(f'''
    s_mov_b32 s93, {OPOLL_MAX}
    {Lp}:
    buffer_load_dwordx2 {v(Q1, 2)}, {v(T + 13)}, s[20:23], s40 offen sc1
    buffer_load_dwordx2 {v(Q1 + 2, 2)}, {v(T + 14)}, s[20:23], s40 offen sc1
    buffer_load_dwordx2 {v(Q2, 2)}, {v(T + 15)}, s[20:23], s40 offen sc1
    s_waitcnt vmcnt(0)
    v_max3_u32 {v(T)}, {v(Q1)}, {v(Q1 + 1)}, {v(Q1 + 2)}
    v_max3_u32 {v(T + 1)}, {v(Q1 + 3)}, {v(Q2)}, {v(Q2 + 1)}
    v_max_u32 {v(T)}, {v(T)}, {v(T + 1)}
    v_cmp_eq_u32 vcc, -1, {v(T)}
    s_nop 1
    s_cmp_eq_u64 vcc, 0
    s_cbranch_scc1 {Lq}
    s_sub_u32 s93, s93, 1
    s_cbranch_scc1 {Lq}
    s_sleep {QSLEEP}
    s_branch {Lp}
    {Lq}:
    v_mov_b32 {v(T + 2)}, 0
    v_cndmask_b32 {v(Q2)}, {v(Q2)}, {v(T + 2)}, {HM}
    v_cndmask_b32 {v(Q2 + 1)}, {v(Q2 + 1)}, {v(T + 2)}, {HM}
    ''')
    stamp(a, 14)
    if NOA0:
        L1, L2 = a.label('klw'), a.label('kld')
        a(f'''
        v_and_b32 {v(T)}, 3, {v(vL)}
        v_lshlrev_b32 {v(T)}, 2, {v(T)}
        v_add_u32 {v(T)}, {KL_A}, {v(T)}
        s_mov_b32 s93, {POLL_MAX * 8}
        {L1}:
        ds_read_b32 {v(T + 1)}, {v(T)}
        s_waitcnt lgkmcnt(0)
        v_cmp_eq_u32 vcc, s98, {v(T + 1)}
        s_nop 1
        s_cmp_eq_u64 vcc, -1
        s_cbranch_scc1 {L2}
        s_sleep 1
        s_sub_u32 s93, s93, 1
        s_cbranch_scc0 {L1}
        {L2}:
        ''')
    else:
        a('s_barrier')
    stamp(a, 15)
    o0, o1, o2 = tile_offs(0), tile_offs(1), tile_offs(2)
    a(f'''
    ds_read_b128 {v(K1, 4)}, {v(vK)} offset:{o0[0]}
    ds_read_b128 {v(K1 + 4, 4)}, {v(vK)} offset:{o1[0]}
    ds_read2st64_b64 {v(K2, 4)}, {v(vK2)} offset0:{o0[1] // 512} offset1:{o0[1] // 512 + 1}
    s_waitcnt lgkmcnt(0)
    ''')

    def set_m(mreg, offset):
        t0, t1, t2, t3 = T + 8, T + 9, T + 10, T + 11
        a(f'v_sub_f32 {v(t0)}, {f2u(-offset) if offset else 0}, {v(mreg)}')
        a(f'''
        v_cvt_pk_bf16_f32 {v(t1)}, {v(t0)}, {v(t0)}
        v_and_b32 {v(t2)}, 0xffff0000, {v(t1)}
        v_sub_f32 {v(t2)}, {v(t0)}, {v(t2)}
        v_cvt_pk_bf16_f32 {v(t1)}, {v(t0)}, {v(t2)}
        v_and_b32 {v(t3)}, 0xffff0000, {v(t1)}
        v_sub_f32 {v(t2)}, {v(t2)}, {v(t3)}
        v_mov_b32 {v(t3)}, 0
        v_cvt_pk_bf16_f32 {v(t2)}, {v(t2)}, {v(t3)}
        v_cndmask_b32 {v(Q2)}, {v(Q2)}, {v(t1)}, {HM}
        v_cndmask_b32 {v(Q2 + 1)}, {v(Q2 + 1)}, {v(t2)}, {HM}
        ''')

    def cross_half_max(reg):
        t = T + 12
        a(f'''
        v_mov_b32 {v(t)}, {v(reg)}
        s_nop 1
        v_permlane32_swap_b32 {v(reg)}, {v(t)}
        s_nop 1
        v_max_f32 {v(reg)}, {v(reg)}, {v(t)}
        ''')

    for t in range(2):
        a(mfma16(S + 16 * t, K1 + 4 * t, Q1))
    if HST < 0:
        lab = a.label('nohst')
        a(f'''
        s_cmp_eq_u32 s57, 1
        s_cbranch_scc1 {lab}
        ''')
        for k in range(4):
            a(f'buffer_store_dwordx4 {v(HH + 4 * k, 4)}, {v(vS16)}, s[20:23], s{42 + (k >> 1)} offen offset:{256 * (k & 1)} sc1')
        a(f'{lab}:')
    a('s_nop 9')
    for t in range(2):
        a(mfma8(S + 16 * t, K2 + 2 * t, Q2, S + 16 * t))
    a('s_nop 11')
    m = T + 4
    for z in range(2):
        a(f'v_max3_f32 {v(m + z)}, {v(S + 16 * z)}, {v(S + 16 * z + 1)}, {v(S + 16 * z + 2)}')
    for i in range(3, 15, 2):
        for z in range(2):
            a(f'v_max3_f32 {v(m + z)}, {v(m + z)}, {v(S + 16 * z + i)}, {v(S + 16 * z + i + 1)}')
    a(f'v_max3_f32 {v(m)}, {v(m)}, {v(S + 15)}, {v(S + 31)}')
    a(f'v_max_f32 {v(m)}, {v(m)}, {v(m + 1)}')
    cross_half_max(m)
    set_m(m, M_OFFSET)
    a('s_nop 1')
    a(mfma16(S, K1, Q1))
    a(f'''
    ds_read_b128 {v(K1, 4)}, {v(vK)} offset:{o2[0]}
    s_mov_b32 s34, 4
    s_nop 7
    ''')
    a(mfma8(S, K2, Q2, S))
    a('s_nop 9')
    stamp(a, 16)

    def toff(tt):
        tt &= 15
        o = tile_offs(tt & 3)
        return [x + (tt >> 2) * CH_BYTES for x in o]

    def k2read(reg, tt):
        o = toff(tt)[1]
        assert o % 512 == 0
        return f'ds_read2st64_b64 {v(reg, 4)}, {v(vK2)} offset0:{o // 512} offset1:{o // 512 + 1}'

    L_hf, L_hb = a.label('hflag'), a.label('hback')
    L_hs, L_hsb = a.label('hst'), a.label('hstb')
    a('s_cmp_eq_u32 s57, 1\ns_cselect_b32 s33, 99, 4')

    def slot(t):
        Sx, Sn = S + 16 * (t & 1), S + 16 * ((t + 1) & 1)
        Px, Pp = P + 8 * (t & 1), P + 8 * ((t + 1) & 1)
        kt = t + 1
        kb = kt & 1
        k2 = K2 + 4 * ((kt >> 1) & 1) + 2 * (kt & 1)
        m_ = [mfma16(Sn, K1 + 4 * kb, Q1), mfma16(O, V1, Pp, O), mfma8(Sn, k2, Q2, Sn), mfma16(O, V2, Pp + 4, O)]
        after = [[], [], [], []]
        if t & 3 == 1:
            after[0] = ['s_barrier']
        after[0] += [f'ds_read_b128 {v(K1 + 4 * kb, 4)}, {v(vK)} offset:{toff(t + 3)[0]}', 's_waitcnt lgkmcnt(2)']
        after[1] = [f'ds_read_b128 {v(V1, 4)}, {v(vK)} offset:{toff(t)[2]}']
        if t & 1:
            after[1] += [k2read(K2 + 4 * (((t + 3) >> 1) & 1), t + 3)]
        after[2] += [f's_waitcnt lgkmcnt({3 if t & 1 else 2})']
        after[3] = [f'ds_read_b128 {v(V2, 4)}, {v(vK)} offset:{toff(t)[3]}']
        if t == 15:
            after[3] += ['s_sub_u32 s34, s34, 1']
        if t == HST:
            after[3] += ['s_cmp_eq_u32 s34, s33', f's_cbranch_scc1 {L_hs}', f'{L_hsb}:']
        if t == HFLAG_T:
            after[3] += ['s_cmp_eq_u32 s34, 4', f's_cbranch_scc1 {L_hf}', f'{L_hb}:']
        val = []
        for i in range(8):
            val.append(f'v_exp_f32 {v(Sx + 2 * i)}, {v(Sx + 2 * i)}')
            val.append(f'v_exp_f32 {v(Sx + 2 * i + 1)}, {v(Sx + 2 * i + 1)}')
            if i > 0:
                val.append(f'v_cvt_pk_bf16_f32 {v(Px + i - 1)}, {v(Sx + 2 * i - 2)}, {v(Sx + 2 * i - 1)}')
        val.append(f'v_cvt_pk_bf16_f32 {v(Px + 7)}, {v(Sx + 14)}, {v(Sx + 15)}')
        groups = [val[0:5], val[5:11], val[11:17], val[17:24]]
        for g in range(4):
            a(m_[g])
            emit(a, after[g])
            emit(a, groups[g])

    a(k2read(K2 + 4, 2))
    L_loop = a.label('att')
    a('.p2align 6')
    a(f'{L_loop}:')
    for t in range(16):
        slot(t)
    a(f'''
    s_cmp_lg_u32 s34, 0
    s_cbranch_scc1 {L_loop}
    s_waitcnt lgkmcnt(0)
    ''')
    a(mfma16(O, V1, P + 8, O))
    a(mfma16(O, V2, P + 12, O))
    a(f'''
    v_lshlrev_b32 {v(T + 2)}, 4, {v(vL)}
    v_lshlrev_b32 {v(T + 3)}, 3, {v(vL)}
    v_mov_b32 {v(T + 9)}, 0x7f000000
    v_cndmask_b32 {v(T + 3)}, {v(T + 3)}, {v(T + 9)}, {HM}
    v_lshlrev_b32 {v(T + 4)}, 3, {v(vR)}
    v_lshl_add_u32 {v(T + 4)}, {v(vH)}, 9, {v(T + 4)}
    v_mov_b32 {v(T + 5)}, {SX_A}
    ds_read_b32 {v(T + 5)}, {v(T + 5)}
    s_nop 4
    ''')
    stamp(a, 17)
    L_fb = a.label('fb')
    L_out = a.label('aout')
    a(f'''
    s_mov_b32 s44, {f2u(2.0 ** 120)}
    s_mov_b32 s45, {f2u(2.0 ** -103)}
    v_add_f32 {v(T)}, |{v(O)}|, |{v(O + 1)}|
    v_add_f32 {v(T + 1)}, |{v(O + 2)}|, |{v(O + 3)}|
    ''')
    for i in range(4, 12, 2):
        a(f'v_add_f32 {v(T)}, {v(T)}, |{v(O + i)}|')
        a(f'v_add_f32 {v(T + 1)}, {v(T + 1)}, |{v(O + i + 1)}|')
    a(f'''
    v_add_f32 {v(T)}, {v(T)}, {v(T + 1)}
    v_add_f32 {v(T + 1)}, {v(T)}, {v(O + 12)}
    s_waitcnt lgkmcnt(0)
    v_readfirstlane_b32 s38, {v(T + 5)}
    v_cmp_le_f32 s[46:47], s45, {v(T)}
    v_cmp_gt_f32 s[48:49], s44, {v(T + 1)}
    s_nop 1
    s_and_b64 s[46:47], s[46:47], s[48:49]
    s_cmp_eq_u64 s[46:47], -1
    s_cbranch_scc0 {L_fb}
    {L_out}:
    v_rcp_f32 {v(T)}, {v(O + 12)}
    s_nop 0
    ''')
    for i in range(12):
        a(f'v_mul_f32 {v(O + i)}, {v(O + i)}, {v(T)}')
    for i in range(6):
        a(f'v_cvt_pk_bf16_f32 {v(P + i)}, {v(O + 2 * i)}, {v(O + 2 * i + 1)}')
    L_pl, L_st = a.label('oplain'), a.label('ostored')
    a(f'''
    s_cmp_eq_u32 s38, s98
    s_cbranch_scc1 {L_pl}
    buffer_store_dwordx4 {v(P, 4)}, {v(T + 2)}, s[20:23], s36 offen sc1
    buffer_store_dwordx2 {v(P + 4, 2)}, {v(T + 3)}, s[20:23], s37 offen sc1
    s_branch {L_st}
    {L_pl}:
    buffer_store_dwordx4 {v(P, 4)}, {v(T + 2)}, s[20:23], s36 offen
    buffer_store_dwordx2 {v(P + 4, 2)}, {v(T + 3)}, s[20:23], s37 offen
    {L_st}:
    ''')
    stamp(a, 18)
    g2_ids(a)
    OFR = 120
    a(f'''
    s_cmp_eq_u32 s25, 1
    s_cselect_b32 s44, s60, s59
    s_mul_i32 s44, s44, 40960
    s_add_u32 s44, s44, {OF_OFF}
    s_lshl_b32 s45, s26, 13
    s_add_u32 s38, s44, s45
    s_add_u32 s38, s38, 3072
    s_add_u32 s39, s38, 4096
    s_lshl_b32 s45, s26, 11
    s_add_u32 s40, s44, s45
    s_add_u32 s40, s40, 32768
    s_mul_i32 s44, s26, 14336
    s_lshl_b32 s45, s25, 10
    s_add_u32 s44, s44, s45
    s_add_u32 s44, s44, {OL_A}
    v_add_u32 {v(T + 5)}, s44, {v(T + 2)}
    s_barrier
    ''')
    Lp, Lq = a.label('cop'), a.label('copd')
    a(f's_mov_b32 s93, {OPOLL_MAX}\n{Lp}:')
    for q in range(5):
        a(f'buffer_load_dwordx4 {v(OFR + 4 * q, 4)}, {v(T + 2)}, s[20:23], {"s38" if q < 4 else "s39"} offen offset:{1024 * (q & 3)} sc1')
    for q in range(4):
        a(f'buffer_load_dwordx2 {v(OFR + 20 + 2 * q, 2)}, {v(T + 4)}, s[20:23], s40 offen offset:{1024 * (q >> 1) + 256 * (q & 1)} sc1')
    a('s_waitcnt vmcnt(0)')
    a(f'v_max3_u32 {v(T)}, {v(OFR)}, {v(OFR + 1)}, {v(OFR + 2)}')
    for i in range(3, 27, 2):
        a(f'v_max3_u32 {v(T)}, {v(T)}, {v(OFR + i)}, {v(OFR + i + 1)}')
    a(f'''
    v_max_u32 {v(T)}, {v(T)}, {v(OFR + 27)}
    v_cmp_eq_u32 vcc, -1, {v(T)}
    s_nop 1
    s_cmp_eq_u64 vcc, 0
    s_cbranch_scc1 {Lq}
    s_sub_u32 s93, s93, 1
    s_cbranch_scc1 {Lq}
    s_sleep {OSLEEP}
    s_branch {Lp}
    {Lq}:
    ''')
    for q in range(7):
        a(f'ds_write_b128 {v(T + 5)}, {v(OFR + 4 * q, 4)} offset:{2048 * q}')
    stamp(a, 21)
    if FFL:
        a(f'''
        s_lshl_b32 s44, s24, 2
        s_add_u32 s44, s44, {OW_A}
        v_mov_b32 {v(T)}, s44
        v_mov_b32 {v(T + 1)}, s98
        s_waitcnt lgkmcnt(0)
        ds_write_b32 {v(T)}, {v(T + 1)}
        ''')
    g2_out(a, S, vL, 's24', 0)
    if not FFL:
        a('s_waitcnt lgkmcnt(0)')
        a('s_barrier')
    a('s_barrier')
    stamp(a, 19)
    g2_out(a, S, vL, 's24', 1)
    if asmlib.STAMPS:
        a('s_waitcnt vmcnt(0)')
    stamp(a, 20)
    diag_end(a)
    a(f's_branch {L_end}')

    if HST >= 0:
        a(f'{L_hs}:')
        for k in range(4):
            a(f'buffer_store_dwordx4 {v(HH + 4 * k, 4)}, {v(vS16)}, s[20:23], s{42 + (k >> 1)} offen offset:{256 * (k & 1)} sc1')
        a(f's_branch {L_hsb}')
    a(f'{L_hf}:')
    a('s_waitcnt vmcnt(0)')
    flag_store(a, 's41', T + 2)
    a(f's_branch {L_hb}')
    a(f'{L_fb}:')
    L1 = a.label('fb1')
    L2 = a.label('fb2')
    a(f'''
    v_lshlrev_b32 {v(T + 13)}, 4, {v(vL)}
    v_lshlrev_b32 {v(T + 7)}, 3, {v(vL)}
    v_mov_b32 {v(T + 14)}, 0
    v_mov_b32 {v(T + 15)}, 0xff800000
    v_cndmask_b32 {v(Q2)}, {v(Q2)}, {v(T + 14)}, {HM}
    v_cndmask_b32 {v(Q2 + 1)}, {v(Q2 + 1)}, {v(T + 14)}, {HM}
    s_mov_b32 s77, {KV_OFF}
    s_mov_b32 s34, 32
    {L1}:
    buffer_load_dwordx4 {v(K1, 4)}, {v(T + 13)}, s[20:23], s77 offen sc1
    buffer_load_dwordx4 {v(K1 + 4, 4)}, {v(T + 13)}, s[20:23], s77 offen offset:1024 sc1
    buffer_load_dwordx2 {v(K2, 2)}, {v(T + 7)}, s[20:23], s77 offen offset:2048 sc1
    buffer_load_dwordx2 {v(K2 + 2, 2)}, {v(T + 7)}, s[20:23], s77 offen offset:2560 sc1
    s_waitcnt vmcnt(0)
    ''')
    for t in range(2):
        a(mfma16(S + 16 * t, K1 + 4 * t, Q1))
    a('s_nop 9')
    for t in range(2):
        a(mfma8(S + 16 * t, K2 + 2 * t, Q2, S + 16 * t))
    a('s_nop 15')
    for i in range(0, 32, 2):
        a(f'v_max3_f32 {v(T + 15)}, {v(T + 15)}, {v(S + i)}, {v(S + i + 1)}')
    a(f'''
    s_add_u32 s77, s77, 7168
    s_sub_u32 s34, s34, 1
    s_cmp_lg_u32 s34, 0
    s_cbranch_scc1 {L1}
    ''')
    cross_half_max(T + 15)
    set_m(T + 15, 0.0)
    for i in range(16):
        a(f'v_mov_b32 {v(O + i)}, 0')
    a(f'''
    s_mov_b32 s77, {KV_OFF}
    s_mov_b32 s34, 64
    {L2}:
    s_and_b32 s78, s34, 1
    s_lshl_b32 s79, s78, 10
    s_add_u32 s79, s79, s77
    s_lshl_b32 s80, s78, 9
    s_add_u32 s80, s80, s77
    s_lshl_b32 s81, s78, 11
    s_add_u32 s81, s81, s77
    s_add_u32 s81, s81, 3072
    buffer_load_dwordx4 {v(K1, 4)}, {v(T + 13)}, s[20:23], s79 offen sc1
    buffer_load_dwordx2 {v(K2, 2)}, {v(T + 7)}, s[20:23], s80 offen offset:2048 sc1
    buffer_load_dwordx4 {v(V1, 4)}, {v(T + 13)}, s[20:23], s81 offen sc1
    buffer_load_dwordx4 {v(V2, 4)}, {v(T + 13)}, s[20:23], s81 offen offset:1024 sc1
    s_waitcnt vmcnt(0)
    {mfma16(S, K1, Q1)}
    s_nop 10
    {mfma8(S, K2, Q2, S)}
    s_nop 15
    ''')
    for i in range(16):
        a(f'v_exp_f32 {v(S + i)}, {v(S + i)}')
    a('s_nop 0')
    for i in range(8):
        a(f'v_cvt_pk_bf16_f32 {v(P + i)}, {v(S + 2 * i)}, {v(S + 2 * i + 1)}')
    a(f'''
    s_nop 1
    {mfma16(O, V1, P, O)}
    {mfma16(O, V2, P + 4, O)}
    s_mul_i32 s78, s78, 7168
    s_add_u32 s77, s77, s78
    s_sub_u32 s34, s34, 1
    s_cmp_lg_u32 s34, 0
    s_cbranch_scc1 {L2}
    s_nop 15
    s_branch {L_out}
    ''')


def g2_ids(a):
    a('''
    s_lshr_b32 s57, s30, 1
    s_and_b32 s58, s30, 1
    s_lshl_b32 s44, s29, 1
    s_add_u32 s59, s44, s58
    s_xor_b32 s60, s59, 1
    s_mul_i32 s44, s57, 320
    s_lshl_b32 s45, s58, 7
    s_add_u32 s61, s44, s45
    ''')


def g2_out(a, T, vL, wsg, part):
    L_skip = a.label('g2o')
    a(f'''
    s_cmp_ge_u32 {wsg}, 10
    s_cbranch_scc1 {L_skip}
    ''')
    if part == 0:
        a(f'''
        s_lshr_b32 s45, {wsg}, 1
        s_and_b32 s46, {wsg}, 1
        s_lshl_b32 s46, s46, 4
        v_lshrrev_b32 {v(T)}, 2, {v(vL)}
        v_add_u32 {v(T)}, s46, {v(T)}
        v_and_b32 {v(T + 1)}, 3, {v(vL)}
        s_and_b32 s47, s45, 1
        s_cmp_eq_u32 s47, 1
        s_cselect_b32 s47, s60, s59
        s_mul_i32 s47, s47, {32 * 1280}
        s_lshr_b32 s48, s45, 1
        s_add_u32 s49, s48, s58
        s_lshl_b32 s49, s49, 6
        s_lshl_b32 s50, s58, 7
        s_sub_u32 s50, 128, s50
        s_cmp_eq_u32 s48, 2
        s_cselect_b32 s49, s50, s49
        s_add_u32 s47, s47, s49
        s_add_u32 s31, s47, s61
        v_mul_u32_u24 {v(T + 6)}, 1280, {v(T)}
        v_lshl_add_u32 {v(T + 6)}, {v(T + 1)}, 4, {v(T + 6)}
        buffer_load_dwordx4 {v(T + 2, 4)}, {v(T + 6)}, s[8:11], s31 offen
        v_lshlrev_b32 {v(T + 1)}, 1, {v(T + 1)}
        v_and_b32 {v(T + 7)}, 7, {v(T)}
        v_xor_b32 {v(T + 1)}, {v(T + 1)}, {v(T + 7)}
        v_lshlrev_b32 {v(T)}, 7, {v(T)}
        v_lshl_add_u32 {v(T)}, {v(T + 1)}, 4, {v(T)}
        s_lshl_b32 s47, s45, 12
        v_add_u32 {v(T)}, s47, {v(T)}
        v_xor_b32 {v(T + 1)}, 16, {v(T)}
        ''')
    else:
        for w in range(4):
            if w == 2:
                a(f'v_add_u32 {v(T)}, {WO_HI}, {v(T)}\nv_add_u32 {v(T + 1)}, {WO_HI}, {v(T + 1)}')
            a(f'ds_read_b128 {v(T + 8 + 8 * w, 4)}, {v(T)} offset:{21504 * (w & 1)}')
            a(f'ds_read_b128 {v(T + 12 + 8 * w, 4)}, {v(T + 1)} offset:{21504 * (w & 1)}')
        a('s_waitcnt vmcnt(0)')
        for i in range(4):
            a(f'''
            v_lshlrev_b32 {v(T + 40 + 2 * i)}, 16, {v(T + 2 + i)}
            v_and_b32 {v(T + 41 + 2 * i)}, 0xffff0000, {v(T + 2 + i)}
            ''')
        a('s_waitcnt lgkmcnt(4)')
        for i in range(0, 8, 2):
            a(f'v_pk_add_f32 {v(T + 8 + i, 2)}, {v(T + 8 + i, 2)}, {v(T + 16 + i, 2)}')
        for i in range(0, 8, 2):
            a(f'v_pk_add_f32 {v(T + 8 + i, 2)}, {v(T + 8 + i, 2)}, {v(T + 40 + i, 2)}')
        a('s_waitcnt lgkmcnt(0)')
        for i in range(0, 8, 2):
            a(f'v_pk_add_f32 {v(T + 24 + i, 2)}, {v(T + 24 + i, 2)}, {v(T + 32 + i, 2)}')
        for i in range(0, 8, 2):
            a(f'v_pk_add_f32 {v(T + 8 + i, 2)}, {v(T + 8 + i, 2)}, {v(T + 24 + i, 2)}')
        for i in range(4):
            a(f'v_cvt_pk_bf16_f32 {v(T + 16 + i)}, {v(T + 8 + 2 * i)}, {v(T + 9 + 2 * i)}')
        a(f'buffer_store_dwordx4 {v(T + 16, 4)}, {v(T + 6)}, s[64:67], s31 offen{OUTSC}')
    a(f'{L_skip}:')


def aux_wave(a, vL, vH, vR, L_end, WDP, a_start):
    al = Alloc(4, 168)
    T = al('T', 16, 4)
    vXD = al('xd', 2)
    vWD = al('wd', 2)
    vKD = al('kd')
    vKX = al('kx')
    vKW = al('kw')
    XR = al('xr', 10, 2)
    CR = al('cr', 20, 2)
    PF = al('pf', 2)
    AKV = al('akv', 16, 4)
    KXF = al('kxf', 4, 4)
    KWF = al('kwf', 4, 4)
    FX = al('fx', 16, 4)
    RD = al('rd', 48, 4)
    JA = al('ja', 2, 2)
    JS = al('js')
    t0, t1, t2, t3, t4, t5 = T, T + 1, T + 2, T + 3, T + 4, T + 5
    vm = VM()
    a.c('=========== aux wave: phase 1 ===========')
    assert (vXD, vWD, vKD) == (20, 22, 24)

    def dma_group(c, kvonly=False, fill=()):
        st = c % 3
        lab = a.label('nokv')
        a(f'''
        {f's_add_u32 s35, s100, {c}' if ROT else f's_and_b32 s35, s100, {7 if c < 8 else 1}'}
        {'s_sub_u32 s34, s35, 10' if ROT else f's_xor_b32 s35, s35, {c}'}
        {'s_cselect_b32 s35, s35, s34' if ROT else ''}
        s_mul_i32 s33, s32, s35
        s_mul_i32 s34, s35, 2560
        s_lshl_b32 s35, s35, 7
        s_cmp_eq_u32 s40, 0
        s_cbranch_scc1 {lab}
        s_add_u32 m0, s38, {st * 3072}
        s_nop 0
        buffer_load_dwordx4 {v(vKD)}, s[16:19], s34 offen lds
        {lab}:
        ''')
        vm.add(f'c{c}', 1, optional=True)
        if kvonly or (NODMA and c > 2):
            vm.add(f'c{c}', 1, optional=True)
            return
        n = len(fill)

        def gap(q):
            for it in fill[(q * n) // 12:((q + 1) * n) // 12]:
                if callable(it):
                    it = it()
                for ln in ([it] if isinstance(it, str) else it):
                    a(ln)
                    if ln.startswith('buffer_store'):
                        vm.add('st', 1)
                    elif ln.startswith('buffer_load'):
                        vm.add('sl', 1)
        for e in range(4):
            a(f'''
            s_add_u32 m0, s36, {LDS_X + st * 16384 + e * 1024}
            s_add_u32 s34, s35, {(e >> 1) * 16 * 1280}
            buffer_load_dwordx4 {v(vXD + (e & 1))}, s[8:11], s34 offen lds
            ''')
            vm.add(f'c{c}', 1)
            gap(e)
        for e in range(8):
            a(f'''
            s_add_u32 m0, s37, {st * 8192 + e * 1024}
            s_nop 0
            buffer_load_dwordx4 {v(vWD + (e & 1))}, s[12:15], s33 offen lds
            ''')
            vm.add(f'c{c}', 1)
            if e < 7:
                a('s_add_u32 s33, s33, s31')
            gap(4 + e)

    vm.add('c0', 4)
    vm.add('c0', 1, optional=True)
    if not LATE1:
        vm.add('c1', 4)
        vm.add('c1', 1, optional=True)

    def jit(c):
        if not JIT or c > 9:
            return
        lab = a.label('nojit')
        a(f'''
        s_cmp_lg_u32 s26, 3
        s_cbranch_scc1 {lab}
        global_load_dword v165, {v(JA, 2)}, off
        v_add_co_u32 {v(JA)}, vcc, {v(JA)}, {v(JS)}
        s_nop 1
        v_addc_co_u32 {v(JA + 1)}, vcc, 0, {v(JA + 1)}, vcc
        {lab}:
        ''')
        vm.add('jit', 1, optional=True)

    if JIT:
        a(f'v_mov_b32 {v(JA)}, s68\nv_mov_b32 {v(JA + 1)}, s69')
        lab = a.label('nojs')
        a(f'''
        s_cmp_lg_u32 s26, 3
        s_cbranch_scc1 {lab}
        s_lshr_b32 s44, s2, 3
        s_and_b32 s45, s44, 7
        s_lshr_b32 s46, s44, 3
        s_lshl_b32 s46, s46, 5
        s_lshl_b32 s47, s27, 7
        s_add_u32 s46, s46, s47
        v_add_u32 {v(t0)}, s46, {v(vR)}
        v_mul_u32_u24 {v(t0)}, 1280, {v(t0)}
        v_add_u32 {v(t0)}, {128 * JIT}, {v(t0)}
        v_bfe_u32 {v(t1)}, {v(vL)}, 3, 1
        v_bfe_u32 {v(t2)}, {v(vL)}, 4, 1
        v_and_b32 {v(t3)}, s48, {v(t1)}
        v_cmp_eq_u32 s[58:59], 1, {v(t3)}
        v_cmp_eq_u32 s[60:61], 1, {v(t2)}
        v_mov_b32 {v(t4)}, 3456
        v_mov_b32 {v(t5)}, 1280
        v_cndmask_b32 {v(t4)}, {v(t4)}, {v(t5)}, s[58:59]
        s_xor_b32 s44, s48, 1
        v_and_b32 {v(t5)}, s44, {v(t1)}
        v_lshlrev_b32 {v(t5)}, 6, {v(t5)}
        v_add_u32 {v(t5)}, s49, {v(t5)}
        v_lshlrev_b32 {v(t3)}, 6, {v(t2)}
        v_add_u32 {v(t3)}, s50, {v(t3)}
        v_cndmask_b32 {v(t5)}, {v(t5)}, {v(t3)}, s[58:59]
        s_lshl_b32 s45, s45, 3
        s_add_u32 s45, s45, {64 * JIT}
        v_and_b32 {v(t3)}, 7, {v(vL)}
        v_add_u32 {v(t3)}, s45, {v(t3)}
        v_mul_lo_u32 {v(t3)}, {v(t3)}, {v(t4)}
        v_lshl_add_u32 {v(t3)}, {v(t5)}, 1, {v(t3)}
        v_cndmask_b32 {v(t0)}, {v(t0)}, {v(t3)}, {HM}
        v_lshlrev_b32 {v(t4)}, 6, {v(t4)}
        v_mov_b32 {v(t5)}, 128
        v_cndmask_b32 {v(JS)}, {v(t5)}, {v(t4)}, {HM}
        ''')
        for z in range(2):
            a(f'''
            v_mov_b32 {v(t1)}, s{80 + z}
            v_mov_b32 {v(t2)}, s{82 + z}
            v_cndmask_b32 {v(t1)}, {v(t1)}, {v(t2)}, s[60:61]
            v_mov_b32 {v(t2)}, s{70 + z}
            v_cndmask_b32 {v(t1)}, {v(t1)}, {v(t2)}, s[58:59]
            v_mov_b32 {v(t2)}, s{68 + z}
            v_cndmask_b32 {v(JA + z)}, {v(t2)}, {v(t1)}, {HM}
            ''')
        a(f'''
        v_add_co_u32 {v(JA)}, vcc, {v(JA)}, {v(t0)}
        s_nop 1
        v_addc_co_u32 {v(JA + 1)}, vcc, 0, {v(JA + 1)}, vcc
        {lab}:
        ''')
        for c in range(JIT, JITD):
            jit(c)
    srd(a, 4, 76, 256)
    lab = a.label('nononce')
    a(f'''
    s_or_b32 s44, s2, s26
    s_cmp_lg_u32 s44, 0
    s_cbranch_scc1 {lab}
    s_memrealtime s[44:45]
    s_waitcnt lgkmcnt(0)
    s_or_b32 s44, s44, 1
    v_mov_b32 {v(t0)}, s44
    s_mov_b64 exec, 1
    buffer_store_dword {v(t0)}, off, s[4:7], 0 sc1
    s_mov_b64 exec, -1
    {lab}:
    ''')
    vm.add('nonce', 1, optional=True)
    a(f'''
    s_and_b32 s56, s28, 3
    v_lshrrev_b32 {v(t0)}, 1, {v(vR)}
    v_and_b32 {v(t0)}, 7, {v(t0)}
    v_xor_b32 {v(t0)}, {v(t0)}, {v(vH)}
    s_lshl_b32 s44, s26, 1
    v_xor_b32 {v(t0)}, s44, {v(t0)}
    v_lshlrev_b32 {v(t3)}, 7, {v(vR)}
    v_lshl_add_u32 {v(t0)}, {v(t0)}, 4, {v(t3)}
    s_lshl_b32 s44, s56, 12
    v_add_u32 {v(vKX)}, s44, {v(t0)}
    v_bfe_u32 {v(t0)}, {v(vL)}, 2, 2
    v_lshl_add_u32 {v(t0)}, {v(vH)}, 3, {v(t0)}
    v_mul_u32_u24 {v(t0)}, 40, {v(t0)}
    v_bfe_u32 {v(t3)}, {v(vL)}, 4, 1
    v_and_b32 {v(t4)}, 3, {v(vL)}
    v_lshl_add_u32 {v(t3)}, {v(t3)}, 2, {v(t4)}
    v_min_u32 {v(t3)}, 4, {v(t3)}
    v_lshl_add_u32 {v(t0)}, {v(t3)}, 3, {v(t0)}
    s_mul_i32 s44, s26, 640
    s_add_u32 s44, s44, {LDS_KV}
    v_add_u32 {v(vKW)}, s44, {v(t0)}
    ''')
    for i in range(16):
        a(f'v_mov_b32 {v(AKV + i)}, 0')

    if LATE1:
        a_start(1)
        vm.add('c1', 4)
        vm.add('c1', 1, optional=True)

    def colsum(src_tag_wait, store_code):
        a(f's_waitcnt vmcnt({src_tag_wait})')
        a(f'''
        v_lshlrev_b32 {v(t0)}, 16, {v(CR)}
        v_and_b32 {v(t1)}, 0xffff0000, {v(CR)}
        ''')
        for t in range(1, 20):
            a(f'''
            v_lshlrev_b32 {v(t2)}, 16, {v(CR + t)}
            v_and_b32 {v(t3)}, 0xffff0000, {v(CR + t)}
            v_add_f32 {v(t0)}, {v(t0)}, {v(t2)}
            v_add_f32 {v(t1)}, {v(t1)}, {v(t3)}
            ''')
        a(f'''
        s_nop 1
        v_permlane32_swap_b32 {v(t0)}, {v(t1)}
        s_nop 1
        v_add_f32 {v(t0)}, {v(t0)}, {v(t1)}
        v_cvt_pk_bf16_f32 {v(t1)}, {v(t0)}, {v(t0)}
        v_and_b32 {v(t1)}, 0xffff0000, {v(t1)}
        v_sub_f32 {v(t1)}, {v(t0)}, {v(t1)}
        v_cvt_pk_bf16_f32 {v(t0)}, {v(t0)}, {v(t1)}
        ''')
        store_code()

    a('''
    s_lshl_b32 s41, s27, 10
    s_and_b32 s44, s28, 11
    s_cmp_eq_u32 s44, 0
    s_cselect_b32 s42, 1, 0
    s_cmp_eq_u32 s26, 3
    s_cselect_b32 s42, s42, 0
    ''')

    lines, load_cs, load_rows, fill_cs, fill_rows = stat_code(vL, vH, vR, RD, XR, RD + 20, RD + 28, RD + 36, 's43', 's101')
    PZ, pa, pb = RD + 40, RD + 44, RD + 45
    poison = [f'v_mov_b32 {v(PZ + q)}, -1' for q in range(4)] + lines(f'''
    v_lshlrev_b32 {v(pa)}, 4, {v(vL)}
    v_lshlrev_b32 {v(pb)}, 3, {v(vL)}
    s_lshr_b32 s44, s30, 2
    s_lshl_b32 s46, s29, 1
    s_add_u32 s46, s46, s44
    s_mul_i32 s46, s46, 40960
    s_and_b32 s44, s30, 3
    s_lshl_b32 s44, s44, 2
    s_add_u32 s44, s44, s26
    s_lshl_b32 s45, s44, 11
    s_add_u32 s45, s45, s46
    s_add_u32 s45, s45, {OF_OFF}
    buffer_store_dwordx4 {v(PZ, 4)}, {v(pa)}, s[20:23], s45 offen sc1
    buffer_store_dwordx4 {v(PZ, 4)}, {v(pa)}, s[20:23], s45 offen offset:1024 sc1
    s_lshl_b32 s45, s44, 9
    s_add_u32 s45, s45, s46
    s_add_u32 s45, s45, {OF_OFF + 32768}
    buffer_store_dwordx2 {v(PZ, 2)}, {v(pb)}, s[20:23], s45 offen sc1
    s_mul_i32 s44, s27, 163840
    s_mul_i32 s45, s28, 10240
    s_add_u32 s44, s44, s45
    s_mul_i32 s45, s26, 2560
    s_add_u32 s44, s44, s45
    s_add_u32 s44, s44, {QF_OFF}
    buffer_store_dwordx4 {v(PZ, 4)}, {v(pa)}, s[20:23], s44 offen sc1
    buffer_store_dwordx4 {v(PZ, 4)}, {v(pa)}, s[20:23], s44 offen offset:1024 sc1
    buffer_store_dwordx2 {v(PZ, 2)}, {v(pb)}, s[20:23], s44 offen offset:2048 sc1
    ''')
    afill = {}
    if AST:
        wait_sl = lambda: f's_waitcnt vmcnt({vm.wait("sl")})'
        comp0 = [wait_sl] + fill_rows() + fill_cs()
        comp = []
        for it in comp0:
            if comp and isinstance(comp[-1], str) and comp[-1].startswith('s_cmp'):
                comp[-1] = [comp[-1], it]
            else:
                comp.append(it)
        afill[0] = load_rows() + load_cs() + (poison if APZ == 0 else [])
        nC = len(comp)
        for q in range(ASP):
            afill[ASS + q] = comp[(q * nC) // ASP:((q + 1) * nC) // ASP]
        if APZ:
            afill[APZ] = poison + afill.get(APZ, [])
    AFL = ASS + ASP + 1
    if AST == 2:
        def glue(l):
            o = []
            for it in l:
                if o and isinstance(o[-1], str) and o[-1].startswith('s_cmp'):
                    o[-1] = [o[-1], it]
                else:
                    o.append(it)
            return o

        def merge(x, y):
            o = []
            n = max(len(x), 1)
            k = 0
            for q, it in enumerate(x):
                o.append(it)
                while k < len(y) and k * n < (q + 1) * len(y):
                    o.append(y[k])
                    k += 1
            return o + y[k:]
        cs = glue(fill_cs())
        ksp = poison.index('s_mul_i32 s44, s27, 163840')
        pO, pQ = poison[:ksp], poison[ksp:]
        h_ = len(cs) * 3 // 5
        rows_wait = lambda: f's_waitcnt vmcnt({vm.wait("sl")})'
        afill = {0: load_rows(), 1: load_cs()[:7] + [rows_wait] + merge(fill_rows(), load_cs()[7:]),
                 2: [rows_wait] + cs[:h_] + pO[:6] + pQ, 3: cs[h_:] + pO[6:]}
        AFL = 5

    def kv_step(c, part):
        st = c % 3
        lab = a.label('kvs')
        a(f's_cmp_eq_u32 s54, 0\ns_cbranch_scc1 {lab}')
        if part == 0:
            a(f'''
            ds_read_b128 {v(KXF, 4)}, {v(vKX)} offset:{LDS_X + st * 16384}
            ds_read_b64_tr_b16 {v(KWF, 2)}, {v(vKW)} offset:{st * 3072}
            ds_read_b64_tr_b16 {v(KWF + 2, 2)}, {v(vKW)} offset:{st * 3072 + 160}
            ''')
        else:
            a('s_waitcnt lgkmcnt(0)')
            a(mfma16(AKV, KWF, KXF, AKV))
        a(f'{lab}:')

    for c in range(10):
        a.c(f'aux chunk {c}')
        if c == 0:
            stamp(a, 22)
        if c <= 8:
            nw_ = vm.wait(f'c{c}')
            if c == 5:
                nw_ = min(nw_, vm.wait('kst'), vm.wait('nl'))
            if AST and c == AFL:
                nw_ = min(nw_, vm.wait('st'), vm.wait('nl'))
            a(f's_waitcnt vmcnt({nw_})')
        else:
            a('s_waitcnt vmcnt(0)')
        a('s_barrier')
        if not FEWST or c in (0, 1, 2, 9):
            stamp(a, 1 + c)
        if asmlib.STAMPS:
            vm.add('stamp', 1, optional=True)
        if c == (AFL - 2 if AST else 3):
            a(f'buffer_load_dword {v(PF)}, off, s[4:7], 0 sc1')
            vm.add('nl', 1)
        kv_step(c, 0)
        if c == P3C:
            lab = a.label('nop3')
            a(f'''
            v_lshlrev_b32 {v(T + 8)}, 3, {v(vL)}
            v_lshlrev_b32 {v(T + 10)}, 7, {v(vL)}
            v_and_b32 {v(T + 11)}, 0x780, {v(T + 10)}
            s_cmp_lg_u32 s26, 3
            s_cbranch_scc1 {lab}
            s_lshl_b32 s44, s27, 13
            s_add_u32 s44, s44, {F_ST}
            s_lshl_b32 s45, s28, 13
            s_add_u32 s45, s45, {F_CS}
            s_and_b32 s58, s28, 4
            s_lshl_b32 s58, s58, 9
            s_add_u32 s58, s58, {F_KC}
            ''')
            a(f'''
            s_mov_b32 s60, s44
            s_mov_b32 s61, s45
            s_lshr_b32 s59, s29, 1
            s_lshl_b32 s59, s59, 13
            s_add_u32 s59, s59, {F_ST}
            buffer_load_dwordx2 {v(FX + 6, 2)}, {v(T + 10)}, s[20:23], s59 offen sc1
            s_add_u32 s57, s27, 1
            s_and_b32 s57, s57, 15
            s_lshl_b32 s57, s57, 13
            s_add_u32 s57, s57, {F_ST}
            buffer_load_dwordx2 {v(FX + 8, 2)}, {v(T + 10)}, s[20:23], s57 offen sc1
            buffer_load_dwordx2 {v(FX, 2)}, {v(T + 10)}, s[20:23], s60 offen sc1
            buffer_load_dwordx2 {v(FX + 2, 2)}, {v(T + 10)}, s[20:23], s61 offen sc1
            buffer_load_dwordx2 {v(FX + 4, 2)}, {v(T + 11)}, s[20:23], s58 offen sc1
            {lab}:
            ''')
        jit(c + JITD)
        if (1 if EARLY2 else 0) <= c and c + 2 < 10:
            if AST and c == ASS:
                a('s_setprio 0')
            dma_group(c + 2, fill=afill.get(c, ()))
            if AST and c == AFL - 2:
                a(f's_setprio {PRIO1}')
        kv_step(c, 1)
        if c == P3C:
            lab = a.label('nop3b')
            a(f'''
            s_cmp_lg_u32 s26, 3
            s_cbranch_scc1 {lab}
            s_waitcnt vmcnt(12)
            v_cmp_eq_u64 vcc, s[98:99], {v(FX, 2)}
            v_cmp_eq_u64 s[46:47], s[98:99], {v(FX + 2, 2)}
            v_cmp_eq_u64 s[44:45], s[98:99], {v(FX + 4, 2)}
            v_cmp_eq_u64 s[48:49], s[98:99], {v(FX + 6, 2)}
            v_cmp_eq_u64 s[50:51], s[98:99], {v(FX + 8, 2)}
            s_nop 1
            s_and_b64 vcc, vcc, s[50:51]
            s_and_b64 vcc, vcc, s[46:47]
            s_and_b64 vcc, vcc, s[44:45]
            s_and_b64 vcc, vcc, s[48:49]
            s_cmp_eq_u64 vcc, -1
            s_cbranch_scc1 {lab}
            ''')
            polln(a, FX, [T + 10, T + 10, T + 11], [('s60', None), ('s61', None), ('s58', None)], 4)
            polln(a, FX, [T + 10, T + 10], [('s59', None), ('s57', None)], 4)
            a(f'{lab}:')
        if c == 2:
            lab = a.label('nokvcs')
            a(f'''
            s_cmp_eq_u32 s42, 0
            s_cbranch_scc1 {lab}
            s_mul_i32 s44, s27, 40
            v_add_u32 {v(t1)}, s44, {v(vH)}
            v_mul_u32_u24 {v(t2)}, 40, {v(t1)}
            v_lshl_add_u32 {v(t2)}, {v(vR)}, 2, {v(t2)}
            ''')
            for t in range(20):
                a(f'buffer_load_dword {v(CR + t)}, {v(t2)}, s[16:19], 0 offen offset:{80 * t}')
            a(f'{lab}:')
            vm.add('kcr', 20, optional=True)
        if c == 3:
            lab = a.label('nokvcs2')
            a(f's_cmp_eq_u32 s42, 0\ns_cbranch_scc1 {lab}')

            def kcs_store():
                a(f'''
                v_lshl_add_u32 {v(t1)}, {v(vR)}, 1, {v(vH)}
                v_lshlrev_b32 {v(t2)}, 2, {v(t1)}
                v_mov_b32 {v(t3)}, 0x7f000000
                v_cmp_gt_u32 vcc, 32, {v(t1)}
                s_lshl_b32 s44, s28, 9
                s_lshl_b32 s45, s27, 7
                s_add_u32 s44, s44, s45
                s_add_u32 s44, s44, {CSKVW}
                v_cndmask_b32 {v(t2)}, {v(t3)}, {v(t2)}, vcc
                buffer_store_dword {v(t0)}, {v(t2)}, s[20:23], s44 offen sc1
                ''')
            colsum(vm.wait('kcr'), kcs_store)
            a(f'{lab}:')
            vm.add('kst', 1, optional=True)
        if c == (AFL if AST else 5):
            Lp = a.label('np')
            Lq = a.label('npd')
            Lr = a.label('nokcf')
            a(f'''
            s_mov_b32 s93, {POLL_MAX}
            {Lp}:
            v_readfirstlane_b32 s98, {v(PF)}
            s_cmp_lg_u32 s98, 0
            s_cbranch_scc1 {Lq}
            s_sub_u32 s93, s93, 1
            s_cbranch_scc1 {Lq}
            buffer_load_dword {v(PF)}, off, s[4:7], 0 sc1
            s_waitcnt vmcnt(0)
            s_branch {Lp}
            {Lq}:
            s_xor_b32 s99, s98, {NONCE_X}
            ''')
            if AST:
                flag_store(a, 's43', T + 2)
                flag_store(a, 's101', T + 2)
                lab = a.label('noxid')
                a(f'''
                s_cmp_lg_u32 s26, 0
                s_cbranch_scc1 {lab}
                v_mov_b32 {v(T)}, {NONCE_A}
                ds_write_b32 {v(T)}, {v(T + 2)}
                s_getreg_b32 s44, hwreg(HW_REG_XCC_ID, 0, 4)
                s_lshl_b32 s45, s29, 7
                s_lshl_b32 s46, s30, 3
                s_add_u32 s45, s45, s46
                s_add_u32 s45, s45, {F_X}
                v_mov_b32 {v(T + 3)}, s44
                s_mov_b64 exec, 1
                buffer_store_dwordx2 {v(T + 2, 2)}, off, s[20:23], s45 sc1
                s_mov_b64 exec, -1
                s_waitcnt lgkmcnt(0)
                {lab}:
                ''')
                vm.add('fl', 2)
                vm.add('fl', 1, optional=True)
        if c == 5:
            Lr = a.label('nokcf')
            a(f'''
            s_lshl_b32 s44, s28, 9
            s_lshl_b32 s45, s27, 7
            s_add_u32 s44, s44, s45
            s_add_u32 s44, s44, {F_KC}
            s_cmp_eq_u32 s42, 0
            s_cbranch_scc1 {Lr}
            ''')
            flag_store(a, 's44', T + 2)
            a(f'{Lr}:')
            vm.add('fl', 1, optional=True)
        if P1PF and c in (6, 7):
            if c == 6:
                srd(a, 4, WDP, 2211840)
                a(f'''
                s_lshr_b32 s44, s2, 6
                s_mul_i32 s44, s44, {432 * 1280}
                s_bfe_u32 s45, s2, 0x30003
                s_mul_i32 s45, s45, {180 * 128}
                s_add_u32 s44, s44, s45
                s_mul_i32 s45, s26, {45 * 128}
                s_add_u32 s57, s44, s45
                v_lshlrev_b32 {v(PF + 1)}, 7, {v(vL)}
                ''')
            for z in range(2 if c == 6 else 1):
                a(f'''
                s_mov_b32 exec_hi, {(1 << 13) - 1}
                buffer_load_dword v165, {v(PF + 1)}, s[4:7], s57 offen
                s_mov_b32 exec_hi, -1
                s_add_u32 s57, s57, {144 * 1280}
                ''')
                vm.add('pf', 1)
        if c == 8:
            a(f'''
            v_lshlrev_b32 {v(T + 9)}, 4, {v(vL)}
            s_lshl_b32 s44, s28, 14
            s_lshl_b32 s45, s26, 12
            s_add_u32 s44, s44, s45
            s_add_u32 s44, s44, {CSW}
            ''')
            for e in range(4):
                a(f'''
                s_add_u32 m0, s45, {CS_A + 1024 * e}
                s_nop 0
                buffer_load_dwordx4 {v(T + 9)}, s[20:23], s44 offen{LD} lds
                s_add_u32 s44, s44, 1024
                ''')
            lab = a.label('norc')
            a(f'''
            s_cmp_lg_u32 s26, 0
            s_cbranch_scc1 {lab}
            s_lshl_b32 s44, s27, 11
            s_add_u32 s44, s44, {ROWW}
            s_mov_b32 m0, {ROWC_A}
            s_and_b32 s45, s28, 4
            buffer_load_dwordx4 {v(T + 9)}, s[20:23], s44 offen{LD} lds
            buffer_load_dwordx4 {v(T + 9)}, s[20:23], s44 offen offset:1024{LD} lds
            s_lshl_b32 s45, s45, 9
            s_add_u32 s45, s45, {CSKVW}
            s_mov_b32 m0, {CSKV_A}
            s_nop 0
            buffer_load_dwordx4 {v(T + 9)}, s[20:23], s45 offen{LD} lds
            buffer_load_dwordx4 {v(T + 9)}, s[20:23], s45 offen offset:1024{LD} lds
            {lab}:
            ''')
    L_p2 = a.label('auxp2')
    L_v = a.label('vepi')
    L_a0 = a.label('aux0f')
    lab = a.label('nokvfin')
    lab2 = a.label('nofix')
    a(f'''
    s_cmp_eq_u32 s54, 0
    s_cbranch_scc1 {lab}
    s_cmp_lg_u32 s26, 0
    s_cbranch_scc1 {lab2}
    s_lshl_b32 s44, s56, 9
    s_add_u32 s44, s44, {ROWC_A}
    v_lshl_add_u32 {v(t0)}, {v(vR)}, 4, s44
    v_lshlrev_b32 {v(t1)}, 2, {v(vR)}
    v_lshl_add_u32 {v(t1)}, {v(vH)}, 9, {v(t1)}
    v_add_u32 {v(t1)}, {CSKV_A}, {v(t1)}
    v_add_u32 {v(t2)}, 1024, {v(t1)}
    ds_read_b128 {v(FX, 4)}, {v(t0)}
    ds_read2_b32 {v(FX + 8, 2)}, {v(t1)} offset0:0 offset1:32
    ds_read2_b32 {v(FX + 10, 2)}, {v(t1)} offset0:64 offset1:96
    ds_read2_b32 {v(FX + 12, 2)}, {v(t2)} offset0:0 offset1:32
    ds_read2_b32 {v(FX + 14, 2)}, {v(t2)} offset0:64 offset1:96
    s_waitcnt lgkmcnt(4)
    v_mov_b32 {v(FX + 4)}, {v(FX)}
    v_mov_b32 {v(FX + 5)}, {v(FX)}
    v_mov_b32 {v(FX + 6)}, {v(FX)}
    v_mov_b32 {v(FX + 7)}, {v(FX)}
    s_waitcnt lgkmcnt(0)
    s_nop 1
    {mfma16(AKV, FX + 8, FX + 4, AKV)}
    {mfma16(AKV, FX + 12, FX + 4, AKV)}
    s_branch {L_a0}
    {lab2}:
    s_lshl_b32 s44, s26, 12
    v_add_u32 {v(t0)}, s44, {v(T + 9)}
    s_lshl_b32 s44, s26, 2
    s_add_u32 s44, s44, {PD_A}
    v_mov_b32 {v(t1)}, s44
    v_mov_b32 {v(t2)}, s98
    s_nop 11
    ''')
    for q in range(3):
        a(f'ds_write_b128 {v(t0)}, {v(AKV + 4 * q, 4)} offset:{PART_A + 1024 * q}')
    L_sp = a.label('pspin')
    L_spd = a.label('pspind')
    a(f'''
    s_waitcnt lgkmcnt(0)
    ds_write_b32 {v(t1)}, {v(t2)}
    {lab}:
    s_branch {L_p2}
    {L_a0}:
    v_mov_b32 {v(t1)}, {PD_A}
    s_mov_b32 s93, {POLL_MAX * 8}
    {L_sp}:
    ds_read_b128 {v(T + 4, 4)}, {v(t1)}
    s_waitcnt lgkmcnt(0)
    v_xor_b32 {v(T + 5)}, s98, {v(T + 5)}
    v_xor_b32 {v(T + 6)}, s98, {v(T + 6)}
    v_xor_b32 {v(T + 7)}, s98, {v(T + 7)}
    v_or3_b32 {v(T + 5)}, {v(T + 5)}, {v(T + 6)}, {v(T + 7)}
    s_nop 0
    v_readfirstlane_b32 s44, {v(T + 5)}
    s_cmp_eq_u32 s44, 0
    s_cbranch_scc1 {L_spd}
    s_sub_u32 s93, s93, 1
    s_cbranch_scc0 {L_sp}
    {L_spd}:
    ''')
    stamp(a, 12)
    for w in range(1, 4):
        for q in range(3):
            a(f'ds_read_b128 {v(RD + 12 * (w - 1) + 4 * q, 4)}, {v(T + 9)} offset:{PART_A + 4096 * w + 1024 * q}')
    a(f'''
    s_lshl_b32 s57, s27, 2
    s_add_u32 s57, s57, s56
    s_lshr_b32 s44, s57, 1
    s_mul_i32 s44, s44, 7168
    s_add_u32 s44, s44, {KV_OFF}
    s_and_b32 s45, s57, 1
    s_and_b32 s58, s28, 4
    s_lshl_b32 s58, s58, 4
    s_add_u32 s58, s58, s57
    s_lshl_b32 s58, s58, 7
    s_add_u32 s58, s58, {F_KV}
    s_waitcnt lgkmcnt(0)
    ''')
    for i in range(12):
        a(f'v_add_f32 {v(AKV + i)}, {v(AKV + i)}, {v(RD + i)}')
        a(f'v_add_f32 {v(RD + 12 + i)}, {v(RD + 12 + i)}, {v(RD + 24 + i)}')
    for i in range(12):
        a(f'v_add_f32 {v(AKV + i)}, {v(AKV + i)}, {v(RD + 12 + i)}')
    for i in range(12):
        a(f'v_mul_f32 {v(AKV + i)}, {v(AKV + i)}, {v(FX + 1)}')
    PK = RD
    for i in range(6):
        a(f'v_cvt_pk_bf16_f32 {v(PK + i)}, {v(AKV + 2 * i)}, {v(AKV + 2 * i + 1)}')
    L_kvf = a.label('kvflag')
    a(f'''
    s_bitcmp1_b32 s28, 2
    s_cbranch_scc1 {L_v}
    v_mov_b32 {v(t0)}, 0x3f803f80
    v_mov_b32 {v(t1)}, 0x00003f80
    v_cndmask_b32 {v(PK + 4)}, {v(PK + 4)}, {v(t0)}, {HM}
    v_cndmask_b32 {v(PK + 5)}, {v(PK + 5)}, {v(t1)}, {HM}
    s_lshl_b32 s46, s45, 10
    s_add_u32 s46, s46, s44
    s_lshl_b32 s47, s45, 9
    s_add_u32 s47, s47, s44
    buffer_store_dwordx4 {v(PK, 4)}, {v(T + 9)}, s[20:23], s46 offen sc1
    buffer_store_dwordx2 {v(PK + 4, 2)}, {v(T + 8)}, s[20:23], s47 offen offset:2048 sc1
    s_branch {L_kvf}
    {L_v}:
    v_mov_b32 {v(t0)}, 0
    v_cndmask_b32 {v(PK + 4)}, {v(PK + 4)}, {v(t0)}, {HM}
    v_cndmask_b32 {v(PK + 5)}, {v(PK + 5)}, {v(t0)}, {HM}
    v_mov_b32 {v(PK + 6)}, 0x00003f80
    v_mov_b32 {v(PK + 7)}, 0
    v_lshlrev_b32 {v(t0)}, 6, {v(vR)}
    v_lshl_add_u32 {v(t0)}, {v(vH)}, 3, {v(t0)}
    ds_write_b64 {v(t0)}, {v(PK, 2)} offset:{VT_A}
    ds_write_b64 {v(t0)}, {v(PK + 2, 2)} offset:{VT_A + 16}
    ds_write_b64 {v(t0)}, {v(PK + 4, 2)} offset:{VT_A + 32}
    ds_write_b64 {v(t0)}, {v(PK + 6, 2)} offset:{VT_A + 48}
    v_bfe_u32 {v(t1)}, {v(vL)}, 2, 2
    v_lshl_add_u32 {v(t1)}, {v(vH)}, 2, {v(t1)}
    v_lshlrev_b32 {v(t1)}, 6, {v(t1)}
    v_bfe_u32 {v(t2)}, {v(vL)}, 4, 1
    v_lshl_add_u32 {v(t1)}, {v(t2)}, 5, {v(t1)}
    v_and_b32 {v(t2)}, 3, {v(vL)}
    v_lshl_add_u32 {v(t1)}, {v(t2)}, 3, {v(t1)}
    s_waitcnt lgkmcnt(0)
    ds_read_b64_tr_b16 {v(PK + 8, 2)}, {v(t1)} offset:{VT_A}
    ds_read_b64_tr_b16 {v(PK + 10, 2)}, {v(t1)} offset:{VT_A + 512}
    ds_read_b64_tr_b16 {v(PK + 12, 2)}, {v(t1)} offset:{VT_A + 1024}
    ds_read_b64_tr_b16 {v(PK + 14, 2)}, {v(t1)} offset:{VT_A + 1536}
    s_lshl_b32 s46, s45, 11
    s_add_u32 s46, s46, s44
    s_add_u32 s46, s46, 3072
    s_waitcnt lgkmcnt(0)
    buffer_store_dwordx4 {v(PK + 8, 4)}, {v(T + 9)}, s[20:23], s46 offen sc1
    buffer_store_dwordx4 {v(PK + 12, 4)}, {v(T + 9)}, s[20:23], s46 offen offset:1024 sc1
    {L_kvf}:
    s_waitcnt vmcnt(0)
    ''')
    flag_store(a, 's58', T + 2)
    a(f'{L_p2}:')
    stamp(a, 13)

    a.c('=========== aux wave: phase 2 ===========')
    al = Alloc(4, 164)
    T = al('T', 8, 4)
    vWD = al('wd', 3)
    vWA = al('wa', 3)
    vHL = al('hl')
    vKO = al('ko')
    vPF = al('pf')
    ACC = al('acc', 80, 4)
    SL = al('slots', 60, 4)
    wreg = lambda k: SL + 20 * (k % 3)
    hreg = lambda k: SL + 20 * (k % 3) + 12
    a(f's_setprio {PRIO2}')
    g2_ids(a)
    srd(a, 12, WDP, 2211840)
    srd(a, 16, 84, 819200)
    a(f"""
    s_mul_i32 s44, s26, 27
    s_mul_i32 s41, s59, 108
    s_add_u32 s41, s41, s44
    s_lshl_b32 s41, s41, 10
    s_mul_i32 s42, s60, 108
    s_add_u32 s42, s42, s44
    s_lshl_b32 s42, s42, 10
    s_lshr_b32 s43, s44, 1
    s_mul_i32 s43, s43, 40960
    s_and_b32 s45, s44, 1
    s_mul_i32 s52, s45, 10240
    s_add_u32 s43, s43, s52
    s_mul_i32 s52, s45, 20480
    s_add_u32 s52, s52, 10240
    s_mov_b32 s48, 40960
    s_lshl_b32 s44, s26, 3
    s_mul_i32 s56, s44, 25600
    s_mul_i32 s54, s59, 40
    s_add_u32 s54, s54, s44
    s_lshl_b32 s54, s54, 10
    s_add_u32 s54, s54, {OF_OFF}
    s_mul_i32 s55, s60, 40
    s_add_u32 s55, s55, s44
    s_lshl_b32 s55, s55, 10
    s_add_u32 s55, s55, {OF_OFF}
    s_and_b32 s44, s26, 1
    s_mul_i32 s39, s44, 21504
    s_lshr_b32 s44, s26, 1
    s_mul_i32 s44, s44, {WO_HI}
    s_add_u32 s39, s39, s44
    s_mov_b32 s40, s39
    s_mov_b32 s45, 0x15556
    v_lshlrev_b32 {v(vHL)}, 4, {v(vL)}
    v_lshlrev_b32 {v(vPF)}, 7, {v(vL)}
    s_lshl_b32 s36, s26, 12
    s_min_u32 s36, s36, 11264
    v_add_u32 {v(vKO)}, s36, {v(vHL)}
    """)
    for p in range(3):
        a(f"""
        v_add_u32 {v(T)}, {64 * p}, {v(vL)}
        v_mul_lo_u32 {v(T + 1)}, {v(T)}, s45
        v_lshrrev_b32 {v(T + 1)}, 20, {v(T + 1)}
        v_mul_u32_u24 {v(T + 2)}, 12, {v(T + 1)}
        v_sub_u32 {v(T + 2)}, {v(T)}, {v(T + 2)}
        v_and_b32 {v(T)}, 8, {v(T + 1)}
        v_add_u32 {v(T + 1)}, {v(T + 1)}, {v(T)}
        v_mul_u32_u24 {v(T + 1)}, 1280, {v(T + 1)}
        v_lshl_add_u32 {v(T + 1)}, {v(T + 2)}, 4, {v(T + 1)}
        v_add_u32 {v(vWD + p)}, s61, {v(T + 1)}
        """)
    a(f"""
    v_bfe_u32 {v(T)}, {v(vL)}, 2, 2
    v_lshl_add_u32 {v(T)}, {v(vH)}, 2, {v(T)}
    v_mul_u32_u24 {v(T)}, 192, {v(T)}
    v_bfe_u32 {v(T + 1)}, {v(vL)}, 4, 1
    v_lshl_add_u32 {v(T)}, {v(T + 1)}, 5, {v(T)}
    v_and_b32 {v(T + 1)}, 3, {v(vL)}
    v_lshl_add_u32 {v(T)}, {v(T + 1)}, 3, {v(T)}
    v_add_u32 {v(T)}, s39, {v(T)}
    s_lshl_b32 s44, s58, 6
    s_add_u32 s45, s44, 64
    s_lshl_b32 s46, s58, 7
    s_sub_u32 s46, 128, s46
    v_add_u32 {v(vWA)}, s44, {v(T)}
    v_add_u32 {v(vWA + 1)}, s45, {v(T)}
    v_add_u32 {v(vWA + 2)}, s46, {v(T)}
    """)
    vm = VM()

    def w_dma(base, off):
        out = []
        for p in range(3):
            out.append([f's_add_u32 m0, {base}, {off + p * 1024}', 's_nop 0',
                        f'buffer_load_dwordx4 {v(vWD + p)}, s[12:15], s43 offen lds'])
        out[2] += ['s_add_u32 s43, s43, s52', 's_sub_u32 s52, s48, s52']
        return out

    def h_ld(k, e):
        hs = ('s41', 's42')[e]
        return [f'buffer_load_dwordx4 {v(hreg(k) + 4 * e, 4)}, {v(vHL)}, s[20:23], {hs} offen', f's_add_u32 {hs}, {hs}, 1024']

    def w_rd(k, off):
        return [f'ds_read_b64_tr_b16 {v(wreg(k) + 4 * b + 2 * t, 2)}, {v(vWA + b)} offset:{off + 1536 * t}'
                for b in range(3) for t in range(2)]

    def g_mfmas(k):
        return [mfma16(ACC + 16 * n, wreg(k) + 4 * b, hreg(k) + 4 * e, ACC + 16 * n)
                for n, (b, e) in enumerate(((0, 0), (0, 1), (1, 0), (1, 1), (2, 0)))]

    KVADV = f's_add_u32 s38, s38, {CH_BYTES}\ns_cmp_eq_u32 s38, {KV_OFF + 16 * CH_BYTES}\ns_cselect_b32 s38, {KV_OFF}, s38'

    def kv_dma(c, fl_=''):
        st = c % NST
        lab = a.label('kv3')
        a(f's_cmp_ge_u32 s26, 2\ns_cbranch_scc1 {lab}')
        for e in (3, 0, 1, 2):
            a(f"""
            s_add_u32 m0, s36, {KVR + st * CH_BYTES + e * 1024}
            s_add_u32 s45, s38, {e * 1024}
            buffer_load_dwordx4 {v(vKO)}, s[20:23], s45 offen{fl_} lds
            """)
            if e == 3:
                a(f'{lab}:')
        a(KVADV)
        vm.add(f'kv{c}', 1, optional=True)
        vm.add(f'kv{c}', 3)

    for i in range(80):
        a(f'v_mov_b32 {v(ACC + i)}, 0')
    srd(a, 4, WDP, 2211840)
    a(f'''
    s_lshr_b32 s44, s2, 6
    s_mul_i32 s44, s44, {432 * 1280}
    s_bfe_u32 s45, s2, 0x30003
    s_lshl_b32 s45, s45, 2
    s_add_u32 s45, s45, s26
    s_mul_i32 s45, s45, {15 * 128}
    s_add_u32 s32, s44, s45
    s_mov_b32 s31, {48 * 1280}
    ''')

    a(f'''
    s_lshr_b32 s45, s30, 2
    s_lshl_b32 s46, s29, 1
    s_add_u32 s45, s45, s46
    s_mul_i32 s45, s45, 108
    s_and_b32 s46, s30, 3
    s_mul_i32 s46, s46, 27
    s_add_u32 s45, s45, s46
    s_lshl_b32 s45, s45, 10
    s_mul_i32 s46, s26, {6 * 128}
    s_add_u32 s45, s45, s46
    s_add_u32 s49, s45, 3072
    ''')

    def paced_h():
        if not PCH:
            return
        a(f'''
        s_mov_b64 exec, 0x3f
        buffer_load_dword v165, {v(vPF)}, s[20:23], s49 offen
        s_mov_b64 exec, -1
        s_add_u32 s49, s49, 3072
        ''')

    def paced():
        if not PCW:
            return
        a(f'''
        s_mov_b64 exec, 0x7fff
        buffer_load_dword v165, {v(vPF)}, s[4:7], s32 offen
        s_mov_b64 exec, -1
        s_add_u32 s32, s32, s31
        ''')
        vm.add('pf', 1)

    def cd_wait():
        L1, L2 = a.label('cdw'), a.label('cdd')
        a(f'''
        v_and_b32 {v(T + 4)}, 7, {v(vL)}
        v_lshlrev_b32 {v(T + 4)}, 2, {v(T + 4)}
        v_add_u32 {v(T + 4)}, {CD_A}, {v(T + 4)}
        s_mov_b32 s93, {POLL_MAX * 8}
        {L1}:
        ds_read_b32 {v(T + 5)}, {v(T + 4)}
        s_waitcnt lgkmcnt(0)
        v_cmp_eq_u32 vcc, s98, {v(T + 5)}
        s_nop 1
        s_cmp_eq_u64 vcc, -1
        s_cbranch_scc1 {L2}
        s_sub_u32 s93, s93, 1
        s_cbranch_scc0 {L1}
        {L2}:
        ''')

    a(f's_lshl_b32 s53, s29, 13\ns_add_u32 s53, s53, {F_QH}')

    def kv_poll(first):
        a(f's_mov_b32 s45, {F_KV}\ns_mov_b32 s44, {F_KV + 8192}')
        if first:
            m = ~((1 << (4 * KVF)) - 1) & 0xffffffffffffffff
            a(f's_mov_b32 s50, {m & 0xffffffff}\ns_mov_b32 s51, {m >> 32}\ns_sleep {KVSL}\ns_andn2_b64 exec, exec, s[50:51]')
            polln(a, T + 4, vPF, [('s45', 's[50:51]'), ('s44', 's[50:51]')], 2)
            a('s_mov_b64 exec, -1')
            cd_wait()
        else:
            polln(a, T + 4, vPF, [('s45', None), ('s44', None)], 4)
    if KVP:
        a(f's_mul_i32 s47, s27, {CH_BYTES}\ns_add_u32 s47, s47, {KV_OFF}')
        for q in (12, 13, 14, 15, 28, 29, 30, 31):
            a(f'v_mov_b32 {v(SL + q)}, 0')
        cd_wait()
        a(f'v_add_u32 {v(T + 2)}, {KVR}, {v(vKO)}')
        Lp, Lq, Lr = a.label('kp'), a.label('kpd'), a.label('kp3')
        a(f's_mov_b32 s93, {OPOLL_MAX}\n{Lp}:\ns_mov_b32 s38, s47')
        kv_dma(0, ' sc1')
        kv_dma(1, ' sc1')
        a('s_waitcnt vmcnt(0)')
        for z in range(2):
            for e in range(3):
                a(f'ds_read_b128 {v(SL + 16 * z + 4 * e, 4)}, {v(T + 2)} offset:{z * CH_BYTES + e * 1024}')
        a(f's_cmp_ge_u32 s26, 2\ns_cbranch_scc1 {Lr}')
        for z in range(2):
            a(f'ds_read_b128 {v(SL + 16 * z + 12, 4)}, {v(T + 2)} offset:{z * CH_BYTES + 3072}')
        a(f'{Lr}:\ns_waitcnt lgkmcnt(0)')
        for z in range(2):
            a(f'v_max3_u32 {v(T + z)}, {v(SL + 16 * z)}, {v(SL + 16 * z + 1)}, {v(SL + 16 * z + 2)}')
        for i in range(3, 15, 2):
            for z in range(2):
                a(f'v_max3_u32 {v(T + z)}, {v(T + z)}, {v(SL + 16 * z + i)}, {v(SL + 16 * z + i + 1)}')
        a(f'''
        v_max3_u32 {v(T)}, {v(T)}, {v(SL + 15)}, {v(SL + 31)}
        v_max_u32 {v(T)}, {v(T)}, {v(T + 1)}
        v_cmp_eq_u32 vcc, -1, {v(T)}
        s_nop 1
        s_cmp_eq_u64 vcc, 0
        s_cbranch_scc1 {Lq}
        s_sub_u32 s93, s93, 1
        s_cbranch_scc1 {Lq}
        s_sleep {KSL2}
        s_branch {Lp}
        {Lq}:
        ''')
        stamp(a, 15)
    else:
        a(f's_mov_b32 s38, {KV_OFF}')
        one_poller(a, T, 0, lambda: kv_poll(True), who=2)
        stamp(a, 15)
        kv_dma(0)
        kv_dma(1)
        kv_dma(2)

    def prefetch(kind, b=0):
        n = {'wd': 60, 'wo': 64, 'h': 54}[kind]
        lab = a.label('nopf')
        if kind != 'h':
            a(f's_cmp_eq_u32 s26, 3\ns_cbranch_scc1 {lab}')
        if kind == 'wd':
            a(f"""
            s_lshr_b32 s44, s2, 6
            s_mul_i32 s44, s44, {432 * 1280}
            s_bfe_u32 s45, s2, 0x30003
            s_mul_i32 s45, s45, {180 * 128}
            s_add_u32 s44, s44, s45
            s_mul_i32 s45, s26, {60 * 128}
            s_add_u32 s44, s44, s45
            s_add_u32 s44, s44, {144 * 1280 * b}
            """)
            r = 's[12:15]'
        elif kind == 'wo':
            a(f"""
            s_lshr_b32 s44, s2, 3
            s_mul_i32 s44, s44, {200 * 128}
            s_mul_i32 s45, s26, {68 * 128}
            s_add_u32 s44, s44, s45
            """)
            r = 's[16:19]'
        else:
            a(f"""
            s_mul_i32 s44, s29, {216 * 1024}
            s_lshl_b32 s45, s30, 2
            s_add_u32 s45, s45, s26
            s_mul_i32 s45, s45, {54 * 128}
            s_add_u32 s44, s44, s45
            """)
            r = 's[20:23]'
        m = (1 << n) - 1
        a(f"""
        s_mov_b32 exec_hi, {m >> 32}
        buffer_load_dword v165, {v(vPF)}, {r}, s44 offen
        s_mov_b32 exec_hi, -1
        {lab}:
        """)
        vm.add('pf', 1, optional=True)
    a(f's_waitcnt vmcnt({vm.wait("kv0")})')
    if NOA0:
        a(f'''
        s_lshl_b32 s44, s26, 2
        s_add_u32 s44, s44, {KL_A}
        v_mov_b32 {v(T)}, s44
        v_mov_b32 {v(T + 1)}, s98
        ds_write_b32 {v(T)}, {v(T + 1)}
        ''')
    else:
        a('s_barrier')
    stamp(a, 16)
    lab = a.label('nokv2')
    a(f's_cmp_lg_u32 s26, 2\ns_cbranch_scc1 {lab}')
    kv_poll(False)
    a(f'{lab}:')

    def kvp(e):
        a(f'''
        s_add_u32 s44, s36, s37
        s_add_u32 m0, s44, {KVR + e * 1024}
        s_add_u32 s45, s38, {e * 1024}
        buffer_load_dwordx4 {v(vKO)}, s[20:23], s45 offen lds
        ''')

    def body(last, nw=12, fast=False):
        for z in range(3):
            a(f's_waitcnt vmcnt({((12, 14, 15)[z] if fast else (nw if not last else (12, 10, 8)[z])) - 2 + PCW + PCH}) lgkmcnt(0)')
            ms = g_mfmas(z)
            if z == 2:
                a('s_setprio 3' if BP else '')
                for b in range(3):
                    a(f'v_add_u32 {v(vWA + b)}, s33, {v(vWA + b)}')
                rd = w_rd(0, 0)
            else:
                rd = w_rd(z + 1, 3072 * (z + 1))
            if BP:
                lo = [n + 5 * z < BP for n in range(5)]
                ms = list(ms)
                order = (0, 1, 3, 2, 4)
                for q, n in enumerate(order):
                    if q == 0 or lo[q] != lo[q - 1]:
                        ms[n] = f's_setprio {0 if lo[q] else 3}\n' + ms[n]
            wd_ = w_dma('s40', 3072 * z)
            a(ms[0]); emit(a, rd[0:2]); emit(a, [wd_[0]]); a(SPACE)
            a(ms[1]); emit(a, rd[2:4]); emit(a, [wd_[1]]); a(SPACE)
            a(ms[3]); emit(a, rd[4:6]); emit(a, [wd_[2]]); a(SPACE)
            a(ms[2])
            if not last:
                emit(a, h_ld(z, 1))
            if fast and z < 2:
                kvp(2 * z)
            a(SPACE)
            a(ms[4])
            if not last:
                emit(a, h_ld(z, 0))
            if fast and z == 0:
                kvp(1)
            if fast and z == 1:
                lab = a.label('fk3')
                a(f's_cmp_ge_u32 s26, 2\ns_cbranch_scc1 {lab}')
                kvp(3)
                a(f'''
                {lab}:
                {KVADV}
                s_add_u32 s37, s37, {CH_BYTES}
                s_cmp_eq_u32 s37, {CH_BYTES * NST}
                s_cselect_b32 s37, 0, s37
                ''')
        a('s_setprio 3' if BP else '')
        a('s_add_u32 s40, s40, s33\ns_sub_u32 s33, 0, s33')

    NSTAT = int(ENV.get('NSTAT', '4'))
    for c in range(NSTAT):
        a.c(f'aux B{c}')
        a(f's_waitcnt vmcnt({vm.wait(f"kv{c + 1}")})')
        bstamp(a, c == 0)
        a('s_barrier')
        bstamp(a)
        if c == 2:
            lab = a.label('noxc')
            a(f'''
            s_cmp_lg_u32 s26, 3
            s_cbranch_scc1 {lab}
            s_getreg_b32 s45, hwreg(HW_REG_XCC_ID, 0, 4)
            s_lshl_b32 s46, s29, 7
            s_add_u32 s46, s46, {F_X}
            v_and_b32 {v(T)}, 7, {v(vL)}
            v_lshlrev_b32 {v(T)}, 3, {v(T)}
            buffer_load_dwordx2 {v(T + 4, 2)}, {v(T)}, s[20:23], s46 offen sc1
            s_mov_b32 s44, s98
            s_waitcnt vmcnt(0)
            v_cmp_eq_u64 vcc, s[44:45], {v(T + 4, 2)}
            v_mov_b32 {v(T)}, {SX_A}
            s_nop 0
            s_cmp_eq_u64 vcc, -1
            s_cselect_b32 s44, s98, 0
            v_mov_b32 {v(T + 1)}, s44
            ds_write_b32 {v(T)}, {v(T + 1)}
            s_waitcnt lgkmcnt(0)
            {lab}:
            ''')
        if KVP and c == 0:
            kv_dma(2)
        kv_dma(c + 3)
        if WDC <= c < WDC + 2:
            for k in range(3 * (c - WDC), 3 * (c - WDC) + 3):
                emit(a, w_dma('s39', 3072 * k))
            vm.add('w', 9)
        paced()
    def wo_switch():
        L_nsw = a.label('dnsw')
        a(f"""
        s_cmp_lg_u32 s35, 8
        s_cbranch_scc1 {L_nsw}
        s_mov_b32 s12, s16
        s_mov_b32 s13, s17
        s_mov_b32 s14, 819200
        s_mov_b32 s43, s56
        s_mov_b32 s52, 25600
        s_mov_b32 s48, 51200
        s_mov_b32 s45, 0x15556
        """)
        for p in range(3):
            a(f"""
            v_add_u32 {v(T)}, {64 * p}, {v(vL)}
            v_mul_lo_u32 {v(T + 1)}, {v(T)}, s45
            v_lshrrev_b32 {v(T + 1)}, 23, {v(T + 1)}
            v_mul_u32_u24 {v(T + 1)}, {8 * 1280}, {v(T + 1)}
            v_sub_u32 {v(vWD + p)}, {v(vWD + p)}, {v(T + 1)}
            """)
        a(f"""
    {L_nsw}:
        """)

    def pace_switch():
        lab = a.label('npsw')
        a(f'''
        s_cmp_lg_u32 s35, {10 - NSTAT}
        s_cbranch_scc1 {lab}
        s_mov_b32 s4, s16
        s_mov_b32 s5, s17
        s_mov_b32 s6, 819200
        s_lshr_b32 s44, s2, 3
        s_lshl_b32 s44, s44, 2
        s_add_u32 s44, s44, s26
        s_mul_i32 s32, s44, {50 * 128}
        s_mov_b32 s31, {13 * 128}
        {lab}:
        ''')

    L_top, L_nb, L_sw, L_end2 = a.label('dtop'), a.label('dnb'), a.label('dsw'), a.label('dend')
    L_act, L_bar, L_nokv = a.label('dact'), a.label('dbar'), a.label('dnokv')
    L_s0, L_body, L_last, L_wo, L_next = a.label('ds0'), a.label('dbody'), a.label('dlast'), a.label('dwo'), a.label('dnext')
    L_w0 = a.label('dw0')
    L_f1 = a.label('df1')
    L_f2 = a.label('df2')
    L_fast = a.label('dfast')
    L_w2 = a.label('dw2')
    L_b12 = a.label('db12')
    L_bd = a.label('dbd')
    L_np = a.label('dnp')
    L_p3 = a.label('dp3')
    L_k3 = a.label('dk3')
    L_w1 = a.label('dw1')
    L_n1 = a.label('dn1')
    L_oth, L_start, L_rei, L_nsw = a.label('doth'), a.label('dstart'), a.label('drei'), a.label('dnsw')
    a(f"""
    s_mov_b32 s34, {16 - NSTAT}
    s_mov_b32 s35, 0
    s_mov_b32 s37, {((NSTAT + 3) % NST) * CH_BYTES}
    s_mov_b32 s33, 9216
    s_mov_b32 s93, {POLL_MAX}
    v_mov_b32 {v(T + 3)}, {RDY_A + 4}
    {L_top}:
    s_sub_u32 s44, s35, 2
    s_cmp_lt_u32 s44, {7 if FAST else 0}
    s_cselect_b32 s45, s34, 0
    s_cmp_gt_u32 s45, 3
    s_cbranch_scc1 {L_fast}
    s_cmp_lt_u32 s44, 8
    s_cbranch_scc1 {L_act}
    s_cmp_eq_u32 s35, 11
    s_cbranch_scc1 {L_w2}
    s_cmp_gt_u32 s35, 1
    s_cbranch_scc1 {L_w0}
    s_cmp_le_u32 s34, 3
    s_cbranch_scc1 {L_w0}
    s_cmp_eq_u32 s35, 1
    s_cbranch_scc1 {L_w1}
    s_waitcnt vmcnt(3)
    s_branch {L_bar}
    {L_w1}:
    s_waitcnt vmcnt({6 + HPF * PCH})
    s_branch {L_f1 if FAST else L_bar}
    {L_w2}:
    s_waitcnt vmcnt(12)
    s_mov_b32 s35, 12
    s_branch {L_bar}
    {L_w0}:
    s_waitcnt vmcnt(0)
    s_branch {L_bar}
    {L_act}:
    s_waitcnt vmcnt({15 + PCW + PCH})
    {L_bar}:
    s_cmp_eq_u32 s34, 0
    s_cbranch_scc1 {L_nb}
    """)
    bstamp(a)
    a('s_barrier')
    bstamp(a)
    a(f"""
    s_cmp_lg_u32 s35, 0
    s_cbranch_scc1 {L_np}
    s_cmp_lg_u32 s26, 3
    s_cbranch_scc1 {L_np}
    buffer_load_dwordx2 {v(T + 4, 2)}, {v(vPF)}, s[20:23], s53 offen sc1
    {L_np}:
    s_cmp_le_u32 s34, 3
    s_cbranch_scc1 {L_nokv}
    s_add_u32 s44, s36, s37
    s_cmp_ge_u32 s26, 2
    s_cbranch_scc1 {L_k3}
    """)
    for e in (3, 0, 1, 2):
        a(f"""
        s_add_u32 m0, s44, {KVR + e * 1024}
        s_add_u32 s45, s38, {e * 1024}
        buffer_load_dwordx4 {v(vKO)}, s[20:23], s45 offen lds
        """)
        if e == 3:
            a(f'{L_k3}:')
    a(f"""
    {KVADV}
    s_add_u32 s37, s37, {CH_BYTES}
    s_cmp_eq_u32 s37, {CH_BYTES * NST}
    s_cselect_b32 s37, 0, s37
    {L_nokv}:
    s_sub_u32 s34, s34, 1
    s_branch {L_sw}
    {L_nb}:
    s_cmp_ge_u32 s35, 11
    s_cbranch_scc1 {L_end2}
    {L_sw}:
    s_cmp_eq_u32 s35, 0
    s_cbranch_scc1 {L_s0}
    s_cmp_lt_u32 s35, 9
    s_cbranch_scc1 {L_body}
    s_cmp_eq_u32 s35, 9
    s_cbranch_scc1 {L_last}
    s_cmp_eq_u32 s35, 10
    s_cbranch_scc1 {L_wo}
    s_branch {L_top}
    {L_s0}:
    s_sub_u32 s93, s93, 1
    s_cbranch_scc1 {L_start}
    s_cmp_lg_u32 s26, 3
    s_cbranch_scc1 {L_oth}
    s_cmp_ge_u32 s34, 3
    s_cbranch_scc1 {L_p3}
    buffer_load_dwordx2 {v(T + 4, 2)}, {v(vPF)}, s[20:23], s53 offen sc1
    s_waitcnt vmcnt(0)
    {L_p3}:
    s_waitcnt vmcnt(3)
    v_cmp_eq_u64 vcc, s[98:99], {v(T + 4, 2)}
    s_lshl_b32 s45, s34, 1
    s_nop 0
    s_cmp_eq_u64 vcc, -1
    s_cselect_b32 s44, s98, s45
    v_mov_b32 {v(T + 2)}, s44
    ds_write_b32 {v(T + 3)}, {v(T + 2)}
    s_cbranch_scc1 {L_start}
    s_branch {L_top}
    {L_oth}:
    s_mov_b32 s45, 40
    {L_rei}:
    s_sleep 1
    ds_read_b32 {v(T + 2)}, {v(T + 3)}
    s_waitcnt lgkmcnt(0)
    v_readfirstlane_b32 s44, {v(T + 2)}
    s_cmp_eq_u32 s44, s98
    s_cbranch_scc1 {L_start}
    s_lshl_b32 s46, s34, 1
    s_cmp_eq_u32 s44, s46
    s_cbranch_scc1 {L_top}
    s_sub_u32 s45, s45, 1
    s_cbranch_scc0 {L_rei}
    s_branch {L_top}
    {L_start}:
    """)
    stamp(a, 23)
    for k in range(3):
        for e in range(2):
            emit(a, h_ld(k, e))
    for _ in range(HPF):
        paced_h()
    emit(a, w_rd(0, 0))
    a(f"""
    {L_next}:
    s_add_u32 s35, s35, 1
    s_branch {L_top}
    {L_body}:
    s_cmp_lg_u32 s35, 1
    s_cbranch_scc1 {L_n1}
    s_waitcnt vmcnt(0)
    {L_n1}:
    """)
    wo_switch()
    a(f"""
    s_cmp_lt_u32 s34, 3
    s_cbranch_scc1 {L_b12}
    """)
    body(False, 15)
    a(f's_branch {L_bd}\n{L_b12}:')
    body(False, 12)
    a(f'{L_bd}:')
    pace_switch()
    paced_h()
    paced()
    a(f's_branch {L_next}\n{L_last}:')
    body(True)
    a(f's_branch {L_next}\n{L_f1}:')
    bstamp(a)
    a('s_barrier')
    bstamp(a)
    a(f's_waitcnt vmcnt(0)\ns_branch {L_f2}\n{L_fast}:')
    wo_switch()
    bstamp(a)
    a('s_barrier')
    bstamp(a)
    a(f'{L_f2}:')
    body(False, fast=True)
    pace_switch()
    paced_h()
    paced()
    a(f'''
    s_sub_u32 s34, s34, 1
    s_add_u32 s35, s35, 1
    s_cmp_lt_u32 s35, 9
    s_cselect_b32 s45, s34, 0
    s_cmp_gt_u32 s45, 3
    s_cbranch_scc1 {L_fast}
    s_branch {L_top}
    {L_wo}:
    ''')
    stamp(a, 17)
    emit(a, w_rd(1, 3072) + w_rd(2, 6144))
    a('s_mov_b32 s45, 0x15556\ns_waitcnt lgkmcnt(0)')
    emit(a, w_dma('s39', 3072 * 3))
    emit(a, w_dma('s39', 3072 * 4))
    for p in range(3):
        a(f"""
        v_add_u32 {v(T)}, {64 * p}, {v(vL)}
        v_mul_lo_u32 {v(T + 1)}, {v(T)}, s45
        v_bfe_u32 {v(T)}, {v(T + 1)}, 22, 1
        v_lshrrev_b32 {v(T + 1)}, 23, {v(T + 1)}
        v_mul_u32_u24 {v(T)}, {36 * 1280}, {v(T)}
        v_mul_u32_u24 {v(T + 1)}, {12 * 1280}, {v(T + 1)}
        v_add3_u32 {v(vWD + p)}, {v(vWD + p)}, {v(T + 1)}, {v(T)}
        """)
    a(f's_add_u32 s43, s56, {16 * 1280}\ns_mov_b32 s52, {80 * 1280}\ns_mov_b32 s48, {160 * 1280}')
    emit(a, w_dma('s39', 3072 * 5))
    emit(a, w_dma('s39', 3072 * 6))
    a(f's_cmp_lg_u32 s34, 0\ns_cbranch_scc1 {L_next}\n{L_end2}:')
    a(f"""
    v_subrev_u32 {v(vWA)}, 9216, {v(vWA)}
    v_subrev_u32 {v(vWA + 1)}, 9216, {v(vWA + 1)}
    v_subrev_u32 {v(vWA + 2)}, 9216, {v(vWA + 2)}
    s_mul_i32 s44, s26, 14336
    s_add_u32 s44, s44, {OL_A}
    v_add_u32 {v(vKO)}, s44, {v(vHL)}
    v_and_b32 {v(T)}, 7, {v(vR)}
    v_xor_b32 {v(T)}, {v(T)}, {v(vH)}
    v_lshlrev_b32 {v(T + 1)}, 7, {v(vR)}
    v_add_u32 {v(T + 1)}, s39, {v(T + 1)}
    """)
    for jp in range(4):
        a(f"""
        v_xor_b32 {v(T + 2)}, {2 * jp}, {v(T)}
        v_lshl_add_u32 {v(T + 4 + jp)}, {v(T + 2)}, 4, {v(T + 1)}
        """)
    stamp(a, 18)
    a('s_barrier')
    Lp, Lq = a.label('op'), a.label('opd')
    a(f's_mov_b32 s93, {OPOLL_MAX}\n{Lp}:')
    for k in range(27, 30):
        for e in range(2):
            a(f'buffer_load_dwordx4 {v(hreg(k) + 4 * e, 4)}, {v(vHL)}, s[20:23], s{54 + e} offen offset:{1024 * (k - 27)} sc1')
    a('s_waitcnt vmcnt(0)')
    regs = [hreg(k) + i for k in range(27, 30) for i in range(8)]
    a(f'v_max3_u32 {v(T)}, {v(regs[0])}, {v(regs[1])}, {v(regs[2])}')
    for i in range(3, 23, 2):
        a(f'v_max3_u32 {v(T)}, {v(T)}, {v(regs[i])}, {v(regs[i + 1])}')
    a(f"""
    v_max_u32 {v(T)}, {v(T)}, {v(regs[23])}
    v_cmp_eq_u32 vcc, -1, {v(T)}
    s_nop 1
    s_cmp_eq_u64 vcc, 0
    s_cbranch_scc1 {Lq}
    s_sub_u32 s93, s93, 1
    s_cbranch_scc1 {Lq}
    s_sleep {OSLEEP}
    s_branch {Lp}
    {Lq}:
    """)
    stamp(a, 19)

    def o_rd(k):
        return [f'ds_read_b128 {v(hreg(k) + 4 * e, 4)}, {v(vKO)} offset:{(k - 30) * 2048 + 1024 * e}' for e in range(2)]

    for k in range(27, 30):
        emit(a, g_mfmas(k))
        emit(a, w_rd(k + 3, 3072 * (k - 27)))
    if FFL:
        L1, L2 = a.label('fw'), a.label('fd')
        a(f'''
        s_lshl_b32 s44, s26, 3
        s_add_u32 s44, s44, {OW_A}
        v_mov_b32 {v(T)}, s44
        s_mov_b32 s93, {POLL_MAX * 8}
        {L1}:
        ds_read_b64 {v(T + 2, 2)}, {v(T)}
        s_waitcnt lgkmcnt(0)
        v_readfirstlane_b32 s44, {v(T + 2)}
        v_readfirstlane_b32 s45, {v(T + 3)}
        s_xor_b32 s44, s44, s98
        s_xor_b32 s45, s45, s98
        s_or_b32 s44, s44, s45
        s_cbranch_scc0 {L2}
        s_sub_u32 s93, s93, 1
        s_cbranch_scc0 {L1}
        {L2}:
        ''')
    else:
        a('s_waitcnt lgkmcnt(0)')
        a('s_barrier')
    stamp(a, 30)
    for k in range(30, 33):
        emit(a, o_rd(k))
    XO = vWD
    assert XO % 2 == 0 and XO + 8 <= ACC
    for k in range(30, 34):
        a(f's_waitcnt lgkmcnt({ {30: 4, 31: 10, 32: 8, 33: 8}[k] })')
        emit(a, g_mfmas(k))
        emit(a, w_rd(k + 3, 3072 * (k + 3 - 30)) + o_rd(k + 3))
    g2_out(a, XO, vL, 's24', 0)
    a('s_waitcnt lgkmcnt(0)')
    wr = lambda n: [f'ds_write_b128 {v(T + 4 + jp)}, {v(ACC + 16 * n + 4 * jp, 4)} offset:{4096 * n}' for jp in range(4)]
    ms = [g_mfmas(k) for k in range(34, 37)]
    for n in range(5):
        for z in range(3):
            a(ms[z][n])
        if n >= 2:
            a('s_nop 5')
            emit(a, wr(n - 2))
    stamp(a, 20)
    a('s_nop 3')
    emit(a, wr(3))
    a('s_nop 3')
    emit(a, wr(4))
    a('s_waitcnt vmcnt(0) lgkmcnt(0)')
    a('s_barrier')
    stamp(a, 21)
    for i in range(8):
        a(f'v_mov_b32 {v(ACC + i)}, {v(XO + i)}')
    g2_out(a, ACC, vL, 's24', 1)


DESC = """; One persistent launch, 256 workgroups (one per CU), 12 waves each: waves 0-7 compute, waves 8-11 load / second GEMM.
;           split over the WGs and handed over through the workspace; K and V by the load waves; GEGLU epilogue.
;           to a two-pass true-max path.  The load waves stream K/V and run h @ wd meanwhile.
;  tail:    O @ wo, cross-wave reduction, + x, bf16 store.
"""


def build(path):
    hdr = open('parallel_sum__grouped_kv_mqa__geglu_ffn__prompt.s.ref').read().split('; Override launch')[0]
    out = hdr + f'; @launch grid=(256,1,1) block=(768,1,1) lds={LDS_TOTAL}\n' + DESC
    out += '.amdgcn_target "amdgcn-amd-amdhsa--gfx950"\n'
    out += gen()
    out += kernel_desc(KNAME, 168)
    open(path, 'w').write(out)


if __name__ == '__main__':
    import sys
    if len(sys.argv) > 2 and sys.argv[2] == 'stamp':
        asmlib.STAMPS = True
    build(sys.argv[1])
```

```python
from asmlib import *
import asmlib
import math
import os

KNAME = 'parallel_sum__grouped_kv_mqa__geglu_ffn__prompt_kernel'

H_OFF = 0
QF_OFF = 0x700000
KV_OFF = 0xA00000
OF_OFF = 0xB00000
FL_OFF = 0xE00000
F_ST = 0x1200000
F_CS = 0x1220000
F_KV = 0x1240000
F_KC = 0x1248000
F_W2 = 0x1250000
F_X = 0x1258000
F_QH = 0xE80000
ROWW = 0xE10000
CSW = 0xE20000
CSKVW = 0xE60000
W2F = 0xF00000
WS_USED = 0x1260000

LDS_X = 0
LDS_W = 49152
LDS_KV = 147456
CS_A = 16384
PART_A = 32768
VT_A = 32768
ROWC_A = 156672
CSKV_A = 158720
NONCE_A = 160768
RDY_A = 160800
SX_A = 160928
KL_A = 160944
OW_A = 160896
CD_A = 160832
PD_A = 160864
LDS_TOTAL = 163840
CH_BYTES = 14336
NST = 4
KVR = 49152
Q_A = KVR + 3 * CH_BYTES
G2R = KVR + CH_BYTES * NST
G2D = 3
TW_A = G2R
OL_A = KVR
WO_HI = 106496
WOA = 0
RED_A = 0

C0 = -2.0 * math.sqrt(2.0 / math.pi) * math.log2(math.e)
C1 = C0 * 0.044715
QSC = math.log2(math.e) / math.sqrt(20.0)
M_OFFSET = 100.0
POLL_MAX = 400000
NONCE_X = 0x5a5a5a5a

HM = 's[62:63]'
PFWAIT = False
ENV = os.environ
NODOWN = ENV.get('NODOWN')
PRIO2 = int(ENV.get('PRIO2', '3'))
PRIO1 = int(ENV.get('PRIO1', '3'))
SPACE = ENV.get('SPACE', '')
NOPF = not ENV.get('PF')
INV = int(ENV.get('INV', '0'))
NOG2 = ENV.get('NOG2')
NOA0 = int(ENV.get('NOA0', '0'))
KVP = int(ENV.get('KVP', '0'))
KSL2 = int(ENV.get('KSL2', '8'))
AST = int(ENV.get('AST', '0'))
ASS = int(ENV.get('ASS', '1'))
ASP = int(ENV.get('ASP', '2'))
APZ = int(ENV.get('APZ', '0'))
FAST = int(ENV.get('FAST', '1'))
BP = int(ENV.get('BP', '15'))
ROT = int(ENV.get('ROT', '0'))
FFL = int(ENV.get('FFL', '0'))
PCW = int(ENV.get('PCW', '1'))
PCH = int(ENV.get('PCH', '0'))
HST = int(ENV.get('HST', '-1'))
ODBL = int(ENV.get('ODBL', '1'))
JX = int(ENV.get('JX', '0'))
QSLEEP = int(ENV.get('QSLEEP', '4'))
KVF = int(ENV.get('KVF', '3'))
OUTSC = {'': '', '1': ' sc1', '2': ' nt', '3': ' sc0 sc1', '4': ' sc1 nt'}[ENV.get('OUTSC', '')]
HPF = int(ENV.get('HPF', '2'))
PERM = int(ENV.get('PERM', '1'))
P1PF = int(ENV.get('P1PF', '0'))
PFC = tuple(int(x) for x in ENV.get('PFC', '2,3,4').split(','))
WDC = int(ENV.get('WDC', '2'))
WOC = int(ENV.get('WOC', '4'))
TWC = int(ENV.get('TWC', '1'))
DPOLL2 = 0
OSLEEP = int(ENV.get('OSLEEP', '3'))
LATE1 = int(ENV.get('LATE1', '1'))
OPOLL_MAX = 200000
LINPF = int(ENV.get('LINPF', '0'))
NOSL = ENV.get('NOSL')
PF0 = int(ENV.get('PF0', '0'))
JIT = int(ENV.get('JIT', '0'))
JITD = int(ENV.get('JITD', '4'))
SLC = int(ENV.get('SLC', '-1'))
SLG = int(ENV.get('SLG', '2'))
SPN = int(ENV.get('SPN', '2'))
PZ0 = int(ENV.get('PZ0', '0'))
P3C = int(ENV.get('P3C', '7'))
EARLY2 = int(ENV.get('EARLY2', '0'))
CWARM = int(ENV.get('CWARM', '1'))
KVSL = int(ENV.get('KVSL', '16'))
HEARLY = ENV.get('HEARLY')
PSLEEP = int(ENV.get('PSLEEP', '2'))
NOPF2 = not ENV.get('PF2')
CV = int(ENV.get('CV', '0'))
NODMA = ENV.get('NODMA')
IST = ENV.get('IST')
LD = ' sc1' if ENV.get('SC1LD') else ''
FEWST = ENV.get('FEWST')
IST_LIST = tuple(int(x) for x in os.environ.get('ISTL', '1,2,6,7').split(','))
HFLAG_T = int(os.environ.get('HFT', '6'))
G2_START = int(os.environ.get('G2S', '6'))
G2_END = int(os.environ.get('G2E', '15'))


class VM:
    def __init__(self):
        self.ops = []

    def add(self, tag, n=1, optional=False):
        for _ in range(n):
            self.ops.append((tag, optional))

    def wait(self, tag):
        idx = max(i for i, (t, o) in enumerate(self.ops) if t == tag)
        n = sum(1 for t, o in self.ops[idx + 1:] if not o)
        assert n <= 63, n
        return n

    def drain(self):
        self.ops = []


def emit(a, bundles):
    for b in bundles:
        a(b if isinstance(b, str) else '\n'.join(b))


def flag_store(a, soff_reg, vt):
    a(f'''
    v_mov_b32 {v(vt)}, s98
    v_mov_b32 {v(vt + 1)}, s99
    s_mov_b64 exec, 1
    buffer_store_dwordx2 {v(vt, 2)}, off, s[20:23], {soff_reg} sc1
    s_mov_b64 exec, -1
    ''')


def poll(a, vt, voff, soff_reg, wide=False, ignore=None, inv=True, sleep=None):
    L = a.label('poll')
    Ld = a.label('polld')
    a(f's_mov_b32 s93, {POLL_MAX}')
    a(f'{L}:')
    if wide:
        a(f'''
        buffer_load_dwordx4 {v(vt, 4)}, {v(voff)}, s[20:23], {soff_reg} offen sc1
        s_waitcnt vmcnt(0)
        v_cmp_eq_u64 vcc, s[98:99], {v(vt, 2)}
        v_cmp_eq_u64 s[46:47], s[98:99], {v(vt + 2, 2)}
        s_nop 1
        s_and_b64 vcc, vcc, s[46:47]
        ''')
    else:
        a(f'''
        buffer_load_dwordx2 {v(vt, 2)}, {v(voff)}, s[20:23], {soff_reg} offen sc1
        s_waitcnt vmcnt(0)
        v_cmp_eq_u64 vcc, s[98:99], {v(vt, 2)}
        s_nop 1
        ''')
    if ignore:
        a(f's_or_b64 vcc, vcc, {ignore}')
    a(f'''
    s_cmp_eq_u64 vcc, -1
    s_cbranch_scc1 {Ld}
    s_sub_u32 s93, s93, 1
    s_cbranch_scc1 {Ld}
    s_sleep {sleep or PSLEEP}
    s_branch {L}
    {Ld}:
    ''')
    if inv and INV:
        a('buffer_inv sc1\ns_waitcnt vmcnt(0)')


def polln(a, vt, voff, rows, sleep):
    L = a.label('poll')
    Ld = a.label('polld')
    a(f's_mov_b32 s93, {POLL_MAX}\n{L}:')
    for q, (so, ig) in enumerate(rows):
        a(f'buffer_load_dwordx2 {v(vt + 2 * q, 2)}, {v(voff[q] if isinstance(voff, list) else voff)}, s[20:23], {so} offen sc1')
    a('s_waitcnt vmcnt(0)')
    dst = ['vcc', 's[46:47]', 's[48:49]']
    for q in range(len(rows)):
        a(f'v_cmp_eq_u64 {dst[q]}, s[98:99], {v(vt + 2 * q, 2)}')
    a('s_nop 1')
    for q, (so, ig) in enumerate(rows):
        if ig:
            a(f's_or_b64 {dst[q]}, {dst[q]}, {ig}')
        if q:
            a(f's_and_b64 vcc, vcc, {dst[q]}')
    a(f'''
    s_cmp_eq_u64 vcc, -1
    s_cbranch_scc1 {Ld}
    s_sub_u32 s93, s93, 1
    s_cbranch_scc1 {Ld}
    s_sleep {sleep}
    s_branch {L}
    {Ld}:
    ''')


def one_poller(a, vt, word, body, who=3):
    Lw, Ld, Ls = a.label('opw'), a.label('opd'), a.label('ops')
    a(f'''
    v_mov_b32 {v(vt + 3)}, {RDY_A + 4 * word}
    s_cmp_lg_u32 s26, {who}
    s_cbranch_scc1 {Lw}
    ''')
    body()
    a(f'''
    v_mov_b32 {v(vt + 2)}, s98
    ds_write_b32 {v(vt + 3)}, {v(vt + 2)}
    s_branch {Ld}
    {Lw}:
    s_mov_b32 s93, {POLL_MAX * 8}
    {Ls}:
    ds_read_b32 {v(vt + 2)}, {v(vt + 3)}
    s_waitcnt lgkmcnt(0)
    v_readfirstlane_b32 s46, {v(vt + 2)}
    s_cmp_eq_u32 s46, s98
    s_cbranch_scc1 {Ld}
    s_sub_u32 s93, s93, 1
    s_cbranch_scc1 {Ld}
    s_sleep 1
    s_branch {Ls}
    {Ld}:
    ''')


def bstamp(a, first=False):
    if not (asmlib.STAMPS and ENV.get('BST')):
        return
    if first:
        a('s_add_u32 s101, s92, 0xC0000')
    a('''
    s_memrealtime s[94:95]
    s_memtime s[96:97]
    s_waitcnt lgkmcnt(0)
    v_mov_b32 v166, s94
    v_mov_b32 v167, s96
    buffer_store_dwordx2 v[166:167], off, s[88:91], s101
    s_add_u32 s101, s101, 8
    ''')


def srd(a, base, ptr, size):
    a(f'''
    s_mov_b32 s{base}, s{ptr}
    s_mov_b32 s{base + 1}, s{ptr + 1}
    s_mov_b32 s{base + 2}, {size}
    s_mov_b32 s{base + 3}, 0x20000
    ''')


def w_source(a):
    a('''
    s_and_b32 s44, s26, 1
    s_and_b32 s51, s44, s48
    s_lshr_b32 s45, s26, 1
    s_lshl_b32 s46, s44, 6
    s_add_u32 s46, s46, s49
    s_cmp_eq_u32 s48, 1
    s_cselect_b32 s46, s49, s46
    s_lshl_b32 s47, s45, 6
    s_add_u32 s47, s47, s50
    s_cmp_eq_u32 s51, 1
    s_cselect_b32 s52, s47, s46
    s_lshl_b32 s52, s52, 1
    s_cmp_eq_u32 s45, 1
    s_cselect_b32 s12, s82, s80
    s_cselect_b32 s13, s83, s81
    s_mov_b32 s14, 2211840
    s_mov_b32 s53, 3456
    s_cmp_eq_u32 s51, 1
    s_cselect_b32 s12, s70, s12
    s_cselect_b32 s13, s71, s13
    s_cselect_b32 s14, 819200, s14
    s_cselect_b32 s53, 1280, s53
    s_mov_b32 s15, 0x20000
    ''')


def tile_offs(t):
    p, o = t >> 1, t & 1
    b = p * 7168
    return b + o * 1024, b + 2048, b + 3072 + o * 2048, b + 4096 + o * 2048


PERMC = f'''
    s_bfe_u32 s44, s2, 0x30003
    s_lshr_b32 s45, s2, 6
    s_add_u32 s44, s44, s45
    s_and_b32 s100, s44, {PERM}
    s_xor_b32 s45, s100, 1
'''
ROTC = '''
    s_add_u32 s100, s27, s28
    s_mul_i32 s44, s100, 26
    s_lshr_b32 s44, s44, 8
    s_mul_i32 s44, s44, 10
    s_sub_u32 s100, s100, s44
    s_add_u32 s45, s100, 1
    s_cmp_eq_u32 s45, 10
    s_cselect_b32 s45, 0, s45
'''


def stat_code(vL, vH, vR, CR, XR, A8, U, W4, SCS, SST):
    u0, u1, u2, u3, u4, u5 = range(U, U + 6)

    def lines(txt):
        return [x.strip() for x in txt.split(chr(10)) if x.strip()]

    def load_cs():
        f = lines(f'''
        s_mul_i32 s44, s27, 40
        v_lshrrev_b32 {v(u4)}, 3, {v(vL)}
        v_add_u32 {v(u4)}, s44, {v(u4)}
        v_mul_lo_u32 {v(u5)}, {v(u4)}, s53
        v_and_b32 {v(u4)}, 7, {v(vL)}
        v_lshl_add_u32 {v(u5)}, {v(u4)}, 4, {v(u5)}
        s_mov_b32 s47, s52
        ''')
        for t in range(5):
            f.append([f'buffer_load_dwordx4 {v(CR + 4 * t, 4)}, {v(u5)}, s[12:15], s47 offen', 's_add_u32 s47, s47, s31'])
        return f

    def load_rows():
        f = lines(f'''
        s_lshl_b32 s44, s27, 7
        s_lshl_b32 s45, s28, 3
        s_add_u32 s44, s44, s45
        s_lshl_b32 s45, s26, 1
        s_add_u32 s55, s44, s45
        v_add_u32 {v(u0)}, s55, {v(vH)}
        v_mul_u32_u24 {v(u0)}, 1280, {v(u0)}
        v_lshl_add_u32 {v(u0)}, {v(vR)}, 3, {v(u0)}
        ''')
        for t in range(5):
            f.append(f'buffer_load_dwordx2 {v(XR + 2 * t, 2)}, {v(u0)}, s[8:11], 0 offen offset:{256 * t}')
        return f

    def fill_cs():
        f = []
        for q in range(4):
            f += [f'v_lshlrev_b32 {v(A8 + 2 * q)}, 16, {v(CR + q)}', f'v_and_b32 {v(A8 + 2 * q + 1)}, 0xffff0000, {v(CR + q)}']
        for t in range(1, 5):
            for q in range(4):
                ta, tb = (u2, u3) if q & 1 else (u4, u5)
                f += lines(f'''
                v_lshlrev_b32 {v(ta)}, 16, {v(CR + 4 * t + q)}
                v_and_b32 {v(tb)}, 0xffff0000, {v(CR + 4 * t + q)}
                v_add_f32 {v(A8 + 2 * q)}, {v(A8 + 2 * q)}, {v(ta)}
                v_add_f32 {v(A8 + 2 * q + 1)}, {v(A8 + 2 * q + 1)}, {v(tb)}
                ''')
        f.append('s_nop 1')
        f += [f'v_permlane32_swap_b32 {v(A8 + q)}, {v(A8 + 4 + q)}' for q in range(4)]
        f.append('s_nop 1')
        f += [f'v_add_f32 {v(A8 + q)}, {v(A8 + q)}, {v(A8 + 4 + q)}' for q in range(4)]
        f.append('s_nop 1')
        f += [f'v_permlane16_swap_b32 {v(A8 + q)}, {v(A8 + 2 + q)}' for q in range(2)]
        f.append('s_nop 1')
        f += [f'v_add_f32 {v(A8 + q)}, {v(A8 + q)}, {v(A8 + 2 + q)}' for q in range(2)]
        f += lines(f'''
        s_nop 1
        v_add_f32_dpp {v(A8)}, {v(A8)}, {v(A8)} row_ror:8 row_mask:0xf bank_mask:0xf
        v_add_f32_dpp {v(A8 + 1)}, {v(A8 + 1)}, {v(A8 + 1)} row_ror:8 row_mask:0xf bank_mask:0xf
        s_mov_b32 vcc_lo, 0xff00ff00
        s_mov_b32 vcc_hi, 0xff00ff00
        v_cndmask_b32 {v(u0)}, {v(A8)}, {v(A8 + 1)}, vcc
        v_cvt_pk_bf16_f32 {v(u1)}, {v(u0)}, {v(u0)}
        v_and_b32 {v(u1)}, 0xffff0000, {v(u1)}
        v_sub_f32 {v(u1)}, {v(u0)}, {v(u1)}
        v_cvt_pk_bf16_f32 {v(u0)}, {v(u0)}, {v(u1)}
        v_and_b32 {v(u1)}, 7, {v(vL)}
        v_lshl_add_u32 {v(u1)}, {v(u1)}, 1, {v(vH)}
        v_bfe_u32 {v(u2)}, {v(vL)}, 4, 1
        v_lshl_add_u32 {v(u1)}, {v(u1)}, 1, {v(u2)}
        v_bfe_u32 {v(u2)}, {v(vL)}, 3, 1
        v_lshl_add_u32 {v(u1)}, {v(u1)}, 1, {v(u2)}
        v_and_b32 {v(u2)}, 15, {v(u1)}
        v_lshrrev_b32 {v(u3)}, 4, {v(u1)}
        s_and_b32 s44, s26, 1
        s_andn2_b32 s44, s44, s48
        s_lshl_b32 s44, s44, 7
        s_lshr_b32 s45, s26, 1
        s_lshl_b32 s45, s45, 4
        s_add_u32 s44, s44, s45
        v_lshl_add_u32 {v(u4)}, {v(u3)}, 5, s44
        s_add_u32 s44, s26, 3
        s_lshl_b32 s44, s44, 5
        v_lshl_add_u32 {v(u5)}, {v(u3)}, 4, s44
        s_cmp_eq_u32 s51, 1
        s_cselect_b64 vcc, -1, 0
        v_cndmask_b32 {v(u4)}, {v(u4)}, {v(u5)}, vcc
        v_add_lshl_u32 {v(u2)}, {v(u2)}, {v(u4)}, 2
        s_lshl_b32 s44, s28, 14
        s_lshl_b32 s45, s27, 10
        s_add_u32 s44, s44, s45
        s_add_u32 s44, s44, {CSW}
        buffer_store_dword {v(u0)}, {v(u2)}, s[20:23], s44 offen sc1
        s_lshl_b32 s46, s27, 2
        s_add_u32 s46, s46, s26
        s_lshl_b32 s46, s46, 7
        s_lshl_b32 s45, s28, 13
        s_add_u32 s46, s46, s45
        s_add_u32 {SCS}, s46, {F_CS}
        ''')
        return f

    def fill_rows():
        f = [f'v_mov_b32 {v(u0)}, 0', f'v_mov_b32 {v(u1)}, 0']
        for t in range(10):
            f += lines(f'''
            v_lshlrev_b32 {v(u2)}, 16, {v(XR + t)}
            v_and_b32 {v(u3)}, 0xffff0000, {v(XR + t)}
            v_add_f32 {v(u0)}, {v(u0)}, {v(u2)}
            v_fmac_f32 {v(u1)}, {v(u2)}, {v(u2)}
            v_add_f32 {v(u0)}, {v(u0)}, {v(u3)}
            v_fmac_f32 {v(u1)}, {v(u3)}, {v(u3)}
            ''')
        for ror in (8, 4, 2, 1):
            f += lines(f'''
            s_nop 1
            v_add_f32_dpp {v(u0)}, {v(u0)}, {v(u0)} row_ror:{ror} row_mask:0xf bank_mask:0xf
            v_add_f32_dpp {v(u1)}, {v(u1)}, {v(u1)} row_ror:{ror} row_mask:0xf bank_mask:0xf
            ''')
        f += lines(f'''
        v_mov_b32 {v(u2)}, {v(u0)}
        v_mov_b32 {v(u3)}, {v(u1)}
        s_nop 1
        v_permlane16_swap_b32 {v(u0)}, {v(u2)}
        v_permlane16_swap_b32 {v(u1)}, {v(u3)}
        s_mov_b32 s44, {f2u(1.0 / 640.0)}
        s_mov_b32 s45, {f2u(1e-5)}
        v_add_f32 {v(u0)}, {v(u0)}, {v(u2)}
        v_add_f32 {v(u1)}, {v(u1)}, {v(u3)}
        v_mul_f32 {v(u0)}, s44, {v(u0)}
        v_mul_f32 {v(u1)}, s44, {v(u1)}
        v_fma_f32 {v(u1)}, -{v(u0)}, {v(u0)}, {v(u1)}
        v_max_f32 {v(u1)}, 0, {v(u1)}
        v_cvt_pk_bf16_f32 {v(W4)}, -{v(u0)}, -{v(u0)}
        v_cvt_pk_bf16_f32 {v(u1)}, {v(u1)}, {v(u1)}
        v_and_b32 {v(u1)}, 0xffff0000, {v(u1)}
        v_add_f32 {v(u1)}, s45, {v(u1)}
        v_cvt_pk_bf16_f32 {v(u1)}, {v(u1)}, {v(u1)}
        v_and_b32 {v(u1)}, 0xffff0000, {v(u1)}
        v_sqrt_f32 {v(u1)}, {v(u1)}
        v_mov_b32 {v(W4 + 3)}, 0
        v_cvt_pk_bf16_f32 {v(u1)}, {v(u1)}, {v(u1)}
        v_and_b32 {v(u1)}, 0xffff0000, {v(u1)}
        v_rcp_f32 {v(W4 + 1)}, {v(u1)}
        v_mul_f32 {v(W4 + 2)}, {v(u1)}, {v(u1)}
        v_lshlrev_b32 {v(u2)}, 4, {v(vH)}
        s_lshl_b32 s44, s55, 4
        s_add_u32 s44, s44, {ROWW}
        ''')
        f.append(['s_mov_b32 exec_lo, 1', 's_mov_b32 exec_hi, 1',
                  f'buffer_store_dwordx4 {v(W4, 4)}, {v(u2)}, s[20:23], s44 offen sc1', 's_mov_b64 exec, -1'])
        f += lines(f'''
        s_lshl_b32 s44, s28, 2
        s_add_u32 s44, s44, s26
        s_lshl_b32 s44, s44, 7
        s_lshl_b32 s45, s27, 13
        s_add_u32 s44, s44, s45
        s_add_u32 {SST}, s44, {F_ST}
        ''')
        return f

    return lines, load_cs, load_rows, fill_cs, fill_rows


def gen():
    a = Asm()
    a(kernel_head(KNAME))
    stamp_early(a)
    vL, vH, vR = 1, 2, 3
    L_end = a.label('end')
    L_aux = a.label('aux')
    a(f'''
    s_cmp_ge_u32 s2, 256
    s_cbranch_scc1 {L_end}
    s_load_dwordx8 s[68:75], s[0:1], 0
    s_load_dwordx4 s[80:83], s[0:1], 48
    s_load_dwordx4 s[76:79], s[0:1], 80
    s_load_dwordx2 s[84:85], s[0:1], 32
    s_load_dwordx4 s[88:91], s[0:1], 64
    v_lshrrev_b32 v4, 6, v0
    v_and_b32 {v(vL)}, 63, v0
    v_readfirstlane_b32 s24, v4
    v_lshrrev_b32 {v(vH)}, 5, {v(vL)}
    v_and_b32 {v(vR)}, 31, {v(vL)}
    ''')
    if CWARM:
        Lw, Lp = a.label('nowarm'), a.label('pc')
        a(f'''
        s_cmp_lg_u32 s24, 11
        s_cbranch_scc1 {Lw}
        s_getpc_b64 s[4:5]
        {Lp}:
        s_bfe_u32 s44, s2, 0x30003
        s_lshl_b32 s44, s44, 13
        v_lshl_add_u32 v4, {v(vL)}, 7, s44
        v_min_u32 v4, {L_end}-{Lp}, v4
        global_load_dword v165, v4, s[4:5]
        {Lw}:
        ''')
    vXD, vWD, vKD = 20, 22, 24
    t0, t1, t2, t3, t4 = 4, 5, 6, 7, 8
    a(f'''
    s_bfe_u32 s27, s2, 0x30003
    s_and_b32 s46, s2, 1
    s_lshl_b32 s46, s46, 3
    s_add_u32 s27, s27, s46
    s_bfe_u32 s46, s2, 0x20001
    s_xor_b32 s46, s46, {JX}
    s_lshl_b32 s46, s46, 2
    s_lshr_b32 s47, s2, 6
    s_add_u32 s28, s46, s47
    s_cmp_ge_u32 s28, 11
    s_cselect_b32 s48, 1, 0
    s_sub_u32 s44, s28, 11
    s_lshl_b32 s45, s44, 6
    s_add_u32 s45, s45, 1408
    s_lshl_b32 s46, s28, 7
    s_lshl_b32 s50, s44, 7
    s_cmp_eq_u32 s48, 1
    s_cselect_b32 s49, s45, s46
    s_and_b32 s25, s24, 1
    s_lshr_b32 s26, s24, 1
    s_sub_u32 s44, s24, 8
    s_cmp_ge_u32 s24, 8
    s_cselect_b32 s26, s44, s26
    s_and_b32 s44, s26, 1
    s_and_b32 s51, s44, s48
    s_lshr_b32 s43, s26, 1
    s_andn2_b32 s46, s44, s48
    s_lshl_b32 s46, s46, 6
    s_add_u32 s46, s46, s49
    s_lshl_b32 s47, s43, 6
    s_add_u32 s47, s47, s50
    s_mov_b32 s53, 3456
    s_cmp_eq_u32 s51, 1
    s_cselect_b32 s52, s47, s46
    s_cselect_b32 s53, 1280, s53
    s_lshl_b32 s52, s52, 1
    s_lshl_b32 s31, s53, 3
    s_lshl_b32 s32, s53, 6
    v_lshrrev_b32 {v(t0)}, 3, {v(vL)}
    v_and_b32 {v(t1)}, 7, {v(vL)}
    s_lshl_b32 s44, s27, 7
    s_lshl_b32 s45, s26, 5
    s_add_u32 s44, s44, s45
    v_add_u32 {v(t2)}, s44, {v(t0)}
    v_mul_u32_u24 {v(t2)}, 1280, {v(t2)}
    v_lshrrev_b32 {v(t3)}, 1, {v(t0)}
    v_xor_b32 {v(t3)}, {v(t3)}, {v(t1)}
    v_lshl_add_u32 {v(vXD)}, {v(t3)}, 4, {v(t2)}
    v_xor_b32 {v(t3)}, 4, {v(t3)}
    v_lshl_add_u32 {v(vXD + 1)}, {v(t3)}, 4, {v(t2)}
    v_add_u32 {v(vXD + 1)}, {8 * 1280}, {v(vXD + 1)}
    v_mul_lo_u32 {v(t2)}, {v(t0)}, s53
    v_lshrrev_b32 {v(t3)}, 1, {v(t1)}
    v_and_b32 {v(t4)}, 2, {v(t0)}
    v_xor_b32 {v(t3)}, {v(t3)}, {v(t4)}
    v_and_b32 {v(t4)}, 1, {v(t1)}
    v_lshl_add_u32 {v(t2)}, {v(t4)}, 4, {v(t2)}
    v_add_u32 {v(t2)}, s52, {v(t2)}
    v_lshl_add_u32 {v(vWD)}, {v(t3)}, 5, {v(t2)}
    v_xor_b32 {v(t3)}, 1, {v(t3)}
    v_lshl_add_u32 {v(vWD + 1)}, {v(t3)}, 5, {v(t2)}
    s_lshl_b32 s36, s26, 12
    s_mul_i32 s37, s26, 24576
    s_add_u32 s37, s37, {LDS_W}
    s_lshl_b32 s33, s53, 5
    s_mul_i32 s33, s33, s25
    s_lshl_b32 s44, s25, 12
    s_add_u32 s35, s37, s44
    {ROTC if ROT else PERMC}
    s_mul_i32 s38, s100, s32
    s_mul_i32 s39, s45, s32
    s_mov_b32 s10, 2621440
    s_mov_b32 s11, 0x20000
    s_mov_b32 s14, 2211840
    s_mov_b32 s15, 0x20000
    s_cmp_ge_u32 s24, 8
    s_cbranch_scc1 {L_aux}
    s_cmp_eq_u32 s43, 1
    s_waitcnt lgkmcnt(0)
    s_cselect_b32 s12, s82, s80
    s_cselect_b32 s13, s83, s81
    s_cmp_eq_u32 s51, 1
    s_cselect_b32 s12, s70, s12
    s_cselect_b32 s13, s71, s13
    s_cselect_b32 s14, 819200, s14
    ''')
    def c_start(c):
        for e in range(4):
            a(f'''
            s_add_u32 m0, s35, {c * 8192 + e * 1024}
            s_add_u32 s34, s33, s{38 + c}
            buffer_load_dwordx4 {v(vWD + (e & 1))}, s[12:15], s34 offen lds
            ''')
            if e < 3:
                a('s_add_u32 s33, s33, s31')
            elif c == 0:
                a('s_mul_i32 s44, s31, 3\ns_sub_u32 s33, s33, s44')
    c_start(0)
    if not LATE1:
        c_start(1)
    L_com = a.label('common')
    a(f'''
    s_mov_b32 s8, s68
    s_mov_b32 s9, s69
    s_mov_b32 s16, s72
    s_mov_b32 s17, s73
    s_mov_b32 s18, 25600
    s_mov_b32 s19, 0x20000
    v_mov_b32 {v(vKD)}, 0
    s_branch {L_com}
    {L_aux}:
    s_setprio {PRIO1}
    s_cmp_lt_u32 s28, 8
    s_cselect_b32 s54, 1, 0
    s_cmp_lt_u32 s26, 3
    s_cselect_b32 s40, s54, 0
    s_lshl_b32 s44, s26, 10
    s_add_u32 s38, s44, {LDS_KV}
    v_lshl_add_u32 {v(vKD)}, {v(vL)}, 4, s44
    s_mov_b32 s18, 25600
    s_mov_b32 s19, 0x20000
    s_lshl_b32 s46, s100, 7
    s_lshl_b32 s57, s45, 7
    s_mul_i32 s58, s100, 2560
    s_mul_i32 s59, s45, 2560
    s_bitcmp1_b32 s28, 2
    s_waitcnt lgkmcnt(0)
    s_mov_b32 s8, s68
    s_mov_b32 s9, s69
    s_cselect_b32 s16, s74, s72
    s_cselect_b32 s17, s75, s73
    ''')
    def a_start(c):
        for e in range(4):
            a(f'''
            s_add_u32 m0, s36, {LDS_X + c * 16384 + e * 1024}
            s_add_u32 s34, s{(46, 57)[c]}, {(e >> 1) * 16 * 1280}
            buffer_load_dwordx4 {v(vXD + (e & 1))}, s[8:11], s34 offen lds
            ''')
        lab = a.label('nokv')
        a(f'''
        s_cmp_eq_u32 s40, 0
        s_cbranch_scc1 {lab}
        s_add_u32 m0, s38, {c * 3072}
        s_nop 0
        buffer_load_dwordx4 {v(vKD)}, s[16:19], s{58 + c} offen lds
        {lab}:
        ''')
    a_start(0)
    if not LATE1:
        a_start(1)
    a(f'''
    s_cmp_eq_u32 s43, 1
    s_cselect_b32 s12, s82, s80
    s_cselect_b32 s13, s83, s81
    s_cmp_eq_u32 s51, 1
    s_cselect_b32 s12, s70, s12
    s_cselect_b32 s13, s71, s13
    s_cselect_b32 s14, 819200, s14
    {L_com}:
    s_mov_b32 s62, 0
    s_mov_b32 s63, -1
    s_and_b32 s44, s2, 7
    s_lshl_b32 s44, s44, 2
    s_bfe_u32 s46, s2, 0x20003
    s_add_u32 s29, s44, s46
    s_lshr_b32 s30, s2, 5
    ''')
    srd(a, 20, 78, WS_USED)
    srd(a, 64, 90, 2621440)
    if asmlib.STAMPS:
        a('s_mov_b32 s86, s88\ns_mov_b32 s87, s89')
    WDP = 86 if asmlib.STAMPS else 88
    if asmlib.STAMPS:
        a(f'''
        s_mov_b32 s88, s78
        s_mov_b32 s89, s79
        s_mov_b32 s90, 0x2000000
        s_mov_b32 s91, 0x20000
        s_mul_i32 s92, s2, 12
        s_add_u32 s92, s92, s24
        s_lshl_b32 s92, s92, 8
        s_add_u32 s92, s92, {asmlib.STAMP_OFF}
        ''')
    stamp(a, 0, early=True)
    stamp(a, 24)
    L_aux2 = a.label('aux2')
    a(f'''
    s_cmp_ge_u32 s24, 8
    s_cbranch_scc1 {L_aux2}
    ''')
    compute_wave(a, vL, vH, vR, L_end, c_start)
    a(f'{L_aux2}:')
    aux_wave(a, vL, vH, vR, L_end, WDP, a_start)
    a(f'''
    {L_end}:
    s_endpgm
    ''')
    return a.text()


def compute_wave(a, vL, vH, vR, L_end, c_start):
    al = Alloc(4, 168)
    T = al('T', 8, 4)
    ACC = al('acc', 64, 4)
    XF = al('xf', 32, 4)
    WF = al('wf', 16, 4)
    vXA = al('xa', 2)
    vWA = al('wa', 4)
    assert al.p == 130
    t0, t1, t2, t3, t4 = T, T + 1, T + 2, T + 3, T + 4
    a.c('=========== compute wave: phase 1 ===========')
    CR = 132
    XR = 132
    U = 160
    u0, u1, u2, u3, u4, u5 = range(U, U + 6)
    W4 = 144
    vN = 130
    srd(a, 4, 76, 256)

    a(f'''
    s_lshr_b32 s44, s30, 2
    s_lshl_b32 s46, s29, 1
    s_add_u32 s46, s46, s44
    s_and_b32 s44, s30, 3
    s_lshl_b32 s44, s44, 3
    s_add_u32 s45, s44, s24
    s_mul_i32 s37, s46, 40960
    s_add_u32 s37, s37, {OF_OFF}
    s_lshl_b32 s36, s45, 10
    s_add_u32 s36, s36, s37
    s_lshl_b32 s44, s45, 8
    s_add_u32 s37, s37, s44
    s_add_u32 s37, s37, 32768
    ''')
    PZ = 152
    poison = [f'v_mov_b32 {v(PZ + q)}, -1' for q in range(4)] + [
        f'v_lshlrev_b32 {v(u4)}, 4, {v(vL)}', f'v_lshlrev_b32 {v(u5)}, 2, {v(vL)}',
        f'buffer_store_dwordx4 {v(PZ, 4)}, {v(u4)}, s[20:23], s36 offen sc1',
        f'buffer_store_dword {v(PZ)}, {v(u5)}, s[20:23], s37 offen sc1']

    lines, load_cs, load_rows, fill_cs, fill_rows = stat_code(vL, vH, vR, CR, XR, 152, U, W4, 's56', 's56')
    stamp(a, 22)
    a(f'''
    v_and_b32 {v(t0)}, 15, {v(vL)}
    v_lshrrev_b32 {v(t1)}, 4, {v(vL)}
    v_lshrrev_b32 {v(t2)}, 1, {v(t0)}
    v_xor_b32 {v(t2)}, {v(t2)}, {v(t1)}
    v_lshlrev_b32 {v(t0)}, 7, {v(t0)}
    s_lshl_b32 s44, s25, 13
    v_add_u32 {v(t0)}, s44, {v(t0)}
    v_lshl_add_u32 {v(vXA)}, {v(t2)}, 4, {v(t0)}
    v_xor_b32 {v(t2)}, 4, {v(t2)}
    v_lshl_add_u32 {v(vXA + 1)}, {v(t2)}, 4, {v(t0)}
    v_bfe_u32 {v(t2)}, {v(vL)}, 2, 2
    v_lshl_add_u32 {v(t0)}, {v(t1)}, 3, {v(t2)}
    v_lshlrev_b32 {v(t0)}, 7, {v(t0)}
    v_and_b32 {v(t3)}, 3, {v(vL)}
    v_lshl_add_u32 {v(t0)}, {v(t3)}, 3, {v(t0)}
    v_and_b32 {v(t2)}, 2, {v(t2)}
    v_and_b32 {v(t1)}, 1, {v(t1)}
    v_xor_b32 {v(t1)}, {v(t1)}, {v(t2)}
    s_lshr_b32 s44, s26, 1
    s_and_b32 s57, s44, s48
    ''')
    for t in range(4):
        a(f'''
        s_lshl_b32 s44, s26, 1
        s_add_u32 s45, s44, {t >> 1}
        s_and_b32 s46, s45, 3
        s_lshr_b32 s45, s45, 2
        s_add_u32 s45, s45, {2 * (t & 1)}
        s_sub_u32 s44, s44, 3
        s_cmp_eq_u32 s57, 1
        s_cselect_b32 s45, s44, s45
        s_cselect_b32 s46, {t}, s46
        s_mul_i32 s45, s45, 24576
        s_add_u32 s45, s45, {LDS_W}
        v_xor_b32 {v(t2)}, s46, {v(t1)}
        v_lshl_add_u32 {v(t2)}, {v(t2)}, 5, {v(t0)}
        v_add_u32 {v(vWA + t)}, s45, {v(t2)}
        ''')

    def m16(d, A, B, first=False):
        return f'v_mfma_f32_16x16x32_bf16 {v(d, 4)}, {v(A, 4)}, {v(B, 4)}, ' + ('0' if first else v(d, 4))

    def xrd(g):
        c, sI = divmod(g, 2)
        return [f'ds_read_b128 {v(XF + 16 * (g & 1) + 4 * rt, 4)}, {v(vXA + sI)} offset:{LDS_X + (c % 3) * 16384 + 2048 * rt}' for rt in range(4)]

    def wrd(g, t):
        c, sI = divmod(g, 2)
        return [f'ds_read_b64_tr_b16 {v(WF + 4 * t + 2 * z, 2)}, {v(vWA + t)} offset:{(c % 3) * 8192 + 4096 * sI + 512 * z}' for z in range(2)]

    def tile(g, t):
        return [m16(ACC + 16 * t + 4 * rt, WF + 4 * t, XF + 16 * (g & 1) + 4 * rt, g == 0) for rt in range(4)]

    def chunk(c, fill=()):
        a.c(f'chunk {c}')
        if c:
            a('s_waitcnt lgkmcnt(0)')
        a('s_barrier')
        if not FEWST or c in (0, 1, 2, 9):
            stamp(a, 1 + c)
        if c == 9:
            lab = a.label('nqp')
            a(f's_cmp_eq_u32 s57, 0\ns_cbranch_scc1 {lab}\ns_setprio 2\n{lab}:')
        seq = []

        def rest(g, waits):
            pend = (wrd(g + 1, 0) + xrd(g + 1)) if g + 1 < 20 else []
            for t in range(1, 4):
                ms = tile(g, t)
                for q, m_ in enumerate(ms):
                    pre_ = [f's_waitcnt lgkmcnt({(0, 4, 10, 10)[t]})'] if (waits and q == 0) else []
                    ex = pend[2 * q:2 * q + 2] if t == 1 else []
                    if q == 3 and g + 1 < 20:
                        ex = ex + wrd(g + 1, t)
                    seq.append((pre_, m_, ex))
        if c > 0:
            rest(2 * c - 1, False)
        else:
            emit(a, wrd(0, 0) + xrd(0) + wrd(0, 1) + wrd(0, 2) + wrd(0, 3))
        g = 2 * c
        for q, m_ in enumerate(tile(g, 0)):
            seq.append((['s_waitcnt lgkmcnt(6)'] if q == 0 else [], m_, []))
        rest(g, True)
        for q, m_ in enumerate(tile(g + 1, 0)):
            seq.append((['s_waitcnt lgkmcnt(6)'] if q == 0 else [], m_, []))
        n, k_ = len(fill), len(seq)
        for q, (pre_, m_, ex) in enumerate(seq):
            emit(a, pre_)
            a(m_)
            emit(a, ex)
            emit(a, fill[(q * n) // k_:((q + 1) * n) // k_])

    if LATE1:
        c_start(1)
    if AST:
        a('s_waitcnt vmcnt(4)')
        chunk(0)
        a('s_waitcnt vmcnt(0)')
        for c in range(1, 6):
            chunk(c)
        chunk(6, [f'v_mov_b32 {v(vN)}, {NONCE_A}', f'ds_read_b32 {v(vN)}, {v(vN)}'])
        chunk(7)
        a(f'v_readfirstlane_b32 s98, {v(vN)}\ns_nop 0\ns_xor_b32 s99, s98, {NONCE_X}')
        f0, SPN_ = 7, 0
    else:
        SPN_ = SPN
        lab1, lab2 = a.label('rowv'), a.label('join')
        a(f's_cmp_eq_u32 s25, 1\ns_cbranch_scc1 {lab1}')
        for var, (ld, fl) in enumerate(((load_cs(), fill_cs()), (load_rows(), fill_rows()))):
            qp = [] if var == 0 else (lines(f'''
            s_mul_i32 s44, s27, {CH_BYTES}
            s_lshl_b32 s45, s28, 10
            s_add_u32 s44, s44, s45
            s_lshl_b32 s45, s26, 8
            s_add_u32 s44, s44, s45
            s_add_u32 s44, s44, {KV_OFF}
            s_cmp_lt_u32 s28, 14
            s_cselect_b32 s44, s44, 0x7f000000
            buffer_store_dword {v(PZ)}, {v(u5)}, s[20:23], s44 offen sc1
            ''') if KVP else []) + lines(f'''
            s_mul_i32 s44, s27, 163840
            s_mul_i32 s45, s28, 10240
            s_add_u32 s44, s44, s45
            s_mul_i32 s45, s26, 2560
            s_add_u32 s44, s44, s45
            s_add_u32 s44, s44, {QF_OFF}
            v_lshlrev_b32 {v(u5)}, 3, {v(vL)}
            buffer_store_dwordx4 {v(PZ, 4)}, {v(u4)}, s[20:23], s44 offen sc1
            buffer_store_dwordx4 {v(PZ, 4)}, {v(u4)}, s[20:23], s44 offen offset:1024 sc1
            buffer_store_dwordx2 {v(PZ, 2)}, {v(u5)}, s[20:23], s44 offen offset:2048 sc1
            ''')
            nl = [f'buffer_load_dword {v(vN)}, off, s[4:7], 0 sc1']
            if NOSL:
                ld = [['buffer_load_dword v165, off, s[4:7], 0']] * 5
                fl = fl[-6:]
            pz0 = poison + qp if PZ0 else []
            fl = (fl + nl) if PZ0 else (poison + qp + fl + nl)
            if SLC == 0:
                emit(a, ld)
            a(f's_waitcnt vmcnt({9 if SLC == 0 else 4})')
            chunk(0, (ld if SLC == -1 else []) + pz0)
            a(f's_waitcnt vmcnt({(5 if SLC <= 0 else 0) + ((2, 5)[var] if PZ0 else 0)})')
            n = len(fl)
            f0 = max(SLC, 0) + SLG
            for c in range(1, f0 + SPN):
                if c == SLC:
                    chunk(c, ld)
                elif c >= f0:
                    q = c - f0
                    chunk(c, ([f's_waitcnt vmcnt({(2, 5)[var] if PZ0 else 0})'] if q == 0 else []) + fl[(q * n) // SPN:((q + 1) * n) // SPN])
                else:
                    chunk(c)
            if var == 0:
                a(f's_branch {lab2}\n{lab1}:')
        a(f'{lab2}:')
        chunk(f0 + SPN)
        Lp, Lq = a.label('cnp'), a.label('cnd')
        a(f'''
        s_mov_b32 s93, {POLL_MAX}
        {Lp}:
        s_waitcnt vmcnt(0)
        v_readfirstlane_b32 s98, {v(vN)}
        s_cmp_lg_u32 s98, 0
        s_cbranch_scc1 {Lq}
        s_sub_u32 s93, s93, 1
        s_cbranch_scc1 {Lq}
        buffer_load_dword {v(vN)}, off, s[4:7], 0 sc1
        s_branch {Lp}
        {Lq}:
        s_xor_b32 s99, s98, {NONCE_X}
        ''')
        lab = a.label('noxid')
        a(f'''
        s_cmp_lg_u32 s24, 0
        s_cbranch_scc1 {lab}
        s_getreg_b32 s44, hwreg(HW_REG_XCC_ID, 0, 4)
        s_lshl_b32 s45, s29, 7
        s_lshl_b32 s46, s30, 3
        s_add_u32 s45, s45, s46
        s_add_u32 s45, s45, {F_X}
        v_mov_b32 {v(U)}, s98
        v_mov_b32 {v(U + 1)}, s44
        s_mov_b64 exec, 1
        buffer_store_dwordx2 {v(U, 2)}, off, s[20:23], s45 sc1
        s_mov_b64 exec, -1
        {lab}:
        ''')
        flag_store(a, 's56', U + 2)

    RC, CSF, vS16 = 132, 148, 131
    pre = lines(f'''
    v_and_b32 {v(t2)}, 15, {v(vL)}
    v_lshrrev_b32 {v(t3)}, 4, {v(vL)}
    s_lshl_b32 s44, s25, 10
    s_add_u32 s44, s44, {ROWC_A}
    v_lshl_add_u32 {v(t0)}, {v(t2)}, 4, s44
    s_lshl_b32 s44, s26, 8
    s_add_u32 s44, s44, {CS_A}
    v_lshl_add_u32 {v(t1)}, {v(t2)}, 2, s44
    v_lshl_add_u32 {v(t1)}, {v(t3)}, 12, {v(t1)}
    v_lshlrev_b32 {v(vS16)}, 4, {v(t2)}
    v_lshl_add_u32 {v(vS16)}, {v(t3)}, 9, {v(vS16)}
    ''')
    pre += [f'ds_read_b128 {v(RC + 4 * rt, 4)}, {v(t0)} offset:{256 * rt}' for rt in range(4)]
    for t in range(4):
        for z in range(2):
            pre.append(f'ds_read2st64_b32 {v(CSF + 4 * t + 2 * z, 2)}, {v(t1)} offset0:{8 * z} offset1:{8 * z + 4}')
        if t < 3:
            pre.append(f'v_add_u32 {v(t1)}, 64, {v(t1)}')
    for c in range(f0 + SPN_ + 1, 10):
        chunk(c, pre if c == 9 else ())
    a(f'''
    s_lshl_b32 s44, s24, 2
    s_add_u32 s44, s44, {CD_A}
    v_mov_b32 {v(t0)}, s44
    v_mov_b32 {v(t1)}, s98
    s_waitcnt lgkmcnt(0)
    ds_write_b32 {v(t0)}, {v(t1)}
    ''')
    NEG = XF
    HH = 148
    ms = tile(19, 1) + tile(19, 2) + tile(19, 3)
    mv = [f'v_mov_b32 {v(NEG + 4 * rt + r)}, {v(RC + 4 * rt)}' for rt in range(4) for r in range(4)]
    for q, m_ in enumerate(ms):
        a(m_)
        emit(a, mv[(q * 16) // 12:((q + 1) * 16) // 12])
    stamp(a, 12)
    a(f'''
    s_mov_b32 s46, {f2u(C0)}
    s_mov_b32 s47, {f2u(C1)}
    ''')
    for rt in range(4):
        for t in range(4):
            a(m16(ACC + 16 * t + 4 * rt, CSF + 4 * t, NEG + 4 * rt))
    L_q = a.label('qepi')
    L_ed = a.label('epidone')
    a(f'''
    s_lshl_b32 s44, s27, 2
    s_lshl_b32 s45, s25, 1
    s_add_u32 s60, s44, s45
    s_cmp_eq_u32 s57, 1
    s_cbranch_scc1 {L_q}
    s_lshr_b32 s44, s49, 4
    s_lshl_b32 s45, s26, 1
    s_add_u32 s44, s44, s45
    s_mul_i32 s42, s60, 108
    s_add_u32 s42, s42, s44
    s_lshl_b32 s42, s42, 10
    s_add_u32 s43, s42, {108 * 1024}
    ''')
    E1, E2, KC = XF + 16, WF, T
    for rt in range(4):
        TT = E1 + 8 * (rt % 2)
        PP = E2 + 8 * (rt % 2)
        G_ = lambda i: ACC + 32 * (i >> 2) + 4 * rt + (i & 3)
        rho = RC + 4 * rt + 1
        a(f'''
        v_mul_f32 {v(KC)}, s46, {v(rho)}
        v_mul_f32 {v(KC + 1)}, s46, {v(rho)}
        v_mul_f32 {v(KC + 4)}, {v(rho)}, {v(rho)}
        v_mov_b32 {v(RC + 4 * rt + 3)}, {v(RC + 4 * rt + 2)}
        v_mul_f32 {v(KC + 4)}, {v(KC + 4)}, {v(rho)}
        v_mul_f32 {v(KC + 2)}, s47, {v(KC + 4)}
        v_mul_f32 {v(KC + 3)}, s47, {v(KC + 4)}
        ''')
        rc = v(RC + 4 * rt + 2, 2)
        for i in range(0, 8, 2):
            a(f'v_pk_mul_f32 {v(TT + i, 2)}, {v(G_(i), 2)}, {v(G_(i), 2)}')
        for i in range(0, 8, 2):
            a(f'v_pk_fma_f32 {v(TT + i, 2)}, {v(TT + i, 2)}, {v(KC + 2, 2)}, {v(KC, 2)}')
        for i in range(0, 8, 2):
            a(f'v_pk_mul_f32 {v(TT + i, 2)}, {v(TT + i, 2)}, {v(G_(i), 2)}')
        for i in range(8):
            a(f'v_exp_f32 {v(TT + i)}, {v(TT + i)}')
        for i in range(0, 8, 2):
            a(f'v_pk_mul_f32 {v(PP + i, 2)}, {v(G_(i), 2)}, {v(G_(i) + 16, 2)}')
        for i in range(0, 8, 2):
            a(f'v_pk_fma_f32 {v(TT + i, 2)}, {v(TT + i, 2)}, {rc}, {rc}')
        for i in range(8):
            a(f'v_rcp_f32 {v(TT + i)}, {v(TT + i)}')
        a('s_nop 0')
        for i in range(0, 8, 2):
            a(f'v_pk_mul_f32 {v(PP + i, 2)}, {v(PP + i, 2)}, {v(TT + i, 2)}')
        for i in range(4):
            a(f'v_cvt_pk_bf16_f32 {v(HH + 4 * rt + i)}, {v(PP + 2 * i)}, {v(PP + 2 * i + 1)}')
    a(f's_branch {L_ed}')
    a(f'{L_q}:')
    a(f'''
    s_sub_u32 s44, s26, 2
    s_lshl_b32 s44, s44, 6
    s_add_u32 s44, s44, s50
    s_lshl_b32 s44, s44, 6
    s_add_u32 s44, s44, {QF_OFF}
    s_mov_b32 s45, {f2u(QSC)}
    s_mul_i32 s46, s60, 40960
    s_add_u32 s46, s46, s44
    s_add_u32 s47, s46, 40960
    ''')
    for rt in range(4):
        a(f'v_mul_f32 {v(T + rt)}, s45, {v(RC + 4 * rt + 1)}')
    for rt in range(4):
        for pz in range(2):
            O_ = E1 + 4 * ((2 * rt + pz) % 8)
            regs = [ACC + 16 * (2 * pz + (i >> 2)) + 4 * rt + (i & 3) for i in range(8)]
            for r_ in regs:
                a(f'v_mul_f32 {v(r_)}, {v(r_)}, {v(T + rt)}')
            for i in range(4):
                a(f'v_cvt_pk_bf16_f32 {v(O_ + i)}, {v(regs[2 * i])}, {v(regs[2 * i + 1])}')
            a(f'buffer_store_dwordx4 {v(O_, 4)}, {v(vS16)}, s[20:23], s{46 + (rt >> 1)} offen offset:{2048 * pz + 256 * (rt & 1)} sc1')
    a(f'{L_ed}:')
    stamp(a, 13)

    a.c('=========== compute wave: attention ===========')
    al3 = Alloc(4, 168)
    T = al3('T', 16, 4)
    S = al3('S', 32, 4)
    O = al3('O', 16, 4)
    V1 = al3('V1', 4, 4)
    V2 = al3('V2', 4, 4)
    Q1 = al3('Q1', 4, 4)
    K1 = al3('K1', 8, 4)
    K2 = al3('K2', 8, 4)
    P = al3('P', 16, 4)
    Q2 = al3('Q2', 2, 2)
    vK = al3('vK')
    vK2 = al3('vK2')
    a(f'''
    s_lshl_b32 s44, s27, 1
    s_add_u32 s44, s44, s25
    s_lshl_b32 s44, s44, 13
    s_lshl_b32 s45, s28, 2
    s_add_u32 s45, s45, s26
    s_lshl_b32 s45, s45, 7
    s_add_u32 s44, s44, s45
    s_add_u32 s41, s44, {F_QH}
    s_nop 1
    ''')
    for i in range(16):
        a(f'v_mov_b32 {v(O + i)}, 0')
    for i in range(4):
        a(f'v_mov_b32 {v(V1 + i)}, 0')
        a(f'v_mov_b32 {v(V2 + i)}, 0')
    a(f'''
    s_mov_b32 s45, {KVR}
    v_lshl_add_u32 {v(vK)}, {v(vL)}, 4, s45
    v_lshl_add_u32 {v(vK2)}, {v(vL)}, 3, s45
    s_mul_i32 s45, s24, 5
    v_lshlrev_b32 {v(T + 4)}, 4, {v(vR)}
    s_lshr_b32 s44, s30, 2
    s_lshl_b32 s46, s29, 1
    s_add_u32 s44, s44, s46
    s_mul_i32 s44, s44, 40960
    s_and_b32 s46, s30, 3
    s_mul_i32 s46, s46, 10240
    s_add_u32 s44, s44, s46
    s_add_u32 s40, s44, {QF_OFF}
    ''')
    for z, (dq, useh) in enumerate(((0, 1), (2, 1), (4, 0))):
        a(f's_add_u32 s46, s45, {dq}')
        a(f'v_add_u32 {v(T + 5)}, s46, {v(vH)}' if useh else f'v_mov_b32 {v(T + 5)}, s46')
        a(f'''
        v_lshrrev_b32 {v(T + 6)}, 3, {v(T + 5)}
        v_lshl_add_u32 {v(T + 6)}, {v(T + 6)}, 11, {v(T + 4)}
        v_and_b32 {v(T + 7)}, 3, {v(T + 5)}
        v_lshl_add_u32 {v(T + 6)}, {v(T + 7)}, 9, {v(T + 6)}
        v_bfe_u32 {v(T + 5)}, {v(T + 5)}, 2, 1
        v_lshl_add_u32 {v(T + 13 + z)}, {v(T + 5)}, 3, {v(T + 6)}
        ''')
    a('s_setprio 0')
    for i in range(8):
        a(f'v_mov_b32 {v(P + 8 + i)}, 0')
    Lp, Lq = a.label('qp'), a.label('qpd')
    a(f'''
    s_mov_b32 s93, {OPOLL_MAX}
    {Lp}:
    buffer_load_dwordx2 {v(Q1, 2)}, {v(T + 13)}, s[20:23], s40 offen sc1
    buffer_load_dwordx2 {v(Q1 + 2, 2)}, {v(T + 14)}, s[20:23], s40 offen sc1
    buffer_load_dwordx2 {v(Q2, 2)}, {v(T + 15)}, s[20:23], s40 offen sc1
    s_waitcnt vmcnt(0)
    v_max3_u32 {v(T)}, {v(Q1)}, {v(Q1 + 1)}, {v(Q1 + 2)}
    v_max3_u32 {v(T + 1)}, {v(Q1 + 3)}, {v(Q2)}, {v(Q2 + 1)}
    v_max_u32 {v(T)}, {v(T)}, {v(T + 1)}
    v_cmp_eq_u32 vcc, -1, {v(T)}
    s_nop 1
    s_cmp_eq_u64 vcc, 0
    s_cbranch_scc1 {Lq}
    s_sub_u32 s93, s93, 1
    s_cbranch_scc1 {Lq}
    s_sleep {QSLEEP}
    s_branch {Lp}
    {Lq}:
    v_mov_b32 {v(T + 2)}, 0
    v_cndmask_b32 {v(Q2)}, {v(Q2)}, {v(T + 2)}, {HM}
    v_cndmask_b32 {v(Q2 + 1)}, {v(Q2 + 1)}, {v(T + 2)}, {HM}
    ''')
    stamp(a, 14)
    if NOA0:
        L1, L2 = a.label('klw'), a.label('kld')
        a(f'''
        v_and_b32 {v(T)}, 3, {v(vL)}
        v_lshlrev_b32 {v(T)}, 2, {v(T)}
        v_add_u32 {v(T)}, {KL_A}, {v(T)}
        s_mov_b32 s93, {POLL_MAX * 8}
        {L1}:
        ds_read_b32 {v(T + 1)}, {v(T)}
        s_waitcnt lgkmcnt(0)
        v_cmp_eq_u32 vcc, s98, {v(T + 1)}
        s_nop 1
        s_cmp_eq_u64 vcc, -1
        s_cbranch_scc1 {L2}
        s_sleep 1
        s_sub_u32 s93, s93, 1
        s_cbranch_scc0 {L1}
        {L2}:
        ''')
    else:
        a('s_barrier')
    stamp(a, 15)
    o0, o1, o2 = tile_offs(0), tile_offs(1), tile_offs(2)
    a(f'''
    ds_read_b128 {v(K1, 4)}, {v(vK)} offset:{o0[0]}
    ds_read_b128 {v(K1 + 4, 4)}, {v(vK)} offset:{o1[0]}
    ds_read2st64_b64 {v(K2, 4)}, {v(vK2)} offset0:{o0[1] // 512} offset1:{o0[1] // 512 + 1}
    s_waitcnt lgkmcnt(0)
    ''')

    def set_m(mreg, offset):
        t0, t1, t2, t3 = T + 8, T + 9, T + 10, T + 11
        a(f'v_sub_f32 {v(t0)}, {f2u(-offset) if offset else 0}, {v(mreg)}')
        a(f'''
        v_cvt_pk_bf16_f32 {v(t1)}, {v(t0)}, {v(t0)}
        v_and_b32 {v(t2)}, 0xffff0000, {v(t1)}
        v_sub_f32 {v(t2)}, {v(t0)}, {v(t2)}
        v_cvt_pk_bf16_f32 {v(t1)}, {v(t0)}, {v(t2)}
        v_and_b32 {v(t3)}, 0xffff0000, {v(t1)}
        v_sub_f32 {v(t2)}, {v(t2)}, {v(t3)}
        v_mov_b32 {v(t3)}, 0
        v_cvt_pk_bf16_f32 {v(t2)}, {v(t2)}, {v(t3)}
        v_cndmask_b32 {v(Q2)}, {v(Q2)}, {v(t1)}, {HM}
        v_cndmask_b32 {v(Q2 + 1)}, {v(Q2 + 1)}, {v(t2)}, {HM}
        ''')

    def cross_half_max(reg):
        t = T + 12
        a(f'''
        v_mov_b32 {v(t)}, {v(reg)}
        s_nop 1
        v_permlane32_swap_b32 {v(reg)}, {v(t)}
        s_nop 1
        v_max_f32 {v(reg)}, {v(reg)}, {v(t)}
        ''')

    for t in range(2):
        a(mfma16(S + 16 * t, K1 + 4 * t, Q1))
    if HST < 0:
        lab = a.label('nohst')
        a(f'''
        s_cmp_eq_u32 s57, 1
        s_cbranch_scc1 {lab}
        ''')
        for k in range(4):
            a(f'buffer_store_dwordx4 {v(HH + 4 * k, 4)}, {v(vS16)}, s[20:23], s{42 + (k >> 1)} offen offset:{256 * (k & 1)} sc1')
        a(f'{lab}:')
    a('s_nop 9')
    for t in range(2):
        a(mfma8(S + 16 * t, K2 + 2 * t, Q2, S + 16 * t))
    a('s_nop 11')
    m = T + 4
    for z in range(2):
        a(f'v_max3_f32 {v(m + z)}, {v(S + 16 * z)}, {v(S + 16 * z + 1)}, {v(S + 16 * z + 2)}')
    for i in range(3, 15, 2):
        for z in range(2):
            a(f'v_max3_f32 {v(m + z)}, {v(m + z)}, {v(S + 16 * z + i)}, {v(S + 16 * z + i + 1)}')
    a(f'v_max3_f32 {v(m)}, {v(m)}, {v(S + 15)}, {v(S + 31)}')
    a(f'v_max_f32 {v(m)}, {v(m)}, {v(m + 1)}')
    cross_half_max(m)
    set_m(m, M_OFFSET)
    a('s_nop 1')
    a(mfma16(S, K1, Q1))
    a(f'''
    ds_read_b128 {v(K1, 4)}, {v(vK)} offset:{o2[0]}
    s_mov_b32 s34, 4
    s_nop 7
    ''')
    a(mfma8(S, K2, Q2, S))
    a('s_nop 9')
    stamp(a, 16)

    def toff(tt):
        tt &= 15
        o = tile_offs(tt & 3)
        return [x + (tt >> 2) * CH_BYTES for x in o]

    def k2read(reg, tt):
        o = toff(tt)[1]
        assert o % 512 == 0
        return f'ds_read2st64_b64 {v(reg, 4)}, {v(vK2)} offset0:{o // 512} offset1:{o // 512 + 1}'

    L_hf, L_hb = a.label('hflag'), a.label('hback')
    L_hs, L_hsb = a.label('hst'), a.label('hstb')
    a('s_cmp_eq_u32 s57, 1\ns_cselect_b32 s33, 99, 4')

    def slot(t):
        Sx, Sn = S + 16 * (t & 1), S + 16 * ((t + 1) & 1)
        Px, Pp = P + 8 * (t & 1), P + 8 * ((t + 1) & 1)
        kt = t + 1
        kb = kt & 1
        k2 = K2 + 4 * ((kt >> 1) & 1) + 2 * (kt & 1)
        m_ = [mfma16(Sn, K1 + 4 * kb, Q1), mfma16(O, V1, Pp, O), mfma8(Sn, k2, Q2, Sn), mfma16(O, V2, Pp + 4, O)]
        after = [[], [], [], []]
        if t & 3 == 1:
            after[0] = ['s_barrier']
        after[0] += [f'ds_read_b128 {v(K1 + 4 * kb, 4)}, {v(vK)} offset:{toff(t + 3)[0]}', 's_waitcnt lgkmcnt(2)']
        after[1] = [f'ds_read_b128 {v(V1, 4)}, {v(vK)} offset:{toff(t)[2]}']
        if t & 1:
            after[1] += [k2read(K2 + 4 * (((t + 3) >> 1) & 1), t + 3)]
        after[2] += [f's_waitcnt lgkmcnt({3 if t & 1 else 2})']
        after[3] = [f'ds_read_b128 {v(V2, 4)}, {v(vK)} offset:{toff(t)[3]}']
        if t == 15:
            after[3] += ['s_sub_u32 s34, s34, 1']
        if t == HST:
            after[3] += ['s_cmp_eq_u32 s34, s33', f's_cbranch_scc1 {L_hs}', f'{L_hsb}:']
        if t == HFLAG_T:
            after[3] += ['s_cmp_eq_u32 s34, 4', f's_cbranch_scc1 {L_hf}', f'{L_hb}:']
        val = []
        for i in range(8):
            val.append(f'v_exp_f32 {v(Sx + 2 * i)}, {v(Sx + 2 * i)}')
            val.append(f'v_exp_f32 {v(Sx + 2 * i + 1)}, {v(Sx + 2 * i + 1)}')
            if i > 0:
                val.append(f'v_cvt_pk_bf16_f32 {v(Px + i - 1)}, {v(Sx + 2 * i - 2)}, {v(Sx + 2 * i - 1)}')
        val.append(f'v_cvt_pk_bf16_f32 {v(Px + 7)}, {v(Sx + 14)}, {v(Sx + 15)}')
        groups = [val[0:5], val[5:11], val[11:17], val[17:24]]
        for g in range(4):
            a(m_[g])
            emit(a, after[g])
            emit(a, groups[g])

    a(k2read(K2 + 4, 2))
    L_loop = a.label('att')
    a('.p2align 6')
    a(f'{L_loop}:')
    for t in range(16):
        slot(t)
    a(f'''
    s_cmp_lg_u32 s34, 0
    s_cbranch_scc1 {L_loop}
    s_waitcnt lgkmcnt(0)
    ''')
    a(mfma16(O, V1, P + 8, O))
    a(mfma16(O, V2, P + 12, O))
    a(f'''
    v_lshlrev_b32 {v(T + 2)}, 4, {v(vL)}
    v_lshlrev_b32 {v(T + 3)}, 3, {v(vL)}
    v_mov_b32 {v(T + 9)}, 0x7f000000
    v_cndmask_b32 {v(T + 3)}, {v(T + 3)}, {v(T + 9)}, {HM}
    v_lshlrev_b32 {v(T + 4)}, 3, {v(vR)}
    v_lshl_add_u32 {v(T + 4)}, {v(vH)}, 9, {v(T + 4)}
    v_mov_b32 {v(T + 5)}, {SX_A}
    ds_read_b32 {v(T + 5)}, {v(T + 5)}
    s_nop 4
    ''')
    stamp(a, 17)
    L_fb = a.label('fb')
    L_out = a.label('aout')
    a(f'''
    s_mov_b32 s44, {f2u(2.0 ** 125)}
    s_mov_b32 s45, {f2u(2.0 ** -103)}
    v_add_f32 {v(T)}, |{v(O)}|, |{v(O + 1)}|
    v_add_f32 {v(T + 1)}, |{v(O + 2)}|, |{v(O + 3)}|
    ''')
    for i in range(4, 12, 2):
        a(f'v_add_f32 {v(T)}, {v(T)}, |{v(O + i)}|')
        a(f'v_add_f32 {v(T + 1)}, {v(T + 1)}, |{v(O + i + 1)}|')
    a(f'''
    v_add_f32 {v(T)}, {v(T)}, {v(T + 1)}
    v_add_f32 {v(T + 1)}, {v(T)}, {v(O + 12)}
    s_waitcnt lgkmcnt(0)
    v_readfirstlane_b32 s38, {v(T + 5)}
    v_cmp_le_f32 s[46:47], s45, {v(T)}
    v_cmp_gt_f32 s[48:49], s44, {v(T + 1)}
    s_nop 1
    s_and_b64 s[46:47], s[46:47], s[48:49]
    s_cmp_eq_u64 s[46:47], -1
    s_cbranch_scc0 {L_fb}
    {L_out}:
    v_rcp_f32 {v(T)}, {v(O + 12)}
    s_nop 0
    ''')
    for i in range(12):
        a(f'v_mul_f32 {v(O + i)}, {v(O + i)}, {v(T)}')
    for i in range(6):
        a(f'v_cvt_pk_bf16_f32 {v(P + i)}, {v(O + 2 * i)}, {v(O + 2 * i + 1)}')
    L_pl, L_st = a.label('oplain'), a.label('ostored')
    a(f'''
    s_cmp_eq_u32 s38, s98
    s_cbranch_scc1 {L_pl}
    buffer_store_dwordx4 {v(P, 4)}, {v(T + 2)}, s[20:23], s36 offen sc1
    buffer_store_dwordx2 {v(P + 4, 2)}, {v(T + 3)}, s[20:23], s37 offen sc1
    s_branch {L_st}
    {L_pl}:
    buffer_store_dwordx4 {v(P, 4)}, {v(T + 2)}, s[20:23], s36 offen
    buffer_store_dwordx2 {v(P + 4, 2)}, {v(T + 3)}, s[20:23], s37 offen
    {L_st}:
    ''')
    stamp(a, 18)
    g2_ids(a)
    OFR = 120
    a(f'''
    s_cmp_eq_u32 s25, 1
    s_cselect_b32 s44, s60, s59
    s_mul_i32 s44, s44, 40960
    s_add_u32 s44, s44, {OF_OFF}
    s_lshl_b32 s45, s26, 13
    s_add_u32 s38, s44, s45
    s_add_u32 s38, s38, 3072
    s_add_u32 s39, s38, 4096
    s_lshl_b32 s45, s26, 11
    s_add_u32 s40, s44, s45
    s_add_u32 s40, s40, 32768
    s_mul_i32 s44, s26, 14336
    s_lshl_b32 s45, s25, 10
    s_add_u32 s44, s44, s45
    s_add_u32 s44, s44, {OL_A}
    v_add_u32 {v(T + 5)}, s44, {v(T + 2)}
    s_barrier
    ''')
    Lp, Lq = a.label('cop'), a.label('copd')
    a(f's_mov_b32 s93, {OPOLL_MAX}\n{Lp}:')
    for q in range(5):
        a(f'buffer_load_dwordx4 {v(OFR + 4 * q, 4)}, {v(T + 2)}, s[20:23], {"s38" if q < 4 else "s39"} offen offset:{1024 * (q & 3)} sc1')
    for q in range(4):
        a(f'buffer_load_dwordx2 {v(OFR + 20 + 2 * q, 2)}, {v(T + 4)}, s[20:23], s40 offen offset:{1024 * (q >> 1) + 256 * (q & 1)} sc1')
    a('s_waitcnt vmcnt(0)')
    a(f'v_max3_u32 {v(T)}, {v(OFR)}, {v(OFR + 1)}, {v(OFR + 2)}')
    for i in range(3, 27, 2):
        a(f'v_max3_u32 {v(T)}, {v(T)}, {v(OFR + i)}, {v(OFR + i + 1)}')
    a(f'''
    v_max_u32 {v(T)}, {v(T)}, {v(OFR + 27)}
    v_cmp_eq_u32 vcc, -1, {v(T)}
    s_nop 1
    s_cmp_eq_u64 vcc, 0
    s_cbranch_scc1 {Lq}
    s_sub_u32 s93, s93, 1
    s_cbranch_scc1 {Lq}
    s_sleep {OSLEEP}
    s_branch {Lp}
    {Lq}:
    ''')
    for q in range(7):
        a(f'ds_write_b128 {v(T + 5)}, {v(OFR + 4 * q, 4)} offset:{2048 * q}')
    stamp(a, 21)
    if FFL:
        a(f'''
        s_lshl_b32 s44, s24, 2
        s_add_u32 s44, s44, {OW_A}
        v_mov_b32 {v(T)}, s44
        v_mov_b32 {v(T + 1)}, s98
        s_waitcnt lgkmcnt(0)
        ds_write_b32 {v(T)}, {v(T + 1)}
        ''')
    g2_out(a, S, vL, 's24', 0)
    if not FFL:
        a('s_waitcnt lgkmcnt(0)')
        a('s_barrier')
    a('s_barrier')
    stamp(a, 19)
    g2_out(a, S, vL, 's24', 1)
    if asmlib.STAMPS:
        a('s_waitcnt vmcnt(0)')
    stamp(a, 20)
    diag_end(a)
    a(f's_branch {L_end}')

    if HST >= 0:
        a(f'{L_hs}:')
        for k in range(4):
            a(f'buffer_store_dwordx4 {v(HH + 4 * k, 4)}, {v(vS16)}, s[20:23], s{42 + (k >> 1)} offen offset:{256 * (k & 1)} sc1')
        a(f's_branch {L_hsb}')
    a(f'{L_hf}:')
    a('s_waitcnt vmcnt(0)')
    flag_store(a, 's41', T + 2)
    a(f's_branch {L_hb}')
    a(f'{L_fb}:')
    L1 = a.label('fb1')
    L2 = a.label('fb2')
    a(f'''
    v_lshlrev_b32 {v(T + 13)}, 4, {v(vL)}
    v_lshlrev_b32 {v(T + 7)}, 3, {v(vL)}
    v_mov_b32 {v(T + 14)}, 0
    v_mov_b32 {v(T + 15)}, 0xff800000
    v_cndmask_b32 {v(Q2)}, {v(Q2)}, {v(T + 14)}, {HM}
    v_cndmask_b32 {v(Q2 + 1)}, {v(Q2 + 1)}, {v(T + 14)}, {HM}
    s_mov_b32 s77, {KV_OFF}
    s_mov_b32 s34, 32
    {L1}:
    buffer_load_dwordx4 {v(K1, 4)}, {v(T + 13)}, s[20:23], s77 offen sc1
    buffer_load_dwordx4 {v(K1 + 4, 4)}, {v(T + 13)}, s[20:23], s77 offen offset:1024 sc1
    buffer_load_dwordx2 {v(K2, 2)}, {v(T + 7)}, s[20:23], s77 offen offset:2048 sc1
    buffer_load_dwordx2 {v(K2 + 2, 2)}, {v(T + 7)}, s[20:23], s77 offen offset:2560 sc1
    s_waitcnt vmcnt(0)
    ''')
    for t in range(2):
        a(mfma16(S + 16 * t, K1 + 4 * t, Q1))
    a('s_nop 9')
    for t in range(2):
        a(mfma8(S + 16 * t, K2 + 2 * t, Q2, S + 16 * t))
    a('s_nop 15')
    for i in range(0, 32, 2):
        a(f'v_max3_f32 {v(T + 15)}, {v(T + 15)}, {v(S + i)}, {v(S + i + 1)}')
    a(f'''
    s_add_u32 s77, s77, 7168
    s_sub_u32 s34, s34, 1
    s_cmp_lg_u32 s34, 0
    s_cbranch_scc1 {L1}
    ''')
    cross_half_max(T + 15)
    set_m(T + 15, 0.0)
    for i in range(16):
        a(f'v_mov_b32 {v(O + i)}, 0')
    a(f'''
    s_mov_b32 s77, {KV_OFF}
    s_mov_b32 s34, 64
    {L2}:
    s_and_b32 s78, s34, 1
    s_lshl_b32 s79, s78, 10
    s_add_u32 s79, s79, s77
    s_lshl_b32 s80, s78, 9
    s_add_u32 s80, s80, s77
    s_lshl_b32 s81, s78, 11
    s_add_u32 s81, s81, s77
    s_add_u32 s81, s81, 3072
    buffer_load_dwordx4 {v(K1, 4)}, {v(T + 13)}, s[20:23], s79 offen sc1
    buffer_load_dwordx2 {v(K2, 2)}, {v(T + 7)}, s[20:23], s80 offen offset:2048 sc1
    buffer_load_dwordx4 {v(V1, 4)}, {v(T + 13)}, s[20:23], s81 offen sc1
    buffer_load_dwordx4 {v(V2, 4)}, {v(T + 13)}, s[20:23], s81 offen offset:1024 sc1
    s_waitcnt vmcnt(0)
    {mfma16(S, K1, Q1)}
    s_nop 10
    {mfma8(S, K2, Q2, S)}
    s_nop 15
    ''')
    for i in range(16):
        a(f'v_exp_f32 {v(S + i)}, {v(S + i)}')
    a('s_nop 0')
    for i in range(8):
        a(f'v_cvt_pk_bf16_f32 {v(P + i)}, {v(S + 2 * i)}, {v(S + 2 * i + 1)}')
    a(f'''
    s_nop 1
    {mfma16(O, V1, P, O)}
    {mfma16(O, V2, P + 4, O)}
    s_mul_i32 s78, s78, 7168
    s_add_u32 s77, s77, s78
    s_sub_u32 s34, s34, 1
    s_cmp_lg_u32 s34, 0
    s_cbranch_scc1 {L2}
    s_nop 15
    s_branch {L_out}
    ''')


def g2_ids(a):
    a('''
    s_lshr_b32 s57, s30, 1
    s_and_b32 s58, s30, 1
    s_lshl_b32 s44, s29, 1
    s_add_u32 s59, s44, s58
    s_xor_b32 s60, s59, 1
    s_mul_i32 s44, s57, 320
    s_lshl_b32 s45, s58, 7
    s_add_u32 s61, s44, s45
    ''')


def g2_out(a, T, vL, wsg, part):
    L_skip = a.label('g2o')
    a(f'''
    s_cmp_ge_u32 {wsg}, 10
    s_cbranch_scc1 {L_skip}
    ''')
    if part == 0:
        a(f'''
        s_lshr_b32 s45, {wsg}, 1
        s_and_b32 s46, {wsg}, 1
        s_lshl_b32 s46, s46, 4
        v_lshrrev_b32 {v(T)}, 2, {v(vL)}
        v_add_u32 {v(T)}, s46, {v(T)}
        v_and_b32 {v(T + 1)}, 3, {v(vL)}
        s_and_b32 s47, s45, 1
        s_cmp_eq_u32 s47, 1
        s_cselect_b32 s47, s60, s59
        s_mul_i32 s47, s47, {32 * 1280}
        s_lshr_b32 s48, s45, 1
        s_add_u32 s49, s48, s58
        s_lshl_b32 s49, s49, 6
        s_lshl_b32 s50, s58, 7
        s_sub_u32 s50, 128, s50
        s_cmp_eq_u32 s48, 2
        s_cselect_b32 s49, s50, s49
        s_add_u32 s47, s47, s49
        s_add_u32 s31, s47, s61
        v_mul_u32_u24 {v(T + 6)}, 1280, {v(T)}
        v_lshl_add_u32 {v(T + 6)}, {v(T + 1)}, 4, {v(T + 6)}
        buffer_load_dwordx4 {v(T + 2, 4)}, {v(T + 6)}, s[8:11], s31 offen
        v_lshlrev_b32 {v(T + 1)}, 1, {v(T + 1)}
        v_and_b32 {v(T + 7)}, 7, {v(T)}
        v_xor_b32 {v(T + 1)}, {v(T + 1)}, {v(T + 7)}
        v_lshlrev_b32 {v(T)}, 7, {v(T)}
        v_lshl_add_u32 {v(T)}, {v(T + 1)}, 4, {v(T)}
        s_lshl_b32 s47, s45, 12
        v_add_u32 {v(T)}, s47, {v(T)}
        v_xor_b32 {v(T + 1)}, 16, {v(T)}
        ''')
    else:
        for w in range(4):
            if w == 2:
                a(f'v_add_u32 {v(T)}, {WO_HI}, {v(T)}\nv_add_u32 {v(T + 1)}, {WO_HI}, {v(T + 1)}')
            a(f'ds_read_b128 {v(T + 8 + 8 * w, 4)}, {v(T)} offset:{21504 * (w & 1)}')
            a(f'ds_read_b128 {v(T + 12 + 8 * w, 4)}, {v(T + 1)} offset:{21504 * (w & 1)}')
        a('s_waitcnt vmcnt(0)')
        for i in range(4):
            a(f'''
            v_lshlrev_b32 {v(T + 40 + 2 * i)}, 16, {v(T + 2 + i)}
            v_and_b32 {v(T + 41 + 2 * i)}, 0xffff0000, {v(T + 2 + i)}
            ''')
        a('s_waitcnt lgkmcnt(4)')
        for i in range(0, 8, 2):
            a(f'v_pk_add_f32 {v(T + 8 + i, 2)}, {v(T + 8 + i, 2)}, {v(T + 16 + i, 2)}')
        for i in range(0, 8, 2):
            a(f'v_pk_add_f32 {v(T + 8 + i, 2)}, {v(T + 8 + i, 2)}, {v(T + 40 + i, 2)}')
        a('s_waitcnt lgkmcnt(0)')
        for i in range(0, 8, 2):
            a(f'v_pk_add_f32 {v(T + 24 + i, 2)}, {v(T + 24 + i, 2)}, {v(T + 32 + i, 2)}')
        for i in range(0, 8, 2):
            a(f'v_pk_add_f32 {v(T + 8 + i, 2)}, {v(T + 8 + i, 2)}, {v(T + 24 + i, 2)}')
        for i in range(4):
            a(f'v_cvt_pk_bf16_f32 {v(T + 16 + i)}, {v(T + 8 + 2 * i)}, {v(T + 9 + 2 * i)}')
        a(f'buffer_store_dwordx4 {v(T + 16, 4)}, {v(T + 6)}, s[64:67], s31 offen{OUTSC}')
    a(f'{L_skip}:')


def aux_wave(a, vL, vH, vR, L_end, WDP, a_start):
    al = Alloc(4, 168)
    T = al('T', 16, 4)
    vXD = al('xd', 2)
    vWD = al('wd', 2)
    vKD = al('kd')
    vKX = al('kx')
    vKW = al('kw')
    XR = al('xr', 10, 2)
    CR = al('cr', 20, 2)
    PF = al('pf', 2)
    AKV = al('akv', 16, 4)
    KXF = al('kxf', 4, 4)
    KWF = al('kwf', 4, 4)
    FX = al('fx', 16, 4)
    RD = al('rd', 48, 4)
    JA = al('ja', 2, 2)
    JS = al('js')
    t0, t1, t2, t3, t4, t5 = T, T + 1, T + 2, T + 3, T + 4, T + 5
    vm = VM()
    a.c('=========== aux wave: phase 1 ===========')
    assert (vXD, vWD, vKD) == (20, 22, 24)

    def dma_group(c, kvonly=False, fill=()):
        st = c % 3
        lab = a.label('nokv')
        a(f'''
        {f's_add_u32 s35, s100, {c}' if ROT else f's_and_b32 s35, s100, {7 if c < 8 else 1}'}
        {'s_sub_u32 s34, s35, 10' if ROT else f's_xor_b32 s35, s35, {c}'}
        {'s_cselect_b32 s35, s35, s34' if ROT else ''}
        s_mul_i32 s33, s32, s35
        s_mul_i32 s34, s35, 2560
        s_lshl_b32 s35, s35, 7
        s_cmp_eq_u32 s40, 0
        s_cbranch_scc1 {lab}
        s_add_u32 m0, s38, {st * 3072}
        s_nop 0
        buffer_load_dwordx4 {v(vKD)}, s[16:19], s34 offen lds
        {lab}:
        ''')
        vm.add(f'c{c}', 1, optional=True)
        if kvonly or (NODMA and c > 2):
            vm.add(f'c{c}', 1, optional=True)
            return
        n = len(fill)

        def gap(q):
            for it in fill[(q * n) // 12:((q + 1) * n) // 12]:
                if callable(it):
                    it = it()
                for ln in ([it] if isinstance(it, str) else it):
                    a(ln)
                    if ln.startswith('buffer_store'):
                        vm.add('st', 1)
                    elif ln.startswith('buffer_load'):
                        vm.add('sl', 1)
        for e in range(4):
            a(f'''
            s_add_u32 m0, s36, {LDS_X + st * 16384 + e * 1024}
            s_add_u32 s34, s35, {(e >> 1) * 16 * 1280}
            buffer_load_dwordx4 {v(vXD + (e & 1))}, s[8:11], s34 offen lds
            ''')
            vm.add(f'c{c}', 1)
            gap(e)
        for e in range(8):
            a(f'''
            s_add_u32 m0, s37, {st * 8192 + e * 1024}
            s_nop 0
            buffer_load_dwordx4 {v(vWD + (e & 1))}, s[12:15], s33 offen lds
            ''')
            vm.add(f'c{c}', 1)
            if e < 7:
                a('s_add_u32 s33, s33, s31')
            gap(4 + e)

    vm.add('c0', 4)
    vm.add('c0', 1, optional=True)
    if not LATE1:
        vm.add('c1', 4)
        vm.add('c1', 1, optional=True)

    def jit(c):
        if not JIT or c > 9:
            return
        lab = a.label('nojit')
        a(f'''
        s_cmp_lg_u32 s26, 3
        s_cbranch_scc1 {lab}
        global_load_dword v165, {v(JA, 2)}, off
        v_add_co_u32 {v(JA)}, vcc, {v(JA)}, {v(JS)}
        s_nop 1
        v_addc_co_u32 {v(JA + 1)}, vcc, 0, {v(JA + 1)}, vcc
        {lab}:
        ''')
        vm.add('jit', 1, optional=True)

    if JIT:
        a(f'v_mov_b32 {v(JA)}, s68\nv_mov_b32 {v(JA + 1)}, s69')
        lab = a.label('nojs')
        a(f'''
        s_cmp_lg_u32 s26, 3
        s_cbranch_scc1 {lab}
        s_lshr_b32 s44, s2, 3
        s_and_b32 s45, s44, 7
        s_lshr_b32 s46, s44, 3
        s_lshl_b32 s46, s46, 5
        s_lshl_b32 s47, s27, 7
        s_add_u32 s46, s46, s47
        v_add_u32 {v(t0)}, s46, {v(vR)}
        v_mul_u32_u24 {v(t0)}, 1280, {v(t0)}
        v_add_u32 {v(t0)}, {128 * JIT}, {v(t0)}
        v_bfe_u32 {v(t1)}, {v(vL)}, 3, 1
        v_bfe_u32 {v(t2)}, {v(vL)}, 4, 1
        v_and_b32 {v(t3)}, s48, {v(t1)}
        v_cmp_eq_u32 s[58:59], 1, {v(t3)}
        v_cmp_eq_u32 s[60:61], 1, {v(t2)}
        v_mov_b32 {v(t4)}, 3456
        v_mov_b32 {v(t5)}, 1280
        v_cndmask_b32 {v(t4)}, {v(t4)}, {v(t5)}, s[58:59]
        s_xor_b32 s44, s48, 1
        v_and_b32 {v(t5)}, s44, {v(t1)}
        v_lshlrev_b32 {v(t5)}, 6, {v(t5)}
        v_add_u32 {v(t5)}, s49, {v(t5)}
        v_lshlrev_b32 {v(t3)}, 6, {v(t2)}
        v_add_u32 {v(t3)}, s50, {v(t3)}
        v_cndmask_b32 {v(t5)}, {v(t5)}, {v(t3)}, s[58:59]
        s_lshl_b32 s45, s45, 3
        s_add_u32 s45, s45, {64 * JIT}
        v_and_b32 {v(t3)}, 7, {v(vL)}
        v_add_u32 {v(t3)}, s45, {v(t3)}
        v_mul_lo_u32 {v(t3)}, {v(t3)}, {v(t4)}
        v_lshl_add_u32 {v(t3)}, {v(t5)}, 1, {v(t3)}
        v_cndmask_b32 {v(t0)}, {v(t0)}, {v(t3)}, {HM}
        v_lshlrev_b32 {v(t4)}, 6, {v(t4)}
        v_mov_b32 {v(t5)}, 128
        v_cndmask_b32 {v(JS)}, {v(t5)}, {v(t4)}, {HM}
        ''')
        for z in range(2):
            a(f'''
            v_mov_b32 {v(t1)}, s{80 + z}
            v_mov_b32 {v(t2)}, s{82 + z}
            v_cndmask_b32 {v(t1)}, {v(t1)}, {v(t2)}, s[60:61]
            v_mov_b32 {v(t2)}, s{70 + z}
            v_cndmask_b32 {v(t1)}, {v(t1)}, {v(t2)}, s[58:59]
            v_mov_b32 {v(t2)}, s{68 + z}
            v_cndmask_b32 {v(JA + z)}, {v(t2)}, {v(t1)}, {HM}
            ''')
        a(f'''
        v_add_co_u32 {v(JA)}, vcc, {v(JA)}, {v(t0)}
        s_nop 1
        v_addc_co_u32 {v(JA + 1)}, vcc, 0, {v(JA + 1)}, vcc
        {lab}:
        ''')
        for c in range(JIT, JITD):
            jit(c)
    srd(a, 4, 76, 256)
    lab = a.label('nononce')
    a(f'''
    s_or_b32 s44, s2, s26
    s_cmp_lg_u32 s44, 0
    s_cbranch_scc1 {lab}
    s_memrealtime s[44:45]
    s_waitcnt lgkmcnt(0)
    s_or_b32 s44, s44, 1
    v_mov_b32 {v(t0)}, s44
    s_mov_b64 exec, 1
    buffer_store_dword {v(t0)}, off, s[4:7], 0 sc1
    s_mov_b64 exec, -1
    {lab}:
    ''')
    vm.add('nonce', 1, optional=True)
    a(f'''
    s_and_b32 s56, s28, 3
    v_lshrrev_b32 {v(t0)}, 1, {v(vR)}
    v_and_b32 {v(t0)}, 7, {v(t0)}
    v_xor_b32 {v(t0)}, {v(t0)}, {v(vH)}
    s_lshl_b32 s44, s26, 1
    v_xor_b32 {v(t0)}, s44, {v(t0)}
    v_lshlrev_b32 {v(t3)}, 7, {v(vR)}
    v_lshl_add_u32 {v(t0)}, {v(t0)}, 4, {v(t3)}
    s_lshl_b32 s44, s56, 12
    v_add_u32 {v(vKX)}, s44, {v(t0)}
    v_bfe_u32 {v(t0)}, {v(vL)}, 2, 2
    v_lshl_add_u32 {v(t0)}, {v(vH)}, 3, {v(t0)}
    v_mul_u32_u24 {v(t0)}, 40, {v(t0)}
    v_bfe_u32 {v(t3)}, {v(vL)}, 4, 1
    v_and_b32 {v(t4)}, 3, {v(vL)}
    v_lshl_add_u32 {v(t3)}, {v(t3)}, 2, {v(t4)}
    v_min_u32 {v(t3)}, 4, {v(t3)}
    v_lshl_add_u32 {v(t0)}, {v(t3)}, 3, {v(t0)}
    s_mul_i32 s44, s26, 640
    s_add_u32 s44, s44, {LDS_KV}
    v_add_u32 {v(vKW)}, s44, {v(t0)}
    ''')
    for i in range(16):
        a(f'v_mov_b32 {v(AKV + i)}, 0')

    if LATE1:
        a_start(1)
        vm.add('c1', 4)
        vm.add('c1', 1, optional=True)

    def colsum(src_tag_wait, store_code):
        a(f's_waitcnt vmcnt({src_tag_wait})')
        a(f'''
        v_lshlrev_b32 {v(t0)}, 16, {v(CR)}
        v_and_b32 {v(t1)}, 0xffff0000, {v(CR)}
        ''')
        for t in range(1, 20):
            a(f'''
            v_lshlrev_b32 {v(t2)}, 16, {v(CR + t)}
            v_and_b32 {v(t3)}, 0xffff0000, {v(CR + t)}
            v_add_f32 {v(t0)}, {v(t0)}, {v(t2)}
            v_add_f32 {v(t1)}, {v(t1)}, {v(t3)}
            ''')
        a(f'''
        s_nop 1
        v_permlane32_swap_b32 {v(t0)}, {v(t1)}
        s_nop 1
        v_add_f32 {v(t0)}, {v(t0)}, {v(t1)}
        v_cvt_pk_bf16_f32 {v(t1)}, {v(t0)}, {v(t0)}
        v_and_b32 {v(t1)}, 0xffff0000, {v(t1)}
        v_sub_f32 {v(t1)}, {v(t0)}, {v(t1)}
        v_cvt_pk_bf16_f32 {v(t0)}, {v(t0)}, {v(t1)}
        ''')
        store_code()

    a('''
    s_lshl_b32 s41, s27, 10
    s_and_b32 s44, s28, 11
    s_cmp_eq_u32 s44, 0
    s_cselect_b32 s42, 1, 0
    s_cmp_eq_u32 s26, 3
    s_cselect_b32 s42, s42, 0
    ''')

    lines, load_cs, load_rows, fill_cs, fill_rows = stat_code(vL, vH, vR, RD, XR, RD + 20, RD + 28, RD + 36, 's43', 's101')
    PZ, pa, pb = RD + 40, RD + 44, RD + 45
    poison = [f'v_mov_b32 {v(PZ + q)}, -1' for q in range(4)] + lines(f'''
    v_lshlrev_b32 {v(pa)}, 4, {v(vL)}
    v_lshlrev_b32 {v(pb)}, 3, {v(vL)}
    s_lshr_b32 s44, s30, 2
    s_lshl_b32 s46, s29, 1
    s_add_u32 s46, s46, s44
    s_mul_i32 s46, s46, 40960
    s_and_b32 s44, s30, 3
    s_lshl_b32 s44, s44, 2
    s_add_u32 s44, s44, s26
    s_lshl_b32 s45, s44, 11
    s_add_u32 s45, s45, s46
    s_add_u32 s45, s45, {OF_OFF}
    buffer_store_dwordx4 {v(PZ, 4)}, {v(pa)}, s[20:23], s45 offen sc1
    buffer_store_dwordx4 {v(PZ, 4)}, {v(pa)}, s[20:23], s45 offen offset:1024 sc1
    s_lshl_b32 s45, s44, 9
    s_add_u32 s45, s45, s46
    s_add_u32 s45, s45, {OF_OFF + 32768}
    buffer_store_dwordx2 {v(PZ, 2)}, {v(pb)}, s[20:23], s45 offen sc1
    s_mul_i32 s44, s27, 163840
    s_mul_i32 s45, s28, 10240
    s_add_u32 s44, s44, s45
    s_mul_i32 s45, s26, 2560
    s_add_u32 s44, s44, s45
    s_add_u32 s44, s44, {QF_OFF}
    buffer_store_dwordx4 {v(PZ, 4)}, {v(pa)}, s[20:23], s44 offen sc1
    buffer_store_dwordx4 {v(PZ, 4)}, {v(pa)}, s[20:23], s44 offen offset:1024 sc1
    buffer_store_dwordx2 {v(PZ, 2)}, {v(pb)}, s[20:23], s44 offen offset:2048 sc1
    ''')
    afill = {}
    if AST:
        wait_sl = lambda: f's_waitcnt vmcnt({vm.wait("sl")})'
        comp0 = [wait_sl] + fill_rows() + fill_cs()
        comp = []
        for it in comp0:
            if comp and isinstance(comp[-1], str) and comp[-1].startswith('s_cmp'):
                comp[-1] = [comp[-1], it]
            else:
                comp.append(it)
        afill[0] = load_rows() + load_cs() + (poison if APZ == 0 else [])
        nC = len(comp)
        for q in range(ASP):
            afill[ASS + q] = comp[(q * nC) // ASP:((q + 1) * nC) // ASP]
        if APZ:
            afill[APZ] = poison + afill.get(APZ, [])
    AFL = ASS + ASP + 1
    if AST == 2:
        def glue(l):
            o = []
            for it in l:
                if o and isinstance(o[-1], str) and o[-1].startswith('s_cmp'):
                    o[-1] = [o[-1], it]
                else:
                    o.append(it)
            return o

        def merge(x, y):
            o = []
            n = max(len(x), 1)
            k = 0
            for q, it in enumerate(x):
                o.append(it)
                while k < len(y) and k * n < (q + 1) * len(y):
                    o.append(y[k])
                    k += 1
            return o + y[k:]
        cs = glue(fill_cs())
        ksp = poison.index('s_mul_i32 s44, s27, 163840')
        pO, pQ = poison[:ksp], poison[ksp:]
        h_ = len(cs) * 3 // 5
        rows_wait = lambda: f's_waitcnt vmcnt({vm.wait("sl")})'
        afill = {0: load_rows(), 1: load_cs()[:7] + [rows_wait] + merge(fill_rows(), load_cs()[7:]),
                 2: [rows_wait] + cs[:h_] + pO[:6] + pQ, 3: cs[h_:] + pO[6:]}
        AFL = 5

    def kv_step(c, part):
        st = c % 3
        lab = a.label('kvs')
        a(f's_cmp_eq_u32 s54, 0\ns_cbranch_scc1 {lab}')
        if part == 0:
            a(f'''
            ds_read_b128 {v(KXF, 4)}, {v(vKX)} offset:{LDS_X + st * 16384}
            ds_read_b64_tr_b16 {v(KWF, 2)}, {v(vKW)} offset:{st * 3072}
            ds_read_b64_tr_b16 {v(KWF + 2, 2)}, {v(vKW)} offset:{st * 3072 + 160}
            ''')
        else:
            a('s_waitcnt lgkmcnt(0)')
            a(mfma16(AKV, KWF, KXF, AKV))
        a(f'{lab}:')

    for c in range(10):
        a.c(f'aux chunk {c}')
        if c == 0:
            stamp(a, 22)
        if c <= 8:
            nw_ = vm.wait(f'c{c}')
            if c == 5:
                nw_ = min(nw_, vm.wait('kst'), vm.wait('nl'))
            if AST and c == AFL:
                nw_ = min(nw_, vm.wait('st'), vm.wait('nl'))
            a(f's_waitcnt vmcnt({nw_})')
        else:
            a('s_waitcnt vmcnt(0)')
        a('s_barrier')
        if not FEWST or c in (0, 1, 2, 9):
            stamp(a, 1 + c)
        if asmlib.STAMPS:
            vm.add('stamp', 1, optional=True)
        if c == (AFL - 2 if AST else 3):
            a(f'buffer_load_dword {v(PF)}, off, s[4:7], 0 sc1')
            vm.add('nl', 1)
        kv_step(c, 0)
        if c == P3C:
            ROW5 = f'''
            s_add_u32 s57, s27, 1
            s_and_b32 s57, s57, 15
            s_lshl_b32 s57, s57, 13
            s_add_u32 s57, s57, {F_ST}
            buffer_load_dwordx2 {v(FX + 8, 2)}, {v(T + 10)}, s[20:23], s57 offen sc1
            '''
            lab = a.label('nop3')
            a(f'''
            v_lshlrev_b32 {v(T + 8)}, 3, {v(vL)}
            v_lshlrev_b32 {v(T + 10)}, 7, {v(vL)}
            v_and_b32 {v(T + 11)}, 0x780, {v(T + 10)}
            s_cmp_lg_u32 s26, 3
            s_cbranch_scc1 {lab}
            s_lshl_b32 s44, s27, 13
            s_add_u32 s44, s44, {F_ST}
            s_lshl_b32 s45, s28, 13
            s_add_u32 s45, s45, {F_CS}
            s_and_b32 s58, s28, 4
            s_lshl_b32 s58, s58, 9
            s_add_u32 s58, s58, {F_KC}
            ''')
            a(f'''
            s_mov_b32 s60, s44
            s_mov_b32 s61, s45
            s_lshr_b32 s59, s29, 1
            s_lshl_b32 s59, s59, 13
            s_add_u32 s59, s59, {F_ST}
            buffer_load_dwordx2 {v(FX + 6, 2)}, {v(T + 10)}, s[20:23], s59 offen sc1
            {ROW5 if KVP else ''}
            buffer_load_dwordx2 {v(FX, 2)}, {v(T + 10)}, s[20:23], s60 offen sc1
            buffer_load_dwordx2 {v(FX + 2, 2)}, {v(T + 10)}, s[20:23], s61 offen sc1
            buffer_load_dwordx2 {v(FX + 4, 2)}, {v(T + 11)}, s[20:23], s58 offen sc1
            {lab}:
            ''')
        jit(c + JITD)
        if (1 if EARLY2 else 0) <= c and c + 2 < 10:
            if AST and c == ASS:
                a('s_setprio 0')
            dma_group(c + 2, fill=afill.get(c, ()))
            if AST and c == AFL - 2:
                a(f's_setprio {PRIO1}')
        kv_step(c, 1)
        if c == P3C:
            lab = a.label('nop3b')
            a(f'''
            s_cmp_lg_u32 s26, 3
            s_cbranch_scc1 {lab}
            s_waitcnt vmcnt(12)
            v_cmp_eq_u64 vcc, s[98:99], {v(FX, 2)}
            v_cmp_eq_u64 s[46:47], s[98:99], {v(FX + 2, 2)}
            v_cmp_eq_u64 s[44:45], s[98:99], {v(FX + 4, 2)}
            v_cmp_eq_u64 s[48:49], s[98:99], {v(FX + 6, 2)}
            {f'v_cmp_eq_u64 s[50:51], s[98:99], {v(FX + 8, 2)}' if KVP else ''}
            s_nop 1
            {'s_and_b64 vcc, vcc, s[50:51]' if KVP else ''}
            s_and_b64 vcc, vcc, s[46:47]
            s_and_b64 vcc, vcc, s[44:45]
            s_and_b64 vcc, vcc, s[48:49]
            s_cmp_eq_u64 vcc, -1
            s_cbranch_scc1 {lab}
            ''')
            polln(a, FX, [T + 10, T + 10, T + 11], [('s60', None), ('s61', None), ('s58', None)], 4)
            polln(a, FX, [T + 10, T + 10], [('s59', None), ('s57', None)][:1 + KVP], 4)
            a(f'{lab}:')
        if c == 2:
            lab = a.label('nokvcs')
            a(f'''
            s_cmp_eq_u32 s42, 0
            s_cbranch_scc1 {lab}
            s_mul_i32 s44, s27, 40
            v_add_u32 {v(t1)}, s44, {v(vH)}
            v_mul_u32_u24 {v(t2)}, 40, {v(t1)}
            v_lshl_add_u32 {v(t2)}, {v(vR)}, 2, {v(t2)}
            ''')
            for t in range(20):
                a(f'buffer_load_dword {v(CR + t)}, {v(t2)}, s[16:19], 0 offen offset:{80 * t}')
            a(f'{lab}:')
            vm.add('kcr', 20, optional=True)
        if c == 3:
            lab = a.label('nokvcs2')
            a(f's_cmp_eq_u32 s42, 0\ns_cbranch_scc1 {lab}')

            def kcs_store():
                a(f'''
                v_lshl_add_u32 {v(t1)}, {v(vR)}, 1, {v(vH)}
                v_lshlrev_b32 {v(t2)}, 2, {v(t1)}
                v_mov_b32 {v(t3)}, 0x7f000000
                v_cmp_gt_u32 vcc, 32, {v(t1)}
                s_lshl_b32 s44, s28, 9
                s_lshl_b32 s45, s27, 7
                s_add_u32 s44, s44, s45
                s_add_u32 s44, s44, {CSKVW}
                v_cndmask_b32 {v(t2)}, {v(t3)}, {v(t2)}, vcc
                buffer_store_dword {v(t0)}, {v(t2)}, s[20:23], s44 offen sc1
                ''')
            colsum(vm.wait('kcr'), kcs_store)
            a(f'{lab}:')
            vm.add('kst', 1, optional=True)
        if c == (AFL if AST else 5):
            Lp = a.label('np')
            Lq = a.label('npd')
            Lr = a.label('nokcf')
            a(f'''
            s_mov_b32 s93, {POLL_MAX}
            {Lp}:
            v_readfirstlane_b32 s98, {v(PF)}
            s_cmp_lg_u32 s98, 0
            s_cbranch_scc1 {Lq}
            s_sub_u32 s93, s93, 1
            s_cbranch_scc1 {Lq}
            buffer_load_dword {v(PF)}, off, s[4:7], 0 sc1
            s_waitcnt vmcnt(0)
            s_branch {Lp}
            {Lq}:
            s_xor_b32 s99, s98, {NONCE_X}
            ''')
            if AST:
                flag_store(a, 's43', T + 2)
                flag_store(a, 's101', T + 2)
                lab = a.label('noxid')
                a(f'''
                s_cmp_lg_u32 s26, 0
                s_cbranch_scc1 {lab}
                v_mov_b32 {v(T)}, {NONCE_A}
                ds_write_b32 {v(T)}, {v(T + 2)}
                s_getreg_b32 s44, hwreg(HW_REG_XCC_ID, 0, 4)
                s_lshl_b32 s45, s29, 7
                s_lshl_b32 s46, s30, 3
                s_add_u32 s45, s45, s46
                s_add_u32 s45, s45, {F_X}
                v_mov_b32 {v(T + 3)}, s44
                s_mov_b64 exec, 1
                buffer_store_dwordx2 {v(T + 2, 2)}, off, s[20:23], s45 sc1
                s_mov_b64 exec, -1
                s_waitcnt lgkmcnt(0)
                {lab}:
                ''')
                vm.add('fl', 2)
                vm.add('fl', 1, optional=True)
        if c == 5:
            Lr = a.label('nokcf')
            a(f'''
            s_lshl_b32 s44, s28, 9
            s_lshl_b32 s45, s27, 7
            s_add_u32 s44, s44, s45
            s_add_u32 s44, s44, {F_KC}
            s_cmp_eq_u32 s42, 0
            s_cbranch_scc1 {Lr}
            ''')
            flag_store(a, 's44', T + 2)
            a(f'{Lr}:')
            vm.add('fl', 1, optional=True)
        if P1PF and c in (6, 7):
            if c == 6:
                srd(a, 4, WDP, 2211840)
                a(f'''
                s_lshr_b32 s44, s2, 6
                s_mul_i32 s44, s44, {432 * 1280}
                s_bfe_u32 s45, s2, 0x30003
                s_mul_i32 s45, s45, {180 * 128}
                s_add_u32 s44, s44, s45
                s_mul_i32 s45, s26, {45 * 128}
                s_add_u32 s57, s44, s45
                v_lshlrev_b32 {v(PF + 1)}, 7, {v(vL)}
                ''')
            for z in range(2 if c == 6 else 1):
                a(f'''
                s_mov_b32 exec_hi, {(1 << 13) - 1}
                buffer_load_dword v165, {v(PF + 1)}, s[4:7], s57 offen
                s_mov_b32 exec_hi, -1
                s_add_u32 s57, s57, {144 * 1280}
                ''')
                vm.add('pf', 1)
        if c == 8:
            a(f'''
            v_lshlrev_b32 {v(T + 9)}, 4, {v(vL)}
            s_lshl_b32 s44, s28, 14
            s_lshl_b32 s45, s26, 12
            s_add_u32 s44, s44, s45
            s_add_u32 s44, s44, {CSW}
            ''')
            for e in range(4):
                a(f'''
                s_add_u32 m0, s45, {CS_A + 1024 * e}
                s_nop 0
                buffer_load_dwordx4 {v(T + 9)}, s[20:23], s44 offen{LD} lds
                s_add_u32 s44, s44, 1024
                ''')
            lab = a.label('norc')
            a(f'''
            s_cmp_lg_u32 s26, 0
            s_cbranch_scc1 {lab}
            s_lshl_b32 s44, s27, 11
            s_add_u32 s44, s44, {ROWW}
            s_mov_b32 m0, {ROWC_A}
            s_and_b32 s45, s28, 4
            buffer_load_dwordx4 {v(T + 9)}, s[20:23], s44 offen{LD} lds
            buffer_load_dwordx4 {v(T + 9)}, s[20:23], s44 offen offset:1024{LD} lds
            s_lshl_b32 s45, s45, 9
            s_add_u32 s45, s45, {CSKVW}
            s_mov_b32 m0, {CSKV_A}
            s_nop 0
            buffer_load_dwordx4 {v(T + 9)}, s[20:23], s45 offen{LD} lds
            buffer_load_dwordx4 {v(T + 9)}, s[20:23], s45 offen offset:1024{LD} lds
            {lab}:
            ''')
    L_p2 = a.label('auxp2')
    L_v = a.label('vepi')
    L_a0 = a.label('aux0f')
    lab = a.label('nokvfin')
    lab2 = a.label('nofix')
    a(f'''
    s_cmp_eq_u32 s54, 0
    s_cbranch_scc1 {lab}
    s_cmp_lg_u32 s26, 0
    s_cbranch_scc1 {lab2}
    s_lshl_b32 s44, s56, 9
    s_add_u32 s44, s44, {ROWC_A}
    v_lshl_add_u32 {v(t0)}, {v(vR)}, 4, s44
    v_lshlrev_b32 {v(t1)}, 2, {v(vR)}
    v_lshl_add_u32 {v(t1)}, {v(vH)}, 9, {v(t1)}
    v_add_u32 {v(t1)}, {CSKV_A}, {v(t1)}
    v_add_u32 {v(t2)}, 1024, {v(t1)}
    ds_read_b128 {v(FX, 4)}, {v(t0)}
    ds_read2_b32 {v(FX + 8, 2)}, {v(t1)} offset0:0 offset1:32
    ds_read2_b32 {v(FX + 10, 2)}, {v(t1)} offset0:64 offset1:96
    ds_read2_b32 {v(FX + 12, 2)}, {v(t2)} offset0:0 offset1:32
    ds_read2_b32 {v(FX + 14, 2)}, {v(t2)} offset0:64 offset1:96
    s_waitcnt lgkmcnt(4)
    v_mov_b32 {v(FX + 4)}, {v(FX)}
    v_mov_b32 {v(FX + 5)}, {v(FX)}
    v_mov_b32 {v(FX + 6)}, {v(FX)}
    v_mov_b32 {v(FX + 7)}, {v(FX)}
    s_waitcnt lgkmcnt(0)
    s_nop 1
    {mfma16(AKV, FX + 8, FX + 4, AKV)}
    {mfma16(AKV, FX + 12, FX + 4, AKV)}
    s_branch {L_a0}
    {lab2}:
    s_lshl_b32 s44, s26, 12
    v_add_u32 {v(t0)}, s44, {v(T + 9)}
    s_lshl_b32 s44, s26, 2
    s_add_u32 s44, s44, {PD_A}
    v_mov_b32 {v(t1)}, s44
    v_mov_b32 {v(t2)}, s98
    s_nop 11
    ''')
    for q in range(3):
        a(f'ds_write_b128 {v(t0)}, {v(AKV + 4 * q, 4)} offset:{PART_A + 1024 * q}')
    L_sp = a.label('pspin')
    L_spd = a.label('pspind')
    a(f'''
    s_waitcnt lgkmcnt(0)
    ds_write_b32 {v(t1)}, {v(t2)}
    {lab}:
    s_branch {L_p2}
    {L_a0}:
    v_mov_b32 {v(t1)}, {PD_A}
    s_mov_b32 s93, {POLL_MAX * 8}
    {L_sp}:
    ds_read_b128 {v(T + 4, 4)}, {v(t1)}
    s_waitcnt lgkmcnt(0)
    v_xor_b32 {v(T + 5)}, s98, {v(T + 5)}
    v_xor_b32 {v(T + 6)}, s98, {v(T + 6)}
    v_xor_b32 {v(T + 7)}, s98, {v(T + 7)}
    v_or3_b32 {v(T + 5)}, {v(T + 5)}, {v(T + 6)}, {v(T + 7)}
    s_nop 0
    v_readfirstlane_b32 s44, {v(T + 5)}
    s_cmp_eq_u32 s44, 0
    s_cbranch_scc1 {L_spd}
    s_sub_u32 s93, s93, 1
    s_cbranch_scc0 {L_sp}
    {L_spd}:
    ''')
    stamp(a, 12)
    for w in range(1, 4):
        for q in range(3):
            a(f'ds_read_b128 {v(RD + 12 * (w - 1) + 4 * q, 4)}, {v(T + 9)} offset:{PART_A + 4096 * w + 1024 * q}')
    a(f'''
    s_lshl_b32 s57, s27, 2
    s_add_u32 s57, s57, s56
    s_lshr_b32 s44, s57, 1
    s_mul_i32 s44, s44, 7168
    s_add_u32 s44, s44, {KV_OFF}
    s_and_b32 s45, s57, 1
    s_and_b32 s58, s28, 4
    s_lshl_b32 s58, s58, 4
    s_add_u32 s58, s58, s57
    s_lshl_b32 s58, s58, 7
    s_add_u32 s58, s58, {F_KV}
    s_waitcnt lgkmcnt(0)
    ''')
    for i in range(12):
        a(f'v_add_f32 {v(AKV + i)}, {v(AKV + i)}, {v(RD + i)}')
        a(f'v_add_f32 {v(RD + 12 + i)}, {v(RD + 12 + i)}, {v(RD + 24 + i)}')
    for i in range(12):
        a(f'v_add_f32 {v(AKV + i)}, {v(AKV + i)}, {v(RD + 12 + i)}')
    for i in range(12):
        a(f'v_mul_f32 {v(AKV + i)}, {v(AKV + i)}, {v(FX + 1)}')
    PK = RD
    for i in range(6):
        a(f'v_cvt_pk_bf16_f32 {v(PK + i)}, {v(AKV + 2 * i)}, {v(AKV + 2 * i + 1)}')
    L_kvf = a.label('kvflag')
    a(f'''
    s_bitcmp1_b32 s28, 2
    s_cbranch_scc1 {L_v}
    v_mov_b32 {v(t0)}, 0x3f803f80
    v_mov_b32 {v(t1)}, 0x00003f80
    v_cndmask_b32 {v(PK + 4)}, {v(PK + 4)}, {v(t0)}, {HM}
    v_cndmask_b32 {v(PK + 5)}, {v(PK + 5)}, {v(t1)}, {HM}
    s_lshl_b32 s46, s45, 10
    s_add_u32 s46, s46, s44
    s_lshl_b32 s47, s45, 9
    s_add_u32 s47, s47, s44
    buffer_store_dwordx4 {v(PK, 4)}, {v(T + 9)}, s[20:23], s46 offen sc1
    buffer_store_dwordx2 {v(PK + 4, 2)}, {v(T + 8)}, s[20:23], s47 offen offset:2048 sc1
    s_branch {L_kvf}
    {L_v}:
    v_mov_b32 {v(t0)}, 0
    v_cndmask_b32 {v(PK + 4)}, {v(PK + 4)}, {v(t0)}, {HM}
    v_cndmask_b32 {v(PK + 5)}, {v(PK + 5)}, {v(t0)}, {HM}
    v_mov_b32 {v(PK + 6)}, 0x00003f80
    v_mov_b32 {v(PK + 7)}, 0
    v_lshlrev_b32 {v(t0)}, 6, {v(vR)}
    v_lshl_add_u32 {v(t0)}, {v(vH)}, 3, {v(t0)}
    ds_write_b64 {v(t0)}, {v(PK, 2)} offset:{VT_A}
    ds_write_b64 {v(t0)}, {v(PK + 2, 2)} offset:{VT_A + 16}
    ds_write_b64 {v(t0)}, {v(PK + 4, 2)} offset:{VT_A + 32}
    ds_write_b64 {v(t0)}, {v(PK + 6, 2)} offset:{VT_A + 48}
    v_bfe_u32 {v(t1)}, {v(vL)}, 2, 2
    v_lshl_add_u32 {v(t1)}, {v(vH)}, 2, {v(t1)}
    v_lshlrev_b32 {v(t1)}, 6, {v(t1)}
    v_bfe_u32 {v(t2)}, {v(vL)}, 4, 1
    v_lshl_add_u32 {v(t1)}, {v(t2)}, 5, {v(t1)}
    v_and_b32 {v(t2)}, 3, {v(vL)}
    v_lshl_add_u32 {v(t1)}, {v(t2)}, 3, {v(t1)}
    s_waitcnt lgkmcnt(0)
    ds_read_b64_tr_b16 {v(PK + 8, 2)}, {v(t1)} offset:{VT_A}
    ds_read_b64_tr_b16 {v(PK + 10, 2)}, {v(t1)} offset:{VT_A + 512}
    ds_read_b64_tr_b16 {v(PK + 12, 2)}, {v(t1)} offset:{VT_A + 1024}
    ds_read_b64_tr_b16 {v(PK + 14, 2)}, {v(t1)} offset:{VT_A + 1536}
    s_lshl_b32 s46, s45, 11
    s_add_u32 s46, s46, s44
    s_add_u32 s46, s46, 3072
    s_waitcnt lgkmcnt(0)
    buffer_store_dwordx4 {v(PK + 8, 4)}, {v(T + 9)}, s[20:23], s46 offen sc1
    buffer_store_dwordx4 {v(PK + 12, 4)}, {v(T + 9)}, s[20:23], s46 offen offset:1024 sc1
    {L_kvf}:
    s_waitcnt vmcnt(0)
    ''')
    flag_store(a, 's58', T + 2)
    a(f'{L_p2}:')
    stamp(a, 13)

    a.c('=========== aux wave: phase 2 ===========')
    al = Alloc(4, 164)
    T = al('T', 8, 4)
    vWD = al('wd', 3)
    vWA = al('wa', 3)
    vHL = al('hl')
    vKO = al('ko')
    vPF = al('pf')
    ACC = al('acc', 80, 4)
    SL = al('slots', 60, 4)
    wreg = lambda k: SL + 20 * (k % 3)
    hreg = lambda k: SL + 20 * (k % 3) + 12
    a(f's_setprio {PRIO2}')
    g2_ids(a)
    srd(a, 12, WDP, 2211840)
    srd(a, 16, 84, 819200)
    a(f"""
    s_mul_i32 s44, s26, 27
    s_mul_i32 s41, s59, 108
    s_add_u32 s41, s41, s44
    s_lshl_b32 s41, s41, 10
    s_mul_i32 s42, s60, 108
    s_add_u32 s42, s42, s44
    s_lshl_b32 s42, s42, 10
    s_lshr_b32 s43, s44, 1
    s_mul_i32 s43, s43, 40960
    s_and_b32 s45, s44, 1
    s_mul_i32 s52, s45, 10240
    s_add_u32 s43, s43, s52
    s_mul_i32 s52, s45, 20480
    s_add_u32 s52, s52, 10240
    s_mov_b32 s48, 40960
    s_lshl_b32 s44, s26, 3
    s_mul_i32 s56, s44, 25600
    s_mul_i32 s54, s59, 40
    s_add_u32 s54, s54, s44
    s_lshl_b32 s54, s54, 10
    s_add_u32 s54, s54, {OF_OFF}
    s_mul_i32 s55, s60, 40
    s_add_u32 s55, s55, s44
    s_lshl_b32 s55, s55, 10
    s_add_u32 s55, s55, {OF_OFF}
    s_and_b32 s44, s26, 1
    s_mul_i32 s39, s44, 21504
    s_lshr_b32 s44, s26, 1
    s_mul_i32 s44, s44, {WO_HI}
    s_add_u32 s39, s39, s44
    s_mov_b32 s40, s39
    s_mov_b32 s45, 0x15556
    v_lshlrev_b32 {v(vHL)}, 4, {v(vL)}
    v_lshlrev_b32 {v(vPF)}, 7, {v(vL)}
    s_lshl_b32 s36, s26, 12
    s_min_u32 s36, s36, 11264
    v_add_u32 {v(vKO)}, s36, {v(vHL)}
    """)
    for p in range(3):
        a(f"""
        v_add_u32 {v(T)}, {64 * p}, {v(vL)}
        v_mul_lo_u32 {v(T + 1)}, {v(T)}, s45
        v_lshrrev_b32 {v(T + 1)}, 20, {v(T + 1)}
        v_mul_u32_u24 {v(T + 2)}, 12, {v(T + 1)}
        v_sub_u32 {v(T + 2)}, {v(T)}, {v(T + 2)}
        v_and_b32 {v(T)}, 8, {v(T + 1)}
        v_add_u32 {v(T + 1)}, {v(T + 1)}, {v(T)}
        v_mul_u32_u24 {v(T + 1)}, 1280, {v(T + 1)}
        v_lshl_add_u32 {v(T + 1)}, {v(T + 2)}, 4, {v(T + 1)}
        v_add_u32 {v(vWD + p)}, s61, {v(T + 1)}
        """)
    a(f"""
    v_bfe_u32 {v(T)}, {v(vL)}, 2, 2
    v_lshl_add_u32 {v(T)}, {v(vH)}, 2, {v(T)}
    v_mul_u32_u24 {v(T)}, 192, {v(T)}
    v_bfe_u32 {v(T + 1)}, {v(vL)}, 4, 1
    v_lshl_add_u32 {v(T)}, {v(T + 1)}, 5, {v(T)}
    v_and_b32 {v(T + 1)}, 3, {v(vL)}
    v_lshl_add_u32 {v(T)}, {v(T + 1)}, 3, {v(T)}
    v_add_u32 {v(T)}, s39, {v(T)}
    s_lshl_b32 s44, s58, 6
    s_add_u32 s45, s44, 64
    s_lshl_b32 s46, s58, 7
    s_sub_u32 s46, 128, s46
    v_add_u32 {v(vWA)}, s44, {v(T)}
    v_add_u32 {v(vWA + 1)}, s45, {v(T)}
    v_add_u32 {v(vWA + 2)}, s46, {v(T)}
    """)
    vm = VM()

    def w_dma(base, off):
        out = []
        for p in range(3):
            out.append([f's_add_u32 m0, {base}, {off + p * 1024}', 's_nop 0',
                        f'buffer_load_dwordx4 {v(vWD + p)}, s[12:15], s43 offen lds'])
        out[2] += ['s_add_u32 s43, s43, s52', 's_sub_u32 s52, s48, s52']
        return out

    def h_ld(k, e):
        hs = ('s41', 's42')[e]
        return [f'buffer_load_dwordx4 {v(hreg(k) + 4 * e, 4)}, {v(vHL)}, s[20:23], {hs} offen', f's_add_u32 {hs}, {hs}, 1024']

    def w_rd(k, off):
        return [f'ds_read_b64_tr_b16 {v(wreg(k) + 4 * b + 2 * t, 2)}, {v(vWA + b)} offset:{off + 1536 * t}'
                for b in range(3) for t in range(2)]

    def g_mfmas(k):
        return [mfma16(ACC + 16 * n, wreg(k) + 4 * b, hreg(k) + 4 * e, ACC + 16 * n)
                for n, (b, e) in enumerate(((0, 0), (0, 1), (1, 0), (1, 1), (2, 0)))]

    KVADV = f's_add_u32 s38, s38, {CH_BYTES}\ns_cmp_eq_u32 s38, {KV_OFF + 16 * CH_BYTES}\ns_cselect_b32 s38, {KV_OFF}, s38'

    def kv_dma(c, fl_=''):
        st = c % NST
        lab = a.label('kv3')
        a(f's_cmp_ge_u32 s26, 2\ns_cbranch_scc1 {lab}')
        for e in (3, 0, 1, 2):
            a(f"""
            s_add_u32 m0, s36, {KVR + st * CH_BYTES + e * 1024}
            s_add_u32 s45, s38, {e * 1024}
            buffer_load_dwordx4 {v(vKO)}, s[20:23], s45 offen{fl_} lds
            """)
            if e == 3:
                a(f'{lab}:')
        a(KVADV)
        vm.add(f'kv{c}', 1, optional=True)
        vm.add(f'kv{c}', 3)

    for i in range(80):
        a(f'v_mov_b32 {v(ACC + i)}, 0')
    srd(a, 4, WDP, 2211840)
    a(f'''
    s_lshr_b32 s44, s2, 6
    s_mul_i32 s44, s44, {432 * 1280}
    s_bfe_u32 s45, s2, 0x30003
    s_lshl_b32 s45, s45, 2
    s_add_u32 s45, s45, s26
    s_mul_i32 s45, s45, {15 * 128}
    s_add_u32 s32, s44, s45
    s_mov_b32 s31, {48 * 1280}
    ''')

    a(f'''
    s_lshr_b32 s45, s30, 2
    s_lshl_b32 s46, s29, 1
    s_add_u32 s45, s45, s46
    s_mul_i32 s45, s45, 108
    s_and_b32 s46, s30, 3
    s_mul_i32 s46, s46, 27
    s_add_u32 s45, s45, s46
    s_lshl_b32 s45, s45, 10
    s_mul_i32 s46, s26, {6 * 128}
    s_add_u32 s45, s45, s46
    s_add_u32 s49, s45, 3072
    ''')

    def paced_h():
        if not PCH:
            return
        a(f'''
        s_mov_b64 exec, 0x3f
        buffer_load_dword v165, {v(vPF)}, s[20:23], s49 offen
        s_mov_b64 exec, -1
        s_add_u32 s49, s49, 3072
        ''')

    def paced():
        if not PCW:
            return
        a(f'''
        s_mov_b64 exec, 0x7fff
        buffer_load_dword v165, {v(vPF)}, s[4:7], s32 offen
        s_mov_b64 exec, -1
        s_add_u32 s32, s32, s31
        ''')
        vm.add('pf', 1)

    def cd_wait():
        L1, L2 = a.label('cdw'), a.label('cdd')
        a(f'''
        v_and_b32 {v(T + 4)}, 7, {v(vL)}
        v_lshlrev_b32 {v(T + 4)}, 2, {v(T + 4)}
        v_add_u32 {v(T + 4)}, {CD_A}, {v(T + 4)}
        s_mov_b32 s93, {POLL_MAX * 8}
        {L1}:
        ds_read_b32 {v(T + 5)}, {v(T + 4)}
        s_waitcnt lgkmcnt(0)
        v_cmp_eq_u32 vcc, s98, {v(T + 5)}
        s_nop 1
        s_cmp_eq_u64 vcc, -1
        s_cbranch_scc1 {L2}
        s_sub_u32 s93, s93, 1
        s_cbranch_scc0 {L1}
        {L2}:
        ''')

    a(f's_lshl_b32 s53, s29, 13\ns_add_u32 s53, s53, {F_QH}')

    def kv_poll(first):
        a(f's_mov_b32 s45, {F_KV}\ns_mov_b32 s44, {F_KV + 8192}')
        if first:
            m = ~((1 << (4 * KVF)) - 1) & 0xffffffffffffffff
            a(f's_mov_b32 s50, {m & 0xffffffff}\ns_mov_b32 s51, {m >> 32}\ns_sleep {KVSL}\ns_andn2_b64 exec, exec, s[50:51]')
            polln(a, T + 4, vPF, [('s45', 's[50:51]'), ('s44', 's[50:51]')], 2)
            a('s_mov_b64 exec, -1')
            cd_wait()
        else:
            polln(a, T + 4, vPF, [('s45', None), ('s44', None)], 4)
    if KVP:
        a(f's_mul_i32 s47, s27, {CH_BYTES}\ns_add_u32 s47, s47, {KV_OFF}')
        for q in (12, 13, 14, 15, 28, 29, 30, 31):
            a(f'v_mov_b32 {v(SL + q)}, 0')
        cd_wait()
        a(f'v_add_u32 {v(T + 2)}, {KVR}, {v(vKO)}')
        Lp, Lq, Lr = a.label('kp'), a.label('kpd'), a.label('kp3')
        a(f's_mov_b32 s93, {OPOLL_MAX}\n{Lp}:\ns_mov_b32 s38, s47')
        kv_dma(0, ' sc1')
        kv_dma(1, ' sc1')
        a('s_waitcnt vmcnt(0)')
        for z in range(2):
            for e in range(3):
                a(f'ds_read_b128 {v(SL + 16 * z + 4 * e, 4)}, {v(T + 2)} offset:{z * CH_BYTES + e * 1024}')
        a(f's_cmp_ge_u32 s26, 2\ns_cbranch_scc1 {Lr}')
        for z in range(2):
            a(f'ds_read_b128 {v(SL + 16 * z + 12, 4)}, {v(T + 2)} offset:{z * CH_BYTES + 3072}')
        a(f'{Lr}:\ns_waitcnt lgkmcnt(0)')
        for z in range(2):
            a(f'v_max3_u32 {v(T + z)}, {v(SL + 16 * z)}, {v(SL + 16 * z + 1)}, {v(SL + 16 * z + 2)}')
        for i in range(3, 15, 2):
            for z in range(2):
                a(f'v_max3_u32 {v(T + z)}, {v(T + z)}, {v(SL + 16 * z + i)}, {v(SL + 16 * z + i + 1)}')
        a(f'''
        v_max3_u32 {v(T)}, {v(T)}, {v(SL + 15)}, {v(SL + 31)}
        v_max_u32 {v(T)}, {v(T)}, {v(T + 1)}
        v_cmp_eq_u32 vcc, -1, {v(T)}
        s_nop 1
        s_cmp_eq_u64 vcc, 0
        s_cbranch_scc1 {Lq}
        s_sub_u32 s93, s93, 1
        s_cbranch_scc1 {Lq}
        s_sleep {KSL2}
        s_branch {Lp}
        {Lq}:
        ''')
        stamp(a, 15)
    else:
        a(f's_mov_b32 s38, {KV_OFF}')
        one_poller(a, T, 0, lambda: kv_poll(True), who=2)
        stamp(a, 15)
        kv_dma(0)
        kv_dma(1)
        kv_dma(2)

    def prefetch(kind, b=0):
        n = {'wd': 60, 'wo': 64, 'h': 54}[kind]
        lab = a.label('nopf')
        if kind != 'h':
            a(f's_cmp_eq_u32 s26, 3\ns_cbranch_scc1 {lab}')
        if kind == 'wd':
            a(f"""
            s_lshr_b32 s44, s2, 6
            s_mul_i32 s44, s44, {432 * 1280}
            s_bfe_u32 s45, s2, 0x30003
            s_mul_i32 s45, s45, {180 * 128}
            s_add_u32 s44, s44, s45
            s_mul_i32 s45, s26, {60 * 128}
            s_add_u32 s44, s44, s45
            s_add_u32 s44, s44, {144 * 1280 * b}
            """)
            r = 's[12:15]'
        elif kind == 'wo':
            a(f"""
            s_lshr_b32 s44, s2, 3
            s_mul_i32 s44, s44, {200 * 128}
            s_mul_i32 s45, s26, {68 * 128}
            s_add_u32 s44, s44, s45
            """)
            r = 's[16:19]'
        else:
            a(f"""
            s_mul_i32 s44, s29, {216 * 1024}
            s_lshl_b32 s45, s30, 2
            s_add_u32 s45, s45, s26
            s_mul_i32 s45, s45, {54 * 128}
            s_add_u32 s44, s44, s45
            """)
            r = 's[20:23]'
        m = (1 << n) - 1
        a(f"""
        s_mov_b32 exec_hi, {m >> 32}
        buffer_load_dword v165, {v(vPF)}, {r}, s44 offen
        s_mov_b32 exec_hi, -1
        {lab}:
        """)
        vm.add('pf', 1, optional=True)
    a(f's_waitcnt vmcnt({vm.wait("kv0")})')
    if NOA0:
        a(f'''
        s_lshl_b32 s44, s26, 2
        s_add_u32 s44, s44, {KL_A}
        v_mov_b32 {v(T)}, s44
        v_mov_b32 {v(T + 1)}, s98
        ds_write_b32 {v(T)}, {v(T + 1)}
        ''')
    else:
        a('s_barrier')
    stamp(a, 16)
    lab = a.label('nokv2')
    a(f's_cmp_lg_u32 s26, 2\ns_cbranch_scc1 {lab}')
    kv_poll(False)
    a(f'{lab}:')

    def kvp(e):
        a(f'''
        s_add_u32 s44, s36, s37
        s_add_u32 m0, s44, {KVR + e * 1024}
        s_add_u32 s45, s38, {e * 1024}
        buffer_load_dwordx4 {v(vKO)}, s[20:23], s45 offen lds
        ''')

    def body(last, nw=12, fast=False):
        for z in range(3):
            a(f's_waitcnt vmcnt({((12, 14, 15)[z] if fast else (nw if not last else (12, 10, 8)[z])) - 2 + PCW + PCH}) lgkmcnt(0)')
            ms = g_mfmas(z)
            if z == 2:
                a('s_setprio 3' if BP else '')
                for b in range(3):
                    a(f'v_add_u32 {v(vWA + b)}, s33, {v(vWA + b)}')
                rd = w_rd(0, 0)
            else:
                rd = w_rd(z + 1, 3072 * (z + 1))
            if BP:
                lo = [n + 5 * z < BP for n in range(5)]
                ms = list(ms)
                order = (0, 1, 3, 2, 4)
                for q, n in enumerate(order):
                    if q == 0 or lo[q] != lo[q - 1]:
                        ms[n] = f's_setprio {0 if lo[q] else 3}\n' + ms[n]
            wd_ = w_dma('s40', 3072 * z)
            a(ms[0]); emit(a, rd[0:2]); emit(a, [wd_[0]]); a(SPACE)
            a(ms[1]); emit(a, rd[2:4]); emit(a, [wd_[1]]); a(SPACE)
            a(ms[3]); emit(a, rd[4:6]); emit(a, [wd_[2]]); a(SPACE)
            a(ms[2])
            if not last:
                emit(a, h_ld(z, 1))
            if fast and z < 2:
                kvp(2 * z)
            a(SPACE)
            a(ms[4])
            if not last:
                emit(a, h_ld(z, 0))
            if fast and z == 0:
                kvp(1)
            if fast and z == 1:
                lab = a.label('fk3')
                a(f's_cmp_ge_u32 s26, 2\ns_cbranch_scc1 {lab}')
                kvp(3)
                a(f'''
                {lab}:
                {KVADV}
                s_add_u32 s37, s37, {CH_BYTES}
                s_cmp_eq_u32 s37, {CH_BYTES * NST}
                s_cselect_b32 s37, 0, s37
                ''')
        a('s_setprio 3' if BP else '')
        a('s_add_u32 s40, s40, s33\ns_sub_u32 s33, 0, s33')

    NSTAT = int(ENV.get('NSTAT', '4'))
    for c in range(NSTAT):
        a.c(f'aux B{c}')
        a(f's_waitcnt vmcnt({vm.wait(f"kv{c + 1}")})')
        bstamp(a, c == 0)
        a('s_barrier')
        bstamp(a)
        if c == 2:
            lab = a.label('noxc')
            a(f'''
            s_cmp_lg_u32 s26, 3
            s_cbranch_scc1 {lab}
            s_getreg_b32 s45, hwreg(HW_REG_XCC_ID, 0, 4)
            s_lshl_b32 s46, s29, 7
            s_add_u32 s46, s46, {F_X}
            v_and_b32 {v(T)}, 7, {v(vL)}
            v_lshlrev_b32 {v(T)}, 3, {v(T)}
            buffer_load_dwordx2 {v(T + 4, 2)}, {v(T)}, s[20:23], s46 offen sc1
            s_mov_b32 s44, s98
            s_waitcnt vmcnt(0)
            v_cmp_eq_u64 vcc, s[44:45], {v(T + 4, 2)}
            v_mov_b32 {v(T)}, {SX_A}
            s_nop 0
            s_cmp_eq_u64 vcc, -1
            s_cselect_b32 s44, s98, 0
            v_mov_b32 {v(T + 1)}, s44
            ds_write_b32 {v(T)}, {v(T + 1)}
            s_waitcnt lgkmcnt(0)
            {lab}:
            ''')
        if KVP and c == 0:
            kv_dma(2)
        kv_dma(c + 3)
        if WDC <= c < WDC + 2:
            for k in range(3 * (c - WDC), 3 * (c - WDC) + 3):
                emit(a, w_dma('s39', 3072 * k))
            vm.add('w', 9)
        paced()
    def wo_switch():
        L_nsw = a.label('dnsw')
        a(f"""
        s_cmp_lg_u32 s35, 8
        s_cbranch_scc1 {L_nsw}
        s_mov_b32 s12, s16
        s_mov_b32 s13, s17
        s_mov_b32 s14, 819200
        s_mov_b32 s43, s56
        s_mov_b32 s52, 25600
        s_mov_b32 s48, 51200
        s_mov_b32 s45, 0x15556
        """)
        for p in range(3):
            a(f"""
            v_add_u32 {v(T)}, {64 * p}, {v(vL)}
            v_mul_lo_u32 {v(T + 1)}, {v(T)}, s45
            v_lshrrev_b32 {v(T + 1)}, 23, {v(T + 1)}
            v_mul_u32_u24 {v(T + 1)}, {8 * 1280}, {v(T + 1)}
            v_sub_u32 {v(vWD + p)}, {v(vWD + p)}, {v(T + 1)}
            """)
        a(f"""
    {L_nsw}:
        """)

    def pace_switch():
        lab = a.label('npsw')
        a(f'''
        s_cmp_lg_u32 s35, {10 - NSTAT}
        s_cbranch_scc1 {lab}
        s_mov_b32 s4, s16
        s_mov_b32 s5, s17
        s_mov_b32 s6, 819200
        s_lshr_b32 s44, s2, 3
        s_lshl_b32 s44, s44, 2
        s_add_u32 s44, s44, s26
        s_mul_i32 s32, s44, {50 * 128}
        s_mov_b32 s31, {13 * 128}
        {lab}:
        ''')

    L_top, L_nb, L_sw, L_end2 = a.label('dtop'), a.label('dnb'), a.label('dsw'), a.label('dend')
    L_act, L_bar, L_nokv = a.label('dact'), a.label('dbar'), a.label('dnokv')
    L_s0, L_body, L_last, L_wo, L_next = a.label('ds0'), a.label('dbody'), a.label('dlast'), a.label('dwo'), a.label('dnext')
    L_w0 = a.label('dw0')
    L_f1 = a.label('df1')
    L_f2 = a.label('df2')
    L_fast = a.label('dfast')
    L_w2 = a.label('dw2')
    L_b12 = a.label('db12')
    L_bd = a.label('dbd')
    L_np = a.label('dnp')
    L_p3 = a.label('dp3')
    L_k3 = a.label('dk3')
    L_w1 = a.label('dw1')
    L_n1 = a.label('dn1')
    L_oth, L_start, L_rei, L_nsw = a.label('doth'), a.label('dstart'), a.label('drei'), a.label('dnsw')
    a(f"""
    s_mov_b32 s34, {16 - NSTAT}
    s_mov_b32 s35, 0
    s_mov_b32 s37, {((NSTAT + 3) % NST) * CH_BYTES}
    s_mov_b32 s33, 9216
    s_mov_b32 s93, {POLL_MAX}
    v_mov_b32 {v(T + 3)}, {RDY_A + 4}
    {L_top}:
    s_sub_u32 s44, s35, 2
    s_cmp_lt_u32 s44, {7 if FAST else 0}
    s_cselect_b32 s45, s34, 0
    s_cmp_gt_u32 s45, 3
    s_cbranch_scc1 {L_fast}
    s_cmp_lt_u32 s44, 8
    s_cbranch_scc1 {L_act}
    s_cmp_eq_u32 s35, 11
    s_cbranch_scc1 {L_w2}
    s_cmp_gt_u32 s35, 1
    s_cbranch_scc1 {L_w0}
    s_cmp_le_u32 s34, 3
    s_cbranch_scc1 {L_w0}
    s_cmp_eq_u32 s35, 1
    s_cbranch_scc1 {L_w1}
    s_waitcnt vmcnt(3)
    s_branch {L_bar}
    {L_w1}:
    s_waitcnt vmcnt({6 + HPF * PCH})
    s_branch {L_f1 if FAST else L_bar}
    {L_w2}:
    s_waitcnt vmcnt(12)
    s_mov_b32 s35, 12
    s_branch {L_bar}
    {L_w0}:
    s_waitcnt vmcnt(0)
    s_branch {L_bar}
    {L_act}:
    s_waitcnt vmcnt({15 + PCW + PCH})
    {L_bar}:
    s_cmp_eq_u32 s34, 0
    s_cbranch_scc1 {L_nb}
    """)
    bstamp(a)
    a('s_barrier')
    bstamp(a)
    a(f"""
    s_cmp_lg_u32 s35, 0
    s_cbranch_scc1 {L_np}
    s_cmp_lg_u32 s26, 3
    s_cbranch_scc1 {L_np}
    buffer_load_dwordx2 {v(T + 4, 2)}, {v(vPF)}, s[20:23], s53 offen sc1
    {L_np}:
    s_cmp_le_u32 s34, 3
    s_cbranch_scc1 {L_nokv}
    s_add_u32 s44, s36, s37
    s_cmp_ge_u32 s26, 2
    s_cbranch_scc1 {L_k3}
    """)
    for e in (3, 0, 1, 2):
        a(f"""
        s_add_u32 m0, s44, {KVR + e * 1024}
        s_add_u32 s45, s38, {e * 1024}
        buffer_load_dwordx4 {v(vKO)}, s[20:23], s45 offen lds
        """)
        if e == 3:
            a(f'{L_k3}:')
    a(f"""
    {KVADV}
    s_add_u32 s37, s37, {CH_BYTES}
    s_cmp_eq_u32 s37, {CH_BYTES * NST}
    s_cselect_b32 s37, 0, s37
    {L_nokv}:
    s_sub_u32 s34, s34, 1
    s_branch {L_sw}
    {L_nb}:
    s_cmp_ge_u32 s35, 11
    s_cbranch_scc1 {L_end2}
    {L_sw}:
    s_cmp_eq_u32 s35, 0
    s_cbranch_scc1 {L_s0}
    s_cmp_lt_u32 s35, 9
    s_cbranch_scc1 {L_body}
    s_cmp_eq_u32 s35, 9
    s_cbranch_scc1 {L_last}
    s_cmp_eq_u32 s35, 10
    s_cbranch_scc1 {L_wo}
    s_branch {L_top}
    {L_s0}:
    s_sub_u32 s93, s93, 1
    s_cbranch_scc1 {L_start}
    s_cmp_lg_u32 s26, 3
    s_cbranch_scc1 {L_oth}
    s_cmp_ge_u32 s34, 3
    s_cbranch_scc1 {L_p3}
    buffer_load_dwordx2 {v(T + 4, 2)}, {v(vPF)}, s[20:23], s53 offen sc1
    s_waitcnt vmcnt(0)
    {L_p3}:
    s_waitcnt vmcnt(3)
    v_cmp_eq_u64 vcc, s[98:99], {v(T + 4, 2)}
    s_lshl_b32 s45, s34, 1
    s_nop 0
    s_cmp_eq_u64 vcc, -1
    s_cselect_b32 s44, s98, s45
    v_mov_b32 {v(T + 2)}, s44
    ds_write_b32 {v(T + 3)}, {v(T + 2)}
    s_cbranch_scc1 {L_start}
    s_branch {L_top}
    {L_oth}:
    s_mov_b32 s45, 40
    {L_rei}:
    s_sleep 1
    ds_read_b32 {v(T + 2)}, {v(T + 3)}
    s_waitcnt lgkmcnt(0)
    v_readfirstlane_b32 s44, {v(T + 2)}
    s_cmp_eq_u32 s44, s98
    s_cbranch_scc1 {L_start}
    s_lshl_b32 s46, s34, 1
    s_cmp_eq_u32 s44, s46
    s_cbranch_scc1 {L_top}
    s_sub_u32 s45, s45, 1
    s_cbranch_scc0 {L_rei}
    s_branch {L_top}
    {L_start}:
    """)
    stamp(a, 23)
    for k in range(3):
        for e in range(2):
            emit(a, h_ld(k, e))
    for _ in range(HPF):
        paced_h()
    emit(a, w_rd(0, 0))
    a(f"""
    {L_next}:
    s_add_u32 s35, s35, 1
    s_branch {L_top}
    {L_body}:
    s_cmp_lg_u32 s35, 1
    s_cbranch_scc1 {L_n1}
    s_waitcnt vmcnt(0)
    {L_n1}:
    """)
    wo_switch()
    a(f"""
    s_cmp_lt_u32 s34, 3
    s_cbranch_scc1 {L_b12}
    """)
    body(False, 15)
    a(f's_branch {L_bd}\n{L_b12}:')
    body(False, 12)
    a(f'{L_bd}:')
    pace_switch()
    paced_h()
    paced()
    a(f's_branch {L_next}\n{L_last}:')
    body(True)
    a(f's_branch {L_next}\n{L_f1}:')
    bstamp(a)
    a('s_barrier')
    bstamp(a)
    a(f's_waitcnt vmcnt(0)\ns_branch {L_f2}\n{L_fast}:')
    wo_switch()
    bstamp(a)
    a('s_barrier')
    bstamp(a)
    a(f'{L_f2}:')
    body(False, fast=True)
    pace_switch()
    paced_h()
    paced()
    a(f'''
    s_sub_u32 s34, s34, 1
    s_add_u32 s35, s35, 1
    s_cmp_lt_u32 s35, 9
    s_cselect_b32 s45, s34, 0
    s_cmp_gt_u32 s45, 3
    s_cbranch_scc1 {L_fast}
    s_branch {L_top}
    {L_wo}:
    ''')
    stamp(a, 17)
    emit(a, w_rd(1, 3072) + w_rd(2, 6144))
    a('s_mov_b32 s45, 0x15556\ns_waitcnt lgkmcnt(0)')
    emit(a, w_dma('s39', 3072 * 3))
    emit(a, w_dma('s39', 3072 * 4))
    for p in range(3):
        a(f"""
        v_add_u32 {v(T)}, {64 * p}, {v(vL)}
        v_mul_lo_u32 {v(T + 1)}, {v(T)}, s45
        v_bfe_u32 {v(T)}, {v(T + 1)}, 22, 1
        v_lshrrev_b32 {v(T + 1)}, 23, {v(T + 1)}
        v_mul_u32_u24 {v(T)}, {36 * 1280}, {v(T)}
        v_mul_u32_u24 {v(T + 1)}, {12 * 1280}, {v(T + 1)}
        v_add3_u32 {v(vWD + p)}, {v(vWD + p)}, {v(T + 1)}, {v(T)}
        """)
    a(f's_add_u32 s43, s56, {16 * 1280}\ns_mov_b32 s52, {80 * 1280}\ns_mov_b32 s48, {160 * 1280}')
    emit(a, w_dma('s39', 3072 * 5))
    emit(a, w_dma('s39', 3072 * 6))
    a(f's_cmp_lg_u32 s34, 0\ns_cbranch_scc1 {L_next}\n{L_end2}:')
    a(f"""
    v_subrev_u32 {v(vWA)}, 9216, {v(vWA)}
    v_subrev_u32 {v(vWA + 1)}, 9216, {v(vWA + 1)}
    v_subrev_u32 {v(vWA + 2)}, 9216, {v(vWA + 2)}
    s_mul_i32 s44, s26, 14336
    s_add_u32 s44, s44, {OL_A}
    v_add_u32 {v(vKO)}, s44, {v(vHL)}
    v_and_b32 {v(T)}, 7, {v(vR)}
    v_xor_b32 {v(T)}, {v(T)}, {v(vH)}
    v_lshlrev_b32 {v(T + 1)}, 7, {v(vR)}
    v_add_u32 {v(T + 1)}, s39, {v(T + 1)}
    """)
    for jp in range(4):
        a(f"""
        v_xor_b32 {v(T + 2)}, {2 * jp}, {v(T)}
        v_lshl_add_u32 {v(T + 4 + jp)}, {v(T + 2)}, 4, {v(T + 1)}
        """)
    stamp(a, 18)
    a('s_barrier')
    Lp, Lq = a.label('op'), a.label('opd')
    a(f's_mov_b32 s93, {OPOLL_MAX}\n{Lp}:')
    for k in range(27, 30):
        for e in range(2):
            a(f'buffer_load_dwordx4 {v(hreg(k) + 4 * e, 4)}, {v(vHL)}, s[20:23], s{54 + e} offen offset:{1024 * (k - 27)} sc1')
    a('s_waitcnt vmcnt(0)')
    regs = [hreg(k) + i for k in range(27, 30) for i in range(8)]
    a(f'v_max3_u32 {v(T)}, {v(regs[0])}, {v(regs[1])}, {v(regs[2])}')
    for i in range(3, 23, 2):
        a(f'v_max3_u32 {v(T)}, {v(T)}, {v(regs[i])}, {v(regs[i + 1])}')
    a(f"""
    v_max_u32 {v(T)}, {v(T)}, {v(regs[23])}
    v_cmp_eq_u32 vcc, -1, {v(T)}
    s_nop 1
    s_cmp_eq_u64 vcc, 0
    s_cbranch_scc1 {Lq}
    s_sub_u32 s93, s93, 1
    s_cbranch_scc1 {Lq}
    s_sleep {OSLEEP}
    s_branch {Lp}
    {Lq}:
    """)
    stamp(a, 19)

    def o_rd(k):
        return [f'ds_read_b128 {v(hreg(k) + 4 * e, 4)}, {v(vKO)} offset:{(k - 30) * 2048 + 1024 * e}' for e in range(2)]

    for k in range(27, 30):
        emit(a, g_mfmas(k))
        emit(a, w_rd(k + 3, 3072 * (k - 27)))
    if FFL:
        L1, L2 = a.label('fw'), a.label('fd')
        a(f'''
        s_lshl_b32 s44, s26, 3
        s_add_u32 s44, s44, {OW_A}
        v_mov_b32 {v(T)}, s44
        s_mov_b32 s93, {POLL_MAX * 8}
        {L1}:
        ds_read_b64 {v(T + 2, 2)}, {v(T)}
        s_waitcnt lgkmcnt(0)
        v_readfirstlane_b32 s44, {v(T + 2)}
        v_readfirstlane_b32 s45, {v(T + 3)}
        s_xor_b32 s44, s44, s98
        s_xor_b32 s45, s45, s98
        s_or_b32 s44, s44, s45
        s_cbranch_scc0 {L2}
        s_sub_u32 s93, s93, 1
        s_cbranch_scc0 {L1}
        {L2}:
        ''')
    else:
        a('s_waitcnt lgkmcnt(0)')
        a('s_barrier')
    stamp(a, 30)
    for k in range(30, 33):
        emit(a, o_rd(k))
    XO = vWD
    assert XO % 2 == 0 and XO + 8 <= ACC
    for k in range(30, 34):
        a(f's_waitcnt lgkmcnt({ {30: 4, 31: 10, 32: 8, 33: 8}[k] })')
        emit(a, g_mfmas(k))
        emit(a, w_rd(k + 3, 3072 * (k + 3 - 30)) + o_rd(k + 3))
    g2_out(a, XO, vL, 's24', 0)
    a('s_waitcnt lgkmcnt(0)')
    wr = lambda n: [f'ds_write_b128 {v(T + 4 + jp)}, {v(ACC + 16 * n + 4 * jp, 4)} offset:{4096 * n}' for jp in range(4)]
    ms = [g_mfmas(k) for k in range(34, 37)]
    for n in range(5):
        for z in range(3):
            a(ms[z][n])
        if n >= 2:
            a('s_nop 5')
            emit(a, wr(n - 2))
    stamp(a, 20)
    a('s_nop 3')
    emit(a, wr(3))
    a('s_nop 3')
    emit(a, wr(4))
    a('s_waitcnt vmcnt(0) lgkmcnt(0)')
    a('s_barrier')
    stamp(a, 21)
    for i in range(8):
        a(f'v_mov_b32 {v(ACC + i)}, {v(XO + i)}')
    g2_out(a, ACC, vL, 's24', 1)


DESC = """; One persistent launch, 256 workgroups (one per CU), 12 waves each: waves 0-7 compute, waves 8-11 load / second GEMM.
;           split over the WGs and handed over through the workspace; K and V by the load waves; GEGLU epilogue.
;           to a two-pass true-max path.  The load waves stream K/V and run h @ wd meanwhile.
;  tail:    O @ wo, cross-wave reduction, + x, bf16 store.
"""


def build(path):
    hdr = open('parallel_sum__grouped_kv_mqa__geglu_ffn__prompt.s.ref').read().split('; Override launch')[0]
    out = hdr + f'; @launch grid=(256,1,1) block=(768,1,1) lds={LDS_TOTAL}\n' + DESC
    out += '.amdgcn_target "amdgcn-amd-amdhsa--gfx950"\n'
    out += gen()
    out += kernel_desc(KNAME, 168)
    open(path, 'w').write(out)


if __name__ == '__main__':
    import sys
    if len(sys.argv) > 2 and sys.argv[2] == 'stamp':
        asmlib.STAMPS = True
    build(sys.argv[1])
```

```python
from asmlib import *
import asmlib
import math
import os

KNAME = 'parallel_sum__grouped_kv_mqa__geglu_ffn__prompt_kernel'

H_OFF = 0
QF_OFF = 0x700000
KV_OFF = 0xA00000
OF_OFF = 0xB00000
FL_OFF = 0xE00000
F_ST = 0x1200000
F_CS = 0x1220000
F_KV = 0x1240000
F_KC = 0x1248000
F_W2 = 0x1250000
F_X = 0x1258000
F_QH = 0xE80000
ROWW = 0xE10000
CSW = 0xE20000
CSKVW = 0xE60000
W2F = 0xF00000
WS_USED = 0x1260000

LDS_X = 0
LDS_W = 49152
LDS_KV = 147456
CS_A = 16384
PART_A = 32768
VT_A = 32768
ROWC_A = 156672
CSKV_A = 158720
NONCE_A = 160768
RDY_A = 160800
SX_A = 160928
KL_A = 160944
OW_A = 160896
CD_A = 160832
PD_A = 160864
LDS_TOTAL = 163840
CH_BYTES = 14336
NST = 4
KVR = 49152
Q_A = KVR + 3 * CH_BYTES
G2R = KVR + CH_BYTES * NST
G2D = 3
TW_A = G2R
OL_A = KVR
WO_HI = 106496
WOA = 0
RED_A = 0

C0 = -2.0 * math.sqrt(2.0 / math.pi) * math.log2(math.e)
C1 = C0 * 0.044715
QSC = math.log2(math.e) / math.sqrt(20.0)
M_OFFSET = 100.0
POLL_MAX = 400000
NONCE_X = 0x5a5a5a5a

HM = 's[62:63]'
PFWAIT = False
ENV = os.environ
NODOWN = ENV.get('NODOWN')
PRIO2 = int(ENV.get('PRIO2', '3'))
PRIO1 = int(ENV.get('PRIO1', '3'))
SPACE = ENV.get('SPACE', '')
NOPF = not ENV.get('PF')
INV = int(ENV.get('INV', '0'))
NOG2 = ENV.get('NOG2')
TOPW = int(ENV.get('TOPW', '0'))
NOA0 = int(ENV.get('NOA0', '0'))
KVP = int(ENV.get('KVP', '0'))
KSL2 = int(ENV.get('KSL2', '8'))
AST = int(ENV.get('AST', '0'))
ASS = int(ENV.get('ASS', '1'))
ASP = int(ENV.get('ASP', '2'))
APZ = int(ENV.get('APZ', '0'))
FAST = int(ENV.get('FAST', '1'))
BP = int(ENV.get('BP', '15'))
ROT = int(ENV.get('ROT', '0'))
FFL = int(ENV.get('FFL', '0'))
PCW = int(ENV.get('PCW', '1'))
PCH = int(ENV.get('PCH', '0'))
HST = int(ENV.get('HST', '-1'))
ODBL = int(ENV.get('ODBL', '1'))
JX = int(ENV.get('JX', '0'))
QSLEEP = int(ENV.get('QSLEEP', '4'))
KVF = int(ENV.get('KVF', '3'))
OUTSC = {'': '', '1': ' sc1', '2': ' nt', '3': ' sc0 sc1', '4': ' sc1 nt'}[ENV.get('OUTSC', '')]
HPF = int(ENV.get('HPF', '2'))
PERM = int(ENV.get('PERM', '1'))
P1PF = int(ENV.get('P1PF', '0'))
PFC = tuple(int(x) for x in ENV.get('PFC', '2,3,4').split(','))
WDC = int(ENV.get('WDC', '2'))
WOC = int(ENV.get('WOC', '4'))
TWC = int(ENV.get('TWC', '1'))
DPOLL2 = 0
OSLEEP = int(ENV.get('OSLEEP', '3'))
LATE1 = int(ENV.get('LATE1', '1'))
OPOLL_MAX = 200000
LINPF = int(ENV.get('LINPF', '0'))
NOSL = ENV.get('NOSL')
PF0 = int(ENV.get('PF0', '0'))
JIT = int(ENV.get('JIT', '0'))
JITD = int(ENV.get('JITD', '4'))
SLC = int(ENV.get('SLC', '-1'))
SLG = int(ENV.get('SLG', '2'))
SPN = int(ENV.get('SPN', '2'))
PZ0 = int(ENV.get('PZ0', '0'))
P3C = int(ENV.get('P3C', '7'))
EARLY2 = int(ENV.get('EARLY2', '0'))
CWARM = int(ENV.get('CWARM', '1'))
KVSL = int(ENV.get('KVSL', '16'))
HEARLY = ENV.get('HEARLY')
PSLEEP = int(ENV.get('PSLEEP', '2'))
NOPF2 = not ENV.get('PF2')
CV = int(ENV.get('CV', '0'))
NODMA = ENV.get('NODMA')
IST = ENV.get('IST')
LD = ' sc1' if ENV.get('SC1LD') else ''
FEWST = ENV.get('FEWST')
IST_LIST = tuple(int(x) for x in os.environ.get('ISTL', '1,2,6,7').split(','))
HFLAG_T = int(os.environ.get('HFT', '6'))
G2_START = int(os.environ.get('G2S', '6'))
G2_END = int(os.environ.get('G2E', '15'))


class VM:
    def __init__(self):
        self.ops = []

    def add(self, tag, n=1, optional=False):
        for _ in range(n):
            self.ops.append((tag, optional))

    def wait(self, tag):
        idx = max(i for i, (t, o) in enumerate(self.ops) if t == tag)
        n = sum(1 for t, o in self.ops[idx + 1:] if not o)
        assert n <= 63, n
        return n

    def drain(self):
        self.ops = []


def emit(a, bundles):
    for b in bundles:
        a(b if isinstance(b, str) else '\n'.join(b))


def flag_store(a, soff_reg, vt):
    a(f'''
    v_mov_b32 {v(vt)}, s98
    v_mov_b32 {v(vt + 1)}, s99
    s_mov_b64 exec, 1
    buffer_store_dwordx2 {v(vt, 2)}, off, s[20:23], {soff_reg} sc1
    s_mov_b64 exec, -1
    ''')


def poll(a, vt, voff, soff_reg, wide=False, ignore=None, inv=True, sleep=None):
    L = a.label('poll')
    Ld = a.label('polld')
    a(f's_mov_b32 s93, {POLL_MAX}')
    a(f'{L}:')
    if wide:
        a(f'''
        buffer_load_dwordx4 {v(vt, 4)}, {v(voff)}, s[20:23], {soff_reg} offen sc1
        s_waitcnt vmcnt(0)
        v_cmp_eq_u64 vcc, s[98:99], {v(vt, 2)}
        v_cmp_eq_u64 s[46:47], s[98:99], {v(vt + 2, 2)}
        s_nop 1
        s_and_b64 vcc, vcc, s[46:47]
        ''')
    else:
        a(f'''
        buffer_load_dwordx2 {v(vt, 2)}, {v(voff)}, s[20:23], {soff_reg} offen sc1
        s_waitcnt vmcnt(0)
        v_cmp_eq_u64 vcc, s[98:99], {v(vt, 2)}
        s_nop 1
        ''')
    if ignore:
        a(f's_or_b64 vcc, vcc, {ignore}')
    a(f'''
    s_cmp_eq_u64 vcc, -1
    s_cbranch_scc1 {Ld}
    s_sub_u32 s93, s93, 1
    s_cbranch_scc1 {Ld}
    s_sleep {sleep or PSLEEP}
    s_branch {L}
    {Ld}:
    ''')
    if inv and INV:
        a('buffer_inv sc1\ns_waitcnt vmcnt(0)')


def polln(a, vt, voff, rows, sleep):
    L = a.label('poll')
    Ld = a.label('polld')
    a(f's_mov_b32 s93, {POLL_MAX}\n{L}:')
    for q, (so, ig) in enumerate(rows):
        a(f'buffer_load_dwordx2 {v(vt + 2 * q, 2)}, {v(voff[q] if isinstance(voff, list) else voff)}, s[20:23], {so} offen sc1')
    a('s_waitcnt vmcnt(0)')
    dst = ['vcc', 's[46:47]', 's[48:49]']
    for q in range(len(rows)):
        a(f'v_cmp_eq_u64 {dst[q]}, s[98:99], {v(vt + 2 * q, 2)}')
    a('s_nop 1')
    for q, (so, ig) in enumerate(rows):
        if ig:
            a(f's_or_b64 {dst[q]}, {dst[q]}, {ig}')
        if q:
            a(f's_and_b64 vcc, vcc, {dst[q]}')
    a(f'''
    s_cmp_eq_u64 vcc, -1
    s_cbranch_scc1 {Ld}
    s_sub_u32 s93, s93, 1
    s_cbranch_scc1 {Ld}
    s_sleep {sleep}
    s_branch {L}
    {Ld}:
    ''')


def one_poller(a, vt, word, body, who=3):
    Lw, Ld, Ls = a.label('opw'), a.label('opd'), a.label('ops')
    a(f'''
    v_mov_b32 {v(vt + 3)}, {RDY_A + 4 * word}
    s_cmp_lg_u32 s26, {who}
    s_cbranch_scc1 {Lw}
    ''')
    body()
    a(f'''
    v_mov_b32 {v(vt + 2)}, s98
    ds_write_b32 {v(vt + 3)}, {v(vt + 2)}
    s_branch {Ld}
    {Lw}:
    s_mov_b32 s93, {POLL_MAX * 8}
    {Ls}:
    ds_read_b32 {v(vt + 2)}, {v(vt + 3)}
    s_waitcnt lgkmcnt(0)
    v_readfirstlane_b32 s46, {v(vt + 2)}
    s_cmp_eq_u32 s46, s98
    s_cbranch_scc1 {Ld}
    s_sub_u32 s93, s93, 1
    s_cbranch_scc1 {Ld}
    s_sleep 1
    s_branch {Ls}
    {Ld}:
    ''')


def bstamp(a, first=False):
    if not (asmlib.STAMPS and ENV.get('BST')):
        return
    if first:
        a('s_add_u32 s101, s92, 0xC0000')
    a('''
    s_memrealtime s[94:95]
    s_memtime s[96:97]
    s_waitcnt lgkmcnt(0)
    v_mov_b32 v166, s94
    v_mov_b32 v167, s96
    buffer_store_dwordx2 v[166:167], off, s[88:91], s101
    s_add_u32 s101, s101, 8
    ''')


def srd(a, base, ptr, size):
    a(f'''
    s_mov_b32 s{base}, s{ptr}
    s_mov_b32 s{base + 1}, s{ptr + 1}
    s_mov_b32 s{base + 2}, {size}
    s_mov_b32 s{base + 3}, 0x20000
    ''')


def w_source(a):
    a('''
    s_and_b32 s44, s26, 1
    s_and_b32 s51, s44, s48
    s_lshr_b32 s45, s26, 1
    s_lshl_b32 s46, s44, 6
    s_add_u32 s46, s46, s49
    s_cmp_eq_u32 s48, 1
    s_cselect_b32 s46, s49, s46
    s_lshl_b32 s47, s45, 6
    s_add_u32 s47, s47, s50
    s_cmp_eq_u32 s51, 1
    s_cselect_b32 s52, s47, s46
    s_lshl_b32 s52, s52, 1
    s_cmp_eq_u32 s45, 1
    s_cselect_b32 s12, s82, s80
    s_cselect_b32 s13, s83, s81
    s_mov_b32 s14, 2211840
    s_mov_b32 s53, 3456
    s_cmp_eq_u32 s51, 1
    s_cselect_b32 s12, s70, s12
    s_cselect_b32 s13, s71, s13
    s_cselect_b32 s14, 819200, s14
    s_cselect_b32 s53, 1280, s53
    s_mov_b32 s15, 0x20000
    ''')


def tile_offs(t):
    p, o = t >> 1, t & 1
    b = p * 7168
    return b + o * 1024, b + 2048, b + 3072 + o * 2048, b + 4096 + o * 2048


PERMC = f'''
    s_bfe_u32 s44, s2, 0x30003
    s_lshr_b32 s45, s2, 6
    s_add_u32 s44, s44, s45
    s_and_b32 s100, s44, {PERM}
    s_xor_b32 s45, s100, 1
'''
ROTC = '''
    s_add_u32 s100, s27, s28
    s_mul_i32 s44, s100, 26
    s_lshr_b32 s44, s44, 8
    s_mul_i32 s44, s44, 10
    s_sub_u32 s100, s100, s44
    s_add_u32 s45, s100, 1
    s_cmp_eq_u32 s45, 10
    s_cselect_b32 s45, 0, s45
'''


def stat_code(vL, vH, vR, CR, XR, A8, U, W4, SCS, SST):
    u0, u1, u2, u3, u4, u5 = range(U, U + 6)

    def lines(txt):
        return [x.strip() for x in txt.split(chr(10)) if x.strip()]

    def load_cs():
        f = lines(f'''
        s_mul_i32 s44, s27, 40
        v_lshrrev_b32 {v(u4)}, 3, {v(vL)}
        v_add_u32 {v(u4)}, s44, {v(u4)}
        v_mul_lo_u32 {v(u5)}, {v(u4)}, s53
        v_and_b32 {v(u4)}, 7, {v(vL)}
        v_lshl_add_u32 {v(u5)}, {v(u4)}, 4, {v(u5)}
        s_mov_b32 s47, s52
        ''')
        for t in range(5):
            f.append([f'buffer_load_dwordx4 {v(CR + 4 * t, 4)}, {v(u5)}, s[12:15], s47 offen', 's_add_u32 s47, s47, s31'])
        return f

    def load_rows():
        f = lines(f'''
        s_lshl_b32 s44, s27, 7
        s_lshl_b32 s45, s28, 3
        s_add_u32 s44, s44, s45
        s_lshl_b32 s45, s26, 1
        s_add_u32 s55, s44, s45
        v_add_u32 {v(u0)}, s55, {v(vH)}
        v_mul_u32_u24 {v(u0)}, 1280, {v(u0)}
        v_lshl_add_u32 {v(u0)}, {v(vR)}, 3, {v(u0)}
        ''')
        for t in range(5):
            f.append(f'buffer_load_dwordx2 {v(XR + 2 * t, 2)}, {v(u0)}, s[8:11], 0 offen offset:{256 * t}')
        return f

    def fill_cs():
        f = []
        for q in range(4):
            f += [f'v_lshlrev_b32 {v(A8 + 2 * q)}, 16, {v(CR + q)}', f'v_and_b32 {v(A8 + 2 * q + 1)}, 0xffff0000, {v(CR + q)}']
        for t in range(1, 5):
            for q in range(4):
                ta, tb = (u2, u3) if q & 1 else (u4, u5)
                f += lines(f'''
                v_lshlrev_b32 {v(ta)}, 16, {v(CR + 4 * t + q)}
                v_and_b32 {v(tb)}, 0xffff0000, {v(CR + 4 * t + q)}
                v_add_f32 {v(A8 + 2 * q)}, {v(A8 + 2 * q)}, {v(ta)}
                v_add_f32 {v(A8 + 2 * q + 1)}, {v(A8 + 2 * q + 1)}, {v(tb)}
                ''')
        f.append('s_nop 1')
        f += [f'v_permlane32_swap_b32 {v(A8 + q)}, {v(A8 + 4 + q)}' for q in range(4)]
        f.append('s_nop 1')
        f += [f'v_add_f32 {v(A8 + q)}, {v(A8 + q)}, {v(A8 + 4 + q)}' for q in range(4)]
        f.append('s_nop 1')
        f += [f'v_permlane16_swap_b32 {v(A8 + q)}, {v(A8 + 2 + q)}' for q in range(2)]
        f.append('s_nop 1')
        f += [f'v_add_f32 {v(A8 + q)}, {v(A8 + q)}, {v(A8 + 2 + q)}' for q in range(2)]
        f += lines(f'''
        s_nop 1
        v_add_f32_dpp {v(A8)}, {v(A8)}, {v(A8)} row_ror:8 row_mask:0xf bank_mask:0xf
        v_add_f32_dpp {v(A8 + 1)}, {v(A8 + 1)}, {v(A8 + 1)} row_ror:8 row_mask:0xf bank_mask:0xf
        s_mov_b32 vcc_lo, 0xff00ff00
        s_mov_b32 vcc_hi, 0xff00ff00
        v_cndmask_b32 {v(u0)}, {v(A8)}, {v(A8 + 1)}, vcc
        v_cvt_pk_bf16_f32 {v(u1)}, {v(u0)}, {v(u0)}
        v_and_b32 {v(u1)}, 0xffff0000, {v(u1)}
        v_sub_f32 {v(u1)}, {v(u0)}, {v(u1)}
        v_cvt_pk_bf16_f32 {v(u0)}, {v(u0)}, {v(u1)}
        v_and_b32 {v(u1)}, 7, {v(vL)}
        v_lshl_add_u32 {v(u1)}, {v(u1)}, 1, {v(vH)}
        v_bfe_u32 {v(u2)}, {v(vL)}, 4, 1
        v_lshl_add_u32 {v(u1)}, {v(u1)}, 1, {v(u2)}
        v_bfe_u32 {v(u2)}, {v(vL)}, 3, 1
        v_lshl_add_u32 {v(u1)}, {v(u1)}, 1, {v(u2)}
        v_and_b32 {v(u2)}, 15, {v(u1)}
        v_lshrrev_b32 {v(u3)}, 4, {v(u1)}
        s_and_b32 s44, s26, 1
        s_andn2_b32 s44, s44, s48
        s_lshl_b32 s44, s44, 7
        s_lshr_b32 s45, s26, 1
        s_lshl_b32 s45, s45, 4
        s_add_u32 s44, s44, s45
        v_lshl_add_u32 {v(u4)}, {v(u3)}, 5, s44
        s_add_u32 s44, s26, 3
        s_lshl_b32 s44, s44, 5
        v_lshl_add_u32 {v(u5)}, {v(u3)}, 4, s44
        s_cmp_eq_u32 s51, 1
        s_cselect_b64 vcc, -1, 0
        v_cndmask_b32 {v(u4)}, {v(u4)}, {v(u5)}, vcc
        v_add_lshl_u32 {v(u2)}, {v(u2)}, {v(u4)}, 2
        s_lshl_b32 s44, s28, 14
        s_lshl_b32 s45, s27, 10
        s_add_u32 s44, s44, s45
        s_add_u32 s44, s44, {CSW}
        buffer_store_dword {v(u0)}, {v(u2)}, s[20:23], s44 offen sc1
        s_lshl_b32 s46, s27, 2
        s_add_u32 s46, s46, s26
        s_lshl_b32 s46, s46, 7
        s_lshl_b32 s45, s28, 13
        s_add_u32 s46, s46, s45
        s_add_u32 {SCS}, s46, {F_CS}
        ''')
        return f

    def fill_rows():
        f = [f'v_mov_b32 {v(u0)}, 0', f'v_mov_b32 {v(u1)}, 0']
        for t in range(10):
            f += lines(f'''
            v_lshlrev_b32 {v(u2)}, 16, {v(XR + t)}
            v_and_b32 {v(u3)}, 0xffff0000, {v(XR + t)}
            v_add_f32 {v(u0)}, {v(u0)}, {v(u2)}
            v_fmac_f32 {v(u1)}, {v(u2)}, {v(u2)}
            v_add_f32 {v(u0)}, {v(u0)}, {v(u3)}
            v_fmac_f32 {v(u1)}, {v(u3)}, {v(u3)}
            ''')
        for ror in (8, 4, 2, 1):
            f += lines(f'''
            s_nop 1
            v_add_f32_dpp {v(u0)}, {v(u0)}, {v(u0)} row_ror:{ror} row_mask:0xf bank_mask:0xf
            v_add_f32_dpp {v(u1)}, {v(u1)}, {v(u1)} row_ror:{ror} row_mask:0xf bank_mask:0xf
            ''')
        f += lines(f'''
        v_mov_b32 {v(u2)}, {v(u0)}
        v_mov_b32 {v(u3)}, {v(u1)}
        s_nop 1
        v_permlane16_swap_b32 {v(u0)}, {v(u2)}
        v_permlane16_swap_b32 {v(u1)}, {v(u3)}
        s_mov_b32 s44, {f2u(1.0 / 640.0)}
        s_mov_b32 s45, {f2u(1e-5)}
        v_add_f32 {v(u0)}, {v(u0)}, {v(u2)}
        v_add_f32 {v(u1)}, {v(u1)}, {v(u3)}
        v_mul_f32 {v(u0)}, s44, {v(u0)}
        v_mul_f32 {v(u1)}, s44, {v(u1)}
        v_fma_f32 {v(u1)}, -{v(u0)}, {v(u0)}, {v(u1)}
        v_max_f32 {v(u1)}, 0, {v(u1)}
        v_cvt_pk_bf16_f32 {v(W4)}, -{v(u0)}, -{v(u0)}
        v_cvt_pk_bf16_f32 {v(u1)}, {v(u1)}, {v(u1)}
        v_and_b32 {v(u1)}, 0xffff0000, {v(u1)}
        v_add_f32 {v(u1)}, s45, {v(u1)}
        v_cvt_pk_bf16_f32 {v(u1)}, {v(u1)}, {v(u1)}
        v_and_b32 {v(u1)}, 0xffff0000, {v(u1)}
        v_sqrt_f32 {v(u1)}, {v(u1)}
        v_mov_b32 {v(W4 + 3)}, 0
        v_cvt_pk_bf16_f32 {v(u1)}, {v(u1)}, {v(u1)}
        v_and_b32 {v(u1)}, 0xffff0000, {v(u1)}
        v_rcp_f32 {v(W4 + 1)}, {v(u1)}
        v_mul_f32 {v(W4 + 2)}, {v(u1)}, {v(u1)}
        v_lshlrev_b32 {v(u2)}, 4, {v(vH)}
        s_lshl_b32 s44, s55, 4
        s_add_u32 s44, s44, {ROWW}
        ''')
        f.append(['s_mov_b32 exec_lo, 1', 's_mov_b32 exec_hi, 1',
                  f'buffer_store_dwordx4 {v(W4, 4)}, {v(u2)}, s[20:23], s44 offen sc1', 's_mov_b64 exec, -1'])
        f += lines(f'''
        s_lshl_b32 s44, s28, 2
        s_add_u32 s44, s44, s26
        s_lshl_b32 s44, s44, 7
        s_lshl_b32 s45, s27, 13
        s_add_u32 s44, s44, s45
        s_add_u32 {SST}, s44, {F_ST}
        ''')
        return f

    return lines, load_cs, load_rows, fill_cs, fill_rows


def gen():
    a = Asm()
    a(kernel_head(KNAME))
    stamp_early(a)
    if TOPW:
        a(f'''
        s_getpc_b64 s[4:5]
        v_cmp_gt_u32 vcc, {TOPW}, v0
        v_lshlrev_b32 v4, 7, v0
        s_and_saveexec_b64 s[6:7], vcc
        s_cbranch_execz L_topw
        global_load_dword v164, v4, s[4:5] offset:64
        L_topw:
        s_mov_b64 exec, s[6:7]
        ''')
    vL, vH, vR = 1, 2, 3
    L_end = a.label('end')
    L_aux = a.label('aux')
    a(f'''
    s_cmp_ge_u32 s2, 256
    s_cbranch_scc1 {L_end}
    s_load_dwordx8 s[68:75], s[0:1], 0
    s_load_dwordx4 s[80:83], s[0:1], 48
    s_load_dwordx4 s[76:79], s[0:1], 80
    s_load_dwordx2 s[84:85], s[0:1], 32
    s_load_dwordx4 s[88:91], s[0:1], 64
    v_lshrrev_b32 v4, 6, v0
    v_and_b32 {v(vL)}, 63, v0
    v_readfirstlane_b32 s24, v4
    v_lshrrev_b32 {v(vH)}, 5, {v(vL)}
    v_and_b32 {v(vR)}, 31, {v(vL)}
    ''')
    if CWARM:
        Lw, Lp = a.label('nowarm'), a.label('pc')
        a(f'''
        s_cmp_lg_u32 s24, 11
        s_cbranch_scc1 {Lw}
        s_getpc_b64 s[4:5]
        {Lp}:
        s_bfe_u32 s44, s2, 0x30003
        s_lshl_b32 s44, s44, 13
        v_lshl_add_u32 v4, {v(vL)}, 7, s44
        v_min_u32 v4, {L_end}-{Lp}, v4
        global_load_dword v165, v4, s[4:5]
        {Lw}:
        ''')
    vXD, vWD, vKD = 20, 22, 24
    t0, t1, t2, t3, t4 = 4, 5, 6, 7, 8
    a(f'''
    s_bfe_u32 s27, s2, 0x30003
    s_and_b32 s46, s2, 1
    s_lshl_b32 s46, s46, 3
    s_add_u32 s27, s27, s46
    s_bfe_u32 s46, s2, 0x20001
    s_xor_b32 s46, s46, {JX}
    s_lshl_b32 s46, s46, 2
    s_lshr_b32 s47, s2, 6
    s_add_u32 s28, s46, s47
    s_cmp_ge_u32 s28, 11
    s_cselect_b32 s48, 1, 0
    s_sub_u32 s44, s28, 11
    s_lshl_b32 s45, s44, 6
    s_add_u32 s45, s45, 1408
    s_lshl_b32 s46, s28, 7
    s_lshl_b32 s50, s44, 7
    s_cmp_eq_u32 s48, 1
    s_cselect_b32 s49, s45, s46
    s_and_b32 s25, s24, 1
    s_lshr_b32 s26, s24, 1
    s_sub_u32 s44, s24, 8
    s_cmp_ge_u32 s24, 8
    s_cselect_b32 s26, s44, s26
    s_and_b32 s44, s26, 1
    s_and_b32 s51, s44, s48
    s_lshr_b32 s43, s26, 1
    s_andn2_b32 s46, s44, s48
    s_lshl_b32 s46, s46, 6
    s_add_u32 s46, s46, s49
    s_lshl_b32 s47, s43, 6
    s_add_u32 s47, s47, s50
    s_mov_b32 s53, 3456
    s_cmp_eq_u32 s51, 1
    s_cselect_b32 s52, s47, s46
    s_cselect_b32 s53, 1280, s53
    s_lshl_b32 s52, s52, 1
    s_lshl_b32 s31, s53, 3
    s_lshl_b32 s32, s53, 6
    v_lshrrev_b32 {v(t0)}, 3, {v(vL)}
    v_and_b32 {v(t1)}, 7, {v(vL)}
    s_lshl_b32 s44, s27, 7
    s_lshl_b32 s45, s26, 5
    s_add_u32 s44, s44, s45
    v_add_u32 {v(t2)}, s44, {v(t0)}
    v_mul_u32_u24 {v(t2)}, 1280, {v(t2)}
    v_lshrrev_b32 {v(t3)}, 1, {v(t0)}
    v_xor_b32 {v(t3)}, {v(t3)}, {v(t1)}
    v_lshl_add_u32 {v(vXD)}, {v(t3)}, 4, {v(t2)}
    v_xor_b32 {v(t3)}, 4, {v(t3)}
    v_lshl_add_u32 {v(vXD + 1)}, {v(t3)}, 4, {v(t2)}
    v_add_u32 {v(vXD + 1)}, {8 * 1280}, {v(vXD + 1)}
    v_mul_lo_u32 {v(t2)}, {v(t0)}, s53
    v_lshrrev_b32 {v(t3)}, 1, {v(t1)}
    v_and_b32 {v(t4)}, 2, {v(t0)}
    v_xor_b32 {v(t3)}, {v(t3)}, {v(t4)}
    v_and_b32 {v(t4)}, 1, {v(t1)}
    v_lshl_add_u32 {v(t2)}, {v(t4)}, 4, {v(t2)}
    v_add_u32 {v(t2)}, s52, {v(t2)}
    v_lshl_add_u32 {v(vWD)}, {v(t3)}, 5, {v(t2)}
    v_xor_b32 {v(t3)}, 1, {v(t3)}
    v_lshl_add_u32 {v(vWD + 1)}, {v(t3)}, 5, {v(t2)}
    s_lshl_b32 s36, s26, 12
    s_mul_i32 s37, s26, 24576
    s_add_u32 s37, s37, {LDS_W}
    s_lshl_b32 s33, s53, 5
    s_mul_i32 s33, s33, s25
    s_lshl_b32 s44, s25, 12
    s_add_u32 s35, s37, s44
    {ROTC if ROT else PERMC}
    s_mul_i32 s38, s100, s32
    s_mul_i32 s39, s45, s32
    s_mov_b32 s10, 2621440
    s_mov_b32 s11, 0x20000
    s_mov_b32 s14, 2211840
    s_mov_b32 s15, 0x20000
    s_cmp_ge_u32 s24, 8
    s_cbranch_scc1 {L_aux}
    s_cmp_eq_u32 s43, 1
    s_waitcnt lgkmcnt(0)
    s_cselect_b32 s12, s82, s80
    s_cselect_b32 s13, s83, s81
    s_cmp_eq_u32 s51, 1
    s_cselect_b32 s12, s70, s12
    s_cselect_b32 s13, s71, s13
    s_cselect_b32 s14, 819200, s14
    ''')
    def c_start(c):
        for e in range(4):
            a(f'''
            s_add_u32 m0, s35, {c * 8192 + e * 1024}
            s_add_u32 s34, s33, s{38 + c}
            buffer_load_dwordx4 {v(vWD + (e & 1))}, s[12:15], s34 offen lds
            ''')
            if e < 3:
                a('s_add_u32 s33, s33, s31')
            elif c == 0:
                a('s_mul_i32 s44, s31, 3\ns_sub_u32 s33, s33, s44')
    c_start(0)
    if not LATE1:
        c_start(1)
    L_com = a.label('common')
    a(f'''
    s_mov_b32 s8, s68
    s_mov_b32 s9, s69
    s_mov_b32 s16, s72
    s_mov_b32 s17, s73
    s_mov_b32 s18, 25600
    s_mov_b32 s19, 0x20000
    v_mov_b32 {v(vKD)}, 0
    s_branch {L_com}
    {L_aux}:
    s_setprio {PRIO1}
    s_cmp_lt_u32 s28, 8
    s_cselect_b32 s54, 1, 0
    s_cmp_lt_u32 s26, 3
    s_cselect_b32 s40, s54, 0
    s_lshl_b32 s44, s26, 10
    s_add_u32 s38, s44, {LDS_KV}
    v_lshl_add_u32 {v(vKD)}, {v(vL)}, 4, s44
    s_mov_b32 s18, 25600
    s_mov_b32 s19, 0x20000
    s_lshl_b32 s46, s100, 7
    s_lshl_b32 s57, s45, 7
    s_mul_i32 s58, s100, 2560
    s_mul_i32 s59, s45, 2560
    s_bitcmp1_b32 s28, 2
    s_waitcnt lgkmcnt(0)
    s_mov_b32 s8, s68
    s_mov_b32 s9, s69
    s_cselect_b32 s16, s74, s72
    s_cselect_b32 s17, s75, s73
    ''')
    def a_start(c):
        for e in range(4):
            a(f'''
            s_add_u32 m0, s36, {LDS_X + c * 16384 + e * 1024}
            s_add_u32 s34, s{(46, 57)[c]}, {(e >> 1) * 16 * 1280}
            buffer_load_dwordx4 {v(vXD + (e & 1))}, s[8:11], s34 offen lds
            ''')
        lab = a.label('nokv')
        a(f'''
        s_cmp_eq_u32 s40, 0
        s_cbranch_scc1 {lab}
        s_add_u32 m0, s38, {c * 3072}
        s_nop 0
        buffer_load_dwordx4 {v(vKD)}, s[16:19], s{58 + c} offen lds
        {lab}:
        ''')
    a_start(0)
    if not LATE1:
        a_start(1)
    a(f'''
    s_cmp_eq_u32 s43, 1
    s_cselect_b32 s12, s82, s80
    s_cselect_b32 s13, s83, s81
    s_cmp_eq_u32 s51, 1
    s_cselect_b32 s12, s70, s12
    s_cselect_b32 s13, s71, s13
    s_cselect_b32 s14, 819200, s14
    {L_com}:
    s_mov_b32 s62, 0
    s_mov_b32 s63, -1
    s_and_b32 s44, s2, 7
    s_lshl_b32 s44, s44, 2
    s_bfe_u32 s46, s2, 0x20003
    s_add_u32 s29, s44, s46
    s_lshr_b32 s30, s2, 5
    ''')
    srd(a, 20, 78, WS_USED)
    srd(a, 64, 90, 2621440)
    if asmlib.STAMPS:
        a('s_mov_b32 s86, s88\ns_mov_b32 s87, s89')
    WDP = 86 if asmlib.STAMPS else 88
    if asmlib.STAMPS:
        a(f'''
        s_mov_b32 s88, s78
        s_mov_b32 s89, s79
        s_mov_b32 s90, 0x2000000
        s_mov_b32 s91, 0x20000
        s_mul_i32 s92, s2, 12
        s_add_u32 s92, s92, s24
        s_lshl_b32 s92, s92, 8
        s_add_u32 s92, s92, {asmlib.STAMP_OFF}
        ''')
    stamp(a, 0, early=True)
    stamp(a, 24)
    L_aux2 = a.label('aux2')
    a(f'''
    s_cmp_ge_u32 s24, 8
    s_cbranch_scc1 {L_aux2}
    ''')
    compute_wave(a, vL, vH, vR, L_end, c_start)
    a(f'{L_aux2}:')
    aux_wave(a, vL, vH, vR, L_end, WDP, a_start)
    a(f'''
    {L_end}:
    s_endpgm
    ''')
    return a.text()


def compute_wave(a, vL, vH, vR, L_end, c_start):
    al = Alloc(4, 168)
    T = al('T', 8, 4)
    ACC = al('acc', 64, 4)
    XF = al('xf', 32, 4)
    WF = al('wf', 16, 4)
    vXA = al('xa', 2)
    vWA = al('wa', 4)
    assert al.p == 130
    t0, t1, t2, t3, t4 = T, T + 1, T + 2, T + 3, T + 4
    a.c('=========== compute wave: phase 1 ===========')
    CR = 132
    XR = 132
    U = 160
    u0, u1, u2, u3, u4, u5 = range(U, U + 6)
    W4 = 144
    vN = 130
    srd(a, 4, 76, 256)

    a(f'''
    s_lshr_b32 s44, s30, 2
    s_lshl_b32 s46, s29, 1
    s_add_u32 s46, s46, s44
    s_and_b32 s44, s30, 3
    s_lshl_b32 s44, s44, 3
    s_add_u32 s45, s44, s24
    s_mul_i32 s37, s46, 40960
    s_add_u32 s37, s37, {OF_OFF}
    s_lshl_b32 s36, s45, 10
    s_add_u32 s36, s36, s37
    s_lshl_b32 s44, s45, 8
    s_add_u32 s37, s37, s44
    s_add_u32 s37, s37, 32768
    ''')
    PZ = 152
    poison = [f'v_mov_b32 {v(PZ + q)}, -1' for q in range(4)] + [
        f'v_lshlrev_b32 {v(u4)}, 4, {v(vL)}', f'v_lshlrev_b32 {v(u5)}, 2, {v(vL)}',
        f'buffer_store_dwordx4 {v(PZ, 4)}, {v(u4)}, s[20:23], s36 offen sc1',
        f'buffer_store_dword {v(PZ)}, {v(u5)}, s[20:23], s37 offen sc1']

    lines, load_cs, load_rows, fill_cs, fill_rows = stat_code(vL, vH, vR, CR, XR, 152, U, W4, 's56', 's56')
    stamp(a, 22)
    a(f'''
    v_and_b32 {v(t0)}, 15, {v(vL)}
    v_lshrrev_b32 {v(t1)}, 4, {v(vL)}
    v_lshrrev_b32 {v(t2)}, 1, {v(t0)}
    v_xor_b32 {v(t2)}, {v(t2)}, {v(t1)}
    v_lshlrev_b32 {v(t0)}, 7, {v(t0)}
    s_lshl_b32 s44, s25, 13
    v_add_u32 {v(t0)}, s44, {v(t0)}
    v_lshl_add_u32 {v(vXA)}, {v(t2)}, 4, {v(t0)}
    v_xor_b32 {v(t2)}, 4, {v(t2)}
    v_lshl_add_u32 {v(vXA + 1)}, {v(t2)}, 4, {v(t0)}
    v_bfe_u32 {v(t2)}, {v(vL)}, 2, 2
    v_lshl_add_u32 {v(t0)}, {v(t1)}, 3, {v(t2)}
    v_lshlrev_b32 {v(t0)}, 7, {v(t0)}
    v_and_b32 {v(t3)}, 3, {v(vL)}
    v_lshl_add_u32 {v(t0)}, {v(t3)}, 3, {v(t0)}
    v_and_b32 {v(t2)}, 2, {v(t2)}
    v_and_b32 {v(t1)}, 1, {v(t1)}
    v_xor_b32 {v(t1)}, {v(t1)}, {v(t2)}
    s_lshr_b32 s44, s26, 1
    s_and_b32 s57, s44, s48
    ''')
    for t in range(4):
        a(f'''
        s_lshl_b32 s44, s26, 1
        s_add_u32 s45, s44, {t >> 1}
        s_and_b32 s46, s45, 3
        s_lshr_b32 s45, s45, 2
        s_add_u32 s45, s45, {2 * (t & 1)}
        s_sub_u32 s44, s44, 3
        s_cmp_eq_u32 s57, 1
        s_cselect_b32 s45, s44, s45
        s_cselect_b32 s46, {t}, s46
        s_mul_i32 s45, s45, 24576
        s_add_u32 s45, s45, {LDS_W}
        v_xor_b32 {v(t2)}, s46, {v(t1)}
        v_lshl_add_u32 {v(t2)}, {v(t2)}, 5, {v(t0)}
        v_add_u32 {v(vWA + t)}, s45, {v(t2)}
        ''')

    def m16(d, A, B, first=False):
        return f'v_mfma_f32_16x16x32_bf16 {v(d, 4)}, {v(A, 4)}, {v(B, 4)}, ' + ('0' if first else v(d, 4))

    def xrd(g):
        c, sI = divmod(g, 2)
        return [f'ds_read_b128 {v(XF + 16 * (g & 1) + 4 * rt, 4)}, {v(vXA + sI)} offset:{LDS_X + (c % 3) * 16384 + 2048 * rt}' for rt in range(4)]

    def wrd(g, t):
        c, sI = divmod(g, 2)
        return [f'ds_read_b64_tr_b16 {v(WF + 4 * t + 2 * z, 2)}, {v(vWA + t)} offset:{(c % 3) * 8192 + 4096 * sI + 512 * z}' for z in range(2)]

    def tile(g, t):
        return [m16(ACC + 16 * t + 4 * rt, WF + 4 * t, XF + 16 * (g & 1) + 4 * rt, g == 0) for rt in range(4)]

    def chunk(c, fill=()):
        a.c(f'chunk {c}')
        if c:
            a('s_waitcnt lgkmcnt(0)')
        a('s_barrier')
        if not FEWST or c in (0, 1, 2, 9):
            stamp(a, 1 + c)
        if c == 9:
            lab = a.label('nqp')
            a(f's_cmp_eq_u32 s57, 0\ns_cbranch_scc1 {lab}\ns_setprio 2\n{lab}:')
        seq = []

        def rest(g, waits):
            pend = (wrd(g + 1, 0) + xrd(g + 1)) if g + 1 < 20 else []
            for t in range(1, 4):
                ms = tile(g, t)
                for q, m_ in enumerate(ms):
                    pre_ = [f's_waitcnt lgkmcnt({(0, 4, 10, 10)[t]})'] if (waits and q == 0) else []
                    ex = pend[2 * q:2 * q + 2] if t == 1 else []
                    if q == 3 and g + 1 < 20:
                        ex = ex + wrd(g + 1, t)
                    seq.append((pre_, m_, ex))
        if c > 0:
            rest(2 * c - 1, False)
        else:
            emit(a, wrd(0, 0) + xrd(0) + wrd(0, 1) + wrd(0, 2) + wrd(0, 3))
        g = 2 * c
        for q, m_ in enumerate(tile(g, 0)):
            seq.append((['s_waitcnt lgkmcnt(6)'] if q == 0 else [], m_, []))
        rest(g, True)
        for q, m_ in enumerate(tile(g + 1, 0)):
            seq.append((['s_waitcnt lgkmcnt(6)'] if q == 0 else [], m_, []))
        n, k_ = len(fill), len(seq)
        for q, (pre_, m_, ex) in enumerate(seq):
            emit(a, pre_)
            a(m_)
            emit(a, ex)
            emit(a, fill[(q * n) // k_:((q + 1) * n) // k_])

    if LATE1:
        c_start(1)
    if AST:
        a('s_waitcnt vmcnt(4)')
        chunk(0)
        a('s_waitcnt vmcnt(0)')
        for c in range(1, 6):
            chunk(c)
        chunk(6, [f'v_mov_b32 {v(vN)}, {NONCE_A}', f'ds_read_b32 {v(vN)}, {v(vN)}'])
        chunk(7)
        a(f'v_readfirstlane_b32 s98, {v(vN)}\ns_nop 0\ns_xor_b32 s99, s98, {NONCE_X}')
        f0, SPN_ = 7, 0
    else:
        SPN_ = SPN
        lab1, lab2 = a.label('rowv'), a.label('join')
        a(f's_cmp_eq_u32 s25, 1\ns_cbranch_scc1 {lab1}')
        for var, (ld, fl) in enumerate(((load_cs(), fill_cs()), (load_rows(), fill_rows()))):
            qp = [] if var == 0 else (lines(f'''
            s_mul_i32 s44, s27, {CH_BYTES}
            s_lshl_b32 s45, s28, 10
            s_add_u32 s44, s44, s45
            s_lshl_b32 s45, s26, 8
            s_add_u32 s44, s44, s45
            s_add_u32 s44, s44, {KV_OFF}
            s_cmp_lt_u32 s28, 14
            s_cselect_b32 s44, s44, 0x7f000000
            buffer_store_dword {v(PZ)}, {v(u5)}, s[20:23], s44 offen sc1
            ''') if KVP else []) + lines(f'''
            s_mul_i32 s44, s27, 163840
            s_mul_i32 s45, s28, 10240
            s_add_u32 s44, s44, s45
            s_mul_i32 s45, s26, 2560
            s_add_u32 s44, s44, s45
            s_add_u32 s44, s44, {QF_OFF}
            v_lshlrev_b32 {v(u5)}, 3, {v(vL)}
            buffer_store_dwordx4 {v(PZ, 4)}, {v(u4)}, s[20:23], s44 offen sc1
            buffer_store_dwordx4 {v(PZ, 4)}, {v(u4)}, s[20:23], s44 offen offset:1024 sc1
            buffer_store_dwordx2 {v(PZ, 2)}, {v(u5)}, s[20:23], s44 offen offset:2048 sc1
            ''')
            nl = [f'buffer_load_dword {v(vN)}, off, s[4:7], 0 sc1']
            if NOSL:
                ld = [['buffer_load_dword v165, off, s[4:7], 0']] * 5
                fl = fl[-6:]
            pz0 = poison + qp if PZ0 else []
            fl = (fl + nl) if PZ0 else (poison + qp + fl + nl)
            if SLC == 0:
                emit(a, ld)
            a(f's_waitcnt vmcnt({9 if SLC == 0 else 4})')
            chunk(0, (ld if SLC == -1 else []) + pz0)
            a(f's_waitcnt vmcnt({(5 if SLC <= 0 else 0) + ((2, 5)[var] if PZ0 else 0)})')
            n = len(fl)
            f0 = max(SLC, 0) + SLG
            for c in range(1, f0 + SPN):
                if c == SLC:
                    chunk(c, ld)
                elif c >= f0:
                    q = c - f0
                    chunk(c, ([f's_waitcnt vmcnt({(2, 5)[var] if PZ0 else 0})'] if q == 0 else []) + fl[(q * n) // SPN:((q + 1) * n) // SPN])
                else:
                    chunk(c)
            if var == 0:
                a(f's_branch {lab2}\n{lab1}:')
        a(f'{lab2}:')
        chunk(f0 + SPN)
        Lp, Lq = a.label('cnp'), a.label('cnd')
        a(f'''
        s_mov_b32 s93, {POLL_MAX}
        {Lp}:
        s_waitcnt vmcnt(0)
        v_readfirstlane_b32 s98, {v(vN)}
        s_cmp_lg_u32 s98, 0
        s_cbranch_scc1 {Lq}
        s_sub_u32 s93, s93, 1
        s_cbranch_scc1 {Lq}
        buffer_load_dword {v(vN)}, off, s[4:7], 0 sc1
        s_branch {Lp}
        {Lq}:
        s_xor_b32 s99, s98, {NONCE_X}
        ''')
        lab = a.label('noxid')
        a(f'''
        s_cmp_lg_u32 s24, 0
        s_cbranch_scc1 {lab}
        s_getreg_b32 s44, hwreg(HW_REG_XCC_ID, 0, 4)
        s_lshl_b32 s45, s29, 7
        s_lshl_b32 s46, s30, 3
        s_add_u32 s45, s45, s46
        s_add_u32 s45, s45, {F_X}
        v_mov_b32 {v(U)}, s98
        v_mov_b32 {v(U + 1)}, s44
        s_mov_b64 exec, 1
        buffer_store_dwordx2 {v(U, 2)}, off, s[20:23], s45 sc1
        s_mov_b64 exec, -1
        {lab}:
        ''')
        flag_store(a, 's56', U + 2)

    RC, CSF, vS16 = 132, 148, 131
    pre = lines(f'''
    v_and_b32 {v(t2)}, 15, {v(vL)}
    v_lshrrev_b32 {v(t3)}, 4, {v(vL)}
    s_lshl_b32 s44, s25, 10
    s_add_u32 s44, s44, {ROWC_A}
    v_lshl_add_u32 {v(t0)}, {v(t2)}, 4, s44
    s_lshl_b32 s44, s26, 8
    s_add_u32 s44, s44, {CS_A}
    v_lshl_add_u32 {v(t1)}, {v(t2)}, 2, s44
    v_lshl_add_u32 {v(t1)}, {v(t3)}, 12, {v(t1)}
    v_lshlrev_b32 {v(vS16)}, 4, {v(t2)}
    v_lshl_add_u32 {v(vS16)}, {v(t3)}, 9, {v(vS16)}
    ''')
    pre += [f'ds_read_b128 {v(RC + 4 * rt, 4)}, {v(t0)} offset:{256 * rt}' for rt in range(4)]
    for t in range(4):
        for z in range(2):
            pre.append(f'ds_read2st64_b32 {v(CSF + 4 * t + 2 * z, 2)}, {v(t1)} offset0:{8 * z} offset1:{8 * z + 4}')
        if t < 3:
            pre.append(f'v_add_u32 {v(t1)}, 64, {v(t1)}')
    for c in range(f0 + SPN_ + 1, 10):
        chunk(c, pre if c == 9 else ())
    a(f'''
    s_lshl_b32 s44, s24, 2
    s_add_u32 s44, s44, {CD_A}
    v_mov_b32 {v(t0)}, s44
    v_mov_b32 {v(t1)}, s98
    s_waitcnt lgkmcnt(0)
    ds_write_b32 {v(t0)}, {v(t1)}
    ''')
    NEG = XF
    HH = 148
    ms = tile(19, 1) + tile(19, 2) + tile(19, 3)
    mv = [f'v_mov_b32 {v(NEG + 4 * rt + r)}, {v(RC + 4 * rt)}' for rt in range(4) for r in range(4)]
    for q, m_ in enumerate(ms):
        a(m_)
        emit(a, mv[(q * 16) // 12:((q + 1) * 16) // 12])
    stamp(a, 12)
    a(f'''
    s_mov_b32 s46, {f2u(C0)}
    s_mov_b32 s47, {f2u(C1)}
    ''')
    for rt in range(4):
        for t in range(4):
            a(m16(ACC + 16 * t + 4 * rt, CSF + 4 * t, NEG + 4 * rt))
    L_q = a.label('qepi')
    L_ed = a.label('epidone')
    a(f'''
    s_lshl_b32 s44, s27, 2
    s_lshl_b32 s45, s25, 1
    s_add_u32 s60, s44, s45
    s_cmp_eq_u32 s57, 1
    s_cbranch_scc1 {L_q}
    s_lshr_b32 s44, s49, 4
    s_lshl_b32 s45, s26, 1
    s_add_u32 s44, s44, s45
    s_mul_i32 s42, s60, 108
    s_add_u32 s42, s42, s44
    s_lshl_b32 s42, s42, 10
    s_add_u32 s43, s42, {108 * 1024}
    ''')
    E1, E2, KC = XF + 16, WF, T
    for rt in range(4):
        TT = E1 + 8 * (rt % 2)
        PP = E2 + 8 * (rt % 2)
        G_ = lambda i: ACC + 32 * (i >> 2) + 4 * rt + (i & 3)
        rho = RC + 4 * rt + 1
        a(f'''
        v_mul_f32 {v(KC)}, s46, {v(rho)}
        v_mul_f32 {v(KC + 1)}, s46, {v(rho)}
        v_mul_f32 {v(KC + 4)}, {v(rho)}, {v(rho)}
        v_mov_b32 {v(RC + 4 * rt + 3)}, {v(RC + 4 * rt + 2)}
        v_mul_f32 {v(KC + 4)}, {v(KC + 4)}, {v(rho)}
        v_mul_f32 {v(KC + 2)}, s47, {v(KC + 4)}
        v_mul_f32 {v(KC + 3)}, s47, {v(KC + 4)}
        ''')
        rc = v(RC + 4 * rt + 2, 2)
        for i in range(0, 8, 2):
            a(f'v_pk_mul_f32 {v(TT + i, 2)}, {v(G_(i), 2)}, {v(G_(i), 2)}')
        for i in range(0, 8, 2):
            a(f'v_pk_fma_f32 {v(TT + i, 2)}, {v(TT + i, 2)}, {v(KC + 2, 2)}, {v(KC, 2)}')
        for i in range(0, 8, 2):
            a(f'v_pk_mul_f32 {v(TT + i, 2)}, {v(TT + i, 2)}, {v(G_(i), 2)}')
        for i in range(8):
            a(f'v_exp_f32 {v(TT + i)}, {v(TT + i)}')
        for i in range(0, 8, 2):
            a(f'v_pk_mul_f32 {v(PP + i, 2)}, {v(G_(i), 2)}, {v(G_(i) + 16, 2)}')
        for i in range(0, 8, 2):
            a(f'v_pk_fma_f32 {v(TT + i, 2)}, {v(TT + i, 2)}, {rc}, {rc}')
        for i in range(8):
            a(f'v_rcp_f32 {v(TT + i)}, {v(TT + i)}')
        a('s_nop 0')
        for i in range(0, 8, 2):
            a(f'v_pk_mul_f32 {v(PP + i, 2)}, {v(PP + i, 2)}, {v(TT + i, 2)}')
        for i in range(4):
            a(f'v_cvt_pk_bf16_f32 {v(HH + 4 * rt + i)}, {v(PP + 2 * i)}, {v(PP + 2 * i + 1)}')
    a(f's_branch {L_ed}')
    a(f'{L_q}:')
    a(f'''
    s_sub_u32 s44, s26, 2
    s_lshl_b32 s44, s44, 6
    s_add_u32 s44, s44, s50
    s_lshl_b32 s44, s44, 6
    s_add_u32 s44, s44, {QF_OFF}
    s_mov_b32 s45, {f2u(QSC)}
    s_mul_i32 s46, s60, 40960
    s_add_u32 s46, s46, s44
    s_add_u32 s47, s46, 40960
    ''')
    for rt in range(4):
        a(f'v_mul_f32 {v(T + rt)}, s45, {v(RC + 4 * rt + 1)}')
    for rt in range(4):
        for pz in range(2):
            O_ = E1 + 4 * ((2 * rt + pz) % 8)
            regs = [ACC + 16 * (2 * pz + (i >> 2)) + 4 * rt + (i & 3) for i in range(8)]
            for r_ in regs:
                a(f'v_mul_f32 {v(r_)}, {v(r_)}, {v(T + rt)}')
            for i in range(4):
                a(f'v_cvt_pk_bf16_f32 {v(O_ + i)}, {v(regs[2 * i])}, {v(regs[2 * i + 1])}')
            a(f'buffer_store_dwordx4 {v(O_, 4)}, {v(vS16)}, s[20:23], s{46 + (rt >> 1)} offen offset:{2048 * pz + 256 * (rt & 1)} sc1')
    a(f'{L_ed}:')
    stamp(a, 13)

    a.c('=========== compute wave: attention ===========')
    al3 = Alloc(4, 168)
    T = al3('T', 16, 4)
    S = al3('S', 32, 4)
    O = al3('O', 16, 4)
    V1 = al3('V1', 4, 4)
    V2 = al3('V2', 4, 4)
    Q1 = al3('Q1', 4, 4)
    K1 = al3('K1', 8, 4)
    K2 = al3('K2', 8, 4)
    P = al3('P', 16, 4)
    Q2 = al3('Q2', 2, 2)
    vK = al3('vK')
    vK2 = al3('vK2')
    a(f'''
    s_lshl_b32 s44, s27, 1
    s_add_u32 s44, s44, s25
    s_lshl_b32 s44, s44, 13
    s_lshl_b32 s45, s28, 2
    s_add_u32 s45, s45, s26
    s_lshl_b32 s45, s45, 7
    s_add_u32 s44, s44, s45
    s_add_u32 s41, s44, {F_QH}
    s_nop 1
    ''')
    for i in range(16):
        a(f'v_mov_b32 {v(O + i)}, 0')
    for i in range(4):
        a(f'v_mov_b32 {v(V1 + i)}, 0')
        a(f'v_mov_b32 {v(V2 + i)}, 0')
    a(f'''
    s_mov_b32 s45, {KVR}
    v_lshl_add_u32 {v(vK)}, {v(vL)}, 4, s45
    v_lshl_add_u32 {v(vK2)}, {v(vL)}, 3, s45
    s_mul_i32 s45, s24, 5
    v_lshlrev_b32 {v(T + 4)}, 4, {v(vR)}
    s_lshr_b32 s44, s30, 2
    s_lshl_b32 s46, s29, 1
    s_add_u32 s44, s44, s46
    s_mul_i32 s44, s44, 40960
    s_and_b32 s46, s30, 3
    s_mul_i32 s46, s46, 10240
    s_add_u32 s44, s44, s46
    s_add_u32 s40, s44, {QF_OFF}
    ''')
    for z, (dq, useh) in enumerate(((0, 1), (2, 1), (4, 0))):
        a(f's_add_u32 s46, s45, {dq}')
        a(f'v_add_u32 {v(T + 5)}, s46, {v(vH)}' if useh else f'v_mov_b32 {v(T + 5)}, s46')
        a(f'''
        v_lshrrev_b32 {v(T + 6)}, 3, {v(T + 5)}
        v_lshl_add_u32 {v(T + 6)}, {v(T + 6)}, 11, {v(T + 4)}
        v_and_b32 {v(T + 7)}, 3, {v(T + 5)}
        v_lshl_add_u32 {v(T + 6)}, {v(T + 7)}, 9, {v(T + 6)}
        v_bfe_u32 {v(T + 5)}, {v(T + 5)}, 2, 1
        v_lshl_add_u32 {v(T + 13 + z)}, {v(T + 5)}, 3, {v(T + 6)}
        ''')
    a('s_setprio 0')
    for i in range(8):
        a(f'v_mov_b32 {v(P + 8 + i)}, 0')
    Lp, Lq = a.label('qp'), a.label('qpd')
    a(f'''
    s_mov_b32 s93, {OPOLL_MAX}
    {Lp}:
    buffer_load_dwordx2 {v(Q1, 2)}, {v(T + 13)}, s[20:23], s40 offen sc1
    buffer_load_dwordx2 {v(Q1 + 2, 2)}, {v(T + 14)}, s[20:23], s40 offen sc1
    buffer_load_dwordx2 {v(Q2, 2)}, {v(T + 15)}, s[20:23], s40 offen sc1
    s_waitcnt vmcnt(0)
    v_max3_u32 {v(T)}, {v(Q1)}, {v(Q1 + 1)}, {v(Q1 + 2)}
    v_max3_u32 {v(T + 1)}, {v(Q1 + 3)}, {v(Q2)}, {v(Q2 + 1)}
    v_max_u32 {v(T)}, {v(T)}, {v(T + 1)}
    v_cmp_eq_u32 vcc, -1, {v(T)}
    s_nop 1
    s_cmp_eq_u64 vcc, 0
    s_cbranch_scc1 {Lq}
    s_sub_u32 s93, s93, 1
    s_cbranch_scc1 {Lq}
    s_sleep {QSLEEP}
    s_branch {Lp}
    {Lq}:
    v_mov_b32 {v(T + 2)}, 0
    v_cndmask_b32 {v(Q2)}, {v(Q2)}, {v(T + 2)}, {HM}
    v_cndmask_b32 {v(Q2 + 1)}, {v(Q2 + 1)}, {v(T + 2)}, {HM}
    ''')
    stamp(a, 14)
    if NOA0:
        L1, L2 = a.label('klw'), a.label('kld')
        a(f'''
        v_and_b32 {v(T)}, 3, {v(vL)}
        v_lshlrev_b32 {v(T)}, 2, {v(T)}
        v_add_u32 {v(T)}, {KL_A}, {v(T)}
        s_mov_b32 s93, {POLL_MAX * 8}
        {L1}:
        ds_read_b32 {v(T + 1)}, {v(T)}
        s_waitcnt lgkmcnt(0)
        v_cmp_eq_u32 vcc, s98, {v(T + 1)}
        s_nop 1
        s_cmp_eq_u64 vcc, -1
        s_cbranch_scc1 {L2}
        s_sleep 1
        s_sub_u32 s93, s93, 1
        s_cbranch_scc0 {L1}
        {L2}:
        ''')
    else:
        a('s_barrier')
    stamp(a, 15)
    o0, o1, o2 = tile_offs(0), tile_offs(1), tile_offs(2)
    a(f'''
    ds_read_b128 {v(K1, 4)}, {v(vK)} offset:{o0[0]}
    ds_read_b128 {v(K1 + 4, 4)}, {v(vK)} offset:{o1[0]}
    ds_read2st64_b64 {v(K2, 4)}, {v(vK2)} offset0:{o0[1] // 512} offset1:{o0[1] // 512 + 1}
    s_waitcnt lgkmcnt(0)
    ''')

    def set_m(mreg, offset):
        t0, t1, t2, t3 = T + 8, T + 9, T + 10, T + 11
        a(f'v_sub_f32 {v(t0)}, {f2u(-offset) if offset else 0}, {v(mreg)}')
        a(f'''
        v_cvt_pk_bf16_f32 {v(t1)}, {v(t0)}, {v(t0)}
        v_and_b32 {v(t2)}, 0xffff0000, {v(t1)}
        v_sub_f32 {v(t2)}, {v(t0)}, {v(t2)}
        v_cvt_pk_bf16_f32 {v(t1)}, {v(t0)}, {v(t2)}
        v_and_b32 {v(t3)}, 0xffff0000, {v(t1)}
        v_sub_f32 {v(t2)}, {v(t2)}, {v(t3)}
        v_mov_b32 {v(t3)}, 0
        v_cvt_pk_bf16_f32 {v(t2)}, {v(t2)}, {v(t3)}
        v_cndmask_b32 {v(Q2)}, {v(Q2)}, {v(t1)}, {HM}
        v_cndmask_b32 {v(Q2 + 1)}, {v(Q2 + 1)}, {v(t2)}, {HM}
        ''')

    def cross_half_max(reg):
        t = T + 12
        a(f'''
        v_mov_b32 {v(t)}, {v(reg)}
        s_nop 1
        v_permlane32_swap_b32 {v(reg)}, {v(t)}
        s_nop 1
        v_max_f32 {v(reg)}, {v(reg)}, {v(t)}
        ''')

    for t in range(2):
        a(mfma16(S + 16 * t, K1 + 4 * t, Q1))
    if HST < 0:
        lab = a.label('nohst')
        a(f'''
        s_cmp_eq_u32 s57, 1
        s_cbranch_scc1 {lab}
        ''')
        for k in range(4):
            a(f'buffer_store_dwordx4 {v(HH + 4 * k, 4)}, {v(vS16)}, s[20:23], s{42 + (k >> 1)} offen offset:{256 * (k & 1)} sc1')
        a(f'{lab}:')
    a('s_nop 9')
    for t in range(2):
        a(mfma8(S + 16 * t, K2 + 2 * t, Q2, S + 16 * t))
    a('s_nop 11')
    m = T + 4
    for z in range(2):
        a(f'v_max3_f32 {v(m + z)}, {v(S + 16 * z)}, {v(S + 16 * z + 1)}, {v(S + 16 * z + 2)}')
    for i in range(3, 15, 2):
        for z in range(2):
            a(f'v_max3_f32 {v(m + z)}, {v(m + z)}, {v(S + 16 * z + i)}, {v(S + 16 * z + i + 1)}')
    a(f'v_max3_f32 {v(m)}, {v(m)}, {v(S + 15)}, {v(S + 31)}')
    a(f'v_max_f32 {v(m)}, {v(m)}, {v(m + 1)}')
    cross_half_max(m)
    set_m(m, M_OFFSET)
    a('s_nop 1')
    a(mfma16(S, K1, Q1))
    a(f'''
    ds_read_b128 {v(K1, 4)}, {v(vK)} offset:{o2[0]}
    s_mov_b32 s34, 4
    s_nop 7
    ''')
    a(mfma8(S, K2, Q2, S))
    a('s_nop 9')
    stamp(a, 16)

    def toff(tt):
        tt &= 15
        o = tile_offs(tt & 3)
        return [x + (tt >> 2) * CH_BYTES for x in o]

    def k2read(reg, tt):
        o = toff(tt)[1]
        assert o % 512 == 0
        return f'ds_read2st64_b64 {v(reg, 4)}, {v(vK2)} offset0:{o // 512} offset1:{o // 512 + 1}'

    L_hf, L_hb = a.label('hflag'), a.label('hback')
    L_hs, L_hsb = a.label('hst'), a.label('hstb')
    a('s_cmp_eq_u32 s57, 1\ns_cselect_b32 s33, 99, 4')

    def slot(t):
        Sx, Sn = S + 16 * (t & 1), S + 16 * ((t + 1) & 1)
        Px, Pp = P + 8 * (t & 1), P + 8 * ((t + 1) & 1)
        kt = t + 1
        kb = kt & 1
        k2 = K2 + 4 * ((kt >> 1) & 1) + 2 * (kt & 1)
        m_ = [mfma16(Sn, K1 + 4 * kb, Q1), mfma16(O, V1, Pp, O), mfma8(Sn, k2, Q2, Sn), mfma16(O, V2, Pp + 4, O)]
        after = [[], [], [], []]
        if t & 3 == 1:
            after[0] = ['s_barrier']
        after[0] += [f'ds_read_b128 {v(K1 + 4 * kb, 4)}, {v(vK)} offset:{toff(t + 3)[0]}', 's_waitcnt lgkmcnt(2)']
        after[1] = [f'ds_read_b128 {v(V1, 4)}, {v(vK)} offset:{toff(t)[2]}']
        if t & 1:
            after[1] += [k2read(K2 + 4 * (((t + 3) >> 1) & 1), t + 3)]
        after[2] += [f's_waitcnt lgkmcnt({3 if t & 1 else 2})']
        after[3] = [f'ds_read_b128 {v(V2, 4)}, {v(vK)} offset:{toff(t)[3]}']
        if t == 15:
            after[3] += ['s_sub_u32 s34, s34, 1']
        if t == HST:
            after[3] += ['s_cmp_eq_u32 s34, s33', f's_cbranch_scc1 {L_hs}', f'{L_hsb}:']
        if t == HFLAG_T:
            after[3] += ['s_cmp_eq_u32 s34, 4', f's_cbranch_scc1 {L_hf}', f'{L_hb}:']
        val = []
        for i in range(8):
            val.append(f'v_exp_f32 {v(Sx + 2 * i)}, {v(Sx + 2 * i)}')
            val.append(f'v_exp_f32 {v(Sx + 2 * i + 1)}, {v(Sx + 2 * i + 1)}')
            if i > 0:
                val.append(f'v_cvt_pk_bf16_f32 {v(Px + i - 1)}, {v(Sx + 2 * i - 2)}, {v(Sx + 2 * i - 1)}')
        val.append(f'v_cvt_pk_bf16_f32 {v(Px + 7)}, {v(Sx + 14)}, {v(Sx + 15)}')
        groups = [val[0:5], val[5:11], val[11:17], val[17:24]]
        for g in range(4):
            a(m_[g])
            emit(a, after[g])
            emit(a, groups[g])

    a(k2read(K2 + 4, 2))
    L_loop = a.label('att')
    a('.p2align 6')
    a(f'{L_loop}:')
    for t in range(16):
        slot(t)
    a(f'''
    s_cmp_lg_u32 s34, 0
    s_cbranch_scc1 {L_loop}
    s_waitcnt lgkmcnt(0)
    ''')
    a(mfma16(O, V1, P + 8, O))
    a(mfma16(O, V2, P + 12, O))
    a(f'''
    v_lshlrev_b32 {v(T + 2)}, 4, {v(vL)}
    v_lshlrev_b32 {v(T + 3)}, 3, {v(vL)}
    v_mov_b32 {v(T + 9)}, 0x7f000000
    v_cndmask_b32 {v(T + 3)}, {v(T + 3)}, {v(T + 9)}, {HM}
    v_lshlrev_b32 {v(T + 4)}, 3, {v(vR)}
    v_lshl_add_u32 {v(T + 4)}, {v(vH)}, 9, {v(T + 4)}
    v_mov_b32 {v(T + 5)}, {SX_A}
    ds_read_b32 {v(T + 5)}, {v(T + 5)}
    s_nop 4
    ''')
    stamp(a, 17)
    L_fb = a.label('fb')
    L_out = a.label('aout')
    a(f'''
    s_mov_b32 s44, {f2u(2.0 ** 125)}
    s_mov_b32 s45, {f2u(2.0 ** -103)}
    v_add_f32 {v(T)}, |{v(O)}|, |{v(O + 1)}|
    v_add_f32 {v(T + 1)}, |{v(O + 2)}|, |{v(O + 3)}|
    ''')
    for i in range(4, 12, 2):
        a(f'v_add_f32 {v(T)}, {v(T)}, |{v(O + i)}|')
        a(f'v_add_f32 {v(T + 1)}, {v(T + 1)}, |{v(O + i + 1)}|')
    a(f'''
    v_add_f32 {v(T)}, {v(T)}, {v(T + 1)}
    v_add_f32 {v(T + 1)}, {v(T)}, {v(O + 12)}
    s_waitcnt lgkmcnt(0)
    v_readfirstlane_b32 s38, {v(T + 5)}
    v_cmp_le_f32 s[46:47], s45, {v(T)}
    v_cmp_gt_f32 s[48:49], s44, {v(T + 1)}
    s_nop 1
    s_and_b64 s[46:47], s[46:47], s[48:49]
    s_cmp_eq_u64 s[46:47], -1
    s_cbranch_scc0 {L_fb}
    {L_out}:
    v_rcp_f32 {v(T)}, {v(O + 12)}
    s_nop 0
    ''')
    for i in range(12):
        a(f'v_mul_f32 {v(O + i)}, {v(O + i)}, {v(T)}')
    for i in range(6):
        a(f'v_cvt_pk_bf16_f32 {v(P + i)}, {v(O + 2 * i)}, {v(O + 2 * i + 1)}')
    L_pl, L_st = a.label('oplain'), a.label('ostored')
    a(f'''
    s_cmp_eq_u32 s38, s98
    s_cbranch_scc1 {L_pl}
    buffer_store_dwordx4 {v(P, 4)}, {v(T + 2)}, s[20:23], s36 offen sc1
    buffer_store_dwordx2 {v(P + 4, 2)}, {v(T + 3)}, s[20:23], s37 offen sc1
    s_branch {L_st}
    {L_pl}:
    buffer_store_dwordx4 {v(P, 4)}, {v(T + 2)}, s[20:23], s36 offen
    buffer_store_dwordx2 {v(P + 4, 2)}, {v(T + 3)}, s[20:23], s37 offen
    {L_st}:
    ''')
    stamp(a, 18)
    g2_ids(a)
    OFR = 120
    a(f'''
    s_cmp_eq_u32 s25, 1
    s_cselect_b32 s44, s60, s59
    s_mul_i32 s44, s44, 40960
    s_add_u32 s44, s44, {OF_OFF}
    s_lshl_b32 s45, s26, 13
    s_add_u32 s38, s44, s45
    s_add_u32 s38, s38, 3072
    s_add_u32 s39, s38, 4096
    s_lshl_b32 s45, s26, 11
    s_add_u32 s40, s44, s45
    s_add_u32 s40, s40, 32768
    s_mul_i32 s44, s26, 14336
    s_lshl_b32 s45, s25, 10
    s_add_u32 s44, s44, s45
    s_add_u32 s44, s44, {OL_A}
    v_add_u32 {v(T + 5)}, s44, {v(T + 2)}
    s_barrier
    ''')
    Lp, Lq = a.label('cop'), a.label('copd')
    a(f's_mov_b32 s93, {OPOLL_MAX}\n{Lp}:')
    for q in range(5):
        a(f'buffer_load_dwordx4 {v(OFR + 4 * q, 4)}, {v(T + 2)}, s[20:23], {"s38" if q < 4 else "s39"} offen offset:{1024 * (q & 3)} sc1')
    for q in range(4):
        a(f'buffer_load_dwordx2 {v(OFR + 20 + 2 * q, 2)}, {v(T + 4)}, s[20:23], s40 offen offset:{1024 * (q >> 1) + 256 * (q & 1)} sc1')
    a('s_waitcnt vmcnt(0)')
    a(f'v_max3_u32 {v(T)}, {v(OFR)}, {v(OFR + 1)}, {v(OFR + 2)}')
    for i in range(3, 27, 2):
        a(f'v_max3_u32 {v(T)}, {v(T)}, {v(OFR + i)}, {v(OFR + i + 1)}')
    a(f'''
    v_max_u32 {v(T)}, {v(T)}, {v(OFR + 27)}
    v_cmp_eq_u32 vcc, -1, {v(T)}
    s_nop 1
    s_cmp_eq_u64 vcc, 0
    s_cbranch_scc1 {Lq}
    s_sub_u32 s93, s93, 1
    s_cbranch_scc1 {Lq}
    s_sleep {OSLEEP}
    s_branch {Lp}
    {Lq}:
    ''')
    for q in range(7):
        a(f'ds_write_b128 {v(T + 5)}, {v(OFR + 4 * q, 4)} offset:{2048 * q}')
    stamp(a, 21)
    if FFL:
        a(f'''
        s_lshl_b32 s44, s24, 2
        s_add_u32 s44, s44, {OW_A}
        v_mov_b32 {v(T)}, s44
        v_mov_b32 {v(T + 1)}, s98
        s_waitcnt lgkmcnt(0)
        ds_write_b32 {v(T)}, {v(T + 1)}
        ''')
    g2_out(a, S, vL, 's24', 0)
    if not FFL:
        a('s_waitcnt lgkmcnt(0)')
        a('s_barrier')
    a('s_barrier')
    stamp(a, 19)
    g2_out(a, S, vL, 's24', 1)
    if asmlib.STAMPS:
        a('s_waitcnt vmcnt(0)')
    stamp(a, 20)
    diag_end(a)
    a(f's_branch {L_end}')

    if HST >= 0:
        a(f'{L_hs}:')
        for k in range(4):
            a(f'buffer_store_dwordx4 {v(HH + 4 * k, 4)}, {v(vS16)}, s[20:23], s{42 + (k >> 1)} offen offset:{256 * (k & 1)} sc1')
        a(f's_branch {L_hsb}')
    a(f'{L_hf}:')
    a('s_waitcnt vmcnt(0)')
    flag_store(a, 's41', T + 2)
    a(f's_branch {L_hb}')
    a(f'{L_fb}:')
    L1 = a.label('fb1')
    L2 = a.label('fb2')
    a(f'''
    v_lshlrev_b32 {v(T + 13)}, 4, {v(vL)}
    v_lshlrev_b32 {v(T + 7)}, 3, {v(vL)}
    v_mov_b32 {v(T + 14)}, 0
    v_mov_b32 {v(T + 15)}, 0xff800000
    v_cndmask_b32 {v(Q2)}, {v(Q2)}, {v(T + 14)}, {HM}
    v_cndmask_b32 {v(Q2 + 1)}, {v(Q2 + 1)}, {v(T + 14)}, {HM}
    s_mov_b32 s77, {KV_OFF}
    s_mov_b32 s34, 32
    {L1}:
    buffer_load_dwordx4 {v(K1, 4)}, {v(T + 13)}, s[20:23], s77 offen sc1
    buffer_load_dwordx4 {v(K1 + 4, 4)}, {v(T + 13)}, s[20:23], s77 offen offset:1024 sc1
    buffer_load_dwordx2 {v(K2, 2)}, {v(T + 7)}, s[20:23], s77 offen offset:2048 sc1
    buffer_load_dwordx2 {v(K2 + 2, 2)}, {v(T + 7)}, s[20:23], s77 offen offset:2560 sc1
    s_waitcnt vmcnt(0)
    ''')
    for t in range(2):
        a(mfma16(S + 16 * t, K1 + 4 * t, Q1))
    a('s_nop 9')
    for t in range(2):
        a(mfma8(S + 16 * t, K2 + 2 * t, Q2, S + 16 * t))
    a('s_nop 15')
    for i in range(0, 32, 2):
        a(f'v_max3_f32 {v(T + 15)}, {v(T + 15)}, {v(S + i)}, {v(S + i + 1)}')
    a(f'''
    s_add_u32 s77, s77, 7168
    s_sub_u32 s34, s34, 1
    s_cmp_lg_u32 s34, 0
    s_cbranch_scc1 {L1}
    ''')
    cross_half_max(T + 15)
    set_m(T + 15, 0.0)
    for i in range(16):
        a(f'v_mov_b32 {v(O + i)}, 0')
    a(f'''
    s_mov_b32 s77, {KV_OFF}
    s_mov_b32 s34, 64
    {L2}:
    s_and_b32 s78, s34, 1
    s_lshl_b32 s79, s78, 10
    s_add_u32 s79, s79, s77
    s_lshl_b32 s80, s78, 9
    s_add_u32 s80, s80, s77
    s_lshl_b32 s81, s78, 11
    s_add_u32 s81, s81, s77
    s_add_u32 s81, s81, 3072
    buffer_load_dwordx4 {v(K1, 4)}, {v(T + 13)}, s[20:23], s79 offen sc1
    buffer_load_dwordx2 {v(K2, 2)}, {v(T + 7)}, s[20:23], s80 offen offset:2048 sc1
    buffer_load_dwordx4 {v(V1, 4)}, {v(T + 13)}, s[20:23], s81 offen sc1
    buffer_load_dwordx4 {v(V2, 4)}, {v(T + 13)}, s[20:23], s81 offen offset:1024 sc1
    s_waitcnt vmcnt(0)
    {mfma16(S, K1, Q1)}
    s_nop 10
    {mfma8(S, K2, Q2, S)}
    s_nop 15
    ''')
    for i in range(16):
        a(f'v_exp_f32 {v(S + i)}, {v(S + i)}')
    a('s_nop 0')
    for i in range(8):
        a(f'v_cvt_pk_bf16_f32 {v(P + i)}, {v(S + 2 * i)}, {v(S + 2 * i + 1)}')
    a(f'''
    s_nop 1
    {mfma16(O, V1, P, O)}
    {mfma16(O, V2, P + 4, O)}
    s_mul_i32 s78, s78, 7168
    s_add_u32 s77, s77, s78
    s_sub_u32 s34, s34, 1
    s_cmp_lg_u32 s34, 0
    s_cbranch_scc1 {L2}
    s_nop 15
    s_branch {L_out}
    ''')


def g2_ids(a):
    a('''
    s_lshr_b32 s57, s30, 1
    s_and_b32 s58, s30, 1
    s_lshl_b32 s44, s29, 1
    s_add_u32 s59, s44, s58
    s_xor_b32 s60, s59, 1
    s_mul_i32 s44, s57, 320
    s_lshl_b32 s45, s58, 7
    s_add_u32 s61, s44, s45
    ''')


def g2_out(a, T, vL, wsg, part):
    L_skip = a.label('g2o')
    a(f'''
    s_cmp_ge_u32 {wsg}, 10
    s_cbranch_scc1 {L_skip}
    ''')
    if part == 0:
        a(f'''
        s_lshr_b32 s45, {wsg}, 1
        s_and_b32 s46, {wsg}, 1
        s_lshl_b32 s46, s46, 4
        v_lshrrev_b32 {v(T)}, 2, {v(vL)}
        v_add_u32 {v(T)}, s46, {v(T)}
        v_and_b32 {v(T + 1)}, 3, {v(vL)}
        s_and_b32 s47, s45, 1
        s_cmp_eq_u32 s47, 1
        s_cselect_b32 s47, s60, s59
        s_mul_i32 s47, s47, {32 * 1280}
        s_lshr_b32 s48, s45, 1
        s_add_u32 s49, s48, s58
        s_lshl_b32 s49, s49, 6
        s_lshl_b32 s50, s58, 7
        s_sub_u32 s50, 128, s50
        s_cmp_eq_u32 s48, 2
        s_cselect_b32 s49, s50, s49
        s_add_u32 s47, s47, s49
        s_add_u32 s31, s47, s61
        v_mul_u32_u24 {v(T + 6)}, 1280, {v(T)}
        v_lshl_add_u32 {v(T + 6)}, {v(T + 1)}, 4, {v(T + 6)}
        buffer_load_dwordx4 {v(T + 2, 4)}, {v(T + 6)}, s[8:11], s31 offen
        v_lshlrev_b32 {v(T + 1)}, 1, {v(T + 1)}
        v_and_b32 {v(T + 7)}, 7, {v(T)}
        v_xor_b32 {v(T + 1)}, {v(T + 1)}, {v(T + 7)}
        v_lshlrev_b32 {v(T)}, 7, {v(T)}
        v_lshl_add_u32 {v(T)}, {v(T + 1)}, 4, {v(T)}
        s_lshl_b32 s47, s45, 12
        v_add_u32 {v(T)}, s47, {v(T)}
        v_xor_b32 {v(T + 1)}, 16, {v(T)}
        ''')
    else:
        for w in range(4):
            if w == 2:
                a(f'v_add_u32 {v(T)}, {WO_HI}, {v(T)}\nv_add_u32 {v(T + 1)}, {WO_HI}, {v(T + 1)}')
            a(f'ds_read_b128 {v(T + 8 + 8 * w, 4)}, {v(T)} offset:{21504 * (w & 1)}')
            a(f'ds_read_b128 {v(T + 12 + 8 * w, 4)}, {v(T + 1)} offset:{21504 * (w & 1)}')
        a('s_waitcnt vmcnt(0)')
        for i in range(4):
            a(f'''
            v_lshlrev_b32 {v(T + 40 + 2 * i)}, 16, {v(T + 2 + i)}
            v_and_b32 {v(T + 41 + 2 * i)}, 0xffff0000, {v(T + 2 + i)}
            ''')
        a('s_waitcnt lgkmcnt(4)')
        for i in range(0, 8, 2):
            a(f'v_pk_add_f32 {v(T + 8 + i, 2)}, {v(T + 8 + i, 2)}, {v(T + 16 + i, 2)}')
        for i in range(0, 8, 2):
            a(f'v_pk_add_f32 {v(T + 8 + i, 2)}, {v(T + 8 + i, 2)}, {v(T + 40 + i, 2)}')
        a('s_waitcnt lgkmcnt(0)')
        for i in range(0, 8, 2):
            a(f'v_pk_add_f32 {v(T + 24 + i, 2)}, {v(T + 24 + i, 2)}, {v(T + 32 + i, 2)}')
        for i in range(0, 8, 2):
            a(f'v_pk_add_f32 {v(T + 8 + i, 2)}, {v(T + 8 + i, 2)}, {v(T + 24 + i, 2)}')
        for i in range(4):
            a(f'v_cvt_pk_bf16_f32 {v(T + 16 + i)}, {v(T + 8 + 2 * i)}, {v(T + 9 + 2 * i)}')
        a(f'buffer_store_dwordx4 {v(T + 16, 4)}, {v(T + 6)}, s[64:67], s31 offen{OUTSC}')
    a(f'{L_skip}:')


def aux_wave(a, vL, vH, vR, L_end, WDP, a_start):
    al = Alloc(4, 168)
    T = al('T', 16, 4)
    vXD = al('xd', 2)
    vWD = al('wd', 2)
    vKD = al('kd')
    vKX = al('kx')
    vKW = al('kw')
    XR = al('xr', 10, 2)
    CR = al('cr', 20, 2)
    PF = al('pf', 2)
    AKV = al('akv', 16, 4)
    KXF = al('kxf', 4, 4)
    KWF = al('kwf', 4, 4)
    FX = al('fx', 16, 4)
    RD = al('rd', 48, 4)
    JA = al('ja', 2, 2)
    JS = al('js')
    t0, t1, t2, t3, t4, t5 = T, T + 1, T + 2, T + 3, T + 4, T + 5
    vm = VM()
    a.c('=========== aux wave: phase 1 ===========')
    assert (vXD, vWD, vKD) == (20, 22, 24)

    def dma_group(c, kvonly=False, fill=()):
        st = c % 3
        lab = a.label('nokv')
        a(f'''
        {f's_add_u32 s35, s100, {c}' if ROT else f's_and_b32 s35, s100, {7 if c < 8 else 1}'}
        {'s_sub_u32 s34, s35, 10' if ROT else f's_xor_b32 s35, s35, {c}'}
        {'s_cselect_b32 s35, s35, s34' if ROT else ''}
        s_mul_i32 s33, s32, s35
        s_mul_i32 s34, s35, 2560
        s_lshl_b32 s35, s35, 7
        s_cmp_eq_u32 s40, 0
        s_cbranch_scc1 {lab}
        s_add_u32 m0, s38, {st * 3072}
        s_nop 0
        buffer_load_dwordx4 {v(vKD)}, s[16:19], s34 offen lds
        {lab}:
        ''')
        vm.add(f'c{c}', 1, optional=True)
        if kvonly or (NODMA and c > 2):
            vm.add(f'c{c}', 1, optional=True)
            return
        n = len(fill)

        def gap(q):
            for it in fill[(q * n) // 12:((q + 1) * n) // 12]:
                if callable(it):
                    it = it()
                for ln in ([it] if isinstance(it, str) else it):
                    a(ln)
                    if ln.startswith('buffer_store'):
                        vm.add('st', 1)
                    elif ln.startswith('buffer_load'):
                        vm.add('sl', 1)
        for e in range(4):
            a(f'''
            s_add_u32 m0, s36, {LDS_X + st * 16384 + e * 1024}
            s_add_u32 s34, s35, {(e >> 1) * 16 * 1280}
            buffer_load_dwordx4 {v(vXD + (e & 1))}, s[8:11], s34 offen lds
            ''')
            vm.add(f'c{c}', 1)
            gap(e)
        for e in range(8):
            a(f'''
            s_add_u32 m0, s37, {st * 8192 + e * 1024}
            s_nop 0
            buffer_load_dwordx4 {v(vWD + (e & 1))}, s[12:15], s33 offen lds
            ''')
            vm.add(f'c{c}', 1)
            if e < 7:
                a('s_add_u32 s33, s33, s31')
            gap(4 + e)

    vm.add('c0', 4)
    vm.add('c0', 1, optional=True)
    if not LATE1:
        vm.add('c1', 4)
        vm.add('c1', 1, optional=True)

    def jit(c):
        if not JIT or c > 9:
            return
        lab = a.label('nojit')
        a(f'''
        s_cmp_lg_u32 s26, 3
        s_cbranch_scc1 {lab}
        global_load_dword v165, {v(JA, 2)}, off
        v_add_co_u32 {v(JA)}, vcc, {v(JA)}, {v(JS)}
        s_nop 1
        v_addc_co_u32 {v(JA + 1)}, vcc, 0, {v(JA + 1)}, vcc
        {lab}:
        ''')
        vm.add('jit', 1, optional=True)

    if JIT:
        a(f'v_mov_b32 {v(JA)}, s68\nv_mov_b32 {v(JA + 1)}, s69')
        lab = a.label('nojs')
        a(f'''
        s_cmp_lg_u32 s26, 3
        s_cbranch_scc1 {lab}
        s_lshr_b32 s44, s2, 3
        s_and_b32 s45, s44, 7
        s_lshr_b32 s46, s44, 3
        s_lshl_b32 s46, s46, 5
        s_lshl_b32 s47, s27, 7
        s_add_u32 s46, s46, s47
        v_add_u32 {v(t0)}, s46, {v(vR)}
        v_mul_u32_u24 {v(t0)}, 1280, {v(t0)}
        v_add_u32 {v(t0)}, {128 * JIT}, {v(t0)}
        v_bfe_u32 {v(t1)}, {v(vL)}, 3, 1
        v_bfe_u32 {v(t2)}, {v(vL)}, 4, 1
        v_and_b32 {v(t3)}, s48, {v(t1)}
        v_cmp_eq_u32 s[58:59], 1, {v(t3)}
        v_cmp_eq_u32 s[60:61], 1, {v(t2)}
        v_mov_b32 {v(t4)}, 3456
        v_mov_b32 {v(t5)}, 1280
        v_cndmask_b32 {v(t4)}, {v(t4)}, {v(t5)}, s[58:59]
        s_xor_b32 s44, s48, 1
        v_and_b32 {v(t5)}, s44, {v(t1)}
        v_lshlrev_b32 {v(t5)}, 6, {v(t5)}
        v_add_u32 {v(t5)}, s49, {v(t5)}
        v_lshlrev_b32 {v(t3)}, 6, {v(t2)}
        v_add_u32 {v(t3)}, s50, {v(t3)}
        v_cndmask_b32 {v(t5)}, {v(t5)}, {v(t3)}, s[58:59]
        s_lshl_b32 s45, s45, 3
        s_add_u32 s45, s45, {64 * JIT}
        v_and_b32 {v(t3)}, 7, {v(vL)}
        v_add_u32 {v(t3)}, s45, {v(t3)}
        v_mul_lo_u32 {v(t3)}, {v(t3)}, {v(t4)}
        v_lshl_add_u32 {v(t3)}, {v(t5)}, 1, {v(t3)}
        v_cndmask_b32 {v(t0)}, {v(t0)}, {v(t3)}, {HM}
        v_lshlrev_b32 {v(t4)}, 6, {v(t4)}
        v_mov_b32 {v(t5)}, 128
        v_cndmask_b32 {v(JS)}, {v(t5)}, {v(t4)}, {HM}
        ''')
        for z in range(2):
            a(f'''
            v_mov_b32 {v(t1)}, s{80 + z}
            v_mov_b32 {v(t2)}, s{82 + z}
            v_cndmask_b32 {v(t1)}, {v(t1)}, {v(t2)}, s[60:61]
            v_mov_b32 {v(t2)}, s{70 + z}
            v_cndmask_b32 {v(t1)}, {v(t1)}, {v(t2)}, s[58:59]
            v_mov_b32 {v(t2)}, s{68 + z}
            v_cndmask_b32 {v(JA + z)}, {v(t2)}, {v(t1)}, {HM}
            ''')
        a(f'''
        v_add_co_u32 {v(JA)}, vcc, {v(JA)}, {v(t0)}
        s_nop 1
        v_addc_co_u32 {v(JA + 1)}, vcc, 0, {v(JA + 1)}, vcc
        {lab}:
        ''')
        for c in range(JIT, JITD):
            jit(c)
    srd(a, 4, 76, 256)
    lab = a.label('nononce')
    a(f'''
    s_or_b32 s44, s2, s26
    s_cmp_lg_u32 s44, 0
    s_cbranch_scc1 {lab}
    s_memrealtime s[44:45]
    s_waitcnt lgkmcnt(0)
    s_or_b32 s44, s44, 1
    v_mov_b32 {v(t0)}, s44
    s_mov_b64 exec, 1
    buffer_store_dword {v(t0)}, off, s[4:7], 0 sc1
    s_mov_b64 exec, -1
    {lab}:
    ''')
    vm.add('nonce', 1, optional=True)
    a(f'''
    s_and_b32 s56, s28, 3
    v_lshrrev_b32 {v(t0)}, 1, {v(vR)}
    v_and_b32 {v(t0)}, 7, {v(t0)}
    v_xor_b32 {v(t0)}, {v(t0)}, {v(vH)}
    s_lshl_b32 s44, s26, 1
    v_xor_b32 {v(t0)}, s44, {v(t0)}
    v_lshlrev_b32 {v(t3)}, 7, {v(vR)}
    v_lshl_add_u32 {v(t0)}, {v(t0)}, 4, {v(t3)}
    s_lshl_b32 s44, s56, 12
    v_add_u32 {v(vKX)}, s44, {v(t0)}
    v_bfe_u32 {v(t0)}, {v(vL)}, 2, 2
    v_lshl_add_u32 {v(t0)}, {v(vH)}, 3, {v(t0)}
    v_mul_u32_u24 {v(t0)}, 40, {v(t0)}
    v_bfe_u32 {v(t3)}, {v(vL)}, 4, 1
    v_and_b32 {v(t4)}, 3, {v(vL)}
    v_lshl_add_u32 {v(t3)}, {v(t3)}, 2, {v(t4)}
    v_min_u32 {v(t3)}, 4, {v(t3)}
    v_lshl_add_u32 {v(t0)}, {v(t3)}, 3, {v(t0)}
    s_mul_i32 s44, s26, 640
    s_add_u32 s44, s44, {LDS_KV}
    v_add_u32 {v(vKW)}, s44, {v(t0)}
    ''')
    for i in range(16):
        a(f'v_mov_b32 {v(AKV + i)}, 0')

    if LATE1:
        a_start(1)
        vm.add('c1', 4)
        vm.add('c1', 1, optional=True)

    def colsum(src_tag_wait, store_code):
        a(f's_waitcnt vmcnt({src_tag_wait})')
        a(f'''
        v_lshlrev_b32 {v(t0)}, 16, {v(CR)}
        v_and_b32 {v(t1)}, 0xffff0000, {v(CR)}
        ''')
        for t in range(1, 20):
            a(f'''
            v_lshlrev_b32 {v(t2)}, 16, {v(CR + t)}
            v_and_b32 {v(t3)}, 0xffff0000, {v(CR + t)}
            v_add_f32 {v(t0)}, {v(t0)}, {v(t2)}
            v_add_f32 {v(t1)}, {v(t1)}, {v(t3)}
            ''')
        a(f'''
        s_nop 1
        v_permlane32_swap_b32 {v(t0)}, {v(t1)}
        s_nop 1
        v_add_f32 {v(t0)}, {v(t0)}, {v(t1)}
        v_cvt_pk_bf16_f32 {v(t1)}, {v(t0)}, {v(t0)}
        v_and_b32 {v(t1)}, 0xffff0000, {v(t1)}
        v_sub_f32 {v(t1)}, {v(t0)}, {v(t1)}
        v_cvt_pk_bf16_f32 {v(t0)}, {v(t0)}, {v(t1)}
        ''')
        store_code()

    a('''
    s_lshl_b32 s41, s27, 10
    s_and_b32 s44, s28, 11
    s_cmp_eq_u32 s44, 0
    s_cselect_b32 s42, 1, 0
    s_cmp_eq_u32 s26, 3
    s_cselect_b32 s42, s42, 0
    ''')

    lines, load_cs, load_rows, fill_cs, fill_rows = stat_code(vL, vH, vR, RD, XR, RD + 20, RD + 28, RD + 36, 's43', 's101')
    PZ, pa, pb = RD + 40, RD + 44, RD + 45
    poison = [f'v_mov_b32 {v(PZ + q)}, -1' for q in range(4)] + lines(f'''
    v_lshlrev_b32 {v(pa)}, 4, {v(vL)}
    v_lshlrev_b32 {v(pb)}, 3, {v(vL)}
    s_lshr_b32 s44, s30, 2
    s_lshl_b32 s46, s29, 1
    s_add_u32 s46, s46, s44
    s_mul_i32 s46, s46, 40960
    s_and_b32 s44, s30, 3
    s_lshl_b32 s44, s44, 2
    s_add_u32 s44, s44, s26
    s_lshl_b32 s45, s44, 11
    s_add_u32 s45, s45, s46
    s_add_u32 s45, s45, {OF_OFF}
    buffer_store_dwordx4 {v(PZ, 4)}, {v(pa)}, s[20:23], s45 offen sc1
    buffer_store_dwordx4 {v(PZ, 4)}, {v(pa)}, s[20:23], s45 offen offset:1024 sc1
    s_lshl_b32 s45, s44, 9
    s_add_u32 s45, s45, s46
    s_add_u32 s45, s45, {OF_OFF + 32768}
    buffer_store_dwordx2 {v(PZ, 2)}, {v(pb)}, s[20:23], s45 offen sc1
    s_mul_i32 s44, s27, 163840
    s_mul_i32 s45, s28, 10240
    s_add_u32 s44, s44, s45
    s_mul_i32 s45, s26, 2560
    s_add_u32 s44, s44, s45
    s_add_u32 s44, s44, {QF_OFF}
    buffer_store_dwordx4 {v(PZ, 4)}, {v(pa)}, s[20:23], s44 offen sc1
    buffer_store_dwordx4 {v(PZ, 4)}, {v(pa)}, s[20:23], s44 offen offset:1024 sc1
    buffer_store_dwordx2 {v(PZ, 2)}, {v(pb)}, s[20:23], s44 offen offset:2048 sc1
    ''')
    afill = {}
    if AST:
        wait_sl = lambda: f's_waitcnt vmcnt({vm.wait("sl")})'
        comp0 = [wait_sl] + fill_rows() + fill_cs()
        comp = []
        for it in comp0:
            if comp and isinstance(comp[-1], str) and comp[-1].startswith('s_cmp'):
                comp[-1] = [comp[-1], it]
            else:
                comp.append(it)
        afill[0] = load_rows() + load_cs() + (poison if APZ == 0 else [])
        nC = len(comp)
        for q in range(ASP):
            afill[ASS + q] = comp[(q * nC) // ASP:((q + 1) * nC) // ASP]
        if APZ:
            afill[APZ] = poison + afill.get(APZ, [])
    AFL = ASS + ASP + 1
    if AST == 2:
        def glue(l):
            o = []
            for it in l:
                if o and isinstance(o[-1], str) and o[-1].startswith('s_cmp'):
                    o[-1] = [o[-1], it]
                else:
                    o.append(it)
            return o

        def merge(x, y):
            o = []
            n = max(len(x), 1)
            k = 0
            for q, it in enumerate(x):
                o.append(it)
                while k < len(y) and k * n < (q + 1) * len(y):
                    o.append(y[k])
                    k += 1
            return o + y[k:]
        cs = glue(fill_cs())
        ksp = poison.index('s_mul_i32 s44, s27, 163840')
        pO, pQ = poison[:ksp], poison[ksp:]
        h_ = len(cs) * 3 // 5
        rows_wait = lambda: f's_waitcnt vmcnt({vm.wait("sl")})'
        afill = {0: load_rows(), 1: load_cs()[:7] + [rows_wait] + merge(fill_rows(), load_cs()[7:]),
                 2: [rows_wait] + cs[:h_] + pO[:6] + pQ, 3: cs[h_:] + pO[6:]}
        AFL = 5

    def kv_step(c, part):
        st = c % 3
        lab = a.label('kvs')
        a(f's_cmp_eq_u32 s54, 0\ns_cbranch_scc1 {lab}')
        if part == 0:
            a(f'''
            ds_read_b128 {v(KXF, 4)}, {v(vKX)} offset:{LDS_X + st * 16384}
            ds_read_b64_tr_b16 {v(KWF, 2)}, {v(vKW)} offset:{st * 3072}
            ds_read_b64_tr_b16 {v(KWF + 2, 2)}, {v(vKW)} offset:{st * 3072 + 160}
            ''')
        else:
            a('s_waitcnt lgkmcnt(0)')
            a(mfma16(AKV, KWF, KXF, AKV))
        a(f'{lab}:')

    for c in range(10):
        a.c(f'aux chunk {c}')
        if c == 0:
            stamp(a, 22)
        if c <= 8:
            nw_ = vm.wait(f'c{c}')
            if c == 5:
                nw_ = min(nw_, vm.wait('kst'), vm.wait('nl'))
            if AST and c == AFL:
                nw_ = min(nw_, vm.wait('st'), vm.wait('nl'))
            a(f's_waitcnt vmcnt({nw_})')
        else:
            a('s_waitcnt vmcnt(0)')
        a('s_barrier')
        if not FEWST or c in (0, 1, 2, 9):
            stamp(a, 1 + c)
        if asmlib.STAMPS:
            vm.add('stamp', 1, optional=True)
        if c == (AFL - 2 if AST else 3):
            a(f'buffer_load_dword {v(PF)}, off, s[4:7], 0 sc1')
            vm.add('nl', 1)
        kv_step(c, 0)
        if c == P3C:
            ROW5 = f'''
            s_add_u32 s57, s27, 1
            s_and_b32 s57, s57, 15
            s_lshl_b32 s57, s57, 13
            s_add_u32 s57, s57, {F_ST}
            buffer_load_dwordx2 {v(FX + 8, 2)}, {v(T + 10)}, s[20:23], s57 offen sc1
            '''
            lab = a.label('nop3')
            a(f'''
            v_lshlrev_b32 {v(T + 8)}, 3, {v(vL)}
            v_lshlrev_b32 {v(T + 10)}, 7, {v(vL)}
            v_and_b32 {v(T + 11)}, 0x780, {v(T + 10)}
            s_cmp_lg_u32 s26, 3
            s_cbranch_scc1 {lab}
            s_lshl_b32 s44, s27, 13
            s_add_u32 s44, s44, {F_ST}
            s_lshl_b32 s45, s28, 13
            s_add_u32 s45, s45, {F_CS}
            s_and_b32 s58, s28, 4
            s_lshl_b32 s58, s58, 9
            s_add_u32 s58, s58, {F_KC}
            ''')
            a(f'''
            s_mov_b32 s60, s44
            s_mov_b32 s61, s45
            s_lshr_b32 s59, s29, 1
            s_lshl_b32 s59, s59, 13
            s_add_u32 s59, s59, {F_ST}
            buffer_load_dwordx2 {v(FX + 6, 2)}, {v(T + 10)}, s[20:23], s59 offen sc1
            {ROW5 if KVP else ''}
            buffer_load_dwordx2 {v(FX, 2)}, {v(T + 10)}, s[20:23], s60 offen sc1
            buffer_load_dwordx2 {v(FX + 2, 2)}, {v(T + 10)}, s[20:23], s61 offen sc1
            buffer_load_dwordx2 {v(FX + 4, 2)}, {v(T + 11)}, s[20:23], s58 offen sc1
            {lab}:
            ''')
        jit(c + JITD)
        if (1 if EARLY2 else 0) <= c and c + 2 < 10:
            if AST and c == ASS:
                a('s_setprio 0')
            dma_group(c + 2, fill=afill.get(c, ()))
            if AST and c == AFL - 2:
                a(f's_setprio {PRIO1}')
        kv_step(c, 1)
        if c == P3C:
            lab = a.label('nop3b')
            a(f'''
            s_cmp_lg_u32 s26, 3
            s_cbranch_scc1 {lab}
            s_waitcnt vmcnt(12)
            v_cmp_eq_u64 vcc, s[98:99], {v(FX, 2)}
            v_cmp_eq_u64 s[46:47], s[98:99], {v(FX + 2, 2)}
            v_cmp_eq_u64 s[44:45], s[98:99], {v(FX + 4, 2)}
            v_cmp_eq_u64 s[48:49], s[98:99], {v(FX + 6, 2)}
            {f'v_cmp_eq_u64 s[50:51], s[98:99], {v(FX + 8, 2)}' if KVP else ''}
            s_nop 1
            {'s_and_b64 vcc, vcc, s[50:51]' if KVP else ''}
            s_and_b64 vcc, vcc, s[46:47]
            s_and_b64 vcc, vcc, s[44:45]
            s_and_b64 vcc, vcc, s[48:49]
            s_cmp_eq_u64 vcc, -1
            s_cbranch_scc1 {lab}
            ''')
            polln(a, FX, [T + 10, T + 10, T + 11], [('s60', None), ('s61', None), ('s58', None)], 4)
            polln(a, FX, [T + 10, T + 10], [('s59', None), ('s57', None)][:1 + KVP], 4)
            a(f'{lab}:')
        if c == 2:
            lab = a.label('nokvcs')
            a(f'''
            s_cmp_eq_u32 s42, 0
            s_cbranch_scc1 {lab}
            s_mul_i32 s44, s27, 40
            v_add_u32 {v(t1)}, s44, {v(vH)}
            v_mul_u32_u24 {v(t2)}, 40, {v(t1)}
            v_lshl_add_u32 {v(t2)}, {v(vR)}, 2, {v(t2)}
            ''')
            for t in range(20):
                a(f'buffer_load_dword {v(CR + t)}, {v(t2)}, s[16:19], 0 offen offset:{80 * t}')
            a(f'{lab}:')
            vm.add('kcr', 20, optional=True)
        if c == 3:
            lab = a.label('nokvcs2')
            a(f's_cmp_eq_u32 s42, 0\ns_cbranch_scc1 {lab}')

            def kcs_store():
                a(f'''
                v_lshl_add_u32 {v(t1)}, {v(vR)}, 1, {v(vH)}
                v_lshlrev_b32 {v(t2)}, 2, {v(t1)}
                v_mov_b32 {v(t3)}, 0x7f000000
                v_cmp_gt_u32 vcc, 32, {v(t1)}
                s_lshl_b32 s44, s28, 9
                s_lshl_b32 s45, s27, 7
                s_add_u32 s44, s44, s45
                s_add_u32 s44, s44, {CSKVW}
                v_cndmask_b32 {v(t2)}, {v(t3)}, {v(t2)}, vcc
                buffer_store_dword {v(t0)}, {v(t2)}, s[20:23], s44 offen sc1
                ''')
            colsum(vm.wait('kcr'), kcs_store)
            a(f'{lab}:')
            vm.add('kst', 1, optional=True)
        if c == (AFL if AST else 5):
            Lp = a.label('np')
            Lq = a.label('npd')
            Lr = a.label('nokcf')
            a(f'''
            s_mov_b32 s93, {POLL_MAX}
            {Lp}:
            v_readfirstlane_b32 s98, {v(PF)}
            s_cmp_lg_u32 s98, 0
            s_cbranch_scc1 {Lq}
            s_sub_u32 s93, s93, 1
            s_cbranch_scc1 {Lq}
            buffer_load_dword {v(PF)}, off, s[4:7], 0 sc1
            s_waitcnt vmcnt(0)
            s_branch {Lp}
            {Lq}:
            s_xor_b32 s99, s98, {NONCE_X}
            ''')
            if AST:
                flag_store(a, 's43', T + 2)
                flag_store(a, 's101', T + 2)
                lab = a.label('noxid')
                a(f'''
                s_cmp_lg_u32 s26, 0
                s_cbranch_scc1 {lab}
                v_mov_b32 {v(T)}, {NONCE_A}
                ds_write_b32 {v(T)}, {v(T + 2)}
                s_getreg_b32 s44, hwreg(HW_REG_XCC_ID, 0, 4)
                s_lshl_b32 s45, s29, 7
                s_lshl_b32 s46, s30, 3
                s_add_u32 s45, s45, s46
                s_add_u32 s45, s45, {F_X}
                v_mov_b32 {v(T + 3)}, s44
                s_mov_b64 exec, 1
                buffer_store_dwordx2 {v(T + 2, 2)}, off, s[20:23], s45 sc1
                s_mov_b64 exec, -1
                s_waitcnt lgkmcnt(0)
                {lab}:
                ''')
                vm.add('fl', 2)
                vm.add('fl', 1, optional=True)
        if c == 5:
            Lr = a.label('nokcf')
            a(f'''
            s_lshl_b32 s44, s28, 9
            s_lshl_b32 s45, s27, 7
            s_add_u32 s44, s44, s45
            s_add_u32 s44, s44, {F_KC}
            s_cmp_eq_u32 s42, 0
            s_cbranch_scc1 {Lr}
            ''')
            flag_store(a, 's44', T + 2)
            a(f'{Lr}:')
            vm.add('fl', 1, optional=True)
        if P1PF and c in (6, 7):
            if c == 6:
                srd(a, 4, WDP, 2211840)
                a(f'''
                s_lshr_b32 s44, s2, 6
                s_mul_i32 s44, s44, {432 * 1280}
                s_bfe_u32 s45, s2, 0x30003
                s_mul_i32 s45, s45, {180 * 128}
                s_add_u32 s44, s44, s45
                s_mul_i32 s45, s26, {45 * 128}
                s_add_u32 s57, s44, s45
                v_lshlrev_b32 {v(PF + 1)}, 7, {v(vL)}
                ''')
            for z in range(2 if c == 6 else 1):
                a(f'''
                s_mov_b32 exec_hi, {(1 << 13) - 1}
                buffer_load_dword v165, {v(PF + 1)}, s[4:7], s57 offen
                s_mov_b32 exec_hi, -1
                s_add_u32 s57, s57, {144 * 1280}
                ''')
                vm.add('pf', 1)
        if c == 8:
            a(f'''
            v_lshlrev_b32 {v(T + 9)}, 4, {v(vL)}
            s_lshl_b32 s44, s28, 14
            s_lshl_b32 s45, s26, 12
            s_add_u32 s44, s44, s45
            s_add_u32 s44, s44, {CSW}
            ''')
            for e in range(4):
                a(f'''
                s_add_u32 m0, s45, {CS_A + 1024 * e}
                s_nop 0
                buffer_load_dwordx4 {v(T + 9)}, s[20:23], s44 offen{LD} lds
                s_add_u32 s44, s44, 1024
                ''')
            lab = a.label('norc')
            a(f'''
            s_cmp_lg_u32 s26, 0
            s_cbranch_scc1 {lab}
            s_lshl_b32 s44, s27, 11
            s_add_u32 s44, s44, {ROWW}
            s_mov_b32 m0, {ROWC_A}
            s_and_b32 s45, s28, 4
            buffer_load_dwordx4 {v(T + 9)}, s[20:23], s44 offen{LD} lds
            buffer_load_dwordx4 {v(T + 9)}, s[20:23], s44 offen offset:1024{LD} lds
            s_lshl_b32 s45, s45, 9
            s_add_u32 s45, s45, {CSKVW}
            s_mov_b32 m0, {CSKV_A}
            s_nop 0
            buffer_load_dwordx4 {v(T + 9)}, s[20:23], s45 offen{LD} lds
            buffer_load_dwordx4 {v(T + 9)}, s[20:23], s45 offen offset:1024{LD} lds
            {lab}:
            ''')
    L_p2 = a.label('auxp2')
    L_v = a.label('vepi')
    L_a0 = a.label('aux0f')
    lab = a.label('nokvfin')
    lab2 = a.label('nofix')
    a(f'''
    s_cmp_eq_u32 s54, 0
    s_cbranch_scc1 {lab}
    s_cmp_lg_u32 s26, 0
    s_cbranch_scc1 {lab2}
    s_lshl_b32 s44, s56, 9
    s_add_u32 s44, s44, {ROWC_A}
    v_lshl_add_u32 {v(t0)}, {v(vR)}, 4, s44
    v_lshlrev_b32 {v(t1)}, 2, {v(vR)}
    v_lshl_add_u32 {v(t1)}, {v(vH)}, 9, {v(t1)}
    v_add_u32 {v(t1)}, {CSKV_A}, {v(t1)}
    v_add_u32 {v(t2)}, 1024, {v(t1)}
    ds_read_b128 {v(FX, 4)}, {v(t0)}
    ds_read2_b32 {v(FX + 8, 2)}, {v(t1)} offset0:0 offset1:32
    ds_read2_b32 {v(FX + 10, 2)}, {v(t1)} offset0:64 offset1:96
    ds_read2_b32 {v(FX + 12, 2)}, {v(t2)} offset0:0 offset1:32
    ds_read2_b32 {v(FX + 14, 2)}, {v(t2)} offset0:64 offset1:96
    s_waitcnt lgkmcnt(4)
    v_mov_b32 {v(FX + 4)}, {v(FX)}
    v_mov_b32 {v(FX + 5)}, {v(FX)}
    v_mov_b32 {v(FX + 6)}, {v(FX)}
    v_mov_b32 {v(FX + 7)}, {v(FX)}
    s_waitcnt lgkmcnt(0)
    s_nop 1
    {mfma16(AKV, FX + 8, FX + 4, AKV)}
    {mfma16(AKV, FX + 12, FX + 4, AKV)}
    s_branch {L_a0}
    {lab2}:
    s_lshl_b32 s44, s26, 12
    v_add_u32 {v(t0)}, s44, {v(T + 9)}
    s_lshl_b32 s44, s26, 2
    s_add_u32 s44, s44, {PD_A}
    v_mov_b32 {v(t1)}, s44
    v_mov_b32 {v(t2)}, s98
    s_nop 11
    ''')
    for q in range(3):
        a(f'ds_write_b128 {v(t0)}, {v(AKV + 4 * q, 4)} offset:{PART_A + 1024 * q}')
    L_sp = a.label('pspin')
    L_spd = a.label('pspind')
    a(f'''
    s_waitcnt lgkmcnt(0)
    ds_write_b32 {v(t1)}, {v(t2)}
    {lab}:
    s_branch {L_p2}
    {L_a0}:
    v_mov_b32 {v(t1)}, {PD_A}
    s_mov_b32 s93, {POLL_MAX * 8}
    {L_sp}:
    ds_read_b128 {v(T + 4, 4)}, {v(t1)}
    s_waitcnt lgkmcnt(0)
    v_xor_b32 {v(T + 5)}, s98, {v(T + 5)}
    v_xor_b32 {v(T + 6)}, s98, {v(T + 6)}
    v_xor_b32 {v(T + 7)}, s98, {v(T + 7)}
    v_or3_b32 {v(T + 5)}, {v(T + 5)}, {v(T + 6)}, {v(T + 7)}
    s_nop 0
    v_readfirstlane_b32 s44, {v(T + 5)}
    s_cmp_eq_u32 s44, 0
    s_cbranch_scc1 {L_spd}
    s_sub_u32 s93, s93, 1
    s_cbranch_scc0 {L_sp}
    {L_spd}:
    ''')
    stamp(a, 12)
    for w in range(1, 4):
        for q in range(3):
            a(f'ds_read_b128 {v(RD + 12 * (w - 1) + 4 * q, 4)}, {v(T + 9)} offset:{PART_A + 4096 * w + 1024 * q}')
    a(f'''
    s_lshl_b32 s57, s27, 2
    s_add_u32 s57, s57, s56
    s_lshr_b32 s44, s57, 1
    s_mul_i32 s44, s44, 7168
    s_add_u32 s44, s44, {KV_OFF}
    s_and_b32 s45, s57, 1
    s_and_b32 s58, s28, 4
    s_lshl_b32 s58, s58, 4
    s_add_u32 s58, s58, s57
    s_lshl_b32 s58, s58, 7
    s_add_u32 s58, s58, {F_KV}
    s_waitcnt lgkmcnt(0)
    ''')
    for i in range(12):
        a(f'v_add_f32 {v(AKV + i)}, {v(AKV + i)}, {v(RD + i)}')
        a(f'v_add_f32 {v(RD + 12 + i)}, {v(RD + 12 + i)}, {v(RD + 24 + i)}')
    for i in range(12):
        a(f'v_add_f32 {v(AKV + i)}, {v(AKV + i)}, {v(RD + 12 + i)}')
    for i in range(12):
        a(f'v_mul_f32 {v(AKV + i)}, {v(AKV + i)}, {v(FX + 1)}')
    PK = RD
    for i in range(6):
        a(f'v_cvt_pk_bf16_f32 {v(PK + i)}, {v(AKV + 2 * i)}, {v(AKV + 2 * i + 1)}')
    L_kvf = a.label('kvflag')
    a(f'''
    s_bitcmp1_b32 s28, 2
    s_cbranch_scc1 {L_v}
    v_mov_b32 {v(t0)}, 0x3f803f80
    v_mov_b32 {v(t1)}, 0x00003f80
    v_cndmask_b32 {v(PK + 4)}, {v(PK + 4)}, {v(t0)}, {HM}
    v_cndmask_b32 {v(PK + 5)}, {v(PK + 5)}, {v(t1)}, {HM}
    s_lshl_b32 s46, s45, 10
    s_add_u32 s46, s46, s44
    s_lshl_b32 s47, s45, 9
    s_add_u32 s47, s47, s44
    buffer_store_dwordx4 {v(PK, 4)}, {v(T + 9)}, s[20:23], s46 offen sc1
    buffer_store_dwordx2 {v(PK + 4, 2)}, {v(T + 8)}, s[20:23], s47 offen offset:2048 sc1
    s_branch {L_kvf}
    {L_v}:
    v_mov_b32 {v(t0)}, 0
    v_cndmask_b32 {v(PK + 4)}, {v(PK + 4)}, {v(t0)}, {HM}
    v_cndmask_b32 {v(PK + 5)}, {v(PK + 5)}, {v(t0)}, {HM}
    v_mov_b32 {v(PK + 6)}, 0x00003f80
    v_mov_b32 {v(PK + 7)}, 0
    v_lshlrev_b32 {v(t0)}, 6, {v(vR)}
    v_lshl_add_u32 {v(t0)}, {v(vH)}, 3, {v(t0)}
    ds_write_b64 {v(t0)}, {v(PK, 2)} offset:{VT_A}
    ds_write_b64 {v(t0)}, {v(PK + 2, 2)} offset:{VT_A + 16}
    ds_write_b64 {v(t0)}, {v(PK + 4, 2)} offset:{VT_A + 32}
    ds_write_b64 {v(t0)}, {v(PK + 6, 2)} offset:{VT_A + 48}
    v_bfe_u32 {v(t1)}, {v(vL)}, 2, 2
    v_lshl_add_u32 {v(t1)}, {v(vH)}, 2, {v(t1)}
    v_lshlrev_b32 {v(t1)}, 6, {v(t1)}
    v_bfe_u32 {v(t2)}, {v(vL)}, 4, 1
    v_lshl_add_u32 {v(t1)}, {v(t2)}, 5, {v(t1)}
    v_and_b32 {v(t2)}, 3, {v(vL)}
    v_lshl_add_u32 {v(t1)}, {v(t2)}, 3, {v(t1)}
    s_waitcnt lgkmcnt(0)
    ds_read_b64_tr_b16 {v(PK + 8, 2)}, {v(t1)} offset:{VT_A}
    ds_read_b64_tr_b16 {v(PK + 10, 2)}, {v(t1)} offset:{VT_A + 512}
    ds_read_b64_tr_b16 {v(PK + 12, 2)}, {v(t1)} offset:{VT_A + 1024}
    ds_read_b64_tr_b16 {v(PK + 14, 2)}, {v(t1)} offset:{VT_A + 1536}
    s_lshl_b32 s46, s45, 11
    s_add_u32 s46, s46, s44
    s_add_u32 s46, s46, 3072
    s_waitcnt lgkmcnt(0)
    buffer_store_dwordx4 {v(PK + 8, 4)}, {v(T + 9)}, s[20:23], s46 offen sc1
    buffer_store_dwordx4 {v(PK + 12, 4)}, {v(T + 9)}, s[20:23], s46 offen offset:1024 sc1
    {L_kvf}:
    s_waitcnt vmcnt(0)
    ''')
    flag_store(a, 's58', T + 2)
    a(f'{L_p2}:')
    stamp(a, 13)

    a.c('=========== aux wave: phase 2 ===========')
    al = Alloc(4, 164)
    T = al('T', 8, 4)
    vWD = al('wd', 3)
    vWA = al('wa', 3)
    vHL = al('hl')
    vKO = al('ko')
    vPF = al('pf')
    ACC = al('acc', 80, 4)
    SL = al('slots', 60, 4)
    wreg = lambda k: SL + 20 * (k % 3)
    hreg = lambda k: SL + 20 * (k % 3) + 12
    a(f's_setprio {PRIO2}')
    g2_ids(a)
    srd(a, 12, WDP, 2211840)
    srd(a, 16, 84, 819200)
    a(f"""
    s_mul_i32 s44, s26, 27
    s_mul_i32 s41, s59, 108
    s_add_u32 s41, s41, s44
    s_lshl_b32 s41, s41, 10
    s_mul_i32 s42, s60, 108
    s_add_u32 s42, s42, s44
    s_lshl_b32 s42, s42, 10
    s_lshr_b32 s43, s44, 1
    s_mul_i32 s43, s43, 40960
    s_and_b32 s45, s44, 1
    s_mul_i32 s52, s45, 10240
    s_add_u32 s43, s43, s52
    s_mul_i32 s52, s45, 20480
    s_add_u32 s52, s52, 10240
    s_mov_b32 s48, 40960
    s_lshl_b32 s44, s26, 3
    s_mul_i32 s56, s44, 25600
    s_mul_i32 s54, s59, 40
    s_add_u32 s54, s54, s44
    s_lshl_b32 s54, s54, 10
    s_add_u32 s54, s54, {OF_OFF}
    s_mul_i32 s55, s60, 40
    s_add_u32 s55, s55, s44
    s_lshl_b32 s55, s55, 10
    s_add_u32 s55, s55, {OF_OFF}
    s_and_b32 s44, s26, 1
    s_mul_i32 s39, s44, 21504
    s_lshr_b32 s44, s26, 1
    s_mul_i32 s44, s44, {WO_HI}
    s_add_u32 s39, s39, s44
    s_mov_b32 s40, s39
    s_mov_b32 s45, 0x15556
    v_lshlrev_b32 {v(vHL)}, 4, {v(vL)}
    v_lshlrev_b32 {v(vPF)}, 7, {v(vL)}
    s_lshl_b32 s36, s26, 12
    s_min_u32 s36, s36, 11264
    v_add_u32 {v(vKO)}, s36, {v(vHL)}
    """)
    for p in range(3):
        a(f"""
        v_add_u32 {v(T)}, {64 * p}, {v(vL)}
        v_mul_lo_u32 {v(T + 1)}, {v(T)}, s45
        v_lshrrev_b32 {v(T + 1)}, 20, {v(T + 1)}
        v_mul_u32_u24 {v(T + 2)}, 12, {v(T + 1)}
        v_sub_u32 {v(T + 2)}, {v(T)}, {v(T + 2)}
        v_and_b32 {v(T)}, 8, {v(T + 1)}
        v_add_u32 {v(T + 1)}, {v(T + 1)}, {v(T)}
        v_mul_u32_u24 {v(T + 1)}, 1280, {v(T + 1)}
        v_lshl_add_u32 {v(T + 1)}, {v(T + 2)}, 4, {v(T + 1)}
        v_add_u32 {v(vWD + p)}, s61, {v(T + 1)}
        """)
    a(f"""
    v_bfe_u32 {v(T)}, {v(vL)}, 2, 2
    v_lshl_add_u32 {v(T)}, {v(vH)}, 2, {v(T)}
    v_mul_u32_u24 {v(T)}, 192, {v(T)}
    v_bfe_u32 {v(T + 1)}, {v(vL)}, 4, 1
    v_lshl_add_u32 {v(T)}, {v(T + 1)}, 5, {v(T)}
    v_and_b32 {v(T + 1)}, 3, {v(vL)}
    v_lshl_add_u32 {v(T)}, {v(T + 1)}, 3, {v(T)}
    v_add_u32 {v(T)}, s39, {v(T)}
    s_lshl_b32 s44, s58, 6
    s_add_u32 s45, s44, 64
    s_lshl_b32 s46, s58, 7
    s_sub_u32 s46, 128, s46
    v_add_u32 {v(vWA)}, s44, {v(T)}
    v_add_u32 {v(vWA + 1)}, s45, {v(T)}
    v_add_u32 {v(vWA + 2)}, s46, {v(T)}
    """)
    vm = VM()

    def w_dma(base, off):
        out = []
        for p in range(3):
            out.append([f's_add_u32 m0, {base}, {off + p * 1024}', 's_nop 0',
                        f'buffer_load_dwordx4 {v(vWD + p)}, s[12:15], s43 offen lds'])
        out[2] += ['s_add_u32 s43, s43, s52', 's_sub_u32 s52, s48, s52']
        return out

    def h_ld(k, e):
        hs = ('s41', 's42')[e]
        return [f'buffer_load_dwordx4 {v(hreg(k) + 4 * e, 4)}, {v(vHL)}, s[20:23], {hs} offen', f's_add_u32 {hs}, {hs}, 1024']

    def w_rd(k, off):
        return [f'ds_read_b64_tr_b16 {v(wreg(k) + 4 * b + 2 * t, 2)}, {v(vWA + b)} offset:{off + 1536 * t}'
                for b in range(3) for t in range(2)]

    def g_mfmas(k):
        return [mfma16(ACC + 16 * n, wreg(k) + 4 * b, hreg(k) + 4 * e, ACC + 16 * n)
                for n, (b, e) in enumerate(((0, 0), (0, 1), (1, 0), (1, 1), (2, 0)))]

    KVADV = f's_add_u32 s38, s38, {CH_BYTES}\ns_cmp_eq_u32 s38, {KV_OFF + 16 * CH_BYTES}\ns_cselect_b32 s38, {KV_OFF}, s38'

    def kv_dma(c, fl_=''):
        st = c % NST
        lab = a.label('kv3')
        a(f's_cmp_ge_u32 s26, 2\ns_cbranch_scc1 {lab}')
        for e in (3, 0, 1, 2):
            a(f"""
            s_add_u32 m0, s36, {KVR + st * CH_BYTES + e * 1024}
            s_add_u32 s45, s38, {e * 1024}
            buffer_load_dwordx4 {v(vKO)}, s[20:23], s45 offen{fl_} lds
            """)
            if e == 3:
                a(f'{lab}:')
        a(KVADV)
        vm.add(f'kv{c}', 1, optional=True)
        vm.add(f'kv{c}', 3)

    for i in range(80):
        a(f'v_mov_b32 {v(ACC + i)}, 0')
    srd(a, 4, WDP, 2211840)
    a(f'''
    s_lshr_b32 s44, s2, 6
    s_mul_i32 s44, s44, {432 * 1280}
    s_bfe_u32 s45, s2, 0x30003
    s_lshl_b32 s45, s45, 2
    s_add_u32 s45, s45, s26
    s_mul_i32 s45, s45, {15 * 128}
    s_add_u32 s32, s44, s45
    s_mov_b32 s31, {48 * 1280}
    ''')

    a(f'''
    s_lshr_b32 s45, s30, 2
    s_lshl_b32 s46, s29, 1
    s_add_u32 s45, s45, s46
    s_mul_i32 s45, s45, 108
    s_and_b32 s46, s30, 3
    s_mul_i32 s46, s46, 27
    s_add_u32 s45, s45, s46
    s_lshl_b32 s45, s45, 10
    s_mul_i32 s46, s26, {6 * 128}
    s_add_u32 s45, s45, s46
    s_add_u32 s49, s45, 3072
    ''')

    def paced_h():
        if not PCH:
            return
        a(f'''
        s_mov_b64 exec, 0x3f
        buffer_load_dword v165, {v(vPF)}, s[20:23], s49 offen
        s_mov_b64 exec, -1
        s_add_u32 s49, s49, 3072
        ''')

    def paced():
        if not PCW:
            return
        a(f'''
        s_mov_b64 exec, 0x7fff
        buffer_load_dword v165, {v(vPF)}, s[4:7], s32 offen
        s_mov_b64 exec, -1
        s_add_u32 s32, s32, s31
        ''')
        vm.add('pf', 1)

    def cd_wait():
        L1, L2 = a.label('cdw'), a.label('cdd')
        a(f'''
        v_and_b32 {v(T + 4)}, 7, {v(vL)}
        v_lshlrev_b32 {v(T + 4)}, 2, {v(T + 4)}
        v_add_u32 {v(T + 4)}, {CD_A}, {v(T + 4)}
        s_mov_b32 s93, {POLL_MAX * 8}
        {L1}:
        ds_read_b32 {v(T + 5)}, {v(T + 4)}
        s_waitcnt lgkmcnt(0)
        v_cmp_eq_u32 vcc, s98, {v(T + 5)}
        s_nop 1
        s_cmp_eq_u64 vcc, -1
        s_cbranch_scc1 {L2}
        s_sub_u32 s93, s93, 1
        s_cbranch_scc0 {L1}
        {L2}:
        ''')

    a(f's_lshl_b32 s53, s29, 13\ns_add_u32 s53, s53, {F_QH}')

    def kv_poll(first):
        a(f's_mov_b32 s45, {F_KV}\ns_mov_b32 s44, {F_KV + 8192}')
        if first:
            m = ~((1 << (4 * KVF)) - 1) & 0xffffffffffffffff
            a(f's_mov_b32 s50, {m & 0xffffffff}\ns_mov_b32 s51, {m >> 32}\ns_sleep {KVSL}\ns_andn2_b64 exec, exec, s[50:51]')
            polln(a, T + 4, vPF, [('s45', 's[50:51]'), ('s44', 's[50:51]')], 2)
            a('s_mov_b64 exec, -1')
            cd_wait()
        else:
            polln(a, T + 4, vPF, [('s45', None), ('s44', None)], 4)
    if KVP:
        a(f's_mul_i32 s47, s27, {CH_BYTES}\ns_add_u32 s47, s47, {KV_OFF}')
        for q in (12, 13, 14, 15, 28, 29, 30, 31):
            a(f'v_mov_b32 {v(SL + q)}, 0')
        cd_wait()
        a(f'v_add_u32 {v(T + 2)}, {KVR}, {v(vKO)}')
        Lp, Lq, Lr = a.label('kp'), a.label('kpd'), a.label('kp3')
        a(f's_mov_b32 s93, {OPOLL_MAX}\n{Lp}:\ns_mov_b32 s38, s47')
        kv_dma(0, ' sc1')
        kv_dma(1, ' sc1')
        a('s_waitcnt vmcnt(0)')
        for z in range(2):
            for e in range(3):
                a(f'ds_read_b128 {v(SL + 16 * z + 4 * e, 4)}, {v(T + 2)} offset:{z * CH_BYTES + e * 1024}')
        a(f's_cmp_ge_u32 s26, 2\ns_cbranch_scc1 {Lr}')
        for z in range(2):
            a(f'ds_read_b128 {v(SL + 16 * z + 12, 4)}, {v(T + 2)} offset:{z * CH_BYTES + 3072}')
        a(f'{Lr}:\ns_waitcnt lgkmcnt(0)')
        for z in range(2):
            a(f'v_max3_u32 {v(T + z)}, {v(SL + 16 * z)}, {v(SL + 16 * z + 1)}, {v(SL + 16 * z + 2)}')
        for i in range(3, 15, 2):
            for z in range(2):
                a(f'v_max3_u32 {v(T + z)}, {v(T + z)}, {v(SL + 16 * z + i)}, {v(SL + 16 * z + i + 1)}')
        a(f'''
        v_max3_u32 {v(T)}, {v(T)}, {v(SL + 15)}, {v(SL + 31)}
        v_max_u32 {v(T)}, {v(T)}, {v(T + 1)}
        v_cmp_eq_u32 vcc, -1, {v(T)}
        s_nop 1
        s_cmp_eq_u64 vcc, 0
        s_cbranch_scc1 {Lq}
        s_sub_u32 s93, s93, 1
        s_cbranch_scc1 {Lq}
        s_sleep {KSL2}
        s_branch {Lp}
        {Lq}:
        ''')
        stamp(a, 15)
    else:
        a(f's_mov_b32 s38, {KV_OFF}')
        one_poller(a, T, 0, lambda: kv_poll(True), who=2)
        stamp(a, 15)
        kv_dma(0)
        kv_dma(1)
        kv_dma(2)

    def prefetch(kind, b=0):
        n = {'wd': 60, 'wo': 64, 'h': 54}[kind]
        lab = a.label('nopf')
        if kind != 'h':
            a(f's_cmp_eq_u32 s26, 3\ns_cbranch_scc1 {lab}')
        if kind == 'wd':
            a(f"""
            s_lshr_b32 s44, s2, 6
            s_mul_i32 s44, s44, {432 * 1280}
            s_bfe_u32 s45, s2, 0x30003
            s_mul_i32 s45, s45, {180 * 128}
            s_add_u32 s44, s44, s45
            s_mul_i32 s45, s26, {60 * 128}
            s_add_u32 s44, s44, s45
            s_add_u32 s44, s44, {144 * 1280 * b}
            """)
            r = 's[12:15]'
        elif kind == 'wo':
            a(f"""
            s_lshr_b32 s44, s2, 3
            s_mul_i32 s44, s44, {200 * 128}
            s_mul_i32 s45, s26, {68 * 128}
            s_add_u32 s44, s44, s45
            """)
            r = 's[16:19]'
        else:
            a(f"""
            s_mul_i32 s44, s29, {216 * 1024}
            s_lshl_b32 s45, s30, 2
            s_add_u32 s45, s45, s26
            s_mul_i32 s45, s45, {54 * 128}
            s_add_u32 s44, s44, s45
            """)
            r = 's[20:23]'
        m = (1 << n) - 1
        a(f"""
        s_mov_b32 exec_hi, {m >> 32}
        buffer_load_dword v165, {v(vPF)}, {r}, s44 offen
        s_mov_b32 exec_hi, -1
        {lab}:
        """)
        vm.add('pf', 1, optional=True)
    a(f's_waitcnt vmcnt({vm.wait("kv0")})')
    if NOA0:
        a(f'''
        s_lshl_b32 s44, s26, 2
        s_add_u32 s44, s44, {KL_A}
        v_mov_b32 {v(T)}, s44
        v_mov_b32 {v(T + 1)}, s98
        ds_write_b32 {v(T)}, {v(T + 1)}
        ''')
    else:
        a('s_barrier')
    stamp(a, 16)
    lab = a.label('nokv2')
    a(f's_cmp_lg_u32 s26, 2\ns_cbranch_scc1 {lab}')
    kv_poll(False)
    a(f'{lab}:')

    def kvp(e):
        a(f'''
        s_add_u32 s44, s36, s37
        s_add_u32 m0, s44, {KVR + e * 1024}
        s_add_u32 s45, s38, {e * 1024}
        buffer_load_dwordx4 {v(vKO)}, s[20:23], s45 offen lds
        ''')

    def body(last, nw=12, fast=False, tailfill=()):
        for z in range(3):
            a(f's_waitcnt vmcnt({((12, 14, 15)[z] if fast else (nw if not last else (12, 10, 8)[z])) - 2 + PCW + PCH}) lgkmcnt(0)')
            ms = g_mfmas(z)
            if z == 2:
                a('s_setprio 3' if BP else '')
                for b in range(3):
                    a(f'v_add_u32 {v(vWA + b)}, s33, {v(vWA + b)}')
                rd = w_rd(0, 0)
            else:
                rd = w_rd(z + 1, 3072 * (z + 1))
            if BP:
                lo = [n + 5 * z < BP for n in range(5)]
                ms = list(ms)
                order = (0, 1, 3, 2, 4)
                for q, n in enumerate(order):
                    if q == 0 or lo[q] != lo[q - 1]:
                        ms[n] = f's_setprio {0 if lo[q] else 3}\n' + ms[n]
            wd_ = w_dma('s40', 3072 * z)
            a(ms[0]); emit(a, rd[0:2]); emit(a, [wd_[0]]); a(SPACE)
            a(ms[1]); emit(a, rd[2:4]); emit(a, [wd_[1]]); a(SPACE)
            a(ms[3]); emit(a, rd[4:6]); emit(a, [wd_[2]]); a(SPACE)
            a(ms[2])
            if not last:
                emit(a, h_ld(z, 1))
            if fast and z < 2:
                kvp(2 * z)
            if z == 2:
                emit(a, tailfill)
            a(SPACE)
            a(ms[4])
            if not last:
                emit(a, h_ld(z, 0))
            if fast and z == 0:
                kvp(1)
            if fast and z == 1:
                lab = a.label('fk3')
                a(f's_cmp_ge_u32 s26, 2\ns_cbranch_scc1 {lab}')
                kvp(3)
                a(f'''
                {lab}:
                {KVADV}
                s_add_u32 s37, s37, {CH_BYTES}
                s_cmp_eq_u32 s37, {CH_BYTES * NST}
                s_cselect_b32 s37, 0, s37
                ''')
        a('s_setprio 3' if BP else '')
        a('s_add_u32 s40, s40, s33\ns_sub_u32 s33, 0, s33')

    NSTAT = int(ENV.get('NSTAT', '4'))
    for c in range(NSTAT):
        a.c(f'aux B{c}')
        a(f's_waitcnt vmcnt({vm.wait(f"kv{c + 1}")})')
        bstamp(a, c == 0)
        a('s_barrier')
        bstamp(a)
        if c == 2:
            lab = a.label('noxc')
            a(f'''
            s_cmp_lg_u32 s26, 3
            s_cbranch_scc1 {lab}
            s_getreg_b32 s45, hwreg(HW_REG_XCC_ID, 0, 4)
            s_lshl_b32 s46, s29, 7
            s_add_u32 s46, s46, {F_X}
            v_and_b32 {v(T)}, 7, {v(vL)}
            v_lshlrev_b32 {v(T)}, 3, {v(T)}
            buffer_load_dwordx2 {v(T + 4, 2)}, {v(T)}, s[20:23], s46 offen sc1
            s_mov_b32 s44, s98
            s_waitcnt vmcnt(0)
            v_cmp_eq_u64 vcc, s[44:45], {v(T + 4, 2)}
            v_mov_b32 {v(T)}, {SX_A}
            s_nop 0
            s_cmp_eq_u64 vcc, -1
            s_cselect_b32 s44, s98, 0
            v_mov_b32 {v(T + 1)}, s44
            ds_write_b32 {v(T)}, {v(T + 1)}
            s_waitcnt lgkmcnt(0)
            {lab}:
            ''')
        if KVP and c == 0:
            kv_dma(2)
        kv_dma(c + 3)
        if WDC <= c < WDC + 2:
            for k in range(3 * (c - WDC), 3 * (c - WDC) + 3):
                emit(a, w_dma('s39', 3072 * k))
            vm.add('w', 9)
        paced()
    def wo_switch():
        L_nsw = a.label('dnsw')
        a(f"""
        s_cmp_lg_u32 s35, 8
        s_cbranch_scc1 {L_nsw}
        s_mov_b32 s12, s16
        s_mov_b32 s13, s17
        s_mov_b32 s14, 819200
        s_mov_b32 s43, s56
        s_mov_b32 s52, 25600
        s_mov_b32 s48, 51200
        s_mov_b32 s45, 0x15556
        """)
        for p in range(3):
            a(f"""
            v_add_u32 {v(T)}, {64 * p}, {v(vL)}
            v_mul_lo_u32 {v(T + 1)}, {v(T)}, s45
            v_lshrrev_b32 {v(T + 1)}, 23, {v(T + 1)}
            v_mul_u32_u24 {v(T + 1)}, {8 * 1280}, {v(T + 1)}
            v_sub_u32 {v(vWD + p)}, {v(vWD + p)}, {v(T + 1)}
            """)
        a(f"""
    {L_nsw}:
        """)

    def pace_switch():
        lab = a.label('npsw')
        a(f'''
        s_cmp_lg_u32 s35, {10 - NSTAT}
        s_cbranch_scc1 {lab}
        s_mov_b32 s4, s16
        s_mov_b32 s5, s17
        s_mov_b32 s6, 819200
        s_lshr_b32 s44, s2, 3
        s_lshl_b32 s44, s44, 2
        s_add_u32 s44, s44, s26
        s_mul_i32 s32, s44, {50 * 128}
        s_mov_b32 s31, {13 * 128}
        {lab}:
        ''')

    L_top, L_nb, L_sw, L_end2 = a.label('dtop'), a.label('dnb'), a.label('dsw'), a.label('dend')
    L_act, L_bar, L_nokv = a.label('dact'), a.label('dbar'), a.label('dnokv')
    L_s0, L_body, L_last, L_wo, L_next = a.label('ds0'), a.label('dbody'), a.label('dlast'), a.label('dwo'), a.label('dnext')
    L_w0 = a.label('dw0')
    L_f1 = a.label('df1')
    L_f2 = a.label('df2')
    L_fast = a.label('dfast')
    L_w2 = a.label('dw2')
    L_b12 = a.label('db12')
    L_bd = a.label('dbd')
    L_np = a.label('dnp')
    L_p3 = a.label('dp3')
    L_k3 = a.label('dk3')
    L_w1 = a.label('dw1')
    L_n1 = a.label('dn1')
    L_oth, L_start, L_rei, L_nsw = a.label('doth'), a.label('dstart'), a.label('drei'), a.label('dnsw')
    a(f"""
    s_mov_b32 s34, {16 - NSTAT}
    s_mov_b32 s35, 0
    s_mov_b32 s37, {((NSTAT + 3) % NST) * CH_BYTES}
    s_mov_b32 s33, 9216
    s_mov_b32 s93, {POLL_MAX}
    v_mov_b32 {v(T + 3)}, {RDY_A + 4}
    {L_top}:
    s_sub_u32 s44, s35, 2
    s_cmp_lt_u32 s44, {7 if FAST else 0}
    s_cselect_b32 s45, s34, 0
    s_cmp_gt_u32 s45, 3
    s_cbranch_scc1 {L_fast}
    s_cmp_lt_u32 s44, 8
    s_cbranch_scc1 {L_act}
    s_cmp_eq_u32 s35, 11
    s_cbranch_scc1 {L_w2}
    s_cmp_gt_u32 s35, 1
    s_cbranch_scc1 {L_w0}
    s_cmp_le_u32 s34, 3
    s_cbranch_scc1 {L_w0}
    s_cmp_eq_u32 s35, 1
    s_cbranch_scc1 {L_w1}
    s_waitcnt vmcnt(3)
    s_branch {L_bar}
    {L_w1}:
    s_waitcnt vmcnt({9 + HPF * PCH})
    s_branch {L_f1 if FAST else L_bar}
    {L_w2}:
    s_waitcnt vmcnt(12)
    s_mov_b32 s35, 12
    s_branch {L_bar}
    {L_w0}:
    s_waitcnt vmcnt(0)
    s_branch {L_bar}
    {L_act}:
    s_waitcnt vmcnt({15 + PCW + PCH})
    {L_bar}:
    s_cmp_eq_u32 s34, 0
    s_cbranch_scc1 {L_nb}
    """)
    bstamp(a)
    a('s_barrier')
    bstamp(a)
    a(f"""
    s_cmp_lg_u32 s35, 0
    s_cbranch_scc1 {L_np}
    s_cmp_lg_u32 s26, 3
    s_cbranch_scc1 {L_np}
    buffer_load_dwordx2 {v(T + 4, 2)}, {v(vPF)}, s[20:23], s53 offen sc1
    {L_np}:
    s_cmp_le_u32 s34, 3
    s_cbranch_scc1 {L_nokv}
    s_add_u32 s44, s36, s37
    s_cmp_ge_u32 s26, 2
    s_cbranch_scc1 {L_k3}
    """)
    for e in (3, 0, 1, 2):
        a(f"""
        s_add_u32 m0, s44, {KVR + e * 1024}
        s_add_u32 s45, s38, {e * 1024}
        buffer_load_dwordx4 {v(vKO)}, s[20:23], s45 offen lds
        """)
        if e == 3:
            a(f'{L_k3}:')
    a(f"""
    {KVADV}
    s_add_u32 s37, s37, {CH_BYTES}
    s_cmp_eq_u32 s37, {CH_BYTES * NST}
    s_cselect_b32 s37, 0, s37
    {L_nokv}:
    s_sub_u32 s34, s34, 1
    s_branch {L_sw}
    {L_nb}:
    s_cmp_ge_u32 s35, 11
    s_cbranch_scc1 {L_end2}
    {L_sw}:
    s_cmp_eq_u32 s35, 0
    s_cbranch_scc1 {L_s0}
    s_cmp_lt_u32 s35, 9
    s_cbranch_scc1 {L_body}
    s_cmp_eq_u32 s35, 9
    s_cbranch_scc1 {L_last}
    s_cmp_eq_u32 s35, 10
    s_cbranch_scc1 {L_wo}
    s_branch {L_top}
    {L_s0}:
    s_sub_u32 s93, s93, 1
    s_cbranch_scc1 {L_start}
    s_cmp_lg_u32 s26, 3
    s_cbranch_scc1 {L_oth}
    s_cmp_ge_u32 s34, 3
    s_cbranch_scc1 {L_p3}
    buffer_load_dwordx2 {v(T + 4, 2)}, {v(vPF)}, s[20:23], s53 offen sc1
    s_waitcnt vmcnt(0)
    {L_p3}:
    s_waitcnt vmcnt(3)
    v_cmp_eq_u64 vcc, s[98:99], {v(T + 4, 2)}
    s_lshl_b32 s45, s34, 1
    s_nop 0
    s_cmp_eq_u64 vcc, -1
    s_cselect_b32 s44, s98, s45
    v_mov_b32 {v(T + 2)}, s44
    ds_write_b32 {v(T + 3)}, {v(T + 2)}
    s_cbranch_scc1 {L_start}
    s_branch {L_top}
    {L_oth}:
    s_mov_b32 s45, 40
    {L_rei}:
    s_sleep 1
    ds_read_b32 {v(T + 2)}, {v(T + 3)}
    s_waitcnt lgkmcnt(0)
    v_readfirstlane_b32 s44, {v(T + 2)}
    s_cmp_eq_u32 s44, s98
    s_cbranch_scc1 {L_start}
    s_lshl_b32 s46, s34, 1
    s_cmp_eq_u32 s44, s46
    s_cbranch_scc1 {L_top}
    s_sub_u32 s45, s45, 1
    s_cbranch_scc0 {L_rei}
    s_branch {L_top}
    {L_start}:
    """)
    stamp(a, 23)
    for k in range(3):
        for e in range(2):
            emit(a, h_ld(k, e))
    for _ in range(HPF):
        paced_h()
    emit(a, w_rd(0, 0))
    a(f"""
    {L_next}:
    s_add_u32 s35, s35, 1
    s_branch {L_top}
    {L_body}:
    s_cmp_lg_u32 s35, 1
    s_cbranch_scc1 {L_n1}
    s_waitcnt vmcnt(0)
    {L_n1}:
    """)
    wo_switch()
    a(f"""
    s_cmp_lt_u32 s34, 3
    s_cbranch_scc1 {L_b12}
    """)
    body(False, 15)
    a(f's_branch {L_bd}\n{L_b12}:')
    body(False, 12)
    a(f'{L_bd}:')
    pace_switch()
    paced_h()
    paced()
    a(f's_branch {L_next}\n{L_last}:')
    body(True)
    a(f's_branch {L_next}\n{L_f1}:')
    bstamp(a)
    a('s_barrier')
    bstamp(a)
    L_ws, L_wsb, L_ps, L_psb = a.label('fws'), a.label('fwsb'), a.label('fps'), a.label('fpsb')
    a(f's_waitcnt vmcnt(0)\ns_branch {L_f2}\n{L_ws}:')
    wo_switch()
    a(f's_branch {L_wsb}\n{L_ps}:')
    pace_switch()
    a(f'''
    s_branch {L_psb}
    {L_fast}:
    s_cmp_eq_u32 s35, 8
    s_cbranch_scc1 {L_ws}
    {L_wsb}:
    ''')
    bstamp(a)
    a('s_barrier')
    bstamp(a)
    a(f'{L_f2}:')
    body(False, fast=True, tailfill=[f's_cmp_eq_u32 s35, {10 - NSTAT}', f's_cbranch_scc1 {L_ps}', f'{L_psb}:',
                                     's_sub_u32 s34, s34, 1', 's_add_u32 s35, s35, 1', 's_cmp_lt_u32 s35, 9',
                                     's_cselect_b32 s46, s34, 0'])
    paced_h()
    paced()
    a(f'''
    s_cmp_gt_u32 s46, 3
    s_cbranch_scc1 {L_fast}
    s_branch {L_top}
    {L_wo}:
    ''')
    stamp(a, 17)
    emit(a, w_rd(1, 3072) + w_rd(2, 6144))
    a('s_mov_b32 s45, 0x15556\ns_waitcnt lgkmcnt(0)')
    emit(a, w_dma('s39', 3072 * 3))
    emit(a, w_dma('s39', 3072 * 4))
    for p in range(3):
        a(f"""
        v_add_u32 {v(T)}, {64 * p}, {v(vL)}
        v_mul_lo_u32 {v(T + 1)}, {v(T)}, s45
        v_bfe_u32 {v(T)}, {v(T + 1)}, 22, 1
        v_lshrrev_b32 {v(T + 1)}, 23, {v(T + 1)}
        v_mul_u32_u24 {v(T)}, {36 * 1280}, {v(T)}
        v_mul_u32_u24 {v(T + 1)}, {12 * 1280}, {v(T + 1)}
        v_add3_u32 {v(vWD + p)}, {v(vWD + p)}, {v(T + 1)}, {v(T)}
        """)
    a(f's_add_u32 s43, s56, {16 * 1280}\ns_mov_b32 s52, {80 * 1280}\ns_mov_b32 s48, {160 * 1280}')
    emit(a, w_dma('s39', 3072 * 5))
    emit(a, w_dma('s39', 3072 * 6))
    a(f's_cmp_lg_u32 s34, 0\ns_cbranch_scc1 {L_next}\n{L_end2}:')
    a(f"""
    v_subrev_u32 {v(vWA)}, 9216, {v(vWA)}
    v_subrev_u32 {v(vWA + 1)}, 9216, {v(vWA + 1)}
    v_subrev_u32 {v(vWA + 2)}, 9216, {v(vWA + 2)}
    s_mul_i32 s44, s26, 14336
    s_add_u32 s44, s44, {OL_A}
    v_add_u32 {v(vKO)}, s44, {v(vHL)}
    v_and_b32 {v(T)}, 7, {v(vR)}
    v_xor_b32 {v(T)}, {v(T)}, {v(vH)}
    v_lshlrev_b32 {v(T + 1)}, 7, {v(vR)}
    v_add_u32 {v(T + 1)}, s39, {v(T + 1)}
    """)
    for jp in range(4):
        a(f"""
        v_xor_b32 {v(T + 2)}, {2 * jp}, {v(T)}
        v_lshl_add_u32 {v(T + 4 + jp)}, {v(T + 2)}, 4, {v(T + 1)}
        """)
    stamp(a, 18)
    a('s_barrier')
    Lp, Lq = a.label('op'), a.label('opd')
    a(f's_mov_b32 s93, {OPOLL_MAX}\n{Lp}:')
    for k in range(27, 30):
        for e in range(2):
            a(f'buffer_load_dwordx4 {v(hreg(k) + 4 * e, 4)}, {v(vHL)}, s[20:23], s{54 + e} offen offset:{1024 * (k - 27)} sc1')
    a('s_waitcnt vmcnt(0)')
    regs = [hreg(k) + i for k in range(27, 30) for i in range(8)]
    a(f'v_max3_u32 {v(T)}, {v(regs[0])}, {v(regs[1])}, {v(regs[2])}')
    for i in range(3, 23, 2):
        a(f'v_max3_u32 {v(T)}, {v(T)}, {v(regs[i])}, {v(regs[i + 1])}')
    a(f"""
    v_max_u32 {v(T)}, {v(T)}, {v(regs[23])}
    v_cmp_eq_u32 vcc, -1, {v(T)}
    s_nop 1
    s_cmp_eq_u64 vcc, 0
    s_cbranch_scc1 {Lq}
    s_sub_u32 s93, s93, 1
    s_cbranch_scc1 {Lq}
    s_sleep {OSLEEP}
    s_branch {Lp}
    {Lq}:
    """)
    stamp(a, 19)

    def o_rd(k):
        return [f'ds_read_b128 {v(hreg(k) + 4 * e, 4)}, {v(vKO)} offset:{(k - 30) * 2048 + 1024 * e}' for e in range(2)]

    for k in range(27, 30):
        emit(a, g_mfmas(k))
        emit(a, w_rd(k + 3, 3072 * (k - 27)))
    if FFL:
        L1, L2 = a.label('fw'), a.label('fd')
        a(f'''
        s_lshl_b32 s44, s26, 3
        s_add_u32 s44, s44, {OW_A}
        v_mov_b32 {v(T)}, s44
        s_mov_b32 s93, {POLL_MAX * 8}
        {L1}:
        ds_read_b64 {v(T + 2, 2)}, {v(T)}
        s_waitcnt lgkmcnt(0)
        v_readfirstlane_b32 s44, {v(T + 2)}
        v_readfirstlane_b32 s45, {v(T + 3)}
        s_xor_b32 s44, s44, s98
        s_xor_b32 s45, s45, s98
        s_or_b32 s44, s44, s45
        s_cbranch_scc0 {L2}
        s_sub_u32 s93, s93, 1
        s_cbranch_scc0 {L1}
        {L2}:
        ''')
    else:
        a('s_waitcnt lgkmcnt(0)')
        a('s_barrier')
    stamp(a, 30)
    for k in range(30, 33):
        emit(a, o_rd(k))
    XO = vWD
    assert XO % 2 == 0 and XO + 8 <= ACC
    for k in range(30, 34):
        a(f's_waitcnt lgkmcnt({ {30: 4, 31: 10, 32: 8, 33: 8}[k] })')
        emit(a, g_mfmas(k))
        emit(a, w_rd(k + 3, 3072 * (k + 3 - 30)) + o_rd(k + 3))
    g2_out(a, XO, vL, 's24', 0)
    a('s_waitcnt lgkmcnt(0)')
    wr = lambda n: [f'ds_write_b128 {v(T + 4 + jp)}, {v(ACC + 16 * n + 4 * jp, 4)} offset:{4096 * n}' for jp in range(4)]
    ms = [g_mfmas(k) for k in range(34, 37)]
    for n in range(5):
        for z in range(3):
            a(ms[z][n])
        if n >= 2:
            a('s_nop 5')
            emit(a, wr(n - 2))
    stamp(a, 20)
    a('s_nop 3')
    emit(a, wr(3))
    a('s_nop 3')
    emit(a, wr(4))
    a('s_waitcnt vmcnt(0) lgkmcnt(0)')
    a('s_barrier')
    stamp(a, 21)
    for i in range(8):
        a(f'v_mov_b32 {v(ACC + i)}, {v(XO + i)}')
    g2_out(a, ACC, vL, 's24', 1)


DESC = """; One persistent launch, 256 workgroups (one per CU), 12 waves each: waves 0-7 compute, waves 8-11 load / second GEMM.
;           split over the WGs and handed over through the workspace; K and V by the load waves; GEGLU epilogue.
;           to a two-pass true-max path.  The load waves stream K/V and run h @ wd meanwhile.
;  tail:    O @ wo, cross-wave reduction, + x, bf16 store.
"""


def build(path):
    hdr = open('parallel_sum__grouped_kv_mqa__geglu_ffn__prompt.s.ref').read().split('; Override launch')[0]
    out = hdr + f'; @launch grid=(256,1,1) block=(768,1,1) lds={LDS_TOTAL}\n' + DESC
    out += '.amdgcn_target "amdgcn-amd-amdhsa--gfx950"\n'
    out += gen()
    out += kernel_desc(KNAME, 168)
    open(path, 'w').write(out)


if __name__ == '__main__':
    import sys
    if len(sys.argv) > 2 and sys.argv[2] == 'stamp':
        asmlib.STAMPS = True
    build(sys.argv[1])
```

```python
from asmlib import *
import asmlib
import math
import os

KNAME = 'parallel_sum__grouped_kv_mqa__geglu_ffn__prompt_kernel'

H_OFF = 0
QF_OFF = 0x700000
KV_OFF = 0xA00000
OF_OFF = 0xB00000
FL_OFF = 0xE00000
F_ST = 0x1200000
F_CS = 0x1220000
F_KV = 0x1240000
F_KC = 0x1248000
F_W2 = 0x1250000
F_X = 0x1258000
F_QH = 0xE80000
ROWW = 0xE10000
CSW = 0xE20000
CSKVW = 0xE60000
W2F = 0xF00000
WS_USED = 0x1260000

LDS_X = 0
LDS_W = 49152
LDS_KV = 147456
CS_A = 16384
PART_A = 32768
VT_A = 32768
ROWC_A = 156672
CSKV_A = 158720
NONCE_A = 160768
RDY_A = 160800
SX_A = 160928
KL_A = 160944
OW_A = 160896
CD_A = 160832
PD_A = 160864
LDS_TOTAL = 163840
CH_BYTES = 14336
NST = 4
KVR = 49152
Q_A = KVR + 3 * CH_BYTES
G2R = KVR + CH_BYTES * NST
G2D = 3
TW_A = G2R
OL_A = KVR
WO_HI = 106496
WOA = 0
RED_A = 0

C0 = -2.0 * math.sqrt(2.0 / math.pi) * math.log2(math.e)
C1 = C0 * 0.044715
QSC = math.log2(math.e) / math.sqrt(20.0)
M_OFFSET = 100.0
POLL_MAX = 400000
NONCE_X = 0x5a5a5a5a

HM = 's[62:63]'
PFWAIT = False
ENV = os.environ
NODOWN = ENV.get('NODOWN')
PRIO2 = int(ENV.get('PRIO2', '3'))
PRIO1 = int(ENV.get('PRIO1', '3'))
SPACE = ENV.get('SPACE', '')
NOPF = not ENV.get('PF')
INV = int(ENV.get('INV', '0'))
NOG2 = ENV.get('NOG2')
PERM_T = int(ENV.get('PT', '0'))
LOWALL = int(ENV.get('LOWALL', '0'))
HE = int(ENV.get('HE', '0'))
TOPW = int(ENV.get('TOPW', '0'))
NOA0 = int(ENV.get('NOA0', '0'))
KVP = int(ENV.get('KVP', '0'))
KSL2 = int(ENV.get('KSL2', '8'))
AST = int(ENV.get('AST', '0'))
ASS = int(ENV.get('ASS', '1'))
ASP = int(ENV.get('ASP', '2'))
APZ = int(ENV.get('APZ', '0'))
FAST = int(ENV.get('FAST', '1'))
BP = int(ENV.get('BP', '15'))
ROT = int(ENV.get('ROT', '0'))
FFL = int(ENV.get('FFL', '0'))
PCW = int(ENV.get('PCW', '1'))
PCH = int(ENV.get('PCH', '0'))
HST = int(ENV.get('HST', '-1'))
ODBL = int(ENV.get('ODBL', '1'))
JX = int(ENV.get('JX', '0'))
QSLEEP = int(ENV.get('QSLEEP', '4'))
KVF = int(ENV.get('KVF', '3'))
OUTSC = {'': '', '1': ' sc1', '2': ' nt', '3': ' sc0 sc1', '4': ' sc1 nt'}[ENV.get('OUTSC', '')]
HPF = int(ENV.get('HPF', '2'))
PERM = int(ENV.get('PERM', '1'))
P1PF = int(ENV.get('P1PF', '0'))
PFC = tuple(int(x) for x in ENV.get('PFC', '2,3,4').split(','))
WDC = int(ENV.get('WDC', '2'))
WOC = int(ENV.get('WOC', '4'))
TWC = int(ENV.get('TWC', '1'))
DPOLL2 = 0
OSLEEP = int(ENV.get('OSLEEP', '3'))
LATE1 = int(ENV.get('LATE1', '1'))
OPOLL_MAX = 200000
LINPF = int(ENV.get('LINPF', '0'))
NOSL = ENV.get('NOSL')
PF0 = int(ENV.get('PF0', '0'))
JIT = int(ENV.get('JIT', '0'))
JITD = int(ENV.get('JITD', '4'))
SLC = int(ENV.get('SLC', '-1'))
SLG = int(ENV.get('SLG', '2'))
SPN = int(ENV.get('SPN', '2'))
PZ0 = int(ENV.get('PZ0', '0'))
P3C = int(ENV.get('P3C', '7'))
EARLY2 = int(ENV.get('EARLY2', '0'))
CWARM = int(ENV.get('CWARM', '1'))
KVSL = int(ENV.get('KVSL', '16'))
HEARLY = ENV.get('HEARLY')
PSLEEP = int(ENV.get('PSLEEP', '2'))
NOPF2 = not ENV.get('PF2')
CV = int(ENV.get('CV', '0'))
NODMA = ENV.get('NODMA')
IST = ENV.get('IST')
LD = ' sc1' if ENV.get('SC1LD') else ''
FEWST = ENV.get('FEWST')
IST_LIST = tuple(int(x) for x in os.environ.get('ISTL', '1,2,6,7').split(','))
HFLAG_T = int(os.environ.get('HFT', '6'))
G2_START = int(os.environ.get('G2S', '6'))
G2_END = int(os.environ.get('G2E', '15'))


class VM:
    def __init__(self):
        self.ops = []

    def add(self, tag, n=1, optional=False):
        for _ in range(n):
            self.ops.append((tag, optional))

    def wait(self, tag):
        idx = max(i for i, (t, o) in enumerate(self.ops) if t == tag)
        n = sum(1 for t, o in self.ops[idx + 1:] if not o)
        assert n <= 63, n
        return n

    def drain(self):
        self.ops = []


def emit(a, bundles):
    for b in bundles:
        a(b if isinstance(b, str) else '\n'.join(b))


def flag_store(a, soff_reg, vt):
    a(f'''
    v_mov_b32 {v(vt)}, s98
    v_mov_b32 {v(vt + 1)}, s99
    s_mov_b64 exec, 1
    buffer_store_dwordx2 {v(vt, 2)}, off, s[20:23], {soff_reg} sc1
    s_mov_b64 exec, -1
    ''')


def poll(a, vt, voff, soff_reg, wide=False, ignore=None, inv=True, sleep=None):
    L = a.label('poll')
    Ld = a.label('polld')
    a(f's_mov_b32 s93, {POLL_MAX}')
    a(f'{L}:')
    if wide:
        a(f'''
        buffer_load_dwordx4 {v(vt, 4)}, {v(voff)}, s[20:23], {soff_reg} offen sc1
        s_waitcnt vmcnt(0)
        v_cmp_eq_u64 vcc, s[98:99], {v(vt, 2)}
        v_cmp_eq_u64 s[46:47], s[98:99], {v(vt + 2, 2)}
        s_nop 1
        s_and_b64 vcc, vcc, s[46:47]
        ''')
    else:
        a(f'''
        buffer_load_dwordx2 {v(vt, 2)}, {v(voff)}, s[20:23], {soff_reg} offen sc1
        s_waitcnt vmcnt(0)
        v_cmp_eq_u64 vcc, s[98:99], {v(vt, 2)}
        s_nop 1
        ''')
    if ignore:
        a(f's_or_b64 vcc, vcc, {ignore}')
    a(f'''
    s_cmp_eq_u64 vcc, -1
    s_cbranch_scc1 {Ld}
    s_sub_u32 s93, s93, 1
    s_cbranch_scc1 {Ld}
    s_sleep {sleep or PSLEEP}
    s_branch {L}
    {Ld}:
    ''')
    if inv and INV:
        a('buffer_inv sc1\ns_waitcnt vmcnt(0)')


def polln(a, vt, voff, rows, sleep):
    L = a.label('poll')
    Ld = a.label('polld')
    a(f's_mov_b32 s93, {POLL_MAX}\n{L}:')
    for q, (so, ig) in enumerate(rows):
        a(f'buffer_load_dwordx2 {v(vt + 2 * q, 2)}, {v(voff[q] if isinstance(voff, list) else voff)}, s[20:23], {so} offen sc1')
    a('s_waitcnt vmcnt(0)')
    dst = ['vcc', 's[46:47]', 's[48:49]']
    for q in range(len(rows)):
        a(f'v_cmp_eq_u64 {dst[q]}, s[98:99], {v(vt + 2 * q, 2)}')
    a('s_nop 1')
    for q, (so, ig) in enumerate(rows):
        if ig:
            a(f's_or_b64 {dst[q]}, {dst[q]}, {ig}')
        if q:
            a(f's_and_b64 vcc, vcc, {dst[q]}')
    a(f'''
    s_cmp_eq_u64 vcc, -1
    s_cbranch_scc1 {Ld}
    s_sub_u32 s93, s93, 1
    s_cbranch_scc1 {Ld}
    s_sleep {sleep}
    s_branch {L}
    {Ld}:
    ''')


def one_poller(a, vt, word, body, who=3):
    Lw, Ld, Ls = a.label('opw'), a.label('opd'), a.label('ops')
    a(f'''
    v_mov_b32 {v(vt + 3)}, {RDY_A + 4 * word}
    s_cmp_lg_u32 s26, {who}
    s_cbranch_scc1 {Lw}
    ''')
    body()
    a(f'''
    v_mov_b32 {v(vt + 2)}, s98
    ds_write_b32 {v(vt + 3)}, {v(vt + 2)}
    s_branch {Ld}
    {Lw}:
    s_mov_b32 s93, {POLL_MAX * 8}
    {Ls}:
    ds_read_b32 {v(vt + 2)}, {v(vt + 3)}
    s_waitcnt lgkmcnt(0)
    v_readfirstlane_b32 s46, {v(vt + 2)}
    s_cmp_eq_u32 s46, s98
    s_cbranch_scc1 {Ld}
    s_sub_u32 s93, s93, 1
    s_cbranch_scc1 {Ld}
    s_sleep 1
    s_branch {Ls}
    {Ld}:
    ''')


def bstamp(a, first=False):
    if not (asmlib.STAMPS and ENV.get('BST')):
        return
    if first:
        a('s_add_u32 s101, s92, 0xC0000')
    a('''
    s_memrealtime s[94:95]
    s_memtime s[96:97]
    s_waitcnt lgkmcnt(0)
    v_mov_b32 v166, s94
    v_mov_b32 v167, s96
    buffer_store_dwordx2 v[166:167], off, s[88:91], s101
    s_add_u32 s101, s101, 8
    ''')


def srd(a, base, ptr, size):
    a(f'''
    s_mov_b32 s{base}, s{ptr}
    s_mov_b32 s{base + 1}, s{ptr + 1}
    s_mov_b32 s{base + 2}, {size}
    s_mov_b32 s{base + 3}, 0x20000
    ''')


def w_source(a):
    a('''
    s_and_b32 s44, s26, 1
    s_and_b32 s51, s44, s48
    s_lshr_b32 s45, s26, 1
    s_lshl_b32 s46, s44, 6
    s_add_u32 s46, s46, s49
    s_cmp_eq_u32 s48, 1
    s_cselect_b32 s46, s49, s46
    s_lshl_b32 s47, s45, 6
    s_add_u32 s47, s47, s50
    s_cmp_eq_u32 s51, 1
    s_cselect_b32 s52, s47, s46
    s_lshl_b32 s52, s52, 1
    s_cmp_eq_u32 s45, 1
    s_cselect_b32 s12, s82, s80
    s_cselect_b32 s13, s83, s81
    s_mov_b32 s14, 2211840
    s_mov_b32 s53, 3456
    s_cmp_eq_u32 s51, 1
    s_cselect_b32 s12, s70, s12
    s_cselect_b32 s13, s71, s13
    s_cselect_b32 s14, 819200, s14
    s_cselect_b32 s53, 1280, s53
    s_mov_b32 s15, 0x20000
    ''')


def tile_offs(t):
    p, o = t >> 1, t & 1
    b = p * 7168
    return b + o * 1024, b + 2048, b + 3072 + o * 2048, b + 4096 + o * 2048


PERMC = f'''
    s_bfe_u32 s44, s2, 0x30003
    s_lshr_b32 s45, s2, 6
    s_add_u32 s44, s44, s45
    s_and_b32 s100, s44, {PERM}
    s_xor_b32 s45, s100, 1
'''
ROTC = '''
    s_add_u32 s100, s27, s28
    s_mul_i32 s44, s100, 26
    s_lshr_b32 s44, s44, 8
    s_mul_i32 s44, s44, 10
    s_sub_u32 s100, s100, s44
    s_add_u32 s45, s100, 1
    s_cmp_eq_u32 s45, 10
    s_cselect_b32 s45, 0, s45
'''


def stat_code(vL, vH, vR, CR, XR, A8, U, W4, SCS, SST):
    u0, u1, u2, u3, u4, u5 = range(U, U + 6)

    def lines(txt):
        return [x.strip() for x in txt.split(chr(10)) if x.strip()]

    def load_cs():
        f = lines(f'''
        s_mul_i32 s44, s27, 40
        v_lshrrev_b32 {v(u4)}, 3, {v(vL)}
        v_add_u32 {v(u4)}, s44, {v(u4)}
        v_mul_lo_u32 {v(u5)}, {v(u4)}, s53
        v_and_b32 {v(u4)}, 7, {v(vL)}
        v_lshl_add_u32 {v(u5)}, {v(u4)}, 4, {v(u5)}
        s_mov_b32 s47, s52
        ''')
        for t in range(5):
            f.append([f'buffer_load_dwordx4 {v(CR + 4 * t, 4)}, {v(u5)}, s[12:15], s47 offen', 's_add_u32 s47, s47, s31'])
        return f

    def load_rows():
        f = lines(f'''
        s_lshl_b32 s44, s27, 7
        s_lshl_b32 s45, s28, 3
        s_add_u32 s44, s44, s45
        s_lshl_b32 s45, s26, 1
        s_add_u32 s55, s44, s45
        v_add_u32 {v(u0)}, s55, {v(vH)}
        v_mul_u32_u24 {v(u0)}, 1280, {v(u0)}
        v_lshl_add_u32 {v(u0)}, {v(vR)}, 3, {v(u0)}
        ''')
        for t in range(5):
            f.append(f'buffer_load_dwordx2 {v(XR + 2 * t, 2)}, {v(u0)}, s[8:11], 0 offen offset:{256 * t}')
        return f

    def fill_cs():
        f = []
        for q in range(4):
            f += [f'v_lshlrev_b32 {v(A8 + 2 * q)}, 16, {v(CR + q)}', f'v_and_b32 {v(A8 + 2 * q + 1)}, 0xffff0000, {v(CR + q)}']
        for t in range(1, 5):
            for q in range(4):
                ta, tb = (u2, u3) if q & 1 else (u4, u5)
                f += lines(f'''
                v_lshlrev_b32 {v(ta)}, 16, {v(CR + 4 * t + q)}
                v_and_b32 {v(tb)}, 0xffff0000, {v(CR + 4 * t + q)}
                v_add_f32 {v(A8 + 2 * q)}, {v(A8 + 2 * q)}, {v(ta)}
                v_add_f32 {v(A8 + 2 * q + 1)}, {v(A8 + 2 * q + 1)}, {v(tb)}
                ''')
        f.append('s_nop 1')
        f += [f'v_permlane32_swap_b32 {v(A8 + q)}, {v(A8 + 4 + q)}' for q in range(4)]
        f.append('s_nop 1')
        f += [f'v_add_f32 {v(A8 + q)}, {v(A8 + q)}, {v(A8 + 4 + q)}' for q in range(4)]
        f.append('s_nop 1')
        f += [f'v_permlane16_swap_b32 {v(A8 + q)}, {v(A8 + 2 + q)}' for q in range(2)]
        f.append('s_nop 1')
        f += [f'v_add_f32 {v(A8 + q)}, {v(A8 + q)}, {v(A8 + 2 + q)}' for q in range(2)]
        f += lines(f'''
        s_nop 1
        v_add_f32_dpp {v(A8)}, {v(A8)}, {v(A8)} row_ror:8 row_mask:0xf bank_mask:0xf
        v_add_f32_dpp {v(A8 + 1)}, {v(A8 + 1)}, {v(A8 + 1)} row_ror:8 row_mask:0xf bank_mask:0xf
        s_mov_b32 vcc_lo, 0xff00ff00
        s_mov_b32 vcc_hi, 0xff00ff00
        v_cndmask_b32 {v(u0)}, {v(A8)}, {v(A8 + 1)}, vcc
        v_cvt_pk_bf16_f32 {v(u1)}, {v(u0)}, {v(u0)}
        v_and_b32 {v(u1)}, 0xffff0000, {v(u1)}
        v_sub_f32 {v(u1)}, {v(u0)}, {v(u1)}
        v_cvt_pk_bf16_f32 {v(u0)}, {v(u0)}, {v(u1)}
        v_and_b32 {v(u1)}, 7, {v(vL)}
        v_lshl_add_u32 {v(u1)}, {v(u1)}, 1, {v(vH)}
        v_bfe_u32 {v(u2)}, {v(vL)}, 4, 1
        v_lshl_add_u32 {v(u1)}, {v(u1)}, 1, {v(u2)}
        v_bfe_u32 {v(u2)}, {v(vL)}, 3, 1
        v_lshl_add_u32 {v(u1)}, {v(u1)}, 1, {v(u2)}
        v_and_b32 {v(u2)}, 15, {v(u1)}
        v_lshrrev_b32 {v(u3)}, 4, {v(u1)}
        s_and_b32 s44, s26, 1
        s_andn2_b32 s44, s44, s48
        s_lshl_b32 s44, s44, 7
        s_lshr_b32 s45, s26, 1
        s_lshl_b32 s45, s45, 4
        s_add_u32 s44, s44, s45
        v_lshl_add_u32 {v(u4)}, {v(u3)}, 5, s44
        s_add_u32 s44, s26, 3
        s_lshl_b32 s44, s44, 5
        v_lshl_add_u32 {v(u5)}, {v(u3)}, 4, s44
        s_cmp_eq_u32 s51, 1
        s_cselect_b64 vcc, -1, 0
        v_cndmask_b32 {v(u4)}, {v(u4)}, {v(u5)}, vcc
        v_add_lshl_u32 {v(u2)}, {v(u2)}, {v(u4)}, 2
        s_lshl_b32 s44, s28, 14
        s_lshl_b32 s45, s27, 10
        s_add_u32 s44, s44, s45
        s_add_u32 s44, s44, {CSW}
        buffer_store_dword {v(u0)}, {v(u2)}, s[20:23], s44 offen sc1
        s_lshl_b32 s46, s27, 2
        s_add_u32 s46, s46, s26
        s_lshl_b32 s46, s46, 7
        s_lshl_b32 s45, s28, 13
        s_add_u32 s46, s46, s45
        s_add_u32 {SCS}, s46, {F_CS}
        ''')
        return f

    def fill_rows():
        f = [f'v_mov_b32 {v(u0)}, 0', f'v_mov_b32 {v(u1)}, 0']
        for t in range(10):
            f += lines(f'''
            v_lshlrev_b32 {v(u2)}, 16, {v(XR + t)}
            v_and_b32 {v(u3)}, 0xffff0000, {v(XR + t)}
            v_add_f32 {v(u0)}, {v(u0)}, {v(u2)}
            v_fmac_f32 {v(u1)}, {v(u2)}, {v(u2)}
            v_add_f32 {v(u0)}, {v(u0)}, {v(u3)}
            v_fmac_f32 {v(u1)}, {v(u3)}, {v(u3)}
            ''')
        for ror in (8, 4, 2, 1):
            f += lines(f'''
            s_nop 1
            v_add_f32_dpp {v(u0)}, {v(u0)}, {v(u0)} row_ror:{ror} row_mask:0xf bank_mask:0xf
            v_add_f32_dpp {v(u1)}, {v(u1)}, {v(u1)} row_ror:{ror} row_mask:0xf bank_mask:0xf
            ''')
        f += lines(f'''
        v_mov_b32 {v(u2)}, {v(u0)}
        v_mov_b32 {v(u3)}, {v(u1)}
        s_nop 1
        v_permlane16_swap_b32 {v(u0)}, {v(u2)}
        v_permlane16_swap_b32 {v(u1)}, {v(u3)}
        s_mov_b32 s44, {f2u(1.0 / 640.0)}
        s_mov_b32 s45, {f2u(1e-5)}
        v_add_f32 {v(u0)}, {v(u0)}, {v(u2)}
        v_add_f32 {v(u1)}, {v(u1)}, {v(u3)}
        v_mul_f32 {v(u0)}, s44, {v(u0)}
        v_mul_f32 {v(u1)}, s44, {v(u1)}
        v_fma_f32 {v(u1)}, -{v(u0)}, {v(u0)}, {v(u1)}
        v_max_f32 {v(u1)}, 0, {v(u1)}
        v_cvt_pk_bf16_f32 {v(W4)}, -{v(u0)}, -{v(u0)}
        v_cvt_pk_bf16_f32 {v(u1)}, {v(u1)}, {v(u1)}
        v_and_b32 {v(u1)}, 0xffff0000, {v(u1)}
        v_add_f32 {v(u1)}, s45, {v(u1)}
        v_cvt_pk_bf16_f32 {v(u1)}, {v(u1)}, {v(u1)}
        v_and_b32 {v(u1)}, 0xffff0000, {v(u1)}
        v_sqrt_f32 {v(u1)}, {v(u1)}
        v_mov_b32 {v(W4 + 3)}, 0
        v_cvt_pk_bf16_f32 {v(u1)}, {v(u1)}, {v(u1)}
        v_and_b32 {v(u1)}, 0xffff0000, {v(u1)}
        v_rcp_f32 {v(W4 + 1)}, {v(u1)}
        v_mul_f32 {v(W4 + 2)}, {v(u1)}, {v(u1)}
        v_lshlrev_b32 {v(u2)}, 4, {v(vH)}
        s_lshl_b32 s44, s55, 4
        s_add_u32 s44, s44, {ROWW}
        ''')
        f.append(['s_mov_b32 exec_lo, 1', 's_mov_b32 exec_hi, 1',
                  f'buffer_store_dwordx4 {v(W4, 4)}, {v(u2)}, s[20:23], s44 offen sc1', 's_mov_b64 exec, -1'])
        f += lines(f'''
        s_lshl_b32 s44, s28, 2
        s_add_u32 s44, s44, s26
        s_lshl_b32 s44, s44, 7
        s_lshl_b32 s45, s27, 13
        s_add_u32 s44, s44, s45
        s_add_u32 {SST}, s44, {F_ST}
        ''')
        return f

    return lines, load_cs, load_rows, fill_cs, fill_rows


def gen():
    a = Asm()
    a(kernel_head(KNAME))
    stamp_early(a)
    if TOPW:
        a(f'''
        s_getpc_b64 s[4:5]
        v_cmp_gt_u32 vcc, {TOPW}, v0
        v_lshlrev_b32 v4, 7, v0
        s_and_saveexec_b64 s[6:7], vcc
        s_cbranch_execz L_topw
        global_load_dword v164, v4, s[4:5] offset:64
        L_topw:
        s_mov_b64 exec, s[6:7]
        ''')
    vL, vH, vR = 1, 2, 3
    L_end = a.label('end')
    L_aux = a.label('aux')
    a(f'''
    s_cmp_ge_u32 s2, 256
    s_cbranch_scc1 {L_end}
    s_load_dwordx8 s[68:75], s[0:1], 0
    s_load_dwordx4 s[80:83], s[0:1], 48
    s_load_dwordx4 s[76:79], s[0:1], 80
    s_load_dwordx2 s[84:85], s[0:1], 32
    s_load_dwordx4 s[88:91], s[0:1], 64
    v_lshrrev_b32 v4, 6, v0
    v_and_b32 {v(vL)}, 63, v0
    v_readfirstlane_b32 s24, v4
    v_lshrrev_b32 {v(vH)}, 5, {v(vL)}
    v_and_b32 {v(vR)}, 31, {v(vL)}
    ''')
    if CWARM:
        Lw, Lp = a.label('nowarm'), a.label('pc')
        a(f'''
        s_cmp_lg_u32 s24, 11
        s_cbranch_scc1 {Lw}
        s_getpc_b64 s[4:5]
        {Lp}:
        s_bfe_u32 s44, s2, 0x30003
        s_lshl_b32 s44, s44, 13
        v_lshl_add_u32 v4, {v(vL)}, 7, s44
        v_min_u32 v4, {L_end}-{Lp}, v4
        global_load_dword v165, v4, s[4:5]
        {Lw}:
        ''')
    vXD, vWD, vKD = 20, 22, 24
    t0, t1, t2, t3, t4 = 4, 5, 6, 7, 8
    a(f'''
    s_bfe_u32 s27, s2, 0x30003
    s_and_b32 s46, s2, 1
    s_lshl_b32 s46, s46, 3
    s_add_u32 s27, s27, s46
    s_bfe_u32 s46, s2, 0x20001
    s_xor_b32 s46, s46, {JX}
    s_lshl_b32 s46, s46, 2
    s_lshr_b32 s47, s2, 6
    s_add_u32 s28, s46, s47
    s_cmp_ge_u32 s28, 11
    s_cselect_b32 s48, 1, 0
    s_sub_u32 s44, s28, 11
    s_lshl_b32 s45, s44, 6
    s_add_u32 s45, s45, 1408
    s_lshl_b32 s46, s28, 7
    s_lshl_b32 s50, s44, 7
    s_cmp_eq_u32 s48, 1
    s_cselect_b32 s49, s45, s46
    s_and_b32 s25, s24, 1
    s_lshr_b32 s26, s24, 1
    s_sub_u32 s44, s24, 8
    s_cmp_ge_u32 s24, 8
    s_cselect_b32 s26, s44, s26
    s_and_b32 s44, s26, 1
    s_and_b32 s51, s44, s48
    s_lshr_b32 s43, s26, 1
    s_andn2_b32 s46, s44, s48
    s_lshl_b32 s46, s46, 6
    s_add_u32 s46, s46, s49
    s_lshl_b32 s47, s43, 6
    s_add_u32 s47, s47, s50
    s_mov_b32 s53, 3456
    s_cmp_eq_u32 s51, 1
    s_cselect_b32 s52, s47, s46
    s_cselect_b32 s53, 1280, s53
    s_lshl_b32 s52, s52, 1
    s_lshl_b32 s31, s53, 3
    s_lshl_b32 s32, s53, 6
    v_lshrrev_b32 {v(t0)}, 3, {v(vL)}
    v_and_b32 {v(t1)}, 7, {v(vL)}
    s_lshl_b32 s44, s27, 7
    s_lshl_b32 s45, s26, 5
    s_add_u32 s44, s44, s45
    v_add_u32 {v(t2)}, s44, {v(t0)}
    v_mul_u32_u24 {v(t2)}, 1280, {v(t2)}
    v_lshrrev_b32 {v(t3)}, 1, {v(t0)}
    v_xor_b32 {v(t3)}, {v(t3)}, {v(t1)}
    v_lshl_add_u32 {v(vXD)}, {v(t3)}, 4, {v(t2)}
    v_xor_b32 {v(t3)}, 4, {v(t3)}
    v_lshl_add_u32 {v(vXD + 1)}, {v(t3)}, 4, {v(t2)}
    v_add_u32 {v(vXD + 1)}, {8 * 1280}, {v(vXD + 1)}
    v_mul_lo_u32 {v(t2)}, {v(t0)}, s53
    v_lshrrev_b32 {v(t3)}, 1, {v(t1)}
    v_and_b32 {v(t4)}, 2, {v(t0)}
    v_xor_b32 {v(t3)}, {v(t3)}, {v(t4)}
    v_and_b32 {v(t4)}, 1, {v(t1)}
    v_lshl_add_u32 {v(t2)}, {v(t4)}, 4, {v(t2)}
    v_add_u32 {v(t2)}, s52, {v(t2)}
    v_lshl_add_u32 {v(vWD)}, {v(t3)}, 5, {v(t2)}
    v_xor_b32 {v(t3)}, 1, {v(t3)}
    v_lshl_add_u32 {v(vWD + 1)}, {v(t3)}, 5, {v(t2)}
    s_lshl_b32 s36, s26, 12
    s_mul_i32 s37, s26, 24576
    s_add_u32 s37, s37, {LDS_W}
    s_lshl_b32 s33, s53, 5
    s_mul_i32 s33, s33, s25
    s_lshl_b32 s44, s25, 12
    s_add_u32 s35, s37, s44
    {ROTC if ROT else PERMC}
    s_mul_i32 s38, s100, s32
    s_mul_i32 s39, s45, s32
    s_mov_b32 s10, 2621440
    s_mov_b32 s11, 0x20000
    s_mov_b32 s14, 2211840
    s_mov_b32 s15, 0x20000
    s_cmp_ge_u32 s24, 8
    s_cbranch_scc1 {L_aux}
    s_cmp_eq_u32 s43, 1
    s_waitcnt lgkmcnt(0)
    s_cselect_b32 s12, s82, s80
    s_cselect_b32 s13, s83, s81
    s_cmp_eq_u32 s51, 1
    s_cselect_b32 s12, s70, s12
    s_cselect_b32 s13, s71, s13
    s_cselect_b32 s14, 819200, s14
    ''')
    def c_start(c):
        for e in range(4):
            a(f'''
            s_add_u32 m0, s35, {c * 8192 + e * 1024}
            s_add_u32 s34, s33, s{38 + c}
            buffer_load_dwordx4 {v(vWD + (e & 1))}, s[12:15], s34 offen lds
            ''')
            if e < 3:
                a('s_add_u32 s33, s33, s31')
            elif c == 0:
                a('s_mul_i32 s44, s31, 3\ns_sub_u32 s33, s33, s44')
    c_start(0)
    if not LATE1:
        c_start(1)
    L_com = a.label('common')
    a(f'''
    s_mov_b32 s8, s68
    s_mov_b32 s9, s69
    s_mov_b32 s16, s72
    s_mov_b32 s17, s73
    s_mov_b32 s18, 25600
    s_mov_b32 s19, 0x20000
    v_mov_b32 {v(vKD)}, 0
    s_branch {L_com}
    {L_aux}:
    s_setprio {PRIO1}
    s_cmp_lt_u32 s28, 8
    s_cselect_b32 s54, 1, 0
    s_cmp_lt_u32 s26, 3
    s_cselect_b32 s40, s54, 0
    s_lshl_b32 s44, s26, 10
    s_add_u32 s38, s44, {LDS_KV}
    v_lshl_add_u32 {v(vKD)}, {v(vL)}, 4, s44
    s_mov_b32 s18, 25600
    s_mov_b32 s19, 0x20000
    s_lshl_b32 s46, s100, 7
    s_lshl_b32 s57, s45, 7
    s_mul_i32 s58, s100, 2560
    s_mul_i32 s59, s45, 2560
    s_bitcmp1_b32 s28, 2
    s_waitcnt lgkmcnt(0)
    s_mov_b32 s8, s68
    s_mov_b32 s9, s69
    s_cselect_b32 s16, s74, s72
    s_cselect_b32 s17, s75, s73
    ''')
    def a_start(c):
        for e in range(4):
            a(f'''
            s_add_u32 m0, s36, {LDS_X + c * 16384 + e * 1024}
            s_add_u32 s34, s{(46, 57)[c]}, {(e >> 1) * 16 * 1280}
            buffer_load_dwordx4 {v(vXD + (e & 1))}, s[8:11], s34 offen lds
            ''')
        lab = a.label('nokv')
        a(f'''
        s_cmp_eq_u32 s40, 0
        s_cbranch_scc1 {lab}
        s_add_u32 m0, s38, {c * 3072}
        s_nop 0
        buffer_load_dwordx4 {v(vKD)}, s[16:19], s{58 + c} offen lds
        {lab}:
        ''')
    a_start(0)
    if not LATE1:
        a_start(1)
    a(f'''
    s_cmp_eq_u32 s43, 1
    s_cselect_b32 s12, s82, s80
    s_cselect_b32 s13, s83, s81
    s_cmp_eq_u32 s51, 1
    s_cselect_b32 s12, s70, s12
    s_cselect_b32 s13, s71, s13
    s_cselect_b32 s14, 819200, s14
    {L_com}:
    s_mov_b32 s62, 0
    s_mov_b32 s63, -1
    s_and_b32 s44, s2, 7
    s_lshl_b32 s44, s44, 2
    s_bfe_u32 s46, s2, 0x20003
    s_add_u32 s29, s44, s46
    s_lshr_b32 s30, s2, 5
    ''')
    srd(a, 20, 78, WS_USED)
    srd(a, 64, 90, 2621440)
    if asmlib.STAMPS:
        a('s_mov_b32 s86, s88\ns_mov_b32 s87, s89')
    WDP = 86 if asmlib.STAMPS else 88
    if asmlib.STAMPS:
        a(f'''
        s_mov_b32 s88, s78
        s_mov_b32 s89, s79
        s_mov_b32 s90, 0x2000000
        s_mov_b32 s91, 0x20000
        s_mul_i32 s92, s2, 12
        s_add_u32 s92, s92, s24
        s_lshl_b32 s92, s92, 8
        s_add_u32 s92, s92, {asmlib.STAMP_OFF}
        ''')
    stamp(a, 0, early=True)
    stamp(a, 24)
    L_aux2 = a.label('aux2')
    a(f'''
    s_cmp_ge_u32 s24, 8
    s_cbranch_scc1 {L_aux2}
    ''')
    compute_wave(a, vL, vH, vR, L_end, c_start)
    a(f'{L_aux2}:')
    aux_wave(a, vL, vH, vR, L_end, WDP, a_start)
    a(f'''
    {L_end}:
    s_endpgm
    ''')
    return a.text()


def compute_wave(a, vL, vH, vR, L_end, c_start):
    al = Alloc(4, 168)
    T = al('T', 8, 4)
    ACC = al('acc', 64, 4)
    XF = al('xf', 32, 4)
    WF = al('wf', 16, 4)
    vXA = al('xa', 2)
    vWA = al('wa', 4)
    assert al.p == 130
    t0, t1, t2, t3, t4 = T, T + 1, T + 2, T + 3, T + 4
    a.c('=========== compute wave: phase 1 ===========')
    CR = 132
    XR = 132
    U = 160
    u0, u1, u2, u3, u4, u5 = range(U, U + 6)
    W4 = 144
    vN = 130
    srd(a, 4, 76, 256)

    a(f'''
    s_lshr_b32 s44, s30, 2
    s_lshl_b32 s46, s29, 1
    s_add_u32 s46, s46, s44
    s_and_b32 s44, s30, 3
    s_lshl_b32 s44, s44, 3
    s_add_u32 s45, s44, s24
    s_mul_i32 s37, s46, 40960
    s_add_u32 s37, s37, {OF_OFF}
    s_lshl_b32 s36, s45, 10
    s_add_u32 s36, s36, s37
    s_lshl_b32 s44, s45, 8
    s_add_u32 s37, s37, s44
    s_add_u32 s37, s37, 32768
    ''')
    PZ = 152
    poison = [f'v_mov_b32 {v(PZ + q)}, -1' for q in range(4)] + [
        f'v_lshlrev_b32 {v(u4)}, 4, {v(vL)}', f'v_lshlrev_b32 {v(u5)}, 2, {v(vL)}',
        f'buffer_store_dwordx4 {v(PZ, 4)}, {v(u4)}, s[20:23], s36 offen sc1',
        f'buffer_store_dword {v(PZ)}, {v(u5)}, s[20:23], s37 offen sc1']

    lines, load_cs, load_rows, fill_cs, fill_rows = stat_code(vL, vH, vR, CR, XR, 152, U, W4, 's56', 's56')
    stamp(a, 22)
    a(f'''
    v_and_b32 {v(t0)}, 15, {v(vL)}
    v_lshrrev_b32 {v(t1)}, 4, {v(vL)}
    v_lshrrev_b32 {v(t2)}, 1, {v(t0)}
    v_xor_b32 {v(t2)}, {v(t2)}, {v(t1)}
    v_lshlrev_b32 {v(t0)}, 7, {v(t0)}
    s_lshl_b32 s44, s25, 13
    v_add_u32 {v(t0)}, s44, {v(t0)}
    v_lshl_add_u32 {v(vXA)}, {v(t2)}, 4, {v(t0)}
    v_xor_b32 {v(t2)}, 4, {v(t2)}
    v_lshl_add_u32 {v(vXA + 1)}, {v(t2)}, 4, {v(t0)}
    v_bfe_u32 {v(t2)}, {v(vL)}, 2, 2
    v_lshl_add_u32 {v(t0)}, {v(t1)}, 3, {v(t2)}
    v_lshlrev_b32 {v(t0)}, 7, {v(t0)}
    v_and_b32 {v(t3)}, 3, {v(vL)}
    v_lshl_add_u32 {v(t0)}, {v(t3)}, 3, {v(t0)}
    v_and_b32 {v(t2)}, 2, {v(t2)}
    v_and_b32 {v(t1)}, 1, {v(t1)}
    v_xor_b32 {v(t1)}, {v(t1)}, {v(t2)}
    s_lshr_b32 s44, s26, 1
    s_and_b32 s57, s44, s48
    ''')
    for t in range(4):
        a(f'''
        s_lshl_b32 s44, s26, 1
        s_add_u32 s45, s44, {t >> 1}
        s_and_b32 s46, s45, 3
        s_lshr_b32 s45, s45, 2
        s_add_u32 s45, s45, {2 * (t & 1)}
        s_sub_u32 s44, s44, 3
        s_cmp_eq_u32 s57, 1
        s_cselect_b32 s45, s44, s45
        s_cselect_b32 s46, {t}, s46
        s_mul_i32 s45, s45, 24576
        s_add_u32 s45, s45, {LDS_W}
        v_xor_b32 {v(t2)}, s46, {v(t1)}
        v_lshl_add_u32 {v(t2)}, {v(t2)}, 5, {v(t0)}
        v_add_u32 {v(vWA + t)}, s45, {v(t2)}
        ''')

    def m16(d, A, B, first=False):
        return f'v_mfma_f32_16x16x32_bf16 {v(d, 4)}, {v(A, 4)}, {v(B, 4)}, ' + ('0' if first else v(d, 4))

    def xrd(g):
        c, sI = divmod(g, 2)
        return [f'ds_read_b128 {v(XF + 16 * (g & 1) + 4 * rt, 4)}, {v(vXA + sI)} offset:{LDS_X + (c % 3) * 16384 + 2048 * rt}' for rt in range(4)]

    def wrd(g, t):
        c, sI = divmod(g, 2)
        return [f'ds_read_b64_tr_b16 {v(WF + 4 * t + 2 * z, 2)}, {v(vWA + t)} offset:{(c % 3) * 8192 + 4096 * sI + 512 * z}' for z in range(2)]

    def tile(g, t):
        return [m16(ACC + 16 * t + 4 * rt, WF + 4 * t, XF + 16 * (g & 1) + 4 * rt, g == 0) for rt in range(4)]

    def chunk(c, fill=()):
        a.c(f'chunk {c}')
        if c:
            a('s_waitcnt lgkmcnt(0)')
        a('s_barrier')
        if not FEWST or c in (0, 1, 2, 9):
            stamp(a, 1 + c)
        if c == 9:
            lab = a.label('nqp')
            a(f's_cmp_eq_u32 s57, 0\ns_cbranch_scc1 {lab}\ns_setprio 2\n{lab}:')
        seq = []

        def rest(g, waits):
            pend = (wrd(g + 1, 0) + xrd(g + 1)) if g + 1 < 20 else []
            for t in range(1, 4):
                ms = tile(g, t)
                for q, m_ in enumerate(ms):
                    pre_ = [f's_waitcnt lgkmcnt({(0, 4, 10, 10)[t]})'] if (waits and q == 0) else []
                    ex = pend[2 * q:2 * q + 2] if t == 1 else []
                    if q == 3 and g + 1 < 20:
                        ex = ex + wrd(g + 1, t)
                    seq.append((pre_, m_, ex))
        if c > 0:
            rest(2 * c - 1, False)
        else:
            emit(a, wrd(0, 0) + xrd(0) + wrd(0, 1) + wrd(0, 2) + wrd(0, 3))
        g = 2 * c
        for q, m_ in enumerate(tile(g, 0)):
            seq.append((['s_waitcnt lgkmcnt(6)'] if q == 0 else [], m_, []))
        rest(g, True)
        for q, m_ in enumerate(tile(g + 1, 0)):
            seq.append((['s_waitcnt lgkmcnt(6)'] if q == 0 else [], m_, []))
        n, k_ = len(fill), len(seq)
        for q, (pre_, m_, ex) in enumerate(seq):
            emit(a, pre_)
            a(m_)
            emit(a, ex)
            emit(a, fill[(q * n) // k_:((q + 1) * n) // k_])

    if LATE1:
        c_start(1)
    if AST:
        a('s_waitcnt vmcnt(4)')
        chunk(0)
        a('s_waitcnt vmcnt(0)')
        for c in range(1, 6):
            chunk(c)
        chunk(6, [f'v_mov_b32 {v(vN)}, {NONCE_A}', f'ds_read_b32 {v(vN)}, {v(vN)}'])
        chunk(7)
        a(f'v_readfirstlane_b32 s98, {v(vN)}\ns_nop 0\ns_xor_b32 s99, s98, {NONCE_X}')
        f0, SPN_ = 7, 0
    else:
        SPN_ = SPN
        lab1, lab2 = a.label('rowv'), a.label('join')
        a(f's_cmp_eq_u32 s25, 1\ns_cbranch_scc1 {lab1}')
        for var, (ld, fl) in enumerate(((load_cs(), fill_cs()), (load_rows(), fill_rows()))):
            qp = [] if var == 0 else (lines(f'''
            s_mul_i32 s44, s27, {CH_BYTES}
            s_lshl_b32 s45, s28, 10
            s_add_u32 s44, s44, s45
            s_lshl_b32 s45, s26, 8
            s_add_u32 s44, s44, s45
            s_add_u32 s44, s44, {KV_OFF}
            s_cmp_lt_u32 s28, 14
            s_cselect_b32 s44, s44, 0x7f000000
            buffer_store_dword {v(PZ)}, {v(u5)}, s[20:23], s44 offen sc1
            ''') if KVP else []) + lines(f'''
            s_mul_i32 s44, s27, 163840
            s_mul_i32 s45, s28, 10240
            s_add_u32 s44, s44, s45
            s_mul_i32 s45, s26, 2560
            s_add_u32 s44, s44, s45
            s_add_u32 s44, s44, {QF_OFF}
            v_lshlrev_b32 {v(u5)}, 3, {v(vL)}
            buffer_store_dwordx4 {v(PZ, 4)}, {v(u4)}, s[20:23], s44 offen sc1
            buffer_store_dwordx4 {v(PZ, 4)}, {v(u4)}, s[20:23], s44 offen offset:1024 sc1
            buffer_store_dwordx2 {v(PZ, 2)}, {v(u5)}, s[20:23], s44 offen offset:2048 sc1
            ''')
            nl = [f'buffer_load_dword {v(vN)}, off, s[4:7], 0 sc1']
            if NOSL:
                ld = [['buffer_load_dword v165, off, s[4:7], 0']] * 5
                fl = fl[-6:]
            pz0 = poison + qp if PZ0 else []
            fl = (fl + nl) if PZ0 else (poison + qp + fl + nl)
            if SLC == 0:
                emit(a, ld)
            a(f's_waitcnt vmcnt({9 if SLC == 0 else 4})')
            chunk(0, (ld if SLC == -1 else []) + pz0)
            a(f's_waitcnt vmcnt({(5 if SLC <= 0 else 0) + ((2, 5)[var] if PZ0 else 0)})')
            n = len(fl)
            f0 = max(SLC, 0) + SLG
            for c in range(1, f0 + SPN):
                if c == SLC:
                    chunk(c, ld)
                elif c >= f0:
                    q = c - f0
                    chunk(c, ([f's_waitcnt vmcnt({(2, 5)[var] if PZ0 else 0})'] if q == 0 else []) + fl[(q * n) // SPN:((q + 1) * n) // SPN])
                else:
                    chunk(c)
            if var == 0:
                a(f's_branch {lab2}\n{lab1}:')
        a(f'{lab2}:')
        chunk(f0 + SPN)
        Lp, Lq = a.label('cnp'), a.label('cnd')
        a(f'''
        s_mov_b32 s93, {POLL_MAX}
        {Lp}:
        s_waitcnt vmcnt(0)
        v_readfirstlane_b32 s98, {v(vN)}
        s_cmp_lg_u32 s98, 0
        s_cbranch_scc1 {Lq}
        s_sub_u32 s93, s93, 1
        s_cbranch_scc1 {Lq}
        buffer_load_dword {v(vN)}, off, s[4:7], 0 sc1
        s_branch {Lp}
        {Lq}:
        s_xor_b32 s99, s98, {NONCE_X}
        ''')
        lab = a.label('noxid')
        a(f'''
        s_cmp_lg_u32 s24, 0
        s_cbranch_scc1 {lab}
        s_getreg_b32 s44, hwreg(HW_REG_XCC_ID, 0, 4)
        s_lshl_b32 s45, s29, 7
        s_lshl_b32 s46, s30, 3
        s_add_u32 s45, s45, s46
        s_add_u32 s45, s45, {F_X}
        v_mov_b32 {v(U)}, s98
        v_mov_b32 {v(U + 1)}, s44
        s_mov_b64 exec, 1
        buffer_store_dwordx2 {v(U, 2)}, off, s[20:23], s45 sc1
        s_mov_b64 exec, -1
        {lab}:
        ''')
        flag_store(a, 's56', U + 2)

    RC, CSF, vS16 = 132, 148, 131
    pre = lines(f'''
    v_and_b32 {v(t2)}, 15, {v(vL)}
    v_lshrrev_b32 {v(t3)}, 4, {v(vL)}
    s_lshl_b32 s44, s25, 10
    s_add_u32 s44, s44, {ROWC_A}
    v_lshl_add_u32 {v(t0)}, {v(t2)}, 4, s44
    s_lshl_b32 s44, s26, 8
    s_add_u32 s44, s44, {CS_A}
    v_lshl_add_u32 {v(t1)}, {v(t2)}, 2, s44
    v_lshl_add_u32 {v(t1)}, {v(t3)}, 12, {v(t1)}
    v_lshlrev_b32 {v(vS16)}, 4, {v(t2)}
    v_lshl_add_u32 {v(vS16)}, {v(t3)}, 9, {v(vS16)}
    ''')
    pre += [f'ds_read_b128 {v(RC + 4 * rt, 4)}, {v(t0)} offset:{256 * rt}' for rt in range(4)]
    for t in range(4):
        for z in range(2):
            pre.append(f'ds_read2st64_b32 {v(CSF + 4 * t + 2 * z, 2)}, {v(t1)} offset0:{8 * z} offset1:{8 * z + 4}')
        if t < 3:
            pre.append(f'v_add_u32 {v(t1)}, 64, {v(t1)}')
    for c in range(f0 + SPN_ + 1, 10):
        chunk(c, pre if c == 9 else ())
    a(f'''
    s_lshl_b32 s44, s24, 2
    s_add_u32 s44, s44, {CD_A}
    v_mov_b32 {v(t0)}, s44
    v_mov_b32 {v(t1)}, s98
    s_waitcnt lgkmcnt(0)
    ds_write_b32 {v(t0)}, {v(t1)}
    ''')
    NEG = XF
    HH = 148
    ms = tile(19, 1) + tile(19, 2) + tile(19, 3)
    mv = [f'v_mov_b32 {v(NEG + 4 * rt + r)}, {v(RC + 4 * rt)}' for rt in range(4) for r in range(4)]
    for q, m_ in enumerate(ms):
        a(m_)
        emit(a, mv[(q * 16) // 12:((q + 1) * 16) // 12])
    stamp(a, 12)
    a(f'''
    s_mov_b32 s46, {f2u(C0)}
    s_mov_b32 s47, {f2u(C1)}
    ''')
    for rt in range(4):
        for t in range(4):
            a(m16(ACC + 16 * t + 4 * rt, CSF + 4 * t, NEG + 4 * rt))
    L_q = a.label('qepi')
    L_ed = a.label('epidone')
    a(f'''
    s_lshl_b32 s44, s27, 2
    s_lshl_b32 s45, s25, 1
    s_add_u32 s60, s44, s45
    s_cmp_eq_u32 s57, 1
    s_cbranch_scc1 {L_q}
    s_lshr_b32 s44, s49, 4
    s_lshl_b32 s45, s26, 1
    s_add_u32 s44, s44, s45
    s_mul_i32 s42, s60, 108
    s_add_u32 s42, s42, s44
    s_lshl_b32 s42, s42, 10
    s_add_u32 s43, s42, {108 * 1024}
    ''')
    E1, E2, KC = XF + 16, WF, T
    for rt in range(4):
        TT = E1 + 8 * (rt % 2)
        PP = E2 + 8 * (rt % 2)
        G_ = lambda i: ACC + 32 * (i >> 2) + 4 * rt + (i & 3)
        rho = RC + 4 * rt + 1
        a(f'''
        v_mul_f32 {v(KC)}, s46, {v(rho)}
        v_mul_f32 {v(KC + 1)}, s46, {v(rho)}
        v_mul_f32 {v(KC + 4)}, {v(rho)}, {v(rho)}
        v_mov_b32 {v(RC + 4 * rt + 3)}, {v(RC + 4 * rt + 2)}
        v_mul_f32 {v(KC + 4)}, {v(KC + 4)}, {v(rho)}
        v_mul_f32 {v(KC + 2)}, s47, {v(KC + 4)}
        v_mul_f32 {v(KC + 3)}, s47, {v(KC + 4)}
        ''')
        rc = v(RC + 4 * rt + 2, 2)
        for i in range(0, 8, 2):
            a(f'v_pk_mul_f32 {v(TT + i, 2)}, {v(G_(i), 2)}, {v(G_(i), 2)}')
        for i in range(0, 8, 2):
            a(f'v_pk_fma_f32 {v(TT + i, 2)}, {v(TT + i, 2)}, {v(KC + 2, 2)}, {v(KC, 2)}')
        for i in range(0, 8, 2):
            a(f'v_pk_mul_f32 {v(TT + i, 2)}, {v(TT + i, 2)}, {v(G_(i), 2)}')
        for i in range(8):
            a(f'v_exp_f32 {v(TT + i)}, {v(TT + i)}')
        for i in range(0, 8, 2):
            a(f'v_pk_mul_f32 {v(PP + i, 2)}, {v(G_(i), 2)}, {v(G_(i) + 16, 2)}')
        for i in range(0, 8, 2):
            a(f'v_pk_fma_f32 {v(TT + i, 2)}, {v(TT + i, 2)}, {rc}, {rc}')
        for i in range(8):
            a(f'v_rcp_f32 {v(TT + i)}, {v(TT + i)}')
        a('s_nop 0')
        for i in range(0, 8, 2):
            a(f'v_pk_mul_f32 {v(PP + i, 2)}, {v(PP + i, 2)}, {v(TT + i, 2)}')
        for i in range(4):
            a(f'v_cvt_pk_bf16_f32 {v(HH + 4 * rt + i)}, {v(PP + 2 * i)}, {v(PP + 2 * i + 1)}')
    if HE == 1:
        for k in range(4):
            a(f'buffer_store_dwordx4 {v(HH + 4 * k, 4)}, {v(vS16)}, s[20:23], s{42 + (k >> 1)} offen offset:{256 * (k & 1)} sc1')
    a(f's_branch {L_ed}')
    a(f'{L_q}:')
    a(f'''
    s_sub_u32 s44, s26, 2
    s_lshl_b32 s44, s44, 6
    s_add_u32 s44, s44, s50
    s_lshl_b32 s44, s44, 6
    s_add_u32 s44, s44, {QF_OFF}
    s_mov_b32 s45, {f2u(QSC)}
    s_mul_i32 s46, s60, 40960
    s_add_u32 s46, s46, s44
    s_add_u32 s47, s46, 40960
    ''')
    for rt in range(4):
        a(f'v_mul_f32 {v(T + rt)}, s45, {v(RC + 4 * rt + 1)}')
    for rt in range(4):
        for pz in range(2):
            O_ = E1 + 4 * ((2 * rt + pz) % 8)
            regs = [ACC + 16 * (2 * pz + (i >> 2)) + 4 * rt + (i & 3) for i in range(8)]
            for r_ in regs:
                a(f'v_mul_f32 {v(r_)}, {v(r_)}, {v(T + rt)}')
            for i in range(4):
                a(f'v_cvt_pk_bf16_f32 {v(O_ + i)}, {v(regs[2 * i])}, {v(regs[2 * i + 1])}')
            a(f'buffer_store_dwordx4 {v(O_, 4)}, {v(vS16)}, s[20:23], s{46 + (rt >> 1)} offen offset:{2048 * pz + 256 * (rt & 1)} sc1')
    a(f'{L_ed}:')
    stamp(a, 13)

    a.c('=========== compute wave: attention ===========')
    al3 = Alloc(4, 168)
    T = al3('T', 16, 4)
    S = al3('S', 32, 4)
    O = al3('O', 16, 4)
    V1 = al3('V1', 4, 4)
    V2 = al3('V2', 4, 4)
    Q1 = al3('Q1', 4, 4)
    K1 = al3('K1', 8, 4)
    K2 = al3('K2', 8, 4)
    P = al3('P', 16, 4)
    Q2 = al3('Q2', 2, 2)
    vK = al3('vK')
    vK2 = al3('vK2')
    a(f'''
    s_lshl_b32 s44, s27, 1
    s_add_u32 s44, s44, s25
    s_lshl_b32 s44, s44, 13
    s_lshl_b32 s45, s28, 2
    s_add_u32 s45, s45, s26
    s_lshl_b32 s45, s45, 7
    s_add_u32 s44, s44, s45
    s_add_u32 s41, s44, {F_QH}
    s_nop 1
    ''')
    for i in range(16):
        a(f'v_mov_b32 {v(O + i)}, 0')
    for i in range(4):
        a(f'v_mov_b32 {v(V1 + i)}, 0')
        a(f'v_mov_b32 {v(V2 + i)}, 0')
    a(f'''
    s_mov_b32 s45, {KVR}
    v_lshl_add_u32 {v(vK)}, {v(vL)}, 4, s45
    v_lshl_add_u32 {v(vK2)}, {v(vL)}, 3, s45
    s_mul_i32 s45, s24, 5
    v_lshlrev_b32 {v(T + 4)}, 4, {v(vR)}
    s_lshr_b32 s44, s30, 2
    s_lshl_b32 s46, s29, 1
    s_add_u32 s44, s44, s46
    s_mul_i32 s44, s44, 40960
    s_and_b32 s46, s30, 3
    s_mul_i32 s46, s46, 10240
    s_add_u32 s44, s44, s46
    s_add_u32 s40, s44, {QF_OFF}
    ''')
    for z, (dq, useh) in enumerate(((0, 1), (2, 1), (4, 0))):
        a(f's_add_u32 s46, s45, {dq}')
        a(f'v_add_u32 {v(T + 5)}, s46, {v(vH)}' if useh else f'v_mov_b32 {v(T + 5)}, s46')
        a(f'''
        v_lshrrev_b32 {v(T + 6)}, 3, {v(T + 5)}
        v_lshl_add_u32 {v(T + 6)}, {v(T + 6)}, 11, {v(T + 4)}
        v_and_b32 {v(T + 7)}, 3, {v(T + 5)}
        v_lshl_add_u32 {v(T + 6)}, {v(T + 7)}, 9, {v(T + 6)}
        v_bfe_u32 {v(T + 5)}, {v(T + 5)}, 2, 1
        v_lshl_add_u32 {v(T + 13 + z)}, {v(T + 5)}, 3, {v(T + 6)}
        ''')
    a('s_setprio 0')
    for i in range(8):
        a(f'v_mov_b32 {v(P + 8 + i)}, 0')
    Lp, Lq = a.label('qp'), a.label('qpd')
    a(f'''
    s_mov_b32 s93, {OPOLL_MAX}
    {Lp}:
    buffer_load_dwordx2 {v(Q1, 2)}, {v(T + 13)}, s[20:23], s40 offen sc1
    buffer_load_dwordx2 {v(Q1 + 2, 2)}, {v(T + 14)}, s[20:23], s40 offen sc1
    buffer_load_dwordx2 {v(Q2, 2)}, {v(T + 15)}, s[20:23], s40 offen sc1
    s_waitcnt vmcnt(0)
    v_max3_u32 {v(T)}, {v(Q1)}, {v(Q1 + 1)}, {v(Q1 + 2)}
    v_max3_u32 {v(T + 1)}, {v(Q1 + 3)}, {v(Q2)}, {v(Q2 + 1)}
    v_max_u32 {v(T)}, {v(T)}, {v(T + 1)}
    v_cmp_eq_u32 vcc, -1, {v(T)}
    s_nop 1
    s_cmp_eq_u64 vcc, 0
    s_cbranch_scc1 {Lq}
    s_sub_u32 s93, s93, 1
    s_cbranch_scc1 {Lq}
    s_sleep {QSLEEP}
    s_branch {Lp}
    {Lq}:
    v_mov_b32 {v(T + 2)}, 0
    v_cndmask_b32 {v(Q2)}, {v(Q2)}, {v(T + 2)}, {HM}
    v_cndmask_b32 {v(Q2 + 1)}, {v(Q2 + 1)}, {v(T + 2)}, {HM}
    ''')
    if HE == 1:
        flag_store(a, 's41', T + 2)
    if HE == 2:
        lab = a.label('nohst')
        a(f's_cmp_eq_u32 s57, 1\ns_cbranch_scc1 {lab}')
        for k in range(4):
            a(f'buffer_store_dwordx4 {v(HH + 4 * k, 4)}, {v(vS16)}, s[20:23], s{42 + (k >> 1)} offen offset:{256 * (k & 1)} sc1')
        a(f'{lab}:')
    stamp(a, 14)
    if NOA0:
        L1, L2 = a.label('klw'), a.label('kld')
        a(f'''
        v_and_b32 {v(T)}, 3, {v(vL)}
        v_lshlrev_b32 {v(T)}, 2, {v(T)}
        v_add_u32 {v(T)}, {KL_A}, {v(T)}
        s_mov_b32 s93, {POLL_MAX * 8}
        {L1}:
        ds_read_b32 {v(T + 1)}, {v(T)}
        s_waitcnt lgkmcnt(0)
        v_cmp_eq_u32 vcc, s98, {v(T + 1)}
        s_nop 1
        s_cmp_eq_u64 vcc, -1
        s_cbranch_scc1 {L2}
        s_sleep 1
        s_sub_u32 s93, s93, 1
        s_cbranch_scc0 {L1}
        {L2}:
        ''')
    else:
        a('s_barrier')
    stamp(a, 15)
    o0, o1, o2 = tile_offs(0), tile_offs(1), tile_offs(2)
    a(f'''
    ds_read_b128 {v(K1, 4)}, {v(vK)} offset:{o0[0]}
    ds_read_b128 {v(K1 + 4, 4)}, {v(vK)} offset:{o1[0]}
    ds_read2st64_b64 {v(K2, 4)}, {v(vK2)} offset0:{o0[1] // 512} offset1:{o0[1] // 512 + 1}
    s_waitcnt lgkmcnt(0)
    ''')

    def set_m(mreg, offset):
        t0, t1, t2, t3 = T + 8, T + 9, T + 10, T + 11
        a(f'v_sub_f32 {v(t0)}, {f2u(-offset) if offset else 0}, {v(mreg)}')
        a(f'''
        v_cvt_pk_bf16_f32 {v(t1)}, {v(t0)}, {v(t0)}
        v_and_b32 {v(t2)}, 0xffff0000, {v(t1)}
        v_sub_f32 {v(t2)}, {v(t0)}, {v(t2)}
        v_cvt_pk_bf16_f32 {v(t1)}, {v(t0)}, {v(t2)}
        v_and_b32 {v(t3)}, 0xffff0000, {v(t1)}
        v_sub_f32 {v(t2)}, {v(t2)}, {v(t3)}
        v_mov_b32 {v(t3)}, 0
        v_cvt_pk_bf16_f32 {v(t2)}, {v(t2)}, {v(t3)}
        v_cndmask_b32 {v(Q2)}, {v(Q2)}, {v(t1)}, {HM}
        v_cndmask_b32 {v(Q2 + 1)}, {v(Q2 + 1)}, {v(t2)}, {HM}
        ''')

    def cross_half_max(reg):
        t = T + 12
        a(f'''
        v_mov_b32 {v(t)}, {v(reg)}
        s_nop 1
        v_permlane32_swap_b32 {v(reg)}, {v(t)}
        s_nop 1
        v_max_f32 {v(reg)}, {v(reg)}, {v(t)}
        ''')

    for t in range(2):
        a(mfma16(S + 16 * t, K1 + 4 * t, Q1))
    if HST < 0 and not HE:
        lab = a.label('nohst')
        a(f'''
        s_cmp_eq_u32 s57, 1
        s_cbranch_scc1 {lab}
        ''')
        for k in range(4):
            a(f'buffer_store_dwordx4 {v(HH + 4 * k, 4)}, {v(vS16)}, s[20:23], s{42 + (k >> 1)} offen offset:{256 * (k & 1)} sc1')
        a(f'{lab}:')
    a('s_nop 9')
    for t in range(2):
        a(mfma8(S + 16 * t, K2 + 2 * t, Q2, S + 16 * t))
    a('s_nop 11')
    m = T + 4
    for z in range(2):
        a(f'v_max3_f32 {v(m + z)}, {v(S + 16 * z)}, {v(S + 16 * z + 1)}, {v(S + 16 * z + 2)}')
    for i in range(3, 15, 2):
        for z in range(2):
            a(f'v_max3_f32 {v(m + z)}, {v(m + z)}, {v(S + 16 * z + i)}, {v(S + 16 * z + i + 1)}')
    a(f'v_max3_f32 {v(m)}, {v(m)}, {v(S + 15)}, {v(S + 31)}')
    a(f'v_max_f32 {v(m)}, {v(m)}, {v(m + 1)}')
    cross_half_max(m)
    set_m(m, M_OFFSET)
    a('s_nop 1')
    a(mfma16(S, K1, Q1))
    a(f'''
    ds_read_b128 {v(K1, 4)}, {v(vK)} offset:{o2[0]}
    s_mov_b32 s34, 4
    s_nop 7
    ''')
    a(mfma8(S, K2, Q2, S))
    a('s_nop 9')
    stamp(a, 16)

    def toff(tt):
        tt &= 15
        o = tile_offs(tt & 3)
        return [x + (tt >> 2) * CH_BYTES for x in o]

    def k2read(reg, tt):
        o = toff(tt)[1]
        assert o % 512 == 0
        return f'ds_read2st64_b64 {v(reg, 4)}, {v(vK2)} offset0:{o // 512} offset1:{o // 512 + 1}'

    L_hf, L_hb = a.label('hflag'), a.label('hback')
    L_hs, L_hsb = a.label('hst'), a.label('hstb')
    a('s_cmp_eq_u32 s57, 1\ns_cselect_b32 s33, 99, 4')

    def slot(t):
        Sx, Sn = S + 16 * (t & 1), S + 16 * ((t + 1) & 1)
        Px, Pp = P + 8 * (t & 1), P + 8 * ((t + 1) & 1)
        kt = t + 1
        kb = kt & 1
        k2 = K2 + 4 * ((kt >> 1) & 1) + 2 * (kt & 1)
        m_ = [mfma16(Sn, K1 + 4 * kb, Q1), mfma16(O, V1, Pp, O), mfma8(Sn, k2, Q2, Sn), mfma16(O, V2, Pp + 4, O)]
        after = [[], [], [], []]
        if t & 3 == 1:
            after[0] = ['s_barrier']
        after[0] += [f'ds_read_b128 {v(K1 + 4 * kb, 4)}, {v(vK)} offset:{toff(t + 3)[0]}', 's_waitcnt lgkmcnt(2)']
        after[1] = [f'ds_read_b128 {v(V1, 4)}, {v(vK)} offset:{toff(t)[2]}']
        if t & 1:
            after[1] += [k2read(K2 + 4 * (((t + 3) >> 1) & 1), t + 3)]
        after[2] += [f's_waitcnt lgkmcnt({3 if t & 1 else 2})']
        after[3] = [f'ds_read_b128 {v(V2, 4)}, {v(vK)} offset:{toff(t)[3]}']
        if t == 15:
            after[3] += ['s_sub_u32 s34, s34, 1']
        if t == HST:
            after[3] += ['s_cmp_eq_u32 s34, s33', f's_cbranch_scc1 {L_hs}', f'{L_hsb}:']
        if t == HFLAG_T and HE != 1:
            after[3] += ['s_cmp_eq_u32 s34, 4', f's_cbranch_scc1 {L_hf}', f'{L_hb}:']
        val = []
        for i in range(8):
            val.append(f'v_exp_f32 {v(Sx + 2 * i)}, {v(Sx + 2 * i)}')
            val.append(f'v_exp_f32 {v(Sx + 2 * i + 1)}, {v(Sx + 2 * i + 1)}')
            if i > 0:
                val.append(f'v_cvt_pk_bf16_f32 {v(Px + i - 1)}, {v(Sx + 2 * i - 2)}, {v(Sx + 2 * i - 1)}')
        val.append(f'v_cvt_pk_bf16_f32 {v(Px + 7)}, {v(Sx + 14)}, {v(Sx + 15)}')
        groups = [val[0:5], val[5:11], val[11:17], val[17:24]]
        for g in range(4):
            a(m_[g])
            emit(a, after[g])
            emit(a, groups[g])

    a(k2read(K2 + 4, 2))
    L_loop = a.label('att')
    a('.p2align 6')
    a(f'{L_loop}:')
    for t in range(16):
        slot(t)
    a(f'''
    s_cmp_lg_u32 s34, 0
    s_cbranch_scc1 {L_loop}
    s_waitcnt lgkmcnt(0)
    ''')
    a(mfma16(O, V1, P + 8, O))
    a(mfma16(O, V2, P + 12, O))
    a(f'''
    v_lshlrev_b32 {v(T + 2)}, 4, {v(vL)}
    v_lshlrev_b32 {v(T + 3)}, 3, {v(vL)}
    v_mov_b32 {v(T + 9)}, 0x7f000000
    v_cndmask_b32 {v(T + 3)}, {v(T + 3)}, {v(T + 9)}, {HM}
    v_lshlrev_b32 {v(T + 4)}, 3, {v(vR)}
    v_lshl_add_u32 {v(T + 4)}, {v(vH)}, 9, {v(T + 4)}
    v_mov_b32 {v(T + 5)}, {SX_A}
    ds_read_b32 {v(T + 5)}, {v(T + 5)}
    s_nop 4
    ''')
    stamp(a, 17)
    L_fb = a.label('fb')
    L_out = a.label('aout')
    a(f'''
    s_mov_b32 s44, {f2u(2.0 ** 125)}
    s_mov_b32 s45, {f2u(2.0 ** -103)}
    v_add_f32 {v(T)}, |{v(O)}|, |{v(O + 1)}|
    v_add_f32 {v(T + 1)}, |{v(O + 2)}|, |{v(O + 3)}|
    ''')
    for i in range(4, 12, 2):
        a(f'v_add_f32 {v(T)}, {v(T)}, |{v(O + i)}|')
        a(f'v_add_f32 {v(T + 1)}, {v(T + 1)}, |{v(O + i + 1)}|')
    a(f'''
    v_add_f32 {v(T)}, {v(T)}, {v(T + 1)}
    v_add_f32 {v(T + 1)}, {v(T)}, {v(O + 12)}
    s_waitcnt lgkmcnt(0)
    v_readfirstlane_b32 s38, {v(T + 5)}
    v_cmp_le_f32 s[46:47], s45, {v(T)}
    v_cmp_gt_f32 s[48:49], s44, {v(T + 1)}
    s_nop 1
    s_and_b64 s[46:47], s[46:47], s[48:49]
    s_cmp_eq_u64 s[46:47], -1
    s_cbranch_scc0 {L_fb}
    {L_out}:
    v_rcp_f32 {v(T)}, {v(O + 12)}
    s_nop 0
    ''')
    for i in range(12):
        a(f'v_mul_f32 {v(O + i)}, {v(O + i)}, {v(T)}')
    for i in range(6):
        a(f'v_cvt_pk_bf16_f32 {v(P + i)}, {v(O + 2 * i)}, {v(O + 2 * i + 1)}')
    L_pl, L_st = a.label('oplain'), a.label('ostored')
    a(f'''
    s_cmp_eq_u32 s38, s98
    s_cbranch_scc1 {L_pl}
    buffer_store_dwordx4 {v(P, 4)}, {v(T + 2)}, s[20:23], s36 offen sc1
    buffer_store_dwordx2 {v(P + 4, 2)}, {v(T + 3)}, s[20:23], s37 offen sc1
    s_branch {L_st}
    {L_pl}:
    buffer_store_dwordx4 {v(P, 4)}, {v(T + 2)}, s[20:23], s36 offen
    buffer_store_dwordx2 {v(P + 4, 2)}, {v(T + 3)}, s[20:23], s37 offen
    {L_st}:
    ''')
    stamp(a, 18)
    g2_ids(a)
    OFR = 120
    a(f'''
    s_cmp_eq_u32 s25, 1
    s_cselect_b32 s44, s60, s59
    s_mul_i32 s44, s44, 40960
    s_add_u32 s44, s44, {OF_OFF}
    s_lshl_b32 s45, s26, 13
    s_add_u32 s38, s44, s45
    s_add_u32 s38, s38, 3072
    s_add_u32 s39, s38, 4096
    s_lshl_b32 s45, s26, 11
    s_add_u32 s40, s44, s45
    s_add_u32 s40, s40, 32768
    s_mul_i32 s44, s26, 14336
    s_lshl_b32 s45, s25, 10
    s_add_u32 s44, s44, s45
    s_add_u32 s44, s44, {OL_A}
    v_add_u32 {v(T + 5)}, s44, {v(T + 2)}
    s_barrier
    ''')
    Lp, Lq = a.label('cop'), a.label('copd')
    a(f's_mov_b32 s93, {OPOLL_MAX}\n{Lp}:')
    for q in range(5):
        a(f'buffer_load_dwordx4 {v(OFR + 4 * q, 4)}, {v(T + 2)}, s[20:23], {"s38" if q < 4 else "s39"} offen offset:{1024 * (q & 3)} sc1')
    for q in range(4):
        a(f'buffer_load_dwordx2 {v(OFR + 20 + 2 * q, 2)}, {v(T + 4)}, s[20:23], s40 offen offset:{1024 * (q >> 1) + 256 * (q & 1)} sc1')
    a('s_waitcnt vmcnt(0)')
    a(f'v_max3_u32 {v(T)}, {v(OFR)}, {v(OFR + 1)}, {v(OFR + 2)}')
    for i in range(3, 27, 2):
        a(f'v_max3_u32 {v(T)}, {v(T)}, {v(OFR + i)}, {v(OFR + i + 1)}')
    a(f'''
    v_max_u32 {v(T)}, {v(T)}, {v(OFR + 27)}
    v_cmp_eq_u32 vcc, -1, {v(T)}
    s_nop 1
    s_cmp_eq_u64 vcc, 0
    s_cbranch_scc1 {Lq}
    s_sub_u32 s93, s93, 1
    s_cbranch_scc1 {Lq}
    s_sleep {OSLEEP}
    s_branch {Lp}
    {Lq}:
    ''')
    for q in range(7):
        a(f'ds_write_b128 {v(T + 5)}, {v(OFR + 4 * q, 4)} offset:{2048 * q}')
    stamp(a, 21)
    if FFL:
        a(f'''
        s_lshl_b32 s44, s24, 2
        s_add_u32 s44, s44, {OW_A}
        v_mov_b32 {v(T)}, s44
        v_mov_b32 {v(T + 1)}, s98
        s_waitcnt lgkmcnt(0)
        ds_write_b32 {v(T)}, {v(T + 1)}
        ''')
    g2_out(a, S, vL, 's24', 0)
    if not FFL:
        a('s_waitcnt lgkmcnt(0)')
        a('s_barrier')
    a('s_barrier')
    stamp(a, 19)
    g2_out(a, S, vL, 's24', 1)
    if asmlib.STAMPS:
        a('s_waitcnt vmcnt(0)')
    stamp(a, 20)
    diag_end(a)
    a(f's_branch {L_end}')

    if HST >= 0:
        a(f'{L_hs}:')
        for k in range(4):
            a(f'buffer_store_dwordx4 {v(HH + 4 * k, 4)}, {v(vS16)}, s[20:23], s{42 + (k >> 1)} offen offset:{256 * (k & 1)} sc1')
        a(f's_branch {L_hsb}')
    if HE != 1:
        a(f'{L_hf}:')
        a('s_waitcnt vmcnt(0)')
        flag_store(a, 's41', T + 2)
        a(f's_branch {L_hb}')
    a(f'{L_fb}:')
    L1 = a.label('fb1')
    L2 = a.label('fb2')
    a(f'''
    v_lshlrev_b32 {v(T + 13)}, 4, {v(vL)}
    v_lshlrev_b32 {v(T + 7)}, 3, {v(vL)}
    v_mov_b32 {v(T + 14)}, 0
    v_mov_b32 {v(T + 15)}, 0xff800000
    v_cndmask_b32 {v(Q2)}, {v(Q2)}, {v(T + 14)}, {HM}
    v_cndmask_b32 {v(Q2 + 1)}, {v(Q2 + 1)}, {v(T + 14)}, {HM}
    s_mov_b32 s77, {KV_OFF}
    s_mov_b32 s34, 32
    {L1}:
    buffer_load_dwordx4 {v(K1, 4)}, {v(T + 13)}, s[20:23], s77 offen sc1
    buffer_load_dwordx4 {v(K1 + 4, 4)}, {v(T + 13)}, s[20:23], s77 offen offset:1024 sc1
    buffer_load_dwordx2 {v(K2, 2)}, {v(T + 7)}, s[20:23], s77 offen offset:2048 sc1
    buffer_load_dwordx2 {v(K2 + 2, 2)}, {v(T + 7)}, s[20:23], s77 offen offset:2560 sc1
    s_waitcnt vmcnt(0)
    ''')
    for t in range(2):
        a(mfma16(S + 16 * t, K1 + 4 * t, Q1))
    a('s_nop 9')
    for t in range(2):
        a(mfma8(S + 16 * t, K2 + 2 * t, Q2, S + 16 * t))
    a('s_nop 15')
    for i in range(0, 32, 2):
        a(f'v_max3_f32 {v(T + 15)}, {v(T + 15)}, {v(S + i)}, {v(S + i + 1)}')
    a(f'''
    s_add_u32 s77, s77, 7168
    s_sub_u32 s34, s34, 1
    s_cmp_lg_u32 s34, 0
    s_cbranch_scc1 {L1}
    ''')
    cross_half_max(T + 15)
    set_m(T + 15, 0.0)
    for i in range(16):
        a(f'v_mov_b32 {v(O + i)}, 0')
    a(f'''
    s_mov_b32 s77, {KV_OFF}
    s_mov_b32 s34, 64
    {L2}:
    s_and_b32 s78, s34, 1
    s_lshl_b32 s79, s78, 10
    s_add_u32 s79, s79, s77
    s_lshl_b32 s80, s78, 9
    s_add_u32 s80, s80, s77
    s_lshl_b32 s81, s78, 11
    s_add_u32 s81, s81, s77
    s_add_u32 s81, s81, 3072
    buffer_load_dwordx4 {v(K1, 4)}, {v(T + 13)}, s[20:23], s79 offen sc1
    buffer_load_dwordx2 {v(K2, 2)}, {v(T + 7)}, s[20:23], s80 offen offset:2048 sc1
    buffer_load_dwordx4 {v(V1, 4)}, {v(T + 13)}, s[20:23], s81 offen sc1
    buffer_load_dwordx4 {v(V2, 4)}, {v(T + 13)}, s[20:23], s81 offen offset:1024 sc1
    s_waitcnt vmcnt(0)
    {mfma16(S, K1, Q1)}
    s_nop 10
    {mfma8(S, K2, Q2, S)}
    s_nop 15
    ''')
    for i in range(16):
        a(f'v_exp_f32 {v(S + i)}, {v(S + i)}')
    a('s_nop 0')
    for i in range(8):
        a(f'v_cvt_pk_bf16_f32 {v(P + i)}, {v(S + 2 * i)}, {v(S + 2 * i + 1)}')
    a(f'''
    s_nop 1
    {mfma16(O, V1, P, O)}
    {mfma16(O, V2, P + 4, O)}
    s_mul_i32 s78, s78, 7168
    s_add_u32 s77, s77, s78
    s_sub_u32 s34, s34, 1
    s_cmp_lg_u32 s34, 0
    s_cbranch_scc1 {L2}
    s_nop 15
    s_branch {L_out}
    ''')


def g2_ids(a):
    a('''
    s_lshr_b32 s57, s30, 1
    s_and_b32 s58, s30, 1
    s_lshl_b32 s44, s29, 1
    s_add_u32 s59, s44, s58
    s_xor_b32 s60, s59, 1
    s_mul_i32 s44, s57, 320
    s_lshl_b32 s45, s58, 7
    s_add_u32 s61, s44, s45
    ''')


def g2_out(a, T, vL, wsg, part):
    L_skip = a.label('g2o')
    a(f'''
    s_cmp_ge_u32 {wsg}, 10
    s_cbranch_scc1 {L_skip}
    ''')
    if part == 0:
        a(f'''
        s_lshr_b32 s45, {wsg}, 1
        s_and_b32 s46, {wsg}, 1
        s_lshl_b32 s46, s46, 4
        v_lshrrev_b32 {v(T)}, 2, {v(vL)}
        v_add_u32 {v(T)}, s46, {v(T)}
        v_and_b32 {v(T + 1)}, 3, {v(vL)}
        s_and_b32 s47, s45, 1
        s_cmp_eq_u32 s47, 1
        s_cselect_b32 s47, s60, s59
        s_mul_i32 s47, s47, {32 * 1280}
        s_lshr_b32 s48, s45, 1
        s_add_u32 s49, s48, s58
        s_lshl_b32 s49, s49, 6
        s_lshl_b32 s50, s58, 7
        s_sub_u32 s50, 128, s50
        s_cmp_eq_u32 s48, 2
        s_cselect_b32 s49, s50, s49
        s_add_u32 s47, s47, s49
        s_add_u32 s31, s47, s61
        v_mul_u32_u24 {v(T + 6)}, 1280, {v(T)}
        v_lshl_add_u32 {v(T + 6)}, {v(T + 1)}, 4, {v(T + 6)}
        buffer_load_dwordx4 {v(T + 2, 4)}, {v(T + 6)}, s[8:11], s31 offen
        v_lshlrev_b32 {v(T + 1)}, 1, {v(T + 1)}
        v_and_b32 {v(T + 7)}, 7, {v(T)}
        v_xor_b32 {v(T + 1)}, {v(T + 1)}, {v(T + 7)}
        v_lshlrev_b32 {v(T)}, 7, {v(T)}
        v_lshl_add_u32 {v(T)}, {v(T + 1)}, 4, {v(T)}
        s_lshl_b32 s47, s45, 12
        v_add_u32 {v(T)}, s47, {v(T)}
        v_xor_b32 {v(T + 1)}, 16, {v(T)}
        ''')
    else:
        for w in range(4):
            if w == 2:
                a(f'v_add_u32 {v(T)}, {WO_HI}, {v(T)}\nv_add_u32 {v(T + 1)}, {WO_HI}, {v(T + 1)}')
            a(f'ds_read_b128 {v(T + 8 + 8 * w, 4)}, {v(T)} offset:{21504 * (w & 1)}')
            a(f'ds_read_b128 {v(T + 12 + 8 * w, 4)}, {v(T + 1)} offset:{21504 * (w & 1)}')
        a('s_waitcnt vmcnt(0)')
        for i in range(4):
            a(f'''
            v_lshlrev_b32 {v(T + 40 + 2 * i)}, 16, {v(T + 2 + i)}
            v_and_b32 {v(T + 41 + 2 * i)}, 0xffff0000, {v(T + 2 + i)}
            ''')
        a('s_waitcnt lgkmcnt(4)')
        for i in range(0, 8, 2):
            a(f'v_pk_add_f32 {v(T + 8 + i, 2)}, {v(T + 8 + i, 2)}, {v(T + 16 + i, 2)}')
        for i in range(0, 8, 2):
            a(f'v_pk_add_f32 {v(T + 8 + i, 2)}, {v(T + 8 + i, 2)}, {v(T + 40 + i, 2)}')
        a('s_waitcnt lgkmcnt(0)')
        for i in range(0, 8, 2):
            a(f'v_pk_add_f32 {v(T + 24 + i, 2)}, {v(T + 24 + i, 2)}, {v(T + 32 + i, 2)}')
        for i in range(0, 8, 2):
            a(f'v_pk_add_f32 {v(T + 8 + i, 2)}, {v(T + 8 + i, 2)}, {v(T + 24 + i, 2)}')
        for i in range(4):
            a(f'v_cvt_pk_bf16_f32 {v(T + 16 + i)}, {v(T + 8 + 2 * i)}, {v(T + 9 + 2 * i)}')
        a(f'buffer_store_dwordx4 {v(T + 16, 4)}, {v(T + 6)}, s[64:67], s31 offen{OUTSC}')
    a(f'{L_skip}:')


def aux_wave(a, vL, vH, vR, L_end, WDP, a_start):
    al = Alloc(4, 168)
    T = al('T', 16, 4)
    vXD = al('xd', 2)
    vWD = al('wd', 2)
    vKD = al('kd')
    vKX = al('kx')
    vKW = al('kw')
    XR = al('xr', 10, 2)
    CR = al('cr', 20, 2)
    PF = al('pf', 2)
    AKV = al('akv', 16, 4)
    KXF = al('kxf', 4, 4)
    KWF = al('kwf', 4, 4)
    FX = al('fx', 16, 4)
    RD = al('rd', 48, 4)
    JA = al('ja', 2, 2)
    JS = al('js')
    t0, t1, t2, t3, t4, t5 = T, T + 1, T + 2, T + 3, T + 4, T + 5
    vm = VM()
    a.c('=========== aux wave: phase 1 ===========')
    assert (vXD, vWD, vKD) == (20, 22, 24)

    def dma_group(c, kvonly=False, fill=()):
        st = c % 3
        lab = a.label('nokv')
        a(f'''
        {f's_add_u32 s35, s100, {c}' if ROT else f's_and_b32 s35, s100, {7 if c < 8 else 1}'}
        {'s_sub_u32 s34, s35, 10' if ROT else f's_xor_b32 s35, s35, {c}'}
        {'s_cselect_b32 s35, s35, s34' if ROT else ''}
        s_mul_i32 s33, s32, s35
        s_mul_i32 s34, s35, 2560
        s_lshl_b32 s35, s35, 7
        s_cmp_eq_u32 s40, 0
        s_cbranch_scc1 {lab}
        s_add_u32 m0, s38, {st * 3072}
        s_nop 0
        buffer_load_dwordx4 {v(vKD)}, s[16:19], s34 offen lds
        {lab}:
        ''')
        vm.add(f'c{c}', 1, optional=True)
        if kvonly or (NODMA and c > 2):
            vm.add(f'c{c}', 1, optional=True)
            return
        n = len(fill)

        def gap(q):
            for it in fill[(q * n) // 12:((q + 1) * n) // 12]:
                if callable(it):
                    it = it()
                for ln in ([it] if isinstance(it, str) else it):
                    a(ln)
                    if ln.startswith('buffer_store'):
                        vm.add('st', 1)
                    elif ln.startswith('buffer_load'):
                        vm.add('sl', 1)
        for e in range(4):
            a(f'''
            s_add_u32 m0, s36, {LDS_X + st * 16384 + e * 1024}
            s_add_u32 s34, s35, {(e >> 1) * 16 * 1280}
            buffer_load_dwordx4 {v(vXD + (e & 1))}, s[8:11], s34 offen lds
            ''')
            vm.add(f'c{c}', 1)
            gap(e)
        for e in range(8):
            a(f'''
            s_add_u32 m0, s37, {st * 8192 + e * 1024}
            s_nop 0
            buffer_load_dwordx4 {v(vWD + (e & 1))}, s[12:15], s33 offen lds
            ''')
            vm.add(f'c{c}', 1)
            if e < 7:
                a('s_add_u32 s33, s33, s31')
            gap(4 + e)

    vm.add('c0', 4)
    vm.add('c0', 1, optional=True)
    if not LATE1:
        vm.add('c1', 4)
        vm.add('c1', 1, optional=True)

    def jit(c):
        if not JIT or c > 9:
            return
        lab = a.label('nojit')
        a(f'''
        s_cmp_lg_u32 s26, 3
        s_cbranch_scc1 {lab}
        global_load_dword v165, {v(JA, 2)}, off
        v_add_co_u32 {v(JA)}, vcc, {v(JA)}, {v(JS)}
        s_nop 1
        v_addc_co_u32 {v(JA + 1)}, vcc, 0, {v(JA + 1)}, vcc
        {lab}:
        ''')
        vm.add('jit', 1, optional=True)

    if JIT:
        a(f'v_mov_b32 {v(JA)}, s68\nv_mov_b32 {v(JA + 1)}, s69')
        lab = a.label('nojs')
        a(f'''
        s_cmp_lg_u32 s26, 3
        s_cbranch_scc1 {lab}
        s_lshr_b32 s44, s2, 3
        s_and_b32 s45, s44, 7
        s_lshr_b32 s46, s44, 3
        s_lshl_b32 s46, s46, 5
        s_lshl_b32 s47, s27, 7
        s_add_u32 s46, s46, s47
        v_add_u32 {v(t0)}, s46, {v(vR)}
        v_mul_u32_u24 {v(t0)}, 1280, {v(t0)}
        v_add_u32 {v(t0)}, {128 * JIT}, {v(t0)}
        v_bfe_u32 {v(t1)}, {v(vL)}, 3, 1
        v_bfe_u32 {v(t2)}, {v(vL)}, 4, 1
        v_and_b32 {v(t3)}, s48, {v(t1)}
        v_cmp_eq_u32 s[58:59], 1, {v(t3)}
        v_cmp_eq_u32 s[60:61], 1, {v(t2)}
        v_mov_b32 {v(t4)}, 3456
        v_mov_b32 {v(t5)}, 1280
        v_cndmask_b32 {v(t4)}, {v(t4)}, {v(t5)}, s[58:59]
        s_xor_b32 s44, s48, 1
        v_and_b32 {v(t5)}, s44, {v(t1)}
        v_lshlrev_b32 {v(t5)}, 6, {v(t5)}
        v_add_u32 {v(t5)}, s49, {v(t5)}
        v_lshlrev_b32 {v(t3)}, 6, {v(t2)}
        v_add_u32 {v(t3)}, s50, {v(t3)}
        v_cndmask_b32 {v(t5)}, {v(t5)}, {v(t3)}, s[58:59]
        s_lshl_b32 s45, s45, 3
        s_add_u32 s45, s45, {64 * JIT}
        v_and_b32 {v(t3)}, 7, {v(vL)}
        v_add_u32 {v(t3)}, s45, {v(t3)}
        v_mul_lo_u32 {v(t3)}, {v(t3)}, {v(t4)}
        v_lshl_add_u32 {v(t3)}, {v(t5)}, 1, {v(t3)}
        v_cndmask_b32 {v(t0)}, {v(t0)}, {v(t3)}, {HM}
        v_lshlrev_b32 {v(t4)}, 6, {v(t4)}
        v_mov_b32 {v(t5)}, 128
        v_cndmask_b32 {v(JS)}, {v(t5)}, {v(t4)}, {HM}
        ''')
        for z in range(2):
            a(f'''
            v_mov_b32 {v(t1)}, s{80 + z}
            v_mov_b32 {v(t2)}, s{82 + z}
            v_cndmask_b32 {v(t1)}, {v(t1)}, {v(t2)}, s[60:61]
            v_mov_b32 {v(t2)}, s{70 + z}
            v_cndmask_b32 {v(t1)}, {v(t1)}, {v(t2)}, s[58:59]
            v_mov_b32 {v(t2)}, s{68 + z}
            v_cndmask_b32 {v(JA + z)}, {v(t2)}, {v(t1)}, {HM}
            ''')
        a(f'''
        v_add_co_u32 {v(JA)}, vcc, {v(JA)}, {v(t0)}
        s_nop 1
        v_addc_co_u32 {v(JA + 1)}, vcc, 0, {v(JA + 1)}, vcc
        {lab}:
        ''')
        for c in range(JIT, JITD):
            jit(c)
    srd(a, 4, 76, 256)
    lab = a.label('nononce')
    a(f'''
    s_or_b32 s44, s2, s26
    s_cmp_lg_u32 s44, 0
    s_cbranch_scc1 {lab}
    s_memrealtime s[44:45]
    s_waitcnt lgkmcnt(0)
    s_or_b32 s44, s44, 1
    v_mov_b32 {v(t0)}, s44
    s_mov_b64 exec, 1
    buffer_store_dword {v(t0)}, off, s[4:7], 0 sc1
    s_mov_b64 exec, -1
    {lab}:
    ''')
    vm.add('nonce', 1, optional=True)
    a(f'''
    s_and_b32 s56, s28, 3
    v_lshrrev_b32 {v(t0)}, 1, {v(vR)}
    v_and_b32 {v(t0)}, 7, {v(t0)}
    v_xor_b32 {v(t0)}, {v(t0)}, {v(vH)}
    s_lshl_b32 s44, s26, 1
    v_xor_b32 {v(t0)}, s44, {v(t0)}
    v_lshlrev_b32 {v(t3)}, 7, {v(vR)}
    v_lshl_add_u32 {v(t0)}, {v(t0)}, 4, {v(t3)}
    s_lshl_b32 s44, s56, 12
    v_add_u32 {v(vKX)}, s44, {v(t0)}
    v_bfe_u32 {v(t0)}, {v(vL)}, 2, 2
    v_lshl_add_u32 {v(t0)}, {v(vH)}, 3, {v(t0)}
    v_mul_u32_u24 {v(t0)}, 40, {v(t0)}
    v_bfe_u32 {v(t3)}, {v(vL)}, 4, 1
    v_and_b32 {v(t4)}, 3, {v(vL)}
    v_lshl_add_u32 {v(t3)}, {v(t3)}, 2, {v(t4)}
    v_min_u32 {v(t3)}, 4, {v(t3)}
    v_lshl_add_u32 {v(t0)}, {v(t3)}, 3, {v(t0)}
    s_mul_i32 s44, s26, 640
    s_add_u32 s44, s44, {LDS_KV}
    v_add_u32 {v(vKW)}, s44, {v(t0)}
    ''')
    for i in range(16):
        a(f'v_mov_b32 {v(AKV + i)}, 0')

    if LATE1:
        a_start(1)
        vm.add('c1', 4)
        vm.add('c1', 1, optional=True)

    def colsum(src_tag_wait, store_code):
        a(f's_waitcnt vmcnt({src_tag_wait})')
        a(f'''
        v_lshlrev_b32 {v(t0)}, 16, {v(CR)}
        v_and_b32 {v(t1)}, 0xffff0000, {v(CR)}
        ''')
        for t in range(1, 20):
            a(f'''
            v_lshlrev_b32 {v(t2)}, 16, {v(CR + t)}
            v_and_b32 {v(t3)}, 0xffff0000, {v(CR + t)}
            v_add_f32 {v(t0)}, {v(t0)}, {v(t2)}
            v_add_f32 {v(t1)}, {v(t1)}, {v(t3)}
            ''')
        a(f'''
        s_nop 1
        v_permlane32_swap_b32 {v(t0)}, {v(t1)}
        s_nop 1
        v_add_f32 {v(t0)}, {v(t0)}, {v(t1)}
        v_cvt_pk_bf16_f32 {v(t1)}, {v(t0)}, {v(t0)}
        v_and_b32 {v(t1)}, 0xffff0000, {v(t1)}
        v_sub_f32 {v(t1)}, {v(t0)}, {v(t1)}
        v_cvt_pk_bf16_f32 {v(t0)}, {v(t0)}, {v(t1)}
        ''')
        store_code()

    a('''
    s_lshl_b32 s41, s27, 10
    s_and_b32 s44, s28, 11
    s_cmp_eq_u32 s44, 0
    s_cselect_b32 s42, 1, 0
    s_cmp_eq_u32 s26, 3
    s_cselect_b32 s42, s42, 0
    ''')

    lines, load_cs, load_rows, fill_cs, fill_rows = stat_code(vL, vH, vR, RD, XR, RD + 20, RD + 28, RD + 36, 's43', 's101')
    PZ, pa, pb = RD + 40, RD + 44, RD + 45
    poison = [f'v_mov_b32 {v(PZ + q)}, -1' for q in range(4)] + lines(f'''
    v_lshlrev_b32 {v(pa)}, 4, {v(vL)}
    v_lshlrev_b32 {v(pb)}, 3, {v(vL)}
    s_lshr_b32 s44, s30, 2
    s_lshl_b32 s46, s29, 1
    s_add_u32 s46, s46, s44
    s_mul_i32 s46, s46, 40960
    s_and_b32 s44, s30, 3
    s_lshl_b32 s44, s44, 2
    s_add_u32 s44, s44, s26
    s_lshl_b32 s45, s44, 11
    s_add_u32 s45, s45, s46
    s_add_u32 s45, s45, {OF_OFF}
    buffer_store_dwordx4 {v(PZ, 4)}, {v(pa)}, s[20:23], s45 offen sc1
    buffer_store_dwordx4 {v(PZ, 4)}, {v(pa)}, s[20:23], s45 offen offset:1024 sc1
    s_lshl_b32 s45, s44, 9
    s_add_u32 s45, s45, s46
    s_add_u32 s45, s45, {OF_OFF + 32768}
    buffer_store_dwordx2 {v(PZ, 2)}, {v(pb)}, s[20:23], s45 offen sc1
    s_mul_i32 s44, s27, 163840
    s_mul_i32 s45, s28, 10240
    s_add_u32 s44, s44, s45
    s_mul_i32 s45, s26, 2560
    s_add_u32 s44, s44, s45
    s_add_u32 s44, s44, {QF_OFF}
    buffer_store_dwordx4 {v(PZ, 4)}, {v(pa)}, s[20:23], s44 offen sc1
    buffer_store_dwordx4 {v(PZ, 4)}, {v(pa)}, s[20:23], s44 offen offset:1024 sc1
    buffer_store_dwordx2 {v(PZ, 2)}, {v(pb)}, s[20:23], s44 offen offset:2048 sc1
    ''')
    afill = {}
    if AST:
        wait_sl = lambda: f's_waitcnt vmcnt({vm.wait("sl")})'
        comp0 = [wait_sl] + fill_rows() + fill_cs()
        comp = []
        for it in comp0:
            if comp and isinstance(comp[-1], str) and comp[-1].startswith('s_cmp'):
                comp[-1] = [comp[-1], it]
            else:
                comp.append(it)
        afill[0] = load_rows() + load_cs() + (poison if APZ == 0 else [])
        nC = len(comp)
        for q in range(ASP):
            afill[ASS + q] = comp[(q * nC) // ASP:((q + 1) * nC) // ASP]
        if APZ:
            afill[APZ] = poison + afill.get(APZ, [])
    AFL = ASS + ASP + 1
    if AST == 2:
        def glue(l):
            o = []
            for it in l:
                if o and isinstance(o[-1], str) and o[-1].startswith('s_cmp'):
                    o[-1] = [o[-1], it]
                else:
                    o.append(it)
            return o

        def merge(x, y):
            o = []
            n = max(len(x), 1)
            k = 0
            for q, it in enumerate(x):
                o.append(it)
                while k < len(y) and k * n < (q + 1) * len(y):
                    o.append(y[k])
                    k += 1
            return o + y[k:]
        cs = glue(fill_cs())
        ksp = poison.index('s_mul_i32 s44, s27, 163840')
        pO, pQ = poison[:ksp], poison[ksp:]
        h_ = len(cs) * 3 // 5
        rows_wait = lambda: f's_waitcnt vmcnt({vm.wait("sl")})'
        afill = {0: load_rows(), 1: load_cs()[:7] + [rows_wait] + merge(fill_rows(), load_cs()[7:]),
                 2: [rows_wait] + cs[:h_] + pO[:6] + pQ, 3: cs[h_:] + pO[6:]}
        AFL = 5

    def kv_step(c, part):
        st = c % 3
        lab = a.label('kvs')
        a(f's_cmp_eq_u32 s54, 0\ns_cbranch_scc1 {lab}')
        if part == 0:
            a(f'''
            ds_read_b128 {v(KXF, 4)}, {v(vKX)} offset:{LDS_X + st * 16384}
            ds_read_b64_tr_b16 {v(KWF, 2)}, {v(vKW)} offset:{st * 3072}
            ds_read_b64_tr_b16 {v(KWF + 2, 2)}, {v(vKW)} offset:{st * 3072 + 160}
            ''')
        else:
            a('s_waitcnt lgkmcnt(0)')
            a(mfma16(AKV, KWF, KXF, AKV))
        a(f'{lab}:')

    for c in range(10):
        a.c(f'aux chunk {c}')
        if c == 0:
            stamp(a, 22)
        if c <= 8:
            nw_ = vm.wait(f'c{c}')
            if c == 5:
                nw_ = min(nw_, vm.wait('kst'), vm.wait('nl'))
            if AST and c == AFL:
                nw_ = min(nw_, vm.wait('st'), vm.wait('nl'))
            a(f's_waitcnt vmcnt({nw_})')
        else:
            a('s_waitcnt vmcnt(0)')
        a('s_barrier')
        if not FEWST or c in (0, 1, 2, 9):
            stamp(a, 1 + c)
        if asmlib.STAMPS:
            vm.add('stamp', 1, optional=True)
        if c == (AFL - 2 if AST else 3):
            a(f'buffer_load_dword {v(PF)}, off, s[4:7], 0 sc1')
            vm.add('nl', 1)
        kv_step(c, 0)
        if c == P3C:
            ROW5 = f'''
            s_add_u32 s57, s27, 1
            s_and_b32 s57, s57, 15
            s_lshl_b32 s57, s57, 13
            s_add_u32 s57, s57, {F_ST}
            buffer_load_dwordx2 {v(FX + 8, 2)}, {v(T + 10)}, s[20:23], s57 offen sc1
            '''
            lab = a.label('nop3')
            a(f'''
            v_lshlrev_b32 {v(T + 8)}, 3, {v(vL)}
            v_lshlrev_b32 {v(T + 10)}, 7, {v(vL)}
            v_and_b32 {v(T + 11)}, 0x780, {v(T + 10)}
            s_cmp_lg_u32 s26, 3
            s_cbranch_scc1 {lab}
            s_lshl_b32 s44, s27, 13
            s_add_u32 s44, s44, {F_ST}
            s_lshl_b32 s45, s28, 13
            s_add_u32 s45, s45, {F_CS}
            s_and_b32 s58, s28, 4
            s_lshl_b32 s58, s58, 9
            s_add_u32 s58, s58, {F_KC}
            ''')
            a(f'''
            s_mov_b32 s60, s44
            s_mov_b32 s61, s45
            s_lshr_b32 s59, s29, 1
            s_lshl_b32 s59, s59, 13
            s_add_u32 s59, s59, {F_ST}
            buffer_load_dwordx2 {v(FX + 6, 2)}, {v(T + 10)}, s[20:23], s59 offen sc1
            {ROW5 if KVP else ''}
            buffer_load_dwordx2 {v(FX, 2)}, {v(T + 10)}, s[20:23], s60 offen sc1
            buffer_load_dwordx2 {v(FX + 2, 2)}, {v(T + 10)}, s[20:23], s61 offen sc1
            buffer_load_dwordx2 {v(FX + 4, 2)}, {v(T + 11)}, s[20:23], s58 offen sc1
            {lab}:
            ''')
        jit(c + JITD)
        if (1 if EARLY2 else 0) <= c and c + 2 < 10:
            if AST and c == ASS:
                a('s_setprio 0')
            dma_group(c + 2, fill=afill.get(c, ()))
            if AST and c == AFL - 2:
                a(f's_setprio {PRIO1}')
        kv_step(c, 1)
        if c == P3C:
            lab = a.label('nop3b')
            a(f'''
            s_cmp_lg_u32 s26, 3
            s_cbranch_scc1 {lab}
            s_waitcnt vmcnt(12)
            v_cmp_eq_u64 vcc, s[98:99], {v(FX, 2)}
            v_cmp_eq_u64 s[46:47], s[98:99], {v(FX + 2, 2)}
            v_cmp_eq_u64 s[44:45], s[98:99], {v(FX + 4, 2)}
            v_cmp_eq_u64 s[48:49], s[98:99], {v(FX + 6, 2)}
            {f'v_cmp_eq_u64 s[50:51], s[98:99], {v(FX + 8, 2)}' if KVP else ''}
            s_nop 1
            {'s_and_b64 vcc, vcc, s[50:51]' if KVP else ''}
            s_and_b64 vcc, vcc, s[46:47]
            s_and_b64 vcc, vcc, s[44:45]
            s_and_b64 vcc, vcc, s[48:49]
            s_cmp_eq_u64 vcc, -1
            s_cbranch_scc1 {lab}
            ''')
            polln(a, FX, [T + 10, T + 10, T + 11], [('s60', None), ('s61', None), ('s58', None)], 4)
            polln(a, FX, [T + 10, T + 10], [('s59', None), ('s57', None)][:1 + KVP], 4)
            a(f'{lab}:')
        if c == 2:
            lab = a.label('nokvcs')
            a(f'''
            s_cmp_eq_u32 s42, 0
            s_cbranch_scc1 {lab}
            s_mul_i32 s44, s27, 40
            v_add_u32 {v(t1)}, s44, {v(vH)}
            v_mul_u32_u24 {v(t2)}, 40, {v(t1)}
            v_lshl_add_u32 {v(t2)}, {v(vR)}, 2, {v(t2)}
            ''')
            for t in range(20):
                a(f'buffer_load_dword {v(CR + t)}, {v(t2)}, s[16:19], 0 offen offset:{80 * t}')
            a(f'{lab}:')
            vm.add('kcr', 20, optional=True)
        if c == 3:
            lab = a.label('nokvcs2')
            a(f's_cmp_eq_u32 s42, 0\ns_cbranch_scc1 {lab}')

            def kcs_store():
                a(f'''
                v_lshl_add_u32 {v(t1)}, {v(vR)}, 1, {v(vH)}
                v_lshlrev_b32 {v(t2)}, 2, {v(t1)}
                v_mov_b32 {v(t3)}, 0x7f000000
                v_cmp_gt_u32 vcc, 32, {v(t1)}
                s_lshl_b32 s44, s28, 9
                s_lshl_b32 s45, s27, 7
                s_add_u32 s44, s44, s45
                s_add_u32 s44, s44, {CSKVW}
                v_cndmask_b32 {v(t2)}, {v(t3)}, {v(t2)}, vcc
                buffer_store_dword {v(t0)}, {v(t2)}, s[20:23], s44 offen sc1
                ''')
            colsum(vm.wait('kcr'), kcs_store)
            a(f'{lab}:')
            vm.add('kst', 1, optional=True)
        if c == (AFL if AST else 5):
            Lp = a.label('np')
            Lq = a.label('npd')
            Lr = a.label('nokcf')
            a(f'''
            s_mov_b32 s93, {POLL_MAX}
            {Lp}:
            v_readfirstlane_b32 s98, {v(PF)}
            s_cmp_lg_u32 s98, 0
            s_cbranch_scc1 {Lq}
            s_sub_u32 s93, s93, 1
            s_cbranch_scc1 {Lq}
            buffer_load_dword {v(PF)}, off, s[4:7], 0 sc1
            s_waitcnt vmcnt(0)
            s_branch {Lp}
            {Lq}:
            s_xor_b32 s99, s98, {NONCE_X}
            ''')
            if AST:
                flag_store(a, 's43', T + 2)
                flag_store(a, 's101', T + 2)
                lab = a.label('noxid')
                a(f'''
                s_cmp_lg_u32 s26, 0
                s_cbranch_scc1 {lab}
                v_mov_b32 {v(T)}, {NONCE_A}
                ds_write_b32 {v(T)}, {v(T + 2)}
                s_getreg_b32 s44, hwreg(HW_REG_XCC_ID, 0, 4)
                s_lshl_b32 s45, s29, 7
                s_lshl_b32 s46, s30, 3
                s_add_u32 s45, s45, s46
                s_add_u32 s45, s45, {F_X}
                v_mov_b32 {v(T + 3)}, s44
                s_mov_b64 exec, 1
                buffer_store_dwordx2 {v(T + 2, 2)}, off, s[20:23], s45 sc1
                s_mov_b64 exec, -1
                s_waitcnt lgkmcnt(0)
                {lab}:
                ''')
                vm.add('fl', 2)
                vm.add('fl', 1, optional=True)
        if c == 5:
            Lr = a.label('nokcf')
            a(f'''
            s_lshl_b32 s44, s28, 9
            s_lshl_b32 s45, s27, 7
            s_add_u32 s44, s44, s45
            s_add_u32 s44, s44, {F_KC}
            s_cmp_eq_u32 s42, 0
            s_cbranch_scc1 {Lr}
            ''')
            flag_store(a, 's44', T + 2)
            a(f'{Lr}:')
            vm.add('fl', 1, optional=True)
        if P1PF and c in (6, 7):
            if c == 6:
                srd(a, 4, WDP, 2211840)
                a(f'''
                s_lshr_b32 s44, s2, 6
                s_mul_i32 s44, s44, {432 * 1280}
                s_bfe_u32 s45, s2, 0x30003
                s_mul_i32 s45, s45, {180 * 128}
                s_add_u32 s44, s44, s45
                s_mul_i32 s45, s26, {45 * 128}
                s_add_u32 s57, s44, s45
                v_lshlrev_b32 {v(PF + 1)}, 7, {v(vL)}
                ''')
            for z in range(2 if c == 6 else 1):
                a(f'''
                s_mov_b32 exec_hi, {(1 << 13) - 1}
                buffer_load_dword v165, {v(PF + 1)}, s[4:7], s57 offen
                s_mov_b32 exec_hi, -1
                s_add_u32 s57, s57, {144 * 1280}
                ''')
                vm.add('pf', 1)
        if c == 8:
            a(f'''
            v_lshlrev_b32 {v(T + 9)}, 4, {v(vL)}
            s_lshl_b32 s44, s28, 14
            s_lshl_b32 s45, s26, 12
            s_add_u32 s44, s44, s45
            s_add_u32 s44, s44, {CSW}
            ''')
            for e in range(4):
                a(f'''
                s_add_u32 m0, s45, {CS_A + 1024 * e}
                s_nop 0
                buffer_load_dwordx4 {v(T + 9)}, s[20:23], s44 offen{LD} lds
                s_add_u32 s44, s44, 1024
                ''')
            lab = a.label('norc')
            a(f'''
            s_cmp_lg_u32 s26, 0
            s_cbranch_scc1 {lab}
            s_lshl_b32 s44, s27, 11
            s_add_u32 s44, s44, {ROWW}
            s_mov_b32 m0, {ROWC_A}
            s_and_b32 s45, s28, 4
            buffer_load_dwordx4 {v(T + 9)}, s[20:23], s44 offen{LD} lds
            buffer_load_dwordx4 {v(T + 9)}, s[20:23], s44 offen offset:1024{LD} lds
            s_lshl_b32 s45, s45, 9
            s_add_u32 s45, s45, {CSKVW}
            s_mov_b32 m0, {CSKV_A}
            s_nop 0
            buffer_load_dwordx4 {v(T + 9)}, s[20:23], s45 offen{LD} lds
            buffer_load_dwordx4 {v(T + 9)}, s[20:23], s45 offen offset:1024{LD} lds
            {lab}:
            ''')
    L_p2 = a.label('auxp2')
    L_v = a.label('vepi')
    L_a0 = a.label('aux0f')
    lab = a.label('nokvfin')
    lab2 = a.label('nofix')
    a(f'''
    s_cmp_eq_u32 s54, 0
    s_cbranch_scc1 {lab}
    s_cmp_lg_u32 s26, 0
    s_cbranch_scc1 {lab2}
    s_lshl_b32 s44, s56, 9
    s_add_u32 s44, s44, {ROWC_A}
    v_lshl_add_u32 {v(t0)}, {v(vR)}, 4, s44
    v_lshlrev_b32 {v(t1)}, 2, {v(vR)}
    v_lshl_add_u32 {v(t1)}, {v(vH)}, 9, {v(t1)}
    v_add_u32 {v(t1)}, {CSKV_A}, {v(t1)}
    v_add_u32 {v(t2)}, 1024, {v(t1)}
    ds_read_b128 {v(FX, 4)}, {v(t0)}
    ds_read2_b32 {v(FX + 8, 2)}, {v(t1)} offset0:0 offset1:32
    ds_read2_b32 {v(FX + 10, 2)}, {v(t1)} offset0:64 offset1:96
    ds_read2_b32 {v(FX + 12, 2)}, {v(t2)} offset0:0 offset1:32
    ds_read2_b32 {v(FX + 14, 2)}, {v(t2)} offset0:64 offset1:96
    s_waitcnt lgkmcnt(4)
    v_mov_b32 {v(FX + 4)}, {v(FX)}
    v_mov_b32 {v(FX + 5)}, {v(FX)}
    v_mov_b32 {v(FX + 6)}, {v(FX)}
    v_mov_b32 {v(FX + 7)}, {v(FX)}
    s_waitcnt lgkmcnt(0)
    s_nop 1
    {mfma16(AKV, FX + 8, FX + 4, AKV)}
    {mfma16(AKV, FX + 12, FX + 4, AKV)}
    s_branch {L_a0}
    {lab2}:
    s_lshl_b32 s44, s26, 12
    v_add_u32 {v(t0)}, s44, {v(T + 9)}
    s_lshl_b32 s44, s26, 2
    s_add_u32 s44, s44, {PD_A}
    v_mov_b32 {v(t1)}, s44
    v_mov_b32 {v(t2)}, s98
    s_nop 11
    ''')
    for q in range(3):
        a(f'ds_write_b128 {v(t0)}, {v(AKV + 4 * q, 4)} offset:{PART_A + 1024 * q}')
    L_sp = a.label('pspin')
    L_spd = a.label('pspind')
    a(f'''
    s_waitcnt lgkmcnt(0)
    ds_write_b32 {v(t1)}, {v(t2)}
    {lab}:
    s_branch {L_p2}
    {L_a0}:
    v_mov_b32 {v(t1)}, {PD_A}
    s_mov_b32 s93, {POLL_MAX * 8}
    {L_sp}:
    ds_read_b128 {v(T + 4, 4)}, {v(t1)}
    s_waitcnt lgkmcnt(0)
    v_xor_b32 {v(T + 5)}, s98, {v(T + 5)}
    v_xor_b32 {v(T + 6)}, s98, {v(T + 6)}
    v_xor_b32 {v(T + 7)}, s98, {v(T + 7)}
    v_or3_b32 {v(T + 5)}, {v(T + 5)}, {v(T + 6)}, {v(T + 7)}
    s_nop 0
    v_readfirstlane_b32 s44, {v(T + 5)}
    s_cmp_eq_u32 s44, 0
    s_cbranch_scc1 {L_spd}
    s_sub_u32 s93, s93, 1
    s_cbranch_scc0 {L_sp}
    {L_spd}:
    ''')
    stamp(a, 12)
    for w in range(1, 4):
        for q in range(3):
            a(f'ds_read_b128 {v(RD + 12 * (w - 1) + 4 * q, 4)}, {v(T + 9)} offset:{PART_A + 4096 * w + 1024 * q}')
    a(f'''
    s_lshl_b32 s57, s27, 2
    s_add_u32 s57, s57, s56
    s_lshr_b32 s44, s57, 1
    s_mul_i32 s44, s44, 7168
    s_add_u32 s44, s44, {KV_OFF}
    s_and_b32 s45, s57, 1
    s_and_b32 s58, s28, 4
    s_lshl_b32 s58, s58, 4
    s_add_u32 s58, s58, s57
    s_lshl_b32 s58, s58, 7
    s_add_u32 s58, s58, {F_KV}
    s_waitcnt lgkmcnt(0)
    ''')
    for i in range(12):
        a(f'v_add_f32 {v(AKV + i)}, {v(AKV + i)}, {v(RD + i)}')
        a(f'v_add_f32 {v(RD + 12 + i)}, {v(RD + 12 + i)}, {v(RD + 24 + i)}')
    for i in range(12):
        a(f'v_add_f32 {v(AKV + i)}, {v(AKV + i)}, {v(RD + 12 + i)}')
    for i in range(12):
        a(f'v_mul_f32 {v(AKV + i)}, {v(AKV + i)}, {v(FX + 1)}')
    PK = RD
    for i in range(6):
        a(f'v_cvt_pk_bf16_f32 {v(PK + i)}, {v(AKV + 2 * i)}, {v(AKV + 2 * i + 1)}')
    L_kvf = a.label('kvflag')
    a(f'''
    s_bitcmp1_b32 s28, 2
    s_cbranch_scc1 {L_v}
    v_mov_b32 {v(t0)}, 0x3f803f80
    v_mov_b32 {v(t1)}, 0x00003f80
    v_cndmask_b32 {v(PK + 4)}, {v(PK + 4)}, {v(t0)}, {HM}
    v_cndmask_b32 {v(PK + 5)}, {v(PK + 5)}, {v(t1)}, {HM}
    s_lshl_b32 s46, s45, 10
    s_add_u32 s46, s46, s44
    s_lshl_b32 s47, s45, 9
    s_add_u32 s47, s47, s44
    buffer_store_dwordx4 {v(PK, 4)}, {v(T + 9)}, s[20:23], s46 offen sc1
    buffer_store_dwordx2 {v(PK + 4, 2)}, {v(T + 8)}, s[20:23], s47 offen offset:2048 sc1
    s_branch {L_kvf}
    {L_v}:
    v_mov_b32 {v(t0)}, 0
    v_cndmask_b32 {v(PK + 4)}, {v(PK + 4)}, {v(t0)}, {HM}
    v_cndmask_b32 {v(PK + 5)}, {v(PK + 5)}, {v(t0)}, {HM}
    v_mov_b32 {v(PK + 6)}, 0x00003f80
    v_mov_b32 {v(PK + 7)}, 0
    v_lshlrev_b32 {v(t0)}, 6, {v(vR)}
    v_lshl_add_u32 {v(t0)}, {v(vH)}, 3, {v(t0)}
    ds_write_b64 {v(t0)}, {v(PK, 2)} offset:{VT_A}
    ds_write_b64 {v(t0)}, {v(PK + 2, 2)} offset:{VT_A + 16}
    ds_write_b64 {v(t0)}, {v(PK + 4, 2)} offset:{VT_A + 32}
    ds_write_b64 {v(t0)}, {v(PK + 6, 2)} offset:{VT_A + 48}
    v_bfe_u32 {v(t1)}, {v(vL)}, 2, 2
    v_lshl_add_u32 {v(t1)}, {v(vH)}, 2, {v(t1)}
    v_lshlrev_b32 {v(t1)}, 6, {v(t1)}
    v_bfe_u32 {v(t2)}, {v(vL)}, 4, 1
    v_lshl_add_u32 {v(t1)}, {v(t2)}, 5, {v(t1)}
    v_and_b32 {v(t2)}, 3, {v(vL)}
    v_lshl_add_u32 {v(t1)}, {v(t2)}, 3, {v(t1)}
    s_waitcnt lgkmcnt(0)
    ds_read_b64_tr_b16 {v(PK + 8, 2)}, {v(t1)} offset:{VT_A}
    ds_read_b64_tr_b16 {v(PK + 10, 2)}, {v(t1)} offset:{VT_A + 512}
    ds_read_b64_tr_b16 {v(PK + 12, 2)}, {v(t1)} offset:{VT_A + 1024}
    ds_read_b64_tr_b16 {v(PK + 14, 2)}, {v(t1)} offset:{VT_A + 1536}
    s_lshl_b32 s46, s45, 11
    s_add_u32 s46, s46, s44
    s_add_u32 s46, s46, 3072
    s_waitcnt lgkmcnt(0)
    buffer_store_dwordx4 {v(PK + 8, 4)}, {v(T + 9)}, s[20:23], s46 offen sc1
    buffer_store_dwordx4 {v(PK + 12, 4)}, {v(T + 9)}, s[20:23], s46 offen offset:1024 sc1
    {L_kvf}:
    s_waitcnt vmcnt(0)
    ''')
    flag_store(a, 's58', T + 2)
    a(f'{L_p2}:')
    stamp(a, 13)

    a.c('=========== aux wave: phase 2 ===========')
    al = Alloc(4, 164)
    T = al('T', 8, 4)
    vWD = al('wd', 3)
    vWA = al('wa', 3)
    vHL = al('hl')
    vKO = al('ko')
    vPF = al('pf')
    ACC = al('acc', 80, 4)
    SL = al('slots', 60, 4)
    wreg = lambda k: SL + 20 * (k % 3)
    hreg = lambda k: SL + 20 * (k % 3) + 12
    a(f's_setprio {PRIO2}')
    g2_ids(a)
    srd(a, 12, WDP, 2211840)
    srd(a, 16, 84, 819200)
    a(f"""
    s_mul_i32 s44, s26, 27
    s_mul_i32 s41, s59, 108
    s_add_u32 s41, s41, s44
    s_lshl_b32 s41, s41, 10
    s_mul_i32 s42, s60, 108
    s_add_u32 s42, s42, s44
    s_lshl_b32 s42, s42, 10
    s_lshr_b32 s43, s44, 1
    s_mul_i32 s43, s43, 40960
    s_and_b32 s45, s44, 1
    s_mul_i32 s52, s45, 10240
    s_add_u32 s43, s43, s52
    s_mul_i32 s52, s45, 20480
    s_add_u32 s52, s52, 10240
    s_mov_b32 s48, 40960
    s_lshl_b32 s44, s26, 3
    s_mul_i32 s56, s44, 25600
    s_mul_i32 s54, s59, 40
    s_add_u32 s54, s54, s44
    s_lshl_b32 s54, s54, 10
    s_add_u32 s54, s54, {OF_OFF}
    s_mul_i32 s55, s60, 40
    s_add_u32 s55, s55, s44
    s_lshl_b32 s55, s55, 10
    s_add_u32 s55, s55, {OF_OFF}
    s_and_b32 s44, s26, 1
    s_mul_i32 s39, s44, 21504
    s_lshr_b32 s44, s26, 1
    s_mul_i32 s44, s44, {WO_HI}
    s_add_u32 s39, s39, s44
    s_mov_b32 s40, s39
    s_mov_b32 s45, 0x15556
    v_lshlrev_b32 {v(vHL)}, 4, {v(vL)}
    v_lshlrev_b32 {v(vPF)}, 7, {v(vL)}
    s_lshl_b32 s36, s26, 12
    s_min_u32 s36, s36, 11264
    v_add_u32 {v(vKO)}, s36, {v(vHL)}
    """)
    for p in range(3):
        a(f"""
        v_add_u32 {v(T)}, {64 * p}, {v(vL)}
        v_mul_lo_u32 {v(T + 1)}, {v(T)}, s45
        v_lshrrev_b32 {v(T + 1)}, 20, {v(T + 1)}
        v_mul_u32_u24 {v(T + 2)}, 12, {v(T + 1)}
        v_sub_u32 {v(T + 2)}, {v(T)}, {v(T + 2)}
        v_and_b32 {v(T)}, 8, {v(T + 1)}
        v_add_u32 {v(T + 1)}, {v(T + 1)}, {v(T)}
        v_mul_u32_u24 {v(T + 1)}, 1280, {v(T + 1)}
        v_lshl_add_u32 {v(T + 1)}, {v(T + 2)}, 4, {v(T + 1)}
        v_add_u32 {v(vWD + p)}, s61, {v(T + 1)}
        """)
    a(f"""
    v_bfe_u32 {v(T)}, {v(vL)}, 2, 2
    v_lshl_add_u32 {v(T)}, {v(vH)}, 2, {v(T)}
    v_mul_u32_u24 {v(T)}, 192, {v(T)}
    v_bfe_u32 {v(T + 1)}, {v(vL)}, 4, 1
    v_lshl_add_u32 {v(T)}, {v(T + 1)}, 5, {v(T)}
    v_and_b32 {v(T + 1)}, 3, {v(vL)}
    v_lshl_add_u32 {v(T)}, {v(T + 1)}, 3, {v(T)}
    v_add_u32 {v(T)}, s39, {v(T)}
    s_lshl_b32 s44, s58, 6
    s_add_u32 s45, s44, 64
    s_lshl_b32 s46, s58, 7
    s_sub_u32 s46, 128, s46
    v_add_u32 {v(vWA)}, s44, {v(T)}
    v_add_u32 {v(vWA + 1)}, s45, {v(T)}
    v_add_u32 {v(vWA + 2)}, s46, {v(T)}
    """)
    vm = VM()

    def w_dma(base, off):
        out = []
        for p in range(3):
            out.append([f's_add_u32 m0, {base}, {off + p * 1024}', 's_nop 0',
                        f'buffer_load_dwordx4 {v(vWD + p)}, s[12:15], s43 offen lds'])
        out[2] += ['s_add_u32 s43, s43, s52', 's_sub_u32 s52, s48, s52']
        return out

    def h_ld(k, e):
        hs = ('s41', 's42')[e]
        return [f'buffer_load_dwordx4 {v(hreg(k) + 4 * e, 4)}, {v(vHL)}, s[20:23], {hs} offen', f's_add_u32 {hs}, {hs}, 1024']

    def w_rd(k, off):
        return [f'ds_read_b64_tr_b16 {v(wreg(k) + 4 * b + 2 * t, 2)}, {v(vWA + b)} offset:{off + 1536 * t}'
                for b in range(3) for t in range(2)]

    def g_mfmas(k):
        return [mfma16(ACC + 16 * n, wreg(k) + 4 * b, hreg(k) + 4 * e, ACC + 16 * n)
                for n, (b, e) in enumerate(((0, 0), (0, 1), (1, 0), (1, 1), (2, 0)))]

    KVADV = f's_add_u32 s38, s38, {CH_BYTES}\ns_cmp_eq_u32 s38, {KV_OFF + 16 * CH_BYTES}\ns_cselect_b32 s38, {KV_OFF}, s38'

    def kv_dma(c, fl_=''):
        st = c % NST
        lab = a.label('kv3')
        a(f's_cmp_ge_u32 s26, 2\ns_cbranch_scc1 {lab}')
        for e in (3, 0, 1, 2):
            a(f"""
            s_add_u32 m0, s36, {KVR + st * CH_BYTES + e * 1024}
            s_add_u32 s45, s38, {e * 1024}
            buffer_load_dwordx4 {v(vKO)}, s[20:23], s45 offen{fl_} lds
            """)
            if e == 3:
                a(f'{lab}:')
        a(KVADV)
        vm.add(f'kv{c}', 1, optional=True)
        vm.add(f'kv{c}', 3)

    for i in range(80):
        a(f'v_mov_b32 {v(ACC + i)}, 0')
    srd(a, 4, WDP, 2211840)
    a(f'''
    s_lshr_b32 s44, s2, 6
    s_mul_i32 s44, s44, {432 * 1280}
    s_bfe_u32 s45, s2, 0x30003
    s_lshl_b32 s45, s45, 2
    s_add_u32 s45, s45, s26
    s_mul_i32 s45, s45, {15 * 128}
    s_add_u32 s32, s44, s45
    s_mov_b32 s31, {48 * 1280}
    ''')

    a(f'''
    s_lshr_b32 s45, s30, 2
    s_lshl_b32 s46, s29, 1
    s_add_u32 s45, s45, s46
    s_mul_i32 s45, s45, 108
    s_and_b32 s46, s30, 3
    s_mul_i32 s46, s46, 27
    s_add_u32 s45, s45, s46
    s_lshl_b32 s45, s45, 10
    s_mul_i32 s46, s26, {6 * 128}
    s_add_u32 s45, s45, s46
    s_add_u32 s49, s45, 3072
    ''')

    def paced_h():
        if not PCH:
            return
        a(f'''
        s_mov_b64 exec, 0x3f
        buffer_load_dword v165, {v(vPF)}, s[20:23], s49 offen
        s_mov_b64 exec, -1
        s_add_u32 s49, s49, 3072
        ''')

    def paced():
        if not PCW:
            return
        a(f'''
        s_mov_b64 exec, 0x7fff
        buffer_load_dword v165, {v(vPF)}, s[4:7], s32 offen
        s_mov_b64 exec, -1
        s_add_u32 s32, s32, s31
        ''')
        vm.add('pf', 1)

    def cd_wait():
        L1, L2 = a.label('cdw'), a.label('cdd')
        a(f'''
        v_and_b32 {v(T + 4)}, 7, {v(vL)}
        v_lshlrev_b32 {v(T + 4)}, 2, {v(T + 4)}
        v_add_u32 {v(T + 4)}, {CD_A}, {v(T + 4)}
        s_mov_b32 s93, {POLL_MAX * 8}
        {L1}:
        ds_read_b32 {v(T + 5)}, {v(T + 4)}
        s_waitcnt lgkmcnt(0)
        v_cmp_eq_u32 vcc, s98, {v(T + 5)}
        s_nop 1
        s_cmp_eq_u64 vcc, -1
        s_cbranch_scc1 {L2}
        s_sub_u32 s93, s93, 1
        s_cbranch_scc0 {L1}
        {L2}:
        ''')

    a(f's_lshl_b32 s53, s29, 13\ns_add_u32 s53, s53, {F_QH}')

    def kv_poll(first):
        a(f's_mov_b32 s45, {F_KV}\ns_mov_b32 s44, {F_KV + 8192}')
        if first:
            m = ~((1 << (4 * KVF)) - 1) & 0xffffffffffffffff
            a(f's_mov_b32 s50, {m & 0xffffffff}\ns_mov_b32 s51, {m >> 32}\ns_sleep {KVSL}\ns_andn2_b64 exec, exec, s[50:51]')
            polln(a, T + 4, vPF, [('s45', 's[50:51]'), ('s44', 's[50:51]')], 2)
            a('s_mov_b64 exec, -1')
            cd_wait()
        else:
            polln(a, T + 4, vPF, [('s45', None), ('s44', None)], 4)
    if KVP:
        a(f's_mul_i32 s47, s27, {CH_BYTES}\ns_add_u32 s47, s47, {KV_OFF}')
        for q in (12, 13, 14, 15, 28, 29, 30, 31):
            a(f'v_mov_b32 {v(SL + q)}, 0')
        cd_wait()
        a(f'v_add_u32 {v(T + 2)}, {KVR}, {v(vKO)}')
        Lp, Lq, Lr = a.label('kp'), a.label('kpd'), a.label('kp3')
        a(f's_mov_b32 s93, {OPOLL_MAX}\n{Lp}:\ns_mov_b32 s38, s47')
        kv_dma(0, ' sc1')
        kv_dma(1, ' sc1')
        a('s_waitcnt vmcnt(0)')
        for z in range(2):
            for e in range(3):
                a(f'ds_read_b128 {v(SL + 16 * z + 4 * e, 4)}, {v(T + 2)} offset:{z * CH_BYTES + e * 1024}')
        a(f's_cmp_ge_u32 s26, 2\ns_cbranch_scc1 {Lr}')
        for z in range(2):
            a(f'ds_read_b128 {v(SL + 16 * z + 12, 4)}, {v(T + 2)} offset:{z * CH_BYTES + 3072}')
        a(f'{Lr}:\ns_waitcnt lgkmcnt(0)')
        for z in range(2):
            a(f'v_max3_u32 {v(T + z)}, {v(SL + 16 * z)}, {v(SL + 16 * z + 1)}, {v(SL + 16 * z + 2)}')
        for i in range(3, 15, 2):
            for z in range(2):
                a(f'v_max3_u32 {v(T + z)}, {v(T + z)}, {v(SL + 16 * z + i)}, {v(SL + 16 * z + i + 1)}')
        a(f'''
        v_max3_u32 {v(T)}, {v(T)}, {v(SL + 15)}, {v(SL + 31)}
        v_max_u32 {v(T)}, {v(T)}, {v(T + 1)}
        v_cmp_eq_u32 vcc, -1, {v(T)}
        s_nop 1
        s_cmp_eq_u64 vcc, 0
        s_cbranch_scc1 {Lq}
        s_sub_u32 s93, s93, 1
        s_cbranch_scc1 {Lq}
        s_sleep {KSL2}
        s_branch {Lp}
        {Lq}:
        ''')
        stamp(a, 15)
    else:
        a(f's_mov_b32 s38, {KV_OFF}')
        one_poller(a, T, 0, lambda: kv_poll(True), who=2)
        stamp(a, 15)
        kv_dma(0)
        kv_dma(1)
        kv_dma(2)

    def prefetch(kind, b=0):
        n = {'wd': 60, 'wo': 64, 'h': 54}[kind]
        lab = a.label('nopf')
        if kind != 'h':
            a(f's_cmp_eq_u32 s26, 3\ns_cbranch_scc1 {lab}')
        if kind == 'wd':
            a(f"""
            s_lshr_b32 s44, s2, 6
            s_mul_i32 s44, s44, {432 * 1280}
            s_bfe_u32 s45, s2, 0x30003
            s_mul_i32 s45, s45, {180 * 128}
            s_add_u32 s44, s44, s45
            s_mul_i32 s45, s26, {60 * 128}
            s_add_u32 s44, s44, s45
            s_add_u32 s44, s44, {144 * 1280 * b}
            """)
            r = 's[12:15]'
        elif kind == 'wo':
            a(f"""
            s_lshr_b32 s44, s2, 3
            s_mul_i32 s44, s44, {200 * 128}
            s_mul_i32 s45, s26, {68 * 128}
            s_add_u32 s44, s44, s45
            """)
            r = 's[16:19]'
        else:
            a(f"""
            s_mul_i32 s44, s29, {216 * 1024}
            s_lshl_b32 s45, s30, 2
            s_add_u32 s45, s45, s26
            s_mul_i32 s45, s45, {54 * 128}
            s_add_u32 s44, s44, s45
            """)
            r = 's[20:23]'
        m = (1 << n) - 1
        a(f"""
        s_mov_b32 exec_hi, {m >> 32}
        buffer_load_dword v165, {v(vPF)}, {r}, s44 offen
        s_mov_b32 exec_hi, -1
        {lab}:
        """)
        vm.add('pf', 1, optional=True)
    a(f's_waitcnt vmcnt({vm.wait("kv0")})')
    if NOA0:
        a(f'''
        s_lshl_b32 s44, s26, 2
        s_add_u32 s44, s44, {KL_A}
        v_mov_b32 {v(T)}, s44
        v_mov_b32 {v(T + 1)}, s98
        ds_write_b32 {v(T)}, {v(T + 1)}
        ''')
    else:
        a('s_barrier')
    stamp(a, 16)
    lab = a.label('nokv2')
    a(f's_cmp_lg_u32 s26, 2\ns_cbranch_scc1 {lab}')
    kv_poll(False)
    a(f'{lab}:')
    if LOWALL:
        a('s_setprio 0')

    def kvp(e):
        a(f'''
        s_add_u32 s44, s36, s37
        s_add_u32 m0, s44, {KVR + e * 1024}
        s_add_u32 s45, s38, {e * 1024}
        buffer_load_dwordx4 {v(vKO)}, s[20:23], s45 offen lds
        ''')

    def body(last, nw=12, fast=False, tailfill=()):
        for z in range(3):
            a(f's_waitcnt vmcnt({((12, 14, 15)[z] if fast else (nw if not last else (12, 10, 8)[z])) - 2 + PCW + PCH}) lgkmcnt(0)')
            ms = g_mfmas(z)
            if z == 2:
                a('s_setprio 3' if (BP and not LOWALL) else '')
                for b in range(3):
                    a(f'v_add_u32 {v(vWA + b)}, s33, {v(vWA + b)}')
                rd = w_rd(0, 0)
            else:
                rd = w_rd(z + 1, 3072 * (z + 1))
            if PERM_T:
                ms = [f's_setprio 0\n{m_}\ns_setprio {PERM_T}' for m_ in ms]
            elif BP and not LOWALL:
                lo = [n + 5 * z < BP for n in range(5)]
                ms = list(ms)
                order = (0, 1, 3, 2, 4)
                for q, n in enumerate(order):
                    if q == 0 or lo[q] != lo[q - 1]:
                        ms[n] = f's_setprio {0 if lo[q] else 3}\n' + ms[n]
            wd_ = w_dma('s40', 3072 * z)
            a(ms[0]); emit(a, rd[0:2]); emit(a, [wd_[0]]); a(SPACE)
            a(ms[1]); emit(a, rd[2:4]); emit(a, [wd_[1]]); a(SPACE)
            a(ms[3]); emit(a, rd[4:6]); emit(a, [wd_[2]]); a(SPACE)
            a(ms[2])
            if not last:
                emit(a, h_ld(z, 1))
            if fast and z < 2:
                kvp(2 * z)
            if z == 2:
                emit(a, tailfill)
            a(SPACE)
            a(ms[4])
            if not last:
                emit(a, h_ld(z, 0))
            if fast and z == 0:
                kvp(1)
            if fast and z == 1:
                lab = a.label('fk3')
                a(f's_cmp_ge_u32 s26, 2\ns_cbranch_scc1 {lab}')
                kvp(3)
                a(f'''
                {lab}:
                {KVADV}
                s_add_u32 s37, s37, {CH_BYTES}
                s_cmp_eq_u32 s37, {CH_BYTES * NST}
                s_cselect_b32 s37, 0, s37
                ''')
        a('s_setprio 3' if (BP and not LOWALL) else '')
        a('s_add_u32 s40, s40, s33\ns_sub_u32 s33, 0, s33')

    NSTAT = int(ENV.get('NSTAT', '4'))
    for c in range(NSTAT):
        a.c(f'aux B{c}')
        a(f's_waitcnt vmcnt({vm.wait(f"kv{c + 1}")})')
        bstamp(a, c == 0)
        a('s_barrier')
        bstamp(a)
        if c == 2:
            lab = a.label('noxc')
            a(f'''
            s_cmp_lg_u32 s26, 3
            s_cbranch_scc1 {lab}
            s_getreg_b32 s45, hwreg(HW_REG_XCC_ID, 0, 4)
            s_lshl_b32 s46, s29, 7
            s_add_u32 s46, s46, {F_X}
            v_and_b32 {v(T)}, 7, {v(vL)}
            v_lshlrev_b32 {v(T)}, 3, {v(T)}
            buffer_load_dwordx2 {v(T + 4, 2)}, {v(T)}, s[20:23], s46 offen sc1
            s_mov_b32 s44, s98
            s_waitcnt vmcnt(0)
            v_cmp_eq_u64 vcc, s[44:45], {v(T + 4, 2)}
            v_mov_b32 {v(T)}, {SX_A}
            s_nop 0
            s_cmp_eq_u64 vcc, -1
            s_cselect_b32 s44, s98, 0
            v_mov_b32 {v(T + 1)}, s44
            ds_write_b32 {v(T)}, {v(T + 1)}
            s_waitcnt lgkmcnt(0)
            {lab}:
            ''')
        if KVP and c == 0:
            kv_dma(2)
        kv_dma(c + 3)
        if WDC <= c < WDC + 2:
            for k in range(3 * (c - WDC), 3 * (c - WDC) + 3):
                emit(a, w_dma('s39', 3072 * k))
            vm.add('w', 9)
        paced()
    def wo_switch():
        L_nsw = a.label('dnsw')
        a(f"""
        s_cmp_lg_u32 s35, 8
        s_cbranch_scc1 {L_nsw}
        s_mov_b32 s12, s16
        s_mov_b32 s13, s17
        s_mov_b32 s14, 819200
        s_mov_b32 s43, s56
        s_mov_b32 s52, 25600
        s_mov_b32 s48, 51200
        s_mov_b32 s45, 0x15556
        """)
        for p in range(3):
            a(f"""
            v_add_u32 {v(T)}, {64 * p}, {v(vL)}
            v_mul_lo_u32 {v(T + 1)}, {v(T)}, s45
            v_lshrrev_b32 {v(T + 1)}, 23, {v(T + 1)}
            v_mul_u32_u24 {v(T + 1)}, {8 * 1280}, {v(T + 1)}
            v_sub_u32 {v(vWD + p)}, {v(vWD + p)}, {v(T + 1)}
            """)
        a(f"""
    {L_nsw}:
        """)

    def pace_switch():
        lab = a.label('npsw')
        a(f'''
        s_cmp_lg_u32 s35, {10 - NSTAT}
        s_cbranch_scc1 {lab}
        s_mov_b32 s4, s16
        s_mov_b32 s5, s17
        s_mov_b32 s6, 819200
        s_lshr_b32 s44, s2, 3
        s_lshl_b32 s44, s44, 2
        s_add_u32 s44, s44, s26
        s_mul_i32 s32, s44, {50 * 128}
        s_mov_b32 s31, {13 * 128}
        {lab}:
        ''')

    L_top, L_nb, L_sw, L_end2 = a.label('dtop'), a.label('dnb'), a.label('dsw'), a.label('dend')
    L_act, L_bar, L_nokv = a.label('dact'), a.label('dbar'), a.label('dnokv')
    L_s0, L_body, L_last, L_wo, L_next = a.label('ds0'), a.label('dbody'), a.label('dlast'), a.label('dwo'), a.label('dnext')
    L_w0 = a.label('dw0')
    L_f1 = a.label('df1')
    L_f2 = a.label('df2')
    L_fast = a.label('dfast')
    L_w2 = a.label('dw2')
    L_b12 = a.label('db12')
    L_bd = a.label('dbd')
    L_np = a.label('dnp')
    L_p3 = a.label('dp3')
    L_k3 = a.label('dk3')
    L_w1 = a.label('dw1')
    L_n1 = a.label('dn1')
    L_oth, L_start, L_rei, L_nsw = a.label('doth'), a.label('dstart'), a.label('drei'), a.label('dnsw')
    a(f"""
    s_mov_b32 s34, {16 - NSTAT}
    s_mov_b32 s35, 0
    s_mov_b32 s37, {((NSTAT + 3) % NST) * CH_BYTES}
    s_mov_b32 s33, 9216
    s_mov_b32 s93, {POLL_MAX}
    v_mov_b32 {v(T + 3)}, {RDY_A + 4}
    {L_top}:
    s_sub_u32 s44, s35, 2
    s_cmp_lt_u32 s44, {7 if FAST else 0}
    s_cselect_b32 s45, s34, 0
    s_cmp_gt_u32 s45, 3
    s_cbranch_scc1 {L_fast}
    s_cmp_lt_u32 s44, 8
    s_cbranch_scc1 {L_act}
    s_cmp_eq_u32 s35, 11
    s_cbranch_scc1 {L_w2}
    s_cmp_gt_u32 s35, 1
    s_cbranch_scc1 {L_w0}
    s_cmp_le_u32 s34, 3
    s_cbranch_scc1 {L_w0}
    s_cmp_eq_u32 s35, 1
    s_cbranch_scc1 {L_w1}
    s_waitcnt vmcnt(3)
    s_branch {L_bar}
    {L_w1}:
    s_waitcnt vmcnt({9 + HPF * PCH})
    s_branch {L_f1 if FAST else L_bar}
    {L_w2}:
    s_waitcnt vmcnt(12)
    s_mov_b32 s35, 12
    s_branch {L_bar}
    {L_w0}:
    s_waitcnt vmcnt(0)
    s_branch {L_bar}
    {L_act}:
    s_waitcnt vmcnt({15 + PCW + PCH})
    {L_bar}:
    s_cmp_eq_u32 s34, 0
    s_cbranch_scc1 {L_nb}
    """)
    bstamp(a)
    a('s_barrier')
    bstamp(a)
    a(f"""
    s_cmp_lg_u32 s35, 0
    s_cbranch_scc1 {L_np}
    s_cmp_lg_u32 s26, 3
    s_cbranch_scc1 {L_np}
    buffer_load_dwordx2 {v(T + 4, 2)}, {v(vPF)}, s[20:23], s53 offen sc1
    {L_np}:
    s_cmp_le_u32 s34, 3
    s_cbranch_scc1 {L_nokv}
    s_add_u32 s44, s36, s37
    s_cmp_ge_u32 s26, 2
    s_cbranch_scc1 {L_k3}
    """)
    for e in (3, 0, 1, 2):
        a(f"""
        s_add_u32 m0, s44, {KVR + e * 1024}
        s_add_u32 s45, s38, {e * 1024}
        buffer_load_dwordx4 {v(vKO)}, s[20:23], s45 offen lds
        """)
        if e == 3:
            a(f'{L_k3}:')
    a(f"""
    {KVADV}
    s_add_u32 s37, s37, {CH_BYTES}
    s_cmp_eq_u32 s37, {CH_BYTES * NST}
    s_cselect_b32 s37, 0, s37
    {L_nokv}:
    s_sub_u32 s34, s34, 1
    s_branch {L_sw}
    {L_nb}:
    s_cmp_ge_u32 s35, 11
    s_cbranch_scc1 {L_end2}
    {L_sw}:
    s_cmp_eq_u32 s35, 0
    s_cbranch_scc1 {L_s0}
    s_cmp_lt_u32 s35, 9
    s_cbranch_scc1 {L_body}
    s_cmp_eq_u32 s35, 9
    s_cbranch_scc1 {L_last}
    s_cmp_eq_u32 s35, 10
    s_cbranch_scc1 {L_wo}
    s_branch {L_top}
    {L_s0}:
    s_sub_u32 s93, s93, 1
    s_cbranch_scc1 {L_start}
    s_cmp_lg_u32 s26, 3
    s_cbranch_scc1 {L_oth}
    s_cmp_ge_u32 s34, 3
    s_cbranch_scc1 {L_p3}
    buffer_load_dwordx2 {v(T + 4, 2)}, {v(vPF)}, s[20:23], s53 offen sc1
    s_waitcnt vmcnt(0)
    {L_p3}:
    s_waitcnt vmcnt(3)
    v_cmp_eq_u64 vcc, s[98:99], {v(T + 4, 2)}
    s_lshl_b32 s45, s34, 1
    s_nop 0
    s_cmp_eq_u64 vcc, -1
    s_cselect_b32 s44, s98, s45
    v_mov_b32 {v(T + 2)}, s44
    ds_write_b32 {v(T + 3)}, {v(T + 2)}
    s_cbranch_scc1 {L_start}
    s_branch {L_top}
    {L_oth}:
    s_mov_b32 s45, 40
    {L_rei}:
    s_sleep 1
    ds_read_b32 {v(T + 2)}, {v(T + 3)}
    s_waitcnt lgkmcnt(0)
    v_readfirstlane_b32 s44, {v(T + 2)}
    s_cmp_eq_u32 s44, s98
    s_cbranch_scc1 {L_start}
    s_lshl_b32 s46, s34, 1
    s_cmp_eq_u32 s44, s46
    s_cbranch_scc1 {L_top}
    s_sub_u32 s45, s45, 1
    s_cbranch_scc0 {L_rei}
    s_branch {L_top}
    {L_start}:
    """)
    stamp(a, 23)
    for k in range(3):
        for e in range(2):
            emit(a, h_ld(k, e))
    for _ in range(HPF):
        paced_h()
    emit(a, w_rd(0, 0))
    a(f"""
    {L_next}:
    s_add_u32 s35, s35, 1
    s_branch {L_top}
    {L_body}:
    s_cmp_lg_u32 s35, 1
    s_cbranch_scc1 {L_n1}
    s_waitcnt vmcnt(0)
    {L_n1}:
    """)
    wo_switch()
    a(f"""
    s_cmp_lt_u32 s34, 3
    s_cbranch_scc1 {L_b12}
    """)
    body(False, 15)
    a(f's_branch {L_bd}\n{L_b12}:')
    body(False, 12)
    a(f'{L_bd}:')
    pace_switch()
    paced_h()
    paced()
    a(f's_branch {L_next}\n{L_last}:')
    body(True)
    a(f's_branch {L_next}\n{L_f1}:')
    bstamp(a)
    a('s_barrier')
    bstamp(a)
    L_ws, L_wsb, L_ps, L_psb = a.label('fws'), a.label('fwsb'), a.label('fps'), a.label('fpsb')
    a(f's_waitcnt vmcnt(0)\ns_branch {L_f2}\n{L_ws}:')
    wo_switch()
    a(f's_branch {L_wsb}\n{L_ps}:')
    pace_switch()
    a(f'''
    s_branch {L_psb}
    {L_fast}:
    s_cmp_eq_u32 s35, 8
    s_cbranch_scc1 {L_ws}
    {L_wsb}:
    ''')
    bstamp(a)
    a('s_barrier')
    bstamp(a)
    a(f'{L_f2}:')
    body(False, fast=True, tailfill=[f's_cmp_eq_u32 s35, {10 - NSTAT}', f's_cbranch_scc1 {L_ps}', f'{L_psb}:',
                                     's_sub_u32 s34, s34, 1', 's_add_u32 s35, s35, 1', 's_cmp_lt_u32 s35, 9',
                                     's_cselect_b32 s46, s34, 0'])
    paced_h()
    paced()
    a(f'''
    s_cmp_gt_u32 s46, 3
    s_cbranch_scc1 {L_fast}
    s_branch {L_top}
    {L_wo}:
    ''')
    stamp(a, 17)
    emit(a, w_rd(1, 3072) + w_rd(2, 6144))
    a('s_mov_b32 s45, 0x15556\ns_waitcnt lgkmcnt(0)')
    emit(a, w_dma('s39', 3072 * 3))
    emit(a, w_dma('s39', 3072 * 4))
    for p in range(3):
        a(f"""
        v_add_u32 {v(T)}, {64 * p}, {v(vL)}
        v_mul_lo_u32 {v(T + 1)}, {v(T)}, s45
        v_bfe_u32 {v(T)}, {v(T + 1)}, 22, 1
        v_lshrrev_b32 {v(T + 1)}, 23, {v(T + 1)}
        v_mul_u32_u24 {v(T)}, {36 * 1280}, {v(T)}
        v_mul_u32_u24 {v(T + 1)}, {12 * 1280}, {v(T + 1)}
        v_add3_u32 {v(vWD + p)}, {v(vWD + p)}, {v(T + 1)}, {v(T)}
        """)
    a(f's_add_u32 s43, s56, {16 * 1280}\ns_mov_b32 s52, {80 * 1280}\ns_mov_b32 s48, {160 * 1280}')
    emit(a, w_dma('s39', 3072 * 5))
    emit(a, w_dma('s39', 3072 * 6))
    a(f's_cmp_lg_u32 s34, 0\ns_cbranch_scc1 {L_next}\n{L_end2}:')
    a(f"""
    {'s_setprio 3' if LOWALL == 1 else ''}
    v_subrev_u32 {v(vWA)}, 9216, {v(vWA)}
    v_subrev_u32 {v(vWA + 1)}, 9216, {v(vWA + 1)}
    v_subrev_u32 {v(vWA + 2)}, 9216, {v(vWA + 2)}
    s_mul_i32 s44, s26, 14336
    s_add_u32 s44, s44, {OL_A}
    v_add_u32 {v(vKO)}, s44, {v(vHL)}
    v_and_b32 {v(T)}, 7, {v(vR)}
    v_xor_b32 {v(T)}, {v(T)}, {v(vH)}
    v_lshlrev_b32 {v(T + 1)}, 7, {v(vR)}
    v_add_u32 {v(T + 1)}, s39, {v(T + 1)}
    """)
    for jp in range(4):
        a(f"""
        v_xor_b32 {v(T + 2)}, {2 * jp}, {v(T)}
        v_lshl_add_u32 {v(T + 4 + jp)}, {v(T + 2)}, 4, {v(T + 1)}
        """)
    stamp(a, 18)
    a('s_barrier')
    if LOWALL == 2:
        a('s_setprio 3')
    Lp, Lq = a.label('op'), a.label('opd')
    a(f's_mov_b32 s93, {OPOLL_MAX}\n{Lp}:')
    for k in range(27, 30):
        for e in range(2):
            a(f'buffer_load_dwordx4 {v(hreg(k) + 4 * e, 4)}, {v(vHL)}, s[20:23], s{54 + e} offen offset:{1024 * (k - 27)} sc1')
    a('s_waitcnt vmcnt(0)')
    regs = [hreg(k) + i for k in range(27, 30) for i in range(8)]
    a(f'v_max3_u32 {v(T)}, {v(regs[0])}, {v(regs[1])}, {v(regs[2])}')
    for i in range(3, 23, 2):
        a(f'v_max3_u32 {v(T)}, {v(T)}, {v(regs[i])}, {v(regs[i + 1])}')
    a(f"""
    v_max_u32 {v(T)}, {v(T)}, {v(regs[23])}
    v_cmp_eq_u32 vcc, -1, {v(T)}
    s_nop 1
    s_cmp_eq_u64 vcc, 0
    s_cbranch_scc1 {Lq}
    s_sub_u32 s93, s93, 1
    s_cbranch_scc1 {Lq}
    s_sleep {OSLEEP}
    s_branch {Lp}
    {Lq}:
    """)
    stamp(a, 19)

    def o_rd(k):
        return [f'ds_read_b128 {v(hreg(k) + 4 * e, 4)}, {v(vKO)} offset:{(k - 30) * 2048 + 1024 * e}' for e in range(2)]

    for k in range(27, 30):
        emit(a, g_mfmas(k))
        emit(a, w_rd(k + 3, 3072 * (k - 27)))
    if FFL:
        L1, L2 = a.label('fw'), a.label('fd')
        a(f'''
        s_lshl_b32 s44, s26, 3
        s_add_u32 s44, s44, {OW_A}
        v_mov_b32 {v(T)}, s44
        s_mov_b32 s93, {POLL_MAX * 8}
        {L1}:
        ds_read_b64 {v(T + 2, 2)}, {v(T)}
        s_waitcnt lgkmcnt(0)
        v_readfirstlane_b32 s44, {v(T + 2)}
        v_readfirstlane_b32 s45, {v(T + 3)}
        s_xor_b32 s44, s44, s98
        s_xor_b32 s45, s45, s98
        s_or_b32 s44, s44, s45
        s_cbranch_scc0 {L2}
        s_sub_u32 s93, s93, 1
        s_cbranch_scc0 {L1}
        {L2}:
        ''')
    else:
        a('s_waitcnt lgkmcnt(0)')
        a('s_barrier')
    stamp(a, 30)
    for k in range(30, 33):
        emit(a, o_rd(k))
    XO = vWD
    assert XO % 2 == 0 and XO + 8 <= ACC
    for k in range(30, 34):
        a(f's_waitcnt lgkmcnt({ {30: 4, 31: 10, 32: 8, 33: 8}[k] })')
        emit(a, g_mfmas(k))
        emit(a, w_rd(k + 3, 3072 * (k + 3 - 30)) + o_rd(k + 3))
    g2_out(a, XO, vL, 's24', 0)
    a('s_waitcnt lgkmcnt(0)')
    wr = lambda n: [f'ds_write_b128 {v(T + 4 + jp)}, {v(ACC + 16 * n + 4 * jp, 4)} offset:{4096 * n}' for jp in range(4)]
    ms = [g_mfmas(k) for k in range(34, 37)]
    for n in range(5):
        for z in range(3):
            a(ms[z][n])
        if n >= 2:
            a('s_nop 5')
            emit(a, wr(n - 2))
    stamp(a, 20)
    a('s_nop 3')
    emit(a, wr(3))
    a('s_nop 3')
    emit(a, wr(4))
    a('s_waitcnt vmcnt(0) lgkmcnt(0)')
    a('s_barrier')
    stamp(a, 21)
    for i in range(8):
        a(f'v_mov_b32 {v(ACC + i)}, {v(XO + i)}')
    g2_out(a, ACC, vL, 's24', 1)


DESC = """; One persistent launch, 256 workgroups (one per CU), 12 waves each: waves 0-7 compute, waves 8-11 load / second GEMM.
;           split over the WGs and handed over through the workspace; K and V by the load waves; GEGLU epilogue.
;           to a two-pass true-max path.  The load waves stream K/V and run h @ wd meanwhile.
;  tail:    O @ wo, cross-wave reduction, + x, bf16 store.
"""


def build(path):
    hdr = open('parallel_sum__grouped_kv_mqa__geglu_ffn__prompt.s.ref').read().split('; Override launch')[0]
    out = hdr + f'; @launch grid=(256,1,1) block=(768,1,1) lds={LDS_TOTAL}\n' + DESC
    out += '.amdgcn_target "amdgcn-amd-amdhsa--gfx950"\n'
    out += gen()
    out += kernel_desc(KNAME, 168)
    open(path, 'w').write(out)


if __name__ == '__main__':
    import sys
    if len(sys.argv) > 2 and sys.argv[2] == 'stamp':
        asmlib.STAMPS = True
    build(sys.argv[1])
```
